```python
import torch

def _softmax(x, axis=-1):
    return torch.softmax(x, dim=axis)
def _gelu(x):
    return torch.nn.functional.gelu(x, approximate="tanh")
def _silu(x):
    return torch.nn.functional.silu(x)
def _sigmoid(x):
    return torch.sigmoid(x)
def _layernorm(x, axis=-1, eps=1e-5):
    m = x.mean(dim=axis, keepdim=True)
    v = x.var(dim=axis, keepdim=True, unbiased=False)
    return (x - m) / torch.sqrt(v + eps)
def _scatter_add(tgt, idx, src, axis=0):
    return tgt.clone().index_add_(axis, idx, src)
def _segment_sum(src, seg, n):
    out = torch.zeros((n,) + src.shape[1:], dtype=src.dtype)
    return out.index_add_(0, seg, src)
def _pad(x, pw):
    flat = tuple(v for pair in reversed(pw) for v in pair)
    return torch.nn.functional.pad(x, flat)

kernel_name = 'recurrent_scan__gqa_block_cached__glu_gated_glu__decode'

def setup_inputs():

    _w = (lambda a: (lambda t: t.to(torch.bfloat16) if t.is_floating_point() else t)(torch.as_tensor(a)))
    def _A_setup():
        B, Sq, D = 8, 1, 512
        Hq, Hkv, Sk, Dh = 32, 8, 4096, 128
        assert Hq % Hkv == 0, (Hq, Hkv)
        return {
            "x": _w((lambda *s: torch.randn(*s, dtype=torch.bfloat16) * 0.05)(B, Sq, D)),
            "k_cache": _w((lambda *s: torch.randn(*s, dtype=torch.bfloat16) * 1.6)(B, Hkv, Sk, Dh)),
            "v_cache": _w((lambda *s: torch.randn(*s, dtype=torch.bfloat16) * 0.2)(B, Hkv, Sk, Dh)),
            "wq": _w((lambda *s: torch.randn(*s, dtype=torch.bfloat16) * 1.6)(D, Hq * Dh) * (D ** -0.5)),
            "wo": _w((lambda *s: torch.randn(*s, dtype=torch.bfloat16) * 0.2)(Hq * Dh, D) * ((Hq * Dh) ** -0.5)),
        }
    _A_in = _A_setup()

    def _B_setup():
        B, S, D, F = 8, 1, 512, 1792
        return {
            "x": _w((lambda *s: torch.randn(*s, dtype=torch.bfloat16) * 0.05)(B, S, D)),
            "w_gate": _w((lambda *s: torch.randn(*s, dtype=torch.bfloat16) * 1.6)(D, F)),
            "w_up": _w((lambda *s: torch.randn(*s, dtype=torch.bfloat16) * 0.1)(D, F)),
            "w_down": _w((lambda *s: torch.randn(*s, dtype=torch.bfloat16) * 0.1)(F, D)),
        }
    _B_in = _B_setup()

    return {
        "A_x": _A_in["x"],
        "A_k_cache": _A_in["k_cache"],
        "A_v_cache": _A_in["v_cache"],
        "A_wq": _A_in["wq"],
        "A_wo": _A_in["wo"],
        "B_x": _B_in["x"],
        "B_w_gate": _B_in["w_gate"],
        "B_w_up": _B_in["w_up"],
        "B_w_down": _B_in["w_down"],
    }

def reference(A_x, A_k_cache, A_v_cache, A_wq, A_wo, B_x, B_w_gate, B_w_up, B_w_down):
    def _A_ref(x, k_cache, v_cache, wq, wo):
        B, Sq, D = x.shape
        Hq, Dh = 32, 128
        Hkv = k_cache.shape[1]
        rep = Hq // Hkv
        q = (lambda x, *d: x.permute(*d))((x @ wq).reshape(B, Sq, Hq, Dh), 0, 2, 1, 3)
        k = (lambda x, n, axis: torch.repeat_interleave(x, n, dim=axis))(k_cache, rep, axis=1)
        v = (lambda x, n, axis: torch.repeat_interleave(x, n, dim=axis))(v_cache, rep, axis=1)
        scores = torch.einsum("bhqd,bhkd->bhqk", q, k) * (Dh ** -0.5)
        p = _softmax(scores, axis=-1)
        o = torch.einsum("bhqk,bhkd->bhqd", p, v)
        return (lambda x, *d: x.permute(*d))(o, 0, 2, 1, 3).reshape(B, Sq, Hq * Dh) @ wo

    def _B_ref(x, w_gate, w_up, w_down):
        g = torch.einsum("bsd,df->bsf", x, w_gate)
        u = torch.einsum("bsd,df->bsf", x, w_up)
        h = _sigmoid(g) * u
        return torch.einsum("bsf,fd->bsd", h, w_down)

    x = A_x
    xn = _layernorm(x, axis=-1)
    s = _A_ref(xn, A_k_cache, A_v_cache, A_wq, A_wo)
    g = _silu(_B_ref(xn, B_w_gate, B_w_up, B_w_down))
    return x + s * g
```

```python
NAME = "recurrent_scan__gqa_block_cached__glu_gated_glu__decode"
KNAME = NAME + "_kernel"

HEADER = """; Fused decode step: out = x + (attention(LN(x)) @ wo) * silu(GLU(LN(x))).  One persistent launch, 256 workgroups (one per CU).
"""

class Asm:
    def __init__(self):
        self.lines = []
    def __call__(self, s=""):
        for l in s.split("\n"):
            self.lines.append(l)
    def text(self):
        return "\n".join(self.lines) + "\n"

def kernel_file(body, grid, block, lds, vgpr, sgpr=102, accum=None, kname=KNAME):
    if accum is None:
        accum = (min(vgpr, 256) + 3) // 4 * 4
    s = HEADER
    s += "; @launch grid=(%d,1,1) block=(%d,1,1) lds=%d\n" % (grid, block, lds)
    s += '.amdgcn_target "amdgcn-amd-amdhsa--gfx950"\n.text\n'
    s += ".globl %s\n.p2align 8\n.type %s,@function\n%s:\n" % (kname, kname, kname)
    s += body
    s += """
.section .rodata,"a"
.p2align 6
.amdhsa_kernel %s
  .amdhsa_next_free_vgpr %d
  .amdhsa_next_free_sgpr %d
  .amdhsa_accum_offset %d
  .amdhsa_group_segment_fixed_size 0
  .amdhsa_kernarg_size 96
  .amdhsa_user_sgpr_count 2
  .amdhsa_user_sgpr_kernarg_segment_ptr 1
  .amdhsa_system_sgpr_workgroup_id_x 1
.end_amdhsa_kernel
""" % (kname, vgpr, sgpr, accum)
    return s
```

```python
import sys
from asmlib import HEADER, KNAME

QP = 0x000000
GP = 0x080000
HH = 0x0F0000
HHDUMMY = 0x0F8000
OP = 0x100000
ST = 0x140000
DP = 0x150000
SP = 0x200000
DBGOFF = 0x400000
TSOFF = 0x0F000000

RING = 32768
MISC = 131072
XN = MISC
XN_STRIDE = 1040
QL = MISC + 8448
QL_STRIDE = 272
WOS = QL + 1088
WOS = (WOS + 255) // 256 * 256
FLG = WOS + 16384
F_H1 = 0; F_H2 = 4; F_H3 = 8; F_QOK = 12; F_QRDY = 16; F_STG = 20; F_ST = 24; F_GOK = 28; F_HOP1 = 32
SSTAT = 64
FFAC = 192
LDS_TOTAL = FLG + 256
assert LDS_TOTAL <= 163840, LDS_TOTAL
SPIN_LIMIT = 200000


class Asm:
    def __init__(self):
        self.lines = []
        self.nlab = 0

    def __call__(self, s=""):
        for l in s.split("\n"):
            self.lines.append(l)

    def lab(self, base="L"):
        self.nlab += 1
        return "%s_%d" % (base, self.nlab)

    def text(self):
        return "\n".join(self.lines) + "\n"


def vr(base, n=1):
    return "v%d" % base if n == 1 else "v[%d:%d]" % (base, base + n - 1)


def sr(base, n=1):
    return "s%d" % base if n == 1 else "s[%d:%d]" % (base, base + n - 1)


DPP = "row_mask:0xf bank_mask:0xf"


def gen(ts=False, dbg=0, rotmode=0, throttle=8):
    a = Asm()
    sW, sX, sLi, sCnt = 3, 4, 5, 6
    sT = [20, 21, 22, 23, 24, 25, 26, 27]
    TS0 = 64
    nts = [0]

    def stamp(idx):
        if ts:
            a("  s_memrealtime s[%d:%d]" % (TS0 + 2 * idx, TS0 + 2 * idx + 1))

    def lds_wait(vbase, off, n, vtmp):
        l0, l1 = a.lab("Lw"), a.lab("Lwd")
        a("  s_mov_b32 s%d, 0" % sCnt)
        a("%s:" % l0)
        a("  ds_read_b32 v%d, v%d offset:%d" % (vtmp, vbase, off))
        a("  s_waitcnt lgkmcnt(0)")
        a("  v_readfirstlane_b32 s%d, v%d" % (sT[7], vtmp))
        a("  s_cmp_ge_u32 s%d, %d" % (sT[7], n))
        a("  s_cbranch_scc1 %s" % l1)
        a("  s_add_u32 s%d, s%d, 1" % (sCnt, sCnt))
        a("  s_cmp_lt_u32 s%d, %d" % (sCnt, SPIN_LIMIT))
        a("  s_cbranch_scc0 %s" % l1)
        a("  s_sleep 1")
        a("  s_branch %s" % l0)
        a("%s:" % l1)

    def lds_add(vbase, off, vone):
        a("  s_mov_b64 exec, 1")
        a("  ds_add_u32 v%d, v%d offset:%d" % (vbase, vone, off))
        a("  s_mov_b64 exec, -1")

    def reduce_swap(op, v, t, kind):
        a("  v_mov_b32 v%d, v%d" % (t, v))
        a("  s_nop 1")
        a("  v_permlane%d_swap_b32 v%d, v%d" % (kind, v, t))
        a("  %s v%d, v%d, v%d" % (op, v, v, t))

    a("  s_cmp_ge_u32 s2, 256")
    a("  s_cbranch_scc1 L_end")
    stamp(0)
    a("  v_lshrrev_b32 v1, 6, v0")
    a("  v_and_b32 v0, 63, v0            ; lane")
    a("  v_readfirstlane_b32 s%d, v1     ; wave id" % sW)
    a("  s_and_b32 s%d, s2, 7" % sX)
    a("  s_lshr_b32 s%d, s2, 3" % sLi)
    a("  s_cmp_ge_u32 s%d, 4" % sW)
    a("  s_cbranch_scc1 L_H")

    sK, sV, sCur = 8, 12, 16
    sBaseW, sRot, sRing, sIss, sOff, sIt = 28, 29, 30, 31, 32, 33
    sM = 34
    sScale, sHi = 42, 43
    vLane = 0
    vMisc, vOne = 2, 3
    vKo, vVo, vCo = 4, 8, 12
    vKa = 16
    vVa = 20
    vTmp = 28
    vSp = 36
    vPf = 44
    vAcc = 52
    vE = 56
    vSt = 72
    vO = 104
    vQ = 136
    NV = 200

    a("  s_load_dwordx2 s[%d:%d], s[0:1], 8" % (sK, sK + 1))
    a("  s_load_dwordx2 s[%d:%d], s[0:1], 16" % (sV, sV + 1))
    sWsS = 44
    a("  s_load_dwordx2 s[%d:%d], s[0:1], 88" % (sWsS, sWsS + 1))
    a("  s_mov_b32 s%d, 0x10000000" % (sWsS + 2))
    a("  s_mov_b32 s%d, 0x20000" % (sWsS + 3))
    a("  s_mov_b32 s%d, 0x4000000" % (sK + 2))
    a("  s_mov_b32 s%d, 0x20000" % (sK + 3))
    a("  s_mov_b32 s%d, 0x4000000" % (sV + 2))
    a("  s_mov_b32 s%d, 0x20000" % (sV + 3))
    a("  s_lshr_b32 s%d, s%d, 2" % (sT[0], sLi))
    a("  s_lshl_b32 s%d, s%d, 3" % (sT[0], sT[0]))
    a("  s_add_u32 s%d, s%d, s%d" % (sT[0], sT[0], sX))
    a("  s_lshl_b32 s%d, s%d, 20" % (sT[0], sT[0]))
    a("  s_and_b32 s%d, s%d, 3" % (sT[1], sLi))
    a("  s_lshl_b32 s%d, s%d, 18" % (sT[1], sT[1]))
    a("  s_add_u32 s%d, s%d, s%d" % (sT[0], sT[0], sT[1]))
    a("  s_lshl_b32 s%d, s%d, 13" % (sT[1], sW))
    a("  s_add_u32 s%d, s%d, s%d" % (sBaseW, sT[0], sT[1]))
    if rotmode == 0:
        a("  s_mov_b32 s%d, s2" % sRot)
    elif rotmode == 1:
        a("  s_add_u32 s%d, s2, s%d" % (sRot, sLi))
    else:
        a("  s_mov_b32 s%d, 0" % sRot)
    a("  s_lshl_b32 s%d, s%d, 15" % (sRing, sW))
    a("  s_mov_b32 s%d, 0" % sIss)
    t0, t1, t2 = vTmp, vTmp + 1, vTmp + 2
    a("  v_lshrrev_b32 v%d, 4, v%d      ; g = l>>4" % (t0, vLane))
    a("  v_and_b32 v%d, 15, v%d         ; c' = l&15" % (t1, vLane))
    for i in range(4):
        a("  v_add_u32 v%d, %d, v%d" % (t2, 4 * i, t0))
        a("  v_xor_b32 v%d, v%d, v%d" % (t2, t2, t1))
        a("  v_lshlrev_b32 v%d, 4, v%d" % (t2, t2))
        a("  v_lshl_add_u32 v%d, v%d, 8, v%d" % (vKo + i, t0, t2))
    for i in range(2):
        a("  v_add_u32 v%d, %d, v%d" % (t2, 4 * i, t0))
        a("  v_lshlrev_b32 v%d, 1, v%d" % (t2, t2))
        a("  v_xor_b32 v%d, v%d, v%d" % (t2, t2, t1))
        a("  v_lshlrev_b32 v%d, 4, v%d" % (t2, t2))
        a("  v_lshl_add_u32 v%d, v%d, 8, v%d" % (vVo + i, t0, t2))
    for i in range(4):
        a("  v_mov_b32 v%d, v%d" % (vCo + i, vKo + i))
    a("  v_mov_b32 v%d, %d" % (vMisc, FLG))
    a("  v_mov_b32 v%d, 1" % vOne)
    a("  s_waitcnt lgkmcnt(0)")
    for i in range(4):
        a("  s_mov_b32 s%d, s%d" % (sCur + i, sK + i))
    a("  s_barrier                      ; B0")

    def issue_unit():
        a("  s_add_u32 s%d, s%d, s%d" % (sT[0], sIss, sRot))
        a("  s_and_b32 s%d, s%d, 7" % (sT[0], sT[0]))
        a("  s_lshl_b32 s%d, s%d, 15" % (sT[0], sT[0]))
        a("  s_add_u32 s%d, s%d, s%d" % (sOff, sT[0], sBaseW))
        a("  s_and_b32 s%d, s%d, 3" % (sT[0], sIss))
        a("  s_lshl_b32 s%d, s%d, 13" % (sT[0], sT[0]))
        a("  s_add_u32 m0, s%d, s%d" % (sT[0], sRing))
        a("  s_add_u32 s%d, s%d, 1" % (sIss, sIss))
        for i in range(4):
            a("  buffer_load_dwordx4 v%d, s[%d:%d], s%d offen offset:%d nt lds" % (vCo + i, sCur, sCur + 3, sOff, i * 1024))
        a("  s_add_u32 m0, m0, 4096")
        a("  s_add_u32 s%d, s%d, 4096" % (sOff, sOff))
        for i in range(4):
            a("  buffer_load_dwordx4 v%d, s[%d:%d], s%d offen offset:%d nt lds" % (vCo + i, sCur, sCur + 3, sOff, i * 1024))

    a("L_fill:")
    a("  s_cmp_lg_u32 s%d, 3" % sIss)
    a("  s_cbranch_scc1 L_fill_go")
    lds_wait(vMisc, F_STG, 4, vTmp + 5)
    a("L_fill_go:")
    issue_unit()
    a("  s_cmp_ge_u32 s%d, 4" % sIss)
    a("  s_cbranch_scc1 L_fill_done")
    a("  s_waitcnt vmcnt(%d)" % 4)
    a("  s_branch L_fill")
    a("L_fill_done:")
    for s in range(4):
        a("  v_add_u32 v%d, %d, v%d" % (t2, 4 * s, t0))
        a("  v_xor_b32 v%d, v%d, v%d" % (t2, t2, t1))
        a("  v_lshlrev_b32 v%d, 4, v%d" % (t2, t2))
        a("  v_lshl_add_u32 v%d, v%d, 8, v%d" % (t2, t1, t2))
        a("  v_add_u32 v%d, s%d, v%d" % (vKa + s, sRing, t2))
    t3, t4 = vTmp + 3, vTmp + 4
    a("  v_lshrrev_b32 v%d, 2, v%d" % (t2, t1))
    a("  v_lshl_add_u32 v%d, v%d, 2, v%d    ; row" % (t2, t0, t2))
    a("  v_and_b32 v%d, 7, v%d              ; row&7" % (t3, t2))
    a("  v_lshlrev_b32 v%d, 8, v%d" % (t2, t2))
    a("  v_and_b32 v%d, 3, v%d" % (t4, t1))
    a("  v_lshl_add_u32 v%d, v%d, 3, v%d" % (t2, t4, t2))
    a("  v_add_u32 v%d, s%d, v%d" % (t2, sRing, t2))
    for dt in range(8):
        a("  v_xor_b32 v%d, %d, v%d" % (t4, dt, t3))
        a("  v_lshl_add_u32 v%d, v%d, 5, v%d" % (vVa + dt, t4, t2))
    for i in range(64):
        a("  v_mov_b32 v%d, 0" % (vQ + i))
    a("  v_bfe_u32 v%d, v%d, 2, 2" % (t2, vLane))
    for t in range(4):
        a("  v_cmp_eq_u32 s[%d:%d], %d, v%d" % (sM + 2 * t, sM + 2 * t + 1, t, t2))
    a("  v_and_b32 v%d, 3, v%d" % (t2, vLane))
    a("  v_mul_u32_u24 v%d, %d, v%d" % (t2, QL_STRIDE, t2))
    a("  v_lshl_add_u32 v%d, v%d, 4, v%d" % (t2, t0, t2))
    a("  v_add_u32 v%d, %d, v%d" % (t2, QL, t2))
    a("  s_mov_b32 s%d, 0x3DB504F3      ; 128^-0.5" % sScale)
    a("  s_mov_b32 s%d, 0xffff0000" % sHi)
    stamp(1)
    lds_wait(vMisc, F_QRDY, 4, vTmp + 5)
    stamp(2)
    for t in range(4):
        a("  s_mov_b64 exec, s[%d:%d]" % (sM + 2 * t, sM + 2 * t + 1))
        for s in range(4):
            r = vQ + (t * 4 + s) * 4
            a("  ds_read_b128 v[%d:%d], v%d offset:%d" % (r, r + 3, t2, 64 * s))
    a("  s_mov_b64 exec, -1")
    a("  s_mov_b32 s%d, 0" % sIt)
    a("  s_waitcnt vmcnt(24) lgkmcnt(0)")

    a("L_k:")
    for u in range(2):
        for hf in range(2):
            for s in range(4):
                r = vSt + (hf * 4 + s) * 4
                a("  ds_read_b128 v[%d:%d], v%d offset:%d" % (r, r + 3, vKa + s, u * 8192 + hf * 4096))
        for hf in range(2):
            a("  s_waitcnt lgkmcnt(%d)" % (4 if hf == 0 else 0))
            t = 2 * u + hf
            for s in range(4):
                r = vSt + (hf * 4 + s) * 4
                q = vQ + (t * 4 + s) * 4
                c = "0" if (u == 0 and hf == 0 and s == 0) else "v[%d:%d]" % (vAcc, vAcc + 3)
                a("  v_mfma_f32_16x16x32_bf16 v[%d:%d], v[%d:%d], v[%d:%d], %s" % (vAcc, vAcc + 3, r, r + 3, q, q + 3, c))
        a("  s_waitcnt vmcnt(%d)" % throttle)
        issue_unit()
    for i in range(6):
        a("  v_mov_b32 v%d, v%d" % (vSp + i, vSp + i + 2))
    for s in range(4):
        a("  v_xor_b32 v%d, 0x4000, v%d" % (vKa + s, vKa + s))
    c0, c1 = vTmp, vTmp + 1
    e0 = vTmp + 2
    a("  v_cvt_pk_bf16_f32 v%d, v%d, v%d" % (c0, vAcc, vAcc + 1))
    a("  v_cvt_pk_bf16_f32 v%d, v%d, v%d" % (c1, vAcc + 2, vAcc + 3))
    a("  v_lshlrev_b32 v%d, 16, v%d" % (e0, c0))
    a("  v_and_b32 v%d, s%d, v%d" % (e0 + 1, sHi, c0))
    a("  v_lshlrev_b32 v%d, 16, v%d" % (e0 + 2, c1))
    a("  v_and_b32 v%d, s%d, v%d" % (e0 + 3, sHi, c1))
    for i in range(4):
        a("  v_mul_f32 v%d, s%d, v%d" % (e0 + i, sScale, e0 + i))
    a("  v_cvt_pk_bf16_f32 v%d, v%d, v%d" % (vSp + 6, e0, e0 + 1))
    a("  v_cvt_pk_bf16_f32 v%d, v%d, v%d" % (vSp + 7, e0 + 2, e0 + 3))
    a("  s_add_u32 s%d, s%d, 1" % (sIt, sIt))
    a("  s_cmp_lg_u32 s%d, 2" % sIt)
    a("  s_cbranch_scc1 L_k_nosw")
    for i in range(4):
        a("  s_mov_b32 s%d, s%d" % (sCur + i, sV + i))
    for i in range(4):
        a("  v_mov_b32 v%d, v%d" % (vCo + i, vVo + (i & 1)))
    a("L_k_nosw:")
    a("  s_cmp_lt_u32 s%d, 4" % sIt)
    a("  s_cbranch_scc1 L_k")
    stamp(3)

    for i in range(8):
        a("  v_lshlrev_b32 v%d, 16, v%d" % (vE + 2 * i, vSp + i))
        a("  v_and_b32 v%d, s%d, v%d" % (vE + 2 * i + 1, sHi, vSp + i))
    vM, vL, vX = vTmp, vTmp + 1, vTmp + 2
    a("  v_max3_f32 v%d, v%d, v%d, v%d" % (vM, vE, vE + 1, vE + 2))
    for i in range(3, 15, 2):
        a("  v_max3_f32 v%d, v%d, v%d, v%d" % (vM, vM, vE + i, vE + i + 1))
    a("  v_max_f32 v%d, v%d, v%d" % (vM, vM, vE + 15))
    a("  s_nop 1")
    a("  v_max_f32_dpp v%d, v%d, v%d row_ror:4 %s" % (vM, vM, vM, DPP))
    a("  s_nop 1")
    a("  v_max_f32_dpp v%d, v%d, v%d row_ror:8 %s" % (vM, vM, vM, DPP))
    reduce_swap("v_max_f32", vM, vX, 16)
    reduce_swap("v_max_f32", vM, vX, 32)
    a("  s_mov_b32 s%d, 0x3FB8AA3B      ; log2(e)" % sT[0])
    a("  v_mul_f32 v%d, s%d, v%d" % (vX, sT[0], vM))
    for i in range(16):
        a("  v_fma_f32 v%d, v%d, s%d, -v%d" % (vE + i, vE + i, sT[0], vX))
    for i in range(16):
        a("  v_exp_f32 v%d, v%d" % (vE + i, vE + i))
    a("  s_nop 0")
    for i in range(8):
        a("  v_cvt_pk_bf16_f32 v%d, v%d, v%d" % (vSp + i, vE + 2 * i, vE + 2 * i + 1))
    for i in range(4):
        a("  v_pk_add_f32 v[%d:%d], v[%d:%d], v[%d:%d]" % (vE + 2 * i, vE + 2 * i + 1, vE + 2 * i, vE + 2 * i + 1, vE + 8 + 2 * i, vE + 9 + 2 * i))
    for i in range(2):
        a("  v_pk_add_f32 v[%d:%d], v[%d:%d], v[%d:%d]" % (vE + 2 * i, vE + 2 * i + 1, vE + 2 * i, vE + 2 * i + 1, vE + 4 + 2 * i, vE + 5 + 2 * i))
    a("  v_pk_add_f32 v[%d:%d], v[%d:%d], v[%d:%d]" % (vE, vE + 1, vE, vE + 1, vE + 2, vE + 3))
    a("  v_add_f32 v%d, v%d, v%d" % (vL, vE, vE + 1))
    a("  s_nop 1")
    a("  v_add_f32_dpp v%d, v%d, v%d row_ror:4 %s" % (vL, vL, vL, DPP))
    a("  s_nop 1")
    a("  v_add_f32_dpp v%d, v%d, v%d row_ror:8 %s" % (vL, vL, vL, DPP))
    reduce_swap("v_add_f32", vL, vX, 16)
    reduce_swap("v_add_f32", vL, vX, 32)
    a("  s_lshl_b32 s%d, s%d, 5" % (sT[0], sW))
    a("  v_lshlrev_b32 v%d, 3, v%d" % (vX, vLane))
    a("  v_add_u32 v%d, s%d, v%d" % (vX, sT[0], vX))
    a("  v_add_u32 v%d, v%d, v%d" % (vX, vMisc, vX))
    a("  s_mov_b64 exec, 15")
    a("  ds_write_b64 v%d, v[%d:%d] offset:%d" % (vX, vM, vM + 1, SSTAT))
    a("  s_waitcnt lgkmcnt(0)")
    a("  s_mov_b64 exec, -1")
    lds_add(vMisc, F_ST, vOne)

    for i in range(32):
        a("  v_mov_b32 v%d, 0" % (vO + i))
    a("  s_mov_b32 s%d, 0" % sIt)
    a("L_v:")
    a("  v_mov_b32 v%d, v%d" % (vPf, vSp))
    a("  v_mov_b32 v%d, v%d" % (vPf + 1, vSp + 1))
    for k, sh in ((2, 4), (4, 8), (6, 12)):
        a("  v_mov_b32_dpp v%d, v%d row_shl:%d %s bound_ctrl:0" % (vPf + k, vSp, sh, DPP))
        a("  v_mov_b32_dpp v%d, v%d row_shl:%d %s bound_ctrl:0" % (vPf + k + 1, vSp + 1, sh, DPP))
    for i in range(6):
        a("  v_mov_b32 v%d, v%d" % (vSp + i, vSp + i + 2))
    for u in range(2):
        for dt in range(8):
            r = vSt + dt * 4
            a("  ds_read_b64_tr_b16 v[%d:%d], v%d offset:%d" % (r, r + 1, vVa + dt, u * 8192))
            a("  ds_read_b64_tr_b16 v[%d:%d], v%d offset:%d" % (r + 2, r + 3, vVa + dt, u * 8192 + 4096))
        for dt in range(8):
            r = vSt + dt * 4
            o = vO + dt * 4
            if dt % 2 == 0:
                a("  s_waitcnt lgkmcnt(%d)" % (12 - 2 * dt if dt < 6 else 0))
            a("  v_mfma_f32_16x16x32_bf16 v[%d:%d], v[%d:%d], v[%d:%d], v[%d:%d]" % (o, o + 3, r, r + 3, vPf + 4 * u, vPf + 4 * u + 3, o, o + 3))
        lv_else, lv_done = a.lab("Lve"), a.lab("Lvd")
        a("  s_cmp_ge_u32 s%d, 2" % sIt)
        a("  s_cbranch_scc1 %s" % lv_else)
        a("  s_waitcnt vmcnt(%d)" % throttle)
        issue_unit()
        a("  s_branch %s" % lv_done)
        a("%s:" % lv_else)
        if u == 0:
            a("  s_cmp_eq_u32 s%d, 2" % sIt)
            a("  s_cbranch_scc1 %s" % lv_done)
            a("  s_waitcnt vmcnt(0)")
        else:
            a("  s_waitcnt vmcnt(8)")
        a("%s:" % lv_done)
    for dt in range(8):
        a("  v_xor_b32 v%d, 0x4000, v%d" % (vVa + dt, vVa + dt))
    a("  s_add_u32 s%d, s%d, 1" % (sIt, sIt))
    a("  s_cmp_lt_u32 s%d, 4" % sIt)
    a("  s_cbranch_scc1 L_v")
    stamp(4)
    a("  v_and_b32 v%d, 15, v%d" % (t1, vLane))
    a("  v_lshrrev_b32 v%d, 4, v%d" % (t0, vLane))
    a("  v_lshlrev_b32 v%d, 9, v%d" % (t2, t1))
    a("  v_lshl_add_u32 v%d, v%d, 4, v%d" % (t2, t0, t2))
    a("  v_add_u32 v%d, s%d, v%d" % (t2, sRing, t2))
    a("  v_cmp_gt_u32 vcc, 4, v%d" % t1)
    a("  s_nop 4")
    a("  s_mov_b64 exec, vcc")
    for dt in range(8):
        a("  ds_write_b128 v%d, v[%d:%d] offset:%d" % (t2, vO + dt * 4, vO + dt * 4 + 3, dt * 64))
    a("  s_mov_b64 exec, -1")
    a("  s_waitcnt lgkmcnt(0)")
    a("  s_barrier                      ; B1")
    a("  s_cmp_lg_u32 s%d, 0" % sW)
    a("  s_cbranch_scc1 L_S_done")
    sWs = sWsS
    a("  v_lshlrev_b32 v%d, 9, v%d" % (t2, t0))
    a("  v_lshl_add_u32 v%d, v%d, 5, v%d      ; h*512 + c*32" % (t2, t1, t2))
    a("  v_lshl_add_u32 v%d, v%d, 4, v%d      ; FLG + h*16" % (t3, t0, vMisc))
    for w in range(4):
        a("  ds_read_b128 v[%d:%d], v%d offset:%d" % (vSt + w * 8, vSt + w * 8 + 3, t2, (w & 1) * 32768))
        a("  ds_read_b128 v[%d:%d], v%d offset:%d" % (vSt + w * 8 + 4, vSt + w * 8 + 7, t2, (w & 1) * 32768 + 16))
        if w == 1:
            a("  v_add_u32 v%d, 0x10000, v%d" % (t2, t2))
    a("  ds_read_b128 v[%d:%d], v%d offset:%d" % (vE, vE + 3, t3, FFAC))
    a("  v_lshlrev_b32 v%d, 13, v%d" % (t4, t0))
    a("  v_lshrrev_b32 v%d, 2, v%d" % (t3, t1))
    a("  v_lshl_add_u32 v%d, v%d, 10, v%d" % (t4, t3, t4))
    a("  v_and_b32 v%d, 3, v%d" % (t3, t1))
    a("  v_lshl_add_u32 v%d, v%d, 4, v%d" % (t4, t3, t4))
    a("  s_lshl_b32 s%d, s%d, 15" % (sT[0], sX))
    a("  s_lshr_b32 s%d, s%d, 4" % (sT[1], sLi))
    a("  s_lshl_b32 s%d, s%d, 12" % (sT[1], sT[1]))
    a("  s_add_u32 s%d, s%d, s%d" % (sT[0], sT[0], sT[1]))
    a("  s_and_b32 s%d, s%d, 15" % (sT[1], sLi))
    a("  s_lshl_b32 s%d, s%d, 6" % (sT[1], sT[1]))
    a("  s_add_u32 s%d, s%d, s%d" % (sT[0], sT[0], sT[1]))
    a("  s_add_u32 s%d, s%d, %d" % (sT[0], sT[0], OP))
    a("  s_waitcnt lgkmcnt(0)")
    for i in range(8):
        a("  v_mul_f32 v%d, v%d, v%d" % (vO + i, vSt + i, vE))
    for w in range(1, 4):
        for i in range(8):
            a("  v_fmac_f32 v%d, v%d, v%d" % (vO + i, vSt + w * 8 + i, vE + w))
    for i in range(4):
        a("  v_cvt_pk_bf16_f32 v%d, v%d, v%d" % (vO + 8 + i, vO + 2 * i, vO + 2 * i + 1))
    a("  s_mov_b32 s%d, 0xfffffffe" % sT[2])
    for i in range(4):
        a("  v_min_u32 v%d, s%d, v%d" % (vO + 8 + i, sT[2], vO + 8 + i))
    a("  buffer_store_dwordx4 v[%d:%d], v%d, s[%d:%d], s%d offen sc1" % (vO + 8, vO + 11, t4, sWs, sWs + 3, sT[0]))
    stamp(5)
    if ts:
        a("  s_waitcnt lgkmcnt(0)")
        a("  s_lshl_b32 s%d, s2, 7" % sT[0])
        a("  s_add_u32 s%d, s%d, %d" % (sT[0], sT[0], TSOFF))
        a("  v_mov_b32 v%d, 0" % t2)
        a("  s_mov_b64 exec, 1")
        for i in range(6):
            a("  v_mov_b32 v%d, s%d" % (vO, TS0 + 2 * i))
            a("  v_mov_b32 v%d, s%d" % (vO + 1, TS0 + 2 * i + 1))
            a("  buffer_store_dwordx2 v[%d:%d], v%d, s[%d:%d], s%d offen offset:%d" % (vO, vO + 1, t2, sWs, sWs + 3, sT[0], 8 * i))
            a("  s_waitcnt vmcnt(0)")
        a("  s_mov_b64 exec, -1")
    a("  s_waitcnt vmcnt(0)")
    a("L_S_done:")
    a("  s_endpgm")

    a("L_H:")
    sHW = 7
    sXd, sWq, sWs, sDbg, sGU, sWd, sWo, sOut = 8, 12, 16, 28, 32, 36, 40, 44
    sHi2 = 48
    sFi = 49
    sQoff = 50
    sB = 51; sJ = 52; sFidx = 53
    hMisc, hOne = 2, 3
    hG, hI = 4, 5
    hT = 6
    hX = 16
    hF = 24
    hY = 40
    hA = 56
    hB = 72
    hD = 88
    hW = 120
    hXf = 136
    hZ = 144

    a("  s_sub_u32 s%d, s%d, 4" % (sHW, sW))
    a("  s_load_dwordx2 s[%d:%d], s[0:1], 0" % (sXd, sXd + 1))
    a("  s_load_dwordx2 s[%d:%d], s[0:1], 24" % (sWq, sWq + 1))
    a("  s_load_dwordx2 s[%d:%d], s[0:1], 88" % (sWs, sWs + 1))
    a("  s_load_dwordx2 s[%d:%d], s[0:1], 80" % (sDbg, sDbg + 1))
    a("  s_load_dwordx4 s[56:59], s[0:1], 48")
    a("  s_load_dwordx2 s[%d:%d], s[0:1], 64" % (sWd, sWd + 1))
    a("  s_load_dwordx2 s[%d:%d], s[0:1], 32" % (sWo, sWo + 1))
    a("  s_load_dwordx2 s[%d:%d], s[0:1], 72" % (sOut, sOut + 1))
    a("  s_mov_b32 s%d, 8192" % (sXd + 2))
    a("  s_mov_b32 s%d, 0x20000" % (sXd + 3))
    a("  s_mov_b32 s%d, 0x400000" % (sWq + 2))
    a("  s_mov_b32 s%d, 0x20000" % (sWq + 3))
    a("  s_mov_b32 s%d, 0x10000000" % (sWs + 2))
    a("  s_mov_b32 s%d, 0x20000" % (sWs + 3))
    a("  s_mov_b32 s%d, 256" % (sDbg + 2))
    a("  s_mov_b32 s%d, 0x20000" % (sDbg + 3))
    a("  s_mov_b32 s%d, 0xffff0000" % sHi2)
    a("  v_lshrrev_b32 v%d, 4, v0" % hG)
    a("  v_and_b32 v%d, 15, v0" % hI)
    a("  v_mov_b32 v%d, %d" % (hMisc, FLG))
    a("  v_mov_b32 v%d, 1" % hOne)
    T0, T1, T2, T3, T4, T5 = hT, hT + 1, hT + 2, hT + 3, hT + 4, hT + 5
    a("  v_lshrrev_b32 v%d, 5, v0" % T0)
    a("  s_lshl_b32 s%d, s%d, 1" % (sT[0], sHW))
    a("  v_add_u32 v%d, s%d, v%d          ; row b" % (T0, sT[0], T0))
    a("  v_and_b32 v%d, 31, v0" % T1)
    a("  v_lshlrev_b32 v%d, 5, v%d" % (T1, T1))
    a("  v_lshl_add_u32 v%d, v%d, 10, v%d" % (T2, T0, T1))
    a("  v_mul_u32_u24 v%d, %d, v%d" % (T0, XN_STRIDE, T0))
    a("  v_add_u32 v%d, v%d, v%d" % (T0, T0, T1))
    a("  v_add_u32 v%d, %d, v%d" % (hZ, XN, T0))
    a("  v_lshrrev_b32 v%d, 3, v0" % T3)
    a("  v_and_b32 v%d, 7, v0" % T4)
    a("  v_lshlrev_b32 v%d, 4, v%d" % (T4, T4))
    a("  v_lshl_add_u32 v%d, v%d, 13, v%d" % (T5, T3, T4))
    a("  s_and_b32 s%d, s%d, 3" % (sJ, sLi))
    a("  s_lshr_b32 s%d, s%d, 2" % (sB, sLi))
    a("  s_lshl_b32 s%d, s%d, 20" % (sT[0], sJ))
    a("  s_lshl_b32 s%d, s%d, 18" % (sT[1], sHW))
    a("  s_add_u32 s%d, s%d, s%d" % (sT[0], sT[0], sT[1]))
    a("  s_lshl_b32 s%d, s%d, 10" % (sT[1], sX))
    a("  s_add_u32 s%d, s%d, s%d" % (sT[0], sT[0], sT[1]))
    a("  s_lshl_b32 s%d, s%d, 7" % (sT[1], sB))
    a("  s_add_u32 s%d, s%d, s%d" % (sT[0], sT[0], sT[1]))
    a("  s_lshr_b32 s%d, s%d, 1" % (sT[1], sHW))
    a("  s_lshl_b32 s%d, s%d, 15" % (sT[1], sT[1]))
    a("  s_and_b32 s%d, s%d, 1" % (sT[2], sHW))
    a("  s_lshl_b32 s%d, s%d, 12" % (sT[2], sT[2]))
    a("  s_add_u32 s%d, s%d, s%d" % (sT[1], sT[1], sT[2]))
    a("  s_add_u32 s%d, s%d, 24576" % (sT[1], sT[1]))
    sStg = 54
    a("  s_mov_b32 s%d, s%d" % (sStg, sT[1]))
    a("  s_waitcnt lgkmcnt(0)")
    a("  buffer_load_dwordx4 v[%d:%d], v%d, s[%d:%d], 0 offen" % (hX, hX + 3, T2, sXd, sXd + 3))
    a("  buffer_load_dwordx4 v[%d:%d], v%d, s[%d:%d], 0 offen offset:16" % (hX + 4, hX + 7, T2, sXd, sXd + 3))
    for n in range(4):
        a("  s_add_u32 m0, s%d, %d" % (sStg, n * 1024))
        if n:
            a("  s_add_u32 s%d, s%d, %d" % (sT[0], sT[0], 8 * 8192))
        else:
            a("  s_nop 0")
        a("  buffer_load_dwordx4 v%d, s[%d:%d], s%d offen nt lds" % (T5, sWq, sWq + 3, sT[0]))
    a("  s_cmp_lg_u32 s%d, 0" % sHW)
    a("  s_cbranch_scc1 L_H_nz")
    a("  v_lshl_add_u32 v%d, v0, 2, v%d" % (T0, hMisc))
    a("  v_mov_b32 v%d, 0" % T1)
    a("  ds_write_b32 v%d, v%d" % (T0, T1))
    a("  s_waitcnt lgkmcnt(0)")
    a("L_H_nz:")
    a("  s_barrier                      ; B0")
    stamp(1)
    for base, size in ((sWd, 1835008), (sWo, 0x400000), (sOut, 8192)):
        a("  s_mov_b32 s%d, %d" % (base + 2, size))
        a("  s_mov_b32 s%d, 0x20000" % (base + 3))
    a("  s_min_u32 s%d, s2, 223" % sFi)
    a("  s_bitcmp1_b32 s%d, 2" % sFi)
    a("  s_cselect_b32 s%d, s58, s56" % sGU)
    a("  s_cselect_b32 s%d, s59, s57" % (sGU + 1))
    a("  s_mov_b32 s%d, 1835008" % (sGU + 2))
    a("  s_mov_b32 s%d, 0x20000" % (sGU + 3))
    a("  s_waitcnt vmcnt(4)")
    for i in range(8):
        a("  v_lshlrev_b32 v%d, 16, v%d" % (hF + 2 * i, hX + i))
        a("  v_and_b32 v%d, s%d, v%d" % (hF + 2 * i + 1, sHi2, hX + i))

    def pk(op, d, s0, s1, extra=""):
        a("  %s v[%d:%d], v[%d:%d], v[%d:%d]%s" % (op, d, d + 1, s0, s0 + 1, s1, s1 + 1, extra))

    def allreduce32(v, t):
        for n in (1, 2, 4, 8):
            a("  s_nop 1")
            a("  v_add_f32_dpp v%d, v%d, v%d row_ror:%d %s" % (v, v, v, n, DPP))
        reduce_swap("v_add_f32", v, t, 16)

    for i in range(4):
        pk("v_pk_add_f32", hY + 2 * i, hF + 4 * i, hF + 4 * i + 2)
    pk("v_pk_add_f32", hY, hY, hY + 2)
    pk("v_pk_add_f32", hY + 4, hY + 4, hY + 6)
    pk("v_pk_add_f32", hY, hY, hY + 4)
    vS = hT
    a("  v_add_f32 v%d, v%d, v%d" % (vS, hY, hY + 1))
    allreduce32(vS, T2)
    a("  v_mul_f32 v%d, 0x3b000000, v%d     ; mean" % (vS, vS))
    for i in range(8):
        pk("v_pk_add_f32", hY + 2 * i, hF + 2 * i, vS, " op_sel_hi:[1,0] neg_lo:[0,1] neg_hi:[0,1]")
    vV = hT + 2
    pk("v_pk_mul_f32", vV, hY, hY)
    for i in range(1, 8):
        a("  v_pk_fma_f32 v[%d:%d], v[%d:%d], v[%d:%d], v[%d:%d]" % (vV, vV + 1, hY + 2 * i, hY + 2 * i + 1, hY + 2 * i, hY + 2 * i + 1, vV, vV + 1))
    a("  v_add_f32 v%d, v%d, v%d" % (vV, vV, vV + 1))
    allreduce32(vV, T4)
    a("  v_mul_f32 v%d, 0x3b000000, v%d     ; var" % (vV, vV))
    a("  v_cvt_pk_bf16_f32 v%d, v%d, v%d" % (vS, vS, vV))
    a("  v_and_b32 v%d, s%d, v%d" % (vV, sHi2, vS))
    a("  v_lshlrev_b32 v%d, 16, v%d            ; mean_bf" % (vS, vS))
    a("  v_add_f32 v%d, 0x3727c5ac, v%d" % (vV, vV))
    a("  v_cvt_pk_bf16_f32 v%d, v%d, v%d" % (vV, vV, vV))
    a("  v_and_b32 v%d, s%d, v%d" % (vV, sHi2, vV))
    a("  v_sqrt_f32 v%d, v%d" % (vV, vV))
    a("  s_nop 0")
    a("  v_cvt_pk_bf16_f32 v%d, v%d, v%d" % (vV, vV, vV))
    a("  v_and_b32 v%d, s%d, v%d" % (vV, sHi2, vV))
    a("  v_rcp_f32 v%d, v%d" % (vV, vV))
    for i in range(8):
        pk("v_pk_add_f32", hY + 2 * i, hF + 2 * i, vS, " op_sel_hi:[1,0] neg_lo:[0,1] neg_hi:[0,1]")
    for i in range(8):
        a("  v_cvt_pk_bf16_f32 v%d, v%d, v%d" % (hX + i, hY + 2 * i, hY + 2 * i + 1))
    for i in range(8):
        a("  v_lshlrev_b32 v%d, 16, v%d" % (hF + 2 * i, hX + i))
        a("  v_and_b32 v%d, s%d, v%d" % (hF + 2 * i + 1, sHi2, hX + i))
    for i in range(8):
        pk("v_pk_mul_f32", hY + 2 * i, hF + 2 * i, vV, " op_sel_hi:[1,0]")
    for i in range(8):
        a("  v_cvt_pk_bf16_f32 v%d, v%d, v%d" % (hX + i, hY + 2 * i, hY + 2 * i + 1))
    a("  ds_write_b128 v%d, v[%d:%d]" % (hZ, hX, hX + 3))
    a("  ds_write_b128 v%d, v[%d:%d] offset:16" % (hZ, hX + 4, hX + 7))
    stamp(2)

    hTr, hXn, hDst = hZ + 1, hZ + 2, hZ + 3
    a("  v_lshrrev_b32 v%d, 2, v%d" % (T0, hI))
    a("  v_lshl_add_u32 v%d, v%d, 3, v%d" % (T0, hG, T0))
    a("  v_lshlrev_b32 v%d, 7, v%d" % (T0, T0))
    a("  v_and_b32 v%d, 3, v%d" % (T1, hI))
    a("  v_lshl_add_u32 v%d, v%d, 3, v%d" % (T0, T1, T0))
    a("  s_lshl_b32 s%d, s%d, 5" % (sT[0], sHW))
    a("  s_add_u32 s%d, s%d, 24576" % (sT[0], sT[0]))
    a("  v_add_u32 v%d, s%d, v%d" % (hTr, sT[0], T0))
    a("  v_and_b32 v%d, 7, v%d" % (T0, hI))
    a("  v_mul_u32_u24 v%d, %d, v%d" % (T0, XN_STRIDE, T0))
    a("  v_lshl_add_u32 v%d, v%d, 4, v%d" % (T0, hG, T0))
    a("  v_add_u32 v%d, %d, v%d" % (hXn, XN, T0))

    def tile_compute(kb_sgpr, stg_add):
        a("  s_lshl_b32 s%d, s%d, 8" % (sT[0], kb_sgpr))
        a("  v_add_u32 v%d, s%d, v%d" % (T0, sT[0], hXn))
        if stg_add:
            a("  v_add_u32 v%d, 0x%x, v%d" % (T1, stg_add, hTr))
            tr = T1
        else:
            tr = hTr
        for ks in range(4):
            base = (ks >> 1) * 32768 + (ks & 1) * 4096
            r = hA + ks * 4
            a("  ds_read_b64_tr_b16 v[%d:%d], v%d offset:%d" % (r, r + 1, tr, base))
            a("  ds_read_b64_tr_b16 v[%d:%d], v%d offset:%d" % (r + 2, r + 3, tr, base + 512))
            r = hB + ks * 4
            a("  ds_read_b128 v[%d:%d], v%d offset:%d" % (r, r + 3, T0, ks * 64))
        for ks in range(4):
            a("  s_waitcnt lgkmcnt(%d)" % (9 - 3 * ks))
            c = "0" if ks == 0 else "v[%d:%d]" % (hD, hD + 3)
            a("  v_mfma_f32_16x16x32_bf16 v[%d:%d], v[%d:%d], v[%d:%d], %s" % (hD, hD + 3, hA + ks * 4, hA + ks * 4 + 3, hB + ks * 4, hB + ks * 4 + 3, c))

    a("  s_waitcnt vmcnt(0) lgkmcnt(0)")
    lds_add(hMisc, F_H1, hOne)
    lds_wait(hMisc, F_H1, 4, T5)
    stamp(3)
    tile_compute(sJ, 0)
    a("  v_lshlrev_b32 v%d, 11, v%d" % (T0, hI))
    a("  v_lshl_add_u32 v%d, v%d, 4, v%d" % (T0, hG, T0))
    a("  s_lshl_b32 s%d, s%d, 6" % (sT[0], sHW))
    a("  v_add_u32 v%d, s%d, v%d" % (T0, sT[0], T0))
    a("  s_lshl_b32 s%d, s%d, 2" % (sT[0], sX))
    a("  s_add_u32 s%d, s%d, s%d" % (sT[0], sT[0], sJ))
    a("  s_lshl_b32 s%d, s%d, 14" % (sT[0], sT[0]))
    a("  s_lshl_b32 s%d, s%d, 8" % (sT[1], sB))
    a("  s_add_u32 s%d, s%d, s%d" % (sT[0], sT[0], sT[1]))
    if QP:
        a("  s_add_u32 s%d, s%d, %d" % (sT[0], sT[0], QP))
    sLo8 = 60
    a("  v_cmp_gt_u32 s[%d:%d], 8, v%d" % (sLo8, sLo8 + 1, hI))
    a("  s_nop 4")
    a("  s_mov_b64 exec, s[%d:%d]" % (sLo8, sLo8 + 1))
    a("  buffer_store_dwordx4 v[%d:%d], v%d, s[%d:%d], s%d offen sc1" % (hD, hD + 3, T0, sWs, sWs + 3, sT[0]))
    a("  s_mov_b64 exec, -1")
    a("  v_lshrrev_b32 v%d, 3, v0" % T3)
    a("  v_mul_u32_u24 v%d, 3584, v%d" % (T3, T3))
    a("  v_and_b32 v%d, 7, v0" % T4)
    a("  v_lshl_add_u32 v%d, v%d, 4, v%d" % (T3, T4, T3))
    a("  s_and_b32 s%d, s%d, 3" % (sT[0], sFi))
    a("  s_lshl_b32 s%d, s%d, 2" % (sT[0], sT[0]))
    a("  s_add_u32 s%d, s%d, s%d" % (sT[0], sT[0], sHW))
    a("  s_mul_i32 s%d, s%d, %d" % (sT[0], sT[0], 32 * 3584))
    a("  s_lshr_b32 s%d, s%d, 3" % (sT[1], sFi))
    a("  s_lshl_b32 s%d, s%d, 7" % (sT[1], sT[1]))
    a("  s_add_u32 s%d, s%d, s%d" % (sT[0], sT[0], sT[1]))
    for n in range(4):
        a("  s_add_u32 m0, s%d, %d" % (sStg, 65536 + n * 1024))
        if n:
            a("  s_add_u32 s%d, s%d, %d" % (sT[0], sT[0], 8 * 3584))
        else:
            a("  s_nop 0")
        a("  buffer_load_dwordx4 v%d, s[%d:%d], s%d offen nt lds" % (T3, sGU, sGU + 3, sT[0]))
    a("  s_lshl_b32 s%d, s%d, 5" % (sFidx, sB))
    a("  s_lshl_b32 s%d, s%d, 2" % (sT[0], sX))
    a("  s_add_u32 s%d, s%d, s%d" % (sFidx, sFidx, sT[0]))
    a("  s_add_u32 s%d, s%d, s%d" % (sFidx, sFidx, sJ))
    for i in range(4):
        a("  v_mov_b32 v%d, -1" % (hB + i))
    a("  v_lshlrev_b32 v%d, 4, v0" % T4)
    lc1, lc2, lc3, lcd = a.lab("Lc"), a.lab("Lc"), a.lab("Lc"), a.lab("Lcd")
    a("  s_lshl_b32 s%d, s%d, 11" % (sT[0], sFidx))
    a("  s_cmp_eq_u32 s%d, 0" % sHW)
    a("  s_cbranch_scc0 %s" % lc1)
    a("  s_add_u32 s%d, s%d, %d" % (sT[0], sT[0], DP))
    a("  buffer_store_dwordx4 v[%d:%d], v%d, s[%d:%d], s%d offen sc1" % (hB, hB + 3, T4, sWs, sWs + 3, sT[0]))
    a("  buffer_store_dwordx4 v[%d:%d], v%d, s[%d:%d], s%d offen offset:1024 sc1" % (hB, hB + 3, T4, sWs, sWs + 3, sT[0]))
    a("  s_branch %s" % lcd)
    a("%s:" % lc1)
    a("  s_cmp_eq_u32 s%d, 1" % sHW)
    a("  s_cbranch_scc0 %s" % lc2)
    a("  s_add_u32 s%d, s%d, %d" % (sT[0], sT[0], SP))
    a("  buffer_store_dwordx4 v[%d:%d], v%d, s[%d:%d], s%d offen sc1" % (hB, hB + 3, T4, sWs, sWs + 3, sT[0]))
    a("  buffer_store_dwordx4 v[%d:%d], v%d, s[%d:%d], s%d offen offset:1024 sc1" % (hB, hB + 3, T4, sWs, sWs + 3, sT[0]))
    a("  s_branch %s" % lcd)
    a("%s:" % lc2)
    a("  s_cmp_eq_u32 s%d, 2" % sHW)
    a("  s_cbranch_scc0 %s" % lc3)
    a("  s_lshl_b32 s%d, s%d, 2" % (sT[0], sX))
    a("  s_add_u32 s%d, s%d, s%d" % (sT[0], sT[0], sJ))
    a("  s_lshl_b32 s%d, s%d, 13" % (sT[0], sT[0]))
    a("  s_lshl_b32 s%d, s%d, 10" % (sT[1], sB))
    a("  s_add_u32 s%d, s%d, s%d" % (sT[0], sT[0], sT[1]))
    a("  s_add_u32 s%d, s%d, %d" % (sT[0], sT[0], OP))
    a("  buffer_store_dwordx4 v[%d:%d], v%d, s[%d:%d], s%d offen sc1" % (hB, hB + 3, T4, sWs, sWs + 3, sT[0]))
    a("  s_lshl_b32 s%d, s%d, 3" % (sT[0], sB))
    a("  s_add_u32 s%d, s%d, s%d" % (sT[0], sT[0], sX))
    a("  s_lshl_b32 s%d, s%d, 2" % (sT[0], sT[0]))
    a("  s_add_u32 s%d, s%d, s%d" % (sT[0], sT[0], sJ))
    a("  s_lshl_b32 s%d, s%d, 5" % (sT[0], sT[0]))
    a("  s_add_u32 s%d, s%d, %d" % (sT[0], sT[0], ST))
    a("  s_mov_b64 exec, 3")
    a("  buffer_store_dwordx4 v[%d:%d], v%d, s[%d:%d], s%d offen sc1" % (hB, hB + 3, T4, sWs, sWs + 3, sT[0]))
    a("  s_mov_b64 exec, -1")
    a("  s_branch %s" % lcd)
    a("%s:" % lc3)
    a("  s_lshl_b32 s%d, s2, 7" % sT[0])
    a("  s_add_u32 s%d, s%d, %d" % (sT[0], sT[0], HH))
    a("  s_mov_b64 exec, 0xff")
    a("  buffer_store_dwordx4 v[%d:%d], v%d, s[%d:%d], s%d offen sc1" % (hB, hB + 3, T4, sWs, sWs + 3, sT[0]))
    a("  buffer_store_dwordx4 v[%d:%d], v%d, s[%d:%d], s%d offen sc1" % (hB, hB + 3, T4, sWs, sWs + 3, sT[0]))
    a("  s_mov_b64 exec, -1")
    a("%s:" % lcd)
    a("  s_waitcnt vmcnt(6)")
    lds_add(hMisc, F_H2, hOne)
    a("  s_lshl_b32 s%d, s%d, 5" % (sQoff, sX))
    lq = a.lab("Lq")
    a("  s_cmp_lg_u32 s%d, 0" % sHW)
    a("  s_cbranch_scc1 %s" % lq)
    lds_wait(hMisc, F_H2, 4, T5)
    a("  v_mov_b32 v%d, s%d" % (T0, sQoff))
    a("  s_mov_b64 exec, 1")
    a("  buffer_atomic_add v%d, v%d, s[%d:%d], 0 offen sc1" % (hOne, T0, sDbg, sDbg + 3))
    a("  s_mov_b64 exec, -1")
    stamp(4)
    a("%s:" % lq)
    a("  s_waitcnt vmcnt(0)")
    lds_add(hMisc, F_H3, hOne)
    lds_wait(hMisc, F_H3, 4, T5)
    a("  s_and_b32 s%d, s%d, 3" % (sT[2], sFi))
    sKb2 = 55
    a("  s_mov_b32 s%d, s%d" % (sKb2, sT[2]))
    tile_compute(sKb2, 65536)
    lds_add(hMisc, F_STG, hOne)
    a("  v_lshlrev_b32 v%d, 8, v%d" % (T0, hI))
    a("  v_lshl_add_u32 v%d, v%d, 4, v%d" % (T0, hG, T0))
    a("  s_lshl_b32 s%d, s%d, 6" % (sT[0], sHW))
    a("  v_add_u32 v%d, s%d, v%d" % (T0, sT[0], T0))
    a("  s_and_b32 s%d, s%d, 7" % (sT[0], sFi))
    a("  s_mul_i32 s%d, s%d, 28" % (sT[0], sT[0]))
    a("  s_lshr_b32 s%d, s%d, 3" % (sT[1], sFi))
    a("  s_add_u32 s%d, s%d, s%d" % (sT[0], sT[0], sT[1]))
    a("  s_lshl_b32 s%d, s%d, 11" % (sT[0], sT[0]))
    a("  s_add_u32 s%d, s%d, %d" % (sT[0], sT[0], GP))
    lg = a.lab("Lg")
    a("  s_cmp_ge_u32 s2, 224")
    a("  s_cbranch_scc1 %s" % lg)
    a("  s_mov_b64 exec, s[%d:%d]" % (sLo8, sLo8 + 1))
    a("  buffer_store_dwordx4 v[%d:%d], v%d, s[%d:%d], s%d offen sc1" % (hD, hD + 3, T0, sWs, sWs + 3, sT[0]))
    a("  s_mov_b64 exec, -1")
    a("%s:" % lg)

    def glob_poll(voff_expr_reg, nlanes_mask, target, label):
        l0, l1 = a.lab("Lp"), a.lab("Lpd")
        a("  s_mov_b32 s%d, 0" % sCnt)
        a("  s_mov_b64 exec, %s" % nlanes_mask)
        a("%s:" % l0)
        a("  buffer_load_dword v%d, v%d, s[%d:%d], 0 offen sc1" % (T5, voff_expr_reg, sDbg, sDbg + 3))
        a("  s_waitcnt vmcnt(0)")
        a("  v_cmp_gt_u32 vcc, %d, v%d" % (target, T5))
        a("  s_cbranch_vccz %s" % l1)
        a("  s_add_u32 s%d, s%d, 1" % (sCnt, sCnt))
        a("  s_cmp_lt_u32 s%d, %d" % (sCnt, SPIN_LIMIT))
        a("  s_cbranch_scc0 %s" % l1)
        a("  s_sleep 2")
        a("  s_branch %s" % l0)
        a("%s:" % l1)
        a("  s_mov_b64 exec, -1")

    lq2, lq3 = a.lab("Lq"), a.lab("Lq")
    a("  s_cmp_lg_u32 s%d, 0" % sHW)
    a("  s_cbranch_scc1 %s" % lq2)
    a("  v_mov_b32 v%d, s%d" % (T0, sQoff))
    glob_poll(T0, "1", 32, "Q")
    lds_add(hMisc, F_QOK, hOne)
    a("  s_branch %s" % lq3)
    a("%s:" % lq2)
    lds_wait(hMisc, F_QOK, 1, T5)
    a("%s:" % lq3)
    stamp(5)
    a("  v_lshlrev_b32 v%d, 3, v0" % T0)
    a("  s_lshl_b32 s%d, s%d, 9" % (sT[0], sHW))
    a("  v_add_u32 v%d, s%d, v%d" % (T0, sT[0], T0))
    a("  s_lshl_b32 s%d, s%d, 16" % (sT[0], sX))
    a("  s_lshl_b32 s%d, s%d, 11" % (sT[1], sB))
    a("  s_add_u32 s%d, s%d, s%d" % (sT[0], sT[0], sT[1]))
    if QP:
        a("  s_add_u32 s%d, s%d, %d" % (sT[0], sT[0], QP))
    for kb in range(4):
        a("  buffer_load_dwordx2 v[%d:%d], v%d, s[%d:%d], s%d offen sc1" % (hA + 2 * kb, hA + 2 * kb + 1, T0, sWs, sWs + 3, sT[0]))
        if kb < 3:
            a("  s_add_u32 s%d, s%d, 16384" % (sT[0], sT[0]))
    a("  s_mul_i32 s%d, s%d, %d" % (sT[1], sHW, QL_STRIDE))
    a("  s_add_u32 s%d, s%d, %d" % (sT[1], sT[1], QL))
    a("  v_lshlrev_b32 v%d, 2, v0" % T1)
    a("  v_add_u32 v%d, s%d, v%d" % (T1, sT[1], T1))
    a("  s_waitcnt vmcnt(0)")
    pk("v_pk_add_f32", hA, hA, hA + 2)
    pk("v_pk_add_f32", hA + 4, hA + 4, hA + 6)
    pk("v_pk_add_f32", hA, hA, hA + 4)
    a("  v_cvt_pk_bf16_f32 v%d, v%d, v%d" % (hA, hA, hA + 1))
    a("  ds_write_b32 v%d, v%d" % (T1, hA))
    a("  s_waitcnt lgkmcnt(0)")
    lds_add(hMisc, F_QRDY, hOne)
    stamp(6)
    lg1 = a.lab("Lg")
    a("  s_cmp_lg_u32 s%d, 1" % sHW)
    a("  s_cbranch_scc1 %s" % lg1)
    lds_wait(hMisc, F_QRDY, 4, T5)
    a("  v_mov_b32 v%d, s%d" % (T0, sQoff))
    a("  s_mov_b64 exec, 1")
    a("  buffer_atomic_add v%d, v%d, s[%d:%d], 0 offen offset:16 sc1" % (hOne, T0, sDbg, sDbg + 3))
    a("  s_mov_b64 exec, -1")
    a("%s:" % lg1)

    a("  v_lshrrev_b32 v%d, 3, v0" % T3)
    a("  v_and_b32 v%d, 7, v0" % T4)
    a("  v_lshlrev_b32 v%d, 4, v%d" % (T4, T4))
    a("  v_lshl_add_u32 v%d, v%d, 10, v%d      ; (l>>3)*1024 + (l&7)*16" % (T3, T3, T4))
    hW1k = hZ + 4
    a("  v_mov_b32 v%d, v%d" % (hW1k, T3))
    a("  s_lshl_b32 s%d, s%d, 2" % (sT[0], sX))
    a("  s_add_u32 s%d, s%d, s%d" % (sT[0], sT[0], sJ))
    sHq = 62
    a("  s_mov_b32 s%d, s%d" % (sHq, sT[0]))
    a("  s_lshl_b32 s%d, s%d, 2" % (sT[0], sT[0]))
    a("  s_add_u32 s%d, s%d, s%d" % (sT[0], sT[0], sHW))
    a("  s_lshl_b32 s%d, s%d, 15        ; (hq*4+hw)*32 rows*1024" % (sT[0], sT[0]))
    a("  s_lshl_b32 s%d, s%d, 7" % (sT[1], sB))
    a("  s_add_u32 s%d, s%d, s%d" % (sT[0], sT[0], sT[1]))
    a("  s_lshl_b32 s%d, s%d, 12" % (sT[1], sHW))
    a("  s_add_u32 s%d, s%d, %d" % (sT[1], sT[1], WOS))
    for n in range(4):
        a("  s_add_u32 m0, s%d, %d" % (sT[1], n * 1024))
        if n:
            a("  s_add_u32 s%d, s%d, 8192" % (sT[0], sT[0]))
        else:
            a("  s_nop 0")
        a("  buffer_load_dwordx4 v%d, s[%d:%d], s%d offen nt lds" % (T3, sWo, sWo + 3, sT[0]))
    hTrG = hZ + 5
    a("  v_lshrrev_b32 v%d, 2, v%d" % (T0, hI))
    a("  v_lshl_add_u32 v%d, v%d, 3, v%d" % (T0, hG, T0))
    a("  v_lshlrev_b32 v%d, 7, v%d" % (T0, T0))
    a("  v_and_b32 v%d, 3, v%d" % (T1, hI))
    a("  v_lshl_add_u32 v%d, v%d, 3, v%d" % (hTrG, T1, T0))
    a("  v_add_u32 v%d, s%d, v%d" % (T0, sT[1], hTrG))
    a("  s_waitcnt vmcnt(0)")
    for ct in range(4):
        r = hW + ct * 4
        a("  ds_read_b64_tr_b16 v[%d:%d], v%d offset:%d" % (r, r + 1, T0, ct * 32))
        a("  ds_read_b64_tr_b16 v[%d:%d], v%d offset:%d" % (r + 2, r + 3, T0, ct * 32 + 512))
    a("  s_waitcnt lgkmcnt(0)")
    stamp(7)

    a("  v_and_b32 v%d, 3, v0" % T0)
    a("  v_lshlrev_b32 v%d, 3, v%d" % (T0, T0))
    a("  s_lshl_b32 s%d, s%d, 5" % (sT[0], sFidx))
    hOutOff = hZ + 6
    a("  v_add_u32 v%d, s%d, v%d" % (hOutOff, sT[0], T0))
    a("  s_cmp_eq_u32 s%d, 1" % sHW)
    a("  s_cbranch_scc1 L_ffn")
    a("  s_cmp_eq_u32 s%d, 2" % sHW)
    a("  s_cbranch_scc1 L_stats")
    a("  s_cmp_eq_u32 s%d, 0" % sHW)
    a("  s_cbranch_scc1 L_fin_prep")
    a("  s_branch L_B1")

    def inband_retry(regs, lab_retry, lab_ok, tmp):
        rs = list(regs)
        first = True
        while rs:
            if first:
                if len(rs) >= 3:
                    a("  v_max3_u32 v%d, v%d, v%d, v%d" % (tmp, rs[0], rs[1], rs[2])); rs = rs[3:]
                elif len(rs) == 2:
                    a("  v_max_u32 v%d, v%d, v%d" % (tmp, rs[0], rs[1])); rs = []
                else:
                    a("  v_mov_b32 v%d, v%d" % (tmp, rs[0])); rs = []
                first = False
            elif len(rs) >= 2:
                a("  v_max3_u32 v%d, v%d, v%d, v%d" % (tmp, tmp, rs[0], rs[1])); rs = rs[2:]
            else:
                a("  v_max_u32 v%d, v%d, v%d" % (tmp, tmp, rs[0])); rs = []
        a("  v_cmp_eq_u32 vcc, -1, v%d" % tmp)
        a("  s_cbranch_vccz %s" % lab_ok)
        a("  s_add_u32 s%d, s%d, 1" % (sCnt, sCnt))
        a("  s_cmp_lt_u32 s%d, %d" % (sCnt, SPIN_LIMIT))
        a("  s_cbranch_scc0 %s" % lab_ok)
        a("  s_sleep 2")
        a("  s_branch %s" % lab_retry)

    def round_bf16(v):
        a("  v_cvt_pk_bf16_f32 v%d, v%d, v%d" % (v, v, v))
        a("  v_and_b32 v%d, s%d, v%d" % (v, sHi2, v))

    a("L_ffn:")
    a("  v_lshlrev_b32 v%d, 5, v0" % T0)
    a("  v_add_u32 v%d, 16, v%d" % (T0, T0))
    glob_poll(T0, "0xff", 32, "G")
    lds_add(hMisc, F_GOK, hOne)
    a("  s_cmp_ge_u32 s2, 224")
    a("  s_cbranch_scc1 L_B1")
    a("  s_lshr_b32 s%d, s2, 3" % sT[0])
    a("  s_lshl_b32 s%d, s%d, 16" % (sT[1], sT[0]))
    a("  s_lshl_b32 s%d, s%d, 7" % (sT[2], sX))
    a("  s_add_u32 s%d, s%d, s%d" % (sT[1], sT[1], sT[2]))
    for n in range(8):
        a("  s_mov_b32 m0, %d" % (XN + n * 1024))
        if n:
            a("  s_add_u32 s%d, s%d, 8192" % (sT[1], sT[1]))
        else:
            a("  s_nop 0")
        a("  buffer_load_dwordx4 v%d, s[%d:%d], s%d offen nt lds" % (hW1k, sWd, sWd + 3, sT[1]))
    a("  v_lshlrev_b32 v%d, 3, v0" % T0)
    a("  s_lshl_b32 s%d, s%d, 11" % (sT[1], sT[0]))
    a("  s_lshl_b32 s%d, s%d, 8" % (sT[2], sX))
    a("  s_add_u32 s%d, s%d, s%d" % (sT[1], sT[1], sT[2]))
    a("  s_add_u32 s%d, s%d, %d" % (sT[1], sT[1], GP))
    a("  s_mov_b32 exec_hi, 0")
    for m in range(8):
        a("  buffer_load_dwordx2 v[%d:%d], v%d, s[%d:%d], s%d offen sc1" % (hA + 2 * m, hA + 2 * m + 1, T0, sWs, sWs + 3, sT[1]))
        if m < 7:
            a("  s_add_u32 s%d, s%d, %d" % (sT[1], sT[1], 28 * 2048))
    a("  s_waitcnt vmcnt(0)")
    for base in (hA, hA + 8):
        pk("v_pk_add_f32", base, base, base + 2)
        pk("v_pk_add_f32", base + 4, base + 4, base + 6)
        pk("v_pk_add_f32", base, base, base + 4)
    g0, u0 = hA, hA + 8
    for k in range(2):
        round_bf16(g0 + k)
        round_bf16(u0 + k)
    a("  s_mov_b32 s%d, 0xBFB8AA3B      ; -log2(e)" % sT[2])
    for k in range(2):
        a("  v_mul_f32 v%d, s%d, v%d" % (g0 + k, sT[2], g0 + k))
    for k in range(2):
        a("  v_exp_f32 v%d, v%d" % (g0 + k, g0 + k))
    a("  s_nop 0")
    for k in range(2):
        a("  v_add_f32 v%d, 1.0, v%d" % (g0 + k, g0 + k))
    for k in range(2):
        a("  v_rcp_f32 v%d, v%d" % (g0 + k, g0 + k))
    a("  s_nop 0")
    for k in range(2):
        round_bf16(g0 + k)
    for k in range(2):
        a("  v_mul_f32 v%d, v%d, v%d" % (g0 + k, g0 + k, u0 + k))
    a("  v_cvt_pk_bf16_f32 v%d, v%d, v%d" % (g0, g0, g0 + 1))
    a("  v_min_u32 v%d, 0xfffffffe, v%d" % (g0, g0))
    a("  v_lshlrev_b32 v%d, 2, v0" % T0)
    a("  s_lshl_b32 s%d, s2, 7" % sT[1])
    a("  s_add_u32 s%d, s%d, %d" % (sT[1], sT[1], HH))
    a("  buffer_store_dword v%d, v%d, s[%d:%d], s%d offen sc1" % (g0, T0, sWs, sWs + 3, sT[1]))
    a("  s_mov_b64 exec, -1")
    a("  v_and_b32 v%d, 7, v%d" % (T0, hI))
    a("  v_lshlrev_b32 v%d, 7, v%d" % (T0, T0))
    a("  v_lshl_add_u32 v%d, v%d, 4, v%d" % (T0, hG, T0))
    a("  s_lshl_b32 s%d, s%d, 10" % (sT[1], sT[0]))
    a("  s_add_u32 s%d, s%d, %d" % (sT[1], sT[1], HH))
    lr, lo = a.lab("Lr"), a.lab("Lo")
    a("  s_mov_b32 s%d, 0" % sCnt)
    a("%s:" % lr)
    a("  buffer_load_dwordx4 v[%d:%d], v%d, s[%d:%d], s%d offen sc1" % (hB, hB + 3, T0, sWs, sWs + 3, sT[1]))
    a("  buffer_load_dwordx4 v[%d:%d], v%d, s[%d:%d], s%d offen offset:64 sc1" % (hB + 4, hB + 7, T0, sWs, sWs + 3, sT[1]))
    a("  s_waitcnt vmcnt(0)")
    inband_retry(range(hB, hB + 8), lr, lo, T5)
    a("%s:" % lo)
    a("  v_add_u32 v%d, %d, v%d" % (T1, XN, hTrG))
    for ct in range(4):
        for ks in range(2):
            r = hA + ks * 4
            a("  ds_read_b64_tr_b16 v[%d:%d], v%d offset:%d" % (r, r + 1, T1, ks * 4096 + ct * 32))
            a("  ds_read_b64_tr_b16 v[%d:%d], v%d offset:%d" % (r + 2, r + 3, T1, ks * 4096 + ct * 32 + 512))
        a("  s_waitcnt lgkmcnt(0)")
        d = hD + ct * 4
        a("  v_mfma_f32_16x16x32_bf16 v[%d:%d], v[%d:%d], v[%d:%d], 0" % (d, d + 3, hA, hA + 3, hB, hB + 3))
        a("  v_mfma_f32_16x16x32_bf16 v[%d:%d], v[%d:%d], v[%d:%d], v[%d:%d]" % (d, d + 3, hA + 4, hA + 7, hB + 4, hB + 7, d, d + 3))
    a("  v_lshlrev_b32 v%d, 16, v%d" % (T0, hI))
    a("  v_lshl_add_u32 v%d, v%d, 4, v%d" % (T0, hG, T0))
    a("  s_lshl_b32 s%d, s%d, 13" % (sT[1], sX))
    a("  s_lshl_b32 s%d, s%d, 6" % (sT[2], sT[0]))
    a("  s_add_u32 s%d, s%d, s%d" % (sT[1], sT[1], sT[2]))
    a("  s_add_u32 s%d, s%d, %d" % (sT[1], sT[1], DP))
    a("  s_nop 7")
    for i in range(16):
        a("  v_min_u32 v%d, 0xfffffffe, v%d" % (hD + i, hD + i))
    a("  s_mov_b64 exec, s[%d:%d]" % (sLo8, sLo8 + 1))
    for ct in range(4):
        a("  buffer_store_dwordx4 v[%d:%d], v%d, s[%d:%d], s%d offen sc1" % (hD + ct * 4, hD + ct * 4 + 3, T0, sWs, sWs + 3, sT[1]))
        if ct < 3:
            a("  s_add_u32 s%d, s%d, 2048" % (sT[1], sT[1]))
    a("  s_mov_b64 exec, -1")
    stamp(8)
    a("  s_branch L_B1")

    a("L_stats:")
    lds_wait(hMisc, F_ST, 4, T5)
    a("  v_lshl_add_u32 v%d, v%d, 3, v%d" % (T0, hI, hMisc))
    mw, lw = hA, hA + 1
    a("  ds_read_b64 v[%d:%d], v%d offset:%d" % (mw, mw + 1, T0, SSTAT))
    a("  s_waitcnt lgkmcnt(0)")
    Mg, Lg, t_ = hA + 2, hA + 3, hA + 4
    a("  v_mov_b32 v%d, v%d" % (Mg, mw))
    a("  s_nop 1")
    a("  v_max_f32_dpp v%d, v%d, v%d row_ror:4 %s" % (Mg, Mg, Mg, DPP))
    a("  s_nop 1")
    a("  v_max_f32_dpp v%d, v%d, v%d row_ror:8 %s" % (Mg, Mg, Mg, DPP))
    a("  s_mov_b32 s%d, 0x3FB8AA3B" % sT[2])
    a("  v_sub_f32 v%d, v%d, v%d" % (t_, mw, Mg))
    a("  v_mul_f32 v%d, s%d, v%d" % (t_, sT[2], t_))
    a("  v_exp_f32 v%d, v%d" % (t_, t_))
    a("  s_nop 0")
    a("  v_mul_f32 v%d, v%d, v%d" % (Lg, lw, t_))
    a("  s_nop 1")
    a("  v_add_f32_dpp v%d, v%d, v%d row_ror:4 %s" % (Lg, Lg, Lg, DPP))
    a("  s_nop 1")
    a("  v_add_f32_dpp v%d, v%d, v%d row_ror:8 %s" % (Lg, Lg, Lg, DPP))
    a("  s_lshl_b32 s%d, s%d, 3" % (sT[0], sB))
    a("  s_add_u32 s%d, s%d, s%d" % (sT[0], sT[0], sX))
    a("  s_lshl_b32 s%d, s%d, 7" % (sT[0], sT[0]))
    a("  s_add_u32 s%d, s%d, %d" % (sT[0], sT[0], ST))
    a("  s_lshl_b32 s%d, s%d, 5" % (sT[1], sJ))
    a("  s_add_u32 s%d, s%d, s%d" % (sT[1], sT[1], sT[0]))
    a("  v_min_u32 v%d, 0xfffffffe, v%d" % (Mg, Mg))
    a("  v_min_u32 v%d, 0xfffffffe, v%d" % (Lg, Lg))
    a("  v_lshlrev_b32 v%d, 3, v%d" % (T1, hI))
    a("  s_mov_b64 exec, 15")
    a("  buffer_store_dwordx2 v[%d:%d], v%d, s[%d:%d], s%d offen sc1" % (Mg, Mg + 1, T1, sWs, sWs + 3, sT[1]))
    a("  s_mov_b64 exec, -1")
    lds_wait(hMisc, F_GOK, 1, T5)
    mj, lj = hA + 6, hA + 7
    lr, lo = a.lab("Lr"), a.lab("Lo")
    a("  s_mov_b32 s%d, 0" % sCnt)
    a("%s:" % lr)
    a("  buffer_load_dwordx2 v[%d:%d], v%d, s[%d:%d], s%d offen sc1" % (mj, mj + 1, T1, sWs, sWs + 3, sT[0]))
    a("  s_waitcnt vmcnt(0)")
    inband_retry([mj, lj], lr, lo, T5)
    a("%s:" % lo)
    M2, L2 = hA + 8, hA + 9
    a("  v_mov_b32 v%d, v%d" % (M2, mj))
    a("  s_nop 1")
    a("  v_max_f32_dpp v%d, v%d, v%d row_ror:4 %s" % (M2, M2, M2, DPP))
    a("  s_nop 1")
    a("  v_max_f32_dpp v%d, v%d, v%d row_ror:8 %s" % (M2, M2, M2, DPP))
    a("  v_sub_f32 v%d, v%d, v%d" % (t_, mj, M2))
    a("  v_mul_f32 v%d, s%d, v%d" % (t_, sT[2], t_))
    a("  v_exp_f32 v%d, v%d" % (t_, t_))
    a("  s_nop 0")
    a("  v_mul_f32 v%d, v%d, v%d" % (L2, lj, t_))
    a("  s_nop 1")
    a("  v_add_f32_dpp v%d, v%d, v%d row_ror:4 %s" % (L2, L2, L2, DPP))
    a("  s_nop 1")
    a("  v_add_f32_dpp v%d, v%d, v%d row_ror:8 %s" % (L2, L2, L2, DPP))
    a("  v_sub_f32 v%d, v%d, v%d" % (t_, mw, M2))
    a("  v_mul_f32 v%d, s%d, v%d" % (t_, sT[2], t_))
    a("  v_exp_f32 v%d, v%d" % (t_, t_))
    a("  v_rcp_f32 v%d, v%d" % (L2, L2))
    a("  s_nop 0")
    a("  v_mul_f32 v%d, v%d, v%d" % (t_, t_, L2))
    a("  v_and_b32 v%d, 3, v%d" % (T0, hI))
    a("  v_lshlrev_b32 v%d, 4, v%d" % (T0, T0))
    a("  v_lshrrev_b32 v%d, 2, v%d" % (T1, hI))
    a("  v_lshl_add_u32 v%d, v%d, 2, v%d" % (T0, T1, T0))
    a("  v_add_u32 v%d, v%d, v%d" % (T0, T0, hMisc))
    a("  s_mov_b64 exec, 0xffff")
    a("  ds_write_b32 v%d, v%d offset:%d" % (T0, t_, FFAC))
    a("  s_mov_b64 exec, -1")
    a("  s_waitcnt lgkmcnt(0)")
    stamp(8)
    a("  s_branch L_B1")

    def reduce_hd(base, tmp):
        a("  s_nop 1")
        for k in range(4):
            a("  v_add_f32_dpp v%d, v%d, v%d row_ror:4 %s" % (base + k, base + k, base + k, DPP))
        a("  s_nop 1")
        for k in range(4):
            a("  v_add_f32_dpp v%d, v%d, v%d row_ror:8 %s" % (base + k, base + k, base + k, DPP))
        for kind in (16, 32):
            for k in range(4):
                a("  v_mov_b32 v%d, v%d" % (tmp + k, base + k))
            a("  s_nop 1")
            for k in range(4):
                a("  v_permlane%d_swap_b32 v%d, v%d" % (kind, base + k, tmp + k))
            for k in range(4):
                a("  v_add_f32 v%d, v%d, v%d" % (base + k, base + k, tmp + k))

    a("L_fin_prep:")
    a("  buffer_load_dwordx2 v[%d:%d], v%d, s[%d:%d], 0 offen" % (hA + 8, hA + 9, hOutOff, sXd, sXd + 3))
    lds_wait(hMisc, F_GOK, 1, T5)
    a("  v_lshlrev_b32 v%d, 4, v0" % T0)
    a("  s_lshl_b32 s%d, s%d, 11" % (sT[0], sFidx))
    a("  s_add_u32 s%d, s%d, %d" % (sT[0], sT[0], DP))
    lr, lo = a.lab("Lr"), a.lab("Lo")
    a("  s_mov_b32 s%d, 0" % sCnt)
    a("%s:" % lr)
    a("  buffer_load_dwordx4 v[%d:%d], v%d, s[%d:%d], s%d offen sc1" % (hA, hA + 3, T0, sWs, sWs + 3, sT[0]))
    for k in range(4):
        a("  v_mov_b32 v%d, 0" % (hA + 4 + k))
    a("  s_mov_b32 exec_hi, 0xffff")
    a("  buffer_load_dwordx4 v[%d:%d], v%d, s[%d:%d], s%d offen offset:1024 sc1" % (hA + 4, hA + 7, T0, sWs, sWs + 3, sT[0]))
    a("  s_mov_b64 exec, -1")
    a("  s_waitcnt vmcnt(0)")
    inband_retry(range(hA, hA + 8), lr, lo, T5)
    a("%s:" % lo)
    pk("v_pk_add_f32", hA, hA, hA + 4)
    pk("v_pk_add_f32", hA + 2, hA + 2, hA + 6)
    reduce_hd(hA, hA + 4)
    hGv = hXf + 4
    for k in range(4):
        round_bf16(hA + k)
    a("  s_mov_b32 s%d, 0xBFB8AA3B" % sT[2])
    for k in range(4):
        a("  v_mul_f32 v%d, s%d, v%d" % (hA + 4 + k, sT[2], hA + k))
    for k in range(4):
        a("  v_exp_f32 v%d, v%d" % (hA + 4 + k, hA + 4 + k))
    a("  s_nop 0")
    for k in range(4):
        a("  v_add_f32 v%d, 1.0, v%d" % (hA + 4 + k, hA + 4 + k))
    for k in range(4):
        a("  v_rcp_f32 v%d, v%d" % (hA + 4 + k, hA + 4 + k))
    a("  s_nop 0")
    for k in range(4):
        a("  v_mul_f32 v%d, v%d, v%d" % (hGv + k, hA + k, hA + 4 + k))
    for k in range(4):
        round_bf16(hGv + k)
    a("  v_lshlrev_b32 v%d, 16, v%d" % (hXf, hA + 8))
    a("  v_and_b32 v%d, s%d, v%d" % (hXf + 1, sHi2, hA + 8))
    a("  v_lshlrev_b32 v%d, 16, v%d" % (hXf + 2, hA + 9))
    a("  v_and_b32 v%d, s%d, v%d" % (hXf + 3, sHi2, hA + 9))
    stamp(8)

    a("L_B1:")
    a("  v_lshlrev_b32 v%d, 6, v%d" % (T0, hI))
    a("  v_lshl_add_u32 v%d, v%d, 4, v%d" % (T0, hG, T0))
    a("  s_lshl_b32 s%d, s%d, 13" % (sT[0], sHq))
    a("  s_lshl_b32 s%d, s%d, 10" % (sT[1], sHW))
    a("  s_add_u32 s%d, s%d, s%d" % (sT[0], sT[0], sT[1]))
    a("  s_add_u32 s%d, s%d, %d" % (sT[0], sT[0], OP))
    a("  s_add_u32 s%d, s%d, 4096" % (sT[1], sT[0]))
    a("  v_lshlrev_b32 v%d, 8, v%d" % (T1, hG))
    a("  v_lshl_add_u32 v%d, v%d, 2, v%d" % (T1, hI, T1))
    a("  s_lshl_b32 s%d, s%d, 11" % (sT[2], sHW))
    a("  s_add_u32 s%d, s%d, %d" % (sT[2], sT[2], WOS))
    a("  v_add_u32 v%d, s%d, v%d" % (T1, sT[2], T1))
    a("  s_barrier                      ; B1")
    stamp(9)
    lr, lo = a.lab("Lr"), a.lab("Lo")
    a("  s_mov_b32 s%d, 0" % sCnt)
    a("%s:" % lr)
    a("  buffer_load_dwordx4 v[%d:%d], v%d, s[%d:%d], s%d offen sc1" % (hA, hA + 3, T0, sWs, sWs + 3, sT[0]))
    a("  buffer_load_dwordx4 v[%d:%d], v%d, s[%d:%d], s%d offen sc1" % (hA + 4, hA + 7, T0, sWs, sWs + 3, sT[1]))
    a("  s_waitcnt vmcnt(0)")
    inband_retry(range(hA, hA + 8), lr, lo, T5)
    a("%s:" % lo)
    stamp(10)
    for rt in range(2):
        for ct in range(4):
            d = hD + (rt * 4 + ct) * 4
            a("  v_mfma_f32_16x16x32_bf16 v[%d:%d], v[%d:%d], v[%d:%d], 0" % (d, d + 3, hA + 4 * rt, hA + 4 * rt + 3, hW + ct * 4, hW + ct * 4 + 3))
    a("  s_nop 0")
    for n in range(8):
        d = hD + n * 4
        if n == 7:
            a("  s_nop 3")
        pk("v_pk_add_f32", d, d, d + 2)
        a("  v_add_f32 v%d, v%d, v%d" % (d, d, d + 1))
    for rt in range(2):
        for ct in range(4):
            d = hD + (rt * 4 + ct) * 4
            a("  ds_write_b32 v%d, v%d offset:%d" % (T1, d, rt * 1024 + ct * 64))
    a("  s_waitcnt lgkmcnt(0)")
    lds_add(hMisc, F_HOP1, hOne)
    a("  s_cmp_eq_u32 s%d, 0" % sHW)
    a("  s_cbranch_scc1 L_hop2")
    a("  s_cmp_eq_u32 s%d, 1" % sHW)
    a("  s_cbranch_scc1 L_H_done")
    a("  s_sub_u32 s%d, s%d, 2" % (sT[0], sHW))
    a("  s_lshl_b32 s%d, s%d, 10" % (sT[1], sT[0]))
    a("  s_add_u32 s%d, s%d, %d" % (sT[1], sT[1], WOS))
    a("  v_lshlrev_b32 v%d, 8, v%d" % (T0, hG))
    a("  v_lshl_add_u32 v%d, v%d, 4, v%d      ; g*256 + i*16" % (T0, hI, T0))
    a("  v_add_u32 v%d, s%d, v%d" % (T0, sT[1], T0))
    a("  v_lshlrev_b32 v%d, 16, v%d" % (T1, hG))
    a("  v_lshrrev_b32 v%d, 2, v%d" % (T2, hI))
    a("  v_lshl_add_u32 v%d, v%d, 11, v%d" % (T1, T2, T1))
    a("  v_and_b32 v%d, 3, v%d" % (T2, hI))
    a("  v_lshl_add_u32 v%d, v%d, 4, v%d" % (T1, T2, T1))
    a("  s_lshl_b32 s%d, s%d, 18" % (sT[0], sT[0]))
    a("  s_lshl_b32 s%d, s%d, 13" % (sT[1], sB))
    a("  s_add_u32 s%d, s%d, s%d" % (sT[0], sT[0], sT[1]))
    a("  s_lshl_b32 s%d, s%d, 6" % (sT[1], sHq))
    a("  s_add_u32 s%d, s%d, s%d" % (sT[0], sT[0], sT[1]))
    a("  s_add_u32 s%d, s%d, %d" % (sT[0], sT[0], SP))
    lds_wait(hMisc, F_HOP1, 4, T5)
    for w in range(4):
        a("  ds_read_b128 v[%d:%d], v%d offset:%d" % (hA + 4 * w, hA + 4 * w + 3, T0, w * 2048))
    a("  s_waitcnt lgkmcnt(0)")
    for k in (0, 2):
        pk("v_pk_add_f32", hA + k, hA + k, hA + 4 + k)
        pk("v_pk_add_f32", hA + 8 + k, hA + 8 + k, hA + 12 + k)
    for k in (0, 2):
        pk("v_pk_add_f32", hA + k, hA + k, hA + 8 + k)
    for k in range(4):
        a("  v_min_u32 v%d, 0xfffffffe, v%d" % (hA + k, hA + k))
    a("  buffer_store_dwordx4 v[%d:%d], v%d, s[%d:%d], s%d offen sc1" % (hA, hA + 3, T1, sWs, sWs + 3, sT[0]))
    a("  s_waitcnt vmcnt(0)")
    a("  s_branch L_H_done")

    a("L_hop2:")
    a("  v_lshlrev_b32 v%d, 4, v0" % T0)
    a("  s_lshl_b32 s%d, s%d, 11" % (sT[0], sFidx))
    a("  s_add_u32 s%d, s%d, %d" % (sT[0], sT[0], SP))
    a("  s_mov_b32 s%d, 8192" % (sOut + 2))
    lr, lo = a.lab("Lr"), a.lab("Lo")
    a("  s_mov_b32 s%d, 0" % sCnt)
    a("%s:" % lr)
    a("  buffer_load_dwordx4 v[%d:%d], v%d, s[%d:%d], s%d offen sc1" % (hA, hA + 3, T0, sWs, sWs + 3, sT[0]))
    a("  buffer_load_dwordx4 v[%d:%d], v%d, s[%d:%d], s%d offen offset:1024 sc1" % (hA + 4, hA + 7, T0, sWs, sWs + 3, sT[0]))
    a("  s_waitcnt vmcnt(0)")
    inband_retry(range(hA, hA + 8), lr, lo, T5)
    a("%s:" % lo)
    stamp(11)
    pk("v_pk_add_f32", hA, hA, hA + 4)
    pk("v_pk_add_f32", hA + 2, hA + 2, hA + 6)
    reduce_hd(hA, hA + 4)
    for k in range(4):
        round_bf16(hA + k)
    for k in range(4):
        a("  v_mul_f32 v%d, v%d, v%d" % (hA + k, hA + k, hGv + k))
    for k in range(4):
        round_bf16(hA + k)
    for k in range(4):
        a("  v_add_f32 v%d, v%d, v%d" % (hA + k, hA + k, hXf + k))
    a("  v_cvt_pk_bf16_f32 v%d, v%d, v%d" % (hA, hA, hA + 1))
    a("  v_cvt_pk_bf16_f32 v%d, v%d, v%d" % (hA + 1, hA + 2, hA + 3))
    a("  s_mov_b64 exec, 15")
    a("  buffer_store_dwordx2 v[%d:%d], v%d, s[%d:%d], 0 offen" % (hA, hA + 1, hOutOff, sOut, sOut + 3))
    a("  s_mov_b64 exec, -1")
    stamp(12)
    if ts:
        a("  s_waitcnt lgkmcnt(0)")
        a("  s_lshl_b32 s%d, s2, 7" % sT[0])
        a("  s_add_u32 s%d, s%d, %d" % (sT[0], sT[0], TSOFF + 0x10000))
        a("  v_mov_b32 v%d, 0" % T2)
        a("  s_mov_b64 exec, 1")
        for i in range(13):
            a("  v_mov_b32 v%d, s%d" % (hA, TS0 + 2 * i))
            a("  v_mov_b32 v%d, s%d" % (hA + 1, TS0 + 2 * i + 1))
            a("  buffer_store_dwordx2 v[%d:%d], v%d, s[%d:%d], s%d offen offset:%d" % (hA, hA + 1, T2, sWs, sWs + 3, sT[0], 8 * i))
            a("  s_waitcnt vmcnt(0)")
        a("  s_mov_b64 exec, -1")
    a("  s_waitcnt vmcnt(0)")
    a("L_H_done:")
    a("L_end:")
    a("  s_endpgm")

    body = a.text()
    s = HEADER
    s += "; @launch grid=(256,1,1) block=(512,1,1) lds=%d\n" % LDS_TOTAL
    s += '.amdgcn_target "amdgcn-amd-amdhsa--gfx950"\n.text\n'
    s += ".globl %s\n.p2align 8\n.type %s,@function\n%s:\n" % (KNAME, KNAME, KNAME)
    s += body
    s += """
.section .rodata,"a"
.p2align 6
.amdhsa_kernel %s
  .amdhsa_next_free_vgpr %d
  .amdhsa_next_free_sgpr 102
  .amdhsa_accum_offset %d
  .amdhsa_group_segment_fixed_size 0
  .amdhsa_kernarg_size 96
  .amdhsa_user_sgpr_count 2
  .amdhsa_user_sgpr_kernarg_segment_ptr 1
  .amdhsa_system_sgpr_workgroup_id_x 1
.end_amdhsa_kernel
""" % (KNAME, NV, NV)
    return s


if __name__ == "__main__":
    kw = {}
    out = "main.s"
    for arg in sys.argv[1:]:
        if "=" in arg:
            k, v = arg.split("=")
            kw[k] = int(v)
        else:
            out = arg
    open(out, "w").write(gen(**kw))
    print("wrote", out)
```

```python
import sys
from asmlib import HEADER, KNAME

QP = 0x000000
GP = 0x080000
HH = 0x0F0000
OP = 0x100000
ST = 0x180000
DP = 0x190000
SP = 0x210000
EPOCH = 0x0FF000
EW = 0x2A0000
TSOFF = 0x0F000000

RING = 32768
MISC = 131072
XN = MISC
XN_STRIDE = 1040
QL = MISC + 8448
QL_STRIDE = 272
WOS = QL + 1088
WOS = (WOS + 255) // 256 * 256
FLG = WOS + 16384
F_H1 = 0; F_H3 = 8; F_QRDY = 16; F_STG = 20; F_ST = 24; F_HOP1 = 32; F_EW = 36
SSTAT = 64
FFAC = 192
SPARE = FLG + 256
LDS_TOTAL = SPARE + 4096
assert LDS_TOTAL <= 163840, LDS_TOTAL
SPIN_LIMIT = 200000


class Asm:
    def __init__(self):
        self.lines = []
        self.nlab = 0

    def __call__(self, s=""):
        for l in s.split("\n"):
            self.lines.append(l)

    def lab(self, base="L"):
        self.nlab += 1
        return "%s_%d" % (base, self.nlab)

    def text(self):
        return "\n".join(self.lines) + "\n"


def vr(base, n=1):
    return "v%d" % base if n == 1 else "v[%d:%d]" % (base, base + n - 1)


def sr(base, n=1):
    return "s%d" % base if n == 1 else "s[%d:%d]" % (base, base + n - 1)


DPP = "row_mask:0xf bank_mask:0xf"


def gen(ts=False, dbg=0, rotmode=0, depth=6, noq=0, noffn=0, hop_sleep=2, ew_it=3):
    a = Asm()
    sW, sX, sLi, sCnt = 3, 4, 5, 6
    sT = [20, 21, 22, 23, 24, 25, 26, 27]
    TS0 = 64
    nts = [0]

    names = {"S": ["start"], "H": ["start"]}
    role = ["S"]

    def stamp(name):
        if name == 0:
            if ts:
                a("  s_memrealtime s[%d:%d]" % (TS0, TS0 + 1))
            return
        lst = names[role[0]]
        if name not in lst:
            lst.append(name)
        idx = lst.index(name)
        assert TS0 + 2 * idx + 1 <= 101
        if ts:
            a("  s_memrealtime s[%d:%d]" % (TS0 + 2 * idx, TS0 + 2 * idx + 1))

    def lds_wait(vbase, off, n, vtmp):
        l0, l1 = a.lab("Lw"), a.lab("Lwd")
        a("  s_mov_b32 s%d, 0" % sCnt)
        a("%s:" % l0)
        a("  ds_read_b32 v%d, v%d offset:%d" % (vtmp, vbase, off))
        a("  s_waitcnt lgkmcnt(0)")
        a("  v_readfirstlane_b32 s%d, v%d" % (sT[7], vtmp))
        a("  s_cmp_ge_u32 s%d, %d" % (sT[7], n))
        a("  s_cbranch_scc1 %s" % l1)
        a("  s_add_u32 s%d, s%d, 1" % (sCnt, sCnt))
        a("  s_cmp_lt_u32 s%d, %d" % (sCnt, SPIN_LIMIT))
        a("  s_cbranch_scc0 %s" % l1)
        a("  s_sleep 1")
        a("  s_branch %s" % l0)
        a("%s:" % l1)

    def lds_add(vbase, off, vone):
        a("  s_mov_b64 exec, 1")
        a("  ds_add_u32 v%d, v%d offset:%d" % (vbase, vone, off))
        a("  s_mov_b64 exec, -1")

    def reduce_swap(op, v, t, kind):
        a("  v_mov_b32 v%d, v%d" % (t, v))
        a("  s_nop 1")
        a("  v_permlane%d_swap_b32 v%d, v%d" % (kind, v, t))
        a("  %s v%d, v%d, v%d" % (op, v, v, t))

    a("  s_cmp_ge_u32 s2, 256")
    a("  s_cbranch_scc1 L_end")
    stamp(0)
    a("  v_lshrrev_b32 v1, 6, v0")
    a("  v_and_b32 v0, 63, v0            ; lane")
    a("  v_readfirstlane_b32 s%d, v1     ; wave id" % sW)
    a("  s_and_b32 s%d, s2, 7" % sX)
    a("  s_lshr_b32 s%d, s2, 3" % sLi)
    a("  s_cmp_ge_u32 s%d, 4" % sW)
    a("  s_cbranch_scc1 L_H")

    sK, sV, sCur = 8, 12, 16
    sBaseW, sRot, sRing, sIss, sOff, sIt = 28, 29, 30, 31, 32, 33
    sM = 34
    sScale, sHi = 42, 43
    vLane = 0
    vMisc, vOne = 2, 3
    vKo, vVo, vCo = 4, 8, 12
    vKa = 16
    vVa = 20
    vTmp = 28
    vSp = 36
    vPf = 44
    vAcc = 52
    vE = 56
    vSt = 72
    vO = 104
    vQ = 136
    NV = 200

    a("  s_load_dwordx2 s[%d:%d], s[0:1], 8" % (sK, sK + 1))
    a("  s_load_dwordx2 s[%d:%d], s[0:1], 16" % (sV, sV + 1))
    sWsS = 44
    a("  s_load_dwordx2 s[%d:%d], s[0:1], 88" % (sWsS, sWsS + 1))
    a("  s_mov_b32 s%d, 0x10000000" % (sWsS + 2))
    a("  s_mov_b32 s%d, 0x20000" % (sWsS + 3))
    sEp = 48
    a("  s_mov_b32 s%d, 0x4000000" % (sK + 2))
    a("  s_mov_b32 s%d, 0x20000" % (sK + 3))
    a("  s_mov_b32 s%d, 0x4000000" % (sV + 2))
    a("  s_mov_b32 s%d, 0x20000" % (sV + 3))
    a("  s_lshr_b32 s%d, s%d, 2" % (sT[0], sLi))
    a("  s_lshl_b32 s%d, s%d, 3" % (sT[0], sT[0]))
    a("  s_add_u32 s%d, s%d, s%d" % (sT[0], sT[0], sX))
    a("  s_lshl_b32 s%d, s%d, 20" % (sT[0], sT[0]))
    a("  s_and_b32 s%d, s%d, 3" % (sT[1], sLi))
    a("  s_lshl_b32 s%d, s%d, 18" % (sT[1], sT[1]))
    a("  s_add_u32 s%d, s%d, s%d" % (sT[0], sT[0], sT[1]))
    a("  s_lshl_b32 s%d, s%d, 13" % (sT[1], sW))
    a("  s_add_u32 s%d, s%d, s%d" % (sBaseW, sT[0], sT[1]))
    if rotmode == 0:
        a("  s_mov_b32 s%d, s2" % sRot)
    elif rotmode == 1:
        a("  s_add_u32 s%d, s2, s%d" % (sRot, sLi))
    else:
        a("  s_mov_b32 s%d, 0" % sRot)
    a("  s_lshl_b32 s%d, s%d, 15" % (sRing, sW))
    a("  s_mov_b32 s%d, 0" % sIss)
    t0, t1, t2 = vTmp, vTmp + 1, vTmp + 2
    a("  v_lshrrev_b32 v%d, 4, v%d      ; g = l>>4" % (t0, vLane))
    a("  v_and_b32 v%d, 15, v%d         ; c' = l&15" % (t1, vLane))
    for i in range(4):
        a("  v_add_u32 v%d, %d, v%d" % (t2, 4 * i, t0))
        a("  v_xor_b32 v%d, v%d, v%d" % (t2, t2, t1))
        a("  v_lshlrev_b32 v%d, 4, v%d" % (t2, t2))
        a("  v_lshl_add_u32 v%d, v%d, 8, v%d" % (vKo + i, t0, t2))
    for i in range(2):
        a("  v_add_u32 v%d, %d, v%d" % (t2, 4 * i, t0))
        a("  v_lshlrev_b32 v%d, 1, v%d" % (t2, t2))
        a("  v_xor_b32 v%d, v%d, v%d" % (t2, t2, t1))
        a("  v_lshlrev_b32 v%d, 4, v%d" % (t2, t2))
        a("  v_lshl_add_u32 v%d, v%d, 8, v%d" % (vVo + i, t0, t2))
    for i in range(4):
        a("  v_mov_b32 v%d, v%d" % (vCo + i, vKo + i))
    a("  v_mov_b32 v%d, %d" % (vMisc, FLG))
    a("  v_mov_b32 v%d, 1" % vOne)
    a("  s_waitcnt lgkmcnt(0)")
    a("  s_load_dword s%d, s[%d:%d], 0x%x" % (sEp, sWsS, sWsS + 1, EPOCH))
    for i in range(4):
        a("  s_mov_b32 s%d, s%d" % (sCur + i, sK + i))
    a("  s_barrier                      ; B0")

    def issue_unit(switch=False):
        if switch:
            lsw = a.lab("Lsw")
            a("  s_cmp_lg_u32 s%d, 8" % sIss)
            a("  s_cbranch_scc1 %s" % lsw)
            for i in range(4):
                a("  s_mov_b32 s%d, s%d" % (sCur + i, sV + i))
            for i in range(4):
                a("  v_mov_b32 v%d, v%d" % (vCo + i, vVo + (i & 1)))
            a("%s:" % lsw)
        a("  s_add_u32 s%d, s%d, s%d" % (sT[0], sIss, sRot))
        a("  s_and_b32 s%d, s%d, 7" % (sT[0], sT[0]))
        a("  s_lshl_b32 s%d, s%d, 15" % (sT[0], sT[0]))
        a("  s_add_u32 s%d, s%d, s%d" % (sOff, sT[0], sBaseW))
        a("  s_and_b32 s%d, s%d, 3" % (sT[0], sIss))
        a("  s_lshl_b32 s%d, s%d, 13" % (sT[0], sT[0]))
        a("  s_add_u32 m0, s%d, s%d" % (sT[0], sRing))
        a("  s_add_u32 s%d, s%d, 1" % (sIss, sIss))
        a("  s_waitcnt vmcnt(%d)" % (depth - 1))
        for i in range(4):
            a("  buffer_load_dwordx4 v%d, s[%d:%d], s%d offen offset:%d nt lds" % (vCo + i, sCur, sCur + 3, sOff, i * 1024))
            if i < 3:
                a("  s_waitcnt vmcnt(%d)" % (depth - 1))
        a("  s_add_u32 m0, m0, 4096")
        a("  s_add_u32 s%d, s%d, 4096" % (sOff, sOff))
        a("  s_waitcnt vmcnt(%d)" % (depth - 1))
        for i in range(4):
            a("  buffer_load_dwordx4 v%d, s[%d:%d], s%d offen offset:%d nt lds" % (vCo + i, sCur, sCur + 3, sOff, i * 1024))
            if i < 3:
                a("  s_waitcnt vmcnt(%d)" % (depth - 1))

    a("L_fill:")
    a("  s_cmp_lg_u32 s%d, 3" % sIss)
    a("  s_cbranch_scc1 L_fill_go")
    stamp("u2 issued")
    lds_wait(vMisc, F_STG, 4, vTmp + 5)
    stamp("STG ok")
    a("L_fill_go:")
    issue_unit()
    a("  s_cmp_lt_u32 s%d, 4" % sIss)
    a("  s_cbranch_scc1 L_fill")
    for s in range(4):
        a("  v_add_u32 v%d, %d, v%d" % (t2, 4 * s, t0))
        a("  v_xor_b32 v%d, v%d, v%d" % (t2, t2, t1))
        a("  v_lshlrev_b32 v%d, 4, v%d" % (t2, t2))
        a("  v_lshl_add_u32 v%d, v%d, 8, v%d" % (t2, t1, t2))
        a("  v_add_u32 v%d, s%d, v%d" % (vKa + s, sRing, t2))
    t3, t4 = vTmp + 3, vTmp + 4
    a("  v_lshrrev_b32 v%d, 2, v%d" % (t2, t1))
    a("  v_lshl_add_u32 v%d, v%d, 2, v%d    ; row" % (t2, t0, t2))
    a("  v_and_b32 v%d, 7, v%d              ; row&7" % (t3, t2))
    a("  v_lshlrev_b32 v%d, 8, v%d" % (t2, t2))
    a("  v_and_b32 v%d, 3, v%d" % (t4, t1))
    a("  v_lshl_add_u32 v%d, v%d, 3, v%d" % (t2, t4, t2))
    a("  v_add_u32 v%d, s%d, v%d" % (t2, sRing, t2))
    for dt in range(8):
        a("  v_xor_b32 v%d, %d, v%d" % (t4, dt, t3))
        a("  v_lshl_add_u32 v%d, v%d, 5, v%d" % (vVa + dt, t4, t2))
    for i in range(64):
        a("  v_mov_b32 v%d, 0" % (vQ + i))
    a("  v_bfe_u32 v%d, v%d, 2, 2" % (t2, vLane))
    for t in range(4):
        a("  v_cmp_eq_u32 s[%d:%d], %d, v%d" % (sM + 2 * t, sM + 2 * t + 1, t, t2))
    a("  v_and_b32 v%d, 3, v%d" % (t2, vLane))
    a("  v_mul_u32_u24 v%d, %d, v%d" % (t2, QL_STRIDE, t2))
    a("  v_lshl_add_u32 v%d, v%d, 4, v%d" % (t2, t0, t2))
    a("  v_add_u32 v%d, %d, v%d" % (t2, QL, t2))
    a("  s_mov_b32 s%d, 0x3DB504F3      ; 128^-0.5" % sScale)
    a("  s_mov_b32 s%d, 0xffff0000" % sHi)
    stamp("fill done")
    if not noq:
        lds_wait(vMisc, F_QRDY, 4, vTmp + 5)
    stamp("Q ready")
    for t in range(4):
        a("  s_mov_b64 exec, s[%d:%d]" % (sM + 2 * t, sM + 2 * t + 1))
        for s in range(4):
            r = vQ + (t * 4 + s) * 4
            a("  ds_read_b128 v[%d:%d], v%d offset:%d" % (r, r + 3, t2, 64 * s))
    a("  s_mov_b64 exec, -1")
    a("  s_mov_b32 s%d, 0" % sIt)
    a("  s_waitcnt vmcnt(0) lgkmcnt(0)")

    a("L_k:")
    for u in range(2):
        if u == 0:
            lsk = a.lab("Lsk")
            a("  s_cmp_lt_u32 s%d, 3" % sIt)
            a("  s_cbranch_scc1 %s" % lsk)
            issue_unit()
            a("%s:" % lsk)
        else:
            issue_unit(switch=True)
        for hf in range(2):
            for s_ in range(4):
                r = vSt + (hf * 4 + s_) * 4
                a("  ds_read_b128 v[%d:%d], v%d offset:%d" % (r, r + 3, vKa + s_, u * 8192 + hf * 4096))
        for hf in range(2):
            a("  s_waitcnt lgkmcnt(%d)" % (4 if hf == 0 else 0))
            t = 2 * u + hf
            for s_ in range(4):
                r = vSt + (hf * 4 + s_) * 4
                q = vQ + (t * 4 + s_) * 4
                c = "0" if (u == 0 and hf == 0 and s_ == 0) else "v[%d:%d]" % (vAcc, vAcc + 3)
                a("  v_mfma_f32_16x16x32_bf16 v[%d:%d], v[%d:%d], v[%d:%d], %s" % (vAcc, vAcc + 3, r, r + 3, q, q + 3, c))
    for i in range(6):
        a("  v_mov_b32 v%d, v%d" % (vSp + i, vSp + i + 2))
    for s in range(4):
        a("  v_xor_b32 v%d, 0x4000, v%d" % (vKa + s, vKa + s))
    c0, c1 = vTmp, vTmp + 1
    e0 = vTmp + 2
    a("  v_cvt_pk_bf16_f32 v%d, v%d, v%d" % (c0, vAcc, vAcc + 1))
    a("  v_cvt_pk_bf16_f32 v%d, v%d, v%d" % (c1, vAcc + 2, vAcc + 3))
    a("  v_lshlrev_b32 v%d, 16, v%d" % (e0, c0))
    a("  v_and_b32 v%d, s%d, v%d" % (e0 + 1, sHi, c0))
    a("  v_lshlrev_b32 v%d, 16, v%d" % (e0 + 2, c1))
    a("  v_and_b32 v%d, s%d, v%d" % (e0 + 3, sHi, c1))
    for i in range(4):
        a("  v_mul_f32 v%d, s%d, v%d" % (e0 + i, sScale, e0 + i))
    a("  v_cvt_pk_bf16_f32 v%d, v%d, v%d" % (vSp + 6, e0, e0 + 1))
    a("  v_cvt_pk_bf16_f32 v%d, v%d, v%d" % (vSp + 7, e0 + 2, e0 + 3))
    a("  s_add_u32 s%d, s%d, 1" % (sIt, sIt))
    a("  s_cmp_lt_u32 s%d, 4" % sIt)
    a("  s_cbranch_scc1 L_k")
    stamp("K done")

    for i in range(8):
        a("  v_lshlrev_b32 v%d, 16, v%d" % (vE + 2 * i, vSp + i))
        a("  v_and_b32 v%d, s%d, v%d" % (vE + 2 * i + 1, sHi, vSp + i))
    vM, vL, vX = vTmp, vTmp + 1, vTmp + 2
    a("  v_max3_f32 v%d, v%d, v%d, v%d" % (vM, vE, vE + 1, vE + 2))
    for i in range(3, 15, 2):
        a("  v_max3_f32 v%d, v%d, v%d, v%d" % (vM, vM, vE + i, vE + i + 1))
    a("  v_max_f32 v%d, v%d, v%d" % (vM, vM, vE + 15))
    a("  s_nop 1")
    a("  v_max_f32_dpp v%d, v%d, v%d row_ror:4 %s" % (vM, vM, vM, DPP))
    a("  s_nop 1")
    a("  v_max_f32_dpp v%d, v%d, v%d row_ror:8 %s" % (vM, vM, vM, DPP))
    reduce_swap("v_max_f32", vM, vX, 16)
    reduce_swap("v_max_f32", vM, vX, 32)
    a("  s_mov_b32 s%d, 0x3FB8AA3B      ; log2(e)" % sT[0])
    a("  v_mul_f32 v%d, s%d, v%d" % (vX, sT[0], vM))
    for i in range(16):
        a("  v_fma_f32 v%d, v%d, s%d, -v%d" % (vE + i, vE + i, sT[0], vX))
    for i in range(16):
        a("  v_exp_f32 v%d, v%d" % (vE + i, vE + i))
    a("  s_nop 0")
    for i in range(8):
        a("  v_cvt_pk_bf16_f32 v%d, v%d, v%d" % (vSp + i, vE + 2 * i, vE + 2 * i + 1))
    for i in range(4):
        a("  v_pk_add_f32 v[%d:%d], v[%d:%d], v[%d:%d]" % (vE + 2 * i, vE + 2 * i + 1, vE + 2 * i, vE + 2 * i + 1, vE + 8 + 2 * i, vE + 9 + 2 * i))
    for i in range(2):
        a("  v_pk_add_f32 v[%d:%d], v[%d:%d], v[%d:%d]" % (vE + 2 * i, vE + 2 * i + 1, vE + 2 * i, vE + 2 * i + 1, vE + 4 + 2 * i, vE + 5 + 2 * i))
    a("  v_pk_add_f32 v[%d:%d], v[%d:%d], v[%d:%d]" % (vE, vE + 1, vE, vE + 1, vE + 2, vE + 3))
    a("  v_add_f32 v%d, v%d, v%d" % (vL, vE, vE + 1))
    a("  s_nop 1")
    a("  v_add_f32_dpp v%d, v%d, v%d row_ror:4 %s" % (vL, vL, vL, DPP))
    a("  s_nop 1")
    a("  v_add_f32_dpp v%d, v%d, v%d row_ror:8 %s" % (vL, vL, vL, DPP))
    reduce_swap("v_add_f32", vL, vX, 16)
    reduce_swap("v_add_f32", vL, vX, 32)
    a("  s_lshl_b32 s%d, s%d, 5" % (sT[0], sW))
    a("  v_lshlrev_b32 v%d, 3, v%d" % (vX, vLane))
    a("  v_add_u32 v%d, s%d, v%d" % (vX, sT[0], vX))
    a("  v_add_u32 v%d, v%d, v%d" % (vX, vMisc, vX))
    a("  s_mov_b64 exec, 15")
    a("  ds_write_b64 v%d, v[%d:%d] offset:%d" % (vX, vM, vM + 1, SSTAT))
    a("  s_waitcnt lgkmcnt(0)")
    a("  s_mov_b64 exec, -1")
    lds_add(vMisc, F_ST, vOne)

    for i in range(32):
        a("  v_mov_b32 v%d, 0" % (vO + i))
    a("  s_mov_b32 s%d, 0" % sIt)
    a("L_v:")
    a("  v_mov_b32 v%d, v%d" % (vPf, vSp))
    a("  v_mov_b32 v%d, v%d" % (vPf + 1, vSp + 1))
    for k, sh in ((2, 4), (4, 8), (6, 12)):
        a("  v_mov_b32_dpp v%d, v%d row_shl:%d %s bound_ctrl:0" % (vPf + k, vSp, sh, DPP))
        a("  v_mov_b32_dpp v%d, v%d row_shl:%d %s bound_ctrl:0" % (vPf + k + 1, vSp + 1, sh, DPP))
    for i in range(6):
        a("  v_mov_b32 v%d, v%d" % (vSp + i, vSp + i + 2))
    lew = a.lab("Lew")
    a("  s_cmp_lg_u32 s%d, %d" % (sIt, ew_it))
    a("  s_cbranch_scc1 %s" % lew)
    a("  s_cmp_lg_u32 s%d, 0" % sW)
    a("  s_cbranch_scc1 %s" % lew)
    a("  s_add_u32 s%d, s%d, 1" % (sT[1], sEp))
    a("  s_and_b32 s%d, s%d, 0xff" % (sT[1], sT[1]))
    for k in range(4):
        a("  v_mov_b32 v%d, s%d" % (vE + k, sT[1]))
    a("  s_lshl_b32 s%d, s%d, 9" % (sT[0], sX))
    a("  s_lshl_b32 s%d, s%d, 4" % (sT[1], sLi))
    a("  s_add_u32 s%d, s%d, s%d" % (sT[0], sT[0], sT[1]))
    a("  s_add_u32 s%d, s%d, %d" % (sT[0], sT[0], EW))
    a("  v_mov_b32 v%d, 0" % (vE + 4))
    a("  s_mov_b64 exec, 1")
    a("  buffer_store_dwordx4 v[%d:%d], v%d, s[%d:%d], s%d offen sc1" % (vE, vE + 3, vE + 4, sWsS, sWsS + 3, sT[0]))
    a("  s_mov_b64 exec, -1")
    a("%s:" % lew)
    for u in range(2):
        if u == 0:
            issue_unit()
        else:
            lv_else, lv_done = a.lab("Lve"), a.lab("Lvd")
            a("  s_cmp_ge_u32 s%d, 3" % sIt)
            a("  s_cbranch_scc1 %s" % lv_else)
            issue_unit()
            a("  s_branch %s" % lv_done)
            a("%s:" % lv_else)
            a("  s_waitcnt vmcnt(0)")
            a("%s:" % lv_done)
        for dt in range(8):
            r = vSt + dt * 4
            a("  ds_read_b64_tr_b16 v[%d:%d], v%d offset:%d" % (r, r + 1, vVa + dt, u * 8192))
            a("  ds_read_b64_tr_b16 v[%d:%d], v%d offset:%d" % (r + 2, r + 3, vVa + dt, u * 8192 + 4096))
        for dt in range(8):
            r = vSt + dt * 4
            o = vO + dt * 4
            if dt % 2 == 0:
                a("  s_waitcnt lgkmcnt(%d)" % (12 - 2 * dt if dt < 6 else 0))
            a("  v_mfma_f32_16x16x32_bf16 v[%d:%d], v[%d:%d], v[%d:%d], v[%d:%d]" % (o, o + 3, r, r + 3, vPf + 4 * u, vPf + 4 * u + 3, o, o + 3))
    for dt in range(8):
        a("  v_xor_b32 v%d, 0x4000, v%d" % (vVa + dt, vVa + dt))
    a("  s_add_u32 s%d, s%d, 1" % (sIt, sIt))
    a("  s_cmp_lt_u32 s%d, 4" % sIt)
    a("  s_cbranch_scc1 L_v")
    stamp("V done")
    a("  v_and_b32 v%d, 15, v%d" % (t1, vLane))
    a("  v_lshrrev_b32 v%d, 4, v%d" % (t0, vLane))
    a("  v_lshlrev_b32 v%d, 9, v%d" % (t2, t1))
    a("  v_lshl_add_u32 v%d, v%d, 4, v%d" % (t2, t0, t2))
    a("  v_add_u32 v%d, s%d, v%d" % (t2, sRing, t2))
    a("  v_cmp_gt_u32 vcc, 4, v%d" % t1)
    a("  s_nop 4")
    a("  s_mov_b64 exec, vcc")
    for dt in range(8):
        a("  ds_write_b128 v%d, v[%d:%d] offset:%d" % (t2, vO + dt * 4, vO + dt * 4 + 3, dt * 64))
    a("  s_mov_b64 exec, -1")
    vR0, vR1, vR2, vR3 = vPf, vPf + 1, vPf + 2, vPf + 3
    a("  v_lshlrev_b32 v%d, 9, v%d" % (vR0, t0))
    a("  v_lshl_add_u32 v%d, v%d, 4, v%d      ; h*512 + c*16" % (vR0, t1, vR0))
    a("  v_lshl_add_u32 v%d, v%d, 4, v%d      ; FLG + h*16" % (vR1, t0, vMisc))
    a("  v_lshlrev_b32 v%d, 14, v%d" % (vR2, t0))
    a("  v_lshrrev_b32 v%d, 3, v%d" % (t3, t1))
    a("  v_lshl_add_u32 v%d, v%d, 11, v%d" % (vR2, t3, vR2))
    a("  v_and_b32 v%d, 7, v%d" % (t3, t1))
    a("  v_lshl_add_u32 v%d, v%d, 4, v%d" % (vR2, t3, vR2))
    a("  s_lshl_b32 s%d, s%d, 16" % (sT[0], sX))
    a("  s_lshr_b32 s%d, s%d, 4" % (sT[1], sLi))
    a("  s_lshl_b32 s%d, s%d, 13" % (sT[1], sT[1]))
    a("  s_add_u32 s%d, s%d, s%d" % (sT[0], sT[0], sT[1]))
    a("  s_and_b32 s%d, s%d, 15" % (sT[1], sLi))
    a("  s_lshl_b32 s%d, s%d, 7" % (sT[1], sT[1]))
    a("  s_add_u32 s%d, s%d, s%d" % (sT[0], sT[0], sT[1]))
    a("  s_add_u32 s%d, s%d, %d" % (sT[0], sT[0], OP))
    a("  s_add_u32 s%d, s%d, 1" % (sT[1], sEp))
    a("  s_and_b32 s%d, s%d, 0xff" % (sT[1], sT[1]))
    a("  v_mov_b32 v%d, s%d" % (vR3, sT[1]))
    a("  s_add_u32 s%d, s%d, 4096" % (sT[1], sT[0]))
    a("  s_mov_b32 s%d, 0xffffff00" % sT[2])
    a("  s_waitcnt lgkmcnt(0)")
    a("  s_barrier                      ; B1")
    a("  s_cmp_lg_u32 s%d, 0" % sW)
    a("  s_cbranch_scc1 L_S_done")
    sWs = sWsS
    for w in range(4):
        a("  ds_read_b128 v[%d:%d], v%d offset:%d" % (vSt + w * 8, vSt + w * 8 + 3, vR0, (w & 1) * 32768))
        a("  ds_read_b128 v[%d:%d], v%d offset:%d" % (vSt + w * 8 + 4, vSt + w * 8 + 7, vR0, (w & 1) * 32768 + 256))
        if w == 1:
            a("  v_add_u32 v%d, 0x10000, v%d" % (vR0, vR0))
    a("  ds_read_b128 v[%d:%d], v%d offset:%d" % (vE, vE + 3, vR1, FFAC))
    a("  s_waitcnt lgkmcnt(0)")
    for i in range(8):
        a("  v_mul_f32 v%d, v%d, v%d" % (vO + i, vSt + i, vE))
    for w in range(1, 4):
        for i in range(8):
            a("  v_fmac_f32 v%d, v%d, v%d" % (vO + i, vSt + w * 8 + i, vE + w))
    for i in range(8):
        a("  v_and_or_b32 v%d, v%d, s%d, v%d" % (vO + i, vO + i, sT[2], vR3))
    a("  buffer_store_dwordx4 v[%d:%d], v%d, s[%d:%d], s%d offen sc1" % (vO, vO + 3, vR2, sWs, sWs + 3, sT[0]))
    a("  buffer_store_dwordx4 v[%d:%d], v%d, s[%d:%d], s%d offen sc1" % (vO + 4, vO + 7, vR2, sWs, sWs + 3, sT[1]))
    stamp("published")
    if ts:
        a("  s_waitcnt lgkmcnt(0)")
        a("  s_lshl_b32 s%d, s2, 8" % sT[0])
        a("  s_add_u32 s%d, s%d, %d" % (sT[0], sT[0], TSOFF))
        a("  v_mov_b32 v%d, 0" % t2)
        a("  s_mov_b64 exec, 1")
        for i in range(len(names["S"])):
            a("  v_mov_b32 v%d, s%d" % (vO, TS0 + 2 * i))
            a("  v_mov_b32 v%d, s%d" % (vO + 1, TS0 + 2 * i + 1))
            a("  buffer_store_dwordx2 v[%d:%d], v%d, s[%d:%d], s%d offen offset:%d" % (vO, vO + 1, t2, sWs, sWs + 3, sT[0], 8 * i))
            a("  s_waitcnt vmcnt(0)")
        a("  s_mov_b64 exec, -1")
    a("  s_waitcnt vmcnt(0)")
    a("L_S_done:")
    a("  s_endpgm")

    role[0] = "H"
    a("L_H:")
    sHW = 7
    sXd, sWq, sWs, sGU, sWd, sWo, sOut = 8, 12, 16, 32, 36, 40, 44
    sEp = 28
    sTag = 29
    sNotFF = 30
    sTag4 = 31
    sHi2 = 48
    sFi = 49
    sSelA, sSelB = 50, 54
    sB = 51; sJ = 52; sFidx = 53
    sKb2 = 55
    sLo8 = 60
    sHq = 62
    sWoStg = 63
    hMisc, hOne = 2, 3
    hG, hI = 4, 5
    hT = 6
    hX = 16
    hF = 24
    hY = 40
    hA = 56
    hB = 72
    hD = 88
    hW = 120
    hXf = 136
    hZ = 144
    hTag = 156
    hWd = 160
    T0, T1, T2, T3, T4, T5 = hT, hT + 1, hT + 2, hT + 3, hT + 4, hT + 5
    hTr, hXn, hW1k, hTrG, hOutOff = hZ + 1, hZ + 2, hZ + 4, hZ + 5, hZ + 6

    a("  s_sub_u32 s%d, s%d, 4" % (sHW, sW))
    a("  s_load_dwordx2 s[%d:%d], s[0:1], 0" % (sXd, sXd + 1))
    a("  s_load_dwordx2 s[%d:%d], s[0:1], 24" % (sWq, sWq + 1))
    a("  s_load_dwordx2 s[%d:%d], s[0:1], 88" % (sWs, sWs + 1))
    a("  s_load_dwordx4 s[56:59], s[0:1], 48")
    a("  s_load_dwordx2 s[%d:%d], s[0:1], 64" % (sWd, sWd + 1))
    a("  s_load_dwordx2 s[%d:%d], s[0:1], 32" % (sWo, sWo + 1))
    a("  s_load_dwordx2 s[%d:%d], s[0:1], 72" % (sOut, sOut + 1))
    a("  s_mov_b32 s%d, 8192" % (sXd + 2))
    a("  s_mov_b32 s%d, 0x20000" % (sXd + 3))
    a("  s_mov_b32 s%d, 0x400000" % (sWq + 2))
    a("  s_mov_b32 s%d, 0x20000" % (sWq + 3))
    a("  s_mov_b32 s%d, 0xffff0000" % sHi2)
    a("  v_lshrrev_b32 v%d, 4, v0" % hG)
    a("  v_and_b32 v%d, 15, v0" % hI)
    a("  v_mov_b32 v%d, %d" % (hMisc, FLG))
    a("  v_mov_b32 v%d, 1" % hOne)
    a("  v_lshrrev_b32 v%d, 5, v0" % T0)
    a("  s_lshl_b32 s%d, s%d, 1" % (sT[0], sHW))
    a("  v_add_u32 v%d, s%d, v%d          ; row b" % (T0, sT[0], T0))
    a("  v_and_b32 v%d, 31, v0" % T1)
    a("  v_lshlrev_b32 v%d, 5, v%d" % (T1, T1))
    a("  v_lshl_add_u32 v%d, v%d, 10, v%d" % (T2, T0, T1))
    a("  v_mul_u32_u24 v%d, %d, v%d" % (T0, XN_STRIDE, T0))
    a("  v_add_u32 v%d, v%d, v%d" % (T0, T0, T1))
    a("  v_add_u32 v%d, %d, v%d" % (hZ, XN, T0))
    a("  v_lshrrev_b32 v%d, 3, v0" % T3)
    a("  v_and_b32 v%d, 7, v0" % T4)
    a("  v_lshlrev_b32 v%d, 4, v%d" % (T4, T4))
    a("  v_lshl_add_u32 v%d, v%d, 13, v%d" % (T5, T3, T4))
    a("  v_lshl_add_u32 v%d, v%d, 10, v%d" % (hW1k, T3, T4))
    a("  v_mul_u32_u24 v%d, 3584, v%d" % (T3, T3))
    a("  v_add_u32 v%d, v%d, v%d" % (T3, T3, T4))
    a("  s_and_b32 s%d, s%d, 3" % (sJ, sLi))
    a("  s_lshr_b32 s%d, s%d, 2" % (sB, sLi))
    a("  s_lshl_b32 s%d, s%d, 20" % (sT[0], sJ))
    a("  s_lshl_b32 s%d, s%d, 18" % (sT[1], sHW))
    a("  s_add_u32 s%d, s%d, s%d" % (sT[0], sT[0], sT[1]))
    a("  s_lshl_b32 s%d, s%d, 10" % (sT[1], sX))
    a("  s_add_u32 s%d, s%d, s%d" % (sT[0], sT[0], sT[1]))
    a("  s_lshl_b32 s%d, s%d, 7" % (sT[1], sB))
    a("  s_add_u32 s%d, s%d, s%d" % (sT[0], sT[0], sT[1]))
    a("  s_lshr_b32 s%d, s%d, 1" % (sT[1], sHW))
    a("  s_lshl_b32 s%d, s%d, 15" % (sT[1], sT[1]))
    a("  s_and_b32 s%d, s%d, 1" % (sT[2], sHW))
    a("  s_lshl_b32 s%d, s%d, 12" % (sT[2], sT[2]))
    a("  s_add_u32 s%d, s%d, s%d" % (sT[1], sT[1], sT[2]))
    a("  s_add_u32 s%d, s%d, 24576" % (sT[1], sT[1]))
    a("  s_min_u32 s%d, s2, 223" % sFi)
    a("  s_and_b32 s%d, s%d, 3" % (sKb2, sFi))
    a("  s_lshl_b32 s%d, s%d, 2" % (sT[3], sKb2))
    a("  s_add_u32 s%d, s%d, s%d" % (sT[3], sT[3], sHW))
    a("  s_mul_i32 s%d, s%d, %d" % (sT[3], sT[3], 32 * 3584))
    a("  s_lshr_b32 s%d, s%d, 3" % (sT[4], sFi))
    a("  s_lshl_b32 s%d, s%d, 7" % (sT[4], sT[4]))
    a("  s_add_u32 s%d, s%d, s%d" % (sT[3], sT[3], sT[4]))
    a("  s_mov_b32 s%d, 1835008" % (sGU + 2))
    a("  s_mov_b32 s%d, 0x20000" % (sGU + 3))
    a("  s_waitcnt lgkmcnt(0)")
    a("  buffer_load_dwordx4 v[%d:%d], v%d, s[%d:%d], 0 offen" % (hX, hX + 3, T2, sXd, sXd + 3))
    a("  buffer_load_dwordx4 v[%d:%d], v%d, s[%d:%d], 0 offen offset:16" % (hX + 4, hX + 7, T2, sXd, sXd + 3))
    a("  s_load_dword s%d, s[%d:%d], 0x%x" % (sEp, sWs, sWs + 1, EPOCH))
    for n in range(4):
        a("  s_add_u32 m0, s%d, %d" % (sT[1], n * 1024))
        if n:
            a("  s_add_u32 s%d, s%d, %d" % (sT[0], sT[0], 8 * 8192))
        else:
            a("  s_bitcmp1_b32 s%d, 2" % sFi)
        a("  buffer_load_dwordx4 v%d, s[%d:%d], s%d offen nt lds" % (T5, sWq, sWq + 3, sT[0]))
        if n == 0:
            a("  s_cselect_b32 s%d, s58, s56" % sGU)
            a("  s_cselect_b32 s%d, s59, s57" % (sGU + 1))
    for n in range(4):
        a("  s_add_u32 m0, s%d, %d" % (sT[1], 65536 + n * 1024))
        if n:
            a("  s_add_u32 s%d, s%d, %d" % (sT[3], sT[3], 8 * 3584))
        else:
            a("  s_nop 0")
        a("  buffer_load_dwordx4 v%d, s[%d:%d], s%d offen nt lds" % (T3, sGU, sGU + 3, sT[3]))
    a("  s_cmp_lg_u32 s%d, 0" % sHW)
    a("  s_cbranch_scc1 L_H_nz")
    a("  v_lshl_add_u32 v%d, v0, 2, v%d" % (T0, hMisc))
    a("  v_mov_b32 v%d, 0" % T1)
    a("  ds_write_b32 v%d, v%d" % (T0, T1))
    a("  s_waitcnt lgkmcnt(0)")
    a("L_H_nz:")
    a("  s_barrier                      ; B0")
    stamp("B0")
    a("  s_mov_b32 s%d, 0x10000000" % (sWs + 2))
    a("  s_mov_b32 s%d, 0x20000" % (sWs + 3))
    for base, size in ((sWd, 1835008), (sWo, 0x400000), (sOut, 8192)):
        a("  s_mov_b32 s%d, %d" % (base + 2, size))
        a("  s_mov_b32 s%d, 0x20000" % (base + 3))
    a("  s_mov_b32 s%d, 0xffffff00" % sNotFF)
    a("  s_mov_b32 s%d, 0x0c0c0400" % sSelA)
    a("  s_mov_b32 s%d, 0x04000c0c" % sSelB)

    def pk(op, d, s0, s1, extra=""):
        a("  %s v[%d:%d], v[%d:%d], v[%d:%d]%s" % (op, d, d + 1, s0, s0 + 1, s1, s1 + 1, extra))

    def allreduce32(v, t):
        for n in (1, 2, 4, 8):
            a("  s_nop 1")
            a("  v_add_f32_dpp v%d, v%d, v%d row_ror:%d %s" % (v, v, v, n, DPP))
        reduce_swap("v_add_f32", v, t, 16)

    def tag(v):
        a("  v_and_or_b32 v%d, v%d, s%d, v%d" % (v, v, sNotFF, hTag))

    def tag_retry(regs, lab_retry, lab_ok, t0_, t1_, sleep):
        rs = list(regs)
        assert len(rs) % 4 == 0
        for k in range(0, len(rs), 4):
            a("  v_perm_b32 v%d, v%d, v%d, s%d" % (t1_, rs[k + 1], rs[k], sSelA))
            a("  v_perm_b32 v%d, v%d, v%d, s%d" % (t1_ + 1, rs[k + 3], rs[k + 2], sSelB))
            if k == 0:
                a("  v_or_b32 v%d, v%d, v%d" % (t0_, t1_, t1_ + 1))
                a("  v_xor_b32 v%d, s%d, v%d" % (t0_, sTag4, t0_))
            else:
                a("  v_or_b32 v%d, v%d, v%d" % (t1_, t1_, t1_ + 1))
                a("  v_xor_b32 v%d, s%d, v%d" % (t1_, sTag4, t1_))
                a("  v_or_b32 v%d, v%d, v%d" % (t0_, t0_, t1_))
        a("  v_cmp_ne_u32 vcc, 0, v%d" % t0_)
        a("  s_cbranch_vccz %s" % lab_ok)
        a("  s_mov_b64 exec, vcc")
        a("  s_add_u32 s%d, s%d, 1" % (sCnt, sCnt))
        a("  s_cmp_lt_u32 s%d, %d" % (sCnt, SPIN_LIMIT))
        a("  s_cbranch_scc0 %s" % lab_ok)
        a("  s_sleep %d" % sleep)
        a("  s_branch %s" % lab_retry)

    def round_bf16(v):
        a("  v_cvt_pk_bf16_f32 v%d, v%d, v%d" % (v, v, v))
        a("  v_and_b32 v%d, s%d, v%d" % (v, sHi2, v))

    a("  s_waitcnt vmcnt(8)")
    for i in range(8):
        a("  v_lshlrev_b32 v%d, 16, v%d" % (hF + 2 * i, hX + i))
        a("  v_and_b32 v%d, s%d, v%d" % (hF + 2 * i + 1, sHi2, hX + i))
    for i in range(4):
        pk("v_pk_add_f32", hY + 2 * i, hF + 4 * i, hF + 4 * i + 2)
    pk("v_pk_add_f32", hY, hY, hY + 2)
    pk("v_pk_add_f32", hY + 4, hY + 4, hY + 6)
    pk("v_pk_add_f32", hY, hY, hY + 4)
    vS = hZ + 8
    vV = hZ + 10
    a("  v_add_f32 v%d, v%d, v%d" % (vS, hY, hY + 1))
    allreduce32(vS, T0)
    a("  v_mul_f32 v%d, 0x3b000000, v%d     ; mean" % (vS, vS))
    for i in range(8):
        pk("v_pk_add_f32", hY + 2 * i, hF + 2 * i, vS, " op_sel_hi:[1,0] neg_lo:[0,1] neg_hi:[0,1]")
    pk("v_pk_mul_f32", vV, hY, hY)
    for i in range(1, 8):
        a("  v_pk_fma_f32 v[%d:%d], v[%d:%d], v[%d:%d], v[%d:%d]" % (vV, vV + 1, hY + 2 * i, hY + 2 * i + 1, hY + 2 * i, hY + 2 * i + 1, vV, vV + 1))
    a("  v_add_f32 v%d, v%d, v%d" % (vV, vV, vV + 1))
    allreduce32(vV, T0)
    a("  v_mul_f32 v%d, 0x3b000000, v%d     ; var" % (vV, vV))
    a("  v_cvt_pk_bf16_f32 v%d, v%d, v%d" % (vS, vS, vV))
    a("  v_and_b32 v%d, s%d, v%d" % (vV, sHi2, vS))
    a("  v_lshlrev_b32 v%d, 16, v%d            ; mean_bf" % (vS, vS))
    a("  v_add_f32 v%d, 0x3727c5ac, v%d" % (vV, vV))
    round_bf16(vV)
    a("  v_sqrt_f32 v%d, v%d" % (vV, vV))
    a("  s_nop 0")
    round_bf16(vV)
    a("  v_rcp_f32 v%d, v%d" % (vV, vV))
    for i in range(8):
        pk("v_pk_add_f32", hY + 2 * i, hF + 2 * i, vS, " op_sel_hi:[1,0] neg_lo:[0,1] neg_hi:[0,1]")
    for i in range(8):
        a("  v_cvt_pk_bf16_f32 v%d, v%d, v%d" % (hX + i, hY + 2 * i, hY + 2 * i + 1))
    for i in range(8):
        a("  v_lshlrev_b32 v%d, 16, v%d" % (hF + 2 * i, hX + i))
        a("  v_and_b32 v%d, s%d, v%d" % (hF + 2 * i + 1, sHi2, hX + i))
    for i in range(8):
        pk("v_pk_mul_f32", hY + 2 * i, hF + 2 * i, vV, " op_sel_hi:[1,0]")
    for i in range(8):
        a("  v_cvt_pk_bf16_f32 v%d, v%d, v%d" % (hX + i, hY + 2 * i, hY + 2 * i + 1))
    a("  ds_write_b128 v%d, v[%d:%d]" % (hZ, hX, hX + 3))
    a("  ds_write_b128 v%d, v[%d:%d] offset:16" % (hZ, hX + 4, hX + 7))
    stamp("LN done")

    a("  v_lshrrev_b32 v%d, 2, v%d" % (T0, hI))
    a("  v_lshl_add_u32 v%d, v%d, 3, v%d" % (T0, hG, T0))
    a("  v_lshlrev_b32 v%d, 7, v%d" % (T0, T0))
    a("  v_and_b32 v%d, 3, v%d" % (T1, hI))
    a("  v_lshl_add_u32 v%d, v%d, 3, v%d" % (hTrG, T1, T0))
    a("  s_lshl_b32 s%d, s%d, 5" % (sT[0], sHW))
    a("  s_add_u32 s%d, s%d, 24576" % (sT[0], sT[0]))
    a("  v_add_u32 v%d, s%d, v%d" % (hTr, sT[0], hTrG))
    a("  v_and_b32 v%d, 7, v%d" % (T0, hI))
    a("  v_mul_u32_u24 v%d, %d, v%d" % (T0, XN_STRIDE, T0))
    a("  v_lshl_add_u32 v%d, v%d, 4, v%d" % (T0, hG, T0))
    a("  v_add_u32 v%d, %d, v%d" % (hXn, XN, T0))
    a("  v_cmp_gt_u32 s[%d:%d], 8, v%d" % (sLo8, sLo8 + 1, hI))

    def tile_compute(kb_sgpr, stg_add):
        a("  s_lshl_b32 s%d, s%d, 8" % (sT[0], kb_sgpr))
        a("  v_add_u32 v%d, s%d, v%d" % (T0, sT[0], hXn))
        if stg_add:
            a("  v_add_u32 v%d, 0x%x, v%d" % (T1, stg_add, hTr))
            tr = T1
        else:
            tr = hTr
        for ks in range(4):
            base = (ks >> 1) * 32768 + (ks & 1) * 4096
            r = hA + ks * 4
            a("  ds_read_b64_tr_b16 v[%d:%d], v%d offset:%d" % (r, r + 1, tr, base))
            a("  ds_read_b64_tr_b16 v[%d:%d], v%d offset:%d" % (r + 2, r + 3, tr, base + 512))
            r = hB + ks * 4
            a("  ds_read_b128 v[%d:%d], v%d offset:%d" % (r, r + 3, T0, ks * 64))
        for ks in range(4):
            a("  s_waitcnt lgkmcnt(%d)" % (9 - 3 * ks))
            c = "0" if ks == 0 else "v[%d:%d]" % (hD, hD + 3)
            a("  v_mfma_f32_16x16x32_bf16 v[%d:%d], v[%d:%d], v[%d:%d], %s" % (hD, hD + 3, hA + ks * 4, hA + ks * 4 + 3, hB + ks * 4, hB + ks * 4 + 3, c))

    a("  s_waitcnt vmcnt(4) lgkmcnt(0)")
    a("  s_add_u32 s%d, s%d, 1" % (sTag, sEp))
    a("  s_and_b32 s%d, s%d, 0xff" % (sTag, sTag))
    a("  s_mul_i32 s%d, s%d, 0x01010101" % (sTag4, sTag))
    a("  v_mov_b32 v%d, s%d" % (hTag, sTag))
    lds_add(hMisc, F_H1, hOne)
    lds_wait(hMisc, F_H1, 4, T5)
    stamp("Hsync1")
    tile_compute(sJ, 0)
    a("  v_lshlrev_b32 v%d, 11, v%d" % (T0, hI))
    a("  v_lshl_add_u32 v%d, v%d, 4, v%d" % (T0, hG, T0))
    a("  s_lshl_b32 s%d, s%d, 6" % (sT[0], sHW))
    a("  v_add_u32 v%d, s%d, v%d" % (T0, sT[0], T0))
    a("  s_lshl_b32 s%d, s%d, 2" % (sHq, sX))
    a("  s_add_u32 s%d, s%d, s%d" % (sHq, sHq, sJ))
    a("  s_lshl_b32 s%d, s%d, 14" % (sT[0], sHq))
    a("  s_lshl_b32 s%d, s%d, 8" % (sT[1], sB))
    a("  s_add_u32 s%d, s%d, s%d" % (sT[0], sT[0], sT[1]))
    if QP:
        a("  s_add_u32 s%d, s%d, %d" % (sT[0], sT[0], QP))
    for k in range(4):
        tag(hD + k)
    a("  s_mov_b64 exec, s[%d:%d]" % (sLo8, sLo8 + 1))
    a("  buffer_store_dwordx4 v[%d:%d], v%d, s[%d:%d], s%d offen sc1" % (hD, hD + 3, T0, sWs, sWs + 3, sT[0]))
    a("  s_mov_b64 exec, -1")
    stamp("QP stored")
    a("  s_lshl_b32 s%d, s%d, 2" % (sT[0], sHq))
    a("  s_add_u32 s%d, s%d, s%d" % (sT[0], sT[0], sHW))
    a("  s_lshl_b32 s%d, s%d, 15" % (sT[0], sT[0]))
    a("  s_lshl_b32 s%d, s%d, 7" % (sT[1], sB))
    a("  s_add_u32 s%d, s%d, s%d" % (sT[0], sT[0], sT[1]))
    a("  s_lshl_b32 s%d, s%d, 12" % (sWoStg, sHW))
    a("  s_add_u32 s%d, s%d, %d" % (sWoStg, sWoStg, WOS))
    for n in range(4):
        a("  s_add_u32 m0, s%d, %d" % (sWoStg, n * 1024))
        if n:
            a("  s_add_u32 s%d, s%d, 8192" % (sT[0], sT[0]))
        else:
            a("  s_nop 0")
        a("  buffer_load_dwordx4 v%d, s[%d:%d], s%d offen nt lds" % (hW1k, sWo, sWo + 3, sT[0]))
    a("  s_waitcnt vmcnt(5)")
    lds_add(hMisc, F_H3, hOne)
    lds_wait(hMisc, F_H3, 4, T5)
    stamp("Hsync3")
    tile_compute(sKb2, 65536)
    lds_add(hMisc, F_STG, hOne)
    a("  v_lshlrev_b32 v%d, 8, v%d" % (T0, hI))
    a("  v_lshl_add_u32 v%d, v%d, 4, v%d" % (T0, hG, T0))
    a("  s_lshl_b32 s%d, s%d, 6" % (sT[0], sHW))
    a("  v_add_u32 v%d, s%d, v%d" % (T0, sT[0], T0))
    a("  s_and_b32 s%d, s%d, 7" % (sT[0], sFi))
    a("  s_mul_i32 s%d, s%d, 28" % (sT[0], sT[0]))
    a("  s_lshr_b32 s%d, s%d, 3" % (sT[1], sFi))
    a("  s_add_u32 s%d, s%d, s%d" % (sT[0], sT[0], sT[1]))
    a("  s_lshl_b32 s%d, s%d, 11" % (sT[0], sT[0]))
    a("  s_add_u32 s%d, s%d, %d" % (sT[0], sT[0], GP))
    for k in range(4):
        tag(hD + k)
    lg = a.lab("Lg")
    a("  s_cmp_ge_u32 s2, 224")
    a("  s_cbranch_scc1 %s" % lg)
    a("  s_mov_b64 exec, s[%d:%d]" % (sLo8, sLo8 + 1))
    a("  buffer_store_dwordx4 v[%d:%d], v%d, s[%d:%d], s%d offen sc1" % (hD, hD + 3, T0, sWs, sWs + 3, sT[0]))
    a("  s_mov_b64 exec, -1")
    a("%s:" % lg)
    stamp("tile1 done")
    a("  v_lshrrev_b32 v%d, 5, v0" % T0)
    a("  v_lshlrev_b32 v%d, 14, v%d" % (T0, T0))
    a("  v_and_b32 v%d, 31, v0" % T1)
    a("  v_lshl_add_u32 v%d, v%d, 4, v%d" % (T0, T1, T0))
    a("  s_lshl_b32 s%d, s%d, 9" % (sT[0], sHW))
    a("  v_add_u32 v%d, s%d, v%d" % (T0, sT[0], T0))
    a("  s_lshl_b32 s%d, s%d, 16" % (sT[0], sX))
    a("  s_lshl_b32 s%d, s%d, 11" % (sT[1], sB))
    a("  s_add_u32 s%d, s%d, s%d" % (sT[0], sT[0], sT[1]))
    if QP:
        a("  s_add_u32 s%d, s%d, %d" % (sT[0], sT[0], QP))
    a("  s_add_u32 s%d, s%d, 32768" % (sT[1], sT[0]))
    a("  s_mul_i32 s%d, s%d, %d" % (sT[2], sHW, QL_STRIDE))
    a("  s_add_u32 s%d, s%d, %d" % (sT[2], sT[2], QL))
    a("  v_lshlrev_b32 v%d, 3, v%d" % (T1, T1))
    a("  v_add_u32 v%d, s%d, v%d" % (T1, sT[2], T1))
    lr, lo = a.lab("Lr"), a.lab("Lo")
    a("  s_mov_b32 s%d, 0" % sCnt)
    a("%s:" % lr)
    a("  buffer_load_dwordx4 v[%d:%d], v%d, s[%d:%d], s%d offen sc1" % (hA, hA + 3, T0, sWs, sWs + 3, sT[0]))
    a("  buffer_load_dwordx4 v[%d:%d], v%d, s[%d:%d], s%d offen sc1" % (hA + 4, hA + 7, T0, sWs, sWs + 3, sT[1]))
    a("  s_waitcnt vmcnt(0)")
    tag_retry(range(hA, hA + 8), lr, lo, T2, T3, 2)
    a("%s:" % lo)
    a("  s_mov_b64 exec, -1")
    stamp("Q ok")
    pk("v_pk_add_f32", hA, hA, hA + 4)
    pk("v_pk_add_f32", hA + 2, hA + 2, hA + 6)
    for k in range(4):
        a("  v_mov_b32 v%d, v%d" % (hA + 4 + k, hA + k))
    a("  s_nop 1")
    for k in range(4):
        a("  v_permlane32_swap_b32 v%d, v%d" % (hA + k, hA + 4 + k))
    pk("v_pk_add_f32", hA, hA, hA + 4)
    pk("v_pk_add_f32", hA + 2, hA + 2, hA + 6)
    a("  v_cvt_pk_bf16_f32 v%d, v%d, v%d" % (hA, hA, hA + 1))
    a("  v_cvt_pk_bf16_f32 v%d, v%d, v%d" % (hA + 1, hA + 2, hA + 3))
    a("  s_mov_b32 exec_hi, 0")
    a("  ds_write_b64 v%d, v[%d:%d]" % (T1, hA, hA + 1))
    a("  s_mov_b64 exec, -1")
    a("  s_waitcnt lgkmcnt(0)")
    lds_add(hMisc, F_QRDY, hOne)
    stamp("Q rdy")

    a("  v_add_u32 v%d, s%d, v%d" % (T0, sWoStg, hTrG))
    l3 = a.lab("L3")
    a("  s_cmp_lg_u32 s%d, 3" % sHW)
    a("  s_cbranch_scc1 %s" % l3)
    a("  s_lshr_b32 s%d, s%d, 3" % (sT[0], sFi))
    a("  s_lshl_b32 s%d, s%d, 16" % (sT[1], sT[0]))
    a("  s_and_b32 s%d, s%d, 7" % (sT[2], sFi))
    a("  s_lshl_b32 s%d, s%d, 7" % (sT[2], sT[2]))
    a("  s_add_u32 s%d, s%d, s%d" % (sT[1], sT[1], sT[2]))
    for n in range(4):
        a("  s_mov_b32 m0, %d" % (SPARE + n * 1024))
        if n:
            a("  s_add_u32 s%d, s%d, 8192" % (sT[1], sT[1]))
        else:
            a("  s_nop 0")
        a("  buffer_load_dwordx4 v%d, s[%d:%d], s%d offen nt lds" % (hW1k, sWd, sWd + 3, sT[1]))
    a("%s:" % l3)
    for ct in range(4):
        r = hW + ct * 4
        a("  ds_read_b64_tr_b16 v[%d:%d], v%d offset:%d" % (r, r + 1, T0, ct * 32))
        a("  ds_read_b64_tr_b16 v[%d:%d], v%d offset:%d" % (r + 2, r + 3, T0, ct * 32 + 512))
    a("  s_waitcnt lgkmcnt(0)")
    l4 = a.lab("L4")
    a("  s_cmp_lg_u32 s%d, 3" % sHW)
    a("  s_cbranch_scc1 %s" % l4)
    for n in range(4):
        a("  s_add_u32 m0, s%d, %d" % (sWoStg, n * 1024))
        a("  s_add_u32 s%d, s%d, 8192" % (sT[1], sT[1]))
        a("  buffer_load_dwordx4 v%d, s[%d:%d], s%d offen nt lds" % (hW1k, sWd, sWd + 3, sT[1]))
    a("  v_add_u32 v%d, %d, v%d" % (T1, SPARE, hTrG))
    a("  s_waitcnt vmcnt(4)")
    for ct in range(4):
        r = hWd + ct * 8
        a("  ds_read_b64_tr_b16 v[%d:%d], v%d offset:%d" % (r, r + 1, T1, ct * 32))
        a("  ds_read_b64_tr_b16 v[%d:%d], v%d offset:%d" % (r + 2, r + 3, T1, ct * 32 + 512))
    a("  s_waitcnt vmcnt(0)")
    for ct in range(4):
        r = hWd + ct * 8 + 4
        a("  ds_read_b64_tr_b16 v[%d:%d], v%d offset:%d" % (r, r + 1, T0, ct * 32))
        a("  ds_read_b64_tr_b16 v[%d:%d], v%d offset:%d" % (r + 2, r + 3, T0, ct * 32 + 512))
    a("  s_waitcnt lgkmcnt(0)")
    a("%s:" % l4)
    stamp("wo frags")

    a("  s_lshl_b32 s%d, s%d, 5" % (sFidx, sB))
    a("  s_add_u32 s%d, s%d, s%d" % (sFidx, sFidx, sHq))
    a("  v_and_b32 v%d, 3, v0" % T0)
    a("  v_lshlrev_b32 v%d, 3, v%d" % (T0, T0))
    a("  s_lshl_b32 s%d, s%d, 5" % (sT[0], sFidx))
    a("  v_add_u32 v%d, s%d, v%d" % (hOutOff, sT[0], T0))
    if noffn:
        a("  s_branch L_B1")
    a("  s_cmp_eq_u32 s%d, 1" % sHW)
    a("  s_cbranch_scc1 L_ffn")
    a("  s_cmp_eq_u32 s%d, 2" % sHW)
    a("  s_cbranch_scc1 L_stats")
    a("  s_cmp_eq_u32 s%d, 0" % sHW)
    a("  s_cbranch_scc1 L_fin_prep")
    a("  s_branch L_down")

    a("L_ffn:")
    a("  s_cmp_ge_u32 s2, 224")
    a("  s_cbranch_scc1 L_B1")
    a("  s_lshr_b32 s%d, s2, 3" % sT[0])
    a("  v_mul_u32_u24 v%d, %d, v%d" % (T0, 28 * 2048, hG))
    a("  v_lshl_add_u32 v%d, v%d, 4, v%d" % (T0, hI, T0))
    a("  s_lshl_b32 s%d, s%d, 11" % (sT[1], sT[0]))
    a("  s_lshl_b32 s%d, s%d, 8" % (sT[2], sX))
    a("  s_add_u32 s%d, s%d, s%d" % (sT[1], sT[1], sT[2]))
    a("  s_add_u32 s%d, s%d, %d" % (sT[1], sT[1], GP))
    a("  s_add_u32 s%d, s%d, %d" % (sT[2], sT[1], 4 * 28 * 2048))
    lr, lo = a.lab("Lr"), a.lab("Lo")
    a("  s_mov_b32 s%d, 0" % sCnt)
    a("%s:" % lr)
    a("  buffer_load_dwordx4 v[%d:%d], v%d, s[%d:%d], s%d offen sc1" % (hA, hA + 3, T0, sWs, sWs + 3, sT[1]))
    a("  buffer_load_dwordx4 v[%d:%d], v%d, s[%d:%d], s%d offen sc1" % (hA + 4, hA + 7, T0, sWs, sWs + 3, sT[2]))
    a("  s_waitcnt vmcnt(0)")
    tag_retry(range(hA, hA + 8), lr, lo, T2, T3, 8)
    a("%s:" % lo)
    a("  s_mov_b64 exec, -1")
    for kind in (16, 32):
        for k in range(8):
            a("  v_mov_b32 v%d, v%d" % (hA + 8 + k, hA + k))
        a("  s_nop 1")
        for k in range(8):
            a("  v_permlane%d_swap_b32 v%d, v%d" % (kind, hA + k, hA + 8 + k))
        for k in range(0, 8, 2):
            pk("v_pk_add_f32", hA + k, hA + k, hA + 8 + k)
    g0, u0 = hA, hA + 4
    for k in range(8):
        round_bf16(hA + k)
    a("  s_mov_b32 s%d, 0xBFB8AA3B      ; -log2(e)" % sT[2])
    for k in range(4):
        a("  v_mul_f32 v%d, s%d, v%d" % (g0 + k, sT[2], g0 + k))
    for k in range(4):
        a("  v_exp_f32 v%d, v%d" % (g0 + k, g0 + k))
    a("  s_nop 0")
    for k in range(4):
        a("  v_add_f32 v%d, 1.0, v%d" % (g0 + k, g0 + k))
    for k in range(4):
        a("  v_rcp_f32 v%d, v%d" % (g0 + k, g0 + k))
    a("  s_nop 0")
    for k in range(4):
        round_bf16(g0 + k)
    for k in range(4):
        a("  v_mul_f32 v%d, v%d, v%d" % (g0 + k, g0 + k, u0 + k))
    for k in range(4):
        round_bf16(g0 + k)
    for k in range(4):
        a("  v_or_b32 v%d, v%d, v%d" % (g0 + k, g0 + k, hTag))
    a("  v_lshlrev_b32 v%d, 4, v0" % T0)
    a("  s_lshl_b32 s%d, s2, 8" % sT[1])
    a("  s_add_u32 s%d, s%d, %d" % (sT[1], sT[1], HH))
    a("  s_mov_b64 exec, 0xffff")
    a("  buffer_store_dwordx4 v[%d:%d], v%d, s[%d:%d], s%d offen sc1" % (g0, g0 + 3, T0, sWs, sWs + 3, sT[1]))
    a("  s_mov_b64 exec, -1")
    a("  s_branch L_B1")

    a("L_down:")
    a("  s_cmp_ge_u32 s2, 224")
    a("  s_cbranch_scc1 L_B1")
    a("  s_lshr_b32 s%d, s2, 3" % sT[0])
    a("  v_and_b32 v%d, 7, v%d" % (T0, hI))
    a("  v_lshlrev_b32 v%d, 8, v%d" % (T0, T0))
    a("  v_lshl_add_u32 v%d, v%d, 5, v%d" % (T0, hG, T0))
    a("  s_lshl_b32 s%d, s%d, 11" % (sT[1], sT[0]))
    a("  s_add_u32 s%d, s%d, %d" % (sT[1], sT[1], HH))
    lr, lo = a.lab("Lr"), a.lab("Lo")
    a("  s_mov_b32 s%d, 0" % sCnt)
    a("%s:" % lr)
    for k in range(4):
        a("  buffer_load_dwordx4 v[%d:%d], v%d, s[%d:%d], s%d offen offset:%d sc1" % (hA + 4 * k, hA + 4 * k + 3, T0, sWs, sWs + 3, sT[1], (k >> 1) * 128 + (k & 1) * 16))
    a("  s_waitcnt vmcnt(0)")
    tag_retry(range(hA, hA + 16), lr, lo, T2, T3, 8)
    a("%s:" % lo)
    a("  s_mov_b64 exec, -1")
    a("  s_mov_b32 s%d, 0x07060302" % sT[2])
    for k in range(8):
        a("  v_perm_b32 v%d, v%d, v%d, s%d" % (hB + k, hA + 2 * k + 1, hA + 2 * k, sT[2]))
    a("  s_nop 1")
    for ct in range(4):
        d = hD + ct * 4
        r = hWd + ct * 8
        a("  v_mfma_f32_16x16x32_bf16 v[%d:%d], v[%d:%d], v[%d:%d], 0" % (d, d + 3, r, r + 3, hB, hB + 3))
        a("  v_mfma_f32_16x16x32_bf16 v[%d:%d], v[%d:%d], v[%d:%d], v[%d:%d]" % (d, d + 3, r + 4, r + 7, hB + 4, hB + 7, d, d + 3))
    a("  v_lshlrev_b32 v%d, 16, v%d" % (T0, hI))
    a("  v_lshl_add_u32 v%d, v%d, 4, v%d" % (T0, hG, T0))
    a("  s_lshl_b32 s%d, s%d, 13" % (sT[1], sX))
    a("  s_lshl_b32 s%d, s%d, 6" % (sT[2], sT[0]))
    a("  s_add_u32 s%d, s%d, s%d" % (sT[1], sT[1], sT[2]))
    a("  s_add_u32 s%d, s%d, %d" % (sT[1], sT[1], DP))
    a("  s_nop 7")
    for i in range(16):
        tag(hD + i)
    a("  s_mov_b64 exec, s[%d:%d]" % (sLo8, sLo8 + 1))
    for ct in range(4):
        a("  buffer_store_dwordx4 v[%d:%d], v%d, s[%d:%d], s%d offen sc1" % (hD + ct * 4, hD + ct * 4 + 3, T0, sWs, sWs + 3, sT[1]))
        if ct < 3:
            a("  s_add_u32 s%d, s%d, 2048" % (sT[1], sT[1]))
    a("  s_mov_b64 exec, -1")
    a("  s_branch L_B1")

    a("L_stats:")
    lds_wait(hMisc, F_ST, 4, T5)
    a("  v_lshl_add_u32 v%d, v%d, 3, v%d" % (T0, hI, hMisc))
    mw, lw = hA, hA + 1
    a("  ds_read_b64 v[%d:%d], v%d offset:%d" % (mw, mw + 1, T0, SSTAT))
    a("  s_waitcnt lgkmcnt(0)")
    Mg, Lg, t_ = hA + 4, hA + 5, hA + 2
    a("  v_mov_b32 v%d, v%d" % (Mg, mw))
    a("  s_nop 1")
    a("  v_max_f32_dpp v%d, v%d, v%d row_ror:4 %s" % (Mg, Mg, Mg, DPP))
    a("  s_nop 1")
    a("  v_max_f32_dpp v%d, v%d, v%d row_ror:8 %s" % (Mg, Mg, Mg, DPP))
    a("  s_mov_b32 s%d, 0x3FB8AA3B" % sT[2])
    a("  v_sub_f32 v%d, v%d, v%d" % (t_, mw, Mg))
    a("  v_mul_f32 v%d, s%d, v%d" % (t_, sT[2], t_))
    a("  v_exp_f32 v%d, v%d" % (t_, t_))
    a("  s_nop 0")
    a("  v_mul_f32 v%d, v%d, v%d" % (Lg, lw, t_))
    a("  s_nop 1")
    a("  v_add_f32_dpp v%d, v%d, v%d row_ror:4 %s" % (Lg, Lg, Lg, DPP))
    a("  s_nop 1")
    a("  v_add_f32_dpp v%d, v%d, v%d row_ror:8 %s" % (Lg, Lg, Lg, DPP))
    a("  s_nop 1")
    a("  v_mov_b32_dpp v%d, v%d row_shl:1 %s bound_ctrl:0" % (Mg + 2, Mg, DPP))
    a("  v_mov_b32_dpp v%d, v%d row_shl:1 %s bound_ctrl:0" % (Mg + 3, Lg, DPP))
    a("  s_lshl_b32 s%d, s%d, 3" % (sT[0], sB))
    a("  s_add_u32 s%d, s%d, s%d" % (sT[0], sT[0], sX))
    a("  s_lshl_b32 s%d, s%d, 7" % (sT[0], sT[0]))
    a("  s_add_u32 s%d, s%d, %d" % (sT[0], sT[0], ST))
    a("  s_lshl_b32 s%d, s%d, 5" % (sT[1], sJ))
    a("  s_add_u32 s%d, s%d, s%d" % (sT[1], sT[1], sT[0]))
    for k in range(4):
        tag(Mg + k)
    a("  v_lshlrev_b32 v%d, 3, v%d" % (T1, hI))
    a("  s_mov_b64 exec, 5")
    a("  buffer_store_dwordx4 v[%d:%d], v%d, s[%d:%d], s%d offen sc1" % (Mg, Mg + 3, T1, sWs, sWs + 3, sT[1]))
    a("  s_mov_b64 exec, -1")
    a("  v_lshrrev_b32 v%d, 1, v%d" % (T1, hI))
    a("  v_lshlrev_b32 v%d, 4, v%d" % (T1, T1))
    mj = hA + 8
    lr, lo = a.lab("Lr"), a.lab("Lo")
    a("  s_mov_b32 s%d, 0" % sCnt)
    a("%s:" % lr)
    a("  buffer_load_dwordx4 v[%d:%d], v%d, s[%d:%d], s%d offen sc1" % (mj, mj + 3, T1, sWs, sWs + 3, sT[0]))
    a("  s_waitcnt vmcnt(0)")
    tag_retry(range(mj, mj + 4), lr, lo, T2, T3, 8)
    a("%s:" % lo)
    a("  s_mov_b64 exec, -1")
    a("  v_and_b32 v%d, 1, v%d" % (T2, hI))
    a("  v_cmp_eq_u32 vcc, 1, v%d" % T2)
    a("  s_nop 1")
    a("  v_cndmask_b32 v%d, v%d, v%d, vcc" % (mj, mj, mj + 2))
    a("  v_cndmask_b32 v%d, v%d, v%d, vcc" % (mj + 1, mj + 1, mj + 3))
    lj = mj + 1
    a("  v_and_b32 v%d, s%d, v%d" % (mj, sNotFF, mj))
    a("  v_and_b32 v%d, s%d, v%d" % (lj, sNotFF, lj))
    M2, L2 = hA + 12, hA + 13
    a("  v_mov_b32 v%d, v%d" % (M2, mj))
    a("  s_nop 1")
    a("  v_max_f32_dpp v%d, v%d, v%d row_ror:4 %s" % (M2, M2, M2, DPP))
    a("  s_nop 1")
    a("  v_max_f32_dpp v%d, v%d, v%d row_ror:8 %s" % (M2, M2, M2, DPP))
    a("  v_sub_f32 v%d, v%d, v%d" % (t_, mj, M2))
    a("  v_mul_f32 v%d, s%d, v%d" % (t_, sT[2], t_))
    a("  v_exp_f32 v%d, v%d" % (t_, t_))
    a("  s_nop 0")
    a("  v_mul_f32 v%d, v%d, v%d" % (L2, lj, t_))
    a("  s_nop 1")
    a("  v_add_f32_dpp v%d, v%d, v%d row_ror:4 %s" % (L2, L2, L2, DPP))
    a("  s_nop 1")
    a("  v_add_f32_dpp v%d, v%d, v%d row_ror:8 %s" % (L2, L2, L2, DPP))
    a("  v_sub_f32 v%d, v%d, v%d" % (t_, mw, M2))
    a("  v_mul_f32 v%d, s%d, v%d" % (t_, sT[2], t_))
    a("  v_exp_f32 v%d, v%d" % (t_, t_))
    a("  v_rcp_f32 v%d, v%d" % (L2, L2))
    a("  s_nop 0")
    a("  v_mul_f32 v%d, v%d, v%d" % (t_, t_, L2))
    a("  v_and_b32 v%d, 3, v%d" % (T0, hI))
    a("  v_lshlrev_b32 v%d, 4, v%d" % (T0, T0))
    a("  v_lshrrev_b32 v%d, 2, v%d" % (T1, hI))
    a("  v_lshl_add_u32 v%d, v%d, 2, v%d" % (T0, T1, T0))
    a("  v_add_u32 v%d, v%d, v%d" % (T0, T0, hMisc))
    a("  s_mov_b64 exec, 0xffff")
    a("  ds_write_b32 v%d, v%d offset:%d" % (T0, t_, FFAC))
    a("  s_mov_b64 exec, -1")
    a("  s_waitcnt lgkmcnt(0)")
    a("  s_branch L_B1")

    def reduce_hd(base, tmp):
        a("  s_nop 1")
        for k in range(4):
            a("  v_add_f32_dpp v%d, v%d, v%d row_ror:4 %s" % (base + k, base + k, base + k, DPP))
        a("  s_nop 1")
        for k in range(4):
            a("  v_add_f32_dpp v%d, v%d, v%d row_ror:8 %s" % (base + k, base + k, base + k, DPP))
        for kind in (16, 32):
            for k in range(4):
                a("  v_mov_b32 v%d, v%d" % (tmp + k, base + k))
            a("  s_nop 1")
            for k in range(4):
                a("  v_permlane%d_swap_b32 v%d, v%d" % (kind, base + k, tmp + k))
            pk("v_pk_add_f32", base, base, tmp)
            pk("v_pk_add_f32", base + 2, base + 2, tmp + 2)

    a("L_fin_prep:")
    a("  buffer_load_dwordx2 v[%d:%d], v%d, s[%d:%d], 0 offen" % (hA + 8, hA + 9, hOutOff, sXd, sXd + 3))
    a("  v_lshlrev_b32 v%d, 4, v0" % T0)
    a("  s_lshl_b32 s%d, s%d, 11" % (sT[0], sFidx))
    a("  s_add_u32 s%d, s%d, %d" % (sT[0], sT[0], DP))
    for k in range(4):
        a("  v_mov_b32 v%d, v%d" % (hA + 4 + k, hTag))
    lr, lo = a.lab("Lr"), a.lab("Lo")
    a("  s_mov_b32 s%d, 0" % sCnt)
    a("%s:" % lr)
    a("  buffer_load_dwordx4 v[%d:%d], v%d, s[%d:%d], s%d offen sc1" % (hA, hA + 3, T0, sWs, sWs + 3, sT[0]))
    a("  s_mov_b64 s[%d:%d], exec" % (sT[4], sT[5]))
    a("  s_and_b32 exec_hi, exec_hi, 0xffff")
    ls = a.lab("Ls")
    a("  s_cbranch_execz %s" % ls)
    a("  buffer_load_dwordx4 v[%d:%d], v%d, s[%d:%d], s%d offen offset:1024 sc1" % (hA + 4, hA + 7, T0, sWs, sWs + 3, sT[0]))
    a("%s:" % ls)
    a("  s_mov_b64 exec, s[%d:%d]" % (sT[4], sT[5]))
    a("  s_waitcnt vmcnt(0)")
    tag_retry(range(hA, hA + 8), lr, lo, T2, T3, 16)
    a("%s:" % lo)
    a("  s_mov_b64 exec, -1")
    pk("v_pk_add_f32", hA, hA, hA + 4)
    pk("v_pk_add_f32", hA + 2, hA + 2, hA + 6)
    reduce_hd(hA, hA + 4)
    hGv = hXf + 4
    for k in range(4):
        round_bf16(hA + k)
    a("  s_mov_b32 s%d, 0xBFB8AA3B" % sT[2])
    for k in range(4):
        a("  v_mul_f32 v%d, s%d, v%d" % (hA + 4 + k, sT[2], hA + k))
    for k in range(4):
        a("  v_exp_f32 v%d, v%d" % (hA + 4 + k, hA + 4 + k))
    a("  s_nop 0")
    for k in range(4):
        a("  v_add_f32 v%d, 1.0, v%d" % (hA + 4 + k, hA + 4 + k))
    for k in range(4):
        a("  v_rcp_f32 v%d, v%d" % (hA + 4 + k, hA + 4 + k))
    a("  s_nop 0")
    for k in range(4):
        a("  v_mul_f32 v%d, v%d, v%d" % (hGv + k, hA + k, hA + 4 + k))
    for k in range(4):
        round_bf16(hGv + k)
    a("  v_lshlrev_b32 v%d, 16, v%d" % (hXf, hA + 8))
    a("  v_and_b32 v%d, s%d, v%d" % (hXf + 1, sHi2, hA + 8))
    a("  v_lshlrev_b32 v%d, 16, v%d" % (hXf + 2, hA + 9))
    a("  v_and_b32 v%d, s%d, v%d" % (hXf + 3, sHi2, hA + 9))
    stamp("prep done")

    a("L_B1:")
    a("  v_lshlrev_b32 v%d, 7, v%d" % (T0, hI))
    a("  v_lshl_add_u32 v%d, v%d, 5, v%d" % (T0, hG, T0))
    a("  s_lshl_b32 s%d, s%d, 14" % (sT[0], sHq))
    a("  s_lshl_b32 s%d, s%d, 11" % (sT[1], sHW))
    a("  s_add_u32 s%d, s%d, s%d" % (sT[0], sT[0], sT[1]))
    a("  s_add_u32 s%d, s%d, %d" % (sT[0], sT[0], OP))
    a("  s_add_u32 s%d, s%d, 8192" % (sT[1], sT[0]))
    a("  v_lshlrev_b32 v%d, 8, v%d" % (T1, hG))
    a("  v_lshl_add_u32 v%d, v%d, 2, v%d" % (T1, hI, T1))
    a("  s_lshl_b32 s%d, s%d, 11" % (sT[2], sHW))
    a("  s_add_u32 s%d, s%d, %d" % (sT[2], sT[2], WOS))
    a("  v_add_u32 v%d, s%d, v%d" % (T1, sT[2], T1))
    a("  s_barrier                      ; B1")
    stamp("B1")
    lw0, lw1 = a.lab("Lew"), a.lab("Lew")
    a("  s_cmp_lg_u32 s%d, 0" % sHW)
    a("  s_cbranch_scc1 %s" % lw0)
    a("  v_lshlrev_b32 v%d, 4, v0" % T4)
    a("  v_mov_b32 v%d, v%d" % (T5, T4))
    a("  s_lshl_b32 s%d, s%d, 9" % (sT[2], sX))
    a("  s_add_u32 s%d, s%d, %d" % (sT[2], sT[2], EW))
    lr, lo = a.lab("Lr"), a.lab("Lo")
    a("  s_mov_b32 s%d, 0" % sCnt)
    a("  s_mov_b32 exec_hi, 0")
    a("%s:" % lr)
    a("  buffer_load_dwordx4 v[%d:%d], v%d, s[%d:%d], s%d offen sc1" % (hA, hA + 3, T5, sWs, sWs + 3, sT[2]))
    a("  s_waitcnt vmcnt(0)")
    tag_retry(range(hA, hA + 4), lr, lo, T2, T3, 2)
    a("%s:" % lo)
    a("  s_mov_b64 exec, -1")
    lds_add(hMisc, F_EW, hOne)
    a("  s_branch %s" % lw1)
    a("%s:" % lw0)
    lds_wait(hMisc, F_EW, 1, T5)
    a("%s:" % lw1)
    stamp("EW ok")
    lr, lo = a.lab("Lr"), a.lab("Lo")
    a("  s_mov_b32 s%d, 0" % sCnt)
    a("%s:" % lr)
    for rt in range(2):
        a("  buffer_load_dwordx4 v[%d:%d], v%d, s[%d:%d], s%d offen sc1" % (hA + 8 * rt, hA + 8 * rt + 3, T0, sWs, sWs + 3, sT[rt]))
        a("  buffer_load_dwordx4 v[%d:%d], v%d, s[%d:%d], s%d offen offset:16 sc1" % (hA + 8 * rt + 4, hA + 8 * rt + 7, T0, sWs, sWs + 3, sT[rt]))
    a("  s_waitcnt vmcnt(0)")
    tag_retry(range(hA, hA + 16), lr, lo, T2, T3, hop_sleep)
    a("%s:" % lo)
    a("  s_mov_b64 exec, -1")
    stamp("hop1 ok")
    for k in range(8):
        a("  v_cvt_pk_bf16_f32 v%d, v%d, v%d" % (hB + k, hA + 2 * k, hA + 2 * k + 1))
    a("  s_nop 1")
    for rt in range(2):
        for ct in range(4):
            d = hD + (rt * 4 + ct) * 4
            a("  v_mfma_f32_16x16x32_bf16 v[%d:%d], v[%d:%d], v[%d:%d], 0" % (d, d + 3, hB + 4 * rt, hB + 4 * rt + 3, hW + ct * 4, hW + ct * 4 + 3))
    a("  s_nop 0")
    for n in range(8):
        d = hD + n * 4
        pk("v_pk_add_f32", d, d, d + 2)
        a("  v_add_f32 v%d, v%d, v%d" % (d, d, d + 1))
    for rt in range(2):
        for ct in range(4):
            d = hD + (rt * 4 + ct) * 4
            a("  ds_write_b32 v%d, v%d offset:%d" % (T1, d, rt * 1024 + ct * 64))
    a("  s_waitcnt lgkmcnt(0)")
    lds_add(hMisc, F_HOP1, hOne)
    a("  s_cmp_eq_u32 s%d, 0" % sHW)
    a("  s_cbranch_scc1 L_hop2")
    a("  s_cmp_eq_u32 s%d, 1" % sHW)
    a("  s_cbranch_scc1 L_H_done")
    a("  s_sub_u32 s%d, s%d, 2" % (sT[0], sHW))
    a("  s_lshl_b32 s%d, s%d, 10" % (sT[1], sT[0]))
    a("  s_add_u32 s%d, s%d, %d" % (sT[1], sT[1], WOS))
    a("  v_lshlrev_b32 v%d, 8, v%d" % (T0, hG))
    a("  v_lshl_add_u32 v%d, v%d, 4, v%d      ; g*256 + i*16" % (T0, hI, T0))
    a("  v_add_u32 v%d, s%d, v%d" % (T0, sT[1], T0))
    a("  v_lshlrev_b32 v%d, 16, v%d" % (T1, hG))
    a("  v_lshrrev_b32 v%d, 3, v%d" % (T2, hI))
    a("  v_lshl_add_u32 v%d, v%d, 12, v%d" % (T1, T2, T1))
    a("  v_and_b32 v%d, 7, v%d" % (T2, hI))
    a("  v_lshl_add_u32 v%d, v%d, 4, v%d" % (T1, T2, T1))
    a("  s_lshl_b32 s%d, s%d, 18" % (sT[0], sT[0]))
    a("  s_lshl_b32 s%d, s%d, 13" % (sT[1], sB))
    a("  s_add_u32 s%d, s%d, s%d" % (sT[0], sT[0], sT[1]))
    a("  s_lshl_b32 s%d, s%d, 7" % (sT[1], sHq))
    a("  s_add_u32 s%d, s%d, s%d" % (sT[0], sT[0], sT[1]))
    a("  s_add_u32 s%d, s%d, %d" % (sT[0], sT[0], SP))
    lds_wait(hMisc, F_HOP1, 4, T5)
    for w in range(4):
        a("  ds_read_b128 v[%d:%d], v%d offset:%d" % (hA + 4 * w, hA + 4 * w + 3, T0, w * 2048))
    a("  s_waitcnt lgkmcnt(0)")
    for k in (0, 2):
        pk("v_pk_add_f32", hA + k, hA + k, hA + 4 + k)
        pk("v_pk_add_f32", hA + 8 + k, hA + 8 + k, hA + 12 + k)
    for k in (0, 2):
        pk("v_pk_add_f32", hA + k, hA + k, hA + 8 + k)
    for k in range(4):
        tag(hA + k)
    a("  buffer_store_dwordx4 v[%d:%d], v%d, s[%d:%d], s%d offen sc1" % (hA, hA + 3, T1, sWs, sWs + 3, sT[0]))
    a("  s_waitcnt vmcnt(0)")
    a("  s_branch L_H_done")

    a("L_hop2:")
    a("  v_lshrrev_b32 v%d, 2, v0" % T0)
    a("  v_lshlrev_b32 v%d, 7, v%d" % (T0, T0))
    a("  v_and_b32 v%d, 3, v0" % T1)
    a("  v_lshl_add_u32 v%d, v%d, 4, v%d" % (T0, T1, T0))
    a("  s_lshr_b32 s%d, s%d, 1" % (sT[0], sFidx))
    a("  s_lshl_b32 s%d, s%d, 12" % (sT[0], sT[0]))
    a("  s_and_b32 s%d, s%d, 1" % (sT[1], sFidx))
    a("  s_lshl_b32 s%d, s%d, 6" % (sT[1], sT[1]))
    a("  s_add_u32 s%d, s%d, s%d" % (sT[0], sT[0], sT[1]))
    a("  s_add_u32 s%d, s%d, %d" % (sT[0], sT[0], SP))
    lr, lo = a.lab("Lr"), a.lab("Lo")
    a("  s_mov_b32 s%d, 0" % sCnt)
    a("%s:" % lr)
    a("  buffer_load_dwordx4 v[%d:%d], v%d, s[%d:%d], s%d offen sc1" % (hA, hA + 3, T0, sWs, sWs + 3, sT[0]))
    a("  buffer_load_dwordx4 v[%d:%d], v%d, s[%d:%d], s%d offen offset:2048 sc1" % (hA + 4, hA + 7, T0, sWs, sWs + 3, sT[0]))
    a("  s_waitcnt vmcnt(0)")
    tag_retry(range(hA, hA + 8), lr, lo, T2, T3, hop_sleep)
    a("%s:" % lo)
    a("  s_mov_b64 exec, -1")
    stamp("hop2 ok")
    pk("v_pk_add_f32", hA, hA, hA + 4)
    pk("v_pk_add_f32", hA + 2, hA + 2, hA + 6)
    reduce_hd(hA, hA + 4)
    for k in range(4):
        round_bf16(hA + k)
    for k in range(4):
        a("  v_mul_f32 v%d, v%d, v%d" % (hA + k, hA + k, hGv + k))
    for k in range(4):
        round_bf16(hA + k)
    for k in range(4):
        a("  v_add_f32 v%d, v%d, v%d" % (hA + k, hA + k, hXf + k))
    a("  v_cvt_pk_bf16_f32 v%d, v%d, v%d" % (hA, hA, hA + 1))
    a("  v_cvt_pk_bf16_f32 v%d, v%d, v%d" % (hA + 1, hA + 2, hA + 3))
    a("  s_mov_b64 exec, 15")
    a("  buffer_store_dwordx2 v[%d:%d], v%d, s[%d:%d], 0 offen" % (hA, hA + 1, hOutOff, sOut, sOut + 3))
    a("  s_mov_b64 exec, -1")
    le = a.lab("Le")
    a("  s_cmp_lg_u32 s2, 0")
    a("  s_cbranch_scc1 %s" % le)
    a("  s_add_u32 s%d, s%d, 1" % (sT[0], sEp))
    a("  v_mov_b32 v%d, s%d" % (hA + 2, sT[0]))
    a("  v_mov_b32 v%d, %d" % (T0, EPOCH))
    a("  s_mov_b64 exec, 1")
    a("  buffer_store_dword v%d, v%d, s[%d:%d], 0 offen sc1" % (hA + 2, T0, sWs, sWs + 3))
    a("  s_mov_b64 exec, -1")
    a("%s:" % le)
    stamp("end")
    if ts:
        a("  s_waitcnt lgkmcnt(0)")
        a("  s_lshl_b32 s%d, s2, 8" % sT[0])
        a("  s_add_u32 s%d, s%d, %d" % (sT[0], sT[0], TSOFF + 0x10000))
        a("  v_mov_b32 v%d, 0" % T2)
        a("  s_mov_b64 exec, 1")
        for i in range(len(names["H"])):
            a("  v_mov_b32 v%d, s%d" % (hA, TS0 + 2 * i))
            a("  v_mov_b32 v%d, s%d" % (hA + 1, TS0 + 2 * i + 1))
            a("  buffer_store_dwordx2 v[%d:%d], v%d, s[%d:%d], s%d offen offset:%d" % (hA, hA + 1, T2, sWs, sWs + 3, sT[0], 8 * i))
            a("  s_waitcnt vmcnt(0)")
        a("  s_mov_b64 exec, -1")
    a("  s_waitcnt vmcnt(0)")
    a("L_H_done:")
    a("L_end:")
    a("  s_endpgm")

    body = a.text()
    s = HEADER
    s += "; @launch grid=(256,1,1) block=(512,1,1) lds=%d\n" % LDS_TOTAL
    s += '.amdgcn_target "amdgcn-amd-amdhsa--gfx950"\n.text\n'
    s += ".globl %s\n.p2align 8\n.type %s,@function\n%s:\n" % (KNAME, KNAME, KNAME)
    s += body
    s += """
.section .rodata,"a"
.p2align 6
.amdhsa_kernel %s
  .amdhsa_next_free_vgpr %d
  .amdhsa_next_free_sgpr 102
  .amdhsa_accum_offset %d
  .amdhsa_group_segment_fixed_size 0
  .amdhsa_kernarg_size 96
  .amdhsa_user_sgpr_count 2
  .amdhsa_user_sgpr_kernarg_segment_ptr 1
  .amdhsa_system_sgpr_workgroup_id_x 1
.end_amdhsa_kernel
""" % (KNAME, NV, NV)
    gen.names = names
    return s


if __name__ == "__main__":
    kw = {}
    out = "main.s"
    for arg in sys.argv[1:]:
        if "=" in arg:
            k, v = arg.split("=")
            kw[k] = int(v)
        else:
            out = arg
    open(out, "w").write(gen(**kw))
    import json
    json.dump(gen.names, open(out[:-2] + ".names.json", "w"))
    print("wrote", out)
```

```python
import sys
from asmlib import HEADER, KNAME

QP = 0x000000
GP = 0x080000
HH = 0x0F0000
OP = 0x100000
ST = 0x180000
DP = 0x190000
SP = 0x210000
EPOCH = 0x0FF000
EW = 0x2A0000
TSOFF = 0x0F000000

RING = 32768
MISC = 131072
XN = MISC
XN_STRIDE = 1040
QL = MISC + 8448
QL_STRIDE = 272
WOS = QL + 1088
WOS = (WOS + 255) // 256 * 256
FLG = WOS + 16384
F_H1 = 0; F_H3 = 8; F_QRDY = 16; F_STG = 20; F_ST = 24; F_HOP1 = 32; F_EW = 36
SSTAT = 64
FFAC = 192
SPARE = FLG + 256
LDS_TOTAL = SPARE + 4096
assert LDS_TOTAL <= 163840, LDS_TOTAL
SPIN_LIMIT = 200000


class Asm:
    def __init__(self):
        self.lines = []
        self.nlab = 0

    def __call__(self, s=""):
        for l in s.split("\n"):
            self.lines.append(l)

    def lab(self, base="L"):
        self.nlab += 1
        return "%s_%d" % (base, self.nlab)

    def text(self):
        return "\n".join(self.lines) + "\n"


def vr(base, n=1):
    return "v%d" % base if n == 1 else "v[%d:%d]" % (base, base + n - 1)


def sr(base, n=1):
    return "s%d" % base if n == 1 else "s[%d:%d]" % (base, base + n - 1)


DPP = "row_mask:0xf bank_mask:0xf"


def gen(ts=False, dbg=0, rotmode=0, depth=6, noq=0, noffn=0, hop_sleep=2, ew_it=3, dbgtime=0):
    a = Asm()
    sW, sX, sLi, sCnt = 3, 4, 5, 6
    sT = [20, 21, 22, 23, 24, 25, 26, 27]
    TS0 = 64
    nts = [0]

    names = {"S": ["start"], "H": ["start"]}
    role = ["S"]

    def stamp(name):
        if name == 0:
            if ts:
                a("  s_memrealtime s[%d:%d]" % (TS0, TS0 + 1))
            return
        lst = names[role[0]]
        if name not in lst:
            lst.append(name)
        idx = lst.index(name)
        assert TS0 + 2 * idx + 1 <= 101
        if ts:
            a("  s_memrealtime s[%d:%d]" % (TS0 + 2 * idx, TS0 + 2 * idx + 1))

    def lds_wait(vbase, off, n, vtmp):
        l0, l1 = a.lab("Lw"), a.lab("Lwd")
        a("  s_mov_b32 s%d, 0" % sCnt)
        a("%s:" % l0)
        a("  ds_read_b32 v%d, v%d offset:%d" % (vtmp, vbase, off))
        a("  s_waitcnt lgkmcnt(0)")
        a("  v_readfirstlane_b32 s%d, v%d" % (sT[7], vtmp))
        a("  s_cmp_ge_u32 s%d, %d" % (sT[7], n))
        a("  s_cbranch_scc1 %s" % l1)
        a("  s_add_u32 s%d, s%d, 1" % (sCnt, sCnt))
        a("  s_cmp_lt_u32 s%d, %d" % (sCnt, SPIN_LIMIT))
        a("  s_cbranch_scc0 %s" % l1)
        a("  s_sleep 1")
        a("  s_branch %s" % l0)
        a("%s:" % l1)

    def lds_add(vbase, off, vone):
        a("  s_mov_b64 exec, 1")
        a("  ds_add_u32 v%d, v%d offset:%d" % (vbase, vone, off))
        a("  s_mov_b64 exec, -1")

    def reduce_swap(op, v, t, kind):
        a("  v_mov_b32 v%d, v%d" % (t, v))
        a("  s_nop 1")
        a("  v_permlane%d_swap_b32 v%d, v%d" % (kind, v, t))
        a("  %s v%d, v%d, v%d" % (op, v, v, t))

    a("  s_cmp_ge_u32 s2, 256")
    a("  s_cbranch_scc1 L_end")
    stamp(0)
    if dbgtime:
        a("  s_memrealtime s[100:101]")
    a("  v_lshrrev_b32 v1, 6, v0")
    a("  v_and_b32 v0, 63, v0            ; lane")
    a("  v_readfirstlane_b32 s%d, v1     ; wave id" % sW)
    a("  s_and_b32 s%d, s2, 7" % sX)
    a("  s_lshr_b32 s%d, s2, 3" % sLi)
    a("  s_cmp_ge_u32 s%d, 4" % sW)
    a("  s_cbranch_scc1 L_H")

    sK, sV, sCur = 8, 12, 16
    sBaseW, sRot, sRing, sIss, sOff, sIt = 28, 29, 30, 31, 32, 33
    sM = 34
    sScale, sHi = 42, 43
    vLane = 0
    vMisc, vOne = 2, 3
    vKo, vVo, vCo = 4, 8, 12
    vKa = 16
    vVa = 20
    vTmp = 28
    vSp = 36
    vPf = 44
    vAcc = 52
    vE = 56
    vSt = 72
    vO = 104
    vQ = 136
    NV = 200

    a("  s_load_dwordx2 s[%d:%d], s[0:1], 8" % (sK, sK + 1))
    a("  s_load_dwordx2 s[%d:%d], s[0:1], 16" % (sV, sV + 1))
    sWsS = 44
    a("  s_load_dwordx2 s[%d:%d], s[0:1], 88" % (sWsS, sWsS + 1))
    a("  s_mov_b32 s%d, 0x10000000" % (sWsS + 2))
    a("  s_mov_b32 s%d, 0x20000" % (sWsS + 3))
    sEp = 48
    a("  s_mov_b32 s%d, 0x4000000" % (sK + 2))
    a("  s_mov_b32 s%d, 0x20000" % (sK + 3))
    a("  s_mov_b32 s%d, 0x4000000" % (sV + 2))
    a("  s_mov_b32 s%d, 0x20000" % (sV + 3))
    a("  s_lshr_b32 s%d, s%d, 2" % (sT[0], sLi))
    a("  s_lshl_b32 s%d, s%d, 3" % (sT[0], sT[0]))
    a("  s_add_u32 s%d, s%d, s%d" % (sT[0], sT[0], sX))
    a("  s_lshl_b32 s%d, s%d, 20" % (sT[0], sT[0]))
    a("  s_and_b32 s%d, s%d, 3" % (sT[1], sLi))
    a("  s_lshl_b32 s%d, s%d, 18" % (sT[1], sT[1]))
    a("  s_add_u32 s%d, s%d, s%d" % (sT[0], sT[0], sT[1]))
    a("  s_lshl_b32 s%d, s%d, 13" % (sT[1], sW))
    a("  s_add_u32 s%d, s%d, s%d" % (sBaseW, sT[0], sT[1]))
    if rotmode == 0:
        a("  s_mov_b32 s%d, s2" % sRot)
    elif rotmode == 1:
        a("  s_add_u32 s%d, s2, s%d" % (sRot, sLi))
    else:
        a("  s_mov_b32 s%d, 0" % sRot)
    a("  s_lshl_b32 s%d, s%d, 15" % (sRing, sW))
    a("  s_mov_b32 s%d, 0" % sIss)
    t0, t1, t2 = vTmp, vTmp + 1, vTmp + 2
    a("  v_lshrrev_b32 v%d, 4, v%d      ; g = l>>4" % (t0, vLane))
    a("  v_and_b32 v%d, 15, v%d         ; c' = l&15" % (t1, vLane))
    for i in range(4):
        a("  v_add_u32 v%d, %d, v%d" % (t2, 4 * i, t0))
        a("  v_xor_b32 v%d, v%d, v%d" % (t2, t2, t1))
        a("  v_lshlrev_b32 v%d, 4, v%d" % (t2, t2))
        a("  v_lshl_add_u32 v%d, v%d, 8, v%d" % (vKo + i, t0, t2))
    for i in range(2):
        a("  v_add_u32 v%d, %d, v%d" % (t2, 4 * i, t0))
        a("  v_lshlrev_b32 v%d, 1, v%d" % (t2, t2))
        a("  v_xor_b32 v%d, v%d, v%d" % (t2, t2, t1))
        a("  v_lshlrev_b32 v%d, 4, v%d" % (t2, t2))
        a("  v_lshl_add_u32 v%d, v%d, 8, v%d" % (vVo + i, t0, t2))
    for i in range(4):
        a("  v_mov_b32 v%d, v%d" % (vCo + i, vKo + i))
    a("  v_mov_b32 v%d, %d" % (vMisc, FLG))
    a("  v_mov_b32 v%d, 1" % vOne)
    a("  s_waitcnt lgkmcnt(0)")
    a("  s_load_dword s%d, s[%d:%d], 0x%x" % (sEp, sWsS, sWsS + 1, EPOCH))
    for i in range(4):
        a("  s_mov_b32 s%d, s%d" % (sCur + i, sK + i))
    a("  s_barrier                      ; B0")

    def issue_unit(switch=False):
        if switch:
            lsw = a.lab("Lsw")
            a("  s_cmp_lg_u32 s%d, 8" % sIss)
            a("  s_cbranch_scc1 %s" % lsw)
            for i in range(4):
                a("  s_mov_b32 s%d, s%d" % (sCur + i, sV + i))
            for i in range(4):
                a("  v_mov_b32 v%d, v%d" % (vCo + i, vVo + (i & 1)))
            a("%s:" % lsw)
        a("  s_add_u32 s%d, s%d, s%d" % (sT[0], sIss, sRot))
        a("  s_and_b32 s%d, s%d, 7" % (sT[0], sT[0]))
        a("  s_lshl_b32 s%d, s%d, 15" % (sT[0], sT[0]))
        a("  s_add_u32 s%d, s%d, s%d" % (sOff, sT[0], sBaseW))
        a("  s_and_b32 s%d, s%d, 3" % (sT[0], sIss))
        a("  s_lshl_b32 s%d, s%d, 13" % (sT[0], sT[0]))
        a("  s_add_u32 m0, s%d, s%d" % (sT[0], sRing))
        a("  s_add_u32 s%d, s%d, 1" % (sIss, sIss))
        a("  s_waitcnt vmcnt(%d)" % (depth - 1))
        for i in range(4):
            a("  buffer_load_dwordx4 v%d, s[%d:%d], s%d offen offset:%d nt lds" % (vCo + i, sCur, sCur + 3, sOff, i * 1024))
            if i < 3:
                a("  s_waitcnt vmcnt(%d)" % (depth - 1))
        a("  s_add_u32 m0, m0, 4096")
        a("  s_add_u32 s%d, s%d, 4096" % (sOff, sOff))
        a("  s_waitcnt vmcnt(%d)" % (depth - 1))
        for i in range(4):
            a("  buffer_load_dwordx4 v%d, s[%d:%d], s%d offen offset:%d nt lds" % (vCo + i, sCur, sCur + 3, sOff, i * 1024))
            if i < 3:
                a("  s_waitcnt vmcnt(%d)" % (depth - 1))

    a("L_fill:")
    a("  s_cmp_lg_u32 s%d, 3" % sIss)
    a("  s_cbranch_scc1 L_fill_go")
    stamp("u2 issued")
    lds_wait(vMisc, F_STG, 4, vTmp + 5)
    stamp("STG ok")
    a("L_fill_go:")
    issue_unit()
    a("  s_cmp_lt_u32 s%d, 4" % sIss)
    a("  s_cbranch_scc1 L_fill")
    for s in range(4):
        a("  v_add_u32 v%d, %d, v%d" % (t2, 4 * s, t0))
        a("  v_xor_b32 v%d, v%d, v%d" % (t2, t2, t1))
        a("  v_lshlrev_b32 v%d, 4, v%d" % (t2, t2))
        a("  v_lshl_add_u32 v%d, v%d, 8, v%d" % (t2, t1, t2))
        a("  v_add_u32 v%d, s%d, v%d" % (vKa + s, sRing, t2))
    t3, t4 = vTmp + 3, vTmp + 4
    a("  v_lshrrev_b32 v%d, 2, v%d" % (t2, t1))
    a("  v_lshl_add_u32 v%d, v%d, 2, v%d    ; row" % (t2, t0, t2))
    a("  v_and_b32 v%d, 7, v%d              ; row&7" % (t3, t2))
    a("  v_lshlrev_b32 v%d, 8, v%d" % (t2, t2))
    a("  v_and_b32 v%d, 3, v%d" % (t4, t1))
    a("  v_lshl_add_u32 v%d, v%d, 3, v%d" % (t2, t4, t2))
    a("  v_add_u32 v%d, s%d, v%d" % (t2, sRing, t2))
    for dt in range(8):
        a("  v_xor_b32 v%d, %d, v%d" % (t4, dt, t3))
        a("  v_lshl_add_u32 v%d, v%d, 5, v%d" % (vVa + dt, t4, t2))
    for i in range(64):
        a("  v_mov_b32 v%d, 0" % (vQ + i))
    a("  v_bfe_u32 v%d, v%d, 2, 2" % (t2, vLane))
    for t in range(4):
        a("  v_cmp_eq_u32 s[%d:%d], %d, v%d" % (sM + 2 * t, sM + 2 * t + 1, t, t2))
    a("  v_and_b32 v%d, 3, v%d" % (t2, vLane))
    a("  v_mul_u32_u24 v%d, %d, v%d" % (t2, QL_STRIDE, t2))
    a("  v_lshl_add_u32 v%d, v%d, 4, v%d" % (t2, t0, t2))
    a("  v_add_u32 v%d, %d, v%d" % (t2, QL, t2))
    a("  s_mov_b32 s%d, 0x3DB504F3      ; 128^-0.5" % sScale)
    a("  s_mov_b32 s%d, 0xffff0000" % sHi)
    stamp("fill done")
    if not noq:
        lds_wait(vMisc, F_QRDY, 4, vTmp + 5)
    stamp("Q ready")
    for t in range(4):
        a("  s_mov_b64 exec, s[%d:%d]" % (sM + 2 * t, sM + 2 * t + 1))
        for s in range(4):
            r = vQ + (t * 4 + s) * 4
            a("  ds_read_b128 v[%d:%d], v%d offset:%d" % (r, r + 3, t2, 64 * s))
    a("  s_mov_b64 exec, -1")
    a("  s_mov_b32 s%d, 0" % sIt)
    a("  s_waitcnt vmcnt(0) lgkmcnt(0)")

    a("L_k:")
    for u in range(2):
        if u == 0:
            lsk = a.lab("Lsk")
            a("  s_cmp_lt_u32 s%d, 3" % sIt)
            a("  s_cbranch_scc1 %s" % lsk)
            issue_unit()
            a("%s:" % lsk)
        else:
            issue_unit(switch=True)
        for hf in range(2):
            for s_ in range(4):
                r = vSt + (hf * 4 + s_) * 4
                a("  ds_read_b128 v[%d:%d], v%d offset:%d" % (r, r + 3, vKa + s_, u * 8192 + hf * 4096))
        for hf in range(2):
            a("  s_waitcnt lgkmcnt(%d)" % (4 if hf == 0 else 0))
            t = 2 * u + hf
            for s_ in range(4):
                r = vSt + (hf * 4 + s_) * 4
                q = vQ + (t * 4 + s_) * 4
                c = "0" if (u == 0 and hf == 0 and s_ == 0) else "v[%d:%d]" % (vAcc, vAcc + 3)
                a("  v_mfma_f32_16x16x32_bf16 v[%d:%d], v[%d:%d], v[%d:%d], %s" % (vAcc, vAcc + 3, r, r + 3, q, q + 3, c))
    for i in range(6):
        a("  v_mov_b32 v%d, v%d" % (vSp + i, vSp + i + 2))
    for s in range(4):
        a("  v_xor_b32 v%d, 0x4000, v%d" % (vKa + s, vKa + s))
    c0, c1 = vTmp, vTmp + 1
    e0 = vTmp + 2
    a("  v_cvt_pk_bf16_f32 v%d, v%d, v%d" % (c0, vAcc, vAcc + 1))
    a("  v_cvt_pk_bf16_f32 v%d, v%d, v%d" % (c1, vAcc + 2, vAcc + 3))
    a("  v_lshlrev_b32 v%d, 16, v%d" % (e0, c0))
    a("  v_and_b32 v%d, s%d, v%d" % (e0 + 1, sHi, c0))
    a("  v_lshlrev_b32 v%d, 16, v%d" % (e0 + 2, c1))
    a("  v_and_b32 v%d, s%d, v%d" % (e0 + 3, sHi, c1))
    for i in range(4):
        a("  v_mul_f32 v%d, s%d, v%d" % (e0 + i, sScale, e0 + i))
    a("  v_cvt_pk_bf16_f32 v%d, v%d, v%d" % (vSp + 6, e0, e0 + 1))
    a("  v_cvt_pk_bf16_f32 v%d, v%d, v%d" % (vSp + 7, e0 + 2, e0 + 3))
    a("  s_add_u32 s%d, s%d, 1" % (sIt, sIt))
    a("  s_cmp_lt_u32 s%d, 4" % sIt)
    a("  s_cbranch_scc1 L_k")
    stamp("K done")

    for i in range(8):
        a("  v_lshlrev_b32 v%d, 16, v%d" % (vE + 2 * i, vSp + i))
        a("  v_and_b32 v%d, s%d, v%d" % (vE + 2 * i + 1, sHi, vSp + i))
    vM, vL, vX = vTmp, vTmp + 1, vTmp + 2
    a("  v_max3_f32 v%d, v%d, v%d, v%d" % (vM, vE, vE + 1, vE + 2))
    for i in range(3, 15, 2):
        a("  v_max3_f32 v%d, v%d, v%d, v%d" % (vM, vM, vE + i, vE + i + 1))
    a("  v_max_f32 v%d, v%d, v%d" % (vM, vM, vE + 15))
    a("  s_nop 1")
    a("  v_max_f32_dpp v%d, v%d, v%d row_ror:4 %s" % (vM, vM, vM, DPP))
    a("  s_nop 1")
    a("  v_max_f32_dpp v%d, v%d, v%d row_ror:8 %s" % (vM, vM, vM, DPP))
    reduce_swap("v_max_f32", vM, vX, 16)
    reduce_swap("v_max_f32", vM, vX, 32)
    a("  s_mov_b32 s%d, 0x3FB8AA3B      ; log2(e)" % sT[0])
    a("  v_mul_f32 v%d, s%d, v%d" % (vX, sT[0], vM))
    for i in range(16):
        a("  v_fma_f32 v%d, v%d, s%d, -v%d" % (vE + i, vE + i, sT[0], vX))
    for i in range(16):
        a("  v_exp_f32 v%d, v%d" % (vE + i, vE + i))
    a("  s_nop 0")
    for i in range(8):
        a("  v_cvt_pk_bf16_f32 v%d, v%d, v%d" % (vSp + i, vE + 2 * i, vE + 2 * i + 1))
    for i in range(4):
        a("  v_pk_add_f32 v[%d:%d], v[%d:%d], v[%d:%d]" % (vE + 2 * i, vE + 2 * i + 1, vE + 2 * i, vE + 2 * i + 1, vE + 8 + 2 * i, vE + 9 + 2 * i))
    for i in range(2):
        a("  v_pk_add_f32 v[%d:%d], v[%d:%d], v[%d:%d]" % (vE + 2 * i, vE + 2 * i + 1, vE + 2 * i, vE + 2 * i + 1, vE + 4 + 2 * i, vE + 5 + 2 * i))
    a("  v_pk_add_f32 v[%d:%d], v[%d:%d], v[%d:%d]" % (vE, vE + 1, vE, vE + 1, vE + 2, vE + 3))
    a("  v_add_f32 v%d, v%d, v%d" % (vL, vE, vE + 1))
    a("  s_nop 1")
    a("  v_add_f32_dpp v%d, v%d, v%d row_ror:4 %s" % (vL, vL, vL, DPP))
    a("  s_nop 1")
    a("  v_add_f32_dpp v%d, v%d, v%d row_ror:8 %s" % (vL, vL, vL, DPP))
    reduce_swap("v_add_f32", vL, vX, 16)
    reduce_swap("v_add_f32", vL, vX, 32)
    a("  s_lshl_b32 s%d, s%d, 5" % (sT[0], sW))
    a("  v_lshlrev_b32 v%d, 3, v%d" % (vX, vLane))
    a("  v_add_u32 v%d, s%d, v%d" % (vX, sT[0], vX))
    a("  v_add_u32 v%d, v%d, v%d" % (vX, vMisc, vX))
    a("  s_mov_b64 exec, 15")
    a("  ds_write_b64 v%d, v[%d:%d] offset:%d" % (vX, vM, vM + 1, SSTAT))
    a("  s_waitcnt lgkmcnt(0)")
    a("  s_mov_b64 exec, -1")
    lds_add(vMisc, F_ST, vOne)

    for i in range(32):
        a("  v_mov_b32 v%d, 0" % (vO + i))
    a("  s_mov_b32 s%d, 0" % sIt)
    a("L_v:")
    a("  v_mov_b32 v%d, v%d" % (vPf, vSp))
    a("  v_mov_b32 v%d, v%d" % (vPf + 1, vSp + 1))
    for k, sh in ((2, 4), (4, 8), (6, 12)):
        a("  v_mov_b32_dpp v%d, v%d row_shl:%d %s bound_ctrl:0" % (vPf + k, vSp, sh, DPP))
        a("  v_mov_b32_dpp v%d, v%d row_shl:%d %s bound_ctrl:0" % (vPf + k + 1, vSp + 1, sh, DPP))
    for i in range(6):
        a("  v_mov_b32 v%d, v%d" % (vSp + i, vSp + i + 2))
    lew = a.lab("Lew")
    a("  s_cmp_lg_u32 s%d, %d" % (sIt, ew_it))
    a("  s_cbranch_scc1 %s" % lew)
    a("  s_cmp_lg_u32 s%d, 0" % sW)
    a("  s_cbranch_scc1 %s" % lew)
    a("  s_add_u32 s%d, s%d, 1" % (sT[1], sEp))
    a("  s_and_b32 s%d, s%d, 0xff" % (sT[1], sT[1]))
    for k in range(4):
        a("  v_mov_b32 v%d, s%d" % (vE + k, sT[1]))
    a("  s_lshl_b32 s%d, s%d, 9" % (sT[0], sX))
    a("  s_lshl_b32 s%d, s%d, 4" % (sT[1], sLi))
    a("  s_add_u32 s%d, s%d, s%d" % (sT[0], sT[0], sT[1]))
    a("  s_add_u32 s%d, s%d, %d" % (sT[0], sT[0], EW))
    a("  v_mov_b32 v%d, 0" % (vE + 4))
    a("  s_mov_b64 exec, 1")
    a("  buffer_store_dwordx4 v[%d:%d], v%d, s[%d:%d], s%d offen sc1" % (vE, vE + 3, vE + 4, sWsS, sWsS + 3, sT[0]))
    a("  s_mov_b64 exec, -1")
    a("%s:" % lew)
    for u in range(2):
        if u == 0:
            issue_unit()
        else:
            lv_else, lv_done = a.lab("Lve"), a.lab("Lvd")
            a("  s_cmp_ge_u32 s%d, 3" % sIt)
            a("  s_cbranch_scc1 %s" % lv_else)
            issue_unit()
            a("  s_branch %s" % lv_done)
            a("%s:" % lv_else)
            a("  s_waitcnt vmcnt(0)")
            a("%s:" % lv_done)
        for dt in range(8):
            r = vSt + dt * 4
            a("  ds_read_b64_tr_b16 v[%d:%d], v%d offset:%d" % (r, r + 1, vVa + dt, u * 8192))
            a("  ds_read_b64_tr_b16 v[%d:%d], v%d offset:%d" % (r + 2, r + 3, vVa + dt, u * 8192 + 4096))
        for dt in range(8):
            r = vSt + dt * 4
            o = vO + dt * 4
            if dt % 2 == 0:
                a("  s_waitcnt lgkmcnt(%d)" % (12 - 2 * dt if dt < 6 else 0))
            a("  v_mfma_f32_16x16x32_bf16 v[%d:%d], v[%d:%d], v[%d:%d], v[%d:%d]" % (o, o + 3, r, r + 3, vPf + 4 * u, vPf + 4 * u + 3, o, o + 3))
    for dt in range(8):
        a("  v_xor_b32 v%d, 0x4000, v%d" % (vVa + dt, vVa + dt))
    a("  s_add_u32 s%d, s%d, 1" % (sIt, sIt))
    a("  s_cmp_lt_u32 s%d, 4" % sIt)
    a("  s_cbranch_scc1 L_v")
    stamp("V done")
    a("  v_and_b32 v%d, 15, v%d" % (t1, vLane))
    a("  v_lshrrev_b32 v%d, 4, v%d" % (t0, vLane))
    a("  v_lshlrev_b32 v%d, 9, v%d" % (t2, t1))
    a("  v_lshl_add_u32 v%d, v%d, 4, v%d" % (t2, t0, t2))
    a("  v_add_u32 v%d, s%d, v%d" % (t2, sRing, t2))
    a("  v_cmp_gt_u32 vcc, 4, v%d" % t1)
    a("  s_nop 4")
    a("  s_mov_b64 exec, vcc")
    for dt in range(8):
        a("  ds_write_b128 v%d, v[%d:%d] offset:%d" % (t2, vO + dt * 4, vO + dt * 4 + 3, dt * 64))
    a("  s_mov_b64 exec, -1")
    vR0, vR1, vR2, vR3 = vPf, vPf + 1, vPf + 2, vPf + 3
    a("  v_lshlrev_b32 v%d, 9, v%d" % (vR0, t0))
    a("  v_lshl_add_u32 v%d, v%d, 4, v%d      ; h*512 + c*16" % (vR0, t1, vR0))
    a("  v_lshl_add_u32 v%d, v%d, 4, v%d      ; FLG + h*16" % (vR1, t0, vMisc))
    a("  v_lshlrev_b32 v%d, 14, v%d" % (vR2, t0))
    a("  v_lshrrev_b32 v%d, 3, v%d" % (t3, t1))
    a("  v_lshl_add_u32 v%d, v%d, 11, v%d" % (vR2, t3, vR2))
    a("  v_and_b32 v%d, 7, v%d" % (t3, t1))
    a("  v_lshl_add_u32 v%d, v%d, 4, v%d" % (vR2, t3, vR2))
    a("  s_lshl_b32 s%d, s%d, 16" % (sT[0], sX))
    a("  s_lshr_b32 s%d, s%d, 4" % (sT[1], sLi))
    a("  s_lshl_b32 s%d, s%d, 13" % (sT[1], sT[1]))
    a("  s_add_u32 s%d, s%d, s%d" % (sT[0], sT[0], sT[1]))
    a("  s_and_b32 s%d, s%d, 15" % (sT[1], sLi))
    a("  s_lshl_b32 s%d, s%d, 7" % (sT[1], sT[1]))
    a("  s_add_u32 s%d, s%d, s%d" % (sT[0], sT[0], sT[1]))
    a("  s_add_u32 s%d, s%d, %d" % (sT[0], sT[0], OP))
    a("  s_add_u32 s%d, s%d, 1" % (sT[1], sEp))
    a("  s_and_b32 s%d, s%d, 0xff" % (sT[1], sT[1]))
    a("  v_mov_b32 v%d, s%d" % (vR3, sT[1]))
    a("  s_add_u32 s%d, s%d, 4096" % (sT[1], sT[0]))
    a("  s_mov_b32 s%d, 0xffffff00" % sT[2])
    a("  s_waitcnt lgkmcnt(0)")
    a("  s_barrier                      ; B1")
    a("  s_cmp_lg_u32 s%d, 0" % sW)
    a("  s_cbranch_scc1 L_S_done")
    sWs = sWsS
    for w in range(4):
        a("  ds_read_b128 v[%d:%d], v%d offset:%d" % (vSt + w * 8, vSt + w * 8 + 3, vR0, (w & 1) * 32768))
        a("  ds_read_b128 v[%d:%d], v%d offset:%d" % (vSt + w * 8 + 4, vSt + w * 8 + 7, vR0, (w & 1) * 32768 + 256))
        if w == 1:
            a("  v_add_u32 v%d, 0x10000, v%d" % (vR0, vR0))
    a("  ds_read_b128 v[%d:%d], v%d offset:%d" % (vE, vE + 3, vR1, FFAC))
    a("  s_waitcnt lgkmcnt(0)")
    for i in range(8):
        a("  v_mul_f32 v%d, v%d, v%d" % (vO + i, vSt + i, vE))
    for w in range(1, 4):
        for i in range(8):
            a("  v_fmac_f32 v%d, v%d, v%d" % (vO + i, vSt + w * 8 + i, vE + w))
    for i in range(8):
        a("  v_and_or_b32 v%d, v%d, s%d, v%d" % (vO + i, vO + i, sT[2], vR3))
    a("  buffer_store_dwordx4 v[%d:%d], v%d, s[%d:%d], s%d offen sc1" % (vO, vO + 3, vR2, sWs, sWs + 3, sT[0]))
    a("  buffer_store_dwordx4 v[%d:%d], v%d, s[%d:%d], s%d offen sc1" % (vO + 4, vO + 7, vR2, sWs, sWs + 3, sT[1]))
    stamp("published")
    if ts:
        a("  s_waitcnt lgkmcnt(0)")
        a("  s_lshl_b32 s%d, s2, 8" % sT[0])
        a("  s_add_u32 s%d, s%d, %d" % (sT[0], sT[0], TSOFF))
        a("  v_mov_b32 v%d, 0" % t2)
        a("  s_mov_b64 exec, 1")
        for i in range(len(names["S"])):
            a("  v_mov_b32 v%d, s%d" % (vO, TS0 + 2 * i))
            a("  v_mov_b32 v%d, s%d" % (vO + 1, TS0 + 2 * i + 1))
            a("  buffer_store_dwordx2 v[%d:%d], v%d, s[%d:%d], s%d offen offset:%d" % (vO, vO + 1, t2, sWs, sWs + 3, sT[0], 8 * i))
            a("  s_waitcnt vmcnt(0)")
        a("  s_mov_b64 exec, -1")
    a("  s_waitcnt vmcnt(0)")
    a("L_S_done:")
    a("  s_endpgm")

    role[0] = "H"
    a("L_H:")
    sHW = 7
    sXd, sWq, sWs, sGU, sWd, sWo, sOut = 8, 12, 16, 32, 36, 40, 44
    sEp = 28
    sTag = 29
    sNotFF = 30
    sTag4 = 31
    sHi2 = 48
    sFi = 49
    sSelA, sSelB = 50, 54
    sB = 51; sJ = 52; sFidx = 53
    sKb2 = 55
    sLo8 = 60
    sHq = 62
    sWoStg = 63
    hMisc, hOne = 2, 3
    hG, hI = 4, 5
    hT = 6
    hX = 16
    hF = 24
    hY = 40
    hA = 56
    hB = 72
    hD = 88
    hW = 120
    hXf = 136
    hZ = 144
    hTag = 156
    hWd = 160
    T0, T1, T2, T3, T4, T5 = hT, hT + 1, hT + 2, hT + 3, hT + 4, hT + 5
    hTr, hXn, hW1k, hTrG, hOutOff = hZ + 1, hZ + 2, hZ + 4, hZ + 5, hZ + 6

    a("  s_sub_u32 s%d, s%d, 4" % (sHW, sW))
    a("  s_load_dwordx2 s[%d:%d], s[0:1], 0" % (sXd, sXd + 1))
    a("  s_load_dwordx2 s[%d:%d], s[0:1], 24" % (sWq, sWq + 1))
    a("  s_load_dwordx2 s[%d:%d], s[0:1], 88" % (sWs, sWs + 1))
    a("  s_load_dwordx4 s[56:59], s[0:1], 48")
    a("  s_load_dwordx2 s[%d:%d], s[0:1], 64" % (sWd, sWd + 1))
    a("  s_load_dwordx2 s[%d:%d], s[0:1], 32" % (sWo, sWo + 1))
    a("  s_load_dwordx2 s[%d:%d], s[0:1], 72" % (sOut, sOut + 1))
    a("  s_mov_b32 s%d, 8192" % (sXd + 2))
    a("  s_mov_b32 s%d, 0x20000" % (sXd + 3))
    a("  s_mov_b32 s%d, 0x400000" % (sWq + 2))
    a("  s_mov_b32 s%d, 0x20000" % (sWq + 3))
    a("  s_mov_b32 s%d, 0xffff0000" % sHi2)
    a("  v_lshrrev_b32 v%d, 4, v0" % hG)
    a("  v_and_b32 v%d, 15, v0" % hI)
    a("  v_mov_b32 v%d, %d" % (hMisc, FLG))
    a("  v_mov_b32 v%d, 1" % hOne)
    a("  v_lshrrev_b32 v%d, 5, v0" % T0)
    a("  s_lshl_b32 s%d, s%d, 1" % (sT[0], sHW))
    a("  v_add_u32 v%d, s%d, v%d          ; row b" % (T0, sT[0], T0))
    a("  v_and_b32 v%d, 31, v0" % T1)
    a("  v_lshlrev_b32 v%d, 5, v%d" % (T1, T1))
    a("  v_lshl_add_u32 v%d, v%d, 10, v%d" % (T2, T0, T1))
    a("  v_mul_u32_u24 v%d, %d, v%d" % (T0, XN_STRIDE, T0))
    a("  v_add_u32 v%d, v%d, v%d" % (T0, T0, T1))
    a("  v_add_u32 v%d, %d, v%d" % (hZ, XN, T0))
    a("  v_lshrrev_b32 v%d, 3, v0" % T3)
    a("  v_and_b32 v%d, 7, v0" % T4)
    a("  v_lshlrev_b32 v%d, 4, v%d" % (T4, T4))
    a("  v_lshl_add_u32 v%d, v%d, 13, v%d" % (T5, T3, T4))
    a("  v_lshl_add_u32 v%d, v%d, 10, v%d" % (hW1k, T3, T4))
    a("  v_mul_u32_u24 v%d, 3584, v%d" % (T3, T3))
    a("  v_add_u32 v%d, v%d, v%d" % (T3, T3, T4))
    a("  s_and_b32 s%d, s%d, 3" % (sJ, sLi))
    a("  s_lshr_b32 s%d, s%d, 2" % (sB, sLi))
    a("  s_lshl_b32 s%d, s%d, 20" % (sT[0], sJ))
    a("  s_lshl_b32 s%d, s%d, 18" % (sT[1], sHW))
    a("  s_add_u32 s%d, s%d, s%d" % (sT[0], sT[0], sT[1]))
    a("  s_lshl_b32 s%d, s%d, 10" % (sT[1], sX))
    a("  s_add_u32 s%d, s%d, s%d" % (sT[0], sT[0], sT[1]))
    a("  s_lshl_b32 s%d, s%d, 7" % (sT[1], sB))
    a("  s_add_u32 s%d, s%d, s%d" % (sT[0], sT[0], sT[1]))
    a("  s_lshr_b32 s%d, s%d, 1" % (sT[1], sHW))
    a("  s_lshl_b32 s%d, s%d, 15" % (sT[1], sT[1]))
    a("  s_and_b32 s%d, s%d, 1" % (sT[2], sHW))
    a("  s_lshl_b32 s%d, s%d, 12" % (sT[2], sT[2]))
    a("  s_add_u32 s%d, s%d, s%d" % (sT[1], sT[1], sT[2]))
    a("  s_add_u32 s%d, s%d, 24576" % (sT[1], sT[1]))
    a("  s_min_u32 s%d, s2, 223" % sFi)
    a("  s_and_b32 s%d, s%d, 3" % (sKb2, sFi))
    a("  s_lshl_b32 s%d, s%d, 2" % (sT[3], sKb2))
    a("  s_add_u32 s%d, s%d, s%d" % (sT[3], sT[3], sHW))
    a("  s_mul_i32 s%d, s%d, %d" % (sT[3], sT[3], 32 * 3584))
    a("  s_lshr_b32 s%d, s%d, 3" % (sT[4], sFi))
    a("  s_lshl_b32 s%d, s%d, 7" % (sT[4], sT[4]))
    a("  s_add_u32 s%d, s%d, s%d" % (sT[3], sT[3], sT[4]))
    a("  s_mov_b32 s%d, 1835008" % (sGU + 2))
    a("  s_mov_b32 s%d, 0x20000" % (sGU + 3))
    a("  s_waitcnt lgkmcnt(0)")
    a("  buffer_load_dwordx4 v[%d:%d], v%d, s[%d:%d], 0 offen" % (hX, hX + 3, T2, sXd, sXd + 3))
    a("  buffer_load_dwordx4 v[%d:%d], v%d, s[%d:%d], 0 offen offset:16" % (hX + 4, hX + 7, T2, sXd, sXd + 3))
    a("  s_load_dword s%d, s[%d:%d], 0x%x" % (sEp, sWs, sWs + 1, EPOCH))
    for n in range(4):
        a("  s_add_u32 m0, s%d, %d" % (sT[1], n * 1024))
        if n:
            a("  s_add_u32 s%d, s%d, %d" % (sT[0], sT[0], 8 * 8192))
        else:
            a("  s_bitcmp1_b32 s%d, 2" % sFi)
        a("  buffer_load_dwordx4 v%d, s[%d:%d], s%d offen nt lds" % (T5, sWq, sWq + 3, sT[0]))
        if n == 0:
            a("  s_cselect_b32 s%d, s58, s56" % sGU)
            a("  s_cselect_b32 s%d, s59, s57" % (sGU + 1))
    for n in range(4):
        a("  s_add_u32 m0, s%d, %d" % (sT[1], 65536 + n * 1024))
        if n:
            a("  s_add_u32 s%d, s%d, %d" % (sT[3], sT[3], 8 * 3584))
        else:
            a("  s_nop 0")
        a("  buffer_load_dwordx4 v%d, s[%d:%d], s%d offen nt lds" % (T3, sGU, sGU + 3, sT[3]))
    a("  s_cmp_lg_u32 s%d, 0" % sHW)
    a("  s_cbranch_scc1 L_H_nz")
    a("  v_lshl_add_u32 v%d, v0, 2, v%d" % (T0, hMisc))
    a("  v_mov_b32 v%d, 0" % T1)
    a("  ds_write_b32 v%d, v%d" % (T0, T1))
    a("  s_waitcnt lgkmcnt(0)")
    a("L_H_nz:")
    a("  s_barrier                      ; B0")
    stamp("B0")
    a("  s_mov_b32 s%d, 0x10000000" % (sWs + 2))
    a("  s_mov_b32 s%d, 0x20000" % (sWs + 3))
    for base, size in ((sWd, 1835008), (sWo, 0x400000), (sOut, 8192)):
        a("  s_mov_b32 s%d, %d" % (base + 2, size))
        a("  s_mov_b32 s%d, 0x20000" % (base + 3))
    a("  s_mov_b32 s%d, 0xffffff00" % sNotFF)
    a("  s_mov_b32 s%d, 0x0c0c0400" % sSelA)
    a("  s_mov_b32 s%d, 0x04000c0c" % sSelB)

    def pk(op, d, s0, s1, extra=""):
        a("  %s v[%d:%d], v[%d:%d], v[%d:%d]%s" % (op, d, d + 1, s0, s0 + 1, s1, s1 + 1, extra))

    def allreduce32(v, t):
        for n in (1, 2, 4, 8):
            a("  s_nop 1")
            a("  v_add_f32_dpp v%d, v%d, v%d row_ror:%d %s" % (v, v, v, n, DPP))
        reduce_swap("v_add_f32", v, t, 16)

    def tag(v):
        a("  v_and_or_b32 v%d, v%d, s%d, v%d" % (v, v, sNotFF, hTag))

    def tag_retry(regs, lab_retry, lab_ok, t0_, t1_, sleep):
        rs = list(regs)
        assert len(rs) % 4 == 0
        for k in range(0, len(rs), 4):
            a("  v_perm_b32 v%d, v%d, v%d, s%d" % (t1_, rs[k + 1], rs[k], sSelA))
            a("  v_perm_b32 v%d, v%d, v%d, s%d" % (t1_ + 1, rs[k + 3], rs[k + 2], sSelB))
            if k == 0:
                a("  v_or_b32 v%d, v%d, v%d" % (t0_, t1_, t1_ + 1))
                a("  v_xor_b32 v%d, s%d, v%d" % (t0_, sTag4, t0_))
            else:
                a("  v_or_b32 v%d, v%d, v%d" % (t1_, t1_, t1_ + 1))
                a("  v_xor_b32 v%d, s%d, v%d" % (t1_, sTag4, t1_))
                a("  v_or_b32 v%d, v%d, v%d" % (t0_, t0_, t1_))
        a("  v_cmp_ne_u32 vcc, 0, v%d" % t0_)
        a("  s_cbranch_vccz %s" % lab_ok)
        a("  s_mov_b64 exec, vcc")
        a("  s_add_u32 s%d, s%d, 1" % (sCnt, sCnt))
        a("  s_cmp_lt_u32 s%d, %d" % (sCnt, SPIN_LIMIT))
        a("  s_cbranch_scc0 %s" % lab_ok)
        a("  s_sleep %d" % sleep)
        a("  s_branch %s" % lab_retry)

    def round_bf16(v):
        a("  v_cvt_pk_bf16_f32 v%d, v%d, v%d" % (v, v, v))
        a("  v_and_b32 v%d, s%d, v%d" % (v, sHi2, v))

    a("  s_waitcnt vmcnt(8)")
    for i in range(8):
        a("  v_lshlrev_b32 v%d, 16, v%d" % (hF + 2 * i, hX + i))
        a("  v_and_b32 v%d, s%d, v%d" % (hF + 2 * i + 1, sHi2, hX + i))
    for i in range(4):
        pk("v_pk_add_f32", hY + 2 * i, hF + 4 * i, hF + 4 * i + 2)
    pk("v_pk_add_f32", hY, hY, hY + 2)
    pk("v_pk_add_f32", hY + 4, hY + 4, hY + 6)
    pk("v_pk_add_f32", hY, hY, hY + 4)
    vS = hZ + 8
    vV = hZ + 10
    a("  v_add_f32 v%d, v%d, v%d" % (vS, hY, hY + 1))
    allreduce32(vS, T0)
    a("  v_mul_f32 v%d, 0x3b000000, v%d     ; mean" % (vS, vS))
    for i in range(8):
        pk("v_pk_add_f32", hY + 2 * i, hF + 2 * i, vS, " op_sel_hi:[1,0] neg_lo:[0,1] neg_hi:[0,1]")
    pk("v_pk_mul_f32", vV, hY, hY)
    for i in range(1, 8):
        a("  v_pk_fma_f32 v[%d:%d], v[%d:%d], v[%d:%d], v[%d:%d]" % (vV, vV + 1, hY + 2 * i, hY + 2 * i + 1, hY + 2 * i, hY + 2 * i + 1, vV, vV + 1))
    a("  v_add_f32 v%d, v%d, v%d" % (vV, vV, vV + 1))
    allreduce32(vV, T0)
    a("  v_mul_f32 v%d, 0x3b000000, v%d     ; var" % (vV, vV))
    a("  v_cvt_pk_bf16_f32 v%d, v%d, v%d" % (vS, vS, vV))
    a("  v_and_b32 v%d, s%d, v%d" % (vV, sHi2, vS))
    a("  v_lshlrev_b32 v%d, 16, v%d            ; mean_bf" % (vS, vS))
    a("  v_add_f32 v%d, 0x3727c5ac, v%d" % (vV, vV))
    round_bf16(vV)
    a("  v_sqrt_f32 v%d, v%d" % (vV, vV))
    a("  s_nop 0")
    round_bf16(vV)
    a("  v_rcp_f32 v%d, v%d" % (vV, vV))
    for i in range(8):
        pk("v_pk_add_f32", hY + 2 * i, hF + 2 * i, vS, " op_sel_hi:[1,0] neg_lo:[0,1] neg_hi:[0,1]")
    for i in range(8):
        a("  v_cvt_pk_bf16_f32 v%d, v%d, v%d" % (hX + i, hY + 2 * i, hY + 2 * i + 1))
    for i in range(8):
        a("  v_lshlrev_b32 v%d, 16, v%d" % (hF + 2 * i, hX + i))
        a("  v_and_b32 v%d, s%d, v%d" % (hF + 2 * i + 1, sHi2, hX + i))
    for i in range(8):
        pk("v_pk_mul_f32", hY + 2 * i, hF + 2 * i, vV, " op_sel_hi:[1,0]")
    for i in range(8):
        a("  v_cvt_pk_bf16_f32 v%d, v%d, v%d" % (hX + i, hY + 2 * i, hY + 2 * i + 1))
    a("  ds_write_b128 v%d, v[%d:%d]" % (hZ, hX, hX + 3))
    a("  ds_write_b128 v%d, v[%d:%d] offset:16" % (hZ, hX + 4, hX + 7))
    stamp("LN done")

    a("  v_lshrrev_b32 v%d, 2, v%d" % (T0, hI))
    a("  v_lshl_add_u32 v%d, v%d, 3, v%d" % (T0, hG, T0))
    a("  v_lshlrev_b32 v%d, 7, v%d" % (T0, T0))
    a("  v_and_b32 v%d, 3, v%d" % (T1, hI))
    a("  v_lshl_add_u32 v%d, v%d, 3, v%d" % (hTrG, T1, T0))
    a("  s_lshl_b32 s%d, s%d, 5" % (sT[0], sHW))
    a("  s_add_u32 s%d, s%d, 24576" % (sT[0], sT[0]))
    a("  v_add_u32 v%d, s%d, v%d" % (hTr, sT[0], hTrG))
    a("  v_and_b32 v%d, 7, v%d" % (T0, hI))
    a("  v_mul_u32_u24 v%d, %d, v%d" % (T0, XN_STRIDE, T0))
    a("  v_lshl_add_u32 v%d, v%d, 4, v%d" % (T0, hG, T0))
    a("  v_add_u32 v%d, %d, v%d" % (hXn, XN, T0))
    a("  v_cmp_gt_u32 s[%d:%d], 8, v%d" % (sLo8, sLo8 + 1, hI))

    def tile_compute(kb_sgpr, stg_add):
        a("  s_lshl_b32 s%d, s%d, 8" % (sT[0], kb_sgpr))
        a("  v_add_u32 v%d, s%d, v%d" % (T0, sT[0], hXn))
        if stg_add:
            a("  v_add_u32 v%d, 0x%x, v%d" % (T1, stg_add, hTr))
            tr = T1
        else:
            tr = hTr
        for ks in range(4):
            base = (ks >> 1) * 32768 + (ks & 1) * 4096
            r = hA + ks * 4
            a("  ds_read_b64_tr_b16 v[%d:%d], v%d offset:%d" % (r, r + 1, tr, base))
            a("  ds_read_b64_tr_b16 v[%d:%d], v%d offset:%d" % (r + 2, r + 3, tr, base + 512))
            r = hB + ks * 4
            a("  ds_read_b128 v[%d:%d], v%d offset:%d" % (r, r + 3, T0, ks * 64))
        for ks in range(4):
            a("  s_waitcnt lgkmcnt(%d)" % (9 - 3 * ks))
            c = "0" if ks == 0 else "v[%d:%d]" % (hD, hD + 3)
            a("  v_mfma_f32_16x16x32_bf16 v[%d:%d], v[%d:%d], v[%d:%d], %s" % (hD, hD + 3, hA + ks * 4, hA + ks * 4 + 3, hB + ks * 4, hB + ks * 4 + 3, c))

    a("  s_waitcnt vmcnt(4) lgkmcnt(0)")
    a("  s_add_u32 s%d, s%d, 1" % (sTag, sEp))
    a("  s_and_b32 s%d, s%d, 0xff" % (sTag, sTag))
    a("  s_mul_i32 s%d, s%d, 0x01010101" % (sTag4, sTag))
    a("  v_mov_b32 v%d, s%d" % (hTag, sTag))
    lds_add(hMisc, F_H1, hOne)
    lds_wait(hMisc, F_H1, 4, T5)
    stamp("Hsync1")
    tile_compute(sJ, 0)
    a("  v_lshlrev_b32 v%d, 11, v%d" % (T0, hI))
    a("  v_lshl_add_u32 v%d, v%d, 4, v%d" % (T0, hG, T0))
    a("  s_lshl_b32 s%d, s%d, 6" % (sT[0], sHW))
    a("  v_add_u32 v%d, s%d, v%d" % (T0, sT[0], T0))
    a("  s_lshl_b32 s%d, s%d, 2" % (sHq, sX))
    a("  s_add_u32 s%d, s%d, s%d" % (sHq, sHq, sJ))
    a("  s_lshl_b32 s%d, s%d, 14" % (sT[0], sHq))
    a("  s_lshl_b32 s%d, s%d, 8" % (sT[1], sB))
    a("  s_add_u32 s%d, s%d, s%d" % (sT[0], sT[0], sT[1]))
    if QP:
        a("  s_add_u32 s%d, s%d, %d" % (sT[0], sT[0], QP))
    for k in range(4):
        tag(hD + k)
    a("  s_mov_b64 exec, s[%d:%d]" % (sLo8, sLo8 + 1))
    a("  buffer_store_dwordx4 v[%d:%d], v%d, s[%d:%d], s%d offen sc1" % (hD, hD + 3, T0, sWs, sWs + 3, sT[0]))
    a("  s_mov_b64 exec, -1")
    stamp("QP stored")
    a("  s_lshl_b32 s%d, s%d, 2" % (sT[0], sHq))
    a("  s_add_u32 s%d, s%d, s%d" % (sT[0], sT[0], sHW))
    a("  s_lshl_b32 s%d, s%d, 15" % (sT[0], sT[0]))
    a("  s_lshl_b32 s%d, s%d, 7" % (sT[1], sB))
    a("  s_add_u32 s%d, s%d, s%d" % (sT[0], sT[0], sT[1]))
    a("  s_lshl_b32 s%d, s%d, 12" % (sWoStg, sHW))
    a("  s_add_u32 s%d, s%d, %d" % (sWoStg, sWoStg, WOS))
    for n in range(4):
        a("  s_add_u32 m0, s%d, %d" % (sWoStg, n * 1024))
        if n:
            a("  s_add_u32 s%d, s%d, 8192" % (sT[0], sT[0]))
        else:
            a("  s_nop 0")
        a("  buffer_load_dwordx4 v%d, s[%d:%d], s%d offen nt lds" % (hW1k, sWo, sWo + 3, sT[0]))
    a("  s_waitcnt vmcnt(5)")
    lds_add(hMisc, F_H3, hOne)
    lds_wait(hMisc, F_H3, 4, T5)
    stamp("Hsync3")
    tile_compute(sKb2, 65536)
    lds_add(hMisc, F_STG, hOne)
    a("  v_lshlrev_b32 v%d, 8, v%d" % (T0, hI))
    a("  v_lshl_add_u32 v%d, v%d, 4, v%d" % (T0, hG, T0))
    a("  s_lshl_b32 s%d, s%d, 6" % (sT[0], sHW))
    a("  v_add_u32 v%d, s%d, v%d" % (T0, sT[0], T0))
    a("  s_and_b32 s%d, s%d, 7" % (sT[0], sFi))
    a("  s_mul_i32 s%d, s%d, 28" % (sT[0], sT[0]))
    a("  s_lshr_b32 s%d, s%d, 3" % (sT[1], sFi))
    a("  s_add_u32 s%d, s%d, s%d" % (sT[0], sT[0], sT[1]))
    a("  s_lshl_b32 s%d, s%d, 11" % (sT[0], sT[0]))
    a("  s_add_u32 s%d, s%d, %d" % (sT[0], sT[0], GP))
    for k in range(4):
        tag(hD + k)
    lg = a.lab("Lg")
    a("  s_cmp_ge_u32 s2, 224")
    a("  s_cbranch_scc1 %s" % lg)
    a("  s_mov_b64 exec, s[%d:%d]" % (sLo8, sLo8 + 1))
    a("  buffer_store_dwordx4 v[%d:%d], v%d, s[%d:%d], s%d offen sc1" % (hD, hD + 3, T0, sWs, sWs + 3, sT[0]))
    a("  s_mov_b64 exec, -1")
    a("%s:" % lg)
    stamp("tile1 done")
    a("  v_lshrrev_b32 v%d, 5, v0" % T0)
    a("  v_lshlrev_b32 v%d, 14, v%d" % (T0, T0))
    a("  v_and_b32 v%d, 31, v0" % T1)
    a("  v_lshl_add_u32 v%d, v%d, 4, v%d" % (T0, T1, T0))
    a("  s_lshl_b32 s%d, s%d, 9" % (sT[0], sHW))
    a("  v_add_u32 v%d, s%d, v%d" % (T0, sT[0], T0))
    a("  s_lshl_b32 s%d, s%d, 16" % (sT[0], sX))
    a("  s_lshl_b32 s%d, s%d, 11" % (sT[1], sB))
    a("  s_add_u32 s%d, s%d, s%d" % (sT[0], sT[0], sT[1]))
    if QP:
        a("  s_add_u32 s%d, s%d, %d" % (sT[0], sT[0], QP))
    a("  s_add_u32 s%d, s%d, 32768" % (sT[1], sT[0]))
    a("  s_mul_i32 s%d, s%d, %d" % (sT[2], sHW, QL_STRIDE))
    a("  s_add_u32 s%d, s%d, %d" % (sT[2], sT[2], QL))
    a("  v_lshlrev_b32 v%d, 3, v%d" % (T1, T1))
    a("  v_add_u32 v%d, s%d, v%d" % (T1, sT[2], T1))
    lr, lo = a.lab("Lr"), a.lab("Lo")
    a("  s_mov_b32 s%d, 0" % sCnt)
    a("%s:" % lr)
    a("  buffer_load_dwordx4 v[%d:%d], v%d, s[%d:%d], s%d offen sc1" % (hA, hA + 3, T0, sWs, sWs + 3, sT[0]))
    a("  buffer_load_dwordx4 v[%d:%d], v%d, s[%d:%d], s%d offen sc1" % (hA + 4, hA + 7, T0, sWs, sWs + 3, sT[1]))
    a("  s_waitcnt vmcnt(0)")
    tag_retry(range(hA, hA + 8), lr, lo, T2, T3, 2)
    a("%s:" % lo)
    a("  s_mov_b64 exec, -1")
    stamp("Q ok")
    pk("v_pk_add_f32", hA, hA, hA + 4)
    pk("v_pk_add_f32", hA + 2, hA + 2, hA + 6)
    for k in range(4):
        a("  v_mov_b32 v%d, v%d" % (hA + 4 + k, hA + k))
    a("  s_nop 1")
    for k in range(4):
        a("  v_permlane32_swap_b32 v%d, v%d" % (hA + k, hA + 4 + k))
    pk("v_pk_add_f32", hA, hA, hA + 4)
    pk("v_pk_add_f32", hA + 2, hA + 2, hA + 6)
    a("  v_cvt_pk_bf16_f32 v%d, v%d, v%d" % (hA, hA, hA + 1))
    a("  v_cvt_pk_bf16_f32 v%d, v%d, v%d" % (hA + 1, hA + 2, hA + 3))
    a("  s_mov_b32 exec_hi, 0")
    a("  ds_write_b64 v%d, v[%d:%d]" % (T1, hA, hA + 1))
    a("  s_mov_b64 exec, -1")
    a("  s_waitcnt lgkmcnt(0)")
    lds_add(hMisc, F_QRDY, hOne)
    stamp("Q rdy")

    a("  v_add_u32 v%d, s%d, v%d" % (T0, sWoStg, hTrG))
    l3 = a.lab("L3")
    a("  s_cmp_lg_u32 s%d, 3" % sHW)
    a("  s_cbranch_scc1 %s" % l3)
    a("  s_lshr_b32 s%d, s%d, 3" % (sT[0], sFi))
    a("  s_lshl_b32 s%d, s%d, 16" % (sT[1], sT[0]))
    a("  s_and_b32 s%d, s%d, 7" % (sT[2], sFi))
    a("  s_lshl_b32 s%d, s%d, 7" % (sT[2], sT[2]))
    a("  s_add_u32 s%d, s%d, s%d" % (sT[1], sT[1], sT[2]))
    for n in range(4):
        a("  s_mov_b32 m0, %d" % (SPARE + n * 1024))
        if n:
            a("  s_add_u32 s%d, s%d, 8192" % (sT[1], sT[1]))
        else:
            a("  s_nop 0")
        a("  buffer_load_dwordx4 v%d, s[%d:%d], s%d offen nt lds" % (hW1k, sWd, sWd + 3, sT[1]))
    a("%s:" % l3)
    for ct in range(4):
        r = hW + ct * 4
        a("  ds_read_b64_tr_b16 v[%d:%d], v%d offset:%d" % (r, r + 1, T0, ct * 32))
        a("  ds_read_b64_tr_b16 v[%d:%d], v%d offset:%d" % (r + 2, r + 3, T0, ct * 32 + 512))
    a("  s_waitcnt lgkmcnt(0)")
    l4 = a.lab("L4")
    a("  s_cmp_lg_u32 s%d, 3" % sHW)
    a("  s_cbranch_scc1 %s" % l4)
    for n in range(4):
        a("  s_add_u32 m0, s%d, %d" % (sWoStg, n * 1024))
        a("  s_add_u32 s%d, s%d, 8192" % (sT[1], sT[1]))
        a("  buffer_load_dwordx4 v%d, s[%d:%d], s%d offen nt lds" % (hW1k, sWd, sWd + 3, sT[1]))
    a("  v_add_u32 v%d, %d, v%d" % (T1, SPARE, hTrG))
    a("  s_waitcnt vmcnt(4)")
    for ct in range(4):
        r = hWd + ct * 8
        a("  ds_read_b64_tr_b16 v[%d:%d], v%d offset:%d" % (r, r + 1, T1, ct * 32))
        a("  ds_read_b64_tr_b16 v[%d:%d], v%d offset:%d" % (r + 2, r + 3, T1, ct * 32 + 512))
    a("  s_waitcnt vmcnt(0)")
    for ct in range(4):
        r = hWd + ct * 8 + 4
        a("  ds_read_b64_tr_b16 v[%d:%d], v%d offset:%d" % (r, r + 1, T0, ct * 32))
        a("  ds_read_b64_tr_b16 v[%d:%d], v%d offset:%d" % (r + 2, r + 3, T0, ct * 32 + 512))
    a("  s_waitcnt lgkmcnt(0)")
    a("%s:" % l4)
    stamp("wo frags")

    a("  s_lshl_b32 s%d, s%d, 5" % (sFidx, sB))
    a("  s_add_u32 s%d, s%d, s%d" % (sFidx, sFidx, sHq))
    a("  v_and_b32 v%d, 3, v0" % T0)
    a("  v_lshlrev_b32 v%d, 3, v%d" % (T0, T0))
    a("  s_lshl_b32 s%d, s%d, 5" % (sT[0], sFidx))
    a("  v_add_u32 v%d, s%d, v%d" % (hOutOff, sT[0], T0))
    if noffn:
        a("  s_branch L_B1")
    a("  s_cmp_eq_u32 s%d, 1" % sHW)
    a("  s_cbranch_scc1 L_ffn")
    a("  s_cmp_eq_u32 s%d, 2" % sHW)
    a("  s_cbranch_scc1 L_stats")
    a("  s_cmp_eq_u32 s%d, 0" % sHW)
    a("  s_cbranch_scc1 L_fin_prep")
    a("  s_branch L_down")

    a("L_ffn:")
    a("  s_cmp_ge_u32 s2, 224")
    a("  s_cbranch_scc1 L_B1")
    a("  s_lshr_b32 s%d, s2, 3" % sT[0])
    a("  v_mul_u32_u24 v%d, %d, v%d" % (T0, 28 * 2048, hG))
    a("  v_lshl_add_u32 v%d, v%d, 4, v%d" % (T0, hI, T0))
    a("  s_lshl_b32 s%d, s%d, 11" % (sT[1], sT[0]))
    a("  s_lshl_b32 s%d, s%d, 8" % (sT[2], sX))
    a("  s_add_u32 s%d, s%d, s%d" % (sT[1], sT[1], sT[2]))
    a("  s_add_u32 s%d, s%d, %d" % (sT[1], sT[1], GP))
    a("  s_add_u32 s%d, s%d, %d" % (sT[2], sT[1], 4 * 28 * 2048))
    lr, lo = a.lab("Lr"), a.lab("Lo")
    a("  s_mov_b32 s%d, 0" % sCnt)
    a("%s:" % lr)
    a("  buffer_load_dwordx4 v[%d:%d], v%d, s[%d:%d], s%d offen sc1" % (hA, hA + 3, T0, sWs, sWs + 3, sT[1]))
    a("  buffer_load_dwordx4 v[%d:%d], v%d, s[%d:%d], s%d offen sc1" % (hA + 4, hA + 7, T0, sWs, sWs + 3, sT[2]))
    a("  s_waitcnt vmcnt(0)")
    tag_retry(range(hA, hA + 8), lr, lo, T2, T3, 8)
    a("%s:" % lo)
    a("  s_mov_b64 exec, -1")
    for kind in (16, 32):
        for k in range(8):
            a("  v_mov_b32 v%d, v%d" % (hA + 8 + k, hA + k))
        a("  s_nop 1")
        for k in range(8):
            a("  v_permlane%d_swap_b32 v%d, v%d" % (kind, hA + k, hA + 8 + k))
        for k in range(0, 8, 2):
            pk("v_pk_add_f32", hA + k, hA + k, hA + 8 + k)
    g0, u0 = hA, hA + 4
    for k in range(8):
        round_bf16(hA + k)
    a("  s_mov_b32 s%d, 0xBFB8AA3B      ; -log2(e)" % sT[2])
    for k in range(4):
        a("  v_mul_f32 v%d, s%d, v%d" % (g0 + k, sT[2], g0 + k))
    for k in range(4):
        a("  v_exp_f32 v%d, v%d" % (g0 + k, g0 + k))
    a("  s_nop 0")
    for k in range(4):
        a("  v_add_f32 v%d, 1.0, v%d" % (g0 + k, g0 + k))
    for k in range(4):
        a("  v_rcp_f32 v%d, v%d" % (g0 + k, g0 + k))
    a("  s_nop 0")
    for k in range(4):
        round_bf16(g0 + k)
    for k in range(4):
        a("  v_mul_f32 v%d, v%d, v%d" % (g0 + k, g0 + k, u0 + k))
    for k in range(4):
        round_bf16(g0 + k)
    for k in range(4):
        a("  v_or_b32 v%d, v%d, v%d" % (g0 + k, g0 + k, hTag))
    a("  v_lshlrev_b32 v%d, 4, v0" % T0)
    a("  s_lshl_b32 s%d, s2, 8" % sT[1])
    a("  s_add_u32 s%d, s%d, %d" % (sT[1], sT[1], HH))
    a("  s_mov_b64 exec, 0xffff")
    a("  buffer_store_dwordx4 v[%d:%d], v%d, s[%d:%d], s%d offen sc1" % (g0, g0 + 3, T0, sWs, sWs + 3, sT[1]))
    a("  s_mov_b64 exec, -1")
    a("  s_branch L_B1")

    a("L_down:")
    a("  s_cmp_ge_u32 s2, 224")
    a("  s_cbranch_scc1 L_B1")
    a("  s_lshr_b32 s%d, s2, 3" % sT[0])
    a("  v_and_b32 v%d, 7, v%d" % (T0, hI))
    a("  v_lshlrev_b32 v%d, 8, v%d" % (T0, T0))
    a("  v_lshl_add_u32 v%d, v%d, 5, v%d" % (T0, hG, T0))
    a("  s_lshl_b32 s%d, s%d, 11" % (sT[1], sT[0]))
    a("  s_add_u32 s%d, s%d, %d" % (sT[1], sT[1], HH))
    lr, lo = a.lab("Lr"), a.lab("Lo")
    a("  s_mov_b32 s%d, 0" % sCnt)
    a("%s:" % lr)
    for k in range(4):
        a("  buffer_load_dwordx4 v[%d:%d], v%d, s[%d:%d], s%d offen offset:%d sc1" % (hA + 4 * k, hA + 4 * k + 3, T0, sWs, sWs + 3, sT[1], (k >> 1) * 128 + (k & 1) * 16))
    a("  s_waitcnt vmcnt(0)")
    tag_retry(range(hA, hA + 16), lr, lo, T2, T3, 8)
    a("%s:" % lo)
    a("  s_mov_b64 exec, -1")
    a("  s_mov_b32 s%d, 0x07060302" % sT[2])
    for k in range(8):
        a("  v_perm_b32 v%d, v%d, v%d, s%d" % (hB + k, hA + 2 * k + 1, hA + 2 * k, sT[2]))
    a("  s_nop 1")
    for ct in range(4):
        d = hD + ct * 4
        r = hWd + ct * 8
        a("  v_mfma_f32_16x16x32_bf16 v[%d:%d], v[%d:%d], v[%d:%d], 0" % (d, d + 3, r, r + 3, hB, hB + 3))
        a("  v_mfma_f32_16x16x32_bf16 v[%d:%d], v[%d:%d], v[%d:%d], v[%d:%d]" % (d, d + 3, r + 4, r + 7, hB + 4, hB + 7, d, d + 3))
    a("  v_lshlrev_b32 v%d, 16, v%d" % (T0, hI))
    a("  v_lshl_add_u32 v%d, v%d, 4, v%d" % (T0, hG, T0))
    a("  s_lshl_b32 s%d, s%d, 13" % (sT[1], sX))
    a("  s_lshl_b32 s%d, s%d, 6" % (sT[2], sT[0]))
    a("  s_add_u32 s%d, s%d, s%d" % (sT[1], sT[1], sT[2]))
    a("  s_add_u32 s%d, s%d, %d" % (sT[1], sT[1], DP))
    a("  s_nop 7")
    for i in range(16):
        tag(hD + i)
    a("  s_mov_b64 exec, s[%d:%d]" % (sLo8, sLo8 + 1))
    for ct in range(4):
        a("  buffer_store_dwordx4 v[%d:%d], v%d, s[%d:%d], s%d offen sc1" % (hD + ct * 4, hD + ct * 4 + 3, T0, sWs, sWs + 3, sT[1]))
        if ct < 3:
            a("  s_add_u32 s%d, s%d, 2048" % (sT[1], sT[1]))
    a("  s_mov_b64 exec, -1")
    a("  s_branch L_B1")

    a("L_stats:")
    lds_wait(hMisc, F_ST, 4, T5)
    a("  v_lshl_add_u32 v%d, v%d, 3, v%d" % (T0, hI, hMisc))
    mw, lw = hA, hA + 1
    a("  ds_read_b64 v[%d:%d], v%d offset:%d" % (mw, mw + 1, T0, SSTAT))
    a("  s_waitcnt lgkmcnt(0)")
    Mg, Lg, t_ = hA + 4, hA + 5, hA + 2
    a("  v_mov_b32 v%d, v%d" % (Mg, mw))
    a("  s_nop 1")
    a("  v_max_f32_dpp v%d, v%d, v%d row_ror:4 %s" % (Mg, Mg, Mg, DPP))
    a("  s_nop 1")
    a("  v_max_f32_dpp v%d, v%d, v%d row_ror:8 %s" % (Mg, Mg, Mg, DPP))
    a("  s_mov_b32 s%d, 0x3FB8AA3B" % sT[2])
    a("  v_sub_f32 v%d, v%d, v%d" % (t_, mw, Mg))
    a("  v_mul_f32 v%d, s%d, v%d" % (t_, sT[2], t_))
    a("  v_exp_f32 v%d, v%d" % (t_, t_))
    a("  s_nop 0")
    a("  v_mul_f32 v%d, v%d, v%d" % (Lg, lw, t_))
    a("  s_nop 1")
    a("  v_add_f32_dpp v%d, v%d, v%d row_ror:4 %s" % (Lg, Lg, Lg, DPP))
    a("  s_nop 1")
    a("  v_add_f32_dpp v%d, v%d, v%d row_ror:8 %s" % (Lg, Lg, Lg, DPP))
    a("  s_nop 1")
    a("  v_mov_b32_dpp v%d, v%d row_shl:1 %s bound_ctrl:0" % (Mg + 2, Mg, DPP))
    a("  v_mov_b32_dpp v%d, v%d row_shl:1 %s bound_ctrl:0" % (Mg + 3, Lg, DPP))
    a("  s_lshl_b32 s%d, s%d, 3" % (sT[0], sB))
    a("  s_add_u32 s%d, s%d, s%d" % (sT[0], sT[0], sX))
    a("  s_lshl_b32 s%d, s%d, 7" % (sT[0], sT[0]))
    a("  s_add_u32 s%d, s%d, %d" % (sT[0], sT[0], ST))
    a("  s_lshl_b32 s%d, s%d, 5" % (sT[1], sJ))
    a("  s_add_u32 s%d, s%d, s%d" % (sT[1], sT[1], sT[0]))
    for k in range(4):
        tag(Mg + k)
    a("  v_lshlrev_b32 v%d, 3, v%d" % (T1, hI))
    a("  s_mov_b64 exec, 5")
    a("  buffer_store_dwordx4 v[%d:%d], v%d, s[%d:%d], s%d offen sc1" % (Mg, Mg + 3, T1, sWs, sWs + 3, sT[1]))
    a("  s_mov_b64 exec, -1")
    a("  v_lshrrev_b32 v%d, 1, v%d" % (T1, hI))
    a("  v_lshlrev_b32 v%d, 4, v%d" % (T1, T1))
    mj = hA + 8
    lr, lo = a.lab("Lr"), a.lab("Lo")
    a("  s_mov_b32 s%d, 0" % sCnt)
    a("%s:" % lr)
    a("  buffer_load_dwordx4 v[%d:%d], v%d, s[%d:%d], s%d offen sc1" % (mj, mj + 3, T1, sWs, sWs + 3, sT[0]))
    a("  s_waitcnt vmcnt(0)")
    tag_retry(range(mj, mj + 4), lr, lo, T2, T3, 8)
    a("%s:" % lo)
    a("  s_mov_b64 exec, -1")
    a("  v_and_b32 v%d, 1, v%d" % (T2, hI))
    a("  v_cmp_eq_u32 vcc, 1, v%d" % T2)
    a("  s_nop 1")
    a("  v_cndmask_b32 v%d, v%d, v%d, vcc" % (mj, mj, mj + 2))
    a("  v_cndmask_b32 v%d, v%d, v%d, vcc" % (mj + 1, mj + 1, mj + 3))
    lj = mj + 1
    a("  v_and_b32 v%d, s%d, v%d" % (mj, sNotFF, mj))
    a("  v_and_b32 v%d, s%d, v%d" % (lj, sNotFF, lj))
    M2, L2 = hA + 12, hA + 13
    a("  v_mov_b32 v%d, v%d" % (M2, mj))
    a("  s_nop 1")
    a("  v_max_f32_dpp v%d, v%d, v%d row_ror:4 %s" % (M2, M2, M2, DPP))
    a("  s_nop 1")
    a("  v_max_f32_dpp v%d, v%d, v%d row_ror:8 %s" % (M2, M2, M2, DPP))
    a("  v_sub_f32 v%d, v%d, v%d" % (t_, mj, M2))
    a("  v_mul_f32 v%d, s%d, v%d" % (t_, sT[2], t_))
    a("  v_exp_f32 v%d, v%d" % (t_, t_))
    a("  s_nop 0")
    a("  v_mul_f32 v%d, v%d, v%d" % (L2, lj, t_))
    a("  s_nop 1")
    a("  v_add_f32_dpp v%d, v%d, v%d row_ror:4 %s" % (L2, L2, L2, DPP))
    a("  s_nop 1")
    a("  v_add_f32_dpp v%d, v%d, v%d row_ror:8 %s" % (L2, L2, L2, DPP))
    a("  v_sub_f32 v%d, v%d, v%d" % (t_, mw, M2))
    a("  v_mul_f32 v%d, s%d, v%d" % (t_, sT[2], t_))
    a("  v_exp_f32 v%d, v%d" % (t_, t_))
    a("  v_rcp_f32 v%d, v%d" % (L2, L2))
    a("  s_nop 0")
    a("  v_mul_f32 v%d, v%d, v%d" % (t_, t_, L2))
    a("  v_and_b32 v%d, 3, v%d" % (T0, hI))
    a("  v_lshlrev_b32 v%d, 4, v%d" % (T0, T0))
    a("  v_lshrrev_b32 v%d, 2, v%d" % (T1, hI))
    a("  v_lshl_add_u32 v%d, v%d, 2, v%d" % (T0, T1, T0))
    a("  v_add_u32 v%d, v%d, v%d" % (T0, T0, hMisc))
    a("  s_mov_b64 exec, 0xffff")
    a("  ds_write_b32 v%d, v%d offset:%d" % (T0, t_, FFAC))
    a("  s_mov_b64 exec, -1")
    a("  s_waitcnt lgkmcnt(0)")
    a("  s_branch L_B1")

    def reduce_hd(base, tmp):
        a("  s_nop 1")
        for k in range(4):
            a("  v_add_f32_dpp v%d, v%d, v%d row_ror:4 %s" % (base + k, base + k, base + k, DPP))
        a("  s_nop 1")
        for k in range(4):
            a("  v_add_f32_dpp v%d, v%d, v%d row_ror:8 %s" % (base + k, base + k, base + k, DPP))
        for kind in (16, 32):
            for k in range(4):
                a("  v_mov_b32 v%d, v%d" % (tmp + k, base + k))
            a("  s_nop 1")
            for k in range(4):
                a("  v_permlane%d_swap_b32 v%d, v%d" % (kind, base + k, tmp + k))
            pk("v_pk_add_f32", base, base, tmp)
            pk("v_pk_add_f32", base + 2, base + 2, tmp + 2)

    a("L_fin_prep:")
    a("  buffer_load_dwordx2 v[%d:%d], v%d, s[%d:%d], 0 offen" % (hA + 8, hA + 9, hOutOff, sXd, sXd + 3))
    a("  v_lshlrev_b32 v%d, 4, v0" % T0)
    a("  s_lshl_b32 s%d, s%d, 11" % (sT[0], sFidx))
    a("  s_add_u32 s%d, s%d, %d" % (sT[0], sT[0], DP))
    for k in range(4):
        a("  v_mov_b32 v%d, v%d" % (hA + 4 + k, hTag))
    lr, lo = a.lab("Lr"), a.lab("Lo")
    a("  s_mov_b32 s%d, 0" % sCnt)
    a("%s:" % lr)
    a("  buffer_load_dwordx4 v[%d:%d], v%d, s[%d:%d], s%d offen sc1" % (hA, hA + 3, T0, sWs, sWs + 3, sT[0]))
    a("  s_mov_b64 s[%d:%d], exec" % (sT[4], sT[5]))
    a("  s_and_b32 exec_hi, exec_hi, 0xffff")
    ls = a.lab("Ls")
    a("  s_cbranch_execz %s" % ls)
    a("  buffer_load_dwordx4 v[%d:%d], v%d, s[%d:%d], s%d offen offset:1024 sc1" % (hA + 4, hA + 7, T0, sWs, sWs + 3, sT[0]))
    a("%s:" % ls)
    a("  s_mov_b64 exec, s[%d:%d]" % (sT[4], sT[5]))
    a("  s_waitcnt vmcnt(0)")
    tag_retry(range(hA, hA + 8), lr, lo, T2, T3, 16)
    a("%s:" % lo)
    a("  s_mov_b64 exec, -1")
    pk("v_pk_add_f32", hA, hA, hA + 4)
    pk("v_pk_add_f32", hA + 2, hA + 2, hA + 6)
    reduce_hd(hA, hA + 4)
    hGv = hXf + 4
    for k in range(4):
        round_bf16(hA + k)
    a("  s_mov_b32 s%d, 0xBFB8AA3B" % sT[2])
    for k in range(4):
        a("  v_mul_f32 v%d, s%d, v%d" % (hA + 4 + k, sT[2], hA + k))
    for k in range(4):
        a("  v_exp_f32 v%d, v%d" % (hA + 4 + k, hA + 4 + k))
    a("  s_nop 0")
    for k in range(4):
        a("  v_add_f32 v%d, 1.0, v%d" % (hA + 4 + k, hA + 4 + k))
    for k in range(4):
        a("  v_rcp_f32 v%d, v%d" % (hA + 4 + k, hA + 4 + k))
    a("  s_nop 0")
    for k in range(4):
        a("  v_mul_f32 v%d, v%d, v%d" % (hGv + k, hA + k, hA + 4 + k))
    for k in range(4):
        round_bf16(hGv + k)
    a("  v_lshlrev_b32 v%d, 16, v%d" % (hXf, hA + 8))
    a("  v_and_b32 v%d, s%d, v%d" % (hXf + 1, sHi2, hA + 8))
    a("  v_lshlrev_b32 v%d, 16, v%d" % (hXf + 2, hA + 9))
    a("  v_and_b32 v%d, s%d, v%d" % (hXf + 3, sHi2, hA + 9))
    stamp("prep done")

    a("L_B1:")
    a("  v_lshlrev_b32 v%d, 7, v%d" % (T0, hI))
    a("  v_lshl_add_u32 v%d, v%d, 5, v%d" % (T0, hG, T0))
    a("  s_lshl_b32 s%d, s%d, 14" % (sT[0], sHq))
    a("  s_lshl_b32 s%d, s%d, 11" % (sT[1], sHW))
    a("  s_add_u32 s%d, s%d, s%d" % (sT[0], sT[0], sT[1]))
    a("  s_add_u32 s%d, s%d, %d" % (sT[0], sT[0], OP))
    a("  s_add_u32 s%d, s%d, 8192" % (sT[1], sT[0]))
    a("  v_lshlrev_b32 v%d, 8, v%d" % (T1, hG))
    a("  v_lshl_add_u32 v%d, v%d, 2, v%d" % (T1, hI, T1))
    a("  s_lshl_b32 s%d, s%d, 11" % (sT[2], sHW))
    a("  s_add_u32 s%d, s%d, %d" % (sT[2], sT[2], WOS))
    a("  v_add_u32 v%d, s%d, v%d" % (T1, sT[2], T1))
    a("  s_barrier                      ; B1")
    stamp("B1")
    lw0, lw1 = a.lab("Lew"), a.lab("Lew")
    a("  s_cmp_lg_u32 s%d, 0" % sHW)
    a("  s_cbranch_scc1 %s" % lw0)
    a("  v_lshlrev_b32 v%d, 4, v0" % T4)
    a("  v_mov_b32 v%d, v%d" % (T5, T4))
    a("  s_lshl_b32 s%d, s%d, 9" % (sT[2], sX))
    a("  s_add_u32 s%d, s%d, %d" % (sT[2], sT[2], EW))
    lr, lo = a.lab("Lr"), a.lab("Lo")
    a("  s_mov_b32 s%d, 0" % sCnt)
    a("  s_mov_b32 exec_hi, 0")
    a("%s:" % lr)
    a("  buffer_load_dwordx4 v[%d:%d], v%d, s[%d:%d], s%d offen sc1" % (hA, hA + 3, T5, sWs, sWs + 3, sT[2]))
    a("  s_waitcnt vmcnt(0)")
    tag_retry(range(hA, hA + 4), lr, lo, T2, T3, 2)
    a("%s:" % lo)
    a("  s_mov_b64 exec, -1")
    lds_add(hMisc, F_EW, hOne)
    a("  s_branch %s" % lw1)
    a("%s:" % lw0)
    lds_wait(hMisc, F_EW, 1, T5)
    a("%s:" % lw1)
    stamp("EW ok")
    lr, lo = a.lab("Lr"), a.lab("Lo")
    a("  s_mov_b32 s%d, 0" % sCnt)
    a("%s:" % lr)
    for rt in range(2):
        a("  buffer_load_dwordx4 v[%d:%d], v%d, s[%d:%d], s%d offen sc1" % (hA + 8 * rt, hA + 8 * rt + 3, T0, sWs, sWs + 3, sT[rt]))
        a("  buffer_load_dwordx4 v[%d:%d], v%d, s[%d:%d], s%d offen offset:16 sc1" % (hA + 8 * rt + 4, hA + 8 * rt + 7, T0, sWs, sWs + 3, sT[rt]))
    a("  s_waitcnt vmcnt(0)")
    tag_retry(range(hA, hA + 16), lr, lo, T2, T3, hop_sleep)
    a("%s:" % lo)
    a("  s_mov_b64 exec, -1")
    stamp("hop1 ok")
    for k in range(8):
        a("  v_cvt_pk_bf16_f32 v%d, v%d, v%d" % (hB + k, hA + 2 * k, hA + 2 * k + 1))
    a("  s_nop 1")
    for rt in range(2):
        for ct in range(4):
            d = hD + (rt * 4 + ct) * 4
            a("  v_mfma_f32_16x16x32_bf16 v[%d:%d], v[%d:%d], v[%d:%d], 0" % (d, d + 3, hB + 4 * rt, hB + 4 * rt + 3, hW + ct * 4, hW + ct * 4 + 3))
    a("  s_nop 0")
    for n in range(8):
        d = hD + n * 4
        pk("v_pk_add_f32", d, d, d + 2)
        a("  v_add_f32 v%d, v%d, v%d" % (d, d, d + 1))
    for rt in range(2):
        for ct in range(4):
            d = hD + (rt * 4 + ct) * 4
            a("  ds_write_b32 v%d, v%d offset:%d" % (T1, d, rt * 1024 + ct * 64))
    a("  s_waitcnt lgkmcnt(0)")
    lds_add(hMisc, F_HOP1, hOne)
    a("  s_cmp_eq_u32 s%d, 0" % sHW)
    a("  s_cbranch_scc1 L_hop2")
    a("  s_cmp_eq_u32 s%d, 1" % sHW)
    a("  s_cbranch_scc1 L_H_done")
    a("  s_sub_u32 s%d, s%d, 2" % (sT[0], sHW))
    a("  s_lshl_b32 s%d, s%d, 10" % (sT[1], sT[0]))
    a("  s_add_u32 s%d, s%d, %d" % (sT[1], sT[1], WOS))
    a("  v_lshlrev_b32 v%d, 8, v%d" % (T0, hG))
    a("  v_lshl_add_u32 v%d, v%d, 4, v%d      ; g*256 + i*16" % (T0, hI, T0))
    a("  v_add_u32 v%d, s%d, v%d" % (T0, sT[1], T0))
    a("  v_lshlrev_b32 v%d, 16, v%d" % (T1, hG))
    a("  v_lshrrev_b32 v%d, 3, v%d" % (T2, hI))
    a("  v_lshl_add_u32 v%d, v%d, 12, v%d" % (T1, T2, T1))
    a("  v_and_b32 v%d, 7, v%d" % (T2, hI))
    a("  v_lshl_add_u32 v%d, v%d, 4, v%d" % (T1, T2, T1))
    a("  s_lshl_b32 s%d, s%d, 18" % (sT[0], sT[0]))
    a("  s_lshl_b32 s%d, s%d, 13" % (sT[1], sB))
    a("  s_add_u32 s%d, s%d, s%d" % (sT[0], sT[0], sT[1]))
    a("  s_lshl_b32 s%d, s%d, 7" % (sT[1], sHq))
    a("  s_add_u32 s%d, s%d, s%d" % (sT[0], sT[0], sT[1]))
    a("  s_add_u32 s%d, s%d, %d" % (sT[0], sT[0], SP))
    lds_wait(hMisc, F_HOP1, 4, T5)
    for w in range(4):
        a("  ds_read_b128 v[%d:%d], v%d offset:%d" % (hA + 4 * w, hA + 4 * w + 3, T0, w * 2048))
    a("  s_waitcnt lgkmcnt(0)")
    for k in (0, 2):
        pk("v_pk_add_f32", hA + k, hA + k, hA + 4 + k)
        pk("v_pk_add_f32", hA + 8 + k, hA + 8 + k, hA + 12 + k)
    for k in (0, 2):
        pk("v_pk_add_f32", hA + k, hA + k, hA + 8 + k)
    for k in range(4):
        tag(hA + k)
    a("  buffer_store_dwordx4 v[%d:%d], v%d, s[%d:%d], s%d offen sc1" % (hA, hA + 3, T1, sWs, sWs + 3, sT[0]))
    a("  s_waitcnt vmcnt(0)")
    a("  s_branch L_H_done")

    a("L_hop2:")
    a("  v_lshrrev_b32 v%d, 2, v0" % T0)
    a("  v_lshlrev_b32 v%d, 7, v%d" % (T0, T0))
    a("  v_and_b32 v%d, 3, v0" % T1)
    a("  v_lshl_add_u32 v%d, v%d, 4, v%d" % (T0, T1, T0))
    a("  s_lshr_b32 s%d, s%d, 1" % (sT[0], sFidx))
    a("  s_lshl_b32 s%d, s%d, 12" % (sT[0], sT[0]))
    a("  s_and_b32 s%d, s%d, 1" % (sT[1], sFidx))
    a("  s_lshl_b32 s%d, s%d, 6" % (sT[1], sT[1]))
    a("  s_add_u32 s%d, s%d, s%d" % (sT[0], sT[0], sT[1]))
    a("  s_add_u32 s%d, s%d, %d" % (sT[0], sT[0], SP))
    lr, lo = a.lab("Lr"), a.lab("Lo")
    a("  s_mov_b32 s%d, 0" % sCnt)
    a("%s:" % lr)
    a("  buffer_load_dwordx4 v[%d:%d], v%d, s[%d:%d], s%d offen sc1" % (hA, hA + 3, T0, sWs, sWs + 3, sT[0]))
    a("  buffer_load_dwordx4 v[%d:%d], v%d, s[%d:%d], s%d offen offset:2048 sc1" % (hA + 4, hA + 7, T0, sWs, sWs + 3, sT[0]))
    a("  s_waitcnt vmcnt(0)")
    tag_retry(range(hA, hA + 8), lr, lo, T2, T3, hop_sleep)
    a("%s:" % lo)
    a("  s_mov_b64 exec, -1")
    stamp("hop2 ok")
    pk("v_pk_add_f32", hA, hA, hA + 4)
    pk("v_pk_add_f32", hA + 2, hA + 2, hA + 6)
    reduce_hd(hA, hA + 4)
    for k in range(4):
        round_bf16(hA + k)
    for k in range(4):
        a("  v_mul_f32 v%d, v%d, v%d" % (hA + k, hA + k, hGv + k))
    for k in range(4):
        round_bf16(hA + k)
    for k in range(4):
        a("  v_add_f32 v%d, v%d, v%d" % (hA + k, hA + k, hXf + k))
    a("  v_cvt_pk_bf16_f32 v%d, v%d, v%d" % (hA, hA, hA + 1))
    a("  v_cvt_pk_bf16_f32 v%d, v%d, v%d" % (hA + 1, hA + 2, hA + 3))
    a("  s_mov_b64 exec, 15")
    a("  buffer_store_dwordx2 v[%d:%d], v%d, s[%d:%d], 0 offen" % (hA, hA + 1, hOutOff, sOut, sOut + 3))
    a("  s_mov_b64 exec, -1")
    le = a.lab("Le")
    a("  s_cmp_lg_u32 s2, 0")
    a("  s_cbranch_scc1 %s" % le)
    a("  s_add_u32 s%d, s%d, 1" % (sT[0], sEp))
    a("  v_mov_b32 v%d, s%d" % (hA + 2, sT[0]))
    a("  v_mov_b32 v%d, %d" % (T0, EPOCH))
    a("  s_mov_b64 exec, 1")
    a("  buffer_store_dword v%d, v%d, s[%d:%d], 0 offen sc1" % (hA + 2, T0, sWs, sWs + 3))
    a("  s_mov_b64 exec, -1")
    a("%s:" % le)
    stamp("end")
    if dbgtime:
        a("  s_memrealtime s[98:99]")
        a("  s_load_dwordx2 s[92:93], s[0:1], 80")
        a("  s_waitcnt lgkmcnt(0)")
        a("  s_mov_b32 s94, 256")
        a("  s_mov_b32 s95, 0x20000")
        a("  s_not_b32 s100, s100")
        a("  v_mov_b32 v%d, s100" % hA)
        a("  v_mov_b32 v%d, s98" % (hA + 1))
        a("  v_mov_b32 v%d, 0" % T0)
        a("  s_mov_b64 exec, 1")
        a("  buffer_atomic_umax v%d, v%d, s[92:95], 0 offen sc1" % (hA, T0))
        a("  buffer_atomic_umax v%d, v%d, s[92:95], 0 offen offset:4 sc1" % (hA + 1, T0))
        a("  s_mov_b64 exec, -1")
    if ts:
        a("  s_waitcnt lgkmcnt(0)")
        a("  s_lshl_b32 s%d, s2, 8" % sT[0])
        a("  s_add_u32 s%d, s%d, %d" % (sT[0], sT[0], TSOFF + 0x10000))
        a("  v_mov_b32 v%d, 0" % T2)
        a("  s_mov_b64 exec, 1")
        for i in range(len(names["H"])):
            a("  v_mov_b32 v%d, s%d" % (hA, TS0 + 2 * i))
            a("  v_mov_b32 v%d, s%d" % (hA + 1, TS0 + 2 * i + 1))
            a("  buffer_store_dwordx2 v[%d:%d], v%d, s[%d:%d], s%d offen offset:%d" % (hA, hA + 1, T2, sWs, sWs + 3, sT[0], 8 * i))
            a("  s_waitcnt vmcnt(0)")
        a("  s_mov_b64 exec, -1")
    a("  s_waitcnt vmcnt(0)")
    a("L_H_done:")
    a("L_end:")
    a("  s_endpgm")

    body = a.text()
    s = HEADER
    s += "; @launch grid=(256,1,1) block=(512,1,1) lds=%d\n" % LDS_TOTAL
    s += '.amdgcn_target "amdgcn-amd-amdhsa--gfx950"\n.text\n'
    s += ".globl %s\n.p2align 8\n.type %s,@function\n%s:\n" % (KNAME, KNAME, KNAME)
    s += body
    s += """
.section .rodata,"a"
.p2align 6
.amdhsa_kernel %s
  .amdhsa_next_free_vgpr %d
  .amdhsa_next_free_sgpr 102
  .amdhsa_accum_offset %d
  .amdhsa_group_segment_fixed_size 0
  .amdhsa_kernarg_size 96
  .amdhsa_user_sgpr_count 2
  .amdhsa_user_sgpr_kernarg_segment_ptr 1
  .amdhsa_system_sgpr_workgroup_id_x 1
.end_amdhsa_kernel
""" % (KNAME, NV, NV)
    gen.names = names
    return s


if __name__ == "__main__":
    kw = {}
    out = "main.s"
    for arg in sys.argv[1:]:
        if "=" in arg:
            k, v = arg.split("=")
            kw[k] = int(v)
        else:
            out = arg
    open(out, "w").write(gen(**kw))
    import json
    json.dump(gen.names, open(out[:-2] + ".names.json", "w"))
    print("wrote", out)
```

```python
import sys
from asmlib import HEADER, KNAME

QP = 0x000000
GP = 0x080000
HH = 0x0F0000
OP = 0x100000
ST = 0x180000
DP = 0x190000
SP = 0x210000
EPOCH = 0x0FF000
EW = 0x2A0000
TSOFF = 0x0F000000

RING = 32768
MISC = 131072
XN = MISC
XN_STRIDE = 1040
QL = MISC + 8448
QL_STRIDE = 272
WOS = QL + 1088
WOS = (WOS + 255) // 256 * 256
FLG = WOS + 16384
F_H1 = 0; F_H3 = 8; F_QRDY = 16; F_STG = 20; F_ST = 24; F_HOP1 = 32; F_EW = 36; F_RED = 40; F_DOWN = 44; F_LATE = 48; F_EWS = 52; F_LOC = 56; F_MID = 60
SSTAT = 64
FFAC = 192
SPARE = FLG + 256
LDS_TOTAL = SPARE + 4096
assert LDS_TOTAL <= 163840, LDS_TOTAL
SPIN_LIMIT = 200000


class Asm:
    def __init__(self):
        self.lines = []
        self.nlab = 0

    def __call__(self, s=""):
        for l in s.split("\n"):
            self.lines.append(l)

    def lab(self, base="L"):
        self.nlab += 1
        return "%s_%d" % (base, self.nlab)

    def text(self):
        return "\n".join(self.lines) + "\n"


def vr(base, n=1):
    return "v%d" % base if n == 1 else "v[%d:%d]" % (base, base + n - 1)


def sr(base, n=1):
    return "s%d" % base if n == 1 else "s[%d:%d]" % (base, base + n - 1)


DPP = "row_mask:0xf bank_mask:0xf"


def gen(ts=False, dbg=0, rotmode=0, depth=6, noq=0, noffn=0, hop_sleep=2, ew_it=3, dbgtime=0, noh=0, ffn_sleep=24, skip=0, st_sleep=4, late_it=1, uselocal=1, mid_it=2):
    a = Asm()
    sW, sX, sLi, sCnt = 3, 4, 5, 6
    sT = [20, 21, 22, 23, 24, 25, 26, 27]
    TS0 = 68
    nts = [0]

    names = {"S": ["start"], "H": ["start"]}
    role = ["S"]

    def stamp(name):
        if name == 0:
            if ts:
                a("  s_memrealtime s[%d:%d]" % (TS0, TS0 + 1))
            return
        lst = names[role[0]]
        if name not in lst:
            lst.append(name)
        idx = lst.index(name)
        assert TS0 + 2 * idx + 1 <= 101
        if ts:
            a("  s_memrealtime s[%d:%d]" % (TS0 + 2 * idx, TS0 + 2 * idx + 1))

    def lds_wait(vbase, off, n, vtmp, sleep=1):
        l0, l1 = a.lab("Lw"), a.lab("Lwd")
        a("  s_mov_b32 s%d, 0" % sCnt)
        a("%s:" % l0)
        a("  ds_read_b32 v%d, v%d offset:%d" % (vtmp, vbase, off))
        a("  s_waitcnt lgkmcnt(0)")
        a("  v_readfirstlane_b32 s%d, v%d" % (sT[7], vtmp))
        a("  s_cmp_ge_u32 s%d, %d" % (sT[7], n))
        a("  s_cbranch_scc1 %s" % l1)
        a("  s_add_u32 s%d, s%d, 1" % (sCnt, sCnt))
        a("  s_cmp_lt_u32 s%d, %d" % (sCnt, SPIN_LIMIT))
        a("  s_cbranch_scc0 %s" % l1)
        a("  s_sleep %d" % sleep)
        a("  s_branch %s" % l0)
        a("%s:" % l1)

    def lds_add(vbase, off, vone):
        a("  s_mov_b64 exec, 1")
        a("  ds_add_u32 v%d, v%d offset:%d" % (vbase, vone, off))
        a("  s_mov_b64 exec, -1")

    def store_loc(stores, sflag):
        l0, l1 = a.lab("Lsl"), a.lab("Lsl")
        a("  s_cmp_eq_u32 s%d, 0" % sflag)
        a("  s_cbranch_scc1 %s" % l0)
        for st in stores:
            a(st)
        a("  s_branch %s" % l1)
        a("%s:" % l0)
        for st in stores:
            a(st + " sc1")
        a("%s:" % l1)

    def reduce_swap(op, v, t, kind):
        a("  v_mov_b32 v%d, v%d" % (t, v))
        a("  s_nop 1")
        a("  v_permlane%d_swap_b32 v%d, v%d" % (kind, v, t))
        a("  %s v%d, v%d, v%d" % (op, v, v, t))

    a("  s_cmp_ge_u32 s2, 256")
    a("  s_cbranch_scc1 L_end")
    stamp(0)
    if dbgtime:
        a("  s_memrealtime s[100:101]")
    a("  v_lshrrev_b32 v1, 6, v0")
    a("  v_and_b32 v0, 63, v0            ; lane")
    a("  v_readfirstlane_b32 s%d, v1     ; wave id" % sW)
    a("  s_and_b32 s%d, s2, 7" % sX)
    a("  s_lshr_b32 s%d, s2, 3" % sLi)
    a("  s_cmp_ge_u32 s%d, 4" % sW)
    a("  s_cbranch_scc1 L_H")

    sK, sV, sCur = 8, 12, 16
    sBaseW, sRot, sRing, sIss, sOff, sIt = 28, 29, 30, 31, 32, 33
    sM = 34
    sScale, sHi = 42, 43
    vLane = 0
    vMisc, vOne = 2, 3
    vKo, vVo, vCo = 4, 8, 12
    vKa = 16
    vVa = 20
    vTmp = 28
    vSp = 36
    vPf = 44
    vAcc = 52
    vE = 56
    vSt = 72
    vO = 104
    vQ = 136
    NV = 200

    a("  s_load_dwordx2 s[%d:%d], s[0:1], 8" % (sK, sK + 1))
    a("  s_load_dwordx2 s[%d:%d], s[0:1], 16" % (sV, sV + 1))
    sWsS = 44
    a("  s_load_dwordx2 s[%d:%d], s[0:1], 88" % (sWsS, sWsS + 1))
    a("  s_mov_b32 s%d, 0x10000000" % (sWsS + 2))
    a("  s_mov_b32 s%d, 0x20000" % (sWsS + 3))
    sEp = 48
    a("  s_mov_b32 s%d, 0x4000000" % (sK + 2))
    a("  s_mov_b32 s%d, 0x20000" % (sK + 3))
    a("  s_mov_b32 s%d, 0x4000000" % (sV + 2))
    a("  s_mov_b32 s%d, 0x20000" % (sV + 3))
    a("  s_lshr_b32 s%d, s%d, 2" % (sT[0], sLi))
    a("  s_lshl_b32 s%d, s%d, 3" % (sT[0], sT[0]))
    a("  s_add_u32 s%d, s%d, s%d" % (sT[0], sT[0], sX))
    a("  s_lshl_b32 s%d, s%d, 20" % (sT[0], sT[0]))
    a("  s_and_b32 s%d, s%d, 3" % (sT[1], sLi))
    a("  s_lshl_b32 s%d, s%d, 18" % (sT[1], sT[1]))
    a("  s_add_u32 s%d, s%d, s%d" % (sT[0], sT[0], sT[1]))
    a("  s_lshl_b32 s%d, s%d, 13" % (sT[1], sW))
    a("  s_add_u32 s%d, s%d, s%d" % (sBaseW, sT[0], sT[1]))
    if rotmode == 0:
        a("  s_mov_b32 s%d, s2" % sRot)
    elif rotmode == 1:
        a("  s_add_u32 s%d, s2, s%d" % (sRot, sLi))
    else:
        a("  s_mov_b32 s%d, 0" % sRot)
    a("  s_lshl_b32 s%d, s%d, 15" % (sRing, sW))
    a("  s_mov_b32 s%d, 0" % sIss)
    t0, t1, t2 = vTmp, vTmp + 1, vTmp + 2
    a("  v_lshrrev_b32 v%d, 4, v%d      ; g = l>>4" % (t0, vLane))
    a("  v_and_b32 v%d, 15, v%d         ; c' = l&15" % (t1, vLane))
    for i in range(4):
        a("  v_add_u32 v%d, %d, v%d" % (t2, 4 * i, t0))
        a("  v_xor_b32 v%d, v%d, v%d" % (t2, t2, t1))
        a("  v_lshlrev_b32 v%d, 4, v%d" % (t2, t2))
        a("  v_lshl_add_u32 v%d, v%d, 8, v%d" % (vKo + i, t0, t2))
    for i in range(2):
        a("  v_add_u32 v%d, %d, v%d" % (t2, 4 * i, t0))
        a("  v_lshlrev_b32 v%d, 1, v%d" % (t2, t2))
        a("  v_xor_b32 v%d, v%d, v%d" % (t2, t2, t1))
        a("  v_lshlrev_b32 v%d, 4, v%d" % (t2, t2))
        a("  v_lshl_add_u32 v%d, v%d, 8, v%d" % (vVo + i, t0, t2))
    for i in range(4):
        a("  v_mov_b32 v%d, v%d" % (vCo + i, vKo + i))
    a("  v_mov_b32 v%d, %d" % (vMisc, FLG))
    a("  v_mov_b32 v%d, 1" % vOne)
    a("  s_waitcnt lgkmcnt(0)")
    a("  s_load_dword s%d, s[%d:%d], 0x%x" % (sEp, sWsS, sWsS + 1, EPOCH))
    for i in range(4):
        a("  s_mov_b32 s%d, s%d" % (sCur + i, sK + i))
    a("  s_barrier                      ; B0")

    def issue_unit(switch=False):
        if switch:
            lsw = a.lab("Lsw")
            a("  s_cmp_lg_u32 s%d, 8" % sIss)
            a("  s_cbranch_scc1 %s" % lsw)
            for i in range(4):
                a("  s_mov_b32 s%d, s%d" % (sCur + i, sV + i))
            for i in range(4):
                a("  v_mov_b32 v%d, v%d" % (vCo + i, vVo + (i & 1)))
            a("%s:" % lsw)
        a("  s_add_u32 s%d, s%d, s%d" % (sT[0], sIss, sRot))
        a("  s_and_b32 s%d, s%d, 7" % (sT[0], sT[0]))
        a("  s_lshl_b32 s%d, s%d, 15" % (sT[0], sT[0]))
        a("  s_add_u32 s%d, s%d, s%d" % (sOff, sT[0], sBaseW))
        a("  s_and_b32 s%d, s%d, 3" % (sT[0], sIss))
        a("  s_lshl_b32 s%d, s%d, 13" % (sT[0], sT[0]))
        a("  s_add_u32 m0, s%d, s%d" % (sT[0], sRing))
        a("  s_add_u32 s%d, s%d, 1" % (sIss, sIss))
        a("  s_waitcnt vmcnt(%d)" % (depth - 1))
        for i in range(4):
            a("  buffer_load_dwordx4 v%d, s[%d:%d], s%d offen offset:%d nt lds" % (vCo + i, sCur, sCur + 3, sOff, i * 1024))
            if i < 3:
                a("  s_waitcnt vmcnt(%d)" % (depth - 1))
        a("  s_add_u32 m0, m0, 4096")
        a("  s_add_u32 s%d, s%d, 4096" % (sOff, sOff))
        a("  s_waitcnt vmcnt(%d)" % (depth - 1))
        for i in range(4):
            a("  buffer_load_dwordx4 v%d, s[%d:%d], s%d offen offset:%d nt lds" % (vCo + i, sCur, sCur + 3, sOff, i * 1024))
            if i < 3:
                a("  s_waitcnt vmcnt(%d)" % (depth - 1))

    a("L_fill:")
    a("  s_cmp_lg_u32 s%d, 3" % sIss)
    a("  s_cbranch_scc1 L_fill_go")
    stamp("u2 issued")
    lds_wait(vMisc, F_STG, 4, vTmp + 5)
    stamp("STG ok")
    a("L_fill_go:")
    issue_unit()
    a("  s_cmp_lt_u32 s%d, 4" % sIss)
    a("  s_cbranch_scc1 L_fill")
    for s in range(4):
        a("  v_add_u32 v%d, %d, v%d" % (t2, 4 * s, t0))
        a("  v_xor_b32 v%d, v%d, v%d" % (t2, t2, t1))
        a("  v_lshlrev_b32 v%d, 4, v%d" % (t2, t2))
        a("  v_lshl_add_u32 v%d, v%d, 8, v%d" % (t2, t1, t2))
        a("  v_add_u32 v%d, s%d, v%d" % (vKa + s, sRing, t2))
    t3, t4 = vTmp + 3, vTmp + 4
    a("  v_lshrrev_b32 v%d, 2, v%d" % (t2, t1))
    a("  v_lshl_add_u32 v%d, v%d, 2, v%d    ; row" % (t2, t0, t2))
    a("  v_and_b32 v%d, 7, v%d              ; row&7" % (t3, t2))
    a("  v_lshlrev_b32 v%d, 8, v%d" % (t2, t2))
    a("  v_and_b32 v%d, 3, v%d" % (t4, t1))
    a("  v_lshl_add_u32 v%d, v%d, 3, v%d" % (t2, t4, t2))
    a("  v_add_u32 v%d, s%d, v%d" % (t2, sRing, t2))
    for dt in range(8):
        a("  v_xor_b32 v%d, %d, v%d" % (t4, dt, t3))
        a("  v_lshl_add_u32 v%d, v%d, 5, v%d" % (vVa + dt, t4, t2))
    for i in range(64):
        a("  v_mov_b32 v%d, 0" % (vQ + i))
    a("  v_bfe_u32 v%d, v%d, 2, 2" % (t2, vLane))
    for t in range(4):
        a("  v_cmp_eq_u32 s[%d:%d], %d, v%d" % (sM + 2 * t, sM + 2 * t + 1, t, t2))
    a("  v_and_b32 v%d, 3, v%d" % (t2, vLane))
    a("  v_mul_u32_u24 v%d, %d, v%d" % (t2, QL_STRIDE, t2))
    a("  v_lshl_add_u32 v%d, v%d, 4, v%d" % (t2, t0, t2))
    a("  v_add_u32 v%d, %d, v%d" % (t2, QL, t2))
    a("  s_mov_b32 s%d, 0x3DB504F3      ; 128^-0.5" % sScale)
    a("  s_mov_b32 s%d, 0xffff0000" % sHi)
    stamp("fill done")
    if not noq:
        lds_wait(vMisc, F_QRDY, 4, vTmp + 5)
    stamp("Q ready")
    for t in range(4):
        a("  s_mov_b64 exec, s[%d:%d]" % (sM + 2 * t, sM + 2 * t + 1))
        for s in range(4):
            r = vQ + (t * 4 + s) * 4
            a("  ds_read_b128 v[%d:%d], v%d offset:%d" % (r, r + 3, t2, 64 * s))
    a("  s_mov_b64 exec, -1")
    a("  s_mov_b32 s%d, 0" % sIt)
    a("  s_waitcnt vmcnt(0) lgkmcnt(0)")

    a("L_k:")
    lmid = a.lab("Lmid")
    a("  s_cmp_lg_u32 s%d, 0" % sW)
    a("  s_cbranch_scc1 %s" % lmid)
    a("  s_cmp_lg_u32 s%d, %d" % (sIt, mid_it))
    a("  s_cbranch_scc1 %s" % lmid)
    lds_add(vMisc, F_MID, vOne)
    a("%s:" % lmid)
    for u in range(2):
        if u == 0:
            lsk = a.lab("Lsk")
            a("  s_cmp_lt_u32 s%d, 3" % sIt)
            a("  s_cbranch_scc1 %s" % lsk)
            issue_unit()
            a("%s:" % lsk)
        else:
            issue_unit(switch=True)
        for hf in range(2):
            for s_ in range(4):
                r = vSt + (hf * 4 + s_) * 4
                a("  ds_read_b128 v[%d:%d], v%d offset:%d" % (r, r + 3, vKa + s_, u * 8192 + hf * 4096))
        for hf in range(2):
            a("  s_waitcnt lgkmcnt(%d)" % (4 if hf == 0 else 0))
            t = 2 * u + hf
            for s_ in range(4):
                r = vSt + (hf * 4 + s_) * 4
                q = vQ + (t * 4 + s_) * 4
                c = "0" if (u == 0 and hf == 0 and s_ == 0) else "v[%d:%d]" % (vAcc, vAcc + 3)
                a("  v_mfma_f32_16x16x32_bf16 v[%d:%d], v[%d:%d], v[%d:%d], %s" % (vAcc, vAcc + 3, r, r + 3, q, q + 3, c))
    for i in range(6):
        a("  v_mov_b32 v%d, v%d" % (vSp + i, vSp + i + 2))
    for s in range(4):
        a("  v_xor_b32 v%d, 0x4000, v%d" % (vKa + s, vKa + s))
    c0, c1 = vTmp, vTmp + 1
    e0 = vTmp + 2
    a("  v_cvt_pk_bf16_f32 v%d, v%d, v%d" % (c0, vAcc, vAcc + 1))
    a("  v_cvt_pk_bf16_f32 v%d, v%d, v%d" % (c1, vAcc + 2, vAcc + 3))
    a("  v_lshlrev_b32 v%d, 16, v%d" % (e0, c0))
    a("  v_and_b32 v%d, s%d, v%d" % (e0 + 1, sHi, c0))
    a("  v_lshlrev_b32 v%d, 16, v%d" % (e0 + 2, c1))
    a("  v_and_b32 v%d, s%d, v%d" % (e0 + 3, sHi, c1))
    for i in range(4):
        a("  v_mul_f32 v%d, s%d, v%d" % (e0 + i, sScale, e0 + i))
    a("  v_cvt_pk_bf16_f32 v%d, v%d, v%d" % (vSp + 6, e0, e0 + 1))
    a("  v_cvt_pk_bf16_f32 v%d, v%d, v%d" % (vSp + 7, e0 + 2, e0 + 3))
    a("  s_add_u32 s%d, s%d, 1" % (sIt, sIt))
    a("  s_cmp_lt_u32 s%d, 4" % sIt)
    a("  s_cbranch_scc1 L_k")
    stamp("K done")

    for i in range(8):
        a("  v_lshlrev_b32 v%d, 16, v%d" % (vE + 2 * i, vSp + i))
        a("  v_and_b32 v%d, s%d, v%d" % (vE + 2 * i + 1, sHi, vSp + i))
    vM, vL, vX = vTmp, vTmp + 1, vTmp + 2
    a("  v_max3_f32 v%d, v%d, v%d, v%d" % (vM, vE, vE + 1, vE + 2))
    for i in range(3, 15, 2):
        a("  v_max3_f32 v%d, v%d, v%d, v%d" % (vM, vM, vE + i, vE + i + 1))
    a("  v_max_f32 v%d, v%d, v%d" % (vM, vM, vE + 15))
    a("  s_nop 1")
    a("  v_max_f32_dpp v%d, v%d, v%d row_ror:4 %s" % (vM, vM, vM, DPP))
    a("  s_nop 1")
    a("  v_max_f32_dpp v%d, v%d, v%d row_ror:8 %s" % (vM, vM, vM, DPP))
    reduce_swap("v_max_f32", vM, vX, 16)
    reduce_swap("v_max_f32", vM, vX, 32)
    a("  s_mov_b32 s%d, 0x3FB8AA3B      ; log2(e)" % sT[0])
    a("  v_mul_f32 v%d, s%d, v%d" % (vX, sT[0], vM))
    for i in range(16):
        a("  v_fma_f32 v%d, v%d, s%d, -v%d" % (vE + i, vE + i, sT[0], vX))
    for i in range(16):
        a("  v_exp_f32 v%d, v%d" % (vE + i, vE + i))
    a("  s_nop 0")
    for i in range(8):
        a("  v_cvt_pk_bf16_f32 v%d, v%d, v%d" % (vSp + i, vE + 2 * i, vE + 2 * i + 1))
    for i in range(4):
        a("  v_pk_add_f32 v[%d:%d], v[%d:%d], v[%d:%d]" % (vE + 2 * i, vE + 2 * i + 1, vE + 2 * i, vE + 2 * i + 1, vE + 8 + 2 * i, vE + 9 + 2 * i))
    for i in range(2):
        a("  v_pk_add_f32 v[%d:%d], v[%d:%d], v[%d:%d]" % (vE + 2 * i, vE + 2 * i + 1, vE + 2 * i, vE + 2 * i + 1, vE + 4 + 2 * i, vE + 5 + 2 * i))
    a("  v_pk_add_f32 v[%d:%d], v[%d:%d], v[%d:%d]" % (vE, vE + 1, vE, vE + 1, vE + 2, vE + 3))
    a("  v_add_f32 v%d, v%d, v%d" % (vL, vE, vE + 1))
    a("  s_nop 1")
    a("  v_add_f32_dpp v%d, v%d, v%d row_ror:4 %s" % (vL, vL, vL, DPP))
    a("  s_nop 1")
    a("  v_add_f32_dpp v%d, v%d, v%d row_ror:8 %s" % (vL, vL, vL, DPP))
    reduce_swap("v_add_f32", vL, vX, 16)
    reduce_swap("v_add_f32", vL, vX, 32)
    a("  s_lshl_b32 s%d, s%d, 5" % (sT[0], sW))
    a("  v_lshlrev_b32 v%d, 3, v%d" % (vX, vLane))
    a("  v_add_u32 v%d, s%d, v%d" % (vX, sT[0], vX))
    a("  v_add_u32 v%d, v%d, v%d" % (vX, vMisc, vX))
    a("  s_mov_b64 exec, 15")
    a("  ds_write_b64 v%d, v[%d:%d] offset:%d" % (vX, vM, vM + 1, SSTAT))
    a("  s_waitcnt lgkmcnt(0)")
    a("  s_mov_b64 exec, -1")
    lds_add(vMisc, F_ST, vOne)

    for i in range(32):
        a("  v_mov_b32 v%d, 0" % (vO + i))
    a("  s_mov_b32 s%d, 0" % sIt)
    a("L_v:")
    a("  v_mov_b32 v%d, v%d" % (vPf, vSp))
    a("  v_mov_b32 v%d, v%d" % (vPf + 1, vSp + 1))
    for k, sh in ((2, 4), (4, 8), (6, 12)):
        a("  v_mov_b32_dpp v%d, v%d row_shl:%d %s bound_ctrl:0" % (vPf + k, vSp, sh, DPP))
        a("  v_mov_b32_dpp v%d, v%d row_shl:%d %s bound_ctrl:0" % (vPf + k + 1, vSp + 1, sh, DPP))
    for i in range(6):
        a("  v_mov_b32 v%d, v%d" % (vSp + i, vSp + i + 2))
    lew = a.lab("Lew")
    a("  s_cmp_lg_u32 s%d, 0" % sW)
    a("  s_cbranch_scc1 %s" % lew)
    lew2 = a.lab("Lew")
    a("  s_cmp_lg_u32 s%d, %d" % (sIt, late_it))
    a("  s_cbranch_scc1 %s" % lew2)
    lds_add(vMisc, F_LATE, vOne)
    a("%s:" % lew2)
    a("  s_cmp_lg_u32 s%d, %d" % (sIt, ew_it))
    a("  s_cbranch_scc1 %s" % lew)
    lds_add(vMisc, F_EWS, vOne)
    a("%s:" % lew)
    for u in range(2):
        if u == 0:
            issue_unit()
        else:
            lv_else, lv_done = a.lab("Lve"), a.lab("Lvd")
            a("  s_cmp_ge_u32 s%d, 3" % sIt)
            a("  s_cbranch_scc1 %s" % lv_else)
            issue_unit()
            a("  s_branch %s" % lv_done)
            a("%s:" % lv_else)
            a("  s_waitcnt vmcnt(0)")
            a("%s:" % lv_done)
        for dt in range(8):
            r = vSt + dt * 4
            a("  ds_read_b64_tr_b16 v[%d:%d], v%d offset:%d" % (r, r + 1, vVa + dt, u * 8192))
            a("  ds_read_b64_tr_b16 v[%d:%d], v%d offset:%d" % (r + 2, r + 3, vVa + dt, u * 8192 + 4096))
        for dt in range(8):
            r = vSt + dt * 4
            o = vO + dt * 4
            if dt % 2 == 0:
                a("  s_waitcnt lgkmcnt(%d)" % (12 - 2 * dt if dt < 6 else 0))
            a("  v_mfma_f32_16x16x32_bf16 v[%d:%d], v[%d:%d], v[%d:%d], v[%d:%d]" % (o, o + 3, r, r + 3, vPf + 4 * u, vPf + 4 * u + 3, o, o + 3))
    for dt in range(8):
        a("  v_xor_b32 v%d, 0x4000, v%d" % (vVa + dt, vVa + dt))
    a("  s_add_u32 s%d, s%d, 1" % (sIt, sIt))
    a("  s_cmp_lt_u32 s%d, 4" % sIt)
    a("  s_cbranch_scc1 L_v")
    stamp("V done")
    a("  v_and_b32 v%d, 15, v%d" % (t1, vLane))
    a("  v_lshrrev_b32 v%d, 4, v%d" % (t0, vLane))
    a("  v_lshlrev_b32 v%d, 9, v%d" % (t2, t1))
    a("  v_lshl_add_u32 v%d, v%d, 4, v%d" % (t2, t0, t2))
    a("  v_add_u32 v%d, s%d, v%d" % (t2, sRing, t2))
    a("  v_cmp_gt_u32 vcc, 4, v%d" % t1)
    a("  s_nop 4")
    a("  s_mov_b64 exec, vcc")
    for dt in range(8):
        a("  ds_write_b128 v%d, v[%d:%d] offset:%d" % (t2, vO + dt * 4, vO + dt * 4 + 3, dt * 64))
    a("  s_mov_b64 exec, -1")
    vR0, vR1, vR2, vR3 = vPf, vPf + 1, vPf + 2, vPf + 3
    a("  v_lshlrev_b32 v%d, 9, v%d" % (vR0, t0))
    a("  v_lshl_add_u32 v%d, v%d, 4, v%d      ; h*512 + c*16" % (vR0, t1, vR0))
    a("  v_lshl_add_u32 v%d, v%d, 4, v%d      ; FLG + h*16" % (vR1, t0, vMisc))
    a("  v_lshlrev_b32 v%d, 14, v%d" % (vR2, t0))
    a("  v_lshrrev_b32 v%d, 3, v%d" % (t3, t1))
    a("  v_lshl_add_u32 v%d, v%d, 11, v%d" % (vR2, t3, vR2))
    a("  v_and_b32 v%d, 7, v%d" % (t3, t1))
    a("  v_lshl_add_u32 v%d, v%d, 4, v%d" % (vR2, t3, vR2))
    a("  s_lshl_b32 s%d, s%d, 16" % (sT[0], sX))
    a("  s_lshr_b32 s%d, s%d, 4" % (sT[1], sLi))
    a("  s_lshl_b32 s%d, s%d, 13" % (sT[1], sT[1]))
    a("  s_add_u32 s%d, s%d, s%d" % (sT[0], sT[0], sT[1]))
    a("  s_and_b32 s%d, s%d, 15" % (sT[1], sLi))
    a("  s_lshl_b32 s%d, s%d, 7" % (sT[1], sT[1]))
    a("  s_add_u32 s%d, s%d, s%d" % (sT[0], sT[0], sT[1]))
    a("  s_add_u32 s%d, s%d, %d" % (sT[0], sT[0], OP))
    a("  s_add_u32 s%d, s%d, 1" % (sT[1], sEp))
    a("  s_and_b32 s%d, s%d, 0xff" % (sT[1], sT[1]))
    a("  v_mov_b32 v%d, s%d" % (vR3, sT[1]))
    a("  s_add_u32 s%d, s%d, 4096" % (sT[1], sT[0]))
    a("  s_mov_b32 s%d, 0xffffff00" % sT[2])
    lds_wait(vMisc, F_LOC, 1, t3)
    a("  s_lshr_b32 s%d, s%d, 1" % (sT[3], sT[7]))
    a("  s_waitcnt lgkmcnt(0)")
    a("  s_barrier                      ; B1")
    a("  s_cmp_lg_u32 s%d, 0" % sW)
    a("  s_cbranch_scc1 L_S_done")
    sWs = sWsS
    for w in range(4):
        a("  ds_read_b128 v[%d:%d], v%d offset:%d" % (vSt + w * 8, vSt + w * 8 + 3, vR0, (w & 1) * 32768))
        a("  ds_read_b128 v[%d:%d], v%d offset:%d" % (vSt + w * 8 + 4, vSt + w * 8 + 7, vR0, (w & 1) * 32768 + 256))
        if w == 1:
            a("  v_add_u32 v%d, 0x10000, v%d" % (vR0, vR0))
    a("  ds_read_b128 v[%d:%d], v%d offset:%d" % (vE, vE + 3, vR1, FFAC))
    a("  s_waitcnt lgkmcnt(0)")
    for i in range(8):
        a("  v_mul_f32 v%d, v%d, v%d" % (vO + i, vSt + i, vE))
    for w in range(1, 4):
        for i in range(8):
            a("  v_fmac_f32 v%d, v%d, v%d" % (vO + i, vSt + w * 8 + i, vE + w))
    for i in range(8):
        a("  v_and_or_b32 v%d, v%d, s%d, v%d" % (vO + i, vO + i, sT[2], vR3))
    store_loc(["  buffer_store_dwordx4 v[%d:%d], v%d, s[%d:%d], s%d offen" % (vO, vO + 3, vR2, sWs, sWs + 3, sT[0]),
               "  buffer_store_dwordx4 v[%d:%d], v%d, s[%d:%d], s%d offen" % (vO + 4, vO + 7, vR2, sWs, sWs + 3, sT[1])], sT[3])
    stamp("published")
    if ts:
        a("  s_waitcnt lgkmcnt(0)")
        a("  s_lshl_b32 s%d, s2, 8" % sT[0])
        a("  s_add_u32 s%d, s%d, %d" % (sT[0], sT[0], TSOFF))
        a("  v_mov_b32 v%d, 0" % t2)
        a("  s_mov_b64 exec, 1")
        for i in range(len(names["S"])):
            a("  v_mov_b32 v%d, s%d" % (vO, TS0 + 2 * i))
            a("  v_mov_b32 v%d, s%d" % (vO + 1, TS0 + 2 * i + 1))
            a("  buffer_store_dwordx2 v[%d:%d], v%d, s[%d:%d], s%d offen offset:%d" % (vO, vO + 1, t2, sWs, sWs + 3, sT[0], 8 * i))
            a("  s_waitcnt vmcnt(0)")
        a("  s_mov_b64 exec, -1")
    a("  s_waitcnt vmcnt(0)")
    a("L_S_done:")
    a("  s_endpgm")

    role[0] = "H"
    a("L_H:")
    sHW = 7
    sXd, sWq, sWs, sGU, sWd, sWo, sOut = 8, 12, 16, 32, 36, 40, 44
    sEp = 28
    sTag = 29
    sNotFF = 30
    sTag4 = 31
    sHi2 = 48
    sFi = 49
    sSelA, sSelB = 50, 54
    sB = 51; sJ = 52; sFidx = 53
    sKb2 = 55
    sLo8 = 60
    sFv = 3
    sLoc = 56
    sDbg = 64
    sHq = 62
    sWoStg = 63
    hMisc, hOne = 2, 3
    hG, hI = 4, 5
    hT = 6
    hX = 16
    hF = 24
    hY = 40
    hA = 56
    hB = 72
    hD = 88
    hW = 120
    hXf = 136
    hZ = 144
    hTag = 156
    hWd = 160
    T0, T1, T2, T3, T4, T5 = hT, hT + 1, hT + 2, hT + 3, hT + 4, hT + 5
    hTr, hXn, hW1k, hTrG, hOutOff = hZ + 1, hZ + 2, hZ + 4, hZ + 5, hZ + 6

    a("  s_sub_u32 s%d, s%d, 4" % (sHW, sW))
    a("  s_load_dwordx2 s[%d:%d], s[0:1], 0" % (sXd, sXd + 1))
    a("  s_load_dwordx2 s[%d:%d], s[0:1], 24" % (sWq, sWq + 1))
    a("  s_load_dwordx2 s[%d:%d], s[0:1], 88" % (sWs, sWs + 1))
    a("  s_load_dwordx4 s[56:59], s[0:1], 48")
    a("  s_load_dwordx2 s[%d:%d], s[0:1], 64" % (sWd, sWd + 1))
    a("  s_load_dwordx2 s[%d:%d], s[0:1], 32" % (sWo, sWo + 1))
    a("  s_load_dwordx2 s[%d:%d], s[0:1], 72" % (sOut, sOut + 1))
    a("  s_load_dwordx2 s[%d:%d], s[0:1], 80" % (sDbg, sDbg + 1))
    a("  s_mov_b32 s%d, 8192" % (sXd + 2))
    a("  s_mov_b32 s%d, 0x20000" % (sXd + 3))
    a("  s_mov_b32 s%d, 0x400000" % (sWq + 2))
    a("  s_mov_b32 s%d, 0x20000" % (sWq + 3))
    a("  s_mov_b32 s%d, 0xffff0000" % sHi2)
    a("  v_lshrrev_b32 v%d, 4, v0" % hG)
    a("  v_and_b32 v%d, 15, v0" % hI)
    a("  v_mov_b32 v%d, %d" % (hMisc, FLG))
    a("  v_mov_b32 v%d, 1" % hOne)
    a("  v_lshrrev_b32 v%d, 5, v0" % T0)
    a("  s_lshl_b32 s%d, s%d, 1" % (sT[0], sHW))
    a("  v_add_u32 v%d, s%d, v%d          ; row b" % (T0, sT[0], T0))
    a("  v_and_b32 v%d, 31, v0" % T1)
    a("  v_lshlrev_b32 v%d, 5, v%d" % (T1, T1))
    a("  v_lshl_add_u32 v%d, v%d, 10, v%d" % (T2, T0, T1))
    a("  v_mul_u32_u24 v%d, %d, v%d" % (T0, XN_STRIDE, T0))
    a("  v_add_u32 v%d, v%d, v%d" % (T0, T0, T1))
    a("  v_add_u32 v%d, %d, v%d" % (hZ, XN, T0))
    a("  v_lshrrev_b32 v%d, 3, v0" % T3)
    a("  v_and_b32 v%d, 7, v0" % T4)
    a("  v_lshlrev_b32 v%d, 4, v%d" % (T4, T4))
    a("  v_lshl_add_u32 v%d, v%d, 13, v%d" % (T5, T3, T4))
    a("  v_lshl_add_u32 v%d, v%d, 10, v%d" % (hW1k, T3, T4))
    a("  v_mul_u32_u24 v%d, 3584, v%d" % (T3, T3))
    a("  v_add_u32 v%d, v%d, v%d" % (T3, T3, T4))
    a("  s_and_b32 s%d, s%d, 3" % (sJ, sLi))
    a("  s_lshr_b32 s%d, s%d, 2" % (sB, sLi))
    a("  s_lshl_b32 s%d, s%d, 20" % (sT[0], sJ))
    a("  s_lshl_b32 s%d, s%d, 18" % (sT[1], sHW))
    a("  s_add_u32 s%d, s%d, s%d" % (sT[0], sT[0], sT[1]))
    a("  s_lshl_b32 s%d, s%d, 10" % (sT[1], sX))
    a("  s_add_u32 s%d, s%d, s%d" % (sT[0], sT[0], sT[1]))
    a("  s_lshl_b32 s%d, s%d, 7" % (sT[1], sB))
    a("  s_add_u32 s%d, s%d, s%d" % (sT[0], sT[0], sT[1]))
    a("  s_lshr_b32 s%d, s%d, 1" % (sT[1], sHW))
    a("  s_lshl_b32 s%d, s%d, 15" % (sT[1], sT[1]))
    a("  s_and_b32 s%d, s%d, 1" % (sT[2], sHW))
    a("  s_lshl_b32 s%d, s%d, 12" % (sT[2], sT[2]))
    a("  s_add_u32 s%d, s%d, s%d" % (sT[1], sT[1], sT[2]))
    a("  s_add_u32 s%d, s%d, 24576" % (sT[1], sT[1]))
    a("  s_lshr_b32 s%d, s%d, 3" % (sT[4], sLi))
    a("  s_lshl_b32 s%d, s%d, 3" % (sT[4], sT[4]))
    a("  s_add_u32 s%d, s%d, s%d" % (sT[4], sT[4], sX))
    a("  s_cmp_lt_u32 s%d, 28" % sT[4])
    a("  s_cselect_b32 s%d, 1, 0" % sFv)
    a("  s_min_u32 s%d, s%d, 27" % (sT[4], sT[4]))
    a("  s_lshl_b32 s%d, s%d, 3" % (sFi, sT[4]))
    a("  s_and_b32 s%d, s%d, 7" % (sT[4], sLi))
    a("  s_add_u32 s%d, s%d, s%d" % (sFi, sFi, sT[4]))
    a("  s_and_b32 s%d, s%d, 3" % (sKb2, sFi))
    a("  s_lshl_b32 s%d, s%d, 2" % (sT[3], sKb2))
    a("  s_add_u32 s%d, s%d, s%d" % (sT[3], sT[3], sHW))
    a("  s_mul_i32 s%d, s%d, %d" % (sT[3], sT[3], 32 * 3584))
    a("  s_lshr_b32 s%d, s%d, 3" % (sT[4], sFi))
    a("  s_lshl_b32 s%d, s%d, 7" % (sT[4], sT[4]))
    a("  s_add_u32 s%d, s%d, s%d" % (sT[3], sT[3], sT[4]))
    a("  s_mov_b32 s%d, 1835008" % (sGU + 2))
    a("  s_mov_b32 s%d, 0x20000" % (sGU + 3))
    a("  s_waitcnt lgkmcnt(0)")
    a("  buffer_load_dwordx4 v[%d:%d], v%d, s[%d:%d], 0 offen" % (hX, hX + 3, T2, sXd, sXd + 3))
    a("  buffer_load_dwordx4 v[%d:%d], v%d, s[%d:%d], 0 offen offset:16" % (hX + 4, hX + 7, T2, sXd, sXd + 3))
    a("  s_load_dword s%d, s[%d:%d], 0x%x" % (sEp, sWs, sWs + 1, EPOCH))
    for n in range(4):
        a("  s_add_u32 m0, s%d, %d" % (sT[1], n * 1024))
        if n:
            a("  s_add_u32 s%d, s%d, %d" % (sT[0], sT[0], 8 * 8192))
        else:
            a("  s_bitcmp1_b32 s%d, 2" % sFi)
        a("  buffer_load_dwordx4 v%d, s[%d:%d], s%d offen nt lds" % (T5, sWq, sWq + 3, sT[0]))
        if n == 0:
            a("  s_cselect_b32 s%d, s58, s56" % sGU)
            a("  s_cselect_b32 s%d, s59, s57" % (sGU + 1))
    for n in range(4):
        a("  s_add_u32 m0, s%d, %d" % (sT[1], 65536 + n * 1024))
        if n:
            a("  s_add_u32 s%d, s%d, %d" % (sT[3], sT[3], 8 * 3584))
        else:
            a("  s_nop 0")
        a("  buffer_load_dwordx4 v%d, s[%d:%d], s%d offen nt lds" % (T3, sGU, sGU + 3, sT[3]))
    a("  s_cmp_lg_u32 s%d, 0" % sHW)
    a("  s_cbranch_scc1 L_H_nz")
    a("  v_lshl_add_u32 v%d, v0, 2, v%d" % (T0, hMisc))
    a("  v_mov_b32 v%d, 0" % T1)
    a("  ds_write_b32 v%d, v%d" % (T0, T1))
    a("  s_waitcnt lgkmcnt(0)")
    a("L_H_nz:")
    a("  s_barrier                      ; B0")
    stamp("B0")
    if noh:
        for _ in range(4):
            lds_add(hMisc, F_QRDY, hOne)
            lds_add(hMisc, F_STG, hOne)
        a("  s_barrier")
        a("  s_mov_b32 s%d, 0x10000000" % (sWs + 2))
        a("  s_mov_b32 s%d, 0x20000" % (sWs + 3))
        a("  s_cmp_lg_u32 s%d, 0" % sHW)
        a("  s_cbranch_scc1 L_H_done")
        a("  s_branch L_tsdump")
    a("  s_mov_b32 s%d, 0x10000000" % (sWs + 2))
    a("  s_mov_b32 s%d, 0x20000" % (sWs + 3))
    for base, size in ((sWd, 1835008), (sWo, 0x400000), (sOut, 8192)):
        a("  s_mov_b32 s%d, %d" % (base + 2, size))
        a("  s_mov_b32 s%d, 0x20000" % (base + 3))
    a("  s_mov_b32 s%d, 0xffffff00" % sNotFF)
    a("  s_mov_b32 s%d, 0x0c0c0400" % sSelA)
    a("  s_mov_b32 s%d, 0x04000c0c" % sSelB)

    def pk(op, d, s0, s1, extra=""):
        a("  %s v[%d:%d], v[%d:%d], v[%d:%d]%s" % (op, d, d + 1, s0, s0 + 1, s1, s1 + 1, extra))

    def allreduce32(v, t):
        for n in (1, 2, 4, 8):
            a("  s_nop 1")
            a("  v_add_f32_dpp v%d, v%d, v%d row_ror:%d %s" % (v, v, v, n, DPP))
        reduce_swap("v_add_f32", v, t, 16)

    def tag(v):
        a("  v_and_or_b32 v%d, v%d, s%d, v%d" % (v, v, sNotFF, hTag))

    def tag_retry(regs, lab_retry, lab_ok, t0_, t1_, sleep):
        rs = list(regs)
        assert len(rs) % 4 == 0
        for k in range(0, len(rs), 4):
            a("  v_perm_b32 v%d, v%d, v%d, s%d" % (t1_, rs[k + 1], rs[k], sSelA))
            a("  v_perm_b32 v%d, v%d, v%d, s%d" % (t1_ + 1, rs[k + 3], rs[k + 2], sSelB))
            if k == 0:
                a("  v_or_b32 v%d, v%d, v%d" % (t0_, t1_, t1_ + 1))
                a("  v_xor_b32 v%d, s%d, v%d" % (t0_, sTag4, t0_))
            else:
                a("  v_or_b32 v%d, v%d, v%d" % (t1_, t1_, t1_ + 1))
                a("  v_xor_b32 v%d, s%d, v%d" % (t1_, sTag4, t1_))
                a("  v_or_b32 v%d, v%d, v%d" % (t0_, t0_, t1_))
        a("  v_cmp_ne_u32 vcc, 0, v%d" % t0_)
        a("  s_cbranch_vccz %s" % lab_ok)
        a("  s_mov_b64 exec, vcc")
        a("  s_add_u32 s%d, s%d, 1" % (sCnt, sCnt))
        a("  s_cmp_lt_u32 s%d, %d" % (sCnt, SPIN_LIMIT))
        a("  s_cbranch_scc0 %s" % lab_ok)
        a("  s_sleep %d" % sleep)
        a("  s_branch %s" % lab_retry)

    def round_bf16(v):
        a("  v_cvt_pk_bf16_f32 v%d, v%d, v%d" % (v, v, v))
        a("  v_and_b32 v%d, s%d, v%d" % (v, sHi2, v))

    a("  s_waitcnt vmcnt(8)")
    for i in range(8):
        a("  v_lshlrev_b32 v%d, 16, v%d" % (hF + 2 * i, hX + i))
        a("  v_and_b32 v%d, s%d, v%d" % (hF + 2 * i + 1, sHi2, hX + i))
    for i in range(4):
        pk("v_pk_add_f32", hY + 2 * i, hF + 4 * i, hF + 4 * i + 2)
    pk("v_pk_add_f32", hY, hY, hY + 2)
    pk("v_pk_add_f32", hY + 4, hY + 4, hY + 6)
    pk("v_pk_add_f32", hY, hY, hY + 4)
    vS = hZ + 8
    vV = hZ + 10
    a("  v_add_f32 v%d, v%d, v%d" % (vS, hY, hY + 1))
    allreduce32(vS, T0)
    a("  v_mul_f32 v%d, 0x3b000000, v%d     ; mean" % (vS, vS))
    for i in range(8):
        pk("v_pk_add_f32", hY + 2 * i, hF + 2 * i, vS, " op_sel_hi:[1,0] neg_lo:[0,1] neg_hi:[0,1]")
    pk("v_pk_mul_f32", vV, hY, hY)
    for i in range(1, 8):
        a("  v_pk_fma_f32 v[%d:%d], v[%d:%d], v[%d:%d], v[%d:%d]" % (vV, vV + 1, hY + 2 * i, hY + 2 * i + 1, hY + 2 * i, hY + 2 * i + 1, vV, vV + 1))
    a("  v_add_f32 v%d, v%d, v%d" % (vV, vV, vV + 1))
    allreduce32(vV, T0)
    a("  v_mul_f32 v%d, 0x3b000000, v%d     ; var" % (vV, vV))
    a("  v_cvt_pk_bf16_f32 v%d, v%d, v%d" % (vS, vS, vV))
    a("  v_and_b32 v%d, s%d, v%d" % (vV, sHi2, vS))
    a("  v_lshlrev_b32 v%d, 16, v%d            ; mean_bf" % (vS, vS))
    a("  v_add_f32 v%d, 0x3727c5ac, v%d" % (vV, vV))
    round_bf16(vV)
    a("  v_sqrt_f32 v%d, v%d" % (vV, vV))
    a("  s_nop 0")
    round_bf16(vV)
    a("  v_rcp_f32 v%d, v%d" % (vV, vV))
    for i in range(8):
        pk("v_pk_add_f32", hY + 2 * i, hF + 2 * i, vS, " op_sel_hi:[1,0] neg_lo:[0,1] neg_hi:[0,1]")
    for i in range(8):
        a("  v_cvt_pk_bf16_f32 v%d, v%d, v%d" % (hX + i, hY + 2 * i, hY + 2 * i + 1))
    for i in range(8):
        a("  v_lshlrev_b32 v%d, 16, v%d" % (hF + 2 * i, hX + i))
        a("  v_and_b32 v%d, s%d, v%d" % (hF + 2 * i + 1, sHi2, hX + i))
    for i in range(8):
        pk("v_pk_mul_f32", hY + 2 * i, hF + 2 * i, vV, " op_sel_hi:[1,0]")
    for i in range(8):
        a("  v_cvt_pk_bf16_f32 v%d, v%d, v%d" % (hX + i, hY + 2 * i, hY + 2 * i + 1))
    a("  ds_write_b128 v%d, v[%d:%d]" % (hZ, hX, hX + 3))
    a("  ds_write_b128 v%d, v[%d:%d] offset:16" % (hZ, hX + 4, hX + 7))
    stamp("LN done")

    a("  v_lshrrev_b32 v%d, 2, v%d" % (T0, hI))
    a("  v_lshl_add_u32 v%d, v%d, 3, v%d" % (T0, hG, T0))
    a("  v_lshlrev_b32 v%d, 7, v%d" % (T0, T0))
    a("  v_and_b32 v%d, 3, v%d" % (T1, hI))
    a("  v_lshl_add_u32 v%d, v%d, 3, v%d" % (hTrG, T1, T0))
    a("  s_lshl_b32 s%d, s%d, 5" % (sT[0], sHW))
    a("  s_add_u32 s%d, s%d, 24576" % (sT[0], sT[0]))
    a("  v_add_u32 v%d, s%d, v%d" % (hTr, sT[0], hTrG))
    a("  v_and_b32 v%d, 7, v%d" % (T0, hI))
    a("  v_mul_u32_u24 v%d, %d, v%d" % (T0, XN_STRIDE, T0))
    a("  v_lshl_add_u32 v%d, v%d, 4, v%d" % (T0, hG, T0))
    a("  v_add_u32 v%d, %d, v%d" % (hXn, XN, T0))
    a("  v_cmp_gt_u32 s[%d:%d], 8, v%d" % (sLo8, sLo8 + 1, hI))

    def tile_compute(kb_sgpr, stg_add):
        a("  s_lshl_b32 s%d, s%d, 8" % (sT[0], kb_sgpr))
        a("  v_add_u32 v%d, s%d, v%d" % (T0, sT[0], hXn))
        if stg_add:
            a("  v_add_u32 v%d, 0x%x, v%d" % (T1, stg_add, hTr))
            tr = T1
        else:
            tr = hTr
        for ks in range(4):
            base = (ks >> 1) * 32768 + (ks & 1) * 4096
            r = hA + ks * 4
            a("  ds_read_b64_tr_b16 v[%d:%d], v%d offset:%d" % (r, r + 1, tr, base))
            a("  ds_read_b64_tr_b16 v[%d:%d], v%d offset:%d" % (r + 2, r + 3, tr, base + 512))
            r = hB + ks * 4
            a("  ds_read_b128 v[%d:%d], v%d offset:%d" % (r, r + 3, T0, ks * 64))
        for ks in range(4):
            a("  s_waitcnt lgkmcnt(%d)" % (9 - 3 * ks))
            c = "0" if ks == 0 else "v[%d:%d]" % (hD, hD + 3)
            a("  v_mfma_f32_16x16x32_bf16 v[%d:%d], v[%d:%d], v[%d:%d], %s" % (hD, hD + 3, hA + ks * 4, hA + ks * 4 + 3, hB + ks * 4, hB + ks * 4 + 3, c))

    a("  s_waitcnt vmcnt(4) lgkmcnt(0)")
    a("  s_add_u32 s%d, s%d, 1" % (sTag, sEp))
    a("  s_and_b32 s%d, s%d, 0xff" % (sTag, sTag))
    a("  s_mul_i32 s%d, s%d, 0x01010101" % (sTag4, sTag))
    a("  v_mov_b32 v%d, s%d" % (hTag, sTag))
    lds_add(hMisc, F_H1, hOne)
    lds_wait(hMisc, F_H1, 4, T5)
    stamp("Hsync1")
    tile_compute(sJ, 0)
    a("  v_lshlrev_b32 v%d, 11, v%d" % (T0, hI))
    a("  v_lshl_add_u32 v%d, v%d, 4, v%d" % (T0, hG, T0))
    a("  s_lshl_b32 s%d, s%d, 6" % (sT[0], sHW))
    a("  v_add_u32 v%d, s%d, v%d" % (T0, sT[0], T0))
    a("  s_lshl_b32 s%d, s%d, 2" % (sHq, sX))
    a("  s_add_u32 s%d, s%d, s%d" % (sHq, sHq, sJ))
    a("  s_lshl_b32 s%d, s%d, 14" % (sT[0], sHq))
    a("  s_lshl_b32 s%d, s%d, 8" % (sT[1], sB))
    a("  s_add_u32 s%d, s%d, s%d" % (sT[0], sT[0], sT[1]))
    if QP:
        a("  s_add_u32 s%d, s%d, %d" % (sT[0], sT[0], QP))
    for k in range(4):
        tag(hD + k)
    a("  s_mov_b64 exec, s[%d:%d]" % (sLo8, sLo8 + 1))
    a("  buffer_store_dwordx4 v[%d:%d], v%d, s[%d:%d], s%d offen sc1" % (hD, hD + 3, T0, sWs, sWs + 3, sT[0]))
    a("  s_mov_b64 exec, -1")
    stamp("QP stored")
    a("  s_lshl_b32 s%d, s%d, 2" % (sT[0], sHq))
    a("  s_add_u32 s%d, s%d, s%d" % (sT[0], sT[0], sHW))
    a("  s_lshl_b32 s%d, s%d, 15" % (sT[0], sT[0]))
    a("  s_lshl_b32 s%d, s%d, 7" % (sT[1], sB))
    a("  s_add_u32 s%d, s%d, s%d" % (sT[0], sT[0], sT[1]))
    a("  s_lshl_b32 s%d, s%d, 12" % (sWoStg, sHW))
    a("  s_add_u32 s%d, s%d, %d" % (sWoStg, sWoStg, WOS))
    for n in range(4):
        a("  s_add_u32 m0, s%d, %d" % (sWoStg, n * 1024))
        if n:
            a("  s_add_u32 s%d, s%d, 8192" % (sT[0], sT[0]))
        else:
            a("  s_nop 0")
        a("  buffer_load_dwordx4 v%d, s[%d:%d], s%d offen nt lds" % (hW1k, sWo, sWo + 3, sT[0]))
    a("  s_waitcnt vmcnt(5)")
    lds_add(hMisc, F_H3, hOne)
    lds_wait(hMisc, F_H3, 4, T5)
    stamp("Hsync3")
    tile_compute(sKb2, 65536)
    lds_add(hMisc, F_STG, hOne)
    a("  v_lshlrev_b32 v%d, 8, v%d" % (T0, hI))
    a("  v_lshl_add_u32 v%d, v%d, 4, v%d" % (T0, hG, T0))
    a("  s_lshl_b32 s%d, s%d, 6" % (sT[0], sHW))
    a("  v_add_u32 v%d, s%d, v%d" % (T0, sT[0], T0))
    a("  s_and_b32 s%d, s%d, 7" % (sT[0], sFi))
    a("  s_mul_i32 s%d, s%d, 28" % (sT[0], sT[0]))
    a("  s_lshr_b32 s%d, s%d, 3" % (sT[1], sFi))
    a("  s_add_u32 s%d, s%d, s%d" % (sT[0], sT[0], sT[1]))
    a("  s_lshl_b32 s%d, s%d, 11" % (sT[0], sT[0]))
    a("  s_add_u32 s%d, s%d, %d" % (sT[0], sT[0], GP))
    for k in range(4):
        tag(hD + k)
    lg = a.lab("Lg")
    a("  s_cmp_eq_u32 s%d, 0" % sFv)
    a("  s_cbranch_scc1 %s" % lg)
    a("  s_mov_b64 exec, s[%d:%d]" % (sLo8, sLo8 + 1))
    a("  buffer_store_dwordx4 v[%d:%d], v%d, s[%d:%d], s%d offen sc1" % (hD, hD + 3, T0, sWs, sWs + 3, sT[0]))
    a("  s_mov_b64 exec, -1")
    a("%s:" % lg)
    stamp("tile1 done")
    a("  v_lshrrev_b32 v%d, 5, v0" % T0)
    a("  v_lshlrev_b32 v%d, 14, v%d" % (T0, T0))
    a("  v_and_b32 v%d, 31, v0" % T1)
    a("  v_lshl_add_u32 v%d, v%d, 4, v%d" % (T0, T1, T0))
    a("  s_lshl_b32 s%d, s%d, 9" % (sT[0], sHW))
    a("  v_add_u32 v%d, s%d, v%d" % (T0, sT[0], T0))
    a("  s_lshl_b32 s%d, s%d, 16" % (sT[0], sX))
    a("  s_lshl_b32 s%d, s%d, 11" % (sT[1], sB))
    a("  s_add_u32 s%d, s%d, s%d" % (sT[0], sT[0], sT[1]))
    if QP:
        a("  s_add_u32 s%d, s%d, %d" % (sT[0], sT[0], QP))
    a("  s_add_u32 s%d, s%d, 32768" % (sT[1], sT[0]))
    a("  s_mul_i32 s%d, s%d, %d" % (sT[2], sHW, QL_STRIDE))
    a("  s_add_u32 s%d, s%d, %d" % (sT[2], sT[2], QL))
    a("  v_lshlrev_b32 v%d, 3, v%d" % (T1, T1))
    a("  v_add_u32 v%d, s%d, v%d" % (T1, sT[2], T1))
    lr, lo = a.lab("Lr"), a.lab("Lo")
    a("  s_mov_b32 s%d, 0" % sCnt)
    a("%s:" % lr)
    a("  buffer_load_dwordx4 v[%d:%d], v%d, s[%d:%d], s%d offen sc1" % (hA, hA + 3, T0, sWs, sWs + 3, sT[0]))
    a("  buffer_load_dwordx4 v[%d:%d], v%d, s[%d:%d], s%d offen sc1" % (hA + 4, hA + 7, T0, sWs, sWs + 3, sT[1]))
    a("  s_waitcnt vmcnt(0)")
    tag_retry(range(hA, hA + 8), lr, lo, T2, T3, 2)
    a("%s:" % lo)
    a("  s_mov_b64 exec, -1")
    stamp("Q ok")
    pk("v_pk_add_f32", hA, hA, hA + 4)
    pk("v_pk_add_f32", hA + 2, hA + 2, hA + 6)
    for k in range(4):
        a("  v_mov_b32 v%d, v%d" % (hA + 4 + k, hA + k))
    a("  s_nop 1")
    for k in range(4):
        a("  v_permlane32_swap_b32 v%d, v%d" % (hA + k, hA + 4 + k))
    pk("v_pk_add_f32", hA, hA, hA + 4)
    pk("v_pk_add_f32", hA + 2, hA + 2, hA + 6)
    a("  v_cvt_pk_bf16_f32 v%d, v%d, v%d" % (hA, hA, hA + 1))
    a("  v_cvt_pk_bf16_f32 v%d, v%d, v%d" % (hA + 1, hA + 2, hA + 3))
    a("  s_mov_b32 exec_hi, 0")
    a("  ds_write_b64 v%d, v[%d:%d]" % (T1, hA, hA + 1))
    a("  s_mov_b64 exec, -1")
    a("  s_waitcnt lgkmcnt(0)")
    lds_add(hMisc, F_QRDY, hOne)
    stamp("Q rdy")

    a("  v_add_u32 v%d, s%d, v%d" % (T0, sWoStg, hTrG))
    l3 = a.lab("L3")
    a("  s_cmp_lg_u32 s%d, 3" % sHW)
    a("  s_cbranch_scc1 %s" % l3)
    a("  s_lshr_b32 s%d, s%d, 3" % (sT[0], sFi))
    a("  s_lshl_b32 s%d, s%d, 16" % (sT[1], sT[0]))
    a("  s_and_b32 s%d, s%d, 7" % (sT[2], sFi))
    a("  s_lshl_b32 s%d, s%d, 7" % (sT[2], sT[2]))
    a("  s_add_u32 s%d, s%d, s%d" % (sT[1], sT[1], sT[2]))
    for n in range(4):
        a("  s_mov_b32 m0, %d" % (SPARE + n * 1024))
        if n:
            a("  s_add_u32 s%d, s%d, 8192" % (sT[1], sT[1]))
        else:
            a("  s_nop 0")
        a("  buffer_load_dwordx4 v%d, s[%d:%d], s%d offen nt lds" % (hW1k, sWd, sWd + 3, sT[1]))
    a("%s:" % l3)
    for ct in range(4):
        r = hW + ct * 4
        a("  ds_read_b64_tr_b16 v[%d:%d], v%d offset:%d" % (r, r + 1, T0, ct * 32))
        a("  ds_read_b64_tr_b16 v[%d:%d], v%d offset:%d" % (r + 2, r + 3, T0, ct * 32 + 512))
    a("  s_waitcnt lgkmcnt(0)")
    l4 = a.lab("L4")
    a("  s_cmp_lg_u32 s%d, 3" % sHW)
    a("  s_cbranch_scc1 %s" % l4)
    for n in range(4):
        a("  s_add_u32 m0, s%d, %d" % (sWoStg, n * 1024))
        a("  s_add_u32 s%d, s%d, 8192" % (sT[1], sT[1]))
        a("  buffer_load_dwordx4 v%d, s[%d:%d], s%d offen nt lds" % (hW1k, sWd, sWd + 3, sT[1]))
    a("  v_add_u32 v%d, %d, v%d" % (T1, SPARE, hTrG))
    a("  s_waitcnt vmcnt(4)")
    for ct in range(4):
        r = hWd + ct * 8
        a("  ds_read_b64_tr_b16 v[%d:%d], v%d offset:%d" % (r, r + 1, T1, ct * 32))
        a("  ds_read_b64_tr_b16 v[%d:%d], v%d offset:%d" % (r + 2, r + 3, T1, ct * 32 + 512))
    a("  s_waitcnt vmcnt(0)")
    for ct in range(4):
        r = hWd + ct * 8 + 4
        a("  ds_read_b64_tr_b16 v[%d:%d], v%d offset:%d" % (r, r + 1, T0, ct * 32))
        a("  ds_read_b64_tr_b16 v[%d:%d], v%d offset:%d" % (r + 2, r + 3, T0, ct * 32 + 512))
    a("  s_waitcnt lgkmcnt(0)")
    a("%s:" % l4)
    stamp("wo frags")

    a("  s_lshl_b32 s%d, s%d, 5" % (sFidx, sB))
    a("  s_add_u32 s%d, s%d, s%d" % (sFidx, sFidx, sHq))
    a("  v_and_b32 v%d, 3, v0" % T0)
    a("  v_lshlrev_b32 v%d, 3, v%d" % (T0, T0))
    a("  s_lshl_b32 s%d, s%d, 5" % (sT[0], sFidx))
    a("  v_add_u32 v%d, s%d, v%d" % (hOutOff, sT[0], T0))
    if noffn:
        a("  s_branch L_B1")
    a("  s_cmp_eq_u32 s%d, 1" % sHW)
    a("  s_cbranch_scc1 %s" % ("L_B1" if skip & 1 else "L_ffn"))
    a("  s_cmp_eq_u32 s%d, 2" % sHW)
    a("  s_cbranch_scc1 %s" % ("L_B1" if skip & 2 else "L_stats"))
    a("  s_cmp_eq_u32 s%d, 0" % sHW)
    a("  s_cbranch_scc1 %s" % ("L_B1" if skip & 5 else "L_fin_prep"))
    a("  s_branch %s" % ("L_B1" if skip & 9 else "L_down"))

    a("L_ffn:")
    a("  s_mov_b32 s%d, 256" % (sDbg + 2))
    a("  s_mov_b32 s%d, 0x20000" % (sDbg + 3))
    a("  s_getreg_b32 s%d, hwreg(HW_REG_XCC_ID, 0, 3)" % sT[4])
    a("  s_lshl_b32 s%d, s%d, 3" % (sT[4], sT[4]))
    a("  s_lshl_b64 s[%d:%d], 1, s%d" % (sT[6], sT[7], sT[4]))
    a("  v_mov_b32 v%d, s%d" % (hA, sT[6]))
    a("  v_mov_b32 v%d, s%d" % (hA + 1, sT[7]))
    a("  s_lshl_b32 s%d, s%d, 5" % (sT[0], sX))
    a("  v_mov_b32 v%d, s%d" % (T0, sT[0]))
    a("  s_mov_b64 exec, 1")
    a("  buffer_atomic_add_x2 v[%d:%d], v%d, s[%d:%d], 0 offen sc1" % (hA, hA + 1, T0, sDbg, sDbg + 3))
    a("  s_mov_b64 exec, -1")
    lds_wait(hMisc, F_MID, 1, T5, sleep=8)
    a("  s_waitcnt vmcnt(0)")
    lr, lo = a.lab("Lr"), a.lab("Lo")
    a("  s_mov_b32 s%d, 0" % sCnt)
    a("  s_mov_b64 exec, 1")
    a("%s:" % lr)
    a("  buffer_load_dwordx2 v[%d:%d], v%d, s[%d:%d], 0 offen sc1" % (hA, hA + 1, T0, sDbg, sDbg + 3))
    a("  s_waitcnt vmcnt(0)")
    a("  v_readfirstlane_b32 s%d, v%d" % (sT[2], hA))
    a("  v_readfirstlane_b32 s%d, v%d" % (sT[3], hA + 1))
    a("  s_and_b32 s%d, s%d, 0x00ff00ff" % (sT[4], sT[2]))
    a("  s_lshr_b32 s%d, s%d, 8" % (sT[5], sT[2]))
    a("  s_and_b32 s%d, s%d, 0x00ff00ff" % (sT[5], sT[5]))
    a("  s_add_u32 s%d, s%d, s%d" % (sT[4], sT[4], sT[5]))
    a("  s_and_b32 s%d, s%d, 0x00ff00ff" % (sT[5], sT[3]))
    a("  s_add_u32 s%d, s%d, s%d" % (sT[4], sT[4], sT[5]))
    a("  s_lshr_b32 s%d, s%d, 8" % (sT[5], sT[3]))
    a("  s_and_b32 s%d, s%d, 0x00ff00ff" % (sT[5], sT[5]))
    a("  s_add_u32 s%d, s%d, s%d" % (sT[4], sT[4], sT[5]))
    a("  s_lshr_b32 s%d, s%d, 16" % (sT[5], sT[4]))
    a("  s_and_b32 s%d, s%d, 0xffff" % (sT[4], sT[4]))
    a("  s_add_u32 s%d, s%d, s%d" % (sT[4], sT[4], sT[5]))
    a("  s_cmp_ge_u32 s%d, 32" % sT[4])
    a("  s_cbranch_scc1 %s" % lo)
    a("  s_add_u32 s%d, s%d, 1" % (sCnt, sCnt))
    a("  s_cmp_lt_u32 s%d, %d" % (sCnt, SPIN_LIMIT))
    a("  s_cbranch_scc0 %s" % lo)
    a("  s_sleep 32")
    a("  s_branch %s" % lr)
    a("%s:" % lo)
    a("  s_mov_b64 exec, -1")
    a("  s_getreg_b32 s%d, hwreg(HW_REG_XCC_ID, 0, 3)" % sT[4])
    a("  s_lshl_b32 s%d, s%d, 3" % (sT[4], sT[4]))
    a("  s_lshr_b64 s[%d:%d], s[%d:%d], s%d" % (sT[2], sT[3], sT[2], sT[3], sT[4]))
    a("  s_and_b32 s%d, s%d, 0xff" % (sT[2], sT[2]))
    a("  s_cmp_eq_u32 s%d, 32" % sT[2])
    a("  s_cselect_b32 s%d, %d, 1" % (sT[2], 2 if uselocal else 1))
    a("  v_mov_b32 v%d, s%d" % (T0, sT[2]))
    a("  s_mov_b64 exec, 1")
    a("  ds_write_b32 v%d, v%d offset:%d" % (hMisc, T0, F_LOC))
    a("  s_mov_b64 exec, -1")
    a("  s_lshr_b32 s%d, s%d, 1" % (sLoc, sT[2]))
    a("  s_cmp_eq_u32 s%d, 0" % sFv)
    a("  s_cbranch_scc1 L_ffn_done")
    a("  s_lshr_b32 s%d, s%d, 3" % (sT[0], sFi))
    a("  v_mul_u32_u24 v%d, %d, v%d" % (T0, 28 * 2048, hG))
    a("  v_lshl_add_u32 v%d, v%d, 4, v%d" % (T0, hI, T0))
    a("  s_lshl_b32 s%d, s%d, 11" % (sT[1], sT[0]))
    a("  s_and_b32 s%d, s%d, 7" % (sT[2], sFi))
    a("  s_lshl_b32 s%d, s%d, 8" % (sT[2], sT[2]))
    a("  s_add_u32 s%d, s%d, s%d" % (sT[1], sT[1], sT[2]))
    a("  s_add_u32 s%d, s%d, %d" % (sT[1], sT[1], GP))
    a("  s_add_u32 s%d, s%d, %d" % (sT[2], sT[1], 4 * 28 * 2048))
    lr, lo = a.lab("Lr"), a.lab("Lo")
    a("  s_mov_b32 s%d, 0" % sCnt)
    a("%s:" % lr)
    a("  buffer_load_dwordx4 v[%d:%d], v%d, s[%d:%d], s%d offen sc1" % (hA, hA + 3, T0, sWs, sWs + 3, sT[1]))
    a("  buffer_load_dwordx4 v[%d:%d], v%d, s[%d:%d], s%d offen sc1" % (hA + 4, hA + 7, T0, sWs, sWs + 3, sT[2]))
    a("  s_waitcnt vmcnt(0)")
    tag_retry(range(hA, hA + 8), lr, lo, T2, T3, ffn_sleep)
    a("%s:" % lo)
    a("  s_mov_b64 exec, -1")
    for kind in (16, 32):
        for k in range(8):
            a("  v_mov_b32 v%d, v%d" % (hA + 8 + k, hA + k))
        a("  s_nop 1")
        for k in range(8):
            a("  v_permlane%d_swap_b32 v%d, v%d" % (kind, hA + k, hA + 8 + k))
        for k in range(0, 8, 2):
            pk("v_pk_add_f32", hA + k, hA + k, hA + 8 + k)
    g0, u0 = hA, hA + 4
    for k in range(8):
        round_bf16(hA + k)
    a("  s_mov_b32 s%d, 0xBFB8AA3B      ; -log2(e)" % sT[2])
    for k in range(4):
        a("  v_mul_f32 v%d, s%d, v%d" % (g0 + k, sT[2], g0 + k))
    for k in range(4):
        a("  v_exp_f32 v%d, v%d" % (g0 + k, g0 + k))
    a("  s_nop 0")
    for k in range(4):
        a("  v_add_f32 v%d, 1.0, v%d" % (g0 + k, g0 + k))
    for k in range(4):
        a("  v_rcp_f32 v%d, v%d" % (g0 + k, g0 + k))
    a("  s_nop 0")
    for k in range(4):
        round_bf16(g0 + k)
    for k in range(4):
        a("  v_mul_f32 v%d, v%d, v%d" % (g0 + k, g0 + k, u0 + k))
    for k in range(4):
        round_bf16(g0 + k)
    for k in range(4):
        a("  v_or_b32 v%d, v%d, v%d" % (g0 + k, g0 + k, hTag))
    a("  v_lshlrev_b32 v%d, 4, v0" % T0)
    a("  s_lshl_b32 s%d, s%d, 8" % (sT[1], sFi))
    a("  s_add_u32 s%d, s%d, %d" % (sT[1], sT[1], HH))
    a("  s_mov_b64 exec, 0xffff")
    store_loc(["  buffer_store_dwordx4 v[%d:%d], v%d, s[%d:%d], s%d offen" % (g0, g0 + 3, T0, sWs, sWs + 3, sT[1])], sLoc)
    a("  s_mov_b64 exec, -1")
    a("L_ffn_done:")
    lds_add(hMisc, F_RED, hOne)
    lds_wait(hMisc, F_EWS, 1, T5, sleep=4)
    for k in range(4):
        a("  v_mov_b32 v%d, v%d" % (hA + k, hTag))
    a("  s_lshl_b32 s%d, s%d, 9" % (sT[0], sX))
    a("  s_lshl_b32 s%d, s%d, 4" % (sT[1], sLi))
    a("  s_add_u32 s%d, s%d, s%d" % (sT[0], sT[0], sT[1]))
    a("  s_add_u32 s%d, s%d, %d" % (sT[0], sT[0], EW))
    a("  v_mov_b32 v%d, 0" % T0)
    a("  s_mov_b64 exec, 1")
    store_loc(["  buffer_store_dwordx4 v[%d:%d], v%d, s[%d:%d], s%d offen" % (hA, hA + 3, T0, sWs, sWs + 3, sT[0])], sLoc)
    a("  s_mov_b64 exec, -1")
    a("  s_branch L_B1")

    a("L_down:")
    a("  s_cmp_eq_u32 s%d, 0" % sFv)
    a("  s_cbranch_scc1 L_down_done")
    lds_wait(hMisc, F_RED, 1, T5, sleep=8)
    a("  s_lshr_b32 s%d, s%d, 3" % (sT[0], sFi))
    a("  v_and_b32 v%d, 7, v%d" % (T0, hI))
    a("  v_lshlrev_b32 v%d, 8, v%d" % (T0, T0))
    a("  v_lshl_add_u32 v%d, v%d, 5, v%d" % (T0, hG, T0))
    a("  s_lshl_b32 s%d, s%d, 11" % (sT[1], sT[0]))
    a("  s_add_u32 s%d, s%d, %d" % (sT[1], sT[1], HH))
    lr, lo = a.lab("Lr"), a.lab("Lo")
    a("  s_mov_b32 s%d, 0" % sCnt)
    a("%s:" % lr)
    for k in range(4):
        a("  buffer_load_dwordx4 v[%d:%d], v%d, s[%d:%d], s%d offen offset:%d sc1" % (hA + 4 * k, hA + 4 * k + 3, T0, sWs, sWs + 3, sT[1], (k >> 1) * 128 + (k & 1) * 16))
    a("  s_waitcnt vmcnt(0)")
    tag_retry(range(hA, hA + 16), lr, lo, T2, T3, ffn_sleep)
    a("%s:" % lo)
    a("  s_mov_b64 exec, -1")
    a("  s_mov_b32 s%d, 0x07060302" % sT[2])
    for k in range(8):
        a("  v_perm_b32 v%d, v%d, v%d, s%d" % (hB + k, hA + 2 * k + 1, hA + 2 * k, sT[2]))
    a("  s_nop 1")
    for ct in range(4):
        d = hD + ct * 4
        r = hWd + ct * 8
        a("  v_mfma_f32_16x16x32_bf16 v[%d:%d], v[%d:%d], v[%d:%d], 0" % (d, d + 3, r, r + 3, hB, hB + 3))
        a("  v_mfma_f32_16x16x32_bf16 v[%d:%d], v[%d:%d], v[%d:%d], v[%d:%d]" % (d, d + 3, r + 4, r + 7, hB + 4, hB + 7, d, d + 3))
    a("  v_lshlrev_b32 v%d, 16, v%d" % (T0, hI))
    a("  v_lshl_add_u32 v%d, v%d, 4, v%d" % (T0, hG, T0))
    a("  s_and_b32 s%d, s%d, 7" % (sT[1], sFi))
    a("  s_lshl_b32 s%d, s%d, 13" % (sT[1], sT[1]))
    a("  s_lshl_b32 s%d, s%d, 6" % (sT[2], sT[0]))
    a("  s_add_u32 s%d, s%d, s%d" % (sT[1], sT[1], sT[2]))
    a("  s_add_u32 s%d, s%d, %d" % (sT[1], sT[1], DP))
    a("  s_nop 7")
    for i in range(16):
        tag(hD + i)
    a("  s_mov_b64 exec, s[%d:%d]" % (sLo8, sLo8 + 1))
    for ct in range(4):
        a("  buffer_store_dwordx4 v[%d:%d], v%d, s[%d:%d], s%d offen sc1" % (hD + ct * 4, hD + ct * 4 + 3, T0, sWs, sWs + 3, sT[1]))
        if ct < 3:
            a("  s_add_u32 s%d, s%d, 2048" % (sT[1], sT[1]))
    a("  s_mov_b64 exec, -1")
    a("  s_waitcnt vmcnt(0)")
    a("L_down_done:")
    lds_add(hMisc, F_DOWN, hOne)
    a("  s_branch L_B1")

    a("L_stats:")
    lds_wait(hMisc, F_ST, 4, T5, sleep=st_sleep)
    a("  v_lshl_add_u32 v%d, v%d, 3, v%d" % (T0, hI, hMisc))
    mw, lw = hA, hA + 1
    a("  ds_read_b64 v[%d:%d], v%d offset:%d" % (mw, mw + 1, T0, SSTAT))
    a("  s_waitcnt lgkmcnt(0)")
    Mg, Lg, t_ = hA + 4, hA + 5, hA + 2
    a("  v_mov_b32 v%d, v%d" % (Mg, mw))
    a("  s_nop 1")
    a("  v_max_f32_dpp v%d, v%d, v%d row_ror:4 %s" % (Mg, Mg, Mg, DPP))
    a("  s_nop 1")
    a("  v_max_f32_dpp v%d, v%d, v%d row_ror:8 %s" % (Mg, Mg, Mg, DPP))
    a("  s_mov_b32 s%d, 0x3FB8AA3B" % sT[2])
    a("  v_sub_f32 v%d, v%d, v%d" % (t_, mw, Mg))
    a("  v_mul_f32 v%d, s%d, v%d" % (t_, sT[2], t_))
    a("  v_exp_f32 v%d, v%d" % (t_, t_))
    a("  s_nop 0")
    a("  v_mul_f32 v%d, v%d, v%d" % (Lg, lw, t_))
    a("  s_nop 1")
    a("  v_add_f32_dpp v%d, v%d, v%d row_ror:4 %s" % (Lg, Lg, Lg, DPP))
    a("  s_nop 1")
    a("  v_add_f32_dpp v%d, v%d, v%d row_ror:8 %s" % (Lg, Lg, Lg, DPP))
    a("  s_nop 1")
    a("  v_mov_b32_dpp v%d, v%d row_shl:1 %s bound_ctrl:0" % (Mg + 2, Mg, DPP))
    a("  v_mov_b32_dpp v%d, v%d row_shl:1 %s bound_ctrl:0" % (Mg + 3, Lg, DPP))
    a("  s_lshl_b32 s%d, s%d, 3" % (sT[0], sB))
    a("  s_add_u32 s%d, s%d, s%d" % (sT[0], sT[0], sX))
    a("  s_lshl_b32 s%d, s%d, 7" % (sT[0], sT[0]))
    a("  s_add_u32 s%d, s%d, %d" % (sT[0], sT[0], ST))
    a("  s_lshl_b32 s%d, s%d, 5" % (sT[1], sJ))
    a("  s_add_u32 s%d, s%d, s%d" % (sT[1], sT[1], sT[0]))
    for k in range(4):
        tag(Mg + k)
    a("  v_lshlrev_b32 v%d, 3, v%d" % (T1, hI))
    lds_wait(hMisc, F_LOC, 1, T5)
    a("  s_lshr_b32 s%d, s%d, 1" % (sLoc, sT[7]))
    a("  s_mov_b64 exec, 5")
    store_loc(["  buffer_store_dwordx4 v[%d:%d], v%d, s[%d:%d], s%d offen" % (Mg, Mg + 3, T1, sWs, sWs + 3, sT[1])], sLoc)
    a("  s_mov_b64 exec, -1")
    a("  v_lshrrev_b32 v%d, 1, v%d" % (T1, hI))
    a("  v_lshlrev_b32 v%d, 4, v%d" % (T1, T1))
    mj = hA + 8
    lr, lo = a.lab("Lr"), a.lab("Lo")
    a("  s_mov_b32 s%d, 0" % sCnt)
    a("%s:" % lr)
    a("  buffer_load_dwordx4 v[%d:%d], v%d, s[%d:%d], s%d offen sc1" % (mj, mj + 3, T1, sWs, sWs + 3, sT[0]))
    a("  s_waitcnt vmcnt(0)")
    tag_retry(range(mj, mj + 4), lr, lo, T2, T3, ffn_sleep)
    a("%s:" % lo)
    a("  s_mov_b64 exec, -1")
    a("  v_and_b32 v%d, 1, v%d" % (T2, hI))
    a("  v_cmp_eq_u32 vcc, 1, v%d" % T2)
    a("  s_nop 1")
    a("  v_cndmask_b32 v%d, v%d, v%d, vcc" % (mj, mj, mj + 2))
    a("  v_cndmask_b32 v%d, v%d, v%d, vcc" % (mj + 1, mj + 1, mj + 3))
    lj = mj + 1
    a("  v_and_b32 v%d, s%d, v%d" % (mj, sNotFF, mj))
    a("  v_and_b32 v%d, s%d, v%d" % (lj, sNotFF, lj))
    M2, L2 = hA + 12, hA + 13
    a("  v_mov_b32 v%d, v%d" % (M2, mj))
    a("  s_nop 1")
    a("  v_max_f32_dpp v%d, v%d, v%d row_ror:4 %s" % (M2, M2, M2, DPP))
    a("  s_nop 1")
    a("  v_max_f32_dpp v%d, v%d, v%d row_ror:8 %s" % (M2, M2, M2, DPP))
    a("  v_sub_f32 v%d, v%d, v%d" % (t_, mj, M2))
    a("  v_mul_f32 v%d, s%d, v%d" % (t_, sT[2], t_))
    a("  v_exp_f32 v%d, v%d" % (t_, t_))
    a("  s_nop 0")
    a("  v_mul_f32 v%d, v%d, v%d" % (L2, lj, t_))
    a("  s_nop 1")
    a("  v_add_f32_dpp v%d, v%d, v%d row_ror:4 %s" % (L2, L2, L2, DPP))
    a("  s_nop 1")
    a("  v_add_f32_dpp v%d, v%d, v%d row_ror:8 %s" % (L2, L2, L2, DPP))
    a("  v_sub_f32 v%d, v%d, v%d" % (t_, mw, M2))
    a("  v_mul_f32 v%d, s%d, v%d" % (t_, sT[2], t_))
    a("  v_exp_f32 v%d, v%d" % (t_, t_))
    a("  v_rcp_f32 v%d, v%d" % (L2, L2))
    a("  s_nop 0")
    a("  v_mul_f32 v%d, v%d, v%d" % (t_, t_, L2))
    a("  v_and_b32 v%d, 3, v%d" % (T0, hI))
    a("  v_lshlrev_b32 v%d, 4, v%d" % (T0, T0))
    a("  v_lshrrev_b32 v%d, 2, v%d" % (T1, hI))
    a("  v_lshl_add_u32 v%d, v%d, 2, v%d" % (T0, T1, T0))
    a("  v_add_u32 v%d, v%d, v%d" % (T0, T0, hMisc))
    a("  s_mov_b64 exec, 0xffff")
    a("  ds_write_b32 v%d, v%d offset:%d" % (T0, t_, FFAC))
    a("  s_mov_b64 exec, -1")
    a("  s_waitcnt lgkmcnt(0)")
    a("  s_branch L_B1")

    def reduce_hd(base, tmp):
        a("  s_nop 1")
        for k in range(4):
            a("  v_add_f32_dpp v%d, v%d, v%d row_ror:4 %s" % (base + k, base + k, base + k, DPP))
        a("  s_nop 1")
        for k in range(4):
            a("  v_add_f32_dpp v%d, v%d, v%d row_ror:8 %s" % (base + k, base + k, base + k, DPP))
        for kind in (16, 32):
            for k in range(4):
                a("  v_mov_b32 v%d, v%d" % (tmp + k, base + k))
            a("  s_nop 1")
            for k in range(4):
                a("  v_permlane%d_swap_b32 v%d, v%d" % (kind, base + k, tmp + k))
            pk("v_pk_add_f32", base, base, tmp)
            pk("v_pk_add_f32", base + 2, base + 2, tmp + 2)

    a("L_fin_prep:")
    lds_wait(hMisc, F_LATE, 1, T5, sleep=8)
    a("  buffer_load_dwordx2 v[%d:%d], v%d, s[%d:%d], 0 offen" % (hA + 8, hA + 9, hOutOff, sXd, sXd + 3))
    a("  v_lshlrev_b32 v%d, 4, v0" % T0)
    a("  s_lshl_b32 s%d, s%d, 11" % (sT[0], sFidx))
    a("  s_add_u32 s%d, s%d, %d" % (sT[0], sT[0], DP))
    for k in range(4):
        a("  v_mov_b32 v%d, v%d" % (hA + 4 + k, hTag))
    lr, lo = a.lab("Lr"), a.lab("Lo")
    a("  s_mov_b32 s%d, 0" % sCnt)
    a("%s:" % lr)
    a("  buffer_load_dwordx4 v[%d:%d], v%d, s[%d:%d], s%d offen sc1" % (hA, hA + 3, T0, sWs, sWs + 3, sT[0]))
    a("  s_mov_b64 s[%d:%d], exec" % (sT[4], sT[5]))
    a("  s_and_b32 exec_hi, exec_hi, 0xffff")
    ls = a.lab("Ls")
    a("  s_cbranch_execz %s" % ls)
    a("  buffer_load_dwordx4 v[%d:%d], v%d, s[%d:%d], s%d offen offset:1024 sc1" % (hA + 4, hA + 7, T0, sWs, sWs + 3, sT[0]))
    a("%s:" % ls)
    a("  s_mov_b64 exec, s[%d:%d]" % (sT[4], sT[5]))
    a("  s_waitcnt vmcnt(0)")
    tag_retry(range(hA, hA + 8), lr, lo, T2, T3, ffn_sleep)
    a("%s:" % lo)
    a("  s_mov_b64 exec, -1")
    pk("v_pk_add_f32", hA, hA, hA + 4)
    pk("v_pk_add_f32", hA + 2, hA + 2, hA + 6)
    reduce_hd(hA, hA + 4)
    hGv = hXf + 4
    for k in range(4):
        round_bf16(hA + k)
    a("  s_mov_b32 s%d, 0xBFB8AA3B" % sT[2])
    for k in range(4):
        a("  v_mul_f32 v%d, s%d, v%d" % (hA + 4 + k, sT[2], hA + k))
    for k in range(4):
        a("  v_exp_f32 v%d, v%d" % (hA + 4 + k, hA + 4 + k))
    a("  s_nop 0")
    for k in range(4):
        a("  v_add_f32 v%d, 1.0, v%d" % (hA + 4 + k, hA + 4 + k))
    for k in range(4):
        a("  v_rcp_f32 v%d, v%d" % (hA + 4 + k, hA + 4 + k))
    a("  s_nop 0")
    for k in range(4):
        a("  v_mul_f32 v%d, v%d, v%d" % (hGv + k, hA + k, hA + 4 + k))
    for k in range(4):
        round_bf16(hGv + k)
    a("  v_lshlrev_b32 v%d, 16, v%d" % (hXf, hA + 8))
    a("  v_and_b32 v%d, s%d, v%d" % (hXf + 1, sHi2, hA + 8))
    a("  v_lshlrev_b32 v%d, 16, v%d" % (hXf + 2, hA + 9))
    a("  v_and_b32 v%d, s%d, v%d" % (hXf + 3, sHi2, hA + 9))
    stamp("prep done")

    a("L_B1:")
    a("  v_lshlrev_b32 v%d, 7, v%d" % (T0, hI))
    a("  v_lshl_add_u32 v%d, v%d, 5, v%d" % (T0, hG, T0))
    a("  s_lshl_b32 s%d, s%d, 14" % (sT[0], sHq))
    a("  s_lshl_b32 s%d, s%d, 11" % (sT[1], sHW))
    a("  s_add_u32 s%d, s%d, s%d" % (sT[0], sT[0], sT[1]))
    a("  s_add_u32 s%d, s%d, %d" % (sT[0], sT[0], OP))
    a("  s_add_u32 s%d, s%d, 8192" % (sT[1], sT[0]))
    a("  v_lshlrev_b32 v%d, 8, v%d" % (T1, hG))
    a("  v_lshl_add_u32 v%d, v%d, 2, v%d" % (T1, hI, T1))
    a("  s_lshl_b32 s%d, s%d, 11" % (sT[2], sHW))
    a("  s_add_u32 s%d, s%d, %d" % (sT[2], sT[2], WOS))
    a("  v_add_u32 v%d, s%d, v%d" % (T1, sT[2], T1))
    a("  s_barrier                      ; B1")
    stamp("B1")
    lw0, lw1 = a.lab("Lew"), a.lab("Lew")
    a("  s_cmp_lg_u32 s%d, 0" % sHW)
    a("  s_cbranch_scc1 %s" % lw0)
    a("  v_lshlrev_b32 v%d, 4, v0" % T4)
    a("  v_mov_b32 v%d, v%d" % (T5, T4))
    a("  s_lshl_b32 s%d, s%d, 9" % (sT[2], sX))
    a("  s_add_u32 s%d, s%d, %d" % (sT[2], sT[2], EW))
    lr, lo = a.lab("Lr"), a.lab("Lo")
    a("  s_mov_b32 s%d, 0" % sCnt)
    a("  s_mov_b32 exec_hi, 0")
    a("%s:" % lr)
    a("  buffer_load_dwordx4 v[%d:%d], v%d, s[%d:%d], s%d offen sc1" % (hA, hA + 3, T5, sWs, sWs + 3, sT[2]))
    a("  s_waitcnt vmcnt(0)")
    tag_retry(range(hA, hA + 4), lr, lo, T2, T3, 2)
    a("%s:" % lo)
    a("  s_mov_b64 exec, -1")
    lds_add(hMisc, F_EW, hOne)
    a("  s_branch %s" % lw1)
    a("%s:" % lw0)
    lds_wait(hMisc, F_EW, 1, T5)
    a("%s:" % lw1)
    stamp("EW ok")
    lr, lo = a.lab("Lr"), a.lab("Lo")
    a("  s_mov_b32 s%d, 0" % sCnt)
    a("%s:" % lr)
    for rt in range(2):
        a("  buffer_load_dwordx4 v[%d:%d], v%d, s[%d:%d], s%d offen sc1" % (hA + 8 * rt, hA + 8 * rt + 3, T0, sWs, sWs + 3, sT[rt]))
        a("  buffer_load_dwordx4 v[%d:%d], v%d, s[%d:%d], s%d offen offset:16 sc1" % (hA + 8 * rt + 4, hA + 8 * rt + 7, T0, sWs, sWs + 3, sT[rt]))
    a("  s_waitcnt vmcnt(0)")
    tag_retry(range(hA, hA + 16), lr, lo, T2, T3, hop_sleep)
    a("%s:" % lo)
    a("  s_mov_b64 exec, -1")
    stamp("hop1 ok")
    for k in range(8):
        a("  v_cvt_pk_bf16_f32 v%d, v%d, v%d" % (hB + k, hA + 2 * k, hA + 2 * k + 1))
    a("  s_nop 1")
    for rt in range(2):
        for ct in range(4):
            d = hD + (rt * 4 + ct) * 4
            a("  v_mfma_f32_16x16x32_bf16 v[%d:%d], v[%d:%d], v[%d:%d], 0" % (d, d + 3, hB + 4 * rt, hB + 4 * rt + 3, hW + ct * 4, hW + ct * 4 + 3))
    a("  s_nop 0")
    for n in range(8):
        d = hD + n * 4
        pk("v_pk_add_f32", d, d, d + 2)
        a("  v_add_f32 v%d, v%d, v%d" % (d, d, d + 1))
    for rt in range(2):
        for ct in range(4):
            d = hD + (rt * 4 + ct) * 4
            a("  ds_write_b32 v%d, v%d offset:%d" % (T1, d, rt * 1024 + ct * 64))
    a("  s_waitcnt lgkmcnt(0)")
    lds_add(hMisc, F_HOP1, hOne)
    a("  s_cmp_eq_u32 s%d, 0" % sHW)
    a("  s_cbranch_scc1 L_hop2")
    a("  s_cmp_eq_u32 s%d, 1" % sHW)
    a("  s_cbranch_scc1 L_H_done")
    a("  s_sub_u32 s%d, s%d, 2" % (sT[0], sHW))
    a("  s_lshl_b32 s%d, s%d, 10" % (sT[1], sT[0]))
    a("  s_add_u32 s%d, s%d, %d" % (sT[1], sT[1], WOS))
    a("  v_lshlrev_b32 v%d, 8, v%d" % (T0, hG))
    a("  v_lshl_add_u32 v%d, v%d, 4, v%d      ; g*256 + i*16" % (T0, hI, T0))
    a("  v_add_u32 v%d, s%d, v%d" % (T0, sT[1], T0))
    a("  v_lshlrev_b32 v%d, 16, v%d" % (T1, hG))
    a("  v_lshrrev_b32 v%d, 3, v%d" % (T2, hI))
    a("  v_lshl_add_u32 v%d, v%d, 12, v%d" % (T1, T2, T1))
    a("  v_and_b32 v%d, 7, v%d" % (T2, hI))
    a("  v_lshl_add_u32 v%d, v%d, 4, v%d" % (T1, T2, T1))
    a("  s_lshl_b32 s%d, s%d, 18" % (sT[0], sT[0]))
    a("  s_lshl_b32 s%d, s%d, 13" % (sT[1], sB))
    a("  s_add_u32 s%d, s%d, s%d" % (sT[0], sT[0], sT[1]))
    a("  s_lshl_b32 s%d, s%d, 7" % (sT[1], sHq))
    a("  s_add_u32 s%d, s%d, s%d" % (sT[0], sT[0], sT[1]))
    a("  s_add_u32 s%d, s%d, %d" % (sT[0], sT[0], SP))
    lds_wait(hMisc, F_HOP1, 4, T5)
    for w in range(4):
        a("  ds_read_b128 v[%d:%d], v%d offset:%d" % (hA + 4 * w, hA + 4 * w + 3, T0, w * 2048))
    a("  s_waitcnt lgkmcnt(0)")
    for k in (0, 2):
        pk("v_pk_add_f32", hA + k, hA + k, hA + 4 + k)
        pk("v_pk_add_f32", hA + 8 + k, hA + 8 + k, hA + 12 + k)
    for k in (0, 2):
        pk("v_pk_add_f32", hA + k, hA + k, hA + 8 + k)
    for k in range(4):
        tag(hA + k)
    a("  buffer_store_dwordx4 v[%d:%d], v%d, s[%d:%d], s%d offen sc1" % (hA, hA + 3, T1, sWs, sWs + 3, sT[0]))
    a("  s_waitcnt vmcnt(0)")
    a("  s_branch L_H_done")

    a("L_hop2:")
    a("  v_lshrrev_b32 v%d, 2, v0" % T0)
    a("  v_lshlrev_b32 v%d, 7, v%d" % (T0, T0))
    a("  v_and_b32 v%d, 3, v0" % T1)
    a("  v_lshl_add_u32 v%d, v%d, 4, v%d" % (T0, T1, T0))
    a("  s_lshr_b32 s%d, s%d, 1" % (sT[0], sFidx))
    a("  s_lshl_b32 s%d, s%d, 12" % (sT[0], sT[0]))
    a("  s_and_b32 s%d, s%d, 1" % (sT[1], sFidx))
    a("  s_lshl_b32 s%d, s%d, 6" % (sT[1], sT[1]))
    a("  s_add_u32 s%d, s%d, s%d" % (sT[0], sT[0], sT[1]))
    a("  s_add_u32 s%d, s%d, %d" % (sT[0], sT[0], SP))
    lr, lo = a.lab("Lr"), a.lab("Lo")
    a("  s_mov_b32 s%d, 0" % sCnt)
    a("%s:" % lr)
    a("  buffer_load_dwordx4 v[%d:%d], v%d, s[%d:%d], s%d offen sc1" % (hA, hA + 3, T0, sWs, sWs + 3, sT[0]))
    a("  buffer_load_dwordx4 v[%d:%d], v%d, s[%d:%d], s%d offen offset:2048 sc1" % (hA + 4, hA + 7, T0, sWs, sWs + 3, sT[0]))
    a("  s_waitcnt vmcnt(0)")
    tag_retry(range(hA, hA + 8), lr, lo, T2, T3, hop_sleep)
    a("%s:" % lo)
    a("  s_mov_b64 exec, -1")
    stamp("hop2 ok")
    pk("v_pk_add_f32", hA, hA, hA + 4)
    pk("v_pk_add_f32", hA + 2, hA + 2, hA + 6)
    reduce_hd(hA, hA + 4)
    for k in range(4):
        round_bf16(hA + k)
    for k in range(4):
        a("  v_mul_f32 v%d, v%d, v%d" % (hA + k, hA + k, hGv + k))
    for k in range(4):
        round_bf16(hA + k)
    for k in range(4):
        a("  v_add_f32 v%d, v%d, v%d" % (hA + k, hA + k, hXf + k))
    a("  v_cvt_pk_bf16_f32 v%d, v%d, v%d" % (hA, hA, hA + 1))
    a("  v_cvt_pk_bf16_f32 v%d, v%d, v%d" % (hA + 1, hA + 2, hA + 3))
    a("  s_mov_b64 exec, 15")
    a("  buffer_store_dwordx2 v[%d:%d], v%d, s[%d:%d], 0 offen" % (hA, hA + 1, hOutOff, sOut, sOut + 3))
    a("  s_mov_b64 exec, -1")
    le = a.lab("Le")
    a("  s_cmp_lg_u32 s2, 0")
    a("  s_cbranch_scc1 %s" % le)
    a("  s_add_u32 s%d, s%d, 1" % (sT[0], sEp))
    a("  v_mov_b32 v%d, s%d" % (hA + 2, sT[0]))
    a("  v_mov_b32 v%d, %d" % (T0, EPOCH))
    a("  s_mov_b64 exec, 1")
    a("  buffer_store_dword v%d, v%d, s[%d:%d], 0 offen sc1" % (hA + 2, T0, sWs, sWs + 3))
    a("  s_mov_b64 exec, -1")
    a("%s:" % le)
    stamp("end")
    if dbgtime:
        a("  s_memrealtime s[98:99]")
        a("  s_load_dwordx2 s[92:93], s[0:1], 80")
        a("  s_waitcnt lgkmcnt(0)")
        a("  s_mov_b32 s94, 256")
        a("  s_mov_b32 s95, 0x20000")
        a("  s_not_b32 s100, s100")
        a("  v_mov_b32 v%d, s100" % hA)
        a("  v_mov_b32 v%d, s98" % (hA + 1))
        a("  v_mov_b32 v%d, 0" % T0)
        a("  s_mov_b64 exec, 1")
        a("  buffer_atomic_umax v%d, v%d, s[92:95], 0 offen sc1" % (hA, T0))
        a("  buffer_atomic_umax v%d, v%d, s[92:95], 0 offen offset:4 sc1" % (hA + 1, T0))
        a("  s_mov_b64 exec, -1")
    a("L_tsdump:")
    if ts:
        a("  s_waitcnt lgkmcnt(0)")
        a("  s_lshl_b32 s%d, s2, 8" % sT[0])
        a("  s_add_u32 s%d, s%d, %d" % (sT[0], sT[0], TSOFF + 0x10000))
        a("  v_mov_b32 v%d, 0" % T2)
        a("  s_mov_b64 exec, 1")
        for i in range(len(names["H"])):
            a("  v_mov_b32 v%d, s%d" % (hA, TS0 + 2 * i))
            a("  v_mov_b32 v%d, s%d" % (hA + 1, TS0 + 2 * i + 1))
            a("  buffer_store_dwordx2 v[%d:%d], v%d, s[%d:%d], s%d offen offset:%d" % (hA, hA + 1, T2, sWs, sWs + 3, sT[0], 8 * i))
            a("  s_waitcnt vmcnt(0)")
        a("  s_mov_b64 exec, -1")
    a("  s_waitcnt vmcnt(0)")
    a("L_H_done:")
    a("L_end:")
    a("  s_endpgm")

    body = a.text()
    s = HEADER
    s += "; @launch grid=(256,1,1) block=(512,1,1) lds=%d\n" % LDS_TOTAL
    s += '.amdgcn_target "amdgcn-amd-amdhsa--gfx950"\n.text\n'
    s += ".globl %s\n.p2align 8\n.type %s,@function\n%s:\n" % (KNAME, KNAME, KNAME)
    s += body
    s += """
.section .rodata,"a"
.p2align 6
.amdhsa_kernel %s
  .amdhsa_next_free_vgpr %d
  .amdhsa_next_free_sgpr 102
  .amdhsa_accum_offset %d
  .amdhsa_group_segment_fixed_size 0
  .amdhsa_kernarg_size 96
  .amdhsa_user_sgpr_count 2
  .amdhsa_user_sgpr_kernarg_segment_ptr 1
  .amdhsa_system_sgpr_workgroup_id_x 1
.end_amdhsa_kernel
""" % (KNAME, NV, NV)
    gen.names = names
    return s


if __name__ == "__main__":
    kw = {}
    out = "main.s"
    for arg in sys.argv[1:]:
        if "=" in arg:
            k, v = arg.split("=")
            kw[k] = int(v)
        else:
            out = arg
    open(out, "w").write(gen(**kw))
    import json
    json.dump(gen.names, open(out[:-2] + ".names.json", "w"))
    print("wrote", out)
```

```python
import sys
from asmlib import HEADER, KNAME

QP = 0x000000
GP = 0x080000
HH = 0x0F0000
OP = 0x100000
ST = 0x180000
DP = 0x190000
SP = 0x210000
EPOCH = 0x0FF000
EW = 0x2A0000
TSOFF = 0x0F000000

RING = 32768
MISC = 131072
XN = MISC
XN_STRIDE = 1040
QL = MISC + 8448
QL_STRIDE = 272
WOS = QL + 1088
WOS = (WOS + 255) // 256 * 256
FLG = WOS + 16384
F_H1 = 0; F_H3 = 8; F_QRDY = 16; F_STG = 20; F_ST = 24; F_HOP1 = 32; F_EW = 36; F_RED = 40; F_DOWN = 44; F_LATE = 48; F_EWS = 52; F_LOC = 56; F_MID = 60
SSTAT = 64
FFAC = 192
SPARE = FLG + 256
LDS_TOTAL = SPARE + 4096
assert LDS_TOTAL <= 163840, LDS_TOTAL
SPIN_LIMIT = 200000


class Asm:
    def __init__(self):
        self.lines = []
        self.nlab = 0

    def __call__(self, s=""):
        for l in s.split("\n"):
            self.lines.append(l)

    def lab(self, base="L"):
        self.nlab += 1
        return "%s_%d" % (base, self.nlab)

    def text(self):
        return "\n".join(self.lines) + "\n"


def vr(base, n=1):
    return "v%d" % base if n == 1 else "v[%d:%d]" % (base, base + n - 1)


def sr(base, n=1):
    return "s%d" % base if n == 1 else "s[%d:%d]" % (base, base + n - 1)


DPP = "row_mask:0xf bank_mask:0xf"


def gen(ts=False, dbg=0, rotmode=0, depth=6, noq=0, noffn=0, hop_sleep=2, ew_it=3, dbgtime=0, noh=0, ffn_sleep=24, skip=0, st_sleep=4, late_it=1, uselocal=1, mid_it=2, r4=0, gnt=0, xnt=0, pf=1, b0pos=1):
    a = Asm()
    sW, sX, sLi, sCnt = 3, 4, 5, 6
    sT = [20, 21, 22, 23, 24, 25, 26, 27]
    TS0 = 68
    nts = [0]

    names = {"S": ["start"], "H": ["start"]}
    role = ["S"]

    def stamp(name):
        if name == 0:
            if ts:
                a("  s_memrealtime s[%d:%d]" % (TS0, TS0 + 1))
            return
        lst = names[role[0]]
        if name not in lst:
            lst.append(name)
        idx = lst.index(name)
        assert TS0 + 2 * idx + 1 <= 101
        if ts:
            a("  s_memrealtime s[%d:%d]" % (TS0 + 2 * idx, TS0 + 2 * idx + 1))

    def lds_wait(vbase, off, n, vtmp, sleep=1):
        l0, l1 = a.lab("Lw"), a.lab("Lwd")
        a("  s_mov_b32 s%d, 0" % sCnt)
        a("%s:" % l0)
        a("  ds_read_b32 v%d, v%d offset:%d" % (vtmp, vbase, off))
        a("  s_waitcnt lgkmcnt(0)")
        a("  v_readfirstlane_b32 s%d, v%d" % (sT[7], vtmp))
        a("  s_cmp_ge_u32 s%d, %d" % (sT[7], n))
        a("  s_cbranch_scc1 %s" % l1)
        a("  s_add_u32 s%d, s%d, 1" % (sCnt, sCnt))
        a("  s_cmp_lt_u32 s%d, %d" % (sCnt, SPIN_LIMIT))
        a("  s_cbranch_scc0 %s" % l1)
        a("  s_sleep %d" % sleep)
        a("  s_branch %s" % l0)
        a("%s:" % l1)

    def lds_add(vbase, off, vone):
        a("  s_mov_b64 exec, 1")
        a("  ds_add_u32 v%d, v%d offset:%d" % (vbase, vone, off))
        a("  s_mov_b64 exec, -1")

    def store_loc(stores, sflag):
        l0, l1 = a.lab("Lsl"), a.lab("Lsl")
        a("  s_cmp_eq_u32 s%d, 0" % sflag)
        a("  s_cbranch_scc1 %s" % l0)
        for st in stores:
            a(st)
        a("  s_branch %s" % l1)
        a("%s:" % l0)
        for st in stores:
            a(st + " sc1")
        a("%s:" % l1)

    def reduce_swap(op, v, t, kind):
        a("  v_mov_b32 v%d, v%d" % (t, v))
        a("  s_nop 1")
        a("  v_permlane%d_swap_b32 v%d, v%d" % (kind, v, t))
        a("  %s v%d, v%d, v%d" % (op, v, v, t))

    a("  s_cmp_ge_u32 s2, 256")
    a("  s_cbranch_scc1 L_end")
    stamp(0)
    if dbgtime:
        a("  s_memrealtime s[100:101]")
    a("  v_lshrrev_b32 v1, 6, v0")
    a("  v_and_b32 v0, 63, v0            ; lane")
    a("  v_readfirstlane_b32 s%d, v1     ; wave id" % sW)
    a("  s_and_b32 s%d, s2, 7" % sX)
    a("  s_lshr_b32 s%d, s2, 3" % sLi)
    a("  s_cmp_ge_u32 s%d, 4" % sW)
    a("  s_cbranch_scc1 L_H")

    sK, sV, sCur = 8, 12, 16
    sBaseW, sRot, sRing, sIss, sOff, sIt = 28, 29, 30, 31, 32, 33
    sOff1 = 50
    sM = 34
    sScale, sHi = 42, 43
    vLane = 0
    vMisc, vOne = 2, 3
    vKo, vVo, vCo = 4, 8, 12
    vKa = 16
    vVa = 20
    vTmp = 28
    vSp = 36
    vPf = 44
    vAcc = 52
    vE = 56
    vSt = 72
    vO = 104
    vQ = 136
    NV = 200

    sWsS = 44
    sEp = 48
    sBaseW1 = 49
    a("  s_load_dwordx2 s[%d:%d], s[0:1], 8" % (sCur, sCur + 1))
    a("  s_load_dwordx2 s[%d:%d], s[0:1], 16" % (sV, sV + 1))
    a("  s_load_dwordx2 s[%d:%d], s[0:1], 88" % (sWsS, sWsS + 1))
    a("  s_mov_b32 s%d, 0x4000000" % (sCur + 2))
    a("  s_mov_b32 s%d, 0x20000" % (sCur + 3))
    a("  s_lshr_b32 s%d, s%d, 2" % (sT[0], sLi))
    a("  s_lshl_b32 s%d, s%d, 3" % (sT[0], sT[0]))
    a("  s_add_u32 s%d, s%d, s%d" % (sT[0], sT[0], sX))
    a("  s_lshl_b32 s%d, s%d, 2" % (sT[0], sT[0]))
    a("  s_and_b32 s%d, s%d, 3" % (sT[1], sLi))
    a("  s_add_u32 s%d, s%d, s%d" % (sT[0], sT[0], sT[1]))
    a("  s_lshl_b32 s%d, s%d, 18" % (sT[0], sT[0]))
    a("  s_lshl_b32 s%d, s%d, 13" % (sT[1], sW))
    if r4:
        if r4 == 1:
            a("  s_lshl_b32 s%d, s%d, 12" % (sT[2], sLi))
        else:
            a("  s_lshr_b32 s%d, s%d, 2" % (sT[2], sLi))
            a("  s_add_u32 s%d, s%d, s%d" % (sT[2], sT[2], sX))
            a("  s_lshl_b32 s%d, s%d, 12" % (sT[2], sT[2]))
        a("  s_add_u32 s%d, s%d, s%d" % (sT[1], sT[1], sT[2]))
        a("  s_add_u32 s%d, s%d, 4096" % (sT[2], sT[1]))
        a("  s_and_b32 s%d, s%d, 0x7fff" % (sT[1], sT[1]))
        a("  s_and_b32 s%d, s%d, 0x7fff" % (sT[2], sT[2]))
        a("  s_add_u32 s%d, s%d, s%d" % (sBaseW, sT[0], sT[1]))
        a("  s_add_u32 s%d, s%d, s%d" % (sBaseW1, sT[0], sT[2]))
    else:
        a("  s_add_u32 s%d, s%d, s%d" % (sBaseW, sT[0], sT[1]))
        a("  s_add_u32 s%d, s%d, 4096" % (sBaseW1, sBaseW))
    if rotmode == 0:
        sRotR = 2
    elif rotmode == 3:
        sRotR = sLi
    else:
        a("  s_add_u32 s%d, s2, s%d" % (sRot, sLi))
        sRotR = sRot
    a("  s_lshl_b32 s%d, s%d, 15" % (sRing, sW))
    a("  s_mov_b32 s%d, 0" % sIss)
    t0, t1, t2 = vTmp, vTmp + 1, vTmp + 2
    a("  v_lshrrev_b32 v%d, 4, v%d      ; g = l>>4" % (t0, vLane))
    a("  v_and_b32 v%d, 15, v%d         ; c' = l&15" % (t1, vLane))
    for i in range(4):
        a("  v_add_u32 v%d, %d, v%d" % (t2, 4 * i, t0))
        a("  v_xor_b32 v%d, v%d, v%d" % (t2, t2, t1))
        a("  v_lshlrev_b32 v%d, 4, v%d" % (t2, t2))
        a("  v_lshl_add_u32 v%d, v%d, 8, v%d" % (vCo + i, t0, t2))
    a("  v_mov_b32 v%d, %d" % (vMisc, FLG))
    a("  v_mov_b32 v%d, 1" % vOne)
    a("  s_waitcnt lgkmcnt(0)")
    a("  s_barrier                      ; B0")

    def issue_unit(switch=False):
        if switch:
            lsw = a.lab("Lsw")
            a("  s_cmp_lg_u32 s%d, 8" % sIss)
            a("  s_cbranch_scc1 %s" % lsw)
            for i in range(4):
                a("  s_mov_b32 s%d, s%d" % (sCur + i, sV + i))
            for i in range(4):
                a("  v_mov_b32 v%d, v%d" % (vCo + i, vVo + (i & 1)))
            a("%s:" % lsw)
        a("  s_add_u32 s%d, s%d, s%d" % (sT[0], sIss, sRotR))
        a("  s_and_b32 s%d, s%d, 7" % (sT[0], sT[0]))
        a("  s_lshl_b32 s%d, s%d, 15" % (sT[0], sT[0]))
        a("  s_add_u32 s%d, s%d, s%d" % (sOff, sT[0], sBaseW))
        a("  s_add_u32 s%d, s%d, s%d" % (sOff1, sT[0], sBaseW1))
        a("  s_and_b32 s%d, s%d, 3" % (sT[0], sIss))
        a("  s_lshl_b32 s%d, s%d, 13" % (sT[0], sT[0]))
        a("  s_add_u32 m0, s%d, s%d" % (sT[0], sRing))
        a("  s_add_u32 s%d, s%d, 1" % (sIss, sIss))
        a("  s_waitcnt vmcnt(%d)" % (depth - 1))
        for i in range(4):
            a("  buffer_load_dwordx4 v%d, s[%d:%d], s%d offen offset:%d nt lds" % (vCo + i, sCur, sCur + 3, sOff, i * 1024))
            if i < 3:
                a("  s_waitcnt vmcnt(%d)" % (depth - 1))
        a("  s_add_u32 m0, m0, 4096")
        a("  s_waitcnt vmcnt(%d)" % (depth - 1))
        for i in range(4):
            a("  buffer_load_dwordx4 v%d, s[%d:%d], s%d offen offset:%d nt lds" % (vCo + i, sCur, sCur + 3, sOff1, i * 1024))
            if i < 3:
                a("  s_waitcnt vmcnt(%d)" % (depth - 1))

    a("L_fill:")
    a("  s_cmp_lg_u32 s%d, 3" % sIss)
    a("  s_cbranch_scc1 L_fill_go")
    stamp("u2 issued")
    lds_wait(vMisc, F_STG, 4, vTmp + 5)
    stamp("STG ok")
    a("L_fill_go:")
    issue_unit()
    a("  s_cmp_lg_u32 s%d, 1" % sIss)
    a("  s_cbranch_scc1 L_fill_next")
    if pf:
        lpf = a.lab("Lpf")
        a("  s_cmp_lg_u32 s%d, 3" % sW)
        a("  s_cbranch_scc1 %s" % lpf)
        a("  s_and_b32 s%d, s%d, 15" % (sT[0], sLi))
        a("  s_cmp_lg_u32 s%d, 0" % sT[0])
        a("  s_cbranch_scc1 %s" % lpf)
        a("  s_getpc_b64 s[%d:%d]" % (sT[2], sT[3]))
        a("L_pc:")
        a("  v_lshlrev_b32 v%d, 7, v%d" % (t2, vLane))
        a("  v_add_u32 v%d, 0x2000, v%d" % (vTmp + 3, t2))
        a("  global_load_dword v%d, v%d, s[%d:%d]" % (vSt, t2, sT[2], sT[3]))
        a("  v_cmp_gt_u32 vcc, L_code_end-L_pc, v%d" % (vTmp + 3))
        a("  s_and_saveexec_b64 s[%d:%d], vcc" % (sT[4], sT[5]))
        a("  s_cbranch_execz L_pf_done")
        a("  global_load_dword v%d, v%d, s[%d:%d]" % (vSt + 1, vTmp + 3, sT[2], sT[3]))
        a("L_pf_done:")
        a("  s_mov_b64 exec, -1")
        a("%s:" % lpf)
    a("L_fill_next:")
    a("  s_cmp_lt_u32 s%d, 4" % sIss)
    a("  s_cbranch_scc1 L_fill")
    a("  s_load_dword s%d, s[%d:%d], 0x%x" % (sEp, sWsS, sWsS + 1, EPOCH))
    a("  s_mov_b32 s%d, 0x4000000" % (sV + 2))
    a("  s_mov_b32 s%d, 0x20000" % (sV + 3))
    a("  s_mov_b32 s%d, 0x10000000" % (sWsS + 2))
    a("  s_mov_b32 s%d, 0x20000" % (sWsS + 3))
    for i in range(2):
        a("  v_add_u32 v%d, %d, v%d" % (t2, 4 * i, t0))
        a("  v_lshlrev_b32 v%d, 1, v%d" % (t2, t2))
        a("  v_xor_b32 v%d, v%d, v%d" % (t2, t2, t1))
        a("  v_lshlrev_b32 v%d, 4, v%d" % (t2, t2))
        a("  v_lshl_add_u32 v%d, v%d, 8, v%d" % (vVo + i, t0, t2))
    for s in range(4):
        a("  v_add_u32 v%d, %d, v%d" % (t2, 4 * s, t0))
        a("  v_xor_b32 v%d, v%d, v%d" % (t2, t2, t1))
        a("  v_lshlrev_b32 v%d, 4, v%d" % (t2, t2))
        a("  v_lshl_add_u32 v%d, v%d, 8, v%d" % (t2, t1, t2))
        a("  v_add_u32 v%d, s%d, v%d" % (vKa + s, sRing, t2))
    t3, t4 = vTmp + 3, vTmp + 4
    a("  v_lshrrev_b32 v%d, 2, v%d" % (t2, t1))
    a("  v_lshl_add_u32 v%d, v%d, 2, v%d    ; row" % (t2, t0, t2))
    a("  v_and_b32 v%d, 7, v%d              ; row&7" % (t3, t2))
    a("  v_lshlrev_b32 v%d, 8, v%d" % (t2, t2))
    a("  v_and_b32 v%d, 3, v%d" % (t4, t1))
    a("  v_lshl_add_u32 v%d, v%d, 3, v%d" % (t2, t4, t2))
    a("  v_add_u32 v%d, s%d, v%d" % (t2, sRing, t2))
    for dt in range(8):
        a("  v_xor_b32 v%d, %d, v%d" % (t4, dt, t3))
        a("  v_lshl_add_u32 v%d, v%d, 5, v%d" % (vVa + dt, t4, t2))
    for i in range(64):
        a("  v_mov_b32 v%d, 0" % (vQ + i))
    a("  v_bfe_u32 v%d, v%d, 2, 2" % (t2, vLane))
    for t in range(4):
        a("  v_cmp_eq_u32 s[%d:%d], %d, v%d" % (sM + 2 * t, sM + 2 * t + 1, t, t2))
    a("  v_and_b32 v%d, 3, v%d" % (t2, vLane))
    a("  v_mul_u32_u24 v%d, %d, v%d" % (t2, QL_STRIDE, t2))
    a("  v_lshl_add_u32 v%d, v%d, 4, v%d" % (t2, t0, t2))
    a("  v_add_u32 v%d, %d, v%d" % (t2, QL, t2))
    a("  s_mov_b32 s%d, 0x3DB504F3      ; 128^-0.5" % sScale)
    a("  s_mov_b32 s%d, 0xffff0000" % sHi)
    stamp("fill done")
    if not noq:
        lds_wait(vMisc, F_QRDY, 4, vTmp + 5)
    stamp("Q ready")
    for t in range(4):
        a("  s_mov_b64 exec, s[%d:%d]" % (sM + 2 * t, sM + 2 * t + 1))
        for s in range(4):
            r = vQ + (t * 4 + s) * 4
            a("  ds_read_b128 v[%d:%d], v%d offset:%d" % (r, r + 3, t2, 64 * s))
    a("  s_mov_b64 exec, -1")
    a("  s_mov_b32 s%d, 0" % sIt)
    a("  s_waitcnt vmcnt(0) lgkmcnt(0)")

    a("L_k:")
    lmid = a.lab("Lmid")
    a("  s_cmp_lg_u32 s%d, 0" % sW)
    a("  s_cbranch_scc1 %s" % lmid)
    a("  s_cmp_lg_u32 s%d, %d" % (sIt, mid_it))
    a("  s_cbranch_scc1 %s" % lmid)
    lds_add(vMisc, F_MID, vOne)
    a("%s:" % lmid)
    for u in range(2):
        if u == 0:
            lsk = a.lab("Lsk")
            a("  s_cmp_lt_u32 s%d, 3" % sIt)
            a("  s_cbranch_scc1 %s" % lsk)
            issue_unit()
            a("%s:" % lsk)
        else:
            issue_unit(switch=True)
        for hf in range(2):
            for s_ in range(4):
                r = vSt + (hf * 4 + s_) * 4
                a("  ds_read_b128 v[%d:%d], v%d offset:%d" % (r, r + 3, vKa + s_, u * 8192 + hf * 4096))
        for hf in range(2):
            a("  s_waitcnt lgkmcnt(%d)" % (4 if hf == 0 else 0))
            t = 2 * u + hf
            for s_ in range(4):
                r = vSt + (hf * 4 + s_) * 4
                q = vQ + (t * 4 + s_) * 4
                c = "0" if (u == 0 and hf == 0 and s_ == 0) else "v[%d:%d]" % (vAcc, vAcc + 3)
                a("  v_mfma_f32_16x16x32_bf16 v[%d:%d], v[%d:%d], v[%d:%d], %s" % (vAcc, vAcc + 3, r, r + 3, q, q + 3, c))
    for i in range(6):
        a("  v_mov_b32 v%d, v%d" % (vSp + i, vSp + i + 2))
    for s in range(4):
        a("  v_xor_b32 v%d, 0x4000, v%d" % (vKa + s, vKa + s))
    c0, c1 = vTmp, vTmp + 1
    e0 = vTmp + 2
    a("  v_cvt_pk_bf16_f32 v%d, v%d, v%d" % (c0, vAcc, vAcc + 1))
    a("  v_cvt_pk_bf16_f32 v%d, v%d, v%d" % (c1, vAcc + 2, vAcc + 3))
    a("  v_lshlrev_b32 v%d, 16, v%d" % (e0, c0))
    a("  v_and_b32 v%d, s%d, v%d" % (e0 + 1, sHi, c0))
    a("  v_lshlrev_b32 v%d, 16, v%d" % (e0 + 2, c1))
    a("  v_and_b32 v%d, s%d, v%d" % (e0 + 3, sHi, c1))
    for i in range(4):
        a("  v_mul_f32 v%d, s%d, v%d" % (e0 + i, sScale, e0 + i))
    a("  v_cvt_pk_bf16_f32 v%d, v%d, v%d" % (vSp + 6, e0, e0 + 1))
    a("  v_cvt_pk_bf16_f32 v%d, v%d, v%d" % (vSp + 7, e0 + 2, e0 + 3))
    a("  s_add_u32 s%d, s%d, 1" % (sIt, sIt))
    a("  s_cmp_lt_u32 s%d, 4" % sIt)
    a("  s_cbranch_scc1 L_k")
    stamp("K done")

    for i in range(8):
        a("  v_lshlrev_b32 v%d, 16, v%d" % (vE + 2 * i, vSp + i))
        a("  v_and_b32 v%d, s%d, v%d" % (vE + 2 * i + 1, sHi, vSp + i))
    vM, vL, vX = vTmp, vTmp + 1, vTmp + 2
    a("  v_max3_f32 v%d, v%d, v%d, v%d" % (vM, vE, vE + 1, vE + 2))
    for i in range(3, 15, 2):
        a("  v_max3_f32 v%d, v%d, v%d, v%d" % (vM, vM, vE + i, vE + i + 1))
    a("  v_max_f32 v%d, v%d, v%d" % (vM, vM, vE + 15))
    a("  s_nop 1")
    a("  v_max_f32_dpp v%d, v%d, v%d row_ror:4 %s" % (vM, vM, vM, DPP))
    a("  s_nop 1")
    a("  v_max_f32_dpp v%d, v%d, v%d row_ror:8 %s" % (vM, vM, vM, DPP))
    reduce_swap("v_max_f32", vM, vX, 16)
    reduce_swap("v_max_f32", vM, vX, 32)
    a("  s_mov_b32 s%d, 0x3FB8AA3B      ; log2(e)" % sT[0])
    a("  v_mul_f32 v%d, s%d, v%d" % (vX, sT[0], vM))
    for i in range(16):
        a("  v_fma_f32 v%d, v%d, s%d, -v%d" % (vE + i, vE + i, sT[0], vX))
    for i in range(16):
        a("  v_exp_f32 v%d, v%d" % (vE + i, vE + i))
    a("  s_nop 0")
    for i in range(8):
        a("  v_cvt_pk_bf16_f32 v%d, v%d, v%d" % (vSp + i, vE + 2 * i, vE + 2 * i + 1))
    for i in range(4):
        a("  v_pk_add_f32 v[%d:%d], v[%d:%d], v[%d:%d]" % (vE + 2 * i, vE + 2 * i + 1, vE + 2 * i, vE + 2 * i + 1, vE + 8 + 2 * i, vE + 9 + 2 * i))
    for i in range(2):
        a("  v_pk_add_f32 v[%d:%d], v[%d:%d], v[%d:%d]" % (vE + 2 * i, vE + 2 * i + 1, vE + 2 * i, vE + 2 * i + 1, vE + 4 + 2 * i, vE + 5 + 2 * i))
    a("  v_pk_add_f32 v[%d:%d], v[%d:%d], v[%d:%d]" % (vE, vE + 1, vE, vE + 1, vE + 2, vE + 3))
    a("  v_add_f32 v%d, v%d, v%d" % (vL, vE, vE + 1))
    a("  s_nop 1")
    a("  v_add_f32_dpp v%d, v%d, v%d row_ror:4 %s" % (vL, vL, vL, DPP))
    a("  s_nop 1")
    a("  v_add_f32_dpp v%d, v%d, v%d row_ror:8 %s" % (vL, vL, vL, DPP))
    reduce_swap("v_add_f32", vL, vX, 16)
    reduce_swap("v_add_f32", vL, vX, 32)
    a("  s_lshl_b32 s%d, s%d, 5" % (sT[0], sW))
    a("  v_lshlrev_b32 v%d, 3, v%d" % (vX, vLane))
    a("  v_add_u32 v%d, s%d, v%d" % (vX, sT[0], vX))
    a("  v_add_u32 v%d, v%d, v%d" % (vX, vMisc, vX))
    a("  s_mov_b64 exec, 15")
    a("  ds_write_b64 v%d, v[%d:%d] offset:%d" % (vX, vM, vM + 1, SSTAT))
    a("  s_waitcnt lgkmcnt(0)")
    a("  s_mov_b64 exec, -1")
    lds_add(vMisc, F_ST, vOne)

    for i in range(32):
        a("  v_mov_b32 v%d, 0" % (vO + i))
    a("  s_mov_b32 s%d, 0" % sIt)
    a("L_v:")
    a("  v_mov_b32 v%d, v%d" % (vPf, vSp))
    a("  v_mov_b32 v%d, v%d" % (vPf + 1, vSp + 1))
    for k, sh in ((2, 4), (4, 8), (6, 12)):
        a("  v_mov_b32_dpp v%d, v%d row_shl:%d %s bound_ctrl:0" % (vPf + k, vSp, sh, DPP))
        a("  v_mov_b32_dpp v%d, v%d row_shl:%d %s bound_ctrl:0" % (vPf + k + 1, vSp + 1, sh, DPP))
    for i in range(6):
        a("  v_mov_b32 v%d, v%d" % (vSp + i, vSp + i + 2))
    lew = a.lab("Lew")
    a("  s_cmp_lg_u32 s%d, 0" % sW)
    a("  s_cbranch_scc1 %s" % lew)
    lew2 = a.lab("Lew")
    a("  s_cmp_lg_u32 s%d, %d" % (sIt, late_it))
    a("  s_cbranch_scc1 %s" % lew2)
    lds_add(vMisc, F_LATE, vOne)
    a("%s:" % lew2)
    a("  s_cmp_lg_u32 s%d, %d" % (sIt, ew_it))
    a("  s_cbranch_scc1 %s" % lew)
    lds_add(vMisc, F_EWS, vOne)
    a("%s:" % lew)
    for u in range(2):
        if u == 0:
            issue_unit()
        else:
            lv_else, lv_done = a.lab("Lve"), a.lab("Lvd")
            a("  s_cmp_ge_u32 s%d, 3" % sIt)
            a("  s_cbranch_scc1 %s" % lv_else)
            issue_unit()
            a("  s_branch %s" % lv_done)
            a("%s:" % lv_else)
            a("  s_waitcnt vmcnt(0)")
            a("%s:" % lv_done)
        for dt in range(8):
            r = vSt + dt * 4
            a("  ds_read_b64_tr_b16 v[%d:%d], v%d offset:%d" % (r, r + 1, vVa + dt, u * 8192))
            a("  ds_read_b64_tr_b16 v[%d:%d], v%d offset:%d" % (r + 2, r + 3, vVa + dt, u * 8192 + 4096))
        for dt in range(8):
            r = vSt + dt * 4
            o = vO + dt * 4
            if dt % 2 == 0:
                a("  s_waitcnt lgkmcnt(%d)" % (12 - 2 * dt if dt < 6 else 0))
            a("  v_mfma_f32_16x16x32_bf16 v[%d:%d], v[%d:%d], v[%d:%d], v[%d:%d]" % (o, o + 3, r, r + 3, vPf + 4 * u, vPf + 4 * u + 3, o, o + 3))
    for dt in range(8):
        a("  v_xor_b32 v%d, 0x4000, v%d" % (vVa + dt, vVa + dt))
    a("  s_add_u32 s%d, s%d, 1" % (sIt, sIt))
    a("  s_cmp_lt_u32 s%d, 4" % sIt)
    a("  s_cbranch_scc1 L_v")
    stamp("V done")
    a("  v_and_b32 v%d, 15, v%d" % (t1, vLane))
    a("  v_lshrrev_b32 v%d, 4, v%d" % (t0, vLane))
    a("  v_lshlrev_b32 v%d, 9, v%d" % (t2, t1))
    a("  v_lshl_add_u32 v%d, v%d, 4, v%d" % (t2, t0, t2))
    a("  v_add_u32 v%d, s%d, v%d" % (t2, sRing, t2))
    a("  v_cmp_gt_u32 vcc, 4, v%d" % t1)
    a("  s_nop 4")
    a("  s_mov_b64 exec, vcc")
    for dt in range(8):
        a("  ds_write_b128 v%d, v[%d:%d] offset:%d" % (t2, vO + dt * 4, vO + dt * 4 + 3, dt * 64))
    a("  s_mov_b64 exec, -1")
    vR0, vR1, vR2, vR3 = vPf, vPf + 1, vPf + 2, vPf + 3
    a("  v_lshlrev_b32 v%d, 9, v%d" % (vR0, t0))
    a("  v_lshl_add_u32 v%d, v%d, 4, v%d      ; h*512 + c*16" % (vR0, t1, vR0))
    a("  v_lshl_add_u32 v%d, v%d, 4, v%d      ; FLG + h*16" % (vR1, t0, vMisc))
    a("  v_lshlrev_b32 v%d, 14, v%d" % (vR2, t0))
    a("  v_lshrrev_b32 v%d, 3, v%d" % (t3, t1))
    a("  v_lshl_add_u32 v%d, v%d, 11, v%d" % (vR2, t3, vR2))
    a("  v_and_b32 v%d, 7, v%d" % (t3, t1))
    a("  v_lshl_add_u32 v%d, v%d, 4, v%d" % (vR2, t3, vR2))
    a("  s_lshl_b32 s%d, s%d, 16" % (sT[0], sX))
    a("  s_lshr_b32 s%d, s%d, 4" % (sT[1], sLi))
    a("  s_lshl_b32 s%d, s%d, 13" % (sT[1], sT[1]))
    a("  s_add_u32 s%d, s%d, s%d" % (sT[0], sT[0], sT[1]))
    a("  s_and_b32 s%d, s%d, 15" % (sT[1], sLi))
    a("  s_lshl_b32 s%d, s%d, 7" % (sT[1], sT[1]))
    a("  s_add_u32 s%d, s%d, s%d" % (sT[0], sT[0], sT[1]))
    a("  s_add_u32 s%d, s%d, %d" % (sT[0], sT[0], OP))
    a("  s_add_u32 s%d, s%d, 1" % (sT[1], sEp))
    a("  s_and_b32 s%d, s%d, 0xff" % (sT[1], sT[1]))
    a("  v_mov_b32 v%d, s%d" % (vR3, sT[1]))
    a("  s_add_u32 s%d, s%d, 4096" % (sT[1], sT[0]))
    a("  s_mov_b32 s%d, 0xffffff00" % sT[2])
    lds_wait(vMisc, F_LOC, 1, t3)
    a("  s_lshr_b32 s%d, s%d, 1" % (sT[3], sT[7]))
    a("  s_waitcnt lgkmcnt(0)")
    a("  s_barrier                      ; B1")
    a("  s_cmp_lg_u32 s%d, 0" % sW)
    a("  s_cbranch_scc1 L_S_done")
    sWs = sWsS
    for w in range(4):
        a("  ds_read_b128 v[%d:%d], v%d offset:%d" % (vSt + w * 8, vSt + w * 8 + 3, vR0, (w & 1) * 32768))
        a("  ds_read_b128 v[%d:%d], v%d offset:%d" % (vSt + w * 8 + 4, vSt + w * 8 + 7, vR0, (w & 1) * 32768 + 256))
        if w == 1:
            a("  v_add_u32 v%d, 0x10000, v%d" % (vR0, vR0))
    a("  ds_read_b128 v[%d:%d], v%d offset:%d" % (vE, vE + 3, vR1, FFAC))
    a("  s_waitcnt lgkmcnt(0)")
    for i in range(8):
        a("  v_mul_f32 v%d, v%d, v%d" % (vO + i, vSt + i, vE))
    for w in range(1, 4):
        for i in range(8):
            a("  v_fmac_f32 v%d, v%d, v%d" % (vO + i, vSt + w * 8 + i, vE + w))
    for i in range(8):
        a("  v_and_or_b32 v%d, v%d, s%d, v%d" % (vO + i, vO + i, sT[2], vR3))
    store_loc(["  buffer_store_dwordx4 v[%d:%d], v%d, s[%d:%d], s%d offen" % (vO, vO + 3, vR2, sWs, sWs + 3, sT[0]),
               "  buffer_store_dwordx4 v[%d:%d], v%d, s[%d:%d], s%d offen" % (vO + 4, vO + 7, vR2, sWs, sWs + 3, sT[1])], sT[3])
    stamp("published")
    a("  s_barrier                      ; B2")
    if ts:
        a("  s_waitcnt lgkmcnt(0)")
        a("  s_lshl_b32 s%d, s2, 8" % sT[0])
        a("  s_add_u32 s%d, s%d, %d" % (sT[0], sT[0], TSOFF))
        a("  v_mov_b32 v%d, 0" % t2)
        a("  s_mov_b64 exec, 1")
        for i in range(len(names["S"])):
            a("  v_mov_b32 v%d, s%d" % (vO, TS0 + 2 * i))
            a("  v_mov_b32 v%d, s%d" % (vO + 1, TS0 + 2 * i + 1))
            a("  buffer_store_dwordx2 v[%d:%d], v%d, s[%d:%d], s%d offen offset:%d" % (vO, vO + 1, t2, sWs, sWs + 3, sT[0], 8 * i))
            a("  s_waitcnt vmcnt(0)")
        a("  s_mov_b64 exec, -1")
    a("L_S_done:")
    a("  s_endpgm")

    role[0] = "H"
    a("L_H:")
    sHW = 7
    sXd, sWq, sWs, sGU, sWd, sWo, sOut = 8, 12, 16, 32, 36, 40, 44
    sEp = 28
    sTag = 29
    sNotFF = 30
    sTag4 = 31
    sHi2 = 48
    sFi = 49
    sSelA, sSelB = 50, 54
    sB = 51; sJ = 52; sFidx = 53
    sKb2 = 55
    sLo8 = 60
    sFv = 3
    sLoc = 56
    sDbg = 64
    sHq = 62
    sWoStg = 63
    hMisc, hOne = 2, 3
    hG, hI = 4, 5
    hT = 6
    hX = 16
    hF = 24
    hY = 40
    hA = 56
    hB = 72
    hD = 88
    hW = 120
    hXf = 136
    hZ = 144
    hTag = 156
    hWd = 160
    T0, T1, T2, T3, T4, T5 = hT, hT + 1, hT + 2, hT + 3, hT + 4, hT + 5
    hTr, hXn, hW1k, hTrG, hOutOff = hZ + 1, hZ + 2, hZ + 4, hZ + 5, hZ + 6

    a("  s_load_dwordx2 s[%d:%d], s[0:1], 0" % (sXd, sXd + 1))
    a("  s_load_dwordx2 s[%d:%d], s[0:1], 24" % (sWq, sWq + 1))
    a("  s_load_dwordx4 s[56:59], s[0:1], 48")
    a("  s_load_dwordx2 s[%d:%d], s[0:1], 88" % (sWs, sWs + 1))
    a("  v_lshlrev_b32 v%d, 2, v0" % T0)
    a("  v_add_u32 v%d, %d, v%d" % (T0, FLG, T0))
    a("  v_mov_b32 v%d, 0" % T1)
    a("  ds_write_b32 v%d, v%d" % (T0, T1))
    a("  s_sub_u32 s%d, s%d, 4" % (sHW, sW))
    a("  s_mov_b32 s%d, 8192" % (sXd + 2))
    a("  s_mov_b32 s%d, 0x20000" % (sXd + 3))
    a("  v_lshrrev_b32 v%d, 5, v0" % T0)
    a("  s_lshl_b32 s%d, s%d, 1" % (sT[0], sHW))
    a("  v_add_u32 v%d, s%d, v%d          ; row b" % (T0, sT[0], T0))
    a("  v_and_b32 v%d, 31, v0" % T1)
    a("  v_lshlrev_b32 v%d, 5, v%d" % (T1, T1))
    a("  v_lshl_add_u32 v%d, v%d, 10, v%d" % (T2, T0, T1))
    a("  s_waitcnt lgkmcnt(0)")
    a("  buffer_load_dwordx4 v[%d:%d], v%d, s[%d:%d], 0 offen%s" % (hX, hX + 3, T2, sXd, sXd + 3, " nt" if xnt else ""))
    a("  buffer_load_dwordx4 v[%d:%d], v%d, s[%d:%d], 0 offen offset:16%s" % (hX + 4, hX + 7, T2, sXd, sXd + 3, " nt" if xnt else ""))
    a("  v_lshrrev_b32 v%d, 3, v0" % T3)
    a("  v_and_b32 v%d, 7, v0" % T4)
    a("  v_lshlrev_b32 v%d, 4, v%d" % (T4, T4))
    a("  v_lshl_add_u32 v%d, v%d, 13, v%d" % (T5, T3, T4))
    a("  s_and_b32 s%d, s%d, 3" % (sJ, sLi))
    a("  s_lshr_b32 s%d, s%d, 2" % (sB, sLi))
    a("  s_lshl_b32 s%d, s%d, 2" % (sT[0], sJ))
    a("  s_add_u32 s%d, s%d, s%d" % (sT[0], sT[0], sHW))
    a("  s_lshl_b32 s%d, s%d, 18" % (sT[0], sT[0]))
    a("  s_lshl_b32 s%d, s%d, 3" % (sT[1], sX))
    a("  s_add_u32 s%d, s%d, s%d" % (sT[1], sT[1], sB))
    a("  s_lshl_b32 s%d, s%d, 7" % (sT[1], sT[1]))
    a("  s_add_u32 s%d, s%d, s%d" % (sT[0], sT[0], sT[1]))
    a("  s_lshr_b32 s%d, s%d, 1" % (sT[1], sHW))
    a("  s_lshl_b32 s%d, s%d, 15" % (sT[1], sT[1]))
    a("  s_and_b32 s%d, s%d, 1" % (sT[2], sHW))
    a("  s_lshl_b32 s%d, s%d, 12" % (sT[2], sT[2]))
    a("  s_add_u32 s%d, s%d, s%d" % (sT[1], sT[1], sT[2]))
    a("  s_add_u32 s%d, s%d, 24576" % (sT[1], sT[1]))
    a("  s_mov_b32 s%d, 0x400000" % (sWq + 2))
    a("  s_mov_b32 s%d, 0x20000" % (sWq + 3))
    for n in range(4):
        a("  s_add_u32 m0, s%d, %d" % (sT[1], n * 1024))
        if n:
            a("  s_add_u32 s%d, s%d, %d" % (sT[0], sT[0], 8 * 8192))
        else:
            a("  s_load_dword s%d, s[%d:%d], 0x%x" % (sEp, sWs, sWs + 1, EPOCH))
        a("  buffer_load_dwordx4 v%d, s[%d:%d], s%d offen nt lds" % (T5, sWq, sWq + 3, sT[0]))
    if b0pos == 0:
        a("  s_barrier                      ; B0")
        stamp("B0")
    a("  s_load_dwordx2 s[%d:%d], s[0:1], 64" % (sWd, sWd + 1))
    a("  s_load_dwordx2 s[%d:%d], s[0:1], 32" % (sWo, sWo + 1))
    a("  s_load_dwordx2 s[%d:%d], s[0:1], 72" % (sOut, sOut + 1))
    a("  s_load_dwordx2 s[%d:%d], s[0:1], 80" % (sDbg, sDbg + 1))
    a("  s_lshr_b32 s%d, s%d, 3" % (sT[4], sLi))
    a("  s_lshl_b32 s%d, s%d, 3" % (sT[4], sT[4]))
    a("  s_add_u32 s%d, s%d, s%d" % (sT[4], sT[4], sX))
    a("  s_cmp_lt_u32 s%d, 28" % sT[4])
    a("  s_cselect_b32 s%d, 1, 0" % sFv)
    a("  s_min_u32 s%d, s%d, 27" % (sT[4], sT[4]))
    a("  s_lshl_b32 s%d, s%d, 3" % (sFi, sT[4]))
    a("  s_and_b32 s%d, s%d, 7" % (sT[5], sLi))
    a("  s_add_u32 s%d, s%d, s%d" % (sFi, sFi, sT[5]))
    a("  s_and_b32 s%d, s%d, 3" % (sKb2, sFi))
    a("  s_lshl_b32 s%d, s%d, 2" % (sT[3], sKb2))
    a("  s_add_u32 s%d, s%d, s%d" % (sT[3], sT[3], sHW))
    a("  s_mul_i32 s%d, s%d, %d" % (sT[3], sT[3], 32 * 3584))
    a("  s_lshl_b32 s%d, s%d, 7" % (sT[4], sT[4]))
    a("  s_add_u32 s%d, s%d, s%d" % (sT[3], sT[3], sT[4]))
    a("  s_bitcmp1_b32 s%d, 2" % sFi)
    a("  s_cselect_b32 s%d, s58, s56" % sGU)
    a("  s_cselect_b32 s%d, s59, s57" % (sGU + 1))
    a("  s_mov_b32 s%d, 1835008" % (sGU + 2))
    a("  s_mov_b32 s%d, 0x20000" % (sGU + 3))
    a("  v_lshl_add_u32 v%d, v%d, 10, v%d" % (hW1k, T3, T4))
    a("  v_mul_u32_u24 v%d, 3584, v%d" % (T3, T3))
    a("  v_add_u32 v%d, v%d, v%d" % (T3, T3, T4))
    for n in range(4):
        a("  s_add_u32 m0, s%d, %d" % (sT[1], 65536 + n * 1024))
        if n:
            a("  s_add_u32 s%d, s%d, %d" % (sT[3], sT[3], 8 * 3584))
        else:
            a("  s_mov_b32 s%d, 0xffff0000" % sHi2)
        a("  buffer_load_dwordx4 v%d, s[%d:%d], s%d offen nt lds" % (T3, sGU, sGU + 3, sT[3]))
    if b0pos == 1:
        a("  s_barrier                      ; B0")
        stamp("B0")
    a("  v_lshrrev_b32 v%d, 4, v0" % hG)
    a("  v_and_b32 v%d, 15, v0" % hI)
    a("  v_mov_b32 v%d, %d" % (hMisc, FLG))
    a("  v_mov_b32 v%d, 1" % hOne)
    a("  v_mul_u32_u24 v%d, %d, v%d" % (T0, XN_STRIDE, T0))
    a("  v_add_u32 v%d, v%d, v%d" % (T0, T0, T1))
    a("  v_add_u32 v%d, %d, v%d" % (hZ, XN, T0))
    if noh:
        for _ in range(4):
            lds_add(hMisc, F_QRDY, hOne)
            lds_add(hMisc, F_STG, hOne)
        a("  s_barrier")
        a("  s_mov_b32 s%d, 0x10000000" % (sWs + 2))
        a("  s_mov_b32 s%d, 0x20000" % (sWs + 3))
        a("  s_cmp_lg_u32 s%d, 0" % sHW)
        a("  s_cbranch_scc1 L_H_done")
        a("  s_branch L_tsdump")
    a("  s_mov_b32 s%d, 0x10000000" % (sWs + 2))
    a("  s_mov_b32 s%d, 0x20000" % (sWs + 3))
    for base, size in ((sWd, 1835008), (sWo, 0x400000), (sOut, 8192)):
        a("  s_mov_b32 s%d, %d" % (base + 2, size))
        a("  s_mov_b32 s%d, 0x20000" % (base + 3))
    a("  s_mov_b32 s%d, 0xffffff00" % sNotFF)
    a("  s_mov_b32 s%d, 0x0c0c0400" % sSelA)
    a("  s_mov_b32 s%d, 0x04000c0c" % sSelB)

    def pk(op, d, s0, s1, extra=""):
        a("  %s v[%d:%d], v[%d:%d], v[%d:%d]%s" % (op, d, d + 1, s0, s0 + 1, s1, s1 + 1, extra))

    def allreduce32(v, t):
        for n in (1, 2, 4, 8):
            a("  s_nop 1")
            a("  v_add_f32_dpp v%d, v%d, v%d row_ror:%d %s" % (v, v, v, n, DPP))
        reduce_swap("v_add_f32", v, t, 16)

    def tag(v):
        a("  v_and_or_b32 v%d, v%d, s%d, v%d" % (v, v, sNotFF, hTag))

    def tag_retry(regs, lab_retry, lab_ok, t0_, t1_, sleep):
        rs = list(regs)
        assert len(rs) % 4 == 0
        for k in range(0, len(rs), 4):
            a("  v_perm_b32 v%d, v%d, v%d, s%d" % (t1_, rs[k + 1], rs[k], sSelA))
            a("  v_perm_b32 v%d, v%d, v%d, s%d" % (t1_ + 1, rs[k + 3], rs[k + 2], sSelB))
            if k == 0:
                a("  v_or_b32 v%d, v%d, v%d" % (t0_, t1_, t1_ + 1))
                a("  v_xor_b32 v%d, s%d, v%d" % (t0_, sTag4, t0_))
            else:
                a("  v_or_b32 v%d, v%d, v%d" % (t1_, t1_, t1_ + 1))
                a("  v_xor_b32 v%d, s%d, v%d" % (t1_, sTag4, t1_))
                a("  v_or_b32 v%d, v%d, v%d" % (t0_, t0_, t1_))
        a("  v_cmp_ne_u32 vcc, 0, v%d" % t0_)
        a("  s_cbranch_vccz %s" % lab_ok)
        a("  s_mov_b64 exec, vcc")
        a("  s_add_u32 s%d, s%d, 1" % (sCnt, sCnt))
        a("  s_cmp_lt_u32 s%d, %d" % (sCnt, SPIN_LIMIT))
        a("  s_cbranch_scc0 %s" % lab_ok)
        a("  s_sleep %d" % sleep)
        a("  s_branch %s" % lab_retry)

    def round_bf16(v):
        a("  v_cvt_pk_bf16_f32 v%d, v%d, v%d" % (v, v, v))
        a("  v_and_b32 v%d, s%d, v%d" % (v, sHi2, v))

    a("  s_waitcnt vmcnt(8)")
    for i in range(8):
        a("  v_lshlrev_b32 v%d, 16, v%d" % (hF + 2 * i, hX + i))
        a("  v_and_b32 v%d, s%d, v%d" % (hF + 2 * i + 1, sHi2, hX + i))
    for i in range(4):
        pk("v_pk_add_f32", hY + 2 * i, hF + 4 * i, hF + 4 * i + 2)
    pk("v_pk_add_f32", hY, hY, hY + 2)
    pk("v_pk_add_f32", hY + 4, hY + 4, hY + 6)
    pk("v_pk_add_f32", hY, hY, hY + 4)
    vS = hZ + 8
    vV = hZ + 10
    a("  v_add_f32 v%d, v%d, v%d" % (vS, hY, hY + 1))
    allreduce32(vS, T0)
    a("  v_mul_f32 v%d, 0x3b000000, v%d     ; mean" % (vS, vS))
    for i in range(8):
        pk("v_pk_add_f32", hY + 2 * i, hF + 2 * i, vS, " op_sel_hi:[1,0] neg_lo:[0,1] neg_hi:[0,1]")
    pk("v_pk_mul_f32", vV, hY, hY)
    for i in range(1, 8):
        a("  v_pk_fma_f32 v[%d:%d], v[%d:%d], v[%d:%d], v[%d:%d]" % (vV, vV + 1, hY + 2 * i, hY + 2 * i + 1, hY + 2 * i, hY + 2 * i + 1, vV, vV + 1))
    a("  v_add_f32 v%d, v%d, v%d" % (vV, vV, vV + 1))
    allreduce32(vV, T0)
    a("  v_mul_f32 v%d, 0x3b000000, v%d     ; var" % (vV, vV))
    a("  v_cvt_pk_bf16_f32 v%d, v%d, v%d" % (vS, vS, vV))
    a("  v_and_b32 v%d, s%d, v%d" % (vV, sHi2, vS))
    a("  v_lshlrev_b32 v%d, 16, v%d            ; mean_bf" % (vS, vS))
    a("  v_add_f32 v%d, 0x3727c5ac, v%d" % (vV, vV))
    round_bf16(vV)
    a("  v_sqrt_f32 v%d, v%d" % (vV, vV))
    a("  s_nop 0")
    round_bf16(vV)
    a("  v_rcp_f32 v%d, v%d" % (vV, vV))
    for i in range(8):
        pk("v_pk_add_f32", hY + 2 * i, hF + 2 * i, vS, " op_sel_hi:[1,0] neg_lo:[0,1] neg_hi:[0,1]")
    for i in range(8):
        a("  v_cvt_pk_bf16_f32 v%d, v%d, v%d" % (hX + i, hY + 2 * i, hY + 2 * i + 1))
    for i in range(8):
        a("  v_lshlrev_b32 v%d, 16, v%d" % (hF + 2 * i, hX + i))
        a("  v_and_b32 v%d, s%d, v%d" % (hF + 2 * i + 1, sHi2, hX + i))
    for i in range(8):
        pk("v_pk_mul_f32", hY + 2 * i, hF + 2 * i, vV, " op_sel_hi:[1,0]")
    for i in range(8):
        a("  v_cvt_pk_bf16_f32 v%d, v%d, v%d" % (hX + i, hY + 2 * i, hY + 2 * i + 1))
    a("  ds_write_b128 v%d, v[%d:%d]" % (hZ, hX, hX + 3))
    a("  ds_write_b128 v%d, v[%d:%d] offset:16" % (hZ, hX + 4, hX + 7))
    stamp("LN done")

    a("  v_lshrrev_b32 v%d, 2, v%d" % (T0, hI))
    a("  v_lshl_add_u32 v%d, v%d, 3, v%d" % (T0, hG, T0))
    a("  v_lshlrev_b32 v%d, 7, v%d" % (T0, T0))
    a("  v_and_b32 v%d, 3, v%d" % (T1, hI))
    a("  v_lshl_add_u32 v%d, v%d, 3, v%d" % (hTrG, T1, T0))
    a("  s_lshl_b32 s%d, s%d, 5" % (sT[0], sHW))
    a("  s_add_u32 s%d, s%d, 24576" % (sT[0], sT[0]))
    a("  v_add_u32 v%d, s%d, v%d" % (hTr, sT[0], hTrG))
    a("  v_and_b32 v%d, 7, v%d" % (T0, hI))
    a("  v_mul_u32_u24 v%d, %d, v%d" % (T0, XN_STRIDE, T0))
    a("  v_lshl_add_u32 v%d, v%d, 4, v%d" % (T0, hG, T0))
    a("  v_add_u32 v%d, %d, v%d" % (hXn, XN, T0))
    a("  v_cmp_gt_u32 s[%d:%d], 8, v%d" % (sLo8, sLo8 + 1, hI))

    def tile_compute(kb_sgpr, stg_add):
        a("  s_lshl_b32 s%d, s%d, 8" % (sT[0], kb_sgpr))
        a("  v_add_u32 v%d, s%d, v%d" % (T0, sT[0], hXn))
        if stg_add:
            a("  v_add_u32 v%d, 0x%x, v%d" % (T1, stg_add, hTr))
            tr = T1
        else:
            tr = hTr
        for ks in range(4):
            base = (ks >> 1) * 32768 + (ks & 1) * 4096
            r = hA + ks * 4
            a("  ds_read_b64_tr_b16 v[%d:%d], v%d offset:%d" % (r, r + 1, tr, base))
            a("  ds_read_b64_tr_b16 v[%d:%d], v%d offset:%d" % (r + 2, r + 3, tr, base + 512))
            r = hB + ks * 4
            a("  ds_read_b128 v[%d:%d], v%d offset:%d" % (r, r + 3, T0, ks * 64))
        for ks in range(4):
            a("  s_waitcnt lgkmcnt(%d)" % (9 - 3 * ks))
            c = "0" if ks == 0 else "v[%d:%d]" % (hD, hD + 3)
            a("  v_mfma_f32_16x16x32_bf16 v[%d:%d], v[%d:%d], v[%d:%d], %s" % (hD, hD + 3, hA + ks * 4, hA + ks * 4 + 3, hB + ks * 4, hB + ks * 4 + 3, c))

    a("  s_waitcnt vmcnt(4) lgkmcnt(0)")
    a("  s_add_u32 s%d, s%d, 1" % (sTag, sEp))
    a("  s_and_b32 s%d, s%d, 0xff" % (sTag, sTag))
    a("  s_mul_i32 s%d, s%d, 0x01010101" % (sTag4, sTag))
    a("  v_mov_b32 v%d, s%d" % (hTag, sTag))
    lds_add(hMisc, F_H1, hOne)
    lds_wait(hMisc, F_H1, 4, T5)
    stamp("Hsync1")
    tile_compute(sJ, 0)
    a("  v_lshlrev_b32 v%d, 11, v%d" % (T0, hI))
    a("  v_lshl_add_u32 v%d, v%d, 4, v%d" % (T0, hG, T0))
    a("  s_lshl_b32 s%d, s%d, 6" % (sT[0], sHW))
    a("  v_add_u32 v%d, s%d, v%d" % (T0, sT[0], T0))
    a("  s_lshl_b32 s%d, s%d, 2" % (sHq, sX))
    a("  s_add_u32 s%d, s%d, s%d" % (sHq, sHq, sJ))
    a("  s_lshl_b32 s%d, s%d, 14" % (sT[0], sHq))
    a("  s_lshl_b32 s%d, s%d, 8" % (sT[1], sB))
    a("  s_add_u32 s%d, s%d, s%d" % (sT[0], sT[0], sT[1]))
    if QP:
        a("  s_add_u32 s%d, s%d, %d" % (sT[0], sT[0], QP))
    for k in range(4):
        tag(hD + k)
    a("  s_mov_b64 exec, s[%d:%d]" % (sLo8, sLo8 + 1))
    a("  buffer_store_dwordx4 v[%d:%d], v%d, s[%d:%d], s%d offen sc1" % (hD, hD + 3, T0, sWs, sWs + 3, sT[0]))
    a("  s_mov_b64 exec, -1")
    stamp("QP stored")
    a("  s_lshl_b32 s%d, s%d, 2" % (sT[0], sHq))
    a("  s_add_u32 s%d, s%d, s%d" % (sT[0], sT[0], sHW))
    a("  s_lshl_b32 s%d, s%d, 15" % (sT[0], sT[0]))
    a("  s_lshl_b32 s%d, s%d, 7" % (sT[1], sB))
    a("  s_add_u32 s%d, s%d, s%d" % (sT[0], sT[0], sT[1]))
    a("  s_lshl_b32 s%d, s%d, 12" % (sWoStg, sHW))
    a("  s_add_u32 s%d, s%d, %d" % (sWoStg, sWoStg, WOS))
    for n in range(4):
        a("  s_add_u32 m0, s%d, %d" % (sWoStg, n * 1024))
        if n:
            a("  s_add_u32 s%d, s%d, 8192" % (sT[0], sT[0]))
        else:
            a("  s_nop 0")
        a("  buffer_load_dwordx4 v%d, s[%d:%d], s%d offen nt lds" % (hW1k, sWo, sWo + 3, sT[0]))
    a("  s_waitcnt vmcnt(5)")
    lds_add(hMisc, F_H3, hOne)
    lds_wait(hMisc, F_H3, 4, T5)
    stamp("Hsync3")
    tile_compute(sKb2, 65536)
    lds_add(hMisc, F_STG, hOne)
    a("  v_lshlrev_b32 v%d, 8, v%d" % (T0, hI))
    a("  v_lshl_add_u32 v%d, v%d, 4, v%d" % (T0, hG, T0))
    a("  s_lshl_b32 s%d, s%d, 6" % (sT[0], sHW))
    a("  v_add_u32 v%d, s%d, v%d" % (T0, sT[0], T0))
    a("  s_and_b32 s%d, s%d, 7" % (sT[0], sFi))
    a("  s_mul_i32 s%d, s%d, 28" % (sT[0], sT[0]))
    a("  s_lshr_b32 s%d, s%d, 3" % (sT[1], sFi))
    a("  s_add_u32 s%d, s%d, s%d" % (sT[0], sT[0], sT[1]))
    a("  s_lshl_b32 s%d, s%d, 11" % (sT[0], sT[0]))
    a("  s_add_u32 s%d, s%d, %d" % (sT[0], sT[0], GP))
    for k in range(4):
        tag(hD + k)
    lg = a.lab("Lg")
    a("  s_cmp_eq_u32 s%d, 0" % sFv)
    a("  s_cbranch_scc1 %s" % lg)
    a("  s_mov_b64 exec, s[%d:%d]" % (sLo8, sLo8 + 1))
    a("  buffer_store_dwordx4 v[%d:%d], v%d, s[%d:%d], s%d offen sc1" % (hD, hD + 3, T0, sWs, sWs + 3, sT[0]))
    a("  s_mov_b64 exec, -1")
    a("%s:" % lg)
    stamp("tile1 done")
    a("  v_lshrrev_b32 v%d, 5, v0" % T0)
    a("  v_lshlrev_b32 v%d, 14, v%d" % (T0, T0))
    a("  v_and_b32 v%d, 31, v0" % T1)
    a("  v_lshl_add_u32 v%d, v%d, 4, v%d" % (T0, T1, T0))
    a("  s_lshl_b32 s%d, s%d, 9" % (sT[0], sHW))
    a("  v_add_u32 v%d, s%d, v%d" % (T0, sT[0], T0))
    a("  s_lshl_b32 s%d, s%d, 16" % (sT[0], sX))
    a("  s_lshl_b32 s%d, s%d, 11" % (sT[1], sB))
    a("  s_add_u32 s%d, s%d, s%d" % (sT[0], sT[0], sT[1]))
    if QP:
        a("  s_add_u32 s%d, s%d, %d" % (sT[0], sT[0], QP))
    a("  s_add_u32 s%d, s%d, 32768" % (sT[1], sT[0]))
    a("  s_mul_i32 s%d, s%d, %d" % (sT[2], sHW, QL_STRIDE))
    a("  s_add_u32 s%d, s%d, %d" % (sT[2], sT[2], QL))
    a("  v_lshlrev_b32 v%d, 3, v%d" % (T1, T1))
    a("  v_add_u32 v%d, s%d, v%d" % (T1, sT[2], T1))
    lr, lo = a.lab("Lr"), a.lab("Lo")
    a("  s_mov_b32 s%d, 0" % sCnt)
    a("%s:" % lr)
    NT = " nt" if gnt & 1 else ""
    a("  buffer_load_dwordx4 v[%d:%d], v%d, s[%d:%d], s%d offen sc1%s" % (hA, hA + 3, T0, sWs, sWs + 3, sT[0], NT))
    a("  buffer_load_dwordx4 v[%d:%d], v%d, s[%d:%d], s%d offen sc1%s" % (hA + 4, hA + 7, T0, sWs, sWs + 3, sT[1], NT))
    a("  s_waitcnt vmcnt(0)")
    tag_retry(range(hA, hA + 8), lr, lo, T2, T3, 2)
    a("%s:" % lo)
    a("  s_mov_b64 exec, -1")
    stamp("Q ok")
    pk("v_pk_add_f32", hA, hA, hA + 4)
    pk("v_pk_add_f32", hA + 2, hA + 2, hA + 6)
    for k in range(4):
        a("  v_mov_b32 v%d, v%d" % (hA + 4 + k, hA + k))
    a("  s_nop 1")
    for k in range(4):
        a("  v_permlane32_swap_b32 v%d, v%d" % (hA + k, hA + 4 + k))
    pk("v_pk_add_f32", hA, hA, hA + 4)
    pk("v_pk_add_f32", hA + 2, hA + 2, hA + 6)
    a("  v_cvt_pk_bf16_f32 v%d, v%d, v%d" % (hA, hA, hA + 1))
    a("  v_cvt_pk_bf16_f32 v%d, v%d, v%d" % (hA + 1, hA + 2, hA + 3))
    a("  s_mov_b32 exec_hi, 0")
    a("  ds_write_b64 v%d, v[%d:%d]" % (T1, hA, hA + 1))
    a("  s_mov_b64 exec, -1")
    a("  s_waitcnt lgkmcnt(0)")
    lds_add(hMisc, F_QRDY, hOne)
    stamp("Q rdy")

    a("  v_add_u32 v%d, s%d, v%d" % (T0, sWoStg, hTrG))
    l3 = a.lab("L3")
    a("  s_cmp_lg_u32 s%d, 3" % sHW)
    a("  s_cbranch_scc1 %s" % l3)
    a("  s_lshr_b32 s%d, s%d, 3" % (sT[0], sFi))
    a("  s_lshl_b32 s%d, s%d, 16" % (sT[1], sT[0]))
    a("  s_and_b32 s%d, s%d, 7" % (sT[2], sFi))
    a("  s_lshl_b32 s%d, s%d, 7" % (sT[2], sT[2]))
    a("  s_add_u32 s%d, s%d, s%d" % (sT[1], sT[1], sT[2]))
    for n in range(4):
        a("  s_mov_b32 m0, %d" % (SPARE + n * 1024))
        if n:
            a("  s_add_u32 s%d, s%d, 8192" % (sT[1], sT[1]))
        else:
            a("  s_nop 0")
        a("  buffer_load_dwordx4 v%d, s[%d:%d], s%d offen nt lds" % (hW1k, sWd, sWd + 3, sT[1]))
    a("%s:" % l3)
    for ct in range(4):
        r = hW + ct * 4
        a("  ds_read_b64_tr_b16 v[%d:%d], v%d offset:%d" % (r, r + 1, T0, ct * 32))
        a("  ds_read_b64_tr_b16 v[%d:%d], v%d offset:%d" % (r + 2, r + 3, T0, ct * 32 + 512))
    a("  s_waitcnt lgkmcnt(0)")
    l4 = a.lab("L4")
    a("  s_cmp_lg_u32 s%d, 3" % sHW)
    a("  s_cbranch_scc1 %s" % l4)
    for n in range(4):
        a("  s_add_u32 m0, s%d, %d" % (sWoStg, n * 1024))
        a("  s_add_u32 s%d, s%d, 8192" % (sT[1], sT[1]))
        a("  buffer_load_dwordx4 v%d, s[%d:%d], s%d offen nt lds" % (hW1k, sWd, sWd + 3, sT[1]))
    a("  v_add_u32 v%d, %d, v%d" % (T1, SPARE, hTrG))
    a("  s_waitcnt vmcnt(4)")
    for ct in range(4):
        r = hWd + ct * 8
        a("  ds_read_b64_tr_b16 v[%d:%d], v%d offset:%d" % (r, r + 1, T1, ct * 32))
        a("  ds_read_b64_tr_b16 v[%d:%d], v%d offset:%d" % (r + 2, r + 3, T1, ct * 32 + 512))
    a("  s_waitcnt vmcnt(0)")
    for ct in range(4):
        r = hWd + ct * 8 + 4
        a("  ds_read_b64_tr_b16 v[%d:%d], v%d offset:%d" % (r, r + 1, T0, ct * 32))
        a("  ds_read_b64_tr_b16 v[%d:%d], v%d offset:%d" % (r + 2, r + 3, T0, ct * 32 + 512))
    a("  s_waitcnt lgkmcnt(0)")
    a("%s:" % l4)
    stamp("wo frags")

    a("  s_lshl_b32 s%d, s%d, 5" % (sFidx, sB))
    a("  s_add_u32 s%d, s%d, s%d" % (sFidx, sFidx, sHq))
    a("  v_and_b32 v%d, 3, v0" % T0)
    a("  v_lshlrev_b32 v%d, 3, v%d" % (T0, T0))
    a("  s_lshl_b32 s%d, s%d, 5" % (sT[0], sFidx))
    a("  v_add_u32 v%d, s%d, v%d" % (hOutOff, sT[0], T0))
    if noffn:
        a("  s_branch L_B1")
    a("  s_cmp_eq_u32 s%d, 1" % sHW)
    a("  s_cbranch_scc1 %s" % ("L_B1" if skip & 1 else "L_ffn"))
    a("  s_cmp_eq_u32 s%d, 2" % sHW)
    a("  s_cbranch_scc1 %s" % ("L_B1" if skip & 2 else "L_stats"))
    a("  s_cmp_eq_u32 s%d, 0" % sHW)
    a("  s_cbranch_scc1 %s" % ("L_B1" if skip & 5 else "L_fin_prep"))
    a("  s_branch %s" % ("L_B1" if skip & 9 else "L_down"))

    a("L_ffn:")
    a("  s_mov_b32 s%d, 256" % (sDbg + 2))
    a("  s_mov_b32 s%d, 0x20000" % (sDbg + 3))
    a("  s_getreg_b32 s%d, hwreg(HW_REG_XCC_ID, 0, 3)" % sT[4])
    a("  s_lshl_b32 s%d, s%d, 3" % (sT[4], sT[4]))
    a("  s_lshl_b64 s[%d:%d], 1, s%d" % (sT[6], sT[7], sT[4]))
    a("  v_mov_b32 v%d, s%d" % (hA, sT[6]))
    a("  v_mov_b32 v%d, s%d" % (hA + 1, sT[7]))
    a("  s_lshl_b32 s%d, s%d, 5" % (sT[0], sX))
    a("  v_mov_b32 v%d, s%d" % (T0, sT[0]))
    a("  s_mov_b64 exec, 1")
    a("  buffer_atomic_add_x2 v[%d:%d], v%d, s[%d:%d], 0 offen sc1" % (hA, hA + 1, T0, sDbg, sDbg + 3))
    a("  s_mov_b64 exec, -1")
    lds_wait(hMisc, F_MID, 1, T5, sleep=8)
    a("  s_waitcnt vmcnt(0)")
    lr, lo = a.lab("Lr"), a.lab("Lo")
    a("  s_mov_b32 s%d, 0" % sCnt)
    a("  s_mov_b64 exec, 1")
    a("%s:" % lr)
    a("  buffer_load_dwordx2 v[%d:%d], v%d, s[%d:%d], 0 offen sc1" % (hA, hA + 1, T0, sDbg, sDbg + 3))
    a("  s_waitcnt vmcnt(0)")
    a("  v_readfirstlane_b32 s%d, v%d" % (sT[2], hA))
    a("  v_readfirstlane_b32 s%d, v%d" % (sT[3], hA + 1))
    a("  s_and_b32 s%d, s%d, 0x00ff00ff" % (sT[4], sT[2]))
    a("  s_lshr_b32 s%d, s%d, 8" % (sT[5], sT[2]))
    a("  s_and_b32 s%d, s%d, 0x00ff00ff" % (sT[5], sT[5]))
    a("  s_add_u32 s%d, s%d, s%d" % (sT[4], sT[4], sT[5]))
    a("  s_and_b32 s%d, s%d, 0x00ff00ff" % (sT[5], sT[3]))
    a("  s_add_u32 s%d, s%d, s%d" % (sT[4], sT[4], sT[5]))
    a("  s_lshr_b32 s%d, s%d, 8" % (sT[5], sT[3]))
    a("  s_and_b32 s%d, s%d, 0x00ff00ff" % (sT[5], sT[5]))
    a("  s_add_u32 s%d, s%d, s%d" % (sT[4], sT[4], sT[5]))
    a("  s_lshr_b32 s%d, s%d, 16" % (sT[5], sT[4]))
    a("  s_and_b32 s%d, s%d, 0xffff" % (sT[4], sT[4]))
    a("  s_add_u32 s%d, s%d, s%d" % (sT[4], sT[4], sT[5]))
    a("  s_cmp_ge_u32 s%d, 32" % sT[4])
    a("  s_cbranch_scc1 %s" % lo)
    a("  s_add_u32 s%d, s%d, 1" % (sCnt, sCnt))
    a("  s_cmp_lt_u32 s%d, %d" % (sCnt, SPIN_LIMIT))
    a("  s_cbranch_scc0 %s" % lo)
    a("  s_sleep 32")
    a("  s_branch %s" % lr)
    a("%s:" % lo)
    a("  s_mov_b64 exec, -1")
    a("  s_getreg_b32 s%d, hwreg(HW_REG_XCC_ID, 0, 3)" % sT[4])
    a("  s_lshl_b32 s%d, s%d, 3" % (sT[4], sT[4]))
    a("  s_lshr_b64 s[%d:%d], s[%d:%d], s%d" % (sT[2], sT[3], sT[2], sT[3], sT[4]))
    a("  s_and_b32 s%d, s%d, 0xff" % (sT[2], sT[2]))
    a("  s_cmp_eq_u32 s%d, 32" % sT[2])
    a("  s_cselect_b32 s%d, %d, 1" % (sT[2], 2 if uselocal else 1))
    a("  v_mov_b32 v%d, s%d" % (T0, sT[2]))
    a("  s_mov_b64 exec, 1")
    a("  ds_write_b32 v%d, v%d offset:%d" % (hMisc, T0, F_LOC))
    a("  s_mov_b64 exec, -1")
    a("  s_lshr_b32 s%d, s%d, 1" % (sLoc, sT[2]))
    a("  s_cmp_eq_u32 s%d, 0" % sFv)
    a("  s_cbranch_scc1 L_ffn_done")
    a("  s_lshr_b32 s%d, s%d, 3" % (sT[0], sFi))
    a("  v_mul_u32_u24 v%d, %d, v%d" % (T0, 28 * 2048, hG))
    a("  v_lshl_add_u32 v%d, v%d, 4, v%d" % (T0, hI, T0))
    a("  s_lshl_b32 s%d, s%d, 11" % (sT[1], sT[0]))
    a("  s_and_b32 s%d, s%d, 7" % (sT[2], sFi))
    a("  s_lshl_b32 s%d, s%d, 8" % (sT[2], sT[2]))
    a("  s_add_u32 s%d, s%d, s%d" % (sT[1], sT[1], sT[2]))
    a("  s_add_u32 s%d, s%d, %d" % (sT[1], sT[1], GP))
    a("  s_add_u32 s%d, s%d, %d" % (sT[2], sT[1], 4 * 28 * 2048))
    lr, lo = a.lab("Lr"), a.lab("Lo")
    a("  s_mov_b32 s%d, 0" % sCnt)
    a("%s:" % lr)
    NT = " nt" if gnt & 2 else ""
    a("  buffer_load_dwordx4 v[%d:%d], v%d, s[%d:%d], s%d offen sc1%s" % (hA, hA + 3, T0, sWs, sWs + 3, sT[1], NT))
    a("  buffer_load_dwordx4 v[%d:%d], v%d, s[%d:%d], s%d offen sc1%s" % (hA + 4, hA + 7, T0, sWs, sWs + 3, sT[2], NT))
    a("  s_waitcnt vmcnt(0)")
    tag_retry(range(hA, hA + 8), lr, lo, T2, T3, ffn_sleep)
    a("%s:" % lo)
    a("  s_mov_b64 exec, -1")
    for kind in (16, 32):
        for k in range(8):
            a("  v_mov_b32 v%d, v%d" % (hA + 8 + k, hA + k))
        a("  s_nop 1")
        for k in range(8):
            a("  v_permlane%d_swap_b32 v%d, v%d" % (kind, hA + k, hA + 8 + k))
        for k in range(0, 8, 2):
            pk("v_pk_add_f32", hA + k, hA + k, hA + 8 + k)
    g0, u0 = hA, hA + 4
    for k in range(8):
        round_bf16(hA + k)
    a("  s_mov_b32 s%d, 0xBFB8AA3B      ; -log2(e)" % sT[2])
    for k in range(4):
        a("  v_mul_f32 v%d, s%d, v%d" % (g0 + k, sT[2], g0 + k))
    for k in range(4):
        a("  v_exp_f32 v%d, v%d" % (g0 + k, g0 + k))
    a("  s_nop 0")
    for k in range(4):
        a("  v_add_f32 v%d, 1.0, v%d" % (g0 + k, g0 + k))
    for k in range(4):
        a("  v_rcp_f32 v%d, v%d" % (g0 + k, g0 + k))
    a("  s_nop 0")
    for k in range(4):
        round_bf16(g0 + k)
    for k in range(4):
        a("  v_mul_f32 v%d, v%d, v%d" % (g0 + k, g0 + k, u0 + k))
    for k in range(4):
        round_bf16(g0 + k)
    for k in range(4):
        a("  v_or_b32 v%d, v%d, v%d" % (g0 + k, g0 + k, hTag))
    a("  v_lshlrev_b32 v%d, 4, v0" % T0)
    a("  s_lshl_b32 s%d, s%d, 8" % (sT[1], sFi))
    a("  s_add_u32 s%d, s%d, %d" % (sT[1], sT[1], HH))
    a("  s_mov_b64 exec, 0xffff")
    store_loc(["  buffer_store_dwordx4 v[%d:%d], v%d, s[%d:%d], s%d offen" % (g0, g0 + 3, T0, sWs, sWs + 3, sT[1])], sLoc)
    a("  s_mov_b64 exec, -1")
    a("L_ffn_done:")
    lds_add(hMisc, F_RED, hOne)
    lds_wait(hMisc, F_EWS, 1, T5, sleep=4)
    for k in range(4):
        a("  v_mov_b32 v%d, v%d" % (hA + k, hTag))
    a("  s_lshl_b32 s%d, s%d, 9" % (sT[0], sX))
    a("  s_lshl_b32 s%d, s%d, 4" % (sT[1], sLi))
    a("  s_add_u32 s%d, s%d, s%d" % (sT[0], sT[0], sT[1]))
    a("  s_add_u32 s%d, s%d, %d" % (sT[0], sT[0], EW))
    a("  v_mov_b32 v%d, 0" % T0)
    a("  s_mov_b64 exec, 1")
    store_loc(["  buffer_store_dwordx4 v[%d:%d], v%d, s[%d:%d], s%d offen" % (hA, hA + 3, T0, sWs, sWs + 3, sT[0])], sLoc)
    a("  s_mov_b64 exec, -1")
    a("  s_branch L_B1")

    a("L_down:")
    a("  s_cmp_eq_u32 s%d, 0" % sFv)
    a("  s_cbranch_scc1 L_down_done")
    lds_wait(hMisc, F_RED, 1, T5, sleep=8)
    a("  s_lshr_b32 s%d, s%d, 3" % (sT[0], sFi))
    a("  v_and_b32 v%d, 7, v%d" % (T0, hI))
    a("  v_lshlrev_b32 v%d, 8, v%d" % (T0, T0))
    a("  v_lshl_add_u32 v%d, v%d, 5, v%d" % (T0, hG, T0))
    a("  s_lshl_b32 s%d, s%d, 11" % (sT[1], sT[0]))
    a("  s_add_u32 s%d, s%d, %d" % (sT[1], sT[1], HH))
    lr, lo = a.lab("Lr"), a.lab("Lo")
    a("  s_mov_b32 s%d, 0" % sCnt)
    a("%s:" % lr)
    for k in range(4):
        a("  buffer_load_dwordx4 v[%d:%d], v%d, s[%d:%d], s%d offen offset:%d sc1" % (hA + 4 * k, hA + 4 * k + 3, T0, sWs, sWs + 3, sT[1], (k >> 1) * 128 + (k & 1) * 16))
    a("  s_waitcnt vmcnt(0)")
    tag_retry(range(hA, hA + 16), lr, lo, T2, T3, ffn_sleep)
    a("%s:" % lo)
    a("  s_mov_b64 exec, -1")
    a("  s_mov_b32 s%d, 0x07060302" % sT[2])
    for k in range(8):
        a("  v_perm_b32 v%d, v%d, v%d, s%d" % (hB + k, hA + 2 * k + 1, hA + 2 * k, sT[2]))
    a("  s_nop 1")
    for ct in range(4):
        d = hD + ct * 4
        r = hWd + ct * 8
        a("  v_mfma_f32_16x16x32_bf16 v[%d:%d], v[%d:%d], v[%d:%d], 0" % (d, d + 3, r, r + 3, hB, hB + 3))
        a("  v_mfma_f32_16x16x32_bf16 v[%d:%d], v[%d:%d], v[%d:%d], v[%d:%d]" % (d, d + 3, r + 4, r + 7, hB + 4, hB + 7, d, d + 3))
    a("  v_lshlrev_b32 v%d, 16, v%d" % (T0, hI))
    a("  v_lshl_add_u32 v%d, v%d, 4, v%d" % (T0, hG, T0))
    a("  s_and_b32 s%d, s%d, 7" % (sT[1], sFi))
    a("  s_lshl_b32 s%d, s%d, 13" % (sT[1], sT[1]))
    a("  s_lshl_b32 s%d, s%d, 6" % (sT[2], sT[0]))
    a("  s_add_u32 s%d, s%d, s%d" % (sT[1], sT[1], sT[2]))
    a("  s_add_u32 s%d, s%d, %d" % (sT[1], sT[1], DP))
    a("  s_nop 7")
    for i in range(16):
        tag(hD + i)
    a("  s_mov_b64 exec, s[%d:%d]" % (sLo8, sLo8 + 1))
    for ct in range(4):
        a("  buffer_store_dwordx4 v[%d:%d], v%d, s[%d:%d], s%d offen sc1" % (hD + ct * 4, hD + ct * 4 + 3, T0, sWs, sWs + 3, sT[1]))
        if ct < 3:
            a("  s_add_u32 s%d, s%d, 2048" % (sT[1], sT[1]))
    a("  s_mov_b64 exec, -1")
    a("  s_waitcnt vmcnt(0)")
    a("L_down_done:")
    lds_add(hMisc, F_DOWN, hOne)
    a("  s_branch L_B1")

    a("L_stats:")
    lds_wait(hMisc, F_ST, 4, T5, sleep=st_sleep)
    a("  v_lshl_add_u32 v%d, v%d, 3, v%d" % (T0, hI, hMisc))
    mw, lw = hA, hA + 1
    a("  ds_read_b64 v[%d:%d], v%d offset:%d" % (mw, mw + 1, T0, SSTAT))
    a("  s_waitcnt lgkmcnt(0)")
    Mg, Lg, t_ = hA + 4, hA + 5, hA + 2
    a("  v_mov_b32 v%d, v%d" % (Mg, mw))
    a("  s_nop 1")
    a("  v_max_f32_dpp v%d, v%d, v%d row_ror:4 %s" % (Mg, Mg, Mg, DPP))
    a("  s_nop 1")
    a("  v_max_f32_dpp v%d, v%d, v%d row_ror:8 %s" % (Mg, Mg, Mg, DPP))
    a("  s_mov_b32 s%d, 0x3FB8AA3B" % sT[2])
    a("  v_sub_f32 v%d, v%d, v%d" % (t_, mw, Mg))
    a("  v_mul_f32 v%d, s%d, v%d" % (t_, sT[2], t_))
    a("  v_exp_f32 v%d, v%d" % (t_, t_))
    a("  s_nop 0")
    a("  v_mul_f32 v%d, v%d, v%d" % (Lg, lw, t_))
    a("  s_nop 1")
    a("  v_add_f32_dpp v%d, v%d, v%d row_ror:4 %s" % (Lg, Lg, Lg, DPP))
    a("  s_nop 1")
    a("  v_add_f32_dpp v%d, v%d, v%d row_ror:8 %s" % (Lg, Lg, Lg, DPP))
    a("  s_nop 1")
    a("  v_mov_b32_dpp v%d, v%d row_shl:1 %s bound_ctrl:0" % (Mg + 2, Mg, DPP))
    a("  v_mov_b32_dpp v%d, v%d row_shl:1 %s bound_ctrl:0" % (Mg + 3, Lg, DPP))
    a("  s_lshl_b32 s%d, s%d, 3" % (sT[0], sB))
    a("  s_add_u32 s%d, s%d, s%d" % (sT[0], sT[0], sX))
    a("  s_lshl_b32 s%d, s%d, 7" % (sT[0], sT[0]))
    a("  s_add_u32 s%d, s%d, %d" % (sT[0], sT[0], ST))
    a("  s_lshl_b32 s%d, s%d, 5" % (sT[1], sJ))
    a("  s_add_u32 s%d, s%d, s%d" % (sT[1], sT[1], sT[0]))
    for k in range(4):
        tag(Mg + k)
    a("  v_lshlrev_b32 v%d, 3, v%d" % (T1, hI))
    lds_wait(hMisc, F_LOC, 1, T5)
    a("  s_lshr_b32 s%d, s%d, 1" % (sLoc, sT[7]))
    a("  s_mov_b64 exec, 5")
    store_loc(["  buffer_store_dwordx4 v[%d:%d], v%d, s[%d:%d], s%d offen" % (Mg, Mg + 3, T1, sWs, sWs + 3, sT[1])], sLoc)
    a("  s_mov_b64 exec, -1")
    a("  v_lshrrev_b32 v%d, 1, v%d" % (T1, hI))
    a("  v_lshlrev_b32 v%d, 4, v%d" % (T1, T1))
    mj = hA + 8
    lr, lo = a.lab("Lr"), a.lab("Lo")
    a("  s_mov_b32 s%d, 0" % sCnt)
    a("%s:" % lr)
    a("  buffer_load_dwordx4 v[%d:%d], v%d, s[%d:%d], s%d offen sc1" % (mj, mj + 3, T1, sWs, sWs + 3, sT[0]))
    a("  s_waitcnt vmcnt(0)")
    tag_retry(range(mj, mj + 4), lr, lo, T2, T3, ffn_sleep)
    a("%s:" % lo)
    a("  s_mov_b64 exec, -1")
    a("  v_and_b32 v%d, 1, v%d" % (T2, hI))
    a("  v_cmp_eq_u32 vcc, 1, v%d" % T2)
    a("  s_nop 1")
    a("  v_cndmask_b32 v%d, v%d, v%d, vcc" % (mj, mj, mj + 2))
    a("  v_cndmask_b32 v%d, v%d, v%d, vcc" % (mj + 1, mj + 1, mj + 3))
    lj = mj + 1
    a("  v_and_b32 v%d, s%d, v%d" % (mj, sNotFF, mj))
    a("  v_and_b32 v%d, s%d, v%d" % (lj, sNotFF, lj))
    M2, L2 = hA + 12, hA + 13
    a("  v_mov_b32 v%d, v%d" % (M2, mj))
    a("  s_nop 1")
    a("  v_max_f32_dpp v%d, v%d, v%d row_ror:4 %s" % (M2, M2, M2, DPP))
    a("  s_nop 1")
    a("  v_max_f32_dpp v%d, v%d, v%d row_ror:8 %s" % (M2, M2, M2, DPP))
    a("  v_sub_f32 v%d, v%d, v%d" % (t_, mj, M2))
    a("  v_mul_f32 v%d, s%d, v%d" % (t_, sT[2], t_))
    a("  v_exp_f32 v%d, v%d" % (t_, t_))
    a("  s_nop 0")
    a("  v_mul_f32 v%d, v%d, v%d" % (L2, lj, t_))
    a("  s_nop 1")
    a("  v_add_f32_dpp v%d, v%d, v%d row_ror:4 %s" % (L2, L2, L2, DPP))
    a("  s_nop 1")
    a("  v_add_f32_dpp v%d, v%d, v%d row_ror:8 %s" % (L2, L2, L2, DPP))
    a("  v_sub_f32 v%d, v%d, v%d" % (t_, mw, M2))
    a("  v_mul_f32 v%d, s%d, v%d" % (t_, sT[2], t_))
    a("  v_exp_f32 v%d, v%d" % (t_, t_))
    a("  v_rcp_f32 v%d, v%d" % (L2, L2))
    a("  s_nop 0")
    a("  v_mul_f32 v%d, v%d, v%d" % (t_, t_, L2))
    a("  v_and_b32 v%d, 3, v%d" % (T0, hI))
    a("  v_lshlrev_b32 v%d, 4, v%d" % (T0, T0))
    a("  v_lshrrev_b32 v%d, 2, v%d" % (T1, hI))
    a("  v_lshl_add_u32 v%d, v%d, 2, v%d" % (T0, T1, T0))
    a("  v_add_u32 v%d, v%d, v%d" % (T0, T0, hMisc))
    a("  s_mov_b64 exec, 0xffff")
    a("  ds_write_b32 v%d, v%d offset:%d" % (T0, t_, FFAC))
    a("  s_mov_b64 exec, -1")
    a("  s_waitcnt lgkmcnt(0)")
    a("  s_branch L_B1")

    def reduce_hd(base, tmp):
        a("  s_nop 1")
        for k in range(4):
            a("  v_add_f32_dpp v%d, v%d, v%d row_ror:4 %s" % (base + k, base + k, base + k, DPP))
        a("  s_nop 1")
        for k in range(4):
            a("  v_add_f32_dpp v%d, v%d, v%d row_ror:8 %s" % (base + k, base + k, base + k, DPP))
        for kind in (16, 32):
            for k in range(4):
                a("  v_mov_b32 v%d, v%d" % (tmp + k, base + k))
            a("  s_nop 1")
            for k in range(4):
                a("  v_permlane%d_swap_b32 v%d, v%d" % (kind, base + k, tmp + k))
            pk("v_pk_add_f32", base, base, tmp)
            pk("v_pk_add_f32", base + 2, base + 2, tmp + 2)

    a("L_fin_prep:")
    lds_wait(hMisc, F_LATE, 1, T5, sleep=8)
    a("  buffer_load_dwordx2 v[%d:%d], v%d, s[%d:%d], 0 offen" % (hA + 8, hA + 9, hOutOff, sXd, sXd + 3))
    a("  v_lshlrev_b32 v%d, 4, v0" % T0)
    a("  s_lshl_b32 s%d, s%d, 11" % (sT[0], sFidx))
    a("  s_add_u32 s%d, s%d, %d" % (sT[0], sT[0], DP))
    for k in range(4):
        a("  v_mov_b32 v%d, v%d" % (hA + 4 + k, hTag))
    lr, lo = a.lab("Lr"), a.lab("Lo")
    a("  s_mov_b32 s%d, 0" % sCnt)
    a("%s:" % lr)
    NT = " nt" if gnt & 4 else ""
    a("  buffer_load_dwordx4 v[%d:%d], v%d, s[%d:%d], s%d offen sc1%s" % (hA, hA + 3, T0, sWs, sWs + 3, sT[0], NT))
    a("  s_mov_b64 s[%d:%d], exec" % (sT[4], sT[5]))
    a("  s_and_b32 exec_hi, exec_hi, 0xffff")
    ls = a.lab("Ls")
    a("  s_cbranch_execz %s" % ls)
    a("  buffer_load_dwordx4 v[%d:%d], v%d, s[%d:%d], s%d offen offset:1024 sc1%s" % (hA + 4, hA + 7, T0, sWs, sWs + 3, sT[0], NT))
    a("%s:" % ls)
    a("  s_mov_b64 exec, s[%d:%d]" % (sT[4], sT[5]))
    a("  s_waitcnt vmcnt(0)")
    tag_retry(range(hA, hA + 8), lr, lo, T2, T3, ffn_sleep)
    a("%s:" % lo)
    a("  s_mov_b64 exec, -1")
    pk("v_pk_add_f32", hA, hA, hA + 4)
    pk("v_pk_add_f32", hA + 2, hA + 2, hA + 6)
    reduce_hd(hA, hA + 4)
    hGv = hXf + 4
    for k in range(4):
        round_bf16(hA + k)
    a("  s_mov_b32 s%d, 0xBFB8AA3B" % sT[2])
    for k in range(4):
        a("  v_mul_f32 v%d, s%d, v%d" % (hA + 4 + k, sT[2], hA + k))
    for k in range(4):
        a("  v_exp_f32 v%d, v%d" % (hA + 4 + k, hA + 4 + k))
    a("  s_nop 0")
    for k in range(4):
        a("  v_add_f32 v%d, 1.0, v%d" % (hA + 4 + k, hA + 4 + k))
    for k in range(4):
        a("  v_rcp_f32 v%d, v%d" % (hA + 4 + k, hA + 4 + k))
    a("  s_nop 0")
    for k in range(4):
        a("  v_mul_f32 v%d, v%d, v%d" % (hGv + k, hA + k, hA + 4 + k))
    for k in range(4):
        round_bf16(hGv + k)
    a("  v_lshlrev_b32 v%d, 16, v%d" % (hXf, hA + 8))
    a("  v_and_b32 v%d, s%d, v%d" % (hXf + 1, sHi2, hA + 8))
    a("  v_lshlrev_b32 v%d, 16, v%d" % (hXf + 2, hA + 9))
    a("  v_and_b32 v%d, s%d, v%d" % (hXf + 3, sHi2, hA + 9))
    stamp("prep done")

    a("L_B1:")
    a("  v_lshlrev_b32 v%d, 7, v%d" % (T0, hI))
    a("  v_lshl_add_u32 v%d, v%d, 5, v%d" % (T0, hG, T0))
    a("  s_lshl_b32 s%d, s%d, 14" % (sT[0], sHq))
    a("  s_lshl_b32 s%d, s%d, 11" % (sT[1], sHW))
    a("  s_add_u32 s%d, s%d, s%d" % (sT[0], sT[0], sT[1]))
    a("  s_add_u32 s%d, s%d, %d" % (sT[0], sT[0], OP))
    a("  s_add_u32 s%d, s%d, 8192" % (sT[1], sT[0]))
    a("  v_lshlrev_b32 v%d, 8, v%d" % (T1, hG))
    a("  v_lshl_add_u32 v%d, v%d, 2, v%d" % (T1, hI, T1))
    a("  s_lshl_b32 s%d, s%d, 11" % (sT[2], sHW))
    a("  s_add_u32 s%d, s%d, %d" % (sT[2], sT[2], WOS))
    a("  v_add_u32 v%d, s%d, v%d" % (T1, sT[2], T1))
    a("  s_barrier                      ; B1")
    stamp("B1")
    lw0, lw1 = a.lab("Lew"), a.lab("Lew")
    a("  s_cmp_lg_u32 s%d, 0" % sHW)
    a("  s_cbranch_scc1 %s" % lw0)
    a("  v_lshlrev_b32 v%d, 4, v0" % T4)
    a("  v_mov_b32 v%d, v%d" % (T5, T4))
    a("  s_lshl_b32 s%d, s%d, 9" % (sT[2], sX))
    a("  s_add_u32 s%d, s%d, %d" % (sT[2], sT[2], EW))
    lr, lo = a.lab("Lr"), a.lab("Lo")
    a("  s_mov_b32 s%d, 0" % sCnt)
    a("  s_mov_b32 exec_hi, 0")
    a("%s:" % lr)
    a("  buffer_load_dwordx4 v[%d:%d], v%d, s[%d:%d], s%d offen sc1" % (hA, hA + 3, T5, sWs, sWs + 3, sT[2]))
    a("  s_waitcnt vmcnt(0)")
    tag_retry(range(hA, hA + 4), lr, lo, T2, T3, 2)
    a("%s:" % lo)
    a("  s_mov_b64 exec, -1")
    lds_add(hMisc, F_EW, hOne)
    a("  s_branch %s" % lw1)
    a("%s:" % lw0)
    lds_wait(hMisc, F_EW, 1, T5)
    a("%s:" % lw1)
    stamp("EW ok")
    lr, lo = a.lab("Lr"), a.lab("Lo")
    a("  s_mov_b32 s%d, 0" % sCnt)
    a("%s:" % lr)
    for rt in range(2):
        a("  buffer_load_dwordx4 v[%d:%d], v%d, s[%d:%d], s%d offen sc1" % (hA + 8 * rt, hA + 8 * rt + 3, T0, sWs, sWs + 3, sT[rt]))
        a("  buffer_load_dwordx4 v[%d:%d], v%d, s[%d:%d], s%d offen offset:16 sc1" % (hA + 8 * rt + 4, hA + 8 * rt + 7, T0, sWs, sWs + 3, sT[rt]))
    a("  s_waitcnt vmcnt(0)")
    tag_retry(range(hA, hA + 16), lr, lo, T2, T3, hop_sleep)
    a("%s:" % lo)
    a("  s_mov_b64 exec, -1")
    stamp("hop1 ok")
    for k in range(8):
        a("  v_cvt_pk_bf16_f32 v%d, v%d, v%d" % (hB + k, hA + 2 * k, hA + 2 * k + 1))
    a("  s_nop 1")
    for rt in range(2):
        for ct in range(4):
            d = hD + (rt * 4 + ct) * 4
            a("  v_mfma_f32_16x16x32_bf16 v[%d:%d], v[%d:%d], v[%d:%d], 0" % (d, d + 3, hB + 4 * rt, hB + 4 * rt + 3, hW + ct * 4, hW + ct * 4 + 3))
    a("  s_nop 0")
    for n in range(8):
        d = hD + n * 4
        pk("v_pk_add_f32", d, d, d + 2)
        a("  v_add_f32 v%d, v%d, v%d" % (d, d, d + 1))
    for rt in range(2):
        for ct in range(4):
            d = hD + (rt * 4 + ct) * 4
            a("  ds_write_b32 v%d, v%d offset:%d" % (T1, d, rt * 1024 + ct * 64))
    a("  s_waitcnt lgkmcnt(0)")
    a("  s_barrier")
    a("  s_cmp_eq_u32 s%d, 0" % sHW)
    a("  s_cbranch_scc1 L_hop2")
    a("  s_cmp_eq_u32 s%d, 1" % sHW)
    a("  s_cbranch_scc1 L_H_done")
    a("  s_sub_u32 s%d, s%d, 2" % (sT[0], sHW))
    a("  s_lshl_b32 s%d, s%d, 10" % (sT[1], sT[0]))
    a("  s_add_u32 s%d, s%d, %d" % (sT[1], sT[1], WOS))
    a("  v_lshlrev_b32 v%d, 8, v%d" % (T0, hG))
    a("  v_lshl_add_u32 v%d, v%d, 4, v%d      ; g*256 + i*16" % (T0, hI, T0))
    a("  v_add_u32 v%d, s%d, v%d" % (T0, sT[1], T0))
    a("  v_lshlrev_b32 v%d, 16, v%d" % (T1, hG))
    a("  v_lshrrev_b32 v%d, 3, v%d" % (T2, hI))
    a("  v_lshl_add_u32 v%d, v%d, 12, v%d" % (T1, T2, T1))
    a("  v_and_b32 v%d, 7, v%d" % (T2, hI))
    a("  v_lshl_add_u32 v%d, v%d, 4, v%d" % (T1, T2, T1))
    a("  s_lshl_b32 s%d, s%d, 18" % (sT[0], sT[0]))
    a("  s_lshl_b32 s%d, s%d, 13" % (sT[1], sB))
    a("  s_add_u32 s%d, s%d, s%d" % (sT[0], sT[0], sT[1]))
    a("  s_lshl_b32 s%d, s%d, 7" % (sT[1], sHq))
    a("  s_add_u32 s%d, s%d, s%d" % (sT[0], sT[0], sT[1]))
    a("  s_add_u32 s%d, s%d, %d" % (sT[0], sT[0], SP))
    for w in range(4):
        a("  ds_read_b128 v[%d:%d], v%d offset:%d" % (hA + 4 * w, hA + 4 * w + 3, T0, w * 2048))
    a("  s_waitcnt lgkmcnt(0)")
    for k in (0, 2):
        pk("v_pk_add_f32", hA + k, hA + k, hA + 4 + k)
        pk("v_pk_add_f32", hA + 8 + k, hA + 8 + k, hA + 12 + k)
    for k in (0, 2):
        pk("v_pk_add_f32", hA + k, hA + k, hA + 8 + k)
    for k in range(4):
        tag(hA + k)
    a("  buffer_store_dwordx4 v[%d:%d], v%d, s[%d:%d], s%d offen sc1" % (hA, hA + 3, T1, sWs, sWs + 3, sT[0]))
    a("  s_waitcnt vmcnt(0)")
    a("  s_branch L_H_done")

    a("L_hop2:")
    a("  v_lshrrev_b32 v%d, 2, v0" % T0)
    a("  v_lshlrev_b32 v%d, 7, v%d" % (T0, T0))
    a("  v_and_b32 v%d, 3, v0" % T1)
    a("  v_lshl_add_u32 v%d, v%d, 4, v%d" % (T0, T1, T0))
    a("  s_lshr_b32 s%d, s%d, 1" % (sT[0], sFidx))
    a("  s_lshl_b32 s%d, s%d, 12" % (sT[0], sT[0]))
    a("  s_and_b32 s%d, s%d, 1" % (sT[1], sFidx))
    a("  s_lshl_b32 s%d, s%d, 6" % (sT[1], sT[1]))
    a("  s_add_u32 s%d, s%d, s%d" % (sT[0], sT[0], sT[1]))
    a("  s_add_u32 s%d, s%d, %d" % (sT[0], sT[0], SP))
    lr, lo = a.lab("Lr"), a.lab("Lo")
    a("  s_mov_b32 s%d, 0" % sCnt)
    a("%s:" % lr)
    a("  buffer_load_dwordx4 v[%d:%d], v%d, s[%d:%d], s%d offen sc1" % (hA, hA + 3, T0, sWs, sWs + 3, sT[0]))
    a("  buffer_load_dwordx4 v[%d:%d], v%d, s[%d:%d], s%d offen offset:2048 sc1" % (hA + 4, hA + 7, T0, sWs, sWs + 3, sT[0]))
    a("  s_waitcnt vmcnt(0)")
    tag_retry(range(hA, hA + 8), lr, lo, T2, T3, hop_sleep)
    a("%s:" % lo)
    a("  s_mov_b64 exec, -1")
    stamp("hop2 ok")
    pk("v_pk_add_f32", hA, hA, hA + 4)
    pk("v_pk_add_f32", hA + 2, hA + 2, hA + 6)
    reduce_hd(hA, hA + 4)
    for k in range(4):
        round_bf16(hA + k)
    for k in range(4):
        a("  v_mul_f32 v%d, v%d, v%d" % (hA + k, hA + k, hGv + k))
    for k in range(4):
        round_bf16(hA + k)
    for k in range(4):
        a("  v_add_f32 v%d, v%d, v%d" % (hA + k, hA + k, hXf + k))
    a("  v_cvt_pk_bf16_f32 v%d, v%d, v%d" % (hA, hA, hA + 1))
    a("  v_cvt_pk_bf16_f32 v%d, v%d, v%d" % (hA + 1, hA + 2, hA + 3))
    a("  s_mov_b64 exec, 15")
    a("  buffer_store_dwordx2 v[%d:%d], v%d, s[%d:%d], 0 offen" % (hA, hA + 1, hOutOff, sOut, sOut + 3))
    a("  s_mov_b64 exec, -1")
    le = a.lab("Le")
    a("  s_cmp_lg_u32 s2, 0")
    a("  s_cbranch_scc1 %s" % le)
    a("  s_add_u32 s%d, s%d, 1" % (sT[0], sEp))
    a("  v_mov_b32 v%d, s%d" % (hA + 2, sT[0]))
    a("  v_mov_b32 v%d, %d" % (T0, EPOCH))
    a("  s_mov_b64 exec, 1")
    a("  buffer_store_dword v%d, v%d, s[%d:%d], 0 offen sc1" % (hA + 2, T0, sWs, sWs + 3))
    a("  s_mov_b64 exec, -1")
    a("%s:" % le)
    stamp("end")
    if dbgtime:
        a("  s_memrealtime s[98:99]")
        a("  s_load_dwordx2 s[92:93], s[0:1], 80")
        a("  s_waitcnt lgkmcnt(0)")
        a("  s_mov_b32 s94, 256")
        a("  s_mov_b32 s95, 0x20000")
        a("  s_not_b32 s100, s100")
        a("  v_mov_b32 v%d, s100" % hA)
        a("  v_mov_b32 v%d, s98" % (hA + 1))
        a("  v_mov_b32 v%d, 0" % T0)
        a("  s_mov_b64 exec, 1")
        a("  buffer_atomic_umax v%d, v%d, s[92:95], 0 offen sc1" % (hA, T0))
        a("  buffer_atomic_umax v%d, v%d, s[92:95], 0 offen offset:4 sc1" % (hA + 1, T0))
        a("  s_mov_b64 exec, -1")
    a("L_tsdump:")
    if ts:
        a("  s_waitcnt lgkmcnt(0)")
        a("  s_lshl_b32 s%d, s2, 8" % sT[0])
        a("  s_add_u32 s%d, s%d, %d" % (sT[0], sT[0], TSOFF + 0x10000))
        a("  v_mov_b32 v%d, 0" % T2)
        a("  s_mov_b64 exec, 1")
        for i in range(len(names["H"])):
            a("  v_mov_b32 v%d, s%d" % (hA, TS0 + 2 * i))
            a("  v_mov_b32 v%d, s%d" % (hA + 1, TS0 + 2 * i + 1))
            a("  buffer_store_dwordx2 v[%d:%d], v%d, s[%d:%d], s%d offen offset:%d" % (hA, hA + 1, T2, sWs, sWs + 3, sT[0], 8 * i))
            a("  s_waitcnt vmcnt(0)")
        a("  s_mov_b64 exec, -1")
    a("  s_waitcnt vmcnt(0)")
    a("L_H_done:")
    a("L_end:")
    a("  s_endpgm")
    a("L_code_end:")

    body = a.text()
    s = HEADER
    s += "; @launch grid=(256,1,1) block=(512,1,1) lds=%d\n" % LDS_TOTAL
    s += '.amdgcn_target "amdgcn-amd-amdhsa--gfx950"\n.text\n'
    s += ".globl %s\n.p2align 8\n.type %s,@function\n%s:\n" % (KNAME, KNAME, KNAME)
    s += body
    s += """
.section .rodata,"a"
.p2align 6
.amdhsa_kernel %s
  .amdhsa_next_free_vgpr %d
  .amdhsa_next_free_sgpr 102
  .amdhsa_accum_offset %d
  .amdhsa_group_segment_fixed_size 0
  .amdhsa_kernarg_size 96
  .amdhsa_user_sgpr_count 2
  .amdhsa_user_sgpr_kernarg_segment_ptr 1
  .amdhsa_system_sgpr_workgroup_id_x 1
.end_amdhsa_kernel
""" % (KNAME, NV, NV)
    gen.names = names
    return s


if __name__ == "__main__":
    kw = {}
    out = "main.s"
    for arg in sys.argv[1:]:
        if "=" in arg:
            k, v = arg.split("=")
            kw[k] = int(v)
        else:
            out = arg
    open(out, "w").write(gen(**kw))
    import json
    json.dump(gen.names, open(out[:-2] + ".names.json", "w"))
    print("wrote", out)
```

```python
import sys
from asmlib import HEADER, KNAME

QP = 0x000000
GP = 0x080000
HH = 0x0F0000
OP = 0x100000
ST = 0x180000
DP = 0x190000
SP = 0x210000
EPOCH = 0x0FF000
EW = 0x2A0000
TSOFF = 0x0F000000

RING = 32768
MISC = 131072
XN = MISC
XN_STRIDE = 1040
QL = MISC + 8448
QL_STRIDE = 272
WOS = QL + 1088
WOS = (WOS + 255) // 256 * 256
FLG = WOS + 16384
F_H1 = 0; F_H3 = 8; F_QRDY = 16; F_STG = 20; F_ST = 24; F_HOP1 = 32; F_EW = 36; F_RED = 40; F_DOWN = 44; F_LATE = 48; F_EWS = 52; F_LOC = 56; F_MID = 60
SSTAT = 64
FFAC = 192
SPARE = FLG + 256
LDS_TOTAL = SPARE + 4096
assert LDS_TOTAL <= 163840, LDS_TOTAL
SPIN_LIMIT = 200000


class Asm:
    def __init__(self):
        self.lines = []
        self.nlab = 0

    def __call__(self, s=""):
        for l in s.split("\n"):
            self.lines.append(l)

    def lab(self, base="L"):
        self.nlab += 1
        return "%s_%d" % (base, self.nlab)

    def text(self):
        return "\n".join(self.lines) + "\n"


def vr(base, n=1):
    return "v%d" % base if n == 1 else "v[%d:%d]" % (base, base + n - 1)


def sr(base, n=1):
    return "s%d" % base if n == 1 else "s[%d:%d]" % (base, base + n - 1)


DPP = "row_mask:0xf bank_mask:0xf"


def gen(ts=False, dbg=0, rotmode=3, depth=8, noq=0, noffn=0, hop_sleep=0, ew_it=3, dbgtime=0, noh=0, ffn_sleep=24, skip=0, st_sleep=4, late_it=2, uselocal=1, mid_it=2, r4=0, gnt=0, xnt=0, pf=1, b0pos=0, la=1, gplocal=1, early_census=1, layout=1):
    a = Asm()
    sW, sX, sLi, sCnt = 3, 4, 5, 6
    sT = [20, 21, 22, 23, 24, 25, 26, 27]
    TS0 = 68
    nts = [0]

    names = {"S": ["start"], "H": ["start"]}
    role = ["S"]

    def stamp(name):
        if name == 0:
            if ts:
                a("  s_memrealtime s[%d:%d]" % (TS0, TS0 + 1))
            return
        lst = names[role[0]]
        if name not in lst:
            lst.append(name)
        idx = lst.index(name)
        assert TS0 + 2 * idx + 1 <= 101
        if ts:
            a("  s_memrealtime s[%d:%d]" % (TS0 + 2 * idx, TS0 + 2 * idx + 1))

    def lds_wait(vbase, off, n, vtmp, sleep=1):
        l0, l1 = a.lab("Lw"), a.lab("Lwd")
        a("  s_mov_b32 s%d, 0" % sCnt)
        a("%s:" % l0)
        a("  ds_read_b32 v%d, v%d offset:%d" % (vtmp, vbase, off))
        a("  s_waitcnt lgkmcnt(0)")
        a("  v_readfirstlane_b32 s%d, v%d" % (sT[7], vtmp))
        a("  s_cmp_ge_u32 s%d, %d" % (sT[7], n))
        a("  s_cbranch_scc1 %s" % l1)
        a("  s_add_u32 s%d, s%d, 1" % (sCnt, sCnt))
        a("  s_cmp_lt_u32 s%d, %d" % (sCnt, SPIN_LIMIT))
        a("  s_cbranch_scc0 %s" % l1)
        a("  s_sleep %d" % sleep)
        a("  s_branch %s" % l0)
        a("%s:" % l1)

    def lds_add(vbase, off, vone):
        a("  s_mov_b64 exec, 1")
        a("  ds_add_u32 v%d, v%d offset:%d" % (vbase, vone, off))
        a("  s_mov_b64 exec, -1")

    def store_loc(stores, sflag):
        l0, l1 = a.lab("Lsl"), a.lab("Lsl")
        a("  s_cmp_eq_u32 s%d, 0" % sflag)
        a("  s_cbranch_scc1 %s" % l0)
        for st in stores:
            a(st)
        a("  s_branch %s" % l1)
        a("%s:" % l0)
        for st in stores:
            a(st + " sc1")
        a("%s:" % l1)

    def reduce_swap(op, v, t, kind):
        a("  v_mov_b32 v%d, v%d" % (t, v))
        a("  s_nop 1")
        a("  v_permlane%d_swap_b32 v%d, v%d" % (kind, v, t))
        a("  %s v%d, v%d, v%d" % (op, v, v, t))

    a("  s_cmp_ge_u32 s2, 256")
    a("  s_cbranch_scc1 L_end")
    stamp(0)
    if dbgtime:
        a("  s_memrealtime s[100:101]")
    a("  v_lshrrev_b32 v1, 6, v0")
    a("  v_and_b32 v0, 63, v0            ; lane")
    a("  v_readfirstlane_b32 s%d, v1     ; wave id" % sW)
    a("  s_and_b32 s%d, s2, 7" % sX)
    a("  s_lshr_b32 s%d, s2, 3" % sLi)
    a("  s_cmp_ge_u32 s%d, 4" % sW)
    a("  s_cbranch_scc1 L_H")

    sK, sV, sCur = 8, 12, 16
    sBaseW, sRot, sRing, sIss, sOff, sIt = 28, 29, 30, 31, 32, 33
    sOff1 = 50
    sM = 34
    sScale, sHi = 42, 43
    vLane = 0
    vMisc, vOne = 2, 3
    vKo, vVo, vCo = 4, 8, 12
    vKa = 16
    vVa = 20
    vTmp = 28
    vSp = 36
    vPf = 44
    vAcc = 52
    vE = 56
    vSt = 72
    vO = 104
    vQ = 136
    NV = 200

    sWsS = 44
    sEp = 48
    sBaseW1 = 49
    a("L_S:")
    if pf:
        lpf = a.lab("Lpf")
        a("  s_cmp_lg_u32 s%d, 3" % sW)
        a("  s_cbranch_scc1 %s" % lpf)
        a("  s_and_b32 s%d, s%d, 15" % (sT[0], sLi))
        a("  s_cmp_lg_u32 s%d, 0" % sT[0])
        a("  s_cbranch_scc1 %s" % lpf)
        a("  s_getpc_b64 s[%d:%d]" % (sT[2], sT[3]))
        a("L_pc:")
        a("  v_lshlrev_b32 v%d, 7, v%d" % (vTmp + 2, vLane))
        a("  v_add_u32 v%d, 0x2000, v%d" % (vTmp + 3, vTmp + 2))
        a("  global_load_dword v%d, v%d, s[%d:%d]" % (vSt, vTmp + 2, sT[2], sT[3]))
        a("  v_cmp_gt_u32 vcc, L_code_end-L_pc, v%d" % (vTmp + 3))
        a("  s_and_saveexec_b64 s[%d:%d], vcc" % (sT[4], sT[5]))
        a("  s_cbranch_execz L_pf_done")
        a("  global_load_dword v%d, v%d, s[%d:%d]" % (vSt + 1, vTmp + 3, sT[2], sT[3]))
        a("L_pf_done:")
        a("  s_mov_b64 exec, -1")
        a("%s:" % lpf)
    a("  s_load_dwordx2 s[%d:%d], s[0:1], 8" % (sCur, sCur + 1))
    a("  s_load_dwordx2 s[%d:%d], s[0:1], 16" % (sV, sV + 1))
    a("  s_load_dwordx2 s[%d:%d], s[0:1], 88" % (sWsS, sWsS + 1))
    a("  s_mov_b32 s%d, 0x4000000" % (sCur + 2))
    a("  s_mov_b32 s%d, 0x20000" % (sCur + 3))
    a("  s_lshr_b32 s%d, s%d, 2" % (sT[0], sLi))
    a("  s_lshl_b32 s%d, s%d, 3" % (sT[0], sT[0]))
    a("  s_add_u32 s%d, s%d, s%d" % (sT[0], sT[0], sX))
    a("  s_lshl_b32 s%d, s%d, 2" % (sT[0], sT[0]))
    a("  s_and_b32 s%d, s%d, 3" % (sT[1], sLi))
    a("  s_add_u32 s%d, s%d, s%d" % (sT[0], sT[0], sT[1]))
    a("  s_lshl_b32 s%d, s%d, 18" % (sT[0], sT[0]))
    a("  s_lshl_b32 s%d, s%d, 13" % (sT[1], sW))
    if r4:
        if r4 == 1:
            a("  s_lshl_b32 s%d, s%d, 12" % (sT[2], sLi))
        else:
            a("  s_lshr_b32 s%d, s%d, 2" % (sT[2], sLi))
            a("  s_add_u32 s%d, s%d, s%d" % (sT[2], sT[2], sX))
            a("  s_lshl_b32 s%d, s%d, 12" % (sT[2], sT[2]))
        a("  s_add_u32 s%d, s%d, s%d" % (sT[1], sT[1], sT[2]))
        a("  s_add_u32 s%d, s%d, 4096" % (sT[2], sT[1]))
        a("  s_and_b32 s%d, s%d, 0x7fff" % (sT[1], sT[1]))
        a("  s_and_b32 s%d, s%d, 0x7fff" % (sT[2], sT[2]))
        a("  s_add_u32 s%d, s%d, s%d" % (sBaseW, sT[0], sT[1]))
        a("  s_add_u32 s%d, s%d, s%d" % (sBaseW1, sT[0], sT[2]))
    else:
        a("  s_add_u32 s%d, s%d, s%d" % (sBaseW, sT[0], sT[1]))
        a("  s_add_u32 s%d, s%d, 4096" % (sBaseW1, sBaseW))
    if rotmode == 0:
        sRotR = 2
    elif rotmode == 3:
        sRotR = sLi
    else:
        a("  s_add_u32 s%d, s2, s%d" % (sRot, sLi))
        sRotR = sRot
    a("  s_lshl_b32 s%d, s%d, 15" % (sRing, sW))
    a("  s_mov_b32 s%d, 0" % sIss)
    t0, t1, t2 = vTmp, vTmp + 1, vTmp + 2
    a("  v_lshrrev_b32 v%d, 4, v%d      ; g = l>>4" % (t0, vLane))
    a("  v_and_b32 v%d, 15, v%d         ; c' = l&15" % (t1, vLane))
    for i in range(4):
        a("  v_add_u32 v%d, %d, v%d" % (t2, 4 * i, t0))
        a("  v_xor_b32 v%d, v%d, v%d" % (t2, t2, t1))
        a("  v_lshlrev_b32 v%d, 4, v%d" % (t2, t2))
        a("  v_lshl_add_u32 v%d, v%d, 8, v%d" % (vCo + i, t0, t2))
    a("  v_mov_b32 v%d, %d" % (vMisc, FLG))
    a("  v_mov_b32 v%d, 1" % vOne)
    a("  s_waitcnt lgkmcnt(0)")
    a("  s_barrier                      ; B0")

    def issue_unit(switch=False):
        if switch:
            lsw = a.lab("Lsw")
            a("  s_cmp_lg_u32 s%d, 8" % sIss)
            a("  s_cbranch_scc1 %s" % lsw)
            for i in range(4):
                a("  s_mov_b32 s%d, s%d" % (sCur + i, sV + i))
            for i in range(4):
                a("  v_mov_b32 v%d, v%d" % (vCo + i, vVo + (i & 1)))
            a("%s:" % lsw)
        a("  s_add_u32 s%d, s%d, s%d" % (sT[0], sIss, sRotR))
        a("  s_and_b32 s%d, s%d, 7" % (sT[0], sT[0]))
        a("  s_lshl_b32 s%d, s%d, 15" % (sT[0], sT[0]))
        a("  s_add_u32 s%d, s%d, s%d" % (sOff, sT[0], sBaseW))
        a("  s_add_u32 s%d, s%d, s%d" % (sOff1, sT[0], sBaseW1))
        a("  s_and_b32 s%d, s%d, 3" % (sT[0], sIss))
        a("  s_lshl_b32 s%d, s%d, 13" % (sT[0], sT[0]))
        a("  s_add_u32 m0, s%d, s%d" % (sT[0], sRing))
        a("  s_add_u32 s%d, s%d, 1" % (sIss, sIss))
        a("  s_waitcnt vmcnt(%d)" % (depth - 1))
        for i in range(4):
            a("  buffer_load_dwordx4 v%d, s[%d:%d], s%d offen offset:%d nt lds" % (vCo + i, sCur, sCur + 3, sOff, i * 1024))
            if i < 3:
                a("  s_waitcnt vmcnt(%d)" % (depth - 1))
        a("  s_add_u32 m0, m0, 4096")
        a("  s_waitcnt vmcnt(%d)" % (depth - 1))
        for i in range(4):
            a("  buffer_load_dwordx4 v%d, s[%d:%d], s%d offen offset:%d nt lds" % (vCo + i, sCur, sCur + 3, sOff1, i * 1024))
            if i < 3:
                a("  s_waitcnt vmcnt(%d)" % (depth - 1))

    a("L_fill:")
    a("  s_cmp_lg_u32 s%d, 3" % sIss)
    a("  s_cbranch_scc1 L_fill_go")
    stamp("u2 issued")
    lds_wait(vMisc, F_STG, 4, vTmp + 5)
    stamp("STG ok")
    a("L_fill_go:")
    issue_unit()

    a("  s_cmp_lt_u32 s%d, 4" % sIss)
    a("  s_cbranch_scc1 L_fill")
    a("  s_load_dword s%d, s[%d:%d], 0x%x" % (sEp, sWsS, sWsS + 1, EPOCH))
    a("  s_mov_b32 s%d, 0x4000000" % (sV + 2))
    a("  s_mov_b32 s%d, 0x20000" % (sV + 3))
    a("  s_mov_b32 s%d, 0x10000000" % (sWsS + 2))
    a("  s_mov_b32 s%d, 0x20000" % (sWsS + 3))
    for i in range(2):
        a("  v_add_u32 v%d, %d, v%d" % (t2, 4 * i, t0))
        a("  v_lshlrev_b32 v%d, 1, v%d" % (t2, t2))
        a("  v_xor_b32 v%d, v%d, v%d" % (t2, t2, t1))
        a("  v_lshlrev_b32 v%d, 4, v%d" % (t2, t2))
        a("  v_lshl_add_u32 v%d, v%d, 8, v%d" % (vVo + i, t0, t2))
    for s in range(4):
        a("  v_add_u32 v%d, %d, v%d" % (t2, 4 * s, t0))
        a("  v_xor_b32 v%d, v%d, v%d" % (t2, t2, t1))
        a("  v_lshlrev_b32 v%d, 4, v%d" % (t2, t2))
        a("  v_lshl_add_u32 v%d, v%d, 8, v%d" % (t2, t1, t2))
        a("  v_add_u32 v%d, s%d, v%d" % (vKa + s, sRing, t2))
    t3, t4 = vTmp + 3, vTmp + 4
    a("  v_lshrrev_b32 v%d, 2, v%d" % (t2, t1))
    a("  v_lshl_add_u32 v%d, v%d, 2, v%d    ; row" % (t2, t0, t2))
    a("  v_and_b32 v%d, 7, v%d              ; row&7" % (t3, t2))
    a("  v_lshlrev_b32 v%d, 8, v%d" % (t2, t2))
    a("  v_and_b32 v%d, 3, v%d" % (t4, t1))
    a("  v_lshl_add_u32 v%d, v%d, 3, v%d" % (t2, t4, t2))
    a("  v_add_u32 v%d, s%d, v%d" % (t2, sRing, t2))
    for dt in range(8):
        a("  v_xor_b32 v%d, %d, v%d" % (t4, dt, t3))
        a("  v_lshl_add_u32 v%d, v%d, 5, v%d" % (vVa + dt, t4, t2))
    for i in range(64):
        a("  v_mov_b32 v%d, 0" % (vQ + i))
    a("  v_bfe_u32 v%d, v%d, 2, 2" % (t2, vLane))
    for t in range(4):
        a("  v_cmp_eq_u32 s[%d:%d], %d, v%d" % (sM + 2 * t, sM + 2 * t + 1, t, t2))
    a("  v_and_b32 v%d, 3, v%d" % (t2, vLane))
    a("  v_mul_u32_u24 v%d, %d, v%d" % (t2, QL_STRIDE, t2))
    a("  v_lshl_add_u32 v%d, v%d, 4, v%d" % (t2, t0, t2))
    a("  v_add_u32 v%d, %d, v%d" % (t2, QL, t2))
    a("  s_mov_b32 s%d, 0x3DB504F3      ; 128^-0.5" % sScale)
    a("  s_mov_b32 s%d, 0xffff0000" % sHi)
    stamp("fill done")
    if not noq:
        lds_wait(vMisc, F_QRDY, 4, vTmp + 5)
    stamp("Q ready")
    for t in range(4):
        a("  s_mov_b64 exec, s[%d:%d]" % (sM + 2 * t, sM + 2 * t + 1))
        for s in range(4):
            r = vQ + (t * 4 + s) * 4
            a("  ds_read_b128 v[%d:%d], v%d offset:%d" % (r, r + 3, t2, 64 * s))
    a("  s_mov_b64 exec, -1")
    a("  s_mov_b32 s%d, 0" % sIt)
    a("  s_waitcnt vmcnt(0) lgkmcnt(0)")

    a("L_k:")
    lmid = a.lab("Lmid")
    a("  s_cmp_lg_u32 s%d, 0" % sW)
    a("  s_cbranch_scc1 %s" % lmid)
    a("  s_cmp_lg_u32 s%d, %d" % (sIt, mid_it))
    a("  s_cbranch_scc1 %s" % lmid)
    lds_add(vMisc, F_MID, vOne)
    a("%s:" % lmid)
    for u in range(2):
        if u == 0:
            lsk = a.lab("Lsk")
            a("  s_cmp_lt_u32 s%d, %d" % (sIt, 3 if la == 1 else 2))
            a("  s_cbranch_scc1 %s" % lsk)
            issue_unit(switch=(la == 2))
            a("%s:" % lsk)
        else:
            issue_unit(switch=(la == 1))
        for hf in range(2):
            for s_ in range(4):
                r = vSt + (hf * 4 + s_) * 4
                a("  ds_read_b128 v[%d:%d], v%d offset:%d" % (r, r + 3, vKa + s_, u * 8192 + hf * 4096))
        for hf in range(2):
            a("  s_waitcnt lgkmcnt(%d)" % (4 if hf == 0 else 0))
            t = 2 * u + hf
            for s_ in range(4):
                r = vSt + (hf * 4 + s_) * 4
                q = vQ + (t * 4 + s_) * 4
                c = "0" if (u == 0 and hf == 0 and s_ == 0) else "v[%d:%d]" % (vAcc, vAcc + 3)
                a("  v_mfma_f32_16x16x32_bf16 v[%d:%d], v[%d:%d], v[%d:%d], %s" % (vAcc, vAcc + 3, r, r + 3, q, q + 3, c))
    for i in range(6):
        a("  v_mov_b32 v%d, v%d" % (vSp + i, vSp + i + 2))
    for s in range(4):
        a("  v_xor_b32 v%d, 0x4000, v%d" % (vKa + s, vKa + s))
    c0, c1 = vTmp, vTmp + 1
    e0 = vTmp + 2
    a("  v_cvt_pk_bf16_f32 v%d, v%d, v%d" % (c0, vAcc, vAcc + 1))
    a("  v_cvt_pk_bf16_f32 v%d, v%d, v%d" % (c1, vAcc + 2, vAcc + 3))
    a("  v_lshlrev_b32 v%d, 16, v%d" % (e0, c0))
    a("  v_and_b32 v%d, s%d, v%d" % (e0 + 1, sHi, c0))
    a("  v_lshlrev_b32 v%d, 16, v%d" % (e0 + 2, c1))
    a("  v_and_b32 v%d, s%d, v%d" % (e0 + 3, sHi, c1))
    for i in range(4):
        a("  v_mul_f32 v%d, s%d, v%d" % (e0 + i, sScale, e0 + i))
    a("  v_cvt_pk_bf16_f32 v%d, v%d, v%d" % (vSp + 6, e0, e0 + 1))
    a("  v_cvt_pk_bf16_f32 v%d, v%d, v%d" % (vSp + 7, e0 + 2, e0 + 3))
    a("  s_add_u32 s%d, s%d, 1" % (sIt, sIt))
    a("  s_cmp_lt_u32 s%d, 4" % sIt)
    a("  s_cbranch_scc1 L_k")
    stamp("K done")

    for i in range(8):
        a("  v_lshlrev_b32 v%d, 16, v%d" % (vE + 2 * i, vSp + i))
        a("  v_and_b32 v%d, s%d, v%d" % (vE + 2 * i + 1, sHi, vSp + i))
    vM, vL, vX = vTmp, vTmp + 1, vTmp + 2
    a("  v_max3_f32 v%d, v%d, v%d, v%d" % (vM, vE, vE + 1, vE + 2))
    for i in range(3, 15, 2):
        a("  v_max3_f32 v%d, v%d, v%d, v%d" % (vM, vM, vE + i, vE + i + 1))
    a("  v_max_f32 v%d, v%d, v%d" % (vM, vM, vE + 15))
    a("  s_nop 1")
    a("  v_max_f32_dpp v%d, v%d, v%d row_ror:4 %s" % (vM, vM, vM, DPP))
    a("  s_nop 1")
    a("  v_max_f32_dpp v%d, v%d, v%d row_ror:8 %s" % (vM, vM, vM, DPP))
    reduce_swap("v_max_f32", vM, vX, 16)
    reduce_swap("v_max_f32", vM, vX, 32)
    a("  s_mov_b32 s%d, 0x3FB8AA3B      ; log2(e)" % sT[0])
    a("  v_mul_f32 v%d, s%d, v%d" % (vX, sT[0], vM))
    for i in range(16):
        a("  v_fma_f32 v%d, v%d, s%d, -v%d" % (vE + i, vE + i, sT[0], vX))
    for i in range(16):
        a("  v_exp_f32 v%d, v%d" % (vE + i, vE + i))
    a("  s_nop 0")
    for i in range(8):
        a("  v_cvt_pk_bf16_f32 v%d, v%d, v%d" % (vSp + i, vE + 2 * i, vE + 2 * i + 1))
    for i in range(4):
        a("  v_pk_add_f32 v[%d:%d], v[%d:%d], v[%d:%d]" % (vE + 2 * i, vE + 2 * i + 1, vE + 2 * i, vE + 2 * i + 1, vE + 8 + 2 * i, vE + 9 + 2 * i))
    for i in range(2):
        a("  v_pk_add_f32 v[%d:%d], v[%d:%d], v[%d:%d]" % (vE + 2 * i, vE + 2 * i + 1, vE + 2 * i, vE + 2 * i + 1, vE + 4 + 2 * i, vE + 5 + 2 * i))
    a("  v_pk_add_f32 v[%d:%d], v[%d:%d], v[%d:%d]" % (vE, vE + 1, vE, vE + 1, vE + 2, vE + 3))
    a("  v_add_f32 v%d, v%d, v%d" % (vL, vE, vE + 1))
    a("  s_nop 1")
    a("  v_add_f32_dpp v%d, v%d, v%d row_ror:4 %s" % (vL, vL, vL, DPP))
    a("  s_nop 1")
    a("  v_add_f32_dpp v%d, v%d, v%d row_ror:8 %s" % (vL, vL, vL, DPP))
    reduce_swap("v_add_f32", vL, vX, 16)
    reduce_swap("v_add_f32", vL, vX, 32)
    a("  s_lshl_b32 s%d, s%d, 5" % (sT[0], sW))
    a("  v_lshlrev_b32 v%d, 3, v%d" % (vX, vLane))
    a("  v_add_u32 v%d, s%d, v%d" % (vX, sT[0], vX))
    a("  v_add_u32 v%d, v%d, v%d" % (vX, vMisc, vX))
    a("  s_mov_b64 exec, 15")
    a("  ds_write_b64 v%d, v[%d:%d] offset:%d" % (vX, vM, vM + 1, SSTAT))
    a("  s_waitcnt lgkmcnt(0)")
    a("  s_mov_b64 exec, -1")
    lds_add(vMisc, F_ST, vOne)

    for i in range(32):
        a("  v_mov_b32 v%d, 0" % (vO + i))
    a("  s_mov_b32 s%d, 0" % sIt)
    a("L_v:")
    a("  v_mov_b32 v%d, v%d" % (vPf, vSp))
    a("  v_mov_b32 v%d, v%d" % (vPf + 1, vSp + 1))
    for k, sh in ((2, 4), (4, 8), (6, 12)):
        a("  v_mov_b32_dpp v%d, v%d row_shl:%d %s bound_ctrl:0" % (vPf + k, vSp, sh, DPP))
        a("  v_mov_b32_dpp v%d, v%d row_shl:%d %s bound_ctrl:0" % (vPf + k + 1, vSp + 1, sh, DPP))
    for i in range(6):
        a("  v_mov_b32 v%d, v%d" % (vSp + i, vSp + i + 2))
    lew = a.lab("Lew")
    a("  s_cmp_lg_u32 s%d, 0" % sW)
    a("  s_cbranch_scc1 %s" % lew)
    lew2 = a.lab("Lew")
    a("  s_cmp_lg_u32 s%d, %d" % (sIt, late_it))
    a("  s_cbranch_scc1 %s" % lew2)
    lds_add(vMisc, F_LATE, vOne)
    a("%s:" % lew2)
    a("  s_cmp_lg_u32 s%d, %d" % (sIt, ew_it))
    a("  s_cbranch_scc1 %s" % lew)
    lds_add(vMisc, F_EWS, vOne)
    a("%s:" % lew)
    for u in range(2):
        if u == 0 and la == 1:
            issue_unit()
        else:
            lv_else, lv_done = a.lab("Lve"), a.lab("Lvd")
            a("  s_cmp_ge_u32 s%d, 3" % sIt)
            a("  s_cbranch_scc1 %s" % lv_else)
            issue_unit()
            a("  s_branch %s" % lv_done)
            a("%s:" % lv_else)
            a("  s_waitcnt vmcnt(%d)" % (8 if u == 0 else 0))
            a("%s:" % lv_done)
        for dt in range(8):
            r = vSt + dt * 4
            a("  ds_read_b64_tr_b16 v[%d:%d], v%d offset:%d" % (r, r + 1, vVa + dt, u * 8192))
            a("  ds_read_b64_tr_b16 v[%d:%d], v%d offset:%d" % (r + 2, r + 3, vVa + dt, u * 8192 + 4096))
        for dt in range(8):
            r = vSt + dt * 4
            o = vO + dt * 4
            if dt % 2 == 0:
                a("  s_waitcnt lgkmcnt(%d)" % (12 - 2 * dt if dt < 6 else 0))
            a("  v_mfma_f32_16x16x32_bf16 v[%d:%d], v[%d:%d], v[%d:%d], v[%d:%d]" % (o, o + 3, r, r + 3, vPf + 4 * u, vPf + 4 * u + 3, o, o + 3))
    for dt in range(8):
        a("  v_xor_b32 v%d, 0x4000, v%d" % (vVa + dt, vVa + dt))
    a("  s_add_u32 s%d, s%d, 1" % (sIt, sIt))
    a("  s_cmp_lt_u32 s%d, 4" % sIt)
    a("  s_cbranch_scc1 L_v")
    stamp("V done")
    a("  v_and_b32 v%d, 15, v%d" % (t1, vLane))
    a("  v_lshrrev_b32 v%d, 4, v%d" % (t0, vLane))
    a("  v_lshlrev_b32 v%d, 9, v%d" % (t2, t1))
    a("  v_lshl_add_u32 v%d, v%d, 4, v%d" % (t2, t0, t2))
    a("  v_add_u32 v%d, s%d, v%d" % (t2, sRing, t2))
    a("  v_cmp_gt_u32 vcc, 4, v%d" % t1)
    a("  s_nop 4")
    a("  s_mov_b64 exec, vcc")
    for dt in range(8):
        a("  ds_write_b128 v%d, v[%d:%d] offset:%d" % (t2, vO + dt * 4, vO + dt * 4 + 3, dt * 64))
    a("  s_mov_b64 exec, -1")
    vR0, vR1, vR2, vR3 = vPf, vPf + 1, vPf + 2, vPf + 3
    a("  v_lshlrev_b32 v%d, 9, v%d" % (vR0, t0))
    a("  v_lshl_add_u32 v%d, v%d, 4, v%d      ; h*512 + c*16" % (vR0, t1, vR0))
    a("  v_lshl_add_u32 v%d, v%d, 4, v%d      ; FLG + h*16" % (vR1, t0, vMisc))
    a("  v_lshlrev_b32 v%d, 14, v%d" % (vR2, t0))
    a("  v_lshrrev_b32 v%d, 3, v%d" % (t3, t1))
    a("  v_lshl_add_u32 v%d, v%d, 11, v%d" % (vR2, t3, vR2))
    a("  v_and_b32 v%d, 7, v%d" % (t3, t1))
    a("  v_lshl_add_u32 v%d, v%d, 4, v%d" % (vR2, t3, vR2))
    a("  s_lshl_b32 s%d, s%d, 16" % (sT[0], sX))
    a("  s_lshr_b32 s%d, s%d, 4" % (sT[1], sLi))
    a("  s_lshl_b32 s%d, s%d, 13" % (sT[1], sT[1]))
    a("  s_add_u32 s%d, s%d, s%d" % (sT[0], sT[0], sT[1]))
    a("  s_and_b32 s%d, s%d, 15" % (sT[1], sLi))
    a("  s_lshl_b32 s%d, s%d, 7" % (sT[1], sT[1]))
    a("  s_add_u32 s%d, s%d, s%d" % (sT[0], sT[0], sT[1]))
    a("  s_add_u32 s%d, s%d, %d" % (sT[0], sT[0], OP))
    a("  s_add_u32 s%d, s%d, 1" % (sT[1], sEp))
    a("  s_and_b32 s%d, s%d, 0xff" % (sT[1], sT[1]))
    a("  v_mov_b32 v%d, s%d" % (vR3, sT[1]))
    a("  s_add_u32 s%d, s%d, 4096" % (sT[1], sT[0]))
    a("  s_mov_b32 s%d, 0xffffff00" % sT[2])
    lds_wait(vMisc, F_LOC, 1, t3)
    a("  s_lshr_b32 s%d, s%d, 1" % (sT[3], sT[7]))
    a("  s_waitcnt lgkmcnt(0)")
    a("  s_barrier                      ; B1")
    a("  s_cmp_lg_u32 s%d, 0" % sW)
    a("  s_cbranch_scc1 L_S_done")
    sWs = sWsS
    for w in range(4):
        a("  ds_read_b128 v[%d:%d], v%d offset:%d" % (vSt + w * 8, vSt + w * 8 + 3, vR0, (w & 1) * 32768))
        a("  ds_read_b128 v[%d:%d], v%d offset:%d" % (vSt + w * 8 + 4, vSt + w * 8 + 7, vR0, (w & 1) * 32768 + 256))
        if w == 1:
            a("  v_add_u32 v%d, 0x10000, v%d" % (vR0, vR0))
    a("  ds_read_b128 v[%d:%d], v%d offset:%d" % (vE, vE + 3, vR1, FFAC))
    a("  s_waitcnt lgkmcnt(0)")
    for i in range(8):
        a("  v_mul_f32 v%d, v%d, v%d" % (vO + i, vSt + i, vE))
    for w in range(1, 4):
        for i in range(8):
            a("  v_fmac_f32 v%d, v%d, v%d" % (vO + i, vSt + w * 8 + i, vE + w))
    for i in range(8):
        a("  v_and_or_b32 v%d, v%d, s%d, v%d" % (vO + i, vO + i, sT[2], vR3))
    store_loc(["  buffer_store_dwordx4 v[%d:%d], v%d, s[%d:%d], s%d offen" % (vO, vO + 3, vR2, sWs, sWs + 3, sT[0]),
               "  buffer_store_dwordx4 v[%d:%d], v%d, s[%d:%d], s%d offen" % (vO + 4, vO + 7, vR2, sWs, sWs + 3, sT[1])], sT[3])
    stamp("published")
    a("  s_barrier                      ; B2")
    if ts:
        a("  s_waitcnt lgkmcnt(0)")
        a("  s_lshl_b32 s%d, s2, 8" % sT[0])
        a("  s_add_u32 s%d, s%d, %d" % (sT[0], sT[0], TSOFF))
        a("  v_mov_b32 v%d, 0" % t2)
        a("  s_mov_b64 exec, 1")
        for i in range(len(names["S"])):
            a("  v_mov_b32 v%d, s%d" % (vO, TS0 + 2 * i))
            a("  v_mov_b32 v%d, s%d" % (vO + 1, TS0 + 2 * i + 1))
            a("  buffer_store_dwordx2 v[%d:%d], v%d, s[%d:%d], s%d offen offset:%d" % (vO, vO + 1, t2, sWs, sWs + 3, sT[0], 8 * i))
            a("  s_waitcnt vmcnt(0)")
        a("  s_mov_b64 exec, -1")
    a("L_S_done:")
    a("  s_endpgm")

    role[0] = "H"
    a("L_H:")
    sHW = 7
    sXd, sWq, sWs, sGU, sWd, sWo, sOut = 8, 12, 16, 32, 36, 40, 44
    sEp = 28
    sTag = 29
    sNotFF = 30
    sTag4 = 31
    sHi2 = 48
    sFi = 49
    sSelA, sSelB = 50, 54
    sB = 51; sJ = 52; sFidx = 53
    sKb2 = 55
    sLo8 = 60
    sFv = 3
    sLoc = 56
    sDbg = 64
    sHq = 62
    sWoStg = 63
    hMisc, hOne = 2, 3
    hG, hI = 4, 5
    hT = 6
    hX = 16
    hF = 24
    hY = 40
    hA = 56
    hB = 72
    hD = 88
    hW = 120
    hXf = 136
    hZ = 144
    hTag = 156
    hWd = 160
    T0, T1, T2, T3, T4, T5 = hT, hT + 1, hT + 2, hT + 3, hT + 4, hT + 5
    hTr, hXn, hW1k, hTrG, hOutOff = hZ + 1, hZ + 2, hZ + 4, hZ + 5, hZ + 6

    a("  s_load_dwordx2 s[%d:%d], s[0:1], 0" % (sXd, sXd + 1))
    a("  s_load_dwordx2 s[%d:%d], s[0:1], 24" % (sWq, sWq + 1))
    a("  s_load_dwordx4 s[56:59], s[0:1], 48")
    a("  s_load_dwordx2 s[%d:%d], s[0:1], 88" % (sWs, sWs + 1))
    a("  v_lshlrev_b32 v%d, 2, v0" % T0)
    a("  v_add_u32 v%d, %d, v%d" % (T0, FLG, T0))
    a("  v_mov_b32 v%d, 0" % T1)
    a("  ds_write_b32 v%d, v%d" % (T0, T1))
    a("  s_sub_u32 s%d, s%d, 4" % (sHW, sW))
    a("  s_mov_b32 s%d, 8192" % (sXd + 2))
    a("  s_mov_b32 s%d, 0x20000" % (sXd + 3))
    a("  v_lshrrev_b32 v%d, 5, v0" % T0)
    a("  s_lshl_b32 s%d, s%d, 1" % (sT[0], sHW))
    a("  v_add_u32 v%d, s%d, v%d          ; row b" % (T0, sT[0], T0))
    a("  v_and_b32 v%d, 31, v0" % T1)
    a("  v_lshlrev_b32 v%d, 5, v%d" % (T1, T1))
    a("  v_lshl_add_u32 v%d, v%d, 10, v%d" % (T2, T0, T1))
    a("  s_waitcnt lgkmcnt(0)")
    a("  buffer_load_dwordx4 v[%d:%d], v%d, s[%d:%d], 0 offen%s" % (hX, hX + 3, T2, sXd, sXd + 3, " nt" if xnt else ""))
    a("  buffer_load_dwordx4 v[%d:%d], v%d, s[%d:%d], 0 offen offset:16%s" % (hX + 4, hX + 7, T2, sXd, sXd + 3, " nt" if xnt else ""))
    a("  v_lshrrev_b32 v%d, 3, v0" % T3)
    a("  v_and_b32 v%d, 7, v0" % T4)
    a("  v_lshlrev_b32 v%d, 4, v%d" % (T4, T4))
    a("  v_lshl_add_u32 v%d, v%d, 13, v%d" % (T5, T3, T4))
    a("  s_and_b32 s%d, s%d, 3" % (sJ, sLi))
    a("  s_lshr_b32 s%d, s%d, 2" % (sB, sLi))
    a("  s_lshl_b32 s%d, s%d, 2" % (sT[0], sJ))
    a("  s_add_u32 s%d, s%d, s%d" % (sT[0], sT[0], sHW))
    a("  s_lshl_b32 s%d, s%d, 18" % (sT[0], sT[0]))
    a("  s_lshl_b32 s%d, s%d, 3" % (sT[1], sX))
    a("  s_add_u32 s%d, s%d, s%d" % (sT[1], sT[1], sB))
    a("  s_lshl_b32 s%d, s%d, 7" % (sT[1], sT[1]))
    a("  s_add_u32 s%d, s%d, s%d" % (sT[0], sT[0], sT[1]))
    a("  s_lshr_b32 s%d, s%d, 1" % (sT[1], sHW))
    a("  s_lshl_b32 s%d, s%d, 15" % (sT[1], sT[1]))
    a("  s_and_b32 s%d, s%d, 1" % (sT[2], sHW))
    a("  s_lshl_b32 s%d, s%d, 12" % (sT[2], sT[2]))
    a("  s_add_u32 s%d, s%d, s%d" % (sT[1], sT[1], sT[2]))
    a("  s_add_u32 s%d, s%d, 24576" % (sT[1], sT[1]))
    a("  s_mov_b32 s%d, 0x400000" % (sWq + 2))
    a("  s_mov_b32 s%d, 0x20000" % (sWq + 3))
    for n in range(4):
        a("  s_add_u32 m0, s%d, %d" % (sT[1], n * 1024))
        if n:
            a("  s_add_u32 s%d, s%d, %d" % (sT[0], sT[0], 8 * 8192))
        else:
            a("  s_load_dword s%d, s[%d:%d], 0x%x" % (sEp, sWs, sWs + 1, EPOCH))
        a("  buffer_load_dwordx4 v%d, s[%d:%d], s%d offen nt lds" % (T5, sWq, sWq + 3, sT[0]))
    if b0pos == 0:
        a("  s_barrier                      ; B0")
        stamp("B0")
    a("  s_load_dwordx2 s[%d:%d], s[0:1], 64" % (sWd, sWd + 1))
    a("  s_load_dwordx2 s[%d:%d], s[0:1], 32" % (sWo, sWo + 1))
    a("  s_load_dwordx2 s[%d:%d], s[0:1], 72" % (sOut, sOut + 1))
    a("  s_load_dwordx2 s[%d:%d], s[0:1], 80" % (sDbg, sDbg + 1))
    a("  s_lshr_b32 s%d, s%d, 3" % (sT[4], sLi))
    a("  s_lshl_b32 s%d, s%d, 3" % (sT[4], sT[4]))
    a("  s_add_u32 s%d, s%d, s%d" % (sT[4], sT[4], sX))
    a("  s_cmp_lt_u32 s%d, 28" % sT[4])
    a("  s_cselect_b32 s%d, 1, 0" % sFv)
    a("  s_min_u32 s%d, s%d, 27" % (sT[4], sT[4]))
    a("  s_lshl_b32 s%d, s%d, 3" % (sFi, sT[4]))
    a("  s_and_b32 s%d, s%d, 7" % (sT[5], sLi))
    a("  s_add_u32 s%d, s%d, s%d" % (sFi, sFi, sT[5]))
    a("  s_and_b32 s%d, s%d, 3" % (sKb2, sFi))
    a("  s_lshl_b32 s%d, s%d, 2" % (sT[3], sKb2))
    a("  s_add_u32 s%d, s%d, s%d" % (sT[3], sT[3], sHW))
    a("  s_mul_i32 s%d, s%d, %d" % (sT[3], sT[3], 32 * 3584))
    a("  s_lshl_b32 s%d, s%d, 7" % (sT[4], sT[4]))
    a("  s_add_u32 s%d, s%d, s%d" % (sT[3], sT[3], sT[4]))
    a("  s_bitcmp1_b32 s%d, 2" % sFi)
    a("  s_cselect_b32 s%d, s58, s56" % sGU)
    a("  s_cselect_b32 s%d, s59, s57" % (sGU + 1))
    a("  s_mov_b32 s%d, 1835008" % (sGU + 2))
    a("  s_mov_b32 s%d, 0x20000" % (sGU + 3))
    a("  v_lshl_add_u32 v%d, v%d, 10, v%d" % (hW1k, T3, T4))
    a("  v_mul_u32_u24 v%d, 3584, v%d" % (T3, T3))
    a("  v_add_u32 v%d, v%d, v%d" % (T3, T3, T4))
    for n in range(4):
        a("  s_add_u32 m0, s%d, %d" % (sT[1], 65536 + n * 1024))
        if n:
            a("  s_add_u32 s%d, s%d, %d" % (sT[3], sT[3], 8 * 3584))
        else:
            a("  s_mov_b32 s%d, 0xffff0000" % sHi2)
        a("  buffer_load_dwordx4 v%d, s[%d:%d], s%d offen nt lds" % (T3, sGU, sGU + 3, sT[3]))
    if b0pos == 1:
        a("  s_barrier                      ; B0")
        stamp("B0")
    a("  v_lshrrev_b32 v%d, 4, v0" % hG)
    a("  v_and_b32 v%d, 15, v0" % hI)
    a("  v_mov_b32 v%d, %d" % (hMisc, FLG))
    a("  v_mov_b32 v%d, 1" % hOne)
    a("  v_mul_u32_u24 v%d, %d, v%d" % (T0, XN_STRIDE, T0))
    a("  v_add_u32 v%d, v%d, v%d" % (T0, T0, T1))
    a("  v_add_u32 v%d, %d, v%d" % (hZ, XN, T0))
    if noh:
        for _ in range(4):
            lds_add(hMisc, F_QRDY, hOne)
            lds_add(hMisc, F_STG, hOne)
        a("  s_barrier")
        a("  s_mov_b32 s%d, 0x10000000" % (sWs + 2))
        a("  s_mov_b32 s%d, 0x20000" % (sWs + 3))
        a("  s_cmp_lg_u32 s%d, 0" % sHW)
        a("  s_cbranch_scc1 L_H_done")
        a("  s_branch L_tsdump")
    a("  s_mov_b32 s%d, 0x10000000" % (sWs + 2))
    a("  s_mov_b32 s%d, 0x20000" % (sWs + 3))
    for base, size in ((sWd, 1835008), (sWo, 0x400000), (sOut, 8192)):
        a("  s_mov_b32 s%d, %d" % (base + 2, size))
        a("  s_mov_b32 s%d, 0x20000" % (base + 3))
    a("  s_mov_b32 s%d, 0xffffff00" % sNotFF)
    a("  s_mov_b32 s%d, 0x0c0c0400" % sSelA)
    a("  s_mov_b32 s%d, 0x04000c0c" % sSelB)

    def pk(op, d, s0, s1, extra=""):
        a("  %s v[%d:%d], v[%d:%d], v[%d:%d]%s" % (op, d, d + 1, s0, s0 + 1, s1, s1 + 1, extra))

    def allreduce32(v, t):
        for n in (1, 2, 4, 8):
            a("  s_nop 1")
            a("  v_add_f32_dpp v%d, v%d, v%d row_ror:%d %s" % (v, v, v, n, DPP))
        reduce_swap("v_add_f32", v, t, 16)

    def tag(v):
        a("  v_and_or_b32 v%d, v%d, s%d, v%d" % (v, v, sNotFF, hTag))

    def tag_retry(regs, lab_retry, lab_ok, t0_, t1_, sleep):
        rs = list(regs)
        assert len(rs) % 4 == 0
        for k in range(0, len(rs), 4):
            a("  v_perm_b32 v%d, v%d, v%d, s%d" % (t1_, rs[k + 1], rs[k], sSelA))
            a("  v_perm_b32 v%d, v%d, v%d, s%d" % (t1_ + 1, rs[k + 3], rs[k + 2], sSelB))
            if k == 0:
                a("  v_or_b32 v%d, v%d, v%d" % (t0_, t1_, t1_ + 1))
                a("  v_xor_b32 v%d, s%d, v%d" % (t0_, sTag4, t0_))
            else:
                a("  v_or_b32 v%d, v%d, v%d" % (t1_, t1_, t1_ + 1))
                a("  v_xor_b32 v%d, s%d, v%d" % (t1_, sTag4, t1_))
                a("  v_or_b32 v%d, v%d, v%d" % (t0_, t0_, t1_))
        a("  v_cmp_ne_u32 vcc, 0, v%d" % t0_)
        a("  s_cbranch_vccz %s" % lab_ok)
        a("  s_mov_b64 exec, vcc")
        a("  s_add_u32 s%d, s%d, 1" % (sCnt, sCnt))
        a("  s_cmp_lt_u32 s%d, %d" % (sCnt, SPIN_LIMIT))
        a("  s_cbranch_scc0 %s" % lab_ok)
        a("  s_sleep %d" % sleep)
        a("  s_branch %s" % lab_retry)

    def round_bf16(v):
        a("  v_cvt_pk_bf16_f32 v%d, v%d, v%d" % (v, v, v))
        a("  v_and_b32 v%d, s%d, v%d" % (v, sHi2, v))

    a("  s_waitcnt vmcnt(8)")
    for i in range(8):
        a("  v_lshlrev_b32 v%d, 16, v%d" % (hF + 2 * i, hX + i))
        a("  v_and_b32 v%d, s%d, v%d" % (hF + 2 * i + 1, sHi2, hX + i))
    for i in range(4):
        pk("v_pk_add_f32", hY + 2 * i, hF + 4 * i, hF + 4 * i + 2)
    pk("v_pk_add_f32", hY, hY, hY + 2)
    pk("v_pk_add_f32", hY + 4, hY + 4, hY + 6)
    pk("v_pk_add_f32", hY, hY, hY + 4)
    vS = hZ + 8
    vV = hZ + 10
    a("  v_add_f32 v%d, v%d, v%d" % (vS, hY, hY + 1))
    allreduce32(vS, T0)
    a("  v_mul_f32 v%d, 0x3b000000, v%d     ; mean" % (vS, vS))
    for i in range(8):
        pk("v_pk_add_f32", hY + 2 * i, hF + 2 * i, vS, " op_sel_hi:[1,0] neg_lo:[0,1] neg_hi:[0,1]")
    pk("v_pk_mul_f32", vV, hY, hY)
    for i in range(1, 8):
        a("  v_pk_fma_f32 v[%d:%d], v[%d:%d], v[%d:%d], v[%d:%d]" % (vV, vV + 1, hY + 2 * i, hY + 2 * i + 1, hY + 2 * i, hY + 2 * i + 1, vV, vV + 1))
    a("  v_add_f32 v%d, v%d, v%d" % (vV, vV, vV + 1))
    allreduce32(vV, T0)
    a("  v_mul_f32 v%d, 0x3b000000, v%d     ; var" % (vV, vV))
    a("  v_cvt_pk_bf16_f32 v%d, v%d, v%d" % (vS, vS, vV))
    a("  v_and_b32 v%d, s%d, v%d" % (vV, sHi2, vS))
    a("  v_lshlrev_b32 v%d, 16, v%d            ; mean_bf" % (vS, vS))
    a("  v_add_f32 v%d, 0x3727c5ac, v%d" % (vV, vV))
    round_bf16(vV)
    a("  v_sqrt_f32 v%d, v%d" % (vV, vV))
    a("  s_nop 0")
    round_bf16(vV)
    a("  v_rcp_f32 v%d, v%d" % (vV, vV))
    for i in range(8):
        pk("v_pk_add_f32", hY + 2 * i, hF + 2 * i, vS, " op_sel_hi:[1,0] neg_lo:[0,1] neg_hi:[0,1]")
    for i in range(8):
        a("  v_cvt_pk_bf16_f32 v%d, v%d, v%d" % (hX + i, hY + 2 * i, hY + 2 * i + 1))
    for i in range(8):
        a("  v_lshlrev_b32 v%d, 16, v%d" % (hF + 2 * i, hX + i))
        a("  v_and_b32 v%d, s%d, v%d" % (hF + 2 * i + 1, sHi2, hX + i))
    for i in range(8):
        pk("v_pk_mul_f32", hY + 2 * i, hF + 2 * i, vV, " op_sel_hi:[1,0]")
    for i in range(8):
        a("  v_cvt_pk_bf16_f32 v%d, v%d, v%d" % (hX + i, hY + 2 * i, hY + 2 * i + 1))
    a("  ds_write_b128 v%d, v[%d:%d]" % (hZ, hX, hX + 3))
    a("  ds_write_b128 v%d, v[%d:%d] offset:16" % (hZ, hX + 4, hX + 7))
    stamp("LN done")

    a("  v_lshrrev_b32 v%d, 2, v%d" % (T0, hI))
    a("  v_lshl_add_u32 v%d, v%d, 3, v%d" % (T0, hG, T0))
    a("  v_lshlrev_b32 v%d, 7, v%d" % (T0, T0))
    a("  v_and_b32 v%d, 3, v%d" % (T1, hI))
    a("  v_lshl_add_u32 v%d, v%d, 3, v%d" % (hTrG, T1, T0))
    a("  s_lshl_b32 s%d, s%d, 5" % (sT[0], sHW))
    a("  s_add_u32 s%d, s%d, 24576" % (sT[0], sT[0]))
    a("  v_add_u32 v%d, s%d, v%d" % (hTr, sT[0], hTrG))
    a("  v_and_b32 v%d, 7, v%d" % (T0, hI))
    a("  v_mul_u32_u24 v%d, %d, v%d" % (T0, XN_STRIDE, T0))
    a("  v_lshl_add_u32 v%d, v%d, 4, v%d" % (T0, hG, T0))
    a("  v_add_u32 v%d, %d, v%d" % (hXn, XN, T0))
    a("  v_cmp_gt_u32 s[%d:%d], 8, v%d" % (sLo8, sLo8 + 1, hI))

    def tile_compute(kb_sgpr, stg_add):
        a("  s_lshl_b32 s%d, s%d, 8" % (sT[0], kb_sgpr))
        a("  v_add_u32 v%d, s%d, v%d" % (T0, sT[0], hXn))
        if stg_add:
            a("  v_add_u32 v%d, 0x%x, v%d" % (T1, stg_add, hTr))
            tr = T1
        else:
            tr = hTr
        for ks in range(4):
            base = (ks >> 1) * 32768 + (ks & 1) * 4096
            r = hA + ks * 4
            a("  ds_read_b64_tr_b16 v[%d:%d], v%d offset:%d" % (r, r + 1, tr, base))
            a("  ds_read_b64_tr_b16 v[%d:%d], v%d offset:%d" % (r + 2, r + 3, tr, base + 512))
            r = hB + ks * 4
            a("  ds_read_b128 v[%d:%d], v%d offset:%d" % (r, r + 3, T0, ks * 64))
        for ks in range(4):
            a("  s_waitcnt lgkmcnt(%d)" % (9 - 3 * ks))
            c = "0" if ks == 0 else "v[%d:%d]" % (hD, hD + 3)
            a("  v_mfma_f32_16x16x32_bf16 v[%d:%d], v[%d:%d], v[%d:%d], %s" % (hD, hD + 3, hA + ks * 4, hA + ks * 4 + 3, hB + ks * 4, hB + ks * 4 + 3, c))

    a("  s_waitcnt vmcnt(4) lgkmcnt(0)")
    a("  s_add_u32 s%d, s%d, 1" % (sTag, sEp))
    a("  s_and_b32 s%d, s%d, 0xff" % (sTag, sTag))
    a("  s_mul_i32 s%d, s%d, 0x01010101" % (sTag4, sTag))
    a("  v_mov_b32 v%d, s%d" % (hTag, sTag))
    if early_census:
        lc = a.lab("Lc")
        a("  s_cmp_lg_u32 s%d, 1" % sHW)
        a("  s_cbranch_scc1 %s" % lc)
        a("  s_mov_b32 s%d, 256" % (sDbg + 2))
        a("  s_mov_b32 s%d, 0x20000" % (sDbg + 3))
        a("  s_getreg_b32 s%d, hwreg(HW_REG_XCC_ID, 0, 3)" % sT[4])
        a("  s_lshl_b32 s%d, s%d, 3" % (sT[4], sT[4]))
        a("  s_lshl_b64 s[%d:%d], 1, s%d" % (sT[6], sT[7], sT[4]))
        a("  v_mov_b32 v%d, s%d" % (hA, sT[6]))
        a("  v_mov_b32 v%d, s%d" % (hA + 1, sT[7]))
        a("  s_lshl_b32 s%d, s%d, 5" % (sT[4], sX))
        a("  v_mov_b32 v%d, s%d" % (T0, sT[4]))
        a("  s_mov_b64 exec, 1")
        a("  buffer_atomic_add_x2 v[%d:%d], v%d, s[%d:%d], 0 offen sc1" % (hA, hA + 1, T0, sDbg, sDbg + 3))
        a("  s_mov_b64 exec, -1")
        a("%s:" % lc)
    lds_add(hMisc, F_H1, hOne)
    lds_wait(hMisc, F_H1, 4, T5)
    stamp("Hsync1")
    tile_compute(sJ, 0)
    a("  v_lshlrev_b32 v%d, 11, v%d" % (T0, hI))
    a("  v_lshl_add_u32 v%d, v%d, 4, v%d" % (T0, hG, T0))
    a("  s_lshl_b32 s%d, s%d, 6" % (sT[0], sHW))
    a("  v_add_u32 v%d, s%d, v%d" % (T0, sT[0], T0))
    a("  s_lshl_b32 s%d, s%d, 2" % (sHq, sX))
    a("  s_add_u32 s%d, s%d, s%d" % (sHq, sHq, sJ))
    a("  s_lshl_b32 s%d, s%d, 14" % (sT[0], sHq))
    a("  s_lshl_b32 s%d, s%d, 8" % (sT[1], sB))
    a("  s_add_u32 s%d, s%d, s%d" % (sT[0], sT[0], sT[1]))
    if QP:
        a("  s_add_u32 s%d, s%d, %d" % (sT[0], sT[0], QP))
    for k in range(4):
        tag(hD + k)
    a("  s_mov_b64 exec, s[%d:%d]" % (sLo8, sLo8 + 1))
    a("  buffer_store_dwordx4 v[%d:%d], v%d, s[%d:%d], s%d offen sc1" % (hD, hD + 3, T0, sWs, sWs + 3, sT[0]))
    a("  s_mov_b64 exec, -1")
    stamp("QP stored")
    a("  s_lshl_b32 s%d, s%d, 2" % (sT[0], sHq))
    a("  s_add_u32 s%d, s%d, s%d" % (sT[0], sT[0], sHW))
    a("  s_lshl_b32 s%d, s%d, 15" % (sT[0], sT[0]))
    a("  s_lshl_b32 s%d, s%d, 7" % (sT[1], sB))
    a("  s_add_u32 s%d, s%d, s%d" % (sT[0], sT[0], sT[1]))
    a("  s_lshl_b32 s%d, s%d, 12" % (sWoStg, sHW))
    a("  s_add_u32 s%d, s%d, %d" % (sWoStg, sWoStg, WOS))
    for n in range(4):
        a("  s_add_u32 m0, s%d, %d" % (sWoStg, n * 1024))
        if n:
            a("  s_add_u32 s%d, s%d, 8192" % (sT[0], sT[0]))
        else:
            a("  s_nop 0")
        a("  buffer_load_dwordx4 v%d, s[%d:%d], s%d offen nt lds" % (hW1k, sWo, sWo + 3, sT[0]))
    a("  s_waitcnt vmcnt(5)")
    lds_add(hMisc, F_H3, hOne)
    lds_wait(hMisc, F_H3, 4, T5)
    stamp("Hsync3")
    tile_compute(sKb2, 65536)
    lds_add(hMisc, F_STG, hOne)
    a("  v_lshlrev_b32 v%d, 8, v%d" % (T0, hI))
    a("  v_lshl_add_u32 v%d, v%d, 4, v%d" % (T0, hG, T0))
    a("  s_lshl_b32 s%d, s%d, 6" % (sT[0], sHW))
    a("  v_add_u32 v%d, s%d, v%d" % (T0, sT[0], T0))
    a("  s_and_b32 s%d, s%d, 7" % (sT[0], sFi))
    a("  s_mul_i32 s%d, s%d, 28" % (sT[0], sT[0]))
    a("  s_lshr_b32 s%d, s%d, 3" % (sT[1], sFi))
    a("  s_add_u32 s%d, s%d, s%d" % (sT[0], sT[0], sT[1]))
    a("  s_lshl_b32 s%d, s%d, 11" % (sT[0], sT[0]))
    a("  s_add_u32 s%d, s%d, %d" % (sT[0], sT[0], GP))
    hGp, hGpOff, sGpS = 192, 196, 59
    for k in range(4):
        tag(hD + k)
    if gplocal:
        for k in range(4):
            a("  v_mov_b32 v%d, v%d" % (hGp + k, hD + k))
        a("  v_mov_b32 v%d, v%d" % (hGpOff, T0))
        a("  s_mov_b32 s%d, s%d" % (sGpS, sT[0]))
    else:
        lg = a.lab("Lg")
        a("  s_cmp_eq_u32 s%d, 0" % sFv)
        a("  s_cbranch_scc1 %s" % lg)
        a("  s_mov_b64 exec, s[%d:%d]" % (sLo8, sLo8 + 1))
        a("  buffer_store_dwordx4 v[%d:%d], v%d, s[%d:%d], s%d offen sc1" % (hD, hD + 3, T0, sWs, sWs + 3, sT[0]))
        a("  s_mov_b64 exec, -1")
        a("%s:" % lg)

    def gp_store(have_loc):
        if not gplocal:
            return
        if not have_loc:
            lds_wait(hMisc, F_LOC, 1, T5, sleep=8)
            a("  s_lshr_b32 s%d, s%d, 1" % (sLoc, sT[7]))
        lg = a.lab("Lg")
        a("  s_cmp_eq_u32 s%d, 0" % sFv)
        a("  s_cbranch_scc1 %s" % lg)
        a("  s_mov_b64 exec, s[%d:%d]" % (sLo8, sLo8 + 1))
        store_loc(["  buffer_store_dwordx4 v[%d:%d], v%d, s[%d:%d], s%d offen" % (hGp, hGp + 3, hGpOff, sWs, sWs + 3, sGpS)], sLoc)
        a("  s_mov_b64 exec, -1")
        a("%s:" % lg)
    stamp("tile1 done")
    a("  v_lshrrev_b32 v%d, 5, v0" % T0)
    a("  v_lshlrev_b32 v%d, 14, v%d" % (T0, T0))
    a("  v_and_b32 v%d, 31, v0" % T1)
    a("  v_lshl_add_u32 v%d, v%d, 4, v%d" % (T0, T1, T0))
    a("  s_lshl_b32 s%d, s%d, 9" % (sT[0], sHW))
    a("  v_add_u32 v%d, s%d, v%d" % (T0, sT[0], T0))
    a("  s_lshl_b32 s%d, s%d, 16" % (sT[0], sX))
    a("  s_lshl_b32 s%d, s%d, 11" % (sT[1], sB))
    a("  s_add_u32 s%d, s%d, s%d" % (sT[0], sT[0], sT[1]))
    if QP:
        a("  s_add_u32 s%d, s%d, %d" % (sT[0], sT[0], QP))
    a("  s_add_u32 s%d, s%d, 32768" % (sT[1], sT[0]))
    a("  s_mul_i32 s%d, s%d, %d" % (sT[2], sHW, QL_STRIDE))
    a("  s_add_u32 s%d, s%d, %d" % (sT[2], sT[2], QL))
    a("  v_lshlrev_b32 v%d, 3, v%d" % (T1, T1))
    a("  v_add_u32 v%d, s%d, v%d" % (T1, sT[2], T1))
    lr, lo = a.lab("Lr"), a.lab("Lo")
    a("  s_mov_b32 s%d, 0" % sCnt)
    a("%s:" % lr)
    NT = " nt" if gnt & 1 else ""
    a("  buffer_load_dwordx4 v[%d:%d], v%d, s[%d:%d], s%d offen sc1%s" % (hA, hA + 3, T0, sWs, sWs + 3, sT[0], NT))
    a("  buffer_load_dwordx4 v[%d:%d], v%d, s[%d:%d], s%d offen sc1%s" % (hA + 4, hA + 7, T0, sWs, sWs + 3, sT[1], NT))
    a("  s_waitcnt vmcnt(0)")
    tag_retry(range(hA, hA + 8), lr, lo, T2, T3, 2)
    a("%s:" % lo)
    a("  s_mov_b64 exec, -1")
    stamp("Q ok")
    pk("v_pk_add_f32", hA, hA, hA + 4)
    pk("v_pk_add_f32", hA + 2, hA + 2, hA + 6)
    for k in range(4):
        a("  v_mov_b32 v%d, v%d" % (hA + 4 + k, hA + k))
    a("  s_nop 1")
    for k in range(4):
        a("  v_permlane32_swap_b32 v%d, v%d" % (hA + k, hA + 4 + k))
    pk("v_pk_add_f32", hA, hA, hA + 4)
    pk("v_pk_add_f32", hA + 2, hA + 2, hA + 6)
    a("  v_cvt_pk_bf16_f32 v%d, v%d, v%d" % (hA, hA, hA + 1))
    a("  v_cvt_pk_bf16_f32 v%d, v%d, v%d" % (hA + 1, hA + 2, hA + 3))
    a("  s_mov_b32 exec_hi, 0")
    a("  ds_write_b64 v%d, v[%d:%d]" % (T1, hA, hA + 1))
    a("  s_mov_b64 exec, -1")
    a("  s_waitcnt lgkmcnt(0)")
    lds_add(hMisc, F_QRDY, hOne)
    stamp("Q rdy")

    a("  v_add_u32 v%d, s%d, v%d" % (T0, sWoStg, hTrG))
    l3 = a.lab("L3")
    a("  s_cmp_lg_u32 s%d, 3" % sHW)
    a("  s_cbranch_scc1 %s" % l3)
    a("  s_lshr_b32 s%d, s%d, 3" % (sT[0], sFi))
    a("  s_lshl_b32 s%d, s%d, 16" % (sT[1], sT[0]))
    a("  s_and_b32 s%d, s%d, 7" % (sT[2], sFi))
    a("  s_lshl_b32 s%d, s%d, 7" % (sT[2], sT[2]))
    a("  s_add_u32 s%d, s%d, s%d" % (sT[1], sT[1], sT[2]))
    for n in range(4):
        a("  s_mov_b32 m0, %d" % (SPARE + n * 1024))
        if n:
            a("  s_add_u32 s%d, s%d, 8192" % (sT[1], sT[1]))
        else:
            a("  s_nop 0")
        a("  buffer_load_dwordx4 v%d, s[%d:%d], s%d offen nt lds" % (hW1k, sWd, sWd + 3, sT[1]))
    a("%s:" % l3)
    for ct in range(4):
        r = hW + ct * 4
        a("  ds_read_b64_tr_b16 v[%d:%d], v%d offset:%d" % (r, r + 1, T0, ct * 32))
        a("  ds_read_b64_tr_b16 v[%d:%d], v%d offset:%d" % (r + 2, r + 3, T0, ct * 32 + 512))
    a("  s_waitcnt lgkmcnt(0)")
    l4 = a.lab("L4")
    a("  s_cmp_lg_u32 s%d, 3" % sHW)
    a("  s_cbranch_scc1 %s" % l4)
    for n in range(4):
        a("  s_add_u32 m0, s%d, %d" % (sWoStg, n * 1024))
        a("  s_add_u32 s%d, s%d, 8192" % (sT[1], sT[1]))
        a("  buffer_load_dwordx4 v%d, s[%d:%d], s%d offen nt lds" % (hW1k, sWd, sWd + 3, sT[1]))
    a("  v_add_u32 v%d, %d, v%d" % (T1, SPARE, hTrG))
    a("  s_waitcnt vmcnt(4)")
    for ct in range(4):
        r = hWd + ct * 8
        a("  ds_read_b64_tr_b16 v[%d:%d], v%d offset:%d" % (r, r + 1, T1, ct * 32))
        a("  ds_read_b64_tr_b16 v[%d:%d], v%d offset:%d" % (r + 2, r + 3, T1, ct * 32 + 512))
    a("  s_waitcnt vmcnt(0)")
    for ct in range(4):
        r = hWd + ct * 8 + 4
        a("  ds_read_b64_tr_b16 v[%d:%d], v%d offset:%d" % (r, r + 1, T0, ct * 32))
        a("  ds_read_b64_tr_b16 v[%d:%d], v%d offset:%d" % (r + 2, r + 3, T0, ct * 32 + 512))
    a("  s_waitcnt lgkmcnt(0)")
    a("%s:" % l4)
    stamp("wo frags")

    a("  s_lshl_b32 s%d, s%d, 5" % (sFidx, sB))
    a("  s_add_u32 s%d, s%d, s%d" % (sFidx, sFidx, sHq))
    a("  v_and_b32 v%d, 3, v0" % T0)
    a("  v_lshlrev_b32 v%d, 3, v%d" % (T0, T0))
    a("  s_lshl_b32 s%d, s%d, 5" % (sT[0], sFidx))
    a("  v_add_u32 v%d, s%d, v%d" % (hOutOff, sT[0], T0))
    if noffn:
        a("  s_branch L_B1")
    a("  s_cmp_eq_u32 s%d, 1" % sHW)
    a("  s_cbranch_scc1 %s" % ("L_B1" if skip & 1 else "L_ffn"))
    a("  s_cmp_eq_u32 s%d, 2" % sHW)
    a("  s_cbranch_scc1 %s" % ("L_B1" if skip & 2 else "L_stats"))
    a("  s_cmp_eq_u32 s%d, 0" % sHW)
    a("  s_cbranch_scc1 %s" % ("L_B1" if skip & 5 else "L_fin_prep"))
    a("  s_branch %s" % ("L_B1" if skip & 9 else "L_down"))

    a("L_ffn:")
    a("  s_mov_b32 s%d, 256" % (sDbg + 2))
    a("  s_mov_b32 s%d, 0x20000" % (sDbg + 3))
    a("  s_lshl_b32 s%d, s%d, 5" % (sT[0], sX))
    a("  v_mov_b32 v%d, s%d" % (T0, sT[0]))
    if not early_census:
        a("  s_getreg_b32 s%d, hwreg(HW_REG_XCC_ID, 0, 3)" % sT[4])
        a("  s_lshl_b32 s%d, s%d, 3" % (sT[4], sT[4]))
        a("  s_lshl_b64 s[%d:%d], 1, s%d" % (sT[6], sT[7], sT[4]))
        a("  v_mov_b32 v%d, s%d" % (hA, sT[6]))
        a("  v_mov_b32 v%d, s%d" % (hA + 1, sT[7]))
        a("  s_mov_b64 exec, 1")
        a("  buffer_atomic_add_x2 v[%d:%d], v%d, s[%d:%d], 0 offen sc1" % (hA, hA + 1, T0, sDbg, sDbg + 3))
        a("  s_mov_b64 exec, -1")
        lds_wait(hMisc, F_MID, 1, T5, sleep=8)
    a("  s_waitcnt vmcnt(0)")
    lr, lo = a.lab("Lr"), a.lab("Lo")
    a("  s_mov_b32 s%d, 0" % sCnt)
    a("  s_mov_b64 exec, 1")
    a("%s:" % lr)
    a("  buffer_load_dwordx2 v[%d:%d], v%d, s[%d:%d], 0 offen sc1" % (hA, hA + 1, T0, sDbg, sDbg + 3))
    a("  s_waitcnt vmcnt(0)")
    a("  v_readfirstlane_b32 s%d, v%d" % (sT[2], hA))
    a("  v_readfirstlane_b32 s%d, v%d" % (sT[3], hA + 1))
    a("  s_and_b32 s%d, s%d, 0x00ff00ff" % (sT[4], sT[2]))
    a("  s_lshr_b32 s%d, s%d, 8" % (sT[5], sT[2]))
    a("  s_and_b32 s%d, s%d, 0x00ff00ff" % (sT[5], sT[5]))
    a("  s_add_u32 s%d, s%d, s%d" % (sT[4], sT[4], sT[5]))
    a("  s_and_b32 s%d, s%d, 0x00ff00ff" % (sT[5], sT[3]))
    a("  s_add_u32 s%d, s%d, s%d" % (sT[4], sT[4], sT[5]))
    a("  s_lshr_b32 s%d, s%d, 8" % (sT[5], sT[3]))
    a("  s_and_b32 s%d, s%d, 0x00ff00ff" % (sT[5], sT[5]))
    a("  s_add_u32 s%d, s%d, s%d" % (sT[4], sT[4], sT[5]))
    a("  s_lshr_b32 s%d, s%d, 16" % (sT[5], sT[4]))
    a("  s_and_b32 s%d, s%d, 0xffff" % (sT[4], sT[4]))
    a("  s_add_u32 s%d, s%d, s%d" % (sT[4], sT[4], sT[5]))
    a("  s_cmp_ge_u32 s%d, 32" % sT[4])
    a("  s_cbranch_scc1 %s" % lo)
    a("  s_add_u32 s%d, s%d, 1" % (sCnt, sCnt))
    a("  s_cmp_lt_u32 s%d, %d" % (sCnt, SPIN_LIMIT))
    a("  s_cbranch_scc0 %s" % lo)
    a("  s_sleep 32")
    a("  s_branch %s" % lr)
    a("%s:" % lo)
    a("  s_mov_b64 exec, -1")
    a("  s_getreg_b32 s%d, hwreg(HW_REG_XCC_ID, 0, 3)" % sT[4])
    a("  s_lshl_b32 s%d, s%d, 3" % (sT[4], sT[4]))
    a("  s_lshr_b64 s[%d:%d], s[%d:%d], s%d" % (sT[2], sT[3], sT[2], sT[3], sT[4]))
    a("  s_and_b32 s%d, s%d, 0xff" % (sT[2], sT[2]))
    a("  s_cmp_eq_u32 s%d, 32" % sT[2])
    a("  s_cselect_b32 s%d, %d, 1" % (sT[2], 2 if uselocal else 1))
    a("  v_mov_b32 v%d, s%d" % (T0, sT[2]))
    a("  s_mov_b64 exec, 1")
    a("  ds_write_b32 v%d, v%d offset:%d" % (hMisc, T0, F_LOC))
    a("  s_mov_b64 exec, -1")
    a("  s_lshr_b32 s%d, s%d, 1" % (sLoc, sT[2]))
    gp_store(True)
    a("  s_cmp_eq_u32 s%d, 0" % sFv)
    a("  s_cbranch_scc1 L_ffn_done")
    a("  s_lshr_b32 s%d, s%d, 3" % (sT[0], sFi))
    a("  v_mul_u32_u24 v%d, %d, v%d" % (T0, 28 * 2048, hG))
    a("  v_lshl_add_u32 v%d, v%d, 4, v%d" % (T0, hI, T0))
    a("  s_lshl_b32 s%d, s%d, 11" % (sT[1], sT[0]))
    a("  s_and_b32 s%d, s%d, 7" % (sT[2], sFi))
    a("  s_lshl_b32 s%d, s%d, 8" % (sT[2], sT[2]))
    a("  s_add_u32 s%d, s%d, s%d" % (sT[1], sT[1], sT[2]))
    a("  s_add_u32 s%d, s%d, %d" % (sT[1], sT[1], GP))
    a("  s_add_u32 s%d, s%d, %d" % (sT[2], sT[1], 4 * 28 * 2048))
    lr, lo = a.lab("Lr"), a.lab("Lo")
    a("  s_mov_b32 s%d, 0" % sCnt)
    a("%s:" % lr)
    NT = " nt" if gnt & 2 else ""
    a("  buffer_load_dwordx4 v[%d:%d], v%d, s[%d:%d], s%d offen sc1%s" % (hA, hA + 3, T0, sWs, sWs + 3, sT[1], NT))
    a("  buffer_load_dwordx4 v[%d:%d], v%d, s[%d:%d], s%d offen sc1%s" % (hA + 4, hA + 7, T0, sWs, sWs + 3, sT[2], NT))
    a("  s_waitcnt vmcnt(0)")
    tag_retry(range(hA, hA + 8), lr, lo, T2, T3, 8 if gplocal else ffn_sleep)
    a("%s:" % lo)
    a("  s_mov_b64 exec, -1")
    for kind in (16, 32):
        for k in range(8):
            a("  v_mov_b32 v%d, v%d" % (hA + 8 + k, hA + k))
        a("  s_nop 1")
        for k in range(8):
            a("  v_permlane%d_swap_b32 v%d, v%d" % (kind, hA + k, hA + 8 + k))
        for k in range(0, 8, 2):
            pk("v_pk_add_f32", hA + k, hA + k, hA + 8 + k)
    g0, u0 = hA, hA + 4
    for k in range(8):
        round_bf16(hA + k)
    a("  s_mov_b32 s%d, 0xBFB8AA3B      ; -log2(e)" % sT[2])
    for k in range(4):
        a("  v_mul_f32 v%d, s%d, v%d" % (g0 + k, sT[2], g0 + k))
    for k in range(4):
        a("  v_exp_f32 v%d, v%d" % (g0 + k, g0 + k))
    a("  s_nop 0")
    for k in range(4):
        a("  v_add_f32 v%d, 1.0, v%d" % (g0 + k, g0 + k))
    for k in range(4):
        a("  v_rcp_f32 v%d, v%d" % (g0 + k, g0 + k))
    a("  s_nop 0")
    for k in range(4):
        round_bf16(g0 + k)
    for k in range(4):
        a("  v_mul_f32 v%d, v%d, v%d" % (g0 + k, g0 + k, u0 + k))
    for k in range(4):
        round_bf16(g0 + k)
    for k in range(4):
        a("  v_or_b32 v%d, v%d, v%d" % (g0 + k, g0 + k, hTag))
    a("  v_lshlrev_b32 v%d, 4, v0" % T0)
    a("  s_lshl_b32 s%d, s%d, 8" % (sT[1], sFi))
    a("  s_add_u32 s%d, s%d, %d" % (sT[1], sT[1], HH))
    a("  s_mov_b64 exec, 0xffff")
    store_loc(["  buffer_store_dwordx4 v[%d:%d], v%d, s[%d:%d], s%d offen" % (g0, g0 + 3, T0, sWs, sWs + 3, sT[1])], sLoc)
    a("  s_mov_b64 exec, -1")
    a("L_ffn_done:")
    lds_add(hMisc, F_RED, hOne)
    lds_wait(hMisc, F_EWS, 1, T5, sleep=4)
    for k in range(4):
        a("  v_mov_b32 v%d, v%d" % (hA + k, hTag))
    a("  s_lshl_b32 s%d, s%d, 9" % (sT[0], sX))
    a("  s_lshl_b32 s%d, s%d, 4" % (sT[1], sLi))
    a("  s_add_u32 s%d, s%d, s%d" % (sT[0], sT[0], sT[1]))
    a("  s_add_u32 s%d, s%d, %d" % (sT[0], sT[0], EW))
    a("  v_mov_b32 v%d, 0" % T0)
    a("  s_mov_b64 exec, 1")
    store_loc(["  buffer_store_dwordx4 v[%d:%d], v%d, s[%d:%d], s%d offen" % (hA, hA + 3, T0, sWs, sWs + 3, sT[0])], sLoc)
    a("  s_mov_b64 exec, -1")
    a("  s_branch L_B1")

    a("L_down:")
    gp_store(False)
    a("  s_cmp_eq_u32 s%d, 0" % sFv)
    a("  s_cbranch_scc1 L_down_done")
    lds_wait(hMisc, F_RED, 1, T5, sleep=8)
    a("  s_lshr_b32 s%d, s%d, 3" % (sT[0], sFi))
    a("  v_and_b32 v%d, 7, v%d" % (T0, hI))
    a("  v_lshlrev_b32 v%d, 8, v%d" % (T0, T0))
    a("  v_lshl_add_u32 v%d, v%d, 5, v%d" % (T0, hG, T0))
    a("  s_lshl_b32 s%d, s%d, 11" % (sT[1], sT[0]))
    a("  s_add_u32 s%d, s%d, %d" % (sT[1], sT[1], HH))
    lr, lo = a.lab("Lr"), a.lab("Lo")
    a("  s_mov_b32 s%d, 0" % sCnt)
    a("%s:" % lr)
    for k in range(4):
        a("  buffer_load_dwordx4 v[%d:%d], v%d, s[%d:%d], s%d offen offset:%d sc1" % (hA + 4 * k, hA + 4 * k + 3, T0, sWs, sWs + 3, sT[1], (k >> 1) * 128 + (k & 1) * 16))
    a("  s_waitcnt vmcnt(0)")
    tag_retry(range(hA, hA + 16), lr, lo, T2, T3, ffn_sleep)
    a("%s:" % lo)
    a("  s_mov_b64 exec, -1")
    a("  s_mov_b32 s%d, 0x07060302" % sT[2])
    for k in range(8):
        a("  v_perm_b32 v%d, v%d, v%d, s%d" % (hB + k, hA + 2 * k + 1, hA + 2 * k, sT[2]))
    a("  s_nop 1")
    for ct in range(4):
        d = hD + ct * 4
        r = hWd + ct * 8
        a("  v_mfma_f32_16x16x32_bf16 v[%d:%d], v[%d:%d], v[%d:%d], 0" % (d, d + 3, r, r + 3, hB, hB + 3))
        a("  v_mfma_f32_16x16x32_bf16 v[%d:%d], v[%d:%d], v[%d:%d], v[%d:%d]" % (d, d + 3, r + 4, r + 7, hB + 4, hB + 7, d, d + 3))
    a("  v_lshlrev_b32 v%d, 16, v%d" % (T0, hI))
    a("  v_lshl_add_u32 v%d, v%d, 4, v%d" % (T0, hG, T0))
    a("  s_and_b32 s%d, s%d, 7" % (sT[1], sFi))
    a("  s_lshl_b32 s%d, s%d, 13" % (sT[1], sT[1]))
    a("  s_lshl_b32 s%d, s%d, 6" % (sT[2], sT[0]))
    a("  s_add_u32 s%d, s%d, s%d" % (sT[1], sT[1], sT[2]))
    a("  s_add_u32 s%d, s%d, %d" % (sT[1], sT[1], DP))
    a("  s_nop 7")
    for i in range(16):
        tag(hD + i)
    a("  s_mov_b64 exec, s[%d:%d]" % (sLo8, sLo8 + 1))
    for ct in range(4):
        a("  buffer_store_dwordx4 v[%d:%d], v%d, s[%d:%d], s%d offen sc1" % (hD + ct * 4, hD + ct * 4 + 3, T0, sWs, sWs + 3, sT[1]))
        if ct < 3:
            a("  s_add_u32 s%d, s%d, 2048" % (sT[1], sT[1]))
    a("  s_mov_b64 exec, -1")
    a("  s_waitcnt vmcnt(0)")
    a("L_down_done:")
    lds_add(hMisc, F_DOWN, hOne)
    a("  s_branch L_B1")

    a("L_stats:")
    gp_store(False)
    lds_wait(hMisc, F_ST, 4, T5, sleep=st_sleep)
    a("  v_lshl_add_u32 v%d, v%d, 3, v%d" % (T0, hI, hMisc))
    mw, lw = hA, hA + 1
    a("  ds_read_b64 v[%d:%d], v%d offset:%d" % (mw, mw + 1, T0, SSTAT))
    a("  s_waitcnt lgkmcnt(0)")
    Mg, Lg, t_ = hA + 4, hA + 5, hA + 2
    a("  v_mov_b32 v%d, v%d" % (Mg, mw))
    a("  s_nop 1")
    a("  v_max_f32_dpp v%d, v%d, v%d row_ror:4 %s" % (Mg, Mg, Mg, DPP))
    a("  s_nop 1")
    a("  v_max_f32_dpp v%d, v%d, v%d row_ror:8 %s" % (Mg, Mg, Mg, DPP))
    a("  s_mov_b32 s%d, 0x3FB8AA3B" % sT[2])
    a("  v_sub_f32 v%d, v%d, v%d" % (t_, mw, Mg))
    a("  v_mul_f32 v%d, s%d, v%d" % (t_, sT[2], t_))
    a("  v_exp_f32 v%d, v%d" % (t_, t_))
    a("  s_nop 0")
    a("  v_mul_f32 v%d, v%d, v%d" % (Lg, lw, t_))
    a("  s_nop 1")
    a("  v_add_f32_dpp v%d, v%d, v%d row_ror:4 %s" % (Lg, Lg, Lg, DPP))
    a("  s_nop 1")
    a("  v_add_f32_dpp v%d, v%d, v%d row_ror:8 %s" % (Lg, Lg, Lg, DPP))
    a("  s_nop 1")
    a("  v_mov_b32_dpp v%d, v%d row_shl:1 %s bound_ctrl:0" % (Mg + 2, Mg, DPP))
    a("  v_mov_b32_dpp v%d, v%d row_shl:1 %s bound_ctrl:0" % (Mg + 3, Lg, DPP))
    a("  s_lshl_b32 s%d, s%d, 3" % (sT[0], sB))
    a("  s_add_u32 s%d, s%d, s%d" % (sT[0], sT[0], sX))
    a("  s_lshl_b32 s%d, s%d, 7" % (sT[0], sT[0]))
    a("  s_add_u32 s%d, s%d, %d" % (sT[0], sT[0], ST))
    a("  s_lshl_b32 s%d, s%d, 5" % (sT[1], sJ))
    a("  s_add_u32 s%d, s%d, s%d" % (sT[1], sT[1], sT[0]))
    for k in range(4):
        tag(Mg + k)
    a("  v_lshlrev_b32 v%d, 3, v%d" % (T1, hI))
    lds_wait(hMisc, F_LOC, 1, T5)
    a("  s_lshr_b32 s%d, s%d, 1" % (sLoc, sT[7]))
    a("  s_mov_b64 exec, 5")
    store_loc(["  buffer_store_dwordx4 v[%d:%d], v%d, s[%d:%d], s%d offen" % (Mg, Mg + 3, T1, sWs, sWs + 3, sT[1])], sLoc)
    a("  s_mov_b64 exec, -1")
    a("  v_lshrrev_b32 v%d, 1, v%d" % (T1, hI))
    a("  v_lshlrev_b32 v%d, 4, v%d" % (T1, T1))
    mj = hA + 8
    lr, lo = a.lab("Lr"), a.lab("Lo")
    a("  s_mov_b32 s%d, 0" % sCnt)
    a("%s:" % lr)
    a("  buffer_load_dwordx4 v[%d:%d], v%d, s[%d:%d], s%d offen sc1" % (mj, mj + 3, T1, sWs, sWs + 3, sT[0]))
    a("  s_waitcnt vmcnt(0)")
    tag_retry(range(mj, mj + 4), lr, lo, T2, T3, ffn_sleep)
    a("%s:" % lo)
    a("  s_mov_b64 exec, -1")
    a("  v_and_b32 v%d, 1, v%d" % (T2, hI))
    a("  v_cmp_eq_u32 vcc, 1, v%d" % T2)
    a("  s_nop 1")
    a("  v_cndmask_b32 v%d, v%d, v%d, vcc" % (mj, mj, mj + 2))
    a("  v_cndmask_b32 v%d, v%d, v%d, vcc" % (mj + 1, mj + 1, mj + 3))
    lj = mj + 1
    a("  v_and_b32 v%d, s%d, v%d" % (mj, sNotFF, mj))
    a("  v_and_b32 v%d, s%d, v%d" % (lj, sNotFF, lj))
    M2, L2 = hA + 12, hA + 13
    a("  v_mov_b32 v%d, v%d" % (M2, mj))
    a("  s_nop 1")
    a("  v_max_f32_dpp v%d, v%d, v%d row_ror:4 %s" % (M2, M2, M2, DPP))
    a("  s_nop 1")
    a("  v_max_f32_dpp v%d, v%d, v%d row_ror:8 %s" % (M2, M2, M2, DPP))
    a("  v_sub_f32 v%d, v%d, v%d" % (t_, mj, M2))
    a("  v_mul_f32 v%d, s%d, v%d" % (t_, sT[2], t_))
    a("  v_exp_f32 v%d, v%d" % (t_, t_))
    a("  s_nop 0")
    a("  v_mul_f32 v%d, v%d, v%d" % (L2, lj, t_))
    a("  s_nop 1")
    a("  v_add_f32_dpp v%d, v%d, v%d row_ror:4 %s" % (L2, L2, L2, DPP))
    a("  s_nop 1")
    a("  v_add_f32_dpp v%d, v%d, v%d row_ror:8 %s" % (L2, L2, L2, DPP))
    a("  v_sub_f32 v%d, v%d, v%d" % (t_, mw, M2))
    a("  v_mul_f32 v%d, s%d, v%d" % (t_, sT[2], t_))
    a("  v_exp_f32 v%d, v%d" % (t_, t_))
    a("  v_rcp_f32 v%d, v%d" % (L2, L2))
    a("  s_nop 0")
    a("  v_mul_f32 v%d, v%d, v%d" % (t_, t_, L2))
    a("  v_and_b32 v%d, 3, v%d" % (T0, hI))
    a("  v_lshlrev_b32 v%d, 4, v%d" % (T0, T0))
    a("  v_lshrrev_b32 v%d, 2, v%d" % (T1, hI))
    a("  v_lshl_add_u32 v%d, v%d, 2, v%d" % (T0, T1, T0))
    a("  v_add_u32 v%d, v%d, v%d" % (T0, T0, hMisc))
    a("  s_mov_b64 exec, 0xffff")
    a("  ds_write_b32 v%d, v%d offset:%d" % (T0, t_, FFAC))
    a("  s_mov_b64 exec, -1")
    a("  s_waitcnt lgkmcnt(0)")
    a("  s_branch L_B1")

    def reduce_hd(base, tmp):
        a("  s_nop 1")
        for k in range(4):
            a("  v_add_f32_dpp v%d, v%d, v%d row_ror:4 %s" % (base + k, base + k, base + k, DPP))
        a("  s_nop 1")
        for k in range(4):
            a("  v_add_f32_dpp v%d, v%d, v%d row_ror:8 %s" % (base + k, base + k, base + k, DPP))
        for kind in (16, 32):
            for k in range(4):
                a("  v_mov_b32 v%d, v%d" % (tmp + k, base + k))
            a("  s_nop 1")
            for k in range(4):
                a("  v_permlane%d_swap_b32 v%d, v%d" % (kind, base + k, tmp + k))
            pk("v_pk_add_f32", base, base, tmp)
            pk("v_pk_add_f32", base + 2, base + 2, tmp + 2)

    a("L_fin_prep:")
    gp_store(False)
    lds_wait(hMisc, F_LATE, 1, T5, sleep=8)
    a("  buffer_load_dwordx2 v[%d:%d], v%d, s[%d:%d], 0 offen" % (hA + 8, hA + 9, hOutOff, sXd, sXd + 3))
    a("  v_lshlrev_b32 v%d, 4, v0" % T0)
    a("  s_lshl_b32 s%d, s%d, 11" % (sT[0], sFidx))
    a("  s_add_u32 s%d, s%d, %d" % (sT[0], sT[0], DP))
    for k in range(4):
        a("  v_mov_b32 v%d, v%d" % (hA + 4 + k, hTag))
    lr, lo = a.lab("Lr"), a.lab("Lo")
    a("  s_mov_b32 s%d, 0" % sCnt)
    a("%s:" % lr)
    NT = " nt" if gnt & 4 else ""
    a("  buffer_load_dwordx4 v[%d:%d], v%d, s[%d:%d], s%d offen sc1%s" % (hA, hA + 3, T0, sWs, sWs + 3, sT[0], NT))
    a("  s_mov_b64 s[%d:%d], exec" % (sT[4], sT[5]))
    a("  s_and_b32 exec_hi, exec_hi, 0xffff")
    ls = a.lab("Ls")
    a("  s_cbranch_execz %s" % ls)
    a("  buffer_load_dwordx4 v[%d:%d], v%d, s[%d:%d], s%d offen offset:1024 sc1%s" % (hA + 4, hA + 7, T0, sWs, sWs + 3, sT[0], NT))
    a("%s:" % ls)
    a("  s_mov_b64 exec, s[%d:%d]" % (sT[4], sT[5]))
    a("  s_waitcnt vmcnt(0)")
    tag_retry(range(hA, hA + 8), lr, lo, T2, T3, ffn_sleep)
    a("%s:" % lo)
    a("  s_mov_b64 exec, -1")
    pk("v_pk_add_f32", hA, hA, hA + 4)
    pk("v_pk_add_f32", hA + 2, hA + 2, hA + 6)
    reduce_hd(hA, hA + 4)
    hGv = hXf + 4
    for k in range(4):
        round_bf16(hA + k)
    a("  s_mov_b32 s%d, 0xBFB8AA3B" % sT[2])
    for k in range(4):
        a("  v_mul_f32 v%d, s%d, v%d" % (hA + 4 + k, sT[2], hA + k))
    for k in range(4):
        a("  v_exp_f32 v%d, v%d" % (hA + 4 + k, hA + 4 + k))
    a("  s_nop 0")
    for k in range(4):
        a("  v_add_f32 v%d, 1.0, v%d" % (hA + 4 + k, hA + 4 + k))
    for k in range(4):
        a("  v_rcp_f32 v%d, v%d" % (hA + 4 + k, hA + 4 + k))
    a("  s_nop 0")
    for k in range(4):
        a("  v_mul_f32 v%d, v%d, v%d" % (hGv + k, hA + k, hA + 4 + k))
    for k in range(4):
        round_bf16(hGv + k)
    a("  v_lshlrev_b32 v%d, 16, v%d" % (hXf, hA + 8))
    a("  v_and_b32 v%d, s%d, v%d" % (hXf + 1, sHi2, hA + 8))
    a("  v_lshlrev_b32 v%d, 16, v%d" % (hXf + 2, hA + 9))
    a("  v_and_b32 v%d, s%d, v%d" % (hXf + 3, sHi2, hA + 9))
    stamp("prep done")

    a("L_B1:")
    a("  v_lshlrev_b32 v%d, 7, v%d" % (T0, hI))
    a("  v_lshl_add_u32 v%d, v%d, 5, v%d" % (T0, hG, T0))
    a("  s_lshl_b32 s%d, s%d, 14" % (sT[0], sHq))
    a("  s_lshl_b32 s%d, s%d, 11" % (sT[1], sHW))
    a("  s_add_u32 s%d, s%d, s%d" % (sT[0], sT[0], sT[1]))
    a("  s_add_u32 s%d, s%d, %d" % (sT[0], sT[0], OP))
    a("  s_add_u32 s%d, s%d, 8192" % (sT[1], sT[0]))
    a("  v_lshlrev_b32 v%d, 8, v%d" % (T1, hG))
    a("  v_lshl_add_u32 v%d, v%d, 2, v%d" % (T1, hI, T1))
    a("  s_lshl_b32 s%d, s%d, 11" % (sT[2], sHW))
    a("  s_add_u32 s%d, s%d, %d" % (sT[2], sT[2], WOS))
    a("  v_add_u32 v%d, s%d, v%d" % (T1, sT[2], T1))
    hP0, hP1, hQ0 = 157, 158, 159
    sP, sQ = 57, 58
    a("  s_sub_u32 s%d, s%d, 2" % (sT[3], sHW))
    a("  s_lshl_b32 s%d, s%d, 10" % (sT[4], sT[3]))
    a("  s_add_u32 s%d, s%d, %d" % (sT[4], sT[4], WOS))
    a("  v_lshlrev_b32 v%d, 8, v%d" % (hP0, hG))
    a("  v_lshl_add_u32 v%d, v%d, 4, v%d      ; g*256 + i*16" % (hP0, hI, hP0))
    a("  v_add_u32 v%d, s%d, v%d" % (hP0, sT[4], hP0))
    a("  v_lshlrev_b32 v%d, 16, v%d" % (hP1, hG))
    a("  v_lshrrev_b32 v%d, 3, v%d" % (T2, hI))
    a("  v_lshl_add_u32 v%d, v%d, 12, v%d" % (hP1, T2, hP1))
    a("  v_and_b32 v%d, 7, v%d" % (T2, hI))
    a("  v_lshl_add_u32 v%d, v%d, 4, v%d" % (hP1, T2, hP1))
    a("  s_lshl_b32 s%d, s%d, 18" % (sT[3], sT[3]))
    a("  s_lshl_b32 s%d, s%d, 13" % (sT[4], sB))
    a("  s_add_u32 s%d, s%d, s%d" % (sT[3], sT[3], sT[4]))
    a("  s_lshl_b32 s%d, s%d, 7" % (sT[4], sHq))
    a("  s_add_u32 s%d, s%d, s%d" % (sT[3], sT[3], sT[4]))
    a("  s_add_u32 s%d, s%d, %d" % (sP, sT[3], SP))
    a("  v_lshrrev_b32 v%d, 2, v0" % hQ0)
    a("  v_lshlrev_b32 v%d, 7, v%d" % (hQ0, hQ0))
    a("  v_and_b32 v%d, 3, v0" % T2)
    a("  v_lshl_add_u32 v%d, v%d, 4, v%d" % (hQ0, T2, hQ0))
    a("  s_lshr_b32 s%d, s%d, 1" % (sT[3], sFidx))
    a("  s_lshl_b32 s%d, s%d, 12" % (sT[3], sT[3]))
    a("  s_and_b32 s%d, s%d, 1" % (sT[4], sFidx))
    a("  s_lshl_b32 s%d, s%d, 6" % (sT[4], sT[4]))
    a("  s_add_u32 s%d, s%d, s%d" % (sT[3], sT[3], sT[4]))
    a("  s_add_u32 s%d, s%d, %d" % (sQ, sT[3], SP))
    a("  s_barrier                      ; B1")
    stamp("B1")
    lw0, lw1 = a.lab("Lew"), a.lab("Lew")
    a("  s_cmp_lg_u32 s%d, 0" % sHW)
    a("  s_cbranch_scc1 %s" % lw0)
    a("  v_lshlrev_b32 v%d, 4, v0" % T4)
    a("  v_mov_b32 v%d, v%d" % (T5, T4))
    a("  s_lshl_b32 s%d, s%d, 9" % (sT[2], sX))
    a("  s_add_u32 s%d, s%d, %d" % (sT[2], sT[2], EW))
    lr, lo = a.lab("Lr"), a.lab("Lo")
    a("  s_mov_b32 s%d, 0" % sCnt)
    a("  s_mov_b32 exec_hi, 0")
    a("%s:" % lr)
    a("  buffer_load_dwordx4 v[%d:%d], v%d, s[%d:%d], s%d offen sc1" % (hA, hA + 3, T5, sWs, sWs + 3, sT[2]))
    a("  s_waitcnt vmcnt(0)")
    tag_retry(range(hA, hA + 4), lr, lo, T2, T3, 2)
    a("%s:" % lo)
    a("  s_mov_b64 exec, -1")
    lds_add(hMisc, F_EW, hOne)
    a("  s_branch %s" % lw1)
    a("%s:" % lw0)
    lds_wait(hMisc, F_EW, 1, T5)
    a("%s:" % lw1)
    stamp("EW ok")
    lr, lo = a.lab("Lr"), a.lab("Lo")
    a("  s_mov_b32 s%d, 0" % sCnt)
    a("%s:" % lr)
    for rt in range(2):
        a("  buffer_load_dwordx4 v[%d:%d], v%d, s[%d:%d], s%d offen sc1" % (hA + 8 * rt, hA + 8 * rt + 3, T0, sWs, sWs + 3, sT[rt]))
        a("  buffer_load_dwordx4 v[%d:%d], v%d, s[%d:%d], s%d offen offset:16 sc1" % (hA + 8 * rt + 4, hA + 8 * rt + 7, T0, sWs, sWs + 3, sT[rt]))
    a("  s_waitcnt vmcnt(0)")
    tag_retry(range(hA, hA + 16), lr, lo, T2, T3, hop_sleep)
    a("%s:" % lo)
    a("  s_mov_b64 exec, -1")
    stamp("hop1 ok")
    for k in range(8):
        a("  v_cvt_pk_bf16_f32 v%d, v%d, v%d" % (hB + k, hA + 2 * k, hA + 2 * k + 1))
    a("  s_nop 1")
    for rt in range(2):
        for ct in range(4):
            d = hD + (rt * 4 + ct) * 4
            a("  v_mfma_f32_16x16x32_bf16 v[%d:%d], v[%d:%d], v[%d:%d], 0" % (d, d + 3, hB + 4 * rt, hB + 4 * rt + 3, hW + ct * 4, hW + ct * 4 + 3))
    a("  s_nop 0")
    for n in range(8):
        d = hD + n * 4
        pk("v_pk_add_f32", d, d, d + 2)
        a("  v_add_f32 v%d, v%d, v%d" % (d, d, d + 1))
    for rt in range(2):
        for ct in range(4):
            d = hD + (rt * 4 + ct) * 4
            a("  ds_write_b32 v%d, v%d offset:%d" % (T1, d, rt * 1024 + ct * 64))
    a("  s_waitcnt lgkmcnt(0)")
    a("  s_barrier")
    a("  s_cmp_eq_u32 s%d, 0" % sHW)
    a("  s_cbranch_scc1 L_hop2")
    a("  s_cmp_eq_u32 s%d, 1" % sHW)
    a("  s_cbranch_scc1 L_H_done")
    for w in range(4):
        a("  ds_read_b128 v[%d:%d], v%d offset:%d" % (hA + 4 * w, hA + 4 * w + 3, hP0, w * 2048))
    a("  s_waitcnt lgkmcnt(2)")
    for k in (0, 2):
        pk("v_pk_add_f32", hA + k, hA + k, hA + 4 + k)
    a("  s_waitcnt lgkmcnt(0)")
    for k in (0, 2):
        pk("v_pk_add_f32", hA + 8 + k, hA + 8 + k, hA + 12 + k)
    for k in (0, 2):
        pk("v_pk_add_f32", hA + k, hA + k, hA + 8 + k)
    for k in range(4):
        tag(hA + k)
    a("  buffer_store_dwordx4 v[%d:%d], v%d, s[%d:%d], s%d offen sc1" % (hA, hA + 3, hP1, sWs, sWs + 3, sP))
    a("  s_endpgm")

    a("L_hop2:")
    lr, lo = a.lab("Lr"), a.lab("Lo")
    a("  s_mov_b32 s%d, 0" % sCnt)
    a("%s:" % lr)
    a("  buffer_load_dwordx4 v[%d:%d], v%d, s[%d:%d], s%d offen sc1" % (hA, hA + 3, hQ0, sWs, sWs + 3, sQ))
    a("  buffer_load_dwordx4 v[%d:%d], v%d, s[%d:%d], s%d offen offset:2048 sc1" % (hA + 4, hA + 7, hQ0, sWs, sWs + 3, sQ))
    a("  s_waitcnt vmcnt(0)")
    tag_retry(range(hA, hA + 8), lr, lo, T2, T3, hop_sleep)
    a("%s:" % lo)
    a("  s_mov_b64 exec, -1")
    stamp("hop2 ok")
    pk("v_pk_add_f32", hA, hA, hA + 4)
    pk("v_pk_add_f32", hA + 2, hA + 2, hA + 6)
    reduce_hd(hA, hA + 4)
    for k in range(4):
        round_bf16(hA + k)
    for k in range(4):
        a("  v_mul_f32 v%d, v%d, v%d" % (hA + k, hA + k, hGv + k))
    for k in range(4):
        round_bf16(hA + k)
    for k in range(4):
        a("  v_add_f32 v%d, v%d, v%d" % (hA + k, hA + k, hXf + k))
    a("  v_cvt_pk_bf16_f32 v%d, v%d, v%d" % (hA, hA, hA + 1))
    a("  v_cvt_pk_bf16_f32 v%d, v%d, v%d" % (hA + 1, hA + 2, hA + 3))
    a("  s_mov_b64 exec, 15")
    a("  buffer_store_dwordx2 v[%d:%d], v%d, s[%d:%d], 0 offen" % (hA, hA + 1, hOutOff, sOut, sOut + 3))
    a("  s_mov_b64 exec, -1")
    le = a.lab("Le")
    a("  s_cmp_lg_u32 s2, 0")
    a("  s_cbranch_scc1 %s" % le)
    a("  s_add_u32 s%d, s%d, 1" % (sT[0], sEp))
    a("  v_mov_b32 v%d, s%d" % (hA + 2, sT[0]))
    a("  v_mov_b32 v%d, %d" % (T0, EPOCH))
    a("  s_mov_b64 exec, 1")
    a("  buffer_store_dword v%d, v%d, s[%d:%d], 0 offen" % (hA + 2, T0, sWs, sWs + 3))
    a("  s_mov_b64 exec, -1")
    a("%s:" % le)
    stamp("end")
    if dbgtime:
        a("  s_memrealtime s[98:99]")
        a("  s_load_dwordx2 s[92:93], s[0:1], 80")
        a("  s_waitcnt lgkmcnt(0)")
        a("  s_mov_b32 s94, 256")
        a("  s_mov_b32 s95, 0x20000")
        a("  s_not_b32 s100, s100")
        a("  v_mov_b32 v%d, s100" % hA)
        a("  v_mov_b32 v%d, s98" % (hA + 1))
        a("  v_mov_b32 v%d, 0" % T0)
        a("  s_mov_b64 exec, 1")
        a("  buffer_atomic_umax v%d, v%d, s[92:95], 0 offen sc1" % (hA, T0))
        a("  buffer_atomic_umax v%d, v%d, s[92:95], 0 offen offset:4 sc1" % (hA + 1, T0))
        a("  s_mov_b64 exec, -1")
    a("L_tsdump:")
    if ts:
        a("  s_waitcnt lgkmcnt(0)")
        a("  s_lshl_b32 s%d, s2, 8" % sT[0])
        a("  s_add_u32 s%d, s%d, %d" % (sT[0], sT[0], TSOFF + 0x10000))
        a("  v_mov_b32 v%d, 0" % T2)
        a("  s_mov_b64 exec, 1")
        for i in range(len(names["H"])):
            a("  v_mov_b32 v%d, s%d" % (hA, TS0 + 2 * i))
            a("  v_mov_b32 v%d, s%d" % (hA + 1, TS0 + 2 * i + 1))
            a("  buffer_store_dwordx2 v[%d:%d], v%d, s[%d:%d], s%d offen offset:%d" % (hA, hA + 1, T2, sWs, sWs + 3, sT[0], 8 * i))
            a("  s_waitcnt vmcnt(0)")
        a("  s_mov_b64 exec, -1")
    a("  s_waitcnt vmcnt(0)")
    a("L_H_done:")
    a("L_end:")
    a("  s_endpgm")
    a("L_code_end:")

    lines = a.lines
    iH = lines.index("L_H:")
    iB0 = [k for k in range(iH, len(lines)) if "s_barrier" in lines[k] and "B0" in lines[k]][0]
    iE = iB0 + 1
    if ts and "s_memrealtime" in lines[iE]:
        iE += 1
    hpro = lines[iH + 1:iE]
    rest = lines[:iH] + ["L_H2:"] + lines[iE:]
    ib = [k for k, l in enumerate(rest) if l.strip() == "s_cbranch_scc1 L_H"][0]
    if layout:
        rest = rest[:ib] + ["  s_cbranch_scc0 L_S"] + hpro + ["  s_branch L_H2"] + rest[ib + 1:]
    else:
        rest = lines
    a.lines = rest
    body = a.text()
    s = HEADER
    s += "; @launch grid=(256,1,1) block=(512,1,1) lds=%d\n" % LDS_TOTAL
    s += '.amdgcn_target "amdgcn-amd-amdhsa--gfx950"\n.text\n'
    s += ".globl %s\n.p2align 8\n.type %s,@function\n%s:\n" % (KNAME, KNAME, KNAME)
    s += body
    s += """
.section .rodata,"a"
.p2align 6
.amdhsa_kernel %s
  .amdhsa_next_free_vgpr %d
  .amdhsa_next_free_sgpr 102
  .amdhsa_accum_offset %d
  .amdhsa_group_segment_fixed_size 0
  .amdhsa_kernarg_size 96
  .amdhsa_user_sgpr_count 2
  .amdhsa_user_sgpr_kernarg_segment_ptr 1
  .amdhsa_system_sgpr_workgroup_id_x 1
.end_amdhsa_kernel
""" % (KNAME, NV, NV)
    gen.names = names
    return s


if __name__ == "__main__":
    kw = {}
    out = "main.s"
    for arg in sys.argv[1:]:
        if "=" in arg:
            k, v = arg.split("=")
            kw[k] = int(v)
        else:
            out = arg
    open(out, "w").write(gen(**kw))
    import json
    json.dump(gen.names, open(out[:-2] + ".names.json", "w"))
    print("wrote", out)
```

```python
import sys
from asmlib import HEADER, KNAME

QP = 0x000000
GP = 0x080000
HH = 0x0F0000
OP = 0x100000
ST = 0x180000
DP = 0x190000
SP = 0x210000
EPOCH = 0x0FF000
EW = 0x2A0000
TSOFF = 0x0F000000

RING = 32768
MISC = 131072
XN = MISC
XN_STRIDE = 1040
QL = MISC + 8448
QL_STRIDE = 272
WOS = QL + 1088
WOS = (WOS + 255) // 256 * 256
FLG = WOS + 16384
F_H1 = 0; F_H3 = 8; F_QRDY = 16; F_STG = 20; F_ST = 24; F_HOP1 = 32; F_EW = 36; F_RED = 40; F_DOWN = 44; F_LATE = 48; F_EWS = 52; F_LOC = 56; F_MID = 60
SSTAT = 64
FFAC = 192
SPARE = FLG + 256
LDS_TOTAL = SPARE + 4096
assert LDS_TOTAL <= 163840, LDS_TOTAL
SPIN_LIMIT = 200000


class Asm:
    def __init__(self):
        self.lines = []
        self.nlab = 0

    def __call__(self, s=""):
        for l in s.split("\n"):
            self.lines.append(l)

    def lab(self, base="L"):
        self.nlab += 1
        return "%s_%d" % (base, self.nlab)

    def text(self):
        return "\n".join(self.lines) + "\n"


def vr(base, n=1):
    return "v%d" % base if n == 1 else "v[%d:%d]" % (base, base + n - 1)


def sr(base, n=1):
    return "s%d" % base if n == 1 else "s[%d:%d]" % (base, base + n - 1)


DPP = "row_mask:0xf bank_mask:0xf"


def gen(ts=False, dbg=0, rotmode=3, depth=8, noq=0, noffn=0, hop_sleep=0, ew_it=3, dbgtime=0, noh=0, ffn_sleep=24, skip=0, st_sleep=4, late_it=1, uselocal=1, mid_it=2, r4=0, gnt=0, xnt=0, pf=1, b0pos=0, la=1, gplocal=1, early_census=1, layout=1, presm=0):
    a = Asm()
    sW, sX, sLi, sCnt = 3, 4, 5, 6
    sT = [20, 21, 22, 23, 24, 25, 26, 27]
    TS0 = 68
    nts = [0]

    names = {"S": ["start"], "H": ["start"]}
    role = ["S"]

    def stamp(name):
        if name == 0:
            if ts:
                a("  s_memrealtime s[%d:%d]" % (TS0, TS0 + 1))
            return
        lst = names[role[0]]
        if name not in lst:
            lst.append(name)
        idx = lst.index(name)
        assert TS0 + 2 * idx + 1 <= 101
        if ts:
            a("  s_memrealtime s[%d:%d]" % (TS0 + 2 * idx, TS0 + 2 * idx + 1))

    def lds_wait(vbase, off, n, vtmp, sleep=1):
        l0, l1 = a.lab("Lw"), a.lab("Lwd")
        a("  s_mov_b32 s%d, 0" % sCnt)
        a("%s:" % l0)
        a("  ds_read_b32 v%d, v%d offset:%d" % (vtmp, vbase, off))
        a("  s_waitcnt lgkmcnt(0)")
        a("  v_readfirstlane_b32 s%d, v%d" % (sT[7], vtmp))
        a("  s_cmp_ge_u32 s%d, %d" % (sT[7], n))
        a("  s_cbranch_scc1 %s" % l1)
        a("  s_add_u32 s%d, s%d, 1" % (sCnt, sCnt))
        a("  s_cmp_lt_u32 s%d, %d" % (sCnt, SPIN_LIMIT))
        a("  s_cbranch_scc0 %s" % l1)
        a("  s_sleep %d" % sleep)
        a("  s_branch %s" % l0)
        a("%s:" % l1)

    def lds_add(vbase, off, vone):
        a("  s_mov_b64 exec, 1")
        a("  ds_add_u32 v%d, v%d offset:%d" % (vbase, vone, off))
        a("  s_mov_b64 exec, -1")

    def store_loc(stores, sflag):
        l0, l1 = a.lab("Lsl"), a.lab("Lsl")
        a("  s_cmp_eq_u32 s%d, 0" % sflag)
        a("  s_cbranch_scc1 %s" % l0)
        for st in stores:
            a(st)
        a("  s_branch %s" % l1)
        a("%s:" % l0)
        for st in stores:
            a(st + " sc1")
        a("%s:" % l1)

    def reduce_swap(op, v, t, kind):
        a("  v_mov_b32 v%d, v%d" % (t, v))
        a("  s_nop 1")
        a("  v_permlane%d_swap_b32 v%d, v%d" % (kind, v, t))
        a("  %s v%d, v%d, v%d" % (op, v, v, t))

    a("  s_cmp_ge_u32 s2, 256")
    a("  s_cbranch_scc1 L_end")
    stamp(0)
    if dbgtime:
        a("  s_memrealtime s[100:101]")
    a("  v_lshrrev_b32 v1, 6, v0")
    a("  v_and_b32 v0, 63, v0            ; lane")
    a("  v_readfirstlane_b32 s%d, v1     ; wave id" % sW)
    a("  s_and_b32 s%d, s2, 7" % sX)
    a("  s_lshr_b32 s%d, s2, 3" % sLi)
    a("  s_cmp_ge_u32 s%d, 4" % sW)
    a("  s_cbranch_scc1 L_H")

    sK, sV, sCur = 8, 12, 16
    sBaseW, sRot, sRing, sIss, sOff, sIt = 28, 29, 30, 31, 32, 33
    sOff1 = 50
    sM = 34
    sScale, sHi = 42, 43
    vLane = 0
    vMisc, vOne = 2, 3
    vKo, vVo, vCo = 4, 8, 12
    vKa = 16
    vVa = 20
    vTmp = 28
    vSp = 36
    vPf = 44
    vAcc = 52
    vE = 56
    vSt = 72
    vO = 104
    vQ = 136
    NV = 200

    sWsS = 44
    sEp = 48
    sBaseW1 = 49
    a("L_S:")
    if pf:
        lpf = a.lab("Lpf")
        a("  s_cmp_lg_u32 s%d, 3" % sW)
        a("  s_cbranch_scc1 %s" % lpf)
        a("  s_and_b32 s%d, s%d, 15" % (sT[0], sLi))
        a("  s_cmp_lg_u32 s%d, 0" % sT[0])
        a("  s_cbranch_scc1 %s" % lpf)
        a("  s_getpc_b64 s[%d:%d]" % (sT[2], sT[3]))
        a("L_pc:")
        a("  v_lshlrev_b32 v%d, 7, v%d" % (vTmp + 2, vLane))
        a("  v_add_u32 v%d, 0x2000, v%d" % (vTmp + 3, vTmp + 2))
        a("  global_load_dword v%d, v%d, s[%d:%d]" % (vSt, vTmp + 2, sT[2], sT[3]))
        a("  v_cmp_gt_u32 vcc, L_code_end-L_pc, v%d" % (vTmp + 3))
        a("  s_and_saveexec_b64 s[%d:%d], vcc" % (sT[4], sT[5]))
        a("  s_cbranch_execz L_pf_done")
        a("  global_load_dword v%d, v%d, s[%d:%d]" % (vSt + 1, vTmp + 3, sT[2], sT[3]))
        a("L_pf_done:")
        a("  s_mov_b64 exec, -1")
        a("%s:" % lpf)
    a("  s_load_dwordx2 s[%d:%d], s[0:1], 8" % (sCur, sCur + 1))
    a("  s_load_dwordx2 s[%d:%d], s[0:1], 16" % (sV, sV + 1))
    a("  s_load_dwordx2 s[%d:%d], s[0:1], 88" % (sWsS, sWsS + 1))
    a("  s_mov_b32 s%d, 0x4000000" % (sCur + 2))
    a("  s_mov_b32 s%d, 0x20000" % (sCur + 3))
    a("  s_lshr_b32 s%d, s%d, 2" % (sT[0], sLi))
    a("  s_lshl_b32 s%d, s%d, 3" % (sT[0], sT[0]))
    a("  s_add_u32 s%d, s%d, s%d" % (sT[0], sT[0], sX))
    a("  s_lshl_b32 s%d, s%d, 2" % (sT[0], sT[0]))
    a("  s_and_b32 s%d, s%d, 3" % (sT[1], sLi))
    a("  s_add_u32 s%d, s%d, s%d" % (sT[0], sT[0], sT[1]))
    a("  s_lshl_b32 s%d, s%d, 18" % (sT[0], sT[0]))
    a("  s_lshl_b32 s%d, s%d, 13" % (sT[1], sW))
    if r4:
        if r4 == 1:
            a("  s_lshl_b32 s%d, s%d, 12" % (sT[2], sLi))
        else:
            a("  s_lshr_b32 s%d, s%d, 2" % (sT[2], sLi))
            a("  s_add_u32 s%d, s%d, s%d" % (sT[2], sT[2], sX))
            a("  s_lshl_b32 s%d, s%d, 12" % (sT[2], sT[2]))
        a("  s_add_u32 s%d, s%d, s%d" % (sT[1], sT[1], sT[2]))
        a("  s_add_u32 s%d, s%d, 4096" % (sT[2], sT[1]))
        a("  s_and_b32 s%d, s%d, 0x7fff" % (sT[1], sT[1]))
        a("  s_and_b32 s%d, s%d, 0x7fff" % (sT[2], sT[2]))
        a("  s_add_u32 s%d, s%d, s%d" % (sBaseW, sT[0], sT[1]))
        a("  s_add_u32 s%d, s%d, s%d" % (sBaseW1, sT[0], sT[2]))
    else:
        a("  s_add_u32 s%d, s%d, s%d" % (sBaseW, sT[0], sT[1]))
        a("  s_add_u32 s%d, s%d, 4096" % (sBaseW1, sBaseW))
    if rotmode == 0:
        sRotR = 2
    elif rotmode == 3:
        sRotR = sLi
    else:
        a("  s_add_u32 s%d, s2, s%d" % (sRot, sLi))
        sRotR = sRot
    a("  s_lshl_b32 s%d, s%d, 15" % (sRing, sW))
    a("  s_mov_b32 s%d, 0" % sIss)
    t0, t1, t2 = vTmp, vTmp + 1, vTmp + 2
    a("  v_lshrrev_b32 v%d, 4, v%d      ; g = l>>4" % (t0, vLane))
    a("  v_and_b32 v%d, 15, v%d         ; c' = l&15" % (t1, vLane))
    for i in range(4):
        a("  v_add_u32 v%d, %d, v%d" % (t2, 4 * i, t0))
        a("  v_xor_b32 v%d, v%d, v%d" % (t2, t2, t1))
        a("  v_lshlrev_b32 v%d, 4, v%d" % (t2, t2))
        a("  v_lshl_add_u32 v%d, v%d, 8, v%d" % (vCo + i, t0, t2))
    a("  v_mov_b32 v%d, %d" % (vMisc, FLG))
    a("  v_mov_b32 v%d, 1" % vOne)
    a("  s_waitcnt lgkmcnt(0)")
    a("  s_barrier                      ; B0")

    def issue_unit(switch=False):
        if switch:
            lsw = a.lab("Lsw")
            a("  s_cmp_lg_u32 s%d, 8" % sIss)
            a("  s_cbranch_scc1 %s" % lsw)
            for i in range(4):
                a("  s_mov_b32 s%d, s%d" % (sCur + i, sV + i))
            for i in range(4):
                a("  v_mov_b32 v%d, v%d" % (vCo + i, vVo + (i & 1)))
            a("%s:" % lsw)
        a("  s_add_u32 s%d, s%d, s%d" % (sT[0], sIss, sRotR))
        a("  s_and_b32 s%d, s%d, 7" % (sT[0], sT[0]))
        a("  s_lshl_b32 s%d, s%d, 15" % (sT[0], sT[0]))
        a("  s_add_u32 s%d, s%d, s%d" % (sOff, sT[0], sBaseW))
        a("  s_add_u32 s%d, s%d, s%d" % (sOff1, sT[0], sBaseW1))
        a("  s_and_b32 s%d, s%d, 3" % (sT[0], sIss))
        a("  s_lshl_b32 s%d, s%d, 13" % (sT[0], sT[0]))
        a("  s_add_u32 m0, s%d, s%d" % (sT[0], sRing))
        a("  s_add_u32 s%d, s%d, 1" % (sIss, sIss))
        a("  s_waitcnt vmcnt(%d)" % (depth - 1))
        for i in range(4):
            a("  buffer_load_dwordx4 v%d, s[%d:%d], s%d offen offset:%d nt lds" % (vCo + i, sCur, sCur + 3, sOff, i * 1024))
            if i < 3:
                a("  s_waitcnt vmcnt(%d)" % (depth - 1))
        a("  s_add_u32 m0, m0, 4096")
        a("  s_waitcnt vmcnt(%d)" % (depth - 1))
        for i in range(4):
            a("  buffer_load_dwordx4 v%d, s[%d:%d], s%d offen offset:%d nt lds" % (vCo + i, sCur, sCur + 3, sOff1, i * 1024))
            if i < 3:
                a("  s_waitcnt vmcnt(%d)" % (depth - 1))

    a("L_fill:")
    a("  s_cmp_lg_u32 s%d, 3" % sIss)
    a("  s_cbranch_scc1 L_fill_go")
    stamp("u2 issued")
    lds_wait(vMisc, F_STG, 4, vTmp + 5)
    stamp("STG ok")
    a("L_fill_go:")
    issue_unit()

    a("  s_cmp_lt_u32 s%d, 4" % sIss)
    a("  s_cbranch_scc1 L_fill")
    a("  s_load_dword s%d, s[%d:%d], 0x%x" % (sEp, sWsS, sWsS + 1, EPOCH))
    a("  s_mov_b32 s%d, 0x4000000" % (sV + 2))
    a("  s_mov_b32 s%d, 0x20000" % (sV + 3))
    a("  s_mov_b32 s%d, 0x10000000" % (sWsS + 2))
    a("  s_mov_b32 s%d, 0x20000" % (sWsS + 3))
    for i in range(2):
        a("  v_add_u32 v%d, %d, v%d" % (t2, 4 * i, t0))
        a("  v_lshlrev_b32 v%d, 1, v%d" % (t2, t2))
        a("  v_xor_b32 v%d, v%d, v%d" % (t2, t2, t1))
        a("  v_lshlrev_b32 v%d, 4, v%d" % (t2, t2))
        a("  v_lshl_add_u32 v%d, v%d, 8, v%d" % (vVo + i, t0, t2))
    for s in range(4):
        a("  v_add_u32 v%d, %d, v%d" % (t2, 4 * s, t0))
        a("  v_xor_b32 v%d, v%d, v%d" % (t2, t2, t1))
        a("  v_lshlrev_b32 v%d, 4, v%d" % (t2, t2))
        a("  v_lshl_add_u32 v%d, v%d, 8, v%d" % (t2, t1, t2))
        a("  v_add_u32 v%d, s%d, v%d" % (vKa + s, sRing, t2))
    t3, t4 = vTmp + 3, vTmp + 4
    a("  v_lshrrev_b32 v%d, 2, v%d" % (t2, t1))
    a("  v_lshl_add_u32 v%d, v%d, 2, v%d    ; row" % (t2, t0, t2))
    a("  v_and_b32 v%d, 7, v%d              ; row&7" % (t3, t2))
    a("  v_lshlrev_b32 v%d, 8, v%d" % (t2, t2))
    a("  v_and_b32 v%d, 3, v%d" % (t4, t1))
    a("  v_lshl_add_u32 v%d, v%d, 3, v%d" % (t2, t4, t2))
    a("  v_add_u32 v%d, s%d, v%d" % (t2, sRing, t2))
    for dt in range(8):
        a("  v_xor_b32 v%d, %d, v%d" % (t4, dt, t3))
        a("  v_lshl_add_u32 v%d, v%d, 5, v%d" % (vVa + dt, t4, t2))
    for i in range(64):
        a("  v_mov_b32 v%d, 0" % (vQ + i))
    a("  v_bfe_u32 v%d, v%d, 2, 2" % (t2, vLane))
    for t in range(4):
        a("  v_cmp_eq_u32 s[%d:%d], %d, v%d" % (sM + 2 * t, sM + 2 * t + 1, t, t2))
    a("  v_and_b32 v%d, 3, v%d" % (t2, vLane))
    a("  v_mul_u32_u24 v%d, %d, v%d" % (t2, QL_STRIDE, t2))
    a("  v_lshl_add_u32 v%d, v%d, 4, v%d" % (t2, t0, t2))
    a("  v_add_u32 v%d, %d, v%d" % (t2, QL, t2))
    a("  s_mov_b32 s%d, 0x3DB504F3      ; 128^-0.5" % sScale)
    a("  s_mov_b32 s%d, 0xffff0000" % sHi)
    stamp("fill done")
    if not noq:
        lds_wait(vMisc, F_QRDY, 4, vTmp + 5)
    stamp("Q ready")
    for t in range(4):
        a("  s_mov_b64 exec, s[%d:%d]" % (sM + 2 * t, sM + 2 * t + 1))
        for s in range(4):
            r = vQ + (t * 4 + s) * 4
            a("  ds_read_b128 v[%d:%d], v%d offset:%d" % (r, r + 3, t2, 64 * s))
    a("  s_mov_b64 exec, -1")
    a("  s_mov_b32 s%d, 0" % sIt)
    a("  s_waitcnt vmcnt(0) lgkmcnt(0)")

    a("L_k:")
    lmid = a.lab("Lmid")
    a("  s_cmp_lg_u32 s%d, 0" % sW)
    a("  s_cbranch_scc1 %s" % lmid)
    a("  s_cmp_lg_u32 s%d, %d" % (sIt, mid_it))
    a("  s_cbranch_scc1 %s" % lmid)
    lds_add(vMisc, F_MID, vOne)
    a("%s:" % lmid)
    for u in range(2):
        if u == 0:
            lsk = a.lab("Lsk")
            a("  s_cmp_lt_u32 s%d, %d" % (sIt, 3 if la == 1 else 2))
            a("  s_cbranch_scc1 %s" % lsk)
            issue_unit(switch=(la == 2))
            a("%s:" % lsk)
        else:
            issue_unit(switch=(la == 1))
        for hf in range(2):
            for s_ in range(4):
                r = vSt + (hf * 4 + s_) * 4
                a("  ds_read_b128 v[%d:%d], v%d offset:%d" % (r, r + 3, vKa + s_, u * 8192 + hf * 4096))
        for hf in range(2):
            a("  s_waitcnt lgkmcnt(%d)" % (4 if hf == 0 else 0))
            t = 2 * u + hf
            for s_ in range(4):
                r = vSt + (hf * 4 + s_) * 4
                q = vQ + (t * 4 + s_) * 4
                c = "0" if (u == 0 and hf == 0 and s_ == 0) else "v[%d:%d]" % (vAcc, vAcc + 3)
                a("  v_mfma_f32_16x16x32_bf16 v[%d:%d], v[%d:%d], v[%d:%d], %s" % (vAcc, vAcc + 3, r, r + 3, q, q + 3, c))
    for i in range(6):
        a("  v_mov_b32 v%d, v%d" % (vSp + i, vSp + i + 2))
    for s in range(4):
        a("  v_xor_b32 v%d, 0x4000, v%d" % (vKa + s, vKa + s))
    c0, c1 = vTmp, vTmp + 1
    e0 = vTmp + 2
    a("  v_cvt_pk_bf16_f32 v%d, v%d, v%d" % (c0, vAcc, vAcc + 1))
    a("  v_cvt_pk_bf16_f32 v%d, v%d, v%d" % (c1, vAcc + 2, vAcc + 3))
    a("  v_lshlrev_b32 v%d, 16, v%d" % (e0, c0))
    a("  v_and_b32 v%d, s%d, v%d" % (e0 + 1, sHi, c0))
    a("  v_lshlrev_b32 v%d, 16, v%d" % (e0 + 2, c1))
    a("  v_and_b32 v%d, s%d, v%d" % (e0 + 3, sHi, c1))
    for i in range(4):
        a("  v_mul_f32 v%d, s%d, v%d" % (e0 + i, sScale, e0 + i))
    a("  v_cvt_pk_bf16_f32 v%d, v%d, v%d" % (vSp + 6, e0, e0 + 1))
    a("  v_cvt_pk_bf16_f32 v%d, v%d, v%d" % (vSp + 7, e0 + 2, e0 + 3))
    a("  s_add_u32 s%d, s%d, 1" % (sIt, sIt))
    a("  s_cmp_lt_u32 s%d, 4" % sIt)
    a("  s_cbranch_scc1 L_k")
    stamp("K done")
    if presm and la == 1:
        issue_unit()

    for i in range(8):
        a("  v_lshlrev_b32 v%d, 16, v%d" % (vE + 2 * i, vSp + i))
        a("  v_and_b32 v%d, s%d, v%d" % (vE + 2 * i + 1, sHi, vSp + i))
    vM, vL, vX = vTmp, vTmp + 1, vTmp + 2
    a("  v_max3_f32 v%d, v%d, v%d, v%d" % (vM, vE, vE + 1, vE + 2))
    for i in range(3, 15, 2):
        a("  v_max3_f32 v%d, v%d, v%d, v%d" % (vM, vM, vE + i, vE + i + 1))
    a("  v_max_f32 v%d, v%d, v%d" % (vM, vM, vE + 15))
    a("  s_nop 1")
    a("  v_max_f32_dpp v%d, v%d, v%d row_ror:4 %s" % (vM, vM, vM, DPP))
    a("  s_nop 1")
    a("  v_max_f32_dpp v%d, v%d, v%d row_ror:8 %s" % (vM, vM, vM, DPP))
    reduce_swap("v_max_f32", vM, vX, 16)
    reduce_swap("v_max_f32", vM, vX, 32)
    a("  s_mov_b32 s%d, 0x3FB8AA3B      ; log2(e)" % sT[0])
    a("  v_mul_f32 v%d, s%d, v%d" % (vX, sT[0], vM))
    for i in range(16):
        a("  v_fma_f32 v%d, v%d, s%d, -v%d" % (vE + i, vE + i, sT[0], vX))
    for i in range(16):
        a("  v_exp_f32 v%d, v%d" % (vE + i, vE + i))
    a("  s_nop 0")
    for i in range(8):
        a("  v_cvt_pk_bf16_f32 v%d, v%d, v%d" % (vSp + i, vE + 2 * i, vE + 2 * i + 1))
    for i in range(4):
        a("  v_pk_add_f32 v[%d:%d], v[%d:%d], v[%d:%d]" % (vE + 2 * i, vE + 2 * i + 1, vE + 2 * i, vE + 2 * i + 1, vE + 8 + 2 * i, vE + 9 + 2 * i))
    for i in range(2):
        a("  v_pk_add_f32 v[%d:%d], v[%d:%d], v[%d:%d]" % (vE + 2 * i, vE + 2 * i + 1, vE + 2 * i, vE + 2 * i + 1, vE + 4 + 2 * i, vE + 5 + 2 * i))
    a("  v_pk_add_f32 v[%d:%d], v[%d:%d], v[%d:%d]" % (vE, vE + 1, vE, vE + 1, vE + 2, vE + 3))
    a("  v_add_f32 v%d, v%d, v%d" % (vL, vE, vE + 1))
    a("  s_nop 1")
    a("  v_add_f32_dpp v%d, v%d, v%d row_ror:4 %s" % (vL, vL, vL, DPP))
    a("  s_nop 1")
    a("  v_add_f32_dpp v%d, v%d, v%d row_ror:8 %s" % (vL, vL, vL, DPP))
    reduce_swap("v_add_f32", vL, vX, 16)
    reduce_swap("v_add_f32", vL, vX, 32)
    a("  s_lshl_b32 s%d, s%d, 5" % (sT[0], sW))
    a("  v_lshlrev_b32 v%d, 3, v%d" % (vX, vLane))
    a("  v_add_u32 v%d, s%d, v%d" % (vX, sT[0], vX))
    a("  v_add_u32 v%d, v%d, v%d" % (vX, vMisc, vX))
    a("  s_mov_b64 exec, 15")
    a("  ds_write_b64 v%d, v[%d:%d] offset:%d" % (vX, vM, vM + 1, SSTAT))
    a("  s_waitcnt lgkmcnt(0)")
    a("  s_mov_b64 exec, -1")
    lds_add(vMisc, F_ST, vOne)

    for i in range(32):
        a("  v_mov_b32 v%d, 0" % (vO + i))
    a("  s_mov_b32 s%d, 0" % sIt)
    a("L_v:")
    a("  v_mov_b32 v%d, v%d" % (vPf, vSp))
    a("  v_mov_b32 v%d, v%d" % (vPf + 1, vSp + 1))
    for k, sh in ((2, 4), (4, 8), (6, 12)):
        a("  v_mov_b32_dpp v%d, v%d row_shl:%d %s bound_ctrl:0" % (vPf + k, vSp, sh, DPP))
        a("  v_mov_b32_dpp v%d, v%d row_shl:%d %s bound_ctrl:0" % (vPf + k + 1, vSp + 1, sh, DPP))
    for i in range(6):
        a("  v_mov_b32 v%d, v%d" % (vSp + i, vSp + i + 2))
    lew = a.lab("Lew")
    a("  s_cmp_lg_u32 s%d, 0" % sW)
    a("  s_cbranch_scc1 %s" % lew)
    lew2 = a.lab("Lew")
    a("  s_cmp_lg_u32 s%d, %d" % (sIt, late_it))
    a("  s_cbranch_scc1 %s" % lew2)
    lds_add(vMisc, F_LATE, vOne)
    a("%s:" % lew2)
    a("  s_cmp_lg_u32 s%d, %d" % (sIt, ew_it))
    a("  s_cbranch_scc1 %s" % lew)
    lds_add(vMisc, F_EWS, vOne)
    a("%s:" % lew)
    for u in range(2):
        if u == 0 and la == 1:
            if presm:
                lsk = a.lab("Lsk")
                a("  s_cmp_eq_u32 s%d, 0" % sIt)
                a("  s_cbranch_scc1 %s" % lsk)
                issue_unit()
                a("%s:" % lsk)
            else:
                issue_unit()
        else:
            lv_else, lv_done = a.lab("Lve"), a.lab("Lvd")
            a("  s_cmp_ge_u32 s%d, 3" % sIt)
            a("  s_cbranch_scc1 %s" % lv_else)
            issue_unit()
            a("  s_branch %s" % lv_done)
            a("%s:" % lv_else)
            a("  s_waitcnt vmcnt(%d)" % (8 if u == 0 else 0))
            a("%s:" % lv_done)
        for dt in range(8):
            r = vSt + dt * 4
            a("  ds_read_b64_tr_b16 v[%d:%d], v%d offset:%d" % (r, r + 1, vVa + dt, u * 8192))
            a("  ds_read_b64_tr_b16 v[%d:%d], v%d offset:%d" % (r + 2, r + 3, vVa + dt, u * 8192 + 4096))
        for dt in range(8):
            r = vSt + dt * 4
            o = vO + dt * 4
            if dt % 2 == 0:
                a("  s_waitcnt lgkmcnt(%d)" % (12 - 2 * dt if dt < 6 else 0))
            a("  v_mfma_f32_16x16x32_bf16 v[%d:%d], v[%d:%d], v[%d:%d], v[%d:%d]" % (o, o + 3, r, r + 3, vPf + 4 * u, vPf + 4 * u + 3, o, o + 3))
    for dt in range(8):
        a("  v_xor_b32 v%d, 0x4000, v%d" % (vVa + dt, vVa + dt))
    a("  s_add_u32 s%d, s%d, 1" % (sIt, sIt))
    a("  s_cmp_lt_u32 s%d, 4" % sIt)
    a("  s_cbranch_scc1 L_v")
    stamp("V done")
    a("  v_and_b32 v%d, 15, v%d" % (t1, vLane))
    a("  v_lshrrev_b32 v%d, 4, v%d" % (t0, vLane))
    a("  v_lshlrev_b32 v%d, 9, v%d" % (t2, t1))
    a("  v_lshl_add_u32 v%d, v%d, 4, v%d" % (t2, t0, t2))
    a("  v_add_u32 v%d, s%d, v%d" % (t2, sRing, t2))
    a("  v_cmp_gt_u32 vcc, 4, v%d" % t1)
    a("  s_nop 4")
    a("  s_mov_b64 exec, vcc")
    for dt in range(8):
        a("  ds_write_b128 v%d, v[%d:%d] offset:%d" % (t2, vO + dt * 4, vO + dt * 4 + 3, dt * 64))
    a("  s_mov_b64 exec, -1")
    vR0, vR1, vR2, vR3 = vPf, vPf + 1, vPf + 2, vPf + 3
    a("  v_lshlrev_b32 v%d, 9, v%d" % (vR0, t0))
    a("  v_lshl_add_u32 v%d, v%d, 4, v%d      ; h*512 + c*16" % (vR0, t1, vR0))
    a("  v_lshl_add_u32 v%d, v%d, 4, v%d      ; FLG + h*16" % (vR1, t0, vMisc))
    a("  v_lshlrev_b32 v%d, 14, v%d" % (vR2, t0))
    a("  v_lshrrev_b32 v%d, 3, v%d" % (t3, t1))
    a("  v_lshl_add_u32 v%d, v%d, 11, v%d" % (vR2, t3, vR2))
    a("  v_and_b32 v%d, 7, v%d" % (t3, t1))
    a("  v_lshl_add_u32 v%d, v%d, 4, v%d" % (vR2, t3, vR2))
    a("  s_lshl_b32 s%d, s%d, 16" % (sT[0], sX))
    a("  s_lshr_b32 s%d, s%d, 4" % (sT[1], sLi))
    a("  s_lshl_b32 s%d, s%d, 13" % (sT[1], sT[1]))
    a("  s_add_u32 s%d, s%d, s%d" % (sT[0], sT[0], sT[1]))
    a("  s_and_b32 s%d, s%d, 15" % (sT[1], sLi))
    a("  s_lshl_b32 s%d, s%d, 7" % (sT[1], sT[1]))
    a("  s_add_u32 s%d, s%d, s%d" % (sT[0], sT[0], sT[1]))
    a("  s_add_u32 s%d, s%d, %d" % (sT[0], sT[0], OP))
    a("  s_add_u32 s%d, s%d, 1" % (sT[1], sEp))
    a("  s_and_b32 s%d, s%d, 0xff" % (sT[1], sT[1]))
    a("  v_mov_b32 v%d, s%d" % (vR3, sT[1]))
    a("  s_add_u32 s%d, s%d, 4096" % (sT[1], sT[0]))
    a("  s_mov_b32 s%d, 0xffff0000" % sT[2])
    lds_wait(vMisc, F_LOC, 1, t3)
    a("  s_lshr_b32 s%d, s%d, 1" % (sT[3], sT[7]))
    a("  s_waitcnt lgkmcnt(0)")
    a("  s_barrier                      ; B1")
    a("  s_cmp_lg_u32 s%d, 0" % sW)
    a("  s_cbranch_scc1 L_S_done")
    sWs = sWsS
    for w in range(4):
        a("  ds_read_b128 v[%d:%d], v%d offset:%d" % (vSt + w * 8, vSt + w * 8 + 3, vR0, (w & 1) * 32768))
        a("  ds_read_b128 v[%d:%d], v%d offset:%d" % (vSt + w * 8 + 4, vSt + w * 8 + 7, vR0, (w & 1) * 32768 + 256))
        if w == 1:
            a("  v_add_u32 v%d, 0x10000, v%d" % (vR0, vR0))
    a("  ds_read_b128 v[%d:%d], v%d offset:%d" % (vE, vE + 3, vR1, FFAC))
    a("  s_waitcnt lgkmcnt(0)")
    for i in range(8):
        a("  v_mul_f32 v%d, v%d, v%d" % (vO + i, vSt + i, vE))
    for w in range(1, 4):
        for i in range(8):
            a("  v_fmac_f32 v%d, v%d, v%d" % (vO + i, vSt + w * 8 + i, vE + w))
    for i in range(8):
        a("  v_cvt_pk_bf16_f32 v%d, v%d, v%d" % (vO + i, vO + i, vO + i))
    for i in range(8):
        a("  v_and_or_b32 v%d, v%d, s%d, v%d" % (vO + i, vO + i, sT[2], vR3))
    store_loc(["  buffer_store_dwordx4 v[%d:%d], v%d, s[%d:%d], s%d offen" % (vO, vO + 3, vR2, sWs, sWs + 3, sT[0]),
               "  buffer_store_dwordx4 v[%d:%d], v%d, s[%d:%d], s%d offen" % (vO + 4, vO + 7, vR2, sWs, sWs + 3, sT[1])], sT[3])
    stamp("published")
    a("  s_barrier                      ; B2")
    if ts:
        a("  s_waitcnt lgkmcnt(0)")
        a("  s_lshl_b32 s%d, s2, 8" % sT[0])
        a("  s_add_u32 s%d, s%d, %d" % (sT[0], sT[0], TSOFF))
        a("  v_mov_b32 v%d, 0" % t2)
        a("  s_mov_b64 exec, 1")
        for i in range(len(names["S"])):
            a("  v_mov_b32 v%d, s%d" % (vO, TS0 + 2 * i))
            a("  v_mov_b32 v%d, s%d" % (vO + 1, TS0 + 2 * i + 1))
            a("  buffer_store_dwordx2 v[%d:%d], v%d, s[%d:%d], s%d offen offset:%d" % (vO, vO + 1, t2, sWs, sWs + 3, sT[0], 8 * i))
            a("  s_waitcnt vmcnt(0)")
        a("  s_mov_b64 exec, -1")
    a("L_S_done:")
    a("  s_endpgm")

    role[0] = "H"
    a("L_H:")
    sHW = 7
    sXd, sWq, sWs, sGU, sWd, sWo, sOut = 8, 12, 16, 32, 36, 40, 44
    sEp = 28
    sTag = 29
    sNotFF = 30
    sTag4 = 31
    sHi2 = 48
    sFi = 49
    sSelA, sSelB = 50, 54
    sB = 51; sJ = 52; sFidx = 53
    sKb2 = 55
    sLo8 = 60
    sFv = 3
    sLoc = 56
    sDbg = 64
    sHq = 62
    sWoStg = 63
    hMisc, hOne = 2, 3
    hG, hI = 4, 5
    hT = 6
    hX = 16
    hF = 24
    hY = 40
    hA = 56
    hB = 72
    hD = 88
    hW = 120
    hXf = 136
    hZ = 144
    hTag = 156
    hWd = 160
    hMid = 197
    T0, T1, T2, T3, T4, T5 = hT, hT + 1, hT + 2, hT + 3, hT + 4, hT + 5
    hTr, hXn, hW1k, hTrG, hOutOff = hZ + 1, hZ + 2, hZ + 4, hZ + 5, hZ + 6

    a("  s_load_dwordx2 s[%d:%d], s[0:1], 0" % (sXd, sXd + 1))
    a("  s_load_dwordx2 s[%d:%d], s[0:1], 24" % (sWq, sWq + 1))
    a("  s_load_dwordx4 s[56:59], s[0:1], 48")
    a("  s_load_dwordx2 s[%d:%d], s[0:1], 88" % (sWs, sWs + 1))
    a("  v_lshlrev_b32 v%d, 2, v0" % T0)
    a("  v_add_u32 v%d, %d, v%d" % (T0, FLG, T0))
    a("  v_mov_b32 v%d, 0" % T1)
    a("  ds_write_b32 v%d, v%d" % (T0, T1))
    a("  s_sub_u32 s%d, s%d, 4" % (sHW, sW))
    a("  s_mov_b32 s%d, 8192" % (sXd + 2))
    a("  s_mov_b32 s%d, 0x20000" % (sXd + 3))
    a("  v_lshrrev_b32 v%d, 5, v0" % T0)
    a("  s_lshl_b32 s%d, s%d, 1" % (sT[0], sHW))
    a("  v_add_u32 v%d, s%d, v%d          ; row b" % (T0, sT[0], T0))
    a("  v_and_b32 v%d, 31, v0" % T1)
    a("  v_lshlrev_b32 v%d, 5, v%d" % (T1, T1))
    a("  v_lshl_add_u32 v%d, v%d, 10, v%d" % (T2, T0, T1))
    a("  s_waitcnt lgkmcnt(0)")
    a("  buffer_load_dwordx4 v[%d:%d], v%d, s[%d:%d], 0 offen%s" % (hX, hX + 3, T2, sXd, sXd + 3, " nt" if xnt else ""))
    a("  buffer_load_dwordx4 v[%d:%d], v%d, s[%d:%d], 0 offen offset:16%s" % (hX + 4, hX + 7, T2, sXd, sXd + 3, " nt" if xnt else ""))
    a("  v_lshrrev_b32 v%d, 3, v0" % T3)
    a("  v_and_b32 v%d, 7, v0" % T4)
    a("  v_lshlrev_b32 v%d, 4, v%d" % (T4, T4))
    a("  v_lshl_add_u32 v%d, v%d, 13, v%d" % (T5, T3, T4))
    a("  s_and_b32 s%d, s%d, 3" % (sJ, sLi))
    a("  s_lshr_b32 s%d, s%d, 2" % (sB, sLi))
    a("  s_lshl_b32 s%d, s%d, 2" % (sT[0], sJ))
    a("  s_add_u32 s%d, s%d, s%d" % (sT[0], sT[0], sHW))
    a("  s_lshl_b32 s%d, s%d, 18" % (sT[0], sT[0]))
    a("  s_lshl_b32 s%d, s%d, 3" % (sT[1], sX))
    a("  s_add_u32 s%d, s%d, s%d" % (sT[1], sT[1], sB))
    a("  s_lshl_b32 s%d, s%d, 7" % (sT[1], sT[1]))
    a("  s_add_u32 s%d, s%d, s%d" % (sT[0], sT[0], sT[1]))
    a("  s_lshr_b32 s%d, s%d, 1" % (sT[1], sHW))
    a("  s_lshl_b32 s%d, s%d, 15" % (sT[1], sT[1]))
    a("  s_and_b32 s%d, s%d, 1" % (sT[2], sHW))
    a("  s_lshl_b32 s%d, s%d, 12" % (sT[2], sT[2]))
    a("  s_add_u32 s%d, s%d, s%d" % (sT[1], sT[1], sT[2]))
    a("  s_add_u32 s%d, s%d, 24576" % (sT[1], sT[1]))
    a("  s_mov_b32 s%d, 0x400000" % (sWq + 2))
    a("  s_mov_b32 s%d, 0x20000" % (sWq + 3))
    for n in range(4):
        a("  s_add_u32 m0, s%d, %d" % (sT[1], n * 1024))
        if n:
            a("  s_add_u32 s%d, s%d, %d" % (sT[0], sT[0], 8 * 8192))
        else:
            a("  s_load_dword s%d, s[%d:%d], 0x%x" % (sEp, sWs, sWs + 1, EPOCH))
        a("  buffer_load_dwordx4 v%d, s[%d:%d], s%d offen nt lds" % (T5, sWq, sWq + 3, sT[0]))
    if b0pos == 0:
        a("  s_barrier                      ; B0")
        stamp("B0")
    a("  s_load_dwordx2 s[%d:%d], s[0:1], 64" % (sWd, sWd + 1))
    a("  s_load_dwordx2 s[%d:%d], s[0:1], 32" % (sWo, sWo + 1))
    a("  s_load_dwordx2 s[%d:%d], s[0:1], 72" % (sOut, sOut + 1))
    a("  s_load_dwordx2 s[%d:%d], s[0:1], 80" % (sDbg, sDbg + 1))
    a("  s_lshr_b32 s%d, s%d, 3" % (sT[4], sLi))
    a("  s_lshl_b32 s%d, s%d, 3" % (sT[4], sT[4]))
    a("  s_add_u32 s%d, s%d, s%d" % (sT[4], sT[4], sX))
    a("  s_cmp_lt_u32 s%d, 28" % sT[4])
    a("  s_cselect_b32 s%d, 1, 0" % sFv)
    a("  s_min_u32 s%d, s%d, 27" % (sT[4], sT[4]))
    a("  s_lshl_b32 s%d, s%d, 3" % (sFi, sT[4]))
    a("  s_and_b32 s%d, s%d, 7" % (sT[5], sLi))
    a("  s_add_u32 s%d, s%d, s%d" % (sFi, sFi, sT[5]))
    a("  s_and_b32 s%d, s%d, 3" % (sKb2, sFi))
    a("  s_lshl_b32 s%d, s%d, 2" % (sT[3], sKb2))
    a("  s_add_u32 s%d, s%d, s%d" % (sT[3], sT[3], sHW))
    a("  s_mul_i32 s%d, s%d, %d" % (sT[3], sT[3], 32 * 3584))
    a("  s_lshl_b32 s%d, s%d, 7" % (sT[4], sT[4]))
    a("  s_add_u32 s%d, s%d, s%d" % (sT[3], sT[3], sT[4]))
    a("  s_bitcmp1_b32 s%d, 2" % sFi)
    a("  s_cselect_b32 s%d, s58, s56" % sGU)
    a("  s_cselect_b32 s%d, s59, s57" % (sGU + 1))
    a("  s_mov_b32 s%d, 1835008" % (sGU + 2))
    a("  s_mov_b32 s%d, 0x20000" % (sGU + 3))
    a("  v_lshl_add_u32 v%d, v%d, 10, v%d" % (hW1k, T3, T4))
    a("  v_mul_u32_u24 v%d, 3584, v%d" % (T3, T3))
    a("  v_add_u32 v%d, v%d, v%d" % (T3, T3, T4))
    for n in range(4):
        a("  s_add_u32 m0, s%d, %d" % (sT[1], 65536 + n * 1024))
        if n:
            a("  s_add_u32 s%d, s%d, %d" % (sT[3], sT[3], 8 * 3584))
        else:
            a("  s_mov_b32 s%d, 0xffff0000" % sHi2)
        a("  buffer_load_dwordx4 v%d, s[%d:%d], s%d offen nt lds" % (T3, sGU, sGU + 3, sT[3]))
    if b0pos == 1:
        a("  s_barrier                      ; B0")
        stamp("B0")
    a("  v_lshrrev_b32 v%d, 4, v0" % hG)
    a("  v_and_b32 v%d, 15, v0" % hI)
    a("  v_mov_b32 v%d, %d" % (hMisc, FLG))
    a("  v_mov_b32 v%d, 1" % hOne)
    a("  v_mul_u32_u24 v%d, %d, v%d" % (T0, XN_STRIDE, T0))
    a("  v_add_u32 v%d, v%d, v%d" % (T0, T0, T1))
    a("  v_add_u32 v%d, %d, v%d" % (hZ, XN, T0))
    if noh:
        for _ in range(4):
            lds_add(hMisc, F_QRDY, hOne)
            lds_add(hMisc, F_STG, hOne)
        a("  s_barrier")
        a("  s_mov_b32 s%d, 0x10000000" % (sWs + 2))
        a("  s_mov_b32 s%d, 0x20000" % (sWs + 3))
        a("  s_cmp_lg_u32 s%d, 0" % sHW)
        a("  s_cbranch_scc1 L_H_done")
        a("  s_branch L_tsdump")
    a("  s_mov_b32 s%d, 0x10000000" % (sWs + 2))
    a("  s_mov_b32 s%d, 0x20000" % (sWs + 3))
    for base, size in ((sWd, 1835008), (sWo, 0x400000), (sOut, 8192)):
        a("  s_mov_b32 s%d, %d" % (base + 2, size))
        a("  s_mov_b32 s%d, 0x20000" % (base + 3))
    a("  s_mov_b32 s%d, 0xffffff00" % sNotFF)
    a("  s_mov_b32 s%d, 0x0c0c0400" % sSelA)
    a("  s_mov_b32 s%d, 0x04000c0c" % sSelB)

    def pk(op, d, s0, s1, extra=""):
        a("  %s v[%d:%d], v[%d:%d], v[%d:%d]%s" % (op, d, d + 1, s0, s0 + 1, s1, s1 + 1, extra))

    def allreduce32(v, t):
        for n in (1, 2, 4, 8):
            a("  s_nop 1")
            a("  v_add_f32_dpp v%d, v%d, v%d row_ror:%d %s" % (v, v, v, n, DPP))
        reduce_swap("v_add_f32", v, t, 16)

    def tag(v):
        a("  v_and_or_b32 v%d, v%d, s%d, v%d" % (v, v, sNotFF, hTag))

    def tag_retry(regs, lab_retry, lab_ok, t0_, t1_, sleep):
        rs = list(regs)
        assert len(rs) % 4 == 0
        for k in range(0, len(rs), 4):
            a("  v_perm_b32 v%d, v%d, v%d, s%d" % (t1_, rs[k + 1], rs[k], sSelA))
            a("  v_perm_b32 v%d, v%d, v%d, s%d" % (t1_ + 1, rs[k + 3], rs[k + 2], sSelB))
            if k == 0:
                a("  v_or_b32 v%d, v%d, v%d" % (t0_, t1_, t1_ + 1))
                a("  v_xor_b32 v%d, s%d, v%d" % (t0_, sTag4, t0_))
            else:
                a("  v_or_b32 v%d, v%d, v%d" % (t1_, t1_, t1_ + 1))
                a("  v_xor_b32 v%d, s%d, v%d" % (t1_, sTag4, t1_))
                a("  v_or_b32 v%d, v%d, v%d" % (t0_, t0_, t1_))
        a("  v_cmp_ne_u32 vcc, 0, v%d" % t0_)
        a("  s_cbranch_vccz %s" % lab_ok)
        a("  s_mov_b64 exec, vcc")
        a("  s_add_u32 s%d, s%d, 1" % (sCnt, sCnt))
        a("  s_cmp_lt_u32 s%d, %d" % (sCnt, SPIN_LIMIT))
        a("  s_cbranch_scc0 %s" % lab_ok)
        a("  s_sleep %d" % sleep)
        a("  s_branch %s" % lab_retry)

    def round_bf16(v):
        a("  v_cvt_pk_bf16_f32 v%d, v%d, v%d" % (v, v, v))
        a("  v_and_b32 v%d, s%d, v%d" % (v, sHi2, v))

    def untag(regs):
        for v in regs:
            a("  v_and_or_b32 v%d, v%d, s%d, v%d" % (v, v, sNotFF, hMid))

    a("  s_waitcnt vmcnt(8)")
    for i in range(8):
        a("  v_lshlrev_b32 v%d, 16, v%d" % (hF + 2 * i, hX + i))
        a("  v_and_b32 v%d, s%d, v%d" % (hF + 2 * i + 1, sHi2, hX + i))
    for i in range(4):
        pk("v_pk_add_f32", hY + 2 * i, hF + 4 * i, hF + 4 * i + 2)
    pk("v_pk_add_f32", hY, hY, hY + 2)
    pk("v_pk_add_f32", hY + 4, hY + 4, hY + 6)
    pk("v_pk_add_f32", hY, hY, hY + 4)
    vS = hZ + 8
    vV = hZ + 10
    a("  v_add_f32 v%d, v%d, v%d" % (vS, hY, hY + 1))
    allreduce32(vS, T0)
    a("  v_mul_f32 v%d, 0x3b000000, v%d     ; mean" % (vS, vS))
    for i in range(8):
        pk("v_pk_add_f32", hY + 2 * i, hF + 2 * i, vS, " op_sel_hi:[1,0] neg_lo:[0,1] neg_hi:[0,1]")
    pk("v_pk_mul_f32", vV, hY, hY)
    for i in range(1, 8):
        a("  v_pk_fma_f32 v[%d:%d], v[%d:%d], v[%d:%d], v[%d:%d]" % (vV, vV + 1, hY + 2 * i, hY + 2 * i + 1, hY + 2 * i, hY + 2 * i + 1, vV, vV + 1))
    a("  v_add_f32 v%d, v%d, v%d" % (vV, vV, vV + 1))
    allreduce32(vV, T0)
    a("  v_mul_f32 v%d, 0x3b000000, v%d     ; var" % (vV, vV))
    a("  v_cvt_pk_bf16_f32 v%d, v%d, v%d" % (vS, vS, vV))
    a("  v_and_b32 v%d, s%d, v%d" % (vV, sHi2, vS))
    a("  v_lshlrev_b32 v%d, 16, v%d            ; mean_bf" % (vS, vS))
    a("  v_add_f32 v%d, 0x3727c5ac, v%d" % (vV, vV))
    round_bf16(vV)
    a("  v_sqrt_f32 v%d, v%d" % (vV, vV))
    a("  s_nop 0")
    round_bf16(vV)
    a("  v_rcp_f32 v%d, v%d" % (vV, vV))
    for i in range(8):
        pk("v_pk_add_f32", hY + 2 * i, hF + 2 * i, vS, " op_sel_hi:[1,0] neg_lo:[0,1] neg_hi:[0,1]")
    for i in range(8):
        a("  v_cvt_pk_bf16_f32 v%d, v%d, v%d" % (hX + i, hY + 2 * i, hY + 2 * i + 1))
    for i in range(8):
        a("  v_lshlrev_b32 v%d, 16, v%d" % (hF + 2 * i, hX + i))
        a("  v_and_b32 v%d, s%d, v%d" % (hF + 2 * i + 1, sHi2, hX + i))
    for i in range(8):
        pk("v_pk_mul_f32", hY + 2 * i, hF + 2 * i, vV, " op_sel_hi:[1,0]")
    for i in range(8):
        a("  v_cvt_pk_bf16_f32 v%d, v%d, v%d" % (hX + i, hY + 2 * i, hY + 2 * i + 1))
    a("  ds_write_b128 v%d, v[%d:%d]" % (hZ, hX, hX + 3))
    a("  ds_write_b128 v%d, v[%d:%d] offset:16" % (hZ, hX + 4, hX + 7))
    stamp("LN done")

    a("  v_lshrrev_b32 v%d, 2, v%d" % (T0, hI))
    a("  v_lshl_add_u32 v%d, v%d, 3, v%d" % (T0, hG, T0))
    a("  v_lshlrev_b32 v%d, 7, v%d" % (T0, T0))
    a("  v_and_b32 v%d, 3, v%d" % (T1, hI))
    a("  v_lshl_add_u32 v%d, v%d, 3, v%d" % (hTrG, T1, T0))
    a("  s_lshl_b32 s%d, s%d, 5" % (sT[0], sHW))
    a("  s_add_u32 s%d, s%d, 24576" % (sT[0], sT[0]))
    a("  v_add_u32 v%d, s%d, v%d" % (hTr, sT[0], hTrG))
    a("  v_and_b32 v%d, 7, v%d" % (T0, hI))
    a("  v_mul_u32_u24 v%d, %d, v%d" % (T0, XN_STRIDE, T0))
    a("  v_lshl_add_u32 v%d, v%d, 4, v%d" % (T0, hG, T0))
    a("  v_add_u32 v%d, %d, v%d" % (hXn, XN, T0))
    a("  v_cmp_gt_u32 s[%d:%d], 8, v%d" % (sLo8, sLo8 + 1, hI))

    def tile_compute(kb_sgpr, stg_add):
        a("  s_lshl_b32 s%d, s%d, 8" % (sT[0], kb_sgpr))
        a("  v_add_u32 v%d, s%d, v%d" % (T0, sT[0], hXn))
        if stg_add:
            a("  v_add_u32 v%d, 0x%x, v%d" % (T1, stg_add, hTr))
            tr = T1
        else:
            tr = hTr
        for ks in range(4):
            base = (ks >> 1) * 32768 + (ks & 1) * 4096
            r = hA + ks * 4
            a("  ds_read_b64_tr_b16 v[%d:%d], v%d offset:%d" % (r, r + 1, tr, base))
            a("  ds_read_b64_tr_b16 v[%d:%d], v%d offset:%d" % (r + 2, r + 3, tr, base + 512))
            r = hB + ks * 4
            a("  ds_read_b128 v[%d:%d], v%d offset:%d" % (r, r + 3, T0, ks * 64))
        for ks in range(4):
            a("  s_waitcnt lgkmcnt(%d)" % (9 - 3 * ks))
            c = "0" if ks == 0 else "v[%d:%d]" % (hD, hD + 3)
            a("  v_mfma_f32_16x16x32_bf16 v[%d:%d], v[%d:%d], v[%d:%d], %s" % (hD, hD + 3, hA + ks * 4, hA + ks * 4 + 3, hB + ks * 4, hB + ks * 4 + 3, c))

    a("  s_waitcnt vmcnt(4) lgkmcnt(0)")
    a("  s_add_u32 s%d, s%d, 1" % (sTag, sEp))
    a("  s_and_b32 s%d, s%d, 0xff" % (sTag, sTag))
    a("  s_mul_i32 s%d, s%d, 0x01010101" % (sTag4, sTag))
    a("  v_mov_b32 v%d, s%d" % (hTag, sTag))
    a("  v_mov_b32 v%d, 0x80" % hMid)
    if early_census:
        lc = a.lab("Lc")
        a("  s_cmp_lg_u32 s%d, 1" % sHW)
        a("  s_cbranch_scc1 %s" % lc)
        a("  s_mov_b32 s%d, 256" % (sDbg + 2))
        a("  s_mov_b32 s%d, 0x20000" % (sDbg + 3))
        a("  s_getreg_b32 s%d, hwreg(HW_REG_XCC_ID, 0, 3)" % sT[4])
        a("  s_lshl_b32 s%d, s%d, 3" % (sT[4], sT[4]))
        a("  s_lshl_b64 s[%d:%d], 1, s%d" % (sT[6], sT[7], sT[4]))
        a("  v_mov_b32 v%d, s%d" % (hA, sT[6]))
        a("  v_mov_b32 v%d, s%d" % (hA + 1, sT[7]))
        a("  s_lshl_b32 s%d, s%d, 5" % (sT[4], sX))
        a("  v_mov_b32 v%d, s%d" % (T0, sT[4]))
        a("  s_mov_b64 exec, 1")
        a("  buffer_atomic_add_x2 v[%d:%d], v%d, s[%d:%d], 0 offen sc1" % (hA, hA + 1, T0, sDbg, sDbg + 3))
        a("  s_mov_b64 exec, -1")
        a("%s:" % lc)
    lds_add(hMisc, F_H1, hOne)
    lds_wait(hMisc, F_H1, 4, T5)
    stamp("Hsync1")
    tile_compute(sJ, 0)
    a("  v_lshlrev_b32 v%d, 11, v%d" % (T0, hI))
    a("  v_lshl_add_u32 v%d, v%d, 4, v%d" % (T0, hG, T0))
    a("  s_lshl_b32 s%d, s%d, 6" % (sT[0], sHW))
    a("  v_add_u32 v%d, s%d, v%d" % (T0, sT[0], T0))
    a("  s_lshl_b32 s%d, s%d, 2" % (sHq, sX))
    a("  s_add_u32 s%d, s%d, s%d" % (sHq, sHq, sJ))
    a("  s_lshl_b32 s%d, s%d, 14" % (sT[0], sHq))
    a("  s_lshl_b32 s%d, s%d, 8" % (sT[1], sB))
    a("  s_add_u32 s%d, s%d, s%d" % (sT[0], sT[0], sT[1]))
    if QP:
        a("  s_add_u32 s%d, s%d, %d" % (sT[0], sT[0], QP))
    for k in range(4):
        tag(hD + k)
    a("  s_mov_b64 exec, s[%d:%d]" % (sLo8, sLo8 + 1))
    a("  buffer_store_dwordx4 v[%d:%d], v%d, s[%d:%d], s%d offen sc1" % (hD, hD + 3, T0, sWs, sWs + 3, sT[0]))
    a("  s_mov_b64 exec, -1")
    stamp("QP stored")
    a("  s_lshl_b32 s%d, s%d, 2" % (sT[0], sHq))
    a("  s_add_u32 s%d, s%d, s%d" % (sT[0], sT[0], sHW))
    a("  s_lshl_b32 s%d, s%d, 15" % (sT[0], sT[0]))
    a("  s_lshl_b32 s%d, s%d, 7" % (sT[1], sB))
    a("  s_add_u32 s%d, s%d, s%d" % (sT[0], sT[0], sT[1]))
    a("  s_lshl_b32 s%d, s%d, 12" % (sWoStg, sHW))
    a("  s_add_u32 s%d, s%d, %d" % (sWoStg, sWoStg, WOS))
    for n in range(4):
        a("  s_add_u32 m0, s%d, %d" % (sWoStg, n * 1024))
        if n:
            a("  s_add_u32 s%d, s%d, 8192" % (sT[0], sT[0]))
        else:
            a("  s_nop 0")
        a("  buffer_load_dwordx4 v%d, s[%d:%d], s%d offen nt lds" % (hW1k, sWo, sWo + 3, sT[0]))
    a("  s_waitcnt vmcnt(5)")
    lds_add(hMisc, F_H3, hOne)
    lds_wait(hMisc, F_H3, 4, T5)
    stamp("Hsync3")
    tile_compute(sKb2, 65536)
    lds_add(hMisc, F_STG, hOne)
    a("  v_lshlrev_b32 v%d, 8, v%d" % (T0, hI))
    a("  v_lshl_add_u32 v%d, v%d, 4, v%d" % (T0, hG, T0))
    a("  s_lshl_b32 s%d, s%d, 6" % (sT[0], sHW))
    a("  v_add_u32 v%d, s%d, v%d" % (T0, sT[0], T0))
    a("  s_and_b32 s%d, s%d, 7" % (sT[0], sFi))
    a("  s_mul_i32 s%d, s%d, 28" % (sT[0], sT[0]))
    a("  s_lshr_b32 s%d, s%d, 3" % (sT[1], sFi))
    a("  s_add_u32 s%d, s%d, s%d" % (sT[0], sT[0], sT[1]))
    a("  s_lshl_b32 s%d, s%d, 11" % (sT[0], sT[0]))
    a("  s_add_u32 s%d, s%d, %d" % (sT[0], sT[0], GP))
    hGp, hGpOff, sGpS = 192, 196, 59
    for k in range(4):
        tag(hD + k)
    if gplocal:
        for k in range(4):
            a("  v_mov_b32 v%d, v%d" % (hGp + k, hD + k))
        a("  v_mov_b32 v%d, v%d" % (hGpOff, T0))
        a("  s_mov_b32 s%d, s%d" % (sGpS, sT[0]))
    else:
        lg = a.lab("Lg")
        a("  s_cmp_eq_u32 s%d, 0" % sFv)
        a("  s_cbranch_scc1 %s" % lg)
        a("  s_mov_b64 exec, s[%d:%d]" % (sLo8, sLo8 + 1))
        a("  buffer_store_dwordx4 v[%d:%d], v%d, s[%d:%d], s%d offen sc1" % (hD, hD + 3, T0, sWs, sWs + 3, sT[0]))
        a("  s_mov_b64 exec, -1")
        a("%s:" % lg)

    def gp_store(have_loc):
        if not gplocal:
            return
        if not have_loc:
            lds_wait(hMisc, F_LOC, 1, T5, sleep=8)
            a("  s_lshr_b32 s%d, s%d, 1" % (sLoc, sT[7]))
        lg = a.lab("Lg")
        a("  s_cmp_eq_u32 s%d, 0" % sFv)
        a("  s_cbranch_scc1 %s" % lg)
        a("  s_mov_b64 exec, s[%d:%d]" % (sLo8, sLo8 + 1))
        store_loc(["  buffer_store_dwordx4 v[%d:%d], v%d, s[%d:%d], s%d offen" % (hGp, hGp + 3, hGpOff, sWs, sWs + 3, sGpS)], sLoc)
        a("  s_mov_b64 exec, -1")
        a("%s:" % lg)
    stamp("tile1 done")
    a("  v_lshrrev_b32 v%d, 5, v0" % T0)
    a("  v_lshlrev_b32 v%d, 14, v%d" % (T0, T0))
    a("  v_and_b32 v%d, 31, v0" % T1)
    a("  v_lshl_add_u32 v%d, v%d, 4, v%d" % (T0, T1, T0))
    a("  s_lshl_b32 s%d, s%d, 9" % (sT[0], sHW))
    a("  v_add_u32 v%d, s%d, v%d" % (T0, sT[0], T0))
    a("  s_lshl_b32 s%d, s%d, 16" % (sT[0], sX))
    a("  s_lshl_b32 s%d, s%d, 11" % (sT[1], sB))
    a("  s_add_u32 s%d, s%d, s%d" % (sT[0], sT[0], sT[1]))
    if QP:
        a("  s_add_u32 s%d, s%d, %d" % (sT[0], sT[0], QP))
    a("  s_add_u32 s%d, s%d, 32768" % (sT[1], sT[0]))
    a("  s_mul_i32 s%d, s%d, %d" % (sT[2], sHW, QL_STRIDE))
    a("  s_add_u32 s%d, s%d, %d" % (sT[2], sT[2], QL))
    a("  v_lshlrev_b32 v%d, 3, v%d" % (T1, T1))
    a("  v_add_u32 v%d, s%d, v%d" % (T1, sT[2], T1))
    lr, lo = a.lab("Lr"), a.lab("Lo")
    a("  s_mov_b32 s%d, 0" % sCnt)
    a("%s:" % lr)
    NT = " nt" if gnt & 1 else ""
    a("  buffer_load_dwordx4 v[%d:%d], v%d, s[%d:%d], s%d offen sc1%s" % (hA, hA + 3, T0, sWs, sWs + 3, sT[0], NT))
    a("  buffer_load_dwordx4 v[%d:%d], v%d, s[%d:%d], s%d offen sc1%s" % (hA + 4, hA + 7, T0, sWs, sWs + 3, sT[1], NT))
    a("  s_waitcnt vmcnt(0)")
    tag_retry(range(hA, hA + 8), lr, lo, T2, T3, 2)
    a("%s:" % lo)
    a("  s_mov_b64 exec, -1")
    stamp("Q ok")
    untag(range(hA, hA + 8))
    pk("v_pk_add_f32", hA, hA, hA + 4)
    pk("v_pk_add_f32", hA + 2, hA + 2, hA + 6)
    for k in range(4):
        a("  v_mov_b32 v%d, v%d" % (hA + 4 + k, hA + k))
    a("  s_nop 1")
    for k in range(4):
        a("  v_permlane32_swap_b32 v%d, v%d" % (hA + k, hA + 4 + k))
    pk("v_pk_add_f32", hA, hA, hA + 4)
    pk("v_pk_add_f32", hA + 2, hA + 2, hA + 6)
    a("  v_cvt_pk_bf16_f32 v%d, v%d, v%d" % (hA, hA, hA + 1))
    a("  v_cvt_pk_bf16_f32 v%d, v%d, v%d" % (hA + 1, hA + 2, hA + 3))
    a("  s_mov_b32 exec_hi, 0")
    a("  ds_write_b64 v%d, v[%d:%d]" % (T1, hA, hA + 1))
    a("  s_mov_b64 exec, -1")
    a("  s_waitcnt lgkmcnt(0)")
    lds_add(hMisc, F_QRDY, hOne)
    stamp("Q rdy")

    a("  v_add_u32 v%d, s%d, v%d" % (T0, sWoStg, hTrG))
    l3 = a.lab("L3")
    a("  s_cmp_lg_u32 s%d, 3" % sHW)
    a("  s_cbranch_scc1 %s" % l3)
    a("  s_lshr_b32 s%d, s%d, 3" % (sT[0], sFi))
    a("  s_lshl_b32 s%d, s%d, 16" % (sT[1], sT[0]))
    a("  s_and_b32 s%d, s%d, 7" % (sT[2], sFi))
    a("  s_lshl_b32 s%d, s%d, 7" % (sT[2], sT[2]))
    a("  s_add_u32 s%d, s%d, s%d" % (sT[1], sT[1], sT[2]))
    for n in range(4):
        a("  s_mov_b32 m0, %d" % (SPARE + n * 1024))
        if n:
            a("  s_add_u32 s%d, s%d, 8192" % (sT[1], sT[1]))
        else:
            a("  s_nop 0")
        a("  buffer_load_dwordx4 v%d, s[%d:%d], s%d offen nt lds" % (hW1k, sWd, sWd + 3, sT[1]))
    a("%s:" % l3)
    for ct in range(4):
        r = hW + ct * 4
        a("  ds_read_b64_tr_b16 v[%d:%d], v%d offset:%d" % (r, r + 1, T0, ct * 32))
        a("  ds_read_b64_tr_b16 v[%d:%d], v%d offset:%d" % (r + 2, r + 3, T0, ct * 32 + 512))
    a("  s_waitcnt lgkmcnt(0)")
    l4 = a.lab("L4")
    a("  s_cmp_lg_u32 s%d, 3" % sHW)
    a("  s_cbranch_scc1 %s" % l4)
    for n in range(4):
        a("  s_add_u32 m0, s%d, %d" % (sWoStg, n * 1024))
        a("  s_add_u32 s%d, s%d, 8192" % (sT[1], sT[1]))
        a("  buffer_load_dwordx4 v%d, s[%d:%d], s%d offen nt lds" % (hW1k, sWd, sWd + 3, sT[1]))
    a("  v_add_u32 v%d, %d, v%d" % (T1, SPARE, hTrG))
    a("  s_waitcnt vmcnt(4)")
    for ct in range(4):
        r = hWd + ct * 8
        a("  ds_read_b64_tr_b16 v[%d:%d], v%d offset:%d" % (r, r + 1, T1, ct * 32))
        a("  ds_read_b64_tr_b16 v[%d:%d], v%d offset:%d" % (r + 2, r + 3, T1, ct * 32 + 512))
    a("  s_waitcnt vmcnt(0)")
    for ct in range(4):
        r = hWd + ct * 8 + 4
        a("  ds_read_b64_tr_b16 v[%d:%d], v%d offset:%d" % (r, r + 1, T0, ct * 32))
        a("  ds_read_b64_tr_b16 v[%d:%d], v%d offset:%d" % (r + 2, r + 3, T0, ct * 32 + 512))
    a("  s_waitcnt lgkmcnt(0)")
    a("%s:" % l4)
    stamp("wo frags")

    a("  s_lshl_b32 s%d, s%d, 5" % (sFidx, sB))
    a("  s_add_u32 s%d, s%d, s%d" % (sFidx, sFidx, sHq))
    a("  v_and_b32 v%d, 3, v0" % T0)
    a("  v_lshlrev_b32 v%d, 3, v%d" % (T0, T0))
    a("  s_lshl_b32 s%d, s%d, 5" % (sT[0], sFidx))
    a("  v_add_u32 v%d, s%d, v%d" % (hOutOff, sT[0], T0))
    if noffn:
        a("  s_branch L_B1")
    a("  s_cmp_eq_u32 s%d, 1" % sHW)
    a("  s_cbranch_scc1 %s" % ("L_B1" if skip & 1 else "L_ffn"))
    a("  s_cmp_eq_u32 s%d, 2" % sHW)
    a("  s_cbranch_scc1 %s" % ("L_B1" if skip & 2 else "L_stats"))
    a("  s_cmp_eq_u32 s%d, 0" % sHW)
    a("  s_cbranch_scc1 %s" % ("L_B1" if skip & 5 else "L_fin_prep"))
    a("  s_branch %s" % ("L_B1" if skip & 9 else "L_down"))

    a("L_ffn:")
    a("  s_mov_b32 s%d, 256" % (sDbg + 2))
    a("  s_mov_b32 s%d, 0x20000" % (sDbg + 3))
    a("  s_lshl_b32 s%d, s%d, 5" % (sT[0], sX))
    a("  v_mov_b32 v%d, s%d" % (T0, sT[0]))
    if not early_census:
        a("  s_getreg_b32 s%d, hwreg(HW_REG_XCC_ID, 0, 3)" % sT[4])
        a("  s_lshl_b32 s%d, s%d, 3" % (sT[4], sT[4]))
        a("  s_lshl_b64 s[%d:%d], 1, s%d" % (sT[6], sT[7], sT[4]))
        a("  v_mov_b32 v%d, s%d" % (hA, sT[6]))
        a("  v_mov_b32 v%d, s%d" % (hA + 1, sT[7]))
        a("  s_mov_b64 exec, 1")
        a("  buffer_atomic_add_x2 v[%d:%d], v%d, s[%d:%d], 0 offen sc1" % (hA, hA + 1, T0, sDbg, sDbg + 3))
        a("  s_mov_b64 exec, -1")
        lds_wait(hMisc, F_MID, 1, T5, sleep=8)
    a("  s_waitcnt vmcnt(0)")
    lr, lo = a.lab("Lr"), a.lab("Lo")
    a("  s_mov_b32 s%d, 0" % sCnt)
    a("  s_mov_b64 exec, 1")
    a("%s:" % lr)
    a("  buffer_load_dwordx2 v[%d:%d], v%d, s[%d:%d], 0 offen sc1" % (hA, hA + 1, T0, sDbg, sDbg + 3))
    a("  s_waitcnt vmcnt(0)")
    a("  v_readfirstlane_b32 s%d, v%d" % (sT[2], hA))
    a("  v_readfirstlane_b32 s%d, v%d" % (sT[3], hA + 1))
    a("  s_and_b32 s%d, s%d, 0x00ff00ff" % (sT[4], sT[2]))
    a("  s_lshr_b32 s%d, s%d, 8" % (sT[5], sT[2]))
    a("  s_and_b32 s%d, s%d, 0x00ff00ff" % (sT[5], sT[5]))
    a("  s_add_u32 s%d, s%d, s%d" % (sT[4], sT[4], sT[5]))
    a("  s_and_b32 s%d, s%d, 0x00ff00ff" % (sT[5], sT[3]))
    a("  s_add_u32 s%d, s%d, s%d" % (sT[4], sT[4], sT[5]))
    a("  s_lshr_b32 s%d, s%d, 8" % (sT[5], sT[3]))
    a("  s_and_b32 s%d, s%d, 0x00ff00ff" % (sT[5], sT[5]))
    a("  s_add_u32 s%d, s%d, s%d" % (sT[4], sT[4], sT[5]))
    a("  s_lshr_b32 s%d, s%d, 16" % (sT[5], sT[4]))
    a("  s_and_b32 s%d, s%d, 0xffff" % (sT[4], sT[4]))
    a("  s_add_u32 s%d, s%d, s%d" % (sT[4], sT[4], sT[5]))
    a("  s_cmp_ge_u32 s%d, 32" % sT[4])
    a("  s_cbranch_scc1 %s" % lo)
    a("  s_add_u32 s%d, s%d, 1" % (sCnt, sCnt))
    a("  s_cmp_lt_u32 s%d, %d" % (sCnt, SPIN_LIMIT))
    a("  s_cbranch_scc0 %s" % lo)
    a("  s_sleep 32")
    a("  s_branch %s" % lr)
    a("%s:" % lo)
    a("  s_mov_b64 exec, -1")
    a("  s_getreg_b32 s%d, hwreg(HW_REG_XCC_ID, 0, 3)" % sT[4])
    a("  s_lshl_b32 s%d, s%d, 3" % (sT[4], sT[4]))
    a("  s_lshr_b64 s[%d:%d], s[%d:%d], s%d" % (sT[2], sT[3], sT[2], sT[3], sT[4]))
    a("  s_and_b32 s%d, s%d, 0xff" % (sT[2], sT[2]))
    a("  s_cmp_eq_u32 s%d, 32" % sT[2])
    a("  s_cselect_b32 s%d, %d, 1" % (sT[2], 2 if uselocal else 1))
    a("  v_mov_b32 v%d, s%d" % (T0, sT[2]))
    a("  s_mov_b64 exec, 1")
    a("  ds_write_b32 v%d, v%d offset:%d" % (hMisc, T0, F_LOC))
    a("  s_mov_b64 exec, -1")
    a("  s_lshr_b32 s%d, s%d, 1" % (sLoc, sT[2]))
    gp_store(True)
    a("  s_cmp_eq_u32 s%d, 0" % sFv)
    a("  s_cbranch_scc1 L_ffn_done")
    a("  s_lshr_b32 s%d, s%d, 3" % (sT[0], sFi))
    a("  v_mul_u32_u24 v%d, %d, v%d" % (T0, 28 * 2048, hG))
    a("  v_lshl_add_u32 v%d, v%d, 4, v%d" % (T0, hI, T0))
    a("  s_lshl_b32 s%d, s%d, 11" % (sT[1], sT[0]))
    a("  s_and_b32 s%d, s%d, 7" % (sT[2], sFi))
    a("  s_lshl_b32 s%d, s%d, 8" % (sT[2], sT[2]))
    a("  s_add_u32 s%d, s%d, s%d" % (sT[1], sT[1], sT[2]))
    a("  s_add_u32 s%d, s%d, %d" % (sT[1], sT[1], GP))
    a("  s_add_u32 s%d, s%d, %d" % (sT[2], sT[1], 4 * 28 * 2048))
    lr, lo = a.lab("Lr"), a.lab("Lo")
    a("  s_mov_b32 s%d, 0" % sCnt)
    a("%s:" % lr)
    NT = " nt" if gnt & 2 else ""
    a("  buffer_load_dwordx4 v[%d:%d], v%d, s[%d:%d], s%d offen sc1%s" % (hA, hA + 3, T0, sWs, sWs + 3, sT[1], NT))
    a("  buffer_load_dwordx4 v[%d:%d], v%d, s[%d:%d], s%d offen sc1%s" % (hA + 4, hA + 7, T0, sWs, sWs + 3, sT[2], NT))
    a("  s_waitcnt vmcnt(0)")
    tag_retry(range(hA, hA + 8), lr, lo, T2, T3, 8 if gplocal else ffn_sleep)
    a("%s:" % lo)
    a("  s_mov_b64 exec, -1")
    untag(range(hA, hA + 8))
    for kind in (16, 32):
        for k in range(8):
            a("  v_mov_b32 v%d, v%d" % (hA + 8 + k, hA + k))
        a("  s_nop 1")
        for k in range(8):
            a("  v_permlane%d_swap_b32 v%d, v%d" % (kind, hA + k, hA + 8 + k))
        for k in range(0, 8, 2):
            pk("v_pk_add_f32", hA + k, hA + k, hA + 8 + k)
    g0, u0 = hA, hA + 4
    for k in range(8):
        round_bf16(hA + k)
    a("  s_mov_b32 s%d, 0xBFB8AA3B      ; -log2(e)" % sT[2])
    for k in range(4):
        a("  v_mul_f32 v%d, s%d, v%d" % (g0 + k, sT[2], g0 + k))
    for k in range(4):
        a("  v_exp_f32 v%d, v%d" % (g0 + k, g0 + k))
    a("  s_nop 0")
    for k in range(4):
        a("  v_add_f32 v%d, 1.0, v%d" % (g0 + k, g0 + k))
    for k in range(4):
        a("  v_rcp_f32 v%d, v%d" % (g0 + k, g0 + k))
    a("  s_nop 0")
    for k in range(4):
        round_bf16(g0 + k)
    for k in range(4):
        a("  v_mul_f32 v%d, v%d, v%d" % (g0 + k, g0 + k, u0 + k))
    for k in range(4):
        round_bf16(g0 + k)
    for k in range(4):
        a("  v_or_b32 v%d, v%d, v%d" % (g0 + k, g0 + k, hTag))
    a("  v_lshlrev_b32 v%d, 4, v0" % T0)
    a("  s_lshl_b32 s%d, s%d, 8" % (sT[1], sFi))
    a("  s_add_u32 s%d, s%d, %d" % (sT[1], sT[1], HH))
    a("  s_mov_b64 exec, 0xffff")
    store_loc(["  buffer_store_dwordx4 v[%d:%d], v%d, s[%d:%d], s%d offen" % (g0, g0 + 3, T0, sWs, sWs + 3, sT[1])], sLoc)
    a("  s_mov_b64 exec, -1")
    a("L_ffn_done:")
    lds_add(hMisc, F_RED, hOne)
    lds_wait(hMisc, F_EWS, 1, T5, sleep=4)
    for k in range(4):
        a("  v_mov_b32 v%d, v%d" % (hA + k, hTag))
    a("  s_lshl_b32 s%d, s%d, 9" % (sT[0], sX))
    a("  s_lshl_b32 s%d, s%d, 4" % (sT[1], sLi))
    a("  s_add_u32 s%d, s%d, s%d" % (sT[0], sT[0], sT[1]))
    a("  s_add_u32 s%d, s%d, %d" % (sT[0], sT[0], EW))
    a("  v_mov_b32 v%d, 0" % T0)
    a("  s_mov_b64 exec, 1")
    store_loc(["  buffer_store_dwordx4 v[%d:%d], v%d, s[%d:%d], s%d offen" % (hA, hA + 3, T0, sWs, sWs + 3, sT[0])], sLoc)
    a("  s_mov_b64 exec, -1")
    a("  s_branch L_B1")

    a("L_down:")
    gp_store(False)
    a("  s_cmp_eq_u32 s%d, 0" % sFv)
    a("  s_cbranch_scc1 L_down_done")
    lds_wait(hMisc, F_RED, 1, T5, sleep=8)
    a("  s_lshr_b32 s%d, s%d, 3" % (sT[0], sFi))
    a("  v_and_b32 v%d, 7, v%d" % (T0, hI))
    a("  v_lshlrev_b32 v%d, 8, v%d" % (T0, T0))
    a("  v_lshl_add_u32 v%d, v%d, 5, v%d" % (T0, hG, T0))
    a("  s_lshl_b32 s%d, s%d, 11" % (sT[1], sT[0]))
    a("  s_add_u32 s%d, s%d, %d" % (sT[1], sT[1], HH))
    lr, lo = a.lab("Lr"), a.lab("Lo")
    a("  s_mov_b32 s%d, 0" % sCnt)
    a("%s:" % lr)
    for k in range(4):
        a("  buffer_load_dwordx4 v[%d:%d], v%d, s[%d:%d], s%d offen offset:%d sc1" % (hA + 4 * k, hA + 4 * k + 3, T0, sWs, sWs + 3, sT[1], (k >> 1) * 128 + (k & 1) * 16))
    a("  s_waitcnt vmcnt(0)")
    tag_retry(range(hA, hA + 16), lr, lo, T2, T3, ffn_sleep)
    a("%s:" % lo)
    a("  s_mov_b64 exec, -1")
    a("  s_mov_b32 s%d, 0x07060302" % sT[2])
    for k in range(8):
        a("  v_perm_b32 v%d, v%d, v%d, s%d" % (hB + k, hA + 2 * k + 1, hA + 2 * k, sT[2]))
    a("  s_nop 1")
    for ct in range(4):
        d = hD + ct * 4
        r = hWd + ct * 8
        a("  v_mfma_f32_16x16x32_bf16 v[%d:%d], v[%d:%d], v[%d:%d], 0" % (d, d + 3, r, r + 3, hB, hB + 3))
        a("  v_mfma_f32_16x16x32_bf16 v[%d:%d], v[%d:%d], v[%d:%d], v[%d:%d]" % (d, d + 3, r + 4, r + 7, hB + 4, hB + 7, d, d + 3))
    a("  v_lshlrev_b32 v%d, 16, v%d" % (T0, hI))
    a("  v_lshl_add_u32 v%d, v%d, 4, v%d" % (T0, hG, T0))
    a("  s_and_b32 s%d, s%d, 7" % (sT[1], sFi))
    a("  s_lshl_b32 s%d, s%d, 13" % (sT[1], sT[1]))
    a("  s_lshl_b32 s%d, s%d, 6" % (sT[2], sT[0]))
    a("  s_add_u32 s%d, s%d, s%d" % (sT[1], sT[1], sT[2]))
    a("  s_add_u32 s%d, s%d, %d" % (sT[1], sT[1], DP))
    a("  s_nop 7")
    for i in range(16):
        tag(hD + i)
    a("  s_mov_b64 exec, s[%d:%d]" % (sLo8, sLo8 + 1))
    for ct in range(4):
        a("  buffer_store_dwordx4 v[%d:%d], v%d, s[%d:%d], s%d offen sc1" % (hD + ct * 4, hD + ct * 4 + 3, T0, sWs, sWs + 3, sT[1]))
        if ct < 3:
            a("  s_add_u32 s%d, s%d, 2048" % (sT[1], sT[1]))
    a("  s_mov_b64 exec, -1")
    a("  s_waitcnt vmcnt(0)")
    a("L_down_done:")
    lds_add(hMisc, F_DOWN, hOne)
    a("  s_branch L_B1")

    a("L_stats:")
    gp_store(False)
    lds_wait(hMisc, F_ST, 4, T5, sleep=st_sleep)
    a("  v_lshl_add_u32 v%d, v%d, 3, v%d" % (T0, hI, hMisc))
    mw, lw = hA, hA + 1
    a("  ds_read_b64 v[%d:%d], v%d offset:%d" % (mw, mw + 1, T0, SSTAT))
    a("  s_waitcnt lgkmcnt(0)")
    Mg, Lg, t_ = hA + 4, hA + 5, hA + 2
    a("  v_mov_b32 v%d, v%d" % (Mg, mw))
    a("  s_nop 1")
    a("  v_max_f32_dpp v%d, v%d, v%d row_ror:4 %s" % (Mg, Mg, Mg, DPP))
    a("  s_nop 1")
    a("  v_max_f32_dpp v%d, v%d, v%d row_ror:8 %s" % (Mg, Mg, Mg, DPP))
    a("  s_mov_b32 s%d, 0x3FB8AA3B" % sT[2])
    a("  v_sub_f32 v%d, v%d, v%d" % (t_, mw, Mg))
    a("  v_mul_f32 v%d, s%d, v%d" % (t_, sT[2], t_))
    a("  v_exp_f32 v%d, v%d" % (t_, t_))
    a("  s_nop 0")
    a("  v_mul_f32 v%d, v%d, v%d" % (Lg, lw, t_))
    a("  s_nop 1")
    a("  v_add_f32_dpp v%d, v%d, v%d row_ror:4 %s" % (Lg, Lg, Lg, DPP))
    a("  s_nop 1")
    a("  v_add_f32_dpp v%d, v%d, v%d row_ror:8 %s" % (Lg, Lg, Lg, DPP))
    a("  s_nop 1")
    a("  v_mov_b32_dpp v%d, v%d row_shl:1 %s bound_ctrl:0" % (Mg + 2, Mg, DPP))
    a("  v_mov_b32_dpp v%d, v%d row_shl:1 %s bound_ctrl:0" % (Mg + 3, Lg, DPP))
    a("  s_lshl_b32 s%d, s%d, 3" % (sT[0], sB))
    a("  s_add_u32 s%d, s%d, s%d" % (sT[0], sT[0], sX))
    a("  s_lshl_b32 s%d, s%d, 7" % (sT[0], sT[0]))
    a("  s_add_u32 s%d, s%d, %d" % (sT[0], sT[0], ST))
    a("  s_lshl_b32 s%d, s%d, 5" % (sT[1], sJ))
    a("  s_add_u32 s%d, s%d, s%d" % (sT[1], sT[1], sT[0]))
    for k in range(4):
        tag(Mg + k)
    a("  v_lshlrev_b32 v%d, 3, v%d" % (T1, hI))
    lds_wait(hMisc, F_LOC, 1, T5)
    a("  s_lshr_b32 s%d, s%d, 1" % (sLoc, sT[7]))
    a("  s_mov_b64 exec, 5")
    store_loc(["  buffer_store_dwordx4 v[%d:%d], v%d, s[%d:%d], s%d offen" % (Mg, Mg + 3, T1, sWs, sWs + 3, sT[1])], sLoc)
    a("  s_mov_b64 exec, -1")
    a("  v_lshrrev_b32 v%d, 1, v%d" % (T1, hI))
    a("  v_lshlrev_b32 v%d, 4, v%d" % (T1, T1))
    mj = hA + 8
    lr, lo = a.lab("Lr"), a.lab("Lo")
    a("  s_mov_b32 s%d, 0" % sCnt)
    a("%s:" % lr)
    a("  buffer_load_dwordx4 v[%d:%d], v%d, s[%d:%d], s%d offen sc1" % (mj, mj + 3, T1, sWs, sWs + 3, sT[0]))
    a("  s_waitcnt vmcnt(0)")
    tag_retry(range(mj, mj + 4), lr, lo, T2, T3, ffn_sleep)
    a("%s:" % lo)
    a("  s_mov_b64 exec, -1")
    a("  v_and_b32 v%d, 1, v%d" % (T2, hI))
    a("  v_cmp_eq_u32 vcc, 1, v%d" % T2)
    a("  s_nop 1")
    a("  v_cndmask_b32 v%d, v%d, v%d, vcc" % (mj, mj, mj + 2))
    a("  v_cndmask_b32 v%d, v%d, v%d, vcc" % (mj + 1, mj + 1, mj + 3))
    lj = mj + 1
    a("  v_and_b32 v%d, s%d, v%d" % (mj, sNotFF, mj))
    a("  v_and_or_b32 v%d, v%d, s%d, v%d" % (lj, lj, sNotFF, hMid))
    M2, L2 = hA + 12, hA + 13
    a("  v_mov_b32 v%d, v%d" % (M2, mj))
    a("  s_nop 1")
    a("  v_max_f32_dpp v%d, v%d, v%d row_ror:4 %s" % (M2, M2, M2, DPP))
    a("  s_nop 1")
    a("  v_max_f32_dpp v%d, v%d, v%d row_ror:8 %s" % (M2, M2, M2, DPP))
    a("  v_sub_f32 v%d, v%d, v%d" % (t_, mj, M2))
    a("  v_mul_f32 v%d, s%d, v%d" % (t_, sT[2], t_))
    a("  v_exp_f32 v%d, v%d" % (t_, t_))
    a("  s_nop 0")
    a("  v_mul_f32 v%d, v%d, v%d" % (L2, lj, t_))
    a("  s_nop 1")
    a("  v_add_f32_dpp v%d, v%d, v%d row_ror:4 %s" % (L2, L2, L2, DPP))
    a("  s_nop 1")
    a("  v_add_f32_dpp v%d, v%d, v%d row_ror:8 %s" % (L2, L2, L2, DPP))
    a("  v_sub_f32 v%d, v%d, v%d" % (t_, mw, M2))
    a("  v_mul_f32 v%d, s%d, v%d" % (t_, sT[2], t_))
    a("  v_exp_f32 v%d, v%d" % (t_, t_))
    a("  v_rcp_f32 v%d, v%d" % (L2, L2))
    a("  s_nop 0")
    a("  v_mul_f32 v%d, v%d, v%d" % (t_, t_, L2))
    a("  v_and_b32 v%d, 3, v%d" % (T0, hI))
    a("  v_lshlrev_b32 v%d, 4, v%d" % (T0, T0))
    a("  v_lshrrev_b32 v%d, 2, v%d" % (T1, hI))
    a("  v_lshl_add_u32 v%d, v%d, 2, v%d" % (T0, T1, T0))
    a("  v_add_u32 v%d, v%d, v%d" % (T0, T0, hMisc))
    a("  s_mov_b64 exec, 0xffff")
    a("  ds_write_b32 v%d, v%d offset:%d" % (T0, t_, FFAC))
    a("  s_mov_b64 exec, -1")
    a("  s_waitcnt lgkmcnt(0)")
    a("  s_branch L_B1")

    def reduce_hd(base, tmp):
        a("  s_nop 1")
        for k in range(4):
            a("  v_add_f32_dpp v%d, v%d, v%d row_ror:4 %s" % (base + k, base + k, base + k, DPP))
        a("  s_nop 1")
        for k in range(4):
            a("  v_add_f32_dpp v%d, v%d, v%d row_ror:8 %s" % (base + k, base + k, base + k, DPP))
        for kind in (16, 32):
            for k in range(4):
                a("  v_mov_b32 v%d, v%d" % (tmp + k, base + k))
            a("  s_nop 1")
            for k in range(4):
                a("  v_permlane%d_swap_b32 v%d, v%d" % (kind, base + k, tmp + k))
            pk("v_pk_add_f32", base, base, tmp)
            pk("v_pk_add_f32", base + 2, base + 2, tmp + 2)

    a("L_fin_prep:")
    gp_store(False)
    lds_wait(hMisc, F_LATE, 1, T5, sleep=8)
    a("  buffer_load_dwordx2 v[%d:%d], v%d, s[%d:%d], 0 offen" % (hA + 8, hA + 9, hOutOff, sXd, sXd + 3))
    a("  v_lshlrev_b32 v%d, 4, v0" % T0)
    a("  s_lshl_b32 s%d, s%d, 11" % (sT[0], sFidx))
    a("  s_add_u32 s%d, s%d, %d" % (sT[0], sT[0], DP))
    for k in range(4):
        a("  v_mov_b32 v%d, v%d" % (hA + 4 + k, hTag))
    lr, lo = a.lab("Lr"), a.lab("Lo")
    a("  s_mov_b32 s%d, 0" % sCnt)
    a("%s:" % lr)
    NT = " nt" if gnt & 4 else ""
    a("  buffer_load_dwordx4 v[%d:%d], v%d, s[%d:%d], s%d offen sc1%s" % (hA, hA + 3, T0, sWs, sWs + 3, sT[0], NT))
    a("  s_mov_b64 s[%d:%d], exec" % (sT[4], sT[5]))
    a("  s_and_b32 exec_hi, exec_hi, 0xffff")
    ls = a.lab("Ls")
    a("  s_cbranch_execz %s" % ls)
    a("  buffer_load_dwordx4 v[%d:%d], v%d, s[%d:%d], s%d offen offset:1024 sc1%s" % (hA + 4, hA + 7, T0, sWs, sWs + 3, sT[0], NT))
    a("%s:" % ls)
    a("  s_mov_b64 exec, s[%d:%d]" % (sT[4], sT[5]))
    a("  s_waitcnt vmcnt(0)")
    tag_retry(range(hA, hA + 8), lr, lo, T2, T3, ffn_sleep)
    a("%s:" % lo)
    a("  s_mov_b64 exec, -1")
    untag(range(hA, hA + 8))
    pk("v_pk_add_f32", hA, hA, hA + 4)
    pk("v_pk_add_f32", hA + 2, hA + 2, hA + 6)
    reduce_hd(hA, hA + 4)
    hGv = hXf + 4
    for k in range(4):
        round_bf16(hA + k)
    a("  s_mov_b32 s%d, 0xBFB8AA3B" % sT[2])
    for k in range(4):
        a("  v_mul_f32 v%d, s%d, v%d" % (hA + 4 + k, sT[2], hA + k))
    for k in range(4):
        a("  v_exp_f32 v%d, v%d" % (hA + 4 + k, hA + 4 + k))
    a("  s_nop 0")
    for k in range(4):
        a("  v_add_f32 v%d, 1.0, v%d" % (hA + 4 + k, hA + 4 + k))
    for k in range(4):
        a("  v_rcp_f32 v%d, v%d" % (hA + 4 + k, hA + 4 + k))
    a("  s_nop 0")
    for k in range(4):
        a("  v_mul_f32 v%d, v%d, v%d" % (hGv + k, hA + k, hA + 4 + k))
    for k in range(4):
        round_bf16(hGv + k)
    a("  v_lshlrev_b32 v%d, 16, v%d" % (hXf, hA + 8))
    a("  v_and_b32 v%d, s%d, v%d" % (hXf + 1, sHi2, hA + 8))
    a("  v_lshlrev_b32 v%d, 16, v%d" % (hXf + 2, hA + 9))
    a("  v_and_b32 v%d, s%d, v%d" % (hXf + 3, sHi2, hA + 9))
    stamp("prep done")

    a("L_B1:")
    a("  v_lshlrev_b32 v%d, 7, v%d" % (T0, hI))
    a("  v_lshl_add_u32 v%d, v%d, 5, v%d" % (T0, hG, T0))
    a("  s_lshl_b32 s%d, s%d, 14" % (sT[0], sHq))
    a("  s_lshl_b32 s%d, s%d, 11" % (sT[1], sHW))
    a("  s_add_u32 s%d, s%d, s%d" % (sT[0], sT[0], sT[1]))
    a("  s_add_u32 s%d, s%d, %d" % (sT[0], sT[0], OP))
    a("  s_add_u32 s%d, s%d, 8192" % (sT[1], sT[0]))
    a("  v_lshlrev_b32 v%d, 8, v%d" % (T1, hG))
    a("  v_lshl_add_u32 v%d, v%d, 2, v%d" % (T1, hI, T1))
    a("  s_lshl_b32 s%d, s%d, 11" % (sT[2], sHW))
    a("  s_add_u32 s%d, s%d, %d" % (sT[2], sT[2], WOS))
    a("  v_add_u32 v%d, s%d, v%d" % (T1, sT[2], T1))
    hP0, hP1, hQ0 = 157, 158, 159
    sP, sQ = 57, 58
    sSelH = 55
    a("  s_mov_b32 s%d, 0x07060302" % sSelH)
    a("  s_sub_u32 s%d, s%d, 2" % (sT[3], sHW))
    a("  s_lshl_b32 s%d, s%d, 10" % (sT[4], sT[3]))
    a("  s_add_u32 s%d, s%d, %d" % (sT[4], sT[4], WOS))
    a("  v_lshlrev_b32 v%d, 8, v%d" % (hP0, hG))
    a("  v_lshl_add_u32 v%d, v%d, 4, v%d      ; g*256 + i*16" % (hP0, hI, hP0))
    a("  v_add_u32 v%d, s%d, v%d" % (hP0, sT[4], hP0))
    a("  v_lshlrev_b32 v%d, 16, v%d" % (hP1, hG))
    a("  v_lshrrev_b32 v%d, 3, v%d" % (T2, hI))
    a("  v_lshl_add_u32 v%d, v%d, 12, v%d" % (hP1, T2, hP1))
    a("  v_and_b32 v%d, 7, v%d" % (T2, hI))
    a("  v_lshl_add_u32 v%d, v%d, 4, v%d" % (hP1, T2, hP1))
    a("  s_lshl_b32 s%d, s%d, 18" % (sT[3], sT[3]))
    a("  s_lshl_b32 s%d, s%d, 13" % (sT[4], sB))
    a("  s_add_u32 s%d, s%d, s%d" % (sT[3], sT[3], sT[4]))
    a("  s_lshl_b32 s%d, s%d, 7" % (sT[4], sHq))
    a("  s_add_u32 s%d, s%d, s%d" % (sT[3], sT[3], sT[4]))
    a("  s_add_u32 s%d, s%d, %d" % (sP, sT[3], SP))
    a("  v_lshrrev_b32 v%d, 2, v0" % hQ0)
    a("  v_lshlrev_b32 v%d, 7, v%d" % (hQ0, hQ0))
    a("  v_and_b32 v%d, 3, v0" % T2)
    a("  v_lshl_add_u32 v%d, v%d, 4, v%d" % (hQ0, T2, hQ0))
    a("  s_lshr_b32 s%d, s%d, 1" % (sT[3], sFidx))
    a("  s_lshl_b32 s%d, s%d, 12" % (sT[3], sT[3]))
    a("  s_and_b32 s%d, s%d, 1" % (sT[4], sFidx))
    a("  s_lshl_b32 s%d, s%d, 6" % (sT[4], sT[4]))
    a("  s_add_u32 s%d, s%d, s%d" % (sT[3], sT[3], sT[4]))
    a("  s_add_u32 s%d, s%d, %d" % (sQ, sT[3], SP))
    a("  s_barrier                      ; B1")
    stamp("B1")
    lw0, lw1 = a.lab("Lew"), a.lab("Lew")
    a("  s_cmp_lg_u32 s%d, 0" % sHW)
    a("  s_cbranch_scc1 %s" % lw0)
    a("  v_lshlrev_b32 v%d, 4, v0" % T4)
    a("  v_mov_b32 v%d, v%d" % (T5, T4))
    a("  s_lshl_b32 s%d, s%d, 9" % (sT[2], sX))
    a("  s_add_u32 s%d, s%d, %d" % (sT[2], sT[2], EW))
    lr, lo = a.lab("Lr"), a.lab("Lo")
    a("  s_mov_b32 s%d, 0" % sCnt)
    a("  s_mov_b32 exec_hi, 0")
    a("%s:" % lr)
    a("  buffer_load_dwordx4 v[%d:%d], v%d, s[%d:%d], s%d offen sc1" % (hA, hA + 3, T5, sWs, sWs + 3, sT[2]))
    a("  s_waitcnt vmcnt(0)")
    tag_retry(range(hA, hA + 4), lr, lo, T2, T3, 2)
    a("%s:" % lo)
    a("  s_mov_b64 exec, -1")
    lds_add(hMisc, F_EW, hOne)
    a("  s_branch %s" % lw1)
    a("%s:" % lw0)
    lds_wait(hMisc, F_EW, 1, T5)
    a("%s:" % lw1)
    stamp("EW ok")
    lr, lo = a.lab("Lr"), a.lab("Lo")
    a("  s_mov_b32 s%d, 0" % sCnt)
    a("%s:" % lr)
    for rt in range(2):
        a("  buffer_load_dwordx4 v[%d:%d], v%d, s[%d:%d], s%d offen sc1" % (hA + 8 * rt, hA + 8 * rt + 3, T0, sWs, sWs + 3, sT[rt]))
        a("  buffer_load_dwordx4 v[%d:%d], v%d, s[%d:%d], s%d offen offset:16 sc1" % (hA + 8 * rt + 4, hA + 8 * rt + 7, T0, sWs, sWs + 3, sT[rt]))
    a("  s_waitcnt vmcnt(0)")
    tag_retry(range(hA, hA + 16), lr, lo, T2, T3, hop_sleep)
    a("%s:" % lo)
    a("  s_mov_b64 exec, -1")
    stamp("hop1 ok")
    for k in range(8):
        a("  v_perm_b32 v%d, v%d, v%d, s%d" % (hB + k, hA + 2 * k + 1, hA + 2 * k, sSelH))
    a("  s_nop 1")
    for rt in range(2):
        for ct in range(4):
            d = hD + (rt * 4 + ct) * 4
            a("  v_mfma_f32_16x16x32_bf16 v[%d:%d], v[%d:%d], v[%d:%d], 0" % (d, d + 3, hB + 4 * rt, hB + 4 * rt + 3, hW + ct * 4, hW + ct * 4 + 3))
    a("  s_nop 0")
    for n in range(8):
        d = hD + n * 4
        pk("v_pk_add_f32", d, d, d + 2)
        a("  v_add_f32 v%d, v%d, v%d" % (d, d, d + 1))
    for rt in range(2):
        for ct in range(4):
            d = hD + (rt * 4 + ct) * 4
            a("  ds_write_b32 v%d, v%d offset:%d" % (T1, d, rt * 1024 + ct * 64))
    a("  s_waitcnt lgkmcnt(0)")
    a("  s_barrier")
    a("  s_cmp_eq_u32 s%d, 0" % sHW)
    a("  s_cbranch_scc1 L_hop2")
    a("  s_cmp_eq_u32 s%d, 1" % sHW)
    a("  s_cbranch_scc1 L_H_done")
    for w in range(4):
        a("  ds_read_b128 v[%d:%d], v%d offset:%d" % (hA + 4 * w, hA + 4 * w + 3, hP0, w * 2048))
    a("  s_waitcnt lgkmcnt(2)")
    for k in (0, 2):
        pk("v_pk_add_f32", hA + k, hA + k, hA + 4 + k)
    a("  s_waitcnt lgkmcnt(0)")
    for k in (0, 2):
        pk("v_pk_add_f32", hA + 8 + k, hA + 8 + k, hA + 12 + k)
    for k in (0, 2):
        pk("v_pk_add_f32", hA + k, hA + k, hA + 8 + k)
    for k in range(4):
        tag(hA + k)
    a("  buffer_store_dwordx4 v[%d:%d], v%d, s[%d:%d], s%d offen sc1" % (hA, hA + 3, hP1, sWs, sWs + 3, sP))
    a("  s_endpgm")

    a("L_hop2:")
    lr, lo = a.lab("Lr"), a.lab("Lo")
    a("  s_mov_b32 s%d, 0" % sCnt)
    a("%s:" % lr)
    a("  buffer_load_dwordx4 v[%d:%d], v%d, s[%d:%d], s%d offen sc1" % (hA, hA + 3, hQ0, sWs, sWs + 3, sQ))
    a("  buffer_load_dwordx4 v[%d:%d], v%d, s[%d:%d], s%d offen offset:2048 sc1" % (hA + 4, hA + 7, hQ0, sWs, sWs + 3, sQ))
    a("  s_waitcnt vmcnt(0)")
    tag_retry(range(hA, hA + 8), lr, lo, T2, T3, hop_sleep)
    a("%s:" % lo)
    a("  s_mov_b64 exec, -1")
    stamp("hop2 ok")
    untag(range(hA, hA + 8))
    pk("v_pk_add_f32", hA, hA, hA + 4)
    pk("v_pk_add_f32", hA + 2, hA + 2, hA + 6)
    reduce_hd(hA, hA + 4)
    for k in range(4):
        round_bf16(hA + k)
    for k in range(4):
        a("  v_mul_f32 v%d, v%d, v%d" % (hA + k, hA + k, hGv + k))
    for k in range(4):
        round_bf16(hA + k)
    for k in range(4):
        a("  v_add_f32 v%d, v%d, v%d" % (hA + k, hA + k, hXf + k))
    a("  v_cvt_pk_bf16_f32 v%d, v%d, v%d" % (hA, hA, hA + 1))
    a("  v_cvt_pk_bf16_f32 v%d, v%d, v%d" % (hA + 1, hA + 2, hA + 3))
    a("  s_mov_b64 exec, 15")
    a("  buffer_store_dwordx2 v[%d:%d], v%d, s[%d:%d], 0 offen" % (hA, hA + 1, hOutOff, sOut, sOut + 3))
    a("  s_mov_b64 exec, -1")
    le = a.lab("Le")
    a("  s_cmp_lg_u32 s2, 0")
    a("  s_cbranch_scc1 %s" % le)
    a("  s_add_u32 s%d, s%d, 1" % (sT[0], sEp))
    a("  v_mov_b32 v%d, s%d" % (hA + 2, sT[0]))
    a("  v_mov_b32 v%d, %d" % (T0, EPOCH))
    a("  s_mov_b64 exec, 1")
    a("  buffer_store_dword v%d, v%d, s[%d:%d], 0 offen" % (hA + 2, T0, sWs, sWs + 3))
    a("  s_mov_b64 exec, -1")
    a("%s:" % le)
    stamp("end")
    if dbgtime:
        a("  s_memrealtime s[98:99]")
        a("  s_load_dwordx2 s[92:93], s[0:1], 80")
        a("  s_waitcnt lgkmcnt(0)")
        a("  s_mov_b32 s94, 256")
        a("  s_mov_b32 s95, 0x20000")
        a("  s_not_b32 s100, s100")
        a("  v_mov_b32 v%d, s100" % hA)
        a("  v_mov_b32 v%d, s98" % (hA + 1))
        a("  v_mov_b32 v%d, 0" % T0)
        a("  s_mov_b64 exec, 1")
        a("  buffer_atomic_umax v%d, v%d, s[92:95], 0 offen sc1" % (hA, T0))
        a("  buffer_atomic_umax v%d, v%d, s[92:95], 0 offen offset:4 sc1" % (hA + 1, T0))
        a("  s_mov_b64 exec, -1")
    a("L_tsdump:")
    if ts:
        a("  s_waitcnt lgkmcnt(0)")
        a("  s_lshl_b32 s%d, s2, 8" % sT[0])
        a("  s_add_u32 s%d, s%d, %d" % (sT[0], sT[0], TSOFF + 0x10000))
        a("  v_mov_b32 v%d, 0" % T2)
        a("  s_mov_b64 exec, 1")
        for i in range(len(names["H"])):
            a("  v_mov_b32 v%d, s%d" % (hA, TS0 + 2 * i))
            a("  v_mov_b32 v%d, s%d" % (hA + 1, TS0 + 2 * i + 1))
            a("  buffer_store_dwordx2 v[%d:%d], v%d, s[%d:%d], s%d offen offset:%d" % (hA, hA + 1, T2, sWs, sWs + 3, sT[0], 8 * i))
            a("  s_waitcnt vmcnt(0)")
        a("  s_mov_b64 exec, -1")
    a("  s_waitcnt vmcnt(0)")
    a("L_H_done:")
    a("L_end:")
    a("  s_endpgm")
    a("L_code_end:")

    lines = a.lines
    iH = lines.index("L_H:")
    iB0 = [k for k in range(iH, len(lines)) if "s_barrier" in lines[k] and "B0" in lines[k]][0]
    iE = iB0 + 1
    if ts and "s_memrealtime" in lines[iE]:
        iE += 1
    hpro = lines[iH + 1:iE]
    rest = lines[:iH] + ["L_H2:"] + lines[iE:]
    ib = [k for k, l in enumerate(rest) if l.strip() == "s_cbranch_scc1 L_H"][0]
    if layout:
        rest = rest[:ib] + ["  s_cbranch_scc0 L_S"] + hpro + ["  s_branch L_H2"] + rest[ib + 1:]
    else:
        rest = lines
    a.lines = rest
    body = a.text()
    s = HEADER
    s += "; @launch grid=(256,1,1) block=(512,1,1) lds=%d\n" % LDS_TOTAL
    s += '.amdgcn_target "amdgcn-amd-amdhsa--gfx950"\n.text\n'
    s += ".globl %s\n.p2align 8\n.type %s,@function\n%s:\n" % (KNAME, KNAME, KNAME)
    s += body
    s += """
.section .rodata,"a"
.p2align 6
.amdhsa_kernel %s
  .amdhsa_next_free_vgpr %d
  .amdhsa_next_free_sgpr 102
  .amdhsa_accum_offset %d
  .amdhsa_group_segment_fixed_size 0
  .amdhsa_kernarg_size 96
  .amdhsa_user_sgpr_count 2
  .amdhsa_user_sgpr_kernarg_segment_ptr 1
  .amdhsa_system_sgpr_workgroup_id_x 1
.end_amdhsa_kernel
""" % (KNAME, NV, NV)
    gen.names = names
    return s


if __name__ == "__main__":
    kw = {}
    out = "main.s"
    for arg in sys.argv[1:]:
        if "=" in arg:
            k, v = arg.split("=")
            kw[k] = int(v)
        else:
            out = arg
    open(out, "w").write(gen(**kw))
    import json
    json.dump(gen.names, open(out[:-2] + ".names.json", "w"))
    print("wrote", out)
```

```python
import sys
from asmlib import HEADER, KNAME

QP = 0x000000
GP = 0x080000
HH = 0x0F0000
OP = 0x100000
ST = 0x180000
DP = 0x190000
SP = 0x210000
EPOCH = 0x0FF000
EW = 0x2A0000
TSOFF = 0x0F000000

RING = 32768
MISC = 131072
XN = MISC
XN_STRIDE = 1040
QL = MISC + 8448
QL_STRIDE = 272
WOS = QL + 1088
WOS = (WOS + 255) // 256 * 256
FLG = WOS + 16384
F_H1 = 0; F_H3 = 8; F_QRDY = 16; F_STG = 20; F_ST = 24; F_HOP1 = 32; F_EW = 36; F_RED = 40; F_DOWN = 44; F_LATE = 48; F_EWS = 52; F_LOC = 56; F_MID = 60
SSTAT = 64
FFAC = 192
SPARE = FLG + 256
LDS_TOTAL = SPARE + 4096
assert LDS_TOTAL <= 163840, LDS_TOTAL
SPIN_LIMIT = 200000


class Asm:
    def __init__(self):
        self.lines = []
        self.nlab = 0

    def __call__(self, s=""):
        for l in s.split("\n"):
            self.lines.append(l)

    def lab(self, base="L"):
        self.nlab += 1
        return "%s_%d" % (base, self.nlab)

    def text(self):
        return "\n".join(self.lines) + "\n"


def vr(base, n=1):
    return "v%d" % base if n == 1 else "v[%d:%d]" % (base, base + n - 1)


def sr(base, n=1):
    return "s%d" % base if n == 1 else "s[%d:%d]" % (base, base + n - 1)


DPP = "row_mask:0xf bank_mask:0xf"


def gen(ts=False, dbg=0, rotmode=3, depth=8, noq=0, noffn=0, hop_sleep=0, ew_it=3, dbgtime=0, noh=0, ffn_sleep=24, skip=0, st_sleep=4, late_it=1, uselocal=1, mid_it=2, r4=0, gnt=0, xnt=0, pf=1, b0pos=0, la=1, gplocal=1, early_census=1, layout=1, presm=0, pipe2=0, h2_sleep=0, sprio=0):
    a = Asm()
    sW, sX, sLi, sCnt = 3, 4, 5, 6
    sT = [20, 21, 22, 23, 24, 25, 26, 27]
    TS0 = 68
    nts = [0]

    names = {"S": ["start"], "H": ["start"]}
    role = ["S"]

    def stamp(name):
        if name == 0:
            if ts:
                a("  s_memrealtime s[%d:%d]" % (TS0, TS0 + 1))
            return
        lst = names[role[0]]
        if name not in lst:
            lst.append(name)
        idx = lst.index(name)
        assert TS0 + 2 * idx + 1 <= 101
        if ts:
            a("  s_memrealtime s[%d:%d]" % (TS0 + 2 * idx, TS0 + 2 * idx + 1))

    def lds_wait(vbase, off, n, vtmp, sleep=1):
        l0, l1 = a.lab("Lw"), a.lab("Lwd")
        a("  s_mov_b32 s%d, 0" % sCnt)
        a("%s:" % l0)
        a("  ds_read_b32 v%d, v%d offset:%d" % (vtmp, vbase, off))
        a("  s_waitcnt lgkmcnt(0)")
        a("  v_readfirstlane_b32 s%d, v%d" % (sT[7], vtmp))
        a("  s_cmp_ge_u32 s%d, %d" % (sT[7], n))
        a("  s_cbranch_scc1 %s" % l1)
        a("  s_add_u32 s%d, s%d, 1" % (sCnt, sCnt))
        a("  s_cmp_lt_u32 s%d, %d" % (sCnt, SPIN_LIMIT))
        a("  s_cbranch_scc0 %s" % l1)
        a("  s_sleep %d" % sleep)
        a("  s_branch %s" % l0)
        a("%s:" % l1)

    def lds_add(vbase, off, vone):
        a("  s_mov_b64 exec, 1")
        a("  ds_add_u32 v%d, v%d offset:%d" % (vbase, vone, off))
        a("  s_mov_b64 exec, -1")

    def store_loc(stores, sflag):
        l0, l1 = a.lab("Lsl"), a.lab("Lsl")
        a("  s_cmp_eq_u32 s%d, 0" % sflag)
        a("  s_cbranch_scc1 %s" % l0)
        for st in stores:
            a(st)
        a("  s_branch %s" % l1)
        a("%s:" % l0)
        for st in stores:
            a(st + " sc1")
        a("%s:" % l1)

    def reduce_swap(op, v, t, kind):
        a("  v_mov_b32 v%d, v%d" % (t, v))
        a("  s_nop 1")
        a("  v_permlane%d_swap_b32 v%d, v%d" % (kind, v, t))
        a("  %s v%d, v%d, v%d" % (op, v, v, t))

    a("  s_cmp_ge_u32 s2, 256")
    a("  s_cbranch_scc1 L_end")
    stamp(0)
    if dbgtime:
        a("  s_memrealtime s[100:101]")
    a("  v_lshrrev_b32 v1, 6, v0")
    a("  v_and_b32 v0, 63, v0            ; lane")
    a("  v_readfirstlane_b32 s%d, v1     ; wave id" % sW)
    a("  s_and_b32 s%d, s2, 7" % sX)
    a("  s_lshr_b32 s%d, s2, 3" % sLi)
    a("  s_cmp_ge_u32 s%d, 4" % sW)
    a("  s_cbranch_scc1 L_H")

    sK, sV, sCur = 8, 12, 16
    sBaseW, sRot, sRing, sIss, sOff, sIt = 28, 29, 30, 31, 32, 33
    sOff1 = 50
    sM = 34
    sScale, sHi = 42, 43
    vLane = 0
    vMisc, vOne = 2, 3
    vKo, vVo, vCo = 4, 8, 12
    vKa = 16
    vVa = 20
    vTmp = 28
    vSp = 36
    vPf = 44
    vAcc = 52
    vE = 56
    vSt = 72
    vO = 104
    vQ = 136
    NV = 200

    sWsS = 44
    sEp = 48
    sBaseW1 = 49
    a("L_S:")
    if sprio:
        a("  s_setprio %d" % sprio)
    if pf:
        lpf = a.lab("Lpf")
        a("  s_cmp_lg_u32 s%d, 3" % sW)
        a("  s_cbranch_scc1 %s" % lpf)
        a("  s_and_b32 s%d, s%d, 15" % (sT[0], sLi))
        a("  s_cmp_lg_u32 s%d, 0" % sT[0])
        a("  s_cbranch_scc1 %s" % lpf)
        a("  s_getpc_b64 s[%d:%d]" % (sT[2], sT[3]))
        a("L_pc:")
        a("  v_lshlrev_b32 v%d, 7, v%d" % (vTmp + 2, vLane))
        a("  v_add_u32 v%d, 0x2000, v%d" % (vTmp + 3, vTmp + 2))
        a("  global_load_dword v%d, v%d, s[%d:%d]" % (vSt, vTmp + 2, sT[2], sT[3]))
        a("  v_cmp_gt_u32 vcc, L_code_end-L_pc, v%d" % (vTmp + 3))
        a("  s_and_saveexec_b64 s[%d:%d], vcc" % (sT[4], sT[5]))
        a("  s_cbranch_execz L_pf_done")
        a("  global_load_dword v%d, v%d, s[%d:%d]" % (vSt + 1, vTmp + 3, sT[2], sT[3]))
        a("L_pf_done:")
        a("  s_mov_b64 exec, -1")
        a("%s:" % lpf)
    a("  s_load_dwordx2 s[%d:%d], s[0:1], 8" % (sCur, sCur + 1))
    a("  s_load_dwordx2 s[%d:%d], s[0:1], 16" % (sV, sV + 1))
    a("  s_load_dwordx2 s[%d:%d], s[0:1], 88" % (sWsS, sWsS + 1))
    a("  s_mov_b32 s%d, 0x4000000" % (sCur + 2))
    a("  s_mov_b32 s%d, 0x20000" % (sCur + 3))
    a("  s_lshr_b32 s%d, s%d, 2" % (sT[0], sLi))
    a("  s_lshl_b32 s%d, s%d, 3" % (sT[0], sT[0]))
    a("  s_add_u32 s%d, s%d, s%d" % (sT[0], sT[0], sX))
    a("  s_lshl_b32 s%d, s%d, 2" % (sT[0], sT[0]))
    a("  s_and_b32 s%d, s%d, 3" % (sT[1], sLi))
    a("  s_add_u32 s%d, s%d, s%d" % (sT[0], sT[0], sT[1]))
    a("  s_lshl_b32 s%d, s%d, 18" % (sT[0], sT[0]))
    a("  s_lshl_b32 s%d, s%d, 13" % (sT[1], sW))
    if r4:
        if r4 == 1:
            a("  s_lshl_b32 s%d, s%d, 12" % (sT[2], sLi))
        else:
            a("  s_lshr_b32 s%d, s%d, 2" % (sT[2], sLi))
            a("  s_add_u32 s%d, s%d, s%d" % (sT[2], sT[2], sX))
            a("  s_lshl_b32 s%d, s%d, 12" % (sT[2], sT[2]))
        a("  s_add_u32 s%d, s%d, s%d" % (sT[1], sT[1], sT[2]))
        a("  s_add_u32 s%d, s%d, 4096" % (sT[2], sT[1]))
        a("  s_and_b32 s%d, s%d, 0x7fff" % (sT[1], sT[1]))
        a("  s_and_b32 s%d, s%d, 0x7fff" % (sT[2], sT[2]))
        a("  s_add_u32 s%d, s%d, s%d" % (sBaseW, sT[0], sT[1]))
        a("  s_add_u32 s%d, s%d, s%d" % (sBaseW1, sT[0], sT[2]))
    else:
        a("  s_add_u32 s%d, s%d, s%d" % (sBaseW, sT[0], sT[1]))
        a("  s_add_u32 s%d, s%d, 4096" % (sBaseW1, sBaseW))
    if rotmode == 0:
        sRotR = 2
    elif rotmode == 3:
        sRotR = sLi
    else:
        a("  s_add_u32 s%d, s2, s%d" % (sRot, sLi))
        sRotR = sRot
    a("  s_lshl_b32 s%d, s%d, 15" % (sRing, sW))
    a("  s_mov_b32 s%d, 0" % sIss)
    t0, t1, t2 = vTmp, vTmp + 1, vTmp + 2
    a("  v_lshrrev_b32 v%d, 4, v%d      ; g = l>>4" % (t0, vLane))
    a("  v_and_b32 v%d, 15, v%d         ; c' = l&15" % (t1, vLane))
    for i in range(4):
        a("  v_add_u32 v%d, %d, v%d" % (t2, 4 * i, t0))
        a("  v_xor_b32 v%d, v%d, v%d" % (t2, t2, t1))
        a("  v_lshlrev_b32 v%d, 4, v%d" % (t2, t2))
        a("  v_lshl_add_u32 v%d, v%d, 8, v%d" % (vCo + i, t0, t2))
    a("  v_mov_b32 v%d, %d" % (vMisc, FLG))
    a("  v_mov_b32 v%d, 1" % vOne)
    a("  s_waitcnt lgkmcnt(0)")
    a("  s_barrier                      ; B0")

    def issue_unit(switch=False):
        if switch:
            lsw = a.lab("Lsw")
            a("  s_cmp_lg_u32 s%d, 8" % sIss)
            a("  s_cbranch_scc1 %s" % lsw)
            for i in range(4):
                a("  s_mov_b32 s%d, s%d" % (sCur + i, sV + i))
            for i in range(4):
                a("  v_mov_b32 v%d, v%d" % (vCo + i, vVo + (i & 1)))
            a("%s:" % lsw)
        a("  s_add_u32 s%d, s%d, s%d" % (sT[0], sIss, sRotR))
        a("  s_and_b32 s%d, s%d, 7" % (sT[0], sT[0]))
        a("  s_lshl_b32 s%d, s%d, 15" % (sT[0], sT[0]))
        a("  s_add_u32 s%d, s%d, s%d" % (sOff, sT[0], sBaseW))
        a("  s_add_u32 s%d, s%d, s%d" % (sOff1, sT[0], sBaseW1))
        a("  s_and_b32 s%d, s%d, 3" % (sT[0], sIss))
        a("  s_lshl_b32 s%d, s%d, 13" % (sT[0], sT[0]))
        a("  s_add_u32 m0, s%d, s%d" % (sT[0], sRing))
        a("  s_add_u32 s%d, s%d, 1" % (sIss, sIss))
        a("  s_waitcnt vmcnt(%d)" % (depth - 1))
        for i in range(4):
            a("  buffer_load_dwordx4 v%d, s[%d:%d], s%d offen offset:%d nt lds" % (vCo + i, sCur, sCur + 3, sOff, i * 1024))
            if i < 3:
                a("  s_waitcnt vmcnt(%d)" % (depth - 1))
        a("  s_add_u32 m0, m0, 4096")
        a("  s_waitcnt vmcnt(%d)" % (depth - 1))
        for i in range(4):
            a("  buffer_load_dwordx4 v%d, s[%d:%d], s%d offen offset:%d nt lds" % (vCo + i, sCur, sCur + 3, sOff1, i * 1024))
            if i < 3:
                a("  s_waitcnt vmcnt(%d)" % (depth - 1))

    a("L_fill:")
    a("  s_cmp_lg_u32 s%d, 3" % sIss)
    a("  s_cbranch_scc1 L_fill_go")
    stamp("u2 issued")
    lds_wait(vMisc, F_STG, 4, vTmp + 5)
    stamp("STG ok")
    a("L_fill_go:")
    issue_unit()

    a("  s_cmp_lt_u32 s%d, 4" % sIss)
    a("  s_cbranch_scc1 L_fill")
    a("  s_load_dword s%d, s[%d:%d], 0x%x" % (sEp, sWsS, sWsS + 1, EPOCH))
    a("  s_mov_b32 s%d, 0x4000000" % (sV + 2))
    a("  s_mov_b32 s%d, 0x20000" % (sV + 3))
    a("  s_mov_b32 s%d, 0x10000000" % (sWsS + 2))
    a("  s_mov_b32 s%d, 0x20000" % (sWsS + 3))
    for i in range(2):
        a("  v_add_u32 v%d, %d, v%d" % (t2, 4 * i, t0))
        a("  v_lshlrev_b32 v%d, 1, v%d" % (t2, t2))
        a("  v_xor_b32 v%d, v%d, v%d" % (t2, t2, t1))
        a("  v_lshlrev_b32 v%d, 4, v%d" % (t2, t2))
        a("  v_lshl_add_u32 v%d, v%d, 8, v%d" % (vVo + i, t0, t2))
    for s in range(4):
        a("  v_add_u32 v%d, %d, v%d" % (t2, 4 * s, t0))
        a("  v_xor_b32 v%d, v%d, v%d" % (t2, t2, t1))
        a("  v_lshlrev_b32 v%d, 4, v%d" % (t2, t2))
        a("  v_lshl_add_u32 v%d, v%d, 8, v%d" % (t2, t1, t2))
        a("  v_add_u32 v%d, s%d, v%d" % (vKa + s, sRing, t2))
    t3, t4 = vTmp + 3, vTmp + 4
    a("  v_lshrrev_b32 v%d, 2, v%d" % (t2, t1))
    a("  v_lshl_add_u32 v%d, v%d, 2, v%d    ; row" % (t2, t0, t2))
    a("  v_and_b32 v%d, 7, v%d              ; row&7" % (t3, t2))
    a("  v_lshlrev_b32 v%d, 8, v%d" % (t2, t2))
    a("  v_and_b32 v%d, 3, v%d" % (t4, t1))
    a("  v_lshl_add_u32 v%d, v%d, 3, v%d" % (t2, t4, t2))
    a("  v_add_u32 v%d, s%d, v%d" % (t2, sRing, t2))
    for dt in range(8):
        a("  v_xor_b32 v%d, %d, v%d" % (t4, dt, t3))
        a("  v_lshl_add_u32 v%d, v%d, 5, v%d" % (vVa + dt, t4, t2))
    for i in range(64):
        a("  v_mov_b32 v%d, 0" % (vQ + i))
    a("  v_bfe_u32 v%d, v%d, 2, 2" % (t2, vLane))
    for t in range(4):
        a("  v_cmp_eq_u32 s[%d:%d], %d, v%d" % (sM + 2 * t, sM + 2 * t + 1, t, t2))
    a("  v_and_b32 v%d, 3, v%d" % (t2, vLane))
    a("  v_mul_u32_u24 v%d, %d, v%d" % (t2, QL_STRIDE, t2))
    a("  v_lshl_add_u32 v%d, v%d, 4, v%d" % (t2, t0, t2))
    a("  v_add_u32 v%d, %d, v%d" % (t2, QL, t2))
    a("  s_mov_b32 s%d, 0x3DB504F3      ; 128^-0.5" % sScale)
    a("  s_mov_b32 s%d, 0xffff0000" % sHi)
    stamp("fill done")
    if not noq:
        lds_wait(vMisc, F_QRDY, 4, vTmp + 5)
    stamp("Q ready")
    for t in range(4):
        a("  s_mov_b64 exec, s[%d:%d]" % (sM + 2 * t, sM + 2 * t + 1))
        for s in range(4):
            r = vQ + (t * 4 + s) * 4
            a("  ds_read_b128 v[%d:%d], v%d offset:%d" % (r, r + 3, t2, 64 * s))
    a("  s_mov_b64 exec, -1")
    a("  s_mov_b32 s%d, 0" % sIt)
    a("  s_waitcnt vmcnt(0) lgkmcnt(0)")

    a("L_k:")
    lmid = a.lab("Lmid")
    a("  s_cmp_lg_u32 s%d, 0" % sW)
    a("  s_cbranch_scc1 %s" % lmid)
    a("  s_cmp_lg_u32 s%d, %d" % (sIt, mid_it))
    a("  s_cbranch_scc1 %s" % lmid)
    lds_add(vMisc, F_MID, vOne)
    a("%s:" % lmid)
    for u in range(2):
        if u == 0:
            lsk = a.lab("Lsk")
            a("  s_cmp_lt_u32 s%d, %d" % (sIt, 3 if la == 1 else 2))
            a("  s_cbranch_scc1 %s" % lsk)
            issue_unit(switch=(la == 2))
            a("%s:" % lsk)
        else:
            issue_unit(switch=(la == 1))
        for hf in range(2):
            for s_ in range(4):
                r = vSt + (hf * 4 + s_) * 4
                a("  ds_read_b128 v[%d:%d], v%d offset:%d" % (r, r + 3, vKa + s_, u * 8192 + hf * 4096))
        for hf in range(2):
            a("  s_waitcnt lgkmcnt(%d)" % (4 if hf == 0 else 0))
            t = 2 * u + hf
            for s_ in range(4):
                r = vSt + (hf * 4 + s_) * 4
                q = vQ + (t * 4 + s_) * 4
                c = "0" if (u == 0 and hf == 0 and s_ == 0) else "v[%d:%d]" % (vAcc, vAcc + 3)
                a("  v_mfma_f32_16x16x32_bf16 v[%d:%d], v[%d:%d], v[%d:%d], %s" % (vAcc, vAcc + 3, r, r + 3, q, q + 3, c))
    for i in range(6):
        a("  v_mov_b32 v%d, v%d" % (vSp + i, vSp + i + 2))
    for s in range(4):
        a("  v_xor_b32 v%d, 0x4000, v%d" % (vKa + s, vKa + s))
    c0, c1 = vTmp, vTmp + 1
    e0 = vTmp + 2
    a("  v_cvt_pk_bf16_f32 v%d, v%d, v%d" % (c0, vAcc, vAcc + 1))
    a("  v_cvt_pk_bf16_f32 v%d, v%d, v%d" % (c1, vAcc + 2, vAcc + 3))
    a("  v_lshlrev_b32 v%d, 16, v%d" % (e0, c0))
    a("  v_and_b32 v%d, s%d, v%d" % (e0 + 1, sHi, c0))
    a("  v_lshlrev_b32 v%d, 16, v%d" % (e0 + 2, c1))
    a("  v_and_b32 v%d, s%d, v%d" % (e0 + 3, sHi, c1))
    for i in range(4):
        a("  v_mul_f32 v%d, s%d, v%d" % (e0 + i, sScale, e0 + i))
    a("  v_cvt_pk_bf16_f32 v%d, v%d, v%d" % (vSp + 6, e0, e0 + 1))
    a("  v_cvt_pk_bf16_f32 v%d, v%d, v%d" % (vSp + 7, e0 + 2, e0 + 3))
    a("  s_add_u32 s%d, s%d, 1" % (sIt, sIt))
    a("  s_cmp_lt_u32 s%d, 4" % sIt)
    a("  s_cbranch_scc1 L_k")
    stamp("K done")
    if presm and la == 1:
        issue_unit()

    for i in range(8):
        a("  v_lshlrev_b32 v%d, 16, v%d" % (vE + 2 * i, vSp + i))
        a("  v_and_b32 v%d, s%d, v%d" % (vE + 2 * i + 1, sHi, vSp + i))
    vM, vL, vX = vTmp, vTmp + 1, vTmp + 2
    a("  v_max3_f32 v%d, v%d, v%d, v%d" % (vM, vE, vE + 1, vE + 2))
    for i in range(3, 15, 2):
        a("  v_max3_f32 v%d, v%d, v%d, v%d" % (vM, vM, vE + i, vE + i + 1))
    a("  v_max_f32 v%d, v%d, v%d" % (vM, vM, vE + 15))
    a("  s_nop 1")
    a("  v_max_f32_dpp v%d, v%d, v%d row_ror:4 %s" % (vM, vM, vM, DPP))
    a("  s_nop 1")
    a("  v_max_f32_dpp v%d, v%d, v%d row_ror:8 %s" % (vM, vM, vM, DPP))
    reduce_swap("v_max_f32", vM, vX, 16)
    reduce_swap("v_max_f32", vM, vX, 32)
    a("  s_mov_b32 s%d, 0x3FB8AA3B      ; log2(e)" % sT[0])
    a("  v_mul_f32 v%d, s%d, v%d" % (vX, sT[0], vM))
    for i in range(16):
        a("  v_fma_f32 v%d, v%d, s%d, -v%d" % (vE + i, vE + i, sT[0], vX))
    for i in range(16):
        a("  v_exp_f32 v%d, v%d" % (vE + i, vE + i))
    a("  s_nop 0")
    for i in range(8):
        a("  v_cvt_pk_bf16_f32 v%d, v%d, v%d" % (vSp + i, vE + 2 * i, vE + 2 * i + 1))
    for i in range(4):
        a("  v_pk_add_f32 v[%d:%d], v[%d:%d], v[%d:%d]" % (vE + 2 * i, vE + 2 * i + 1, vE + 2 * i, vE + 2 * i + 1, vE + 8 + 2 * i, vE + 9 + 2 * i))
    for i in range(2):
        a("  v_pk_add_f32 v[%d:%d], v[%d:%d], v[%d:%d]" % (vE + 2 * i, vE + 2 * i + 1, vE + 2 * i, vE + 2 * i + 1, vE + 4 + 2 * i, vE + 5 + 2 * i))
    a("  v_pk_add_f32 v[%d:%d], v[%d:%d], v[%d:%d]" % (vE, vE + 1, vE, vE + 1, vE + 2, vE + 3))
    a("  v_add_f32 v%d, v%d, v%d" % (vL, vE, vE + 1))
    a("  s_nop 1")
    a("  v_add_f32_dpp v%d, v%d, v%d row_ror:4 %s" % (vL, vL, vL, DPP))
    a("  s_nop 1")
    a("  v_add_f32_dpp v%d, v%d, v%d row_ror:8 %s" % (vL, vL, vL, DPP))
    reduce_swap("v_add_f32", vL, vX, 16)
    reduce_swap("v_add_f32", vL, vX, 32)
    a("  s_lshl_b32 s%d, s%d, 5" % (sT[0], sW))
    a("  v_lshlrev_b32 v%d, 3, v%d" % (vX, vLane))
    a("  v_add_u32 v%d, s%d, v%d" % (vX, sT[0], vX))
    a("  v_add_u32 v%d, v%d, v%d" % (vX, vMisc, vX))
    a("  s_mov_b64 exec, 15")
    a("  ds_write_b64 v%d, v[%d:%d] offset:%d" % (vX, vM, vM + 1, SSTAT))
    a("  s_waitcnt lgkmcnt(0)")
    a("  s_mov_b64 exec, -1")
    lds_add(vMisc, F_ST, vOne)

    for i in range(32):
        a("  v_mov_b32 v%d, 0" % (vO + i))
    a("  s_mov_b32 s%d, 0" % sIt)
    a("L_v:")
    a("  v_mov_b32 v%d, v%d" % (vPf, vSp))
    a("  v_mov_b32 v%d, v%d" % (vPf + 1, vSp + 1))
    for k, sh in ((2, 4), (4, 8), (6, 12)):
        a("  v_mov_b32_dpp v%d, v%d row_shl:%d %s bound_ctrl:0" % (vPf + k, vSp, sh, DPP))
        a("  v_mov_b32_dpp v%d, v%d row_shl:%d %s bound_ctrl:0" % (vPf + k + 1, vSp + 1, sh, DPP))
    for i in range(6):
        a("  v_mov_b32 v%d, v%d" % (vSp + i, vSp + i + 2))
    lew = a.lab("Lew")
    a("  s_cmp_lg_u32 s%d, 0" % sW)
    a("  s_cbranch_scc1 %s" % lew)
    lew2 = a.lab("Lew")
    a("  s_cmp_lg_u32 s%d, %d" % (sIt, late_it))
    a("  s_cbranch_scc1 %s" % lew2)
    lds_add(vMisc, F_LATE, vOne)
    a("%s:" % lew2)
    a("  s_cmp_lg_u32 s%d, %d" % (sIt, ew_it))
    a("  s_cbranch_scc1 %s" % lew)
    lds_add(vMisc, F_EWS, vOne)
    a("%s:" % lew)
    for u in range(2):
        if u == 0 and la == 1:
            if presm:
                lsk = a.lab("Lsk")
                a("  s_cmp_eq_u32 s%d, 0" % sIt)
                a("  s_cbranch_scc1 %s" % lsk)
                issue_unit()
                a("%s:" % lsk)
            else:
                issue_unit()
        else:
            lv_else, lv_done = a.lab("Lve"), a.lab("Lvd")
            a("  s_cmp_ge_u32 s%d, 3" % sIt)
            a("  s_cbranch_scc1 %s" % lv_else)
            issue_unit()
            a("  s_branch %s" % lv_done)
            a("%s:" % lv_else)
            a("  s_waitcnt vmcnt(%d)" % (8 if u == 0 else 0))
            a("%s:" % lv_done)
        for dt in range(8):
            r = vSt + dt * 4
            a("  ds_read_b64_tr_b16 v[%d:%d], v%d offset:%d" % (r, r + 1, vVa + dt, u * 8192))
            a("  ds_read_b64_tr_b16 v[%d:%d], v%d offset:%d" % (r + 2, r + 3, vVa + dt, u * 8192 + 4096))
        for dt in range(8):
            r = vSt + dt * 4
            o = vO + dt * 4
            if dt % 2 == 0:
                a("  s_waitcnt lgkmcnt(%d)" % (12 - 2 * dt if dt < 6 else 0))
            a("  v_mfma_f32_16x16x32_bf16 v[%d:%d], v[%d:%d], v[%d:%d], v[%d:%d]" % (o, o + 3, r, r + 3, vPf + 4 * u, vPf + 4 * u + 3, o, o + 3))
    for dt in range(8):
        a("  v_xor_b32 v%d, 0x4000, v%d" % (vVa + dt, vVa + dt))
    a("  s_add_u32 s%d, s%d, 1" % (sIt, sIt))
    a("  s_cmp_lt_u32 s%d, 4" % sIt)
    a("  s_cbranch_scc1 L_v")
    stamp("V done")
    a("  v_and_b32 v%d, 15, v%d" % (t1, vLane))
    a("  v_lshrrev_b32 v%d, 4, v%d" % (t0, vLane))
    a("  v_lshlrev_b32 v%d, 9, v%d" % (t2, t1))
    a("  v_lshl_add_u32 v%d, v%d, 4, v%d" % (t2, t0, t2))
    a("  v_add_u32 v%d, s%d, v%d" % (t2, sRing, t2))
    a("  v_cmp_gt_u32 vcc, 4, v%d" % t1)
    a("  s_nop 4")
    a("  s_mov_b64 exec, vcc")
    for dt in range(8):
        a("  ds_write_b128 v%d, v[%d:%d] offset:%d" % (t2, vO + dt * 4, vO + dt * 4 + 3, dt * 64))
    a("  s_mov_b64 exec, -1")
    vR0, vR1, vR2, vR3 = vPf, vPf + 1, vPf + 2, vPf + 3
    a("  v_lshlrev_b32 v%d, 9, v%d" % (vR0, t0))
    a("  v_lshl_add_u32 v%d, v%d, 4, v%d      ; h*512 + c*16" % (vR0, t1, vR0))
    a("  v_lshl_add_u32 v%d, v%d, 4, v%d      ; FLG + h*16" % (vR1, t0, vMisc))
    a("  v_lshlrev_b32 v%d, 14, v%d" % (vR2, t0))
    a("  v_lshrrev_b32 v%d, 3, v%d" % (t3, t1))
    a("  v_lshl_add_u32 v%d, v%d, 11, v%d" % (vR2, t3, vR2))
    a("  v_and_b32 v%d, 7, v%d" % (t3, t1))
    a("  v_lshl_add_u32 v%d, v%d, 4, v%d" % (vR2, t3, vR2))
    a("  s_lshl_b32 s%d, s%d, 16" % (sT[0], sX))
    a("  s_lshr_b32 s%d, s%d, 4" % (sT[1], sLi))
    a("  s_lshl_b32 s%d, s%d, 13" % (sT[1], sT[1]))
    a("  s_add_u32 s%d, s%d, s%d" % (sT[0], sT[0], sT[1]))
    a("  s_and_b32 s%d, s%d, 15" % (sT[1], sLi))
    a("  s_lshl_b32 s%d, s%d, 7" % (sT[1], sT[1]))
    a("  s_add_u32 s%d, s%d, s%d" % (sT[0], sT[0], sT[1]))
    a("  s_add_u32 s%d, s%d, %d" % (sT[0], sT[0], OP))
    a("  s_add_u32 s%d, s%d, 1" % (sT[1], sEp))
    a("  s_and_b32 s%d, s%d, 0xff" % (sT[1], sT[1]))
    a("  v_mov_b32 v%d, s%d" % (vR3, sT[1]))
    a("  s_add_u32 s%d, s%d, 4096" % (sT[1], sT[0]))
    a("  s_mov_b32 s%d, 0xffff0000" % sT[2])
    lds_wait(vMisc, F_LOC, 1, t3)
    a("  s_lshr_b32 s%d, s%d, 1" % (sT[3], sT[7]))
    a("  s_waitcnt lgkmcnt(0)")
    a("  s_barrier                      ; B1")
    a("  s_cmp_lg_u32 s%d, 0" % sW)
    a("  s_cbranch_scc1 L_S_done")
    sWs = sWsS
    for w in range(4):
        a("  ds_read_b128 v[%d:%d], v%d offset:%d" % (vSt + w * 8, vSt + w * 8 + 3, vR0, (w & 1) * 32768))
        a("  ds_read_b128 v[%d:%d], v%d offset:%d" % (vSt + w * 8 + 4, vSt + w * 8 + 7, vR0, (w & 1) * 32768 + 256))
        if w == 1:
            a("  v_add_u32 v%d, 0x10000, v%d" % (vR0, vR0))
    a("  ds_read_b128 v[%d:%d], v%d offset:%d" % (vE, vE + 3, vR1, FFAC))
    a("  s_waitcnt lgkmcnt(0)")
    for i in range(8):
        a("  v_mul_f32 v%d, v%d, v%d" % (vO + i, vSt + i, vE))
    for w in range(1, 4):
        for i in range(8):
            a("  v_fmac_f32 v%d, v%d, v%d" % (vO + i, vSt + w * 8 + i, vE + w))
    for i in range(8):
        a("  v_cvt_pk_bf16_f32 v%d, v%d, v%d" % (vO + i, vO + i, vO + i))
    for i in range(8):
        a("  v_and_or_b32 v%d, v%d, s%d, v%d" % (vO + i, vO + i, sT[2], vR3))
    store_loc(["  buffer_store_dwordx4 v[%d:%d], v%d, s[%d:%d], s%d offen" % (vO, vO + 3, vR2, sWs, sWs + 3, sT[0]),
               "  buffer_store_dwordx4 v[%d:%d], v%d, s[%d:%d], s%d offen" % (vO + 4, vO + 7, vR2, sWs, sWs + 3, sT[1])], sT[3])
    stamp("published")
    a("  s_barrier                      ; B2")
    if ts:
        a("  s_waitcnt lgkmcnt(0)")
        a("  s_lshl_b32 s%d, s2, 8" % sT[0])
        a("  s_add_u32 s%d, s%d, %d" % (sT[0], sT[0], TSOFF))
        a("  v_mov_b32 v%d, 0" % t2)
        a("  s_mov_b64 exec, 1")
        for i in range(len(names["S"])):
            a("  v_mov_b32 v%d, s%d" % (vO, TS0 + 2 * i))
            a("  v_mov_b32 v%d, s%d" % (vO + 1, TS0 + 2 * i + 1))
            a("  buffer_store_dwordx2 v[%d:%d], v%d, s[%d:%d], s%d offen offset:%d" % (vO, vO + 1, t2, sWs, sWs + 3, sT[0], 8 * i))
            a("  s_waitcnt vmcnt(0)")
        a("  s_mov_b64 exec, -1")
    a("L_S_done:")
    a("  s_endpgm")

    role[0] = "H"
    a("L_H:")
    sHW = 7
    sXd, sWq, sWs, sGU, sWd, sWo, sOut = 8, 12, 16, 32, 36, 40, 44
    sEp = 28
    sTag = 29
    sNotFF = 30
    sTag4 = 31
    sHi2 = 48
    sFi = 49
    sSelA, sSelB = 50, 54
    sB = 51; sJ = 52; sFidx = 53
    sKb2 = 55
    sLo8 = 60
    sFv = 3
    sLoc = 56
    sDbg = 64
    sHq = 62
    sWoStg = 63
    hMisc, hOne = 2, 3
    hG, hI = 4, 5
    hT = 6
    hX = 16
    hF = 24
    hY = 40
    hA = 56
    hB = 72
    hD = 88
    hW = 120
    hXf = 136
    hZ = 144
    hTag = 156
    hWd = 160
    hMid = 197
    T0, T1, T2, T3, T4, T5 = hT, hT + 1, hT + 2, hT + 3, hT + 4, hT + 5
    hTr, hXn, hW1k, hTrG, hOutOff = hZ + 1, hZ + 2, hZ + 4, hZ + 5, hZ + 6

    a("  s_load_dwordx2 s[%d:%d], s[0:1], 0" % (sXd, sXd + 1))
    a("  s_load_dwordx2 s[%d:%d], s[0:1], 24" % (sWq, sWq + 1))
    a("  s_load_dwordx4 s[56:59], s[0:1], 48")
    a("  s_load_dwordx2 s[%d:%d], s[0:1], 88" % (sWs, sWs + 1))
    a("  v_lshlrev_b32 v%d, 2, v0" % T0)
    a("  v_add_u32 v%d, %d, v%d" % (T0, FLG, T0))
    a("  v_mov_b32 v%d, 0" % T1)
    a("  ds_write_b32 v%d, v%d" % (T0, T1))
    a("  s_sub_u32 s%d, s%d, 4" % (sHW, sW))
    a("  s_mov_b32 s%d, 8192" % (sXd + 2))
    a("  s_mov_b32 s%d, 0x20000" % (sXd + 3))
    a("  v_lshrrev_b32 v%d, 5, v0" % T0)
    a("  s_lshl_b32 s%d, s%d, 1" % (sT[0], sHW))
    a("  v_add_u32 v%d, s%d, v%d          ; row b" % (T0, sT[0], T0))
    a("  v_and_b32 v%d, 31, v0" % T1)
    a("  v_lshlrev_b32 v%d, 5, v%d" % (T1, T1))
    a("  v_lshl_add_u32 v%d, v%d, 10, v%d" % (T2, T0, T1))
    a("  s_waitcnt lgkmcnt(0)")
    a("  buffer_load_dwordx4 v[%d:%d], v%d, s[%d:%d], 0 offen%s" % (hX, hX + 3, T2, sXd, sXd + 3, " nt" if xnt else ""))
    a("  buffer_load_dwordx4 v[%d:%d], v%d, s[%d:%d], 0 offen offset:16%s" % (hX + 4, hX + 7, T2, sXd, sXd + 3, " nt" if xnt else ""))
    a("  v_lshrrev_b32 v%d, 3, v0" % T3)
    a("  v_and_b32 v%d, 7, v0" % T4)
    a("  v_lshlrev_b32 v%d, 4, v%d" % (T4, T4))
    a("  v_lshl_add_u32 v%d, v%d, 13, v%d" % (T5, T3, T4))
    a("  s_and_b32 s%d, s%d, 3" % (sJ, sLi))
    a("  s_lshr_b32 s%d, s%d, 2" % (sB, sLi))
    a("  s_lshl_b32 s%d, s%d, 2" % (sT[0], sJ))
    a("  s_add_u32 s%d, s%d, s%d" % (sT[0], sT[0], sHW))
    a("  s_lshl_b32 s%d, s%d, 18" % (sT[0], sT[0]))
    a("  s_lshl_b32 s%d, s%d, 3" % (sT[1], sX))
    a("  s_add_u32 s%d, s%d, s%d" % (sT[1], sT[1], sB))
    a("  s_lshl_b32 s%d, s%d, 7" % (sT[1], sT[1]))
    a("  s_add_u32 s%d, s%d, s%d" % (sT[0], sT[0], sT[1]))
    a("  s_lshr_b32 s%d, s%d, 1" % (sT[1], sHW))
    a("  s_lshl_b32 s%d, s%d, 15" % (sT[1], sT[1]))
    a("  s_and_b32 s%d, s%d, 1" % (sT[2], sHW))
    a("  s_lshl_b32 s%d, s%d, 12" % (sT[2], sT[2]))
    a("  s_add_u32 s%d, s%d, s%d" % (sT[1], sT[1], sT[2]))
    a("  s_add_u32 s%d, s%d, 24576" % (sT[1], sT[1]))
    a("  s_mov_b32 s%d, 0x400000" % (sWq + 2))
    a("  s_mov_b32 s%d, 0x20000" % (sWq + 3))
    for n in range(4):
        a("  s_add_u32 m0, s%d, %d" % (sT[1], n * 1024))
        if n:
            a("  s_add_u32 s%d, s%d, %d" % (sT[0], sT[0], 8 * 8192))
        else:
            a("  s_load_dword s%d, s[%d:%d], 0x%x" % (sEp, sWs, sWs + 1, EPOCH))
        a("  buffer_load_dwordx4 v%d, s[%d:%d], s%d offen nt lds" % (T5, sWq, sWq + 3, sT[0]))
    if b0pos == 0:
        a("  s_barrier                      ; B0")
        stamp("B0")
    a("  s_load_dwordx2 s[%d:%d], s[0:1], 64" % (sWd, sWd + 1))
    a("  s_load_dwordx2 s[%d:%d], s[0:1], 32" % (sWo, sWo + 1))
    a("  s_load_dwordx2 s[%d:%d], s[0:1], 72" % (sOut, sOut + 1))
    a("  s_load_dwordx2 s[%d:%d], s[0:1], 80" % (sDbg, sDbg + 1))
    a("  s_lshr_b32 s%d, s%d, 3" % (sT[4], sLi))
    a("  s_lshl_b32 s%d, s%d, 3" % (sT[4], sT[4]))
    a("  s_add_u32 s%d, s%d, s%d" % (sT[4], sT[4], sX))
    a("  s_cmp_lt_u32 s%d, 28" % sT[4])
    a("  s_cselect_b32 s%d, 1, 0" % sFv)
    a("  s_min_u32 s%d, s%d, 27" % (sT[4], sT[4]))
    a("  s_lshl_b32 s%d, s%d, 3" % (sFi, sT[4]))
    a("  s_and_b32 s%d, s%d, 7" % (sT[5], sLi))
    a("  s_add_u32 s%d, s%d, s%d" % (sFi, sFi, sT[5]))
    a("  s_and_b32 s%d, s%d, 3" % (sKb2, sFi))
    a("  s_lshl_b32 s%d, s%d, 2" % (sT[3], sKb2))
    a("  s_add_u32 s%d, s%d, s%d" % (sT[3], sT[3], sHW))
    a("  s_mul_i32 s%d, s%d, %d" % (sT[3], sT[3], 32 * 3584))
    a("  s_lshl_b32 s%d, s%d, 7" % (sT[4], sT[4]))
    a("  s_add_u32 s%d, s%d, s%d" % (sT[3], sT[3], sT[4]))
    a("  s_bitcmp1_b32 s%d, 2" % sFi)
    a("  s_cselect_b32 s%d, s58, s56" % sGU)
    a("  s_cselect_b32 s%d, s59, s57" % (sGU + 1))
    a("  s_mov_b32 s%d, 1835008" % (sGU + 2))
    a("  s_mov_b32 s%d, 0x20000" % (sGU + 3))
    a("  v_lshl_add_u32 v%d, v%d, 10, v%d" % (hW1k, T3, T4))
    a("  v_mul_u32_u24 v%d, 3584, v%d" % (T3, T3))
    a("  v_add_u32 v%d, v%d, v%d" % (T3, T3, T4))
    for n in range(4):
        a("  s_add_u32 m0, s%d, %d" % (sT[1], 65536 + n * 1024))
        if n:
            a("  s_add_u32 s%d, s%d, %d" % (sT[3], sT[3], 8 * 3584))
        else:
            a("  s_mov_b32 s%d, 0xffff0000" % sHi2)
        a("  buffer_load_dwordx4 v%d, s[%d:%d], s%d offen nt lds" % (T3, sGU, sGU + 3, sT[3]))
    if b0pos == 1:
        a("  s_barrier                      ; B0")
        stamp("B0")
    a("  v_lshrrev_b32 v%d, 4, v0" % hG)
    a("  v_and_b32 v%d, 15, v0" % hI)
    a("  v_mov_b32 v%d, %d" % (hMisc, FLG))
    a("  v_mov_b32 v%d, 1" % hOne)
    a("  v_mul_u32_u24 v%d, %d, v%d" % (T0, XN_STRIDE, T0))
    a("  v_add_u32 v%d, v%d, v%d" % (T0, T0, T1))
    a("  v_add_u32 v%d, %d, v%d" % (hZ, XN, T0))
    if noh:
        for _ in range(4):
            lds_add(hMisc, F_QRDY, hOne)
            lds_add(hMisc, F_STG, hOne)
        a("  s_barrier")
        a("  s_mov_b32 s%d, 0x10000000" % (sWs + 2))
        a("  s_mov_b32 s%d, 0x20000" % (sWs + 3))
        a("  s_cmp_lg_u32 s%d, 0" % sHW)
        a("  s_cbranch_scc1 L_H_done")
        a("  s_branch L_tsdump")
    a("  s_mov_b32 s%d, 0x10000000" % (sWs + 2))
    a("  s_mov_b32 s%d, 0x20000" % (sWs + 3))
    for base, size in ((sWd, 1835008), (sWo, 0x400000), (sOut, 8192)):
        a("  s_mov_b32 s%d, %d" % (base + 2, size))
        a("  s_mov_b32 s%d, 0x20000" % (base + 3))
    a("  s_mov_b32 s%d, 0xffffff00" % sNotFF)
    a("  s_mov_b32 s%d, 0x0c0c0400" % sSelA)
    a("  s_mov_b32 s%d, 0x04000c0c" % sSelB)

    def pk(op, d, s0, s1, extra=""):
        a("  %s v[%d:%d], v[%d:%d], v[%d:%d]%s" % (op, d, d + 1, s0, s0 + 1, s1, s1 + 1, extra))

    def allreduce32(v, t):
        for n in (1, 2, 4, 8):
            a("  s_nop 1")
            a("  v_add_f32_dpp v%d, v%d, v%d row_ror:%d %s" % (v, v, v, n, DPP))
        reduce_swap("v_add_f32", v, t, 16)

    def tag(v):
        a("  v_and_or_b32 v%d, v%d, s%d, v%d" % (v, v, sNotFF, hTag))

    def tag_retry(regs, lab_retry, lab_ok, t0_, t1_, sleep):
        rs = list(regs)
        assert len(rs) % 4 == 0
        for k in range(0, len(rs), 4):
            a("  v_perm_b32 v%d, v%d, v%d, s%d" % (t1_, rs[k + 1], rs[k], sSelA))
            a("  v_perm_b32 v%d, v%d, v%d, s%d" % (t1_ + 1, rs[k + 3], rs[k + 2], sSelB))
            if k == 0:
                a("  v_or_b32 v%d, v%d, v%d" % (t0_, t1_, t1_ + 1))
                a("  v_xor_b32 v%d, s%d, v%d" % (t0_, sTag4, t0_))
            else:
                a("  v_or_b32 v%d, v%d, v%d" % (t1_, t1_, t1_ + 1))
                a("  v_xor_b32 v%d, s%d, v%d" % (t1_, sTag4, t1_))
                a("  v_or_b32 v%d, v%d, v%d" % (t0_, t0_, t1_))
        a("  v_cmp_ne_u32 vcc, 0, v%d" % t0_)
        a("  s_cbranch_vccz %s" % lab_ok)
        a("  s_mov_b64 exec, vcc")
        a("  s_add_u32 s%d, s%d, 1" % (sCnt, sCnt))
        a("  s_cmp_lt_u32 s%d, %d" % (sCnt, SPIN_LIMIT))
        a("  s_cbranch_scc0 %s" % lab_ok)
        a("  s_sleep %d" % sleep)
        a("  s_branch %s" % lab_retry)

    def round_bf16(v):
        a("  v_cvt_pk_bf16_f32 v%d, v%d, v%d" % (v, v, v))
        a("  v_and_b32 v%d, s%d, v%d" % (v, sHi2, v))

    def untag(regs):
        for v in regs:
            a("  v_and_or_b32 v%d, v%d, s%d, v%d" % (v, v, sNotFF, hMid))

    a("  s_waitcnt vmcnt(8)")
    for i in range(8):
        a("  v_lshlrev_b32 v%d, 16, v%d" % (hF + 2 * i, hX + i))
        a("  v_and_b32 v%d, s%d, v%d" % (hF + 2 * i + 1, sHi2, hX + i))
    for i in range(4):
        pk("v_pk_add_f32", hY + 2 * i, hF + 4 * i, hF + 4 * i + 2)
    pk("v_pk_add_f32", hY, hY, hY + 2)
    pk("v_pk_add_f32", hY + 4, hY + 4, hY + 6)
    pk("v_pk_add_f32", hY, hY, hY + 4)
    vS = hZ + 8
    vV = hZ + 10
    a("  v_add_f32 v%d, v%d, v%d" % (vS, hY, hY + 1))
    allreduce32(vS, T0)
    a("  v_mul_f32 v%d, 0x3b000000, v%d     ; mean" % (vS, vS))
    for i in range(8):
        pk("v_pk_add_f32", hY + 2 * i, hF + 2 * i, vS, " op_sel_hi:[1,0] neg_lo:[0,1] neg_hi:[0,1]")
    pk("v_pk_mul_f32", vV, hY, hY)
    for i in range(1, 8):
        a("  v_pk_fma_f32 v[%d:%d], v[%d:%d], v[%d:%d], v[%d:%d]" % (vV, vV + 1, hY + 2 * i, hY + 2 * i + 1, hY + 2 * i, hY + 2 * i + 1, vV, vV + 1))
    a("  v_add_f32 v%d, v%d, v%d" % (vV, vV, vV + 1))
    allreduce32(vV, T0)
    a("  v_mul_f32 v%d, 0x3b000000, v%d     ; var" % (vV, vV))
    a("  v_cvt_pk_bf16_f32 v%d, v%d, v%d" % (vS, vS, vV))
    a("  v_and_b32 v%d, s%d, v%d" % (vV, sHi2, vS))
    a("  v_lshlrev_b32 v%d, 16, v%d            ; mean_bf" % (vS, vS))
    a("  v_add_f32 v%d, 0x3727c5ac, v%d" % (vV, vV))
    round_bf16(vV)
    a("  v_sqrt_f32 v%d, v%d" % (vV, vV))
    a("  s_nop 0")
    round_bf16(vV)
    a("  v_rcp_f32 v%d, v%d" % (vV, vV))
    for i in range(8):
        pk("v_pk_add_f32", hY + 2 * i, hF + 2 * i, vS, " op_sel_hi:[1,0] neg_lo:[0,1] neg_hi:[0,1]")
    for i in range(8):
        a("  v_cvt_pk_bf16_f32 v%d, v%d, v%d" % (hX + i, hY + 2 * i, hY + 2 * i + 1))
    for i in range(8):
        a("  v_lshlrev_b32 v%d, 16, v%d" % (hF + 2 * i, hX + i))
        a("  v_and_b32 v%d, s%d, v%d" % (hF + 2 * i + 1, sHi2, hX + i))
    for i in range(8):
        pk("v_pk_mul_f32", hY + 2 * i, hF + 2 * i, vV, " op_sel_hi:[1,0]")
    for i in range(8):
        a("  v_cvt_pk_bf16_f32 v%d, v%d, v%d" % (hX + i, hY + 2 * i, hY + 2 * i + 1))
    a("  ds_write_b128 v%d, v[%d:%d]" % (hZ, hX, hX + 3))
    a("  ds_write_b128 v%d, v[%d:%d] offset:16" % (hZ, hX + 4, hX + 7))
    stamp("LN done")

    a("  v_lshrrev_b32 v%d, 2, v%d" % (T0, hI))
    a("  v_lshl_add_u32 v%d, v%d, 3, v%d" % (T0, hG, T0))
    a("  v_lshlrev_b32 v%d, 7, v%d" % (T0, T0))
    a("  v_and_b32 v%d, 3, v%d" % (T1, hI))
    a("  v_lshl_add_u32 v%d, v%d, 3, v%d" % (hTrG, T1, T0))
    a("  s_lshl_b32 s%d, s%d, 5" % (sT[0], sHW))
    a("  s_add_u32 s%d, s%d, 24576" % (sT[0], sT[0]))
    a("  v_add_u32 v%d, s%d, v%d" % (hTr, sT[0], hTrG))
    a("  v_and_b32 v%d, 7, v%d" % (T0, hI))
    a("  v_mul_u32_u24 v%d, %d, v%d" % (T0, XN_STRIDE, T0))
    a("  v_lshl_add_u32 v%d, v%d, 4, v%d" % (T0, hG, T0))
    a("  v_add_u32 v%d, %d, v%d" % (hXn, XN, T0))
    a("  v_cmp_gt_u32 s[%d:%d], 8, v%d" % (sLo8, sLo8 + 1, hI))

    def tile_compute(kb_sgpr, stg_add):
        a("  s_lshl_b32 s%d, s%d, 8" % (sT[0], kb_sgpr))
        a("  v_add_u32 v%d, s%d, v%d" % (T0, sT[0], hXn))
        if stg_add:
            a("  v_add_u32 v%d, 0x%x, v%d" % (T1, stg_add, hTr))
            tr = T1
        else:
            tr = hTr
        for ks in range(4):
            base = (ks >> 1) * 32768 + (ks & 1) * 4096
            r = hA + ks * 4
            a("  ds_read_b64_tr_b16 v[%d:%d], v%d offset:%d" % (r, r + 1, tr, base))
            a("  ds_read_b64_tr_b16 v[%d:%d], v%d offset:%d" % (r + 2, r + 3, tr, base + 512))
            r = hB + ks * 4
            a("  ds_read_b128 v[%d:%d], v%d offset:%d" % (r, r + 3, T0, ks * 64))
        for ks in range(4):
            a("  s_waitcnt lgkmcnt(%d)" % (9 - 3 * ks))
            c = "0" if ks == 0 else "v[%d:%d]" % (hD, hD + 3)
            a("  v_mfma_f32_16x16x32_bf16 v[%d:%d], v[%d:%d], v[%d:%d], %s" % (hD, hD + 3, hA + ks * 4, hA + ks * 4 + 3, hB + ks * 4, hB + ks * 4 + 3, c))

    a("  s_waitcnt vmcnt(4) lgkmcnt(0)")
    a("  s_add_u32 s%d, s%d, 1" % (sTag, sEp))
    a("  s_and_b32 s%d, s%d, 0xff" % (sTag, sTag))
    a("  s_mul_i32 s%d, s%d, 0x01010101" % (sTag4, sTag))
    a("  v_mov_b32 v%d, s%d" % (hTag, sTag))
    a("  v_mov_b32 v%d, 0x80" % hMid)
    if early_census:
        lc = a.lab("Lc")
        a("  s_cmp_lg_u32 s%d, 1" % sHW)
        a("  s_cbranch_scc1 %s" % lc)
        a("  s_mov_b32 s%d, 256" % (sDbg + 2))
        a("  s_mov_b32 s%d, 0x20000" % (sDbg + 3))
        a("  s_getreg_b32 s%d, hwreg(HW_REG_XCC_ID, 0, 3)" % sT[4])
        a("  s_lshl_b32 s%d, s%d, 3" % (sT[4], sT[4]))
        a("  s_lshl_b64 s[%d:%d], 1, s%d" % (sT[6], sT[7], sT[4]))
        a("  v_mov_b32 v%d, s%d" % (hA, sT[6]))
        a("  v_mov_b32 v%d, s%d" % (hA + 1, sT[7]))
        a("  s_lshl_b32 s%d, s%d, 5" % (sT[4], sX))
        a("  v_mov_b32 v%d, s%d" % (T0, sT[4]))
        a("  s_mov_b64 exec, 1")
        a("  buffer_atomic_add_x2 v[%d:%d], v%d, s[%d:%d], 0 offen sc1" % (hA, hA + 1, T0, sDbg, sDbg + 3))
        a("  s_mov_b64 exec, -1")
        a("%s:" % lc)
    lds_add(hMisc, F_H1, hOne)
    lds_wait(hMisc, F_H1, 4, T5)
    stamp("Hsync1")
    tile_compute(sJ, 0)
    a("  v_lshlrev_b32 v%d, 11, v%d" % (T0, hI))
    a("  v_lshl_add_u32 v%d, v%d, 4, v%d" % (T0, hG, T0))
    a("  s_lshl_b32 s%d, s%d, 6" % (sT[0], sHW))
    a("  v_add_u32 v%d, s%d, v%d" % (T0, sT[0], T0))
    a("  s_lshl_b32 s%d, s%d, 2" % (sHq, sX))
    a("  s_add_u32 s%d, s%d, s%d" % (sHq, sHq, sJ))
    a("  s_lshl_b32 s%d, s%d, 14" % (sT[0], sHq))
    a("  s_lshl_b32 s%d, s%d, 8" % (sT[1], sB))
    a("  s_add_u32 s%d, s%d, s%d" % (sT[0], sT[0], sT[1]))
    if QP:
        a("  s_add_u32 s%d, s%d, %d" % (sT[0], sT[0], QP))
    for k in range(4):
        tag(hD + k)
    a("  s_mov_b64 exec, s[%d:%d]" % (sLo8, sLo8 + 1))
    a("  buffer_store_dwordx4 v[%d:%d], v%d, s[%d:%d], s%d offen sc1" % (hD, hD + 3, T0, sWs, sWs + 3, sT[0]))
    a("  s_mov_b64 exec, -1")
    stamp("QP stored")
    a("  s_lshl_b32 s%d, s%d, 2" % (sT[0], sHq))
    a("  s_add_u32 s%d, s%d, s%d" % (sT[0], sT[0], sHW))
    a("  s_lshl_b32 s%d, s%d, 15" % (sT[0], sT[0]))
    a("  s_lshl_b32 s%d, s%d, 7" % (sT[1], sB))
    a("  s_add_u32 s%d, s%d, s%d" % (sT[0], sT[0], sT[1]))
    a("  s_lshl_b32 s%d, s%d, 12" % (sWoStg, sHW))
    a("  s_add_u32 s%d, s%d, %d" % (sWoStg, sWoStg, WOS))
    for n in range(4):
        a("  s_add_u32 m0, s%d, %d" % (sWoStg, n * 1024))
        if n:
            a("  s_add_u32 s%d, s%d, 8192" % (sT[0], sT[0]))
        else:
            a("  s_nop 0")
        a("  buffer_load_dwordx4 v%d, s[%d:%d], s%d offen nt lds" % (hW1k, sWo, sWo + 3, sT[0]))
    a("  s_waitcnt vmcnt(5)")
    lds_add(hMisc, F_H3, hOne)
    lds_wait(hMisc, F_H3, 4, T5)
    stamp("Hsync3")
    tile_compute(sKb2, 65536)
    lds_add(hMisc, F_STG, hOne)
    a("  v_lshlrev_b32 v%d, 8, v%d" % (T0, hI))
    a("  v_lshl_add_u32 v%d, v%d, 4, v%d" % (T0, hG, T0))
    a("  s_lshl_b32 s%d, s%d, 6" % (sT[0], sHW))
    a("  v_add_u32 v%d, s%d, v%d" % (T0, sT[0], T0))
    a("  s_and_b32 s%d, s%d, 7" % (sT[0], sFi))
    a("  s_mul_i32 s%d, s%d, 28" % (sT[0], sT[0]))
    a("  s_lshr_b32 s%d, s%d, 3" % (sT[1], sFi))
    a("  s_add_u32 s%d, s%d, s%d" % (sT[0], sT[0], sT[1]))
    a("  s_lshl_b32 s%d, s%d, 11" % (sT[0], sT[0]))
    a("  s_add_u32 s%d, s%d, %d" % (sT[0], sT[0], GP))
    hGp, hGpOff, sGpS = 192, 196, 59
    for k in range(4):
        tag(hD + k)
    if gplocal:
        for k in range(4):
            a("  v_mov_b32 v%d, v%d" % (hGp + k, hD + k))
        a("  v_mov_b32 v%d, v%d" % (hGpOff, T0))
        a("  s_mov_b32 s%d, s%d" % (sGpS, sT[0]))
    else:
        lg = a.lab("Lg")
        a("  s_cmp_eq_u32 s%d, 0" % sFv)
        a("  s_cbranch_scc1 %s" % lg)
        a("  s_mov_b64 exec, s[%d:%d]" % (sLo8, sLo8 + 1))
        a("  buffer_store_dwordx4 v[%d:%d], v%d, s[%d:%d], s%d offen sc1" % (hD, hD + 3, T0, sWs, sWs + 3, sT[0]))
        a("  s_mov_b64 exec, -1")
        a("%s:" % lg)

    def gp_store(have_loc):
        if not gplocal:
            return
        if not have_loc:
            lds_wait(hMisc, F_LOC, 1, T5, sleep=8)
            a("  s_lshr_b32 s%d, s%d, 1" % (sLoc, sT[7]))
        lg = a.lab("Lg")
        a("  s_cmp_eq_u32 s%d, 0" % sFv)
        a("  s_cbranch_scc1 %s" % lg)
        a("  s_mov_b64 exec, s[%d:%d]" % (sLo8, sLo8 + 1))
        store_loc(["  buffer_store_dwordx4 v[%d:%d], v%d, s[%d:%d], s%d offen" % (hGp, hGp + 3, hGpOff, sWs, sWs + 3, sGpS)], sLoc)
        a("  s_mov_b64 exec, -1")
        a("%s:" % lg)
    stamp("tile1 done")
    a("  v_lshrrev_b32 v%d, 5, v0" % T0)
    a("  v_lshlrev_b32 v%d, 14, v%d" % (T0, T0))
    a("  v_and_b32 v%d, 31, v0" % T1)
    a("  v_lshl_add_u32 v%d, v%d, 4, v%d" % (T0, T1, T0))
    a("  s_lshl_b32 s%d, s%d, 9" % (sT[0], sHW))
    a("  v_add_u32 v%d, s%d, v%d" % (T0, sT[0], T0))
    a("  s_lshl_b32 s%d, s%d, 16" % (sT[0], sX))
    a("  s_lshl_b32 s%d, s%d, 11" % (sT[1], sB))
    a("  s_add_u32 s%d, s%d, s%d" % (sT[0], sT[0], sT[1]))
    if QP:
        a("  s_add_u32 s%d, s%d, %d" % (sT[0], sT[0], QP))
    a("  s_add_u32 s%d, s%d, 32768" % (sT[1], sT[0]))
    a("  s_mul_i32 s%d, s%d, %d" % (sT[2], sHW, QL_STRIDE))
    a("  s_add_u32 s%d, s%d, %d" % (sT[2], sT[2], QL))
    a("  v_lshlrev_b32 v%d, 3, v%d" % (T1, T1))
    a("  v_add_u32 v%d, s%d, v%d" % (T1, sT[2], T1))
    lr, lo = a.lab("Lr"), a.lab("Lo")
    a("  s_mov_b32 s%d, 0" % sCnt)
    a("%s:" % lr)
    NT = " nt" if gnt & 1 else ""
    a("  buffer_load_dwordx4 v[%d:%d], v%d, s[%d:%d], s%d offen sc1%s" % (hA, hA + 3, T0, sWs, sWs + 3, sT[0], NT))
    a("  buffer_load_dwordx4 v[%d:%d], v%d, s[%d:%d], s%d offen sc1%s" % (hA + 4, hA + 7, T0, sWs, sWs + 3, sT[1], NT))
    a("  s_waitcnt vmcnt(0)")
    tag_retry(range(hA, hA + 8), lr, lo, T2, T3, 2)
    a("%s:" % lo)
    a("  s_mov_b64 exec, -1")
    stamp("Q ok")
    untag(range(hA, hA + 8))
    pk("v_pk_add_f32", hA, hA, hA + 4)
    pk("v_pk_add_f32", hA + 2, hA + 2, hA + 6)
    for k in range(4):
        a("  v_mov_b32 v%d, v%d" % (hA + 4 + k, hA + k))
    a("  s_nop 1")
    for k in range(4):
        a("  v_permlane32_swap_b32 v%d, v%d" % (hA + k, hA + 4 + k))
    pk("v_pk_add_f32", hA, hA, hA + 4)
    pk("v_pk_add_f32", hA + 2, hA + 2, hA + 6)
    a("  v_cvt_pk_bf16_f32 v%d, v%d, v%d" % (hA, hA, hA + 1))
    a("  v_cvt_pk_bf16_f32 v%d, v%d, v%d" % (hA + 1, hA + 2, hA + 3))
    a("  s_mov_b32 exec_hi, 0")
    a("  ds_write_b64 v%d, v[%d:%d]" % (T1, hA, hA + 1))
    a("  s_mov_b64 exec, -1")
    a("  s_waitcnt lgkmcnt(0)")
    lds_add(hMisc, F_QRDY, hOne)
    stamp("Q rdy")

    a("  v_add_u32 v%d, s%d, v%d" % (T0, sWoStg, hTrG))
    l3 = a.lab("L3")
    a("  s_cmp_lg_u32 s%d, 3" % sHW)
    a("  s_cbranch_scc1 %s" % l3)
    a("  s_lshr_b32 s%d, s%d, 3" % (sT[0], sFi))
    a("  s_lshl_b32 s%d, s%d, 16" % (sT[1], sT[0]))
    a("  s_and_b32 s%d, s%d, 7" % (sT[2], sFi))
    a("  s_lshl_b32 s%d, s%d, 7" % (sT[2], sT[2]))
    a("  s_add_u32 s%d, s%d, s%d" % (sT[1], sT[1], sT[2]))
    for n in range(4):
        a("  s_mov_b32 m0, %d" % (SPARE + n * 1024))
        if n:
            a("  s_add_u32 s%d, s%d, 8192" % (sT[1], sT[1]))
        else:
            a("  s_nop 0")
        a("  buffer_load_dwordx4 v%d, s[%d:%d], s%d offen nt lds" % (hW1k, sWd, sWd + 3, sT[1]))
    a("%s:" % l3)
    for ct in range(4):
        r = hW + ct * 4
        a("  ds_read_b64_tr_b16 v[%d:%d], v%d offset:%d" % (r, r + 1, T0, ct * 32))
        a("  ds_read_b64_tr_b16 v[%d:%d], v%d offset:%d" % (r + 2, r + 3, T0, ct * 32 + 512))
    a("  s_waitcnt lgkmcnt(0)")
    l4 = a.lab("L4")
    a("  s_cmp_lg_u32 s%d, 3" % sHW)
    a("  s_cbranch_scc1 %s" % l4)
    for n in range(4):
        a("  s_add_u32 m0, s%d, %d" % (sWoStg, n * 1024))
        a("  s_add_u32 s%d, s%d, 8192" % (sT[1], sT[1]))
        a("  buffer_load_dwordx4 v%d, s[%d:%d], s%d offen nt lds" % (hW1k, sWd, sWd + 3, sT[1]))
    a("  v_add_u32 v%d, %d, v%d" % (T1, SPARE, hTrG))
    a("  s_waitcnt vmcnt(4)")
    for ct in range(4):
        r = hWd + ct * 8
        a("  ds_read_b64_tr_b16 v[%d:%d], v%d offset:%d" % (r, r + 1, T1, ct * 32))
        a("  ds_read_b64_tr_b16 v[%d:%d], v%d offset:%d" % (r + 2, r + 3, T1, ct * 32 + 512))
    a("  s_waitcnt vmcnt(0)")
    for ct in range(4):
        r = hWd + ct * 8 + 4
        a("  ds_read_b64_tr_b16 v[%d:%d], v%d offset:%d" % (r, r + 1, T0, ct * 32))
        a("  ds_read_b64_tr_b16 v[%d:%d], v%d offset:%d" % (r + 2, r + 3, T0, ct * 32 + 512))
    a("  s_waitcnt lgkmcnt(0)")
    a("%s:" % l4)
    stamp("wo frags")

    a("  s_lshl_b32 s%d, s%d, 5" % (sFidx, sB))
    a("  s_add_u32 s%d, s%d, s%d" % (sFidx, sFidx, sHq))
    a("  v_and_b32 v%d, 3, v0" % T0)
    a("  v_lshlrev_b32 v%d, 3, v%d" % (T0, T0))
    a("  s_lshl_b32 s%d, s%d, 5" % (sT[0], sFidx))
    a("  v_add_u32 v%d, s%d, v%d" % (hOutOff, sT[0], T0))
    if noffn:
        a("  s_branch L_B1")
    a("  s_cmp_eq_u32 s%d, 1" % sHW)
    a("  s_cbranch_scc1 %s" % ("L_B1" if skip & 1 else "L_ffn"))
    a("  s_cmp_eq_u32 s%d, 2" % sHW)
    a("  s_cbranch_scc1 %s" % ("L_B1" if skip & 2 else "L_stats"))
    a("  s_cmp_eq_u32 s%d, 0" % sHW)
    a("  s_cbranch_scc1 %s" % ("L_B1" if skip & 5 else "L_fin_prep"))
    a("  s_branch %s" % ("L_B1" if skip & 9 else "L_down"))

    a("L_ffn:")
    a("  s_mov_b32 s%d, 256" % (sDbg + 2))
    a("  s_mov_b32 s%d, 0x20000" % (sDbg + 3))
    a("  s_lshl_b32 s%d, s%d, 5" % (sT[0], sX))
    a("  v_mov_b32 v%d, s%d" % (T0, sT[0]))
    if not early_census:
        a("  s_getreg_b32 s%d, hwreg(HW_REG_XCC_ID, 0, 3)" % sT[4])
        a("  s_lshl_b32 s%d, s%d, 3" % (sT[4], sT[4]))
        a("  s_lshl_b64 s[%d:%d], 1, s%d" % (sT[6], sT[7], sT[4]))
        a("  v_mov_b32 v%d, s%d" % (hA, sT[6]))
        a("  v_mov_b32 v%d, s%d" % (hA + 1, sT[7]))
        a("  s_mov_b64 exec, 1")
        a("  buffer_atomic_add_x2 v[%d:%d], v%d, s[%d:%d], 0 offen sc1" % (hA, hA + 1, T0, sDbg, sDbg + 3))
        a("  s_mov_b64 exec, -1")
        lds_wait(hMisc, F_MID, 1, T5, sleep=8)
    a("  s_waitcnt vmcnt(0)")
    lr, lo = a.lab("Lr"), a.lab("Lo")
    a("  s_mov_b32 s%d, 0" % sCnt)
    a("  s_mov_b64 exec, 1")
    a("%s:" % lr)
    a("  buffer_load_dwordx2 v[%d:%d], v%d, s[%d:%d], 0 offen sc1" % (hA, hA + 1, T0, sDbg, sDbg + 3))
    a("  s_waitcnt vmcnt(0)")
    a("  v_readfirstlane_b32 s%d, v%d" % (sT[2], hA))
    a("  v_readfirstlane_b32 s%d, v%d" % (sT[3], hA + 1))
    a("  s_and_b32 s%d, s%d, 0x00ff00ff" % (sT[4], sT[2]))
    a("  s_lshr_b32 s%d, s%d, 8" % (sT[5], sT[2]))
    a("  s_and_b32 s%d, s%d, 0x00ff00ff" % (sT[5], sT[5]))
    a("  s_add_u32 s%d, s%d, s%d" % (sT[4], sT[4], sT[5]))
    a("  s_and_b32 s%d, s%d, 0x00ff00ff" % (sT[5], sT[3]))
    a("  s_add_u32 s%d, s%d, s%d" % (sT[4], sT[4], sT[5]))
    a("  s_lshr_b32 s%d, s%d, 8" % (sT[5], sT[3]))
    a("  s_and_b32 s%d, s%d, 0x00ff00ff" % (sT[5], sT[5]))
    a("  s_add_u32 s%d, s%d, s%d" % (sT[4], sT[4], sT[5]))
    a("  s_lshr_b32 s%d, s%d, 16" % (sT[5], sT[4]))
    a("  s_and_b32 s%d, s%d, 0xffff" % (sT[4], sT[4]))
    a("  s_add_u32 s%d, s%d, s%d" % (sT[4], sT[4], sT[5]))
    a("  s_cmp_ge_u32 s%d, 32" % sT[4])
    a("  s_cbranch_scc1 %s" % lo)
    a("  s_add_u32 s%d, s%d, 1" % (sCnt, sCnt))
    a("  s_cmp_lt_u32 s%d, %d" % (sCnt, SPIN_LIMIT))
    a("  s_cbranch_scc0 %s" % lo)
    a("  s_sleep 32")
    a("  s_branch %s" % lr)
    a("%s:" % lo)
    a("  s_mov_b64 exec, -1")
    a("  s_getreg_b32 s%d, hwreg(HW_REG_XCC_ID, 0, 3)" % sT[4])
    a("  s_lshl_b32 s%d, s%d, 3" % (sT[4], sT[4]))
    a("  s_lshr_b64 s[%d:%d], s[%d:%d], s%d" % (sT[2], sT[3], sT[2], sT[3], sT[4]))
    a("  s_and_b32 s%d, s%d, 0xff" % (sT[2], sT[2]))
    a("  s_cmp_eq_u32 s%d, 32" % sT[2])
    a("  s_cselect_b32 s%d, %d, 1" % (sT[2], 2 if uselocal else 1))
    a("  v_mov_b32 v%d, s%d" % (T0, sT[2]))
    a("  s_mov_b64 exec, 1")
    a("  ds_write_b32 v%d, v%d offset:%d" % (hMisc, T0, F_LOC))
    a("  s_mov_b64 exec, -1")
    a("  s_lshr_b32 s%d, s%d, 1" % (sLoc, sT[2]))
    gp_store(True)
    a("  s_cmp_eq_u32 s%d, 0" % sFv)
    a("  s_cbranch_scc1 L_ffn_done")
    a("  s_lshr_b32 s%d, s%d, 3" % (sT[0], sFi))
    a("  v_mul_u32_u24 v%d, %d, v%d" % (T0, 28 * 2048, hG))
    a("  v_lshl_add_u32 v%d, v%d, 4, v%d" % (T0, hI, T0))
    a("  s_lshl_b32 s%d, s%d, 11" % (sT[1], sT[0]))
    a("  s_and_b32 s%d, s%d, 7" % (sT[2], sFi))
    a("  s_lshl_b32 s%d, s%d, 8" % (sT[2], sT[2]))
    a("  s_add_u32 s%d, s%d, s%d" % (sT[1], sT[1], sT[2]))
    a("  s_add_u32 s%d, s%d, %d" % (sT[1], sT[1], GP))
    a("  s_add_u32 s%d, s%d, %d" % (sT[2], sT[1], 4 * 28 * 2048))
    lr, lo = a.lab("Lr"), a.lab("Lo")
    a("  s_mov_b32 s%d, 0" % sCnt)
    a("%s:" % lr)
    NT = " nt" if gnt & 2 else ""
    a("  buffer_load_dwordx4 v[%d:%d], v%d, s[%d:%d], s%d offen sc1%s" % (hA, hA + 3, T0, sWs, sWs + 3, sT[1], NT))
    a("  buffer_load_dwordx4 v[%d:%d], v%d, s[%d:%d], s%d offen sc1%s" % (hA + 4, hA + 7, T0, sWs, sWs + 3, sT[2], NT))
    a("  s_waitcnt vmcnt(0)")
    tag_retry(range(hA, hA + 8), lr, lo, T2, T3, 8 if gplocal else ffn_sleep)
    a("%s:" % lo)
    a("  s_mov_b64 exec, -1")
    untag(range(hA, hA + 8))
    for kind in (16, 32):
        for k in range(8):
            a("  v_mov_b32 v%d, v%d" % (hA + 8 + k, hA + k))
        a("  s_nop 1")
        for k in range(8):
            a("  v_permlane%d_swap_b32 v%d, v%d" % (kind, hA + k, hA + 8 + k))
        for k in range(0, 8, 2):
            pk("v_pk_add_f32", hA + k, hA + k, hA + 8 + k)
    g0, u0 = hA, hA + 4
    for k in range(8):
        round_bf16(hA + k)
    a("  s_mov_b32 s%d, 0xBFB8AA3B      ; -log2(e)" % sT[2])
    for k in range(4):
        a("  v_mul_f32 v%d, s%d, v%d" % (g0 + k, sT[2], g0 + k))
    for k in range(4):
        a("  v_exp_f32 v%d, v%d" % (g0 + k, g0 + k))
    a("  s_nop 0")
    for k in range(4):
        a("  v_add_f32 v%d, 1.0, v%d" % (g0 + k, g0 + k))
    for k in range(4):
        a("  v_rcp_f32 v%d, v%d" % (g0 + k, g0 + k))
    a("  s_nop 0")
    for k in range(4):
        round_bf16(g0 + k)
    for k in range(4):
        a("  v_mul_f32 v%d, v%d, v%d" % (g0 + k, g0 + k, u0 + k))
    for k in range(4):
        round_bf16(g0 + k)
    for k in range(4):
        a("  v_or_b32 v%d, v%d, v%d" % (g0 + k, g0 + k, hTag))
    a("  v_lshlrev_b32 v%d, 4, v0" % T0)
    a("  s_lshl_b32 s%d, s%d, 8" % (sT[1], sFi))
    a("  s_add_u32 s%d, s%d, %d" % (sT[1], sT[1], HH))
    a("  s_mov_b64 exec, 0xffff")
    store_loc(["  buffer_store_dwordx4 v[%d:%d], v%d, s[%d:%d], s%d offen" % (g0, g0 + 3, T0, sWs, sWs + 3, sT[1])], sLoc)
    a("  s_mov_b64 exec, -1")
    a("L_ffn_done:")
    lds_add(hMisc, F_RED, hOne)
    lds_wait(hMisc, F_EWS, 1, T5, sleep=4)
    for k in range(4):
        a("  v_mov_b32 v%d, v%d" % (hA + k, hTag))
    a("  s_lshl_b32 s%d, s%d, 9" % (sT[0], sX))
    a("  s_lshl_b32 s%d, s%d, 4" % (sT[1], sLi))
    a("  s_add_u32 s%d, s%d, s%d" % (sT[0], sT[0], sT[1]))
    a("  s_add_u32 s%d, s%d, %d" % (sT[0], sT[0], EW))
    a("  v_mov_b32 v%d, 0" % T0)
    a("  s_mov_b64 exec, 1")
    store_loc(["  buffer_store_dwordx4 v[%d:%d], v%d, s[%d:%d], s%d offen" % (hA, hA + 3, T0, sWs, sWs + 3, sT[0])], sLoc)
    a("  s_mov_b64 exec, -1")
    a("  s_branch L_B1")

    a("L_down:")
    gp_store(False)
    a("  s_cmp_eq_u32 s%d, 0" % sFv)
    a("  s_cbranch_scc1 L_down_done")
    lds_wait(hMisc, F_RED, 1, T5, sleep=8)
    a("  s_lshr_b32 s%d, s%d, 3" % (sT[0], sFi))
    a("  v_and_b32 v%d, 7, v%d" % (T0, hI))
    a("  v_lshlrev_b32 v%d, 8, v%d" % (T0, T0))
    a("  v_lshl_add_u32 v%d, v%d, 5, v%d" % (T0, hG, T0))
    a("  s_lshl_b32 s%d, s%d, 11" % (sT[1], sT[0]))
    a("  s_add_u32 s%d, s%d, %d" % (sT[1], sT[1], HH))
    lr, lo = a.lab("Lr"), a.lab("Lo")
    a("  s_mov_b32 s%d, 0" % sCnt)
    a("%s:" % lr)
    for k in range(4):
        a("  buffer_load_dwordx4 v[%d:%d], v%d, s[%d:%d], s%d offen offset:%d sc1" % (hA + 4 * k, hA + 4 * k + 3, T0, sWs, sWs + 3, sT[1], (k >> 1) * 128 + (k & 1) * 16))
    a("  s_waitcnt vmcnt(0)")
    tag_retry(range(hA, hA + 16), lr, lo, T2, T3, ffn_sleep)
    a("%s:" % lo)
    a("  s_mov_b64 exec, -1")
    a("  s_mov_b32 s%d, 0x07060302" % sT[2])
    for k in range(8):
        a("  v_perm_b32 v%d, v%d, v%d, s%d" % (hB + k, hA + 2 * k + 1, hA + 2 * k, sT[2]))
    a("  s_nop 1")
    for ct in range(4):
        d = hD + ct * 4
        r = hWd + ct * 8
        a("  v_mfma_f32_16x16x32_bf16 v[%d:%d], v[%d:%d], v[%d:%d], 0" % (d, d + 3, r, r + 3, hB, hB + 3))
        a("  v_mfma_f32_16x16x32_bf16 v[%d:%d], v[%d:%d], v[%d:%d], v[%d:%d]" % (d, d + 3, r + 4, r + 7, hB + 4, hB + 7, d, d + 3))
    a("  v_lshlrev_b32 v%d, 16, v%d" % (T0, hI))
    a("  v_lshl_add_u32 v%d, v%d, 4, v%d" % (T0, hG, T0))
    a("  s_and_b32 s%d, s%d, 7" % (sT[1], sFi))
    a("  s_lshl_b32 s%d, s%d, 13" % (sT[1], sT[1]))
    a("  s_lshl_b32 s%d, s%d, 6" % (sT[2], sT[0]))
    a("  s_add_u32 s%d, s%d, s%d" % (sT[1], sT[1], sT[2]))
    a("  s_add_u32 s%d, s%d, %d" % (sT[1], sT[1], DP))
    a("  s_nop 7")
    for i in range(16):
        tag(hD + i)
    a("  s_mov_b64 exec, s[%d:%d]" % (sLo8, sLo8 + 1))
    for ct in range(4):
        a("  buffer_store_dwordx4 v[%d:%d], v%d, s[%d:%d], s%d offen sc1" % (hD + ct * 4, hD + ct * 4 + 3, T0, sWs, sWs + 3, sT[1]))
        if ct < 3:
            a("  s_add_u32 s%d, s%d, 2048" % (sT[1], sT[1]))
    a("  s_mov_b64 exec, -1")
    a("  s_waitcnt vmcnt(0)")
    a("L_down_done:")
    lds_add(hMisc, F_DOWN, hOne)
    a("  s_branch L_B1")

    a("L_stats:")
    gp_store(False)
    lds_wait(hMisc, F_ST, 4, T5, sleep=st_sleep)
    a("  v_lshl_add_u32 v%d, v%d, 3, v%d" % (T0, hI, hMisc))
    mw, lw = hA, hA + 1
    a("  ds_read_b64 v[%d:%d], v%d offset:%d" % (mw, mw + 1, T0, SSTAT))
    a("  s_waitcnt lgkmcnt(0)")
    Mg, Lg, t_ = hA + 4, hA + 5, hA + 2
    a("  v_mov_b32 v%d, v%d" % (Mg, mw))
    a("  s_nop 1")
    a("  v_max_f32_dpp v%d, v%d, v%d row_ror:4 %s" % (Mg, Mg, Mg, DPP))
    a("  s_nop 1")
    a("  v_max_f32_dpp v%d, v%d, v%d row_ror:8 %s" % (Mg, Mg, Mg, DPP))
    a("  s_mov_b32 s%d, 0x3FB8AA3B" % sT[2])
    a("  v_sub_f32 v%d, v%d, v%d" % (t_, mw, Mg))
    a("  v_mul_f32 v%d, s%d, v%d" % (t_, sT[2], t_))
    a("  v_exp_f32 v%d, v%d" % (t_, t_))
    a("  s_nop 0")
    a("  v_mul_f32 v%d, v%d, v%d" % (Lg, lw, t_))
    a("  s_nop 1")
    a("  v_add_f32_dpp v%d, v%d, v%d row_ror:4 %s" % (Lg, Lg, Lg, DPP))
    a("  s_nop 1")
    a("  v_add_f32_dpp v%d, v%d, v%d row_ror:8 %s" % (Lg, Lg, Lg, DPP))
    a("  s_nop 1")
    a("  v_mov_b32_dpp v%d, v%d row_shl:1 %s bound_ctrl:0" % (Mg + 2, Mg, DPP))
    a("  v_mov_b32_dpp v%d, v%d row_shl:1 %s bound_ctrl:0" % (Mg + 3, Lg, DPP))
    a("  s_lshl_b32 s%d, s%d, 3" % (sT[0], sB))
    a("  s_add_u32 s%d, s%d, s%d" % (sT[0], sT[0], sX))
    a("  s_lshl_b32 s%d, s%d, 7" % (sT[0], sT[0]))
    a("  s_add_u32 s%d, s%d, %d" % (sT[0], sT[0], ST))
    a("  s_lshl_b32 s%d, s%d, 5" % (sT[1], sJ))
    a("  s_add_u32 s%d, s%d, s%d" % (sT[1], sT[1], sT[0]))
    for k in range(4):
        tag(Mg + k)
    a("  v_lshlrev_b32 v%d, 3, v%d" % (T1, hI))
    lds_wait(hMisc, F_LOC, 1, T5)
    a("  s_lshr_b32 s%d, s%d, 1" % (sLoc, sT[7]))
    a("  s_mov_b64 exec, 5")
    store_loc(["  buffer_store_dwordx4 v[%d:%d], v%d, s[%d:%d], s%d offen" % (Mg, Mg + 3, T1, sWs, sWs + 3, sT[1])], sLoc)
    a("  s_mov_b64 exec, -1")
    a("  v_lshrrev_b32 v%d, 1, v%d" % (T1, hI))
    a("  v_lshlrev_b32 v%d, 4, v%d" % (T1, T1))
    mj = hA + 8
    lr, lo = a.lab("Lr"), a.lab("Lo")
    a("  s_mov_b32 s%d, 0" % sCnt)
    a("%s:" % lr)
    a("  buffer_load_dwordx4 v[%d:%d], v%d, s[%d:%d], s%d offen sc1" % (mj, mj + 3, T1, sWs, sWs + 3, sT[0]))
    a("  s_waitcnt vmcnt(0)")
    tag_retry(range(mj, mj + 4), lr, lo, T2, T3, ffn_sleep)
    a("%s:" % lo)
    a("  s_mov_b64 exec, -1")
    a("  v_and_b32 v%d, 1, v%d" % (T2, hI))
    a("  v_cmp_eq_u32 vcc, 1, v%d" % T2)
    a("  s_nop 1")
    a("  v_cndmask_b32 v%d, v%d, v%d, vcc" % (mj, mj, mj + 2))
    a("  v_cndmask_b32 v%d, v%d, v%d, vcc" % (mj + 1, mj + 1, mj + 3))
    lj = mj + 1
    a("  v_and_b32 v%d, s%d, v%d" % (mj, sNotFF, mj))
    a("  v_and_or_b32 v%d, v%d, s%d, v%d" % (lj, lj, sNotFF, hMid))
    M2, L2 = hA + 12, hA + 13
    a("  v_mov_b32 v%d, v%d" % (M2, mj))
    a("  s_nop 1")
    a("  v_max_f32_dpp v%d, v%d, v%d row_ror:4 %s" % (M2, M2, M2, DPP))
    a("  s_nop 1")
    a("  v_max_f32_dpp v%d, v%d, v%d row_ror:8 %s" % (M2, M2, M2, DPP))
    a("  v_sub_f32 v%d, v%d, v%d" % (t_, mj, M2))
    a("  v_mul_f32 v%d, s%d, v%d" % (t_, sT[2], t_))
    a("  v_exp_f32 v%d, v%d" % (t_, t_))
    a("  s_nop 0")
    a("  v_mul_f32 v%d, v%d, v%d" % (L2, lj, t_))
    a("  s_nop 1")
    a("  v_add_f32_dpp v%d, v%d, v%d row_ror:4 %s" % (L2, L2, L2, DPP))
    a("  s_nop 1")
    a("  v_add_f32_dpp v%d, v%d, v%d row_ror:8 %s" % (L2, L2, L2, DPP))
    a("  v_sub_f32 v%d, v%d, v%d" % (t_, mw, M2))
    a("  v_mul_f32 v%d, s%d, v%d" % (t_, sT[2], t_))
    a("  v_exp_f32 v%d, v%d" % (t_, t_))
    a("  v_rcp_f32 v%d, v%d" % (L2, L2))
    a("  s_nop 0")
    a("  v_mul_f32 v%d, v%d, v%d" % (t_, t_, L2))
    a("  v_and_b32 v%d, 3, v%d" % (T0, hI))
    a("  v_lshlrev_b32 v%d, 4, v%d" % (T0, T0))
    a("  v_lshrrev_b32 v%d, 2, v%d" % (T1, hI))
    a("  v_lshl_add_u32 v%d, v%d, 2, v%d" % (T0, T1, T0))
    a("  v_add_u32 v%d, v%d, v%d" % (T0, T0, hMisc))
    a("  s_mov_b64 exec, 0xffff")
    a("  ds_write_b32 v%d, v%d offset:%d" % (T0, t_, FFAC))
    a("  s_mov_b64 exec, -1")
    a("  s_waitcnt lgkmcnt(0)")
    a("  s_branch L_B1")

    def reduce_hd(base, tmp):
        a("  s_nop 1")
        for k in range(4):
            a("  v_add_f32_dpp v%d, v%d, v%d row_ror:4 %s" % (base + k, base + k, base + k, DPP))
        a("  s_nop 1")
        for k in range(4):
            a("  v_add_f32_dpp v%d, v%d, v%d row_ror:8 %s" % (base + k, base + k, base + k, DPP))
        for kind in (16, 32):
            for k in range(4):
                a("  v_mov_b32 v%d, v%d" % (tmp + k, base + k))
            a("  s_nop 1")
            for k in range(4):
                a("  v_permlane%d_swap_b32 v%d, v%d" % (kind, base + k, tmp + k))
            pk("v_pk_add_f32", base, base, tmp)
            pk("v_pk_add_f32", base + 2, base + 2, tmp + 2)

    a("L_fin_prep:")
    gp_store(False)
    lds_wait(hMisc, F_LATE, 1, T5, sleep=8)
    a("  buffer_load_dwordx2 v[%d:%d], v%d, s[%d:%d], 0 offen" % (hA + 8, hA + 9, hOutOff, sXd, sXd + 3))
    a("  v_lshlrev_b32 v%d, 4, v0" % T0)
    a("  s_lshl_b32 s%d, s%d, 11" % (sT[0], sFidx))
    a("  s_add_u32 s%d, s%d, %d" % (sT[0], sT[0], DP))
    for k in range(4):
        a("  v_mov_b32 v%d, v%d" % (hA + 4 + k, hTag))
    lr, lo = a.lab("Lr"), a.lab("Lo")
    a("  s_mov_b32 s%d, 0" % sCnt)
    a("%s:" % lr)
    NT = " nt" if gnt & 4 else ""
    a("  buffer_load_dwordx4 v[%d:%d], v%d, s[%d:%d], s%d offen sc1%s" % (hA, hA + 3, T0, sWs, sWs + 3, sT[0], NT))
    a("  s_mov_b64 s[%d:%d], exec" % (sT[4], sT[5]))
    a("  s_and_b32 exec_hi, exec_hi, 0xffff")
    ls = a.lab("Ls")
    a("  s_cbranch_execz %s" % ls)
    a("  buffer_load_dwordx4 v[%d:%d], v%d, s[%d:%d], s%d offen offset:1024 sc1%s" % (hA + 4, hA + 7, T0, sWs, sWs + 3, sT[0], NT))
    a("%s:" % ls)
    a("  s_mov_b64 exec, s[%d:%d]" % (sT[4], sT[5]))
    a("  s_waitcnt vmcnt(0)")
    tag_retry(range(hA, hA + 8), lr, lo, T2, T3, ffn_sleep)
    a("%s:" % lo)
    a("  s_mov_b64 exec, -1")
    untag(range(hA, hA + 8))
    pk("v_pk_add_f32", hA, hA, hA + 4)
    pk("v_pk_add_f32", hA + 2, hA + 2, hA + 6)
    reduce_hd(hA, hA + 4)
    hGv = hXf + 4
    for k in range(4):
        round_bf16(hA + k)
    a("  s_mov_b32 s%d, 0xBFB8AA3B" % sT[2])
    for k in range(4):
        a("  v_mul_f32 v%d, s%d, v%d" % (hA + 4 + k, sT[2], hA + k))
    for k in range(4):
        a("  v_exp_f32 v%d, v%d" % (hA + 4 + k, hA + 4 + k))
    a("  s_nop 0")
    for k in range(4):
        a("  v_add_f32 v%d, 1.0, v%d" % (hA + 4 + k, hA + 4 + k))
    for k in range(4):
        a("  v_rcp_f32 v%d, v%d" % (hA + 4 + k, hA + 4 + k))
    a("  s_nop 0")
    for k in range(4):
        a("  v_mul_f32 v%d, v%d, v%d" % (hGv + k, hA + k, hA + 4 + k))
    for k in range(4):
        round_bf16(hGv + k)
    a("  v_lshlrev_b32 v%d, 16, v%d" % (hXf, hA + 8))
    a("  v_and_b32 v%d, s%d, v%d" % (hXf + 1, sHi2, hA + 8))
    a("  v_lshlrev_b32 v%d, 16, v%d" % (hXf + 2, hA + 9))
    a("  v_and_b32 v%d, s%d, v%d" % (hXf + 3, sHi2, hA + 9))
    stamp("prep done")

    a("L_B1:")
    a("  v_lshlrev_b32 v%d, 7, v%d" % (T0, hI))
    a("  v_lshl_add_u32 v%d, v%d, 5, v%d" % (T0, hG, T0))
    a("  s_lshl_b32 s%d, s%d, 14" % (sT[0], sHq))
    a("  s_lshl_b32 s%d, s%d, 11" % (sT[1], sHW))
    a("  s_add_u32 s%d, s%d, s%d" % (sT[0], sT[0], sT[1]))
    a("  s_add_u32 s%d, s%d, %d" % (sT[0], sT[0], OP))
    a("  s_add_u32 s%d, s%d, 8192" % (sT[1], sT[0]))
    a("  v_lshlrev_b32 v%d, 8, v%d" % (T1, hG))
    a("  v_lshl_add_u32 v%d, v%d, 2, v%d" % (T1, hI, T1))
    a("  s_lshl_b32 s%d, s%d, 11" % (sT[2], sHW))
    a("  s_add_u32 s%d, s%d, %d" % (sT[2], sT[2], WOS))
    a("  v_add_u32 v%d, s%d, v%d" % (T1, sT[2], T1))
    hP0, hP1, hQ0 = 157, 158, 159
    sP, sQ = 57, 58
    sSelH = 55
    a("  s_mov_b32 s%d, 0x07060302" % sSelH)
    a("  s_sub_u32 s%d, s%d, 2" % (sT[3], sHW))
    a("  s_lshl_b32 s%d, s%d, 10" % (sT[4], sT[3]))
    a("  s_add_u32 s%d, s%d, %d" % (sT[4], sT[4], WOS))
    a("  v_lshlrev_b32 v%d, 8, v%d" % (hP0, hG))
    a("  v_lshl_add_u32 v%d, v%d, 4, v%d      ; g*256 + i*16" % (hP0, hI, hP0))
    a("  v_add_u32 v%d, s%d, v%d" % (hP0, sT[4], hP0))
    a("  v_lshlrev_b32 v%d, 16, v%d" % (hP1, hG))
    a("  v_lshrrev_b32 v%d, 3, v%d" % (T2, hI))
    a("  v_lshl_add_u32 v%d, v%d, 12, v%d" % (hP1, T2, hP1))
    a("  v_and_b32 v%d, 7, v%d" % (T2, hI))
    a("  v_lshl_add_u32 v%d, v%d, 4, v%d" % (hP1, T2, hP1))
    a("  s_lshl_b32 s%d, s%d, 18" % (sT[3], sT[3]))
    a("  s_lshl_b32 s%d, s%d, 13" % (sT[4], sB))
    a("  s_add_u32 s%d, s%d, s%d" % (sT[3], sT[3], sT[4]))
    a("  s_lshl_b32 s%d, s%d, 7" % (sT[4], sHq))
    a("  s_add_u32 s%d, s%d, s%d" % (sT[3], sT[3], sT[4]))
    a("  s_add_u32 s%d, s%d, %d" % (sP, sT[3], SP))
    a("  v_lshrrev_b32 v%d, 2, v0" % hQ0)
    a("  v_lshlrev_b32 v%d, 7, v%d" % (hQ0, hQ0))
    a("  v_and_b32 v%d, 3, v0" % T2)
    a("  v_lshl_add_u32 v%d, v%d, 4, v%d" % (hQ0, T2, hQ0))
    a("  s_lshr_b32 s%d, s%d, 1" % (sT[3], sFidx))
    a("  s_lshl_b32 s%d, s%d, 12" % (sT[3], sT[3]))
    a("  s_and_b32 s%d, s%d, 1" % (sT[4], sFidx))
    a("  s_lshl_b32 s%d, s%d, 6" % (sT[4], sT[4]))
    a("  s_add_u32 s%d, s%d, s%d" % (sT[3], sT[3], sT[4]))
    a("  s_add_u32 s%d, s%d, %d" % (sQ, sT[3], SP))
    lw0 = a.lab("Lew")
    a("  s_cmp_lg_u32 s%d, 0" % sHW)
    a("  s_cbranch_scc1 %s" % lw0)
    a("  v_lshlrev_b32 v%d, 4, v0" % T5)
    a("  s_lshl_b32 s%d, s%d, 9" % (sT[2], sX))
    a("  s_add_u32 s%d, s%d, %d" % (sT[2], sT[2], EW))
    lr, lo = a.lab("Lr"), a.lab("Lo")
    a("  s_mov_b32 s%d, 0" % sCnt)
    a("  s_mov_b32 exec_hi, 0")
    a("%s:" % lr)
    a("  buffer_load_dwordx4 v[%d:%d], v%d, s[%d:%d], s%d offen sc1" % (hA, hA + 3, T5, sWs, sWs + 3, sT[2]))
    a("  s_waitcnt vmcnt(0)")
    tag_retry(range(hA, hA + 4), lr, lo, T2, T3, 8)
    a("%s:" % lo)
    a("  s_mov_b64 exec, -1")
    a("%s:" % lw0)
    a("  s_barrier                      ; B1")
    stamp("B1")
    lr, lo = a.lab("Lr"), a.lab("Lo")
    a("  s_mov_b32 s%d, 0" % sCnt)
    a("%s:" % lr)
    for rt in range(2):
        a("  buffer_load_dwordx4 v[%d:%d], v%d, s[%d:%d], s%d offen sc1" % (hA + 8 * rt, hA + 8 * rt + 3, T0, sWs, sWs + 3, sT[rt]))
        a("  buffer_load_dwordx4 v[%d:%d], v%d, s[%d:%d], s%d offen offset:16 sc1" % (hA + 8 * rt + 4, hA + 8 * rt + 7, T0, sWs, sWs + 3, sT[rt]))
    a("  s_waitcnt vmcnt(0)")
    tag_retry(range(hA, hA + 16), lr, lo, T2, T3, hop_sleep)
    a("%s:" % lo)
    a("  s_mov_b64 exec, -1")
    stamp("hop1 ok")
    for k in range(8):
        a("  v_perm_b32 v%d, v%d, v%d, s%d" % (hB + k, hA + 2 * k + 1, hA + 2 * k, sSelH))
    a("  s_nop 1")
    for rt in range(2):
        for ct in range(4):
            d = hD + (rt * 4 + ct) * 4
            a("  v_mfma_f32_16x16x32_bf16 v[%d:%d], v[%d:%d], v[%d:%d], 0" % (d, d + 3, hB + 4 * rt, hB + 4 * rt + 3, hW + ct * 4, hW + ct * 4 + 3))
    a("  s_nop 0")
    for n in range(8):
        d = hD + n * 4
        pk("v_pk_add_f32", d, d, d + 2)
        a("  v_add_f32 v%d, v%d, v%d" % (d, d, d + 1))
    for rt in range(2):
        for ct in range(4):
            d = hD + (rt * 4 + ct) * 4
            a("  ds_write_b32 v%d, v%d offset:%d" % (T1, d, rt * 1024 + ct * 64))
    a("  s_waitcnt lgkmcnt(0)")
    a("  s_barrier")
    a("  s_cmp_eq_u32 s%d, 0" % sHW)
    a("  s_cbranch_scc1 L_hop2")
    a("  s_cmp_eq_u32 s%d, 1" % sHW)
    a("  s_cbranch_scc1 L_H_done")
    for w in range(4):
        a("  ds_read_b128 v[%d:%d], v%d offset:%d" % (hA + 4 * w, hA + 4 * w + 3, hP0, w * 2048))
    a("  s_waitcnt lgkmcnt(2)")
    for k in (0, 2):
        pk("v_pk_add_f32", hA + k, hA + k, hA + 4 + k)
    a("  s_waitcnt lgkmcnt(0)")
    for k in (0, 2):
        pk("v_pk_add_f32", hA + 8 + k, hA + 8 + k, hA + 12 + k)
    for k in (0, 2):
        pk("v_pk_add_f32", hA + k, hA + k, hA + 8 + k)
    for k in range(4):
        tag(hA + k)
    a("  buffer_store_dwordx4 v[%d:%d], v%d, s[%d:%d], s%d offen sc1" % (hA, hA + 3, hP1, sWs, sWs + 3, sP))
    a("  s_endpgm")

    a("L_hop2:")
    stamp("B2")

    def tag_check(rs, t0_, t1_):
        rs = list(rs)
        for k in range(0, len(rs), 4):
            a("  v_perm_b32 v%d, v%d, v%d, s%d" % (t1_, rs[k + 1], rs[k], sSelA))
            a("  v_perm_b32 v%d, v%d, v%d, s%d" % (t1_ + 1, rs[k + 3], rs[k + 2], sSelB))
            if k == 0:
                a("  v_or_b32 v%d, v%d, v%d" % (t0_, t1_, t1_ + 1))
                a("  v_xor_b32 v%d, s%d, v%d" % (t0_, sTag4, t0_))
            else:
                a("  v_or_b32 v%d, v%d, v%d" % (t1_, t1_, t1_ + 1))
                a("  v_xor_b32 v%d, s%d, v%d" % (t1_, sTag4, t1_))
                a("  v_or_b32 v%d, v%d, v%d" % (t0_, t0_, t1_))
        a("  v_cmp_ne_u32 vcc, 0, v%d" % t0_)

    FR = hA
    if pipe2:
        SA, SB, FR = hA, hA + 8, hB
        sMk = sT[4]
        def ld(R):
            a("  buffer_load_dwordx4 v[%d:%d], v%d, s[%d:%d], s%d offen sc1" % (R, R + 3, hQ0, sWs, sWs + 3, sQ))
            a("  buffer_load_dwordx4 v[%d:%d], v%d, s[%d:%d], s%d offen offset:2048 sc1" % (R + 4, R + 7, hQ0, sWs, sWs + 3, sQ))
        lp, ld_ = a.lab("Lp"), a.lab("Lpd")
        a("  s_mov_b64 s[%d:%d], -1" % (sMk, sMk + 1))
        a("  s_mov_b32 s%d, 0" % sCnt)
        ld(SA)
        a("%s:" % lp)
        for cur, nxt in ((SA, SB), (SB, SA)):
            ld(nxt)
            a("  s_waitcnt vmcnt(2)")
            tag_check(range(cur, cur + 8), T2, T3)
            lsk = a.lab("Lsk")
            a("  s_andn2_b64 exec, s[%d:%d], vcc" % (sMk, sMk + 1))
            a("  s_cbranch_execz %s" % lsk)
            for k in range(8):
                a("  v_mov_b32 v%d, v%d" % (FR + k, cur + k))
            a("%s:" % lsk)
            a("  s_mov_b64 s[%d:%d], vcc" % (sMk, sMk + 1))
            a("  s_cbranch_vccz %s" % ld_)
            a("  s_mov_b64 exec, vcc")
        a("  s_add_u32 s%d, s%d, 1" % (sCnt, sCnt))
        a("  s_cmp_lt_u32 s%d, %d" % (sCnt, SPIN_LIMIT))
        a("  s_cbranch_scc1 %s" % lp)
        a("%s:" % ld_)
        a("  s_mov_b64 exec, -1")
    else:
        lr, lo = a.lab("Lr"), a.lab("Lo")
        a("  s_mov_b32 s%d, 0" % sCnt)
        a("%s:" % lr)
        a("  buffer_load_dwordx4 v[%d:%d], v%d, s[%d:%d], s%d offen sc1" % (hA, hA + 3, hQ0, sWs, sWs + 3, sQ))
        a("  buffer_load_dwordx4 v[%d:%d], v%d, s[%d:%d], s%d offen offset:2048 sc1" % (hA + 4, hA + 7, hQ0, sWs, sWs + 3, sQ))
        a("  s_waitcnt vmcnt(0)")
        tag_retry(range(hA, hA + 8), lr, lo, T2, T3, h2_sleep)
        a("%s:" % lo)
        a("  s_mov_b64 exec, -1")
    stamp("hop2 ok")
    untag(range(FR, FR + 8))
    pk("v_pk_add_f32", FR, FR, FR + 4)
    pk("v_pk_add_f32", FR + 2, FR + 2, FR + 6)
    reduce_hd(FR, FR + 4)
    for k in range(4):
        round_bf16(FR + k)
    for k in range(4):
        a("  v_mul_f32 v%d, v%d, v%d" % (FR + k, FR + k, hGv + k))
    for k in range(4):
        round_bf16(FR + k)
    for k in range(4):
        a("  v_add_f32 v%d, v%d, v%d" % (FR + k, FR + k, hXf + k))
    a("  v_cvt_pk_bf16_f32 v%d, v%d, v%d" % (FR, FR, FR + 1))
    a("  v_cvt_pk_bf16_f32 v%d, v%d, v%d" % (FR + 1, FR + 2, FR + 3))
    a("  s_mov_b64 exec, 15")
    a("  buffer_store_dwordx2 v[%d:%d], v%d, s[%d:%d], 0 offen" % (FR, FR + 1, hOutOff, sOut, sOut + 3))
    a("  s_mov_b64 exec, -1")
    le = a.lab("Le")
    a("  s_cmp_lg_u32 s2, 0")
    a("  s_cbranch_scc1 %s" % le)
    a("  s_add_u32 s%d, s%d, 1" % (sT[0], sEp))
    a("  v_mov_b32 v%d, s%d" % (hD, sT[0]))
    a("  v_mov_b32 v%d, %d" % (T0, EPOCH))
    a("  s_mov_b64 exec, 1")
    a("  buffer_store_dword v%d, v%d, s[%d:%d], 0 offen" % (hD, T0, sWs, sWs + 3))
    a("  s_mov_b64 exec, -1")
    a("%s:" % le)
    stamp("end")
    if dbgtime:
        a("  s_memrealtime s[98:99]")
        a("  s_load_dwordx2 s[92:93], s[0:1], 80")
        a("  s_waitcnt lgkmcnt(0)")
        a("  s_mov_b32 s94, 256")
        a("  s_mov_b32 s95, 0x20000")
        a("  s_not_b32 s100, s100")
        a("  v_mov_b32 v%d, s100" % hA)
        a("  v_mov_b32 v%d, s98" % (hA + 1))
        a("  v_mov_b32 v%d, 0" % T0)
        a("  s_mov_b64 exec, 1")
        a("  buffer_atomic_umax v%d, v%d, s[92:95], 0 offen sc1" % (hA, T0))
        a("  buffer_atomic_umax v%d, v%d, s[92:95], 0 offen offset:4 sc1" % (hA + 1, T0))
        a("  s_mov_b64 exec, -1")
    a("L_tsdump:")
    if ts:
        a("  s_waitcnt lgkmcnt(0)")
        a("  s_lshl_b32 s%d, s2, 8" % sT[0])
        a("  s_add_u32 s%d, s%d, %d" % (sT[0], sT[0], TSOFF + 0x10000))
        a("  v_mov_b32 v%d, 0" % T2)
        a("  s_mov_b64 exec, 1")
        for i in range(len(names["H"])):
            a("  v_mov_b32 v%d, s%d" % (hA, TS0 + 2 * i))
            a("  v_mov_b32 v%d, s%d" % (hA + 1, TS0 + 2 * i + 1))
            a("  buffer_store_dwordx2 v[%d:%d], v%d, s[%d:%d], s%d offen offset:%d" % (hA, hA + 1, T2, sWs, sWs + 3, sT[0], 8 * i))
            a("  s_waitcnt vmcnt(0)")
        a("  s_mov_b64 exec, -1")
    a("  s_waitcnt vmcnt(0)")
    a("L_H_done:")
    a("L_end:")
    a("  s_endpgm")
    a("L_code_end:")

    lines = a.lines
    iH = lines.index("L_H:")
    iB0 = [k for k in range(iH, len(lines)) if "s_barrier" in lines[k] and "B0" in lines[k]][0]
    iE = iB0 + 1
    if ts and "s_memrealtime" in lines[iE]:
        iE += 1
    hpro = lines[iH + 1:iE]
    rest = lines[:iH] + ["L_H2:"] + lines[iE:]
    ib = [k for k, l in enumerate(rest) if l.strip() == "s_cbranch_scc1 L_H"][0]
    if layout:
        rest = rest[:ib] + ["  s_cbranch_scc0 L_S"] + hpro + ["  s_branch L_H2"] + rest[ib + 1:]
    else:
        rest = lines
    a.lines = rest
    body = a.text()
    s = HEADER
    s += "; @launch grid=(256,1,1) block=(512,1,1) lds=%d\n" % LDS_TOTAL
    s += '.amdgcn_target "amdgcn-amd-amdhsa--gfx950"\n.text\n'
    s += ".globl %s\n.p2align 8\n.type %s,@function\n%s:\n" % (KNAME, KNAME, KNAME)
    s += body
    s += """
.section .rodata,"a"
.p2align 6
.amdhsa_kernel %s
  .amdhsa_next_free_vgpr %d
  .amdhsa_next_free_sgpr 102
  .amdhsa_accum_offset %d
  .amdhsa_group_segment_fixed_size 0
  .amdhsa_kernarg_size 96
  .amdhsa_user_sgpr_count 2
  .amdhsa_user_sgpr_kernarg_segment_ptr 1
  .amdhsa_system_sgpr_workgroup_id_x 1
.end_amdhsa_kernel
""" % (KNAME, NV, NV)
    gen.names = names
    return s


if __name__ == "__main__":
    kw = {}
    out = "main.s"
    for arg in sys.argv[1:]:
        if "=" in arg:
            k, v = arg.split("=")
            kw[k] = int(v)
        else:
            out = arg
    open(out, "w").write(gen(**kw))
    import json
    json.dump(gen.names, open(out[:-2] + ".names.json", "w"))
    print("wrote", out)
```

```python
import sys
from asmlib import HEADER, KNAME

QP = 0x000000
GP = 0x080000
HH = 0x0F0000
OP = 0x100000
ST = 0x180000
DP = 0x190000
SP = 0x210000
EPOCH = 0x0FF000
EW = 0x2A0000
TSOFF = 0x0F000000

RING = 32768
MISC = 131072
XN = MISC
XN_STRIDE = 1040
QL = MISC + 8448
QL_STRIDE = 272
WOS = QL + 1088
WOS = (WOS + 255) // 256 * 256
FLG = WOS + 16384
F_H1 = 0; F_H3 = 8; F_QRDY = 16; F_STG = 20; F_ST = 24; F_HOP1 = 32; F_EW = 36; F_RED = 40; F_DOWN = 44; F_LATE = 48; F_EWS = 52; F_LOC = 56; F_MID = 60
SSTAT = 64
FFAC = 192
SPARE = FLG + 256
LDS_TOTAL = SPARE + 4096
assert LDS_TOTAL <= 163840, LDS_TOTAL
SPIN_LIMIT = 200000


class Asm:
    def __init__(self):
        self.lines = []
        self.nlab = 0

    def __call__(self, s=""):
        for l in s.split("\n"):
            self.lines.append(l)

    def lab(self, base="L"):
        self.nlab += 1
        return "%s_%d" % (base, self.nlab)

    def text(self):
        return "\n".join(self.lines) + "\n"


def vr(base, n=1):
    return "v%d" % base if n == 1 else "v[%d:%d]" % (base, base + n - 1)


def sr(base, n=1):
    return "s%d" % base if n == 1 else "s[%d:%d]" % (base, base + n - 1)


DPP = "row_mask:0xf bank_mask:0xf"


def gen(ts=False, dbg=0, rotmode=3, depth=8, noq=0, noffn=0, hop_sleep=0, ew_it=3, dbgtime=0, noh=0, ffn_sleep=24, skip=0, st_sleep=4, late_it=1, uselocal=1, mid_it=2, r4=0, gnt=0, xnt=0, pf=1, b0pos=0, la=1, gplocal=1, early_census=1, layout=1, presm=0, pipe2=0, h2_sleep=0, sprio=0, dfill=0, dk=0, locnt=0):
    a = Asm()
    sW, sX, sLi, sCnt = 3, 4, 5, 6
    sT = [20, 21, 22, 23, 24, 25, 26, 27]
    TS0 = 68
    nts = [0]

    names = {"S": ["start"], "H": ["start"]}
    role = ["S"]

    def stamp(name):
        if name == 0:
            if ts:
                a("  s_memrealtime s[%d:%d]" % (TS0, TS0 + 1))
            return
        lst = names[role[0]]
        if name not in lst:
            lst.append(name)
        idx = lst.index(name)
        assert TS0 + 2 * idx + 1 <= 101
        if ts:
            a("  s_memrealtime s[%d:%d]" % (TS0 + 2 * idx, TS0 + 2 * idx + 1))

    def lds_wait(vbase, off, n, vtmp, sleep=1):
        l0, l1 = a.lab("Lw"), a.lab("Lwd")
        a("  s_mov_b32 s%d, 0" % sCnt)
        a("%s:" % l0)
        a("  ds_read_b32 v%d, v%d offset:%d" % (vtmp, vbase, off))
        a("  s_waitcnt lgkmcnt(0)")
        a("  v_readfirstlane_b32 s%d, v%d" % (sT[7], vtmp))
        a("  s_cmp_ge_u32 s%d, %d" % (sT[7], n))
        a("  s_cbranch_scc1 %s" % l1)
        a("  s_add_u32 s%d, s%d, 1" % (sCnt, sCnt))
        a("  s_cmp_lt_u32 s%d, %d" % (sCnt, SPIN_LIMIT))
        a("  s_cbranch_scc0 %s" % l1)
        a("  s_sleep %d" % sleep)
        a("  s_branch %s" % l0)
        a("%s:" % l1)

    def lds_add(vbase, off, vone):
        a("  s_mov_b64 exec, 1")
        a("  ds_add_u32 v%d, v%d offset:%d" % (vbase, vone, off))
        a("  s_mov_b64 exec, -1")

    def store_loc(stores, sflag):
        l0, l1 = a.lab("Lsl"), a.lab("Lsl")
        a("  s_cmp_eq_u32 s%d, 0" % sflag)
        a("  s_cbranch_scc1 %s" % l0)
        for st in stores:
            a(st + (" nt" if locnt else ""))
        a("  s_branch %s" % l1)
        a("%s:" % l0)
        for st in stores:
            a(st + " sc1")
        a("%s:" % l1)

    def reduce_swap(op, v, t, kind):
        a("  v_mov_b32 v%d, v%d" % (t, v))
        a("  s_nop 1")
        a("  v_permlane%d_swap_b32 v%d, v%d" % (kind, v, t))
        a("  %s v%d, v%d, v%d" % (op, v, v, t))

    a("  s_cmp_ge_u32 s2, 256")
    a("  s_cbranch_scc1 L_end")
    stamp(0)
    if dbgtime:
        a("  s_memrealtime s[100:101]")
    a("  v_lshrrev_b32 v1, 6, v0")
    a("  v_and_b32 v0, 63, v0            ; lane")
    a("  v_readfirstlane_b32 s%d, v1     ; wave id" % sW)
    a("  s_and_b32 s%d, s2, 7" % sX)
    a("  s_lshr_b32 s%d, s2, 3" % sLi)
    a("  s_cmp_ge_u32 s%d, 4" % sW)
    a("  s_cbranch_scc1 L_H")

    sK, sV, sCur = 8, 12, 16
    sBaseW, sRot, sRing, sIss, sOff, sIt = 28, 29, 30, 31, 32, 33
    sOff1 = 50
    sM = 34
    sScale, sHi = 42, 43
    vLane = 0
    vMisc, vOne = 2, 3
    vKo, vVo, vCo = 4, 8, 12
    vKa = 16
    vVa = 20
    vTmp = 28
    vSp = 36
    vPf = 44
    vAcc = 52
    vE = 56
    vSt = 72
    vO = 104
    vQ = 136
    NV = 200

    sWsS = 44
    sEp = 48
    sBaseW1 = 49
    a("L_S:")
    if sprio:
        a("  s_setprio %d" % sprio)
    if pf:
        lpf = a.lab("Lpf")
        a("  s_cmp_lg_u32 s%d, 3" % sW)
        a("  s_cbranch_scc1 %s" % lpf)
        a("  s_and_b32 s%d, s%d, 15" % (sT[0], sLi))
        a("  s_cmp_lg_u32 s%d, 0" % sT[0])
        a("  s_cbranch_scc1 %s" % lpf)
        a("  s_getpc_b64 s[%d:%d]" % (sT[2], sT[3]))
        a("L_pc:")
        a("  v_lshlrev_b32 v%d, 7, v%d" % (vTmp + 2, vLane))
        a("  v_add_u32 v%d, 0x2000, v%d" % (vTmp + 3, vTmp + 2))
        a("  global_load_dword v%d, v%d, s[%d:%d]" % (vSt, vTmp + 2, sT[2], sT[3]))
        a("  v_cmp_gt_u32 vcc, L_code_end-L_pc, v%d" % (vTmp + 3))
        a("  s_and_saveexec_b64 s[%d:%d], vcc" % (sT[4], sT[5]))
        a("  s_cbranch_execz L_pf_done")
        a("  global_load_dword v%d, v%d, s[%d:%d]" % (vSt + 1, vTmp + 3, sT[2], sT[3]))
        a("L_pf_done:")
        a("  s_mov_b64 exec, -1")
        a("%s:" % lpf)
    a("  s_load_dwordx2 s[%d:%d], s[0:1], 8" % (sCur, sCur + 1))
    a("  s_load_dwordx2 s[%d:%d], s[0:1], 16" % (sV, sV + 1))
    a("  s_load_dwordx2 s[%d:%d], s[0:1], 88" % (sWsS, sWsS + 1))
    a("  s_mov_b32 s%d, 0x4000000" % (sCur + 2))
    a("  s_mov_b32 s%d, 0x20000" % (sCur + 3))
    a("  s_lshr_b32 s%d, s%d, 2" % (sT[0], sLi))
    a("  s_lshl_b32 s%d, s%d, 3" % (sT[0], sT[0]))
    a("  s_add_u32 s%d, s%d, s%d" % (sT[0], sT[0], sX))
    a("  s_lshl_b32 s%d, s%d, 2" % (sT[0], sT[0]))
    a("  s_and_b32 s%d, s%d, 3" % (sT[1], sLi))
    a("  s_add_u32 s%d, s%d, s%d" % (sT[0], sT[0], sT[1]))
    a("  s_lshl_b32 s%d, s%d, 18" % (sT[0], sT[0]))
    a("  s_lshl_b32 s%d, s%d, 13" % (sT[1], sW))
    if r4:
        if r4 == 1:
            a("  s_lshl_b32 s%d, s%d, 12" % (sT[2], sLi))
        else:
            a("  s_lshr_b32 s%d, s%d, 2" % (sT[2], sLi))
            a("  s_add_u32 s%d, s%d, s%d" % (sT[2], sT[2], sX))
            a("  s_lshl_b32 s%d, s%d, 12" % (sT[2], sT[2]))
        a("  s_add_u32 s%d, s%d, s%d" % (sT[1], sT[1], sT[2]))
        a("  s_add_u32 s%d, s%d, 4096" % (sT[2], sT[1]))
        a("  s_and_b32 s%d, s%d, 0x7fff" % (sT[1], sT[1]))
        a("  s_and_b32 s%d, s%d, 0x7fff" % (sT[2], sT[2]))
        a("  s_add_u32 s%d, s%d, s%d" % (sBaseW, sT[0], sT[1]))
        a("  s_add_u32 s%d, s%d, s%d" % (sBaseW1, sT[0], sT[2]))
    else:
        a("  s_add_u32 s%d, s%d, s%d" % (sBaseW, sT[0], sT[1]))
        a("  s_add_u32 s%d, s%d, 4096" % (sBaseW1, sBaseW))
    if rotmode == 0:
        sRotR = 2
    elif rotmode == 3:
        sRotR = sLi
    else:
        a("  s_add_u32 s%d, s2, s%d" % (sRot, sLi))
        sRotR = sRot
    a("  s_lshl_b32 s%d, s%d, 15" % (sRing, sW))
    a("  s_mov_b32 s%d, 0" % sIss)
    t0, t1, t2 = vTmp, vTmp + 1, vTmp + 2
    a("  v_lshrrev_b32 v%d, 4, v%d      ; g = l>>4" % (t0, vLane))
    a("  v_and_b32 v%d, 15, v%d         ; c' = l&15" % (t1, vLane))
    for i in range(4):
        a("  v_add_u32 v%d, %d, v%d" % (t2, 4 * i, t0))
        a("  v_xor_b32 v%d, v%d, v%d" % (t2, t2, t1))
        a("  v_lshlrev_b32 v%d, 4, v%d" % (t2, t2))
        a("  v_lshl_add_u32 v%d, v%d, 8, v%d" % (vCo + i, t0, t2))
    a("  v_mov_b32 v%d, %d" % (vMisc, FLG))
    a("  v_mov_b32 v%d, 1" % vOne)
    a("  s_waitcnt lgkmcnt(0)")
    a("  s_barrier                      ; B0")

    def issue_unit(switch=False, dep=None):
        depth_ = dep if dep else depth
        if switch:
            lsw = a.lab("Lsw")
            a("  s_cmp_lg_u32 s%d, 8" % sIss)
            a("  s_cbranch_scc1 %s" % lsw)
            for i in range(4):
                a("  s_mov_b32 s%d, s%d" % (sCur + i, sV + i))
            for i in range(4):
                a("  v_mov_b32 v%d, v%d" % (vCo + i, vVo + (i & 1)))
            a("%s:" % lsw)
        a("  s_add_u32 s%d, s%d, s%d" % (sT[0], sIss, sRotR))
        a("  s_and_b32 s%d, s%d, 7" % (sT[0], sT[0]))
        a("  s_lshl_b32 s%d, s%d, 15" % (sT[0], sT[0]))
        a("  s_add_u32 s%d, s%d, s%d" % (sOff, sT[0], sBaseW))
        a("  s_add_u32 s%d, s%d, s%d" % (sOff1, sT[0], sBaseW1))
        a("  s_and_b32 s%d, s%d, 3" % (sT[0], sIss))
        a("  s_lshl_b32 s%d, s%d, 13" % (sT[0], sT[0]))
        a("  s_add_u32 m0, s%d, s%d" % (sT[0], sRing))
        a("  s_add_u32 s%d, s%d, 1" % (sIss, sIss))
        a("  s_waitcnt vmcnt(%d)" % (depth_ - 1))
        for i in range(4):
            a("  buffer_load_dwordx4 v%d, s[%d:%d], s%d offen offset:%d nt lds" % (vCo + i, sCur, sCur + 3, sOff, i * 1024))
            if i < 3:
                a("  s_waitcnt vmcnt(%d)" % (depth_ - 1))
        a("  s_add_u32 m0, m0, 4096")
        a("  s_waitcnt vmcnt(%d)" % (depth_ - 1))
        for i in range(4):
            a("  buffer_load_dwordx4 v%d, s[%d:%d], s%d offen offset:%d nt lds" % (vCo + i, sCur, sCur + 3, sOff1, i * 1024))
            if i < 3:
                a("  s_waitcnt vmcnt(%d)" % (depth_ - 1))

    a("L_fill:")
    a("  s_cmp_lg_u32 s%d, 3" % sIss)
    a("  s_cbranch_scc1 L_fill_go")
    stamp("u2 issued")
    lds_wait(vMisc, F_STG, 4, vTmp + 5)
    stamp("STG ok")
    a("L_fill_go:")
    issue_unit(dep=dfill)

    a("  s_cmp_lt_u32 s%d, 4" % sIss)
    a("  s_cbranch_scc1 L_fill")
    a("  s_load_dword s%d, s[%d:%d], 0x%x" % (sEp, sWsS, sWsS + 1, EPOCH))
    a("  s_mov_b32 s%d, 0x4000000" % (sV + 2))
    a("  s_mov_b32 s%d, 0x20000" % (sV + 3))
    a("  s_mov_b32 s%d, 0x10000000" % (sWsS + 2))
    a("  s_mov_b32 s%d, 0x20000" % (sWsS + 3))
    for i in range(2):
        a("  v_add_u32 v%d, %d, v%d" % (t2, 4 * i, t0))
        a("  v_lshlrev_b32 v%d, 1, v%d" % (t2, t2))
        a("  v_xor_b32 v%d, v%d, v%d" % (t2, t2, t1))
        a("  v_lshlrev_b32 v%d, 4, v%d" % (t2, t2))
        a("  v_lshl_add_u32 v%d, v%d, 8, v%d" % (vVo + i, t0, t2))
    for s in range(4):
        a("  v_add_u32 v%d, %d, v%d" % (t2, 4 * s, t0))
        a("  v_xor_b32 v%d, v%d, v%d" % (t2, t2, t1))
        a("  v_lshlrev_b32 v%d, 4, v%d" % (t2, t2))
        a("  v_lshl_add_u32 v%d, v%d, 8, v%d" % (t2, t1, t2))
        a("  v_add_u32 v%d, s%d, v%d" % (vKa + s, sRing, t2))
    t3, t4 = vTmp + 3, vTmp + 4
    a("  v_lshrrev_b32 v%d, 2, v%d" % (t2, t1))
    a("  v_lshl_add_u32 v%d, v%d, 2, v%d    ; row" % (t2, t0, t2))
    a("  v_and_b32 v%d, 7, v%d              ; row&7" % (t3, t2))
    a("  v_lshlrev_b32 v%d, 8, v%d" % (t2, t2))
    a("  v_and_b32 v%d, 3, v%d" % (t4, t1))
    a("  v_lshl_add_u32 v%d, v%d, 3, v%d" % (t2, t4, t2))
    a("  v_add_u32 v%d, s%d, v%d" % (t2, sRing, t2))
    for dt in range(8):
        a("  v_xor_b32 v%d, %d, v%d" % (t4, dt, t3))
        a("  v_lshl_add_u32 v%d, v%d, 5, v%d" % (vVa + dt, t4, t2))
    for i in range(64):
        a("  v_mov_b32 v%d, 0" % (vQ + i))
    a("  v_bfe_u32 v%d, v%d, 2, 2" % (t2, vLane))
    for t in range(4):
        a("  v_cmp_eq_u32 s[%d:%d], %d, v%d" % (sM + 2 * t, sM + 2 * t + 1, t, t2))
    a("  v_and_b32 v%d, 3, v%d" % (t2, vLane))
    a("  v_mul_u32_u24 v%d, %d, v%d" % (t2, QL_STRIDE, t2))
    a("  v_lshl_add_u32 v%d, v%d, 4, v%d" % (t2, t0, t2))
    a("  v_add_u32 v%d, %d, v%d" % (t2, QL, t2))
    a("  s_mov_b32 s%d, 0x3DB504F3      ; 128^-0.5" % sScale)
    a("  s_mov_b32 s%d, 0xffff0000" % sHi)
    stamp("fill done")
    if not noq:
        lds_wait(vMisc, F_QRDY, 4, vTmp + 5)
    stamp("Q ready")
    for t in range(4):
        a("  s_mov_b64 exec, s[%d:%d]" % (sM + 2 * t, sM + 2 * t + 1))
        for s in range(4):
            r = vQ + (t * 4 + s) * 4
            a("  ds_read_b128 v[%d:%d], v%d offset:%d" % (r, r + 3, t2, 64 * s))
    a("  s_mov_b64 exec, -1")
    a("  s_mov_b32 s%d, 0" % sIt)
    a("  s_waitcnt vmcnt(0) lgkmcnt(0)")

    a("L_k:")
    lmid = a.lab("Lmid")
    a("  s_cmp_lg_u32 s%d, 0" % sW)
    a("  s_cbranch_scc1 %s" % lmid)
    a("  s_cmp_lg_u32 s%d, %d" % (sIt, mid_it))
    a("  s_cbranch_scc1 %s" % lmid)
    lds_add(vMisc, F_MID, vOne)
    a("%s:" % lmid)
    for u in range(2):
        if u == 0:
            lsk = a.lab("Lsk")
            a("  s_cmp_lt_u32 s%d, %d" % (sIt, 3 if la == 1 else 2))
            a("  s_cbranch_scc1 %s" % lsk)
            issue_unit(switch=(la == 2), dep=dk)
            a("%s:" % lsk)
        else:
            issue_unit(switch=(la == 1), dep=dk)
        for hf in range(2):
            for s_ in range(4):
                r = vSt + (hf * 4 + s_) * 4
                a("  ds_read_b128 v[%d:%d], v%d offset:%d" % (r, r + 3, vKa + s_, u * 8192 + hf * 4096))
        for hf in range(2):
            a("  s_waitcnt lgkmcnt(%d)" % (4 if hf == 0 else 0))
            t = 2 * u + hf
            for s_ in range(4):
                r = vSt + (hf * 4 + s_) * 4
                q = vQ + (t * 4 + s_) * 4
                c = "0" if (u == 0 and hf == 0 and s_ == 0) else "v[%d:%d]" % (vAcc, vAcc + 3)
                a("  v_mfma_f32_16x16x32_bf16 v[%d:%d], v[%d:%d], v[%d:%d], %s" % (vAcc, vAcc + 3, r, r + 3, q, q + 3, c))
    for i in range(6):
        a("  v_mov_b32 v%d, v%d" % (vSp + i, vSp + i + 2))
    for s in range(4):
        a("  v_xor_b32 v%d, 0x4000, v%d" % (vKa + s, vKa + s))
    c0, c1 = vTmp, vTmp + 1
    e0 = vTmp + 2
    a("  v_cvt_pk_bf16_f32 v%d, v%d, v%d" % (c0, vAcc, vAcc + 1))
    a("  v_cvt_pk_bf16_f32 v%d, v%d, v%d" % (c1, vAcc + 2, vAcc + 3))
    a("  v_lshlrev_b32 v%d, 16, v%d" % (e0, c0))
    a("  v_and_b32 v%d, s%d, v%d" % (e0 + 1, sHi, c0))
    a("  v_lshlrev_b32 v%d, 16, v%d" % (e0 + 2, c1))
    a("  v_and_b32 v%d, s%d, v%d" % (e0 + 3, sHi, c1))
    for i in range(4):
        a("  v_mul_f32 v%d, s%d, v%d" % (e0 + i, sScale, e0 + i))
    a("  v_cvt_pk_bf16_f32 v%d, v%d, v%d" % (vSp + 6, e0, e0 + 1))
    a("  v_cvt_pk_bf16_f32 v%d, v%d, v%d" % (vSp + 7, e0 + 2, e0 + 3))
    a("  s_add_u32 s%d, s%d, 1" % (sIt, sIt))
    a("  s_cmp_lt_u32 s%d, 4" % sIt)
    a("  s_cbranch_scc1 L_k")
    stamp("K done")
    if presm and la == 1:
        issue_unit()

    for i in range(8):
        a("  v_lshlrev_b32 v%d, 16, v%d" % (vE + 2 * i, vSp + i))
        a("  v_and_b32 v%d, s%d, v%d" % (vE + 2 * i + 1, sHi, vSp + i))
    vM, vL, vX = vTmp, vTmp + 1, vTmp + 2
    a("  v_max3_f32 v%d, v%d, v%d, v%d" % (vM, vE, vE + 1, vE + 2))
    for i in range(3, 15, 2):
        a("  v_max3_f32 v%d, v%d, v%d, v%d" % (vM, vM, vE + i, vE + i + 1))
    a("  v_max_f32 v%d, v%d, v%d" % (vM, vM, vE + 15))
    a("  s_nop 1")
    a("  v_max_f32_dpp v%d, v%d, v%d row_ror:4 %s" % (vM, vM, vM, DPP))
    a("  s_nop 1")
    a("  v_max_f32_dpp v%d, v%d, v%d row_ror:8 %s" % (vM, vM, vM, DPP))
    reduce_swap("v_max_f32", vM, vX, 16)
    reduce_swap("v_max_f32", vM, vX, 32)
    a("  s_mov_b32 s%d, 0x3FB8AA3B      ; log2(e)" % sT[0])
    a("  v_mul_f32 v%d, s%d, v%d" % (vX, sT[0], vM))
    for i in range(16):
        a("  v_fma_f32 v%d, v%d, s%d, -v%d" % (vE + i, vE + i, sT[0], vX))
    for i in range(16):
        a("  v_exp_f32 v%d, v%d" % (vE + i, vE + i))
    a("  s_nop 0")
    for i in range(8):
        a("  v_cvt_pk_bf16_f32 v%d, v%d, v%d" % (vSp + i, vE + 2 * i, vE + 2 * i + 1))
    for i in range(4):
        a("  v_pk_add_f32 v[%d:%d], v[%d:%d], v[%d:%d]" % (vE + 2 * i, vE + 2 * i + 1, vE + 2 * i, vE + 2 * i + 1, vE + 8 + 2 * i, vE + 9 + 2 * i))
    for i in range(2):
        a("  v_pk_add_f32 v[%d:%d], v[%d:%d], v[%d:%d]" % (vE + 2 * i, vE + 2 * i + 1, vE + 2 * i, vE + 2 * i + 1, vE + 4 + 2 * i, vE + 5 + 2 * i))
    a("  v_pk_add_f32 v[%d:%d], v[%d:%d], v[%d:%d]" % (vE, vE + 1, vE, vE + 1, vE + 2, vE + 3))
    a("  v_add_f32 v%d, v%d, v%d" % (vL, vE, vE + 1))
    a("  s_nop 1")
    a("  v_add_f32_dpp v%d, v%d, v%d row_ror:4 %s" % (vL, vL, vL, DPP))
    a("  s_nop 1")
    a("  v_add_f32_dpp v%d, v%d, v%d row_ror:8 %s" % (vL, vL, vL, DPP))
    reduce_swap("v_add_f32", vL, vX, 16)
    reduce_swap("v_add_f32", vL, vX, 32)
    a("  s_lshl_b32 s%d, s%d, 5" % (sT[0], sW))
    a("  v_lshlrev_b32 v%d, 3, v%d" % (vX, vLane))
    a("  v_add_u32 v%d, s%d, v%d" % (vX, sT[0], vX))
    a("  v_add_u32 v%d, v%d, v%d" % (vX, vMisc, vX))
    a("  s_mov_b64 exec, 15")
    a("  ds_write_b64 v%d, v[%d:%d] offset:%d" % (vX, vM, vM + 1, SSTAT))
    a("  s_waitcnt lgkmcnt(0)")
    a("  s_mov_b64 exec, -1")
    lds_add(vMisc, F_ST, vOne)

    for i in range(32):
        a("  v_mov_b32 v%d, 0" % (vO + i))
    a("  s_mov_b32 s%d, 0" % sIt)
    a("L_v:")
    a("  v_mov_b32 v%d, v%d" % (vPf, vSp))
    a("  v_mov_b32 v%d, v%d" % (vPf + 1, vSp + 1))
    for k, sh in ((2, 4), (4, 8), (6, 12)):
        a("  v_mov_b32_dpp v%d, v%d row_shl:%d %s bound_ctrl:0" % (vPf + k, vSp, sh, DPP))
        a("  v_mov_b32_dpp v%d, v%d row_shl:%d %s bound_ctrl:0" % (vPf + k + 1, vSp + 1, sh, DPP))
    for i in range(6):
        a("  v_mov_b32 v%d, v%d" % (vSp + i, vSp + i + 2))
    lew = a.lab("Lew")
    a("  s_cmp_lg_u32 s%d, 0" % sW)
    a("  s_cbranch_scc1 %s" % lew)
    lew2 = a.lab("Lew")
    a("  s_cmp_lg_u32 s%d, %d" % (sIt, late_it))
    a("  s_cbranch_scc1 %s" % lew2)
    lds_add(vMisc, F_LATE, vOne)
    a("%s:" % lew2)
    a("  s_cmp_lg_u32 s%d, %d" % (sIt, ew_it))
    a("  s_cbranch_scc1 %s" % lew)
    lds_add(vMisc, F_EWS, vOne)
    a("%s:" % lew)
    for u in range(2):
        if u == 0 and la == 1:
            if presm:
                lsk = a.lab("Lsk")
                a("  s_cmp_eq_u32 s%d, 0" % sIt)
                a("  s_cbranch_scc1 %s" % lsk)
                issue_unit()
                a("%s:" % lsk)
            else:
                issue_unit()
        else:
            lv_else, lv_done = a.lab("Lve"), a.lab("Lvd")
            a("  s_cmp_ge_u32 s%d, 3" % sIt)
            a("  s_cbranch_scc1 %s" % lv_else)
            issue_unit()
            a("  s_branch %s" % lv_done)
            a("%s:" % lv_else)
            a("  s_waitcnt vmcnt(%d)" % (8 if u == 0 else 0))
            a("%s:" % lv_done)
        for dt in range(8):
            r = vSt + dt * 4
            a("  ds_read_b64_tr_b16 v[%d:%d], v%d offset:%d" % (r, r + 1, vVa + dt, u * 8192))
            a("  ds_read_b64_tr_b16 v[%d:%d], v%d offset:%d" % (r + 2, r + 3, vVa + dt, u * 8192 + 4096))
        for dt in range(8):
            r = vSt + dt * 4
            o = vO + dt * 4
            if dt % 2 == 0:
                a("  s_waitcnt lgkmcnt(%d)" % (12 - 2 * dt if dt < 6 else 0))
            a("  v_mfma_f32_16x16x32_bf16 v[%d:%d], v[%d:%d], v[%d:%d], v[%d:%d]" % (o, o + 3, r, r + 3, vPf + 4 * u, vPf + 4 * u + 3, o, o + 3))
    for dt in range(8):
        a("  v_xor_b32 v%d, 0x4000, v%d" % (vVa + dt, vVa + dt))
    a("  s_add_u32 s%d, s%d, 1" % (sIt, sIt))
    a("  s_cmp_lt_u32 s%d, 4" % sIt)
    a("  s_cbranch_scc1 L_v")
    stamp("V done")
    a("  v_and_b32 v%d, 15, v%d" % (t1, vLane))
    a("  v_lshrrev_b32 v%d, 4, v%d" % (t0, vLane))
    a("  v_lshlrev_b32 v%d, 9, v%d" % (t2, t1))
    a("  v_lshl_add_u32 v%d, v%d, 4, v%d" % (t2, t0, t2))
    a("  v_add_u32 v%d, s%d, v%d" % (t2, sRing, t2))
    a("  v_cmp_gt_u32 vcc, 4, v%d" % t1)
    a("  s_nop 4")
    a("  s_mov_b64 exec, vcc")
    for dt in range(8):
        a("  ds_write_b128 v%d, v[%d:%d] offset:%d" % (t2, vO + dt * 4, vO + dt * 4 + 3, dt * 64))
    a("  s_mov_b64 exec, -1")
    vR0, vR1, vR2, vR3 = vPf, vPf + 1, vPf + 2, vPf + 3
    a("  v_lshlrev_b32 v%d, 9, v%d" % (vR0, t0))
    a("  v_lshl_add_u32 v%d, v%d, 4, v%d      ; h*512 + c*16" % (vR0, t1, vR0))
    a("  v_lshl_add_u32 v%d, v%d, 4, v%d      ; FLG + h*16" % (vR1, t0, vMisc))
    a("  v_lshlrev_b32 v%d, 14, v%d" % (vR2, t0))
    a("  v_lshrrev_b32 v%d, 3, v%d" % (t3, t1))
    a("  v_lshl_add_u32 v%d, v%d, 11, v%d" % (vR2, t3, vR2))
    a("  v_and_b32 v%d, 7, v%d" % (t3, t1))
    a("  v_lshl_add_u32 v%d, v%d, 4, v%d" % (vR2, t3, vR2))
    a("  s_lshl_b32 s%d, s%d, 16" % (sT[0], sX))
    a("  s_lshr_b32 s%d, s%d, 4" % (sT[1], sLi))
    a("  s_lshl_b32 s%d, s%d, 13" % (sT[1], sT[1]))
    a("  s_add_u32 s%d, s%d, s%d" % (sT[0], sT[0], sT[1]))
    a("  s_and_b32 s%d, s%d, 15" % (sT[1], sLi))
    a("  s_lshl_b32 s%d, s%d, 7" % (sT[1], sT[1]))
    a("  s_add_u32 s%d, s%d, s%d" % (sT[0], sT[0], sT[1]))
    a("  s_add_u32 s%d, s%d, %d" % (sT[0], sT[0], OP))
    a("  s_add_u32 s%d, s%d, 1" % (sT[1], sEp))
    a("  s_and_b32 s%d, s%d, 0xff" % (sT[1], sT[1]))
    a("  v_mov_b32 v%d, s%d" % (vR3, sT[1]))
    a("  s_add_u32 s%d, s%d, 4096" % (sT[1], sT[0]))
    a("  s_mov_b32 s%d, 0xffff0000" % sT[2])
    lds_wait(vMisc, F_LOC, 1, t3)
    a("  s_lshr_b32 s%d, s%d, 1" % (sT[3], sT[7]))
    a("  s_waitcnt lgkmcnt(0)")
    a("  s_barrier                      ; B1")
    a("  s_cmp_lg_u32 s%d, 0" % sW)
    a("  s_cbranch_scc1 L_S_done")
    sWs = sWsS
    for w in range(4):
        a("  ds_read_b128 v[%d:%d], v%d offset:%d" % (vSt + w * 8, vSt + w * 8 + 3, vR0, (w & 1) * 32768))
        a("  ds_read_b128 v[%d:%d], v%d offset:%d" % (vSt + w * 8 + 4, vSt + w * 8 + 7, vR0, (w & 1) * 32768 + 256))
        if w == 1:
            a("  v_add_u32 v%d, 0x10000, v%d" % (vR0, vR0))
    a("  ds_read_b128 v[%d:%d], v%d offset:%d" % (vE, vE + 3, vR1, FFAC))
    a("  s_waitcnt lgkmcnt(0)")
    for i in range(8):
        a("  v_mul_f32 v%d, v%d, v%d" % (vO + i, vSt + i, vE))
    for w in range(1, 4):
        for i in range(8):
            a("  v_fmac_f32 v%d, v%d, v%d" % (vO + i, vSt + w * 8 + i, vE + w))
    for i in range(8):
        a("  v_cvt_pk_bf16_f32 v%d, v%d, v%d" % (vO + i, vO + i, vO + i))
    for i in range(8):
        a("  v_and_or_b32 v%d, v%d, s%d, v%d" % (vO + i, vO + i, sT[2], vR3))
    store_loc(["  buffer_store_dwordx4 v[%d:%d], v%d, s[%d:%d], s%d offen" % (vO, vO + 3, vR2, sWs, sWs + 3, sT[0]),
               "  buffer_store_dwordx4 v[%d:%d], v%d, s[%d:%d], s%d offen" % (vO + 4, vO + 7, vR2, sWs, sWs + 3, sT[1])], sT[3])
    stamp("published")
    a("  s_barrier                      ; B2")
    if ts:
        a("  s_waitcnt lgkmcnt(0)")
        a("  s_lshl_b32 s%d, s2, 8" % sT[0])
        a("  s_add_u32 s%d, s%d, %d" % (sT[0], sT[0], TSOFF))
        a("  v_mov_b32 v%d, 0" % t2)
        a("  s_mov_b64 exec, 1")
        for i in range(len(names["S"])):
            a("  v_mov_b32 v%d, s%d" % (vO, TS0 + 2 * i))
            a("  v_mov_b32 v%d, s%d" % (vO + 1, TS0 + 2 * i + 1))
            a("  buffer_store_dwordx2 v[%d:%d], v%d, s[%d:%d], s%d offen offset:%d" % (vO, vO + 1, t2, sWs, sWs + 3, sT[0], 8 * i))
            a("  s_waitcnt vmcnt(0)")
        a("  s_mov_b64 exec, -1")
    a("L_S_done:")
    a("  s_endpgm")

    role[0] = "H"
    a("L_H:")
    sHW = 7
    sXd, sWq, sWs, sGU, sWd, sWo, sOut = 8, 12, 16, 32, 36, 40, 44
    sEp = 28
    sTag = 29
    sNotFF = 30
    sTag4 = 31
    sHi2 = 48
    sFi = 49
    sSelA, sSelB = 50, 54
    sB = 51; sJ = 52; sFidx = 53
    sKb2 = 55
    sLo8 = 60
    sFv = 3
    sLoc = 56
    sDbg = 64
    sHq = 62
    sWoStg = 63
    hMisc, hOne = 2, 3
    hG, hI = 4, 5
    hT = 6
    hX = 16
    hF = 24
    hY = 40
    hA = 56
    hB = 72
    hD = 88
    hW = 120
    hXf = 136
    hZ = 144
    hTag = 156
    hWd = 160
    hMid = 197
    T0, T1, T2, T3, T4, T5 = hT, hT + 1, hT + 2, hT + 3, hT + 4, hT + 5
    hTr, hXn, hW1k, hTrG, hOutOff = hZ + 1, hZ + 2, hZ + 4, hZ + 5, hZ + 6

    a("  s_load_dwordx2 s[%d:%d], s[0:1], 0" % (sXd, sXd + 1))
    a("  s_load_dwordx2 s[%d:%d], s[0:1], 24" % (sWq, sWq + 1))
    a("  s_load_dwordx4 s[56:59], s[0:1], 48")
    a("  s_load_dwordx2 s[%d:%d], s[0:1], 88" % (sWs, sWs + 1))
    a("  v_lshlrev_b32 v%d, 2, v0" % T0)
    a("  v_add_u32 v%d, %d, v%d" % (T0, FLG, T0))
    a("  v_mov_b32 v%d, 0" % T1)
    a("  ds_write_b32 v%d, v%d" % (T0, T1))
    a("  s_sub_u32 s%d, s%d, 4" % (sHW, sW))
    a("  s_mov_b32 s%d, 8192" % (sXd + 2))
    a("  s_mov_b32 s%d, 0x20000" % (sXd + 3))
    a("  v_lshrrev_b32 v%d, 5, v0" % T0)
    a("  s_lshl_b32 s%d, s%d, 1" % (sT[0], sHW))
    a("  v_add_u32 v%d, s%d, v%d          ; row b" % (T0, sT[0], T0))
    a("  v_and_b32 v%d, 31, v0" % T1)
    a("  v_lshlrev_b32 v%d, 5, v%d" % (T1, T1))
    a("  v_lshl_add_u32 v%d, v%d, 10, v%d" % (T2, T0, T1))
    a("  s_waitcnt lgkmcnt(0)")
    a("  buffer_load_dwordx4 v[%d:%d], v%d, s[%d:%d], 0 offen%s" % (hX, hX + 3, T2, sXd, sXd + 3, " nt" if xnt else ""))
    a("  buffer_load_dwordx4 v[%d:%d], v%d, s[%d:%d], 0 offen offset:16%s" % (hX + 4, hX + 7, T2, sXd, sXd + 3, " nt" if xnt else ""))
    a("  v_lshrrev_b32 v%d, 3, v0" % T3)
    a("  v_and_b32 v%d, 7, v0" % T4)
    a("  v_lshlrev_b32 v%d, 4, v%d" % (T4, T4))
    a("  v_lshl_add_u32 v%d, v%d, 13, v%d" % (T5, T3, T4))
    a("  s_and_b32 s%d, s%d, 3" % (sJ, sLi))
    a("  s_lshr_b32 s%d, s%d, 2" % (sB, sLi))
    a("  s_lshl_b32 s%d, s%d, 2" % (sT[0], sJ))
    a("  s_add_u32 s%d, s%d, s%d" % (sT[0], sT[0], sHW))
    a("  s_lshl_b32 s%d, s%d, 18" % (sT[0], sT[0]))
    a("  s_lshl_b32 s%d, s%d, 3" % (sT[1], sX))
    a("  s_add_u32 s%d, s%d, s%d" % (sT[1], sT[1], sB))
    a("  s_lshl_b32 s%d, s%d, 7" % (sT[1], sT[1]))
    a("  s_add_u32 s%d, s%d, s%d" % (sT[0], sT[0], sT[1]))
    a("  s_lshr_b32 s%d, s%d, 1" % (sT[1], sHW))
    a("  s_lshl_b32 s%d, s%d, 15" % (sT[1], sT[1]))
    a("  s_and_b32 s%d, s%d, 1" % (sT[2], sHW))
    a("  s_lshl_b32 s%d, s%d, 12" % (sT[2], sT[2]))
    a("  s_add_u32 s%d, s%d, s%d" % (sT[1], sT[1], sT[2]))
    a("  s_add_u32 s%d, s%d, 24576" % (sT[1], sT[1]))
    a("  s_mov_b32 s%d, 0x400000" % (sWq + 2))
    a("  s_mov_b32 s%d, 0x20000" % (sWq + 3))
    for n in range(4):
        a("  s_add_u32 m0, s%d, %d" % (sT[1], n * 1024))
        if n:
            a("  s_add_u32 s%d, s%d, %d" % (sT[0], sT[0], 8 * 8192))
        else:
            a("  s_load_dword s%d, s[%d:%d], 0x%x" % (sEp, sWs, sWs + 1, EPOCH))
        a("  buffer_load_dwordx4 v%d, s[%d:%d], s%d offen nt lds" % (T5, sWq, sWq + 3, sT[0]))
    if b0pos == 0:
        a("  s_barrier                      ; B0")
        stamp("B0")
    a("  s_load_dwordx2 s[%d:%d], s[0:1], 64" % (sWd, sWd + 1))
    a("  s_load_dwordx2 s[%d:%d], s[0:1], 32" % (sWo, sWo + 1))
    a("  s_load_dwordx2 s[%d:%d], s[0:1], 72" % (sOut, sOut + 1))
    a("  s_load_dwordx2 s[%d:%d], s[0:1], 80" % (sDbg, sDbg + 1))
    a("  s_lshr_b32 s%d, s%d, 3" % (sT[4], sLi))
    a("  s_lshl_b32 s%d, s%d, 3" % (sT[4], sT[4]))
    a("  s_add_u32 s%d, s%d, s%d" % (sT[4], sT[4], sX))
    a("  s_cmp_lt_u32 s%d, 28" % sT[4])
    a("  s_cselect_b32 s%d, 1, 0" % sFv)
    a("  s_min_u32 s%d, s%d, 27" % (sT[4], sT[4]))
    a("  s_lshl_b32 s%d, s%d, 3" % (sFi, sT[4]))
    a("  s_and_b32 s%d, s%d, 7" % (sT[5], sLi))
    a("  s_add_u32 s%d, s%d, s%d" % (sFi, sFi, sT[5]))
    a("  s_and_b32 s%d, s%d, 3" % (sKb2, sFi))
    a("  s_lshl_b32 s%d, s%d, 2" % (sT[3], sKb2))
    a("  s_add_u32 s%d, s%d, s%d" % (sT[3], sT[3], sHW))
    a("  s_mul_i32 s%d, s%d, %d" % (sT[3], sT[3], 32 * 3584))
    a("  s_lshl_b32 s%d, s%d, 7" % (sT[4], sT[4]))
    a("  s_add_u32 s%d, s%d, s%d" % (sT[3], sT[3], sT[4]))
    a("  s_bitcmp1_b32 s%d, 2" % sFi)
    a("  s_cselect_b32 s%d, s58, s56" % sGU)
    a("  s_cselect_b32 s%d, s59, s57" % (sGU + 1))
    a("  s_mov_b32 s%d, 1835008" % (sGU + 2))
    a("  s_mov_b32 s%d, 0x20000" % (sGU + 3))
    a("  v_lshl_add_u32 v%d, v%d, 10, v%d" % (hW1k, T3, T4))
    a("  v_mul_u32_u24 v%d, 3584, v%d" % (T3, T3))
    a("  v_add_u32 v%d, v%d, v%d" % (T3, T3, T4))
    for n in range(4):
        a("  s_add_u32 m0, s%d, %d" % (sT[1], 65536 + n * 1024))
        if n:
            a("  s_add_u32 s%d, s%d, %d" % (sT[3], sT[3], 8 * 3584))
        else:
            a("  s_mov_b32 s%d, 0xffff0000" % sHi2)
        a("  buffer_load_dwordx4 v%d, s[%d:%d], s%d offen nt lds" % (T3, sGU, sGU + 3, sT[3]))
    if b0pos == 1:
        a("  s_barrier                      ; B0")
        stamp("B0")
    a("  v_lshrrev_b32 v%d, 4, v0" % hG)
    a("  v_and_b32 v%d, 15, v0" % hI)
    a("  v_mov_b32 v%d, %d" % (hMisc, FLG))
    a("  v_mov_b32 v%d, 1" % hOne)
    a("  v_mul_u32_u24 v%d, %d, v%d" % (T0, XN_STRIDE, T0))
    a("  v_add_u32 v%d, v%d, v%d" % (T0, T0, T1))
    a("  v_add_u32 v%d, %d, v%d" % (hZ, XN, T0))
    if noh:
        for _ in range(4):
            lds_add(hMisc, F_QRDY, hOne)
            lds_add(hMisc, F_STG, hOne)
        a("  s_barrier")
        a("  s_mov_b32 s%d, 0x10000000" % (sWs + 2))
        a("  s_mov_b32 s%d, 0x20000" % (sWs + 3))
        a("  s_cmp_lg_u32 s%d, 0" % sHW)
        a("  s_cbranch_scc1 L_H_done")
        a("  s_branch L_tsdump")
    a("  s_mov_b32 s%d, 0x10000000" % (sWs + 2))
    a("  s_mov_b32 s%d, 0x20000" % (sWs + 3))
    for base, size in ((sWd, 1835008), (sWo, 0x400000), (sOut, 8192)):
        a("  s_mov_b32 s%d, %d" % (base + 2, size))
        a("  s_mov_b32 s%d, 0x20000" % (base + 3))
    a("  s_mov_b32 s%d, 0xffffff00" % sNotFF)
    a("  s_mov_b32 s%d, 0x0c0c0400" % sSelA)
    a("  s_mov_b32 s%d, 0x04000c0c" % sSelB)

    def pk(op, d, s0, s1, extra=""):
        a("  %s v[%d:%d], v[%d:%d], v[%d:%d]%s" % (op, d, d + 1, s0, s0 + 1, s1, s1 + 1, extra))

    def allreduce32(v, t):
        for n in (1, 2, 4, 8):
            a("  s_nop 1")
            a("  v_add_f32_dpp v%d, v%d, v%d row_ror:%d %s" % (v, v, v, n, DPP))
        reduce_swap("v_add_f32", v, t, 16)

    def tag(v):
        a("  v_and_or_b32 v%d, v%d, s%d, v%d" % (v, v, sNotFF, hTag))

    def tag_retry(regs, lab_retry, lab_ok, t0_, t1_, sleep):
        rs = list(regs)
        assert len(rs) % 4 == 0
        for k in range(0, len(rs), 4):
            a("  v_perm_b32 v%d, v%d, v%d, s%d" % (t1_, rs[k + 1], rs[k], sSelA))
            a("  v_perm_b32 v%d, v%d, v%d, s%d" % (t1_ + 1, rs[k + 3], rs[k + 2], sSelB))
            if k == 0:
                a("  v_or_b32 v%d, v%d, v%d" % (t0_, t1_, t1_ + 1))
                a("  v_xor_b32 v%d, s%d, v%d" % (t0_, sTag4, t0_))
            else:
                a("  v_or_b32 v%d, v%d, v%d" % (t1_, t1_, t1_ + 1))
                a("  v_xor_b32 v%d, s%d, v%d" % (t1_, sTag4, t1_))
                a("  v_or_b32 v%d, v%d, v%d" % (t0_, t0_, t1_))
        a("  v_cmp_ne_u32 vcc, 0, v%d" % t0_)
        a("  s_cbranch_vccz %s" % lab_ok)
        a("  s_mov_b64 exec, vcc")
        a("  s_add_u32 s%d, s%d, 1" % (sCnt, sCnt))
        a("  s_cmp_lt_u32 s%d, %d" % (sCnt, SPIN_LIMIT))
        a("  s_cbranch_scc0 %s" % lab_ok)
        a("  s_sleep %d" % sleep)
        a("  s_branch %s" % lab_retry)

    def round_bf16(v):
        a("  v_cvt_pk_bf16_f32 v%d, v%d, v%d" % (v, v, v))
        a("  v_and_b32 v%d, s%d, v%d" % (v, sHi2, v))

    def untag(regs):
        for v in regs:
            a("  v_and_or_b32 v%d, v%d, s%d, v%d" % (v, v, sNotFF, hMid))

    a("  s_waitcnt vmcnt(8)")
    for i in range(8):
        a("  v_lshlrev_b32 v%d, 16, v%d" % (hF + 2 * i, hX + i))
        a("  v_and_b32 v%d, s%d, v%d" % (hF + 2 * i + 1, sHi2, hX + i))
    for i in range(4):
        pk("v_pk_add_f32", hY + 2 * i, hF + 4 * i, hF + 4 * i + 2)
    pk("v_pk_add_f32", hY, hY, hY + 2)
    pk("v_pk_add_f32", hY + 4, hY + 4, hY + 6)
    pk("v_pk_add_f32", hY, hY, hY + 4)
    vS = hZ + 8
    vV = hZ + 10
    a("  v_add_f32 v%d, v%d, v%d" % (vS, hY, hY + 1))
    allreduce32(vS, T0)
    a("  v_mul_f32 v%d, 0x3b000000, v%d     ; mean" % (vS, vS))
    for i in range(8):
        pk("v_pk_add_f32", hY + 2 * i, hF + 2 * i, vS, " op_sel_hi:[1,0] neg_lo:[0,1] neg_hi:[0,1]")
    pk("v_pk_mul_f32", vV, hY, hY)
    for i in range(1, 8):
        a("  v_pk_fma_f32 v[%d:%d], v[%d:%d], v[%d:%d], v[%d:%d]" % (vV, vV + 1, hY + 2 * i, hY + 2 * i + 1, hY + 2 * i, hY + 2 * i + 1, vV, vV + 1))
    a("  v_add_f32 v%d, v%d, v%d" % (vV, vV, vV + 1))
    allreduce32(vV, T0)
    a("  v_mul_f32 v%d, 0x3b000000, v%d     ; var" % (vV, vV))
    a("  v_cvt_pk_bf16_f32 v%d, v%d, v%d" % (vS, vS, vV))
    a("  v_and_b32 v%d, s%d, v%d" % (vV, sHi2, vS))
    a("  v_lshlrev_b32 v%d, 16, v%d            ; mean_bf" % (vS, vS))
    a("  v_add_f32 v%d, 0x3727c5ac, v%d" % (vV, vV))
    round_bf16(vV)
    a("  v_sqrt_f32 v%d, v%d" % (vV, vV))
    a("  s_nop 0")
    round_bf16(vV)
    a("  v_rcp_f32 v%d, v%d" % (vV, vV))
    for i in range(8):
        pk("v_pk_add_f32", hY + 2 * i, hF + 2 * i, vS, " op_sel_hi:[1,0] neg_lo:[0,1] neg_hi:[0,1]")
    for i in range(8):
        a("  v_cvt_pk_bf16_f32 v%d, v%d, v%d" % (hX + i, hY + 2 * i, hY + 2 * i + 1))
    for i in range(8):
        a("  v_lshlrev_b32 v%d, 16, v%d" % (hF + 2 * i, hX + i))
        a("  v_and_b32 v%d, s%d, v%d" % (hF + 2 * i + 1, sHi2, hX + i))
    for i in range(8):
        pk("v_pk_mul_f32", hY + 2 * i, hF + 2 * i, vV, " op_sel_hi:[1,0]")
    for i in range(8):
        a("  v_cvt_pk_bf16_f32 v%d, v%d, v%d" % (hX + i, hY + 2 * i, hY + 2 * i + 1))
    a("  ds_write_b128 v%d, v[%d:%d]" % (hZ, hX, hX + 3))
    a("  ds_write_b128 v%d, v[%d:%d] offset:16" % (hZ, hX + 4, hX + 7))
    stamp("LN done")

    a("  v_lshrrev_b32 v%d, 2, v%d" % (T0, hI))
    a("  v_lshl_add_u32 v%d, v%d, 3, v%d" % (T0, hG, T0))
    a("  v_lshlrev_b32 v%d, 7, v%d" % (T0, T0))
    a("  v_and_b32 v%d, 3, v%d" % (T1, hI))
    a("  v_lshl_add_u32 v%d, v%d, 3, v%d" % (hTrG, T1, T0))
    a("  s_lshl_b32 s%d, s%d, 5" % (sT[0], sHW))
    a("  s_add_u32 s%d, s%d, 24576" % (sT[0], sT[0]))
    a("  v_add_u32 v%d, s%d, v%d" % (hTr, sT[0], hTrG))
    a("  v_and_b32 v%d, 7, v%d" % (T0, hI))
    a("  v_mul_u32_u24 v%d, %d, v%d" % (T0, XN_STRIDE, T0))
    a("  v_lshl_add_u32 v%d, v%d, 4, v%d" % (T0, hG, T0))
    a("  v_add_u32 v%d, %d, v%d" % (hXn, XN, T0))
    a("  v_cmp_gt_u32 s[%d:%d], 8, v%d" % (sLo8, sLo8 + 1, hI))

    def tile_compute(kb_sgpr, stg_add):
        a("  s_lshl_b32 s%d, s%d, 8" % (sT[0], kb_sgpr))
        a("  v_add_u32 v%d, s%d, v%d" % (T0, sT[0], hXn))
        if stg_add:
            a("  v_add_u32 v%d, 0x%x, v%d" % (T1, stg_add, hTr))
            tr = T1
        else:
            tr = hTr
        for ks in range(4):
            base = (ks >> 1) * 32768 + (ks & 1) * 4096
            r = hA + ks * 4
            a("  ds_read_b64_tr_b16 v[%d:%d], v%d offset:%d" % (r, r + 1, tr, base))
            a("  ds_read_b64_tr_b16 v[%d:%d], v%d offset:%d" % (r + 2, r + 3, tr, base + 512))
            r = hB + ks * 4
            a("  ds_read_b128 v[%d:%d], v%d offset:%d" % (r, r + 3, T0, ks * 64))
        for ks in range(4):
            a("  s_waitcnt lgkmcnt(%d)" % (9 - 3 * ks))
            c = "0" if ks == 0 else "v[%d:%d]" % (hD, hD + 3)
            a("  v_mfma_f32_16x16x32_bf16 v[%d:%d], v[%d:%d], v[%d:%d], %s" % (hD, hD + 3, hA + ks * 4, hA + ks * 4 + 3, hB + ks * 4, hB + ks * 4 + 3, c))

    a("  s_waitcnt vmcnt(4) lgkmcnt(0)")
    a("  s_add_u32 s%d, s%d, 1" % (sTag, sEp))
    a("  s_and_b32 s%d, s%d, 0xff" % (sTag, sTag))
    a("  s_mul_i32 s%d, s%d, 0x01010101" % (sTag4, sTag))
    a("  v_mov_b32 v%d, s%d" % (hTag, sTag))
    a("  v_mov_b32 v%d, 0x80" % hMid)
    if early_census:
        lc = a.lab("Lc")
        a("  s_cmp_lg_u32 s%d, 1" % sHW)
        a("  s_cbranch_scc1 %s" % lc)
        a("  s_mov_b32 s%d, 256" % (sDbg + 2))
        a("  s_mov_b32 s%d, 0x20000" % (sDbg + 3))
        a("  s_getreg_b32 s%d, hwreg(HW_REG_XCC_ID, 0, 3)" % sT[4])
        a("  s_lshl_b32 s%d, s%d, 3" % (sT[4], sT[4]))
        a("  s_lshl_b64 s[%d:%d], 1, s%d" % (sT[6], sT[7], sT[4]))
        a("  v_mov_b32 v%d, s%d" % (hA, sT[6]))
        a("  v_mov_b32 v%d, s%d" % (hA + 1, sT[7]))
        a("  s_lshl_b32 s%d, s%d, 5" % (sT[4], sX))
        a("  v_mov_b32 v%d, s%d" % (T0, sT[4]))
        a("  s_mov_b64 exec, 1")
        a("  buffer_atomic_add_x2 v[%d:%d], v%d, s[%d:%d], 0 offen sc1" % (hA, hA + 1, T0, sDbg, sDbg + 3))
        a("  s_mov_b64 exec, -1")
        a("%s:" % lc)
    lds_add(hMisc, F_H1, hOne)
    lds_wait(hMisc, F_H1, 4, T5)
    stamp("Hsync1")
    tile_compute(sJ, 0)
    a("  v_lshlrev_b32 v%d, 11, v%d" % (T0, hI))
    a("  v_lshl_add_u32 v%d, v%d, 4, v%d" % (T0, hG, T0))
    a("  s_lshl_b32 s%d, s%d, 6" % (sT[0], sHW))
    a("  v_add_u32 v%d, s%d, v%d" % (T0, sT[0], T0))
    a("  s_lshl_b32 s%d, s%d, 2" % (sHq, sX))
    a("  s_add_u32 s%d, s%d, s%d" % (sHq, sHq, sJ))
    a("  s_lshl_b32 s%d, s%d, 14" % (sT[0], sHq))
    a("  s_lshl_b32 s%d, s%d, 8" % (sT[1], sB))
    a("  s_add_u32 s%d, s%d, s%d" % (sT[0], sT[0], sT[1]))
    if QP:
        a("  s_add_u32 s%d, s%d, %d" % (sT[0], sT[0], QP))
    for k in range(4):
        tag(hD + k)
    a("  s_mov_b64 exec, s[%d:%d]" % (sLo8, sLo8 + 1))
    a("  buffer_store_dwordx4 v[%d:%d], v%d, s[%d:%d], s%d offen sc1" % (hD, hD + 3, T0, sWs, sWs + 3, sT[0]))
    a("  s_mov_b64 exec, -1")
    stamp("QP stored")
    a("  s_lshl_b32 s%d, s%d, 2" % (sT[0], sHq))
    a("  s_add_u32 s%d, s%d, s%d" % (sT[0], sT[0], sHW))
    a("  s_lshl_b32 s%d, s%d, 15" % (sT[0], sT[0]))
    a("  s_lshl_b32 s%d, s%d, 7" % (sT[1], sB))
    a("  s_add_u32 s%d, s%d, s%d" % (sT[0], sT[0], sT[1]))
    a("  s_lshl_b32 s%d, s%d, 12" % (sWoStg, sHW))
    a("  s_add_u32 s%d, s%d, %d" % (sWoStg, sWoStg, WOS))
    for n in range(4):
        a("  s_add_u32 m0, s%d, %d" % (sWoStg, n * 1024))
        if n:
            a("  s_add_u32 s%d, s%d, 8192" % (sT[0], sT[0]))
        else:
            a("  s_nop 0")
        a("  buffer_load_dwordx4 v%d, s[%d:%d], s%d offen nt lds" % (hW1k, sWo, sWo + 3, sT[0]))
    a("  s_waitcnt vmcnt(5)")
    lds_add(hMisc, F_H3, hOne)
    lds_wait(hMisc, F_H3, 4, T5)
    stamp("Hsync3")
    tile_compute(sKb2, 65536)
    lds_add(hMisc, F_STG, hOne)
    a("  v_lshlrev_b32 v%d, 8, v%d" % (T0, hI))
    a("  v_lshl_add_u32 v%d, v%d, 4, v%d" % (T0, hG, T0))
    a("  s_lshl_b32 s%d, s%d, 6" % (sT[0], sHW))
    a("  v_add_u32 v%d, s%d, v%d" % (T0, sT[0], T0))
    a("  s_and_b32 s%d, s%d, 7" % (sT[0], sFi))
    a("  s_mul_i32 s%d, s%d, 28" % (sT[0], sT[0]))
    a("  s_lshr_b32 s%d, s%d, 3" % (sT[1], sFi))
    a("  s_add_u32 s%d, s%d, s%d" % (sT[0], sT[0], sT[1]))
    a("  s_lshl_b32 s%d, s%d, 11" % (sT[0], sT[0]))
    a("  s_add_u32 s%d, s%d, %d" % (sT[0], sT[0], GP))
    hGp, hGpOff, sGpS = 192, 196, 59
    for k in range(4):
        tag(hD + k)
    if gplocal:
        for k in range(4):
            a("  v_mov_b32 v%d, v%d" % (hGp + k, hD + k))
        a("  v_mov_b32 v%d, v%d" % (hGpOff, T0))
        a("  s_mov_b32 s%d, s%d" % (sGpS, sT[0]))
    else:
        lg = a.lab("Lg")
        a("  s_cmp_eq_u32 s%d, 0" % sFv)
        a("  s_cbranch_scc1 %s" % lg)
        a("  s_mov_b64 exec, s[%d:%d]" % (sLo8, sLo8 + 1))
        a("  buffer_store_dwordx4 v[%d:%d], v%d, s[%d:%d], s%d offen sc1" % (hD, hD + 3, T0, sWs, sWs + 3, sT[0]))
        a("  s_mov_b64 exec, -1")
        a("%s:" % lg)

    def gp_store(have_loc):
        if not gplocal:
            return
        if not have_loc:
            lds_wait(hMisc, F_LOC, 1, T5, sleep=8)
            a("  s_lshr_b32 s%d, s%d, 1" % (sLoc, sT[7]))
        lg = a.lab("Lg")
        a("  s_cmp_eq_u32 s%d, 0" % sFv)
        a("  s_cbranch_scc1 %s" % lg)
        a("  s_mov_b64 exec, s[%d:%d]" % (sLo8, sLo8 + 1))
        store_loc(["  buffer_store_dwordx4 v[%d:%d], v%d, s[%d:%d], s%d offen" % (hGp, hGp + 3, hGpOff, sWs, sWs + 3, sGpS)], sLoc)
        a("  s_mov_b64 exec, -1")
        a("%s:" % lg)
    stamp("tile1 done")
    a("  v_lshrrev_b32 v%d, 5, v0" % T0)
    a("  v_lshlrev_b32 v%d, 14, v%d" % (T0, T0))
    a("  v_and_b32 v%d, 31, v0" % T1)
    a("  v_lshl_add_u32 v%d, v%d, 4, v%d" % (T0, T1, T0))
    a("  s_lshl_b32 s%d, s%d, 9" % (sT[0], sHW))
    a("  v_add_u32 v%d, s%d, v%d" % (T0, sT[0], T0))
    a("  s_lshl_b32 s%d, s%d, 16" % (sT[0], sX))
    a("  s_lshl_b32 s%d, s%d, 11" % (sT[1], sB))
    a("  s_add_u32 s%d, s%d, s%d" % (sT[0], sT[0], sT[1]))
    if QP:
        a("  s_add_u32 s%d, s%d, %d" % (sT[0], sT[0], QP))
    a("  s_add_u32 s%d, s%d, 32768" % (sT[1], sT[0]))
    a("  s_mul_i32 s%d, s%d, %d" % (sT[2], sHW, QL_STRIDE))
    a("  s_add_u32 s%d, s%d, %d" % (sT[2], sT[2], QL))
    a("  v_lshlrev_b32 v%d, 3, v%d" % (T1, T1))
    a("  v_add_u32 v%d, s%d, v%d" % (T1, sT[2], T1))
    lr, lo = a.lab("Lr"), a.lab("Lo")
    a("  s_mov_b32 s%d, 0" % sCnt)
    a("%s:" % lr)
    NT = " nt" if gnt & 1 else ""
    a("  buffer_load_dwordx4 v[%d:%d], v%d, s[%d:%d], s%d offen sc1%s" % (hA, hA + 3, T0, sWs, sWs + 3, sT[0], NT))
    a("  buffer_load_dwordx4 v[%d:%d], v%d, s[%d:%d], s%d offen sc1%s" % (hA + 4, hA + 7, T0, sWs, sWs + 3, sT[1], NT))
    a("  s_waitcnt vmcnt(0)")
    tag_retry(range(hA, hA + 8), lr, lo, T2, T3, 2)
    a("%s:" % lo)
    a("  s_mov_b64 exec, -1")
    stamp("Q ok")
    untag(range(hA, hA + 8))
    pk("v_pk_add_f32", hA, hA, hA + 4)
    pk("v_pk_add_f32", hA + 2, hA + 2, hA + 6)
    for k in range(4):
        a("  v_mov_b32 v%d, v%d" % (hA + 4 + k, hA + k))
    a("  s_nop 1")
    for k in range(4):
        a("  v_permlane32_swap_b32 v%d, v%d" % (hA + k, hA + 4 + k))
    pk("v_pk_add_f32", hA, hA, hA + 4)
    pk("v_pk_add_f32", hA + 2, hA + 2, hA + 6)
    a("  v_cvt_pk_bf16_f32 v%d, v%d, v%d" % (hA, hA, hA + 1))
    a("  v_cvt_pk_bf16_f32 v%d, v%d, v%d" % (hA + 1, hA + 2, hA + 3))
    a("  s_mov_b32 exec_hi, 0")
    a("  ds_write_b64 v%d, v[%d:%d]" % (T1, hA, hA + 1))
    a("  s_mov_b64 exec, -1")
    a("  s_waitcnt lgkmcnt(0)")
    lds_add(hMisc, F_QRDY, hOne)
    stamp("Q rdy")

    a("  v_add_u32 v%d, s%d, v%d" % (T0, sWoStg, hTrG))
    l3 = a.lab("L3")
    a("  s_cmp_lg_u32 s%d, 3" % sHW)
    a("  s_cbranch_scc1 %s" % l3)
    a("  s_lshr_b32 s%d, s%d, 3" % (sT[0], sFi))
    a("  s_lshl_b32 s%d, s%d, 16" % (sT[1], sT[0]))
    a("  s_and_b32 s%d, s%d, 7" % (sT[2], sFi))
    a("  s_lshl_b32 s%d, s%d, 7" % (sT[2], sT[2]))
    a("  s_add_u32 s%d, s%d, s%d" % (sT[1], sT[1], sT[2]))
    for n in range(4):
        a("  s_mov_b32 m0, %d" % (SPARE + n * 1024))
        if n:
            a("  s_add_u32 s%d, s%d, 8192" % (sT[1], sT[1]))
        else:
            a("  s_nop 0")
        a("  buffer_load_dwordx4 v%d, s[%d:%d], s%d offen nt lds" % (hW1k, sWd, sWd + 3, sT[1]))
    a("%s:" % l3)
    for ct in range(4):
        r = hW + ct * 4
        a("  ds_read_b64_tr_b16 v[%d:%d], v%d offset:%d" % (r, r + 1, T0, ct * 32))
        a("  ds_read_b64_tr_b16 v[%d:%d], v%d offset:%d" % (r + 2, r + 3, T0, ct * 32 + 512))
    a("  s_waitcnt lgkmcnt(0)")
    l4 = a.lab("L4")
    a("  s_cmp_lg_u32 s%d, 3" % sHW)
    a("  s_cbranch_scc1 %s" % l4)
    for n in range(4):
        a("  s_add_u32 m0, s%d, %d" % (sWoStg, n * 1024))
        a("  s_add_u32 s%d, s%d, 8192" % (sT[1], sT[1]))
        a("  buffer_load_dwordx4 v%d, s[%d:%d], s%d offen nt lds" % (hW1k, sWd, sWd + 3, sT[1]))
    a("  v_add_u32 v%d, %d, v%d" % (T1, SPARE, hTrG))
    a("  s_waitcnt vmcnt(4)")
    for ct in range(4):
        r = hWd + ct * 8
        a("  ds_read_b64_tr_b16 v[%d:%d], v%d offset:%d" % (r, r + 1, T1, ct * 32))
        a("  ds_read_b64_tr_b16 v[%d:%d], v%d offset:%d" % (r + 2, r + 3, T1, ct * 32 + 512))
    a("  s_waitcnt vmcnt(0)")
    for ct in range(4):
        r = hWd + ct * 8 + 4
        a("  ds_read_b64_tr_b16 v[%d:%d], v%d offset:%d" % (r, r + 1, T0, ct * 32))
        a("  ds_read_b64_tr_b16 v[%d:%d], v%d offset:%d" % (r + 2, r + 3, T0, ct * 32 + 512))
    a("  s_waitcnt lgkmcnt(0)")
    a("%s:" % l4)
    stamp("wo frags")

    a("  s_lshl_b32 s%d, s%d, 5" % (sFidx, sB))
    a("  s_add_u32 s%d, s%d, s%d" % (sFidx, sFidx, sHq))
    a("  v_and_b32 v%d, 3, v0" % T0)
    a("  v_lshlrev_b32 v%d, 3, v%d" % (T0, T0))
    a("  s_lshl_b32 s%d, s%d, 5" % (sT[0], sFidx))
    a("  v_add_u32 v%d, s%d, v%d" % (hOutOff, sT[0], T0))
    if noffn:
        a("  s_branch L_B1")
    a("  s_cmp_eq_u32 s%d, 1" % sHW)
    a("  s_cbranch_scc1 %s" % ("L_B1" if skip & 1 else "L_ffn"))
    a("  s_cmp_eq_u32 s%d, 2" % sHW)
    a("  s_cbranch_scc1 %s" % ("L_B1" if skip & 2 else "L_stats"))
    a("  s_cmp_eq_u32 s%d, 0" % sHW)
    a("  s_cbranch_scc1 %s" % ("L_B1" if skip & 5 else "L_fin_prep"))
    a("  s_branch %s" % ("L_B1" if skip & 9 else "L_down"))

    a("L_ffn:")
    a("  s_mov_b32 s%d, 256" % (sDbg + 2))
    a("  s_mov_b32 s%d, 0x20000" % (sDbg + 3))
    a("  s_lshl_b32 s%d, s%d, 5" % (sT[0], sX))
    a("  v_mov_b32 v%d, s%d" % (T0, sT[0]))
    if not early_census:
        a("  s_getreg_b32 s%d, hwreg(HW_REG_XCC_ID, 0, 3)" % sT[4])
        a("  s_lshl_b32 s%d, s%d, 3" % (sT[4], sT[4]))
        a("  s_lshl_b64 s[%d:%d], 1, s%d" % (sT[6], sT[7], sT[4]))
        a("  v_mov_b32 v%d, s%d" % (hA, sT[6]))
        a("  v_mov_b32 v%d, s%d" % (hA + 1, sT[7]))
        a("  s_mov_b64 exec, 1")
        a("  buffer_atomic_add_x2 v[%d:%d], v%d, s[%d:%d], 0 offen sc1" % (hA, hA + 1, T0, sDbg, sDbg + 3))
        a("  s_mov_b64 exec, -1")
        lds_wait(hMisc, F_MID, 1, T5, sleep=8)
    a("  s_waitcnt vmcnt(0)")
    lr, lo = a.lab("Lr"), a.lab("Lo")
    a("  s_mov_b32 s%d, 0" % sCnt)
    a("  s_mov_b64 exec, 1")
    a("%s:" % lr)
    a("  buffer_load_dwordx2 v[%d:%d], v%d, s[%d:%d], 0 offen sc1" % (hA, hA + 1, T0, sDbg, sDbg + 3))
    a("  s_waitcnt vmcnt(0)")
    a("  v_readfirstlane_b32 s%d, v%d" % (sT[2], hA))
    a("  v_readfirstlane_b32 s%d, v%d" % (sT[3], hA + 1))
    a("  s_and_b32 s%d, s%d, 0x00ff00ff" % (sT[4], sT[2]))
    a("  s_lshr_b32 s%d, s%d, 8" % (sT[5], sT[2]))
    a("  s_and_b32 s%d, s%d, 0x00ff00ff" % (sT[5], sT[5]))
    a("  s_add_u32 s%d, s%d, s%d" % (sT[4], sT[4], sT[5]))
    a("  s_and_b32 s%d, s%d, 0x00ff00ff" % (sT[5], sT[3]))
    a("  s_add_u32 s%d, s%d, s%d" % (sT[4], sT[4], sT[5]))
    a("  s_lshr_b32 s%d, s%d, 8" % (sT[5], sT[3]))
    a("  s_and_b32 s%d, s%d, 0x00ff00ff" % (sT[5], sT[5]))
    a("  s_add_u32 s%d, s%d, s%d" % (sT[4], sT[4], sT[5]))
    a("  s_lshr_b32 s%d, s%d, 16" % (sT[5], sT[4]))
    a("  s_and_b32 s%d, s%d, 0xffff" % (sT[4], sT[4]))
    a("  s_add_u32 s%d, s%d, s%d" % (sT[4], sT[4], sT[5]))
    a("  s_cmp_ge_u32 s%d, 32" % sT[4])
    a("  s_cbranch_scc1 %s" % lo)
    a("  s_add_u32 s%d, s%d, 1" % (sCnt, sCnt))
    a("  s_cmp_lt_u32 s%d, %d" % (sCnt, SPIN_LIMIT))
    a("  s_cbranch_scc0 %s" % lo)
    a("  s_sleep 32")
    a("  s_branch %s" % lr)
    a("%s:" % lo)
    a("  s_mov_b64 exec, -1")
    a("  s_getreg_b32 s%d, hwreg(HW_REG_XCC_ID, 0, 3)" % sT[4])
    a("  s_lshl_b32 s%d, s%d, 3" % (sT[4], sT[4]))
    a("  s_lshr_b64 s[%d:%d], s[%d:%d], s%d" % (sT[2], sT[3], sT[2], sT[3], sT[4]))
    a("  s_and_b32 s%d, s%d, 0xff" % (sT[2], sT[2]))
    a("  s_cmp_eq_u32 s%d, 32" % sT[2])
    a("  s_cselect_b32 s%d, %d, 1" % (sT[2], 2 if uselocal else 1))
    a("  v_mov_b32 v%d, s%d" % (T0, sT[2]))
    a("  s_mov_b64 exec, 1")
    a("  ds_write_b32 v%d, v%d offset:%d" % (hMisc, T0, F_LOC))
    a("  s_mov_b64 exec, -1")
    a("  s_lshr_b32 s%d, s%d, 1" % (sLoc, sT[2]))
    gp_store(True)
    a("  s_cmp_eq_u32 s%d, 0" % sFv)
    a("  s_cbranch_scc1 L_ffn_done")
    a("  s_lshr_b32 s%d, s%d, 3" % (sT[0], sFi))
    a("  v_mul_u32_u24 v%d, %d, v%d" % (T0, 28 * 2048, hG))
    a("  v_lshl_add_u32 v%d, v%d, 4, v%d" % (T0, hI, T0))
    a("  s_lshl_b32 s%d, s%d, 11" % (sT[1], sT[0]))
    a("  s_and_b32 s%d, s%d, 7" % (sT[2], sFi))
    a("  s_lshl_b32 s%d, s%d, 8" % (sT[2], sT[2]))
    a("  s_add_u32 s%d, s%d, s%d" % (sT[1], sT[1], sT[2]))
    a("  s_add_u32 s%d, s%d, %d" % (sT[1], sT[1], GP))
    a("  s_add_u32 s%d, s%d, %d" % (sT[2], sT[1], 4 * 28 * 2048))
    lr, lo = a.lab("Lr"), a.lab("Lo")
    a("  s_mov_b32 s%d, 0" % sCnt)
    a("%s:" % lr)
    NT = " nt" if gnt & 2 else ""
    a("  buffer_load_dwordx4 v[%d:%d], v%d, s[%d:%d], s%d offen sc1%s" % (hA, hA + 3, T0, sWs, sWs + 3, sT[1], NT))
    a("  buffer_load_dwordx4 v[%d:%d], v%d, s[%d:%d], s%d offen sc1%s" % (hA + 4, hA + 7, T0, sWs, sWs + 3, sT[2], NT))
    a("  s_waitcnt vmcnt(0)")
    tag_retry(range(hA, hA + 8), lr, lo, T2, T3, 8 if gplocal else ffn_sleep)
    a("%s:" % lo)
    a("  s_mov_b64 exec, -1")
    untag(range(hA, hA + 8))
    for kind in (16, 32):
        for k in range(8):
            a("  v_mov_b32 v%d, v%d" % (hA + 8 + k, hA + k))
        a("  s_nop 1")
        for k in range(8):
            a("  v_permlane%d_swap_b32 v%d, v%d" % (kind, hA + k, hA + 8 + k))
        for k in range(0, 8, 2):
            pk("v_pk_add_f32", hA + k, hA + k, hA + 8 + k)
    g0, u0 = hA, hA + 4
    for k in range(8):
        round_bf16(hA + k)
    a("  s_mov_b32 s%d, 0xBFB8AA3B      ; -log2(e)" % sT[2])
    for k in range(4):
        a("  v_mul_f32 v%d, s%d, v%d" % (g0 + k, sT[2], g0 + k))
    for k in range(4):
        a("  v_exp_f32 v%d, v%d" % (g0 + k, g0 + k))
    a("  s_nop 0")
    for k in range(4):
        a("  v_add_f32 v%d, 1.0, v%d" % (g0 + k, g0 + k))
    for k in range(4):
        a("  v_rcp_f32 v%d, v%d" % (g0 + k, g0 + k))
    a("  s_nop 0")
    for k in range(4):
        round_bf16(g0 + k)
    for k in range(4):
        a("  v_mul_f32 v%d, v%d, v%d" % (g0 + k, g0 + k, u0 + k))
    for k in range(4):
        round_bf16(g0 + k)
    for k in range(4):
        a("  v_or_b32 v%d, v%d, v%d" % (g0 + k, g0 + k, hTag))
    a("  v_lshlrev_b32 v%d, 4, v0" % T0)
    a("  s_lshl_b32 s%d, s%d, 8" % (sT[1], sFi))
    a("  s_add_u32 s%d, s%d, %d" % (sT[1], sT[1], HH))
    a("  s_mov_b64 exec, 0xffff")
    store_loc(["  buffer_store_dwordx4 v[%d:%d], v%d, s[%d:%d], s%d offen" % (g0, g0 + 3, T0, sWs, sWs + 3, sT[1])], sLoc)
    a("  s_mov_b64 exec, -1")
    a("L_ffn_done:")
    lds_add(hMisc, F_RED, hOne)
    lds_wait(hMisc, F_EWS, 1, T5, sleep=4)
    for k in range(4):
        a("  v_mov_b32 v%d, v%d" % (hA + k, hTag))
    a("  s_lshl_b32 s%d, s%d, 9" % (sT[0], sX))
    a("  s_lshl_b32 s%d, s%d, 4" % (sT[1], sLi))
    a("  s_add_u32 s%d, s%d, s%d" % (sT[0], sT[0], sT[1]))
    a("  s_add_u32 s%d, s%d, %d" % (sT[0], sT[0], EW))
    a("  v_mov_b32 v%d, 0" % T0)
    a("  s_mov_b64 exec, 1")
    store_loc(["  buffer_store_dwordx4 v[%d:%d], v%d, s[%d:%d], s%d offen" % (hA, hA + 3, T0, sWs, sWs + 3, sT[0])], sLoc)
    a("  s_mov_b64 exec, -1")
    a("  s_branch L_B1")

    a("L_down:")
    gp_store(False)
    a("  s_cmp_eq_u32 s%d, 0" % sFv)
    a("  s_cbranch_scc1 L_down_done")
    lds_wait(hMisc, F_RED, 1, T5, sleep=8)
    a("  s_lshr_b32 s%d, s%d, 3" % (sT[0], sFi))
    a("  v_and_b32 v%d, 7, v%d" % (T0, hI))
    a("  v_lshlrev_b32 v%d, 8, v%d" % (T0, T0))
    a("  v_lshl_add_u32 v%d, v%d, 5, v%d" % (T0, hG, T0))
    a("  s_lshl_b32 s%d, s%d, 11" % (sT[1], sT[0]))
    a("  s_add_u32 s%d, s%d, %d" % (sT[1], sT[1], HH))
    lr, lo = a.lab("Lr"), a.lab("Lo")
    a("  s_mov_b32 s%d, 0" % sCnt)
    a("%s:" % lr)
    for k in range(4):
        a("  buffer_load_dwordx4 v[%d:%d], v%d, s[%d:%d], s%d offen offset:%d sc1" % (hA + 4 * k, hA + 4 * k + 3, T0, sWs, sWs + 3, sT[1], (k >> 1) * 128 + (k & 1) * 16))
    a("  s_waitcnt vmcnt(0)")
    tag_retry(range(hA, hA + 16), lr, lo, T2, T3, ffn_sleep)
    a("%s:" % lo)
    a("  s_mov_b64 exec, -1")
    a("  s_mov_b32 s%d, 0x07060302" % sT[2])
    for k in range(8):
        a("  v_perm_b32 v%d, v%d, v%d, s%d" % (hB + k, hA + 2 * k + 1, hA + 2 * k, sT[2]))
    a("  s_nop 1")
    for ct in range(4):
        d = hD + ct * 4
        r = hWd + ct * 8
        a("  v_mfma_f32_16x16x32_bf16 v[%d:%d], v[%d:%d], v[%d:%d], 0" % (d, d + 3, r, r + 3, hB, hB + 3))
        a("  v_mfma_f32_16x16x32_bf16 v[%d:%d], v[%d:%d], v[%d:%d], v[%d:%d]" % (d, d + 3, r + 4, r + 7, hB + 4, hB + 7, d, d + 3))
    a("  v_lshlrev_b32 v%d, 16, v%d" % (T0, hI))
    a("  v_lshl_add_u32 v%d, v%d, 4, v%d" % (T0, hG, T0))
    a("  s_and_b32 s%d, s%d, 7" % (sT[1], sFi))
    a("  s_lshl_b32 s%d, s%d, 13" % (sT[1], sT[1]))
    a("  s_lshl_b32 s%d, s%d, 6" % (sT[2], sT[0]))
    a("  s_add_u32 s%d, s%d, s%d" % (sT[1], sT[1], sT[2]))
    a("  s_add_u32 s%d, s%d, %d" % (sT[1], sT[1], DP))
    a("  s_nop 7")
    for i in range(16):
        tag(hD + i)
    a("  s_mov_b64 exec, s[%d:%d]" % (sLo8, sLo8 + 1))
    for ct in range(4):
        a("  buffer_store_dwordx4 v[%d:%d], v%d, s[%d:%d], s%d offen sc1" % (hD + ct * 4, hD + ct * 4 + 3, T0, sWs, sWs + 3, sT[1]))
        if ct < 3:
            a("  s_add_u32 s%d, s%d, 2048" % (sT[1], sT[1]))
    a("  s_mov_b64 exec, -1")
    a("  s_waitcnt vmcnt(0)")
    a("L_down_done:")
    lds_add(hMisc, F_DOWN, hOne)
    a("  s_branch L_B1")

    a("L_stats:")
    gp_store(False)
    lds_wait(hMisc, F_ST, 4, T5, sleep=st_sleep)
    a("  v_lshl_add_u32 v%d, v%d, 3, v%d" % (T0, hI, hMisc))
    mw, lw = hA, hA + 1
    a("  ds_read_b64 v[%d:%d], v%d offset:%d" % (mw, mw + 1, T0, SSTAT))
    a("  s_waitcnt lgkmcnt(0)")
    Mg, Lg, t_ = hA + 4, hA + 5, hA + 2
    a("  v_mov_b32 v%d, v%d" % (Mg, mw))
    a("  s_nop 1")
    a("  v_max_f32_dpp v%d, v%d, v%d row_ror:4 %s" % (Mg, Mg, Mg, DPP))
    a("  s_nop 1")
    a("  v_max_f32_dpp v%d, v%d, v%d row_ror:8 %s" % (Mg, Mg, Mg, DPP))
    a("  s_mov_b32 s%d, 0x3FB8AA3B" % sT[2])
    a("  v_sub_f32 v%d, v%d, v%d" % (t_, mw, Mg))
    a("  v_mul_f32 v%d, s%d, v%d" % (t_, sT[2], t_))
    a("  v_exp_f32 v%d, v%d" % (t_, t_))
    a("  s_nop 0")
    a("  v_mul_f32 v%d, v%d, v%d" % (Lg, lw, t_))
    a("  s_nop 1")
    a("  v_add_f32_dpp v%d, v%d, v%d row_ror:4 %s" % (Lg, Lg, Lg, DPP))
    a("  s_nop 1")
    a("  v_add_f32_dpp v%d, v%d, v%d row_ror:8 %s" % (Lg, Lg, Lg, DPP))
    a("  s_nop 1")
    a("  v_mov_b32_dpp v%d, v%d row_shl:1 %s bound_ctrl:0" % (Mg + 2, Mg, DPP))
    a("  v_mov_b32_dpp v%d, v%d row_shl:1 %s bound_ctrl:0" % (Mg + 3, Lg, DPP))
    a("  s_lshl_b32 s%d, s%d, 3" % (sT[0], sB))
    a("  s_add_u32 s%d, s%d, s%d" % (sT[0], sT[0], sX))
    a("  s_lshl_b32 s%d, s%d, 7" % (sT[0], sT[0]))
    a("  s_add_u32 s%d, s%d, %d" % (sT[0], sT[0], ST))
    a("  s_lshl_b32 s%d, s%d, 5" % (sT[1], sJ))
    a("  s_add_u32 s%d, s%d, s%d" % (sT[1], sT[1], sT[0]))
    for k in range(4):
        tag(Mg + k)
    a("  v_lshlrev_b32 v%d, 3, v%d" % (T1, hI))
    lds_wait(hMisc, F_LOC, 1, T5)
    a("  s_lshr_b32 s%d, s%d, 1" % (sLoc, sT[7]))
    a("  s_mov_b64 exec, 5")
    store_loc(["  buffer_store_dwordx4 v[%d:%d], v%d, s[%d:%d], s%d offen" % (Mg, Mg + 3, T1, sWs, sWs + 3, sT[1])], sLoc)
    a("  s_mov_b64 exec, -1")
    a("  v_lshrrev_b32 v%d, 1, v%d" % (T1, hI))
    a("  v_lshlrev_b32 v%d, 4, v%d" % (T1, T1))
    mj = hA + 8
    lr, lo = a.lab("Lr"), a.lab("Lo")
    a("  s_mov_b32 s%d, 0" % sCnt)
    a("%s:" % lr)
    a("  buffer_load_dwordx4 v[%d:%d], v%d, s[%d:%d], s%d offen sc1" % (mj, mj + 3, T1, sWs, sWs + 3, sT[0]))
    a("  s_waitcnt vmcnt(0)")
    tag_retry(range(mj, mj + 4), lr, lo, T2, T3, ffn_sleep)
    a("%s:" % lo)
    a("  s_mov_b64 exec, -1")
    a("  v_and_b32 v%d, 1, v%d" % (T2, hI))
    a("  v_cmp_eq_u32 vcc, 1, v%d" % T2)
    a("  s_nop 1")
    a("  v_cndmask_b32 v%d, v%d, v%d, vcc" % (mj, mj, mj + 2))
    a("  v_cndmask_b32 v%d, v%d, v%d, vcc" % (mj + 1, mj + 1, mj + 3))
    lj = mj + 1
    a("  v_and_b32 v%d, s%d, v%d" % (mj, sNotFF, mj))
    a("  v_and_or_b32 v%d, v%d, s%d, v%d" % (lj, lj, sNotFF, hMid))
    M2, L2 = hA + 12, hA + 13
    a("  v_mov_b32 v%d, v%d" % (M2, mj))
    a("  s_nop 1")
    a("  v_max_f32_dpp v%d, v%d, v%d row_ror:4 %s" % (M2, M2, M2, DPP))
    a("  s_nop 1")
    a("  v_max_f32_dpp v%d, v%d, v%d row_ror:8 %s" % (M2, M2, M2, DPP))
    a("  v_sub_f32 v%d, v%d, v%d" % (t_, mj, M2))
    a("  v_mul_f32 v%d, s%d, v%d" % (t_, sT[2], t_))
    a("  v_exp_f32 v%d, v%d" % (t_, t_))
    a("  s_nop 0")
    a("  v_mul_f32 v%d, v%d, v%d" % (L2, lj, t_))
    a("  s_nop 1")
    a("  v_add_f32_dpp v%d, v%d, v%d row_ror:4 %s" % (L2, L2, L2, DPP))
    a("  s_nop 1")
    a("  v_add_f32_dpp v%d, v%d, v%d row_ror:8 %s" % (L2, L2, L2, DPP))
    a("  v_sub_f32 v%d, v%d, v%d" % (t_, mw, M2))
    a("  v_mul_f32 v%d, s%d, v%d" % (t_, sT[2], t_))
    a("  v_exp_f32 v%d, v%d" % (t_, t_))
    a("  v_rcp_f32 v%d, v%d" % (L2, L2))
    a("  s_nop 0")
    a("  v_mul_f32 v%d, v%d, v%d" % (t_, t_, L2))
    a("  v_and_b32 v%d, 3, v%d" % (T0, hI))
    a("  v_lshlrev_b32 v%d, 4, v%d" % (T0, T0))
    a("  v_lshrrev_b32 v%d, 2, v%d" % (T1, hI))
    a("  v_lshl_add_u32 v%d, v%d, 2, v%d" % (T0, T1, T0))
    a("  v_add_u32 v%d, v%d, v%d" % (T0, T0, hMisc))
    a("  s_mov_b64 exec, 0xffff")
    a("  ds_write_b32 v%d, v%d offset:%d" % (T0, t_, FFAC))
    a("  s_mov_b64 exec, -1")
    a("  s_waitcnt lgkmcnt(0)")
    a("  s_branch L_B1")

    def reduce_hd(base, tmp):
        a("  s_nop 1")
        for k in range(4):
            a("  v_add_f32_dpp v%d, v%d, v%d row_ror:4 %s" % (base + k, base + k, base + k, DPP))
        a("  s_nop 1")
        for k in range(4):
            a("  v_add_f32_dpp v%d, v%d, v%d row_ror:8 %s" % (base + k, base + k, base + k, DPP))
        for kind in (16, 32):
            for k in range(4):
                a("  v_mov_b32 v%d, v%d" % (tmp + k, base + k))
            a("  s_nop 1")
            for k in range(4):
                a("  v_permlane%d_swap_b32 v%d, v%d" % (kind, base + k, tmp + k))
            pk("v_pk_add_f32", base, base, tmp)
            pk("v_pk_add_f32", base + 2, base + 2, tmp + 2)

    a("L_fin_prep:")
    gp_store(False)
    lds_wait(hMisc, F_LATE, 1, T5, sleep=8)
    a("  buffer_load_dwordx2 v[%d:%d], v%d, s[%d:%d], 0 offen" % (hA + 8, hA + 9, hOutOff, sXd, sXd + 3))
    a("  v_lshlrev_b32 v%d, 4, v0" % T0)
    a("  s_lshl_b32 s%d, s%d, 11" % (sT[0], sFidx))
    a("  s_add_u32 s%d, s%d, %d" % (sT[0], sT[0], DP))
    for k in range(4):
        a("  v_mov_b32 v%d, v%d" % (hA + 4 + k, hTag))
    lr, lo = a.lab("Lr"), a.lab("Lo")
    a("  s_mov_b32 s%d, 0" % sCnt)
    a("%s:" % lr)
    NT = " nt" if gnt & 4 else ""
    a("  buffer_load_dwordx4 v[%d:%d], v%d, s[%d:%d], s%d offen sc1%s" % (hA, hA + 3, T0, sWs, sWs + 3, sT[0], NT))
    a("  s_mov_b64 s[%d:%d], exec" % (sT[4], sT[5]))
    a("  s_and_b32 exec_hi, exec_hi, 0xffff")
    ls = a.lab("Ls")
    a("  s_cbranch_execz %s" % ls)
    a("  buffer_load_dwordx4 v[%d:%d], v%d, s[%d:%d], s%d offen offset:1024 sc1%s" % (hA + 4, hA + 7, T0, sWs, sWs + 3, sT[0], NT))
    a("%s:" % ls)
    a("  s_mov_b64 exec, s[%d:%d]" % (sT[4], sT[5]))
    a("  s_waitcnt vmcnt(0)")
    tag_retry(range(hA, hA + 8), lr, lo, T2, T3, ffn_sleep)
    a("%s:" % lo)
    a("  s_mov_b64 exec, -1")
    untag(range(hA, hA + 8))
    pk("v_pk_add_f32", hA, hA, hA + 4)
    pk("v_pk_add_f32", hA + 2, hA + 2, hA + 6)
    reduce_hd(hA, hA + 4)
    hGv = hXf + 4
    for k in range(4):
        round_bf16(hA + k)
    a("  s_mov_b32 s%d, 0xBFB8AA3B" % sT[2])
    for k in range(4):
        a("  v_mul_f32 v%d, s%d, v%d" % (hA + 4 + k, sT[2], hA + k))
    for k in range(4):
        a("  v_exp_f32 v%d, v%d" % (hA + 4 + k, hA + 4 + k))
    a("  s_nop 0")
    for k in range(4):
        a("  v_add_f32 v%d, 1.0, v%d" % (hA + 4 + k, hA + 4 + k))
    for k in range(4):
        a("  v_rcp_f32 v%d, v%d" % (hA + 4 + k, hA + 4 + k))
    a("  s_nop 0")
    for k in range(4):
        a("  v_mul_f32 v%d, v%d, v%d" % (hGv + k, hA + k, hA + 4 + k))
    for k in range(4):
        round_bf16(hGv + k)
    a("  v_lshlrev_b32 v%d, 16, v%d" % (hXf, hA + 8))
    a("  v_and_b32 v%d, s%d, v%d" % (hXf + 1, sHi2, hA + 8))
    a("  v_lshlrev_b32 v%d, 16, v%d" % (hXf + 2, hA + 9))
    a("  v_and_b32 v%d, s%d, v%d" % (hXf + 3, sHi2, hA + 9))
    stamp("prep done")

    a("L_B1:")
    a("  v_lshlrev_b32 v%d, 7, v%d" % (T0, hI))
    a("  v_lshl_add_u32 v%d, v%d, 5, v%d" % (T0, hG, T0))
    a("  s_lshl_b32 s%d, s%d, 14" % (sT[0], sHq))
    a("  s_lshl_b32 s%d, s%d, 11" % (sT[1], sHW))
    a("  s_add_u32 s%d, s%d, s%d" % (sT[0], sT[0], sT[1]))
    a("  s_add_u32 s%d, s%d, %d" % (sT[0], sT[0], OP))
    a("  s_add_u32 s%d, s%d, 8192" % (sT[1], sT[0]))
    a("  v_lshlrev_b32 v%d, 8, v%d" % (T1, hG))
    a("  v_lshl_add_u32 v%d, v%d, 2, v%d" % (T1, hI, T1))
    a("  s_lshl_b32 s%d, s%d, 11" % (sT[2], sHW))
    a("  s_add_u32 s%d, s%d, %d" % (sT[2], sT[2], WOS))
    a("  v_add_u32 v%d, s%d, v%d" % (T1, sT[2], T1))
    hP0, hP1, hQ0 = 157, 158, 159
    sP, sQ = 57, 58
    sSelH = 55
    a("  s_mov_b32 s%d, 0x07060302" % sSelH)
    a("  s_sub_u32 s%d, s%d, 2" % (sT[3], sHW))
    a("  s_lshl_b32 s%d, s%d, 10" % (sT[4], sT[3]))
    a("  s_add_u32 s%d, s%d, %d" % (sT[4], sT[4], WOS))
    a("  v_lshlrev_b32 v%d, 8, v%d" % (hP0, hG))
    a("  v_lshl_add_u32 v%d, v%d, 4, v%d      ; g*256 + i*16" % (hP0, hI, hP0))
    a("  v_add_u32 v%d, s%d, v%d" % (hP0, sT[4], hP0))
    a("  v_lshlrev_b32 v%d, 16, v%d" % (hP1, hG))
    a("  v_lshrrev_b32 v%d, 3, v%d" % (T2, hI))
    a("  v_lshl_add_u32 v%d, v%d, 12, v%d" % (hP1, T2, hP1))
    a("  v_and_b32 v%d, 7, v%d" % (T2, hI))
    a("  v_lshl_add_u32 v%d, v%d, 4, v%d" % (hP1, T2, hP1))
    a("  s_lshl_b32 s%d, s%d, 18" % (sT[3], sT[3]))
    a("  s_lshl_b32 s%d, s%d, 13" % (sT[4], sB))
    a("  s_add_u32 s%d, s%d, s%d" % (sT[3], sT[3], sT[4]))
    a("  s_lshl_b32 s%d, s%d, 7" % (sT[4], sHq))
    a("  s_add_u32 s%d, s%d, s%d" % (sT[3], sT[3], sT[4]))
    a("  s_add_u32 s%d, s%d, %d" % (sP, sT[3], SP))
    a("  v_lshrrev_b32 v%d, 2, v0" % hQ0)
    a("  v_lshlrev_b32 v%d, 7, v%d" % (hQ0, hQ0))
    a("  v_and_b32 v%d, 3, v0" % T2)
    a("  v_lshl_add_u32 v%d, v%d, 4, v%d" % (hQ0, T2, hQ0))
    a("  s_lshr_b32 s%d, s%d, 1" % (sT[3], sFidx))
    a("  s_lshl_b32 s%d, s%d, 12" % (sT[3], sT[3]))
    a("  s_and_b32 s%d, s%d, 1" % (sT[4], sFidx))
    a("  s_lshl_b32 s%d, s%d, 6" % (sT[4], sT[4]))
    a("  s_add_u32 s%d, s%d, s%d" % (sT[3], sT[3], sT[4]))
    a("  s_add_u32 s%d, s%d, %d" % (sQ, sT[3], SP))
    lw0 = a.lab("Lew")
    a("  s_cmp_lg_u32 s%d, 0" % sHW)
    a("  s_cbranch_scc1 %s" % lw0)
    a("  v_lshlrev_b32 v%d, 4, v0" % T5)
    a("  s_lshl_b32 s%d, s%d, 9" % (sT[2], sX))
    a("  s_add_u32 s%d, s%d, %d" % (sT[2], sT[2], EW))
    lr, lo = a.lab("Lr"), a.lab("Lo")
    a("  s_mov_b32 s%d, 0" % sCnt)
    a("  s_mov_b32 exec_hi, 0")
    a("%s:" % lr)
    a("  buffer_load_dwordx4 v[%d:%d], v%d, s[%d:%d], s%d offen sc1" % (hA, hA + 3, T5, sWs, sWs + 3, sT[2]))
    a("  s_waitcnt vmcnt(0)")
    tag_retry(range(hA, hA + 4), lr, lo, T2, T3, 8)
    a("%s:" % lo)
    a("  s_mov_b64 exec, -1")
    a("%s:" % lw0)
    a("  s_barrier                      ; B1")
    stamp("B1")
    lr, lo = a.lab("Lr"), a.lab("Lo")
    a("  s_mov_b32 s%d, 0" % sCnt)
    a("%s:" % lr)
    for rt in range(2):
        a("  buffer_load_dwordx4 v[%d:%d], v%d, s[%d:%d], s%d offen sc1" % (hA + 8 * rt, hA + 8 * rt + 3, T0, sWs, sWs + 3, sT[rt]))
        a("  buffer_load_dwordx4 v[%d:%d], v%d, s[%d:%d], s%d offen offset:16 sc1" % (hA + 8 * rt + 4, hA + 8 * rt + 7, T0, sWs, sWs + 3, sT[rt]))
    a("  s_waitcnt vmcnt(0)")
    tag_retry(range(hA, hA + 16), lr, lo, T2, T3, hop_sleep)
    a("%s:" % lo)
    a("  s_mov_b64 exec, -1")
    stamp("hop1 ok")
    for k in range(8):
        a("  v_perm_b32 v%d, v%d, v%d, s%d" % (hB + k, hA + 2 * k + 1, hA + 2 * k, sSelH))
    a("  s_nop 1")
    for rt in range(2):
        for ct in range(4):
            d = hD + (rt * 4 + ct) * 4
            a("  v_mfma_f32_16x16x32_bf16 v[%d:%d], v[%d:%d], v[%d:%d], 0" % (d, d + 3, hB + 4 * rt, hB + 4 * rt + 3, hW + ct * 4, hW + ct * 4 + 3))
    a("  s_nop 0")
    for n in range(8):
        d = hD + n * 4
        pk("v_pk_add_f32", d, d, d + 2)
        a("  v_add_f32 v%d, v%d, v%d" % (d, d, d + 1))
    for rt in range(2):
        for ct in range(4):
            d = hD + (rt * 4 + ct) * 4
            a("  ds_write_b32 v%d, v%d offset:%d" % (T1, d, rt * 1024 + ct * 64))
    a("  s_waitcnt lgkmcnt(0)")
    a("  s_barrier")
    a("  s_cmp_eq_u32 s%d, 0" % sHW)
    a("  s_cbranch_scc1 L_hop2")
    a("  s_cmp_eq_u32 s%d, 1" % sHW)
    a("  s_cbranch_scc1 L_H_done")
    for w in range(4):
        a("  ds_read_b128 v[%d:%d], v%d offset:%d" % (hA + 4 * w, hA + 4 * w + 3, hP0, w * 2048))
    a("  s_waitcnt lgkmcnt(2)")
    for k in (0, 2):
        pk("v_pk_add_f32", hA + k, hA + k, hA + 4 + k)
    a("  s_waitcnt lgkmcnt(0)")
    for k in (0, 2):
        pk("v_pk_add_f32", hA + 8 + k, hA + 8 + k, hA + 12 + k)
    for k in (0, 2):
        pk("v_pk_add_f32", hA + k, hA + k, hA + 8 + k)
    for k in range(4):
        tag(hA + k)
    a("  buffer_store_dwordx4 v[%d:%d], v%d, s[%d:%d], s%d offen sc1" % (hA, hA + 3, hP1, sWs, sWs + 3, sP))
    a("  s_endpgm")

    a("L_hop2:")
    stamp("B2")

    def tag_check(rs, t0_, t1_):
        rs = list(rs)
        for k in range(0, len(rs), 4):
            a("  v_perm_b32 v%d, v%d, v%d, s%d" % (t1_, rs[k + 1], rs[k], sSelA))
            a("  v_perm_b32 v%d, v%d, v%d, s%d" % (t1_ + 1, rs[k + 3], rs[k + 2], sSelB))
            if k == 0:
                a("  v_or_b32 v%d, v%d, v%d" % (t0_, t1_, t1_ + 1))
                a("  v_xor_b32 v%d, s%d, v%d" % (t0_, sTag4, t0_))
            else:
                a("  v_or_b32 v%d, v%d, v%d" % (t1_, t1_, t1_ + 1))
                a("  v_xor_b32 v%d, s%d, v%d" % (t1_, sTag4, t1_))
                a("  v_or_b32 v%d, v%d, v%d" % (t0_, t0_, t1_))
        a("  v_cmp_ne_u32 vcc, 0, v%d" % t0_)

    FR = hA
    if pipe2:
        SA, SB, FR = hA, hA + 8, hB
        sMk = sT[4]
        def ld(R):
            a("  buffer_load_dwordx4 v[%d:%d], v%d, s[%d:%d], s%d offen sc1" % (R, R + 3, hQ0, sWs, sWs + 3, sQ))
            a("  buffer_load_dwordx4 v[%d:%d], v%d, s[%d:%d], s%d offen offset:2048 sc1" % (R + 4, R + 7, hQ0, sWs, sWs + 3, sQ))
        lp, ld_ = a.lab("Lp"), a.lab("Lpd")
        a("  s_mov_b64 s[%d:%d], -1" % (sMk, sMk + 1))
        a("  s_mov_b32 s%d, 0" % sCnt)
        ld(SA)
        a("%s:" % lp)
        for cur, nxt in ((SA, SB), (SB, SA)):
            ld(nxt)
            a("  s_waitcnt vmcnt(2)")
            tag_check(range(cur, cur + 8), T2, T3)
            lsk = a.lab("Lsk")
            a("  s_andn2_b64 exec, s[%d:%d], vcc" % (sMk, sMk + 1))
            a("  s_cbranch_execz %s" % lsk)
            for k in range(8):
                a("  v_mov_b32 v%d, v%d" % (FR + k, cur + k))
            a("%s:" % lsk)
            a("  s_mov_b64 s[%d:%d], vcc" % (sMk, sMk + 1))
            a("  s_cbranch_vccz %s" % ld_)
            a("  s_mov_b64 exec, vcc")
        a("  s_add_u32 s%d, s%d, 1" % (sCnt, sCnt))
        a("  s_cmp_lt_u32 s%d, %d" % (sCnt, SPIN_LIMIT))
        a("  s_cbranch_scc1 %s" % lp)
        a("%s:" % ld_)
        a("  s_mov_b64 exec, -1")
    else:
        lr, lo = a.lab("Lr"), a.lab("Lo")
        a("  s_mov_b32 s%d, 0" % sCnt)
        a("%s:" % lr)
        a("  buffer_load_dwordx4 v[%d:%d], v%d, s[%d:%d], s%d offen sc1" % (hA, hA + 3, hQ0, sWs, sWs + 3, sQ))
        a("  buffer_load_dwordx4 v[%d:%d], v%d, s[%d:%d], s%d offen offset:2048 sc1" % (hA + 4, hA + 7, hQ0, sWs, sWs + 3, sQ))
        a("  s_waitcnt vmcnt(0)")
        tag_retry(range(hA, hA + 8), lr, lo, T2, T3, h2_sleep)
        a("%s:" % lo)
        a("  s_mov_b64 exec, -1")
    stamp("hop2 ok")
    untag(range(FR, FR + 8))
    pk("v_pk_add_f32", FR, FR, FR + 4)
    pk("v_pk_add_f32", FR + 2, FR + 2, FR + 6)
    reduce_hd(FR, FR + 4)
    for k in range(4):
        round_bf16(FR + k)
    for k in range(4):
        a("  v_mul_f32 v%d, v%d, v%d" % (FR + k, FR + k, hGv + k))
    for k in range(4):
        round_bf16(FR + k)
    for k in range(4):
        a("  v_add_f32 v%d, v%d, v%d" % (FR + k, FR + k, hXf + k))
    a("  v_cvt_pk_bf16_f32 v%d, v%d, v%d" % (FR, FR, FR + 1))
    a("  v_cvt_pk_bf16_f32 v%d, v%d, v%d" % (FR + 1, FR + 2, FR + 3))
    a("  s_mov_b64 exec, 15")
    a("  buffer_store_dwordx2 v[%d:%d], v%d, s[%d:%d], 0 offen" % (FR, FR + 1, hOutOff, sOut, sOut + 3))
    a("  s_mov_b64 exec, -1")
    le = a.lab("Le")
    a("  s_cmp_lg_u32 s2, 0")
    a("  s_cbranch_scc1 %s" % le)
    a("  s_add_u32 s%d, s%d, 1" % (sT[0], sEp))
    a("  v_mov_b32 v%d, s%d" % (hD, sT[0]))
    a("  v_mov_b32 v%d, %d" % (T0, EPOCH))
    a("  s_mov_b64 exec, 1")
    a("  buffer_store_dword v%d, v%d, s[%d:%d], 0 offen" % (hD, T0, sWs, sWs + 3))
    a("  s_mov_b64 exec, -1")
    a("%s:" % le)
    stamp("end")
    if dbgtime:
        a("  s_memrealtime s[98:99]")
        a("  s_load_dwordx2 s[92:93], s[0:1], 80")
        a("  s_waitcnt lgkmcnt(0)")
        a("  s_mov_b32 s94, 256")
        a("  s_mov_b32 s95, 0x20000")
        a("  s_not_b32 s100, s100")
        a("  v_mov_b32 v%d, s100" % hA)
        a("  v_mov_b32 v%d, s98" % (hA + 1))
        a("  v_mov_b32 v%d, 0" % T0)
        a("  s_mov_b64 exec, 1")
        a("  buffer_atomic_umax v%d, v%d, s[92:95], 0 offen sc1" % (hA, T0))
        a("  buffer_atomic_umax v%d, v%d, s[92:95], 0 offen offset:4 sc1" % (hA + 1, T0))
        a("  s_mov_b64 exec, -1")
    a("L_tsdump:")
    if ts:
        a("  s_waitcnt lgkmcnt(0)")
        a("  s_lshl_b32 s%d, s2, 8" % sT[0])
        a("  s_add_u32 s%d, s%d, %d" % (sT[0], sT[0], TSOFF + 0x10000))
        a("  v_mov_b32 v%d, 0" % T2)
        a("  s_mov_b64 exec, 1")
        for i in range(len(names["H"])):
            a("  v_mov_b32 v%d, s%d" % (hA, TS0 + 2 * i))
            a("  v_mov_b32 v%d, s%d" % (hA + 1, TS0 + 2 * i + 1))
            a("  buffer_store_dwordx2 v[%d:%d], v%d, s[%d:%d], s%d offen offset:%d" % (hA, hA + 1, T2, sWs, sWs + 3, sT[0], 8 * i))
            a("  s_waitcnt vmcnt(0)")
        a("  s_mov_b64 exec, -1")
    a("  s_waitcnt vmcnt(0)")
    a("L_H_done:")
    a("L_end:")
    a("  s_endpgm")
    a("L_code_end:")

    lines = a.lines
    iH = lines.index("L_H:")
    iB0 = [k for k in range(iH, len(lines)) if "s_barrier" in lines[k] and "B0" in lines[k]][0]
    iE = iB0 + 1
    if ts and "s_memrealtime" in lines[iE]:
        iE += 1
    hpro = lines[iH + 1:iE]
    rest = lines[:iH] + ["L_H2:"] + lines[iE:]
    ib = [k for k, l in enumerate(rest) if l.strip() == "s_cbranch_scc1 L_H"][0]
    if layout:
        rest = rest[:ib] + ["  s_cbranch_scc0 L_S"] + hpro + ["  s_branch L_H2"] + rest[ib + 1:]
    else:
        rest = lines
    a.lines = rest
    body = a.text()
    s = HEADER
    s += "; @launch grid=(256,1,1) block=(512,1,1) lds=%d\n" % LDS_TOTAL
    s += '.amdgcn_target "amdgcn-amd-amdhsa--gfx950"\n.text\n'
    s += ".globl %s\n.p2align 8\n.type %s,@function\n%s:\n" % (KNAME, KNAME, KNAME)
    s += body
    s += """
.section .rodata,"a"
.p2align 6
.amdhsa_kernel %s
  .amdhsa_next_free_vgpr %d
  .amdhsa_next_free_sgpr 102
  .amdhsa_accum_offset %d
  .amdhsa_group_segment_fixed_size 0
  .amdhsa_kernarg_size 96
  .amdhsa_user_sgpr_count 2
  .amdhsa_user_sgpr_kernarg_segment_ptr 1
  .amdhsa_system_sgpr_workgroup_id_x 1
.end_amdhsa_kernel
""" % (KNAME, NV, NV)
    gen.names = names
    return s


if __name__ == "__main__":
    kw = {}
    out = "main.s"
    for arg in sys.argv[1:]:
        if "=" in arg:
            k, v = arg.split("=")
            kw[k] = int(v)
        else:
            out = arg
    open(out, "w").write(gen(**kw))
    import json
    json.dump(gen.names, open(out[:-2] + ".names.json", "w"))
    print("wrote", out)
```

```python
import sys
from asmlib import HEADER, KNAME

QP = 0x000000
GP = 0x080000
HH = 0x0F0000
OP = 0x100000
ST = 0x180000
DP = 0x190000
SP = 0x210000
EPOCH = 0x0FF000
EW = 0x2A0000
TSOFF = 0x0F000000

RING = 32768
MISC = 131072
XN = MISC
XN_STRIDE = 1040
QL = MISC + 8448
QL_STRIDE = 272
WOS = QL + 1088
WOS = (WOS + 255) // 256 * 256
FLG = WOS + 16384
F_H1 = 0; F_H3 = 8; F_QRDY = 16; F_STG = 20; F_ST = 24; F_HOP1 = 32; F_EW = 36; F_RED = 40; F_DOWN = 44; F_LATE = 48; F_EWS = 52; F_LOC = 56; F_MID = 60; F_T0 = 4; F_F = 12; F_EW2 = 28
SSTAT = 64
FFAC = 192
SPARE = FLG + 256
LDS_TOTAL = SPARE + 4096
assert LDS_TOTAL <= 163840, LDS_TOTAL
SPIN_LIMIT = 200000


class Asm:
    def __init__(self):
        self.lines = []
        self.nlab = 0

    def __call__(self, s=""):
        for l in s.split("\n"):
            self.lines.append(l)

    def lab(self, base="L"):
        self.nlab += 1
        return "%s_%d" % (base, self.nlab)

    def text(self):
        return "\n".join(self.lines) + "\n"


def vr(base, n=1):
    return "v%d" % base if n == 1 else "v[%d:%d]" % (base, base + n - 1)


def sr(base, n=1):
    return "s%d" % base if n == 1 else "s[%d:%d]" % (base, base + n - 1)


DPP = "row_mask:0xf bank_mask:0xf"


def gen(ts=False, dbg=0, rotmode=3, depth=8, noq=0, noffn=0, hop_sleep=0, ew_it=3, dbgtime=0, noh=0, ffn_sleep=24, skip=0, st_sleep=4, late_it=1, uselocal=1, mid_it=2, r4=0, gnt=0, xnt=0, pf=1, b0pos=0, la=1, gplocal=1, early_census=1, layout=1, presm=0, pipe2=0, h2_sleep=0, sprio=0, dfill=0, dk=0, locnt=0, nob1=1, early_ka=1):
    a = Asm()
    sW, sX, sLi, sCnt = 3, 4, 5, 6
    sT = [20, 21, 22, 23, 24, 25, 26, 27]
    TS0 = 68
    nts = [0]

    names = {"S": ["start"], "H": ["start"]}
    role = ["S"]

    def stamp(name):
        if name == 0:
            if ts:
                a("  s_memrealtime s[%d:%d]" % (TS0, TS0 + 1))
            return
        lst = names[role[0]]
        if name not in lst:
            lst.append(name)
        idx = lst.index(name)
        assert TS0 + 2 * idx + 1 <= 101
        if ts:
            a("  s_memrealtime s[%d:%d]" % (TS0 + 2 * idx, TS0 + 2 * idx + 1))

    def lds_wait(vbase, off, n, vtmp, sleep=1):
        l0, l1 = a.lab("Lw"), a.lab("Lwd")
        a("  s_mov_b32 s%d, 0" % sCnt)
        a("%s:" % l0)
        a("  ds_read_b32 v%d, v%d offset:%d" % (vtmp, vbase, off))
        a("  s_waitcnt lgkmcnt(0)")
        a("  v_readfirstlane_b32 s%d, v%d" % (sT[7], vtmp))
        a("  s_cmp_ge_u32 s%d, %d" % (sT[7], n))
        a("  s_cbranch_scc1 %s" % l1)
        a("  s_add_u32 s%d, s%d, 1" % (sCnt, sCnt))
        a("  s_cmp_lt_u32 s%d, %d" % (sCnt, SPIN_LIMIT))
        a("  s_cbranch_scc0 %s" % l1)
        a("  s_sleep %d" % sleep)
        a("  s_branch %s" % l0)
        a("%s:" % l1)

    def lds_add(vbase, off, vone):
        a("  s_mov_b64 exec, 1")
        a("  ds_add_u32 v%d, v%d offset:%d" % (vbase, vone, off))
        a("  s_mov_b64 exec, -1")

    def store_loc(stores, sflag):
        l0, l1 = a.lab("Lsl"), a.lab("Lsl")
        a("  s_cmp_eq_u32 s%d, 0" % sflag)
        a("  s_cbranch_scc1 %s" % l0)
        for st in stores:
            a(st + (" nt" if locnt else ""))
        a("  s_branch %s" % l1)
        a("%s:" % l0)
        for st in stores:
            a(st + " sc1")
        a("%s:" % l1)

    def reduce_swap(op, v, t, kind):
        a("  v_mov_b32 v%d, v%d" % (t, v))
        a("  s_nop 1")
        a("  v_permlane%d_swap_b32 v%d, v%d" % (kind, v, t))
        a("  %s v%d, v%d, v%d" % (op, v, v, t))

    a("  s_cmp_ge_u32 s2, 256")
    a("  s_cbranch_scc1 L_end")
    if early_ka:
        a("  s_load_dwordx2 s[8:9], s[0:1], 0             ; x")
        a("  s_load_dwordx2 s[52:53], s[0:1], 8           ; K")
        a("  s_load_dwordx2 s[12:13], s[0:1], 24          ; wq")
        a("  s_load_dwordx2 s[16:17], s[0:1], 88          ; ws")
        a("  s_load_dwordx2 s[60:61], s[0:1], 16          ; V")
        a("  s_load_dwordx4 s[56:59], s[0:1], 48")
    stamp(0)
    if dbgtime:
        a("  s_memrealtime s[100:101]")
    a("  v_lshrrev_b32 v1, 6, v0")
    a("  v_and_b32 v0, 63, v0            ; lane")
    a("  v_readfirstlane_b32 s%d, v1     ; wave id" % sW)
    a("  s_and_b32 s%d, s2, 7" % sX)
    a("  s_lshr_b32 s%d, s2, 3" % sLi)
    a("  s_cmp_ge_u32 s%d, 4" % sW)
    a("  s_cbranch_scc1 L_H")

    sK, sV, sCur = 8, 12, 16
    if early_ka:
        sV, sCur = 60, 52
    sBaseW, sRot, sRing, sIss, sOff, sIt = 28, 29, 30, 31, 32, 33
    sOff1 = 50
    sLocS = 51
    sM = 34
    sScale, sHi = 42, 43
    vLane = 0
    vMisc, vOne = 2, 3
    vKo, vVo, vCo = 4, 8, 12
    vKa = 16
    vVa = 20
    vTmp = 28
    vSp = 36
    vPf = 44
    vAcc = 52
    vE = 56
    vSt = 72
    vO = 104
    vQ = 136
    NV = 200

    sWsS = 16 if early_ka else 44
    sEp = 48
    sBaseW1 = 49
    a("L_S:")
    if sprio:
        a("  s_setprio %d" % sprio)
    if pf:
        lpf = a.lab("Lpf")
        a("  s_cmp_lg_u32 s%d, 3" % sW)
        a("  s_cbranch_scc1 %s" % lpf)
        a("  s_and_b32 s%d, s%d, 15" % (sT[0], sLi))
        a("  s_cmp_lg_u32 s%d, 0" % sT[0])
        a("  s_cbranch_scc1 %s" % lpf)
        a("  s_getpc_b64 s[%d:%d]" % (sT[2], sT[3]))
        a("L_pc:")
        a("  v_lshlrev_b32 v%d, 7, v%d" % (vTmp + 2, vLane))
        a("  v_add_u32 v%d, 0x2000, v%d" % (vTmp + 3, vTmp + 2))
        a("  global_load_dword v%d, v%d, s[%d:%d]" % (vSt, vTmp + 2, sT[2], sT[3]))
        a("  v_cmp_gt_u32 vcc, L_code_end-L_pc, v%d" % (vTmp + 3))
        a("  s_and_saveexec_b64 s[%d:%d], vcc" % (sT[4], sT[5]))
        a("  s_cbranch_execz L_pf_done")
        a("  global_load_dword v%d, v%d, s[%d:%d]" % (vSt + 1, vTmp + 3, sT[2], sT[3]))
        a("L_pf_done:")
        a("  s_mov_b64 exec, -1")
        a("%s:" % lpf)
    if not early_ka:
        a("  s_load_dwordx2 s[%d:%d], s[0:1], 8" % (sCur, sCur + 1))
        a("  s_load_dwordx2 s[%d:%d], s[0:1], 16" % (sV, sV + 1))
        a("  s_load_dwordx2 s[%d:%d], s[0:1], 88" % (sWsS, sWsS + 1))
    a("  s_mov_b32 s%d, 0x4000000" % (sCur + 2))
    a("  s_mov_b32 s%d, 0x20000" % (sCur + 3))
    a("  s_lshr_b32 s%d, s%d, 2" % (sT[0], sLi))
    a("  s_lshl_b32 s%d, s%d, 3" % (sT[0], sT[0]))
    a("  s_add_u32 s%d, s%d, s%d" % (sT[0], sT[0], sX))
    a("  s_lshl_b32 s%d, s%d, 2" % (sT[0], sT[0]))
    a("  s_and_b32 s%d, s%d, 3" % (sT[1], sLi))
    a("  s_add_u32 s%d, s%d, s%d" % (sT[0], sT[0], sT[1]))
    a("  s_lshl_b32 s%d, s%d, 18" % (sT[0], sT[0]))
    a("  s_lshl_b32 s%d, s%d, 13" % (sT[1], sW))
    if r4:
        if r4 == 1:
            a("  s_lshl_b32 s%d, s%d, 12" % (sT[2], sLi))
        else:
            a("  s_lshr_b32 s%d, s%d, 2" % (sT[2], sLi))
            a("  s_add_u32 s%d, s%d, s%d" % (sT[2], sT[2], sX))
            a("  s_lshl_b32 s%d, s%d, 12" % (sT[2], sT[2]))
        a("  s_add_u32 s%d, s%d, s%d" % (sT[1], sT[1], sT[2]))
        a("  s_add_u32 s%d, s%d, 4096" % (sT[2], sT[1]))
        a("  s_and_b32 s%d, s%d, 0x7fff" % (sT[1], sT[1]))
        a("  s_and_b32 s%d, s%d, 0x7fff" % (sT[2], sT[2]))
        a("  s_add_u32 s%d, s%d, s%d" % (sBaseW, sT[0], sT[1]))
        a("  s_add_u32 s%d, s%d, s%d" % (sBaseW1, sT[0], sT[2]))
    else:
        a("  s_add_u32 s%d, s%d, s%d" % (sBaseW, sT[0], sT[1]))
        a("  s_add_u32 s%d, s%d, 4096" % (sBaseW1, sBaseW))
    if rotmode == 0:
        sRotR = 2
    elif rotmode == 3:
        sRotR = sLi
    else:
        a("  s_add_u32 s%d, s2, s%d" % (sRot, sLi))
        sRotR = sRot
    a("  s_lshl_b32 s%d, s%d, 15" % (sRing, sW))
    a("  s_mov_b32 s%d, 0" % sIss)
    t0, t1, t2 = vTmp, vTmp + 1, vTmp + 2
    a("  v_lshrrev_b32 v%d, 4, v%d      ; g = l>>4" % (t0, vLane))
    a("  v_and_b32 v%d, 15, v%d         ; c' = l&15" % (t1, vLane))
    for i in range(4):
        a("  v_add_u32 v%d, %d, v%d" % (t2, 4 * i, t0))
        a("  v_xor_b32 v%d, v%d, v%d" % (t2, t2, t1))
        a("  v_lshlrev_b32 v%d, 4, v%d" % (t2, t2))
        a("  v_lshl_add_u32 v%d, v%d, 8, v%d" % (vCo + i, t0, t2))
    a("  v_mov_b32 v%d, %d" % (vMisc, FLG))
    a("  v_mov_b32 v%d, 1" % vOne)
    a("  s_waitcnt lgkmcnt(0)")
    a("  s_barrier                      ; B0")

    def issue_unit(switch=False, dep=None):
        depth_ = dep if dep else depth
        if switch:
            lsw = a.lab("Lsw")
            a("  s_cmp_lg_u32 s%d, 8" % sIss)
            a("  s_cbranch_scc1 %s" % lsw)
            for i in range(4):
                a("  s_mov_b32 s%d, s%d" % (sCur + i, sV + i))
            for i in range(4):
                a("  v_mov_b32 v%d, v%d" % (vCo + i, vVo + (i & 1)))
            a("%s:" % lsw)
        a("  s_add_u32 s%d, s%d, s%d" % (sT[0], sIss, sRotR))
        a("  s_and_b32 s%d, s%d, 7" % (sT[0], sT[0]))
        a("  s_lshl_b32 s%d, s%d, 15" % (sT[0], sT[0]))
        a("  s_add_u32 s%d, s%d, s%d" % (sOff, sT[0], sBaseW))
        a("  s_add_u32 s%d, s%d, s%d" % (sOff1, sT[0], sBaseW1))
        a("  s_and_b32 s%d, s%d, 3" % (sT[0], sIss))
        a("  s_lshl_b32 s%d, s%d, 13" % (sT[0], sT[0]))
        a("  s_add_u32 m0, s%d, s%d" % (sT[0], sRing))
        a("  s_add_u32 s%d, s%d, 1" % (sIss, sIss))
        a("  s_waitcnt vmcnt(%d)" % (depth_ - 1))
        for i in range(4):
            a("  buffer_load_dwordx4 v%d, s[%d:%d], s%d offen offset:%d nt lds" % (vCo + i, sCur, sCur + 3, sOff, i * 1024))
            if i < 3:
                a("  s_waitcnt vmcnt(%d)" % (depth_ - 1))
        a("  s_add_u32 m0, m0, 4096")
        a("  s_waitcnt vmcnt(%d)" % (depth_ - 1))
        for i in range(4):
            a("  buffer_load_dwordx4 v%d, s[%d:%d], s%d offen offset:%d nt lds" % (vCo + i, sCur, sCur + 3, sOff1, i * 1024))
            if i < 3:
                a("  s_waitcnt vmcnt(%d)" % (depth_ - 1))

    a("L_fill:")
    a("  s_cmp_lg_u32 s%d, 3" % sIss)
    a("  s_cbranch_scc1 L_fill_go")
    stamp("u2 issued")
    lds_wait(vMisc, F_STG, 4, vTmp + 5)
    stamp("STG ok")
    a("L_fill_go:")
    issue_unit(dep=dfill)

    a("  s_cmp_lt_u32 s%d, 4" % sIss)
    a("  s_cbranch_scc1 L_fill")
    a("  s_load_dword s%d, s[%d:%d], 0x%x" % (sEp, sWsS, sWsS + 1, EPOCH))
    a("  s_mov_b32 s%d, 0x4000000" % (sV + 2))
    a("  s_mov_b32 s%d, 0x20000" % (sV + 3))
    a("  s_mov_b32 s%d, 0x10000000" % (sWsS + 2))
    a("  s_mov_b32 s%d, 0x20000" % (sWsS + 3))
    for i in range(2):
        a("  v_add_u32 v%d, %d, v%d" % (t2, 4 * i, t0))
        a("  v_lshlrev_b32 v%d, 1, v%d" % (t2, t2))
        a("  v_xor_b32 v%d, v%d, v%d" % (t2, t2, t1))
        a("  v_lshlrev_b32 v%d, 4, v%d" % (t2, t2))
        a("  v_lshl_add_u32 v%d, v%d, 8, v%d" % (vVo + i, t0, t2))
    for s in range(4):
        a("  v_add_u32 v%d, %d, v%d" % (t2, 4 * s, t0))
        a("  v_xor_b32 v%d, v%d, v%d" % (t2, t2, t1))
        a("  v_lshlrev_b32 v%d, 4, v%d" % (t2, t2))
        a("  v_lshl_add_u32 v%d, v%d, 8, v%d" % (t2, t1, t2))
        a("  v_add_u32 v%d, s%d, v%d" % (vKa + s, sRing, t2))
    t3, t4 = vTmp + 3, vTmp + 4
    a("  v_lshrrev_b32 v%d, 2, v%d" % (t2, t1))
    a("  v_lshl_add_u32 v%d, v%d, 2, v%d    ; row" % (t2, t0, t2))
    a("  v_and_b32 v%d, 7, v%d              ; row&7" % (t3, t2))
    a("  v_lshlrev_b32 v%d, 8, v%d" % (t2, t2))
    a("  v_and_b32 v%d, 3, v%d" % (t4, t1))
    a("  v_lshl_add_u32 v%d, v%d, 3, v%d" % (t2, t4, t2))
    a("  v_add_u32 v%d, s%d, v%d" % (t2, sRing, t2))
    for dt in range(8):
        a("  v_xor_b32 v%d, %d, v%d" % (t4, dt, t3))
        a("  v_lshl_add_u32 v%d, v%d, 5, v%d" % (vVa + dt, t4, t2))
    for i in range(64):
        a("  v_mov_b32 v%d, 0" % (vQ + i))
    a("  v_bfe_u32 v%d, v%d, 2, 2" % (t2, vLane))
    for t in range(4):
        a("  v_cmp_eq_u32 s[%d:%d], %d, v%d" % (sM + 2 * t, sM + 2 * t + 1, t, t2))
    a("  v_and_b32 v%d, 3, v%d" % (t2, vLane))
    a("  v_mul_u32_u24 v%d, %d, v%d" % (t2, QL_STRIDE, t2))
    a("  v_lshl_add_u32 v%d, v%d, 4, v%d" % (t2, t0, t2))
    a("  v_add_u32 v%d, %d, v%d" % (t2, QL, t2))
    a("  s_mov_b32 s%d, 0x3DB504F3      ; 128^-0.5" % sScale)
    a("  s_mov_b32 s%d, 0xffff0000" % sHi)
    stamp("fill done")
    if not noq:
        lds_wait(vMisc, F_QRDY, 4, vTmp + 5)
    stamp("Q ready")
    for t in range(4):
        a("  s_mov_b64 exec, s[%d:%d]" % (sM + 2 * t, sM + 2 * t + 1))
        for s in range(4):
            r = vQ + (t * 4 + s) * 4
            a("  ds_read_b128 v[%d:%d], v%d offset:%d" % (r, r + 3, t2, 64 * s))
    a("  s_mov_b64 exec, -1")
    a("  s_mov_b32 s%d, 0" % sIt)
    a("  s_waitcnt vmcnt(0) lgkmcnt(0)")

    a("L_k:")
    lmid = a.lab("Lmid")
    a("  s_cmp_lg_u32 s%d, 0" % sW)
    a("  s_cbranch_scc1 %s" % lmid)
    a("  s_cmp_lg_u32 s%d, %d" % (sIt, mid_it))
    a("  s_cbranch_scc1 %s" % lmid)
    lds_add(vMisc, F_MID, vOne)
    a("%s:" % lmid)
    for u in range(2):
        if u == 0:
            lsk = a.lab("Lsk")
            a("  s_cmp_lt_u32 s%d, %d" % (sIt, 3 if la == 1 else 2))
            a("  s_cbranch_scc1 %s" % lsk)
            issue_unit(switch=(la == 2), dep=dk)
            a("%s:" % lsk)
        else:
            issue_unit(switch=(la == 1), dep=dk)
        for hf in range(2):
            for s_ in range(4):
                r = vSt + (hf * 4 + s_) * 4
                a("  ds_read_b128 v[%d:%d], v%d offset:%d" % (r, r + 3, vKa + s_, u * 8192 + hf * 4096))
        for hf in range(2):
            a("  s_waitcnt lgkmcnt(%d)" % (4 if hf == 0 else 0))
            t = 2 * u + hf
            for s_ in range(4):
                r = vSt + (hf * 4 + s_) * 4
                q = vQ + (t * 4 + s_) * 4
                c = "0" if (u == 0 and hf == 0 and s_ == 0) else "v[%d:%d]" % (vAcc, vAcc + 3)
                a("  v_mfma_f32_16x16x32_bf16 v[%d:%d], v[%d:%d], v[%d:%d], %s" % (vAcc, vAcc + 3, r, r + 3, q, q + 3, c))
    for i in range(6):
        a("  v_mov_b32 v%d, v%d" % (vSp + i, vSp + i + 2))
    for s in range(4):
        a("  v_xor_b32 v%d, 0x4000, v%d" % (vKa + s, vKa + s))
    c0, c1 = vTmp, vTmp + 1
    e0 = vTmp + 2
    a("  v_cvt_pk_bf16_f32 v%d, v%d, v%d" % (c0, vAcc, vAcc + 1))
    a("  v_cvt_pk_bf16_f32 v%d, v%d, v%d" % (c1, vAcc + 2, vAcc + 3))
    a("  v_lshlrev_b32 v%d, 16, v%d" % (e0, c0))
    a("  v_and_b32 v%d, s%d, v%d" % (e0 + 1, sHi, c0))
    a("  v_lshlrev_b32 v%d, 16, v%d" % (e0 + 2, c1))
    a("  v_and_b32 v%d, s%d, v%d" % (e0 + 3, sHi, c1))
    for i in range(4):
        a("  v_mul_f32 v%d, s%d, v%d" % (e0 + i, sScale, e0 + i))
    a("  v_cvt_pk_bf16_f32 v%d, v%d, v%d" % (vSp + 6, e0, e0 + 1))
    a("  v_cvt_pk_bf16_f32 v%d, v%d, v%d" % (vSp + 7, e0 + 2, e0 + 3))
    a("  s_add_u32 s%d, s%d, 1" % (sIt, sIt))
    a("  s_cmp_lt_u32 s%d, 4" % sIt)
    a("  s_cbranch_scc1 L_k")
    stamp("K done")
    if presm and la == 1:
        issue_unit()

    for i in range(8):
        a("  v_lshlrev_b32 v%d, 16, v%d" % (vE + 2 * i, vSp + i))
        a("  v_and_b32 v%d, s%d, v%d" % (vE + 2 * i + 1, sHi, vSp + i))
    vM, vL, vX = vTmp, vTmp + 1, vTmp + 2
    a("  v_max3_f32 v%d, v%d, v%d, v%d" % (vM, vE, vE + 1, vE + 2))
    for i in range(3, 15, 2):
        a("  v_max3_f32 v%d, v%d, v%d, v%d" % (vM, vM, vE + i, vE + i + 1))
    a("  v_max_f32 v%d, v%d, v%d" % (vM, vM, vE + 15))
    a("  s_nop 1")
    a("  v_max_f32_dpp v%d, v%d, v%d row_ror:4 %s" % (vM, vM, vM, DPP))
    a("  s_nop 1")
    a("  v_max_f32_dpp v%d, v%d, v%d row_ror:8 %s" % (vM, vM, vM, DPP))
    reduce_swap("v_max_f32", vM, vX, 16)
    reduce_swap("v_max_f32", vM, vX, 32)
    a("  s_mov_b32 s%d, 0x3FB8AA3B      ; log2(e)" % sT[0])
    a("  v_mul_f32 v%d, s%d, v%d" % (vX, sT[0], vM))
    for i in range(16):
        a("  v_fma_f32 v%d, v%d, s%d, -v%d" % (vE + i, vE + i, sT[0], vX))
    for i in range(16):
        a("  v_exp_f32 v%d, v%d" % (vE + i, vE + i))
    a("  s_nop 0")
    for i in range(8):
        a("  v_cvt_pk_bf16_f32 v%d, v%d, v%d" % (vSp + i, vE + 2 * i, vE + 2 * i + 1))
    for i in range(4):
        a("  v_pk_add_f32 v[%d:%d], v[%d:%d], v[%d:%d]" % (vE + 2 * i, vE + 2 * i + 1, vE + 2 * i, vE + 2 * i + 1, vE + 8 + 2 * i, vE + 9 + 2 * i))
    for i in range(2):
        a("  v_pk_add_f32 v[%d:%d], v[%d:%d], v[%d:%d]" % (vE + 2 * i, vE + 2 * i + 1, vE + 2 * i, vE + 2 * i + 1, vE + 4 + 2 * i, vE + 5 + 2 * i))
    a("  v_pk_add_f32 v[%d:%d], v[%d:%d], v[%d:%d]" % (vE, vE + 1, vE, vE + 1, vE + 2, vE + 3))
    a("  v_add_f32 v%d, v%d, v%d" % (vL, vE, vE + 1))
    a("  s_nop 1")
    a("  v_add_f32_dpp v%d, v%d, v%d row_ror:4 %s" % (vL, vL, vL, DPP))
    a("  s_nop 1")
    a("  v_add_f32_dpp v%d, v%d, v%d row_ror:8 %s" % (vL, vL, vL, DPP))
    reduce_swap("v_add_f32", vL, vX, 16)
    reduce_swap("v_add_f32", vL, vX, 32)
    a("  s_lshl_b32 s%d, s%d, 5" % (sT[0], sW))
    a("  v_lshlrev_b32 v%d, 3, v%d" % (vX, vLane))
    a("  v_add_u32 v%d, s%d, v%d" % (vX, sT[0], vX))
    a("  v_add_u32 v%d, v%d, v%d" % (vX, vMisc, vX))
    a("  s_mov_b64 exec, 15")
    a("  ds_write_b64 v%d, v[%d:%d] offset:%d" % (vX, vM, vM + 1, SSTAT))
    a("  s_waitcnt lgkmcnt(0)")
    a("  s_mov_b64 exec, -1")
    lds_add(vMisc, F_ST, vOne)

    for i in range(32):
        a("  v_mov_b32 v%d, 0" % (vO + i))
    a("  s_mov_b32 s%d, 0" % sIt)
    a("L_v:")
    a("  v_mov_b32 v%d, v%d" % (vPf, vSp))
    a("  v_mov_b32 v%d, v%d" % (vPf + 1, vSp + 1))
    for k, sh in ((2, 4), (4, 8), (6, 12)):
        a("  v_mov_b32_dpp v%d, v%d row_shl:%d %s bound_ctrl:0" % (vPf + k, vSp, sh, DPP))
        a("  v_mov_b32_dpp v%d, v%d row_shl:%d %s bound_ctrl:0" % (vPf + k + 1, vSp + 1, sh, DPP))
    for i in range(6):
        a("  v_mov_b32 v%d, v%d" % (vSp + i, vSp + i + 2))
    lew = a.lab("Lew")
    a("  s_cmp_lg_u32 s%d, 0" % sW)
    a("  s_cbranch_scc1 %s" % lew)
    lew2 = a.lab("Lew")
    a("  s_cmp_lg_u32 s%d, %d" % (sIt, late_it))
    a("  s_cbranch_scc1 %s" % lew2)
    lds_add(vMisc, F_LATE, vOne)
    a("%s:" % lew2)
    a("  s_cmp_lg_u32 s%d, %d" % (sIt, ew_it))
    a("  s_cbranch_scc1 %s" % lew)
    lds_add(vMisc, F_EWS, vOne)
    if nob1:
        lds_wait(vMisc, F_LOC, 1, vTmp + 5, sleep=0)
        a("  s_lshr_b32 s%d, s%d, 1" % (sLocS, sT[7]))
        lds_wait(vMisc, F_F, 1, vTmp + 5, sleep=0)
    a("%s:" % lew)
    for u in range(2):
        if u == 0 and la == 1:
            if presm:
                lsk = a.lab("Lsk")
                a("  s_cmp_eq_u32 s%d, 0" % sIt)
                a("  s_cbranch_scc1 %s" % lsk)
                issue_unit()
                a("%s:" % lsk)
            else:
                issue_unit()
        else:
            lv_else, lv_done = a.lab("Lve"), a.lab("Lvd")
            a("  s_cmp_ge_u32 s%d, 3" % sIt)
            a("  s_cbranch_scc1 %s" % lv_else)
            issue_unit()
            a("  s_branch %s" % lv_done)
            a("%s:" % lv_else)
            a("  s_waitcnt vmcnt(%d)" % (8 if u == 0 else 0))
            a("%s:" % lv_done)
        for dt in range(8):
            r = vSt + dt * 4
            a("  ds_read_b64_tr_b16 v[%d:%d], v%d offset:%d" % (r, r + 1, vVa + dt, u * 8192))
            a("  ds_read_b64_tr_b16 v[%d:%d], v%d offset:%d" % (r + 2, r + 3, vVa + dt, u * 8192 + 4096))
        for dt in range(8):
            r = vSt + dt * 4
            o = vO + dt * 4
            if dt % 2 == 0:
                a("  s_waitcnt lgkmcnt(%d)" % (12 - 2 * dt if dt < 6 else 0))
            a("  v_mfma_f32_16x16x32_bf16 v[%d:%d], v[%d:%d], v[%d:%d], v[%d:%d]" % (o, o + 3, r, r + 3, vPf + 4 * u, vPf + 4 * u + 3, o, o + 3))
    for dt in range(8):
        a("  v_xor_b32 v%d, 0x4000, v%d" % (vVa + dt, vVa + dt))
    a("  s_add_u32 s%d, s%d, 1" % (sIt, sIt))
    a("  s_cmp_lt_u32 s%d, 4" % sIt)
    a("  s_cbranch_scc1 L_v")
    stamp("V done")
    a("  v_and_b32 v%d, 15, v%d" % (t1, vLane))
    a("  v_lshrrev_b32 v%d, 4, v%d" % (t0, vLane))
    a("  v_lshlrev_b32 v%d, 9, v%d" % (t2, t1))
    a("  v_lshl_add_u32 v%d, v%d, 4, v%d" % (t2, t0, t2))
    a("  v_add_u32 v%d, s%d, v%d" % (t2, sRing, t2))
    a("  v_cmp_gt_u32 vcc, 4, v%d" % t1)
    a("  s_nop 4")
    a("  s_mov_b64 exec, vcc")
    for dt in range(8):
        a("  ds_write_b128 v%d, v[%d:%d] offset:%d" % (t2, vO + dt * 4, vO + dt * 4 + 3, dt * 64))
    a("  s_mov_b64 exec, -1")
    vR0, vR1, vR2, vR3 = vPf, vPf + 1, vPf + 2, vPf + 3
    a("  v_lshlrev_b32 v%d, 9, v%d" % (vR0, t0))
    a("  v_lshl_add_u32 v%d, v%d, 4, v%d      ; h*512 + c*16" % (vR0, t1, vR0))
    a("  v_lshl_add_u32 v%d, v%d, 4, v%d      ; FLG + h*16" % (vR1, t0, vMisc))
    a("  v_lshlrev_b32 v%d, 14, v%d" % (vR2, t0))
    a("  v_lshrrev_b32 v%d, 3, v%d" % (t3, t1))
    a("  v_lshl_add_u32 v%d, v%d, 11, v%d" % (vR2, t3, vR2))
    a("  v_and_b32 v%d, 7, v%d" % (t3, t1))
    a("  v_lshl_add_u32 v%d, v%d, 4, v%d" % (vR2, t3, vR2))
    a("  s_lshl_b32 s%d, s%d, 16" % (sT[0], sX))
    a("  s_lshr_b32 s%d, s%d, 4" % (sT[1], sLi))
    a("  s_lshl_b32 s%d, s%d, 13" % (sT[1], sT[1]))
    a("  s_add_u32 s%d, s%d, s%d" % (sT[0], sT[0], sT[1]))
    a("  s_and_b32 s%d, s%d, 15" % (sT[1], sLi))
    a("  s_lshl_b32 s%d, s%d, 7" % (sT[1], sT[1]))
    a("  s_add_u32 s%d, s%d, s%d" % (sT[0], sT[0], sT[1]))
    a("  s_add_u32 s%d, s%d, %d" % (sT[0], sT[0], OP))
    a("  s_add_u32 s%d, s%d, 1" % (sT[1], sEp))
    a("  s_and_b32 s%d, s%d, 0xff" % (sT[1], sT[1]))
    a("  v_mov_b32 v%d, s%d" % (vR3, sT[1]))
    a("  s_add_u32 s%d, s%d, 4096" % (sT[1], sT[0]))
    a("  s_mov_b32 s%d, 0xffff0000" % sT[2])
    if not nob1:
        lds_wait(vMisc, F_LOC, 1, t3)
        a("  s_lshr_b32 s%d, s%d, 1" % (sLocS, sT[7]))
    a("  s_waitcnt lgkmcnt(0)")
    if nob1:
        lds_add(vMisc, F_T0, vOne)
        a("  s_cmp_lg_u32 s%d, 0" % sW)
        a("  s_cbranch_scc1 L_S_done")
        lds_wait(vMisc, F_T0, 4, t3, sleep=0)
    else:
        a("  s_barrier                      ; B1")
        a("  s_cmp_lg_u32 s%d, 0" % sW)
        a("  s_cbranch_scc1 L_S_done")
    sWs = sWsS
    for w in range(4):
        a("  ds_read_b128 v[%d:%d], v%d offset:%d" % (vSt + w * 8, vSt + w * 8 + 3, vR0, (w & 1) * 32768))
        a("  ds_read_b128 v[%d:%d], v%d offset:%d" % (vSt + w * 8 + 4, vSt + w * 8 + 7, vR0, (w & 1) * 32768 + 256))
        if w == 1:
            a("  v_add_u32 v%d, 0x10000, v%d" % (vR0, vR0))
    a("  ds_read_b128 v[%d:%d], v%d offset:%d" % (vE, vE + 3, vR1, FFAC))
    a("  s_waitcnt lgkmcnt(0)")
    for i in range(8):
        a("  v_mul_f32 v%d, v%d, v%d" % (vO + i, vSt + i, vE))
    for w in range(1, 4):
        for i in range(8):
            a("  v_fmac_f32 v%d, v%d, v%d" % (vO + i, vSt + w * 8 + i, vE + w))
    for i in range(8):
        a("  v_cvt_pk_bf16_f32 v%d, v%d, v%d" % (vO + i, vO + i, vO + i))
    for i in range(8):
        a("  v_and_or_b32 v%d, v%d, s%d, v%d" % (vO + i, vO + i, sT[2], vR3))
    store_loc(["  buffer_store_dwordx4 v[%d:%d], v%d, s[%d:%d], s%d offen" % (vO, vO + 3, vR2, sWs, sWs + 3, sT[0]),
               "  buffer_store_dwordx4 v[%d:%d], v%d, s[%d:%d], s%d offen" % (vO + 4, vO + 7, vR2, sWs, sWs + 3, sT[1])], sLocS)
    stamp("published")
    a("  s_barrier                      ; B2")
    if ts:
        a("  s_waitcnt lgkmcnt(0)")
        a("  s_lshl_b32 s%d, s2, 8" % sT[0])
        a("  s_add_u32 s%d, s%d, %d" % (sT[0], sT[0], TSOFF))
        a("  v_mov_b32 v%d, 0" % t2)
        a("  s_mov_b64 exec, 1")
        for i in range(len(names["S"])):
            a("  v_mov_b32 v%d, s%d" % (vO, TS0 + 2 * i))
            a("  v_mov_b32 v%d, s%d" % (vO + 1, TS0 + 2 * i + 1))
            a("  buffer_store_dwordx2 v[%d:%d], v%d, s[%d:%d], s%d offen offset:%d" % (vO, vO + 1, t2, sWs, sWs + 3, sT[0], 8 * i))
            a("  s_waitcnt vmcnt(0)")
        a("  s_mov_b64 exec, -1")
    a("L_S_done:")
    a("  s_endpgm")

    role[0] = "H"
    a("L_H:")
    sHW = 7
    sXd, sWq, sWs, sGU, sWd, sWo, sOut = 8, 12, 16, 32, 36, 40, 44
    sEp = 28
    sTag = 29
    sNotFF = 30
    sTag4 = 31
    sHi2 = 48
    sFi = 49
    sSelA, sSelB = 50, 54
    sB = 51; sJ = 52; sFidx = 53
    sKb2 = 55
    sLo8 = 60
    sFv = 3
    sLoc = 56
    sDbg = 64
    sHq = 62
    sWoStg = 63
    hMisc, hOne = 2, 3
    hG, hI = 4, 5
    hT = 6
    hX = 16
    hF = 24
    hY = 40
    hA = 56
    hB = 72
    hD = 88
    hW = 120
    hXf = 136
    hZ = 144
    hTag = 156
    hWd = 160
    hMid = 197
    T0, T1, T2, T3, T4, T5 = hT, hT + 1, hT + 2, hT + 3, hT + 4, hT + 5
    hTr, hXn, hW1k, hTrG, hOutOff = hZ + 1, hZ + 2, hZ + 4, hZ + 5, hZ + 6

    if not early_ka:
        a("  s_load_dwordx2 s[%d:%d], s[0:1], 0" % (sXd, sXd + 1))
        a("  s_load_dwordx2 s[%d:%d], s[0:1], 24" % (sWq, sWq + 1))
        a("  s_load_dwordx4 s[56:59], s[0:1], 48")
        a("  s_load_dwordx2 s[%d:%d], s[0:1], 88" % (sWs, sWs + 1))
    a("  v_lshlrev_b32 v%d, 2, v0" % T0)
    a("  v_add_u32 v%d, %d, v%d" % (T0, FLG, T0))
    a("  v_mov_b32 v%d, 0" % T1)
    a("  ds_write_b32 v%d, v%d" % (T0, T1))
    a("  s_sub_u32 s%d, s%d, 4" % (sHW, sW))
    a("  s_mov_b32 s%d, 8192" % (sXd + 2))
    a("  s_mov_b32 s%d, 0x20000" % (sXd + 3))
    a("  v_lshrrev_b32 v%d, 5, v0" % T0)
    a("  s_lshl_b32 s%d, s%d, 1" % (sT[0], sHW))
    a("  v_add_u32 v%d, s%d, v%d          ; row b" % (T0, sT[0], T0))
    a("  v_and_b32 v%d, 31, v0" % T1)
    a("  v_lshlrev_b32 v%d, 5, v%d" % (T1, T1))
    a("  v_lshl_add_u32 v%d, v%d, 10, v%d" % (T2, T0, T1))
    a("  s_waitcnt lgkmcnt(0)")
    a("  buffer_load_dwordx4 v[%d:%d], v%d, s[%d:%d], 0 offen%s" % (hX, hX + 3, T2, sXd, sXd + 3, " nt" if xnt else ""))
    a("  buffer_load_dwordx4 v[%d:%d], v%d, s[%d:%d], 0 offen offset:16%s" % (hX + 4, hX + 7, T2, sXd, sXd + 3, " nt" if xnt else ""))
    a("  v_lshrrev_b32 v%d, 3, v0" % T3)
    a("  v_and_b32 v%d, 7, v0" % T4)
    a("  v_lshlrev_b32 v%d, 4, v%d" % (T4, T4))
    a("  v_lshl_add_u32 v%d, v%d, 13, v%d" % (T5, T3, T4))
    a("  s_and_b32 s%d, s%d, 3" % (sJ, sLi))
    a("  s_lshr_b32 s%d, s%d, 2" % (sB, sLi))
    a("  s_lshl_b32 s%d, s%d, 2" % (sT[0], sJ))
    a("  s_add_u32 s%d, s%d, s%d" % (sT[0], sT[0], sHW))
    a("  s_lshl_b32 s%d, s%d, 18" % (sT[0], sT[0]))
    a("  s_lshl_b32 s%d, s%d, 3" % (sT[1], sX))
    a("  s_add_u32 s%d, s%d, s%d" % (sT[1], sT[1], sB))
    a("  s_lshl_b32 s%d, s%d, 7" % (sT[1], sT[1]))
    a("  s_add_u32 s%d, s%d, s%d" % (sT[0], sT[0], sT[1]))
    a("  s_lshr_b32 s%d, s%d, 1" % (sT[1], sHW))
    a("  s_lshl_b32 s%d, s%d, 15" % (sT[1], sT[1]))
    a("  s_and_b32 s%d, s%d, 1" % (sT[2], sHW))
    a("  s_lshl_b32 s%d, s%d, 12" % (sT[2], sT[2]))
    a("  s_add_u32 s%d, s%d, s%d" % (sT[1], sT[1], sT[2]))
    a("  s_add_u32 s%d, s%d, 24576" % (sT[1], sT[1]))
    a("  s_mov_b32 s%d, 0x400000" % (sWq + 2))
    a("  s_mov_b32 s%d, 0x20000" % (sWq + 3))
    for n in range(4):
        a("  s_add_u32 m0, s%d, %d" % (sT[1], n * 1024))
        if n:
            a("  s_add_u32 s%d, s%d, %d" % (sT[0], sT[0], 8 * 8192))
        else:
            a("  s_load_dword s%d, s[%d:%d], 0x%x" % (sEp, sWs, sWs + 1, EPOCH))
        a("  buffer_load_dwordx4 v%d, s[%d:%d], s%d offen nt lds" % (T5, sWq, sWq + 3, sT[0]))
    if b0pos == 0:
        a("  s_barrier                      ; B0")
        stamp("B0")
    a("  s_load_dwordx2 s[%d:%d], s[0:1], 64" % (sWd, sWd + 1))
    a("  s_load_dwordx2 s[%d:%d], s[0:1], 32" % (sWo, sWo + 1))
    a("  s_load_dwordx2 s[%d:%d], s[0:1], 72" % (sOut, sOut + 1))
    a("  s_load_dwordx2 s[%d:%d], s[0:1], 80" % (sDbg, sDbg + 1))
    a("  s_lshr_b32 s%d, s%d, 3" % (sT[4], sLi))
    a("  s_lshl_b32 s%d, s%d, 3" % (sT[4], sT[4]))
    a("  s_add_u32 s%d, s%d, s%d" % (sT[4], sT[4], sX))
    a("  s_cmp_lt_u32 s%d, 28" % sT[4])
    a("  s_cselect_b32 s%d, 1, 0" % sFv)
    a("  s_min_u32 s%d, s%d, 27" % (sT[4], sT[4]))
    a("  s_lshl_b32 s%d, s%d, 3" % (sFi, sT[4]))
    a("  s_and_b32 s%d, s%d, 7" % (sT[5], sLi))
    a("  s_add_u32 s%d, s%d, s%d" % (sFi, sFi, sT[5]))
    a("  s_and_b32 s%d, s%d, 3" % (sKb2, sFi))
    a("  s_lshl_b32 s%d, s%d, 2" % (sT[3], sKb2))
    a("  s_add_u32 s%d, s%d, s%d" % (sT[3], sT[3], sHW))
    a("  s_mul_i32 s%d, s%d, %d" % (sT[3], sT[3], 32 * 3584))
    a("  s_lshl_b32 s%d, s%d, 7" % (sT[4], sT[4]))
    a("  s_add_u32 s%d, s%d, s%d" % (sT[3], sT[3], sT[4]))
    a("  s_bitcmp1_b32 s%d, 2" % sFi)
    a("  s_cselect_b32 s%d, s58, s56" % sGU)
    a("  s_cselect_b32 s%d, s59, s57" % (sGU + 1))
    a("  s_mov_b32 s%d, 1835008" % (sGU + 2))
    a("  s_mov_b32 s%d, 0x20000" % (sGU + 3))
    a("  v_lshl_add_u32 v%d, v%d, 10, v%d" % (hW1k, T3, T4))
    a("  v_mul_u32_u24 v%d, 3584, v%d" % (T3, T3))
    a("  v_add_u32 v%d, v%d, v%d" % (T3, T3, T4))
    for n in range(4):
        a("  s_add_u32 m0, s%d, %d" % (sT[1], 65536 + n * 1024))
        if n:
            a("  s_add_u32 s%d, s%d, %d" % (sT[3], sT[3], 8 * 3584))
        else:
            a("  s_mov_b32 s%d, 0xffff0000" % sHi2)
        a("  buffer_load_dwordx4 v%d, s[%d:%d], s%d offen nt lds" % (T3, sGU, sGU + 3, sT[3]))
    if b0pos == 1:
        a("  s_barrier                      ; B0")
        stamp("B0")
    a("  v_lshrrev_b32 v%d, 4, v0" % hG)
    a("  v_and_b32 v%d, 15, v0" % hI)
    a("  v_mov_b32 v%d, %d" % (hMisc, FLG))
    a("  v_mov_b32 v%d, 1" % hOne)
    a("  v_mul_u32_u24 v%d, %d, v%d" % (T0, XN_STRIDE, T0))
    a("  v_add_u32 v%d, v%d, v%d" % (T0, T0, T1))
    a("  v_add_u32 v%d, %d, v%d" % (hZ, XN, T0))
    if noh:
        for _ in range(4):
            lds_add(hMisc, F_QRDY, hOne)
            lds_add(hMisc, F_STG, hOne)
        a("  s_barrier")
        a("  s_mov_b32 s%d, 0x10000000" % (sWs + 2))
        a("  s_mov_b32 s%d, 0x20000" % (sWs + 3))
        a("  s_cmp_lg_u32 s%d, 0" % sHW)
        a("  s_cbranch_scc1 L_H_done")
        a("  s_branch L_tsdump")
    a("  s_mov_b32 s%d, 0x10000000" % (sWs + 2))
    a("  s_mov_b32 s%d, 0x20000" % (sWs + 3))
    for base, size in ((sWd, 1835008), (sWo, 0x400000), (sOut, 8192)):
        a("  s_mov_b32 s%d, %d" % (base + 2, size))
        a("  s_mov_b32 s%d, 0x20000" % (base + 3))
    a("  s_mov_b32 s%d, 0xffffff00" % sNotFF)
    a("  s_mov_b32 s%d, 0x0c0c0400" % sSelA)
    a("  s_mov_b32 s%d, 0x04000c0c" % sSelB)

    def pk(op, d, s0, s1, extra=""):
        a("  %s v[%d:%d], v[%d:%d], v[%d:%d]%s" % (op, d, d + 1, s0, s0 + 1, s1, s1 + 1, extra))

    def allreduce32(v, t):
        for n in (1, 2, 4, 8):
            a("  s_nop 1")
            a("  v_add_f32_dpp v%d, v%d, v%d row_ror:%d %s" % (v, v, v, n, DPP))
        reduce_swap("v_add_f32", v, t, 16)

    def tag(v):
        a("  v_and_or_b32 v%d, v%d, s%d, v%d" % (v, v, sNotFF, hTag))

    def tag_retry(regs, lab_retry, lab_ok, t0_, t1_, sleep):
        rs = list(regs)
        assert len(rs) % 4 == 0
        for k in range(0, len(rs), 4):
            a("  v_perm_b32 v%d, v%d, v%d, s%d" % (t1_, rs[k + 1], rs[k], sSelA))
            a("  v_perm_b32 v%d, v%d, v%d, s%d" % (t1_ + 1, rs[k + 3], rs[k + 2], sSelB))
            if k == 0:
                a("  v_or_b32 v%d, v%d, v%d" % (t0_, t1_, t1_ + 1))
                a("  v_xor_b32 v%d, s%d, v%d" % (t0_, sTag4, t0_))
            else:
                a("  v_or_b32 v%d, v%d, v%d" % (t1_, t1_, t1_ + 1))
                a("  v_xor_b32 v%d, s%d, v%d" % (t1_, sTag4, t1_))
                a("  v_or_b32 v%d, v%d, v%d" % (t0_, t0_, t1_))
        a("  v_cmp_ne_u32 vcc, 0, v%d" % t0_)
        a("  s_cbranch_vccz %s" % lab_ok)
        a("  s_mov_b64 exec, vcc")
        a("  s_add_u32 s%d, s%d, 1" % (sCnt, sCnt))
        a("  s_cmp_lt_u32 s%d, %d" % (sCnt, SPIN_LIMIT))
        a("  s_cbranch_scc0 %s" % lab_ok)
        a("  s_sleep %d" % sleep)
        a("  s_branch %s" % lab_retry)

    def round_bf16(v):
        a("  v_cvt_pk_bf16_f32 v%d, v%d, v%d" % (v, v, v))
        a("  v_and_b32 v%d, s%d, v%d" % (v, sHi2, v))

    def untag(regs):
        for v in regs:
            a("  v_and_or_b32 v%d, v%d, s%d, v%d" % (v, v, sNotFF, hMid))

    a("  s_waitcnt vmcnt(8)")
    for i in range(8):
        a("  v_lshlrev_b32 v%d, 16, v%d" % (hF + 2 * i, hX + i))
        a("  v_and_b32 v%d, s%d, v%d" % (hF + 2 * i + 1, sHi2, hX + i))
    for i in range(4):
        pk("v_pk_add_f32", hY + 2 * i, hF + 4 * i, hF + 4 * i + 2)
    pk("v_pk_add_f32", hY, hY, hY + 2)
    pk("v_pk_add_f32", hY + 4, hY + 4, hY + 6)
    pk("v_pk_add_f32", hY, hY, hY + 4)
    vS = hZ + 8
    vV = hZ + 10
    a("  v_add_f32 v%d, v%d, v%d" % (vS, hY, hY + 1))
    allreduce32(vS, T0)
    a("  v_mul_f32 v%d, 0x3b000000, v%d     ; mean" % (vS, vS))
    for i in range(8):
        pk("v_pk_add_f32", hY + 2 * i, hF + 2 * i, vS, " op_sel_hi:[1,0] neg_lo:[0,1] neg_hi:[0,1]")
    pk("v_pk_mul_f32", vV, hY, hY)
    for i in range(1, 8):
        a("  v_pk_fma_f32 v[%d:%d], v[%d:%d], v[%d:%d], v[%d:%d]" % (vV, vV + 1, hY + 2 * i, hY + 2 * i + 1, hY + 2 * i, hY + 2 * i + 1, vV, vV + 1))
    a("  v_add_f32 v%d, v%d, v%d" % (vV, vV, vV + 1))
    allreduce32(vV, T0)
    a("  v_mul_f32 v%d, 0x3b000000, v%d     ; var" % (vV, vV))
    a("  v_cvt_pk_bf16_f32 v%d, v%d, v%d" % (vS, vS, vV))
    a("  v_and_b32 v%d, s%d, v%d" % (vV, sHi2, vS))
    a("  v_lshlrev_b32 v%d, 16, v%d            ; mean_bf" % (vS, vS))
    a("  v_add_f32 v%d, 0x3727c5ac, v%d" % (vV, vV))
    round_bf16(vV)
    a("  v_sqrt_f32 v%d, v%d" % (vV, vV))
    a("  s_nop 0")
    round_bf16(vV)
    a("  v_rcp_f32 v%d, v%d" % (vV, vV))
    for i in range(8):
        pk("v_pk_add_f32", hY + 2 * i, hF + 2 * i, vS, " op_sel_hi:[1,0] neg_lo:[0,1] neg_hi:[0,1]")
    for i in range(8):
        a("  v_cvt_pk_bf16_f32 v%d, v%d, v%d" % (hX + i, hY + 2 * i, hY + 2 * i + 1))
    for i in range(8):
        a("  v_lshlrev_b32 v%d, 16, v%d" % (hF + 2 * i, hX + i))
        a("  v_and_b32 v%d, s%d, v%d" % (hF + 2 * i + 1, sHi2, hX + i))
    for i in range(8):
        pk("v_pk_mul_f32", hY + 2 * i, hF + 2 * i, vV, " op_sel_hi:[1,0]")
    for i in range(8):
        a("  v_cvt_pk_bf16_f32 v%d, v%d, v%d" % (hX + i, hY + 2 * i, hY + 2 * i + 1))
    a("  ds_write_b128 v%d, v[%d:%d]" % (hZ, hX, hX + 3))
    a("  ds_write_b128 v%d, v[%d:%d] offset:16" % (hZ, hX + 4, hX + 7))
    stamp("LN done")

    a("  v_lshrrev_b32 v%d, 2, v%d" % (T0, hI))
    a("  v_lshl_add_u32 v%d, v%d, 3, v%d" % (T0, hG, T0))
    a("  v_lshlrev_b32 v%d, 7, v%d" % (T0, T0))
    a("  v_and_b32 v%d, 3, v%d" % (T1, hI))
    a("  v_lshl_add_u32 v%d, v%d, 3, v%d" % (hTrG, T1, T0))
    a("  s_lshl_b32 s%d, s%d, 5" % (sT[0], sHW))
    a("  s_add_u32 s%d, s%d, 24576" % (sT[0], sT[0]))
    a("  v_add_u32 v%d, s%d, v%d" % (hTr, sT[0], hTrG))
    a("  v_and_b32 v%d, 7, v%d" % (T0, hI))
    a("  v_mul_u32_u24 v%d, %d, v%d" % (T0, XN_STRIDE, T0))
    a("  v_lshl_add_u32 v%d, v%d, 4, v%d" % (T0, hG, T0))
    a("  v_add_u32 v%d, %d, v%d" % (hXn, XN, T0))
    a("  v_cmp_gt_u32 s[%d:%d], 8, v%d" % (sLo8, sLo8 + 1, hI))

    def tile_compute(kb_sgpr, stg_add):
        a("  s_lshl_b32 s%d, s%d, 8" % (sT[0], kb_sgpr))
        a("  v_add_u32 v%d, s%d, v%d" % (T0, sT[0], hXn))
        if stg_add:
            a("  v_add_u32 v%d, 0x%x, v%d" % (T1, stg_add, hTr))
            tr = T1
        else:
            tr = hTr
        for ks in range(4):
            base = (ks >> 1) * 32768 + (ks & 1) * 4096
            r = hA + ks * 4
            a("  ds_read_b64_tr_b16 v[%d:%d], v%d offset:%d" % (r, r + 1, tr, base))
            a("  ds_read_b64_tr_b16 v[%d:%d], v%d offset:%d" % (r + 2, r + 3, tr, base + 512))
            r = hB + ks * 4
            a("  ds_read_b128 v[%d:%d], v%d offset:%d" % (r, r + 3, T0, ks * 64))
        for ks in range(4):
            a("  s_waitcnt lgkmcnt(%d)" % (9 - 3 * ks))
            c = "0" if ks == 0 else "v[%d:%d]" % (hD, hD + 3)
            a("  v_mfma_f32_16x16x32_bf16 v[%d:%d], v[%d:%d], v[%d:%d], %s" % (hD, hD + 3, hA + ks * 4, hA + ks * 4 + 3, hB + ks * 4, hB + ks * 4 + 3, c))

    a("  s_waitcnt vmcnt(4) lgkmcnt(0)")
    a("  s_add_u32 s%d, s%d, 1" % (sTag, sEp))
    a("  s_and_b32 s%d, s%d, 0xff" % (sTag, sTag))
    a("  s_mul_i32 s%d, s%d, 0x01010101" % (sTag4, sTag))
    a("  v_mov_b32 v%d, s%d" % (hTag, sTag))
    a("  v_mov_b32 v%d, 0x80" % hMid)
    if early_census:
        lc = a.lab("Lc")
        a("  s_cmp_lg_u32 s%d, 1" % sHW)
        a("  s_cbranch_scc1 %s" % lc)
        a("  s_mov_b32 s%d, 256" % (sDbg + 2))
        a("  s_mov_b32 s%d, 0x20000" % (sDbg + 3))
        a("  s_getreg_b32 s%d, hwreg(HW_REG_XCC_ID, 0, 3)" % sT[4])
        a("  s_lshl_b32 s%d, s%d, 3" % (sT[4], sT[4]))
        a("  s_lshl_b64 s[%d:%d], 1, s%d" % (sT[6], sT[7], sT[4]))
        a("  v_mov_b32 v%d, s%d" % (hA, sT[6]))
        a("  v_mov_b32 v%d, s%d" % (hA + 1, sT[7]))
        a("  s_lshl_b32 s%d, s%d, 5" % (sT[4], sX))
        a("  v_mov_b32 v%d, s%d" % (T0, sT[4]))
        a("  s_mov_b64 exec, 1")
        a("  buffer_atomic_add_x2 v[%d:%d], v%d, s[%d:%d], 0 offen sc1" % (hA, hA + 1, T0, sDbg, sDbg + 3))
        a("  s_mov_b64 exec, -1")
        a("%s:" % lc)
    lds_add(hMisc, F_H1, hOne)
    lds_wait(hMisc, F_H1, 4, T5)
    stamp("Hsync1")
    tile_compute(sJ, 0)
    a("  v_lshlrev_b32 v%d, 11, v%d" % (T0, hI))
    a("  v_lshl_add_u32 v%d, v%d, 4, v%d" % (T0, hG, T0))
    a("  s_lshl_b32 s%d, s%d, 6" % (sT[0], sHW))
    a("  v_add_u32 v%d, s%d, v%d" % (T0, sT[0], T0))
    a("  s_lshl_b32 s%d, s%d, 2" % (sHq, sX))
    a("  s_add_u32 s%d, s%d, s%d" % (sHq, sHq, sJ))
    a("  s_lshl_b32 s%d, s%d, 14" % (sT[0], sHq))
    a("  s_lshl_b32 s%d, s%d, 8" % (sT[1], sB))
    a("  s_add_u32 s%d, s%d, s%d" % (sT[0], sT[0], sT[1]))
    if QP:
        a("  s_add_u32 s%d, s%d, %d" % (sT[0], sT[0], QP))
    for k in range(4):
        tag(hD + k)
    a("  s_mov_b64 exec, s[%d:%d]" % (sLo8, sLo8 + 1))
    a("  buffer_store_dwordx4 v[%d:%d], v%d, s[%d:%d], s%d offen sc1" % (hD, hD + 3, T0, sWs, sWs + 3, sT[0]))
    a("  s_mov_b64 exec, -1")
    stamp("QP stored")
    a("  s_lshl_b32 s%d, s%d, 2" % (sT[0], sHq))
    a("  s_add_u32 s%d, s%d, s%d" % (sT[0], sT[0], sHW))
    a("  s_lshl_b32 s%d, s%d, 15" % (sT[0], sT[0]))
    a("  s_lshl_b32 s%d, s%d, 7" % (sT[1], sB))
    a("  s_add_u32 s%d, s%d, s%d" % (sT[0], sT[0], sT[1]))
    a("  s_lshl_b32 s%d, s%d, 12" % (sWoStg, sHW))
    a("  s_add_u32 s%d, s%d, %d" % (sWoStg, sWoStg, WOS))
    for n in range(4):
        a("  s_add_u32 m0, s%d, %d" % (sWoStg, n * 1024))
        if n:
            a("  s_add_u32 s%d, s%d, 8192" % (sT[0], sT[0]))
        else:
            a("  s_nop 0")
        a("  buffer_load_dwordx4 v%d, s[%d:%d], s%d offen nt lds" % (hW1k, sWo, sWo + 3, sT[0]))
    a("  s_waitcnt vmcnt(5)")
    lds_add(hMisc, F_H3, hOne)
    lds_wait(hMisc, F_H3, 4, T5)
    stamp("Hsync3")
    tile_compute(sKb2, 65536)
    lds_add(hMisc, F_STG, hOne)
    a("  v_lshlrev_b32 v%d, 8, v%d" % (T0, hI))
    a("  v_lshl_add_u32 v%d, v%d, 4, v%d" % (T0, hG, T0))
    a("  s_lshl_b32 s%d, s%d, 6" % (sT[0], sHW))
    a("  v_add_u32 v%d, s%d, v%d" % (T0, sT[0], T0))
    a("  s_and_b32 s%d, s%d, 7" % (sT[0], sFi))
    a("  s_mul_i32 s%d, s%d, 28" % (sT[0], sT[0]))
    a("  s_lshr_b32 s%d, s%d, 3" % (sT[1], sFi))
    a("  s_add_u32 s%d, s%d, s%d" % (sT[0], sT[0], sT[1]))
    a("  s_lshl_b32 s%d, s%d, 11" % (sT[0], sT[0]))
    a("  s_add_u32 s%d, s%d, %d" % (sT[0], sT[0], GP))
    hGp, hGpOff, sGpS = 192, 196, 59
    for k in range(4):
        tag(hD + k)
    if gplocal:
        for k in range(4):
            a("  v_mov_b32 v%d, v%d" % (hGp + k, hD + k))
        a("  v_mov_b32 v%d, v%d" % (hGpOff, T0))
        a("  s_mov_b32 s%d, s%d" % (sGpS, sT[0]))
    else:
        lg = a.lab("Lg")
        a("  s_cmp_eq_u32 s%d, 0" % sFv)
        a("  s_cbranch_scc1 %s" % lg)
        a("  s_mov_b64 exec, s[%d:%d]" % (sLo8, sLo8 + 1))
        a("  buffer_store_dwordx4 v[%d:%d], v%d, s[%d:%d], s%d offen sc1" % (hD, hD + 3, T0, sWs, sWs + 3, sT[0]))
        a("  s_mov_b64 exec, -1")
        a("%s:" % lg)

    def gp_store(have_loc):
        if not gplocal:
            return
        if not have_loc:
            lds_wait(hMisc, F_LOC, 1, T5, sleep=8)
            a("  s_lshr_b32 s%d, s%d, 1" % (sLoc, sT[7]))
        lg = a.lab("Lg")
        a("  s_cmp_eq_u32 s%d, 0" % sFv)
        a("  s_cbranch_scc1 %s" % lg)
        a("  s_mov_b64 exec, s[%d:%d]" % (sLo8, sLo8 + 1))
        store_loc(["  buffer_store_dwordx4 v[%d:%d], v%d, s[%d:%d], s%d offen" % (hGp, hGp + 3, hGpOff, sWs, sWs + 3, sGpS)], sLoc)
        a("  s_mov_b64 exec, -1")
        a("%s:" % lg)
    stamp("tile1 done")
    a("  v_lshrrev_b32 v%d, 5, v0" % T0)
    a("  v_lshlrev_b32 v%d, 14, v%d" % (T0, T0))
    a("  v_and_b32 v%d, 31, v0" % T1)
    a("  v_lshl_add_u32 v%d, v%d, 4, v%d" % (T0, T1, T0))
    a("  s_lshl_b32 s%d, s%d, 9" % (sT[0], sHW))
    a("  v_add_u32 v%d, s%d, v%d" % (T0, sT[0], T0))
    a("  s_lshl_b32 s%d, s%d, 16" % (sT[0], sX))
    a("  s_lshl_b32 s%d, s%d, 11" % (sT[1], sB))
    a("  s_add_u32 s%d, s%d, s%d" % (sT[0], sT[0], sT[1]))
    if QP:
        a("  s_add_u32 s%d, s%d, %d" % (sT[0], sT[0], QP))
    a("  s_add_u32 s%d, s%d, 32768" % (sT[1], sT[0]))
    a("  s_mul_i32 s%d, s%d, %d" % (sT[2], sHW, QL_STRIDE))
    a("  s_add_u32 s%d, s%d, %d" % (sT[2], sT[2], QL))
    a("  v_lshlrev_b32 v%d, 3, v%d" % (T1, T1))
    a("  v_add_u32 v%d, s%d, v%d" % (T1, sT[2], T1))
    lr, lo = a.lab("Lr"), a.lab("Lo")
    a("  s_mov_b32 s%d, 0" % sCnt)
    a("%s:" % lr)
    NT = " nt" if gnt & 1 else ""
    a("  buffer_load_dwordx4 v[%d:%d], v%d, s[%d:%d], s%d offen sc1%s" % (hA, hA + 3, T0, sWs, sWs + 3, sT[0], NT))
    a("  buffer_load_dwordx4 v[%d:%d], v%d, s[%d:%d], s%d offen sc1%s" % (hA + 4, hA + 7, T0, sWs, sWs + 3, sT[1], NT))
    a("  s_waitcnt vmcnt(0)")
    tag_retry(range(hA, hA + 8), lr, lo, T2, T3, 2)
    a("%s:" % lo)
    a("  s_mov_b64 exec, -1")
    stamp("Q ok")
    untag(range(hA, hA + 8))
    pk("v_pk_add_f32", hA, hA, hA + 4)
    pk("v_pk_add_f32", hA + 2, hA + 2, hA + 6)
    for k in range(4):
        a("  v_mov_b32 v%d, v%d" % (hA + 4 + k, hA + k))
    a("  s_nop 1")
    for k in range(4):
        a("  v_permlane32_swap_b32 v%d, v%d" % (hA + k, hA + 4 + k))
    pk("v_pk_add_f32", hA, hA, hA + 4)
    pk("v_pk_add_f32", hA + 2, hA + 2, hA + 6)
    a("  v_cvt_pk_bf16_f32 v%d, v%d, v%d" % (hA, hA, hA + 1))
    a("  v_cvt_pk_bf16_f32 v%d, v%d, v%d" % (hA + 1, hA + 2, hA + 3))
    a("  s_mov_b32 exec_hi, 0")
    a("  ds_write_b64 v%d, v[%d:%d]" % (T1, hA, hA + 1))
    a("  s_mov_b64 exec, -1")
    a("  s_waitcnt lgkmcnt(0)")
    lds_add(hMisc, F_QRDY, hOne)
    stamp("Q rdy")

    a("  v_add_u32 v%d, s%d, v%d" % (T0, sWoStg, hTrG))
    l3 = a.lab("L3")
    a("  s_cmp_lg_u32 s%d, 3" % sHW)
    a("  s_cbranch_scc1 %s" % l3)
    a("  s_lshr_b32 s%d, s%d, 3" % (sT[0], sFi))
    a("  s_lshl_b32 s%d, s%d, 16" % (sT[1], sT[0]))
    a("  s_and_b32 s%d, s%d, 7" % (sT[2], sFi))
    a("  s_lshl_b32 s%d, s%d, 7" % (sT[2], sT[2]))
    a("  s_add_u32 s%d, s%d, s%d" % (sT[1], sT[1], sT[2]))
    for n in range(4):
        a("  s_mov_b32 m0, %d" % (SPARE + n * 1024))
        if n:
            a("  s_add_u32 s%d, s%d, 8192" % (sT[1], sT[1]))
        else:
            a("  s_nop 0")
        a("  buffer_load_dwordx4 v%d, s[%d:%d], s%d offen nt lds" % (hW1k, sWd, sWd + 3, sT[1]))
    a("%s:" % l3)
    for ct in range(4):
        r = hW + ct * 4
        a("  ds_read_b64_tr_b16 v[%d:%d], v%d offset:%d" % (r, r + 1, T0, ct * 32))
        a("  ds_read_b64_tr_b16 v[%d:%d], v%d offset:%d" % (r + 2, r + 3, T0, ct * 32 + 512))
    a("  s_waitcnt lgkmcnt(0)")
    l4 = a.lab("L4")
    a("  s_cmp_lg_u32 s%d, 3" % sHW)
    a("  s_cbranch_scc1 %s" % l4)
    for n in range(4):
        a("  s_add_u32 m0, s%d, %d" % (sWoStg, n * 1024))
        a("  s_add_u32 s%d, s%d, 8192" % (sT[1], sT[1]))
        a("  buffer_load_dwordx4 v%d, s[%d:%d], s%d offen nt lds" % (hW1k, sWd, sWd + 3, sT[1]))
    a("  v_add_u32 v%d, %d, v%d" % (T1, SPARE, hTrG))
    a("  s_waitcnt vmcnt(4)")
    for ct in range(4):
        r = hWd + ct * 8
        a("  ds_read_b64_tr_b16 v[%d:%d], v%d offset:%d" % (r, r + 1, T1, ct * 32))
        a("  ds_read_b64_tr_b16 v[%d:%d], v%d offset:%d" % (r + 2, r + 3, T1, ct * 32 + 512))
    a("  s_waitcnt vmcnt(0)")
    for ct in range(4):
        r = hWd + ct * 8 + 4
        a("  ds_read_b64_tr_b16 v[%d:%d], v%d offset:%d" % (r, r + 1, T0, ct * 32))
        a("  ds_read_b64_tr_b16 v[%d:%d], v%d offset:%d" % (r + 2, r + 3, T0, ct * 32 + 512))
    a("  s_waitcnt lgkmcnt(0)")
    a("%s:" % l4)
    stamp("wo frags")

    a("  s_lshl_b32 s%d, s%d, 5" % (sFidx, sB))
    a("  s_add_u32 s%d, s%d, s%d" % (sFidx, sFidx, sHq))
    a("  v_and_b32 v%d, 3, v0" % T0)
    a("  v_lshlrev_b32 v%d, 3, v%d" % (T0, T0))
    a("  s_lshl_b32 s%d, s%d, 5" % (sT[0], sFidx))
    a("  v_add_u32 v%d, s%d, v%d" % (hOutOff, sT[0], T0))
    if noffn:
        a("  s_branch L_B1")
    a("  s_cmp_eq_u32 s%d, 1" % sHW)
    a("  s_cbranch_scc1 %s" % ("L_B1" if skip & 1 else "L_ffn"))
    a("  s_cmp_eq_u32 s%d, 2" % sHW)
    a("  s_cbranch_scc1 %s" % ("L_B1" if skip & 2 else "L_stats"))
    a("  s_cmp_eq_u32 s%d, 0" % sHW)
    a("  s_cbranch_scc1 %s" % ("L_B1" if skip & 5 else "L_fin_prep"))
    a("  s_branch %s" % ("L_B1" if skip & 9 else "L_down"))

    a("L_ffn:")
    a("  s_mov_b32 s%d, 256" % (sDbg + 2))
    a("  s_mov_b32 s%d, 0x20000" % (sDbg + 3))
    a("  s_lshl_b32 s%d, s%d, 5" % (sT[0], sX))
    a("  v_mov_b32 v%d, s%d" % (T0, sT[0]))
    if not early_census:
        a("  s_getreg_b32 s%d, hwreg(HW_REG_XCC_ID, 0, 3)" % sT[4])
        a("  s_lshl_b32 s%d, s%d, 3" % (sT[4], sT[4]))
        a("  s_lshl_b64 s[%d:%d], 1, s%d" % (sT[6], sT[7], sT[4]))
        a("  v_mov_b32 v%d, s%d" % (hA, sT[6]))
        a("  v_mov_b32 v%d, s%d" % (hA + 1, sT[7]))
        a("  s_mov_b64 exec, 1")
        a("  buffer_atomic_add_x2 v[%d:%d], v%d, s[%d:%d], 0 offen sc1" % (hA, hA + 1, T0, sDbg, sDbg + 3))
        a("  s_mov_b64 exec, -1")
        lds_wait(hMisc, F_MID, 1, T5, sleep=8)
    a("  s_waitcnt vmcnt(0)")
    lr, lo = a.lab("Lr"), a.lab("Lo")
    a("  s_mov_b32 s%d, 0" % sCnt)
    a("  s_mov_b64 exec, 1")
    a("%s:" % lr)
    a("  buffer_load_dwordx2 v[%d:%d], v%d, s[%d:%d], 0 offen sc1" % (hA, hA + 1, T0, sDbg, sDbg + 3))
    a("  s_waitcnt vmcnt(0)")
    a("  v_readfirstlane_b32 s%d, v%d" % (sT[2], hA))
    a("  v_readfirstlane_b32 s%d, v%d" % (sT[3], hA + 1))
    a("  s_and_b32 s%d, s%d, 0x00ff00ff" % (sT[4], sT[2]))
    a("  s_lshr_b32 s%d, s%d, 8" % (sT[5], sT[2]))
    a("  s_and_b32 s%d, s%d, 0x00ff00ff" % (sT[5], sT[5]))
    a("  s_add_u32 s%d, s%d, s%d" % (sT[4], sT[4], sT[5]))
    a("  s_and_b32 s%d, s%d, 0x00ff00ff" % (sT[5], sT[3]))
    a("  s_add_u32 s%d, s%d, s%d" % (sT[4], sT[4], sT[5]))
    a("  s_lshr_b32 s%d, s%d, 8" % (sT[5], sT[3]))
    a("  s_and_b32 s%d, s%d, 0x00ff00ff" % (sT[5], sT[5]))
    a("  s_add_u32 s%d, s%d, s%d" % (sT[4], sT[4], sT[5]))
    a("  s_lshr_b32 s%d, s%d, 16" % (sT[5], sT[4]))
    a("  s_and_b32 s%d, s%d, 0xffff" % (sT[4], sT[4]))
    a("  s_add_u32 s%d, s%d, s%d" % (sT[4], sT[4], sT[5]))
    a("  s_cmp_ge_u32 s%d, 32" % sT[4])
    a("  s_cbranch_scc1 %s" % lo)
    a("  s_add_u32 s%d, s%d, 1" % (sCnt, sCnt))
    a("  s_cmp_lt_u32 s%d, %d" % (sCnt, SPIN_LIMIT))
    a("  s_cbranch_scc0 %s" % lo)
    a("  s_sleep 32")
    a("  s_branch %s" % lr)
    a("%s:" % lo)
    a("  s_mov_b64 exec, -1")
    a("  s_getreg_b32 s%d, hwreg(HW_REG_XCC_ID, 0, 3)" % sT[4])
    a("  s_lshl_b32 s%d, s%d, 3" % (sT[4], sT[4]))
    a("  s_lshr_b64 s[%d:%d], s[%d:%d], s%d" % (sT[2], sT[3], sT[2], sT[3], sT[4]))
    a("  s_and_b32 s%d, s%d, 0xff" % (sT[2], sT[2]))
    a("  s_cmp_eq_u32 s%d, 32" % sT[2])
    a("  s_cselect_b32 s%d, %d, 1" % (sT[2], 2 if uselocal else 1))
    a("  v_mov_b32 v%d, s%d" % (T0, sT[2]))
    a("  s_mov_b64 exec, 1")
    a("  ds_write_b32 v%d, v%d offset:%d" % (hMisc, T0, F_LOC))
    a("  s_mov_b64 exec, -1")
    a("  s_lshr_b32 s%d, s%d, 1" % (sLoc, sT[2]))
    gp_store(True)
    a("  s_cmp_eq_u32 s%d, 0" % sFv)
    a("  s_cbranch_scc1 L_ffn_done")
    a("  s_lshr_b32 s%d, s%d, 3" % (sT[0], sFi))
    a("  v_mul_u32_u24 v%d, %d, v%d" % (T0, 28 * 2048, hG))
    a("  v_lshl_add_u32 v%d, v%d, 4, v%d" % (T0, hI, T0))
    a("  s_lshl_b32 s%d, s%d, 11" % (sT[1], sT[0]))
    a("  s_and_b32 s%d, s%d, 7" % (sT[2], sFi))
    a("  s_lshl_b32 s%d, s%d, 8" % (sT[2], sT[2]))
    a("  s_add_u32 s%d, s%d, s%d" % (sT[1], sT[1], sT[2]))
    a("  s_add_u32 s%d, s%d, %d" % (sT[1], sT[1], GP))
    a("  s_add_u32 s%d, s%d, %d" % (sT[2], sT[1], 4 * 28 * 2048))
    lr, lo = a.lab("Lr"), a.lab("Lo")
    a("  s_mov_b32 s%d, 0" % sCnt)
    a("%s:" % lr)
    NT = " nt" if gnt & 2 else ""
    a("  buffer_load_dwordx4 v[%d:%d], v%d, s[%d:%d], s%d offen sc1%s" % (hA, hA + 3, T0, sWs, sWs + 3, sT[1], NT))
    a("  buffer_load_dwordx4 v[%d:%d], v%d, s[%d:%d], s%d offen sc1%s" % (hA + 4, hA + 7, T0, sWs, sWs + 3, sT[2], NT))
    a("  s_waitcnt vmcnt(0)")
    tag_retry(range(hA, hA + 8), lr, lo, T2, T3, 8 if gplocal else ffn_sleep)
    a("%s:" % lo)
    a("  s_mov_b64 exec, -1")
    untag(range(hA, hA + 8))
    for kind in (16, 32):
        for k in range(8):
            a("  v_mov_b32 v%d, v%d" % (hA + 8 + k, hA + k))
        a("  s_nop 1")
        for k in range(8):
            a("  v_permlane%d_swap_b32 v%d, v%d" % (kind, hA + k, hA + 8 + k))
        for k in range(0, 8, 2):
            pk("v_pk_add_f32", hA + k, hA + k, hA + 8 + k)
    g0, u0 = hA, hA + 4
    for k in range(8):
        round_bf16(hA + k)
    a("  s_mov_b32 s%d, 0xBFB8AA3B      ; -log2(e)" % sT[2])
    for k in range(4):
        a("  v_mul_f32 v%d, s%d, v%d" % (g0 + k, sT[2], g0 + k))
    for k in range(4):
        a("  v_exp_f32 v%d, v%d" % (g0 + k, g0 + k))
    a("  s_nop 0")
    for k in range(4):
        a("  v_add_f32 v%d, 1.0, v%d" % (g0 + k, g0 + k))
    for k in range(4):
        a("  v_rcp_f32 v%d, v%d" % (g0 + k, g0 + k))
    a("  s_nop 0")
    for k in range(4):
        round_bf16(g0 + k)
    for k in range(4):
        a("  v_mul_f32 v%d, v%d, v%d" % (g0 + k, g0 + k, u0 + k))
    for k in range(4):
        round_bf16(g0 + k)
    for k in range(4):
        a("  v_or_b32 v%d, v%d, v%d" % (g0 + k, g0 + k, hTag))
    a("  v_lshlrev_b32 v%d, 4, v0" % T0)
    a("  s_lshl_b32 s%d, s%d, 8" % (sT[1], sFi))
    a("  s_add_u32 s%d, s%d, %d" % (sT[1], sT[1], HH))
    a("  s_mov_b64 exec, 0xffff")
    store_loc(["  buffer_store_dwordx4 v[%d:%d], v%d, s[%d:%d], s%d offen" % (g0, g0 + 3, T0, sWs, sWs + 3, sT[1])], sLoc)
    a("  s_mov_b64 exec, -1")
    a("L_ffn_done:")
    lds_add(hMisc, F_RED, hOne)
    lds_wait(hMisc, F_EWS, 1, T5, sleep=4)
    for k in range(4):
        a("  v_mov_b32 v%d, v%d" % (hA + k, hTag))
    a("  s_lshl_b32 s%d, s%d, 9" % (sT[0], sX))
    a("  s_lshl_b32 s%d, s%d, 4" % (sT[1], sLi))
    a("  s_add_u32 s%d, s%d, s%d" % (sT[0], sT[0], sT[1]))
    a("  s_add_u32 s%d, s%d, %d" % (sT[0], sT[0], EW))
    a("  v_mov_b32 v%d, 0" % T0)
    a("  s_mov_b64 exec, 1")
    store_loc(["  buffer_store_dwordx4 v[%d:%d], v%d, s[%d:%d], s%d offen" % (hA, hA + 3, T0, sWs, sWs + 3, sT[0])], sLoc)
    a("  s_mov_b64 exec, -1")
    a("  s_branch L_B1")

    a("L_down:")
    gp_store(False)
    a("  s_cmp_eq_u32 s%d, 0" % sFv)
    a("  s_cbranch_scc1 L_down_done")
    lds_wait(hMisc, F_RED, 1, T5, sleep=8)
    a("  s_lshr_b32 s%d, s%d, 3" % (sT[0], sFi))
    a("  v_and_b32 v%d, 7, v%d" % (T0, hI))
    a("  v_lshlrev_b32 v%d, 8, v%d" % (T0, T0))
    a("  v_lshl_add_u32 v%d, v%d, 5, v%d" % (T0, hG, T0))
    a("  s_lshl_b32 s%d, s%d, 11" % (sT[1], sT[0]))
    a("  s_add_u32 s%d, s%d, %d" % (sT[1], sT[1], HH))
    lr, lo = a.lab("Lr"), a.lab("Lo")
    a("  s_mov_b32 s%d, 0" % sCnt)
    a("%s:" % lr)
    for k in range(4):
        a("  buffer_load_dwordx4 v[%d:%d], v%d, s[%d:%d], s%d offen offset:%d sc1" % (hA + 4 * k, hA + 4 * k + 3, T0, sWs, sWs + 3, sT[1], (k >> 1) * 128 + (k & 1) * 16))
    a("  s_waitcnt vmcnt(0)")
    tag_retry(range(hA, hA + 16), lr, lo, T2, T3, ffn_sleep)
    a("%s:" % lo)
    a("  s_mov_b64 exec, -1")
    a("  s_mov_b32 s%d, 0x07060302" % sT[2])
    for k in range(8):
        a("  v_perm_b32 v%d, v%d, v%d, s%d" % (hB + k, hA + 2 * k + 1, hA + 2 * k, sT[2]))
    a("  s_nop 1")
    for ct in range(4):
        d = hD + ct * 4
        r = hWd + ct * 8
        a("  v_mfma_f32_16x16x32_bf16 v[%d:%d], v[%d:%d], v[%d:%d], 0" % (d, d + 3, r, r + 3, hB, hB + 3))
        a("  v_mfma_f32_16x16x32_bf16 v[%d:%d], v[%d:%d], v[%d:%d], v[%d:%d]" % (d, d + 3, r + 4, r + 7, hB + 4, hB + 7, d, d + 3))
    a("  v_lshlrev_b32 v%d, 16, v%d" % (T0, hI))
    a("  v_lshl_add_u32 v%d, v%d, 4, v%d" % (T0, hG, T0))
    a("  s_and_b32 s%d, s%d, 7" % (sT[1], sFi))
    a("  s_lshl_b32 s%d, s%d, 13" % (sT[1], sT[1]))
    a("  s_lshl_b32 s%d, s%d, 6" % (sT[2], sT[0]))
    a("  s_add_u32 s%d, s%d, s%d" % (sT[1], sT[1], sT[2]))
    a("  s_add_u32 s%d, s%d, %d" % (sT[1], sT[1], DP))
    a("  s_nop 7")
    for i in range(16):
        tag(hD + i)
    a("  s_mov_b64 exec, s[%d:%d]" % (sLo8, sLo8 + 1))
    for ct in range(4):
        a("  buffer_store_dwordx4 v[%d:%d], v%d, s[%d:%d], s%d offen sc1" % (hD + ct * 4, hD + ct * 4 + 3, T0, sWs, sWs + 3, sT[1]))
        if ct < 3:
            a("  s_add_u32 s%d, s%d, 2048" % (sT[1], sT[1]))
    a("  s_mov_b64 exec, -1")
    a("  s_waitcnt vmcnt(0)")
    a("L_down_done:")
    lds_add(hMisc, F_DOWN, hOne)
    a("  s_branch L_B1")

    a("L_stats:")
    gp_store(False)
    lds_wait(hMisc, F_ST, 4, T5, sleep=st_sleep)
    a("  v_lshl_add_u32 v%d, v%d, 3, v%d" % (T0, hI, hMisc))
    mw, lw = hA, hA + 1
    a("  ds_read_b64 v[%d:%d], v%d offset:%d" % (mw, mw + 1, T0, SSTAT))
    a("  s_waitcnt lgkmcnt(0)")
    Mg, Lg, t_ = hA + 4, hA + 5, hA + 2
    a("  v_mov_b32 v%d, v%d" % (Mg, mw))
    a("  s_nop 1")
    a("  v_max_f32_dpp v%d, v%d, v%d row_ror:4 %s" % (Mg, Mg, Mg, DPP))
    a("  s_nop 1")
    a("  v_max_f32_dpp v%d, v%d, v%d row_ror:8 %s" % (Mg, Mg, Mg, DPP))
    a("  s_mov_b32 s%d, 0x3FB8AA3B" % sT[2])
    a("  v_sub_f32 v%d, v%d, v%d" % (t_, mw, Mg))
    a("  v_mul_f32 v%d, s%d, v%d" % (t_, sT[2], t_))
    a("  v_exp_f32 v%d, v%d" % (t_, t_))
    a("  s_nop 0")
    a("  v_mul_f32 v%d, v%d, v%d" % (Lg, lw, t_))
    a("  s_nop 1")
    a("  v_add_f32_dpp v%d, v%d, v%d row_ror:4 %s" % (Lg, Lg, Lg, DPP))
    a("  s_nop 1")
    a("  v_add_f32_dpp v%d, v%d, v%d row_ror:8 %s" % (Lg, Lg, Lg, DPP))
    a("  s_nop 1")
    a("  v_mov_b32_dpp v%d, v%d row_shl:1 %s bound_ctrl:0" % (Mg + 2, Mg, DPP))
    a("  v_mov_b32_dpp v%d, v%d row_shl:1 %s bound_ctrl:0" % (Mg + 3, Lg, DPP))
    a("  s_lshl_b32 s%d, s%d, 3" % (sT[0], sB))
    a("  s_add_u32 s%d, s%d, s%d" % (sT[0], sT[0], sX))
    a("  s_lshl_b32 s%d, s%d, 7" % (sT[0], sT[0]))
    a("  s_add_u32 s%d, s%d, %d" % (sT[0], sT[0], ST))
    a("  s_lshl_b32 s%d, s%d, 5" % (sT[1], sJ))
    a("  s_add_u32 s%d, s%d, s%d" % (sT[1], sT[1], sT[0]))
    for k in range(4):
        tag(Mg + k)
    a("  v_lshlrev_b32 v%d, 3, v%d" % (T1, hI))
    lds_wait(hMisc, F_LOC, 1, T5)
    a("  s_lshr_b32 s%d, s%d, 1" % (sLoc, sT[7]))
    a("  s_mov_b64 exec, 5")
    store_loc(["  buffer_store_dwordx4 v[%d:%d], v%d, s[%d:%d], s%d offen" % (Mg, Mg + 3, T1, sWs, sWs + 3, sT[1])], sLoc)
    a("  s_mov_b64 exec, -1")
    a("  v_lshrrev_b32 v%d, 1, v%d" % (T1, hI))
    a("  v_lshlrev_b32 v%d, 4, v%d" % (T1, T1))
    mj = hA + 8
    lr, lo = a.lab("Lr"), a.lab("Lo")
    a("  s_mov_b32 s%d, 0" % sCnt)
    a("%s:" % lr)
    a("  buffer_load_dwordx4 v[%d:%d], v%d, s[%d:%d], s%d offen sc1" % (mj, mj + 3, T1, sWs, sWs + 3, sT[0]))
    a("  s_waitcnt vmcnt(0)")
    tag_retry(range(mj, mj + 4), lr, lo, T2, T3, ffn_sleep)
    a("%s:" % lo)
    a("  s_mov_b64 exec, -1")
    a("  v_and_b32 v%d, 1, v%d" % (T2, hI))
    a("  v_cmp_eq_u32 vcc, 1, v%d" % T2)
    a("  s_nop 1")
    a("  v_cndmask_b32 v%d, v%d, v%d, vcc" % (mj, mj, mj + 2))
    a("  v_cndmask_b32 v%d, v%d, v%d, vcc" % (mj + 1, mj + 1, mj + 3))
    lj = mj + 1
    a("  v_and_b32 v%d, s%d, v%d" % (mj, sNotFF, mj))
    a("  v_and_or_b32 v%d, v%d, s%d, v%d" % (lj, lj, sNotFF, hMid))
    M2, L2 = hA + 12, hA + 13
    a("  v_mov_b32 v%d, v%d" % (M2, mj))
    a("  s_nop 1")
    a("  v_max_f32_dpp v%d, v%d, v%d row_ror:4 %s" % (M2, M2, M2, DPP))
    a("  s_nop 1")
    a("  v_max_f32_dpp v%d, v%d, v%d row_ror:8 %s" % (M2, M2, M2, DPP))
    a("  v_sub_f32 v%d, v%d, v%d" % (t_, mj, M2))
    a("  v_mul_f32 v%d, s%d, v%d" % (t_, sT[2], t_))
    a("  v_exp_f32 v%d, v%d" % (t_, t_))
    a("  s_nop 0")
    a("  v_mul_f32 v%d, v%d, v%d" % (L2, lj, t_))
    a("  s_nop 1")
    a("  v_add_f32_dpp v%d, v%d, v%d row_ror:4 %s" % (L2, L2, L2, DPP))
    a("  s_nop 1")
    a("  v_add_f32_dpp v%d, v%d, v%d row_ror:8 %s" % (L2, L2, L2, DPP))
    a("  v_sub_f32 v%d, v%d, v%d" % (t_, mw, M2))
    a("  v_mul_f32 v%d, s%d, v%d" % (t_, sT[2], t_))
    a("  v_exp_f32 v%d, v%d" % (t_, t_))
    a("  v_rcp_f32 v%d, v%d" % (L2, L2))
    a("  s_nop 0")
    a("  v_mul_f32 v%d, v%d, v%d" % (t_, t_, L2))
    a("  v_and_b32 v%d, 3, v%d" % (T0, hI))
    a("  v_lshlrev_b32 v%d, 4, v%d" % (T0, T0))
    a("  v_lshrrev_b32 v%d, 2, v%d" % (T1, hI))
    a("  v_lshl_add_u32 v%d, v%d, 2, v%d" % (T0, T1, T0))
    a("  v_add_u32 v%d, v%d, v%d" % (T0, T0, hMisc))
    a("  s_mov_b64 exec, 0xffff")
    a("  ds_write_b32 v%d, v%d offset:%d" % (T0, t_, FFAC))
    a("  s_mov_b64 exec, -1")
    a("  s_waitcnt lgkmcnt(0)")
    if nob1:
        lds_add(hMisc, F_F, hOne)
    a("  s_branch L_B1")

    def reduce_hd(base, tmp):
        a("  s_nop 1")
        for k in range(4):
            a("  v_add_f32_dpp v%d, v%d, v%d row_ror:4 %s" % (base + k, base + k, base + k, DPP))
        a("  s_nop 1")
        for k in range(4):
            a("  v_add_f32_dpp v%d, v%d, v%d row_ror:8 %s" % (base + k, base + k, base + k, DPP))
        for kind in (16, 32):
            for k in range(4):
                a("  v_mov_b32 v%d, v%d" % (tmp + k, base + k))
            a("  s_nop 1")
            for k in range(4):
                a("  v_permlane%d_swap_b32 v%d, v%d" % (kind, base + k, tmp + k))
            pk("v_pk_add_f32", base, base, tmp)
            pk("v_pk_add_f32", base + 2, base + 2, tmp + 2)

    a("L_fin_prep:")
    gp_store(False)
    lds_wait(hMisc, F_LATE, 1, T5, sleep=8)
    a("  buffer_load_dwordx2 v[%d:%d], v%d, s[%d:%d], 0 offen" % (hA + 8, hA + 9, hOutOff, sXd, sXd + 3))
    a("  v_lshlrev_b32 v%d, 4, v0" % T0)
    a("  s_lshl_b32 s%d, s%d, 11" % (sT[0], sFidx))
    a("  s_add_u32 s%d, s%d, %d" % (sT[0], sT[0], DP))
    for k in range(4):
        a("  v_mov_b32 v%d, v%d" % (hA + 4 + k, hTag))
    lr, lo = a.lab("Lr"), a.lab("Lo")
    a("  s_mov_b32 s%d, 0" % sCnt)
    a("%s:" % lr)
    NT = " nt" if gnt & 4 else ""
    a("  buffer_load_dwordx4 v[%d:%d], v%d, s[%d:%d], s%d offen sc1%s" % (hA, hA + 3, T0, sWs, sWs + 3, sT[0], NT))
    a("  s_mov_b64 s[%d:%d], exec" % (sT[4], sT[5]))
    a("  s_and_b32 exec_hi, exec_hi, 0xffff")
    ls = a.lab("Ls")
    a("  s_cbranch_execz %s" % ls)
    a("  buffer_load_dwordx4 v[%d:%d], v%d, s[%d:%d], s%d offen offset:1024 sc1%s" % (hA + 4, hA + 7, T0, sWs, sWs + 3, sT[0], NT))
    a("%s:" % ls)
    a("  s_mov_b64 exec, s[%d:%d]" % (sT[4], sT[5]))
    a("  s_waitcnt vmcnt(0)")
    tag_retry(range(hA, hA + 8), lr, lo, T2, T3, ffn_sleep)
    a("%s:" % lo)
    a("  s_mov_b64 exec, -1")
    untag(range(hA, hA + 8))
    pk("v_pk_add_f32", hA, hA, hA + 4)
    pk("v_pk_add_f32", hA + 2, hA + 2, hA + 6)
    reduce_hd(hA, hA + 4)
    hGv = hXf + 4
    for k in range(4):
        round_bf16(hA + k)
    a("  s_mov_b32 s%d, 0xBFB8AA3B" % sT[2])
    for k in range(4):
        a("  v_mul_f32 v%d, s%d, v%d" % (hA + 4 + k, sT[2], hA + k))
    for k in range(4):
        a("  v_exp_f32 v%d, v%d" % (hA + 4 + k, hA + 4 + k))
    a("  s_nop 0")
    for k in range(4):
        a("  v_add_f32 v%d, 1.0, v%d" % (hA + 4 + k, hA + 4 + k))
    for k in range(4):
        a("  v_rcp_f32 v%d, v%d" % (hA + 4 + k, hA + 4 + k))
    a("  s_nop 0")
    for k in range(4):
        a("  v_mul_f32 v%d, v%d, v%d" % (hGv + k, hA + k, hA + 4 + k))
    for k in range(4):
        round_bf16(hGv + k)
    a("  v_lshlrev_b32 v%d, 16, v%d" % (hXf, hA + 8))
    a("  v_and_b32 v%d, s%d, v%d" % (hXf + 1, sHi2, hA + 8))
    a("  v_lshlrev_b32 v%d, 16, v%d" % (hXf + 2, hA + 9))
    a("  v_and_b32 v%d, s%d, v%d" % (hXf + 3, sHi2, hA + 9))
    stamp("prep done")

    a("L_B1:")
    a("  v_lshlrev_b32 v%d, 7, v%d" % (T0, hI))
    a("  v_lshl_add_u32 v%d, v%d, 5, v%d" % (T0, hG, T0))
    a("  s_lshl_b32 s%d, s%d, 14" % (sT[0], sHq))
    a("  s_lshl_b32 s%d, s%d, 11" % (sT[1], sHW))
    a("  s_add_u32 s%d, s%d, s%d" % (sT[0], sT[0], sT[1]))
    a("  s_add_u32 s%d, s%d, %d" % (sT[0], sT[0], OP))
    a("  s_add_u32 s%d, s%d, 8192" % (sT[1], sT[0]))
    a("  v_lshlrev_b32 v%d, 8, v%d" % (T1, hG))
    a("  v_lshl_add_u32 v%d, v%d, 2, v%d" % (T1, hI, T1))
    a("  s_lshl_b32 s%d, s%d, 11" % (sT[2], sHW))
    a("  s_add_u32 s%d, s%d, %d" % (sT[2], sT[2], WOS))
    a("  v_add_u32 v%d, s%d, v%d" % (T1, sT[2], T1))
    hP0, hP1, hQ0 = 157, 158, 159
    sP, sQ = 57, 58
    sSelH = 55
    a("  s_mov_b32 s%d, 0x07060302" % sSelH)
    a("  s_sub_u32 s%d, s%d, 2" % (sT[3], sHW))
    a("  s_lshl_b32 s%d, s%d, 10" % (sT[4], sT[3]))
    a("  s_add_u32 s%d, s%d, %d" % (sT[4], sT[4], WOS))
    a("  v_lshlrev_b32 v%d, 8, v%d" % (hP0, hG))
    a("  v_lshl_add_u32 v%d, v%d, 4, v%d      ; g*256 + i*16" % (hP0, hI, hP0))
    a("  v_add_u32 v%d, s%d, v%d" % (hP0, sT[4], hP0))
    a("  v_lshlrev_b32 v%d, 16, v%d" % (hP1, hG))
    a("  v_lshrrev_b32 v%d, 3, v%d" % (T2, hI))
    a("  v_lshl_add_u32 v%d, v%d, 12, v%d" % (hP1, T2, hP1))
    a("  v_and_b32 v%d, 7, v%d" % (T2, hI))
    a("  v_lshl_add_u32 v%d, v%d, 4, v%d" % (hP1, T2, hP1))
    a("  s_lshl_b32 s%d, s%d, 18" % (sT[3], sT[3]))
    a("  s_lshl_b32 s%d, s%d, 13" % (sT[4], sB))
    a("  s_add_u32 s%d, s%d, s%d" % (sT[3], sT[3], sT[4]))
    a("  s_lshl_b32 s%d, s%d, 7" % (sT[4], sHq))
    a("  s_add_u32 s%d, s%d, s%d" % (sT[3], sT[3], sT[4]))
    a("  s_add_u32 s%d, s%d, %d" % (sP, sT[3], SP))
    a("  v_lshrrev_b32 v%d, 2, v0" % hQ0)
    a("  v_lshlrev_b32 v%d, 7, v%d" % (hQ0, hQ0))
    a("  v_and_b32 v%d, 3, v0" % T2)
    a("  v_lshl_add_u32 v%d, v%d, 4, v%d" % (hQ0, T2, hQ0))
    a("  s_lshr_b32 s%d, s%d, 1" % (sT[3], sFidx))
    a("  s_lshl_b32 s%d, s%d, 12" % (sT[3], sT[3]))
    a("  s_and_b32 s%d, s%d, 1" % (sT[4], sFidx))
    a("  s_lshl_b32 s%d, s%d, 6" % (sT[4], sT[4]))
    a("  s_add_u32 s%d, s%d, s%d" % (sT[3], sT[3], sT[4]))
    a("  s_add_u32 s%d, s%d, %d" % (sQ, sT[3], SP))
    lw0 = a.lab("Lew")
    a("  s_cmp_lg_u32 s%d, 0" % sHW)
    a("  s_cbranch_scc1 %s" % lw0)
    a("  v_lshlrev_b32 v%d, 4, v0" % T5)
    a("  s_lshl_b32 s%d, s%d, 9" % (sT[2], sX))
    a("  s_add_u32 s%d, s%d, %d" % (sT[2], sT[2], EW))
    lr, lo = a.lab("Lr"), a.lab("Lo")
    a("  s_mov_b32 s%d, 0" % sCnt)
    a("  s_mov_b32 exec_hi, 0")
    a("%s:" % lr)
    a("  buffer_load_dwordx4 v[%d:%d], v%d, s[%d:%d], s%d offen sc1" % (hA, hA + 3, T5, sWs, sWs + 3, sT[2]))
    a("  s_waitcnt vmcnt(0)")
    tag_retry(range(hA, hA + 4), lr, lo, T2, T3, 8)
    a("%s:" % lo)
    a("  s_mov_b64 exec, -1")
    if nob1:
        lw1 = a.lab("Lew")
        lds_add(hMisc, F_EW2, hOne)
        a("  s_branch %s" % lw1)
        a("%s:" % lw0)
        lds_wait(hMisc, F_EW2, 1, T5, sleep=2)
        a("%s:" % lw1)
    else:
        a("%s:" % lw0)
        a("  s_barrier                      ; B1")
    stamp("B1")
    lr, lo = a.lab("Lr"), a.lab("Lo")
    a("  s_mov_b32 s%d, 0" % sCnt)
    a("%s:" % lr)
    for rt in range(2):
        a("  buffer_load_dwordx4 v[%d:%d], v%d, s[%d:%d], s%d offen sc1" % (hA + 8 * rt, hA + 8 * rt + 3, T0, sWs, sWs + 3, sT[rt]))
        a("  buffer_load_dwordx4 v[%d:%d], v%d, s[%d:%d], s%d offen offset:16 sc1" % (hA + 8 * rt + 4, hA + 8 * rt + 7, T0, sWs, sWs + 3, sT[rt]))
    a("  s_waitcnt vmcnt(0)")
    tag_retry(range(hA, hA + 16), lr, lo, T2, T3, hop_sleep)
    a("%s:" % lo)
    a("  s_mov_b64 exec, -1")
    stamp("hop1 ok")
    for k in range(8):
        a("  v_perm_b32 v%d, v%d, v%d, s%d" % (hB + k, hA + 2 * k + 1, hA + 2 * k, sSelH))
    a("  s_nop 1")
    for rt in range(2):
        for ct in range(4):
            d = hD + (rt * 4 + ct) * 4
            a("  v_mfma_f32_16x16x32_bf16 v[%d:%d], v[%d:%d], v[%d:%d], 0" % (d, d + 3, hB + 4 * rt, hB + 4 * rt + 3, hW + ct * 4, hW + ct * 4 + 3))
    a("  s_nop 0")
    for n in range(8):
        d = hD + n * 4
        pk("v_pk_add_f32", d, d, d + 2)
        a("  v_add_f32 v%d, v%d, v%d" % (d, d, d + 1))
    for rt in range(2):
        for ct in range(4):
            d = hD + (rt * 4 + ct) * 4
            a("  ds_write_b32 v%d, v%d offset:%d" % (T1, d, rt * 1024 + ct * 64))
    a("  s_waitcnt lgkmcnt(0)")
    a("  s_barrier")
    a("  s_cmp_eq_u32 s%d, 0" % sHW)
    a("  s_cbranch_scc1 L_hop2")
    a("  s_cmp_eq_u32 s%d, 1" % sHW)
    a("  s_cbranch_scc1 L_H_done")
    for w in range(4):
        a("  ds_read_b128 v[%d:%d], v%d offset:%d" % (hA + 4 * w, hA + 4 * w + 3, hP0, w * 2048))
    a("  s_waitcnt lgkmcnt(2)")
    for k in (0, 2):
        pk("v_pk_add_f32", hA + k, hA + k, hA + 4 + k)
    a("  s_waitcnt lgkmcnt(0)")
    for k in (0, 2):
        pk("v_pk_add_f32", hA + 8 + k, hA + 8 + k, hA + 12 + k)
    for k in (0, 2):
        pk("v_pk_add_f32", hA + k, hA + k, hA + 8 + k)
    for k in range(4):
        tag(hA + k)
    a("  buffer_store_dwordx4 v[%d:%d], v%d, s[%d:%d], s%d offen sc1" % (hA, hA + 3, hP1, sWs, sWs + 3, sP))
    a("  s_endpgm")

    a("L_hop2:")
    stamp("B2")

    def tag_check(rs, t0_, t1_):
        rs = list(rs)
        for k in range(0, len(rs), 4):
            a("  v_perm_b32 v%d, v%d, v%d, s%d" % (t1_, rs[k + 1], rs[k], sSelA))
            a("  v_perm_b32 v%d, v%d, v%d, s%d" % (t1_ + 1, rs[k + 3], rs[k + 2], sSelB))
            if k == 0:
                a("  v_or_b32 v%d, v%d, v%d" % (t0_, t1_, t1_ + 1))
                a("  v_xor_b32 v%d, s%d, v%d" % (t0_, sTag4, t0_))
            else:
                a("  v_or_b32 v%d, v%d, v%d" % (t1_, t1_, t1_ + 1))
                a("  v_xor_b32 v%d, s%d, v%d" % (t1_, sTag4, t1_))
                a("  v_or_b32 v%d, v%d, v%d" % (t0_, t0_, t1_))
        a("  v_cmp_ne_u32 vcc, 0, v%d" % t0_)

    FR = hA
    if pipe2:
        SA, SB, FR = hA, hA + 8, hB
        sMk = sT[4]
        def ld(R):
            a("  buffer_load_dwordx4 v[%d:%d], v%d, s[%d:%d], s%d offen sc1" % (R, R + 3, hQ0, sWs, sWs + 3, sQ))
            a("  buffer_load_dwordx4 v[%d:%d], v%d, s[%d:%d], s%d offen offset:2048 sc1" % (R + 4, R + 7, hQ0, sWs, sWs + 3, sQ))
        lp, ld_ = a.lab("Lp"), a.lab("Lpd")
        a("  s_mov_b64 s[%d:%d], -1" % (sMk, sMk + 1))
        a("  s_mov_b32 s%d, 0" % sCnt)
        ld(SA)
        a("%s:" % lp)
        for cur, nxt in ((SA, SB), (SB, SA)):
            ld(nxt)
            a("  s_waitcnt vmcnt(2)")
            tag_check(range(cur, cur + 8), T2, T3)
            lsk = a.lab("Lsk")
            a("  s_andn2_b64 exec, s[%d:%d], vcc" % (sMk, sMk + 1))
            a("  s_cbranch_execz %s" % lsk)
            for k in range(8):
                a("  v_mov_b32 v%d, v%d" % (FR + k, cur + k))
            a("%s:" % lsk)
            a("  s_mov_b64 s[%d:%d], vcc" % (sMk, sMk + 1))
            a("  s_cbranch_vccz %s" % ld_)
            a("  s_mov_b64 exec, vcc")
        a("  s_add_u32 s%d, s%d, 1" % (sCnt, sCnt))
        a("  s_cmp_lt_u32 s%d, %d" % (sCnt, SPIN_LIMIT))
        a("  s_cbranch_scc1 %s" % lp)
        a("%s:" % ld_)
        a("  s_mov_b64 exec, -1")
    else:
        lr, lo = a.lab("Lr"), a.lab("Lo")
        a("  s_mov_b32 s%d, 0" % sCnt)
        a("%s:" % lr)
        a("  buffer_load_dwordx4 v[%d:%d], v%d, s[%d:%d], s%d offen sc1" % (hA, hA + 3, hQ0, sWs, sWs + 3, sQ))
        a("  buffer_load_dwordx4 v[%d:%d], v%d, s[%d:%d], s%d offen offset:2048 sc1" % (hA + 4, hA + 7, hQ0, sWs, sWs + 3, sQ))
        a("  s_waitcnt vmcnt(0)")
        tag_retry(range(hA, hA + 8), lr, lo, T2, T3, h2_sleep)
        a("%s:" % lo)
        a("  s_mov_b64 exec, -1")
    stamp("hop2 ok")
    untag(range(FR, FR + 8))
    pk("v_pk_add_f32", FR, FR, FR + 4)
    pk("v_pk_add_f32", FR + 2, FR + 2, FR + 6)
    reduce_hd(FR, FR + 4)
    for k in range(4):
        round_bf16(FR + k)
    for k in range(4):
        a("  v_mul_f32 v%d, v%d, v%d" % (FR + k, FR + k, hGv + k))
    for k in range(4):
        round_bf16(FR + k)
    for k in range(4):
        a("  v_add_f32 v%d, v%d, v%d" % (FR + k, FR + k, hXf + k))
    a("  v_cvt_pk_bf16_f32 v%d, v%d, v%d" % (FR, FR, FR + 1))
    a("  v_cvt_pk_bf16_f32 v%d, v%d, v%d" % (FR + 1, FR + 2, FR + 3))
    a("  s_mov_b64 exec, 15")
    a("  buffer_store_dwordx2 v[%d:%d], v%d, s[%d:%d], 0 offen" % (FR, FR + 1, hOutOff, sOut, sOut + 3))
    a("  s_mov_b64 exec, -1")
    le = a.lab("Le")
    a("  s_cmp_lg_u32 s2, 0")
    a("  s_cbranch_scc1 %s" % le)
    a("  s_add_u32 s%d, s%d, 1" % (sT[0], sEp))
    a("  v_mov_b32 v%d, s%d" % (hD, sT[0]))
    a("  v_mov_b32 v%d, %d" % (T0, EPOCH))
    a("  s_mov_b64 exec, 1")
    a("  buffer_store_dword v%d, v%d, s[%d:%d], 0 offen" % (hD, T0, sWs, sWs + 3))
    a("  s_mov_b64 exec, -1")
    a("%s:" % le)
    stamp("end")
    if dbgtime:
        a("  s_memrealtime s[98:99]")
        a("  s_load_dwordx2 s[92:93], s[0:1], 80")
        a("  s_waitcnt lgkmcnt(0)")
        a("  s_mov_b32 s94, 256")
        a("  s_mov_b32 s95, 0x20000")
        a("  s_not_b32 s100, s100")
        a("  v_mov_b32 v%d, s100" % hA)
        a("  v_mov_b32 v%d, s98" % (hA + 1))
        a("  v_mov_b32 v%d, 0" % T0)
        a("  s_mov_b64 exec, 1")
        a("  buffer_atomic_umax v%d, v%d, s[92:95], 0 offen sc1" % (hA, T0))
        a("  buffer_atomic_umax v%d, v%d, s[92:95], 0 offen offset:4 sc1" % (hA + 1, T0))
        a("  s_mov_b64 exec, -1")
    a("L_tsdump:")
    if ts:
        a("  s_waitcnt lgkmcnt(0)")
        a("  s_lshl_b32 s%d, s2, 8" % sT[0])
        a("  s_add_u32 s%d, s%d, %d" % (sT[0], sT[0], TSOFF + 0x10000))
        a("  v_mov_b32 v%d, 0" % T2)
        a("  s_mov_b64 exec, 1")
        for i in range(len(names["H"])):
            a("  v_mov_b32 v%d, s%d" % (hA, TS0 + 2 * i))
            a("  v_mov_b32 v%d, s%d" % (hA + 1, TS0 + 2 * i + 1))
            a("  buffer_store_dwordx2 v[%d:%d], v%d, s[%d:%d], s%d offen offset:%d" % (hA, hA + 1, T2, sWs, sWs + 3, sT[0], 8 * i))
            a("  s_waitcnt vmcnt(0)")
        a("  s_mov_b64 exec, -1")
    a("  s_waitcnt vmcnt(0)")
    a("L_H_done:")
    a("L_end:")
    a("  s_endpgm")
    a("L_code_end:")

    lines = a.lines
    iH = lines.index("L_H:")
    iB0 = [k for k in range(iH, len(lines)) if "s_barrier" in lines[k] and "B0" in lines[k]][0]
    iE = iB0 + 1
    if ts and "s_memrealtime" in lines[iE]:
        iE += 1
    hpro = lines[iH + 1:iE]
    rest = lines[:iH] + ["L_H2:"] + lines[iE:]
    ib = [k for k, l in enumerate(rest) if l.strip() == "s_cbranch_scc1 L_H"][0]
    if layout:
        rest = rest[:ib] + ["  s_cbranch_scc0 L_S"] + hpro + ["  s_branch L_H2"] + rest[ib + 1:]
    else:
        rest = lines
    a.lines = rest
    body = a.text()
    s = HEADER
    s += "; @launch grid=(256,1,1) block=(512,1,1) lds=%d\n" % LDS_TOTAL
    s += '.amdgcn_target "amdgcn-amd-amdhsa--gfx950"\n.text\n'
    s += ".globl %s\n.p2align 8\n.type %s,@function\n%s:\n" % (KNAME, KNAME, KNAME)
    s += body
    s += """
.section .rodata,"a"
.p2align 6
.amdhsa_kernel %s
  .amdhsa_next_free_vgpr %d
  .amdhsa_next_free_sgpr 102
  .amdhsa_accum_offset %d
  .amdhsa_group_segment_fixed_size 0
  .amdhsa_kernarg_size 96
  .amdhsa_user_sgpr_count 2
  .amdhsa_user_sgpr_kernarg_segment_ptr 1
  .amdhsa_system_sgpr_workgroup_id_x 1
.end_amdhsa_kernel
""" % (KNAME, NV, NV)
    gen.names = names
    return s


if __name__ == "__main__":
    kw = {}
    out = "main.s"
    for arg in sys.argv[1:]:
        if "=" in arg:
            k, v = arg.split("=")
            kw[k] = int(v)
        else:
            out = arg
    open(out, "w").write(gen(**kw))
    import json
    json.dump(gen.names, open(out[:-2] + ".names.json", "w"))
    print("wrote", out)
```

```python
import sys
from asmlib import HEADER, KNAME

QP = 0x000000
GP = 0x080000
HH = 0x0F0000
OP = 0x100000
ST = 0x180000
DP = 0x190000
SP = 0x210000
EPOCH = 0x0FF000
EW = 0x2A0000
GEW = 0x2A2000
TSOFF = 0x0F000000

RING = 32768
MISC = 131072
XN = MISC
XN_STRIDE = 1040
QL = MISC + 8448
QL_STRIDE = 272
WOS = QL + 1088
WOS = (WOS + 255) // 256 * 256
FLG = WOS + 16384
F_H1 = 0; F_H3 = 8; F_QRDY = 16; F_STG = 20; F_ST = 24; F_HOP1 = 32; F_EW = 36; F_RED = 40; F_DOWN = 44; F_LATE = 48; F_EWS = 52; F_LOC = 56; F_MID = 60; F_T0 = 4; F_F = 12; F_EW2 = 28
SSTAT = 64
FFAC = 192
SPARE = FLG + 256
LDS_TOTAL = SPARE + 4096
assert LDS_TOTAL <= 163840, LDS_TOTAL
SPIN_LIMIT = 200000


class Asm:
    def __init__(self):
        self.lines = []
        self.nlab = 0

    def __call__(self, s=""):
        for l in s.split("\n"):
            self.lines.append(l)

    def lab(self, base="L"):
        self.nlab += 1
        return "%s_%d" % (base, self.nlab)

    def text(self):
        return "\n".join(self.lines) + "\n"


def vr(base, n=1):
    return "v%d" % base if n == 1 else "v[%d:%d]" % (base, base + n - 1)


def sr(base, n=1):
    return "s%d" % base if n == 1 else "s[%d:%d]" % (base, base + n - 1)


DPP = "row_mask:0xf bank_mask:0xf"


def gen(ts=False, dbg=0, rotmode=3, depth=8, noq=0, noffn=0, hop_sleep=0, ew_it=3, dbgtime=0, noh=0, ffn_sleep=24, skip=0, st_sleep=4, late_it=1, uselocal=1, mid_it=2, r4=0, gnt=0, xnt=0, pf=1, b0pos=0, la=1, gplocal=1, early_census=1, layout=1, presm=0, pipe2=0, h2_sleep=0, sprio=0, dfill=0, dk=0, locnt=0, nob1=1, early_ka=1, gate_t0=1, gew=0):
    a = Asm()
    sW, sX, sLi, sCnt = 3, 4, 5, 6
    sT = [20, 21, 22, 23, 24, 25, 26, 27]
    TS0 = 68
    nts = [0]

    names = {"S": ["start"], "H": ["start"]}
    role = ["S"]

    def stamp(name):
        if name == 0:
            if ts:
                a("  s_memrealtime s[%d:%d]" % (TS0, TS0 + 1))
            return
        lst = names[role[0]]
        if name not in lst:
            lst.append(name)
        idx = lst.index(name)
        assert TS0 + 2 * idx + 1 <= 101
        if ts:
            a("  s_memrealtime s[%d:%d]" % (TS0 + 2 * idx, TS0 + 2 * idx + 1))

    def lds_wait(vbase, off, n, vtmp, sleep=1):
        l0, l1 = a.lab("Lw"), a.lab("Lwd")
        a("  s_mov_b32 s%d, 0" % sCnt)
        a("%s:" % l0)
        a("  ds_read_b32 v%d, v%d offset:%d" % (vtmp, vbase, off))
        a("  s_waitcnt lgkmcnt(0)")
        a("  v_readfirstlane_b32 s%d, v%d" % (sT[7], vtmp))
        a("  s_cmp_ge_u32 s%d, %d" % (sT[7], n))
        a("  s_cbranch_scc1 %s" % l1)
        a("  s_add_u32 s%d, s%d, 1" % (sCnt, sCnt))
        a("  s_cmp_lt_u32 s%d, %d" % (sCnt, SPIN_LIMIT))
        a("  s_cbranch_scc0 %s" % l1)
        a("  s_sleep %d" % sleep)
        a("  s_branch %s" % l0)
        a("%s:" % l1)

    def lds_add(vbase, off, vone):
        a("  s_mov_b64 exec, 1")
        a("  ds_add_u32 v%d, v%d offset:%d" % (vbase, vone, off))
        a("  s_mov_b64 exec, -1")

    def store_loc(stores, sflag):
        l0, l1 = a.lab("Lsl"), a.lab("Lsl")
        a("  s_cmp_eq_u32 s%d, 0" % sflag)
        a("  s_cbranch_scc1 %s" % l0)
        for st in stores:
            a(st + (" nt" if locnt else ""))
        a("  s_branch %s" % l1)
        a("%s:" % l0)
        for st in stores:
            a(st + " sc1")
        a("%s:" % l1)

    def reduce_swap(op, v, t, kind):
        a("  v_mov_b32 v%d, v%d" % (t, v))
        a("  s_nop 1")
        a("  v_permlane%d_swap_b32 v%d, v%d" % (kind, v, t))
        a("  %s v%d, v%d, v%d" % (op, v, v, t))

    a("  s_cmp_ge_u32 s2, 256")
    a("  s_cbranch_scc1 L_end")
    if early_ka:
        a("  s_load_dwordx2 s[8:9], s[0:1], 0             ; x")
        a("  s_load_dwordx2 s[52:53], s[0:1], 8           ; K")
        a("  s_load_dwordx2 s[12:13], s[0:1], 24          ; wq")
        a("  s_load_dwordx2 s[16:17], s[0:1], 88          ; ws")
        a("  s_load_dwordx2 s[60:61], s[0:1], 16          ; V")
        a("  s_load_dwordx4 s[56:59], s[0:1], 48")
    stamp(0)
    if dbgtime:
        a("  s_memrealtime s[100:101]")
    a("  v_lshrrev_b32 v1, 6, v0")
    a("  v_and_b32 v0, 63, v0            ; lane")
    a("  v_readfirstlane_b32 s%d, v1     ; wave id" % sW)
    a("  s_and_b32 s%d, s2, 7" % sX)
    a("  s_lshr_b32 s%d, s2, 3" % sLi)
    a("  s_cmp_ge_u32 s%d, 4" % sW)
    a("  s_cbranch_scc1 L_H")

    sK, sV, sCur = 8, 12, 16
    if early_ka:
        sV, sCur = 60, 52
    sBaseW, sRot, sRing, sIss, sOff, sIt = 28, 29, 30, 31, 32, 33
    sOff1 = 50
    sLocS = 51
    sM = 34
    sScale, sHi = 42, 43
    vLane = 0
    vMisc, vOne = 2, 3
    vKo, vVo, vCo = 4, 8, 12
    vKa = 16
    vVa = 20
    vTmp = 28
    vSp = 36
    vPf = 44
    vAcc = 52
    vE = 56
    vSt = 72
    vO = 104
    vQ = 136
    NV = 200

    sWsS = 16 if early_ka else 44
    sEp = 48
    sBaseW1 = 49
    a("L_S:")
    if sprio:
        a("  s_setprio %d" % sprio)
    if pf:
        lpf = a.lab("Lpf")
        a("  s_cmp_lg_u32 s%d, 3" % sW)
        a("  s_cbranch_scc1 %s" % lpf)
        a("  s_and_b32 s%d, s%d, 15" % (sT[0], sLi))
        a("  s_cmp_lg_u32 s%d, 0" % sT[0])
        a("  s_cbranch_scc1 %s" % lpf)
        a("  s_getpc_b64 s[%d:%d]" % (sT[2], sT[3]))
        a("L_pc:")
        a("  v_lshlrev_b32 v%d, 7, v%d" % (vTmp + 2, vLane))
        a("  v_add_u32 v%d, 0x2000, v%d" % (vTmp + 3, vTmp + 2))
        a("  global_load_dword v%d, v%d, s[%d:%d]" % (vSt, vTmp + 2, sT[2], sT[3]))
        a("  v_cmp_gt_u32 vcc, L_code_end-L_pc, v%d" % (vTmp + 3))
        a("  s_and_saveexec_b64 s[%d:%d], vcc" % (sT[4], sT[5]))
        a("  s_cbranch_execz L_pf_done")
        a("  global_load_dword v%d, v%d, s[%d:%d]" % (vSt + 1, vTmp + 3, sT[2], sT[3]))
        a("L_pf_done:")
        a("  s_mov_b64 exec, -1")
        a("%s:" % lpf)
    if not early_ka:
        a("  s_load_dwordx2 s[%d:%d], s[0:1], 8" % (sCur, sCur + 1))
        a("  s_load_dwordx2 s[%d:%d], s[0:1], 16" % (sV, sV + 1))
        a("  s_load_dwordx2 s[%d:%d], s[0:1], 88" % (sWsS, sWsS + 1))
    a("  s_mov_b32 s%d, 0x4000000" % (sCur + 2))
    a("  s_mov_b32 s%d, 0x20000" % (sCur + 3))
    a("  s_lshr_b32 s%d, s%d, 2" % (sT[0], sLi))
    a("  s_lshl_b32 s%d, s%d, 3" % (sT[0], sT[0]))
    a("  s_add_u32 s%d, s%d, s%d" % (sT[0], sT[0], sX))
    a("  s_lshl_b32 s%d, s%d, 2" % (sT[0], sT[0]))
    a("  s_and_b32 s%d, s%d, 3" % (sT[1], sLi))
    a("  s_add_u32 s%d, s%d, s%d" % (sT[0], sT[0], sT[1]))
    a("  s_lshl_b32 s%d, s%d, 18" % (sT[0], sT[0]))
    a("  s_lshl_b32 s%d, s%d, 13" % (sT[1], sW))
    if r4:
        if r4 == 1:
            a("  s_lshl_b32 s%d, s%d, 12" % (sT[2], sLi))
        else:
            a("  s_lshr_b32 s%d, s%d, 2" % (sT[2], sLi))
            a("  s_add_u32 s%d, s%d, s%d" % (sT[2], sT[2], sX))
            a("  s_lshl_b32 s%d, s%d, 12" % (sT[2], sT[2]))
        a("  s_add_u32 s%d, s%d, s%d" % (sT[1], sT[1], sT[2]))
        a("  s_add_u32 s%d, s%d, 4096" % (sT[2], sT[1]))
        a("  s_and_b32 s%d, s%d, 0x7fff" % (sT[1], sT[1]))
        a("  s_and_b32 s%d, s%d, 0x7fff" % (sT[2], sT[2]))
        a("  s_add_u32 s%d, s%d, s%d" % (sBaseW, sT[0], sT[1]))
        a("  s_add_u32 s%d, s%d, s%d" % (sBaseW1, sT[0], sT[2]))
    else:
        a("  s_add_u32 s%d, s%d, s%d" % (sBaseW, sT[0], sT[1]))
        a("  s_add_u32 s%d, s%d, 4096" % (sBaseW1, sBaseW))
    if rotmode == 0:
        sRotR = 2
    elif rotmode == 3:
        sRotR = sLi
    else:
        a("  s_add_u32 s%d, s2, s%d" % (sRot, sLi))
        sRotR = sRot
    a("  s_lshl_b32 s%d, s%d, 15" % (sRing, sW))
    a("  s_mov_b32 s%d, 0" % sIss)
    t0, t1, t2 = vTmp, vTmp + 1, vTmp + 2
    a("  v_lshrrev_b32 v%d, 4, v%d      ; g = l>>4" % (t0, vLane))
    a("  v_and_b32 v%d, 15, v%d         ; c' = l&15" % (t1, vLane))
    for i in range(4):
        a("  v_add_u32 v%d, %d, v%d" % (t2, 4 * i, t0))
        a("  v_xor_b32 v%d, v%d, v%d" % (t2, t2, t1))
        a("  v_lshlrev_b32 v%d, 4, v%d" % (t2, t2))
        a("  v_lshl_add_u32 v%d, v%d, 8, v%d" % (vCo + i, t0, t2))
    a("  v_mov_b32 v%d, %d" % (vMisc, FLG))
    a("  v_mov_b32 v%d, 1" % vOne)
    a("  s_waitcnt lgkmcnt(0)")
    a("  s_barrier                      ; B0")

    def issue_unit(switch=False, dep=None):
        depth_ = dep if dep else depth
        if switch:
            lsw = a.lab("Lsw")
            a("  s_cmp_lg_u32 s%d, 8" % sIss)
            a("  s_cbranch_scc1 %s" % lsw)
            for i in range(4):
                a("  s_mov_b32 s%d, s%d" % (sCur + i, sV + i))
            for i in range(4):
                a("  v_mov_b32 v%d, v%d" % (vCo + i, vVo + (i & 1)))
            a("%s:" % lsw)
        a("  s_add_u32 s%d, s%d, s%d" % (sT[0], sIss, sRotR))
        a("  s_and_b32 s%d, s%d, 7" % (sT[0], sT[0]))
        a("  s_lshl_b32 s%d, s%d, 15" % (sT[0], sT[0]))
        a("  s_add_u32 s%d, s%d, s%d" % (sOff, sT[0], sBaseW))
        a("  s_add_u32 s%d, s%d, s%d" % (sOff1, sT[0], sBaseW1))
        a("  s_and_b32 s%d, s%d, 3" % (sT[0], sIss))
        a("  s_lshl_b32 s%d, s%d, 13" % (sT[0], sT[0]))
        a("  s_add_u32 m0, s%d, s%d" % (sT[0], sRing))
        a("  s_add_u32 s%d, s%d, 1" % (sIss, sIss))
        a("  s_waitcnt vmcnt(%d)" % (depth_ - 1))
        for i in range(4):
            a("  buffer_load_dwordx4 v%d, s[%d:%d], s%d offen offset:%d nt lds" % (vCo + i, sCur, sCur + 3, sOff, i * 1024))
            if i < 3:
                a("  s_waitcnt vmcnt(%d)" % (depth_ - 1))
        a("  s_add_u32 m0, m0, 4096")
        a("  s_waitcnt vmcnt(%d)" % (depth_ - 1))
        for i in range(4):
            a("  buffer_load_dwordx4 v%d, s[%d:%d], s%d offen offset:%d nt lds" % (vCo + i, sCur, sCur + 3, sOff1, i * 1024))
            if i < 3:
                a("  s_waitcnt vmcnt(%d)" % (depth_ - 1))

    a("L_fill:")
    a("  s_cmp_lg_u32 s%d, 3" % sIss)
    a("  s_cbranch_scc1 L_fill_go")
    stamp("u2 issued")
    lds_wait(vMisc, F_STG, 4, vTmp + 5)
    stamp("STG ok")
    a("L_fill_go:")
    issue_unit(dep=dfill)

    a("  s_cmp_lt_u32 s%d, 4" % sIss)
    a("  s_cbranch_scc1 L_fill")
    a("  s_load_dword s%d, s[%d:%d], 0x%x" % (sEp, sWsS, sWsS + 1, EPOCH))
    a("  s_mov_b32 s%d, 0x4000000" % (sV + 2))
    a("  s_mov_b32 s%d, 0x20000" % (sV + 3))
    a("  s_mov_b32 s%d, 0x10000000" % (sWsS + 2))
    a("  s_mov_b32 s%d, 0x20000" % (sWsS + 3))
    for i in range(2):
        a("  v_add_u32 v%d, %d, v%d" % (t2, 4 * i, t0))
        a("  v_lshlrev_b32 v%d, 1, v%d" % (t2, t2))
        a("  v_xor_b32 v%d, v%d, v%d" % (t2, t2, t1))
        a("  v_lshlrev_b32 v%d, 4, v%d" % (t2, t2))
        a("  v_lshl_add_u32 v%d, v%d, 8, v%d" % (vVo + i, t0, t2))
    for s in range(4):
        a("  v_add_u32 v%d, %d, v%d" % (t2, 4 * s, t0))
        a("  v_xor_b32 v%d, v%d, v%d" % (t2, t2, t1))
        a("  v_lshlrev_b32 v%d, 4, v%d" % (t2, t2))
        a("  v_lshl_add_u32 v%d, v%d, 8, v%d" % (t2, t1, t2))
        a("  v_add_u32 v%d, s%d, v%d" % (vKa + s, sRing, t2))
    t3, t4 = vTmp + 3, vTmp + 4
    a("  v_lshrrev_b32 v%d, 2, v%d" % (t2, t1))
    a("  v_lshl_add_u32 v%d, v%d, 2, v%d    ; row" % (t2, t0, t2))
    a("  v_and_b32 v%d, 7, v%d              ; row&7" % (t3, t2))
    a("  v_lshlrev_b32 v%d, 8, v%d" % (t2, t2))
    a("  v_and_b32 v%d, 3, v%d" % (t4, t1))
    a("  v_lshl_add_u32 v%d, v%d, 3, v%d" % (t2, t4, t2))
    a("  v_add_u32 v%d, s%d, v%d" % (t2, sRing, t2))
    for dt in range(8):
        a("  v_xor_b32 v%d, %d, v%d" % (t4, dt, t3))
        a("  v_lshl_add_u32 v%d, v%d, 5, v%d" % (vVa + dt, t4, t2))
    for i in range(64):
        a("  v_mov_b32 v%d, 0" % (vQ + i))
    a("  v_bfe_u32 v%d, v%d, 2, 2" % (t2, vLane))
    for t in range(4):
        a("  v_cmp_eq_u32 s[%d:%d], %d, v%d" % (sM + 2 * t, sM + 2 * t + 1, t, t2))
    a("  v_and_b32 v%d, 3, v%d" % (t2, vLane))
    a("  v_mul_u32_u24 v%d, %d, v%d" % (t2, QL_STRIDE, t2))
    a("  v_lshl_add_u32 v%d, v%d, 4, v%d" % (t2, t0, t2))
    a("  v_add_u32 v%d, %d, v%d" % (t2, QL, t2))
    a("  s_mov_b32 s%d, 0x3DB504F3      ; 128^-0.5" % sScale)
    a("  s_mov_b32 s%d, 0xffff0000" % sHi)
    stamp("fill done")
    if not noq:
        lds_wait(vMisc, F_QRDY, 4, vTmp + 5)
    stamp("Q ready")
    for t in range(4):
        a("  s_mov_b64 exec, s[%d:%d]" % (sM + 2 * t, sM + 2 * t + 1))
        for s in range(4):
            r = vQ + (t * 4 + s) * 4
            a("  ds_read_b128 v[%d:%d], v%d offset:%d" % (r, r + 3, t2, 64 * s))
    a("  s_mov_b64 exec, -1")
    a("  s_mov_b32 s%d, 0" % sIt)
    a("  s_waitcnt vmcnt(0) lgkmcnt(0)")

    a("L_k:")
    lmid = a.lab("Lmid")
    a("  s_cmp_lg_u32 s%d, 0" % sW)
    a("  s_cbranch_scc1 %s" % lmid)
    a("  s_cmp_lg_u32 s%d, %d" % (sIt, mid_it))
    a("  s_cbranch_scc1 %s" % lmid)
    lds_add(vMisc, F_MID, vOne)
    a("%s:" % lmid)
    for u in range(2):
        if u == 0:
            lsk = a.lab("Lsk")
            a("  s_cmp_lt_u32 s%d, %d" % (sIt, 3 if la == 1 else 2))
            a("  s_cbranch_scc1 %s" % lsk)
            issue_unit(switch=(la == 2), dep=dk)
            a("%s:" % lsk)
        else:
            issue_unit(switch=(la == 1), dep=dk)
        for hf in range(2):
            for s_ in range(4):
                r = vSt + (hf * 4 + s_) * 4
                a("  ds_read_b128 v[%d:%d], v%d offset:%d" % (r, r + 3, vKa + s_, u * 8192 + hf * 4096))
        for hf in range(2):
            a("  s_waitcnt lgkmcnt(%d)" % (4 if hf == 0 else 0))
            t = 2 * u + hf
            for s_ in range(4):
                r = vSt + (hf * 4 + s_) * 4
                q = vQ + (t * 4 + s_) * 4
                c = "0" if (u == 0 and hf == 0 and s_ == 0) else "v[%d:%d]" % (vAcc, vAcc + 3)
                a("  v_mfma_f32_16x16x32_bf16 v[%d:%d], v[%d:%d], v[%d:%d], %s" % (vAcc, vAcc + 3, r, r + 3, q, q + 3, c))
    for i in range(6):
        a("  v_mov_b32 v%d, v%d" % (vSp + i, vSp + i + 2))
    for s in range(4):
        a("  v_xor_b32 v%d, 0x4000, v%d" % (vKa + s, vKa + s))
    c0, c1 = vTmp, vTmp + 1
    e0 = vTmp + 2
    a("  v_cvt_pk_bf16_f32 v%d, v%d, v%d" % (c0, vAcc, vAcc + 1))
    a("  v_cvt_pk_bf16_f32 v%d, v%d, v%d" % (c1, vAcc + 2, vAcc + 3))
    a("  v_lshlrev_b32 v%d, 16, v%d" % (e0, c0))
    a("  v_and_b32 v%d, s%d, v%d" % (e0 + 1, sHi, c0))
    a("  v_lshlrev_b32 v%d, 16, v%d" % (e0 + 2, c1))
    a("  v_and_b32 v%d, s%d, v%d" % (e0 + 3, sHi, c1))
    for i in range(4):
        a("  v_mul_f32 v%d, s%d, v%d" % (e0 + i, sScale, e0 + i))
    a("  v_cvt_pk_bf16_f32 v%d, v%d, v%d" % (vSp + 6, e0, e0 + 1))
    a("  v_cvt_pk_bf16_f32 v%d, v%d, v%d" % (vSp + 7, e0 + 2, e0 + 3))
    a("  s_add_u32 s%d, s%d, 1" % (sIt, sIt))
    a("  s_cmp_lt_u32 s%d, 4" % sIt)
    a("  s_cbranch_scc1 L_k")
    stamp("K done")
    if presm and la == 1:
        issue_unit()

    for i in range(8):
        a("  v_lshlrev_b32 v%d, 16, v%d" % (vE + 2 * i, vSp + i))
        a("  v_and_b32 v%d, s%d, v%d" % (vE + 2 * i + 1, sHi, vSp + i))
    vM, vL, vX = vTmp, vTmp + 1, vTmp + 2
    a("  v_max3_f32 v%d, v%d, v%d, v%d" % (vM, vE, vE + 1, vE + 2))
    for i in range(3, 15, 2):
        a("  v_max3_f32 v%d, v%d, v%d, v%d" % (vM, vM, vE + i, vE + i + 1))
    a("  v_max_f32 v%d, v%d, v%d" % (vM, vM, vE + 15))
    a("  s_nop 1")
    a("  v_max_f32_dpp v%d, v%d, v%d row_ror:4 %s" % (vM, vM, vM, DPP))
    a("  s_nop 1")
    a("  v_max_f32_dpp v%d, v%d, v%d row_ror:8 %s" % (vM, vM, vM, DPP))
    reduce_swap("v_max_f32", vM, vX, 16)
    reduce_swap("v_max_f32", vM, vX, 32)
    a("  s_mov_b32 s%d, 0x3FB8AA3B      ; log2(e)" % sT[0])
    a("  v_mul_f32 v%d, s%d, v%d" % (vX, sT[0], vM))
    for i in range(16):
        a("  v_fma_f32 v%d, v%d, s%d, -v%d" % (vE + i, vE + i, sT[0], vX))
    for i in range(16):
        a("  v_exp_f32 v%d, v%d" % (vE + i, vE + i))
    a("  s_nop 0")
    for i in range(8):
        a("  v_cvt_pk_bf16_f32 v%d, v%d, v%d" % (vSp + i, vE + 2 * i, vE + 2 * i + 1))
    for i in range(4):
        a("  v_pk_add_f32 v[%d:%d], v[%d:%d], v[%d:%d]" % (vE + 2 * i, vE + 2 * i + 1, vE + 2 * i, vE + 2 * i + 1, vE + 8 + 2 * i, vE + 9 + 2 * i))
    for i in range(2):
        a("  v_pk_add_f32 v[%d:%d], v[%d:%d], v[%d:%d]" % (vE + 2 * i, vE + 2 * i + 1, vE + 2 * i, vE + 2 * i + 1, vE + 4 + 2 * i, vE + 5 + 2 * i))
    a("  v_pk_add_f32 v[%d:%d], v[%d:%d], v[%d:%d]" % (vE, vE + 1, vE, vE + 1, vE + 2, vE + 3))
    a("  v_add_f32 v%d, v%d, v%d" % (vL, vE, vE + 1))
    a("  s_nop 1")
    a("  v_add_f32_dpp v%d, v%d, v%d row_ror:4 %s" % (vL, vL, vL, DPP))
    a("  s_nop 1")
    a("  v_add_f32_dpp v%d, v%d, v%d row_ror:8 %s" % (vL, vL, vL, DPP))
    reduce_swap("v_add_f32", vL, vX, 16)
    reduce_swap("v_add_f32", vL, vX, 32)
    a("  s_lshl_b32 s%d, s%d, 5" % (sT[0], sW))
    a("  v_lshlrev_b32 v%d, 3, v%d" % (vX, vLane))
    a("  v_add_u32 v%d, s%d, v%d" % (vX, sT[0], vX))
    a("  v_add_u32 v%d, v%d, v%d" % (vX, vMisc, vX))
    a("  s_mov_b64 exec, 15")
    a("  ds_write_b64 v%d, v[%d:%d] offset:%d" % (vX, vM, vM + 1, SSTAT))
    a("  s_waitcnt lgkmcnt(0)")
    a("  s_mov_b64 exec, -1")
    lds_add(vMisc, F_ST, vOne)

    for i in range(32):
        a("  v_mov_b32 v%d, 0" % (vO + i))
    a("  s_mov_b32 s%d, 0" % sIt)
    a("L_v:")
    a("  v_mov_b32 v%d, v%d" % (vPf, vSp))
    a("  v_mov_b32 v%d, v%d" % (vPf + 1, vSp + 1))
    for k, sh in ((2, 4), (4, 8), (6, 12)):
        a("  v_mov_b32_dpp v%d, v%d row_shl:%d %s bound_ctrl:0" % (vPf + k, vSp, sh, DPP))
        a("  v_mov_b32_dpp v%d, v%d row_shl:%d %s bound_ctrl:0" % (vPf + k + 1, vSp + 1, sh, DPP))
    for i in range(6):
        a("  v_mov_b32 v%d, v%d" % (vSp + i, vSp + i + 2))
    lew = a.lab("Lew")
    a("  s_cmp_lg_u32 s%d, 0" % sW)
    a("  s_cbranch_scc1 %s" % lew)
    lew2 = a.lab("Lew")
    a("  s_cmp_lg_u32 s%d, %d" % (sIt, late_it))
    a("  s_cbranch_scc1 %s" % lew2)
    lds_add(vMisc, F_LATE, vOne)
    a("%s:" % lew2)
    a("  s_cmp_lg_u32 s%d, %d" % (sIt, ew_it))
    a("  s_cbranch_scc1 %s" % lew)
    lds_add(vMisc, F_EWS, vOne)
    if nob1:
        lds_wait(vMisc, F_LOC, 1, vTmp + 5, sleep=0)
        a("  s_lshr_b32 s%d, s%d, 1" % (sLocS, sT[7]))
        lds_wait(vMisc, F_F, 1, vTmp + 5, sleep=0)
    a("%s:" % lew)
    for u in range(2):
        if u == 0 and la == 1:
            if presm:
                lsk = a.lab("Lsk")
                a("  s_cmp_eq_u32 s%d, 0" % sIt)
                a("  s_cbranch_scc1 %s" % lsk)
                issue_unit()
                a("%s:" % lsk)
            else:
                issue_unit()
        else:
            lv_else, lv_done = a.lab("Lve"), a.lab("Lvd")
            a("  s_cmp_ge_u32 s%d, 3" % sIt)
            a("  s_cbranch_scc1 %s" % lv_else)
            issue_unit()
            a("  s_branch %s" % lv_done)
            a("%s:" % lv_else)
            a("  s_waitcnt vmcnt(%d)" % (8 if u == 0 else 0))
            a("%s:" % lv_done)
        for dt in range(8):
            r = vSt + dt * 4
            a("  ds_read_b64_tr_b16 v[%d:%d], v%d offset:%d" % (r, r + 1, vVa + dt, u * 8192))
            a("  ds_read_b64_tr_b16 v[%d:%d], v%d offset:%d" % (r + 2, r + 3, vVa + dt, u * 8192 + 4096))
        for dt in range(8):
            r = vSt + dt * 4
            o = vO + dt * 4
            if dt % 2 == 0:
                a("  s_waitcnt lgkmcnt(%d)" % (12 - 2 * dt if dt < 6 else 0))
            a("  v_mfma_f32_16x16x32_bf16 v[%d:%d], v[%d:%d], v[%d:%d], v[%d:%d]" % (o, o + 3, r, r + 3, vPf + 4 * u, vPf + 4 * u + 3, o, o + 3))
    for dt in range(8):
        a("  v_xor_b32 v%d, 0x4000, v%d" % (vVa + dt, vVa + dt))
    a("  s_add_u32 s%d, s%d, 1" % (sIt, sIt))
    a("  s_cmp_lt_u32 s%d, 4" % sIt)
    a("  s_cbranch_scc1 L_v")
    stamp("V done")
    a("  v_and_b32 v%d, 15, v%d" % (t1, vLane))
    a("  v_lshrrev_b32 v%d, 4, v%d" % (t0, vLane))
    a("  v_lshlrev_b32 v%d, 9, v%d" % (t2, t1))
    a("  v_lshl_add_u32 v%d, v%d, 4, v%d" % (t2, t0, t2))
    a("  v_add_u32 v%d, s%d, v%d" % (t2, sRing, t2))
    a("  v_cmp_gt_u32 vcc, 4, v%d" % t1)
    a("  s_nop 4")
    a("  s_mov_b64 exec, vcc")
    for dt in range(8):
        a("  ds_write_b128 v%d, v[%d:%d] offset:%d" % (t2, vO + dt * 4, vO + dt * 4 + 3, dt * 64))
    a("  s_mov_b64 exec, -1")
    vR0, vR1, vR2, vR3 = vPf, vPf + 1, vPf + 2, vPf + 3
    a("  v_lshlrev_b32 v%d, 9, v%d" % (vR0, t0))
    a("  v_lshl_add_u32 v%d, v%d, 4, v%d      ; h*512 + c*16" % (vR0, t1, vR0))
    a("  v_lshl_add_u32 v%d, v%d, 4, v%d      ; FLG + h*16" % (vR1, t0, vMisc))
    a("  v_lshlrev_b32 v%d, 14, v%d" % (vR2, t0))
    a("  v_lshrrev_b32 v%d, 3, v%d" % (t3, t1))
    a("  v_lshl_add_u32 v%d, v%d, 11, v%d" % (vR2, t3, vR2))
    a("  v_and_b32 v%d, 7, v%d" % (t3, t1))
    a("  v_lshl_add_u32 v%d, v%d, 4, v%d" % (vR2, t3, vR2))
    a("  s_lshl_b32 s%d, s%d, 16" % (sT[0], sX))
    a("  s_lshr_b32 s%d, s%d, 4" % (sT[1], sLi))
    a("  s_lshl_b32 s%d, s%d, 13" % (sT[1], sT[1]))
    a("  s_add_u32 s%d, s%d, s%d" % (sT[0], sT[0], sT[1]))
    a("  s_and_b32 s%d, s%d, 15" % (sT[1], sLi))
    a("  s_lshl_b32 s%d, s%d, 7" % (sT[1], sT[1]))
    a("  s_add_u32 s%d, s%d, s%d" % (sT[0], sT[0], sT[1]))
    a("  s_add_u32 s%d, s%d, %d" % (sT[0], sT[0], OP))
    a("  s_add_u32 s%d, s%d, 1" % (sT[1], sEp))
    a("  s_and_b32 s%d, s%d, 0xff" % (sT[1], sT[1]))
    a("  v_mov_b32 v%d, s%d" % (vR3, sT[1]))
    a("  s_add_u32 s%d, s%d, 4096" % (sT[1], sT[0]))
    a("  s_mov_b32 s%d, 0xffff0000" % sT[2])
    if not nob1:
        lds_wait(vMisc, F_LOC, 1, t3)
        a("  s_lshr_b32 s%d, s%d, 1" % (sLocS, sT[7]))
    a("  s_waitcnt lgkmcnt(0)")
    if nob1:
        lds_add(vMisc, F_T0, vOne)
        a("  s_cmp_lg_u32 s%d, 0" % sW)
        a("  s_cbranch_scc1 L_S_done")
        lds_wait(vMisc, F_T0, 4, t3, sleep=0)
    else:
        a("  s_barrier                      ; B1")
        a("  s_cmp_lg_u32 s%d, 0" % sW)
        a("  s_cbranch_scc1 L_S_done")
    sWs = sWsS
    for w in range(4):
        a("  ds_read_b128 v[%d:%d], v%d offset:%d" % (vSt + w * 8, vSt + w * 8 + 3, vR0, (w & 1) * 32768))
        a("  ds_read_b128 v[%d:%d], v%d offset:%d" % (vSt + w * 8 + 4, vSt + w * 8 + 7, vR0, (w & 1) * 32768 + 256))
        if w == 1:
            a("  v_add_u32 v%d, 0x10000, v%d" % (vR0, vR0))
    a("  ds_read_b128 v[%d:%d], v%d offset:%d" % (vE, vE + 3, vR1, FFAC))
    a("  s_waitcnt lgkmcnt(0)")
    for i in range(8):
        a("  v_mul_f32 v%d, v%d, v%d" % (vO + i, vSt + i, vE))
    for w in range(1, 4):
        for i in range(8):
            a("  v_fmac_f32 v%d, v%d, v%d" % (vO + i, vSt + w * 8 + i, vE + w))
    for i in range(8):
        a("  v_cvt_pk_bf16_f32 v%d, v%d, v%d" % (vO + i, vO + i, vO + i))
    for i in range(8):
        a("  v_and_or_b32 v%d, v%d, s%d, v%d" % (vO + i, vO + i, sT[2], vR3))
    store_loc(["  buffer_store_dwordx4 v[%d:%d], v%d, s[%d:%d], s%d offen" % (vO, vO + 3, vR2, sWs, sWs + 3, sT[0]),
               "  buffer_store_dwordx4 v[%d:%d], v%d, s[%d:%d], s%d offen" % (vO + 4, vO + 7, vR2, sWs, sWs + 3, sT[1])], sLocS)
    stamp("published")
    a("  s_barrier                      ; B2")
    if ts:
        a("  s_waitcnt lgkmcnt(0)")
        a("  s_lshl_b32 s%d, s2, 8" % sT[0])
        a("  s_add_u32 s%d, s%d, %d" % (sT[0], sT[0], TSOFF))
        a("  v_mov_b32 v%d, 0" % t2)
        a("  s_mov_b64 exec, 1")
        for i in range(len(names["S"])):
            a("  v_mov_b32 v%d, s%d" % (vO, TS0 + 2 * i))
            a("  v_mov_b32 v%d, s%d" % (vO + 1, TS0 + 2 * i + 1))
            a("  buffer_store_dwordx2 v[%d:%d], v%d, s[%d:%d], s%d offen offset:%d" % (vO, vO + 1, t2, sWs, sWs + 3, sT[0], 8 * i))
            a("  s_waitcnt vmcnt(0)")
        a("  s_mov_b64 exec, -1")
    a("L_S_done:")
    a("  s_endpgm")

    role[0] = "H"
    a("L_H:")
    sHW = 7
    sXd, sWq, sWs, sGU, sWd, sWo, sOut = 8, 12, 16, 32, 36, 40, 44
    sEp = 28
    sTag = 29
    sNotFF = 30
    sTag4 = 31
    sHi2 = 48
    sFi = 49
    sSelA, sSelB = 50, 54
    sB = 51; sJ = 52; sFidx = 53
    sKb2 = 55
    sLo8 = 60
    sFv = 3
    sLoc = 56
    sDbg = 64
    sHq = 62
    sWoStg = 63
    hMisc, hOne = 2, 3
    hG, hI = 4, 5
    hT = 6
    hX = 16
    hF = 24
    hY = 40
    hA = 56
    hB = 72
    hD = 88
    hW = 120
    hXf = 136
    hZ = 144
    hTag = 156
    hWd = 160
    hMid = 197
    T0, T1, T2, T3, T4, T5 = hT, hT + 1, hT + 2, hT + 3, hT + 4, hT + 5
    hTr, hXn, hW1k, hTrG, hOutOff = hZ + 1, hZ + 2, hZ + 4, hZ + 5, hZ + 6

    if not early_ka:
        a("  s_load_dwordx2 s[%d:%d], s[0:1], 0" % (sXd, sXd + 1))
        a("  s_load_dwordx2 s[%d:%d], s[0:1], 24" % (sWq, sWq + 1))
        a("  s_load_dwordx4 s[56:59], s[0:1], 48")
        a("  s_load_dwordx2 s[%d:%d], s[0:1], 88" % (sWs, sWs + 1))
    a("  v_lshlrev_b32 v%d, 2, v0" % T0)
    a("  v_add_u32 v%d, %d, v%d" % (T0, FLG, T0))
    a("  v_mov_b32 v%d, 0" % T1)
    a("  ds_write_b32 v%d, v%d" % (T0, T1))
    a("  s_sub_u32 s%d, s%d, 4" % (sHW, sW))
    a("  s_mov_b32 s%d, 8192" % (sXd + 2))
    a("  s_mov_b32 s%d, 0x20000" % (sXd + 3))
    a("  v_lshrrev_b32 v%d, 5, v0" % T0)
    a("  s_lshl_b32 s%d, s%d, 1" % (sT[0], sHW))
    a("  v_add_u32 v%d, s%d, v%d          ; row b" % (T0, sT[0], T0))
    a("  v_and_b32 v%d, 31, v0" % T1)
    a("  v_lshlrev_b32 v%d, 5, v%d" % (T1, T1))
    a("  v_lshl_add_u32 v%d, v%d, 10, v%d" % (T2, T0, T1))
    a("  s_waitcnt lgkmcnt(0)")
    a("  buffer_load_dwordx4 v[%d:%d], v%d, s[%d:%d], 0 offen%s" % (hX, hX + 3, T2, sXd, sXd + 3, " nt" if xnt else ""))
    a("  buffer_load_dwordx4 v[%d:%d], v%d, s[%d:%d], 0 offen offset:16%s" % (hX + 4, hX + 7, T2, sXd, sXd + 3, " nt" if xnt else ""))
    a("  v_lshrrev_b32 v%d, 3, v0" % T3)
    a("  v_and_b32 v%d, 7, v0" % T4)
    a("  v_lshlrev_b32 v%d, 4, v%d" % (T4, T4))
    a("  v_lshl_add_u32 v%d, v%d, 13, v%d" % (T5, T3, T4))
    a("  s_and_b32 s%d, s%d, 3" % (sJ, sLi))
    a("  s_lshr_b32 s%d, s%d, 2" % (sB, sLi))
    a("  s_lshl_b32 s%d, s%d, 2" % (sT[0], sJ))
    a("  s_add_u32 s%d, s%d, s%d" % (sT[0], sT[0], sHW))
    a("  s_lshl_b32 s%d, s%d, 18" % (sT[0], sT[0]))
    a("  s_lshl_b32 s%d, s%d, 3" % (sT[1], sX))
    a("  s_add_u32 s%d, s%d, s%d" % (sT[1], sT[1], sB))
    a("  s_lshl_b32 s%d, s%d, 7" % (sT[1], sT[1]))
    a("  s_add_u32 s%d, s%d, s%d" % (sT[0], sT[0], sT[1]))
    a("  s_lshr_b32 s%d, s%d, 1" % (sT[1], sHW))
    a("  s_lshl_b32 s%d, s%d, 15" % (sT[1], sT[1]))
    a("  s_and_b32 s%d, s%d, 1" % (sT[2], sHW))
    a("  s_lshl_b32 s%d, s%d, 12" % (sT[2], sT[2]))
    a("  s_add_u32 s%d, s%d, s%d" % (sT[1], sT[1], sT[2]))
    a("  s_add_u32 s%d, s%d, 24576" % (sT[1], sT[1]))
    a("  s_mov_b32 s%d, 0x400000" % (sWq + 2))
    a("  s_mov_b32 s%d, 0x20000" % (sWq + 3))
    for n in range(4):
        a("  s_add_u32 m0, s%d, %d" % (sT[1], n * 1024))
        if n:
            a("  s_add_u32 s%d, s%d, %d" % (sT[0], sT[0], 8 * 8192))
        else:
            a("  s_load_dword s%d, s[%d:%d], 0x%x" % (sEp, sWs, sWs + 1, EPOCH))
        a("  buffer_load_dwordx4 v%d, s[%d:%d], s%d offen nt lds" % (T5, sWq, sWq + 3, sT[0]))
    if b0pos == 0:
        a("  s_barrier                      ; B0")
        stamp("B0")
    a("  s_load_dwordx2 s[%d:%d], s[0:1], 64" % (sWd, sWd + 1))
    a("  s_load_dwordx2 s[%d:%d], s[0:1], 32" % (sWo, sWo + 1))
    a("  s_load_dwordx2 s[%d:%d], s[0:1], 72" % (sOut, sOut + 1))
    a("  s_load_dwordx2 s[%d:%d], s[0:1], 80" % (sDbg, sDbg + 1))
    a("  s_lshr_b32 s%d, s%d, 3" % (sT[4], sLi))
    a("  s_lshl_b32 s%d, s%d, 3" % (sT[4], sT[4]))
    a("  s_add_u32 s%d, s%d, s%d" % (sT[4], sT[4], sX))
    a("  s_cmp_lt_u32 s%d, 28" % sT[4])
    a("  s_cselect_b32 s%d, 1, 0" % sFv)
    a("  s_min_u32 s%d, s%d, 27" % (sT[4], sT[4]))
    a("  s_lshl_b32 s%d, s%d, 3" % (sFi, sT[4]))
    a("  s_and_b32 s%d, s%d, 7" % (sT[5], sLi))
    a("  s_add_u32 s%d, s%d, s%d" % (sFi, sFi, sT[5]))
    a("  s_and_b32 s%d, s%d, 3" % (sKb2, sFi))
    a("  s_lshl_b32 s%d, s%d, 2" % (sT[3], sKb2))
    a("  s_add_u32 s%d, s%d, s%d" % (sT[3], sT[3], sHW))
    a("  s_mul_i32 s%d, s%d, %d" % (sT[3], sT[3], 32 * 3584))
    a("  s_lshl_b32 s%d, s%d, 7" % (sT[4], sT[4]))
    a("  s_add_u32 s%d, s%d, s%d" % (sT[3], sT[3], sT[4]))
    a("  s_bitcmp1_b32 s%d, 2" % sFi)
    a("  s_cselect_b32 s%d, s58, s56" % sGU)
    a("  s_cselect_b32 s%d, s59, s57" % (sGU + 1))
    a("  s_mov_b32 s%d, 1835008" % (sGU + 2))
    a("  s_mov_b32 s%d, 0x20000" % (sGU + 3))
    a("  v_lshl_add_u32 v%d, v%d, 10, v%d" % (hW1k, T3, T4))
    a("  v_mul_u32_u24 v%d, 3584, v%d" % (T3, T3))
    a("  v_add_u32 v%d, v%d, v%d" % (T3, T3, T4))
    for n in range(4):
        a("  s_add_u32 m0, s%d, %d" % (sT[1], 65536 + n * 1024))
        if n:
            a("  s_add_u32 s%d, s%d, %d" % (sT[3], sT[3], 8 * 3584))
        else:
            a("  s_mov_b32 s%d, 0xffff0000" % sHi2)
        a("  buffer_load_dwordx4 v%d, s[%d:%d], s%d offen nt lds" % (T3, sGU, sGU + 3, sT[3]))
    if b0pos == 1:
        a("  s_barrier                      ; B0")
        stamp("B0")
    a("  v_lshrrev_b32 v%d, 4, v0" % hG)
    a("  v_and_b32 v%d, 15, v0" % hI)
    a("  v_mov_b32 v%d, %d" % (hMisc, FLG))
    a("  v_mov_b32 v%d, 1" % hOne)
    a("  v_mul_u32_u24 v%d, %d, v%d" % (T0, XN_STRIDE, T0))
    a("  v_add_u32 v%d, v%d, v%d" % (T0, T0, T1))
    a("  v_add_u32 v%d, %d, v%d" % (hZ, XN, T0))
    if noh:
        for _ in range(4):
            lds_add(hMisc, F_QRDY, hOne)
            lds_add(hMisc, F_STG, hOne)
        a("  s_barrier")
        a("  s_mov_b32 s%d, 0x10000000" % (sWs + 2))
        a("  s_mov_b32 s%d, 0x20000" % (sWs + 3))
        a("  s_cmp_lg_u32 s%d, 0" % sHW)
        a("  s_cbranch_scc1 L_H_done")
        a("  s_branch L_tsdump")
    a("  s_mov_b32 s%d, 0x10000000" % (sWs + 2))
    a("  s_mov_b32 s%d, 0x20000" % (sWs + 3))
    for base, size in ((sWd, 1835008), (sWo, 0x400000), (sOut, 8192)):
        a("  s_mov_b32 s%d, %d" % (base + 2, size))
        a("  s_mov_b32 s%d, 0x20000" % (base + 3))
    a("  s_mov_b32 s%d, 0xffffff00" % sNotFF)
    a("  s_mov_b32 s%d, 0x0c0c0400" % sSelA)
    a("  s_mov_b32 s%d, 0x04000c0c" % sSelB)

    def pk(op, d, s0, s1, extra=""):
        a("  %s v[%d:%d], v[%d:%d], v[%d:%d]%s" % (op, d, d + 1, s0, s0 + 1, s1, s1 + 1, extra))

    def allreduce32(v, t):
        for n in (1, 2, 4, 8):
            a("  s_nop 1")
            a("  v_add_f32_dpp v%d, v%d, v%d row_ror:%d %s" % (v, v, v, n, DPP))
        reduce_swap("v_add_f32", v, t, 16)

    def tag(v):
        a("  v_and_or_b32 v%d, v%d, s%d, v%d" % (v, v, sNotFF, hTag))

    def tag_retry(regs, lab_retry, lab_ok, t0_, t1_, sleep):
        rs = list(regs)
        assert len(rs) % 4 == 0
        for k in range(0, len(rs), 4):
            a("  v_perm_b32 v%d, v%d, v%d, s%d" % (t1_, rs[k + 1], rs[k], sSelA))
            a("  v_perm_b32 v%d, v%d, v%d, s%d" % (t1_ + 1, rs[k + 3], rs[k + 2], sSelB))
            if k == 0:
                a("  v_or_b32 v%d, v%d, v%d" % (t0_, t1_, t1_ + 1))
                a("  v_xor_b32 v%d, s%d, v%d" % (t0_, sTag4, t0_))
            else:
                a("  v_or_b32 v%d, v%d, v%d" % (t1_, t1_, t1_ + 1))
                a("  v_xor_b32 v%d, s%d, v%d" % (t1_, sTag4, t1_))
                a("  v_or_b32 v%d, v%d, v%d" % (t0_, t0_, t1_))
        a("  v_cmp_ne_u32 vcc, 0, v%d" % t0_)
        a("  s_cbranch_vccz %s" % lab_ok)
        a("  s_mov_b64 exec, vcc")
        a("  s_add_u32 s%d, s%d, 1" % (sCnt, sCnt))
        a("  s_cmp_lt_u32 s%d, %d" % (sCnt, SPIN_LIMIT))
        a("  s_cbranch_scc0 %s" % lab_ok)
        a("  s_sleep %d" % sleep)
        a("  s_branch %s" % lab_retry)

    def round_bf16(v):
        a("  v_cvt_pk_bf16_f32 v%d, v%d, v%d" % (v, v, v))
        a("  v_and_b32 v%d, s%d, v%d" % (v, sHi2, v))

    def untag(regs):
        for v in regs:
            a("  v_and_or_b32 v%d, v%d, s%d, v%d" % (v, v, sNotFF, hMid))

    a("  s_waitcnt vmcnt(8)")
    for i in range(8):
        a("  v_lshlrev_b32 v%d, 16, v%d" % (hF + 2 * i, hX + i))
        a("  v_and_b32 v%d, s%d, v%d" % (hF + 2 * i + 1, sHi2, hX + i))
    for i in range(4):
        pk("v_pk_add_f32", hY + 2 * i, hF + 4 * i, hF + 4 * i + 2)
    pk("v_pk_add_f32", hY, hY, hY + 2)
    pk("v_pk_add_f32", hY + 4, hY + 4, hY + 6)
    pk("v_pk_add_f32", hY, hY, hY + 4)
    vS = hZ + 8
    vV = hZ + 10
    a("  v_add_f32 v%d, v%d, v%d" % (vS, hY, hY + 1))
    allreduce32(vS, T0)
    a("  v_mul_f32 v%d, 0x3b000000, v%d     ; mean" % (vS, vS))
    for i in range(8):
        pk("v_pk_add_f32", hY + 2 * i, hF + 2 * i, vS, " op_sel_hi:[1,0] neg_lo:[0,1] neg_hi:[0,1]")
    pk("v_pk_mul_f32", vV, hY, hY)
    for i in range(1, 8):
        a("  v_pk_fma_f32 v[%d:%d], v[%d:%d], v[%d:%d], v[%d:%d]" % (vV, vV + 1, hY + 2 * i, hY + 2 * i + 1, hY + 2 * i, hY + 2 * i + 1, vV, vV + 1))
    a("  v_add_f32 v%d, v%d, v%d" % (vV, vV, vV + 1))
    allreduce32(vV, T0)
    a("  v_mul_f32 v%d, 0x3b000000, v%d     ; var" % (vV, vV))
    a("  v_cvt_pk_bf16_f32 v%d, v%d, v%d" % (vS, vS, vV))
    a("  v_and_b32 v%d, s%d, v%d" % (vV, sHi2, vS))
    a("  v_lshlrev_b32 v%d, 16, v%d            ; mean_bf" % (vS, vS))
    a("  v_add_f32 v%d, 0x3727c5ac, v%d" % (vV, vV))
    round_bf16(vV)
    a("  v_sqrt_f32 v%d, v%d" % (vV, vV))
    a("  s_nop 0")
    round_bf16(vV)
    a("  v_rcp_f32 v%d, v%d" % (vV, vV))
    for i in range(8):
        pk("v_pk_add_f32", hY + 2 * i, hF + 2 * i, vS, " op_sel_hi:[1,0] neg_lo:[0,1] neg_hi:[0,1]")
    for i in range(8):
        a("  v_cvt_pk_bf16_f32 v%d, v%d, v%d" % (hX + i, hY + 2 * i, hY + 2 * i + 1))
    for i in range(8):
        a("  v_lshlrev_b32 v%d, 16, v%d" % (hF + 2 * i, hX + i))
        a("  v_and_b32 v%d, s%d, v%d" % (hF + 2 * i + 1, sHi2, hX + i))
    for i in range(8):
        pk("v_pk_mul_f32", hY + 2 * i, hF + 2 * i, vV, " op_sel_hi:[1,0]")
    for i in range(8):
        a("  v_cvt_pk_bf16_f32 v%d, v%d, v%d" % (hX + i, hY + 2 * i, hY + 2 * i + 1))
    a("  ds_write_b128 v%d, v[%d:%d]" % (hZ, hX, hX + 3))
    a("  ds_write_b128 v%d, v[%d:%d] offset:16" % (hZ, hX + 4, hX + 7))
    stamp("LN done")

    a("  v_lshrrev_b32 v%d, 2, v%d" % (T0, hI))
    a("  v_lshl_add_u32 v%d, v%d, 3, v%d" % (T0, hG, T0))
    a("  v_lshlrev_b32 v%d, 7, v%d" % (T0, T0))
    a("  v_and_b32 v%d, 3, v%d" % (T1, hI))
    a("  v_lshl_add_u32 v%d, v%d, 3, v%d" % (hTrG, T1, T0))
    a("  s_lshl_b32 s%d, s%d, 5" % (sT[0], sHW))
    a("  s_add_u32 s%d, s%d, 24576" % (sT[0], sT[0]))
    a("  v_add_u32 v%d, s%d, v%d" % (hTr, sT[0], hTrG))
    a("  v_and_b32 v%d, 7, v%d" % (T0, hI))
    a("  v_mul_u32_u24 v%d, %d, v%d" % (T0, XN_STRIDE, T0))
    a("  v_lshl_add_u32 v%d, v%d, 4, v%d" % (T0, hG, T0))
    a("  v_add_u32 v%d, %d, v%d" % (hXn, XN, T0))
    a("  v_cmp_gt_u32 s[%d:%d], 8, v%d" % (sLo8, sLo8 + 1, hI))

    def tile_compute(kb_sgpr, stg_add):
        a("  s_lshl_b32 s%d, s%d, 8" % (sT[0], kb_sgpr))
        a("  v_add_u32 v%d, s%d, v%d" % (T0, sT[0], hXn))
        if stg_add:
            a("  v_add_u32 v%d, 0x%x, v%d" % (T1, stg_add, hTr))
            tr = T1
        else:
            tr = hTr
        for ks in range(4):
            base = (ks >> 1) * 32768 + (ks & 1) * 4096
            r = hA + ks * 4
            a("  ds_read_b64_tr_b16 v[%d:%d], v%d offset:%d" % (r, r + 1, tr, base))
            a("  ds_read_b64_tr_b16 v[%d:%d], v%d offset:%d" % (r + 2, r + 3, tr, base + 512))
            r = hB + ks * 4
            a("  ds_read_b128 v[%d:%d], v%d offset:%d" % (r, r + 3, T0, ks * 64))
        for ks in range(4):
            a("  s_waitcnt lgkmcnt(%d)" % (9 - 3 * ks))
            c = "0" if ks == 0 else "v[%d:%d]" % (hD, hD + 3)
            a("  v_mfma_f32_16x16x32_bf16 v[%d:%d], v[%d:%d], v[%d:%d], %s" % (hD, hD + 3, hA + ks * 4, hA + ks * 4 + 3, hB + ks * 4, hB + ks * 4 + 3, c))

    a("  s_waitcnt vmcnt(4) lgkmcnt(0)")
    a("  s_add_u32 s%d, s%d, 1" % (sTag, sEp))
    a("  s_and_b32 s%d, s%d, 0xff" % (sTag, sTag))
    a("  s_mul_i32 s%d, s%d, 0x01010101" % (sTag4, sTag))
    a("  v_mov_b32 v%d, s%d" % (hTag, sTag))
    a("  v_mov_b32 v%d, 0x80" % hMid)
    if early_census:
        lc = a.lab("Lc")
        a("  s_cmp_lg_u32 s%d, 1" % sHW)
        a("  s_cbranch_scc1 %s" % lc)
        a("  s_mov_b32 s%d, 256" % (sDbg + 2))
        a("  s_mov_b32 s%d, 0x20000" % (sDbg + 3))
        a("  s_getreg_b32 s%d, hwreg(HW_REG_XCC_ID, 0, 3)" % sT[4])
        a("  s_lshl_b32 s%d, s%d, 3" % (sT[4], sT[4]))
        a("  s_lshl_b64 s[%d:%d], 1, s%d" % (sT[6], sT[7], sT[4]))
        a("  v_mov_b32 v%d, s%d" % (hA, sT[6]))
        a("  v_mov_b32 v%d, s%d" % (hA + 1, sT[7]))
        a("  s_lshl_b32 s%d, s%d, 5" % (sT[4], sX))
        a("  v_mov_b32 v%d, s%d" % (T0, sT[4]))
        a("  s_mov_b64 exec, 1")
        a("  buffer_atomic_add_x2 v[%d:%d], v%d, s[%d:%d], 0 offen sc1" % (hA, hA + 1, T0, sDbg, sDbg + 3))
        a("  s_mov_b64 exec, -1")
        a("%s:" % lc)
    lds_add(hMisc, F_H1, hOne)
    lds_wait(hMisc, F_H1, 4, T5)
    stamp("Hsync1")
    tile_compute(sJ, 0)
    a("  v_lshlrev_b32 v%d, 11, v%d" % (T0, hI))
    a("  v_lshl_add_u32 v%d, v%d, 4, v%d" % (T0, hG, T0))
    a("  s_lshl_b32 s%d, s%d, 6" % (sT[0], sHW))
    a("  v_add_u32 v%d, s%d, v%d" % (T0, sT[0], T0))
    a("  s_lshl_b32 s%d, s%d, 2" % (sHq, sX))
    a("  s_add_u32 s%d, s%d, s%d" % (sHq, sHq, sJ))
    a("  s_lshl_b32 s%d, s%d, 14" % (sT[0], sHq))
    a("  s_lshl_b32 s%d, s%d, 8" % (sT[1], sB))
    a("  s_add_u32 s%d, s%d, s%d" % (sT[0], sT[0], sT[1]))
    if QP:
        a("  s_add_u32 s%d, s%d, %d" % (sT[0], sT[0], QP))
    for k in range(4):
        tag(hD + k)
    a("  s_mov_b64 exec, s[%d:%d]" % (sLo8, sLo8 + 1))
    a("  buffer_store_dwordx4 v[%d:%d], v%d, s[%d:%d], s%d offen sc1" % (hD, hD + 3, T0, sWs, sWs + 3, sT[0]))
    a("  s_mov_b64 exec, -1")
    stamp("QP stored")
    a("  s_lshl_b32 s%d, s%d, 2" % (sT[0], sHq))
    a("  s_add_u32 s%d, s%d, s%d" % (sT[0], sT[0], sHW))
    a("  s_lshl_b32 s%d, s%d, 15" % (sT[0], sT[0]))
    a("  s_lshl_b32 s%d, s%d, 7" % (sT[1], sB))
    a("  s_add_u32 s%d, s%d, s%d" % (sT[0], sT[0], sT[1]))
    a("  s_lshl_b32 s%d, s%d, 12" % (sWoStg, sHW))
    a("  s_add_u32 s%d, s%d, %d" % (sWoStg, sWoStg, WOS))
    for n in range(4):
        a("  s_add_u32 m0, s%d, %d" % (sWoStg, n * 1024))
        if n:
            a("  s_add_u32 s%d, s%d, 8192" % (sT[0], sT[0]))
        else:
            a("  s_nop 0")
        a("  buffer_load_dwordx4 v%d, s[%d:%d], s%d offen nt lds" % (hW1k, sWo, sWo + 3, sT[0]))
    a("  s_waitcnt vmcnt(5)")
    lds_add(hMisc, F_H3, hOne)
    lds_wait(hMisc, F_H3, 4, T5)
    stamp("Hsync3")
    tile_compute(sKb2, 65536)
    lds_add(hMisc, F_STG, hOne)
    a("  v_lshlrev_b32 v%d, 8, v%d" % (T0, hI))
    a("  v_lshl_add_u32 v%d, v%d, 4, v%d" % (T0, hG, T0))
    a("  s_lshl_b32 s%d, s%d, 6" % (sT[0], sHW))
    a("  v_add_u32 v%d, s%d, v%d" % (T0, sT[0], T0))
    a("  s_and_b32 s%d, s%d, 7" % (sT[0], sFi))
    a("  s_mul_i32 s%d, s%d, 28" % (sT[0], sT[0]))
    a("  s_lshr_b32 s%d, s%d, 3" % (sT[1], sFi))
    a("  s_add_u32 s%d, s%d, s%d" % (sT[0], sT[0], sT[1]))
    a("  s_lshl_b32 s%d, s%d, 11" % (sT[0], sT[0]))
    a("  s_add_u32 s%d, s%d, %d" % (sT[0], sT[0], GP))
    hGp, hGpOff, sGpS = 192, 196, 59
    for k in range(4):
        tag(hD + k)
    if gplocal:
        for k in range(4):
            a("  v_mov_b32 v%d, v%d" % (hGp + k, hD + k))
        a("  v_mov_b32 v%d, v%d" % (hGpOff, T0))
        a("  s_mov_b32 s%d, s%d" % (sGpS, sT[0]))
    else:
        lg = a.lab("Lg")
        a("  s_cmp_eq_u32 s%d, 0" % sFv)
        a("  s_cbranch_scc1 %s" % lg)
        a("  s_mov_b64 exec, s[%d:%d]" % (sLo8, sLo8 + 1))
        a("  buffer_store_dwordx4 v[%d:%d], v%d, s[%d:%d], s%d offen sc1" % (hD, hD + 3, T0, sWs, sWs + 3, sT[0]))
        a("  s_mov_b64 exec, -1")
        a("%s:" % lg)

    def gp_store(have_loc):
        if not gplocal:
            return
        if not have_loc:
            lds_wait(hMisc, F_LOC, 1, T5, sleep=8)
            a("  s_lshr_b32 s%d, s%d, 1" % (sLoc, sT[7]))
        lg = a.lab("Lg")
        a("  s_cmp_eq_u32 s%d, 0" % sFv)
        a("  s_cbranch_scc1 %s" % lg)
        a("  s_mov_b64 exec, s[%d:%d]" % (sLo8, sLo8 + 1))
        store_loc(["  buffer_store_dwordx4 v[%d:%d], v%d, s[%d:%d], s%d offen" % (hGp, hGp + 3, hGpOff, sWs, sWs + 3, sGpS)], sLoc)
        a("  s_mov_b64 exec, -1")
        a("%s:" % lg)
    stamp("tile1 done")
    a("  v_lshrrev_b32 v%d, 5, v0" % T0)
    a("  v_lshlrev_b32 v%d, 14, v%d" % (T0, T0))
    a("  v_and_b32 v%d, 31, v0" % T1)
    a("  v_lshl_add_u32 v%d, v%d, 4, v%d" % (T0, T1, T0))
    a("  s_lshl_b32 s%d, s%d, 9" % (sT[0], sHW))
    a("  v_add_u32 v%d, s%d, v%d" % (T0, sT[0], T0))
    a("  s_lshl_b32 s%d, s%d, 16" % (sT[0], sX))
    a("  s_lshl_b32 s%d, s%d, 11" % (sT[1], sB))
    a("  s_add_u32 s%d, s%d, s%d" % (sT[0], sT[0], sT[1]))
    if QP:
        a("  s_add_u32 s%d, s%d, %d" % (sT[0], sT[0], QP))
    a("  s_add_u32 s%d, s%d, 32768" % (sT[1], sT[0]))
    a("  s_mul_i32 s%d, s%d, %d" % (sT[2], sHW, QL_STRIDE))
    a("  s_add_u32 s%d, s%d, %d" % (sT[2], sT[2], QL))
    a("  v_lshlrev_b32 v%d, 3, v%d" % (T1, T1))
    a("  v_add_u32 v%d, s%d, v%d" % (T1, sT[2], T1))
    lr, lo = a.lab("Lr"), a.lab("Lo")
    a("  s_mov_b32 s%d, 0" % sCnt)
    a("%s:" % lr)
    NT = " nt" if gnt & 1 else ""
    a("  buffer_load_dwordx4 v[%d:%d], v%d, s[%d:%d], s%d offen sc1%s" % (hA, hA + 3, T0, sWs, sWs + 3, sT[0], NT))
    a("  buffer_load_dwordx4 v[%d:%d], v%d, s[%d:%d], s%d offen sc1%s" % (hA + 4, hA + 7, T0, sWs, sWs + 3, sT[1], NT))
    a("  s_waitcnt vmcnt(0)")
    tag_retry(range(hA, hA + 8), lr, lo, T2, T3, 2)
    a("%s:" % lo)
    a("  s_mov_b64 exec, -1")
    stamp("Q ok")
    untag(range(hA, hA + 8))
    pk("v_pk_add_f32", hA, hA, hA + 4)
    pk("v_pk_add_f32", hA + 2, hA + 2, hA + 6)
    for k in range(4):
        a("  v_mov_b32 v%d, v%d" % (hA + 4 + k, hA + k))
    a("  s_nop 1")
    for k in range(4):
        a("  v_permlane32_swap_b32 v%d, v%d" % (hA + k, hA + 4 + k))
    pk("v_pk_add_f32", hA, hA, hA + 4)
    pk("v_pk_add_f32", hA + 2, hA + 2, hA + 6)
    a("  v_cvt_pk_bf16_f32 v%d, v%d, v%d" % (hA, hA, hA + 1))
    a("  v_cvt_pk_bf16_f32 v%d, v%d, v%d" % (hA + 1, hA + 2, hA + 3))
    a("  s_mov_b32 exec_hi, 0")
    a("  ds_write_b64 v%d, v[%d:%d]" % (T1, hA, hA + 1))
    a("  s_mov_b64 exec, -1")
    a("  s_waitcnt lgkmcnt(0)")
    lds_add(hMisc, F_QRDY, hOne)
    stamp("Q rdy")

    a("  v_add_u32 v%d, s%d, v%d" % (T0, sWoStg, hTrG))
    l3 = a.lab("L3")
    a("  s_cmp_lg_u32 s%d, 3" % sHW)
    a("  s_cbranch_scc1 %s" % l3)
    a("  s_lshr_b32 s%d, s%d, 3" % (sT[0], sFi))
    a("  s_lshl_b32 s%d, s%d, 16" % (sT[1], sT[0]))
    a("  s_and_b32 s%d, s%d, 7" % (sT[2], sFi))
    a("  s_lshl_b32 s%d, s%d, 7" % (sT[2], sT[2]))
    a("  s_add_u32 s%d, s%d, s%d" % (sT[1], sT[1], sT[2]))
    for n in range(4):
        a("  s_mov_b32 m0, %d" % (SPARE + n * 1024))
        if n:
            a("  s_add_u32 s%d, s%d, 8192" % (sT[1], sT[1]))
        else:
            a("  s_nop 0")
        a("  buffer_load_dwordx4 v%d, s[%d:%d], s%d offen nt lds" % (hW1k, sWd, sWd + 3, sT[1]))
    a("%s:" % l3)
    for ct in range(4):
        r = hW + ct * 4
        a("  ds_read_b64_tr_b16 v[%d:%d], v%d offset:%d" % (r, r + 1, T0, ct * 32))
        a("  ds_read_b64_tr_b16 v[%d:%d], v%d offset:%d" % (r + 2, r + 3, T0, ct * 32 + 512))
    a("  s_waitcnt lgkmcnt(0)")
    l4 = a.lab("L4")
    a("  s_cmp_lg_u32 s%d, 3" % sHW)
    a("  s_cbranch_scc1 %s" % l4)
    for n in range(4):
        a("  s_add_u32 m0, s%d, %d" % (sWoStg, n * 1024))
        a("  s_add_u32 s%d, s%d, 8192" % (sT[1], sT[1]))
        a("  buffer_load_dwordx4 v%d, s[%d:%d], s%d offen nt lds" % (hW1k, sWd, sWd + 3, sT[1]))
    a("  v_add_u32 v%d, %d, v%d" % (T1, SPARE, hTrG))
    a("  s_waitcnt vmcnt(4)")
    for ct in range(4):
        r = hWd + ct * 8
        a("  ds_read_b64_tr_b16 v[%d:%d], v%d offset:%d" % (r, r + 1, T1, ct * 32))
        a("  ds_read_b64_tr_b16 v[%d:%d], v%d offset:%d" % (r + 2, r + 3, T1, ct * 32 + 512))
    a("  s_waitcnt vmcnt(0)")
    for ct in range(4):
        r = hWd + ct * 8 + 4
        a("  ds_read_b64_tr_b16 v[%d:%d], v%d offset:%d" % (r, r + 1, T0, ct * 32))
        a("  ds_read_b64_tr_b16 v[%d:%d], v%d offset:%d" % (r + 2, r + 3, T0, ct * 32 + 512))
    a("  s_waitcnt lgkmcnt(0)")
    a("%s:" % l4)
    stamp("wo frags")

    a("  s_lshl_b32 s%d, s%d, 5" % (sFidx, sB))
    a("  s_add_u32 s%d, s%d, s%d" % (sFidx, sFidx, sHq))
    a("  v_and_b32 v%d, 3, v0" % T0)
    a("  v_lshlrev_b32 v%d, 3, v%d" % (T0, T0))
    a("  s_lshl_b32 s%d, s%d, 5" % (sT[0], sFidx))
    a("  v_add_u32 v%d, s%d, v%d" % (hOutOff, sT[0], T0))
    if noffn:
        a("  s_branch L_B1")
    a("  s_cmp_eq_u32 s%d, 1" % sHW)
    a("  s_cbranch_scc1 %s" % ("L_B1" if skip & 1 else "L_ffn"))
    a("  s_cmp_eq_u32 s%d, 2" % sHW)
    a("  s_cbranch_scc1 %s" % ("L_B1" if skip & 2 else "L_stats"))
    a("  s_cmp_eq_u32 s%d, 0" % sHW)
    a("  s_cbranch_scc1 %s" % ("L_B1" if skip & 5 else "L_fin_prep"))
    a("  s_branch %s" % ("L_B1" if skip & 9 else "L_down"))

    a("L_ffn:")
    a("  s_mov_b32 s%d, 256" % (sDbg + 2))
    a("  s_mov_b32 s%d, 0x20000" % (sDbg + 3))
    a("  s_lshl_b32 s%d, s%d, 5" % (sT[0], sX))
    a("  v_mov_b32 v%d, s%d" % (T0, sT[0]))
    if not early_census:
        a("  s_getreg_b32 s%d, hwreg(HW_REG_XCC_ID, 0, 3)" % sT[4])
        a("  s_lshl_b32 s%d, s%d, 3" % (sT[4], sT[4]))
        a("  s_lshl_b64 s[%d:%d], 1, s%d" % (sT[6], sT[7], sT[4]))
        a("  v_mov_b32 v%d, s%d" % (hA, sT[6]))
        a("  v_mov_b32 v%d, s%d" % (hA + 1, sT[7]))
        a("  s_mov_b64 exec, 1")
        a("  buffer_atomic_add_x2 v[%d:%d], v%d, s[%d:%d], 0 offen sc1" % (hA, hA + 1, T0, sDbg, sDbg + 3))
        a("  s_mov_b64 exec, -1")
        lds_wait(hMisc, F_MID, 1, T5, sleep=8)
    a("  s_waitcnt vmcnt(0)")
    lr, lo = a.lab("Lr"), a.lab("Lo")
    a("  s_mov_b32 s%d, 0" % sCnt)
    a("  s_mov_b64 exec, 1")
    a("%s:" % lr)
    a("  buffer_load_dwordx2 v[%d:%d], v%d, s[%d:%d], 0 offen sc1" % (hA, hA + 1, T0, sDbg, sDbg + 3))
    a("  s_waitcnt vmcnt(0)")
    a("  v_readfirstlane_b32 s%d, v%d" % (sT[2], hA))
    a("  v_readfirstlane_b32 s%d, v%d" % (sT[3], hA + 1))
    a("  s_and_b32 s%d, s%d, 0x00ff00ff" % (sT[4], sT[2]))
    a("  s_lshr_b32 s%d, s%d, 8" % (sT[5], sT[2]))
    a("  s_and_b32 s%d, s%d, 0x00ff00ff" % (sT[5], sT[5]))
    a("  s_add_u32 s%d, s%d, s%d" % (sT[4], sT[4], sT[5]))
    a("  s_and_b32 s%d, s%d, 0x00ff00ff" % (sT[5], sT[3]))
    a("  s_add_u32 s%d, s%d, s%d" % (sT[4], sT[4], sT[5]))
    a("  s_lshr_b32 s%d, s%d, 8" % (sT[5], sT[3]))
    a("  s_and_b32 s%d, s%d, 0x00ff00ff" % (sT[5], sT[5]))
    a("  s_add_u32 s%d, s%d, s%d" % (sT[4], sT[4], sT[5]))
    a("  s_lshr_b32 s%d, s%d, 16" % (sT[5], sT[4]))
    a("  s_and_b32 s%d, s%d, 0xffff" % (sT[4], sT[4]))
    a("  s_add_u32 s%d, s%d, s%d" % (sT[4], sT[4], sT[5]))
    a("  s_cmp_ge_u32 s%d, 32" % sT[4])
    a("  s_cbranch_scc1 %s" % lo)
    a("  s_add_u32 s%d, s%d, 1" % (sCnt, sCnt))
    a("  s_cmp_lt_u32 s%d, %d" % (sCnt, SPIN_LIMIT))
    a("  s_cbranch_scc0 %s" % lo)
    a("  s_sleep 32")
    a("  s_branch %s" % lr)
    a("%s:" % lo)
    a("  s_mov_b64 exec, -1")
    a("  s_getreg_b32 s%d, hwreg(HW_REG_XCC_ID, 0, 3)" % sT[4])
    a("  s_lshl_b32 s%d, s%d, 3" % (sT[4], sT[4]))
    a("  s_lshr_b64 s[%d:%d], s[%d:%d], s%d" % (sT[2], sT[3], sT[2], sT[3], sT[4]))
    a("  s_and_b32 s%d, s%d, 0xff" % (sT[2], sT[2]))
    a("  s_cmp_eq_u32 s%d, 32" % sT[2])
    a("  s_cselect_b32 s%d, %d, 1" % (sT[2], 2 if uselocal else 1))
    a("  v_mov_b32 v%d, s%d" % (T0, sT[2]))
    a("  s_mov_b64 exec, 1")
    a("  ds_write_b32 v%d, v%d offset:%d" % (hMisc, T0, F_LOC))
    a("  s_mov_b64 exec, -1")
    a("  s_lshr_b32 s%d, s%d, 1" % (sLoc, sT[2]))
    gp_store(True)
    a("  s_cmp_eq_u32 s%d, 0" % sFv)
    a("  s_cbranch_scc1 L_ffn_done")
    a("  s_lshr_b32 s%d, s%d, 3" % (sT[0], sFi))
    a("  v_mul_u32_u24 v%d, %d, v%d" % (T0, 28 * 2048, hG))
    a("  v_lshl_add_u32 v%d, v%d, 4, v%d" % (T0, hI, T0))
    a("  s_lshl_b32 s%d, s%d, 11" % (sT[1], sT[0]))
    a("  s_and_b32 s%d, s%d, 7" % (sT[2], sFi))
    a("  s_lshl_b32 s%d, s%d, 8" % (sT[2], sT[2]))
    a("  s_add_u32 s%d, s%d, s%d" % (sT[1], sT[1], sT[2]))
    a("  s_add_u32 s%d, s%d, %d" % (sT[1], sT[1], GP))
    a("  s_add_u32 s%d, s%d, %d" % (sT[2], sT[1], 4 * 28 * 2048))
    lr, lo = a.lab("Lr"), a.lab("Lo")
    a("  s_mov_b32 s%d, 0" % sCnt)
    a("%s:" % lr)
    NT = " nt" if gnt & 2 else ""
    a("  buffer_load_dwordx4 v[%d:%d], v%d, s[%d:%d], s%d offen sc1%s" % (hA, hA + 3, T0, sWs, sWs + 3, sT[1], NT))
    a("  buffer_load_dwordx4 v[%d:%d], v%d, s[%d:%d], s%d offen sc1%s" % (hA + 4, hA + 7, T0, sWs, sWs + 3, sT[2], NT))
    a("  s_waitcnt vmcnt(0)")
    tag_retry(range(hA, hA + 8), lr, lo, T2, T3, 8 if gplocal else ffn_sleep)
    a("%s:" % lo)
    a("  s_mov_b64 exec, -1")
    untag(range(hA, hA + 8))
    for kind in (16, 32):
        for k in range(8):
            a("  v_mov_b32 v%d, v%d" % (hA + 8 + k, hA + k))
        a("  s_nop 1")
        for k in range(8):
            a("  v_permlane%d_swap_b32 v%d, v%d" % (kind, hA + k, hA + 8 + k))
        for k in range(0, 8, 2):
            pk("v_pk_add_f32", hA + k, hA + k, hA + 8 + k)
    g0, u0 = hA, hA + 4
    for k in range(8):
        round_bf16(hA + k)
    a("  s_mov_b32 s%d, 0xBFB8AA3B      ; -log2(e)" % sT[2])
    for k in range(4):
        a("  v_mul_f32 v%d, s%d, v%d" % (g0 + k, sT[2], g0 + k))
    for k in range(4):
        a("  v_exp_f32 v%d, v%d" % (g0 + k, g0 + k))
    a("  s_nop 0")
    for k in range(4):
        a("  v_add_f32 v%d, 1.0, v%d" % (g0 + k, g0 + k))
    for k in range(4):
        a("  v_rcp_f32 v%d, v%d" % (g0 + k, g0 + k))
    a("  s_nop 0")
    for k in range(4):
        round_bf16(g0 + k)
    for k in range(4):
        a("  v_mul_f32 v%d, v%d, v%d" % (g0 + k, g0 + k, u0 + k))
    for k in range(4):
        round_bf16(g0 + k)
    for k in range(4):
        a("  v_or_b32 v%d, v%d, v%d" % (g0 + k, g0 + k, hTag))
    a("  v_lshlrev_b32 v%d, 4, v0" % T0)
    a("  s_lshl_b32 s%d, s%d, 8" % (sT[1], sFi))
    a("  s_add_u32 s%d, s%d, %d" % (sT[1], sT[1], HH))
    a("  s_mov_b64 exec, 0xffff")
    store_loc(["  buffer_store_dwordx4 v[%d:%d], v%d, s[%d:%d], s%d offen" % (g0, g0 + 3, T0, sWs, sWs + 3, sT[1])], sLoc)
    a("  s_mov_b64 exec, -1")
    a("L_ffn_done:")
    lds_add(hMisc, F_RED, hOne)
    lds_wait(hMisc, F_EWS, 1, T5, sleep=4)
    for k in range(4):
        a("  v_mov_b32 v%d, v%d" % (hA + k, hTag))
    a("  s_lshl_b32 s%d, s%d, 9" % (sT[0], sX))
    a("  s_lshl_b32 s%d, s%d, 4" % (sT[1], sLi))
    a("  s_add_u32 s%d, s%d, s%d" % (sT[0], sT[0], sT[1]))
    a("  s_add_u32 s%d, s%d, %d" % (sT[0], sT[0], EW))
    a("  v_mov_b32 v%d, 0" % T0)
    a("  s_mov_b64 exec, 1")
    store_loc(["  buffer_store_dwordx4 v[%d:%d], v%d, s[%d:%d], s%d offen" % (hA, hA + 3, T0, sWs, sWs + 3, sT[0])], sLoc)
    a("  s_mov_b64 exec, -1")
    a("  s_branch L_B1")

    a("L_down:")
    gp_store(False)
    a("  s_cmp_eq_u32 s%d, 0" % sFv)
    a("  s_cbranch_scc1 L_down_done")
    lds_wait(hMisc, F_RED, 1, T5, sleep=8)
    a("  s_lshr_b32 s%d, s%d, 3" % (sT[0], sFi))
    a("  v_and_b32 v%d, 7, v%d" % (T0, hI))
    a("  v_lshlrev_b32 v%d, 8, v%d" % (T0, T0))
    a("  v_lshl_add_u32 v%d, v%d, 5, v%d" % (T0, hG, T0))
    a("  s_lshl_b32 s%d, s%d, 11" % (sT[1], sT[0]))
    a("  s_add_u32 s%d, s%d, %d" % (sT[1], sT[1], HH))
    lr, lo = a.lab("Lr"), a.lab("Lo")
    a("  s_mov_b32 s%d, 0" % sCnt)
    a("%s:" % lr)
    for k in range(4):
        a("  buffer_load_dwordx4 v[%d:%d], v%d, s[%d:%d], s%d offen offset:%d sc1" % (hA + 4 * k, hA + 4 * k + 3, T0, sWs, sWs + 3, sT[1], (k >> 1) * 128 + (k & 1) * 16))
    a("  s_waitcnt vmcnt(0)")
    tag_retry(range(hA, hA + 16), lr, lo, T2, T3, ffn_sleep)
    a("%s:" % lo)
    a("  s_mov_b64 exec, -1")
    a("  s_mov_b32 s%d, 0x07060302" % sT[2])
    for k in range(8):
        a("  v_perm_b32 v%d, v%d, v%d, s%d" % (hB + k, hA + 2 * k + 1, hA + 2 * k, sT[2]))
    a("  s_nop 1")
    for ct in range(4):
        d = hD + ct * 4
        r = hWd + ct * 8
        a("  v_mfma_f32_16x16x32_bf16 v[%d:%d], v[%d:%d], v[%d:%d], 0" % (d, d + 3, r, r + 3, hB, hB + 3))
        a("  v_mfma_f32_16x16x32_bf16 v[%d:%d], v[%d:%d], v[%d:%d], v[%d:%d]" % (d, d + 3, r + 4, r + 7, hB + 4, hB + 7, d, d + 3))
    a("  v_lshlrev_b32 v%d, 16, v%d" % (T0, hI))
    a("  v_lshl_add_u32 v%d, v%d, 4, v%d" % (T0, hG, T0))
    a("  s_and_b32 s%d, s%d, 7" % (sT[1], sFi))
    a("  s_lshl_b32 s%d, s%d, 13" % (sT[1], sT[1]))
    a("  s_lshl_b32 s%d, s%d, 6" % (sT[2], sT[0]))
    a("  s_add_u32 s%d, s%d, s%d" % (sT[1], sT[1], sT[2]))
    a("  s_add_u32 s%d, s%d, %d" % (sT[1], sT[1], DP))
    a("  s_nop 7")
    for i in range(16):
        tag(hD + i)
    a("  s_mov_b64 exec, s[%d:%d]" % (sLo8, sLo8 + 1))
    for ct in range(4):
        a("  buffer_store_dwordx4 v[%d:%d], v%d, s[%d:%d], s%d offen sc1" % (hD + ct * 4, hD + ct * 4 + 3, T0, sWs, sWs + 3, sT[1]))
        if ct < 3:
            a("  s_add_u32 s%d, s%d, 2048" % (sT[1], sT[1]))
    a("  s_mov_b64 exec, -1")
    a("  s_waitcnt vmcnt(0)")
    a("L_down_done:")
    lds_add(hMisc, F_DOWN, hOne)
    a("  s_branch L_B1")

    a("L_stats:")
    gp_store(False)
    lds_wait(hMisc, F_ST, 4, T5, sleep=st_sleep)
    a("  v_lshl_add_u32 v%d, v%d, 3, v%d" % (T0, hI, hMisc))
    mw, lw = hA, hA + 1
    a("  ds_read_b64 v[%d:%d], v%d offset:%d" % (mw, mw + 1, T0, SSTAT))
    a("  s_waitcnt lgkmcnt(0)")
    Mg, Lg, t_ = hA + 4, hA + 5, hA + 2
    a("  v_mov_b32 v%d, v%d" % (Mg, mw))
    a("  s_nop 1")
    a("  v_max_f32_dpp v%d, v%d, v%d row_ror:4 %s" % (Mg, Mg, Mg, DPP))
    a("  s_nop 1")
    a("  v_max_f32_dpp v%d, v%d, v%d row_ror:8 %s" % (Mg, Mg, Mg, DPP))
    a("  s_mov_b32 s%d, 0x3FB8AA3B" % sT[2])
    a("  v_sub_f32 v%d, v%d, v%d" % (t_, mw, Mg))
    a("  v_mul_f32 v%d, s%d, v%d" % (t_, sT[2], t_))
    a("  v_exp_f32 v%d, v%d" % (t_, t_))
    a("  s_nop 0")
    a("  v_mul_f32 v%d, v%d, v%d" % (Lg, lw, t_))
    a("  s_nop 1")
    a("  v_add_f32_dpp v%d, v%d, v%d row_ror:4 %s" % (Lg, Lg, Lg, DPP))
    a("  s_nop 1")
    a("  v_add_f32_dpp v%d, v%d, v%d row_ror:8 %s" % (Lg, Lg, Lg, DPP))
    a("  s_nop 1")
    a("  v_mov_b32_dpp v%d, v%d row_shl:1 %s bound_ctrl:0" % (Mg + 2, Mg, DPP))
    a("  v_mov_b32_dpp v%d, v%d row_shl:1 %s bound_ctrl:0" % (Mg + 3, Lg, DPP))
    a("  s_lshl_b32 s%d, s%d, 3" % (sT[0], sB))
    a("  s_add_u32 s%d, s%d, s%d" % (sT[0], sT[0], sX))
    a("  s_lshl_b32 s%d, s%d, 7" % (sT[0], sT[0]))
    a("  s_add_u32 s%d, s%d, %d" % (sT[0], sT[0], ST))
    a("  s_lshl_b32 s%d, s%d, 5" % (sT[1], sJ))
    a("  s_add_u32 s%d, s%d, s%d" % (sT[1], sT[1], sT[0]))
    for k in range(4):
        tag(Mg + k)
    a("  v_lshlrev_b32 v%d, 3, v%d" % (T1, hI))
    lds_wait(hMisc, F_LOC, 1, T5)
    a("  s_lshr_b32 s%d, s%d, 1" % (sLoc, sT[7]))
    a("  s_mov_b64 exec, 5")
    store_loc(["  buffer_store_dwordx4 v[%d:%d], v%d, s[%d:%d], s%d offen" % (Mg, Mg + 3, T1, sWs, sWs + 3, sT[1])], sLoc)
    a("  s_mov_b64 exec, -1")
    a("  v_lshrrev_b32 v%d, 1, v%d" % (T1, hI))
    a("  v_lshlrev_b32 v%d, 4, v%d" % (T1, T1))
    mj = hA + 8
    lr, lo = a.lab("Lr"), a.lab("Lo")
    a("  s_mov_b32 s%d, 0" % sCnt)
    a("%s:" % lr)
    a("  buffer_load_dwordx4 v[%d:%d], v%d, s[%d:%d], s%d offen sc1" % (mj, mj + 3, T1, sWs, sWs + 3, sT[0]))
    a("  s_waitcnt vmcnt(0)")
    tag_retry(range(mj, mj + 4), lr, lo, T2, T3, ffn_sleep)
    a("%s:" % lo)
    a("  s_mov_b64 exec, -1")
    a("  v_and_b32 v%d, 1, v%d" % (T2, hI))
    a("  v_cmp_eq_u32 vcc, 1, v%d" % T2)
    a("  s_nop 1")
    a("  v_cndmask_b32 v%d, v%d, v%d, vcc" % (mj, mj, mj + 2))
    a("  v_cndmask_b32 v%d, v%d, v%d, vcc" % (mj + 1, mj + 1, mj + 3))
    lj = mj + 1
    a("  v_and_b32 v%d, s%d, v%d" % (mj, sNotFF, mj))
    a("  v_and_or_b32 v%d, v%d, s%d, v%d" % (lj, lj, sNotFF, hMid))
    M2, L2 = hA + 12, hA + 13
    a("  v_mov_b32 v%d, v%d" % (M2, mj))
    a("  s_nop 1")
    a("  v_max_f32_dpp v%d, v%d, v%d row_ror:4 %s" % (M2, M2, M2, DPP))
    a("  s_nop 1")
    a("  v_max_f32_dpp v%d, v%d, v%d row_ror:8 %s" % (M2, M2, M2, DPP))
    a("  v_sub_f32 v%d, v%d, v%d" % (t_, mj, M2))
    a("  v_mul_f32 v%d, s%d, v%d" % (t_, sT[2], t_))
    a("  v_exp_f32 v%d, v%d" % (t_, t_))
    a("  s_nop 0")
    a("  v_mul_f32 v%d, v%d, v%d" % (L2, lj, t_))
    a("  s_nop 1")
    a("  v_add_f32_dpp v%d, v%d, v%d row_ror:4 %s" % (L2, L2, L2, DPP))
    a("  s_nop 1")
    a("  v_add_f32_dpp v%d, v%d, v%d row_ror:8 %s" % (L2, L2, L2, DPP))
    a("  v_sub_f32 v%d, v%d, v%d" % (t_, mw, M2))
    a("  v_mul_f32 v%d, s%d, v%d" % (t_, sT[2], t_))
    a("  v_exp_f32 v%d, v%d" % (t_, t_))
    a("  v_rcp_f32 v%d, v%d" % (L2, L2))
    a("  s_nop 0")
    a("  v_mul_f32 v%d, v%d, v%d" % (t_, t_, L2))
    a("  v_and_b32 v%d, 3, v%d" % (T0, hI))
    a("  v_lshlrev_b32 v%d, 4, v%d" % (T0, T0))
    a("  v_lshrrev_b32 v%d, 2, v%d" % (T1, hI))
    a("  v_lshl_add_u32 v%d, v%d, 2, v%d" % (T0, T1, T0))
    a("  v_add_u32 v%d, v%d, v%d" % (T0, T0, hMisc))
    a("  s_mov_b64 exec, 0xffff")
    a("  ds_write_b32 v%d, v%d offset:%d" % (T0, t_, FFAC))
    a("  s_mov_b64 exec, -1")
    a("  s_waitcnt lgkmcnt(0)")
    if nob1:
        lds_add(hMisc, F_F, hOne)
    a("  s_branch L_B1")

    def reduce_hd(base, tmp):
        a("  s_nop 1")
        for k in range(4):
            a("  v_add_f32_dpp v%d, v%d, v%d row_ror:4 %s" % (base + k, base + k, base + k, DPP))
        a("  s_nop 1")
        for k in range(4):
            a("  v_add_f32_dpp v%d, v%d, v%d row_ror:8 %s" % (base + k, base + k, base + k, DPP))
        for kind in (16, 32):
            for k in range(4):
                a("  v_mov_b32 v%d, v%d" % (tmp + k, base + k))
            a("  s_nop 1")
            for k in range(4):
                a("  v_permlane%d_swap_b32 v%d, v%d" % (kind, base + k, tmp + k))
            pk("v_pk_add_f32", base, base, tmp)
            pk("v_pk_add_f32", base + 2, base + 2, tmp + 2)

    a("L_fin_prep:")
    gp_store(False)
    lds_wait(hMisc, F_LATE, 1, T5, sleep=8)
    a("  buffer_load_dwordx2 v[%d:%d], v%d, s[%d:%d], 0 offen" % (hA + 8, hA + 9, hOutOff, sXd, sXd + 3))
    a("  v_lshlrev_b32 v%d, 4, v0" % T0)
    a("  s_lshl_b32 s%d, s%d, 11" % (sT[0], sFidx))
    a("  s_add_u32 s%d, s%d, %d" % (sT[0], sT[0], DP))
    for k in range(4):
        a("  v_mov_b32 v%d, v%d" % (hA + 4 + k, hTag))
    lr, lo = a.lab("Lr"), a.lab("Lo")
    a("  s_mov_b32 s%d, 0" % sCnt)
    a("%s:" % lr)
    NT = " nt" if gnt & 4 else ""
    a("  buffer_load_dwordx4 v[%d:%d], v%d, s[%d:%d], s%d offen sc1%s" % (hA, hA + 3, T0, sWs, sWs + 3, sT[0], NT))
    a("  s_mov_b64 s[%d:%d], exec" % (sT[4], sT[5]))
    a("  s_and_b32 exec_hi, exec_hi, 0xffff")
    ls = a.lab("Ls")
    a("  s_cbranch_execz %s" % ls)
    a("  buffer_load_dwordx4 v[%d:%d], v%d, s[%d:%d], s%d offen offset:1024 sc1%s" % (hA + 4, hA + 7, T0, sWs, sWs + 3, sT[0], NT))
    a("%s:" % ls)
    a("  s_mov_b64 exec, s[%d:%d]" % (sT[4], sT[5]))
    a("  s_waitcnt vmcnt(0)")
    tag_retry(range(hA, hA + 8), lr, lo, T2, T3, ffn_sleep)
    a("%s:" % lo)
    a("  s_mov_b64 exec, -1")
    untag(range(hA, hA + 8))
    pk("v_pk_add_f32", hA, hA, hA + 4)
    pk("v_pk_add_f32", hA + 2, hA + 2, hA + 6)
    reduce_hd(hA, hA + 4)
    hGv = hXf + 4
    for k in range(4):
        round_bf16(hA + k)
    a("  s_mov_b32 s%d, 0xBFB8AA3B" % sT[2])
    for k in range(4):
        a("  v_mul_f32 v%d, s%d, v%d" % (hA + 4 + k, sT[2], hA + k))
    for k in range(4):
        a("  v_exp_f32 v%d, v%d" % (hA + 4 + k, hA + 4 + k))
    a("  s_nop 0")
    for k in range(4):
        a("  v_add_f32 v%d, 1.0, v%d" % (hA + 4 + k, hA + 4 + k))
    for k in range(4):
        a("  v_rcp_f32 v%d, v%d" % (hA + 4 + k, hA + 4 + k))
    a("  s_nop 0")
    for k in range(4):
        a("  v_mul_f32 v%d, v%d, v%d" % (hGv + k, hA + k, hA + 4 + k))
    for k in range(4):
        round_bf16(hGv + k)
    a("  v_lshlrev_b32 v%d, 16, v%d" % (hXf, hA + 8))
    a("  v_and_b32 v%d, s%d, v%d" % (hXf + 1, sHi2, hA + 8))
    a("  v_lshlrev_b32 v%d, 16, v%d" % (hXf + 2, hA + 9))
    a("  v_and_b32 v%d, s%d, v%d" % (hXf + 3, sHi2, hA + 9))
    stamp("prep done")

    a("L_B1:")
    a("  v_lshlrev_b32 v%d, 7, v%d" % (T0, hI))
    a("  v_lshl_add_u32 v%d, v%d, 5, v%d" % (T0, hG, T0))
    a("  s_lshl_b32 s%d, s%d, 14" % (sT[0], sHq))
    a("  s_lshl_b32 s%d, s%d, 11" % (sT[1], sHW))
    a("  s_add_u32 s%d, s%d, s%d" % (sT[0], sT[0], sT[1]))
    a("  s_add_u32 s%d, s%d, %d" % (sT[0], sT[0], OP))
    a("  s_add_u32 s%d, s%d, 8192" % (sT[1], sT[0]))
    a("  v_lshlrev_b32 v%d, 8, v%d" % (T1, hG))
    a("  v_lshl_add_u32 v%d, v%d, 2, v%d" % (T1, hI, T1))
    a("  s_lshl_b32 s%d, s%d, 11" % (sT[2], sHW))
    a("  s_add_u32 s%d, s%d, %d" % (sT[2], sT[2], WOS))
    a("  v_add_u32 v%d, s%d, v%d" % (T1, sT[2], T1))
    hP0, hP1, hQ0 = 157, 158, 159
    sP, sQ = 57, 58
    sSelH = 55
    a("  s_mov_b32 s%d, 0x07060302" % sSelH)
    a("  s_sub_u32 s%d, s%d, 2" % (sT[3], sHW))
    a("  s_lshl_b32 s%d, s%d, 10" % (sT[4], sT[3]))
    a("  s_add_u32 s%d, s%d, %d" % (sT[4], sT[4], WOS))
    a("  v_lshlrev_b32 v%d, 8, v%d" % (hP0, hG))
    a("  v_lshl_add_u32 v%d, v%d, 4, v%d      ; g*256 + i*16" % (hP0, hI, hP0))
    a("  v_add_u32 v%d, s%d, v%d" % (hP0, sT[4], hP0))
    a("  v_lshlrev_b32 v%d, 16, v%d" % (hP1, hG))
    a("  v_lshrrev_b32 v%d, 3, v%d" % (T2, hI))
    a("  v_lshl_add_u32 v%d, v%d, 12, v%d" % (hP1, T2, hP1))
    a("  v_and_b32 v%d, 7, v%d" % (T2, hI))
    a("  v_lshl_add_u32 v%d, v%d, 4, v%d" % (hP1, T2, hP1))
    a("  s_lshl_b32 s%d, s%d, 18" % (sT[3], sT[3]))
    a("  s_lshl_b32 s%d, s%d, 13" % (sT[4], sB))
    a("  s_add_u32 s%d, s%d, s%d" % (sT[3], sT[3], sT[4]))
    a("  s_lshl_b32 s%d, s%d, 7" % (sT[4], sHq))
    a("  s_add_u32 s%d, s%d, s%d" % (sT[3], sT[3], sT[4]))
    a("  s_add_u32 s%d, s%d, %d" % (sP, sT[3], SP))
    a("  v_lshrrev_b32 v%d, 2, v0" % hQ0)
    a("  v_lshlrev_b32 v%d, 7, v%d" % (hQ0, hQ0))
    a("  v_and_b32 v%d, 3, v0" % T2)
    a("  v_lshl_add_u32 v%d, v%d, 4, v%d" % (hQ0, T2, hQ0))
    a("  s_lshr_b32 s%d, s%d, 1" % (sT[3], sFidx))
    a("  s_lshl_b32 s%d, s%d, 12" % (sT[3], sT[3]))
    a("  s_and_b32 s%d, s%d, 1" % (sT[4], sFidx))
    a("  s_lshl_b32 s%d, s%d, 6" % (sT[4], sT[4]))
    a("  s_add_u32 s%d, s%d, s%d" % (sT[3], sT[3], sT[4]))
    a("  s_add_u32 s%d, s%d, %d" % (sQ, sT[3], SP))
    lw0 = a.lab("Lew")
    a("  s_cmp_lg_u32 s%d, 0" % sHW)
    a("  s_cbranch_scc1 %s" % lw0)
    a("  v_lshlrev_b32 v%d, 4, v0" % T5)
    a("  s_lshl_b32 s%d, s%d, 9" % (sT[2], sX))
    a("  s_add_u32 s%d, s%d, %d" % (sT[2], sT[2], EW))
    lr, lo = a.lab("Lr"), a.lab("Lo")
    a("  s_mov_b32 s%d, 0" % sCnt)
    a("  s_mov_b32 exec_hi, 0")
    a("%s:" % lr)
    a("  buffer_load_dwordx4 v[%d:%d], v%d, s[%d:%d], s%d offen sc1" % (hA, hA + 3, T5, sWs, sWs + 3, sT[2]))
    a("  s_waitcnt vmcnt(0)")
    tag_retry(range(hA, hA + 4), lr, lo, T2, T3, 8)
    a("%s:" % lo)
    a("  s_mov_b64 exec, -1")
    if nob1:
        lw1 = a.lab("Lew")
        lds_add(hMisc, F_EW2, hOne)
        if gew:
            lg_ = a.lab("Lgew")
            a("  s_cmp_lg_u32 s%d, 0" % sLi)
            a("  s_cbranch_scc1 %s" % lg_)
            for k in range(4):
                a("  v_mov_b32 v%d, v%d" % (hA + k, hTag))
            a("  s_lshl_b32 s%d, s%d, 4" % (sT[2], sX))
            a("  s_add_u32 s%d, s%d, %d" % (sT[2], sT[2], GEW))
            a("  v_mov_b32 v%d, 0" % T5)
            a("  s_mov_b64 exec, 1")
            a("  buffer_store_dwordx4 v[%d:%d], v%d, s[%d:%d], s%d offen sc1" % (hA, hA + 3, T5, sWs, sWs + 3, sT[2]))
            a("  s_mov_b64 exec, -1")
            a("%s:" % lg_)
        a("  s_branch %s" % lw1)
        a("%s:" % lw0)
        lds_wait(hMisc, F_EW2, 1, T5, sleep=2)
        a("%s:" % lw1)
    else:
        a("%s:" % lw0)
        a("  s_barrier                      ; B1")
    stamp("B1")
    lr, lo = a.lab("Lr"), a.lab("Lo")
    a("  s_mov_b32 s%d, 0" % sCnt)
    for rt in range(2):
        a("  buffer_load_dwordx4 v[%d:%d], v%d, s[%d:%d], s%d offen sc1" % (hA + 8 * rt, hA + 8 * rt + 3, T0, sWs, sWs + 3, sT[rt]))
        a("  buffer_load_dwordx4 v[%d:%d], v%d, s[%d:%d], s%d offen offset:16 sc1" % (hA + 8 * rt + 4, hA + 8 * rt + 7, T0, sWs, sWs + 3, sT[rt]))
    if nob1 and gate_t0:
        lds_wait(hMisc, F_T0, 4, T5, sleep=1)
        a("  s_mov_b32 s%d, 0" % sCnt)
        a("  s_branch %s_c" % lr)
    else:
        a("  s_branch %s_c" % lr)
    a("%s:" % lr)
    for rt in range(2):
        a("  buffer_load_dwordx4 v[%d:%d], v%d, s[%d:%d], s%d offen sc1" % (hA + 8 * rt, hA + 8 * rt + 3, T0, sWs, sWs + 3, sT[rt]))
        a("  buffer_load_dwordx4 v[%d:%d], v%d, s[%d:%d], s%d offen offset:16 sc1" % (hA + 8 * rt + 4, hA + 8 * rt + 7, T0, sWs, sWs + 3, sT[rt]))
    a("%s_c:" % lr)
    a("  s_waitcnt vmcnt(0)")
    tag_retry(range(hA, hA + 16), lr, lo, T2, T3, hop_sleep)
    a("%s:" % lo)
    a("  s_mov_b64 exec, -1")
    stamp("hop1 ok")
    for k in range(8):
        a("  v_perm_b32 v%d, v%d, v%d, s%d" % (hB + k, hA + 2 * k + 1, hA + 2 * k, sSelH))
    a("  s_nop 1")
    for rt in range(2):
        for ct in range(4):
            d = hD + (rt * 4 + ct) * 4
            a("  v_mfma_f32_16x16x32_bf16 v[%d:%d], v[%d:%d], v[%d:%d], 0" % (d, d + 3, hB + 4 * rt, hB + 4 * rt + 3, hW + ct * 4, hW + ct * 4 + 3))
    a("  s_nop 0")
    for n in range(8):
        d = hD + n * 4
        pk("v_pk_add_f32", d, d, d + 2)
        a("  v_add_f32 v%d, v%d, v%d" % (d, d, d + 1))
    for rt in range(2):
        for ct in range(4):
            d = hD + (rt * 4 + ct) * 4
            a("  ds_write_b32 v%d, v%d offset:%d" % (T1, d, rt * 1024 + ct * 64))
    a("  s_waitcnt lgkmcnt(0)")
    a("  s_barrier")
    a("  s_cmp_eq_u32 s%d, 0" % sHW)
    a("  s_cbranch_scc1 L_hop2")
    a("  s_cmp_eq_u32 s%d, 1" % sHW)
    a("  s_cbranch_scc1 L_H_done")
    for w in range(4):
        a("  ds_read_b128 v[%d:%d], v%d offset:%d" % (hA + 4 * w, hA + 4 * w + 3, hP0, w * 2048))
    a("  s_waitcnt lgkmcnt(2)")
    for k in (0, 2):
        pk("v_pk_add_f32", hA + k, hA + k, hA + 4 + k)
    a("  s_waitcnt lgkmcnt(0)")
    for k in (0, 2):
        pk("v_pk_add_f32", hA + 8 + k, hA + 8 + k, hA + 12 + k)
    for k in (0, 2):
        pk("v_pk_add_f32", hA + k, hA + k, hA + 8 + k)
    for k in range(4):
        tag(hA + k)
    a("  buffer_store_dwordx4 v[%d:%d], v%d, s[%d:%d], s%d offen sc1" % (hA, hA + 3, hP1, sWs, sWs + 3, sP))
    a("  s_endpgm")

    a("L_hop2:")
    stamp("B2")

    def tag_check(rs, t0_, t1_):
        rs = list(rs)
        for k in range(0, len(rs), 4):
            a("  v_perm_b32 v%d, v%d, v%d, s%d" % (t1_, rs[k + 1], rs[k], sSelA))
            a("  v_perm_b32 v%d, v%d, v%d, s%d" % (t1_ + 1, rs[k + 3], rs[k + 2], sSelB))
            if k == 0:
                a("  v_or_b32 v%d, v%d, v%d" % (t0_, t1_, t1_ + 1))
                a("  v_xor_b32 v%d, s%d, v%d" % (t0_, sTag4, t0_))
            else:
                a("  v_or_b32 v%d, v%d, v%d" % (t1_, t1_, t1_ + 1))
                a("  v_xor_b32 v%d, s%d, v%d" % (t1_, sTag4, t1_))
                a("  v_or_b32 v%d, v%d, v%d" % (t0_, t0_, t1_))
        a("  v_cmp_ne_u32 vcc, 0, v%d" % t0_)

    FR = hA
    if gew:
        a("  v_lshlrev_b32 v%d, 4, v0" % T5)
        a("  s_mov_b32 s%d, %d" % (sT[2], GEW))
        lr, lo = a.lab("Lr"), a.lab("Lo")
        a("  s_mov_b32 s%d, 0" % sCnt)
        a("  s_mov_b64 exec, 0xff")
        a("%s:" % lr)
        a("  buffer_load_dwordx4 v[%d:%d], v%d, s[%d:%d], s%d offen sc1" % (hA, hA + 3, T5, sWs, sWs + 3, sT[2]))
        a("  s_waitcnt vmcnt(0)")
        tag_retry(range(hA, hA + 4), lr, lo, T2, T3, 4)
        a("%s:" % lo)
        a("  s_mov_b64 exec, -1")
    if pipe2:
        SA, SB, FR = hA, hA + 8, hB
        sMk = sT[4]
        def ld(R):
            a("  buffer_load_dwordx4 v[%d:%d], v%d, s[%d:%d], s%d offen sc1" % (R, R + 3, hQ0, sWs, sWs + 3, sQ))
            a("  buffer_load_dwordx4 v[%d:%d], v%d, s[%d:%d], s%d offen offset:2048 sc1" % (R + 4, R + 7, hQ0, sWs, sWs + 3, sQ))
        lp, ld_ = a.lab("Lp"), a.lab("Lpd")
        a("  s_mov_b64 s[%d:%d], -1" % (sMk, sMk + 1))
        a("  s_mov_b32 s%d, 0" % sCnt)
        ld(SA)
        a("%s:" % lp)
        for cur, nxt in ((SA, SB), (SB, SA)):
            ld(nxt)
            a("  s_waitcnt vmcnt(2)")
            tag_check(range(cur, cur + 8), T2, T3)
            lsk = a.lab("Lsk")
            a("  s_andn2_b64 exec, s[%d:%d], vcc" % (sMk, sMk + 1))
            a("  s_cbranch_execz %s" % lsk)
            for k in range(8):
                a("  v_mov_b32 v%d, v%d" % (FR + k, cur + k))
            a("%s:" % lsk)
            a("  s_mov_b64 s[%d:%d], vcc" % (sMk, sMk + 1))
            a("  s_cbranch_vccz %s" % ld_)
            a("  s_mov_b64 exec, vcc")
        a("  s_add_u32 s%d, s%d, 1" % (sCnt, sCnt))
        a("  s_cmp_lt_u32 s%d, %d" % (sCnt, SPIN_LIMIT))
        a("  s_cbranch_scc1 %s" % lp)
        a("%s:" % ld_)
        a("  s_mov_b64 exec, -1")
    else:
        lr, lo = a.lab("Lr"), a.lab("Lo")
        a("  s_mov_b32 s%d, 0" % sCnt)
        a("%s:" % lr)
        a("  buffer_load_dwordx4 v[%d:%d], v%d, s[%d:%d], s%d offen sc1" % (hA, hA + 3, hQ0, sWs, sWs + 3, sQ))
        a("  buffer_load_dwordx4 v[%d:%d], v%d, s[%d:%d], s%d offen offset:2048 sc1" % (hA + 4, hA + 7, hQ0, sWs, sWs + 3, sQ))
        a("  s_waitcnt vmcnt(0)")
        tag_retry(range(hA, hA + 8), lr, lo, T2, T3, h2_sleep)
        a("%s:" % lo)
        a("  s_mov_b64 exec, -1")
    stamp("hop2 ok")
    untag(range(FR, FR + 8))
    pk("v_pk_add_f32", FR, FR, FR + 4)
    pk("v_pk_add_f32", FR + 2, FR + 2, FR + 6)
    reduce_hd(FR, FR + 4)
    for k in range(4):
        round_bf16(FR + k)
    for k in range(4):
        a("  v_mul_f32 v%d, v%d, v%d" % (FR + k, FR + k, hGv + k))
    for k in range(4):
        round_bf16(FR + k)
    for k in range(4):
        a("  v_add_f32 v%d, v%d, v%d" % (FR + k, FR + k, hXf + k))
    a("  v_cvt_pk_bf16_f32 v%d, v%d, v%d" % (FR, FR, FR + 1))
    a("  v_cvt_pk_bf16_f32 v%d, v%d, v%d" % (FR + 1, FR + 2, FR + 3))
    a("  s_mov_b64 exec, 15")
    a("  buffer_store_dwordx2 v[%d:%d], v%d, s[%d:%d], 0 offen" % (FR, FR + 1, hOutOff, sOut, sOut + 3))
    a("  s_mov_b64 exec, -1")
    le = a.lab("Le")
    a("  s_cmp_lg_u32 s2, 0")
    a("  s_cbranch_scc1 %s" % le)
    a("  s_add_u32 s%d, s%d, 1" % (sT[0], sEp))
    a("  v_mov_b32 v%d, s%d" % (hD, sT[0]))
    a("  v_mov_b32 v%d, %d" % (T0, EPOCH))
    a("  s_mov_b64 exec, 1")
    a("  buffer_store_dword v%d, v%d, s[%d:%d], 0 offen" % (hD, T0, sWs, sWs + 3))
    a("  s_mov_b64 exec, -1")
    a("%s:" % le)
    stamp("end")
    if dbgtime:
        a("  s_memrealtime s[98:99]")
        a("  s_load_dwordx2 s[92:93], s[0:1], 80")
        a("  s_waitcnt lgkmcnt(0)")
        a("  s_mov_b32 s94, 256")
        a("  s_mov_b32 s95, 0x20000")
        a("  s_not_b32 s100, s100")
        a("  v_mov_b32 v%d, s100" % hA)
        a("  v_mov_b32 v%d, s98" % (hA + 1))
        a("  v_mov_b32 v%d, 0" % T0)
        a("  s_mov_b64 exec, 1")
        a("  buffer_atomic_umax v%d, v%d, s[92:95], 0 offen sc1" % (hA, T0))
        a("  buffer_atomic_umax v%d, v%d, s[92:95], 0 offen offset:4 sc1" % (hA + 1, T0))
        a("  s_mov_b64 exec, -1")
    a("L_tsdump:")
    if ts:
        a("  s_waitcnt lgkmcnt(0)")
        a("  s_lshl_b32 s%d, s2, 8" % sT[0])
        a("  s_add_u32 s%d, s%d, %d" % (sT[0], sT[0], TSOFF + 0x10000))
        a("  v_mov_b32 v%d, 0" % T2)
        a("  s_mov_b64 exec, 1")
        for i in range(len(names["H"])):
            a("  v_mov_b32 v%d, s%d" % (hA, TS0 + 2 * i))
            a("  v_mov_b32 v%d, s%d" % (hA + 1, TS0 + 2 * i + 1))
            a("  buffer_store_dwordx2 v[%d:%d], v%d, s[%d:%d], s%d offen offset:%d" % (hA, hA + 1, T2, sWs, sWs + 3, sT[0], 8 * i))
            a("  s_waitcnt vmcnt(0)")
        a("  s_mov_b64 exec, -1")
    a("  s_waitcnt vmcnt(0)")
    a("L_H_done:")
    a("L_end:")
    a("  s_endpgm")
    a("L_code_end:")

    lines = a.lines
    iH = lines.index("L_H:")
    iB0 = [k for k in range(iH, len(lines)) if "s_barrier" in lines[k] and "B0" in lines[k]][0]
    iE = iB0 + 1
    if ts and "s_memrealtime" in lines[iE]:
        iE += 1
    hpro = lines[iH + 1:iE]
    rest = lines[:iH] + ["L_H2:"] + lines[iE:]
    ib = [k for k, l in enumerate(rest) if l.strip() == "s_cbranch_scc1 L_H"][0]
    if layout:
        rest = rest[:ib] + ["  s_cbranch_scc0 L_S"] + hpro + ["  s_branch L_H2"] + rest[ib + 1:]
    else:
        rest = lines
    a.lines = rest
    body = a.text()
    s = HEADER
    s += "; @launch grid=(256,1,1) block=(512,1,1) lds=%d\n" % LDS_TOTAL
    s += '.amdgcn_target "amdgcn-amd-amdhsa--gfx950"\n.text\n'
    s += ".globl %s\n.p2align 8\n.type %s,@function\n%s:\n" % (KNAME, KNAME, KNAME)
    s += body
    s += """
.section .rodata,"a"
.p2align 6
.amdhsa_kernel %s
  .amdhsa_next_free_vgpr %d
  .amdhsa_next_free_sgpr 102
  .amdhsa_accum_offset %d
  .amdhsa_group_segment_fixed_size 0
  .amdhsa_kernarg_size 96
  .amdhsa_user_sgpr_count 2
  .amdhsa_user_sgpr_kernarg_segment_ptr 1
  .amdhsa_system_sgpr_workgroup_id_x 1
.end_amdhsa_kernel
""" % (KNAME, NV, NV)
    gen.names = names
    return s


if __name__ == "__main__":
    kw = {}
    out = "main.s"
    for arg in sys.argv[1:]:
        if "=" in arg:
            k, v = arg.split("=")
            kw[k] = int(v)
        else:
            out = arg
    open(out, "w").write(gen(**kw))
    import json
    json.dump(gen.names, open(out[:-2] + ".names.json", "w"))
    print("wrote", out)
```

```python
import sys
from asmlib import HEADER, KNAME

QP = 0x000000
GP = 0x080000
HH = 0x0F0000
OP = 0x100000
ST = 0x180000
DP = 0x190000
SP = 0x210000
EPOCH = 0x0FF000
EW = 0x2A0000
GEW = 0x2A2000
TSOFF = 0x0F000000

RING = 32768
MISC = 131072
XN = MISC
XN_STRIDE = 1040
QL = MISC + 8448
QL_STRIDE = 272
WOS = QL + 1088
WOS = (WOS + 255) // 256 * 256
FLG = WOS + 16384
F_H1 = 0; F_H3 = 8; F_QRDY = 16; F_STG = 20; F_ST = 24; F_HOP1 = 32; F_EW = 36; F_RED = 40; F_DOWN = 44; F_LATE = 48; F_EWS = 52; F_LOC = 56; F_MID = 60; F_T0 = 4; F_F = 12; F_EW2 = 28; F_GO = 32
SSTAT = 64
FFAC = 192
SPARE = FLG + 256
LDS_TOTAL = SPARE + 4096
assert LDS_TOTAL <= 163840, LDS_TOTAL
SPIN_LIMIT = 4000000


class Asm:
    def __init__(self):
        self.lines = []
        self.nlab = 0

    def __call__(self, s=""):
        for l in s.split("\n"):
            self.lines.append(l)

    def lab(self, base="L"):
        self.nlab += 1
        return "%s_%d" % (base, self.nlab)

    def text(self):
        return "\n".join(self.lines) + "\n"


def vr(base, n=1):
    return "v%d" % base if n == 1 else "v[%d:%d]" % (base, base + n - 1)


def sr(base, n=1):
    return "s%d" % base if n == 1 else "s[%d:%d]" % (base, base + n - 1)


DPP = "row_mask:0xf bank_mask:0xf"


def gen(ts=False, dbg=0, rotmode=3, depth=8, noq=0, noffn=0, hop_sleep=0, ew_it=3, dbgtime=0, noh=0, ffn_sleep=24, skip=0, st_sleep=4, late_it=1, uselocal=1, mid_it=2, r4=0, gnt=0, xnt=0, pf=1, b0pos=0, la=1, gplocal=0, early_census=1, layout=1, presm=0, pipe2=0, h2_sleep=0, sprio=0, dfill=0, dk=0, locnt=0, nob1=1, early_ka=1, gate_t0=1, gew=0, rdv=0, rdv_unit=2):
    a = Asm()
    sW, sX, sLi, sCnt = 3, 4, 5, 6
    sT = [20, 21, 22, 23, 24, 25, 26, 27]
    TS0 = 68
    nts = [0]

    names = {"S": ["start"], "H": ["start"]}
    role = ["S"]

    def stamp(name):
        if name == 0:
            if ts:
                a("  s_memrealtime s[%d:%d]" % (TS0, TS0 + 1))
            return
        lst = names[role[0]]
        if name not in lst:
            lst.append(name)
        idx = lst.index(name)
        assert TS0 + 2 * idx + 1 <= 101
        if ts:
            a("  s_memrealtime s[%d:%d]" % (TS0 + 2 * idx, TS0 + 2 * idx + 1))

    def lds_wait(vbase, off, n, vtmp, sleep=1):
        l0, l1 = a.lab("Lw"), a.lab("Lwd")
        a("  s_mov_b32 s%d, 0" % sCnt)
        a("%s:" % l0)
        a("  ds_read_b32 v%d, v%d offset:%d" % (vtmp, vbase, off))
        a("  s_waitcnt lgkmcnt(0)")
        a("  v_readfirstlane_b32 s%d, v%d" % (sT[7], vtmp))
        a("  s_cmp_ge_u32 s%d, %d" % (sT[7], n))
        a("  s_cbranch_scc1 %s" % l1)
        a("  s_add_u32 s%d, s%d, 1" % (sCnt, sCnt))
        a("  s_cmp_lt_u32 s%d, %d" % (sCnt, SPIN_LIMIT))
        a("  s_cbranch_scc0 %s" % l1)
        a("  s_sleep %d" % sleep)
        a("  s_branch %s" % l0)
        a("%s:" % l1)

    def lds_add(vbase, off, vone):
        a("  s_mov_b64 exec, 1")
        a("  ds_add_u32 v%d, v%d offset:%d" % (vbase, vone, off))
        a("  s_mov_b64 exec, -1")

    def store_loc(stores, sflag):
        l0, l1 = a.lab("Lsl"), a.lab("Lsl")
        a("  s_cmp_eq_u32 s%d, 0" % sflag)
        a("  s_cbranch_scc1 %s" % l0)
        for st in stores:
            a(st + (" nt" if locnt else ""))
        a("  s_branch %s" % l1)
        a("%s:" % l0)
        for st in stores:
            a(st + " sc1")
        a("%s:" % l1)

    def reduce_swap(op, v, t, kind):
        a("  v_mov_b32 v%d, v%d" % (t, v))
        a("  s_nop 1")
        a("  v_permlane%d_swap_b32 v%d, v%d" % (kind, v, t))
        a("  %s v%d, v%d, v%d" % (op, v, v, t))

    a("  s_cmp_ge_u32 s2, 256")
    a("  s_cbranch_scc1 L_end")
    if early_ka:
        a("  s_load_dwordx2 s[8:9], s[0:1], 0             ; x")
        a("  s_load_dwordx2 s[52:53], s[0:1], 8           ; K")
        a("  s_load_dwordx2 s[12:13], s[0:1], 24          ; wq")
        a("  s_load_dwordx2 s[16:17], s[0:1], 88          ; ws")
        a("  s_load_dwordx2 s[60:61], s[0:1], 16          ; V")
        a("  s_load_dwordx4 s[56:59], s[0:1], 48")
    stamp(0)
    if dbgtime:
        a("  s_memrealtime s[100:101]")
    a("  v_lshrrev_b32 v1, 6, v0")
    a("  v_and_b32 v0, 63, v0            ; lane")
    a("  v_readfirstlane_b32 s%d, v1     ; wave id" % sW)
    a("  s_and_b32 s%d, s2, 7" % sX)
    a("  s_lshr_b32 s%d, s2, 3" % sLi)
    a("  s_cmp_ge_u32 s%d, 4" % sW)
    a("  s_cbranch_scc1 L_H")

    sK, sV, sCur = 8, 12, 16
    if early_ka:
        sV, sCur = 60, 52
    sBaseW, sRot, sRing, sIss, sOff, sIt = 28, 29, 30, 31, 32, 33
    sOff1 = 50
    sLocS = 51
    sM = 34
    sScale, sHi = 42, 43
    vLane = 0
    vMisc, vOne = 2, 3
    vKo, vVo, vCo = 4, 8, 12
    vKa = 16
    vVa = 20
    vTmp = 28
    vSp = 36
    vPf = 44
    vAcc = 52
    vE = 56
    vSt = 72
    vO = 104
    vQ = 136
    NV = 200

    sWsS = 16 if early_ka else 44
    sEp = 48
    sBaseW1 = 49
    a("L_S:")
    if sprio:
        a("  s_setprio %d" % sprio)
    if pf:
        lpf = a.lab("Lpf")
        a("  s_cmp_lg_u32 s%d, 3" % sW)
        a("  s_cbranch_scc1 %s" % lpf)
        a("  s_and_b32 s%d, s%d, 15" % (sT[0], sLi))
        a("  s_cmp_lg_u32 s%d, 0" % sT[0])
        a("  s_cbranch_scc1 %s" % lpf)
        a("  s_getpc_b64 s[%d:%d]" % (sT[2], sT[3]))
        a("L_pc:")
        a("  v_lshlrev_b32 v%d, 7, v%d" % (vTmp + 2, vLane))
        a("  v_add_u32 v%d, 0x2000, v%d" % (vTmp + 3, vTmp + 2))
        a("  global_load_dword v%d, v%d, s[%d:%d]" % (vSt, vTmp + 2, sT[2], sT[3]))
        a("  v_cmp_gt_u32 vcc, L_code_end-L_pc, v%d" % (vTmp + 3))
        a("  s_and_saveexec_b64 s[%d:%d], vcc" % (sT[4], sT[5]))
        a("  s_cbranch_execz L_pf_done")
        a("  global_load_dword v%d, v%d, s[%d:%d]" % (vSt + 1, vTmp + 3, sT[2], sT[3]))
        a("L_pf_done:")
        a("  s_mov_b64 exec, -1")
        a("%s:" % lpf)
    if not early_ka:
        a("  s_load_dwordx2 s[%d:%d], s[0:1], 8" % (sCur, sCur + 1))
        a("  s_load_dwordx2 s[%d:%d], s[0:1], 16" % (sV, sV + 1))
        a("  s_load_dwordx2 s[%d:%d], s[0:1], 88" % (sWsS, sWsS + 1))
    a("  s_mov_b32 s%d, 0x4000000" % (sCur + 2))
    a("  s_mov_b32 s%d, 0x20000" % (sCur + 3))
    a("  s_lshr_b32 s%d, s%d, 2" % (sT[0], sLi))
    a("  s_lshl_b32 s%d, s%d, 3" % (sT[0], sT[0]))
    a("  s_add_u32 s%d, s%d, s%d" % (sT[0], sT[0], sX))
    a("  s_lshl_b32 s%d, s%d, 2" % (sT[0], sT[0]))
    a("  s_and_b32 s%d, s%d, 3" % (sT[1], sLi))
    a("  s_add_u32 s%d, s%d, s%d" % (sT[0], sT[0], sT[1]))
    a("  s_lshl_b32 s%d, s%d, 18" % (sT[0], sT[0]))
    a("  s_lshl_b32 s%d, s%d, 13" % (sT[1], sW))
    if r4:
        if r4 == 1:
            a("  s_lshl_b32 s%d, s%d, 12" % (sT[2], sLi))
        else:
            a("  s_lshr_b32 s%d, s%d, 2" % (sT[2], sLi))
            a("  s_add_u32 s%d, s%d, s%d" % (sT[2], sT[2], sX))
            a("  s_lshl_b32 s%d, s%d, 12" % (sT[2], sT[2]))
        a("  s_add_u32 s%d, s%d, s%d" % (sT[1], sT[1], sT[2]))
        a("  s_add_u32 s%d, s%d, 4096" % (sT[2], sT[1]))
        a("  s_and_b32 s%d, s%d, 0x7fff" % (sT[1], sT[1]))
        a("  s_and_b32 s%d, s%d, 0x7fff" % (sT[2], sT[2]))
        a("  s_add_u32 s%d, s%d, s%d" % (sBaseW, sT[0], sT[1]))
        a("  s_add_u32 s%d, s%d, s%d" % (sBaseW1, sT[0], sT[2]))
    else:
        a("  s_add_u32 s%d, s%d, s%d" % (sBaseW, sT[0], sT[1]))
        a("  s_add_u32 s%d, s%d, 4096" % (sBaseW1, sBaseW))
    if rotmode == 0:
        sRotR = 2
    elif rotmode == 3:
        sRotR = sLi
    else:
        a("  s_add_u32 s%d, s2, s%d" % (sRot, sLi))
        sRotR = sRot
    if rdv:
        a("  s_load_dwordx2 s[64:65], s[0:1], 80")
        a("  s_mov_b32 s66, 256")
        a("  s_mov_b32 s67, 0x20000")
    a("  s_lshl_b32 s%d, s%d, 15" % (sRing, sW))
    a("  s_mov_b32 s%d, 0" % sIss)
    t0, t1, t2 = vTmp, vTmp + 1, vTmp + 2
    a("  v_lshrrev_b32 v%d, 4, v%d      ; g = l>>4" % (t0, vLane))
    a("  v_and_b32 v%d, 15, v%d         ; c' = l&15" % (t1, vLane))
    for i in range(4):
        a("  v_add_u32 v%d, %d, v%d" % (t2, 4 * i, t0))
        a("  v_xor_b32 v%d, v%d, v%d" % (t2, t2, t1))
        a("  v_lshlrev_b32 v%d, 4, v%d" % (t2, t2))
        a("  v_lshl_add_u32 v%d, v%d, 8, v%d" % (vCo + i, t0, t2))
    a("  v_mov_b32 v%d, %d" % (vMisc, FLG))
    a("  v_mov_b32 v%d, 1" % vOne)
    a("  s_waitcnt lgkmcnt(0)")
    a("  s_barrier                      ; B0")

    def issue_unit(switch=False, dep=None):
        depth_ = dep if dep else depth
        if switch:
            lsw = a.lab("Lsw")
            a("  s_cmp_lg_u32 s%d, 8" % sIss)
            a("  s_cbranch_scc1 %s" % lsw)
            for i in range(4):
                a("  s_mov_b32 s%d, s%d" % (sCur + i, sV + i))
            for i in range(4):
                a("  v_mov_b32 v%d, v%d" % (vCo + i, vVo + (i & 1)))
            a("%s:" % lsw)
        a("  s_add_u32 s%d, s%d, s%d" % (sT[0], sIss, sRotR))
        a("  s_and_b32 s%d, s%d, 7" % (sT[0], sT[0]))
        a("  s_lshl_b32 s%d, s%d, 15" % (sT[0], sT[0]))
        a("  s_add_u32 s%d, s%d, s%d" % (sOff, sT[0], sBaseW))
        a("  s_add_u32 s%d, s%d, s%d" % (sOff1, sT[0], sBaseW1))
        a("  s_and_b32 s%d, s%d, 3" % (sT[0], sIss))
        a("  s_lshl_b32 s%d, s%d, 13" % (sT[0], sT[0]))
        a("  s_add_u32 m0, s%d, s%d" % (sT[0], sRing))
        a("  s_add_u32 s%d, s%d, 1" % (sIss, sIss))
        a("  s_waitcnt vmcnt(%d)" % (depth_ - 1))
        for i in range(4):
            a("  buffer_load_dwordx4 v%d, s[%d:%d], s%d offen offset:%d nt lds" % (vCo + i, sCur, sCur + 3, sOff, i * 1024))
            if i < 3:
                a("  s_waitcnt vmcnt(%d)" % (depth_ - 1))
        a("  s_add_u32 m0, m0, 4096")
        a("  s_waitcnt vmcnt(%d)" % (depth_ - 1))
        for i in range(4):
            a("  buffer_load_dwordx4 v%d, s[%d:%d], s%d offen offset:%d nt lds" % (vCo + i, sCur, sCur + 3, sOff1, i * 1024))
            if i < 3:
                a("  s_waitcnt vmcnt(%d)" % (depth_ - 1))

    a("L_fill:")
    a("  s_cmp_lg_u32 s%d, 3" % sIss)
    a("  s_cbranch_scc1 L_fill_go")
    stamp("u2 issued")
    lds_wait(vMisc, F_STG, 4, vTmp + 5)
    stamp("STG ok")
    a("L_fill_go:")
    if rdv:
        lrd = a.lab("Lrd")
        a("  s_cmp_lg_u32 s%d, 0" % sW)
        a("  s_cbranch_scc1 %s" % lrd)
        a("  s_cmp_lg_u32 s%d, %d" % (sIss, rdv_unit))
        a("  s_cbranch_scc1 %s" % lrd)
        a("  s_lshl_b32 s%d, s%d, 5" % (sT[0], sX))
        a("  s_add_u32 s%d, s%d, 16" % (sT[0], sT[0]))
        a("  v_mov_b32 v%d, s%d" % (vTmp + 4, sT[0]))
        a("  s_waitcnt lgkmcnt(0)")
        a("  s_mov_b64 exec, 1")
        a("  buffer_atomic_add v%d, v%d, s[64:67], 0 offen sc1" % (vOne, vTmp + 4))
        a("  s_mov_b64 exec, -1")
        a("%s:" % lrd)
    issue_unit(dep=dfill)

    a("  s_cmp_lt_u32 s%d, 4" % sIss)
    a("  s_cbranch_scc1 L_fill")
    a("  s_load_dword s%d, s[%d:%d], 0x%x" % (sEp, sWsS, sWsS + 1, EPOCH))
    a("  s_mov_b32 s%d, 0x4000000" % (sV + 2))
    a("  s_mov_b32 s%d, 0x20000" % (sV + 3))
    a("  s_mov_b32 s%d, 0x10000000" % (sWsS + 2))
    a("  s_mov_b32 s%d, 0x20000" % (sWsS + 3))
    for i in range(2):
        a("  v_add_u32 v%d, %d, v%d" % (t2, 4 * i, t0))
        a("  v_lshlrev_b32 v%d, 1, v%d" % (t2, t2))
        a("  v_xor_b32 v%d, v%d, v%d" % (t2, t2, t1))
        a("  v_lshlrev_b32 v%d, 4, v%d" % (t2, t2))
        a("  v_lshl_add_u32 v%d, v%d, 8, v%d" % (vVo + i, t0, t2))
    for s in range(4):
        a("  v_add_u32 v%d, %d, v%d" % (t2, 4 * s, t0))
        a("  v_xor_b32 v%d, v%d, v%d" % (t2, t2, t1))
        a("  v_lshlrev_b32 v%d, 4, v%d" % (t2, t2))
        a("  v_lshl_add_u32 v%d, v%d, 8, v%d" % (t2, t1, t2))
        a("  v_add_u32 v%d, s%d, v%d" % (vKa + s, sRing, t2))
    t3, t4 = vTmp + 3, vTmp + 4
    a("  v_lshrrev_b32 v%d, 2, v%d" % (t2, t1))
    a("  v_lshl_add_u32 v%d, v%d, 2, v%d    ; row" % (t2, t0, t2))
    a("  v_and_b32 v%d, 7, v%d              ; row&7" % (t3, t2))
    a("  v_lshlrev_b32 v%d, 8, v%d" % (t2, t2))
    a("  v_and_b32 v%d, 3, v%d" % (t4, t1))
    a("  v_lshl_add_u32 v%d, v%d, 3, v%d" % (t2, t4, t2))
    a("  v_add_u32 v%d, s%d, v%d" % (t2, sRing, t2))
    for dt in range(8):
        a("  v_xor_b32 v%d, %d, v%d" % (t4, dt, t3))
        a("  v_lshl_add_u32 v%d, v%d, 5, v%d" % (vVa + dt, t4, t2))
    for i in range(64):
        a("  v_mov_b32 v%d, 0" % (vQ + i))
    a("  v_bfe_u32 v%d, v%d, 2, 2" % (t2, vLane))
    for t in range(4):
        a("  v_cmp_eq_u32 s[%d:%d], %d, v%d" % (sM + 2 * t, sM + 2 * t + 1, t, t2))
    a("  v_and_b32 v%d, 3, v%d" % (t2, vLane))
    a("  v_mul_u32_u24 v%d, %d, v%d" % (t2, QL_STRIDE, t2))
    a("  v_lshl_add_u32 v%d, v%d, 4, v%d" % (t2, t0, t2))
    a("  v_add_u32 v%d, %d, v%d" % (t2, QL, t2))
    a("  s_mov_b32 s%d, 0x3DB504F3      ; 128^-0.5" % sScale)
    a("  s_mov_b32 s%d, 0xffff0000" % sHi)
    stamp("fill done")
    if rdv:
        lrd, lrd2 = a.lab("Lrd"), a.lab("Lrd")
        a("  s_cmp_lg_u32 s%d, 0" % sW)
        a("  s_cbranch_scc1 %s" % lrd)
        a("  s_waitcnt vmcnt(0)")
        a("  v_lshlrev_b32 v%d, 5, v%d" % (vTmp + 4, vLane))
        a("  v_add_u32 v%d, 16, v%d" % (vTmp + 4, vTmp + 4))
        l0, l1 = a.lab("Lp"), a.lab("Lpd")
        a("  s_mov_b32 s%d, 0" % sCnt)
        a("  s_mov_b64 exec, 0xff")
        a("%s:" % l0)
        a("  buffer_load_dword v%d, v%d, s[64:67], 0 offen sc1" % (vTmp + 5, vTmp + 4))
        a("  s_waitcnt vmcnt(0)")
        a("  v_cmp_gt_u32 vcc, 32, v%d" % (vTmp + 5))
        a("  s_cbranch_vccz %s" % l1)
        a("  s_add_u32 s%d, s%d, 1" % (sCnt, sCnt))
        a("  s_cmp_lt_u32 s%d, %d" % (sCnt, SPIN_LIMIT))
        a("  s_cbranch_scc0 %s" % l1)
        a("  s_sleep 8")
        a("  s_branch %s" % l0)
        a("%s:" % l1)
        a("  s_mov_b64 exec, -1")
        lds_add(vMisc, F_GO, vOne)
        a("  s_branch %s" % lrd2)
        a("%s:" % lrd)
        lds_wait(vMisc, F_GO, 1, vTmp + 5, sleep=2)
        a("%s:" % lrd2)
        stamp("GO")
    if not noq:
        lds_wait(vMisc, F_QRDY, 4, vTmp + 5)
    stamp("Q ready")
    for t in range(4):
        a("  s_mov_b64 exec, s[%d:%d]" % (sM + 2 * t, sM + 2 * t + 1))
        for s in range(4):
            r = vQ + (t * 4 + s) * 4
            a("  ds_read_b128 v[%d:%d], v%d offset:%d" % (r, r + 3, t2, 64 * s))
    a("  s_mov_b64 exec, -1")
    a("  s_mov_b32 s%d, 0" % sIt)
    a("  s_waitcnt vmcnt(0) lgkmcnt(0)")

    a("L_k:")
    lmid = a.lab("Lmid")
    a("  s_cmp_lg_u32 s%d, 0" % sW)
    a("  s_cbranch_scc1 %s" % lmid)
    a("  s_cmp_lg_u32 s%d, %d" % (sIt, mid_it))
    a("  s_cbranch_scc1 %s" % lmid)
    lds_add(vMisc, F_MID, vOne)
    a("%s:" % lmid)
    for u in range(2):
        if u == 0:
            lsk = a.lab("Lsk")
            a("  s_cmp_lt_u32 s%d, %d" % (sIt, 3 if la == 1 else 2))
            a("  s_cbranch_scc1 %s" % lsk)
            issue_unit(switch=(la == 2), dep=dk)
            a("%s:" % lsk)
        else:
            issue_unit(switch=(la == 1), dep=dk)
        for hf in range(2):
            for s_ in range(4):
                r = vSt + (hf * 4 + s_) * 4
                a("  ds_read_b128 v[%d:%d], v%d offset:%d" % (r, r + 3, vKa + s_, u * 8192 + hf * 4096))
        for hf in range(2):
            a("  s_waitcnt lgkmcnt(%d)" % (4 if hf == 0 else 0))
            t = 2 * u + hf
            for s_ in range(4):
                r = vSt + (hf * 4 + s_) * 4
                q = vQ + (t * 4 + s_) * 4
                c = "0" if (u == 0 and hf == 0 and s_ == 0) else "v[%d:%d]" % (vAcc, vAcc + 3)
                a("  v_mfma_f32_16x16x32_bf16 v[%d:%d], v[%d:%d], v[%d:%d], %s" % (vAcc, vAcc + 3, r, r + 3, q, q + 3, c))
    for i in range(6):
        a("  v_mov_b32 v%d, v%d" % (vSp + i, vSp + i + 2))
    for s in range(4):
        a("  v_xor_b32 v%d, 0x4000, v%d" % (vKa + s, vKa + s))
    c0, c1 = vTmp, vTmp + 1
    e0 = vTmp + 2
    a("  v_cvt_pk_bf16_f32 v%d, v%d, v%d" % (c0, vAcc, vAcc + 1))
    a("  v_cvt_pk_bf16_f32 v%d, v%d, v%d" % (c1, vAcc + 2, vAcc + 3))
    a("  v_lshlrev_b32 v%d, 16, v%d" % (e0, c0))
    a("  v_and_b32 v%d, s%d, v%d" % (e0 + 1, sHi, c0))
    a("  v_lshlrev_b32 v%d, 16, v%d" % (e0 + 2, c1))
    a("  v_and_b32 v%d, s%d, v%d" % (e0 + 3, sHi, c1))
    for i in range(4):
        a("  v_mul_f32 v%d, s%d, v%d" % (e0 + i, sScale, e0 + i))
    a("  v_cvt_pk_bf16_f32 v%d, v%d, v%d" % (vSp + 6, e0, e0 + 1))
    a("  v_cvt_pk_bf16_f32 v%d, v%d, v%d" % (vSp + 7, e0 + 2, e0 + 3))
    a("  s_add_u32 s%d, s%d, 1" % (sIt, sIt))
    a("  s_cmp_lt_u32 s%d, 4" % sIt)
    a("  s_cbranch_scc1 L_k")
    stamp("K done")
    if presm and la == 1:
        issue_unit()

    for i in range(8):
        a("  v_lshlrev_b32 v%d, 16, v%d" % (vE + 2 * i, vSp + i))
        a("  v_and_b32 v%d, s%d, v%d" % (vE + 2 * i + 1, sHi, vSp + i))
    vM, vL, vX = vTmp, vTmp + 1, vTmp + 2
    a("  v_max3_f32 v%d, v%d, v%d, v%d" % (vM, vE, vE + 1, vE + 2))
    for i in range(3, 15, 2):
        a("  v_max3_f32 v%d, v%d, v%d, v%d" % (vM, vM, vE + i, vE + i + 1))
    a("  v_max_f32 v%d, v%d, v%d" % (vM, vM, vE + 15))
    a("  s_nop 1")
    a("  v_max_f32_dpp v%d, v%d, v%d row_ror:4 %s" % (vM, vM, vM, DPP))
    a("  s_nop 1")
    a("  v_max_f32_dpp v%d, v%d, v%d row_ror:8 %s" % (vM, vM, vM, DPP))
    reduce_swap("v_max_f32", vM, vX, 16)
    reduce_swap("v_max_f32", vM, vX, 32)
    a("  s_mov_b32 s%d, 0x3FB8AA3B      ; log2(e)" % sT[0])
    a("  v_mul_f32 v%d, s%d, v%d" % (vX, sT[0], vM))
    for i in range(16):
        a("  v_fma_f32 v%d, v%d, s%d, -v%d" % (vE + i, vE + i, sT[0], vX))
    for i in range(16):
        a("  v_exp_f32 v%d, v%d" % (vE + i, vE + i))
    a("  s_nop 0")
    for i in range(8):
        a("  v_cvt_pk_bf16_f32 v%d, v%d, v%d" % (vSp + i, vE + 2 * i, vE + 2 * i + 1))
    for i in range(4):
        a("  v_pk_add_f32 v[%d:%d], v[%d:%d], v[%d:%d]" % (vE + 2 * i, vE + 2 * i + 1, vE + 2 * i, vE + 2 * i + 1, vE + 8 + 2 * i, vE + 9 + 2 * i))
    for i in range(2):
        a("  v_pk_add_f32 v[%d:%d], v[%d:%d], v[%d:%d]" % (vE + 2 * i, vE + 2 * i + 1, vE + 2 * i, vE + 2 * i + 1, vE + 4 + 2 * i, vE + 5 + 2 * i))
    a("  v_pk_add_f32 v[%d:%d], v[%d:%d], v[%d:%d]" % (vE, vE + 1, vE, vE + 1, vE + 2, vE + 3))
    a("  v_add_f32 v%d, v%d, v%d" % (vL, vE, vE + 1))
    a("  s_nop 1")
    a("  v_add_f32_dpp v%d, v%d, v%d row_ror:4 %s" % (vL, vL, vL, DPP))
    a("  s_nop 1")
    a("  v_add_f32_dpp v%d, v%d, v%d row_ror:8 %s" % (vL, vL, vL, DPP))
    reduce_swap("v_add_f32", vL, vX, 16)
    reduce_swap("v_add_f32", vL, vX, 32)
    a("  s_lshl_b32 s%d, s%d, 5" % (sT[0], sW))
    a("  v_lshlrev_b32 v%d, 3, v%d" % (vX, vLane))
    a("  v_add_u32 v%d, s%d, v%d" % (vX, sT[0], vX))
    a("  v_add_u32 v%d, v%d, v%d" % (vX, vMisc, vX))
    a("  s_mov_b64 exec, 15")
    a("  ds_write_b64 v%d, v[%d:%d] offset:%d" % (vX, vM, vM + 1, SSTAT))
    a("  s_waitcnt lgkmcnt(0)")
    a("  s_mov_b64 exec, -1")
    lds_add(vMisc, F_ST, vOne)

    for i in range(32):
        a("  v_mov_b32 v%d, 0" % (vO + i))
    a("  s_mov_b32 s%d, 0" % sIt)
    a("L_v:")
    a("  v_mov_b32 v%d, v%d" % (vPf, vSp))
    a("  v_mov_b32 v%d, v%d" % (vPf + 1, vSp + 1))
    for k, sh in ((2, 4), (4, 8), (6, 12)):
        a("  v_mov_b32_dpp v%d, v%d row_shl:%d %s bound_ctrl:0" % (vPf + k, vSp, sh, DPP))
        a("  v_mov_b32_dpp v%d, v%d row_shl:%d %s bound_ctrl:0" % (vPf + k + 1, vSp + 1, sh, DPP))
    for i in range(6):
        a("  v_mov_b32 v%d, v%d" % (vSp + i, vSp + i + 2))
    lew = a.lab("Lew")
    a("  s_cmp_lg_u32 s%d, 0" % sW)
    a("  s_cbranch_scc1 %s" % lew)
    lew2 = a.lab("Lew")
    a("  s_cmp_lg_u32 s%d, %d" % (sIt, late_it))
    a("  s_cbranch_scc1 %s" % lew2)
    lds_add(vMisc, F_LATE, vOne)
    a("%s:" % lew2)
    a("  s_cmp_lg_u32 s%d, %d" % (sIt, ew_it))
    a("  s_cbranch_scc1 %s" % lew)
    lds_add(vMisc, F_EWS, vOne)
    if nob1:
        lds_wait(vMisc, F_LOC, 1, vTmp + 5, sleep=0)
        a("  s_lshr_b32 s%d, s%d, 1" % (sLocS, sT[7]))
        lds_wait(vMisc, F_F, 1, vTmp + 5, sleep=0)
    a("%s:" % lew)
    for u in range(2):
        if u == 0 and la == 1:
            if presm:
                lsk = a.lab("Lsk")
                a("  s_cmp_eq_u32 s%d, 0" % sIt)
                a("  s_cbranch_scc1 %s" % lsk)
                issue_unit()
                a("%s:" % lsk)
            else:
                issue_unit()
        else:
            lv_else, lv_done = a.lab("Lve"), a.lab("Lvd")
            a("  s_cmp_ge_u32 s%d, 3" % sIt)
            a("  s_cbranch_scc1 %s" % lv_else)
            issue_unit()
            a("  s_branch %s" % lv_done)
            a("%s:" % lv_else)
            a("  s_waitcnt vmcnt(%d)" % (8 if u == 0 else 0))
            a("%s:" % lv_done)
        for dt in range(8):
            r = vSt + dt * 4
            a("  ds_read_b64_tr_b16 v[%d:%d], v%d offset:%d" % (r, r + 1, vVa + dt, u * 8192))
            a("  ds_read_b64_tr_b16 v[%d:%d], v%d offset:%d" % (r + 2, r + 3, vVa + dt, u * 8192 + 4096))
        for dt in range(8):
            r = vSt + dt * 4
            o = vO + dt * 4
            if dt % 2 == 0:
                a("  s_waitcnt lgkmcnt(%d)" % (12 - 2 * dt if dt < 6 else 0))
            a("  v_mfma_f32_16x16x32_bf16 v[%d:%d], v[%d:%d], v[%d:%d], v[%d:%d]" % (o, o + 3, r, r + 3, vPf + 4 * u, vPf + 4 * u + 3, o, o + 3))
    for dt in range(8):
        a("  v_xor_b32 v%d, 0x4000, v%d" % (vVa + dt, vVa + dt))
    a("  s_add_u32 s%d, s%d, 1" % (sIt, sIt))
    a("  s_cmp_lt_u32 s%d, 4" % sIt)
    a("  s_cbranch_scc1 L_v")
    stamp("V done")
    a("  v_and_b32 v%d, 15, v%d" % (t1, vLane))
    a("  v_lshrrev_b32 v%d, 4, v%d" % (t0, vLane))
    a("  v_lshlrev_b32 v%d, 9, v%d" % (t2, t1))
    a("  v_lshl_add_u32 v%d, v%d, 4, v%d" % (t2, t0, t2))
    a("  v_add_u32 v%d, s%d, v%d" % (t2, sRing, t2))
    a("  v_cmp_gt_u32 vcc, 4, v%d" % t1)
    a("  s_nop 4")
    a("  s_mov_b64 exec, vcc")
    for dt in range(8):
        a("  ds_write_b128 v%d, v[%d:%d] offset:%d" % (t2, vO + dt * 4, vO + dt * 4 + 3, dt * 64))
    a("  s_mov_b64 exec, -1")
    vR0, vR1, vR2, vR3 = vPf, vPf + 1, vPf + 2, vPf + 3
    a("  v_lshlrev_b32 v%d, 9, v%d" % (vR0, t0))
    a("  v_lshl_add_u32 v%d, v%d, 4, v%d      ; h*512 + c*16" % (vR0, t1, vR0))
    a("  v_lshl_add_u32 v%d, v%d, 4, v%d      ; FLG + h*16" % (vR1, t0, vMisc))
    a("  v_lshlrev_b32 v%d, 14, v%d" % (vR2, t0))
    a("  v_lshrrev_b32 v%d, 3, v%d" % (t3, t1))
    a("  v_lshl_add_u32 v%d, v%d, 11, v%d" % (vR2, t3, vR2))
    a("  v_and_b32 v%d, 7, v%d" % (t3, t1))
    a("  v_lshl_add_u32 v%d, v%d, 4, v%d" % (vR2, t3, vR2))
    a("  s_lshl_b32 s%d, s%d, 16" % (sT[0], sX))
    a("  s_lshr_b32 s%d, s%d, 4" % (sT[1], sLi))
    a("  s_lshl_b32 s%d, s%d, 13" % (sT[1], sT[1]))
    a("  s_add_u32 s%d, s%d, s%d" % (sT[0], sT[0], sT[1]))
    a("  s_and_b32 s%d, s%d, 15" % (sT[1], sLi))
    a("  s_lshl_b32 s%d, s%d, 7" % (sT[1], sT[1]))
    a("  s_add_u32 s%d, s%d, s%d" % (sT[0], sT[0], sT[1]))
    a("  s_add_u32 s%d, s%d, %d" % (sT[0], sT[0], OP))
    a("  s_add_u32 s%d, s%d, 1" % (sT[1], sEp))
    a("  s_and_b32 s%d, s%d, 0xff" % (sT[1], sT[1]))
    a("  v_mov_b32 v%d, s%d" % (vR3, sT[1]))
    a("  s_add_u32 s%d, s%d, 4096" % (sT[1], sT[0]))
    a("  s_mov_b32 s%d, 0xffff0000" % sT[2])
    if not nob1:
        lds_wait(vMisc, F_LOC, 1, t3)
        a("  s_lshr_b32 s%d, s%d, 1" % (sLocS, sT[7]))
    a("  s_waitcnt lgkmcnt(0)")
    if nob1:
        lds_add(vMisc, F_T0, vOne)
        a("  s_cmp_lg_u32 s%d, 0" % sW)
        a("  s_cbranch_scc1 L_S_done")
        lds_wait(vMisc, F_T0, 4, t3, sleep=0)
    else:
        a("  s_barrier                      ; B1")
        a("  s_cmp_lg_u32 s%d, 0" % sW)
        a("  s_cbranch_scc1 L_S_done")
    sWs = sWsS
    for w in range(4):
        a("  ds_read_b128 v[%d:%d], v%d offset:%d" % (vSt + w * 8, vSt + w * 8 + 3, vR0, (w & 1) * 32768))
        a("  ds_read_b128 v[%d:%d], v%d offset:%d" % (vSt + w * 8 + 4, vSt + w * 8 + 7, vR0, (w & 1) * 32768 + 256))
        if w == 1:
            a("  v_add_u32 v%d, 0x10000, v%d" % (vR0, vR0))
    a("  ds_read_b128 v[%d:%d], v%d offset:%d" % (vE, vE + 3, vR1, FFAC))
    a("  s_waitcnt lgkmcnt(0)")
    for i in range(8):
        a("  v_mul_f32 v%d, v%d, v%d" % (vO + i, vSt + i, vE))
    for w in range(1, 4):
        for i in range(8):
            a("  v_fmac_f32 v%d, v%d, v%d" % (vO + i, vSt + w * 8 + i, vE + w))
    for i in range(8):
        a("  v_cvt_pk_bf16_f32 v%d, v%d, v%d" % (vO + i, vO + i, vO + i))
    for i in range(8):
        a("  v_and_or_b32 v%d, v%d, s%d, v%d" % (vO + i, vO + i, sT[2], vR3))
    store_loc(["  buffer_store_dwordx4 v[%d:%d], v%d, s[%d:%d], s%d offen" % (vO, vO + 3, vR2, sWs, sWs + 3, sT[0]),
               "  buffer_store_dwordx4 v[%d:%d], v%d, s[%d:%d], s%d offen" % (vO + 4, vO + 7, vR2, sWs, sWs + 3, sT[1])], sLocS)
    stamp("published")
    a("  s_barrier                      ; B2")
    if ts:
        a("  s_waitcnt lgkmcnt(0)")
        a("  s_lshl_b32 s%d, s2, 8" % sT[0])
        a("  s_add_u32 s%d, s%d, %d" % (sT[0], sT[0], TSOFF))
        a("  v_mov_b32 v%d, 0" % t2)
        a("  s_mov_b64 exec, 1")
        for i in range(len(names["S"])):
            a("  v_mov_b32 v%d, s%d" % (vO, TS0 + 2 * i))
            a("  v_mov_b32 v%d, s%d" % (vO + 1, TS0 + 2 * i + 1))
            a("  buffer_store_dwordx2 v[%d:%d], v%d, s[%d:%d], s%d offen offset:%d" % (vO, vO + 1, t2, sWs, sWs + 3, sT[0], 8 * i))
            a("  s_waitcnt vmcnt(0)")
        a("  s_mov_b64 exec, -1")
    a("L_S_done:")
    a("  s_endpgm")

    role[0] = "H"
    a("L_H:")
    sHW = 7
    sXd, sWq, sWs, sGU, sWd, sWo, sOut = 8, 12, 16, 32, 36, 40, 44
    sEp = 28
    sTag = 29
    sNotFF = 30
    sTag4 = 31
    sHi2 = 48
    sFi = 49
    sSelA, sSelB = 50, 54
    sB = 51; sJ = 52; sFidx = 53
    sKb2 = 55
    sLo8 = 60
    sFv = 3
    sLoc = 56
    sDbg = 64
    sHq = 62
    sWoStg = 63
    hMisc, hOne = 2, 3
    hG, hI = 4, 5
    hT = 6
    hX = 16
    hF = 24
    hY = 40
    hA = 56
    hB = 72
    hD = 88
    hW = 120
    hXf = 136
    hZ = 144
    hTag = 156
    hWd = 160
    hMid = 197
    T0, T1, T2, T3, T4, T5 = hT, hT + 1, hT + 2, hT + 3, hT + 4, hT + 5
    hTr, hXn, hW1k, hTrG, hOutOff = hZ + 1, hZ + 2, hZ + 4, hZ + 5, hZ + 6

    if not early_ka:
        a("  s_load_dwordx2 s[%d:%d], s[0:1], 0" % (sXd, sXd + 1))
        a("  s_load_dwordx2 s[%d:%d], s[0:1], 24" % (sWq, sWq + 1))
        a("  s_load_dwordx4 s[56:59], s[0:1], 48")
        a("  s_load_dwordx2 s[%d:%d], s[0:1], 88" % (sWs, sWs + 1))
    a("  v_lshlrev_b32 v%d, 2, v0" % T0)
    a("  v_add_u32 v%d, %d, v%d" % (T0, FLG, T0))
    a("  v_mov_b32 v%d, 0" % T1)
    a("  ds_write_b32 v%d, v%d" % (T0, T1))
    a("  s_sub_u32 s%d, s%d, 4" % (sHW, sW))
    a("  s_mov_b32 s%d, 8192" % (sXd + 2))
    a("  s_mov_b32 s%d, 0x20000" % (sXd + 3))
    a("  v_lshrrev_b32 v%d, 5, v0" % T0)
    a("  s_lshl_b32 s%d, s%d, 1" % (sT[0], sHW))
    a("  v_add_u32 v%d, s%d, v%d          ; row b" % (T0, sT[0], T0))
    a("  v_and_b32 v%d, 31, v0" % T1)
    a("  v_lshlrev_b32 v%d, 5, v%d" % (T1, T1))
    a("  v_lshl_add_u32 v%d, v%d, 10, v%d" % (T2, T0, T1))
    a("  s_waitcnt lgkmcnt(0)")
    a("  buffer_load_dwordx4 v[%d:%d], v%d, s[%d:%d], 0 offen%s" % (hX, hX + 3, T2, sXd, sXd + 3, " nt" if xnt else ""))
    a("  buffer_load_dwordx4 v[%d:%d], v%d, s[%d:%d], 0 offen offset:16%s" % (hX + 4, hX + 7, T2, sXd, sXd + 3, " nt" if xnt else ""))
    a("  v_lshrrev_b32 v%d, 3, v0" % T3)
    a("  v_and_b32 v%d, 7, v0" % T4)
    a("  v_lshlrev_b32 v%d, 4, v%d" % (T4, T4))
    a("  v_lshl_add_u32 v%d, v%d, 13, v%d" % (T5, T3, T4))
    a("  s_and_b32 s%d, s%d, 3" % (sJ, sLi))
    a("  s_lshr_b32 s%d, s%d, 2" % (sB, sLi))
    a("  s_lshl_b32 s%d, s%d, 2" % (sT[0], sJ))
    a("  s_add_u32 s%d, s%d, s%d" % (sT[0], sT[0], sHW))
    a("  s_lshl_b32 s%d, s%d, 18" % (sT[0], sT[0]))
    a("  s_lshl_b32 s%d, s%d, 3" % (sT[1], sX))
    a("  s_add_u32 s%d, s%d, s%d" % (sT[1], sT[1], sB))
    a("  s_lshl_b32 s%d, s%d, 7" % (sT[1], sT[1]))
    a("  s_add_u32 s%d, s%d, s%d" % (sT[0], sT[0], sT[1]))
    a("  s_lshr_b32 s%d, s%d, 1" % (sT[1], sHW))
    a("  s_lshl_b32 s%d, s%d, 15" % (sT[1], sT[1]))
    a("  s_and_b32 s%d, s%d, 1" % (sT[2], sHW))
    a("  s_lshl_b32 s%d, s%d, 12" % (sT[2], sT[2]))
    a("  s_add_u32 s%d, s%d, s%d" % (sT[1], sT[1], sT[2]))
    a("  s_add_u32 s%d, s%d, 24576" % (sT[1], sT[1]))
    a("  s_mov_b32 s%d, 0x400000" % (sWq + 2))
    a("  s_mov_b32 s%d, 0x20000" % (sWq + 3))
    for n in range(4):
        a("  s_add_u32 m0, s%d, %d" % (sT[1], n * 1024))
        if n:
            a("  s_add_u32 s%d, s%d, %d" % (sT[0], sT[0], 8 * 8192))
        else:
            a("  s_load_dword s%d, s[%d:%d], 0x%x" % (sEp, sWs, sWs + 1, EPOCH))
        a("  buffer_load_dwordx4 v%d, s[%d:%d], s%d offen nt lds" % (T5, sWq, sWq + 3, sT[0]))
    if b0pos == 0:
        a("  s_barrier                      ; B0")
        stamp("B0")
    a("  s_load_dwordx2 s[%d:%d], s[0:1], 64" % (sWd, sWd + 1))
    a("  s_load_dwordx2 s[%d:%d], s[0:1], 32" % (sWo, sWo + 1))
    a("  s_load_dwordx2 s[%d:%d], s[0:1], 72" % (sOut, sOut + 1))
    a("  s_load_dwordx2 s[%d:%d], s[0:1], 80" % (sDbg, sDbg + 1))
    a("  s_lshr_b32 s%d, s%d, 3" % (sT[4], sLi))
    a("  s_lshl_b32 s%d, s%d, 3" % (sT[4], sT[4]))
    a("  s_add_u32 s%d, s%d, s%d" % (sT[4], sT[4], sX))
    a("  s_cmp_lt_u32 s%d, 28" % sT[4])
    a("  s_cselect_b32 s%d, 1, 0" % sFv)
    a("  s_min_u32 s%d, s%d, 27" % (sT[4], sT[4]))
    a("  s_lshl_b32 s%d, s%d, 3" % (sFi, sT[4]))
    a("  s_and_b32 s%d, s%d, 7" % (sT[5], sLi))
    a("  s_add_u32 s%d, s%d, s%d" % (sFi, sFi, sT[5]))
    a("  s_and_b32 s%d, s%d, 3" % (sKb2, sFi))
    a("  s_lshl_b32 s%d, s%d, 2" % (sT[3], sKb2))
    a("  s_add_u32 s%d, s%d, s%d" % (sT[3], sT[3], sHW))
    a("  s_mul_i32 s%d, s%d, %d" % (sT[3], sT[3], 32 * 3584))
    a("  s_lshl_b32 s%d, s%d, 7" % (sT[4], sT[4]))
    a("  s_add_u32 s%d, s%d, s%d" % (sT[3], sT[3], sT[4]))
    a("  s_bitcmp1_b32 s%d, 2" % sFi)
    a("  s_cselect_b32 s%d, s58, s56" % sGU)
    a("  s_cselect_b32 s%d, s59, s57" % (sGU + 1))
    a("  s_mov_b32 s%d, 1835008" % (sGU + 2))
    a("  s_mov_b32 s%d, 0x20000" % (sGU + 3))
    a("  v_lshl_add_u32 v%d, v%d, 10, v%d" % (hW1k, T3, T4))
    a("  v_mul_u32_u24 v%d, 3584, v%d" % (T3, T3))
    a("  v_add_u32 v%d, v%d, v%d" % (T3, T3, T4))
    for n in range(4):
        a("  s_add_u32 m0, s%d, %d" % (sT[1], 65536 + n * 1024))
        if n:
            a("  s_add_u32 s%d, s%d, %d" % (sT[3], sT[3], 8 * 3584))
        else:
            a("  s_mov_b32 s%d, 0xffff0000" % sHi2)
        a("  buffer_load_dwordx4 v%d, s[%d:%d], s%d offen nt lds" % (T3, sGU, sGU + 3, sT[3]))
    if b0pos == 1:
        a("  s_barrier                      ; B0")
        stamp("B0")
    a("  v_lshrrev_b32 v%d, 4, v0" % hG)
    a("  v_and_b32 v%d, 15, v0" % hI)
    a("  v_mov_b32 v%d, %d" % (hMisc, FLG))
    a("  v_mov_b32 v%d, 1" % hOne)
    a("  v_mul_u32_u24 v%d, %d, v%d" % (T0, XN_STRIDE, T0))
    a("  v_add_u32 v%d, v%d, v%d" % (T0, T0, T1))
    a("  v_add_u32 v%d, %d, v%d" % (hZ, XN, T0))
    if noh:
        for _ in range(4):
            lds_add(hMisc, F_QRDY, hOne)
            lds_add(hMisc, F_STG, hOne)
        a("  s_barrier")
        a("  s_mov_b32 s%d, 0x10000000" % (sWs + 2))
        a("  s_mov_b32 s%d, 0x20000" % (sWs + 3))
        a("  s_cmp_lg_u32 s%d, 0" % sHW)
        a("  s_cbranch_scc1 L_H_done")
        a("  s_branch L_tsdump")
    a("  s_mov_b32 s%d, 0x10000000" % (sWs + 2))
    a("  s_mov_b32 s%d, 0x20000" % (sWs + 3))
    for base, size in ((sWd, 1835008), (sWo, 0x400000), (sOut, 8192)):
        a("  s_mov_b32 s%d, %d" % (base + 2, size))
        a("  s_mov_b32 s%d, 0x20000" % (base + 3))
    a("  s_mov_b32 s%d, 0xffffff00" % sNotFF)
    a("  s_mov_b32 s%d, 0x0c0c0400" % sSelA)
    a("  s_mov_b32 s%d, 0x04000c0c" % sSelB)

    def pk(op, d, s0, s1, extra=""):
        a("  %s v[%d:%d], v[%d:%d], v[%d:%d]%s" % (op, d, d + 1, s0, s0 + 1, s1, s1 + 1, extra))

    def allreduce32(v, t):
        for n in (1, 2, 4, 8):
            a("  s_nop 1")
            a("  v_add_f32_dpp v%d, v%d, v%d row_ror:%d %s" % (v, v, v, n, DPP))
        reduce_swap("v_add_f32", v, t, 16)

    def tag(v):
        a("  v_and_or_b32 v%d, v%d, s%d, v%d" % (v, v, sNotFF, hTag))

    def tag_retry(regs, lab_retry, lab_ok, t0_, t1_, sleep):
        rs = list(regs)
        assert len(rs) % 4 == 0
        for k in range(0, len(rs), 4):
            a("  v_perm_b32 v%d, v%d, v%d, s%d" % (t1_, rs[k + 1], rs[k], sSelA))
            a("  v_perm_b32 v%d, v%d, v%d, s%d" % (t1_ + 1, rs[k + 3], rs[k + 2], sSelB))
            if k == 0:
                a("  v_or_b32 v%d, v%d, v%d" % (t0_, t1_, t1_ + 1))
                a("  v_xor_b32 v%d, s%d, v%d" % (t0_, sTag4, t0_))
            else:
                a("  v_or_b32 v%d, v%d, v%d" % (t1_, t1_, t1_ + 1))
                a("  v_xor_b32 v%d, s%d, v%d" % (t1_, sTag4, t1_))
                a("  v_or_b32 v%d, v%d, v%d" % (t0_, t0_, t1_))
        a("  v_cmp_ne_u32 vcc, 0, v%d" % t0_)
        a("  s_cbranch_vccz %s" % lab_ok)
        a("  s_mov_b64 exec, vcc")
        a("  s_add_u32 s%d, s%d, 1" % (sCnt, sCnt))
        a("  s_cmp_lt_u32 s%d, %d" % (sCnt, SPIN_LIMIT))
        a("  s_cbranch_scc0 %s" % lab_ok)
        if isinstance(sleep, tuple):
            lz = a.lab("Lz")
            a("  s_cmp_eq_u32 s%d, 0" % sLoc)
            a("  s_cbranch_scc0 %s_l" % lz)
            a("  s_sleep %d" % sleep[1])
            a("  s_branch %s" % lab_retry)
            a("%s_l:" % lz)
            if sleep[0]:
                a("  s_sleep %d" % sleep[0])
        else:
            a("  s_sleep %d" % sleep)
        a("  s_branch %s" % lab_retry)

    def round_bf16(v):
        a("  v_cvt_pk_bf16_f32 v%d, v%d, v%d" % (v, v, v))
        a("  v_and_b32 v%d, s%d, v%d" % (v, sHi2, v))

    def untag(regs):
        for v in regs:
            a("  v_and_or_b32 v%d, v%d, s%d, v%d" % (v, v, sNotFF, hMid))

    a("  s_waitcnt vmcnt(8)")
    for i in range(8):
        a("  v_lshlrev_b32 v%d, 16, v%d" % (hF + 2 * i, hX + i))
        a("  v_and_b32 v%d, s%d, v%d" % (hF + 2 * i + 1, sHi2, hX + i))
    for i in range(4):
        pk("v_pk_add_f32", hY + 2 * i, hF + 4 * i, hF + 4 * i + 2)
    pk("v_pk_add_f32", hY, hY, hY + 2)
    pk("v_pk_add_f32", hY + 4, hY + 4, hY + 6)
    pk("v_pk_add_f32", hY, hY, hY + 4)
    vS = hZ + 8
    vV = hZ + 10
    a("  v_add_f32 v%d, v%d, v%d" % (vS, hY, hY + 1))
    allreduce32(vS, T0)
    a("  v_mul_f32 v%d, 0x3b000000, v%d     ; mean" % (vS, vS))
    for i in range(8):
        pk("v_pk_add_f32", hY + 2 * i, hF + 2 * i, vS, " op_sel_hi:[1,0] neg_lo:[0,1] neg_hi:[0,1]")
    pk("v_pk_mul_f32", vV, hY, hY)
    for i in range(1, 8):
        a("  v_pk_fma_f32 v[%d:%d], v[%d:%d], v[%d:%d], v[%d:%d]" % (vV, vV + 1, hY + 2 * i, hY + 2 * i + 1, hY + 2 * i, hY + 2 * i + 1, vV, vV + 1))
    a("  v_add_f32 v%d, v%d, v%d" % (vV, vV, vV + 1))
    allreduce32(vV, T0)
    a("  v_mul_f32 v%d, 0x3b000000, v%d     ; var" % (vV, vV))
    a("  v_cvt_pk_bf16_f32 v%d, v%d, v%d" % (vS, vS, vV))
    a("  v_and_b32 v%d, s%d, v%d" % (vV, sHi2, vS))
    a("  v_lshlrev_b32 v%d, 16, v%d            ; mean_bf" % (vS, vS))
    a("  v_add_f32 v%d, 0x3727c5ac, v%d" % (vV, vV))
    round_bf16(vV)
    a("  v_sqrt_f32 v%d, v%d" % (vV, vV))
    a("  s_nop 0")
    round_bf16(vV)
    a("  v_rcp_f32 v%d, v%d" % (vV, vV))
    for i in range(8):
        pk("v_pk_add_f32", hY + 2 * i, hF + 2 * i, vS, " op_sel_hi:[1,0] neg_lo:[0,1] neg_hi:[0,1]")
    for i in range(8):
        a("  v_cvt_pk_bf16_f32 v%d, v%d, v%d" % (hX + i, hY + 2 * i, hY + 2 * i + 1))
    for i in range(8):
        a("  v_lshlrev_b32 v%d, 16, v%d" % (hF + 2 * i, hX + i))
        a("  v_and_b32 v%d, s%d, v%d" % (hF + 2 * i + 1, sHi2, hX + i))
    for i in range(8):
        pk("v_pk_mul_f32", hY + 2 * i, hF + 2 * i, vV, " op_sel_hi:[1,0]")
    for i in range(8):
        a("  v_cvt_pk_bf16_f32 v%d, v%d, v%d" % (hX + i, hY + 2 * i, hY + 2 * i + 1))
    a("  ds_write_b128 v%d, v[%d:%d]" % (hZ, hX, hX + 3))
    a("  ds_write_b128 v%d, v[%d:%d] offset:16" % (hZ, hX + 4, hX + 7))
    stamp("LN done")

    a("  v_lshrrev_b32 v%d, 2, v%d" % (T0, hI))
    a("  v_lshl_add_u32 v%d, v%d, 3, v%d" % (T0, hG, T0))
    a("  v_lshlrev_b32 v%d, 7, v%d" % (T0, T0))
    a("  v_and_b32 v%d, 3, v%d" % (T1, hI))
    a("  v_lshl_add_u32 v%d, v%d, 3, v%d" % (hTrG, T1, T0))
    a("  s_lshl_b32 s%d, s%d, 5" % (sT[0], sHW))
    a("  s_add_u32 s%d, s%d, 24576" % (sT[0], sT[0]))
    a("  v_add_u32 v%d, s%d, v%d" % (hTr, sT[0], hTrG))
    a("  v_and_b32 v%d, 7, v%d" % (T0, hI))
    a("  v_mul_u32_u24 v%d, %d, v%d" % (T0, XN_STRIDE, T0))
    a("  v_lshl_add_u32 v%d, v%d, 4, v%d" % (T0, hG, T0))
    a("  v_add_u32 v%d, %d, v%d" % (hXn, XN, T0))
    a("  v_cmp_gt_u32 s[%d:%d], 8, v%d" % (sLo8, sLo8 + 1, hI))

    def tile_compute(kb_sgpr, stg_add):
        a("  s_lshl_b32 s%d, s%d, 8" % (sT[0], kb_sgpr))
        a("  v_add_u32 v%d, s%d, v%d" % (T0, sT[0], hXn))
        if stg_add:
            a("  v_add_u32 v%d, 0x%x, v%d" % (T1, stg_add, hTr))
            tr = T1
        else:
            tr = hTr
        for ks in range(4):
            base = (ks >> 1) * 32768 + (ks & 1) * 4096
            r = hA + ks * 4
            a("  ds_read_b64_tr_b16 v[%d:%d], v%d offset:%d" % (r, r + 1, tr, base))
            a("  ds_read_b64_tr_b16 v[%d:%d], v%d offset:%d" % (r + 2, r + 3, tr, base + 512))
            r = hB + ks * 4
            a("  ds_read_b128 v[%d:%d], v%d offset:%d" % (r, r + 3, T0, ks * 64))
        for ks in range(4):
            a("  s_waitcnt lgkmcnt(%d)" % (9 - 3 * ks))
            c = "0" if ks == 0 else "v[%d:%d]" % (hD, hD + 3)
            a("  v_mfma_f32_16x16x32_bf16 v[%d:%d], v[%d:%d], v[%d:%d], %s" % (hD, hD + 3, hA + ks * 4, hA + ks * 4 + 3, hB + ks * 4, hB + ks * 4 + 3, c))

    a("  s_waitcnt vmcnt(4) lgkmcnt(0)")
    a("  s_add_u32 s%d, s%d, 1" % (sTag, sEp))
    a("  s_and_b32 s%d, s%d, 0xff" % (sTag, sTag))
    a("  s_mul_i32 s%d, s%d, 0x01010101" % (sTag4, sTag))
    a("  v_mov_b32 v%d, s%d" % (hTag, sTag))
    a("  v_mov_b32 v%d, 0x80" % hMid)
    if early_census:
        lc = a.lab("Lc")
        a("  s_cmp_lg_u32 s%d, 1" % sHW)
        a("  s_cbranch_scc1 %s" % lc)
        a("  s_mov_b32 s%d, 256" % (sDbg + 2))
        a("  s_mov_b32 s%d, 0x20000" % (sDbg + 3))
        a("  s_getreg_b32 s%d, hwreg(HW_REG_XCC_ID, 0, 3)" % sT[4])
        a("  s_lshl_b32 s%d, s%d, 3" % (sT[4], sT[4]))
        a("  s_lshl_b64 s[%d:%d], 1, s%d" % (sT[6], sT[7], sT[4]))
        a("  v_mov_b32 v%d, s%d" % (hA, sT[6]))
        a("  v_mov_b32 v%d, s%d" % (hA + 1, sT[7]))
        a("  s_lshl_b32 s%d, s%d, 5" % (sT[4], sX))
        a("  v_mov_b32 v%d, s%d" % (T0, sT[4]))
        a("  s_mov_b64 exec, 1")
        a("  buffer_atomic_add_x2 v[%d:%d], v%d, s[%d:%d], 0 offen sc1" % (hA, hA + 1, T0, sDbg, sDbg + 3))
        a("  s_mov_b64 exec, -1")
        a("%s:" % lc)
    lds_add(hMisc, F_H1, hOne)
    lds_wait(hMisc, F_H1, 4, T5)
    stamp("Hsync1")
    tile_compute(sJ, 0)
    a("  v_lshlrev_b32 v%d, 11, v%d" % (T0, hI))
    a("  v_lshl_add_u32 v%d, v%d, 4, v%d" % (T0, hG, T0))
    a("  s_lshl_b32 s%d, s%d, 6" % (sT[0], sHW))
    a("  v_add_u32 v%d, s%d, v%d" % (T0, sT[0], T0))
    a("  s_lshl_b32 s%d, s%d, 2" % (sHq, sX))
    a("  s_add_u32 s%d, s%d, s%d" % (sHq, sHq, sJ))
    a("  s_lshl_b32 s%d, s%d, 14" % (sT[0], sHq))
    a("  s_lshl_b32 s%d, s%d, 8" % (sT[1], sB))
    a("  s_add_u32 s%d, s%d, s%d" % (sT[0], sT[0], sT[1]))
    if QP:
        a("  s_add_u32 s%d, s%d, %d" % (sT[0], sT[0], QP))
    for k in range(4):
        tag(hD + k)
    a("  s_mov_b64 exec, s[%d:%d]" % (sLo8, sLo8 + 1))
    a("  buffer_store_dwordx4 v[%d:%d], v%d, s[%d:%d], s%d offen sc1" % (hD, hD + 3, T0, sWs, sWs + 3, sT[0]))
    a("  s_mov_b64 exec, -1")
    stamp("QP stored")
    a("  s_lshl_b32 s%d, s%d, 2" % (sT[0], sHq))
    a("  s_add_u32 s%d, s%d, s%d" % (sT[0], sT[0], sHW))
    a("  s_lshl_b32 s%d, s%d, 15" % (sT[0], sT[0]))
    a("  s_lshl_b32 s%d, s%d, 7" % (sT[1], sB))
    a("  s_add_u32 s%d, s%d, s%d" % (sT[0], sT[0], sT[1]))
    a("  s_lshl_b32 s%d, s%d, 12" % (sWoStg, sHW))
    a("  s_add_u32 s%d, s%d, %d" % (sWoStg, sWoStg, WOS))
    for n in range(4):
        a("  s_add_u32 m0, s%d, %d" % (sWoStg, n * 1024))
        if n:
            a("  s_add_u32 s%d, s%d, 8192" % (sT[0], sT[0]))
        else:
            a("  s_nop 0")
        a("  buffer_load_dwordx4 v%d, s[%d:%d], s%d offen nt lds" % (hW1k, sWo, sWo + 3, sT[0]))
    a("  s_waitcnt vmcnt(5)")
    lds_add(hMisc, F_H3, hOne)
    lds_wait(hMisc, F_H3, 4, T5)
    stamp("Hsync3")
    tile_compute(sKb2, 65536)
    lds_add(hMisc, F_STG, hOne)
    a("  v_lshlrev_b32 v%d, 8, v%d" % (T0, hI))
    a("  v_lshl_add_u32 v%d, v%d, 4, v%d" % (T0, hG, T0))
    a("  s_lshl_b32 s%d, s%d, 6" % (sT[0], sHW))
    a("  v_add_u32 v%d, s%d, v%d" % (T0, sT[0], T0))
    a("  s_and_b32 s%d, s%d, 7" % (sT[0], sFi))
    a("  s_mul_i32 s%d, s%d, 28" % (sT[0], sT[0]))
    a("  s_lshr_b32 s%d, s%d, 3" % (sT[1], sFi))
    a("  s_add_u32 s%d, s%d, s%d" % (sT[0], sT[0], sT[1]))
    a("  s_lshl_b32 s%d, s%d, 11" % (sT[0], sT[0]))
    a("  s_add_u32 s%d, s%d, %d" % (sT[0], sT[0], GP))
    hGp, hGpOff, sGpS = 192, 196, 59
    for k in range(4):
        tag(hD + k)
    if gplocal:
        for k in range(4):
            a("  v_mov_b32 v%d, v%d" % (hGp + k, hD + k))
        a("  v_mov_b32 v%d, v%d" % (hGpOff, T0))
        a("  s_mov_b32 s%d, s%d" % (sGpS, sT[0]))
    else:
        lg = a.lab("Lg")
        a("  s_cmp_eq_u32 s%d, 0" % sFv)
        a("  s_cbranch_scc1 %s" % lg)
        a("  s_mov_b64 exec, s[%d:%d]" % (sLo8, sLo8 + 1))
        a("  buffer_store_dwordx4 v[%d:%d], v%d, s[%d:%d], s%d offen sc1" % (hD, hD + 3, T0, sWs, sWs + 3, sT[0]))
        a("  s_mov_b64 exec, -1")
        a("%s:" % lg)

    def gp_store(have_loc):
        if not gplocal:
            return
        if not have_loc:
            lds_wait(hMisc, F_LOC, 1, T5, sleep=8)
            a("  s_lshr_b32 s%d, s%d, 1" % (sLoc, sT[7]))
        lg = a.lab("Lg")
        a("  s_cmp_eq_u32 s%d, 0" % sFv)
        a("  s_cbranch_scc1 %s" % lg)
        a("  s_mov_b64 exec, s[%d:%d]" % (sLo8, sLo8 + 1))
        store_loc(["  buffer_store_dwordx4 v[%d:%d], v%d, s[%d:%d], s%d offen" % (hGp, hGp + 3, hGpOff, sWs, sWs + 3, sGpS)], sLoc)
        a("  s_mov_b64 exec, -1")
        a("%s:" % lg)
    stamp("tile1 done")
    a("  v_lshrrev_b32 v%d, 5, v0" % T0)
    a("  v_lshlrev_b32 v%d, 14, v%d" % (T0, T0))
    a("  v_and_b32 v%d, 31, v0" % T1)
    a("  v_lshl_add_u32 v%d, v%d, 4, v%d" % (T0, T1, T0))
    a("  s_lshl_b32 s%d, s%d, 9" % (sT[0], sHW))
    a("  v_add_u32 v%d, s%d, v%d" % (T0, sT[0], T0))
    a("  s_lshl_b32 s%d, s%d, 16" % (sT[0], sX))
    a("  s_lshl_b32 s%d, s%d, 11" % (sT[1], sB))
    a("  s_add_u32 s%d, s%d, s%d" % (sT[0], sT[0], sT[1]))
    if QP:
        a("  s_add_u32 s%d, s%d, %d" % (sT[0], sT[0], QP))
    a("  s_add_u32 s%d, s%d, 32768" % (sT[1], sT[0]))
    a("  s_mul_i32 s%d, s%d, %d" % (sT[2], sHW, QL_STRIDE))
    a("  s_add_u32 s%d, s%d, %d" % (sT[2], sT[2], QL))
    a("  v_lshlrev_b32 v%d, 3, v%d" % (T1, T1))
    a("  v_add_u32 v%d, s%d, v%d" % (T1, sT[2], T1))
    lr, lo = a.lab("Lr"), a.lab("Lo")
    a("  s_mov_b32 s%d, 0" % sCnt)
    a("%s:" % lr)
    NT = " nt" if gnt & 1 else ""
    a("  buffer_load_dwordx4 v[%d:%d], v%d, s[%d:%d], s%d offen sc1%s" % (hA, hA + 3, T0, sWs, sWs + 3, sT[0], NT))
    a("  buffer_load_dwordx4 v[%d:%d], v%d, s[%d:%d], s%d offen sc1%s" % (hA + 4, hA + 7, T0, sWs, sWs + 3, sT[1], NT))
    a("  s_waitcnt vmcnt(0)")
    tag_retry(range(hA, hA + 8), lr, lo, T2, T3, 2)
    a("%s:" % lo)
    a("  s_mov_b64 exec, -1")
    stamp("Q ok")
    untag(range(hA, hA + 8))
    pk("v_pk_add_f32", hA, hA, hA + 4)
    pk("v_pk_add_f32", hA + 2, hA + 2, hA + 6)
    for k in range(4):
        a("  v_mov_b32 v%d, v%d" % (hA + 4 + k, hA + k))
    a("  s_nop 1")
    for k in range(4):
        a("  v_permlane32_swap_b32 v%d, v%d" % (hA + k, hA + 4 + k))
    pk("v_pk_add_f32", hA, hA, hA + 4)
    pk("v_pk_add_f32", hA + 2, hA + 2, hA + 6)
    a("  v_cvt_pk_bf16_f32 v%d, v%d, v%d" % (hA, hA, hA + 1))
    a("  v_cvt_pk_bf16_f32 v%d, v%d, v%d" % (hA + 1, hA + 2, hA + 3))
    a("  s_mov_b32 exec_hi, 0")
    a("  ds_write_b64 v%d, v[%d:%d]" % (T1, hA, hA + 1))
    a("  s_mov_b64 exec, -1")
    a("  s_waitcnt lgkmcnt(0)")
    lds_add(hMisc, F_QRDY, hOne)
    stamp("Q rdy")

    a("  v_add_u32 v%d, s%d, v%d" % (T0, sWoStg, hTrG))
    l3 = a.lab("L3")
    a("  s_cmp_lg_u32 s%d, 3" % sHW)
    a("  s_cbranch_scc1 %s" % l3)
    a("  s_lshr_b32 s%d, s%d, 3" % (sT[0], sFi))
    a("  s_lshl_b32 s%d, s%d, 16" % (sT[1], sT[0]))
    a("  s_and_b32 s%d, s%d, 7" % (sT[2], sFi))
    a("  s_lshl_b32 s%d, s%d, 7" % (sT[2], sT[2]))
    a("  s_add_u32 s%d, s%d, s%d" % (sT[1], sT[1], sT[2]))
    for n in range(4):
        a("  s_mov_b32 m0, %d" % (SPARE + n * 1024))
        if n:
            a("  s_add_u32 s%d, s%d, 8192" % (sT[1], sT[1]))
        else:
            a("  s_nop 0")
        a("  buffer_load_dwordx4 v%d, s[%d:%d], s%d offen nt lds" % (hW1k, sWd, sWd + 3, sT[1]))
    a("%s:" % l3)
    for ct in range(4):
        r = hW + ct * 4
        a("  ds_read_b64_tr_b16 v[%d:%d], v%d offset:%d" % (r, r + 1, T0, ct * 32))
        a("  ds_read_b64_tr_b16 v[%d:%d], v%d offset:%d" % (r + 2, r + 3, T0, ct * 32 + 512))
    a("  s_waitcnt lgkmcnt(0)")
    l4 = a.lab("L4")
    a("  s_cmp_lg_u32 s%d, 3" % sHW)
    a("  s_cbranch_scc1 %s" % l4)
    for n in range(4):
        a("  s_add_u32 m0, s%d, %d" % (sWoStg, n * 1024))
        a("  s_add_u32 s%d, s%d, 8192" % (sT[1], sT[1]))
        a("  buffer_load_dwordx4 v%d, s[%d:%d], s%d offen nt lds" % (hW1k, sWd, sWd + 3, sT[1]))
    a("  v_add_u32 v%d, %d, v%d" % (T1, SPARE, hTrG))
    a("  s_waitcnt vmcnt(4)")
    for ct in range(4):
        r = hWd + ct * 8
        a("  ds_read_b64_tr_b16 v[%d:%d], v%d offset:%d" % (r, r + 1, T1, ct * 32))
        a("  ds_read_b64_tr_b16 v[%d:%d], v%d offset:%d" % (r + 2, r + 3, T1, ct * 32 + 512))
    a("  s_waitcnt vmcnt(0)")
    for ct in range(4):
        r = hWd + ct * 8 + 4
        a("  ds_read_b64_tr_b16 v[%d:%d], v%d offset:%d" % (r, r + 1, T0, ct * 32))
        a("  ds_read_b64_tr_b16 v[%d:%d], v%d offset:%d" % (r + 2, r + 3, T0, ct * 32 + 512))
    a("  s_waitcnt lgkmcnt(0)")
    a("%s:" % l4)
    stamp("wo frags")

    a("  s_lshl_b32 s%d, s%d, 5" % (sFidx, sB))
    a("  s_add_u32 s%d, s%d, s%d" % (sFidx, sFidx, sHq))
    a("  v_and_b32 v%d, 3, v0" % T0)
    a("  v_lshlrev_b32 v%d, 3, v%d" % (T0, T0))
    a("  s_lshl_b32 s%d, s%d, 5" % (sT[0], sFidx))
    a("  v_add_u32 v%d, s%d, v%d" % (hOutOff, sT[0], T0))
    if noffn:
        a("  s_branch L_B1")
    a("  s_cmp_eq_u32 s%d, 1" % sHW)
    a("  s_cbranch_scc1 %s" % ("L_B1" if skip & 1 else "L_ffn"))
    a("  s_cmp_eq_u32 s%d, 2" % sHW)
    a("  s_cbranch_scc1 %s" % ("L_B1" if skip & 2 else "L_stats"))
    a("  s_cmp_eq_u32 s%d, 0" % sHW)
    a("  s_cbranch_scc1 %s" % ("L_B1" if skip & 5 else "L_fin_prep"))
    a("  s_branch %s" % ("L_B1" if skip & 9 else "L_down"))

    a("L_ffn:")
    a("  s_mov_b32 s%d, 256" % (sDbg + 2))
    a("  s_mov_b32 s%d, 0x20000" % (sDbg + 3))
    a("  s_lshl_b32 s%d, s%d, 5" % (sT[0], sX))
    a("  v_mov_b32 v%d, s%d" % (T0, sT[0]))
    if not early_census:
        a("  s_getreg_b32 s%d, hwreg(HW_REG_XCC_ID, 0, 3)" % sT[4])
        a("  s_lshl_b32 s%d, s%d, 3" % (sT[4], sT[4]))
        a("  s_lshl_b64 s[%d:%d], 1, s%d" % (sT[6], sT[7], sT[4]))
        a("  v_mov_b32 v%d, s%d" % (hA, sT[6]))
        a("  v_mov_b32 v%d, s%d" % (hA + 1, sT[7]))
        a("  s_mov_b64 exec, 1")
        a("  buffer_atomic_add_x2 v[%d:%d], v%d, s[%d:%d], 0 offen sc1" % (hA, hA + 1, T0, sDbg, sDbg + 3))
        a("  s_mov_b64 exec, -1")
        lds_wait(hMisc, F_MID, 1, T5, sleep=8)
    a("  s_waitcnt vmcnt(0)")
    lr, lo = a.lab("Lr"), a.lab("Lo")
    a("  s_mov_b32 s%d, 0" % sCnt)
    a("  s_mov_b64 exec, 1")
    a("%s:" % lr)
    a("  buffer_load_dwordx2 v[%d:%d], v%d, s[%d:%d], 0 offen sc1" % (hA, hA + 1, T0, sDbg, sDbg + 3))
    a("  s_waitcnt vmcnt(0)")
    a("  v_readfirstlane_b32 s%d, v%d" % (sT[2], hA))
    a("  v_readfirstlane_b32 s%d, v%d" % (sT[3], hA + 1))
    a("  s_and_b32 s%d, s%d, 0x00ff00ff" % (sT[4], sT[2]))
    a("  s_lshr_b32 s%d, s%d, 8" % (sT[5], sT[2]))
    a("  s_and_b32 s%d, s%d, 0x00ff00ff" % (sT[5], sT[5]))
    a("  s_add_u32 s%d, s%d, s%d" % (sT[4], sT[4], sT[5]))
    a("  s_and_b32 s%d, s%d, 0x00ff00ff" % (sT[5], sT[3]))
    a("  s_add_u32 s%d, s%d, s%d" % (sT[4], sT[4], sT[5]))
    a("  s_lshr_b32 s%d, s%d, 8" % (sT[5], sT[3]))
    a("  s_and_b32 s%d, s%d, 0x00ff00ff" % (sT[5], sT[5]))
    a("  s_add_u32 s%d, s%d, s%d" % (sT[4], sT[4], sT[5]))
    a("  s_lshr_b32 s%d, s%d, 16" % (sT[5], sT[4]))
    a("  s_and_b32 s%d, s%d, 0xffff" % (sT[4], sT[4]))
    a("  s_add_u32 s%d, s%d, s%d" % (sT[4], sT[4], sT[5]))
    a("  s_cmp_ge_u32 s%d, 32" % sT[4])
    a("  s_cbranch_scc1 %s" % lo)
    a("  s_add_u32 s%d, s%d, 1" % (sCnt, sCnt))
    a("  s_cmp_lt_u32 s%d, %d" % (sCnt, SPIN_LIMIT))
    a("  s_cbranch_scc0 %s" % lo)
    a("  s_sleep 32")
    a("  s_branch %s" % lr)
    a("%s:" % lo)
    a("  s_mov_b64 exec, -1")
    a("  s_getreg_b32 s%d, hwreg(HW_REG_XCC_ID, 0, 3)" % sT[4])
    a("  s_lshl_b32 s%d, s%d, 3" % (sT[4], sT[4]))
    a("  s_lshr_b64 s[%d:%d], s[%d:%d], s%d" % (sT[2], sT[3], sT[2], sT[3], sT[4]))
    a("  s_and_b32 s%d, s%d, 0xff" % (sT[2], sT[2]))
    a("  s_cmp_eq_u32 s%d, 32" % sT[2])
    a("  s_cselect_b32 s%d, %d, 1" % (sT[2], 2 if uselocal else 1))
    a("  v_mov_b32 v%d, s%d" % (T0, sT[2]))
    a("  s_mov_b64 exec, 1")
    a("  ds_write_b32 v%d, v%d offset:%d" % (hMisc, T0, F_LOC))
    a("  s_mov_b64 exec, -1")
    a("  s_lshr_b32 s%d, s%d, 1" % (sLoc, sT[2]))
    gp_store(True)
    a("  s_cmp_eq_u32 s%d, 0" % sFv)
    a("  s_cbranch_scc1 L_ffn_done")
    a("  s_lshr_b32 s%d, s%d, 3" % (sT[0], sFi))
    a("  v_mul_u32_u24 v%d, %d, v%d" % (T0, 28 * 2048, hG))
    a("  v_lshl_add_u32 v%d, v%d, 4, v%d" % (T0, hI, T0))
    a("  s_lshl_b32 s%d, s%d, 11" % (sT[1], sT[0]))
    a("  s_and_b32 s%d, s%d, 7" % (sT[2], sFi))
    a("  s_lshl_b32 s%d, s%d, 8" % (sT[2], sT[2]))
    a("  s_add_u32 s%d, s%d, s%d" % (sT[1], sT[1], sT[2]))
    a("  s_add_u32 s%d, s%d, %d" % (sT[1], sT[1], GP))
    a("  s_add_u32 s%d, s%d, %d" % (sT[2], sT[1], 4 * 28 * 2048))
    lr, lo = a.lab("Lr"), a.lab("Lo")
    a("  s_mov_b32 s%d, 0" % sCnt)
    a("%s:" % lr)
    NT = " nt" if gnt & 2 else ""
    a("  buffer_load_dwordx4 v[%d:%d], v%d, s[%d:%d], s%d offen sc1%s" % (hA, hA + 3, T0, sWs, sWs + 3, sT[1], NT))
    a("  buffer_load_dwordx4 v[%d:%d], v%d, s[%d:%d], s%d offen sc1%s" % (hA + 4, hA + 7, T0, sWs, sWs + 3, sT[2], NT))
    a("  s_waitcnt vmcnt(0)")
    tag_retry(range(hA, hA + 8), lr, lo, T2, T3, 8 if gplocal else ffn_sleep)
    a("%s:" % lo)
    a("  s_mov_b64 exec, -1")
    untag(range(hA, hA + 8))
    for kind in (16, 32):
        for k in range(8):
            a("  v_mov_b32 v%d, v%d" % (hA + 8 + k, hA + k))
        a("  s_nop 1")
        for k in range(8):
            a("  v_permlane%d_swap_b32 v%d, v%d" % (kind, hA + k, hA + 8 + k))
        for k in range(0, 8, 2):
            pk("v_pk_add_f32", hA + k, hA + k, hA + 8 + k)
    g0, u0 = hA, hA + 4
    for k in range(8):
        round_bf16(hA + k)
    a("  s_mov_b32 s%d, 0xBFB8AA3B      ; -log2(e)" % sT[2])
    for k in range(4):
        a("  v_mul_f32 v%d, s%d, v%d" % (g0 + k, sT[2], g0 + k))
    for k in range(4):
        a("  v_exp_f32 v%d, v%d" % (g0 + k, g0 + k))
    a("  s_nop 0")
    for k in range(4):
        a("  v_add_f32 v%d, 1.0, v%d" % (g0 + k, g0 + k))
    for k in range(4):
        a("  v_rcp_f32 v%d, v%d" % (g0 + k, g0 + k))
    a("  s_nop 0")
    for k in range(4):
        round_bf16(g0 + k)
    for k in range(4):
        a("  v_mul_f32 v%d, v%d, v%d" % (g0 + k, g0 + k, u0 + k))
    for k in range(4):
        round_bf16(g0 + k)
    for k in range(4):
        a("  v_or_b32 v%d, v%d, v%d" % (g0 + k, g0 + k, hTag))
    a("  v_lshlrev_b32 v%d, 4, v0" % T0)
    a("  s_lshl_b32 s%d, s%d, 8" % (sT[1], sFi))
    a("  s_add_u32 s%d, s%d, %d" % (sT[1], sT[1], HH))
    a("  s_mov_b64 exec, 0xffff")
    store_loc(["  buffer_store_dwordx4 v[%d:%d], v%d, s[%d:%d], s%d offen" % (g0, g0 + 3, T0, sWs, sWs + 3, sT[1])], sLoc)
    a("  s_mov_b64 exec, -1")
    a("L_ffn_done:")
    lds_add(hMisc, F_RED, hOne)
    lds_wait(hMisc, F_EWS, 1, T5, sleep=4)
    for k in range(4):
        a("  v_mov_b32 v%d, v%d" % (hA + k, hTag))
    a("  s_lshl_b32 s%d, s%d, 9" % (sT[0], sX))
    a("  s_lshl_b32 s%d, s%d, 4" % (sT[1], sLi))
    a("  s_add_u32 s%d, s%d, s%d" % (sT[0], sT[0], sT[1]))
    a("  s_add_u32 s%d, s%d, %d" % (sT[0], sT[0], EW))
    a("  v_mov_b32 v%d, 0" % T0)
    a("  s_mov_b64 exec, 1")
    store_loc(["  buffer_store_dwordx4 v[%d:%d], v%d, s[%d:%d], s%d offen" % (hA, hA + 3, T0, sWs, sWs + 3, sT[0])], sLoc)
    a("  s_mov_b64 exec, -1")
    a("  s_branch L_B1")

    a("L_down:")
    gp_store(False)
    a("  s_cmp_eq_u32 s%d, 0" % sFv)
    a("  s_cbranch_scc1 L_down_done")
    lds_wait(hMisc, F_RED, 1, T5, sleep=8)
    a("  s_lshr_b32 s%d, s%d, 3" % (sT[0], sFi))
    a("  v_and_b32 v%d, 7, v%d" % (T0, hI))
    a("  v_lshlrev_b32 v%d, 8, v%d" % (T0, T0))
    a("  v_lshl_add_u32 v%d, v%d, 5, v%d" % (T0, hG, T0))
    a("  s_lshl_b32 s%d, s%d, 11" % (sT[1], sT[0]))
    a("  s_add_u32 s%d, s%d, %d" % (sT[1], sT[1], HH))
    lr, lo = a.lab("Lr"), a.lab("Lo")
    a("  s_mov_b32 s%d, 0" % sCnt)
    a("%s:" % lr)
    for k in range(4):
        a("  buffer_load_dwordx4 v[%d:%d], v%d, s[%d:%d], s%d offen offset:%d sc1" % (hA + 4 * k, hA + 4 * k + 3, T0, sWs, sWs + 3, sT[1], (k >> 1) * 128 + (k & 1) * 16))
    a("  s_waitcnt vmcnt(0)")
    tag_retry(range(hA, hA + 16), lr, lo, T2, T3, ffn_sleep)
    a("%s:" % lo)
    a("  s_mov_b64 exec, -1")
    a("  s_mov_b32 s%d, 0x07060302" % sT[2])
    for k in range(8):
        a("  v_perm_b32 v%d, v%d, v%d, s%d" % (hB + k, hA + 2 * k + 1, hA + 2 * k, sT[2]))
    a("  s_nop 1")
    for ct in range(4):
        d = hD + ct * 4
        r = hWd + ct * 8
        a("  v_mfma_f32_16x16x32_bf16 v[%d:%d], v[%d:%d], v[%d:%d], 0" % (d, d + 3, r, r + 3, hB, hB + 3))
        a("  v_mfma_f32_16x16x32_bf16 v[%d:%d], v[%d:%d], v[%d:%d], v[%d:%d]" % (d, d + 3, r + 4, r + 7, hB + 4, hB + 7, d, d + 3))
    a("  v_lshlrev_b32 v%d, 16, v%d" % (T0, hI))
    a("  v_lshl_add_u32 v%d, v%d, 4, v%d" % (T0, hG, T0))
    a("  s_and_b32 s%d, s%d, 7" % (sT[1], sFi))
    a("  s_lshl_b32 s%d, s%d, 13" % (sT[1], sT[1]))
    a("  s_lshl_b32 s%d, s%d, 6" % (sT[2], sT[0]))
    a("  s_add_u32 s%d, s%d, s%d" % (sT[1], sT[1], sT[2]))
    a("  s_add_u32 s%d, s%d, %d" % (sT[1], sT[1], DP))
    a("  s_nop 7")
    for i in range(16):
        tag(hD + i)
    a("  s_mov_b64 exec, s[%d:%d]" % (sLo8, sLo8 + 1))
    for ct in range(4):
        a("  buffer_store_dwordx4 v[%d:%d], v%d, s[%d:%d], s%d offen sc1" % (hD + ct * 4, hD + ct * 4 + 3, T0, sWs, sWs + 3, sT[1]))
        if ct < 3:
            a("  s_add_u32 s%d, s%d, 2048" % (sT[1], sT[1]))
    a("  s_mov_b64 exec, -1")
    a("  s_waitcnt vmcnt(0)")
    a("L_down_done:")
    lds_add(hMisc, F_DOWN, hOne)
    a("  s_branch L_B1")

    a("L_stats:")
    gp_store(False)
    lds_wait(hMisc, F_ST, 4, T5, sleep=st_sleep)
    a("  v_lshl_add_u32 v%d, v%d, 3, v%d" % (T0, hI, hMisc))
    mw, lw = hA, hA + 1
    a("  ds_read_b64 v[%d:%d], v%d offset:%d" % (mw, mw + 1, T0, SSTAT))
    a("  s_waitcnt lgkmcnt(0)")
    Mg, Lg, t_ = hA + 4, hA + 5, hA + 2
    a("  v_mov_b32 v%d, v%d" % (Mg, mw))
    a("  s_nop 1")
    a("  v_max_f32_dpp v%d, v%d, v%d row_ror:4 %s" % (Mg, Mg, Mg, DPP))
    a("  s_nop 1")
    a("  v_max_f32_dpp v%d, v%d, v%d row_ror:8 %s" % (Mg, Mg, Mg, DPP))
    a("  s_mov_b32 s%d, 0x3FB8AA3B" % sT[2])
    a("  v_sub_f32 v%d, v%d, v%d" % (t_, mw, Mg))
    a("  v_mul_f32 v%d, s%d, v%d" % (t_, sT[2], t_))
    a("  v_exp_f32 v%d, v%d" % (t_, t_))
    a("  s_nop 0")
    a("  v_mul_f32 v%d, v%d, v%d" % (Lg, lw, t_))
    a("  s_nop 1")
    a("  v_add_f32_dpp v%d, v%d, v%d row_ror:4 %s" % (Lg, Lg, Lg, DPP))
    a("  s_nop 1")
    a("  v_add_f32_dpp v%d, v%d, v%d row_ror:8 %s" % (Lg, Lg, Lg, DPP))
    a("  s_nop 1")
    a("  v_mov_b32_dpp v%d, v%d row_shl:1 %s bound_ctrl:0" % (Mg + 2, Mg, DPP))
    a("  v_mov_b32_dpp v%d, v%d row_shl:1 %s bound_ctrl:0" % (Mg + 3, Lg, DPP))
    a("  s_lshl_b32 s%d, s%d, 3" % (sT[0], sB))
    a("  s_add_u32 s%d, s%d, s%d" % (sT[0], sT[0], sX))
    a("  s_lshl_b32 s%d, s%d, 7" % (sT[0], sT[0]))
    a("  s_add_u32 s%d, s%d, %d" % (sT[0], sT[0], ST))
    a("  s_lshl_b32 s%d, s%d, 5" % (sT[1], sJ))
    a("  s_add_u32 s%d, s%d, s%d" % (sT[1], sT[1], sT[0]))
    for k in range(4):
        tag(Mg + k)
    a("  v_lshlrev_b32 v%d, 3, v%d" % (T1, hI))
    lds_wait(hMisc, F_LOC, 1, T5)
    a("  s_lshr_b32 s%d, s%d, 1" % (sLoc, sT[7]))
    a("  s_mov_b64 exec, 5")
    store_loc(["  buffer_store_dwordx4 v[%d:%d], v%d, s[%d:%d], s%d offen" % (Mg, Mg + 3, T1, sWs, sWs + 3, sT[1])], sLoc)
    a("  s_mov_b64 exec, -1")
    a("  v_lshrrev_b32 v%d, 1, v%d" % (T1, hI))
    a("  v_lshlrev_b32 v%d, 4, v%d" % (T1, T1))
    mj = hA + 8
    lr, lo = a.lab("Lr"), a.lab("Lo")
    a("  s_mov_b32 s%d, 0" % sCnt)
    a("%s:" % lr)
    a("  buffer_load_dwordx4 v[%d:%d], v%d, s[%d:%d], s%d offen sc1" % (mj, mj + 3, T1, sWs, sWs + 3, sT[0]))
    a("  s_waitcnt vmcnt(0)")
    tag_retry(range(mj, mj + 4), lr, lo, T2, T3, ffn_sleep)
    a("%s:" % lo)
    a("  s_mov_b64 exec, -1")
    a("  v_and_b32 v%d, 1, v%d" % (T2, hI))
    a("  v_cmp_eq_u32 vcc, 1, v%d" % T2)
    a("  s_nop 1")
    a("  v_cndmask_b32 v%d, v%d, v%d, vcc" % (mj, mj, mj + 2))
    a("  v_cndmask_b32 v%d, v%d, v%d, vcc" % (mj + 1, mj + 1, mj + 3))
    lj = mj + 1
    a("  v_and_b32 v%d, s%d, v%d" % (mj, sNotFF, mj))
    a("  v_and_or_b32 v%d, v%d, s%d, v%d" % (lj, lj, sNotFF, hMid))
    M2, L2 = hA + 12, hA + 13
    a("  v_mov_b32 v%d, v%d" % (M2, mj))
    a("  s_nop 1")
    a("  v_max_f32_dpp v%d, v%d, v%d row_ror:4 %s" % (M2, M2, M2, DPP))
    a("  s_nop 1")
    a("  v_max_f32_dpp v%d, v%d, v%d row_ror:8 %s" % (M2, M2, M2, DPP))
    a("  v_sub_f32 v%d, v%d, v%d" % (t_, mj, M2))
    a("  v_mul_f32 v%d, s%d, v%d" % (t_, sT[2], t_))
    a("  v_exp_f32 v%d, v%d" % (t_, t_))
    a("  s_nop 0")
    a("  v_mul_f32 v%d, v%d, v%d" % (L2, lj, t_))
    a("  s_nop 1")
    a("  v_add_f32_dpp v%d, v%d, v%d row_ror:4 %s" % (L2, L2, L2, DPP))
    a("  s_nop 1")
    a("  v_add_f32_dpp v%d, v%d, v%d row_ror:8 %s" % (L2, L2, L2, DPP))
    a("  v_sub_f32 v%d, v%d, v%d" % (t_, mw, M2))
    a("  v_mul_f32 v%d, s%d, v%d" % (t_, sT[2], t_))
    a("  v_exp_f32 v%d, v%d" % (t_, t_))
    a("  v_rcp_f32 v%d, v%d" % (L2, L2))
    a("  s_nop 0")
    a("  v_mul_f32 v%d, v%d, v%d" % (t_, t_, L2))
    a("  v_and_b32 v%d, 3, v%d" % (T0, hI))
    a("  v_lshlrev_b32 v%d, 4, v%d" % (T0, T0))
    a("  v_lshrrev_b32 v%d, 2, v%d" % (T1, hI))
    a("  v_lshl_add_u32 v%d, v%d, 2, v%d" % (T0, T1, T0))
    a("  v_add_u32 v%d, v%d, v%d" % (T0, T0, hMisc))
    a("  s_mov_b64 exec, 0xffff")
    a("  ds_write_b32 v%d, v%d offset:%d" % (T0, t_, FFAC))
    a("  s_mov_b64 exec, -1")
    a("  s_waitcnt lgkmcnt(0)")
    if nob1:
        lds_add(hMisc, F_F, hOne)
    a("  s_branch L_B1")

    def reduce_hd(base, tmp):
        a("  s_nop 1")
        for k in range(4):
            a("  v_add_f32_dpp v%d, v%d, v%d row_ror:4 %s" % (base + k, base + k, base + k, DPP))
        a("  s_nop 1")
        for k in range(4):
            a("  v_add_f32_dpp v%d, v%d, v%d row_ror:8 %s" % (base + k, base + k, base + k, DPP))
        for kind in (16, 32):
            for k in range(4):
                a("  v_mov_b32 v%d, v%d" % (tmp + k, base + k))
            a("  s_nop 1")
            for k in range(4):
                a("  v_permlane%d_swap_b32 v%d, v%d" % (kind, base + k, tmp + k))
            pk("v_pk_add_f32", base, base, tmp)
            pk("v_pk_add_f32", base + 2, base + 2, tmp + 2)

    a("L_fin_prep:")
    gp_store(False)
    lds_wait(hMisc, F_LATE, 1, T5, sleep=8)
    a("  buffer_load_dwordx2 v[%d:%d], v%d, s[%d:%d], 0 offen" % (hA + 8, hA + 9, hOutOff, sXd, sXd + 3))
    a("  v_lshlrev_b32 v%d, 4, v0" % T0)
    a("  s_lshl_b32 s%d, s%d, 11" % (sT[0], sFidx))
    a("  s_add_u32 s%d, s%d, %d" % (sT[0], sT[0], DP))
    for k in range(4):
        a("  v_mov_b32 v%d, v%d" % (hA + 4 + k, hTag))
    lr, lo = a.lab("Lr"), a.lab("Lo")
    a("  s_mov_b32 s%d, 0" % sCnt)
    a("%s:" % lr)
    NT = " nt" if gnt & 4 else ""
    a("  buffer_load_dwordx4 v[%d:%d], v%d, s[%d:%d], s%d offen sc1%s" % (hA, hA + 3, T0, sWs, sWs + 3, sT[0], NT))
    a("  s_mov_b64 s[%d:%d], exec" % (sT[4], sT[5]))
    a("  s_and_b32 exec_hi, exec_hi, 0xffff")
    ls = a.lab("Ls")
    a("  s_cbranch_execz %s" % ls)
    a("  buffer_load_dwordx4 v[%d:%d], v%d, s[%d:%d], s%d offen offset:1024 sc1%s" % (hA + 4, hA + 7, T0, sWs, sWs + 3, sT[0], NT))
    a("%s:" % ls)
    a("  s_mov_b64 exec, s[%d:%d]" % (sT[4], sT[5]))
    a("  s_waitcnt vmcnt(0)")
    tag_retry(range(hA, hA + 8), lr, lo, T2, T3, ffn_sleep)
    a("%s:" % lo)
    a("  s_mov_b64 exec, -1")
    untag(range(hA, hA + 8))
    pk("v_pk_add_f32", hA, hA, hA + 4)
    pk("v_pk_add_f32", hA + 2, hA + 2, hA + 6)
    reduce_hd(hA, hA + 4)
    hGv = hXf + 4
    for k in range(4):
        round_bf16(hA + k)
    a("  s_mov_b32 s%d, 0xBFB8AA3B" % sT[2])
    for k in range(4):
        a("  v_mul_f32 v%d, s%d, v%d" % (hA + 4 + k, sT[2], hA + k))
    for k in range(4):
        a("  v_exp_f32 v%d, v%d" % (hA + 4 + k, hA + 4 + k))
    a("  s_nop 0")
    for k in range(4):
        a("  v_add_f32 v%d, 1.0, v%d" % (hA + 4 + k, hA + 4 + k))
    for k in range(4):
        a("  v_rcp_f32 v%d, v%d" % (hA + 4 + k, hA + 4 + k))
    a("  s_nop 0")
    for k in range(4):
        a("  v_mul_f32 v%d, v%d, v%d" % (hGv + k, hA + k, hA + 4 + k))
    for k in range(4):
        round_bf16(hGv + k)
    a("  v_lshlrev_b32 v%d, 16, v%d" % (hXf, hA + 8))
    a("  v_and_b32 v%d, s%d, v%d" % (hXf + 1, sHi2, hA + 8))
    a("  v_lshlrev_b32 v%d, 16, v%d" % (hXf + 2, hA + 9))
    a("  v_and_b32 v%d, s%d, v%d" % (hXf + 3, sHi2, hA + 9))
    stamp("prep done")

    a("L_B1:")
    lds_wait(hMisc, F_LOC, 1, T5, sleep=8)
    a("  s_lshr_b32 s%d, s%d, 1" % (sLoc, sT[7]))
    a("  v_lshlrev_b32 v%d, 7, v%d" % (T0, hI))
    a("  v_lshl_add_u32 v%d, v%d, 5, v%d" % (T0, hG, T0))
    a("  s_lshl_b32 s%d, s%d, 14" % (sT[0], sHq))
    a("  s_lshl_b32 s%d, s%d, 11" % (sT[1], sHW))
    a("  s_add_u32 s%d, s%d, s%d" % (sT[0], sT[0], sT[1]))
    a("  s_add_u32 s%d, s%d, %d" % (sT[0], sT[0], OP))
    a("  s_add_u32 s%d, s%d, 8192" % (sT[1], sT[0]))
    a("  v_lshlrev_b32 v%d, 8, v%d" % (T1, hG))
    a("  v_lshl_add_u32 v%d, v%d, 2, v%d" % (T1, hI, T1))
    a("  s_lshl_b32 s%d, s%d, 11" % (sT[2], sHW))
    a("  s_add_u32 s%d, s%d, %d" % (sT[2], sT[2], WOS))
    a("  v_add_u32 v%d, s%d, v%d" % (T1, sT[2], T1))
    hP0, hP1, hQ0 = 157, 158, 159
    sP, sQ = 57, 58
    sSelH = 55
    a("  s_mov_b32 s%d, 0x07060302" % sSelH)
    a("  s_sub_u32 s%d, s%d, 2" % (sT[3], sHW))
    a("  s_lshl_b32 s%d, s%d, 10" % (sT[4], sT[3]))
    a("  s_add_u32 s%d, s%d, %d" % (sT[4], sT[4], WOS))
    a("  v_lshlrev_b32 v%d, 8, v%d" % (hP0, hG))
    a("  v_lshl_add_u32 v%d, v%d, 4, v%d      ; g*256 + i*16" % (hP0, hI, hP0))
    a("  v_add_u32 v%d, s%d, v%d" % (hP0, sT[4], hP0))
    a("  v_lshlrev_b32 v%d, 16, v%d" % (hP1, hG))
    a("  v_lshrrev_b32 v%d, 3, v%d" % (T2, hI))
    a("  v_lshl_add_u32 v%d, v%d, 12, v%d" % (hP1, T2, hP1))
    a("  v_and_b32 v%d, 7, v%d" % (T2, hI))
    a("  v_lshl_add_u32 v%d, v%d, 4, v%d" % (hP1, T2, hP1))
    a("  s_lshl_b32 s%d, s%d, 18" % (sT[3], sT[3]))
    a("  s_lshl_b32 s%d, s%d, 13" % (sT[4], sB))
    a("  s_add_u32 s%d, s%d, s%d" % (sT[3], sT[3], sT[4]))
    a("  s_lshl_b32 s%d, s%d, 7" % (sT[4], sHq))
    a("  s_add_u32 s%d, s%d, s%d" % (sT[3], sT[3], sT[4]))
    a("  s_add_u32 s%d, s%d, %d" % (sP, sT[3], SP))
    a("  v_lshrrev_b32 v%d, 2, v0" % hQ0)
    a("  v_lshlrev_b32 v%d, 7, v%d" % (hQ0, hQ0))
    a("  v_and_b32 v%d, 3, v0" % T2)
    a("  v_lshl_add_u32 v%d, v%d, 4, v%d" % (hQ0, T2, hQ0))
    a("  s_lshr_b32 s%d, s%d, 1" % (sT[3], sFidx))
    a("  s_lshl_b32 s%d, s%d, 12" % (sT[3], sT[3]))
    a("  s_and_b32 s%d, s%d, 1" % (sT[4], sFidx))
    a("  s_lshl_b32 s%d, s%d, 6" % (sT[4], sT[4]))
    a("  s_add_u32 s%d, s%d, s%d" % (sT[3], sT[3], sT[4]))
    a("  s_add_u32 s%d, s%d, %d" % (sQ, sT[3], SP))
    lw0 = a.lab("Lew")
    a("  s_cmp_lg_u32 s%d, 0" % sHW)
    a("  s_cbranch_scc1 %s" % lw0)
    a("  v_lshlrev_b32 v%d, 4, v0" % T5)
    a("  s_lshl_b32 s%d, s%d, 9" % (sT[2], sX))
    a("  s_add_u32 s%d, s%d, %d" % (sT[2], sT[2], EW))
    lr, lo = a.lab("Lr"), a.lab("Lo")
    a("  s_mov_b32 s%d, 0" % sCnt)
    a("  s_mov_b32 exec_hi, 0")
    a("%s:" % lr)
    a("  buffer_load_dwordx4 v[%d:%d], v%d, s[%d:%d], s%d offen sc1" % (hA, hA + 3, T5, sWs, sWs + 3, sT[2]))
    a("  s_waitcnt vmcnt(0)")
    tag_retry(range(hA, hA + 4), lr, lo, T2, T3, (8, 64))
    a("%s:" % lo)
    a("  s_mov_b64 exec, -1")
    if nob1:
        lw1 = a.lab("Lew")
        lds_add(hMisc, F_EW2, hOne)
        if gew:
            lg_ = a.lab("Lgew")
            a("  s_cmp_lg_u32 s%d, 0" % sLi)
            a("  s_cbranch_scc1 %s" % lg_)
            for k in range(4):
                a("  v_mov_b32 v%d, v%d" % (hA + k, hTag))
            a("  s_lshl_b32 s%d, s%d, 4" % (sT[2], sX))
            a("  s_add_u32 s%d, s%d, %d" % (sT[2], sT[2], GEW))
            a("  v_mov_b32 v%d, 0" % T5)
            a("  s_mov_b64 exec, 1")
            a("  buffer_store_dwordx4 v[%d:%d], v%d, s[%d:%d], s%d offen sc1" % (hA, hA + 3, T5, sWs, sWs + 3, sT[2]))
            a("  s_mov_b64 exec, -1")
            a("%s:" % lg_)
        a("  s_branch %s" % lw1)
        a("%s:" % lw0)
        lds_wait(hMisc, F_EW2, 1, T5, sleep=2)
        a("%s:" % lw1)
    else:
        a("%s:" % lw0)
        a("  s_barrier                      ; B1")
    stamp("B1")
    lr, lo = a.lab("Lr"), a.lab("Lo")
    a("  s_mov_b32 s%d, 0" % sCnt)
    for rt in range(2):
        a("  buffer_load_dwordx4 v[%d:%d], v%d, s[%d:%d], s%d offen sc1" % (hA + 8 * rt, hA + 8 * rt + 3, T0, sWs, sWs + 3, sT[rt]))
        a("  buffer_load_dwordx4 v[%d:%d], v%d, s[%d:%d], s%d offen offset:16 sc1" % (hA + 8 * rt + 4, hA + 8 * rt + 7, T0, sWs, sWs + 3, sT[rt]))
    if nob1 and gate_t0:
        lds_wait(hMisc, F_T0, 4, T5, sleep=1)
        a("  s_mov_b32 s%d, 0" % sCnt)
        a("  s_branch %s_c" % lr)
    else:
        a("  s_branch %s_c" % lr)
    a("%s:" % lr)
    for rt in range(2):
        a("  buffer_load_dwordx4 v[%d:%d], v%d, s[%d:%d], s%d offen sc1" % (hA + 8 * rt, hA + 8 * rt + 3, T0, sWs, sWs + 3, sT[rt]))
        a("  buffer_load_dwordx4 v[%d:%d], v%d, s[%d:%d], s%d offen offset:16 sc1" % (hA + 8 * rt + 4, hA + 8 * rt + 7, T0, sWs, sWs + 3, sT[rt]))
    a("%s_c:" % lr)
    a("  s_waitcnt vmcnt(0)")
    tag_retry(range(hA, hA + 16), lr, lo, T2, T3, (hop_sleep, 4))
    a("%s:" % lo)
    a("  s_mov_b64 exec, -1")
    stamp("hop1 ok")
    for k in range(8):
        a("  v_perm_b32 v%d, v%d, v%d, s%d" % (hB + k, hA + 2 * k + 1, hA + 2 * k, sSelH))
    a("  s_nop 1")
    for rt in range(2):
        for ct in range(4):
            d = hD + (rt * 4 + ct) * 4
            a("  v_mfma_f32_16x16x32_bf16 v[%d:%d], v[%d:%d], v[%d:%d], 0" % (d, d + 3, hB + 4 * rt, hB + 4 * rt + 3, hW + ct * 4, hW + ct * 4 + 3))
    a("  s_nop 0")
    for n in range(8):
        d = hD + n * 4
        pk("v_pk_add_f32", d, d, d + 2)
        a("  v_add_f32 v%d, v%d, v%d" % (d, d, d + 1))
    for rt in range(2):
        for ct in range(4):
            d = hD + (rt * 4 + ct) * 4
            a("  ds_write_b32 v%d, v%d offset:%d" % (T1, d, rt * 1024 + ct * 64))
    a("  s_waitcnt lgkmcnt(0)")
    a("  s_barrier")
    a("  s_cmp_eq_u32 s%d, 0" % sHW)
    a("  s_cbranch_scc1 L_hop2")
    a("  s_cmp_eq_u32 s%d, 1" % sHW)
    a("  s_cbranch_scc1 L_H_done")
    for w in range(4):
        a("  ds_read_b128 v[%d:%d], v%d offset:%d" % (hA + 4 * w, hA + 4 * w + 3, hP0, w * 2048))
    a("  s_waitcnt lgkmcnt(2)")
    for k in (0, 2):
        pk("v_pk_add_f32", hA + k, hA + k, hA + 4 + k)
    a("  s_waitcnt lgkmcnt(0)")
    for k in (0, 2):
        pk("v_pk_add_f32", hA + 8 + k, hA + 8 + k, hA + 12 + k)
    for k in (0, 2):
        pk("v_pk_add_f32", hA + k, hA + k, hA + 8 + k)
    for k in range(4):
        tag(hA + k)
    a("  buffer_store_dwordx4 v[%d:%d], v%d, s[%d:%d], s%d offen sc1" % (hA, hA + 3, hP1, sWs, sWs + 3, sP))
    a("  s_endpgm")

    a("L_hop2:")
    stamp("B2")

    def tag_check(rs, t0_, t1_):
        rs = list(rs)
        for k in range(0, len(rs), 4):
            a("  v_perm_b32 v%d, v%d, v%d, s%d" % (t1_, rs[k + 1], rs[k], sSelA))
            a("  v_perm_b32 v%d, v%d, v%d, s%d" % (t1_ + 1, rs[k + 3], rs[k + 2], sSelB))
            if k == 0:
                a("  v_or_b32 v%d, v%d, v%d" % (t0_, t1_, t1_ + 1))
                a("  v_xor_b32 v%d, s%d, v%d" % (t0_, sTag4, t0_))
            else:
                a("  v_or_b32 v%d, v%d, v%d" % (t1_, t1_, t1_ + 1))
                a("  v_xor_b32 v%d, s%d, v%d" % (t1_, sTag4, t1_))
                a("  v_or_b32 v%d, v%d, v%d" % (t0_, t0_, t1_))
        a("  v_cmp_ne_u32 vcc, 0, v%d" % t0_)

    FR = hA
    if gew:
        a("  v_lshlrev_b32 v%d, 4, v0" % T5)
        a("  s_mov_b32 s%d, %d" % (sT[2], GEW))
        lr, lo = a.lab("Lr"), a.lab("Lo")
        a("  s_mov_b32 s%d, 0" % sCnt)
        a("  s_mov_b64 exec, 0xff")
        a("%s:" % lr)
        a("  buffer_load_dwordx4 v[%d:%d], v%d, s[%d:%d], s%d offen sc1" % (hA, hA + 3, T5, sWs, sWs + 3, sT[2]))
        a("  s_waitcnt vmcnt(0)")
        tag_retry(range(hA, hA + 4), lr, lo, T2, T3, 4)
        a("%s:" % lo)
        a("  s_mov_b64 exec, -1")
    if pipe2:
        SA, SB, FR = hA, hA + 8, hB
        sMk = sT[4]
        def ld(R):
            a("  buffer_load_dwordx4 v[%d:%d], v%d, s[%d:%d], s%d offen sc1" % (R, R + 3, hQ0, sWs, sWs + 3, sQ))
            a("  buffer_load_dwordx4 v[%d:%d], v%d, s[%d:%d], s%d offen offset:2048 sc1" % (R + 4, R + 7, hQ0, sWs, sWs + 3, sQ))
        lp, ld_ = a.lab("Lp"), a.lab("Lpd")
        a("  s_mov_b64 s[%d:%d], -1" % (sMk, sMk + 1))
        a("  s_mov_b32 s%d, 0" % sCnt)
        ld(SA)
        a("%s:" % lp)
        for cur, nxt in ((SA, SB), (SB, SA)):
            ld(nxt)
            a("  s_waitcnt vmcnt(2)")
            tag_check(range(cur, cur + 8), T2, T3)
            lsk = a.lab("Lsk")
            a("  s_andn2_b64 exec, s[%d:%d], vcc" % (sMk, sMk + 1))
            a("  s_cbranch_execz %s" % lsk)
            for k in range(8):
                a("  v_mov_b32 v%d, v%d" % (FR + k, cur + k))
            a("%s:" % lsk)
            a("  s_mov_b64 s[%d:%d], vcc" % (sMk, sMk + 1))
            a("  s_cbranch_vccz %s" % ld_)
            a("  s_mov_b64 exec, vcc")
        a("  s_add_u32 s%d, s%d, 1" % (sCnt, sCnt))
        a("  s_cmp_lt_u32 s%d, %d" % (sCnt, SPIN_LIMIT))
        a("  s_cbranch_scc1 %s" % lp)
        a("%s:" % ld_)
        a("  s_mov_b64 exec, -1")
    else:
        lr, lo = a.lab("Lr"), a.lab("Lo")
        a("  s_mov_b32 s%d, 0" % sCnt)
        a("%s:" % lr)
        a("  buffer_load_dwordx4 v[%d:%d], v%d, s[%d:%d], s%d offen sc1" % (hA, hA + 3, hQ0, sWs, sWs + 3, sQ))
        a("  buffer_load_dwordx4 v[%d:%d], v%d, s[%d:%d], s%d offen offset:2048 sc1" % (hA + 4, hA + 7, hQ0, sWs, sWs + 3, sQ))
        a("  s_waitcnt vmcnt(0)")
        tag_retry(range(hA, hA + 8), lr, lo, T2, T3, h2_sleep)
        a("%s:" % lo)
        a("  s_mov_b64 exec, -1")
    stamp("hop2 ok")
    untag(range(FR, FR + 8))
    pk("v_pk_add_f32", FR, FR, FR + 4)
    pk("v_pk_add_f32", FR + 2, FR + 2, FR + 6)
    reduce_hd(FR, FR + 4)
    for k in range(4):
        round_bf16(FR + k)
    for k in range(4):
        a("  v_mul_f32 v%d, v%d, v%d" % (FR + k, FR + k, hGv + k))
    for k in range(4):
        round_bf16(FR + k)
    for k in range(4):
        a("  v_add_f32 v%d, v%d, v%d" % (FR + k, FR + k, hXf + k))
    a("  v_cvt_pk_bf16_f32 v%d, v%d, v%d" % (FR, FR, FR + 1))
    a("  v_cvt_pk_bf16_f32 v%d, v%d, v%d" % (FR + 1, FR + 2, FR + 3))
    a("  s_mov_b64 exec, 15")
    a("  buffer_store_dwordx2 v[%d:%d], v%d, s[%d:%d], 0 offen" % (FR, FR + 1, hOutOff, sOut, sOut + 3))
    a("  s_mov_b64 exec, -1")
    le = a.lab("Le")
    a("  s_cmp_lg_u32 s2, 0")
    a("  s_cbranch_scc1 %s" % le)
    a("  s_add_u32 s%d, s%d, 1" % (sT[0], sEp))
    a("  v_mov_b32 v%d, s%d" % (hD, sT[0]))
    a("  v_mov_b32 v%d, %d" % (T0, EPOCH))
    a("  s_mov_b64 exec, 1")
    a("  buffer_store_dword v%d, v%d, s[%d:%d], 0 offen" % (hD, T0, sWs, sWs + 3))
    a("  s_mov_b64 exec, -1")
    a("%s:" % le)
    stamp("end")
    if dbgtime:
        a("  s_memrealtime s[98:99]")
        a("  s_load_dwordx2 s[92:93], s[0:1], 80")
        a("  s_waitcnt lgkmcnt(0)")
        a("  s_mov_b32 s94, 256")
        a("  s_mov_b32 s95, 0x20000")
        a("  s_not_b32 s100, s100")
        a("  v_mov_b32 v%d, s100" % hA)
        a("  v_mov_b32 v%d, s98" % (hA + 1))
        a("  v_mov_b32 v%d, 0" % T0)
        a("  s_mov_b64 exec, 1")
        a("  buffer_atomic_umax v%d, v%d, s[92:95], 0 offen sc1" % (hA, T0))
        a("  buffer_atomic_umax v%d, v%d, s[92:95], 0 offen offset:4 sc1" % (hA + 1, T0))
        a("  s_mov_b64 exec, -1")
    a("L_tsdump:")
    if ts:
        a("  s_waitcnt lgkmcnt(0)")
        a("  s_lshl_b32 s%d, s2, 8" % sT[0])
        a("  s_add_u32 s%d, s%d, %d" % (sT[0], sT[0], TSOFF + 0x10000))
        a("  v_mov_b32 v%d, 0" % T2)
        a("  s_mov_b64 exec, 1")
        for i in range(len(names["H"])):
            a("  v_mov_b32 v%d, s%d" % (hA, TS0 + 2 * i))
            a("  v_mov_b32 v%d, s%d" % (hA + 1, TS0 + 2 * i + 1))
            a("  buffer_store_dwordx2 v[%d:%d], v%d, s[%d:%d], s%d offen offset:%d" % (hA, hA + 1, T2, sWs, sWs + 3, sT[0], 8 * i))
            a("  s_waitcnt vmcnt(0)")
        a("  s_mov_b64 exec, -1")
    a("  s_waitcnt vmcnt(0)")
    a("L_H_done:")
    a("L_end:")
    a("  s_endpgm")
    a("L_code_end:")

    lines = a.lines
    iH = lines.index("L_H:")
    iB0 = [k for k in range(iH, len(lines)) if "s_barrier" in lines[k] and "B0" in lines[k]][0]
    iE = iB0 + 1
    if ts and "s_memrealtime" in lines[iE]:
        iE += 1
    hpro = lines[iH + 1:iE]
    rest = lines[:iH] + ["L_H2:"] + lines[iE:]
    ib = [k for k, l in enumerate(rest) if l.strip() == "s_cbranch_scc1 L_H"][0]
    if layout:
        rest = rest[:ib] + ["  s_cbranch_scc0 L_S"] + hpro + ["  s_branch L_H2"] + rest[ib + 1:]
    else:
        rest = lines
    a.lines = rest
    body = a.text()
    s = HEADER
    s += "; @launch grid=(256,1,1) block=(512,1,1) lds=%d\n" % LDS_TOTAL
    s += '.amdgcn_target "amdgcn-amd-amdhsa--gfx950"\n.text\n'
    s += ".globl %s\n.p2align 8\n.type %s,@function\n%s:\n" % (KNAME, KNAME, KNAME)
    s += body
    s += """
.section .rodata,"a"
.p2align 6
.amdhsa_kernel %s
  .amdhsa_next_free_vgpr %d
  .amdhsa_next_free_sgpr 102
  .amdhsa_accum_offset %d
  .amdhsa_group_segment_fixed_size 0
  .amdhsa_kernarg_size 96
  .amdhsa_user_sgpr_count 2
  .amdhsa_user_sgpr_kernarg_segment_ptr 1
  .amdhsa_system_sgpr_workgroup_id_x 1
.end_amdhsa_kernel
""" % (KNAME, NV, NV)
    gen.names = names
    return s


if __name__ == "__main__":
    kw = {}
    out = "main.s"
    for arg in sys.argv[1:]:
        if "=" in arg:
            k, v = arg.split("=")
            kw[k] = int(v)
        else:
            out = arg
    open(out, "w").write(gen(**kw))
    import json
    json.dump(gen.names, open(out[:-2] + ".names.json", "w"))
    print("wrote", out)
```

```python
import sys
from asmlib import HEADER, KNAME

QP = 0x000000
GP = 0x080000
HH = 0x0F0000
OP = 0x100000
ST = 0x180000
DP = 0x190000
SP = 0x210000
EPOCH = 0x0FF000
EW = 0x2A0000
GEW = 0x2A2000
TSOFF = 0x0F000000

RING = 32768
MISC = 131072
XN = MISC
XN_STRIDE = 1040
QL = MISC + 8448
QL_STRIDE = 272
WOS = QL + 1088
WOS = (WOS + 255) // 256 * 256
FLG = WOS + 16384
F_H1 = 0; F_H3 = 8; F_QRDY = 16; F_STG = 20; F_ST = 24; F_HOP1 = 32; F_EW = 36; F_RED = 40; F_DOWN = 44; F_LATE = 48; F_EWS = 52; F_LOC = 56; F_MID = 60; F_T0 = 4; F_F = 12; F_EW2 = 28; F_GO = 32
SSTAT = 64
FFAC = 192
SPARE = FLG + 256
LDS_TOTAL = SPARE + 4096
assert LDS_TOTAL <= 163840, LDS_TOTAL
SPIN_LIMIT = 4000000


class Asm:
    def __init__(self):
        self.lines = []
        self.nlab = 0

    def __call__(self, s=""):
        for l in s.split("\n"):
            self.lines.append(l)

    def lab(self, base="L"):
        self.nlab += 1
        return "%s_%d" % (base, self.nlab)

    def text(self):
        return "\n".join(self.lines) + "\n"


def vr(base, n=1):
    return "v%d" % base if n == 1 else "v[%d:%d]" % (base, base + n - 1)


def sr(base, n=1):
    return "s%d" % base if n == 1 else "s[%d:%d]" % (base, base + n - 1)


DPP = "row_mask:0xf bank_mask:0xf"


def gen(ts=False, dbg=0, rotmode=3, depth=8, noq=0, noffn=0, hop_sleep=0, ew_it=3, dbgtime=0, noh=0, ffn_sleep=24, skip=0, st_sleep=4, late_it=1, uselocal=1, mid_it=2, r4=0, gnt=0, xnt=0, pf=1, b0pos=0, la=1, gplocal=0, early_census=1, layout=1, presm=0, pipe2=0, h2_sleep=0, sprio=0, dfill=0, dk=0, locnt=0, nob1=1, early_ka=1, gate_t0=1, gew=0, rdv=0, rdv_unit=2, opsc1=0, wide_ka=0, t0par=1):
    a = Asm()
    sW, sX, sLi, sCnt = 3, 4, 5, 6
    sT = [20, 21, 22, 23, 24, 25, 26, 27]
    TS0 = 68
    nts = [0]

    names = {"S": ["start"], "H": ["start"]}
    role = ["S"]

    def stamp(name):
        if name == 0:
            if ts:
                a("  s_memrealtime s[%d:%d]" % (TS0, TS0 + 1))
            return
        lst = names[role[0]]
        if name not in lst:
            lst.append(name)
        idx = lst.index(name)
        assert TS0 + 2 * idx + 1 <= 101
        if ts:
            a("  s_memrealtime s[%d:%d]" % (TS0 + 2 * idx, TS0 + 2 * idx + 1))

    def lds_wait(vbase, off, n, vtmp, sleep=1):
        l0, l1 = a.lab("Lw"), a.lab("Lwd")
        a("  s_mov_b32 s%d, 0" % sCnt)
        a("%s:" % l0)
        a("  ds_read_b32 v%d, v%d offset:%d" % (vtmp, vbase, off))
        a("  s_waitcnt lgkmcnt(0)")
        a("  v_readfirstlane_b32 s%d, v%d" % (sT[7], vtmp))
        a("  s_cmp_ge_u32 s%d, %d" % (sT[7], n))
        a("  s_cbranch_scc1 %s" % l1)
        a("  s_add_u32 s%d, s%d, 1" % (sCnt, sCnt))
        a("  s_cmp_lt_u32 s%d, %d" % (sCnt, SPIN_LIMIT))
        a("  s_cbranch_scc0 %s" % l1)
        a("  s_sleep %d" % sleep)
        a("  s_branch %s" % l0)
        a("%s:" % l1)

    def lds_add(vbase, off, vone):
        a("  s_mov_b64 exec, 1")
        a("  ds_add_u32 v%d, v%d offset:%d" % (vbase, vone, off))
        a("  s_mov_b64 exec, -1")

    def store_loc(stores, sflag):
        l0, l1 = a.lab("Lsl"), a.lab("Lsl")
        a("  s_cmp_eq_u32 s%d, 0" % sflag)
        a("  s_cbranch_scc1 %s" % l0)
        for st in stores:
            a(st + (" nt" if locnt else ""))
        a("  s_branch %s" % l1)
        a("%s:" % l0)
        for st in stores:
            a(st + " sc1")
        a("%s:" % l1)

    def reduce_swap(op, v, t, kind):
        a("  v_mov_b32 v%d, v%d" % (t, v))
        a("  s_nop 1")
        a("  v_permlane%d_swap_b32 v%d, v%d" % (kind, v, t))
        a("  %s v%d, v%d, v%d" % (op, v, v, t))

    a("  s_cmp_ge_u32 s2, 256")
    a("  s_cbranch_scc1 L_end")
    if early_ka and wide_ka:
        a("  s_load_dwordx16 s[68:83], s[0:1], 0")
        a("  s_load_dwordx8 s[84:91], s[0:1], 64")
    elif early_ka:
        a("  s_load_dwordx2 s[8:9], s[0:1], 0             ; x")
        a("  s_load_dwordx2 s[52:53], s[0:1], 8           ; K")
        a("  s_load_dwordx2 s[12:13], s[0:1], 24          ; wq")
        a("  s_load_dwordx2 s[16:17], s[0:1], 88          ; ws")
        a("  s_load_dwordx2 s[60:61], s[0:1], 16          ; V")
        a("  s_load_dwordx4 s[56:59], s[0:1], 48")
    stamp(0)
    if dbgtime:
        a("  s_memrealtime s[100:101]")
    a("  v_lshrrev_b32 v1, 6, v0")
    a("  v_and_b32 v0, 63, v0            ; lane")
    a("  v_readfirstlane_b32 s%d, v1     ; wave id" % sW)
    a("  s_and_b32 s%d, s2, 7" % sX)
    a("  s_lshr_b32 s%d, s2, 3" % sLi)
    a("  s_cmp_ge_u32 s%d, 4" % sW)
    a("  s_cbranch_scc1 L_H")

    sK, sV, sCur = 8, 12, 16
    if early_ka:
        sV, sCur = 60, 52
    sBaseW, sRot, sRing, sIss, sOff, sIt = 28, 29, 30, 31, 32, 33
    sOff1 = 50
    sLocS = 51
    sM = 34
    sScale, sHi = 42, 43
    vLane = 0
    vMisc, vOne = 2, 3
    vKo, vVo, vCo = 4, 8, 12
    vKa = 16
    vVa = 20
    vTmp = 28
    vSp = 36
    vPf = 44
    vAcc = 52
    vE = 56
    vSt = 72
    vO = 104
    vQ = 136
    NV = 200

    sWsS = 16 if early_ka else 44
    sEp = 48
    sBaseW1 = 49
    a("L_S:")
    if sprio:
        a("  s_setprio %d" % sprio)
    if pf:
        lpf = a.lab("Lpf")
        a("  s_cmp_lg_u32 s%d, 3" % sW)
        a("  s_cbranch_scc1 %s" % lpf)
        a("  s_and_b32 s%d, s%d, 15" % (sT[0], sLi))
        a("  s_cmp_lg_u32 s%d, 0" % sT[0])
        a("  s_cbranch_scc1 %s" % lpf)
        a("  s_getpc_b64 s[%d:%d]" % (sT[2], sT[3]))
        a("L_pc:")
        a("  v_lshlrev_b32 v%d, 7, v%d" % (vTmp + 2, vLane))
        a("  v_add_u32 v%d, 0x2000, v%d" % (vTmp + 3, vTmp + 2))
        a("  global_load_dword v%d, v%d, s[%d:%d]" % (vSt, vTmp + 2, sT[2], sT[3]))
        a("  v_cmp_gt_u32 vcc, L_code_end-L_pc, v%d" % (vTmp + 3))
        a("  s_and_saveexec_b64 s[%d:%d], vcc" % (sT[4], sT[5]))
        a("  s_cbranch_execz L_pf_done")
        a("  global_load_dword v%d, v%d, s[%d:%d]" % (vSt + 1, vTmp + 3, sT[2], sT[3]))
        a("L_pf_done:")
        a("  s_mov_b64 exec, -1")
        a("%s:" % lpf)
    if not early_ka:
        a("  s_load_dwordx2 s[%d:%d], s[0:1], 8" % (sCur, sCur + 1))
        a("  s_load_dwordx2 s[%d:%d], s[0:1], 16" % (sV, sV + 1))
        a("  s_load_dwordx2 s[%d:%d], s[0:1], 88" % (sWsS, sWsS + 1))
    a("  s_mov_b32 s%d, 0x4000000" % (sCur + 2))
    a("  s_mov_b32 s%d, 0x20000" % (sCur + 3))
    a("  s_lshr_b32 s%d, s%d, 2" % (sT[0], sLi))
    a("  s_lshl_b32 s%d, s%d, 3" % (sT[0], sT[0]))
    a("  s_add_u32 s%d, s%d, s%d" % (sT[0], sT[0], sX))
    a("  s_lshl_b32 s%d, s%d, 2" % (sT[0], sT[0]))
    a("  s_and_b32 s%d, s%d, 3" % (sT[1], sLi))
    a("  s_add_u32 s%d, s%d, s%d" % (sT[0], sT[0], sT[1]))
    a("  s_lshl_b32 s%d, s%d, 18" % (sT[0], sT[0]))
    a("  s_lshl_b32 s%d, s%d, 13" % (sT[1], sW))
    if r4:
        if r4 == 1:
            a("  s_lshl_b32 s%d, s%d, 12" % (sT[2], sLi))
        else:
            a("  s_lshr_b32 s%d, s%d, 2" % (sT[2], sLi))
            a("  s_add_u32 s%d, s%d, s%d" % (sT[2], sT[2], sX))
            a("  s_lshl_b32 s%d, s%d, 12" % (sT[2], sT[2]))
        a("  s_add_u32 s%d, s%d, s%d" % (sT[1], sT[1], sT[2]))
        a("  s_add_u32 s%d, s%d, 4096" % (sT[2], sT[1]))
        a("  s_and_b32 s%d, s%d, 0x7fff" % (sT[1], sT[1]))
        a("  s_and_b32 s%d, s%d, 0x7fff" % (sT[2], sT[2]))
        a("  s_add_u32 s%d, s%d, s%d" % (sBaseW, sT[0], sT[1]))
        a("  s_add_u32 s%d, s%d, s%d" % (sBaseW1, sT[0], sT[2]))
    else:
        a("  s_add_u32 s%d, s%d, s%d" % (sBaseW, sT[0], sT[1]))
        a("  s_add_u32 s%d, s%d, 4096" % (sBaseW1, sBaseW))
    if rotmode == 0:
        sRotR = 2
    elif rotmode == 3:
        sRotR = sLi
    else:
        a("  s_add_u32 s%d, s2, s%d" % (sRot, sLi))
        sRotR = sRot
    if rdv:
        a("  s_load_dwordx2 s[64:65], s[0:1], 80")
        a("  s_mov_b32 s66, 256")
        a("  s_mov_b32 s67, 0x20000")
    a("  s_lshl_b32 s%d, s%d, 15" % (sRing, sW))
    a("  s_mov_b32 s%d, 0" % sIss)
    t0, t1, t2 = vTmp, vTmp + 1, vTmp + 2
    a("  v_lshrrev_b32 v%d, 4, v%d      ; g = l>>4" % (t0, vLane))
    a("  v_and_b32 v%d, 15, v%d         ; c' = l&15" % (t1, vLane))
    for i in range(4):
        a("  v_add_u32 v%d, %d, v%d" % (t2, 4 * i, t0))
        a("  v_xor_b32 v%d, v%d, v%d" % (t2, t2, t1))
        a("  v_lshlrev_b32 v%d, 4, v%d" % (t2, t2))
        a("  v_lshl_add_u32 v%d, v%d, 8, v%d" % (vCo + i, t0, t2))
    a("  v_mov_b32 v%d, %d" % (vMisc, FLG))
    a("  v_mov_b32 v%d, 1" % vOne)
    a("  s_waitcnt lgkmcnt(0)")
    if wide_ka:
        a("  s_mov_b64 s[52:53], s[70:71]")
        a("  s_mov_b64 s[60:61], s[72:73]")
        a("  s_mov_b64 s[16:17], s[90:91]")
    a("  s_barrier                      ; B0")

    def issue_unit(switch=False, dep=None):
        depth_ = dep if dep else depth
        if switch:
            lsw = a.lab("Lsw")
            a("  s_cmp_lg_u32 s%d, 8" % sIss)
            a("  s_cbranch_scc1 %s" % lsw)
            for i in range(4):
                a("  s_mov_b32 s%d, s%d" % (sCur + i, sV + i))
            for i in range(4):
                a("  v_mov_b32 v%d, v%d" % (vCo + i, vVo + (i & 1)))
            a("%s:" % lsw)
        a("  s_add_u32 s%d, s%d, s%d" % (sT[0], sIss, sRotR))
        a("  s_and_b32 s%d, s%d, 7" % (sT[0], sT[0]))
        a("  s_lshl_b32 s%d, s%d, 15" % (sT[0], sT[0]))
        a("  s_add_u32 s%d, s%d, s%d" % (sOff, sT[0], sBaseW))
        a("  s_add_u32 s%d, s%d, s%d" % (sOff1, sT[0], sBaseW1))
        a("  s_and_b32 s%d, s%d, 3" % (sT[0], sIss))
        a("  s_lshl_b32 s%d, s%d, 13" % (sT[0], sT[0]))
        a("  s_add_u32 m0, s%d, s%d" % (sT[0], sRing))
        a("  s_add_u32 s%d, s%d, 1" % (sIss, sIss))
        a("  s_waitcnt vmcnt(%d)" % (depth_ - 1))
        for i in range(4):
            a("  buffer_load_dwordx4 v%d, s[%d:%d], s%d offen offset:%d nt lds" % (vCo + i, sCur, sCur + 3, sOff, i * 1024))
            if i < 3:
                a("  s_waitcnt vmcnt(%d)" % (depth_ - 1))
        a("  s_add_u32 m0, m0, 4096")
        a("  s_waitcnt vmcnt(%d)" % (depth_ - 1))
        for i in range(4):
            a("  buffer_load_dwordx4 v%d, s[%d:%d], s%d offen offset:%d nt lds" % (vCo + i, sCur, sCur + 3, sOff1, i * 1024))
            if i < 3:
                a("  s_waitcnt vmcnt(%d)" % (depth_ - 1))

    a("L_fill:")
    a("  s_cmp_lg_u32 s%d, 3" % sIss)
    a("  s_cbranch_scc1 L_fill_go")
    stamp("u2 issued")
    lds_wait(vMisc, F_STG, 4, vTmp + 5)
    stamp("STG ok")
    a("L_fill_go:")
    if rdv:
        lrd = a.lab("Lrd")
        a("  s_cmp_lg_u32 s%d, 0" % sW)
        a("  s_cbranch_scc1 %s" % lrd)
        a("  s_cmp_lg_u32 s%d, %d" % (sIss, rdv_unit))
        a("  s_cbranch_scc1 %s" % lrd)
        a("  s_lshl_b32 s%d, s%d, 5" % (sT[0], sX))
        a("  s_add_u32 s%d, s%d, 16" % (sT[0], sT[0]))
        a("  v_mov_b32 v%d, s%d" % (vTmp + 4, sT[0]))
        a("  s_waitcnt lgkmcnt(0)")
        a("  s_mov_b64 exec, 1")
        a("  buffer_atomic_add v%d, v%d, s[64:67], 0 offen sc1" % (vOne, vTmp + 4))
        a("  s_mov_b64 exec, -1")
        a("%s:" % lrd)
    issue_unit(dep=dfill)

    a("  s_cmp_lt_u32 s%d, 4" % sIss)
    a("  s_cbranch_scc1 L_fill")
    a("  s_load_dword s%d, s[%d:%d], 0x%x" % (sEp, sWsS, sWsS + 1, EPOCH))
    a("  s_mov_b32 s%d, 0x4000000" % (sV + 2))
    a("  s_mov_b32 s%d, 0x20000" % (sV + 3))
    a("  s_mov_b32 s%d, 0x10000000" % (sWsS + 2))
    a("  s_mov_b32 s%d, 0x20000" % (sWsS + 3))
    for i in range(2):
        a("  v_add_u32 v%d, %d, v%d" % (t2, 4 * i, t0))
        a("  v_lshlrev_b32 v%d, 1, v%d" % (t2, t2))
        a("  v_xor_b32 v%d, v%d, v%d" % (t2, t2, t1))
        a("  v_lshlrev_b32 v%d, 4, v%d" % (t2, t2))
        a("  v_lshl_add_u32 v%d, v%d, 8, v%d" % (vVo + i, t0, t2))
    for s in range(4):
        a("  v_add_u32 v%d, %d, v%d" % (t2, 4 * s, t0))
        a("  v_xor_b32 v%d, v%d, v%d" % (t2, t2, t1))
        a("  v_lshlrev_b32 v%d, 4, v%d" % (t2, t2))
        a("  v_lshl_add_u32 v%d, v%d, 8, v%d" % (t2, t1, t2))
        a("  v_add_u32 v%d, s%d, v%d" % (vKa + s, sRing, t2))
    t3, t4 = vTmp + 3, vTmp + 4
    a("  v_lshrrev_b32 v%d, 2, v%d" % (t2, t1))
    a("  v_lshl_add_u32 v%d, v%d, 2, v%d    ; row" % (t2, t0, t2))
    a("  v_and_b32 v%d, 7, v%d              ; row&7" % (t3, t2))
    a("  v_lshlrev_b32 v%d, 8, v%d" % (t2, t2))
    a("  v_and_b32 v%d, 3, v%d" % (t4, t1))
    a("  v_lshl_add_u32 v%d, v%d, 3, v%d" % (t2, t4, t2))
    a("  v_add_u32 v%d, s%d, v%d" % (t2, sRing, t2))
    for dt in range(8):
        a("  v_xor_b32 v%d, %d, v%d" % (t4, dt, t3))
        a("  v_lshl_add_u32 v%d, v%d, 5, v%d" % (vVa + dt, t4, t2))
    for i in range(64):
        a("  v_mov_b32 v%d, 0" % (vQ + i))
    a("  v_bfe_u32 v%d, v%d, 2, 2" % (t2, vLane))
    for t in range(4):
        a("  v_cmp_eq_u32 s[%d:%d], %d, v%d" % (sM + 2 * t, sM + 2 * t + 1, t, t2))
    a("  v_and_b32 v%d, 3, v%d" % (t2, vLane))
    a("  v_mul_u32_u24 v%d, %d, v%d" % (t2, QL_STRIDE, t2))
    a("  v_lshl_add_u32 v%d, v%d, 4, v%d" % (t2, t0, t2))
    a("  v_add_u32 v%d, %d, v%d" % (t2, QL, t2))
    a("  s_mov_b32 s%d, 0x3DB504F3      ; 128^-0.5" % sScale)
    a("  s_mov_b32 s%d, 0xffff0000" % sHi)
    stamp("fill done")
    if rdv:
        lrd, lrd2 = a.lab("Lrd"), a.lab("Lrd")
        a("  s_cmp_lg_u32 s%d, 0" % sW)
        a("  s_cbranch_scc1 %s" % lrd)
        a("  s_waitcnt vmcnt(0)")
        a("  v_lshlrev_b32 v%d, 5, v%d" % (vTmp + 4, vLane))
        a("  v_add_u32 v%d, 16, v%d" % (vTmp + 4, vTmp + 4))
        l0, l1 = a.lab("Lp"), a.lab("Lpd")
        a("  s_mov_b32 s%d, 0" % sCnt)
        a("  s_mov_b64 exec, 0xff")
        a("%s:" % l0)
        a("  buffer_load_dword v%d, v%d, s[64:67], 0 offen sc1" % (vTmp + 5, vTmp + 4))
        a("  s_waitcnt vmcnt(0)")
        a("  v_cmp_gt_u32 vcc, 32, v%d" % (vTmp + 5))
        a("  s_cbranch_vccz %s" % l1)
        a("  s_add_u32 s%d, s%d, 1" % (sCnt, sCnt))
        a("  s_cmp_lt_u32 s%d, %d" % (sCnt, SPIN_LIMIT))
        a("  s_cbranch_scc0 %s" % l1)
        a("  s_sleep 8")
        a("  s_branch %s" % l0)
        a("%s:" % l1)
        a("  s_mov_b64 exec, -1")
        lds_add(vMisc, F_GO, vOne)
        a("  s_branch %s" % lrd2)
        a("%s:" % lrd)
        lds_wait(vMisc, F_GO, 1, vTmp + 5, sleep=2)
        a("%s:" % lrd2)
        stamp("GO")
    if not noq:
        lds_wait(vMisc, F_QRDY, 4, vTmp + 5)
    stamp("Q ready")
    for t in range(4):
        a("  s_mov_b64 exec, s[%d:%d]" % (sM + 2 * t, sM + 2 * t + 1))
        for s in range(4):
            r = vQ + (t * 4 + s) * 4
            a("  ds_read_b128 v[%d:%d], v%d offset:%d" % (r, r + 3, t2, 64 * s))
    a("  s_mov_b64 exec, -1")
    a("  s_mov_b32 s%d, 0" % sIt)
    a("  s_waitcnt vmcnt(0) lgkmcnt(0)")

    a("L_k:")
    lmid = a.lab("Lmid")
    a("  s_cmp_lg_u32 s%d, 0" % sW)
    a("  s_cbranch_scc1 %s" % lmid)
    a("  s_cmp_lg_u32 s%d, %d" % (sIt, mid_it))
    a("  s_cbranch_scc1 %s" % lmid)
    lds_add(vMisc, F_MID, vOne)
    a("%s:" % lmid)
    for u in range(2):
        if u == 0:
            lsk = a.lab("Lsk")
            a("  s_cmp_lt_u32 s%d, %d" % (sIt, 3 if la == 1 else 2))
            a("  s_cbranch_scc1 %s" % lsk)
            issue_unit(switch=(la == 2), dep=dk)
            a("%s:" % lsk)
        else:
            issue_unit(switch=(la == 1), dep=dk)
        for hf in range(2):
            for s_ in range(4):
                r = vSt + (hf * 4 + s_) * 4
                a("  ds_read_b128 v[%d:%d], v%d offset:%d" % (r, r + 3, vKa + s_, u * 8192 + hf * 4096))
        for hf in range(2):
            a("  s_waitcnt lgkmcnt(%d)" % (4 if hf == 0 else 0))
            t = 2 * u + hf
            for s_ in range(4):
                r = vSt + (hf * 4 + s_) * 4
                q = vQ + (t * 4 + s_) * 4
                c = "0" if (u == 0 and hf == 0 and s_ == 0) else "v[%d:%d]" % (vAcc, vAcc + 3)
                a("  v_mfma_f32_16x16x32_bf16 v[%d:%d], v[%d:%d], v[%d:%d], %s" % (vAcc, vAcc + 3, r, r + 3, q, q + 3, c))
    for i in range(6):
        a("  v_mov_b32 v%d, v%d" % (vSp + i, vSp + i + 2))
    for s in range(4):
        a("  v_xor_b32 v%d, 0x4000, v%d" % (vKa + s, vKa + s))
    c0, c1 = vTmp, vTmp + 1
    e0 = vTmp + 2
    a("  v_cvt_pk_bf16_f32 v%d, v%d, v%d" % (c0, vAcc, vAcc + 1))
    a("  v_cvt_pk_bf16_f32 v%d, v%d, v%d" % (c1, vAcc + 2, vAcc + 3))
    a("  v_lshlrev_b32 v%d, 16, v%d" % (e0, c0))
    a("  v_and_b32 v%d, s%d, v%d" % (e0 + 1, sHi, c0))
    a("  v_lshlrev_b32 v%d, 16, v%d" % (e0 + 2, c1))
    a("  v_and_b32 v%d, s%d, v%d" % (e0 + 3, sHi, c1))
    for i in range(4):
        a("  v_mul_f32 v%d, s%d, v%d" % (e0 + i, sScale, e0 + i))
    a("  v_cvt_pk_bf16_f32 v%d, v%d, v%d" % (vSp + 6, e0, e0 + 1))
    a("  v_cvt_pk_bf16_f32 v%d, v%d, v%d" % (vSp + 7, e0 + 2, e0 + 3))
    a("  s_add_u32 s%d, s%d, 1" % (sIt, sIt))
    a("  s_cmp_lt_u32 s%d, 4" % sIt)
    a("  s_cbranch_scc1 L_k")
    stamp("K done")
    if presm and la == 1:
        issue_unit()

    for i in range(8):
        a("  v_lshlrev_b32 v%d, 16, v%d" % (vE + 2 * i, vSp + i))
        a("  v_and_b32 v%d, s%d, v%d" % (vE + 2 * i + 1, sHi, vSp + i))
    vM, vL, vX = vTmp, vTmp + 1, vTmp + 2
    a("  v_max3_f32 v%d, v%d, v%d, v%d" % (vM, vE, vE + 1, vE + 2))
    for i in range(3, 15, 2):
        a("  v_max3_f32 v%d, v%d, v%d, v%d" % (vM, vM, vE + i, vE + i + 1))
    a("  v_max_f32 v%d, v%d, v%d" % (vM, vM, vE + 15))
    a("  s_nop 1")
    a("  v_max_f32_dpp v%d, v%d, v%d row_ror:4 %s" % (vM, vM, vM, DPP))
    a("  s_nop 1")
    a("  v_max_f32_dpp v%d, v%d, v%d row_ror:8 %s" % (vM, vM, vM, DPP))
    reduce_swap("v_max_f32", vM, vX, 16)
    reduce_swap("v_max_f32", vM, vX, 32)
    a("  s_mov_b32 s%d, 0x3FB8AA3B      ; log2(e)" % sT[0])
    a("  v_mul_f32 v%d, s%d, v%d" % (vX, sT[0], vM))
    for i in range(16):
        a("  v_fma_f32 v%d, v%d, s%d, -v%d" % (vE + i, vE + i, sT[0], vX))
    for i in range(16):
        a("  v_exp_f32 v%d, v%d" % (vE + i, vE + i))
    a("  s_nop 0")
    for i in range(8):
        a("  v_cvt_pk_bf16_f32 v%d, v%d, v%d" % (vSp + i, vE + 2 * i, vE + 2 * i + 1))
    for i in range(4):
        a("  v_pk_add_f32 v[%d:%d], v[%d:%d], v[%d:%d]" % (vE + 2 * i, vE + 2 * i + 1, vE + 2 * i, vE + 2 * i + 1, vE + 8 + 2 * i, vE + 9 + 2 * i))
    for i in range(2):
        a("  v_pk_add_f32 v[%d:%d], v[%d:%d], v[%d:%d]" % (vE + 2 * i, vE + 2 * i + 1, vE + 2 * i, vE + 2 * i + 1, vE + 4 + 2 * i, vE + 5 + 2 * i))
    a("  v_pk_add_f32 v[%d:%d], v[%d:%d], v[%d:%d]" % (vE, vE + 1, vE, vE + 1, vE + 2, vE + 3))
    a("  v_add_f32 v%d, v%d, v%d" % (vL, vE, vE + 1))
    a("  s_nop 1")
    a("  v_add_f32_dpp v%d, v%d, v%d row_ror:4 %s" % (vL, vL, vL, DPP))
    a("  s_nop 1")
    a("  v_add_f32_dpp v%d, v%d, v%d row_ror:8 %s" % (vL, vL, vL, DPP))
    reduce_swap("v_add_f32", vL, vX, 16)
    reduce_swap("v_add_f32", vL, vX, 32)
    a("  s_lshl_b32 s%d, s%d, 5" % (sT[0], sW))
    a("  v_lshlrev_b32 v%d, 3, v%d" % (vX, vLane))
    a("  v_add_u32 v%d, s%d, v%d" % (vX, sT[0], vX))
    a("  v_add_u32 v%d, v%d, v%d" % (vX, vMisc, vX))
    a("  s_mov_b64 exec, 15")
    a("  ds_write_b64 v%d, v[%d:%d] offset:%d" % (vX, vM, vM + 1, SSTAT))
    a("  s_waitcnt lgkmcnt(0)")
    a("  s_mov_b64 exec, -1")
    lds_add(vMisc, F_ST, vOne)

    if t0par:
        vW0, vR0, vR1, vR2, vR3 = vE + 4, vE + 5, vE + 6, vE + 7, vE + 8
        sXm, sO0, sHiM = 34, 36, 38
        tq0, tq1 = vTmp + 2, vTmp + 3
        a("  v_and_b32 v%d, 15, v%d" % (tq1, vLane))
        a("  v_lshrrev_b32 v%d, 4, v%d" % (tq0, vLane))
        a("  v_lshlrev_b32 v%d, 9, v%d" % (vW0, tq1))
        a("  v_lshl_add_u32 v%d, v%d, 4, v%d" % (vW0, tq0, vW0))
        a("  v_add_u32 v%d, s%d, v%d" % (vW0, sRing, vW0))
        a("  v_cmp_gt_u32 s[%d:%d], 4, v%d" % (sXm, sXm + 1, tq1))
        a("  s_lshl_b32 s%d, s%d, 9" % (sT[0], sW))
        a("  v_and_b32 v%d, 31, v%d" % (vR0, vLane))
        a("  v_lshlrev_b32 v%d, 4, v%d" % (vR0, vR0))
        a("  v_add_u32 v%d, s%d, v%d" % (vR0, sT[0], vR0))
        a("  s_lshl_b32 s%d, s%d, 4" % (sT[0], sW))
        a("  v_add_u32 v%d, s%d, v%d" % (vR1, sT[0], vMisc))
        a("  v_bfe_u32 v%d, v%d, 3, 2" % (vR2, vLane))
        a("  v_lshlrev_b32 v%d, 11, v%d" % (vR2, vR2))
        a("  v_and_b32 v%d, 7, v%d" % (tq0, vLane))
        a("  v_lshl_add_u32 v%d, v%d, 4, v%d" % (vR2, tq0, vR2))
        a("  s_lshl_b32 s%d, s%d, 2" % (sO0, sX))
        a("  s_add_u32 s%d, s%d, s%d" % (sO0, sO0, sW))
        a("  s_lshl_b32 s%d, s%d, 14" % (sO0, sO0))
        a("  s_lshr_b32 s%d, s%d, 4" % (sT[1], sLi))
        a("  s_lshl_b32 s%d, s%d, 13" % (sT[1], sT[1]))
        a("  s_add_u32 s%d, s%d, s%d" % (sO0, sO0, sT[1]))
        a("  s_and_b32 s%d, s%d, 15" % (sT[1], sLi))
        a("  s_lshl_b32 s%d, s%d, 7" % (sT[1], sT[1]))
        a("  s_add_u32 s%d, s%d, s%d" % (sO0, sO0, sT[1]))
        a("  s_add_u32 s%d, s%d, %d" % (sO0, sO0, OP))
        a("  s_add_u32 s%d, s%d, 1" % (sT[1], sEp))
        a("  s_and_b32 s%d, s%d, 0xff" % (sT[1], sT[1]))
        a("  v_mov_b32 v%d, s%d" % (vR3, sT[1]))
        a("  s_mov_b32 s%d, 0xffff0000" % sHiM)
    for i in range(32):
        a("  v_mov_b32 v%d, 0" % (vO + i))
    a("  s_mov_b32 s%d, 0" % sIt)
    a("L_v:")
    a("  v_mov_b32 v%d, v%d" % (vPf, vSp))
    a("  v_mov_b32 v%d, v%d" % (vPf + 1, vSp + 1))
    for k, sh in ((2, 4), (4, 8), (6, 12)):
        a("  v_mov_b32_dpp v%d, v%d row_shl:%d %s bound_ctrl:0" % (vPf + k, vSp, sh, DPP))
        a("  v_mov_b32_dpp v%d, v%d row_shl:%d %s bound_ctrl:0" % (vPf + k + 1, vSp + 1, sh, DPP))
    for i in range(6):
        a("  v_mov_b32 v%d, v%d" % (vSp + i, vSp + i + 2))
    lew = a.lab("Lew")
    lew3 = a.lab("Lew")
    a("  s_cmp_lg_u32 s%d, 0" % sW)
    a("  s_cbranch_scc1 %s" % lew3)
    lew2 = a.lab("Lew")
    a("  s_cmp_lg_u32 s%d, %d" % (sIt, late_it))
    a("  s_cbranch_scc1 %s" % lew2)
    lds_add(vMisc, F_LATE, vOne)
    a("%s:" % lew2)
    a("  s_cmp_lg_u32 s%d, %d" % (sIt, ew_it))
    a("  s_cbranch_scc1 %s" % lew)
    lds_add(vMisc, F_EWS, vOne)
    if not t0par:
        if nob1:
            lds_wait(vMisc, F_LOC, 1, vTmp + 5, sleep=0)
            a("  s_lshr_b32 s%d, s%d, 1" % (sLocS, sT[7]))
            lds_wait(vMisc, F_F, 1, vTmp + 5, sleep=0)
        a("%s:" % lew3)
    else:
        a("%s:" % lew3)
        a("  s_cmp_lg_u32 s%d, %d" % (sIt, ew_it))
        a("  s_cbranch_scc1 %s" % lew)
        lds_wait(vMisc, F_LOC, 1, vTmp + 5, sleep=0)
        a("  s_lshr_b32 s%d, s%d, 1" % (sLocS, sT[7]))
        lds_wait(vMisc, F_F, 1, vTmp + 5, sleep=0)
    a("%s:" % lew)
    for u in range(2):
        if u == 0 and la == 1:
            if presm:
                lsk = a.lab("Lsk")
                a("  s_cmp_eq_u32 s%d, 0" % sIt)
                a("  s_cbranch_scc1 %s" % lsk)
                issue_unit()
                a("%s:" % lsk)
            else:
                issue_unit()
        else:
            lv_else, lv_done = a.lab("Lve"), a.lab("Lvd")
            a("  s_cmp_ge_u32 s%d, 3" % sIt)
            a("  s_cbranch_scc1 %s" % lv_else)
            issue_unit()
            a("  s_branch %s" % lv_done)
            a("%s:" % lv_else)
            a("  s_waitcnt vmcnt(%d)" % (8 if u == 0 else 0))
            a("%s:" % lv_done)
        for dt in range(8):
            r = vSt + dt * 4
            a("  ds_read_b64_tr_b16 v[%d:%d], v%d offset:%d" % (r, r + 1, vVa + dt, u * 8192))
            a("  ds_read_b64_tr_b16 v[%d:%d], v%d offset:%d" % (r + 2, r + 3, vVa + dt, u * 8192 + 4096))
        for dt in range(8):
            r = vSt + dt * 4
            o = vO + dt * 4
            if dt % 2 == 0:
                a("  s_waitcnt lgkmcnt(%d)" % (12 - 2 * dt if dt < 6 else 0))
            a("  v_mfma_f32_16x16x32_bf16 v[%d:%d], v[%d:%d], v[%d:%d], v[%d:%d]" % (o, o + 3, r, r + 3, vPf + 4 * u, vPf + 4 * u + 3, o, o + 3))
    for dt in range(8):
        a("  v_xor_b32 v%d, 0x4000, v%d" % (vVa + dt, vVa + dt))
    a("  s_add_u32 s%d, s%d, 1" % (sIt, sIt))
    a("  s_cmp_lt_u32 s%d, 4" % sIt)
    a("  s_cbranch_scc1 L_v")
    stamp("V done")
    if t0par:
        assert nob1
        sWs = sWsS
        a("  s_mov_b64 exec, s[%d:%d]" % (sXm, sXm + 1))
        for dt in range(8):
            a("  ds_write_b128 v%d, v[%d:%d] offset:%d" % (vW0, vO + dt * 4, vO + dt * 4 + 3, dt * 64))
        a("  s_mov_b64 exec, -1")
        a("  s_waitcnt lgkmcnt(0)")
        lds_add(vMisc, F_T0, vOne)
        lds_wait(vMisc, F_T0, 4, vTmp + 5, sleep=0)
        for w in range(4):
            a("  ds_read_b128 v[%d:%d], v%d offset:%d" % (vSt + w * 4, vSt + w * 4 + 3, vR0, (w & 1) * 32768))
            if w == 1:
                a("  v_add_u32 v%d, 0x10000, v%d" % (vR0, vR0))
        a("  ds_read_b128 v[%d:%d], v%d offset:%d" % (vE, vE + 3, vR1, FFAC))
        a("  s_waitcnt lgkmcnt(0)")
        for i in range(4):
            a("  v_mul_f32 v%d, v%d, v%d" % (vO + i, vSt + i, vE))
        for w in range(1, 4):
            for i in range(4):
                a("  v_fmac_f32 v%d, v%d, v%d" % (vO + i, vSt + w * 4 + i, vE + w))
        for i in range(4):
            a("  v_cvt_pk_bf16_f32 v%d, v%d, v%d" % (vO + i, vO + i, vO + i))
        for i in range(4):
            a("  v_and_or_b32 v%d, v%d, s%d, v%d" % (vO + i, vO + i, sHiM, vR3))
        a("  s_mov_b32 exec_hi, 0")
        store_loc(["  buffer_store_dwordx4 v[%d:%d], v%d, s[%d:%d], s%d offen" % (vO, vO + 3, vR2, sWs, sWs + 3, sO0)], sLocS)
        a("  s_mov_b64 exec, -1")
        a("  s_cmp_lg_u32 s%d, 0" % sW)
        a("  s_cbranch_scc1 L_S_done")
    else:
        a("  v_and_b32 v%d, 15, v%d" % (t1, vLane))
        a("  v_lshrrev_b32 v%d, 4, v%d" % (t0, vLane))
        a("  v_lshlrev_b32 v%d, 9, v%d" % (t2, t1))
        a("  v_lshl_add_u32 v%d, v%d, 4, v%d" % (t2, t0, t2))
        a("  v_add_u32 v%d, s%d, v%d" % (t2, sRing, t2))
        a("  v_cmp_gt_u32 vcc, 4, v%d" % t1)
        a("  s_nop 4")
        a("  s_mov_b64 exec, vcc")
        for dt in range(8):
            a("  ds_write_b128 v%d, v[%d:%d] offset:%d" % (t2, vO + dt * 4, vO + dt * 4 + 3, dt * 64))
        a("  s_mov_b64 exec, -1")
        vR0, vR1, vR2, vR3 = vPf, vPf + 1, vPf + 2, vPf + 3
        a("  v_lshlrev_b32 v%d, 9, v%d" % (vR0, t0))
        a("  v_lshl_add_u32 v%d, v%d, 4, v%d      ; h*512 + c*16" % (vR0, t1, vR0))
        a("  v_lshl_add_u32 v%d, v%d, 4, v%d      ; FLG + h*16" % (vR1, t0, vMisc))
        a("  v_lshlrev_b32 v%d, 14, v%d" % (vR2, t0))
        a("  v_lshrrev_b32 v%d, 3, v%d" % (t3, t1))
        a("  v_lshl_add_u32 v%d, v%d, 11, v%d" % (vR2, t3, vR2))
        a("  v_and_b32 v%d, 7, v%d" % (t3, t1))
        a("  v_lshl_add_u32 v%d, v%d, 4, v%d" % (vR2, t3, vR2))
        a("  s_lshl_b32 s%d, s%d, 16" % (sT[0], sX))
        a("  s_lshr_b32 s%d, s%d, 4" % (sT[1], sLi))
        a("  s_lshl_b32 s%d, s%d, 13" % (sT[1], sT[1]))
        a("  s_add_u32 s%d, s%d, s%d" % (sT[0], sT[0], sT[1]))
        a("  s_and_b32 s%d, s%d, 15" % (sT[1], sLi))
        a("  s_lshl_b32 s%d, s%d, 7" % (sT[1], sT[1]))
        a("  s_add_u32 s%d, s%d, s%d" % (sT[0], sT[0], sT[1]))
        a("  s_add_u32 s%d, s%d, %d" % (sT[0], sT[0], OP))
        a("  s_add_u32 s%d, s%d, 1" % (sT[1], sEp))
        a("  s_and_b32 s%d, s%d, 0xff" % (sT[1], sT[1]))
        a("  v_mov_b32 v%d, s%d" % (vR3, sT[1]))
        a("  s_add_u32 s%d, s%d, 4096" % (sT[1], sT[0]))
        a("  s_mov_b32 s%d, 0xffff0000" % sT[2])
        if not nob1:
            lds_wait(vMisc, F_LOC, 1, t3)
            a("  s_lshr_b32 s%d, s%d, 1" % (sLocS, sT[7]))
        a("  s_waitcnt lgkmcnt(0)")
        if nob1:
            lds_add(vMisc, F_T0, vOne)
            a("  s_cmp_lg_u32 s%d, 0" % sW)
            a("  s_cbranch_scc1 L_S_done")
            lds_wait(vMisc, F_T0, 4, t3, sleep=0)
        else:
            a("  s_barrier                      ; B1")
            a("  s_cmp_lg_u32 s%d, 0" % sW)
            a("  s_cbranch_scc1 L_S_done")
        sWs = sWsS
        for w in range(4):
            a("  ds_read_b128 v[%d:%d], v%d offset:%d" % (vSt + w * 8, vSt + w * 8 + 3, vR0, (w & 1) * 32768))
            a("  ds_read_b128 v[%d:%d], v%d offset:%d" % (vSt + w * 8 + 4, vSt + w * 8 + 7, vR0, (w & 1) * 32768 + 256))
            if w == 1:
                a("  v_add_u32 v%d, 0x10000, v%d" % (vR0, vR0))
        a("  ds_read_b128 v[%d:%d], v%d offset:%d" % (vE, vE + 3, vR1, FFAC))
        a("  s_waitcnt lgkmcnt(0)")
        for i in range(8):
            a("  v_mul_f32 v%d, v%d, v%d" % (vO + i, vSt + i, vE))
        for w in range(1, 4):
            for i in range(8):
                a("  v_fmac_f32 v%d, v%d, v%d" % (vO + i, vSt + w * 8 + i, vE + w))
        for i in range(8):
            a("  v_cvt_pk_bf16_f32 v%d, v%d, v%d" % (vO + i, vO + i, vO + i))
        for i in range(8):
            a("  v_and_or_b32 v%d, v%d, s%d, v%d" % (vO + i, vO + i, sT[2], vR3))
        if opsc1:
            a("  buffer_store_dwordx4 v[%d:%d], v%d, s[%d:%d], s%d offen sc1" % (vO, vO + 3, vR2, sWs, sWs + 3, sT[0]))
            a("  buffer_store_dwordx4 v[%d:%d], v%d, s[%d:%d], s%d offen sc1" % (vO + 4, vO + 7, vR2, sWs, sWs + 3, sT[1]))
        else:
            store_loc(["  buffer_store_dwordx4 v[%d:%d], v%d, s[%d:%d], s%d offen" % (vO, vO + 3, vR2, sWs, sWs + 3, sT[0]),
                       "  buffer_store_dwordx4 v[%d:%d], v%d, s[%d:%d], s%d offen" % (vO + 4, vO + 7, vR2, sWs, sWs + 3, sT[1])], sLocS)

    stamp("published")
    a("  s_barrier                      ; B2")
    if ts:
        a("  s_waitcnt lgkmcnt(0)")
        a("  s_lshl_b32 s%d, s2, 8" % sT[0])
        a("  s_add_u32 s%d, s%d, %d" % (sT[0], sT[0], TSOFF))
        a("  v_mov_b32 v%d, 0" % t2)
        a("  s_mov_b64 exec, 1")
        for i in range(len(names["S"])):
            a("  v_mov_b32 v%d, s%d" % (vO, TS0 + 2 * i))
            a("  v_mov_b32 v%d, s%d" % (vO + 1, TS0 + 2 * i + 1))
            a("  buffer_store_dwordx2 v[%d:%d], v%d, s[%d:%d], s%d offen offset:%d" % (vO, vO + 1, t2, sWs, sWs + 3, sT[0], 8 * i))
            a("  s_waitcnt vmcnt(0)")
        a("  s_mov_b64 exec, -1")
    a("L_S_done:")
    a("  s_endpgm")

    role[0] = "H"
    a("L_H:")
    sHW = 7
    sXd, sWq, sWs, sGU, sWd, sWo, sOut = 8, 12, 16, 32, 36, 40, 44
    sEp = 28
    sTag = 29
    sNotFF = 30
    sTag4 = 31
    sHi2 = 48
    sFi = 49
    sSelA, sSelB = 50, 54
    sB = 51; sJ = 52; sFidx = 53
    sKb2 = 55
    sLo8 = 60
    sFv = 3
    sLoc = 56
    sDbg = 64
    sHq = 62
    sWoStg = 63
    hMisc, hOne = 2, 3
    hG, hI = 4, 5
    hT = 6
    hX = 16
    hF = 24
    hY = 40
    hA = 56
    hB = 72
    hD = 88
    hW = 120
    hXf = 136
    hZ = 144
    hTag = 156
    hWd = 160
    hMid = 197
    T0, T1, T2, T3, T4, T5 = hT, hT + 1, hT + 2, hT + 3, hT + 4, hT + 5
    hTr, hXn, hW1k, hTrG, hOutOff = hZ + 1, hZ + 2, hZ + 4, hZ + 5, hZ + 6

    if not early_ka:
        a("  s_load_dwordx2 s[%d:%d], s[0:1], 0" % (sXd, sXd + 1))
        a("  s_load_dwordx2 s[%d:%d], s[0:1], 24" % (sWq, sWq + 1))
        a("  s_load_dwordx4 s[56:59], s[0:1], 48")
        a("  s_load_dwordx2 s[%d:%d], s[0:1], 88" % (sWs, sWs + 1))
    a("  v_lshlrev_b32 v%d, 2, v0" % T0)
    a("  v_add_u32 v%d, %d, v%d" % (T0, FLG, T0))
    a("  v_mov_b32 v%d, 0" % T1)
    a("  ds_write_b32 v%d, v%d" % (T0, T1))
    a("  s_sub_u32 s%d, s%d, 4" % (sHW, sW))
    a("  s_mov_b32 s%d, 8192" % (sXd + 2))
    a("  s_mov_b32 s%d, 0x20000" % (sXd + 3))
    a("  v_lshrrev_b32 v%d, 5, v0" % T0)
    a("  s_lshl_b32 s%d, s%d, 1" % (sT[0], sHW))
    a("  v_add_u32 v%d, s%d, v%d          ; row b" % (T0, sT[0], T0))
    a("  v_and_b32 v%d, 31, v0" % T1)
    a("  v_lshlrev_b32 v%d, 5, v%d" % (T1, T1))
    a("  v_lshl_add_u32 v%d, v%d, 10, v%d" % (T2, T0, T1))
    a("  s_waitcnt lgkmcnt(0)")
    if wide_ka:
        a("  s_mov_b64 s[8:9], s[68:69]")
        a("  s_mov_b64 s[12:13], s[74:75]")
        a("  s_mov_b64 s[16:17], s[90:91]")
        a("  s_mov_b64 s[56:57], s[80:81]")
        a("  s_mov_b64 s[58:59], s[82:83]")
    a("  buffer_load_dwordx4 v[%d:%d], v%d, s[%d:%d], 0 offen%s" % (hX, hX + 3, T2, sXd, sXd + 3, " nt" if xnt else ""))
    a("  buffer_load_dwordx4 v[%d:%d], v%d, s[%d:%d], 0 offen offset:16%s" % (hX + 4, hX + 7, T2, sXd, sXd + 3, " nt" if xnt else ""))
    a("  v_lshrrev_b32 v%d, 3, v0" % T3)
    a("  v_and_b32 v%d, 7, v0" % T4)
    a("  v_lshlrev_b32 v%d, 4, v%d" % (T4, T4))
    a("  v_lshl_add_u32 v%d, v%d, 13, v%d" % (T5, T3, T4))
    a("  s_and_b32 s%d, s%d, 3" % (sJ, sLi))
    a("  s_lshr_b32 s%d, s%d, 2" % (sB, sLi))
    a("  s_lshl_b32 s%d, s%d, 2" % (sT[0], sJ))
    a("  s_add_u32 s%d, s%d, s%d" % (sT[0], sT[0], sHW))
    a("  s_lshl_b32 s%d, s%d, 18" % (sT[0], sT[0]))
    a("  s_lshl_b32 s%d, s%d, 3" % (sT[1], sX))
    a("  s_add_u32 s%d, s%d, s%d" % (sT[1], sT[1], sB))
    a("  s_lshl_b32 s%d, s%d, 7" % (sT[1], sT[1]))
    a("  s_add_u32 s%d, s%d, s%d" % (sT[0], sT[0], sT[1]))
    a("  s_lshr_b32 s%d, s%d, 1" % (sT[1], sHW))
    a("  s_lshl_b32 s%d, s%d, 15" % (sT[1], sT[1]))
    a("  s_and_b32 s%d, s%d, 1" % (sT[2], sHW))
    a("  s_lshl_b32 s%d, s%d, 12" % (sT[2], sT[2]))
    a("  s_add_u32 s%d, s%d, s%d" % (sT[1], sT[1], sT[2]))
    a("  s_add_u32 s%d, s%d, 24576" % (sT[1], sT[1]))
    a("  s_mov_b32 s%d, 0x400000" % (sWq + 2))
    a("  s_mov_b32 s%d, 0x20000" % (sWq + 3))
    for n in range(4):
        a("  s_add_u32 m0, s%d, %d" % (sT[1], n * 1024))
        if n:
            a("  s_add_u32 s%d, s%d, %d" % (sT[0], sT[0], 8 * 8192))
        else:
            a("  s_load_dword s%d, s[%d:%d], 0x%x" % (sEp, sWs, sWs + 1, EPOCH))
        a("  buffer_load_dwordx4 v%d, s[%d:%d], s%d offen nt lds" % (T5, sWq, sWq + 3, sT[0]))
    if b0pos == 0:
        a("  s_barrier                      ; B0")
        stamp("B0")
    if wide_ka:
        a("  s_mov_b64 s[%d:%d], s[84:85]" % (sWd, sWd + 1))
        a("  s_mov_b64 s[%d:%d], s[76:77]" % (sWo, sWo + 1))
        a("  s_mov_b64 s[%d:%d], s[86:87]" % (sOut, sOut + 1))
        a("  s_mov_b64 s[%d:%d], s[88:89]" % (sDbg, sDbg + 1))
    else:
        a("  s_load_dwordx2 s[%d:%d], s[0:1], 64" % (sWd, sWd + 1))
        a("  s_load_dwordx2 s[%d:%d], s[0:1], 32" % (sWo, sWo + 1))
        a("  s_load_dwordx2 s[%d:%d], s[0:1], 72" % (sOut, sOut + 1))
        a("  s_load_dwordx2 s[%d:%d], s[0:1], 80" % (sDbg, sDbg + 1))
    a("  s_lshr_b32 s%d, s%d, 3" % (sT[4], sLi))
    a("  s_lshl_b32 s%d, s%d, 3" % (sT[4], sT[4]))
    a("  s_add_u32 s%d, s%d, s%d" % (sT[4], sT[4], sX))
    a("  s_cmp_lt_u32 s%d, 28" % sT[4])
    a("  s_cselect_b32 s%d, 1, 0" % sFv)
    a("  s_min_u32 s%d, s%d, 27" % (sT[4], sT[4]))
    a("  s_lshl_b32 s%d, s%d, 3" % (sFi, sT[4]))
    a("  s_and_b32 s%d, s%d, 7" % (sT[5], sLi))
    a("  s_add_u32 s%d, s%d, s%d" % (sFi, sFi, sT[5]))
    a("  s_and_b32 s%d, s%d, 3" % (sKb2, sFi))
    a("  s_lshl_b32 s%d, s%d, 2" % (sT[3], sKb2))
    a("  s_add_u32 s%d, s%d, s%d" % (sT[3], sT[3], sHW))
    a("  s_mul_i32 s%d, s%d, %d" % (sT[3], sT[3], 32 * 3584))
    a("  s_lshl_b32 s%d, s%d, 7" % (sT[4], sT[4]))
    a("  s_add_u32 s%d, s%d, s%d" % (sT[3], sT[3], sT[4]))
    a("  s_bitcmp1_b32 s%d, 2" % sFi)
    a("  s_cselect_b32 s%d, s58, s56" % sGU)
    a("  s_cselect_b32 s%d, s59, s57" % (sGU + 1))
    a("  s_mov_b32 s%d, 1835008" % (sGU + 2))
    a("  s_mov_b32 s%d, 0x20000" % (sGU + 3))
    a("  v_lshl_add_u32 v%d, v%d, 10, v%d" % (hW1k, T3, T4))
    a("  v_mul_u32_u24 v%d, 3584, v%d" % (T3, T3))
    a("  v_add_u32 v%d, v%d, v%d" % (T3, T3, T4))
    for n in range(4):
        a("  s_add_u32 m0, s%d, %d" % (sT[1], 65536 + n * 1024))
        if n:
            a("  s_add_u32 s%d, s%d, %d" % (sT[3], sT[3], 8 * 3584))
        else:
            a("  s_mov_b32 s%d, 0xffff0000" % sHi2)
        a("  buffer_load_dwordx4 v%d, s[%d:%d], s%d offen nt lds" % (T3, sGU, sGU + 3, sT[3]))
    if b0pos == 1:
        a("  s_barrier                      ; B0")
        stamp("B0")
    a("  v_lshrrev_b32 v%d, 4, v0" % hG)
    a("  v_and_b32 v%d, 15, v0" % hI)
    a("  v_mov_b32 v%d, %d" % (hMisc, FLG))
    a("  v_mov_b32 v%d, 1" % hOne)
    a("  v_mul_u32_u24 v%d, %d, v%d" % (T0, XN_STRIDE, T0))
    a("  v_add_u32 v%d, v%d, v%d" % (T0, T0, T1))
    a("  v_add_u32 v%d, %d, v%d" % (hZ, XN, T0))
    if noh:
        for _ in range(4):
            lds_add(hMisc, F_QRDY, hOne)
            lds_add(hMisc, F_STG, hOne)
        a("  s_barrier")
        a("  s_mov_b32 s%d, 0x10000000" % (sWs + 2))
        a("  s_mov_b32 s%d, 0x20000" % (sWs + 3))
        a("  s_cmp_lg_u32 s%d, 0" % sHW)
        a("  s_cbranch_scc1 L_H_done")
        a("  s_branch L_tsdump")
    a("  s_mov_b32 s%d, 0x10000000" % (sWs + 2))
    a("  s_mov_b32 s%d, 0x20000" % (sWs + 3))
    for base, size in ((sWd, 1835008), (sWo, 0x400000), (sOut, 8192)):
        a("  s_mov_b32 s%d, %d" % (base + 2, size))
        a("  s_mov_b32 s%d, 0x20000" % (base + 3))
    a("  s_mov_b32 s%d, 0xffffff00" % sNotFF)
    a("  s_mov_b32 s%d, 0x0c0c0400" % sSelA)
    a("  s_mov_b32 s%d, 0x04000c0c" % sSelB)

    def pk(op, d, s0, s1, extra=""):
        a("  %s v[%d:%d], v[%d:%d], v[%d:%d]%s" % (op, d, d + 1, s0, s0 + 1, s1, s1 + 1, extra))

    def allreduce32(v, t):
        for n in (1, 2, 4, 8):
            a("  s_nop 1")
            a("  v_add_f32_dpp v%d, v%d, v%d row_ror:%d %s" % (v, v, v, n, DPP))
        reduce_swap("v_add_f32", v, t, 16)

    def tag(v):
        a("  v_and_or_b32 v%d, v%d, s%d, v%d" % (v, v, sNotFF, hTag))

    def tag_retry(regs, lab_retry, lab_ok, t0_, t1_, sleep):
        rs = list(regs)
        assert len(rs) % 4 == 0
        for k in range(0, len(rs), 4):
            a("  v_perm_b32 v%d, v%d, v%d, s%d" % (t1_, rs[k + 1], rs[k], sSelA))
            a("  v_perm_b32 v%d, v%d, v%d, s%d" % (t1_ + 1, rs[k + 3], rs[k + 2], sSelB))
            if k == 0:
                a("  v_or_b32 v%d, v%d, v%d" % (t0_, t1_, t1_ + 1))
                a("  v_xor_b32 v%d, s%d, v%d" % (t0_, sTag4, t0_))
            else:
                a("  v_or_b32 v%d, v%d, v%d" % (t1_, t1_, t1_ + 1))
                a("  v_xor_b32 v%d, s%d, v%d" % (t1_, sTag4, t1_))
                a("  v_or_b32 v%d, v%d, v%d" % (t0_, t0_, t1_))
        a("  v_cmp_ne_u32 vcc, 0, v%d" % t0_)
        a("  s_cbranch_vccz %s" % lab_ok)
        a("  s_mov_b64 exec, vcc")
        a("  s_add_u32 s%d, s%d, 1" % (sCnt, sCnt))
        a("  s_cmp_lt_u32 s%d, %d" % (sCnt, SPIN_LIMIT))
        a("  s_cbranch_scc0 %s" % lab_ok)
        if isinstance(sleep, tuple):
            lz = a.lab("Lz")
            a("  s_cmp_eq_u32 s%d, 0" % sLoc)
            a("  s_cbranch_scc0 %s_l" % lz)
            a("  s_sleep %d" % sleep[1])
            a("  s_branch %s" % lab_retry)
            a("%s_l:" % lz)
            if sleep[0]:
                a("  s_sleep %d" % sleep[0])
        else:
            a("  s_sleep %d" % sleep)
        a("  s_branch %s" % lab_retry)

    def round_bf16(v):
        a("  v_cvt_pk_bf16_f32 v%d, v%d, v%d" % (v, v, v))
        a("  v_and_b32 v%d, s%d, v%d" % (v, sHi2, v))

    def untag(regs):
        for v in regs:
            a("  v_and_or_b32 v%d, v%d, s%d, v%d" % (v, v, sNotFF, hMid))

    a("  s_waitcnt vmcnt(8)")
    for i in range(8):
        a("  v_lshlrev_b32 v%d, 16, v%d" % (hF + 2 * i, hX + i))
        a("  v_and_b32 v%d, s%d, v%d" % (hF + 2 * i + 1, sHi2, hX + i))
    for i in range(4):
        pk("v_pk_add_f32", hY + 2 * i, hF + 4 * i, hF + 4 * i + 2)
    pk("v_pk_add_f32", hY, hY, hY + 2)
    pk("v_pk_add_f32", hY + 4, hY + 4, hY + 6)
    pk("v_pk_add_f32", hY, hY, hY + 4)
    vS = hZ + 8
    vV = hZ + 10
    a("  v_add_f32 v%d, v%d, v%d" % (vS, hY, hY + 1))
    allreduce32(vS, T0)
    a("  v_mul_f32 v%d, 0x3b000000, v%d     ; mean" % (vS, vS))
    for i in range(8):
        pk("v_pk_add_f32", hY + 2 * i, hF + 2 * i, vS, " op_sel_hi:[1,0] neg_lo:[0,1] neg_hi:[0,1]")
    pk("v_pk_mul_f32", vV, hY, hY)
    for i in range(1, 8):
        a("  v_pk_fma_f32 v[%d:%d], v[%d:%d], v[%d:%d], v[%d:%d]" % (vV, vV + 1, hY + 2 * i, hY + 2 * i + 1, hY + 2 * i, hY + 2 * i + 1, vV, vV + 1))
    a("  v_add_f32 v%d, v%d, v%d" % (vV, vV, vV + 1))
    allreduce32(vV, T0)
    a("  v_mul_f32 v%d, 0x3b000000, v%d     ; var" % (vV, vV))
    a("  v_cvt_pk_bf16_f32 v%d, v%d, v%d" % (vS, vS, vV))
    a("  v_and_b32 v%d, s%d, v%d" % (vV, sHi2, vS))
    a("  v_lshlrev_b32 v%d, 16, v%d            ; mean_bf" % (vS, vS))
    a("  v_add_f32 v%d, 0x3727c5ac, v%d" % (vV, vV))
    round_bf16(vV)
    a("  v_sqrt_f32 v%d, v%d" % (vV, vV))
    a("  s_nop 0")
    round_bf16(vV)
    a("  v_rcp_f32 v%d, v%d" % (vV, vV))
    for i in range(8):
        pk("v_pk_add_f32", hY + 2 * i, hF + 2 * i, vS, " op_sel_hi:[1,0] neg_lo:[0,1] neg_hi:[0,1]")
    for i in range(8):
        a("  v_cvt_pk_bf16_f32 v%d, v%d, v%d" % (hX + i, hY + 2 * i, hY + 2 * i + 1))
    for i in range(8):
        a("  v_lshlrev_b32 v%d, 16, v%d" % (hF + 2 * i, hX + i))
        a("  v_and_b32 v%d, s%d, v%d" % (hF + 2 * i + 1, sHi2, hX + i))
    for i in range(8):
        pk("v_pk_mul_f32", hY + 2 * i, hF + 2 * i, vV, " op_sel_hi:[1,0]")
    for i in range(8):
        a("  v_cvt_pk_bf16_f32 v%d, v%d, v%d" % (hX + i, hY + 2 * i, hY + 2 * i + 1))
    a("  ds_write_b128 v%d, v[%d:%d]" % (hZ, hX, hX + 3))
    a("  ds_write_b128 v%d, v[%d:%d] offset:16" % (hZ, hX + 4, hX + 7))
    stamp("LN done")

    a("  v_lshrrev_b32 v%d, 2, v%d" % (T0, hI))
    a("  v_lshl_add_u32 v%d, v%d, 3, v%d" % (T0, hG, T0))
    a("  v_lshlrev_b32 v%d, 7, v%d" % (T0, T0))
    a("  v_and_b32 v%d, 3, v%d" % (T1, hI))
    a("  v_lshl_add_u32 v%d, v%d, 3, v%d" % (hTrG, T1, T0))
    a("  s_lshl_b32 s%d, s%d, 5" % (sT[0], sHW))
    a("  s_add_u32 s%d, s%d, 24576" % (sT[0], sT[0]))
    a("  v_add_u32 v%d, s%d, v%d" % (hTr, sT[0], hTrG))
    a("  v_and_b32 v%d, 7, v%d" % (T0, hI))
    a("  v_mul_u32_u24 v%d, %d, v%d" % (T0, XN_STRIDE, T0))
    a("  v_lshl_add_u32 v%d, v%d, 4, v%d" % (T0, hG, T0))
    a("  v_add_u32 v%d, %d, v%d" % (hXn, XN, T0))
    a("  v_cmp_gt_u32 s[%d:%d], 8, v%d" % (sLo8, sLo8 + 1, hI))

    def tile_compute(kb_sgpr, stg_add):
        a("  s_lshl_b32 s%d, s%d, 8" % (sT[0], kb_sgpr))
        a("  v_add_u32 v%d, s%d, v%d" % (T0, sT[0], hXn))
        if stg_add:
            a("  v_add_u32 v%d, 0x%x, v%d" % (T1, stg_add, hTr))
            tr = T1
        else:
            tr = hTr
        for ks in range(4):
            base = (ks >> 1) * 32768 + (ks & 1) * 4096
            r = hA + ks * 4
            a("  ds_read_b64_tr_b16 v[%d:%d], v%d offset:%d" % (r, r + 1, tr, base))
            a("  ds_read_b64_tr_b16 v[%d:%d], v%d offset:%d" % (r + 2, r + 3, tr, base + 512))
            r = hB + ks * 4
            a("  ds_read_b128 v[%d:%d], v%d offset:%d" % (r, r + 3, T0, ks * 64))
        for ks in range(4):
            a("  s_waitcnt lgkmcnt(%d)" % (9 - 3 * ks))
            c = "0" if ks == 0 else "v[%d:%d]" % (hD, hD + 3)
            a("  v_mfma_f32_16x16x32_bf16 v[%d:%d], v[%d:%d], v[%d:%d], %s" % (hD, hD + 3, hA + ks * 4, hA + ks * 4 + 3, hB + ks * 4, hB + ks * 4 + 3, c))

    a("  s_waitcnt vmcnt(4) lgkmcnt(0)")
    a("  s_add_u32 s%d, s%d, 1" % (sTag, sEp))
    a("  s_and_b32 s%d, s%d, 0xff" % (sTag, sTag))
    a("  s_mul_i32 s%d, s%d, 0x01010101" % (sTag4, sTag))
    a("  v_mov_b32 v%d, s%d" % (hTag, sTag))
    a("  v_mov_b32 v%d, 0x80" % hMid)
    if early_census:
        lc = a.lab("Lc")
        a("  s_cmp_lg_u32 s%d, 1" % sHW)
        a("  s_cbranch_scc1 %s" % lc)
        a("  s_mov_b32 s%d, 256" % (sDbg + 2))
        a("  s_mov_b32 s%d, 0x20000" % (sDbg + 3))
        a("  s_getreg_b32 s%d, hwreg(HW_REG_XCC_ID, 0, 3)" % sT[4])
        a("  s_lshl_b32 s%d, s%d, 3" % (sT[4], sT[4]))
        a("  s_lshl_b64 s[%d:%d], 1, s%d" % (sT[6], sT[7], sT[4]))
        a("  v_mov_b32 v%d, s%d" % (hA, sT[6]))
        a("  v_mov_b32 v%d, s%d" % (hA + 1, sT[7]))
        a("  s_lshl_b32 s%d, s%d, 5" % (sT[4], sX))
        a("  v_mov_b32 v%d, s%d" % (T0, sT[4]))
        a("  s_mov_b64 exec, 1")
        a("  buffer_atomic_add_x2 v[%d:%d], v%d, s[%d:%d], 0 offen sc1" % (hA, hA + 1, T0, sDbg, sDbg + 3))
        a("  s_mov_b64 exec, -1")
        a("%s:" % lc)
    lds_add(hMisc, F_H1, hOne)
    lds_wait(hMisc, F_H1, 4, T5)
    stamp("Hsync1")
    tile_compute(sJ, 0)
    a("  v_lshlrev_b32 v%d, 11, v%d" % (T0, hI))
    a("  v_lshl_add_u32 v%d, v%d, 4, v%d" % (T0, hG, T0))
    a("  s_lshl_b32 s%d, s%d, 6" % (sT[0], sHW))
    a("  v_add_u32 v%d, s%d, v%d" % (T0, sT[0], T0))
    a("  s_lshl_b32 s%d, s%d, 2" % (sHq, sX))
    a("  s_add_u32 s%d, s%d, s%d" % (sHq, sHq, sJ))
    a("  s_lshl_b32 s%d, s%d, 14" % (sT[0], sHq))
    a("  s_lshl_b32 s%d, s%d, 8" % (sT[1], sB))
    a("  s_add_u32 s%d, s%d, s%d" % (sT[0], sT[0], sT[1]))
    if QP:
        a("  s_add_u32 s%d, s%d, %d" % (sT[0], sT[0], QP))
    for k in range(4):
        tag(hD + k)
    a("  s_mov_b64 exec, s[%d:%d]" % (sLo8, sLo8 + 1))
    a("  buffer_store_dwordx4 v[%d:%d], v%d, s[%d:%d], s%d offen sc1" % (hD, hD + 3, T0, sWs, sWs + 3, sT[0]))
    a("  s_mov_b64 exec, -1")
    stamp("QP stored")
    a("  s_lshl_b32 s%d, s%d, 2" % (sT[0], sHq))
    a("  s_add_u32 s%d, s%d, s%d" % (sT[0], sT[0], sHW))
    a("  s_lshl_b32 s%d, s%d, 15" % (sT[0], sT[0]))
    a("  s_lshl_b32 s%d, s%d, 7" % (sT[1], sB))
    a("  s_add_u32 s%d, s%d, s%d" % (sT[0], sT[0], sT[1]))
    a("  s_lshl_b32 s%d, s%d, 12" % (sWoStg, sHW))
    a("  s_add_u32 s%d, s%d, %d" % (sWoStg, sWoStg, WOS))
    for n in range(4):
        a("  s_add_u32 m0, s%d, %d" % (sWoStg, n * 1024))
        if n:
            a("  s_add_u32 s%d, s%d, 8192" % (sT[0], sT[0]))
        else:
            a("  s_nop 0")
        a("  buffer_load_dwordx4 v%d, s[%d:%d], s%d offen nt lds" % (hW1k, sWo, sWo + 3, sT[0]))
    a("  s_waitcnt vmcnt(5)")
    lds_add(hMisc, F_H3, hOne)
    lds_wait(hMisc, F_H3, 4, T5)
    stamp("Hsync3")
    tile_compute(sKb2, 65536)
    lds_add(hMisc, F_STG, hOne)
    a("  v_lshlrev_b32 v%d, 8, v%d" % (T0, hI))
    a("  v_lshl_add_u32 v%d, v%d, 4, v%d" % (T0, hG, T0))
    a("  s_lshl_b32 s%d, s%d, 6" % (sT[0], sHW))
    a("  v_add_u32 v%d, s%d, v%d" % (T0, sT[0], T0))
    a("  s_and_b32 s%d, s%d, 7" % (sT[0], sFi))
    a("  s_mul_i32 s%d, s%d, 28" % (sT[0], sT[0]))
    a("  s_lshr_b32 s%d, s%d, 3" % (sT[1], sFi))
    a("  s_add_u32 s%d, s%d, s%d" % (sT[0], sT[0], sT[1]))
    a("  s_lshl_b32 s%d, s%d, 11" % (sT[0], sT[0]))
    a("  s_add_u32 s%d, s%d, %d" % (sT[0], sT[0], GP))
    hGp, hGpOff, sGpS = 192, 196, 59
    for k in range(4):
        tag(hD + k)
    if gplocal:
        for k in range(4):
            a("  v_mov_b32 v%d, v%d" % (hGp + k, hD + k))
        a("  v_mov_b32 v%d, v%d" % (hGpOff, T0))
        a("  s_mov_b32 s%d, s%d" % (sGpS, sT[0]))
    else:
        lg = a.lab("Lg")
        a("  s_cmp_eq_u32 s%d, 0" % sFv)
        a("  s_cbranch_scc1 %s" % lg)
        a("  s_mov_b64 exec, s[%d:%d]" % (sLo8, sLo8 + 1))
        a("  buffer_store_dwordx4 v[%d:%d], v%d, s[%d:%d], s%d offen sc1" % (hD, hD + 3, T0, sWs, sWs + 3, sT[0]))
        a("  s_mov_b64 exec, -1")
        a("%s:" % lg)

    def gp_store(have_loc):
        if not gplocal:
            return
        if not have_loc:
            lds_wait(hMisc, F_LOC, 1, T5, sleep=8)
            a("  s_lshr_b32 s%d, s%d, 1" % (sLoc, sT[7]))
        lg = a.lab("Lg")
        a("  s_cmp_eq_u32 s%d, 0" % sFv)
        a("  s_cbranch_scc1 %s" % lg)
        a("  s_mov_b64 exec, s[%d:%d]" % (sLo8, sLo8 + 1))
        store_loc(["  buffer_store_dwordx4 v[%d:%d], v%d, s[%d:%d], s%d offen" % (hGp, hGp + 3, hGpOff, sWs, sWs + 3, sGpS)], sLoc)
        a("  s_mov_b64 exec, -1")
        a("%s:" % lg)
    stamp("tile1 done")
    a("  v_lshrrev_b32 v%d, 5, v0" % T0)
    a("  v_lshlrev_b32 v%d, 14, v%d" % (T0, T0))
    a("  v_and_b32 v%d, 31, v0" % T1)
    a("  v_lshl_add_u32 v%d, v%d, 4, v%d" % (T0, T1, T0))
    a("  s_lshl_b32 s%d, s%d, 9" % (sT[0], sHW))
    a("  v_add_u32 v%d, s%d, v%d" % (T0, sT[0], T0))
    a("  s_lshl_b32 s%d, s%d, 16" % (sT[0], sX))
    a("  s_lshl_b32 s%d, s%d, 11" % (sT[1], sB))
    a("  s_add_u32 s%d, s%d, s%d" % (sT[0], sT[0], sT[1]))
    if QP:
        a("  s_add_u32 s%d, s%d, %d" % (sT[0], sT[0], QP))
    a("  s_add_u32 s%d, s%d, 32768" % (sT[1], sT[0]))
    a("  s_mul_i32 s%d, s%d, %d" % (sT[2], sHW, QL_STRIDE))
    a("  s_add_u32 s%d, s%d, %d" % (sT[2], sT[2], QL))
    a("  v_lshlrev_b32 v%d, 3, v%d" % (T1, T1))
    a("  v_add_u32 v%d, s%d, v%d" % (T1, sT[2], T1))
    lr, lo = a.lab("Lr"), a.lab("Lo")
    a("  s_mov_b32 s%d, 0" % sCnt)
    a("%s:" % lr)
    NT = " nt" if gnt & 1 else ""
    a("  buffer_load_dwordx4 v[%d:%d], v%d, s[%d:%d], s%d offen sc1%s" % (hA, hA + 3, T0, sWs, sWs + 3, sT[0], NT))
    a("  buffer_load_dwordx4 v[%d:%d], v%d, s[%d:%d], s%d offen sc1%s" % (hA + 4, hA + 7, T0, sWs, sWs + 3, sT[1], NT))
    a("  s_waitcnt vmcnt(0)")
    tag_retry(range(hA, hA + 8), lr, lo, T2, T3, 2)
    a("%s:" % lo)
    a("  s_mov_b64 exec, -1")
    stamp("Q ok")
    untag(range(hA, hA + 8))
    pk("v_pk_add_f32", hA, hA, hA + 4)
    pk("v_pk_add_f32", hA + 2, hA + 2, hA + 6)
    for k in range(4):
        a("  v_mov_b32 v%d, v%d" % (hA + 4 + k, hA + k))
    a("  s_nop 1")
    for k in range(4):
        a("  v_permlane32_swap_b32 v%d, v%d" % (hA + k, hA + 4 + k))
    pk("v_pk_add_f32", hA, hA, hA + 4)
    pk("v_pk_add_f32", hA + 2, hA + 2, hA + 6)
    a("  v_cvt_pk_bf16_f32 v%d, v%d, v%d" % (hA, hA, hA + 1))
    a("  v_cvt_pk_bf16_f32 v%d, v%d, v%d" % (hA + 1, hA + 2, hA + 3))
    a("  s_mov_b32 exec_hi, 0")
    a("  ds_write_b64 v%d, v[%d:%d]" % (T1, hA, hA + 1))
    a("  s_mov_b64 exec, -1")
    a("  s_waitcnt lgkmcnt(0)")
    lds_add(hMisc, F_QRDY, hOne)
    stamp("Q rdy")

    a("  v_add_u32 v%d, s%d, v%d" % (T0, sWoStg, hTrG))
    l3 = a.lab("L3")
    a("  s_cmp_lg_u32 s%d, 3" % sHW)
    a("  s_cbranch_scc1 %s" % l3)
    a("  s_lshr_b32 s%d, s%d, 3" % (sT[0], sFi))
    a("  s_lshl_b32 s%d, s%d, 16" % (sT[1], sT[0]))
    a("  s_and_b32 s%d, s%d, 7" % (sT[2], sFi))
    a("  s_lshl_b32 s%d, s%d, 7" % (sT[2], sT[2]))
    a("  s_add_u32 s%d, s%d, s%d" % (sT[1], sT[1], sT[2]))
    for n in range(4):
        a("  s_mov_b32 m0, %d" % (SPARE + n * 1024))
        if n:
            a("  s_add_u32 s%d, s%d, 8192" % (sT[1], sT[1]))
        else:
            a("  s_nop 0")
        a("  buffer_load_dwordx4 v%d, s[%d:%d], s%d offen nt lds" % (hW1k, sWd, sWd + 3, sT[1]))
    a("%s:" % l3)
    for ct in range(4):
        r = hW + ct * 4
        a("  ds_read_b64_tr_b16 v[%d:%d], v%d offset:%d" % (r, r + 1, T0, ct * 32))
        a("  ds_read_b64_tr_b16 v[%d:%d], v%d offset:%d" % (r + 2, r + 3, T0, ct * 32 + 512))
    a("  s_waitcnt lgkmcnt(0)")
    l4 = a.lab("L4")
    a("  s_cmp_lg_u32 s%d, 3" % sHW)
    a("  s_cbranch_scc1 %s" % l4)
    for n in range(4):
        a("  s_add_u32 m0, s%d, %d" % (sWoStg, n * 1024))
        a("  s_add_u32 s%d, s%d, 8192" % (sT[1], sT[1]))
        a("  buffer_load_dwordx4 v%d, s[%d:%d], s%d offen nt lds" % (hW1k, sWd, sWd + 3, sT[1]))
    a("  v_add_u32 v%d, %d, v%d" % (T1, SPARE, hTrG))
    a("  s_waitcnt vmcnt(4)")
    for ct in range(4):
        r = hWd + ct * 8
        a("  ds_read_b64_tr_b16 v[%d:%d], v%d offset:%d" % (r, r + 1, T1, ct * 32))
        a("  ds_read_b64_tr_b16 v[%d:%d], v%d offset:%d" % (r + 2, r + 3, T1, ct * 32 + 512))
    a("  s_waitcnt vmcnt(0)")
    for ct in range(4):
        r = hWd + ct * 8 + 4
        a("  ds_read_b64_tr_b16 v[%d:%d], v%d offset:%d" % (r, r + 1, T0, ct * 32))
        a("  ds_read_b64_tr_b16 v[%d:%d], v%d offset:%d" % (r + 2, r + 3, T0, ct * 32 + 512))
    a("  s_waitcnt lgkmcnt(0)")
    a("%s:" % l4)
    stamp("wo frags")

    a("  s_lshl_b32 s%d, s%d, 5" % (sFidx, sB))
    a("  s_add_u32 s%d, s%d, s%d" % (sFidx, sFidx, sHq))
    a("  v_and_b32 v%d, 3, v0" % T0)
    a("  v_lshlrev_b32 v%d, 3, v%d" % (T0, T0))
    a("  s_lshl_b32 s%d, s%d, 5" % (sT[0], sFidx))
    a("  v_add_u32 v%d, s%d, v%d" % (hOutOff, sT[0], T0))
    if noffn:
        a("  s_branch L_B1")
    a("  s_cmp_eq_u32 s%d, 1" % sHW)
    a("  s_cbranch_scc1 %s" % ("L_B1" if skip & 1 else "L_ffn"))
    a("  s_cmp_eq_u32 s%d, 2" % sHW)
    a("  s_cbranch_scc1 %s" % ("L_B1" if skip & 2 else "L_stats"))
    a("  s_cmp_eq_u32 s%d, 0" % sHW)
    a("  s_cbranch_scc1 %s" % ("L_B1" if skip & 5 else "L_fin_prep"))
    a("  s_branch %s" % ("L_B1" if skip & 9 else "L_down"))

    a("L_ffn:")
    a("  s_mov_b32 s%d, 256" % (sDbg + 2))
    a("  s_mov_b32 s%d, 0x20000" % (sDbg + 3))
    a("  s_lshl_b32 s%d, s%d, 5" % (sT[0], sX))
    a("  v_mov_b32 v%d, s%d" % (T0, sT[0]))
    if not early_census:
        a("  s_getreg_b32 s%d, hwreg(HW_REG_XCC_ID, 0, 3)" % sT[4])
        a("  s_lshl_b32 s%d, s%d, 3" % (sT[4], sT[4]))
        a("  s_lshl_b64 s[%d:%d], 1, s%d" % (sT[6], sT[7], sT[4]))
        a("  v_mov_b32 v%d, s%d" % (hA, sT[6]))
        a("  v_mov_b32 v%d, s%d" % (hA + 1, sT[7]))
        a("  s_mov_b64 exec, 1")
        a("  buffer_atomic_add_x2 v[%d:%d], v%d, s[%d:%d], 0 offen sc1" % (hA, hA + 1, T0, sDbg, sDbg + 3))
        a("  s_mov_b64 exec, -1")
        lds_wait(hMisc, F_MID, 1, T5, sleep=8)
    a("  s_waitcnt vmcnt(0)")
    lr, lo = a.lab("Lr"), a.lab("Lo")
    a("  s_mov_b32 s%d, 0" % sCnt)
    a("  s_mov_b64 exec, 1")
    a("%s:" % lr)
    a("  buffer_load_dwordx2 v[%d:%d], v%d, s[%d:%d], 0 offen sc1" % (hA, hA + 1, T0, sDbg, sDbg + 3))
    a("  s_waitcnt vmcnt(0)")
    a("  v_readfirstlane_b32 s%d, v%d" % (sT[2], hA))
    a("  v_readfirstlane_b32 s%d, v%d" % (sT[3], hA + 1))
    a("  s_and_b32 s%d, s%d, 0x00ff00ff" % (sT[4], sT[2]))
    a("  s_lshr_b32 s%d, s%d, 8" % (sT[5], sT[2]))
    a("  s_and_b32 s%d, s%d, 0x00ff00ff" % (sT[5], sT[5]))
    a("  s_add_u32 s%d, s%d, s%d" % (sT[4], sT[4], sT[5]))
    a("  s_and_b32 s%d, s%d, 0x00ff00ff" % (sT[5], sT[3]))
    a("  s_add_u32 s%d, s%d, s%d" % (sT[4], sT[4], sT[5]))
    a("  s_lshr_b32 s%d, s%d, 8" % (sT[5], sT[3]))
    a("  s_and_b32 s%d, s%d, 0x00ff00ff" % (sT[5], sT[5]))
    a("  s_add_u32 s%d, s%d, s%d" % (sT[4], sT[4], sT[5]))
    a("  s_lshr_b32 s%d, s%d, 16" % (sT[5], sT[4]))
    a("  s_and_b32 s%d, s%d, 0xffff" % (sT[4], sT[4]))
    a("  s_add_u32 s%d, s%d, s%d" % (sT[4], sT[4], sT[5]))
    a("  s_cmp_ge_u32 s%d, 32" % sT[4])
    a("  s_cbranch_scc1 %s" % lo)
    a("  s_add_u32 s%d, s%d, 1" % (sCnt, sCnt))
    a("  s_cmp_lt_u32 s%d, %d" % (sCnt, SPIN_LIMIT))
    a("  s_cbranch_scc0 %s" % lo)
    a("  s_sleep 32")
    a("  s_branch %s" % lr)
    a("%s:" % lo)
    a("  s_mov_b64 exec, -1")
    a("  s_getreg_b32 s%d, hwreg(HW_REG_XCC_ID, 0, 3)" % sT[4])
    a("  s_lshl_b32 s%d, s%d, 3" % (sT[4], sT[4]))
    a("  s_lshr_b64 s[%d:%d], s[%d:%d], s%d" % (sT[2], sT[3], sT[2], sT[3], sT[4]))
    a("  s_and_b32 s%d, s%d, 0xff" % (sT[2], sT[2]))
    a("  s_cmp_eq_u32 s%d, 32" % sT[2])
    a("  s_cselect_b32 s%d, %d, 1" % (sT[2], 2 if uselocal else 1))
    a("  v_mov_b32 v%d, s%d" % (T0, sT[2]))
    a("  s_mov_b64 exec, 1")
    a("  ds_write_b32 v%d, v%d offset:%d" % (hMisc, T0, F_LOC))
    a("  s_mov_b64 exec, -1")
    a("  s_lshr_b32 s%d, s%d, 1" % (sLoc, sT[2]))
    gp_store(True)
    a("  s_cmp_eq_u32 s%d, 0" % sFv)
    a("  s_cbranch_scc1 L_ffn_done")
    a("  s_lshr_b32 s%d, s%d, 3" % (sT[0], sFi))
    a("  v_mul_u32_u24 v%d, %d, v%d" % (T0, 28 * 2048, hG))
    a("  v_lshl_add_u32 v%d, v%d, 4, v%d" % (T0, hI, T0))
    a("  s_lshl_b32 s%d, s%d, 11" % (sT[1], sT[0]))
    a("  s_and_b32 s%d, s%d, 7" % (sT[2], sFi))
    a("  s_lshl_b32 s%d, s%d, 8" % (sT[2], sT[2]))
    a("  s_add_u32 s%d, s%d, s%d" % (sT[1], sT[1], sT[2]))
    a("  s_add_u32 s%d, s%d, %d" % (sT[1], sT[1], GP))
    a("  s_add_u32 s%d, s%d, %d" % (sT[2], sT[1], 4 * 28 * 2048))
    lr, lo = a.lab("Lr"), a.lab("Lo")
    a("  s_mov_b32 s%d, 0" % sCnt)
    a("%s:" % lr)
    NT = " nt" if gnt & 2 else ""
    a("  buffer_load_dwordx4 v[%d:%d], v%d, s[%d:%d], s%d offen sc1%s" % (hA, hA + 3, T0, sWs, sWs + 3, sT[1], NT))
    a("  buffer_load_dwordx4 v[%d:%d], v%d, s[%d:%d], s%d offen sc1%s" % (hA + 4, hA + 7, T0, sWs, sWs + 3, sT[2], NT))
    a("  s_waitcnt vmcnt(0)")
    tag_retry(range(hA, hA + 8), lr, lo, T2, T3, 8 if gplocal else ffn_sleep)
    a("%s:" % lo)
    a("  s_mov_b64 exec, -1")
    untag(range(hA, hA + 8))
    for kind in (16, 32):
        for k in range(8):
            a("  v_mov_b32 v%d, v%d" % (hA + 8 + k, hA + k))
        a("  s_nop 1")
        for k in range(8):
            a("  v_permlane%d_swap_b32 v%d, v%d" % (kind, hA + k, hA + 8 + k))
        for k in range(0, 8, 2):
            pk("v_pk_add_f32", hA + k, hA + k, hA + 8 + k)
    g0, u0 = hA, hA + 4
    for k in range(8):
        round_bf16(hA + k)
    a("  s_mov_b32 s%d, 0xBFB8AA3B      ; -log2(e)" % sT[2])
    for k in range(4):
        a("  v_mul_f32 v%d, s%d, v%d" % (g0 + k, sT[2], g0 + k))
    for k in range(4):
        a("  v_exp_f32 v%d, v%d" % (g0 + k, g0 + k))
    a("  s_nop 0")
    for k in range(4):
        a("  v_add_f32 v%d, 1.0, v%d" % (g0 + k, g0 + k))
    for k in range(4):
        a("  v_rcp_f32 v%d, v%d" % (g0 + k, g0 + k))
    a("  s_nop 0")
    for k in range(4):
        round_bf16(g0 + k)
    for k in range(4):
        a("  v_mul_f32 v%d, v%d, v%d" % (g0 + k, g0 + k, u0 + k))
    for k in range(4):
        round_bf16(g0 + k)
    for k in range(4):
        a("  v_or_b32 v%d, v%d, v%d" % (g0 + k, g0 + k, hTag))
    a("  v_lshlrev_b32 v%d, 4, v0" % T0)
    a("  s_lshl_b32 s%d, s%d, 8" % (sT[1], sFi))
    a("  s_add_u32 s%d, s%d, %d" % (sT[1], sT[1], HH))
    a("  s_mov_b64 exec, 0xffff")
    store_loc(["  buffer_store_dwordx4 v[%d:%d], v%d, s[%d:%d], s%d offen" % (g0, g0 + 3, T0, sWs, sWs + 3, sT[1])], sLoc)
    a("  s_mov_b64 exec, -1")
    a("L_ffn_done:")
    lds_add(hMisc, F_RED, hOne)
    lds_wait(hMisc, F_EWS, 1, T5, sleep=4)
    for k in range(4):
        a("  v_mov_b32 v%d, v%d" % (hA + k, hTag))
    a("  s_lshl_b32 s%d, s%d, 9" % (sT[0], sX))
    a("  s_lshl_b32 s%d, s%d, 4" % (sT[1], sLi))
    a("  s_add_u32 s%d, s%d, s%d" % (sT[0], sT[0], sT[1]))
    a("  s_add_u32 s%d, s%d, %d" % (sT[0], sT[0], EW))
    a("  v_mov_b32 v%d, 0" % T0)
    a("  s_mov_b64 exec, 1")
    store_loc(["  buffer_store_dwordx4 v[%d:%d], v%d, s[%d:%d], s%d offen" % (hA, hA + 3, T0, sWs, sWs + 3, sT[0])], sLoc)
    a("  s_mov_b64 exec, -1")
    a("  s_branch L_B1")

    a("L_down:")
    gp_store(False)
    a("  s_cmp_eq_u32 s%d, 0" % sFv)
    a("  s_cbranch_scc1 L_down_done")
    lds_wait(hMisc, F_RED, 1, T5, sleep=8)
    a("  s_lshr_b32 s%d, s%d, 3" % (sT[0], sFi))
    a("  v_and_b32 v%d, 7, v%d" % (T0, hI))
    a("  v_lshlrev_b32 v%d, 8, v%d" % (T0, T0))
    a("  v_lshl_add_u32 v%d, v%d, 5, v%d" % (T0, hG, T0))
    a("  s_lshl_b32 s%d, s%d, 11" % (sT[1], sT[0]))
    a("  s_add_u32 s%d, s%d, %d" % (sT[1], sT[1], HH))
    lr, lo = a.lab("Lr"), a.lab("Lo")
    a("  s_mov_b32 s%d, 0" % sCnt)
    a("%s:" % lr)
    for k in range(4):
        a("  buffer_load_dwordx4 v[%d:%d], v%d, s[%d:%d], s%d offen offset:%d sc1" % (hA + 4 * k, hA + 4 * k + 3, T0, sWs, sWs + 3, sT[1], (k >> 1) * 128 + (k & 1) * 16))
    a("  s_waitcnt vmcnt(0)")
    tag_retry(range(hA, hA + 16), lr, lo, T2, T3, ffn_sleep)
    a("%s:" % lo)
    a("  s_mov_b64 exec, -1")
    a("  s_mov_b32 s%d, 0x07060302" % sT[2])
    for k in range(8):
        a("  v_perm_b32 v%d, v%d, v%d, s%d" % (hB + k, hA + 2 * k + 1, hA + 2 * k, sT[2]))
    a("  s_nop 1")
    for ct in range(4):
        d = hD + ct * 4
        r = hWd + ct * 8
        a("  v_mfma_f32_16x16x32_bf16 v[%d:%d], v[%d:%d], v[%d:%d], 0" % (d, d + 3, r, r + 3, hB, hB + 3))
        a("  v_mfma_f32_16x16x32_bf16 v[%d:%d], v[%d:%d], v[%d:%d], v[%d:%d]" % (d, d + 3, r + 4, r + 7, hB + 4, hB + 7, d, d + 3))
    a("  v_lshlrev_b32 v%d, 16, v%d" % (T0, hI))
    a("  v_lshl_add_u32 v%d, v%d, 4, v%d" % (T0, hG, T0))
    a("  s_and_b32 s%d, s%d, 7" % (sT[1], sFi))
    a("  s_lshl_b32 s%d, s%d, 13" % (sT[1], sT[1]))
    a("  s_lshl_b32 s%d, s%d, 6" % (sT[2], sT[0]))
    a("  s_add_u32 s%d, s%d, s%d" % (sT[1], sT[1], sT[2]))
    a("  s_add_u32 s%d, s%d, %d" % (sT[1], sT[1], DP))
    a("  s_nop 7")
    for i in range(16):
        tag(hD + i)
    a("  s_mov_b64 exec, s[%d:%d]" % (sLo8, sLo8 + 1))
    for ct in range(4):
        a("  buffer_store_dwordx4 v[%d:%d], v%d, s[%d:%d], s%d offen sc1" % (hD + ct * 4, hD + ct * 4 + 3, T0, sWs, sWs + 3, sT[1]))
        if ct < 3:
            a("  s_add_u32 s%d, s%d, 2048" % (sT[1], sT[1]))
    a("  s_mov_b64 exec, -1")
    a("  s_waitcnt vmcnt(0)")
    a("L_down_done:")
    lds_add(hMisc, F_DOWN, hOne)
    a("  s_branch L_B1")

    a("L_stats:")
    gp_store(False)
    lds_wait(hMisc, F_ST, 4, T5, sleep=st_sleep)
    a("  v_lshl_add_u32 v%d, v%d, 3, v%d" % (T0, hI, hMisc))
    mw, lw = hA, hA + 1
    a("  ds_read_b64 v[%d:%d], v%d offset:%d" % (mw, mw + 1, T0, SSTAT))
    a("  s_waitcnt lgkmcnt(0)")
    Mg, Lg, t_ = hA + 4, hA + 5, hA + 2
    a("  v_mov_b32 v%d, v%d" % (Mg, mw))
    a("  s_nop 1")
    a("  v_max_f32_dpp v%d, v%d, v%d row_ror:4 %s" % (Mg, Mg, Mg, DPP))
    a("  s_nop 1")
    a("  v_max_f32_dpp v%d, v%d, v%d row_ror:8 %s" % (Mg, Mg, Mg, DPP))
    a("  s_mov_b32 s%d, 0x3FB8AA3B" % sT[2])
    a("  v_sub_f32 v%d, v%d, v%d" % (t_, mw, Mg))
    a("  v_mul_f32 v%d, s%d, v%d" % (t_, sT[2], t_))
    a("  v_exp_f32 v%d, v%d" % (t_, t_))
    a("  s_nop 0")
    a("  v_mul_f32 v%d, v%d, v%d" % (Lg, lw, t_))
    a("  s_nop 1")
    a("  v_add_f32_dpp v%d, v%d, v%d row_ror:4 %s" % (Lg, Lg, Lg, DPP))
    a("  s_nop 1")
    a("  v_add_f32_dpp v%d, v%d, v%d row_ror:8 %s" % (Lg, Lg, Lg, DPP))
    a("  s_nop 1")
    a("  v_mov_b32_dpp v%d, v%d row_shl:1 %s bound_ctrl:0" % (Mg + 2, Mg, DPP))
    a("  v_mov_b32_dpp v%d, v%d row_shl:1 %s bound_ctrl:0" % (Mg + 3, Lg, DPP))
    a("  s_lshl_b32 s%d, s%d, 3" % (sT[0], sB))
    a("  s_add_u32 s%d, s%d, s%d" % (sT[0], sT[0], sX))
    a("  s_lshl_b32 s%d, s%d, 7" % (sT[0], sT[0]))
    a("  s_add_u32 s%d, s%d, %d" % (sT[0], sT[0], ST))
    a("  s_lshl_b32 s%d, s%d, 5" % (sT[1], sJ))
    a("  s_add_u32 s%d, s%d, s%d" % (sT[1], sT[1], sT[0]))
    for k in range(4):
        tag(Mg + k)
    a("  v_lshlrev_b32 v%d, 3, v%d" % (T1, hI))
    lds_wait(hMisc, F_LOC, 1, T5)
    a("  s_lshr_b32 s%d, s%d, 1" % (sLoc, sT[7]))
    a("  s_mov_b64 exec, 5")
    store_loc(["  buffer_store_dwordx4 v[%d:%d], v%d, s[%d:%d], s%d offen" % (Mg, Mg + 3, T1, sWs, sWs + 3, sT[1])], sLoc)
    a("  s_mov_b64 exec, -1")
    a("  v_lshrrev_b32 v%d, 1, v%d" % (T1, hI))
    a("  v_lshlrev_b32 v%d, 4, v%d" % (T1, T1))
    mj = hA + 8
    lr, lo = a.lab("Lr"), a.lab("Lo")
    a("  s_mov_b32 s%d, 0" % sCnt)
    a("%s:" % lr)
    a("  buffer_load_dwordx4 v[%d:%d], v%d, s[%d:%d], s%d offen sc1" % (mj, mj + 3, T1, sWs, sWs + 3, sT[0]))
    a("  s_waitcnt vmcnt(0)")
    tag_retry(range(mj, mj + 4), lr, lo, T2, T3, ffn_sleep)
    a("%s:" % lo)
    a("  s_mov_b64 exec, -1")
    a("  v_and_b32 v%d, 1, v%d" % (T2, hI))
    a("  v_cmp_eq_u32 vcc, 1, v%d" % T2)
    a("  s_nop 1")
    a("  v_cndmask_b32 v%d, v%d, v%d, vcc" % (mj, mj, mj + 2))
    a("  v_cndmask_b32 v%d, v%d, v%d, vcc" % (mj + 1, mj + 1, mj + 3))
    lj = mj + 1
    a("  v_and_b32 v%d, s%d, v%d" % (mj, sNotFF, mj))
    a("  v_and_or_b32 v%d, v%d, s%d, v%d" % (lj, lj, sNotFF, hMid))
    M2, L2 = hA + 12, hA + 13
    a("  v_mov_b32 v%d, v%d" % (M2, mj))
    a("  s_nop 1")
    a("  v_max_f32_dpp v%d, v%d, v%d row_ror:4 %s" % (M2, M2, M2, DPP))
    a("  s_nop 1")
    a("  v_max_f32_dpp v%d, v%d, v%d row_ror:8 %s" % (M2, M2, M2, DPP))
    a("  v_sub_f32 v%d, v%d, v%d" % (t_, mj, M2))
    a("  v_mul_f32 v%d, s%d, v%d" % (t_, sT[2], t_))
    a("  v_exp_f32 v%d, v%d" % (t_, t_))
    a("  s_nop 0")
    a("  v_mul_f32 v%d, v%d, v%d" % (L2, lj, t_))
    a("  s_nop 1")
    a("  v_add_f32_dpp v%d, v%d, v%d row_ror:4 %s" % (L2, L2, L2, DPP))
    a("  s_nop 1")
    a("  v_add_f32_dpp v%d, v%d, v%d row_ror:8 %s" % (L2, L2, L2, DPP))
    a("  v_sub_f32 v%d, v%d, v%d" % (t_, mw, M2))
    a("  v_mul_f32 v%d, s%d, v%d" % (t_, sT[2], t_))
    a("  v_exp_f32 v%d, v%d" % (t_, t_))
    a("  v_rcp_f32 v%d, v%d" % (L2, L2))
    a("  s_nop 0")
    a("  v_mul_f32 v%d, v%d, v%d" % (t_, t_, L2))
    a("  v_and_b32 v%d, 3, v%d" % (T0, hI))
    a("  v_lshlrev_b32 v%d, 4, v%d" % (T0, T0))
    a("  v_lshrrev_b32 v%d, 2, v%d" % (T1, hI))
    a("  v_lshl_add_u32 v%d, v%d, 2, v%d" % (T0, T1, T0))
    a("  v_add_u32 v%d, v%d, v%d" % (T0, T0, hMisc))
    a("  s_mov_b64 exec, 0xffff")
    a("  ds_write_b32 v%d, v%d offset:%d" % (T0, t_, FFAC))
    a("  s_mov_b64 exec, -1")
    a("  s_waitcnt lgkmcnt(0)")
    if nob1:
        lds_add(hMisc, F_F, hOne)
    a("  s_branch L_B1")

    def reduce_hd(base, tmp):
        a("  s_nop 1")
        for k in range(4):
            a("  v_add_f32_dpp v%d, v%d, v%d row_ror:4 %s" % (base + k, base + k, base + k, DPP))
        a("  s_nop 1")
        for k in range(4):
            a("  v_add_f32_dpp v%d, v%d, v%d row_ror:8 %s" % (base + k, base + k, base + k, DPP))
        for kind in (16, 32):
            for k in range(4):
                a("  v_mov_b32 v%d, v%d" % (tmp + k, base + k))
            a("  s_nop 1")
            for k in range(4):
                a("  v_permlane%d_swap_b32 v%d, v%d" % (kind, base + k, tmp + k))
            pk("v_pk_add_f32", base, base, tmp)
            pk("v_pk_add_f32", base + 2, base + 2, tmp + 2)

    a("L_fin_prep:")
    gp_store(False)
    lds_wait(hMisc, F_LATE, 1, T5, sleep=8)
    a("  buffer_load_dwordx2 v[%d:%d], v%d, s[%d:%d], 0 offen" % (hA + 8, hA + 9, hOutOff, sXd, sXd + 3))
    a("  v_lshlrev_b32 v%d, 4, v0" % T0)
    a("  s_lshl_b32 s%d, s%d, 11" % (sT[0], sFidx))
    a("  s_add_u32 s%d, s%d, %d" % (sT[0], sT[0], DP))
    for k in range(4):
        a("  v_mov_b32 v%d, v%d" % (hA + 4 + k, hTag))
    lr, lo = a.lab("Lr"), a.lab("Lo")
    a("  s_mov_b32 s%d, 0" % sCnt)
    a("%s:" % lr)
    NT = " nt" if gnt & 4 else ""
    a("  buffer_load_dwordx4 v[%d:%d], v%d, s[%d:%d], s%d offen sc1%s" % (hA, hA + 3, T0, sWs, sWs + 3, sT[0], NT))
    a("  s_mov_b64 s[%d:%d], exec" % (sT[4], sT[5]))
    a("  s_and_b32 exec_hi, exec_hi, 0xffff")
    ls = a.lab("Ls")
    a("  s_cbranch_execz %s" % ls)
    a("  buffer_load_dwordx4 v[%d:%d], v%d, s[%d:%d], s%d offen offset:1024 sc1%s" % (hA + 4, hA + 7, T0, sWs, sWs + 3, sT[0], NT))
    a("%s:" % ls)
    a("  s_mov_b64 exec, s[%d:%d]" % (sT[4], sT[5]))
    a("  s_waitcnt vmcnt(0)")
    tag_retry(range(hA, hA + 8), lr, lo, T2, T3, ffn_sleep)
    a("%s:" % lo)
    a("  s_mov_b64 exec, -1")
    untag(range(hA, hA + 8))
    pk("v_pk_add_f32", hA, hA, hA + 4)
    pk("v_pk_add_f32", hA + 2, hA + 2, hA + 6)
    reduce_hd(hA, hA + 4)
    hGv = hXf + 4
    for k in range(4):
        round_bf16(hA + k)
    a("  s_mov_b32 s%d, 0xBFB8AA3B" % sT[2])
    for k in range(4):
        a("  v_mul_f32 v%d, s%d, v%d" % (hA + 4 + k, sT[2], hA + k))
    for k in range(4):
        a("  v_exp_f32 v%d, v%d" % (hA + 4 + k, hA + 4 + k))
    a("  s_nop 0")
    for k in range(4):
        a("  v_add_f32 v%d, 1.0, v%d" % (hA + 4 + k, hA + 4 + k))
    for k in range(4):
        a("  v_rcp_f32 v%d, v%d" % (hA + 4 + k, hA + 4 + k))
    a("  s_nop 0")
    for k in range(4):
        a("  v_mul_f32 v%d, v%d, v%d" % (hGv + k, hA + k, hA + 4 + k))
    for k in range(4):
        round_bf16(hGv + k)
    a("  v_lshlrev_b32 v%d, 16, v%d" % (hXf, hA + 8))
    a("  v_and_b32 v%d, s%d, v%d" % (hXf + 1, sHi2, hA + 8))
    a("  v_lshlrev_b32 v%d, 16, v%d" % (hXf + 2, hA + 9))
    a("  v_and_b32 v%d, s%d, v%d" % (hXf + 3, sHi2, hA + 9))
    stamp("prep done")

    a("L_B1:")
    lds_wait(hMisc, F_LOC, 1, T5, sleep=8)
    a("  s_lshr_b32 s%d, s%d, 1" % (sLoc, sT[7]))
    a("  v_lshlrev_b32 v%d, 7, v%d" % (T0, hI))
    a("  v_lshl_add_u32 v%d, v%d, 5, v%d" % (T0, hG, T0))
    a("  s_lshl_b32 s%d, s%d, 14" % (sT[0], sHq))
    a("  s_lshl_b32 s%d, s%d, 11" % (sT[1], sHW))
    a("  s_add_u32 s%d, s%d, s%d" % (sT[0], sT[0], sT[1]))
    a("  s_add_u32 s%d, s%d, %d" % (sT[0], sT[0], OP))
    a("  s_add_u32 s%d, s%d, 8192" % (sT[1], sT[0]))
    a("  v_lshlrev_b32 v%d, 8, v%d" % (T1, hG))
    a("  v_lshl_add_u32 v%d, v%d, 2, v%d" % (T1, hI, T1))
    a("  s_lshl_b32 s%d, s%d, 11" % (sT[2], sHW))
    a("  s_add_u32 s%d, s%d, %d" % (sT[2], sT[2], WOS))
    a("  v_add_u32 v%d, s%d, v%d" % (T1, sT[2], T1))
    hP0, hP1, hQ0 = 157, 158, 159
    sP, sQ = 57, 58
    sSelH = 55
    a("  s_mov_b32 s%d, 0x07060302" % sSelH)
    a("  s_sub_u32 s%d, s%d, 2" % (sT[3], sHW))
    a("  s_lshl_b32 s%d, s%d, 10" % (sT[4], sT[3]))
    a("  s_add_u32 s%d, s%d, %d" % (sT[4], sT[4], WOS))
    a("  v_lshlrev_b32 v%d, 8, v%d" % (hP0, hG))
    a("  v_lshl_add_u32 v%d, v%d, 4, v%d      ; g*256 + i*16" % (hP0, hI, hP0))
    a("  v_add_u32 v%d, s%d, v%d" % (hP0, sT[4], hP0))
    a("  v_lshlrev_b32 v%d, 16, v%d" % (hP1, hG))
    a("  v_lshrrev_b32 v%d, 3, v%d" % (T2, hI))
    a("  v_lshl_add_u32 v%d, v%d, 12, v%d" % (hP1, T2, hP1))
    a("  v_and_b32 v%d, 7, v%d" % (T2, hI))
    a("  v_lshl_add_u32 v%d, v%d, 4, v%d" % (hP1, T2, hP1))
    a("  s_lshl_b32 s%d, s%d, 18" % (sT[3], sT[3]))
    a("  s_lshl_b32 s%d, s%d, 13" % (sT[4], sB))
    a("  s_add_u32 s%d, s%d, s%d" % (sT[3], sT[3], sT[4]))
    a("  s_lshl_b32 s%d, s%d, 7" % (sT[4], sHq))
    a("  s_add_u32 s%d, s%d, s%d" % (sT[3], sT[3], sT[4]))
    a("  s_add_u32 s%d, s%d, %d" % (sP, sT[3], SP))
    a("  v_lshrrev_b32 v%d, 2, v0" % hQ0)
    a("  v_lshlrev_b32 v%d, 7, v%d" % (hQ0, hQ0))
    a("  v_and_b32 v%d, 3, v0" % T2)
    a("  v_lshl_add_u32 v%d, v%d, 4, v%d" % (hQ0, T2, hQ0))
    a("  s_lshr_b32 s%d, s%d, 1" % (sT[3], sFidx))
    a("  s_lshl_b32 s%d, s%d, 12" % (sT[3], sT[3]))
    a("  s_and_b32 s%d, s%d, 1" % (sT[4], sFidx))
    a("  s_lshl_b32 s%d, s%d, 6" % (sT[4], sT[4]))
    a("  s_add_u32 s%d, s%d, s%d" % (sT[3], sT[3], sT[4]))
    a("  s_add_u32 s%d, s%d, %d" % (sQ, sT[3], SP))
    lw0 = a.lab("Lew")
    a("  s_cmp_lg_u32 s%d, 0" % sHW)
    a("  s_cbranch_scc1 %s" % lw0)
    a("  v_lshlrev_b32 v%d, 4, v0" % T5)
    a("  s_lshl_b32 s%d, s%d, 9" % (sT[2], sX))
    a("  s_add_u32 s%d, s%d, %d" % (sT[2], sT[2], EW))
    lr, lo = a.lab("Lr"), a.lab("Lo")
    a("  s_mov_b32 s%d, 0" % sCnt)
    a("  s_mov_b32 exec_hi, 0")
    a("%s:" % lr)
    a("  buffer_load_dwordx4 v[%d:%d], v%d, s[%d:%d], s%d offen sc1" % (hA, hA + 3, T5, sWs, sWs + 3, sT[2]))
    a("  s_waitcnt vmcnt(0)")
    tag_retry(range(hA, hA + 4), lr, lo, T2, T3, (8, 64))
    a("%s:" % lo)
    a("  s_mov_b64 exec, -1")
    if nob1:
        lw1 = a.lab("Lew")
        lds_add(hMisc, F_EW2, hOne)
        if gew:
            lg_ = a.lab("Lgew")
            a("  s_cmp_lg_u32 s%d, 0" % sLi)
            a("  s_cbranch_scc1 %s" % lg_)
            for k in range(4):
                a("  v_mov_b32 v%d, v%d" % (hA + k, hTag))
            a("  s_lshl_b32 s%d, s%d, 4" % (sT[2], sX))
            a("  s_add_u32 s%d, s%d, %d" % (sT[2], sT[2], GEW))
            a("  v_mov_b32 v%d, 0" % T5)
            a("  s_mov_b64 exec, 1")
            a("  buffer_store_dwordx4 v[%d:%d], v%d, s[%d:%d], s%d offen sc1" % (hA, hA + 3, T5, sWs, sWs + 3, sT[2]))
            a("  s_mov_b64 exec, -1")
            a("%s:" % lg_)
        a("  s_branch %s" % lw1)
        a("%s:" % lw0)
        lds_wait(hMisc, F_EW2, 1, T5, sleep=2)
        a("%s:" % lw1)
    else:
        a("%s:" % lw0)
        a("  s_barrier                      ; B1")
    stamp("B1")
    lr, lo = a.lab("Lr"), a.lab("Lo")
    a("  s_mov_b32 s%d, 0" % sCnt)
    for rt in range(2):
        a("  buffer_load_dwordx4 v[%d:%d], v%d, s[%d:%d], s%d offen sc1" % (hA + 8 * rt, hA + 8 * rt + 3, T0, sWs, sWs + 3, sT[rt]))
        a("  buffer_load_dwordx4 v[%d:%d], v%d, s[%d:%d], s%d offen offset:16 sc1" % (hA + 8 * rt + 4, hA + 8 * rt + 7, T0, sWs, sWs + 3, sT[rt]))
    if nob1 and gate_t0:
        lds_wait(hMisc, F_T0, 4, T5, sleep=1)
        a("  s_mov_b32 s%d, 0" % sCnt)
        a("  s_branch %s_c" % lr)
    else:
        a("  s_branch %s_c" % lr)
    a("%s:" % lr)
    for rt in range(2):
        a("  buffer_load_dwordx4 v[%d:%d], v%d, s[%d:%d], s%d offen sc1" % (hA + 8 * rt, hA + 8 * rt + 3, T0, sWs, sWs + 3, sT[rt]))
        a("  buffer_load_dwordx4 v[%d:%d], v%d, s[%d:%d], s%d offen offset:16 sc1" % (hA + 8 * rt + 4, hA + 8 * rt + 7, T0, sWs, sWs + 3, sT[rt]))
    a("%s_c:" % lr)
    a("  s_waitcnt vmcnt(0)")
    tag_retry(range(hA, hA + 16), lr, lo, T2, T3, (hop_sleep, 4))
    a("%s:" % lo)
    a("  s_mov_b64 exec, -1")
    stamp("hop1 ok")
    for k in range(8):
        a("  v_perm_b32 v%d, v%d, v%d, s%d" % (hB + k, hA + 2 * k + 1, hA + 2 * k, sSelH))
    a("  s_nop 1")
    for rt in range(2):
        for ct in range(4):
            d = hD + (rt * 4 + ct) * 4
            a("  v_mfma_f32_16x16x32_bf16 v[%d:%d], v[%d:%d], v[%d:%d], 0" % (d, d + 3, hB + 4 * rt, hB + 4 * rt + 3, hW + ct * 4, hW + ct * 4 + 3))
    a("  s_nop 0")
    for n in range(8):
        d = hD + n * 4
        pk("v_pk_add_f32", d, d, d + 2)
        a("  v_add_f32 v%d, v%d, v%d" % (d, d, d + 1))
    for rt in range(2):
        for ct in range(4):
            d = hD + (rt * 4 + ct) * 4
            a("  ds_write_b32 v%d, v%d offset:%d" % (T1, d, rt * 1024 + ct * 64))
    a("  s_waitcnt lgkmcnt(0)")
    a("  s_barrier")
    a("  s_cmp_eq_u32 s%d, 0" % sHW)
    a("  s_cbranch_scc1 L_hop2")
    a("  s_cmp_eq_u32 s%d, 1" % sHW)
    a("  s_cbranch_scc1 L_H_done")
    for w in range(4):
        a("  ds_read_b128 v[%d:%d], v%d offset:%d" % (hA + 4 * w, hA + 4 * w + 3, hP0, w * 2048))
    a("  s_waitcnt lgkmcnt(2)")
    for k in (0, 2):
        pk("v_pk_add_f32", hA + k, hA + k, hA + 4 + k)
    a("  s_waitcnt lgkmcnt(0)")
    for k in (0, 2):
        pk("v_pk_add_f32", hA + 8 + k, hA + 8 + k, hA + 12 + k)
    for k in (0, 2):
        pk("v_pk_add_f32", hA + k, hA + k, hA + 8 + k)
    for k in range(4):
        tag(hA + k)
    a("  buffer_store_dwordx4 v[%d:%d], v%d, s[%d:%d], s%d offen sc1" % (hA, hA + 3, hP1, sWs, sWs + 3, sP))
    a("  s_endpgm")

    a("L_hop2:")
    stamp("B2")

    def tag_check(rs, t0_, t1_):
        rs = list(rs)
        for k in range(0, len(rs), 4):
            a("  v_perm_b32 v%d, v%d, v%d, s%d" % (t1_, rs[k + 1], rs[k], sSelA))
            a("  v_perm_b32 v%d, v%d, v%d, s%d" % (t1_ + 1, rs[k + 3], rs[k + 2], sSelB))
            if k == 0:
                a("  v_or_b32 v%d, v%d, v%d" % (t0_, t1_, t1_ + 1))
                a("  v_xor_b32 v%d, s%d, v%d" % (t0_, sTag4, t0_))
            else:
                a("  v_or_b32 v%d, v%d, v%d" % (t1_, t1_, t1_ + 1))
                a("  v_xor_b32 v%d, s%d, v%d" % (t1_, sTag4, t1_))
                a("  v_or_b32 v%d, v%d, v%d" % (t0_, t0_, t1_))
        a("  v_cmp_ne_u32 vcc, 0, v%d" % t0_)

    FR = hA
    if gew:
        a("  v_lshlrev_b32 v%d, 4, v0" % T5)
        a("  s_mov_b32 s%d, %d" % (sT[2], GEW))
        lr, lo = a.lab("Lr"), a.lab("Lo")
        a("  s_mov_b32 s%d, 0" % sCnt)
        a("  s_mov_b64 exec, 0xff")
        a("%s:" % lr)
        a("  buffer_load_dwordx4 v[%d:%d], v%d, s[%d:%d], s%d offen sc1" % (hA, hA + 3, T5, sWs, sWs + 3, sT[2]))
        a("  s_waitcnt vmcnt(0)")
        tag_retry(range(hA, hA + 4), lr, lo, T2, T3, 4)
        a("%s:" % lo)
        a("  s_mov_b64 exec, -1")
    if pipe2:
        SA, SB, FR = hA, hA + 8, hB
        sMk = sT[4]
        def ld(R):
            a("  buffer_load_dwordx4 v[%d:%d], v%d, s[%d:%d], s%d offen sc1" % (R, R + 3, hQ0, sWs, sWs + 3, sQ))
            a("  buffer_load_dwordx4 v[%d:%d], v%d, s[%d:%d], s%d offen offset:2048 sc1" % (R + 4, R + 7, hQ0, sWs, sWs + 3, sQ))
        lp, ld_ = a.lab("Lp"), a.lab("Lpd")
        a("  s_mov_b64 s[%d:%d], -1" % (sMk, sMk + 1))
        a("  s_mov_b32 s%d, 0" % sCnt)
        ld(SA)
        a("%s:" % lp)
        for cur, nxt in ((SA, SB), (SB, SA)):
            ld(nxt)
            a("  s_waitcnt vmcnt(2)")
            tag_check(range(cur, cur + 8), T2, T3)
            lsk = a.lab("Lsk")
            a("  s_andn2_b64 exec, s[%d:%d], vcc" % (sMk, sMk + 1))
            a("  s_cbranch_execz %s" % lsk)
            for k in range(8):
                a("  v_mov_b32 v%d, v%d" % (FR + k, cur + k))
            a("%s:" % lsk)
            a("  s_mov_b64 s[%d:%d], vcc" % (sMk, sMk + 1))
            a("  s_cbranch_vccz %s" % ld_)
            a("  s_mov_b64 exec, vcc")
        a("  s_add_u32 s%d, s%d, 1" % (sCnt, sCnt))
        a("  s_cmp_lt_u32 s%d, %d" % (sCnt, SPIN_LIMIT))
        a("  s_cbranch_scc1 %s" % lp)
        a("%s:" % ld_)
        a("  s_mov_b64 exec, -1")
    else:
        lr, lo = a.lab("Lr"), a.lab("Lo")
        a("  s_mov_b32 s%d, 0" % sCnt)
        a("%s:" % lr)
        a("  buffer_load_dwordx4 v[%d:%d], v%d, s[%d:%d], s%d offen sc1" % (hA, hA + 3, hQ0, sWs, sWs + 3, sQ))
        a("  buffer_load_dwordx4 v[%d:%d], v%d, s[%d:%d], s%d offen offset:2048 sc1" % (hA + 4, hA + 7, hQ0, sWs, sWs + 3, sQ))
        a("  s_waitcnt vmcnt(0)")
        tag_retry(range(hA, hA + 8), lr, lo, T2, T3, h2_sleep)
        a("%s:" % lo)
        a("  s_mov_b64 exec, -1")
    stamp("hop2 ok")
    untag(range(FR, FR + 8))
    pk("v_pk_add_f32", FR, FR, FR + 4)
    pk("v_pk_add_f32", FR + 2, FR + 2, FR + 6)
    reduce_hd(FR, FR + 4)
    for k in range(4):
        round_bf16(FR + k)
    for k in range(4):
        a("  v_mul_f32 v%d, v%d, v%d" % (FR + k, FR + k, hGv + k))
    for k in range(4):
        round_bf16(FR + k)
    for k in range(4):
        a("  v_add_f32 v%d, v%d, v%d" % (FR + k, FR + k, hXf + k))
    a("  v_cvt_pk_bf16_f32 v%d, v%d, v%d" % (FR, FR, FR + 1))
    a("  v_cvt_pk_bf16_f32 v%d, v%d, v%d" % (FR + 1, FR + 2, FR + 3))
    a("  s_mov_b64 exec, 15")
    a("  buffer_store_dwordx2 v[%d:%d], v%d, s[%d:%d], 0 offen" % (FR, FR + 1, hOutOff, sOut, sOut + 3))
    a("  s_mov_b64 exec, -1")
    le = a.lab("Le")
    a("  s_cmp_lg_u32 s2, 0")
    a("  s_cbranch_scc1 %s" % le)
    a("  s_add_u32 s%d, s%d, 1" % (sT[0], sEp))
    a("  v_mov_b32 v%d, s%d" % (hD, sT[0]))
    a("  v_mov_b32 v%d, %d" % (T0, EPOCH))
    a("  s_mov_b64 exec, 1")
    a("  buffer_store_dword v%d, v%d, s[%d:%d], 0 offen" % (hD, T0, sWs, sWs + 3))
    a("  s_mov_b64 exec, -1")
    a("%s:" % le)
    stamp("end")
    if dbgtime:
        a("  s_memrealtime s[98:99]")
        a("  s_load_dwordx2 s[92:93], s[0:1], 80")
        a("  s_waitcnt lgkmcnt(0)")
        a("  s_mov_b32 s94, 256")
        a("  s_mov_b32 s95, 0x20000")
        a("  s_not_b32 s100, s100")
        a("  v_mov_b32 v%d, s100" % hA)
        a("  v_mov_b32 v%d, s98" % (hA + 1))
        a("  v_mov_b32 v%d, 0" % T0)
        a("  s_mov_b64 exec, 1")
        a("  buffer_atomic_umax v%d, v%d, s[92:95], 0 offen sc1" % (hA, T0))
        a("  buffer_atomic_umax v%d, v%d, s[92:95], 0 offen offset:4 sc1" % (hA + 1, T0))
        a("  s_mov_b64 exec, -1")
    a("L_tsdump:")
    if ts:
        a("  s_waitcnt lgkmcnt(0)")
        a("  s_lshl_b32 s%d, s2, 8" % sT[0])
        a("  s_add_u32 s%d, s%d, %d" % (sT[0], sT[0], TSOFF + 0x10000))
        a("  v_mov_b32 v%d, 0" % T2)
        a("  s_mov_b64 exec, 1")
        for i in range(len(names["H"])):
            a("  v_mov_b32 v%d, s%d" % (hA, TS0 + 2 * i))
            a("  v_mov_b32 v%d, s%d" % (hA + 1, TS0 + 2 * i + 1))
            a("  buffer_store_dwordx2 v[%d:%d], v%d, s[%d:%d], s%d offen offset:%d" % (hA, hA + 1, T2, sWs, sWs + 3, sT[0], 8 * i))
            a("  s_waitcnt vmcnt(0)")
        a("  s_mov_b64 exec, -1")
    a("  s_waitcnt vmcnt(0)")
    a("L_H_done:")
    a("L_end:")
    a("  s_endpgm")
    a("L_code_end:")

    lines = a.lines
    iH = lines.index("L_H:")
    iB0 = [k for k in range(iH, len(lines)) if "s_barrier" in lines[k] and "B0" in lines[k]][0]
    iE = iB0 + 1
    if ts and "s_memrealtime" in lines[iE]:
        iE += 1
    hpro = lines[iH + 1:iE]
    rest = lines[:iH] + ["L_H2:"] + lines[iE:]
    ib = [k for k, l in enumerate(rest) if l.strip() == "s_cbranch_scc1 L_H"][0]
    if layout:
        rest = rest[:ib] + ["  s_cbranch_scc0 L_S"] + hpro + ["  s_branch L_H2"] + rest[ib + 1:]
    else:
        rest = lines
    a.lines = rest
    body = a.text()
    s = HEADER
    s += "; @launch grid=(256,1,1) block=(512,1,1) lds=%d\n" % LDS_TOTAL
    s += '.amdgcn_target "amdgcn-amd-amdhsa--gfx950"\n.text\n'
    s += ".globl %s\n.p2align 8\n.type %s,@function\n%s:\n" % (KNAME, KNAME, KNAME)
    s += body
    s += """
.section .rodata,"a"
.p2align 6
.amdhsa_kernel %s
  .amdhsa_next_free_vgpr %d
  .amdhsa_next_free_sgpr 102
  .amdhsa_accum_offset %d
  .amdhsa_group_segment_fixed_size 0
  .amdhsa_kernarg_size 96
  .amdhsa_user_sgpr_count 2
  .amdhsa_user_sgpr_kernarg_segment_ptr 1
  .amdhsa_system_sgpr_workgroup_id_x 1
.end_amdhsa_kernel
""" % (KNAME, NV, NV)
    gen.names = names
    return s


if __name__ == "__main__":
    kw = {}
    out = "main.s"
    for arg in sys.argv[1:]:
        if "=" in arg:
            k, v = arg.split("=")
            kw[k] = int(v)
        else:
            out = arg
    open(out, "w").write(gen(**kw))
    import json
    json.dump(gen.names, open(out[:-2] + ".names.json", "w"))
    print("wrote", out)
```

```python
import sys
from asmlib import HEADER, KNAME

QP = 0x000000
GP = 0x080000
HH = 0x0F0000
OP = 0x100000
ST = 0x180000
DP = 0x190000
SP = 0x210000
EPOCH = 0x0FF000
EW = 0x2A0000
GEW = 0x2A2000
TSOFF = 0x0F000000

RING = 32768
MISC = 131072
XN = MISC
XN_STRIDE = 1040
QL = MISC + 8448
QL_STRIDE = 272
WOS = QL + 1088
WOS = (WOS + 255) // 256 * 256
FLG = WOS + 16384
F_H1 = 0; F_H3 = 8; F_QRDY = 16; F_STG = 20; F_ST = 24; F_HOP1 = 32; F_EW = 36; F_RED = 40; F_DOWN = 44; F_LATE = 48; F_EWS = 52; F_LOC = 56; F_MID = 60; F_T0 = 4; F_F = 12; F_EW2 = 28; F_GO = 32
SSTAT = 64
FFAC = 192
SPARE = FLG + 256
LDS_TOTAL = SPARE + 4096
assert LDS_TOTAL <= 163840, LDS_TOTAL
SPIN_LIMIT = 4000000


class Asm:
    def __init__(self):
        self.lines = []
        self.nlab = 0

    def __call__(self, s=""):
        for l in s.split("\n"):
            self.lines.append(l)

    def lab(self, base="L"):
        self.nlab += 1
        return "%s_%d" % (base, self.nlab)

    def text(self):
        return "\n".join(self.lines) + "\n"


def vr(base, n=1):
    return "v%d" % base if n == 1 else "v[%d:%d]" % (base, base + n - 1)


def sr(base, n=1):
    return "s%d" % base if n == 1 else "s[%d:%d]" % (base, base + n - 1)


DPP = "row_mask:0xf bank_mask:0xf"


def gen(ts=False, dbg=0, rotmode=3, depth=8, noq=0, noffn=0, hop_sleep=0, ew_it=3, dbgtime=0, noh=0, ffn_sleep=24, skip=0, st_sleep=4, late_it=1, uselocal=1, mid_it=2, r4=0, gnt=0, xnt=0, pf=1, b0pos=0, la=1, gplocal=0, early_census=1, layout=1, presm=0, pipe2=0, h2_sleep=0, sprio=0, dfill=0, dk=0, locnt=0, nob1=1, early_ka=1, gate_t0=1, gew=0, rdv=0, rdv_unit=2, opsc1=0, wide_ka=0, t0par=1, rowfin=1):
    a = Asm()
    sW, sX, sLi, sCnt = 3, 4, 5, 6
    sT = [20, 21, 22, 23, 24, 25, 26, 27]
    TS0 = 68
    nts = [0]

    names = {"S": ["start"], "H": ["start"]}
    role = ["S"]

    def stamp(name):
        if name == 0:
            if ts:
                a("  s_memrealtime s[%d:%d]" % (TS0, TS0 + 1))
            return
        lst = names[role[0]]
        if name not in lst:
            lst.append(name)
        idx = lst.index(name)
        assert TS0 + 2 * idx + 1 <= 101
        if ts:
            a("  s_memrealtime s[%d:%d]" % (TS0 + 2 * idx, TS0 + 2 * idx + 1))

    def lds_wait(vbase, off, n, vtmp, sleep=1):
        l0, l1 = a.lab("Lw"), a.lab("Lwd")
        a("  s_mov_b32 s%d, 0" % sCnt)
        a("%s:" % l0)
        a("  ds_read_b32 v%d, v%d offset:%d" % (vtmp, vbase, off))
        a("  s_waitcnt lgkmcnt(0)")
        a("  v_readfirstlane_b32 s%d, v%d" % (sT[7], vtmp))
        a("  s_cmp_ge_u32 s%d, %d" % (sT[7], n))
        a("  s_cbranch_scc1 %s" % l1)
        a("  s_add_u32 s%d, s%d, 1" % (sCnt, sCnt))
        a("  s_cmp_lt_u32 s%d, %d" % (sCnt, SPIN_LIMIT))
        a("  s_cbranch_scc0 %s" % l1)
        a("  s_sleep %d" % sleep)
        a("  s_branch %s" % l0)
        a("%s:" % l1)

    def lds_add(vbase, off, vone):
        a("  s_mov_b64 exec, 1")
        a("  ds_add_u32 v%d, v%d offset:%d" % (vbase, vone, off))
        a("  s_mov_b64 exec, -1")

    def store_loc(stores, sflag):
        l0, l1 = a.lab("Lsl"), a.lab("Lsl")
        a("  s_cmp_eq_u32 s%d, 0" % sflag)
        a("  s_cbranch_scc1 %s" % l0)
        for st in stores:
            a(st + (" nt" if locnt else ""))
        a("  s_branch %s" % l1)
        a("%s:" % l0)
        for st in stores:
            a(st + " sc1")
        a("%s:" % l1)

    def reduce_swap(op, v, t, kind):
        a("  v_mov_b32 v%d, v%d" % (t, v))
        a("  s_nop 1")
        a("  v_permlane%d_swap_b32 v%d, v%d" % (kind, v, t))
        a("  %s v%d, v%d, v%d" % (op, v, v, t))

    a("  s_cmp_ge_u32 s2, 256")
    a("  s_cbranch_scc1 L_end")
    if early_ka and wide_ka:
        a("  s_load_dwordx16 s[68:83], s[0:1], 0")
        a("  s_load_dwordx8 s[84:91], s[0:1], 64")
    elif early_ka:
        a("  s_load_dwordx2 s[8:9], s[0:1], 0             ; x")
        a("  s_load_dwordx2 s[52:53], s[0:1], 8           ; K")
        a("  s_load_dwordx2 s[12:13], s[0:1], 24          ; wq")
        a("  s_load_dwordx2 s[16:17], s[0:1], 88          ; ws")
        a("  s_load_dwordx2 s[60:61], s[0:1], 16          ; V")
        a("  s_load_dwordx4 s[56:59], s[0:1], 48")
    stamp(0)
    if dbgtime:
        a("  s_memrealtime s[100:101]")
    a("  v_lshrrev_b32 v1, 6, v0")
    a("  v_and_b32 v0, 63, v0            ; lane")
    a("  v_readfirstlane_b32 s%d, v1     ; wave id" % sW)
    a("  s_and_b32 s%d, s2, 7" % sX)
    a("  s_lshr_b32 s%d, s2, 3" % sLi)
    a("  s_cmp_ge_u32 s%d, 4" % sW)
    a("  s_cbranch_scc1 L_H")

    sK, sV, sCur = 8, 12, 16
    if early_ka:
        sV, sCur = 60, 52
    sBaseW, sRot, sRing, sIss, sOff, sIt = 28, 29, 30, 31, 32, 33
    sOff1 = 50
    sLocS = 51
    sM = 34
    sScale, sHi = 42, 43
    vLane = 0
    vMisc, vOne = 2, 3
    vKo, vVo, vCo = 4, 8, 12
    vKa = 16
    vVa = 20
    vTmp = 28
    vSp = 36
    vPf = 44
    vAcc = 52
    vE = 56
    vSt = 72
    vO = 104
    vQ = 136
    NV = 200

    sWsS = 16 if early_ka else 44
    sEp = 48
    sBaseW1 = 49
    a("L_S:")
    if sprio:
        a("  s_setprio %d" % sprio)
    if pf:
        lpf = a.lab("Lpf")
        a("  s_cmp_lg_u32 s%d, 3" % sW)
        a("  s_cbranch_scc1 %s" % lpf)
        a("  s_and_b32 s%d, s%d, 15" % (sT[0], sLi))
        a("  s_cmp_lg_u32 s%d, 0" % sT[0])
        a("  s_cbranch_scc1 %s" % lpf)
        a("  s_getpc_b64 s[%d:%d]" % (sT[2], sT[3]))
        a("L_pc:")
        a("  v_lshlrev_b32 v%d, 7, v%d" % (vTmp + 2, vLane))
        a("  v_add_u32 v%d, 0x2000, v%d" % (vTmp + 3, vTmp + 2))
        a("  global_load_dword v%d, v%d, s[%d:%d]" % (vSt, vTmp + 2, sT[2], sT[3]))
        a("  v_cmp_gt_u32 vcc, L_code_end-L_pc, v%d" % (vTmp + 3))
        a("  s_and_saveexec_b64 s[%d:%d], vcc" % (sT[4], sT[5]))
        a("  s_cbranch_execz L_pf_done")
        a("  global_load_dword v%d, v%d, s[%d:%d]" % (vSt + 1, vTmp + 3, sT[2], sT[3]))
        a("L_pf_done:")
        a("  s_mov_b64 exec, -1")
        a("%s:" % lpf)
    if not early_ka:
        a("  s_load_dwordx2 s[%d:%d], s[0:1], 8" % (sCur, sCur + 1))
        a("  s_load_dwordx2 s[%d:%d], s[0:1], 16" % (sV, sV + 1))
        a("  s_load_dwordx2 s[%d:%d], s[0:1], 88" % (sWsS, sWsS + 1))
    a("  s_mov_b32 s%d, 0x4000000" % (sCur + 2))
    a("  s_mov_b32 s%d, 0x20000" % (sCur + 3))
    a("  s_lshr_b32 s%d, s%d, 2" % (sT[0], sLi))
    a("  s_lshl_b32 s%d, s%d, 3" % (sT[0], sT[0]))
    a("  s_add_u32 s%d, s%d, s%d" % (sT[0], sT[0], sX))
    a("  s_lshl_b32 s%d, s%d, 2" % (sT[0], sT[0]))
    a("  s_and_b32 s%d, s%d, 3" % (sT[1], sLi))
    a("  s_add_u32 s%d, s%d, s%d" % (sT[0], sT[0], sT[1]))
    a("  s_lshl_b32 s%d, s%d, 18" % (sT[0], sT[0]))
    a("  s_lshl_b32 s%d, s%d, 13" % (sT[1], sW))
    if r4:
        if r4 == 1:
            a("  s_lshl_b32 s%d, s%d, 12" % (sT[2], sLi))
        else:
            a("  s_lshr_b32 s%d, s%d, 2" % (sT[2], sLi))
            a("  s_add_u32 s%d, s%d, s%d" % (sT[2], sT[2], sX))
            a("  s_lshl_b32 s%d, s%d, 12" % (sT[2], sT[2]))
        a("  s_add_u32 s%d, s%d, s%d" % (sT[1], sT[1], sT[2]))
        a("  s_add_u32 s%d, s%d, 4096" % (sT[2], sT[1]))
        a("  s_and_b32 s%d, s%d, 0x7fff" % (sT[1], sT[1]))
        a("  s_and_b32 s%d, s%d, 0x7fff" % (sT[2], sT[2]))
        a("  s_add_u32 s%d, s%d, s%d" % (sBaseW, sT[0], sT[1]))
        a("  s_add_u32 s%d, s%d, s%d" % (sBaseW1, sT[0], sT[2]))
    else:
        a("  s_add_u32 s%d, s%d, s%d" % (sBaseW, sT[0], sT[1]))
        a("  s_add_u32 s%d, s%d, 4096" % (sBaseW1, sBaseW))
    if rotmode == 0:
        sRotR = 2
    elif rotmode == 3:
        sRotR = sLi
    else:
        a("  s_add_u32 s%d, s2, s%d" % (sRot, sLi))
        sRotR = sRot
    if rdv:
        a("  s_load_dwordx2 s[64:65], s[0:1], 80")
        a("  s_mov_b32 s66, 256")
        a("  s_mov_b32 s67, 0x20000")
    a("  s_lshl_b32 s%d, s%d, 15" % (sRing, sW))
    a("  s_mov_b32 s%d, 0" % sIss)
    t0, t1, t2 = vTmp, vTmp + 1, vTmp + 2
    a("  v_lshrrev_b32 v%d, 4, v%d      ; g = l>>4" % (t0, vLane))
    a("  v_and_b32 v%d, 15, v%d         ; c' = l&15" % (t1, vLane))
    for i in range(4):
        a("  v_add_u32 v%d, %d, v%d" % (t2, 4 * i, t0))
        a("  v_xor_b32 v%d, v%d, v%d" % (t2, t2, t1))
        a("  v_lshlrev_b32 v%d, 4, v%d" % (t2, t2))
        a("  v_lshl_add_u32 v%d, v%d, 8, v%d" % (vCo + i, t0, t2))
    a("  v_mov_b32 v%d, %d" % (vMisc, FLG))
    a("  v_mov_b32 v%d, 1" % vOne)
    a("  s_waitcnt lgkmcnt(0)")
    if wide_ka:
        a("  s_mov_b64 s[52:53], s[70:71]")
        a("  s_mov_b64 s[60:61], s[72:73]")
        a("  s_mov_b64 s[16:17], s[90:91]")
    a("  s_barrier                      ; B0")

    def issue_unit(switch=False, dep=None):
        depth_ = dep if dep else depth
        if switch:
            lsw = a.lab("Lsw")
            a("  s_cmp_lg_u32 s%d, 8" % sIss)
            a("  s_cbranch_scc1 %s" % lsw)
            for i in range(4):
                a("  s_mov_b32 s%d, s%d" % (sCur + i, sV + i))
            for i in range(4):
                a("  v_mov_b32 v%d, v%d" % (vCo + i, vVo + (i & 1)))
            a("%s:" % lsw)
        a("  s_add_u32 s%d, s%d, s%d" % (sT[0], sIss, sRotR))
        a("  s_and_b32 s%d, s%d, 7" % (sT[0], sT[0]))
        a("  s_lshl_b32 s%d, s%d, 15" % (sT[0], sT[0]))
        a("  s_add_u32 s%d, s%d, s%d" % (sOff, sT[0], sBaseW))
        a("  s_add_u32 s%d, s%d, s%d" % (sOff1, sT[0], sBaseW1))
        a("  s_and_b32 s%d, s%d, 3" % (sT[0], sIss))
        a("  s_lshl_b32 s%d, s%d, 13" % (sT[0], sT[0]))
        a("  s_add_u32 m0, s%d, s%d" % (sT[0], sRing))
        a("  s_add_u32 s%d, s%d, 1" % (sIss, sIss))
        a("  s_waitcnt vmcnt(%d)" % (depth_ - 1))
        for i in range(4):
            a("  buffer_load_dwordx4 v%d, s[%d:%d], s%d offen offset:%d nt lds" % (vCo + i, sCur, sCur + 3, sOff, i * 1024))
            if i < 3:
                a("  s_waitcnt vmcnt(%d)" % (depth_ - 1))
        a("  s_add_u32 m0, m0, 4096")
        a("  s_waitcnt vmcnt(%d)" % (depth_ - 1))
        for i in range(4):
            a("  buffer_load_dwordx4 v%d, s[%d:%d], s%d offen offset:%d nt lds" % (vCo + i, sCur, sCur + 3, sOff1, i * 1024))
            if i < 3:
                a("  s_waitcnt vmcnt(%d)" % (depth_ - 1))

    a("L_fill:")
    a("  s_cmp_lg_u32 s%d, 3" % sIss)
    a("  s_cbranch_scc1 L_fill_go")
    stamp("u2 issued")
    lds_wait(vMisc, F_STG, 4, vTmp + 5)
    stamp("STG ok")
    a("L_fill_go:")
    if rdv:
        lrd = a.lab("Lrd")
        a("  s_cmp_lg_u32 s%d, 0" % sW)
        a("  s_cbranch_scc1 %s" % lrd)
        a("  s_cmp_lg_u32 s%d, %d" % (sIss, rdv_unit))
        a("  s_cbranch_scc1 %s" % lrd)
        a("  s_lshl_b32 s%d, s%d, 5" % (sT[0], sX))
        a("  s_add_u32 s%d, s%d, 16" % (sT[0], sT[0]))
        a("  v_mov_b32 v%d, s%d" % (vTmp + 4, sT[0]))
        a("  s_waitcnt lgkmcnt(0)")
        a("  s_mov_b64 exec, 1")
        a("  buffer_atomic_add v%d, v%d, s[64:67], 0 offen sc1" % (vOne, vTmp + 4))
        a("  s_mov_b64 exec, -1")
        a("%s:" % lrd)
    issue_unit(dep=dfill)

    a("  s_cmp_lt_u32 s%d, 4" % sIss)
    a("  s_cbranch_scc1 L_fill")
    a("  s_load_dword s%d, s[%d:%d], 0x%x" % (sEp, sWsS, sWsS + 1, EPOCH))
    a("  s_mov_b32 s%d, 0x4000000" % (sV + 2))
    a("  s_mov_b32 s%d, 0x20000" % (sV + 3))
    a("  s_mov_b32 s%d, 0x10000000" % (sWsS + 2))
    a("  s_mov_b32 s%d, 0x20000" % (sWsS + 3))
    for i in range(2):
        a("  v_add_u32 v%d, %d, v%d" % (t2, 4 * i, t0))
        a("  v_lshlrev_b32 v%d, 1, v%d" % (t2, t2))
        a("  v_xor_b32 v%d, v%d, v%d" % (t2, t2, t1))
        a("  v_lshlrev_b32 v%d, 4, v%d" % (t2, t2))
        a("  v_lshl_add_u32 v%d, v%d, 8, v%d" % (vVo + i, t0, t2))
    for s in range(4):
        a("  v_add_u32 v%d, %d, v%d" % (t2, 4 * s, t0))
        a("  v_xor_b32 v%d, v%d, v%d" % (t2, t2, t1))
        a("  v_lshlrev_b32 v%d, 4, v%d" % (t2, t2))
        a("  v_lshl_add_u32 v%d, v%d, 8, v%d" % (t2, t1, t2))
        a("  v_add_u32 v%d, s%d, v%d" % (vKa + s, sRing, t2))
    t3, t4 = vTmp + 3, vTmp + 4
    a("  v_lshrrev_b32 v%d, 2, v%d" % (t2, t1))
    a("  v_lshl_add_u32 v%d, v%d, 2, v%d    ; row" % (t2, t0, t2))
    a("  v_and_b32 v%d, 7, v%d              ; row&7" % (t3, t2))
    a("  v_lshlrev_b32 v%d, 8, v%d" % (t2, t2))
    a("  v_and_b32 v%d, 3, v%d" % (t4, t1))
    a("  v_lshl_add_u32 v%d, v%d, 3, v%d" % (t2, t4, t2))
    a("  v_add_u32 v%d, s%d, v%d" % (t2, sRing, t2))
    for dt in range(8):
        a("  v_xor_b32 v%d, %d, v%d" % (t4, dt, t3))
        a("  v_lshl_add_u32 v%d, v%d, 5, v%d" % (vVa + dt, t4, t2))
    for i in range(64):
        a("  v_mov_b32 v%d, 0" % (vQ + i))
    a("  v_bfe_u32 v%d, v%d, 2, 2" % (t2, vLane))
    for t in range(4):
        a("  v_cmp_eq_u32 s[%d:%d], %d, v%d" % (sM + 2 * t, sM + 2 * t + 1, t, t2))
    a("  v_and_b32 v%d, 3, v%d" % (t2, vLane))
    a("  v_mul_u32_u24 v%d, %d, v%d" % (t2, QL_STRIDE, t2))
    a("  v_lshl_add_u32 v%d, v%d, 4, v%d" % (t2, t0, t2))
    a("  v_add_u32 v%d, %d, v%d" % (t2, QL, t2))
    a("  s_mov_b32 s%d, 0x3DB504F3      ; 128^-0.5" % sScale)
    a("  s_mov_b32 s%d, 0xffff0000" % sHi)
    stamp("fill done")
    if rdv:
        lrd, lrd2 = a.lab("Lrd"), a.lab("Lrd")
        a("  s_cmp_lg_u32 s%d, 0" % sW)
        a("  s_cbranch_scc1 %s" % lrd)
        a("  s_waitcnt vmcnt(0)")
        a("  v_lshlrev_b32 v%d, 5, v%d" % (vTmp + 4, vLane))
        a("  v_add_u32 v%d, 16, v%d" % (vTmp + 4, vTmp + 4))
        l0, l1 = a.lab("Lp"), a.lab("Lpd")
        a("  s_mov_b32 s%d, 0" % sCnt)
        a("  s_mov_b64 exec, 0xff")
        a("%s:" % l0)
        a("  buffer_load_dword v%d, v%d, s[64:67], 0 offen sc1" % (vTmp + 5, vTmp + 4))
        a("  s_waitcnt vmcnt(0)")
        a("  v_cmp_gt_u32 vcc, 32, v%d" % (vTmp + 5))
        a("  s_cbranch_vccz %s" % l1)
        a("  s_add_u32 s%d, s%d, 1" % (sCnt, sCnt))
        a("  s_cmp_lt_u32 s%d, %d" % (sCnt, SPIN_LIMIT))
        a("  s_cbranch_scc0 %s" % l1)
        a("  s_sleep 8")
        a("  s_branch %s" % l0)
        a("%s:" % l1)
        a("  s_mov_b64 exec, -1")
        lds_add(vMisc, F_GO, vOne)
        a("  s_branch %s" % lrd2)
        a("%s:" % lrd)
        lds_wait(vMisc, F_GO, 1, vTmp + 5, sleep=2)
        a("%s:" % lrd2)
        stamp("GO")
    if not noq:
        lds_wait(vMisc, F_QRDY, 4, vTmp + 5)
    stamp("Q ready")
    for t in range(4):
        a("  s_mov_b64 exec, s[%d:%d]" % (sM + 2 * t, sM + 2 * t + 1))
        for s in range(4):
            r = vQ + (t * 4 + s) * 4
            a("  ds_read_b128 v[%d:%d], v%d offset:%d" % (r, r + 3, t2, 64 * s))
    a("  s_mov_b64 exec, -1")
    a("  s_mov_b32 s%d, 0" % sIt)
    a("  s_waitcnt vmcnt(0) lgkmcnt(0)")

    a("L_k:")
    lmid = a.lab("Lmid")
    a("  s_cmp_lg_u32 s%d, 0" % sW)
    a("  s_cbranch_scc1 %s" % lmid)
    a("  s_cmp_lg_u32 s%d, %d" % (sIt, mid_it))
    a("  s_cbranch_scc1 %s" % lmid)
    lds_add(vMisc, F_MID, vOne)
    a("%s:" % lmid)
    for u in range(2):
        if u == 0:
            lsk = a.lab("Lsk")
            a("  s_cmp_lt_u32 s%d, %d" % (sIt, 3 if la == 1 else 2))
            a("  s_cbranch_scc1 %s" % lsk)
            issue_unit(switch=(la == 2), dep=dk)
            a("%s:" % lsk)
        else:
            issue_unit(switch=(la == 1), dep=dk)
        for hf in range(2):
            for s_ in range(4):
                r = vSt + (hf * 4 + s_) * 4
                a("  ds_read_b128 v[%d:%d], v%d offset:%d" % (r, r + 3, vKa + s_, u * 8192 + hf * 4096))
        for hf in range(2):
            a("  s_waitcnt lgkmcnt(%d)" % (4 if hf == 0 else 0))
            t = 2 * u + hf
            for s_ in range(4):
                r = vSt + (hf * 4 + s_) * 4
                q = vQ + (t * 4 + s_) * 4
                c = "0" if (u == 0 and hf == 0 and s_ == 0) else "v[%d:%d]" % (vAcc, vAcc + 3)
                a("  v_mfma_f32_16x16x32_bf16 v[%d:%d], v[%d:%d], v[%d:%d], %s" % (vAcc, vAcc + 3, r, r + 3, q, q + 3, c))
    for i in range(6):
        a("  v_mov_b32 v%d, v%d" % (vSp + i, vSp + i + 2))
    for s in range(4):
        a("  v_xor_b32 v%d, 0x4000, v%d" % (vKa + s, vKa + s))
    c0, c1 = vTmp, vTmp + 1
    e0 = vTmp + 2
    a("  v_cvt_pk_bf16_f32 v%d, v%d, v%d" % (c0, vAcc, vAcc + 1))
    a("  v_cvt_pk_bf16_f32 v%d, v%d, v%d" % (c1, vAcc + 2, vAcc + 3))
    a("  v_lshlrev_b32 v%d, 16, v%d" % (e0, c0))
    a("  v_and_b32 v%d, s%d, v%d" % (e0 + 1, sHi, c0))
    a("  v_lshlrev_b32 v%d, 16, v%d" % (e0 + 2, c1))
    a("  v_and_b32 v%d, s%d, v%d" % (e0 + 3, sHi, c1))
    for i in range(4):
        a("  v_mul_f32 v%d, s%d, v%d" % (e0 + i, sScale, e0 + i))
    a("  v_cvt_pk_bf16_f32 v%d, v%d, v%d" % (vSp + 6, e0, e0 + 1))
    a("  v_cvt_pk_bf16_f32 v%d, v%d, v%d" % (vSp + 7, e0 + 2, e0 + 3))
    a("  s_add_u32 s%d, s%d, 1" % (sIt, sIt))
    a("  s_cmp_lt_u32 s%d, 4" % sIt)
    a("  s_cbranch_scc1 L_k")
    stamp("K done")
    if presm and la == 1:
        issue_unit()

    for i in range(8):
        a("  v_lshlrev_b32 v%d, 16, v%d" % (vE + 2 * i, vSp + i))
        a("  v_and_b32 v%d, s%d, v%d" % (vE + 2 * i + 1, sHi, vSp + i))
    vM, vL, vX = vTmp, vTmp + 1, vTmp + 2
    a("  v_max3_f32 v%d, v%d, v%d, v%d" % (vM, vE, vE + 1, vE + 2))
    for i in range(3, 15, 2):
        a("  v_max3_f32 v%d, v%d, v%d, v%d" % (vM, vM, vE + i, vE + i + 1))
    a("  v_max_f32 v%d, v%d, v%d" % (vM, vM, vE + 15))
    a("  s_nop 1")
    a("  v_max_f32_dpp v%d, v%d, v%d row_ror:4 %s" % (vM, vM, vM, DPP))
    a("  s_nop 1")
    a("  v_max_f32_dpp v%d, v%d, v%d row_ror:8 %s" % (vM, vM, vM, DPP))
    reduce_swap("v_max_f32", vM, vX, 16)
    reduce_swap("v_max_f32", vM, vX, 32)
    a("  s_mov_b32 s%d, 0x3FB8AA3B      ; log2(e)" % sT[0])
    a("  v_mul_f32 v%d, s%d, v%d" % (vX, sT[0], vM))
    for i in range(16):
        a("  v_fma_f32 v%d, v%d, s%d, -v%d" % (vE + i, vE + i, sT[0], vX))
    for i in range(16):
        a("  v_exp_f32 v%d, v%d" % (vE + i, vE + i))
    a("  s_nop 0")
    for i in range(8):
        a("  v_cvt_pk_bf16_f32 v%d, v%d, v%d" % (vSp + i, vE + 2 * i, vE + 2 * i + 1))
    for i in range(4):
        a("  v_pk_add_f32 v[%d:%d], v[%d:%d], v[%d:%d]" % (vE + 2 * i, vE + 2 * i + 1, vE + 2 * i, vE + 2 * i + 1, vE + 8 + 2 * i, vE + 9 + 2 * i))
    for i in range(2):
        a("  v_pk_add_f32 v[%d:%d], v[%d:%d], v[%d:%d]" % (vE + 2 * i, vE + 2 * i + 1, vE + 2 * i, vE + 2 * i + 1, vE + 4 + 2 * i, vE + 5 + 2 * i))
    a("  v_pk_add_f32 v[%d:%d], v[%d:%d], v[%d:%d]" % (vE, vE + 1, vE, vE + 1, vE + 2, vE + 3))
    a("  v_add_f32 v%d, v%d, v%d" % (vL, vE, vE + 1))
    a("  s_nop 1")
    a("  v_add_f32_dpp v%d, v%d, v%d row_ror:4 %s" % (vL, vL, vL, DPP))
    a("  s_nop 1")
    a("  v_add_f32_dpp v%d, v%d, v%d row_ror:8 %s" % (vL, vL, vL, DPP))
    reduce_swap("v_add_f32", vL, vX, 16)
    reduce_swap("v_add_f32", vL, vX, 32)
    a("  s_lshl_b32 s%d, s%d, 5" % (sT[0], sW))
    a("  v_lshlrev_b32 v%d, 3, v%d" % (vX, vLane))
    a("  v_add_u32 v%d, s%d, v%d" % (vX, sT[0], vX))
    a("  v_add_u32 v%d, v%d, v%d" % (vX, vMisc, vX))
    a("  s_mov_b64 exec, 15")
    a("  ds_write_b64 v%d, v[%d:%d] offset:%d" % (vX, vM, vM + 1, SSTAT))
    a("  s_waitcnt lgkmcnt(0)")
    a("  s_mov_b64 exec, -1")
    lds_add(vMisc, F_ST, vOne)

    if t0par:
        vW0, vR0, vR1, vR2, vR3 = vE + 4, vE + 5, vE + 6, vE + 7, vE + 8
        sXm, sO0, sHiM = 34, 36, 38
        tq0, tq1 = vTmp + 2, vTmp + 3
        a("  v_and_b32 v%d, 15, v%d" % (tq1, vLane))
        a("  v_lshrrev_b32 v%d, 4, v%d" % (tq0, vLane))
        a("  v_lshlrev_b32 v%d, 9, v%d" % (vW0, tq1))
        a("  v_lshl_add_u32 v%d, v%d, 4, v%d" % (vW0, tq0, vW0))
        a("  v_add_u32 v%d, s%d, v%d" % (vW0, sRing, vW0))
        a("  v_cmp_gt_u32 s[%d:%d], 4, v%d" % (sXm, sXm + 1, tq1))
        a("  s_lshl_b32 s%d, s%d, 9" % (sT[0], sW))
        a("  v_and_b32 v%d, 31, v%d" % (vR0, vLane))
        a("  v_lshlrev_b32 v%d, 4, v%d" % (vR0, vR0))
        a("  v_add_u32 v%d, s%d, v%d" % (vR0, sT[0], vR0))
        a("  s_lshl_b32 s%d, s%d, 4" % (sT[0], sW))
        a("  v_add_u32 v%d, s%d, v%d" % (vR1, sT[0], vMisc))
        a("  v_bfe_u32 v%d, v%d, 3, 2" % (vR2, vLane))
        a("  v_lshlrev_b32 v%d, 11, v%d" % (vR2, vR2))
        a("  v_and_b32 v%d, 7, v%d" % (tq0, vLane))
        a("  v_lshl_add_u32 v%d, v%d, 4, v%d" % (vR2, tq0, vR2))
        a("  s_lshl_b32 s%d, s%d, 2" % (sO0, sX))
        a("  s_add_u32 s%d, s%d, s%d" % (sO0, sO0, sW))
        a("  s_lshl_b32 s%d, s%d, 14" % (sO0, sO0))
        a("  s_lshr_b32 s%d, s%d, 4" % (sT[1], sLi))
        a("  s_lshl_b32 s%d, s%d, 13" % (sT[1], sT[1]))
        a("  s_add_u32 s%d, s%d, s%d" % (sO0, sO0, sT[1]))
        a("  s_and_b32 s%d, s%d, 15" % (sT[1], sLi))
        a("  s_lshl_b32 s%d, s%d, 7" % (sT[1], sT[1]))
        a("  s_add_u32 s%d, s%d, s%d" % (sO0, sO0, sT[1]))
        a("  s_add_u32 s%d, s%d, %d" % (sO0, sO0, OP))
        a("  s_add_u32 s%d, s%d, 1" % (sT[1], sEp))
        a("  s_and_b32 s%d, s%d, 0xff" % (sT[1], sT[1]))
        a("  v_mov_b32 v%d, s%d" % (vR3, sT[1]))
        a("  s_mov_b32 s%d, 0xffff0000" % sHiM)
    for i in range(32):
        a("  v_mov_b32 v%d, 0" % (vO + i))
    a("  s_mov_b32 s%d, 0" % sIt)
    a("L_v:")
    a("  v_mov_b32 v%d, v%d" % (vPf, vSp))
    a("  v_mov_b32 v%d, v%d" % (vPf + 1, vSp + 1))
    for k, sh in ((2, 4), (4, 8), (6, 12)):
        a("  v_mov_b32_dpp v%d, v%d row_shl:%d %s bound_ctrl:0" % (vPf + k, vSp, sh, DPP))
        a("  v_mov_b32_dpp v%d, v%d row_shl:%d %s bound_ctrl:0" % (vPf + k + 1, vSp + 1, sh, DPP))
    for i in range(6):
        a("  v_mov_b32 v%d, v%d" % (vSp + i, vSp + i + 2))
    lew = a.lab("Lew")
    lew3 = a.lab("Lew")
    a("  s_cmp_lg_u32 s%d, 0" % sW)
    a("  s_cbranch_scc1 %s" % lew3)
    lew2 = a.lab("Lew")
    a("  s_cmp_lg_u32 s%d, %d" % (sIt, late_it))
    a("  s_cbranch_scc1 %s" % lew2)
    lds_add(vMisc, F_LATE, vOne)
    a("%s:" % lew2)
    a("  s_cmp_lg_u32 s%d, %d" % (sIt, ew_it))
    a("  s_cbranch_scc1 %s" % lew)
    lds_add(vMisc, F_EWS, vOne)
    if not t0par:
        if nob1:
            lds_wait(vMisc, F_LOC, 1, vTmp + 5, sleep=0)
            a("  s_lshr_b32 s%d, s%d, 1" % (sLocS, sT[7]))
            lds_wait(vMisc, F_F, 1, vTmp + 5, sleep=0)
        a("%s:" % lew3)
    else:
        a("%s:" % lew3)
        a("  s_cmp_lg_u32 s%d, %d" % (sIt, ew_it))
        a("  s_cbranch_scc1 %s" % lew)
        lds_wait(vMisc, F_LOC, 1, vTmp + 5, sleep=0)
        a("  s_lshr_b32 s%d, s%d, 1" % (sLocS, sT[7]))
        lds_wait(vMisc, F_F, 1, vTmp + 5, sleep=0)
    a("%s:" % lew)
    for u in range(2):
        if u == 0 and la == 1:
            if presm:
                lsk = a.lab("Lsk")
                a("  s_cmp_eq_u32 s%d, 0" % sIt)
                a("  s_cbranch_scc1 %s" % lsk)
                issue_unit()
                a("%s:" % lsk)
            else:
                issue_unit()
        else:
            lv_else, lv_done = a.lab("Lve"), a.lab("Lvd")
            a("  s_cmp_ge_u32 s%d, 3" % sIt)
            a("  s_cbranch_scc1 %s" % lv_else)
            issue_unit()
            a("  s_branch %s" % lv_done)
            a("%s:" % lv_else)
            a("  s_waitcnt vmcnt(%d)" % (8 if u == 0 else 0))
            a("%s:" % lv_done)
        for dt in range(8):
            r = vSt + dt * 4
            a("  ds_read_b64_tr_b16 v[%d:%d], v%d offset:%d" % (r, r + 1, vVa + dt, u * 8192))
            a("  ds_read_b64_tr_b16 v[%d:%d], v%d offset:%d" % (r + 2, r + 3, vVa + dt, u * 8192 + 4096))
        for dt in range(8):
            r = vSt + dt * 4
            o = vO + dt * 4
            if dt % 2 == 0:
                a("  s_waitcnt lgkmcnt(%d)" % (12 - 2 * dt if dt < 6 else 0))
            a("  v_mfma_f32_16x16x32_bf16 v[%d:%d], v[%d:%d], v[%d:%d], v[%d:%d]" % (o, o + 3, r, r + 3, vPf + 4 * u, vPf + 4 * u + 3, o, o + 3))
    for dt in range(8):
        a("  v_xor_b32 v%d, 0x4000, v%d" % (vVa + dt, vVa + dt))
    a("  s_add_u32 s%d, s%d, 1" % (sIt, sIt))
    a("  s_cmp_lt_u32 s%d, 4" % sIt)
    a("  s_cbranch_scc1 L_v")
    stamp("V done")
    if t0par:
        assert nob1
        sWs = sWsS
        a("  s_mov_b64 exec, s[%d:%d]" % (sXm, sXm + 1))
        for dt in range(8):
            a("  ds_write_b128 v%d, v[%d:%d] offset:%d" % (vW0, vO + dt * 4, vO + dt * 4 + 3, dt * 64))
        a("  s_mov_b64 exec, -1")
        a("  s_waitcnt lgkmcnt(0)")
        lds_add(vMisc, F_T0, vOne)
        lds_wait(vMisc, F_T0, 4, vTmp + 5, sleep=0)
        for w in range(4):
            a("  ds_read_b128 v[%d:%d], v%d offset:%d" % (vSt + w * 4, vSt + w * 4 + 3, vR0, (w & 1) * 32768))
            if w == 1:
                a("  v_add_u32 v%d, 0x10000, v%d" % (vR0, vR0))
        a("  ds_read_b128 v[%d:%d], v%d offset:%d" % (vE, vE + 3, vR1, FFAC))
        a("  s_waitcnt lgkmcnt(0)")
        for i in range(4):
            a("  v_mul_f32 v%d, v%d, v%d" % (vO + i, vSt + i, vE))
        for w in range(1, 4):
            for i in range(4):
                a("  v_fmac_f32 v%d, v%d, v%d" % (vO + i, vSt + w * 4 + i, vE + w))
        for i in range(4):
            a("  v_cvt_pk_bf16_f32 v%d, v%d, v%d" % (vO + i, vO + i, vO + i))
        for i in range(4):
            a("  v_and_or_b32 v%d, v%d, s%d, v%d" % (vO + i, vO + i, sHiM, vR3))
        a("  s_mov_b32 exec_hi, 0")
        store_loc(["  buffer_store_dwordx4 v[%d:%d], v%d, s[%d:%d], s%d offen" % (vO, vO + 3, vR2, sWs, sWs + 3, sO0)], sLocS)
        a("  s_mov_b64 exec, -1")
        a("  s_cmp_lg_u32 s%d, 0" % sW)
        a("  s_cbranch_scc1 L_S_done")
    else:
        a("  v_and_b32 v%d, 15, v%d" % (t1, vLane))
        a("  v_lshrrev_b32 v%d, 4, v%d" % (t0, vLane))
        a("  v_lshlrev_b32 v%d, 9, v%d" % (t2, t1))
        a("  v_lshl_add_u32 v%d, v%d, 4, v%d" % (t2, t0, t2))
        a("  v_add_u32 v%d, s%d, v%d" % (t2, sRing, t2))
        a("  v_cmp_gt_u32 vcc, 4, v%d" % t1)
        a("  s_nop 4")
        a("  s_mov_b64 exec, vcc")
        for dt in range(8):
            a("  ds_write_b128 v%d, v[%d:%d] offset:%d" % (t2, vO + dt * 4, vO + dt * 4 + 3, dt * 64))
        a("  s_mov_b64 exec, -1")
        vR0, vR1, vR2, vR3 = vPf, vPf + 1, vPf + 2, vPf + 3
        a("  v_lshlrev_b32 v%d, 9, v%d" % (vR0, t0))
        a("  v_lshl_add_u32 v%d, v%d, 4, v%d      ; h*512 + c*16" % (vR0, t1, vR0))
        a("  v_lshl_add_u32 v%d, v%d, 4, v%d      ; FLG + h*16" % (vR1, t0, vMisc))
        a("  v_lshlrev_b32 v%d, 14, v%d" % (vR2, t0))
        a("  v_lshrrev_b32 v%d, 3, v%d" % (t3, t1))
        a("  v_lshl_add_u32 v%d, v%d, 11, v%d" % (vR2, t3, vR2))
        a("  v_and_b32 v%d, 7, v%d" % (t3, t1))
        a("  v_lshl_add_u32 v%d, v%d, 4, v%d" % (vR2, t3, vR2))
        a("  s_lshl_b32 s%d, s%d, 16" % (sT[0], sX))
        a("  s_lshr_b32 s%d, s%d, 4" % (sT[1], sLi))
        a("  s_lshl_b32 s%d, s%d, 13" % (sT[1], sT[1]))
        a("  s_add_u32 s%d, s%d, s%d" % (sT[0], sT[0], sT[1]))
        a("  s_and_b32 s%d, s%d, 15" % (sT[1], sLi))
        a("  s_lshl_b32 s%d, s%d, 7" % (sT[1], sT[1]))
        a("  s_add_u32 s%d, s%d, s%d" % (sT[0], sT[0], sT[1]))
        a("  s_add_u32 s%d, s%d, %d" % (sT[0], sT[0], OP))
        a("  s_add_u32 s%d, s%d, 1" % (sT[1], sEp))
        a("  s_and_b32 s%d, s%d, 0xff" % (sT[1], sT[1]))
        a("  v_mov_b32 v%d, s%d" % (vR3, sT[1]))
        a("  s_add_u32 s%d, s%d, 4096" % (sT[1], sT[0]))
        a("  s_mov_b32 s%d, 0xffff0000" % sT[2])
        if not nob1:
            lds_wait(vMisc, F_LOC, 1, t3)
            a("  s_lshr_b32 s%d, s%d, 1" % (sLocS, sT[7]))
        a("  s_waitcnt lgkmcnt(0)")
        if nob1:
            lds_add(vMisc, F_T0, vOne)
            a("  s_cmp_lg_u32 s%d, 0" % sW)
            a("  s_cbranch_scc1 L_S_done")
            lds_wait(vMisc, F_T0, 4, t3, sleep=0)
        else:
            a("  s_barrier                      ; B1")
            a("  s_cmp_lg_u32 s%d, 0" % sW)
            a("  s_cbranch_scc1 L_S_done")
        sWs = sWsS
        for w in range(4):
            a("  ds_read_b128 v[%d:%d], v%d offset:%d" % (vSt + w * 8, vSt + w * 8 + 3, vR0, (w & 1) * 32768))
            a("  ds_read_b128 v[%d:%d], v%d offset:%d" % (vSt + w * 8 + 4, vSt + w * 8 + 7, vR0, (w & 1) * 32768 + 256))
            if w == 1:
                a("  v_add_u32 v%d, 0x10000, v%d" % (vR0, vR0))
        a("  ds_read_b128 v[%d:%d], v%d offset:%d" % (vE, vE + 3, vR1, FFAC))
        a("  s_waitcnt lgkmcnt(0)")
        for i in range(8):
            a("  v_mul_f32 v%d, v%d, v%d" % (vO + i, vSt + i, vE))
        for w in range(1, 4):
            for i in range(8):
                a("  v_fmac_f32 v%d, v%d, v%d" % (vO + i, vSt + w * 8 + i, vE + w))
        for i in range(8):
            a("  v_cvt_pk_bf16_f32 v%d, v%d, v%d" % (vO + i, vO + i, vO + i))
        for i in range(8):
            a("  v_and_or_b32 v%d, v%d, s%d, v%d" % (vO + i, vO + i, sT[2], vR3))
        if opsc1:
            a("  buffer_store_dwordx4 v[%d:%d], v%d, s[%d:%d], s%d offen sc1" % (vO, vO + 3, vR2, sWs, sWs + 3, sT[0]))
            a("  buffer_store_dwordx4 v[%d:%d], v%d, s[%d:%d], s%d offen sc1" % (vO + 4, vO + 7, vR2, sWs, sWs + 3, sT[1]))
        else:
            store_loc(["  buffer_store_dwordx4 v[%d:%d], v%d, s[%d:%d], s%d offen" % (vO, vO + 3, vR2, sWs, sWs + 3, sT[0]),
                       "  buffer_store_dwordx4 v[%d:%d], v%d, s[%d:%d], s%d offen" % (vO + 4, vO + 7, vR2, sWs, sWs + 3, sT[1])], sLocS)

    stamp("published")
    a("  s_barrier                      ; B2")
    if ts:
        a("  s_waitcnt lgkmcnt(0)")
        a("  s_lshl_b32 s%d, s2, 8" % sT[0])
        a("  s_add_u32 s%d, s%d, %d" % (sT[0], sT[0], TSOFF))
        a("  v_mov_b32 v%d, 0" % t2)
        a("  s_mov_b64 exec, 1")
        for i in range(len(names["S"])):
            a("  v_mov_b32 v%d, s%d" % (vO, TS0 + 2 * i))
            a("  v_mov_b32 v%d, s%d" % (vO + 1, TS0 + 2 * i + 1))
            a("  buffer_store_dwordx2 v[%d:%d], v%d, s[%d:%d], s%d offen offset:%d" % (vO, vO + 1, t2, sWs, sWs + 3, sT[0], 8 * i))
            a("  s_waitcnt vmcnt(0)")
        a("  s_mov_b64 exec, -1")
    a("L_S_done:")
    a("  s_endpgm")

    role[0] = "H"
    a("L_H:")
    sHW = 7
    sXd, sWq, sWs, sGU, sWd, sWo, sOut = 8, 12, 16, 32, 36, 40, 44
    sEp = 28
    sTag = 29
    sNotFF = 30
    sTag4 = 31
    sHi2 = 48
    sFi = 49
    sSelA, sSelB = 50, 54
    sB = 51; sJ = 52; sFidx = 53
    sKb2 = 55
    sLo8 = 60
    sFv = 3
    sLoc = 56
    sDbg = 64
    sHq = 62
    sWoStg = 63
    hMisc, hOne = 2, 3
    hG, hI = 4, 5
    hT = 6
    hX = 16
    hF = 24
    hY = 40
    hA = 56
    hB = 72
    hD = 88
    hW = 120
    hXf = 136
    hZ = 144
    hTag = 156
    hWd = 160
    hMid = 197
    T0, T1, T2, T3, T4, T5 = hT, hT + 1, hT + 2, hT + 3, hT + 4, hT + 5
    hTr, hXn, hW1k, hTrG, hOutOff = hZ + 1, hZ + 2, hZ + 4, hZ + 5, hZ + 6

    if not early_ka:
        a("  s_load_dwordx2 s[%d:%d], s[0:1], 0" % (sXd, sXd + 1))
        a("  s_load_dwordx2 s[%d:%d], s[0:1], 24" % (sWq, sWq + 1))
        a("  s_load_dwordx4 s[56:59], s[0:1], 48")
        a("  s_load_dwordx2 s[%d:%d], s[0:1], 88" % (sWs, sWs + 1))
    a("  v_lshlrev_b32 v%d, 2, v0" % T0)
    a("  v_add_u32 v%d, %d, v%d" % (T0, FLG, T0))
    a("  v_mov_b32 v%d, 0" % T1)
    a("  ds_write_b32 v%d, v%d" % (T0, T1))
    a("  s_sub_u32 s%d, s%d, 4" % (sHW, sW))
    a("  s_mov_b32 s%d, 8192" % (sXd + 2))
    a("  s_mov_b32 s%d, 0x20000" % (sXd + 3))
    a("  v_lshrrev_b32 v%d, 5, v0" % T0)
    a("  s_lshl_b32 s%d, s%d, 1" % (sT[0], sHW))
    a("  v_add_u32 v%d, s%d, v%d          ; row b" % (T0, sT[0], T0))
    a("  v_and_b32 v%d, 31, v0" % T1)
    a("  v_lshlrev_b32 v%d, 5, v%d" % (T1, T1))
    a("  v_lshl_add_u32 v%d, v%d, 10, v%d" % (T2, T0, T1))
    a("  s_waitcnt lgkmcnt(0)")
    if wide_ka:
        a("  s_mov_b64 s[8:9], s[68:69]")
        a("  s_mov_b64 s[12:13], s[74:75]")
        a("  s_mov_b64 s[16:17], s[90:91]")
        a("  s_mov_b64 s[56:57], s[80:81]")
        a("  s_mov_b64 s[58:59], s[82:83]")
    a("  buffer_load_dwordx4 v[%d:%d], v%d, s[%d:%d], 0 offen%s" % (hX, hX + 3, T2, sXd, sXd + 3, " nt" if xnt else ""))
    a("  buffer_load_dwordx4 v[%d:%d], v%d, s[%d:%d], 0 offen offset:16%s" % (hX + 4, hX + 7, T2, sXd, sXd + 3, " nt" if xnt else ""))
    a("  v_lshrrev_b32 v%d, 3, v0" % T3)
    a("  v_and_b32 v%d, 7, v0" % T4)
    a("  v_lshlrev_b32 v%d, 4, v%d" % (T4, T4))
    a("  v_lshl_add_u32 v%d, v%d, 13, v%d" % (T5, T3, T4))
    a("  s_and_b32 s%d, s%d, 3" % (sJ, sLi))
    a("  s_lshr_b32 s%d, s%d, 2" % (sB, sLi))
    a("  s_lshl_b32 s%d, s%d, 2" % (sT[0], sJ))
    a("  s_add_u32 s%d, s%d, s%d" % (sT[0], sT[0], sHW))
    a("  s_lshl_b32 s%d, s%d, 18" % (sT[0], sT[0]))
    a("  s_lshl_b32 s%d, s%d, 3" % (sT[1], sX))
    a("  s_add_u32 s%d, s%d, s%d" % (sT[1], sT[1], sB))
    a("  s_lshl_b32 s%d, s%d, 7" % (sT[1], sT[1]))
    a("  s_add_u32 s%d, s%d, s%d" % (sT[0], sT[0], sT[1]))
    a("  s_lshr_b32 s%d, s%d, 1" % (sT[1], sHW))
    a("  s_lshl_b32 s%d, s%d, 15" % (sT[1], sT[1]))
    a("  s_and_b32 s%d, s%d, 1" % (sT[2], sHW))
    a("  s_lshl_b32 s%d, s%d, 12" % (sT[2], sT[2]))
    a("  s_add_u32 s%d, s%d, s%d" % (sT[1], sT[1], sT[2]))
    a("  s_add_u32 s%d, s%d, 24576" % (sT[1], sT[1]))
    a("  s_mov_b32 s%d, 0x400000" % (sWq + 2))
    a("  s_mov_b32 s%d, 0x20000" % (sWq + 3))
    for n in range(4):
        a("  s_add_u32 m0, s%d, %d" % (sT[1], n * 1024))
        if n:
            a("  s_add_u32 s%d, s%d, %d" % (sT[0], sT[0], 8 * 8192))
        else:
            a("  s_load_dword s%d, s[%d:%d], 0x%x" % (sEp, sWs, sWs + 1, EPOCH))
        a("  buffer_load_dwordx4 v%d, s[%d:%d], s%d offen nt lds" % (T5, sWq, sWq + 3, sT[0]))
    if b0pos == 0:
        a("  s_barrier                      ; B0")
        stamp("B0")
    if wide_ka:
        a("  s_mov_b64 s[%d:%d], s[84:85]" % (sWd, sWd + 1))
        a("  s_mov_b64 s[%d:%d], s[76:77]" % (sWo, sWo + 1))
        a("  s_mov_b64 s[%d:%d], s[86:87]" % (sOut, sOut + 1))
        a("  s_mov_b64 s[%d:%d], s[88:89]" % (sDbg, sDbg + 1))
    else:
        a("  s_load_dwordx2 s[%d:%d], s[0:1], 64" % (sWd, sWd + 1))
        a("  s_load_dwordx2 s[%d:%d], s[0:1], 32" % (sWo, sWo + 1))
        a("  s_load_dwordx2 s[%d:%d], s[0:1], 72" % (sOut, sOut + 1))
        a("  s_load_dwordx2 s[%d:%d], s[0:1], 80" % (sDbg, sDbg + 1))
    a("  s_lshr_b32 s%d, s%d, 3" % (sT[4], sLi))
    a("  s_lshl_b32 s%d, s%d, 3" % (sT[4], sT[4]))
    a("  s_add_u32 s%d, s%d, s%d" % (sT[4], sT[4], sX))
    a("  s_cmp_lt_u32 s%d, 28" % sT[4])
    a("  s_cselect_b32 s%d, 1, 0" % sFv)
    a("  s_min_u32 s%d, s%d, 27" % (sT[4], sT[4]))
    a("  s_lshl_b32 s%d, s%d, 3" % (sFi, sT[4]))
    a("  s_and_b32 s%d, s%d, 7" % (sT[5], sLi))
    a("  s_add_u32 s%d, s%d, s%d" % (sFi, sFi, sT[5]))
    a("  s_and_b32 s%d, s%d, 3" % (sKb2, sFi))
    a("  s_lshl_b32 s%d, s%d, 2" % (sT[3], sKb2))
    a("  s_add_u32 s%d, s%d, s%d" % (sT[3], sT[3], sHW))
    a("  s_mul_i32 s%d, s%d, %d" % (sT[3], sT[3], 32 * 3584))
    a("  s_lshl_b32 s%d, s%d, 7" % (sT[4], sT[4]))
    a("  s_add_u32 s%d, s%d, s%d" % (sT[3], sT[3], sT[4]))
    a("  s_bitcmp1_b32 s%d, 2" % sFi)
    a("  s_cselect_b32 s%d, s58, s56" % sGU)
    a("  s_cselect_b32 s%d, s59, s57" % (sGU + 1))
    a("  s_mov_b32 s%d, 1835008" % (sGU + 2))
    a("  s_mov_b32 s%d, 0x20000" % (sGU + 3))
    a("  v_lshl_add_u32 v%d, v%d, 10, v%d" % (hW1k, T3, T4))
    a("  v_mul_u32_u24 v%d, 3584, v%d" % (T3, T3))
    a("  v_add_u32 v%d, v%d, v%d" % (T3, T3, T4))
    for n in range(4):
        a("  s_add_u32 m0, s%d, %d" % (sT[1], 65536 + n * 1024))
        if n:
            a("  s_add_u32 s%d, s%d, %d" % (sT[3], sT[3], 8 * 3584))
        else:
            a("  s_mov_b32 s%d, 0xffff0000" % sHi2)
        a("  buffer_load_dwordx4 v%d, s[%d:%d], s%d offen nt lds" % (T3, sGU, sGU + 3, sT[3]))
    if b0pos == 1:
        a("  s_barrier                      ; B0")
        stamp("B0")
    a("  v_lshrrev_b32 v%d, 4, v0" % hG)
    a("  v_and_b32 v%d, 15, v0" % hI)
    a("  v_mov_b32 v%d, %d" % (hMisc, FLG))
    a("  v_mov_b32 v%d, 1" % hOne)
    a("  v_mul_u32_u24 v%d, %d, v%d" % (T0, XN_STRIDE, T0))
    a("  v_add_u32 v%d, v%d, v%d" % (T0, T0, T1))
    a("  v_add_u32 v%d, %d, v%d" % (hZ, XN, T0))
    if noh:
        for _ in range(4):
            lds_add(hMisc, F_QRDY, hOne)
            lds_add(hMisc, F_STG, hOne)
        a("  s_barrier")
        a("  s_mov_b32 s%d, 0x10000000" % (sWs + 2))
        a("  s_mov_b32 s%d, 0x20000" % (sWs + 3))
        a("  s_cmp_lg_u32 s%d, 0" % sHW)
        a("  s_cbranch_scc1 L_H_done")
        a("  s_branch L_tsdump")
    a("  s_mov_b32 s%d, 0x10000000" % (sWs + 2))
    a("  s_mov_b32 s%d, 0x20000" % (sWs + 3))
    for base, size in ((sWd, 1835008), (sWo, 0x400000), (sOut, 8192)):
        a("  s_mov_b32 s%d, %d" % (base + 2, size))
        a("  s_mov_b32 s%d, 0x20000" % (base + 3))
    a("  s_mov_b32 s%d, 0xffffff00" % sNotFF)
    a("  s_mov_b32 s%d, 0x0c0c0400" % sSelA)
    a("  s_mov_b32 s%d, 0x04000c0c" % sSelB)

    def pk(op, d, s0, s1, extra=""):
        a("  %s v[%d:%d], v[%d:%d], v[%d:%d]%s" % (op, d, d + 1, s0, s0 + 1, s1, s1 + 1, extra))

    def allreduce32(v, t):
        for n in (1, 2, 4, 8):
            a("  s_nop 1")
            a("  v_add_f32_dpp v%d, v%d, v%d row_ror:%d %s" % (v, v, v, n, DPP))
        reduce_swap("v_add_f32", v, t, 16)

    def tag(v):
        a("  v_and_or_b32 v%d, v%d, s%d, v%d" % (v, v, sNotFF, hTag))

    def tag_retry(regs, lab_retry, lab_ok, t0_, t1_, sleep):
        rs = list(regs)
        assert len(rs) % 4 == 0
        for k in range(0, len(rs), 4):
            a("  v_perm_b32 v%d, v%d, v%d, s%d" % (t1_, rs[k + 1], rs[k], sSelA))
            a("  v_perm_b32 v%d, v%d, v%d, s%d" % (t1_ + 1, rs[k + 3], rs[k + 2], sSelB))
            if k == 0:
                a("  v_or_b32 v%d, v%d, v%d" % (t0_, t1_, t1_ + 1))
                a("  v_xor_b32 v%d, s%d, v%d" % (t0_, sTag4, t0_))
            else:
                a("  v_or_b32 v%d, v%d, v%d" % (t1_, t1_, t1_ + 1))
                a("  v_xor_b32 v%d, s%d, v%d" % (t1_, sTag4, t1_))
                a("  v_or_b32 v%d, v%d, v%d" % (t0_, t0_, t1_))
        a("  v_cmp_ne_u32 vcc, 0, v%d" % t0_)
        a("  s_cbranch_vccz %s" % lab_ok)
        a("  s_mov_b64 exec, vcc")
        a("  s_add_u32 s%d, s%d, 1" % (sCnt, sCnt))
        a("  s_cmp_lt_u32 s%d, %d" % (sCnt, SPIN_LIMIT))
        a("  s_cbranch_scc0 %s" % lab_ok)
        if isinstance(sleep, tuple):
            lz = a.lab("Lz")
            a("  s_cmp_eq_u32 s%d, 0" % sLoc)
            a("  s_cbranch_scc0 %s_l" % lz)
            a("  s_sleep %d" % sleep[1])
            a("  s_branch %s" % lab_retry)
            a("%s_l:" % lz)
            if sleep[0]:
                a("  s_sleep %d" % sleep[0])
        else:
            a("  s_sleep %d" % sleep)
        a("  s_branch %s" % lab_retry)

    def round_bf16(v):
        a("  v_cvt_pk_bf16_f32 v%d, v%d, v%d" % (v, v, v))
        a("  v_and_b32 v%d, s%d, v%d" % (v, sHi2, v))

    def untag(regs):
        for v in regs:
            a("  v_and_or_b32 v%d, v%d, s%d, v%d" % (v, v, sNotFF, hMid))

    a("  s_waitcnt vmcnt(8)")
    for i in range(8):
        a("  v_lshlrev_b32 v%d, 16, v%d" % (hF + 2 * i, hX + i))
        a("  v_and_b32 v%d, s%d, v%d" % (hF + 2 * i + 1, sHi2, hX + i))
    for i in range(4):
        pk("v_pk_add_f32", hY + 2 * i, hF + 4 * i, hF + 4 * i + 2)
    pk("v_pk_add_f32", hY, hY, hY + 2)
    pk("v_pk_add_f32", hY + 4, hY + 4, hY + 6)
    pk("v_pk_add_f32", hY, hY, hY + 4)
    vS = hZ + 8
    vV = hZ + 10
    a("  v_add_f32 v%d, v%d, v%d" % (vS, hY, hY + 1))
    allreduce32(vS, T0)
    a("  v_mul_f32 v%d, 0x3b000000, v%d     ; mean" % (vS, vS))
    for i in range(8):
        pk("v_pk_add_f32", hY + 2 * i, hF + 2 * i, vS, " op_sel_hi:[1,0] neg_lo:[0,1] neg_hi:[0,1]")
    pk("v_pk_mul_f32", vV, hY, hY)
    for i in range(1, 8):
        a("  v_pk_fma_f32 v[%d:%d], v[%d:%d], v[%d:%d], v[%d:%d]" % (vV, vV + 1, hY + 2 * i, hY + 2 * i + 1, hY + 2 * i, hY + 2 * i + 1, vV, vV + 1))
    a("  v_add_f32 v%d, v%d, v%d" % (vV, vV, vV + 1))
    allreduce32(vV, T0)
    a("  v_mul_f32 v%d, 0x3b000000, v%d     ; var" % (vV, vV))
    a("  v_cvt_pk_bf16_f32 v%d, v%d, v%d" % (vS, vS, vV))
    a("  v_and_b32 v%d, s%d, v%d" % (vV, sHi2, vS))
    a("  v_lshlrev_b32 v%d, 16, v%d            ; mean_bf" % (vS, vS))
    a("  v_add_f32 v%d, 0x3727c5ac, v%d" % (vV, vV))
    round_bf16(vV)
    a("  v_sqrt_f32 v%d, v%d" % (vV, vV))
    a("  s_nop 0")
    round_bf16(vV)
    a("  v_rcp_f32 v%d, v%d" % (vV, vV))
    for i in range(8):
        pk("v_pk_add_f32", hY + 2 * i, hF + 2 * i, vS, " op_sel_hi:[1,0] neg_lo:[0,1] neg_hi:[0,1]")
    for i in range(8):
        a("  v_cvt_pk_bf16_f32 v%d, v%d, v%d" % (hX + i, hY + 2 * i, hY + 2 * i + 1))
    for i in range(8):
        a("  v_lshlrev_b32 v%d, 16, v%d" % (hF + 2 * i, hX + i))
        a("  v_and_b32 v%d, s%d, v%d" % (hF + 2 * i + 1, sHi2, hX + i))
    for i in range(8):
        pk("v_pk_mul_f32", hY + 2 * i, hF + 2 * i, vV, " op_sel_hi:[1,0]")
    for i in range(8):
        a("  v_cvt_pk_bf16_f32 v%d, v%d, v%d" % (hX + i, hY + 2 * i, hY + 2 * i + 1))
    a("  ds_write_b128 v%d, v[%d:%d]" % (hZ, hX, hX + 3))
    a("  ds_write_b128 v%d, v[%d:%d] offset:16" % (hZ, hX + 4, hX + 7))
    stamp("LN done")

    a("  v_lshrrev_b32 v%d, 2, v%d" % (T0, hI))
    a("  v_lshl_add_u32 v%d, v%d, 3, v%d" % (T0, hG, T0))
    a("  v_lshlrev_b32 v%d, 7, v%d" % (T0, T0))
    a("  v_and_b32 v%d, 3, v%d" % (T1, hI))
    a("  v_lshl_add_u32 v%d, v%d, 3, v%d" % (hTrG, T1, T0))
    a("  s_lshl_b32 s%d, s%d, 5" % (sT[0], sHW))
    a("  s_add_u32 s%d, s%d, 24576" % (sT[0], sT[0]))
    a("  v_add_u32 v%d, s%d, v%d" % (hTr, sT[0], hTrG))
    a("  v_and_b32 v%d, 7, v%d" % (T0, hI))
    a("  v_mul_u32_u24 v%d, %d, v%d" % (T0, XN_STRIDE, T0))
    a("  v_lshl_add_u32 v%d, v%d, 4, v%d" % (T0, hG, T0))
    a("  v_add_u32 v%d, %d, v%d" % (hXn, XN, T0))
    a("  v_cmp_gt_u32 s[%d:%d], 8, v%d" % (sLo8, sLo8 + 1, hI))

    def tile_compute(kb_sgpr, stg_add):
        a("  s_lshl_b32 s%d, s%d, 8" % (sT[0], kb_sgpr))
        a("  v_add_u32 v%d, s%d, v%d" % (T0, sT[0], hXn))
        if stg_add:
            a("  v_add_u32 v%d, 0x%x, v%d" % (T1, stg_add, hTr))
            tr = T1
        else:
            tr = hTr
        for ks in range(4):
            base = (ks >> 1) * 32768 + (ks & 1) * 4096
            r = hA + ks * 4
            a("  ds_read_b64_tr_b16 v[%d:%d], v%d offset:%d" % (r, r + 1, tr, base))
            a("  ds_read_b64_tr_b16 v[%d:%d], v%d offset:%d" % (r + 2, r + 3, tr, base + 512))
            r = hB + ks * 4
            a("  ds_read_b128 v[%d:%d], v%d offset:%d" % (r, r + 3, T0, ks * 64))
        for ks in range(4):
            a("  s_waitcnt lgkmcnt(%d)" % (9 - 3 * ks))
            c = "0" if ks == 0 else "v[%d:%d]" % (hD, hD + 3)
            a("  v_mfma_f32_16x16x32_bf16 v[%d:%d], v[%d:%d], v[%d:%d], %s" % (hD, hD + 3, hA + ks * 4, hA + ks * 4 + 3, hB + ks * 4, hB + ks * 4 + 3, c))

    a("  s_waitcnt vmcnt(4) lgkmcnt(0)")
    a("  s_add_u32 s%d, s%d, 1" % (sTag, sEp))
    a("  s_and_b32 s%d, s%d, 0xff" % (sTag, sTag))
    a("  s_mul_i32 s%d, s%d, 0x01010101" % (sTag4, sTag))
    a("  v_mov_b32 v%d, s%d" % (hTag, sTag))
    a("  v_mov_b32 v%d, 0x80" % hMid)
    if early_census:
        lc = a.lab("Lc")
        a("  s_cmp_lg_u32 s%d, 1" % sHW)
        a("  s_cbranch_scc1 %s" % lc)
        a("  s_mov_b32 s%d, 256" % (sDbg + 2))
        a("  s_mov_b32 s%d, 0x20000" % (sDbg + 3))
        a("  s_getreg_b32 s%d, hwreg(HW_REG_XCC_ID, 0, 3)" % sT[4])
        a("  s_lshl_b32 s%d, s%d, 3" % (sT[4], sT[4]))
        a("  s_lshl_b64 s[%d:%d], 1, s%d" % (sT[6], sT[7], sT[4]))
        a("  v_mov_b32 v%d, s%d" % (hA, sT[6]))
        a("  v_mov_b32 v%d, s%d" % (hA + 1, sT[7]))
        a("  s_lshl_b32 s%d, s%d, 5" % (sT[4], sX))
        a("  v_mov_b32 v%d, s%d" % (T0, sT[4]))
        a("  s_mov_b64 exec, 1")
        a("  buffer_atomic_add_x2 v[%d:%d], v%d, s[%d:%d], 0 offen sc1" % (hA, hA + 1, T0, sDbg, sDbg + 3))
        a("  s_mov_b64 exec, -1")
        a("%s:" % lc)
    lds_add(hMisc, F_H1, hOne)
    lds_wait(hMisc, F_H1, 4, T5)
    stamp("Hsync1")
    tile_compute(sJ, 0)
    a("  v_lshlrev_b32 v%d, 11, v%d" % (T0, hI))
    a("  v_lshl_add_u32 v%d, v%d, 4, v%d" % (T0, hG, T0))
    a("  s_lshl_b32 s%d, s%d, 6" % (sT[0], sHW))
    a("  v_add_u32 v%d, s%d, v%d" % (T0, sT[0], T0))
    a("  s_lshl_b32 s%d, s%d, 2" % (sHq, sX))
    a("  s_add_u32 s%d, s%d, s%d" % (sHq, sHq, sJ))
    a("  s_lshl_b32 s%d, s%d, 14" % (sT[0], sHq))
    a("  s_lshl_b32 s%d, s%d, 8" % (sT[1], sB))
    a("  s_add_u32 s%d, s%d, s%d" % (sT[0], sT[0], sT[1]))
    if QP:
        a("  s_add_u32 s%d, s%d, %d" % (sT[0], sT[0], QP))
    for k in range(4):
        tag(hD + k)
    a("  s_mov_b64 exec, s[%d:%d]" % (sLo8, sLo8 + 1))
    a("  buffer_store_dwordx4 v[%d:%d], v%d, s[%d:%d], s%d offen sc1" % (hD, hD + 3, T0, sWs, sWs + 3, sT[0]))
    a("  s_mov_b64 exec, -1")
    stamp("QP stored")
    a("  s_lshl_b32 s%d, s%d, 2" % (sT[0], sHq))
    a("  s_add_u32 s%d, s%d, s%d" % (sT[0], sT[0], sHW))
    a("  s_lshl_b32 s%d, s%d, 15" % (sT[0], sT[0]))
    a("  s_lshl_b32 s%d, s%d, 7" % (sT[1], sB))
    a("  s_add_u32 s%d, s%d, s%d" % (sT[0], sT[0], sT[1]))
    a("  s_lshl_b32 s%d, s%d, 12" % (sWoStg, sHW))
    a("  s_add_u32 s%d, s%d, %d" % (sWoStg, sWoStg, WOS))
    for n in range(4):
        a("  s_add_u32 m0, s%d, %d" % (sWoStg, n * 1024))
        if n:
            a("  s_add_u32 s%d, s%d, 8192" % (sT[0], sT[0]))
        else:
            a("  s_nop 0")
        a("  buffer_load_dwordx4 v%d, s[%d:%d], s%d offen nt lds" % (hW1k, sWo, sWo + 3, sT[0]))
    a("  s_waitcnt vmcnt(5)")
    lds_add(hMisc, F_H3, hOne)
    lds_wait(hMisc, F_H3, 4, T5)
    stamp("Hsync3")
    tile_compute(sKb2, 65536)
    lds_add(hMisc, F_STG, hOne)
    a("  v_lshlrev_b32 v%d, 8, v%d" % (T0, hI))
    a("  v_lshl_add_u32 v%d, v%d, 4, v%d" % (T0, hG, T0))
    a("  s_lshl_b32 s%d, s%d, 6" % (sT[0], sHW))
    a("  v_add_u32 v%d, s%d, v%d" % (T0, sT[0], T0))
    a("  s_and_b32 s%d, s%d, 7" % (sT[0], sFi))
    a("  s_mul_i32 s%d, s%d, 28" % (sT[0], sT[0]))
    a("  s_lshr_b32 s%d, s%d, 3" % (sT[1], sFi))
    a("  s_add_u32 s%d, s%d, s%d" % (sT[0], sT[0], sT[1]))
    a("  s_lshl_b32 s%d, s%d, 11" % (sT[0], sT[0]))
    a("  s_add_u32 s%d, s%d, %d" % (sT[0], sT[0], GP))
    hGp, hGpOff, sGpS = 192, 196, 59
    for k in range(4):
        tag(hD + k)
    if gplocal:
        for k in range(4):
            a("  v_mov_b32 v%d, v%d" % (hGp + k, hD + k))
        a("  v_mov_b32 v%d, v%d" % (hGpOff, T0))
        a("  s_mov_b32 s%d, s%d" % (sGpS, sT[0]))
    else:
        lg = a.lab("Lg")
        a("  s_cmp_eq_u32 s%d, 0" % sFv)
        a("  s_cbranch_scc1 %s" % lg)
        a("  s_mov_b64 exec, s[%d:%d]" % (sLo8, sLo8 + 1))
        a("  buffer_store_dwordx4 v[%d:%d], v%d, s[%d:%d], s%d offen sc1" % (hD, hD + 3, T0, sWs, sWs + 3, sT[0]))
        a("  s_mov_b64 exec, -1")
        a("%s:" % lg)

    def gp_store(have_loc):
        if not gplocal:
            return
        if not have_loc:
            lds_wait(hMisc, F_LOC, 1, T5, sleep=8)
            a("  s_lshr_b32 s%d, s%d, 1" % (sLoc, sT[7]))
        lg = a.lab("Lg")
        a("  s_cmp_eq_u32 s%d, 0" % sFv)
        a("  s_cbranch_scc1 %s" % lg)
        a("  s_mov_b64 exec, s[%d:%d]" % (sLo8, sLo8 + 1))
        store_loc(["  buffer_store_dwordx4 v[%d:%d], v%d, s[%d:%d], s%d offen" % (hGp, hGp + 3, hGpOff, sWs, sWs + 3, sGpS)], sLoc)
        a("  s_mov_b64 exec, -1")
        a("%s:" % lg)
    stamp("tile1 done")
    a("  v_lshrrev_b32 v%d, 5, v0" % T0)
    a("  v_lshlrev_b32 v%d, 14, v%d" % (T0, T0))
    a("  v_and_b32 v%d, 31, v0" % T1)
    a("  v_lshl_add_u32 v%d, v%d, 4, v%d" % (T0, T1, T0))
    a("  s_lshl_b32 s%d, s%d, 9" % (sT[0], sHW))
    a("  v_add_u32 v%d, s%d, v%d" % (T0, sT[0], T0))
    a("  s_lshl_b32 s%d, s%d, 16" % (sT[0], sX))
    a("  s_lshl_b32 s%d, s%d, 11" % (sT[1], sB))
    a("  s_add_u32 s%d, s%d, s%d" % (sT[0], sT[0], sT[1]))
    if QP:
        a("  s_add_u32 s%d, s%d, %d" % (sT[0], sT[0], QP))
    a("  s_add_u32 s%d, s%d, 32768" % (sT[1], sT[0]))
    a("  s_mul_i32 s%d, s%d, %d" % (sT[2], sHW, QL_STRIDE))
    a("  s_add_u32 s%d, s%d, %d" % (sT[2], sT[2], QL))
    a("  v_lshlrev_b32 v%d, 3, v%d" % (T1, T1))
    a("  v_add_u32 v%d, s%d, v%d" % (T1, sT[2], T1))
    lr, lo = a.lab("Lr"), a.lab("Lo")
    a("  s_mov_b32 s%d, 0" % sCnt)
    a("%s:" % lr)
    NT = " nt" if gnt & 1 else ""
    a("  buffer_load_dwordx4 v[%d:%d], v%d, s[%d:%d], s%d offen sc1%s" % (hA, hA + 3, T0, sWs, sWs + 3, sT[0], NT))
    a("  buffer_load_dwordx4 v[%d:%d], v%d, s[%d:%d], s%d offen sc1%s" % (hA + 4, hA + 7, T0, sWs, sWs + 3, sT[1], NT))
    a("  s_waitcnt vmcnt(0)")
    tag_retry(range(hA, hA + 8), lr, lo, T2, T3, 2)
    a("%s:" % lo)
    a("  s_mov_b64 exec, -1")
    stamp("Q ok")
    untag(range(hA, hA + 8))
    pk("v_pk_add_f32", hA, hA, hA + 4)
    pk("v_pk_add_f32", hA + 2, hA + 2, hA + 6)
    for k in range(4):
        a("  v_mov_b32 v%d, v%d" % (hA + 4 + k, hA + k))
    a("  s_nop 1")
    for k in range(4):
        a("  v_permlane32_swap_b32 v%d, v%d" % (hA + k, hA + 4 + k))
    pk("v_pk_add_f32", hA, hA, hA + 4)
    pk("v_pk_add_f32", hA + 2, hA + 2, hA + 6)
    a("  v_cvt_pk_bf16_f32 v%d, v%d, v%d" % (hA, hA, hA + 1))
    a("  v_cvt_pk_bf16_f32 v%d, v%d, v%d" % (hA + 1, hA + 2, hA + 3))
    a("  s_mov_b32 exec_hi, 0")
    a("  ds_write_b64 v%d, v[%d:%d]" % (T1, hA, hA + 1))
    a("  s_mov_b64 exec, -1")
    a("  s_waitcnt lgkmcnt(0)")
    lds_add(hMisc, F_QRDY, hOne)
    stamp("Q rdy")

    a("  v_add_u32 v%d, s%d, v%d" % (T0, sWoStg, hTrG))
    l3 = a.lab("L3")
    a("  s_cmp_lg_u32 s%d, 3" % sHW)
    a("  s_cbranch_scc1 %s" % l3)
    a("  s_lshr_b32 s%d, s%d, 3" % (sT[0], sFi))
    a("  s_lshl_b32 s%d, s%d, 16" % (sT[1], sT[0]))
    a("  s_and_b32 s%d, s%d, 7" % (sT[2], sFi))
    a("  s_lshl_b32 s%d, s%d, 7" % (sT[2], sT[2]))
    a("  s_add_u32 s%d, s%d, s%d" % (sT[1], sT[1], sT[2]))
    for n in range(4):
        a("  s_mov_b32 m0, %d" % (SPARE + n * 1024))
        if n:
            a("  s_add_u32 s%d, s%d, 8192" % (sT[1], sT[1]))
        else:
            a("  s_nop 0")
        a("  buffer_load_dwordx4 v%d, s[%d:%d], s%d offen nt lds" % (hW1k, sWd, sWd + 3, sT[1]))
    a("%s:" % l3)
    for ct in range(4):
        r = hW + ct * 4
        a("  ds_read_b64_tr_b16 v[%d:%d], v%d offset:%d" % (r, r + 1, T0, ct * 32))
        a("  ds_read_b64_tr_b16 v[%d:%d], v%d offset:%d" % (r + 2, r + 3, T0, ct * 32 + 512))
    a("  s_waitcnt lgkmcnt(0)")
    l4 = a.lab("L4")
    a("  s_cmp_lg_u32 s%d, 3" % sHW)
    a("  s_cbranch_scc1 %s" % l4)
    for n in range(4):
        a("  s_add_u32 m0, s%d, %d" % (sWoStg, n * 1024))
        a("  s_add_u32 s%d, s%d, 8192" % (sT[1], sT[1]))
        a("  buffer_load_dwordx4 v%d, s[%d:%d], s%d offen nt lds" % (hW1k, sWd, sWd + 3, sT[1]))
    a("  v_add_u32 v%d, %d, v%d" % (T1, SPARE, hTrG))
    a("  s_waitcnt vmcnt(4)")
    for ct in range(4):
        r = hWd + ct * 8
        a("  ds_read_b64_tr_b16 v[%d:%d], v%d offset:%d" % (r, r + 1, T1, ct * 32))
        a("  ds_read_b64_tr_b16 v[%d:%d], v%d offset:%d" % (r + 2, r + 3, T1, ct * 32 + 512))
    a("  s_waitcnt vmcnt(0)")
    for ct in range(4):
        r = hWd + ct * 8 + 4
        a("  ds_read_b64_tr_b16 v[%d:%d], v%d offset:%d" % (r, r + 1, T0, ct * 32))
        a("  ds_read_b64_tr_b16 v[%d:%d], v%d offset:%d" % (r + 2, r + 3, T0, ct * 32 + 512))
    a("  s_waitcnt lgkmcnt(0)")
    a("%s:" % l4)
    stamp("wo frags")

    a("  s_lshl_b32 s%d, s%d, 5" % (sFidx, sB))
    a("  s_add_u32 s%d, s%d, s%d" % (sFidx, sFidx, sHq))
    a("  v_and_b32 v%d, 3, v0" % T0)
    a("  v_lshlrev_b32 v%d, 3, v%d" % (T0, T0))
    a("  s_lshl_b32 s%d, s%d, 5" % (sT[0], sFidx))
    a("  v_add_u32 v%d, s%d, v%d" % (hOutOff, sT[0], T0))
    if rowfin:
        a("  v_lshl_add_u32 v%d, v%d, 1, v%d" % (hOutOff, hG, hOutOff))
    if noffn:
        a("  s_branch L_B1")
    a("  s_cmp_eq_u32 s%d, 1" % sHW)
    a("  s_cbranch_scc1 %s" % ("L_B1" if skip & 1 else "L_ffn"))
    a("  s_cmp_eq_u32 s%d, 2" % sHW)
    a("  s_cbranch_scc1 %s" % ("L_B1" if skip & 2 else "L_stats"))
    a("  s_cmp_eq_u32 s%d, 0" % sHW)
    a("  s_cbranch_scc1 %s" % ("L_B1" if skip & 5 else "L_fin_prep"))
    a("  s_branch %s" % ("L_B1" if skip & 9 else "L_down"))

    a("L_ffn:")
    a("  s_mov_b32 s%d, 256" % (sDbg + 2))
    a("  s_mov_b32 s%d, 0x20000" % (sDbg + 3))
    a("  s_lshl_b32 s%d, s%d, 5" % (sT[0], sX))
    a("  v_mov_b32 v%d, s%d" % (T0, sT[0]))
    if not early_census:
        a("  s_getreg_b32 s%d, hwreg(HW_REG_XCC_ID, 0, 3)" % sT[4])
        a("  s_lshl_b32 s%d, s%d, 3" % (sT[4], sT[4]))
        a("  s_lshl_b64 s[%d:%d], 1, s%d" % (sT[6], sT[7], sT[4]))
        a("  v_mov_b32 v%d, s%d" % (hA, sT[6]))
        a("  v_mov_b32 v%d, s%d" % (hA + 1, sT[7]))
        a("  s_mov_b64 exec, 1")
        a("  buffer_atomic_add_x2 v[%d:%d], v%d, s[%d:%d], 0 offen sc1" % (hA, hA + 1, T0, sDbg, sDbg + 3))
        a("  s_mov_b64 exec, -1")
        lds_wait(hMisc, F_MID, 1, T5, sleep=8)
    a("  s_waitcnt vmcnt(0)")
    lr, lo = a.lab("Lr"), a.lab("Lo")
    a("  s_mov_b32 s%d, 0" % sCnt)
    a("  s_mov_b64 exec, 1")
    a("%s:" % lr)
    a("  buffer_load_dwordx2 v[%d:%d], v%d, s[%d:%d], 0 offen sc1" % (hA, hA + 1, T0, sDbg, sDbg + 3))
    a("  s_waitcnt vmcnt(0)")
    a("  v_readfirstlane_b32 s%d, v%d" % (sT[2], hA))
    a("  v_readfirstlane_b32 s%d, v%d" % (sT[3], hA + 1))
    a("  s_and_b32 s%d, s%d, 0x00ff00ff" % (sT[4], sT[2]))
    a("  s_lshr_b32 s%d, s%d, 8" % (sT[5], sT[2]))
    a("  s_and_b32 s%d, s%d, 0x00ff00ff" % (sT[5], sT[5]))
    a("  s_add_u32 s%d, s%d, s%d" % (sT[4], sT[4], sT[5]))
    a("  s_and_b32 s%d, s%d, 0x00ff00ff" % (sT[5], sT[3]))
    a("  s_add_u32 s%d, s%d, s%d" % (sT[4], sT[4], sT[5]))
    a("  s_lshr_b32 s%d, s%d, 8" % (sT[5], sT[3]))
    a("  s_and_b32 s%d, s%d, 0x00ff00ff" % (sT[5], sT[5]))
    a("  s_add_u32 s%d, s%d, s%d" % (sT[4], sT[4], sT[5]))
    a("  s_lshr_b32 s%d, s%d, 16" % (sT[5], sT[4]))
    a("  s_and_b32 s%d, s%d, 0xffff" % (sT[4], sT[4]))
    a("  s_add_u32 s%d, s%d, s%d" % (sT[4], sT[4], sT[5]))
    a("  s_cmp_ge_u32 s%d, 32" % sT[4])
    a("  s_cbranch_scc1 %s" % lo)
    a("  s_add_u32 s%d, s%d, 1" % (sCnt, sCnt))
    a("  s_cmp_lt_u32 s%d, %d" % (sCnt, SPIN_LIMIT))
    a("  s_cbranch_scc0 %s" % lo)
    a("  s_sleep 32")
    a("  s_branch %s" % lr)
    a("%s:" % lo)
    a("  s_mov_b64 exec, -1")
    a("  s_getreg_b32 s%d, hwreg(HW_REG_XCC_ID, 0, 3)" % sT[4])
    a("  s_lshl_b32 s%d, s%d, 3" % (sT[4], sT[4]))
    a("  s_lshr_b64 s[%d:%d], s[%d:%d], s%d" % (sT[2], sT[3], sT[2], sT[3], sT[4]))
    a("  s_and_b32 s%d, s%d, 0xff" % (sT[2], sT[2]))
    a("  s_cmp_eq_u32 s%d, 32" % sT[2])
    a("  s_cselect_b32 s%d, %d, 1" % (sT[2], 2 if uselocal else 1))
    a("  v_mov_b32 v%d, s%d" % (T0, sT[2]))
    a("  s_mov_b64 exec, 1")
    a("  ds_write_b32 v%d, v%d offset:%d" % (hMisc, T0, F_LOC))
    a("  s_mov_b64 exec, -1")
    a("  s_lshr_b32 s%d, s%d, 1" % (sLoc, sT[2]))
    gp_store(True)
    a("  s_cmp_eq_u32 s%d, 0" % sFv)
    a("  s_cbranch_scc1 L_ffn_done")
    a("  s_lshr_b32 s%d, s%d, 3" % (sT[0], sFi))
    a("  v_mul_u32_u24 v%d, %d, v%d" % (T0, 28 * 2048, hG))
    a("  v_lshl_add_u32 v%d, v%d, 4, v%d" % (T0, hI, T0))
    a("  s_lshl_b32 s%d, s%d, 11" % (sT[1], sT[0]))
    a("  s_and_b32 s%d, s%d, 7" % (sT[2], sFi))
    a("  s_lshl_b32 s%d, s%d, 8" % (sT[2], sT[2]))
    a("  s_add_u32 s%d, s%d, s%d" % (sT[1], sT[1], sT[2]))
    a("  s_add_u32 s%d, s%d, %d" % (sT[1], sT[1], GP))
    a("  s_add_u32 s%d, s%d, %d" % (sT[2], sT[1], 4 * 28 * 2048))
    lr, lo = a.lab("Lr"), a.lab("Lo")
    a("  s_mov_b32 s%d, 0" % sCnt)
    a("%s:" % lr)
    NT = " nt" if gnt & 2 else ""
    a("  buffer_load_dwordx4 v[%d:%d], v%d, s[%d:%d], s%d offen sc1%s" % (hA, hA + 3, T0, sWs, sWs + 3, sT[1], NT))
    a("  buffer_load_dwordx4 v[%d:%d], v%d, s[%d:%d], s%d offen sc1%s" % (hA + 4, hA + 7, T0, sWs, sWs + 3, sT[2], NT))
    a("  s_waitcnt vmcnt(0)")
    tag_retry(range(hA, hA + 8), lr, lo, T2, T3, 8 if gplocal else ffn_sleep)
    a("%s:" % lo)
    a("  s_mov_b64 exec, -1")
    untag(range(hA, hA + 8))
    for kind in (16, 32):
        for k in range(8):
            a("  v_mov_b32 v%d, v%d" % (hA + 8 + k, hA + k))
        a("  s_nop 1")
        for k in range(8):
            a("  v_permlane%d_swap_b32 v%d, v%d" % (kind, hA + k, hA + 8 + k))
        for k in range(0, 8, 2):
            pk("v_pk_add_f32", hA + k, hA + k, hA + 8 + k)
    g0, u0 = hA, hA + 4
    for k in range(8):
        round_bf16(hA + k)
    a("  s_mov_b32 s%d, 0xBFB8AA3B      ; -log2(e)" % sT[2])
    for k in range(4):
        a("  v_mul_f32 v%d, s%d, v%d" % (g0 + k, sT[2], g0 + k))
    for k in range(4):
        a("  v_exp_f32 v%d, v%d" % (g0 + k, g0 + k))
    a("  s_nop 0")
    for k in range(4):
        a("  v_add_f32 v%d, 1.0, v%d" % (g0 + k, g0 + k))
    for k in range(4):
        a("  v_rcp_f32 v%d, v%d" % (g0 + k, g0 + k))
    a("  s_nop 0")
    for k in range(4):
        round_bf16(g0 + k)
    for k in range(4):
        a("  v_mul_f32 v%d, v%d, v%d" % (g0 + k, g0 + k, u0 + k))
    for k in range(4):
        round_bf16(g0 + k)
    for k in range(4):
        a("  v_or_b32 v%d, v%d, v%d" % (g0 + k, g0 + k, hTag))
    a("  v_lshlrev_b32 v%d, 4, v0" % T0)
    a("  s_lshl_b32 s%d, s%d, 8" % (sT[1], sFi))
    a("  s_add_u32 s%d, s%d, %d" % (sT[1], sT[1], HH))
    a("  s_mov_b64 exec, 0xffff")
    store_loc(["  buffer_store_dwordx4 v[%d:%d], v%d, s[%d:%d], s%d offen" % (g0, g0 + 3, T0, sWs, sWs + 3, sT[1])], sLoc)
    a("  s_mov_b64 exec, -1")
    a("L_ffn_done:")
    lds_add(hMisc, F_RED, hOne)
    lds_wait(hMisc, F_EWS, 1, T5, sleep=4)
    for k in range(4):
        a("  v_mov_b32 v%d, v%d" % (hA + k, hTag))
    a("  s_lshl_b32 s%d, s%d, 9" % (sT[0], sX))
    a("  s_lshl_b32 s%d, s%d, 4" % (sT[1], sLi))
    a("  s_add_u32 s%d, s%d, s%d" % (sT[0], sT[0], sT[1]))
    a("  s_add_u32 s%d, s%d, %d" % (sT[0], sT[0], EW))
    a("  v_mov_b32 v%d, 0" % T0)
    a("  s_mov_b64 exec, 1")
    store_loc(["  buffer_store_dwordx4 v[%d:%d], v%d, s[%d:%d], s%d offen" % (hA, hA + 3, T0, sWs, sWs + 3, sT[0])], sLoc)
    a("  s_mov_b64 exec, -1")
    a("  s_branch L_B1")

    a("L_down:")
    gp_store(False)
    a("  s_cmp_eq_u32 s%d, 0" % sFv)
    a("  s_cbranch_scc1 L_down_done")
    lds_wait(hMisc, F_RED, 1, T5, sleep=8)
    a("  s_lshr_b32 s%d, s%d, 3" % (sT[0], sFi))
    a("  v_and_b32 v%d, 7, v%d" % (T0, hI))
    a("  v_lshlrev_b32 v%d, 8, v%d" % (T0, T0))
    a("  v_lshl_add_u32 v%d, v%d, 5, v%d" % (T0, hG, T0))
    a("  s_lshl_b32 s%d, s%d, 11" % (sT[1], sT[0]))
    a("  s_add_u32 s%d, s%d, %d" % (sT[1], sT[1], HH))
    lr, lo = a.lab("Lr"), a.lab("Lo")
    a("  s_mov_b32 s%d, 0" % sCnt)
    a("%s:" % lr)
    for k in range(4):
        a("  buffer_load_dwordx4 v[%d:%d], v%d, s[%d:%d], s%d offen offset:%d sc1" % (hA + 4 * k, hA + 4 * k + 3, T0, sWs, sWs + 3, sT[1], (k >> 1) * 128 + (k & 1) * 16))
    a("  s_waitcnt vmcnt(0)")
    tag_retry(range(hA, hA + 16), lr, lo, T2, T3, ffn_sleep)
    a("%s:" % lo)
    a("  s_mov_b64 exec, -1")
    a("  s_mov_b32 s%d, 0x07060302" % sT[2])
    for k in range(8):
        a("  v_perm_b32 v%d, v%d, v%d, s%d" % (hB + k, hA + 2 * k + 1, hA + 2 * k, sT[2]))
    a("  s_nop 1")
    for ct in range(4):
        d = hD + ct * 4
        r = hWd + ct * 8
        a("  v_mfma_f32_16x16x32_bf16 v[%d:%d], v[%d:%d], v[%d:%d], 0" % (d, d + 3, r, r + 3, hB, hB + 3))
        a("  v_mfma_f32_16x16x32_bf16 v[%d:%d], v[%d:%d], v[%d:%d], v[%d:%d]" % (d, d + 3, r + 4, r + 7, hB + 4, hB + 7, d, d + 3))
    a("  v_lshlrev_b32 v%d, 16, v%d" % (T0, hI))
    a("  v_lshl_add_u32 v%d, v%d, 4, v%d" % (T0, hG, T0))
    a("  s_and_b32 s%d, s%d, 7" % (sT[1], sFi))
    a("  s_lshl_b32 s%d, s%d, 13" % (sT[1], sT[1]))
    a("  s_lshl_b32 s%d, s%d, 6" % (sT[2], sT[0]))
    a("  s_add_u32 s%d, s%d, s%d" % (sT[1], sT[1], sT[2]))
    a("  s_add_u32 s%d, s%d, %d" % (sT[1], sT[1], DP))
    a("  s_nop 7")
    for i in range(16):
        tag(hD + i)
    a("  s_mov_b64 exec, s[%d:%d]" % (sLo8, sLo8 + 1))
    for ct in range(4):
        a("  buffer_store_dwordx4 v[%d:%d], v%d, s[%d:%d], s%d offen sc1" % (hD + ct * 4, hD + ct * 4 + 3, T0, sWs, sWs + 3, sT[1]))
        if ct < 3:
            a("  s_add_u32 s%d, s%d, 2048" % (sT[1], sT[1]))
    a("  s_mov_b64 exec, -1")
    a("  s_waitcnt vmcnt(0)")
    a("L_down_done:")
    lds_add(hMisc, F_DOWN, hOne)
    a("  s_branch L_B1")

    a("L_stats:")
    gp_store(False)
    lds_wait(hMisc, F_ST, 4, T5, sleep=st_sleep)
    a("  v_lshl_add_u32 v%d, v%d, 3, v%d" % (T0, hI, hMisc))
    mw, lw = hA, hA + 1
    a("  ds_read_b64 v[%d:%d], v%d offset:%d" % (mw, mw + 1, T0, SSTAT))
    a("  s_waitcnt lgkmcnt(0)")
    Mg, Lg, t_ = hA + 4, hA + 5, hA + 2
    a("  v_mov_b32 v%d, v%d" % (Mg, mw))
    a("  s_nop 1")
    a("  v_max_f32_dpp v%d, v%d, v%d row_ror:4 %s" % (Mg, Mg, Mg, DPP))
    a("  s_nop 1")
    a("  v_max_f32_dpp v%d, v%d, v%d row_ror:8 %s" % (Mg, Mg, Mg, DPP))
    a("  s_mov_b32 s%d, 0x3FB8AA3B" % sT[2])
    a("  v_sub_f32 v%d, v%d, v%d" % (t_, mw, Mg))
    a("  v_mul_f32 v%d, s%d, v%d" % (t_, sT[2], t_))
    a("  v_exp_f32 v%d, v%d" % (t_, t_))
    a("  s_nop 0")
    a("  v_mul_f32 v%d, v%d, v%d" % (Lg, lw, t_))
    a("  s_nop 1")
    a("  v_add_f32_dpp v%d, v%d, v%d row_ror:4 %s" % (Lg, Lg, Lg, DPP))
    a("  s_nop 1")
    a("  v_add_f32_dpp v%d, v%d, v%d row_ror:8 %s" % (Lg, Lg, Lg, DPP))
    a("  s_nop 1")
    a("  v_mov_b32_dpp v%d, v%d row_shl:1 %s bound_ctrl:0" % (Mg + 2, Mg, DPP))
    a("  v_mov_b32_dpp v%d, v%d row_shl:1 %s bound_ctrl:0" % (Mg + 3, Lg, DPP))
    a("  s_lshl_b32 s%d, s%d, 3" % (sT[0], sB))
    a("  s_add_u32 s%d, s%d, s%d" % (sT[0], sT[0], sX))
    a("  s_lshl_b32 s%d, s%d, 7" % (sT[0], sT[0]))
    a("  s_add_u32 s%d, s%d, %d" % (sT[0], sT[0], ST))
    a("  s_lshl_b32 s%d, s%d, 5" % (sT[1], sJ))
    a("  s_add_u32 s%d, s%d, s%d" % (sT[1], sT[1], sT[0]))
    for k in range(4):
        tag(Mg + k)
    a("  v_lshlrev_b32 v%d, 3, v%d" % (T1, hI))
    lds_wait(hMisc, F_LOC, 1, T5)
    a("  s_lshr_b32 s%d, s%d, 1" % (sLoc, sT[7]))
    a("  s_mov_b64 exec, 5")
    store_loc(["  buffer_store_dwordx4 v[%d:%d], v%d, s[%d:%d], s%d offen" % (Mg, Mg + 3, T1, sWs, sWs + 3, sT[1])], sLoc)
    a("  s_mov_b64 exec, -1")
    a("  v_lshrrev_b32 v%d, 1, v%d" % (T1, hI))
    a("  v_lshlrev_b32 v%d, 4, v%d" % (T1, T1))
    mj = hA + 8
    lr, lo = a.lab("Lr"), a.lab("Lo")
    a("  s_mov_b32 s%d, 0" % sCnt)
    a("%s:" % lr)
    a("  buffer_load_dwordx4 v[%d:%d], v%d, s[%d:%d], s%d offen sc1" % (mj, mj + 3, T1, sWs, sWs + 3, sT[0]))
    a("  s_waitcnt vmcnt(0)")
    tag_retry(range(mj, mj + 4), lr, lo, T2, T3, ffn_sleep)
    a("%s:" % lo)
    a("  s_mov_b64 exec, -1")
    a("  v_and_b32 v%d, 1, v%d" % (T2, hI))
    a("  v_cmp_eq_u32 vcc, 1, v%d" % T2)
    a("  s_nop 1")
    a("  v_cndmask_b32 v%d, v%d, v%d, vcc" % (mj, mj, mj + 2))
    a("  v_cndmask_b32 v%d, v%d, v%d, vcc" % (mj + 1, mj + 1, mj + 3))
    lj = mj + 1
    a("  v_and_b32 v%d, s%d, v%d" % (mj, sNotFF, mj))
    a("  v_and_or_b32 v%d, v%d, s%d, v%d" % (lj, lj, sNotFF, hMid))
    M2, L2 = hA + 12, hA + 13
    a("  v_mov_b32 v%d, v%d" % (M2, mj))
    a("  s_nop 1")
    a("  v_max_f32_dpp v%d, v%d, v%d row_ror:4 %s" % (M2, M2, M2, DPP))
    a("  s_nop 1")
    a("  v_max_f32_dpp v%d, v%d, v%d row_ror:8 %s" % (M2, M2, M2, DPP))
    a("  v_sub_f32 v%d, v%d, v%d" % (t_, mj, M2))
    a("  v_mul_f32 v%d, s%d, v%d" % (t_, sT[2], t_))
    a("  v_exp_f32 v%d, v%d" % (t_, t_))
    a("  s_nop 0")
    a("  v_mul_f32 v%d, v%d, v%d" % (L2, lj, t_))
    a("  s_nop 1")
    a("  v_add_f32_dpp v%d, v%d, v%d row_ror:4 %s" % (L2, L2, L2, DPP))
    a("  s_nop 1")
    a("  v_add_f32_dpp v%d, v%d, v%d row_ror:8 %s" % (L2, L2, L2, DPP))
    a("  v_sub_f32 v%d, v%d, v%d" % (t_, mw, M2))
    a("  v_mul_f32 v%d, s%d, v%d" % (t_, sT[2], t_))
    a("  v_exp_f32 v%d, v%d" % (t_, t_))
    a("  v_rcp_f32 v%d, v%d" % (L2, L2))
    a("  s_nop 0")
    a("  v_mul_f32 v%d, v%d, v%d" % (t_, t_, L2))
    a("  v_and_b32 v%d, 3, v%d" % (T0, hI))
    a("  v_lshlrev_b32 v%d, 4, v%d" % (T0, T0))
    a("  v_lshrrev_b32 v%d, 2, v%d" % (T1, hI))
    a("  v_lshl_add_u32 v%d, v%d, 2, v%d" % (T0, T1, T0))
    a("  v_add_u32 v%d, v%d, v%d" % (T0, T0, hMisc))
    a("  s_mov_b64 exec, 0xffff")
    a("  ds_write_b32 v%d, v%d offset:%d" % (T0, t_, FFAC))
    a("  s_mov_b64 exec, -1")
    a("  s_waitcnt lgkmcnt(0)")
    if nob1:
        lds_add(hMisc, F_F, hOne)
    a("  s_branch L_B1")

    def reduce_hd(base, tmp):
        a("  s_nop 1")
        for k in range(4):
            a("  v_add_f32_dpp v%d, v%d, v%d row_ror:4 %s" % (base + k, base + k, base + k, DPP))
        a("  s_nop 1")
        for k in range(4):
            a("  v_add_f32_dpp v%d, v%d, v%d row_ror:8 %s" % (base + k, base + k, base + k, DPP))
        for kind in (16, 32):
            for k in range(4):
                a("  v_mov_b32 v%d, v%d" % (tmp + k, base + k))
            a("  s_nop 1")
            for k in range(4):
                a("  v_permlane%d_swap_b32 v%d, v%d" % (kind, base + k, tmp + k))
            pk("v_pk_add_f32", base, base, tmp)
            pk("v_pk_add_f32", base + 2, base + 2, tmp + 2)

    def reduce_rows(base):
        a("  s_nop 1")
        for k in range(4):
            a("  v_add_f32_dpp v%d, v%d, v%d row_ror:4 %s" % (base + k, base + k, base + k, DPP))
        a("  s_nop 1")
        for k in range(4):
            a("  v_add_f32_dpp v%d, v%d, v%d row_ror:8 %s" % (base + k, base + k, base + k, DPP))
        a("  s_nop 0")
        a("  v_permlane16_swap_b32 v%d, v%d" % (base, base + 1))
        a("  v_permlane16_swap_b32 v%d, v%d" % (base + 2, base + 3))
        a("  v_add_f32 v%d, v%d, v%d" % (base, base, base + 1))
        a("  v_add_f32 v%d, v%d, v%d" % (base + 2, base + 2, base + 3))
        a("  s_nop 1")
        a("  v_permlane32_swap_b32 v%d, v%d" % (base, base + 2))
        a("  v_add_f32 v%d, v%d, v%d" % (base, base, base + 2))

    a("L_fin_prep:")
    gp_store(False)
    lds_wait(hMisc, F_LATE, 1, T5, sleep=8)
    if rowfin:
        a("  buffer_load_ushort v%d, v%d, s[%d:%d], 0 offen" % (hA + 8, hOutOff, sXd, sXd + 3))
    else:
        a("  buffer_load_dwordx2 v[%d:%d], v%d, s[%d:%d], 0 offen" % (hA + 8, hA + 9, hOutOff, sXd, sXd + 3))
    a("  v_lshlrev_b32 v%d, 4, v0" % T0)
    a("  s_lshl_b32 s%d, s%d, 11" % (sT[0], sFidx))
    a("  s_add_u32 s%d, s%d, %d" % (sT[0], sT[0], DP))
    for k in range(4):
        a("  v_mov_b32 v%d, v%d" % (hA + 4 + k, hTag))
    lr, lo = a.lab("Lr"), a.lab("Lo")
    a("  s_mov_b32 s%d, 0" % sCnt)
    a("%s:" % lr)
    NT = " nt" if gnt & 4 else ""
    a("  buffer_load_dwordx4 v[%d:%d], v%d, s[%d:%d], s%d offen sc1%s" % (hA, hA + 3, T0, sWs, sWs + 3, sT[0], NT))
    a("  s_mov_b64 s[%d:%d], exec" % (sT[4], sT[5]))
    a("  s_and_b32 exec_hi, exec_hi, 0xffff")
    ls = a.lab("Ls")
    a("  s_cbranch_execz %s" % ls)
    a("  buffer_load_dwordx4 v[%d:%d], v%d, s[%d:%d], s%d offen offset:1024 sc1%s" % (hA + 4, hA + 7, T0, sWs, sWs + 3, sT[0], NT))
    a("%s:" % ls)
    a("  s_mov_b64 exec, s[%d:%d]" % (sT[4], sT[5]))
    a("  s_waitcnt vmcnt(0)")
    tag_retry(range(hA, hA + 8), lr, lo, T2, T3, ffn_sleep)
    a("%s:" % lo)
    a("  s_mov_b64 exec, -1")
    untag(range(hA, hA + 8))
    pk("v_pk_add_f32", hA, hA, hA + 4)
    pk("v_pk_add_f32", hA + 2, hA + 2, hA + 6)
    hGv = hXf + 4
    if rowfin:
        reduce_rows(hA)
        round_bf16(hA)
        a("  s_mov_b32 s%d, 0xBFB8AA3B" % sT[2])
        a("  v_mul_f32 v%d, s%d, v%d" % (hA + 4, sT[2], hA))
        a("  v_exp_f32 v%d, v%d" % (hA + 4, hA + 4))
        a("  s_nop 0")
        a("  v_add_f32 v%d, 1.0, v%d" % (hA + 4, hA + 4))
        a("  v_rcp_f32 v%d, v%d" % (hA + 4, hA + 4))
        a("  s_nop 0")
        a("  v_mul_f32 v%d, v%d, v%d" % (hGv, hA, hA + 4))
        round_bf16(hGv)
        a("  v_lshlrev_b32 v%d, 16, v%d" % (hXf, hA + 8))
    else:
        reduce_hd(hA, hA + 4)
        for k in range(4):
            round_bf16(hA + k)
        a("  s_mov_b32 s%d, 0xBFB8AA3B" % sT[2])
        for k in range(4):
            a("  v_mul_f32 v%d, s%d, v%d" % (hA + 4 + k, sT[2], hA + k))
        for k in range(4):
            a("  v_exp_f32 v%d, v%d" % (hA + 4 + k, hA + 4 + k))
        a("  s_nop 0")
        for k in range(4):
            a("  v_add_f32 v%d, 1.0, v%d" % (hA + 4 + k, hA + 4 + k))
        for k in range(4):
            a("  v_rcp_f32 v%d, v%d" % (hA + 4 + k, hA + 4 + k))
        a("  s_nop 0")
        for k in range(4):
            a("  v_mul_f32 v%d, v%d, v%d" % (hGv + k, hA + k, hA + 4 + k))
        for k in range(4):
            round_bf16(hGv + k)
        a("  v_lshlrev_b32 v%d, 16, v%d" % (hXf, hA + 8))
        a("  v_and_b32 v%d, s%d, v%d" % (hXf + 1, sHi2, hA + 8))
        a("  v_lshlrev_b32 v%d, 16, v%d" % (hXf + 2, hA + 9))
        a("  v_and_b32 v%d, s%d, v%d" % (hXf + 3, sHi2, hA + 9))

    stamp("prep done")

    a("L_B1:")
    lds_wait(hMisc, F_LOC, 1, T5, sleep=8)
    a("  s_lshr_b32 s%d, s%d, 1" % (sLoc, sT[7]))
    a("  v_lshlrev_b32 v%d, 7, v%d" % (T0, hI))
    a("  v_lshl_add_u32 v%d, v%d, 5, v%d" % (T0, hG, T0))
    a("  s_lshl_b32 s%d, s%d, 14" % (sT[0], sHq))
    a("  s_lshl_b32 s%d, s%d, 11" % (sT[1], sHW))
    a("  s_add_u32 s%d, s%d, s%d" % (sT[0], sT[0], sT[1]))
    a("  s_add_u32 s%d, s%d, %d" % (sT[0], sT[0], OP))
    a("  s_add_u32 s%d, s%d, 8192" % (sT[1], sT[0]))
    a("  v_lshlrev_b32 v%d, 8, v%d" % (T1, hG))
    a("  v_lshl_add_u32 v%d, v%d, 2, v%d" % (T1, hI, T1))
    a("  s_lshl_b32 s%d, s%d, 11" % (sT[2], sHW))
    a("  s_add_u32 s%d, s%d, %d" % (sT[2], sT[2], WOS))
    a("  v_add_u32 v%d, s%d, v%d" % (T1, sT[2], T1))
    hP0, hP1, hQ0 = 157, 158, 159
    sP, sQ = 57, 58
    sSelH = 55
    a("  s_mov_b32 s%d, 0x07060302" % sSelH)
    a("  s_sub_u32 s%d, s%d, 2" % (sT[3], sHW))
    a("  s_lshl_b32 s%d, s%d, 10" % (sT[4], sT[3]))
    a("  s_add_u32 s%d, s%d, %d" % (sT[4], sT[4], WOS))
    a("  v_lshlrev_b32 v%d, 8, v%d" % (hP0, hG))
    a("  v_lshl_add_u32 v%d, v%d, 4, v%d      ; g*256 + i*16" % (hP0, hI, hP0))
    a("  v_add_u32 v%d, s%d, v%d" % (hP0, sT[4], hP0))
    a("  v_lshlrev_b32 v%d, 16, v%d" % (hP1, hG))
    a("  v_lshrrev_b32 v%d, 3, v%d" % (T2, hI))
    a("  v_lshl_add_u32 v%d, v%d, 12, v%d" % (hP1, T2, hP1))
    a("  v_and_b32 v%d, 7, v%d" % (T2, hI))
    a("  v_lshl_add_u32 v%d, v%d, 4, v%d" % (hP1, T2, hP1))
    a("  s_lshl_b32 s%d, s%d, 18" % (sT[3], sT[3]))
    a("  s_lshl_b32 s%d, s%d, 13" % (sT[4], sB))
    a("  s_add_u32 s%d, s%d, s%d" % (sT[3], sT[3], sT[4]))
    a("  s_lshl_b32 s%d, s%d, 7" % (sT[4], sHq))
    a("  s_add_u32 s%d, s%d, s%d" % (sT[3], sT[3], sT[4]))
    a("  s_add_u32 s%d, s%d, %d" % (sP, sT[3], SP))
    a("  v_lshrrev_b32 v%d, 2, v0" % hQ0)
    a("  v_lshlrev_b32 v%d, 7, v%d" % (hQ0, hQ0))
    a("  v_and_b32 v%d, 3, v0" % T2)
    a("  v_lshl_add_u32 v%d, v%d, 4, v%d" % (hQ0, T2, hQ0))
    a("  s_lshr_b32 s%d, s%d, 1" % (sT[3], sFidx))
    a("  s_lshl_b32 s%d, s%d, 12" % (sT[3], sT[3]))
    a("  s_and_b32 s%d, s%d, 1" % (sT[4], sFidx))
    a("  s_lshl_b32 s%d, s%d, 6" % (sT[4], sT[4]))
    a("  s_add_u32 s%d, s%d, s%d" % (sT[3], sT[3], sT[4]))
    a("  s_add_u32 s%d, s%d, %d" % (sQ, sT[3], SP))
    lw0 = a.lab("Lew")
    a("  s_cmp_lg_u32 s%d, 0" % sHW)
    a("  s_cbranch_scc1 %s" % lw0)
    a("  v_lshlrev_b32 v%d, 4, v0" % T5)
    a("  s_lshl_b32 s%d, s%d, 9" % (sT[2], sX))
    a("  s_add_u32 s%d, s%d, %d" % (sT[2], sT[2], EW))
    lr, lo = a.lab("Lr"), a.lab("Lo")
    a("  s_mov_b32 s%d, 0" % sCnt)
    a("  s_mov_b32 exec_hi, 0")
    a("%s:" % lr)
    a("  buffer_load_dwordx4 v[%d:%d], v%d, s[%d:%d], s%d offen sc1" % (hA, hA + 3, T5, sWs, sWs + 3, sT[2]))
    a("  s_waitcnt vmcnt(0)")
    tag_retry(range(hA, hA + 4), lr, lo, T2, T3, (8, 64))
    a("%s:" % lo)
    a("  s_mov_b64 exec, -1")
    if nob1:
        lw1 = a.lab("Lew")
        lds_add(hMisc, F_EW2, hOne)
        if gew:
            lg_ = a.lab("Lgew")
            a("  s_cmp_lg_u32 s%d, 0" % sLi)
            a("  s_cbranch_scc1 %s" % lg_)
            for k in range(4):
                a("  v_mov_b32 v%d, v%d" % (hA + k, hTag))
            a("  s_lshl_b32 s%d, s%d, 4" % (sT[2], sX))
            a("  s_add_u32 s%d, s%d, %d" % (sT[2], sT[2], GEW))
            a("  v_mov_b32 v%d, 0" % T5)
            a("  s_mov_b64 exec, 1")
            a("  buffer_store_dwordx4 v[%d:%d], v%d, s[%d:%d], s%d offen sc1" % (hA, hA + 3, T5, sWs, sWs + 3, sT[2]))
            a("  s_mov_b64 exec, -1")
            a("%s:" % lg_)
        a("  s_branch %s" % lw1)
        a("%s:" % lw0)
        lds_wait(hMisc, F_EW2, 1, T5, sleep=2)
        a("%s:" % lw1)
    else:
        a("%s:" % lw0)
        a("  s_barrier                      ; B1")
    stamp("B1")
    lr, lo = a.lab("Lr"), a.lab("Lo")
    a("  s_mov_b32 s%d, 0" % sCnt)
    for rt in range(2):
        a("  buffer_load_dwordx4 v[%d:%d], v%d, s[%d:%d], s%d offen sc1" % (hA + 8 * rt, hA + 8 * rt + 3, T0, sWs, sWs + 3, sT[rt]))
        a("  buffer_load_dwordx4 v[%d:%d], v%d, s[%d:%d], s%d offen offset:16 sc1" % (hA + 8 * rt + 4, hA + 8 * rt + 7, T0, sWs, sWs + 3, sT[rt]))
    if nob1 and gate_t0:
        lds_wait(hMisc, F_T0, 4, T5, sleep=1)
        a("  s_mov_b32 s%d, 0" % sCnt)
        a("  s_branch %s_c" % lr)
    else:
        a("  s_branch %s_c" % lr)
    a("%s:" % lr)
    for rt in range(2):
        a("  buffer_load_dwordx4 v[%d:%d], v%d, s[%d:%d], s%d offen sc1" % (hA + 8 * rt, hA + 8 * rt + 3, T0, sWs, sWs + 3, sT[rt]))
        a("  buffer_load_dwordx4 v[%d:%d], v%d, s[%d:%d], s%d offen offset:16 sc1" % (hA + 8 * rt + 4, hA + 8 * rt + 7, T0, sWs, sWs + 3, sT[rt]))
    a("%s_c:" % lr)
    a("  s_waitcnt vmcnt(0)")
    tag_retry(range(hA, hA + 16), lr, lo, T2, T3, (hop_sleep, 4))
    a("%s:" % lo)
    a("  s_mov_b64 exec, -1")
    stamp("hop1 ok")
    for k in range(8):
        a("  v_perm_b32 v%d, v%d, v%d, s%d" % (hB + k, hA + 2 * k + 1, hA + 2 * k, sSelH))
    a("  s_nop 1")
    for rt in range(2):
        for ct in range(4):
            d = hD + (rt * 4 + ct) * 4
            a("  v_mfma_f32_16x16x32_bf16 v[%d:%d], v[%d:%d], v[%d:%d], 0" % (d, d + 3, hB + 4 * rt, hB + 4 * rt + 3, hW + ct * 4, hW + ct * 4 + 3))
    a("  s_nop 0")
    for n in range(8):
        d = hD + n * 4
        pk("v_pk_add_f32", d, d, d + 2)
        a("  v_add_f32 v%d, v%d, v%d" % (d, d, d + 1))
    for rt in range(2):
        for ct in range(4):
            d = hD + (rt * 4 + ct) * 4
            a("  ds_write_b32 v%d, v%d offset:%d" % (T1, d, rt * 1024 + ct * 64))
    a("  s_waitcnt lgkmcnt(0)")
    a("  s_barrier")
    a("  s_cmp_eq_u32 s%d, 0" % sHW)
    a("  s_cbranch_scc1 L_hop2")
    a("  s_cmp_eq_u32 s%d, 1" % sHW)
    a("  s_cbranch_scc1 L_H_done")
    for w in range(4):
        a("  ds_read_b128 v[%d:%d], v%d offset:%d" % (hA + 4 * w, hA + 4 * w + 3, hP0, w * 2048))
    a("  s_waitcnt lgkmcnt(2)")
    for k in (0, 2):
        pk("v_pk_add_f32", hA + k, hA + k, hA + 4 + k)
    a("  s_waitcnt lgkmcnt(0)")
    for k in (0, 2):
        pk("v_pk_add_f32", hA + 8 + k, hA + 8 + k, hA + 12 + k)
    for k in (0, 2):
        pk("v_pk_add_f32", hA + k, hA + k, hA + 8 + k)
    for k in range(4):
        tag(hA + k)
    a("  buffer_store_dwordx4 v[%d:%d], v%d, s[%d:%d], s%d offen sc1" % (hA, hA + 3, hP1, sWs, sWs + 3, sP))
    a("  s_endpgm")

    a("L_hop2:")
    stamp("B2")

    def tag_check(rs, t0_, t1_):
        rs = list(rs)
        for k in range(0, len(rs), 4):
            a("  v_perm_b32 v%d, v%d, v%d, s%d" % (t1_, rs[k + 1], rs[k], sSelA))
            a("  v_perm_b32 v%d, v%d, v%d, s%d" % (t1_ + 1, rs[k + 3], rs[k + 2], sSelB))
            if k == 0:
                a("  v_or_b32 v%d, v%d, v%d" % (t0_, t1_, t1_ + 1))
                a("  v_xor_b32 v%d, s%d, v%d" % (t0_, sTag4, t0_))
            else:
                a("  v_or_b32 v%d, v%d, v%d" % (t1_, t1_, t1_ + 1))
                a("  v_xor_b32 v%d, s%d, v%d" % (t1_, sTag4, t1_))
                a("  v_or_b32 v%d, v%d, v%d" % (t0_, t0_, t1_))
        a("  v_cmp_ne_u32 vcc, 0, v%d" % t0_)

    FR = hA
    if gew:
        a("  v_lshlrev_b32 v%d, 4, v0" % T5)
        a("  s_mov_b32 s%d, %d" % (sT[2], GEW))
        lr, lo = a.lab("Lr"), a.lab("Lo")
        a("  s_mov_b32 s%d, 0" % sCnt)
        a("  s_mov_b64 exec, 0xff")
        a("%s:" % lr)
        a("  buffer_load_dwordx4 v[%d:%d], v%d, s[%d:%d], s%d offen sc1" % (hA, hA + 3, T5, sWs, sWs + 3, sT[2]))
        a("  s_waitcnt vmcnt(0)")
        tag_retry(range(hA, hA + 4), lr, lo, T2, T3, 4)
        a("%s:" % lo)
        a("  s_mov_b64 exec, -1")
    if pipe2:
        SA, SB, FR = hA, hA + 8, hB
        sMk = sT[4]
        def ld(R):
            a("  buffer_load_dwordx4 v[%d:%d], v%d, s[%d:%d], s%d offen sc1" % (R, R + 3, hQ0, sWs, sWs + 3, sQ))
            a("  buffer_load_dwordx4 v[%d:%d], v%d, s[%d:%d], s%d offen offset:2048 sc1" % (R + 4, R + 7, hQ0, sWs, sWs + 3, sQ))
        lp, ld_ = a.lab("Lp"), a.lab("Lpd")
        a("  s_mov_b64 s[%d:%d], -1" % (sMk, sMk + 1))
        a("  s_mov_b32 s%d, 0" % sCnt)
        ld(SA)
        a("%s:" % lp)
        for cur, nxt in ((SA, SB), (SB, SA)):
            ld(nxt)
            a("  s_waitcnt vmcnt(2)")
            tag_check(range(cur, cur + 8), T2, T3)
            lsk = a.lab("Lsk")
            a("  s_andn2_b64 exec, s[%d:%d], vcc" % (sMk, sMk + 1))
            a("  s_cbranch_execz %s" % lsk)
            for k in range(8):
                a("  v_mov_b32 v%d, v%d" % (FR + k, cur + k))
            a("%s:" % lsk)
            a("  s_mov_b64 s[%d:%d], vcc" % (sMk, sMk + 1))
            a("  s_cbranch_vccz %s" % ld_)
            a("  s_mov_b64 exec, vcc")
        a("  s_add_u32 s%d, s%d, 1" % (sCnt, sCnt))
        a("  s_cmp_lt_u32 s%d, %d" % (sCnt, SPIN_LIMIT))
        a("  s_cbranch_scc1 %s" % lp)
        a("%s:" % ld_)
        a("  s_mov_b64 exec, -1")
    else:
        lr, lo = a.lab("Lr"), a.lab("Lo")
        a("  s_mov_b32 s%d, 0" % sCnt)
        a("%s:" % lr)
        a("  buffer_load_dwordx4 v[%d:%d], v%d, s[%d:%d], s%d offen sc1" % (hA, hA + 3, hQ0, sWs, sWs + 3, sQ))
        a("  buffer_load_dwordx4 v[%d:%d], v%d, s[%d:%d], s%d offen offset:2048 sc1" % (hA + 4, hA + 7, hQ0, sWs, sWs + 3, sQ))
        a("  s_waitcnt vmcnt(0)")
        tag_retry(range(hA, hA + 8), lr, lo, T2, T3, h2_sleep)
        a("%s:" % lo)
        a("  s_mov_b64 exec, -1")
    stamp("hop2 ok")
    untag(range(FR, FR + 8))
    pk("v_pk_add_f32", FR, FR, FR + 4)
    pk("v_pk_add_f32", FR + 2, FR + 2, FR + 6)
    if rowfin:
        reduce_rows(FR)
        round_bf16(FR)
        a("  v_mul_f32 v%d, v%d, v%d" % (FR, FR, hGv))
        round_bf16(FR)
        a("  v_add_f32 v%d, v%d, v%d" % (FR, FR, hXf))
        a("  v_cvt_pk_bf16_f32 v%d, v%d, v%d" % (FR, FR, FR))
        a("  s_mov_b32 exec_lo, 0x000f000f")
        a("  s_mov_b32 exec_hi, 0x000f000f")
        a("  buffer_store_short v%d, v%d, s[%d:%d], 0 offen" % (FR, hOutOff, sOut, sOut + 3))
        a("  s_mov_b64 exec, -1")
    else:
        reduce_hd(FR, FR + 4)
        for k in range(4):
            round_bf16(FR + k)
        for k in range(4):
            a("  v_mul_f32 v%d, v%d, v%d" % (FR + k, FR + k, hGv + k))
        for k in range(4):
            round_bf16(FR + k)
        for k in range(4):
            a("  v_add_f32 v%d, v%d, v%d" % (FR + k, FR + k, hXf + k))
        a("  v_cvt_pk_bf16_f32 v%d, v%d, v%d" % (FR, FR, FR + 1))
        a("  v_cvt_pk_bf16_f32 v%d, v%d, v%d" % (FR + 1, FR + 2, FR + 3))
        a("  s_mov_b64 exec, 15")
        a("  buffer_store_dwordx2 v[%d:%d], v%d, s[%d:%d], 0 offen" % (FR, FR + 1, hOutOff, sOut, sOut + 3))
        a("  s_mov_b64 exec, -1")

    le = a.lab("Le")
    a("  s_cmp_lg_u32 s2, 0")
    a("  s_cbranch_scc1 %s" % le)
    a("  s_add_u32 s%d, s%d, 1" % (sT[0], sEp))
    a("  v_mov_b32 v%d, s%d" % (hD, sT[0]))
    a("  v_mov_b32 v%d, %d" % (T0, EPOCH))
    a("  s_mov_b64 exec, 1")
    a("  buffer_store_dword v%d, v%d, s[%d:%d], 0 offen" % (hD, T0, sWs, sWs + 3))
    a("  s_mov_b64 exec, -1")
    a("%s:" % le)
    stamp("end")
    if dbgtime:
        a("  s_memrealtime s[98:99]")
        a("  s_load_dwordx2 s[92:93], s[0:1], 80")
        a("  s_waitcnt lgkmcnt(0)")
        a("  s_mov_b32 s94, 256")
        a("  s_mov_b32 s95, 0x20000")
        a("  s_not_b32 s100, s100")
        a("  v_mov_b32 v%d, s100" % hA)
        a("  v_mov_b32 v%d, s98" % (hA + 1))
        a("  v_mov_b32 v%d, 0" % T0)
        a("  s_mov_b64 exec, 1")
        a("  buffer_atomic_umax v%d, v%d, s[92:95], 0 offen sc1" % (hA, T0))
        a("  buffer_atomic_umax v%d, v%d, s[92:95], 0 offen offset:4 sc1" % (hA + 1, T0))
        a("  s_mov_b64 exec, -1")
    a("L_tsdump:")
    if ts:
        a("  s_waitcnt lgkmcnt(0)")
        a("  s_lshl_b32 s%d, s2, 8" % sT[0])
        a("  s_add_u32 s%d, s%d, %d" % (sT[0], sT[0], TSOFF + 0x10000))
        a("  v_mov_b32 v%d, 0" % T2)
        a("  s_mov_b64 exec, 1")
        for i in range(len(names["H"])):
            a("  v_mov_b32 v%d, s%d" % (hA, TS0 + 2 * i))
            a("  v_mov_b32 v%d, s%d" % (hA + 1, TS0 + 2 * i + 1))
            a("  buffer_store_dwordx2 v[%d:%d], v%d, s[%d:%d], s%d offen offset:%d" % (hA, hA + 1, T2, sWs, sWs + 3, sT[0], 8 * i))
            a("  s_waitcnt vmcnt(0)")
        a("  s_mov_b64 exec, -1")
    a("  s_waitcnt vmcnt(0)")
    a("L_H_done:")
    a("L_end:")
    a("  s_endpgm")
    a("L_code_end:")

    lines = a.lines
    iH = lines.index("L_H:")
    iB0 = [k for k in range(iH, len(lines)) if "s_barrier" in lines[k] and "B0" in lines[k]][0]
    iE = iB0 + 1
    if ts and "s_memrealtime" in lines[iE]:
        iE += 1
    hpro = lines[iH + 1:iE]
    rest = lines[:iH] + ["L_H2:"] + lines[iE:]
    ib = [k for k, l in enumerate(rest) if l.strip() == "s_cbranch_scc1 L_H"][0]
    if layout:
        rest = rest[:ib] + ["  s_cbranch_scc0 L_S"] + hpro + ["  s_branch L_H2"] + rest[ib + 1:]
    else:
        rest = lines
    a.lines = rest
    body = a.text()
    s = HEADER
    s += "; @launch grid=(256,1,1) block=(512,1,1) lds=%d\n" % LDS_TOTAL
    s += '.amdgcn_target "amdgcn-amd-amdhsa--gfx950"\n.text\n'
    s += ".globl %s\n.p2align 8\n.type %s,@function\n%s:\n" % (KNAME, KNAME, KNAME)
    s += body
    s += """
.section .rodata,"a"
.p2align 6
.amdhsa_kernel %s
  .amdhsa_next_free_vgpr %d
  .amdhsa_next_free_sgpr 102
  .amdhsa_accum_offset %d
  .amdhsa_group_segment_fixed_size 0
  .amdhsa_kernarg_size 96
  .amdhsa_user_sgpr_count 2
  .amdhsa_user_sgpr_kernarg_segment_ptr 1
  .amdhsa_system_sgpr_workgroup_id_x 1
.end_amdhsa_kernel
""" % (KNAME, NV, NV)
    gen.names = names
    return s


if __name__ == "__main__":
    kw = {}
    out = "main.s"
    for arg in sys.argv[1:]:
        if "=" in arg:
            k, v = arg.split("=")
            kw[k] = int(v)
        else:
            out = arg
    open(out, "w").write(gen(**kw))
    import json
    json.dump(gen.names, open(out[:-2] + ".names.json", "w"))
    print("wrote", out)
```

```python
import sys
from asmlib import HEADER, KNAME

QP = 0x000000
GP = 0x080000
HH = 0x0F0000
OP = 0x100000
ST = 0x180000
DP = 0x190000
SP = 0x210000
EPOCH = 0x0FF000
EW = 0x2A0000
GEW = 0x2A2000
TSOFF = 0x0F000000

RING = 32768
MISC = 131072
XN = MISC
XN_STRIDE = 1040
QL = MISC + 8448
QL_STRIDE = 272
WOS = QL + 1088
WOS = (WOS + 255) // 256 * 256
FLG = WOS + 16384
F_H1 = 0; F_H3 = 8; F_QRDY = 16; F_STG = 20; F_ST = 24; F_HOP1 = 32; F_EW = 36; F_RED = 40; F_DOWN = 44; F_LATE = 48; F_EWS = 52; F_LOC = 56; F_MID = 60; F_T0 = 4; F_F = 12; F_EW2 = 28; F_GO = 32
SSTAT = 64
FFAC = 192
SPARE = FLG + 256
LDS_TOTAL = SPARE + 4096
assert LDS_TOTAL <= 163840, LDS_TOTAL
SPIN_LIMIT = 4000000


class Asm:
    def __init__(self):
        self.lines = []
        self.nlab = 0

    def __call__(self, s=""):
        for l in s.split("\n"):
            self.lines.append(l)

    def lab(self, base="L"):
        self.nlab += 1
        return "%s_%d" % (base, self.nlab)

    def text(self):
        return "\n".join(self.lines) + "\n"


def vr(base, n=1):
    return "v%d" % base if n == 1 else "v[%d:%d]" % (base, base + n - 1)


def sr(base, n=1):
    return "s%d" % base if n == 1 else "s[%d:%d]" % (base, base + n - 1)


DPP = "row_mask:0xf bank_mask:0xf"


def gen(ts=False, dbg=0, rotmode=3, depth=8, noq=0, noffn=0, hop_sleep=0, ew_it=3, dbgtime=0, noh=0, ffn_sleep=24, skip=0, st_sleep=4, late_it=1, uselocal=1, mid_it=2, r4=0, gnt=0, xnt=0, pf=1, b0pos=0, la=1, gplocal=0, early_census=1, layout=1, presm=0, pipe2=0, h2_sleep=0, sprio=0, dfill=0, dk=0, locnt=0, nob1=1, early_ka=1, gate_t0=1, gew=0, rdv=0, rdv_unit=2, opsc1=0, wide_ka=0, t0par=1, rowfin=1):
    a = Asm()
    sW, sX, sLi, sCnt = 3, 4, 5, 6
    sT = [20, 21, 22, 23, 24, 25, 26, 27]
    TS0 = 68
    nts = [0]

    names = {"S": ["start"], "H": ["start"]}
    role = ["S"]

    def stamp(name):
        if name == 0:
            if ts:
                a("  s_memrealtime s[%d:%d]" % (TS0, TS0 + 1))
            return
        lst = names[role[0]]
        if name not in lst:
            lst.append(name)
        idx = lst.index(name)
        assert TS0 + 2 * idx + 1 <= 101
        if ts:
            a("  s_memrealtime s[%d:%d]" % (TS0 + 2 * idx, TS0 + 2 * idx + 1))

    def lds_wait(vbase, off, n, vtmp, sleep=1):
        l0, l1 = a.lab("Lw"), a.lab("Lwd")
        a("  s_mov_b32 s%d, 0" % sCnt)
        a("%s:" % l0)
        a("  ds_read_b32 v%d, v%d offset:%d" % (vtmp, vbase, off))
        a("  s_waitcnt lgkmcnt(0)")
        a("  v_readfirstlane_b32 s%d, v%d" % (sT[7], vtmp))
        a("  s_cmp_ge_u32 s%d, %d" % (sT[7], n))
        a("  s_cbranch_scc1 %s" % l1)
        a("  s_add_u32 s%d, s%d, 1" % (sCnt, sCnt))
        a("  s_cmp_lt_u32 s%d, %d" % (sCnt, SPIN_LIMIT))
        a("  s_cbranch_scc0 %s" % l1)
        a("  s_sleep %d" % sleep)
        a("  s_branch %s" % l0)
        a("%s:" % l1)

    def lds_add(vbase, off, vone):
        a("  s_mov_b64 exec, 1")
        a("  ds_add_u32 v%d, v%d offset:%d" % (vbase, vone, off))
        a("  s_mov_b64 exec, -1")

    def store_loc(stores, sflag):
        l0, l1 = a.lab("Lsl"), a.lab("Lsl")
        a("  s_cmp_eq_u32 s%d, 0" % sflag)
        a("  s_cbranch_scc1 %s" % l0)
        for st in stores:
            a(st + (" nt" if locnt else ""))
        a("  s_branch %s" % l1)
        a("%s:" % l0)
        for st in stores:
            a(st + " sc1")
        a("%s:" % l1)

    def reduce_swap(op, v, t, kind):
        a("  v_mov_b32 v%d, v%d" % (t, v))
        a("  s_nop 1")
        a("  v_permlane%d_swap_b32 v%d, v%d" % (kind, v, t))
        a("  %s v%d, v%d, v%d" % (op, v, v, t))

    a("  s_cmp_ge_u32 s2, 256")
    a("  s_cbranch_scc1 L_end")
    if early_ka and wide_ka:
        a("  s_load_dwordx16 s[68:83], s[0:1], 0")
        a("  s_load_dwordx8 s[84:91], s[0:1], 64")
    elif early_ka:
        a("  s_load_dwordx2 s[8:9], s[0:1], 0             ; x")
        a("  s_load_dwordx2 s[52:53], s[0:1], 8           ; K")
        a("  s_load_dwordx2 s[12:13], s[0:1], 24          ; wq")
        a("  s_load_dwordx2 s[16:17], s[0:1], 88          ; ws")
        a("  s_load_dwordx2 s[60:61], s[0:1], 16          ; V")
        a("  s_load_dwordx4 s[56:59], s[0:1], 48")
    stamp(0)
    if dbgtime:
        a("  s_memrealtime s[100:101]")
    a("  v_lshrrev_b32 v1, 6, v0")
    a("  v_and_b32 v0, 63, v0            ; lane")
    a("  v_readfirstlane_b32 s%d, v1     ; wave id" % sW)
    a("  s_and_b32 s%d, s2, 7" % sX)
    a("  s_lshr_b32 s%d, s2, 3" % sLi)
    a("  s_cmp_ge_u32 s%d, 4" % sW)
    a("  s_cbranch_scc1 L_H")

    sK, sV, sCur = 8, 12, 16
    if early_ka:
        sV, sCur = 60, 52
    sBaseW, sRot, sRing, sIss, sOff, sIt = 28, 29, 30, 31, 32, 33
    sOff1 = 50
    sLocS = 51
    sM = 34
    sScale, sHi = 42, 43
    vLane = 0
    vMisc, vOne = 2, 3
    vKo, vVo, vCo = 4, 8, 12
    vKa = 16
    vVa = 20
    vTmp = 28
    vSp = 36
    vPf = 44
    vAcc = 52
    vE = 56
    vSt = 72
    vO = 104
    vQ = 136
    NV = 200

    sWsS = 16 if early_ka else 44
    sEp = 48
    sBaseW1 = 49
    a("L_S:")
    if sprio:
        a("  s_setprio %d" % sprio)
    if pf:
        lpf = a.lab("Lpf")
        a("  s_cmp_lg_u32 s%d, 3" % sW)
        a("  s_cbranch_scc1 %s" % lpf)
        a("  s_and_b32 s%d, s%d, 15" % (sT[0], sLi))
        a("  s_cmp_lg_u32 s%d, 0" % sT[0])
        a("  s_cbranch_scc1 %s" % lpf)
        a("  s_getpc_b64 s[%d:%d]" % (sT[2], sT[3]))
        a("L_pc:")
        a("  v_lshlrev_b32 v%d, 7, v%d" % (vTmp + 2, vLane))
        a("  v_add_u32 v%d, 0x2000, v%d" % (vTmp + 3, vTmp + 2))
        a("  global_load_dword v%d, v%d, s[%d:%d]" % (vSt, vTmp + 2, sT[2], sT[3]))
        a("  v_cmp_gt_u32 vcc, L_code_end-L_pc, v%d" % (vTmp + 3))
        a("  s_and_saveexec_b64 s[%d:%d], vcc" % (sT[4], sT[5]))
        a("  s_cbranch_execz L_pf_done")
        a("  global_load_dword v%d, v%d, s[%d:%d]" % (vSt + 1, vTmp + 3, sT[2], sT[3]))
        a("L_pf_done:")
        a("  s_mov_b64 exec, -1")
        a("%s:" % lpf)
    if not early_ka:
        a("  s_load_dwordx2 s[%d:%d], s[0:1], 8" % (sCur, sCur + 1))
        a("  s_load_dwordx2 s[%d:%d], s[0:1], 16" % (sV, sV + 1))
        a("  s_load_dwordx2 s[%d:%d], s[0:1], 88" % (sWsS, sWsS + 1))
    a("  s_mov_b32 s%d, 0x4000000" % (sCur + 2))
    a("  s_mov_b32 s%d, 0x20000" % (sCur + 3))
    a("  s_lshr_b32 s%d, s%d, 2" % (sT[0], sLi))
    a("  s_lshl_b32 s%d, s%d, 3" % (sT[0], sT[0]))
    a("  s_add_u32 s%d, s%d, s%d" % (sT[0], sT[0], sX))
    a("  s_lshl_b32 s%d, s%d, 2" % (sT[0], sT[0]))
    a("  s_and_b32 s%d, s%d, 3" % (sT[1], sLi))
    a("  s_add_u32 s%d, s%d, s%d" % (sT[0], sT[0], sT[1]))
    a("  s_lshl_b32 s%d, s%d, 18" % (sT[0], sT[0]))
    a("  s_lshl_b32 s%d, s%d, 13" % (sT[1], sW))
    if r4:
        if r4 == 1:
            a("  s_lshl_b32 s%d, s%d, 12" % (sT[2], sLi))
        else:
            a("  s_lshr_b32 s%d, s%d, 2" % (sT[2], sLi))
            a("  s_add_u32 s%d, s%d, s%d" % (sT[2], sT[2], sX))
            a("  s_lshl_b32 s%d, s%d, 12" % (sT[2], sT[2]))
        a("  s_add_u32 s%d, s%d, s%d" % (sT[1], sT[1], sT[2]))
        a("  s_add_u32 s%d, s%d, 4096" % (sT[2], sT[1]))
        a("  s_and_b32 s%d, s%d, 0x7fff" % (sT[1], sT[1]))
        a("  s_and_b32 s%d, s%d, 0x7fff" % (sT[2], sT[2]))
        a("  s_add_u32 s%d, s%d, s%d" % (sBaseW, sT[0], sT[1]))
        a("  s_add_u32 s%d, s%d, s%d" % (sBaseW1, sT[0], sT[2]))
    else:
        a("  s_add_u32 s%d, s%d, s%d" % (sBaseW, sT[0], sT[1]))
        a("  s_add_u32 s%d, s%d, 4096" % (sBaseW1, sBaseW))
    if rotmode == 0:
        sRotR = 2
    elif rotmode == 3:
        sRotR = sLi
    else:
        a("  s_add_u32 s%d, s2, s%d" % (sRot, sLi))
        sRotR = sRot
    if rdv:
        a("  s_load_dwordx2 s[64:65], s[0:1], 80")
        a("  s_mov_b32 s66, 256")
        a("  s_mov_b32 s67, 0x20000")
    a("  s_lshl_b32 s%d, s%d, 15" % (sRing, sW))
    a("  s_mov_b32 s%d, 0" % sIss)
    t0, t1, t2 = vTmp, vTmp + 1, vTmp + 2
    a("  v_lshrrev_b32 v%d, 4, v%d      ; g = l>>4" % (t0, vLane))
    a("  v_and_b32 v%d, 15, v%d         ; c' = l&15" % (t1, vLane))
    for i in range(4):
        a("  v_add_u32 v%d, %d, v%d" % (t2, 4 * i, t0))
        a("  v_xor_b32 v%d, v%d, v%d" % (t2, t2, t1))
        a("  v_lshlrev_b32 v%d, 4, v%d" % (t2, t2))
        a("  v_lshl_add_u32 v%d, v%d, 8, v%d" % (vCo + i, t0, t2))
    a("  v_mov_b32 v%d, %d" % (vMisc, FLG))
    a("  v_mov_b32 v%d, 1" % vOne)
    a("  s_waitcnt lgkmcnt(0)")
    if wide_ka:
        a("  s_mov_b64 s[52:53], s[70:71]")
        a("  s_mov_b64 s[60:61], s[72:73]")
        a("  s_mov_b64 s[16:17], s[90:91]")
    a("  s_barrier                      ; B0")

    def issue_unit(switch=False, dep=None):
        depth_ = dep if dep else depth
        if switch:
            lsw = a.lab("Lsw")
            a("  s_cmp_lg_u32 s%d, 8" % sIss)
            a("  s_cbranch_scc1 %s" % lsw)
            for i in range(4):
                a("  s_mov_b32 s%d, s%d" % (sCur + i, sV + i))
            for i in range(4):
                a("  v_mov_b32 v%d, v%d" % (vCo + i, vVo + (i & 1)))
            a("%s:" % lsw)
        a("  s_add_u32 s%d, s%d, s%d" % (sT[0], sIss, sRotR))
        a("  s_and_b32 s%d, s%d, 7" % (sT[0], sT[0]))
        a("  s_lshl_b32 s%d, s%d, 15" % (sT[0], sT[0]))
        a("  s_add_u32 s%d, s%d, s%d" % (sOff, sT[0], sBaseW))
        a("  s_add_u32 s%d, s%d, s%d" % (sOff1, sT[0], sBaseW1))
        a("  s_and_b32 s%d, s%d, 3" % (sT[0], sIss))
        a("  s_lshl_b32 s%d, s%d, 13" % (sT[0], sT[0]))
        a("  s_add_u32 m0, s%d, s%d" % (sT[0], sRing))
        a("  s_add_u32 s%d, s%d, 1" % (sIss, sIss))
        a("  s_waitcnt vmcnt(%d)" % (depth_ - 1))
        for i in range(4):
            a("  buffer_load_dwordx4 v%d, s[%d:%d], s%d offen offset:%d nt lds" % (vCo + i, sCur, sCur + 3, sOff, i * 1024))
            if i < 3:
                a("  s_waitcnt vmcnt(%d)" % (depth_ - 1))
        a("  s_add_u32 m0, m0, 4096")
        a("  s_waitcnt vmcnt(%d)" % (depth_ - 1))
        for i in range(4):
            a("  buffer_load_dwordx4 v%d, s[%d:%d], s%d offen offset:%d nt lds" % (vCo + i, sCur, sCur + 3, sOff1, i * 1024))
            if i < 3:
                a("  s_waitcnt vmcnt(%d)" % (depth_ - 1))

    a("L_fill:")
    a("  s_cmp_lg_u32 s%d, 3" % sIss)
    a("  s_cbranch_scc1 L_fill_go")
    stamp("u2 issued")
    lds_wait(vMisc, F_STG, 4, vTmp + 5)
    stamp("STG ok")
    a("L_fill_go:")
    if rdv:
        lrd = a.lab("Lrd")
        a("  s_cmp_lg_u32 s%d, 0" % sW)
        a("  s_cbranch_scc1 %s" % lrd)
        a("  s_cmp_lg_u32 s%d, %d" % (sIss, rdv_unit))
        a("  s_cbranch_scc1 %s" % lrd)
        a("  s_lshl_b32 s%d, s%d, 5" % (sT[0], sX))
        a("  s_add_u32 s%d, s%d, 16" % (sT[0], sT[0]))
        a("  v_mov_b32 v%d, s%d" % (vTmp + 4, sT[0]))
        a("  s_waitcnt lgkmcnt(0)")
        a("  s_mov_b64 exec, 1")
        a("  buffer_atomic_add v%d, v%d, s[64:67], 0 offen sc1" % (vOne, vTmp + 4))
        a("  s_mov_b64 exec, -1")
        a("%s:" % lrd)
    issue_unit(dep=dfill)

    a("  s_cmp_lt_u32 s%d, 4" % sIss)
    a("  s_cbranch_scc1 L_fill")
    a("  s_load_dword s%d, s[%d:%d], 0x%x" % (sEp, sWsS, sWsS + 1, EPOCH))
    a("  s_mov_b32 s%d, 0x4000000" % (sV + 2))
    a("  s_mov_b32 s%d, 0x20000" % (sV + 3))
    a("  s_mov_b32 s%d, 0x10000000" % (sWsS + 2))
    a("  s_mov_b32 s%d, 0x20000" % (sWsS + 3))
    for i in range(2):
        a("  v_add_u32 v%d, %d, v%d" % (t2, 4 * i, t0))
        a("  v_lshlrev_b32 v%d, 1, v%d" % (t2, t2))
        a("  v_xor_b32 v%d, v%d, v%d" % (t2, t2, t1))
        a("  v_lshlrev_b32 v%d, 4, v%d" % (t2, t2))
        a("  v_lshl_add_u32 v%d, v%d, 8, v%d" % (vVo + i, t0, t2))
    for s in range(4):
        a("  v_add_u32 v%d, %d, v%d" % (t2, 4 * s, t0))
        a("  v_xor_b32 v%d, v%d, v%d" % (t2, t2, t1))
        a("  v_lshlrev_b32 v%d, 4, v%d" % (t2, t2))
        a("  v_lshl_add_u32 v%d, v%d, 8, v%d" % (t2, t1, t2))
        a("  v_add_u32 v%d, s%d, v%d" % (vKa + s, sRing, t2))
    t3, t4 = vTmp + 3, vTmp + 4
    a("  v_lshrrev_b32 v%d, 2, v%d" % (t2, t1))
    a("  v_lshl_add_u32 v%d, v%d, 2, v%d    ; row" % (t2, t0, t2))
    a("  v_and_b32 v%d, 7, v%d              ; row&7" % (t3, t2))
    a("  v_lshlrev_b32 v%d, 8, v%d" % (t2, t2))
    a("  v_and_b32 v%d, 3, v%d" % (t4, t1))
    a("  v_lshl_add_u32 v%d, v%d, 3, v%d" % (t2, t4, t2))
    a("  v_add_u32 v%d, s%d, v%d" % (t2, sRing, t2))
    for dt in range(8):
        a("  v_xor_b32 v%d, %d, v%d" % (t4, dt, t3))
        a("  v_lshl_add_u32 v%d, v%d, 5, v%d" % (vVa + dt, t4, t2))
    for i in range(64):
        a("  v_mov_b32 v%d, 0" % (vQ + i))
    a("  v_bfe_u32 v%d, v%d, 2, 2" % (t2, vLane))
    for t in range(4):
        a("  v_cmp_eq_u32 s[%d:%d], %d, v%d" % (sM + 2 * t, sM + 2 * t + 1, t, t2))
    a("  v_and_b32 v%d, 3, v%d" % (t2, vLane))
    a("  v_mul_u32_u24 v%d, %d, v%d" % (t2, QL_STRIDE, t2))
    a("  v_lshl_add_u32 v%d, v%d, 4, v%d" % (t2, t0, t2))
    a("  v_add_u32 v%d, %d, v%d" % (t2, QL, t2))
    a("  s_mov_b32 s%d, 0x3DB504F3      ; 128^-0.5" % sScale)
    a("  s_mov_b32 s%d, 0xffff0000" % sHi)
    stamp("fill done")
    if rdv:
        lrd, lrd2 = a.lab("Lrd"), a.lab("Lrd")
        a("  s_cmp_lg_u32 s%d, 0" % sW)
        a("  s_cbranch_scc1 %s" % lrd)
        a("  s_waitcnt vmcnt(0)")
        a("  v_lshlrev_b32 v%d, 5, v%d" % (vTmp + 4, vLane))
        a("  v_add_u32 v%d, 16, v%d" % (vTmp + 4, vTmp + 4))
        l0, l1 = a.lab("Lp"), a.lab("Lpd")
        a("  s_mov_b32 s%d, 0" % sCnt)
        a("  s_mov_b64 exec, 0xff")
        a("%s:" % l0)
        a("  buffer_load_dword v%d, v%d, s[64:67], 0 offen sc1" % (vTmp + 5, vTmp + 4))
        a("  s_waitcnt vmcnt(0)")
        a("  v_cmp_gt_u32 vcc, 32, v%d" % (vTmp + 5))
        a("  s_cbranch_vccz %s" % l1)
        a("  s_add_u32 s%d, s%d, 1" % (sCnt, sCnt))
        a("  s_cmp_lt_u32 s%d, %d" % (sCnt, SPIN_LIMIT))
        a("  s_cbranch_scc0 %s" % l1)
        a("  s_sleep 8")
        a("  s_branch %s" % l0)
        a("%s:" % l1)
        a("  s_mov_b64 exec, -1")
        lds_add(vMisc, F_GO, vOne)
        a("  s_branch %s" % lrd2)
        a("%s:" % lrd)
        lds_wait(vMisc, F_GO, 1, vTmp + 5, sleep=2)
        a("%s:" % lrd2)
        stamp("GO")
    if not noq:
        lds_wait(vMisc, F_QRDY, 4, vTmp + 5)
    stamp("Q ready")
    for t in range(4):
        a("  s_mov_b64 exec, s[%d:%d]" % (sM + 2 * t, sM + 2 * t + 1))
        for s in range(4):
            r = vQ + (t * 4 + s) * 4
            a("  ds_read_b128 v[%d:%d], v%d offset:%d" % (r, r + 3, t2, 64 * s))
    a("  s_mov_b64 exec, -1")
    a("  s_mov_b32 s%d, 0" % sIt)
    a("  s_waitcnt vmcnt(0) lgkmcnt(0)")

    a("L_k:")
    lmid = a.lab("Lmid")
    a("  s_cmp_lg_u32 s%d, 0" % sW)
    a("  s_cbranch_scc1 %s" % lmid)
    a("  s_cmp_lg_u32 s%d, %d" % (sIt, mid_it))
    a("  s_cbranch_scc1 %s" % lmid)
    lds_add(vMisc, F_MID, vOne)
    a("%s:" % lmid)
    for u in range(2):
        if u == 0:
            lsk = a.lab("Lsk")
            a("  s_cmp_lt_u32 s%d, %d" % (sIt, 3 if la == 1 else 2))
            a("  s_cbranch_scc1 %s" % lsk)
            issue_unit(switch=(la == 2), dep=dk)
            a("%s:" % lsk)
        else:
            issue_unit(switch=(la == 1), dep=dk)
        for hf in range(2):
            for s_ in range(4):
                r = vSt + (hf * 4 + s_) * 4
                a("  ds_read_b128 v[%d:%d], v%d offset:%d" % (r, r + 3, vKa + s_, u * 8192 + hf * 4096))
        for hf in range(2):
            a("  s_waitcnt lgkmcnt(%d)" % (4 if hf == 0 else 0))
            t = 2 * u + hf
            for s_ in range(4):
                r = vSt + (hf * 4 + s_) * 4
                q = vQ + (t * 4 + s_) * 4
                c = "0" if (u == 0 and hf == 0 and s_ == 0) else "v[%d:%d]" % (vAcc, vAcc + 3)
                a("  v_mfma_f32_16x16x32_bf16 v[%d:%d], v[%d:%d], v[%d:%d], %s" % (vAcc, vAcc + 3, r, r + 3, q, q + 3, c))
    for i in range(6):
        a("  v_mov_b32 v%d, v%d" % (vSp + i, vSp + i + 2))
    for s in range(4):
        a("  v_xor_b32 v%d, 0x4000, v%d" % (vKa + s, vKa + s))
    c0, c1 = vTmp, vTmp + 1
    e0 = vTmp + 2
    a("  v_cvt_pk_bf16_f32 v%d, v%d, v%d" % (c0, vAcc, vAcc + 1))
    a("  v_cvt_pk_bf16_f32 v%d, v%d, v%d" % (c1, vAcc + 2, vAcc + 3))
    a("  v_lshlrev_b32 v%d, 16, v%d" % (e0, c0))
    a("  v_and_b32 v%d, s%d, v%d" % (e0 + 1, sHi, c0))
    a("  v_lshlrev_b32 v%d, 16, v%d" % (e0 + 2, c1))
    a("  v_and_b32 v%d, s%d, v%d" % (e0 + 3, sHi, c1))
    for i in range(4):
        a("  v_mul_f32 v%d, s%d, v%d" % (e0 + i, sScale, e0 + i))
    a("  v_cvt_pk_bf16_f32 v%d, v%d, v%d" % (vSp + 6, e0, e0 + 1))
    a("  v_cvt_pk_bf16_f32 v%d, v%d, v%d" % (vSp + 7, e0 + 2, e0 + 3))
    a("  s_add_u32 s%d, s%d, 1" % (sIt, sIt))
    a("  s_cmp_lt_u32 s%d, 4" % sIt)
    a("  s_cbranch_scc1 L_k")
    stamp("K done")
    if presm and la == 1:
        issue_unit()

    for i in range(8):
        a("  v_lshlrev_b32 v%d, 16, v%d" % (vE + 2 * i, vSp + i))
        a("  v_and_b32 v%d, s%d, v%d" % (vE + 2 * i + 1, sHi, vSp + i))
    vM, vL, vX = vTmp, vTmp + 1, vTmp + 2
    a("  v_max3_f32 v%d, v%d, v%d, v%d" % (vM, vE, vE + 1, vE + 2))
    for i in range(3, 15, 2):
        a("  v_max3_f32 v%d, v%d, v%d, v%d" % (vM, vM, vE + i, vE + i + 1))
    a("  v_max_f32 v%d, v%d, v%d" % (vM, vM, vE + 15))
    a("  s_nop 1")
    a("  v_max_f32_dpp v%d, v%d, v%d row_ror:4 %s" % (vM, vM, vM, DPP))
    a("  s_nop 1")
    a("  v_max_f32_dpp v%d, v%d, v%d row_ror:8 %s" % (vM, vM, vM, DPP))
    reduce_swap("v_max_f32", vM, vX, 16)
    reduce_swap("v_max_f32", vM, vX, 32)
    a("  s_mov_b32 s%d, 0x3FB8AA3B      ; log2(e)" % sT[0])
    a("  v_mul_f32 v%d, s%d, v%d" % (vX, sT[0], vM))
    for i in range(16):
        a("  v_fma_f32 v%d, v%d, s%d, -v%d" % (vE + i, vE + i, sT[0], vX))
    for i in range(16):
        a("  v_exp_f32 v%d, v%d" % (vE + i, vE + i))
    a("  s_nop 0")
    for i in range(8):
        a("  v_cvt_pk_bf16_f32 v%d, v%d, v%d" % (vSp + i, vE + 2 * i, vE + 2 * i + 1))
    for i in range(4):
        a("  v_pk_add_f32 v[%d:%d], v[%d:%d], v[%d:%d]" % (vE + 2 * i, vE + 2 * i + 1, vE + 2 * i, vE + 2 * i + 1, vE + 8 + 2 * i, vE + 9 + 2 * i))
    for i in range(2):
        a("  v_pk_add_f32 v[%d:%d], v[%d:%d], v[%d:%d]" % (vE + 2 * i, vE + 2 * i + 1, vE + 2 * i, vE + 2 * i + 1, vE + 4 + 2 * i, vE + 5 + 2 * i))
    a("  v_pk_add_f32 v[%d:%d], v[%d:%d], v[%d:%d]" % (vE, vE + 1, vE, vE + 1, vE + 2, vE + 3))
    a("  v_add_f32 v%d, v%d, v%d" % (vL, vE, vE + 1))
    a("  s_nop 1")
    a("  v_add_f32_dpp v%d, v%d, v%d row_ror:4 %s" % (vL, vL, vL, DPP))
    a("  s_nop 1")
    a("  v_add_f32_dpp v%d, v%d, v%d row_ror:8 %s" % (vL, vL, vL, DPP))
    reduce_swap("v_add_f32", vL, vX, 16)
    reduce_swap("v_add_f32", vL, vX, 32)
    a("  s_lshl_b32 s%d, s%d, 5" % (sT[0], sW))
    a("  v_lshlrev_b32 v%d, 3, v%d" % (vX, vLane))
    a("  v_add_u32 v%d, s%d, v%d" % (vX, sT[0], vX))
    a("  v_add_u32 v%d, v%d, v%d" % (vX, vMisc, vX))
    a("  s_mov_b64 exec, 15")
    a("  ds_write_b64 v%d, v[%d:%d] offset:%d" % (vX, vM, vM + 1, SSTAT))
    a("  s_waitcnt lgkmcnt(0)")
    a("  s_mov_b64 exec, -1")
    lds_add(vMisc, F_ST, vOne)

    if t0par:
        vW0, vR0, vR1, vR2, vR3 = vE + 4, vE + 5, vE + 6, vE + 7, vE + 8
        sXm, sO0, sHiM = 34, 36, 38
        tq0, tq1 = vTmp + 2, vTmp + 3
        a("  v_and_b32 v%d, 15, v%d" % (tq1, vLane))
        a("  v_lshrrev_b32 v%d, 4, v%d" % (tq0, vLane))
        a("  v_lshlrev_b32 v%d, 9, v%d" % (vW0, tq1))
        a("  v_lshl_add_u32 v%d, v%d, 4, v%d" % (vW0, tq0, vW0))
        a("  v_add_u32 v%d, s%d, v%d" % (vW0, sRing, vW0))
        a("  v_cmp_gt_u32 s[%d:%d], 4, v%d" % (sXm, sXm + 1, tq1))
        a("  s_lshl_b32 s%d, s%d, 9" % (sT[0], sW))
        a("  v_and_b32 v%d, 31, v%d" % (vR0, vLane))
        a("  v_lshlrev_b32 v%d, 4, v%d" % (vR0, vR0))
        a("  v_add_u32 v%d, s%d, v%d" % (vR0, sT[0], vR0))
        a("  s_lshl_b32 s%d, s%d, 4" % (sT[0], sW))
        a("  v_add_u32 v%d, s%d, v%d" % (vR1, sT[0], vMisc))
        a("  v_bfe_u32 v%d, v%d, 3, 2" % (vR2, vLane))
        a("  v_lshlrev_b32 v%d, 11, v%d" % (vR2, vR2))
        a("  v_and_b32 v%d, 7, v%d" % (tq0, vLane))
        a("  v_lshl_add_u32 v%d, v%d, 4, v%d" % (vR2, tq0, vR2))
        a("  s_lshl_b32 s%d, s%d, 2" % (sO0, sX))
        a("  s_add_u32 s%d, s%d, s%d" % (sO0, sO0, sW))
        a("  s_lshl_b32 s%d, s%d, 14" % (sO0, sO0))
        a("  s_lshr_b32 s%d, s%d, 4" % (sT[1], sLi))
        a("  s_lshl_b32 s%d, s%d, 13" % (sT[1], sT[1]))
        a("  s_add_u32 s%d, s%d, s%d" % (sO0, sO0, sT[1]))
        a("  s_and_b32 s%d, s%d, 15" % (sT[1], sLi))
        a("  s_lshl_b32 s%d, s%d, 7" % (sT[1], sT[1]))
        a("  s_add_u32 s%d, s%d, s%d" % (sO0, sO0, sT[1]))
        a("  s_add_u32 s%d, s%d, %d" % (sO0, sO0, OP))
        a("  s_add_u32 s%d, s%d, 1" % (sT[1], sEp))
        a("  s_and_b32 s%d, s%d, 0xff" % (sT[1], sT[1]))
        a("  v_mov_b32 v%d, s%d" % (vR3, sT[1]))
        a("  s_mov_b32 s%d, 0xffff0000" % sHiM)
    for i in range(32):
        a("  v_mov_b32 v%d, 0" % (vO + i))
    a("  s_mov_b32 s%d, 0" % sIt)
    a("L_v:")
    a("  v_mov_b32 v%d, v%d" % (vPf, vSp))
    a("  v_mov_b32 v%d, v%d" % (vPf + 1, vSp + 1))
    for k, sh in ((2, 4), (4, 8), (6, 12)):
        a("  v_mov_b32_dpp v%d, v%d row_shl:%d %s bound_ctrl:0" % (vPf + k, vSp, sh, DPP))
        a("  v_mov_b32_dpp v%d, v%d row_shl:%d %s bound_ctrl:0" % (vPf + k + 1, vSp + 1, sh, DPP))
    for i in range(6):
        a("  v_mov_b32 v%d, v%d" % (vSp + i, vSp + i + 2))
    lew = a.lab("Lew")
    lew3 = a.lab("Lew")
    a("  s_cmp_lg_u32 s%d, 0" % sW)
    a("  s_cbranch_scc1 %s" % lew3)
    lew2 = a.lab("Lew")
    a("  s_cmp_lg_u32 s%d, %d" % (sIt, late_it))
    a("  s_cbranch_scc1 %s" % lew2)
    lds_add(vMisc, F_LATE, vOne)
    a("%s:" % lew2)
    a("  s_cmp_lg_u32 s%d, %d" % (sIt, ew_it))
    a("  s_cbranch_scc1 %s" % lew)
    lds_add(vMisc, F_EWS, vOne)
    if not t0par:
        if nob1:
            lds_wait(vMisc, F_LOC, 1, vTmp + 5, sleep=0)
            a("  s_lshr_b32 s%d, s%d, 1" % (sLocS, sT[7]))
            lds_wait(vMisc, F_F, 1, vTmp + 5, sleep=0)
        a("%s:" % lew3)
    else:
        a("%s:" % lew3)
        a("  s_cmp_lg_u32 s%d, %d" % (sIt, ew_it))
        a("  s_cbranch_scc1 %s" % lew)
        lds_wait(vMisc, F_LOC, 1, vTmp + 5, sleep=0)
        a("  s_lshr_b32 s%d, s%d, 1" % (sLocS, sT[7]))
        lds_wait(vMisc, F_F, 1, vTmp + 5, sleep=0)
    a("%s:" % lew)
    for u in range(2):
        if u == 0 and la == 1:
            if presm:
                lsk = a.lab("Lsk")
                a("  s_cmp_eq_u32 s%d, 0" % sIt)
                a("  s_cbranch_scc1 %s" % lsk)
                issue_unit()
                a("%s:" % lsk)
            else:
                issue_unit()
        else:
            lv_else, lv_done = a.lab("Lve"), a.lab("Lvd")
            a("  s_cmp_ge_u32 s%d, 3" % sIt)
            a("  s_cbranch_scc1 %s" % lv_else)
            issue_unit()
            a("  s_branch %s" % lv_done)
            a("%s:" % lv_else)
            a("  s_waitcnt vmcnt(%d)" % (8 if u == 0 else 0))
            a("%s:" % lv_done)
        for dt in range(8):
            r = vSt + dt * 4
            a("  ds_read_b64_tr_b16 v[%d:%d], v%d offset:%d" % (r, r + 1, vVa + dt, u * 8192))
            a("  ds_read_b64_tr_b16 v[%d:%d], v%d offset:%d" % (r + 2, r + 3, vVa + dt, u * 8192 + 4096))
        for dt in range(8):
            r = vSt + dt * 4
            o = vO + dt * 4
            if dt % 2 == 0:
                a("  s_waitcnt lgkmcnt(%d)" % (12 - 2 * dt if dt < 6 else 0))
            a("  v_mfma_f32_16x16x32_bf16 v[%d:%d], v[%d:%d], v[%d:%d], v[%d:%d]" % (o, o + 3, r, r + 3, vPf + 4 * u, vPf + 4 * u + 3, o, o + 3))
    for dt in range(8):
        a("  v_xor_b32 v%d, 0x4000, v%d" % (vVa + dt, vVa + dt))
    a("  s_add_u32 s%d, s%d, 1" % (sIt, sIt))
    a("  s_cmp_lt_u32 s%d, 4" % sIt)
    a("  s_cbranch_scc1 L_v")
    stamp("V done")
    if t0par:
        assert nob1
        sWs = sWsS
        a("  s_mov_b64 exec, s[%d:%d]" % (sXm, sXm + 1))
        for dt in range(8):
            a("  ds_write_b128 v%d, v[%d:%d] offset:%d" % (vW0, vO + dt * 4, vO + dt * 4 + 3, dt * 64))
        a("  s_mov_b64 exec, -1")
        a("  s_waitcnt lgkmcnt(0)")
        lds_add(vMisc, F_T0, vOne)
        lds_wait(vMisc, F_T0, 4, vTmp + 5, sleep=0)
        for w in range(4):
            a("  ds_read_b128 v[%d:%d], v%d offset:%d" % (vSt + w * 4, vSt + w * 4 + 3, vR0, (w & 1) * 32768))
            if w == 1:
                a("  v_add_u32 v%d, 0x10000, v%d" % (vR0, vR0))
        a("  ds_read_b128 v[%d:%d], v%d offset:%d" % (vE, vE + 3, vR1, FFAC))
        a("  s_waitcnt lgkmcnt(0)")
        for i in range(4):
            a("  v_mul_f32 v%d, v%d, v%d" % (vO + i, vSt + i, vE))
        for w in range(1, 4):
            for i in range(4):
                a("  v_fmac_f32 v%d, v%d, v%d" % (vO + i, vSt + w * 4 + i, vE + w))
        for i in range(4):
            a("  v_cvt_pk_bf16_f32 v%d, v%d, v%d" % (vO + i, vO + i, vO + i))
        for i in range(4):
            a("  v_and_or_b32 v%d, v%d, s%d, v%d" % (vO + i, vO + i, sHiM, vR3))
        a("  s_mov_b32 exec_hi, 0")
        store_loc(["  buffer_store_dwordx4 v[%d:%d], v%d, s[%d:%d], s%d offen" % (vO, vO + 3, vR2, sWs, sWs + 3, sO0)], sLocS)
        a("  s_mov_b64 exec, -1")
        a("  s_cmp_lg_u32 s%d, 0" % sW)
        a("  s_cbranch_scc1 L_S_done")
    else:
        a("  v_and_b32 v%d, 15, v%d" % (t1, vLane))
        a("  v_lshrrev_b32 v%d, 4, v%d" % (t0, vLane))
        a("  v_lshlrev_b32 v%d, 9, v%d" % (t2, t1))
        a("  v_lshl_add_u32 v%d, v%d, 4, v%d" % (t2, t0, t2))
        a("  v_add_u32 v%d, s%d, v%d" % (t2, sRing, t2))
        a("  v_cmp_gt_u32 vcc, 4, v%d" % t1)
        a("  s_nop 4")
        a("  s_mov_b64 exec, vcc")
        for dt in range(8):
            a("  ds_write_b128 v%d, v[%d:%d] offset:%d" % (t2, vO + dt * 4, vO + dt * 4 + 3, dt * 64))
        a("  s_mov_b64 exec, -1")
        vR0, vR1, vR2, vR3 = vPf, vPf + 1, vPf + 2, vPf + 3
        a("  v_lshlrev_b32 v%d, 9, v%d" % (vR0, t0))
        a("  v_lshl_add_u32 v%d, v%d, 4, v%d      ; h*512 + c*16" % (vR0, t1, vR0))
        a("  v_lshl_add_u32 v%d, v%d, 4, v%d      ; FLG + h*16" % (vR1, t0, vMisc))
        a("  v_lshlrev_b32 v%d, 14, v%d" % (vR2, t0))
        a("  v_lshrrev_b32 v%d, 3, v%d" % (t3, t1))
        a("  v_lshl_add_u32 v%d, v%d, 11, v%d" % (vR2, t3, vR2))
        a("  v_and_b32 v%d, 7, v%d" % (t3, t1))
        a("  v_lshl_add_u32 v%d, v%d, 4, v%d" % (vR2, t3, vR2))
        a("  s_lshl_b32 s%d, s%d, 16" % (sT[0], sX))
        a("  s_lshr_b32 s%d, s%d, 4" % (sT[1], sLi))
        a("  s_lshl_b32 s%d, s%d, 13" % (sT[1], sT[1]))
        a("  s_add_u32 s%d, s%d, s%d" % (sT[0], sT[0], sT[1]))
        a("  s_and_b32 s%d, s%d, 15" % (sT[1], sLi))
        a("  s_lshl_b32 s%d, s%d, 7" % (sT[1], sT[1]))
        a("  s_add_u32 s%d, s%d, s%d" % (sT[0], sT[0], sT[1]))
        a("  s_add_u32 s%d, s%d, %d" % (sT[0], sT[0], OP))
        a("  s_add_u32 s%d, s%d, 1" % (sT[1], sEp))
        a("  s_and_b32 s%d, s%d, 0xff" % (sT[1], sT[1]))
        a("  v_mov_b32 v%d, s%d" % (vR3, sT[1]))
        a("  s_add_u32 s%d, s%d, 4096" % (sT[1], sT[0]))
        a("  s_mov_b32 s%d, 0xffff0000" % sT[2])
        if not nob1:
            lds_wait(vMisc, F_LOC, 1, t3)
            a("  s_lshr_b32 s%d, s%d, 1" % (sLocS, sT[7]))
        a("  s_waitcnt lgkmcnt(0)")
        if nob1:
            lds_add(vMisc, F_T0, vOne)
            a("  s_cmp_lg_u32 s%d, 0" % sW)
            a("  s_cbranch_scc1 L_S_done")
            lds_wait(vMisc, F_T0, 4, t3, sleep=0)
        else:
            a("  s_barrier                      ; B1")
            a("  s_cmp_lg_u32 s%d, 0" % sW)
            a("  s_cbranch_scc1 L_S_done")
        sWs = sWsS
        for w in range(4):
            a("  ds_read_b128 v[%d:%d], v%d offset:%d" % (vSt + w * 8, vSt + w * 8 + 3, vR0, (w & 1) * 32768))
            a("  ds_read_b128 v[%d:%d], v%d offset:%d" % (vSt + w * 8 + 4, vSt + w * 8 + 7, vR0, (w & 1) * 32768 + 256))
            if w == 1:
                a("  v_add_u32 v%d, 0x10000, v%d" % (vR0, vR0))
        a("  ds_read_b128 v[%d:%d], v%d offset:%d" % (vE, vE + 3, vR1, FFAC))
        a("  s_waitcnt lgkmcnt(0)")
        for i in range(8):
            a("  v_mul_f32 v%d, v%d, v%d" % (vO + i, vSt + i, vE))
        for w in range(1, 4):
            for i in range(8):
                a("  v_fmac_f32 v%d, v%d, v%d" % (vO + i, vSt + w * 8 + i, vE + w))
        for i in range(8):
            a("  v_cvt_pk_bf16_f32 v%d, v%d, v%d" % (vO + i, vO + i, vO + i))
        for i in range(8):
            a("  v_and_or_b32 v%d, v%d, s%d, v%d" % (vO + i, vO + i, sT[2], vR3))
        if opsc1:
            a("  buffer_store_dwordx4 v[%d:%d], v%d, s[%d:%d], s%d offen sc1" % (vO, vO + 3, vR2, sWs, sWs + 3, sT[0]))
            a("  buffer_store_dwordx4 v[%d:%d], v%d, s[%d:%d], s%d offen sc1" % (vO + 4, vO + 7, vR2, sWs, sWs + 3, sT[1]))
        else:
            store_loc(["  buffer_store_dwordx4 v[%d:%d], v%d, s[%d:%d], s%d offen" % (vO, vO + 3, vR2, sWs, sWs + 3, sT[0]),
                       "  buffer_store_dwordx4 v[%d:%d], v%d, s[%d:%d], s%d offen" % (vO + 4, vO + 7, vR2, sWs, sWs + 3, sT[1])], sLocS)

    stamp("published")
    a("  s_barrier                      ; B2")
    if ts:
        a("  s_waitcnt lgkmcnt(0)")
        a("  s_lshl_b32 s%d, s2, 8" % sT[0])
        a("  s_add_u32 s%d, s%d, %d" % (sT[0], sT[0], TSOFF))
        a("  v_mov_b32 v%d, 0" % t2)
        a("  s_mov_b64 exec, 1")
        for i in range(len(names["S"])):
            a("  v_mov_b32 v%d, s%d" % (vO, TS0 + 2 * i))
            a("  v_mov_b32 v%d, s%d" % (vO + 1, TS0 + 2 * i + 1))
            a("  buffer_store_dwordx2 v[%d:%d], v%d, s[%d:%d], s%d offen offset:%d" % (vO, vO + 1, t2, sWs, sWs + 3, sT[0], 8 * i))
            a("  s_waitcnt vmcnt(0)")
        a("  s_mov_b64 exec, -1")
    a("L_S_done:")
    a("  s_endpgm")

    role[0] = "H"
    a("L_H:")
    sHW = 7
    sXd, sWq, sWs, sGU, sWd, sWo, sOut = 8, 12, 16, 32, 36, 40, 44
    sEp = 28
    sTag = 29
    sNotFF = 30
    sTag4 = 31
    sHi2 = 48
    sFi = 49
    sSelA, sSelB = 50, 54
    sB = 51; sJ = 52; sFidx = 53
    sKb2 = 55
    sLo8 = 60
    sFv = 3
    sLoc = 56
    sDbg = 64
    sHq = 62
    sWoStg = 63
    hMisc, hOne = 2, 3
    hG, hI = 4, 5
    hT = 6
    hX = 16
    hF = 24
    hY = 40
    hA = 56
    hB = 72
    hD = 88
    hW = 120
    hXf = 136
    hZ = 144
    hTag = 156
    hWd = 160
    hMid = 197
    T0, T1, T2, T3, T4, T5 = hT, hT + 1, hT + 2, hT + 3, hT + 4, hT + 5
    hTr, hXn, hW1k, hTrG, hOutOff = hZ + 1, hZ + 2, hZ + 4, hZ + 5, hZ + 6

    if not early_ka:
        a("  s_load_dwordx2 s[%d:%d], s[0:1], 0" % (sXd, sXd + 1))
        a("  s_load_dwordx2 s[%d:%d], s[0:1], 24" % (sWq, sWq + 1))
        a("  s_load_dwordx4 s[56:59], s[0:1], 48")
        a("  s_load_dwordx2 s[%d:%d], s[0:1], 88" % (sWs, sWs + 1))
    a("  v_lshlrev_b32 v%d, 2, v0" % T0)
    a("  v_add_u32 v%d, %d, v%d" % (T0, FLG, T0))
    a("  v_mov_b32 v%d, 0" % T1)
    a("  ds_write_b32 v%d, v%d" % (T0, T1))
    a("  s_sub_u32 s%d, s%d, 4" % (sHW, sW))
    a("  s_mov_b32 s%d, 8192" % (sXd + 2))
    a("  s_mov_b32 s%d, 0x20000" % (sXd + 3))
    a("  v_lshrrev_b32 v%d, 5, v0" % T0)
    a("  s_lshl_b32 s%d, s%d, 1" % (sT[0], sHW))
    a("  v_add_u32 v%d, s%d, v%d          ; row b" % (T0, sT[0], T0))
    a("  v_and_b32 v%d, 31, v0" % T1)
    a("  v_lshlrev_b32 v%d, 5, v%d" % (T1, T1))
    a("  v_lshl_add_u32 v%d, v%d, 10, v%d" % (T2, T0, T1))
    a("  s_waitcnt lgkmcnt(0)")
    if wide_ka:
        a("  s_mov_b64 s[8:9], s[68:69]")
        a("  s_mov_b64 s[12:13], s[74:75]")
        a("  s_mov_b64 s[16:17], s[90:91]")
        a("  s_mov_b64 s[56:57], s[80:81]")
        a("  s_mov_b64 s[58:59], s[82:83]")
    a("  buffer_load_dwordx4 v[%d:%d], v%d, s[%d:%d], 0 offen%s" % (hX, hX + 3, T2, sXd, sXd + 3, " nt" if xnt else ""))
    a("  buffer_load_dwordx4 v[%d:%d], v%d, s[%d:%d], 0 offen offset:16%s" % (hX + 4, hX + 7, T2, sXd, sXd + 3, " nt" if xnt else ""))
    a("  v_lshrrev_b32 v%d, 3, v0" % T3)
    a("  v_and_b32 v%d, 7, v0" % T4)
    a("  v_lshlrev_b32 v%d, 4, v%d" % (T4, T4))
    a("  v_lshl_add_u32 v%d, v%d, 13, v%d" % (T5, T3, T4))
    a("  s_and_b32 s%d, s%d, 3" % (sJ, sLi))
    a("  s_lshr_b32 s%d, s%d, 2" % (sB, sLi))
    a("  s_lshl_b32 s%d, s%d, 2" % (sT[0], sJ))
    a("  s_add_u32 s%d, s%d, s%d" % (sT[0], sT[0], sHW))
    a("  s_lshl_b32 s%d, s%d, 18" % (sT[0], sT[0]))
    a("  s_lshl_b32 s%d, s%d, 3" % (sT[1], sX))
    a("  s_add_u32 s%d, s%d, s%d" % (sT[1], sT[1], sB))
    a("  s_lshl_b32 s%d, s%d, 7" % (sT[1], sT[1]))
    a("  s_add_u32 s%d, s%d, s%d" % (sT[0], sT[0], sT[1]))
    a("  s_lshr_b32 s%d, s%d, 1" % (sT[1], sHW))
    a("  s_lshl_b32 s%d, s%d, 15" % (sT[1], sT[1]))
    a("  s_and_b32 s%d, s%d, 1" % (sT[2], sHW))
    a("  s_lshl_b32 s%d, s%d, 12" % (sT[2], sT[2]))
    a("  s_add_u32 s%d, s%d, s%d" % (sT[1], sT[1], sT[2]))
    a("  s_add_u32 s%d, s%d, 24576" % (sT[1], sT[1]))
    a("  s_mov_b32 s%d, 0x400000" % (sWq + 2))
    a("  s_mov_b32 s%d, 0x20000" % (sWq + 3))
    for n in range(4):
        a("  s_add_u32 m0, s%d, %d" % (sT[1], n * 1024))
        if n:
            a("  s_add_u32 s%d, s%d, %d" % (sT[0], sT[0], 8 * 8192))
        else:
            a("  s_load_dword s%d, s[%d:%d], 0x%x" % (sEp, sWs, sWs + 1, EPOCH))
        a("  buffer_load_dwordx4 v%d, s[%d:%d], s%d offen nt lds" % (T5, sWq, sWq + 3, sT[0]))
    if b0pos == 0:
        a("  s_barrier                      ; B0")
        stamp("B0")
    if wide_ka:
        a("  s_mov_b64 s[%d:%d], s[84:85]" % (sWd, sWd + 1))
        a("  s_mov_b64 s[%d:%d], s[76:77]" % (sWo, sWo + 1))
        a("  s_mov_b64 s[%d:%d], s[86:87]" % (sOut, sOut + 1))
        a("  s_mov_b64 s[%d:%d], s[88:89]" % (sDbg, sDbg + 1))
    else:
        a("  s_load_dwordx2 s[%d:%d], s[0:1], 64" % (sWd, sWd + 1))
        a("  s_load_dwordx2 s[%d:%d], s[0:1], 32" % (sWo, sWo + 1))
        a("  s_load_dwordx2 s[%d:%d], s[0:1], 72" % (sOut, sOut + 1))
        a("  s_load_dwordx2 s[%d:%d], s[0:1], 80" % (sDbg, sDbg + 1))
    a("  s_lshr_b32 s%d, s%d, 3" % (sT[4], sLi))
    a("  s_lshl_b32 s%d, s%d, 3" % (sT[4], sT[4]))
    a("  s_add_u32 s%d, s%d, s%d" % (sT[4], sT[4], sX))
    a("  s_cmp_lt_u32 s%d, 28" % sT[4])
    a("  s_cselect_b32 s%d, 1, 0" % sFv)
    a("  s_min_u32 s%d, s%d, 27" % (sT[4], sT[4]))
    a("  s_lshl_b32 s%d, s%d, 3" % (sFi, sT[4]))
    a("  s_and_b32 s%d, s%d, 7" % (sT[5], sLi))
    a("  s_add_u32 s%d, s%d, s%d" % (sFi, sFi, sT[5]))
    a("  s_and_b32 s%d, s%d, 3" % (sKb2, sFi))
    a("  s_lshl_b32 s%d, s%d, 2" % (sT[3], sKb2))
    a("  s_add_u32 s%d, s%d, s%d" % (sT[3], sT[3], sHW))
    a("  s_mul_i32 s%d, s%d, %d" % (sT[3], sT[3], 32 * 3584))
    a("  s_lshl_b32 s%d, s%d, 7" % (sT[4], sT[4]))
    a("  s_add_u32 s%d, s%d, s%d" % (sT[3], sT[3], sT[4]))
    a("  s_bitcmp1_b32 s%d, 2" % sFi)
    a("  s_cselect_b32 s%d, s58, s56" % sGU)
    a("  s_cselect_b32 s%d, s59, s57" % (sGU + 1))
    a("  s_mov_b32 s%d, 1835008" % (sGU + 2))
    a("  s_mov_b32 s%d, 0x20000" % (sGU + 3))
    a("  v_lshl_add_u32 v%d, v%d, 10, v%d" % (hW1k, T3, T4))
    a("  v_mul_u32_u24 v%d, 3584, v%d" % (T3, T3))
    a("  v_add_u32 v%d, v%d, v%d" % (T3, T3, T4))
    for n in range(4):
        a("  s_add_u32 m0, s%d, %d" % (sT[1], 65536 + n * 1024))
        if n:
            a("  s_add_u32 s%d, s%d, %d" % (sT[3], sT[3], 8 * 3584))
        else:
            a("  s_mov_b32 s%d, 0xffff0000" % sHi2)
        a("  buffer_load_dwordx4 v%d, s[%d:%d], s%d offen nt lds" % (T3, sGU, sGU + 3, sT[3]))
    if b0pos == 1:
        a("  s_barrier                      ; B0")
        stamp("B0")
    a("  v_lshrrev_b32 v%d, 4, v0" % hG)
    a("  v_and_b32 v%d, 15, v0" % hI)
    a("  v_mov_b32 v%d, %d" % (hMisc, FLG))
    a("  v_mov_b32 v%d, 1" % hOne)
    a("  v_mul_u32_u24 v%d, %d, v%d" % (T0, XN_STRIDE, T0))
    a("  v_add_u32 v%d, v%d, v%d" % (T0, T0, T1))
    a("  v_add_u32 v%d, %d, v%d" % (hZ, XN, T0))
    if noh:
        for _ in range(4):
            lds_add(hMisc, F_QRDY, hOne)
            lds_add(hMisc, F_STG, hOne)
        a("  s_barrier")
        a("  s_mov_b32 s%d, 0x10000000" % (sWs + 2))
        a("  s_mov_b32 s%d, 0x20000" % (sWs + 3))
        a("  s_cmp_lg_u32 s%d, 0" % sHW)
        a("  s_cbranch_scc1 L_H_done")
        a("  s_branch L_tsdump")
    a("  s_mov_b32 s%d, 0x10000000" % (sWs + 2))
    a("  s_mov_b32 s%d, 0x20000" % (sWs + 3))
    for base, size in ((sWd, 1835008), (sWo, 0x400000), (sOut, 8192)):
        a("  s_mov_b32 s%d, %d" % (base + 2, size))
        a("  s_mov_b32 s%d, 0x20000" % (base + 3))
    a("  s_mov_b32 s%d, 0xffffff00" % sNotFF)
    a("  s_mov_b32 s%d, 0x0c0c0400" % sSelA)
    a("  s_mov_b32 s%d, 0x04000c0c" % sSelB)

    def pk(op, d, s0, s1, extra=""):
        a("  %s v[%d:%d], v[%d:%d], v[%d:%d]%s" % (op, d, d + 1, s0, s0 + 1, s1, s1 + 1, extra))

    def allreduce32(v, t):
        for n in (1, 2, 4, 8):
            a("  s_nop 1")
            a("  v_add_f32_dpp v%d, v%d, v%d row_ror:%d %s" % (v, v, v, n, DPP))
        reduce_swap("v_add_f32", v, t, 16)

    def tag(v):
        a("  v_and_or_b32 v%d, v%d, s%d, v%d" % (v, v, sNotFF, hTag))

    def tag_retry(regs, lab_retry, lab_ok, t0_, t1_, sleep):
        rs = list(regs)
        assert len(rs) % 4 == 0
        for k in range(0, len(rs), 4):
            a("  v_perm_b32 v%d, v%d, v%d, s%d" % (t1_, rs[k + 1], rs[k], sSelA))
            a("  v_perm_b32 v%d, v%d, v%d, s%d" % (t1_ + 1, rs[k + 3], rs[k + 2], sSelB))
            if k == 0:
                a("  v_or_b32 v%d, v%d, v%d" % (t0_, t1_, t1_ + 1))
                a("  v_xor_b32 v%d, s%d, v%d" % (t0_, sTag4, t0_))
            else:
                a("  v_or_b32 v%d, v%d, v%d" % (t1_, t1_, t1_ + 1))
                a("  v_xor_b32 v%d, s%d, v%d" % (t1_, sTag4, t1_))
                a("  v_or_b32 v%d, v%d, v%d" % (t0_, t0_, t1_))
        a("  v_cmp_ne_u32 vcc, 0, v%d" % t0_)
        a("  s_cbranch_vccz %s" % lab_ok)
        a("  s_mov_b64 exec, vcc")
        a("  s_add_u32 s%d, s%d, 1" % (sCnt, sCnt))
        a("  s_cmp_lt_u32 s%d, %d" % (sCnt, SPIN_LIMIT))
        a("  s_cbranch_scc0 %s" % lab_ok)
        if isinstance(sleep, tuple):
            lz = a.lab("Lz")
            a("  s_cmp_eq_u32 s%d, 0" % sLoc)
            a("  s_cbranch_scc0 %s_l" % lz)
            a("  s_sleep %d" % sleep[1])
            a("  s_branch %s" % lab_retry)
            a("%s_l:" % lz)
            if sleep[0]:
                a("  s_sleep %d" % sleep[0])
        else:
            a("  s_sleep %d" % sleep)
        a("  s_branch %s" % lab_retry)

    def round_bf16(v):
        a("  v_cvt_pk_bf16_f32 v%d, v%d, v%d" % (v, v, v))
        a("  v_and_b32 v%d, s%d, v%d" % (v, sHi2, v))

    def untag(regs):
        for v in regs:
            a("  v_and_or_b32 v%d, v%d, s%d, v%d" % (v, v, sNotFF, hMid))

    a("  s_waitcnt vmcnt(8)")
    for i in range(8):
        a("  v_lshlrev_b32 v%d, 16, v%d" % (hF + 2 * i, hX + i))
        a("  v_and_b32 v%d, s%d, v%d" % (hF + 2 * i + 1, sHi2, hX + i))
    for i in range(4):
        pk("v_pk_add_f32", hY + 2 * i, hF + 4 * i, hF + 4 * i + 2)
    pk("v_pk_add_f32", hY, hY, hY + 2)
    pk("v_pk_add_f32", hY + 4, hY + 4, hY + 6)
    pk("v_pk_add_f32", hY, hY, hY + 4)
    vS = hZ + 8
    vV = hZ + 10
    a("  v_add_f32 v%d, v%d, v%d" % (vS, hY, hY + 1))
    allreduce32(vS, T0)
    a("  v_mul_f32 v%d, 0x3b000000, v%d     ; mean" % (vS, vS))
    for i in range(8):
        pk("v_pk_add_f32", hY + 2 * i, hF + 2 * i, vS, " op_sel_hi:[1,0] neg_lo:[0,1] neg_hi:[0,1]")
    pk("v_pk_mul_f32", vV, hY, hY)
    for i in range(1, 8):
        a("  v_pk_fma_f32 v[%d:%d], v[%d:%d], v[%d:%d], v[%d:%d]" % (vV, vV + 1, hY + 2 * i, hY + 2 * i + 1, hY + 2 * i, hY + 2 * i + 1, vV, vV + 1))
    a("  v_add_f32 v%d, v%d, v%d" % (vV, vV, vV + 1))
    allreduce32(vV, T0)
    a("  v_mul_f32 v%d, 0x3b000000, v%d     ; var" % (vV, vV))
    a("  v_cvt_pk_bf16_f32 v%d, v%d, v%d" % (vS, vS, vV))
    a("  v_and_b32 v%d, s%d, v%d" % (vV, sHi2, vS))
    a("  v_lshlrev_b32 v%d, 16, v%d            ; mean_bf" % (vS, vS))
    a("  v_add_f32 v%d, 0x3727c5ac, v%d" % (vV, vV))
    round_bf16(vV)
    a("  v_sqrt_f32 v%d, v%d" % (vV, vV))
    a("  s_nop 0")
    round_bf16(vV)
    a("  v_rcp_f32 v%d, v%d" % (vV, vV))
    for i in range(8):
        pk("v_pk_add_f32", hY + 2 * i, hF + 2 * i, vS, " op_sel_hi:[1,0] neg_lo:[0,1] neg_hi:[0,1]")
    for i in range(8):
        a("  v_cvt_pk_bf16_f32 v%d, v%d, v%d" % (hX + i, hY + 2 * i, hY + 2 * i + 1))
    for i in range(8):
        a("  v_lshlrev_b32 v%d, 16, v%d" % (hF + 2 * i, hX + i))
        a("  v_and_b32 v%d, s%d, v%d" % (hF + 2 * i + 1, sHi2, hX + i))
    for i in range(8):
        pk("v_pk_mul_f32", hY + 2 * i, hF + 2 * i, vV, " op_sel_hi:[1,0]")
    for i in range(8):
        a("  v_cvt_pk_bf16_f32 v%d, v%d, v%d" % (hX + i, hY + 2 * i, hY + 2 * i + 1))
    a("  ds_write_b128 v%d, v[%d:%d]" % (hZ, hX, hX + 3))
    a("  ds_write_b128 v%d, v[%d:%d] offset:16" % (hZ, hX + 4, hX + 7))
    stamp("LN done")

    a("  v_lshrrev_b32 v%d, 2, v%d" % (T0, hI))
    a("  v_lshl_add_u32 v%d, v%d, 3, v%d" % (T0, hG, T0))
    a("  v_lshlrev_b32 v%d, 7, v%d" % (T0, T0))
    a("  v_and_b32 v%d, 3, v%d" % (T1, hI))
    a("  v_lshl_add_u32 v%d, v%d, 3, v%d" % (hTrG, T1, T0))
    a("  s_lshl_b32 s%d, s%d, 5" % (sT[0], sHW))
    a("  s_add_u32 s%d, s%d, 24576" % (sT[0], sT[0]))
    a("  v_add_u32 v%d, s%d, v%d" % (hTr, sT[0], hTrG))
    a("  v_and_b32 v%d, 7, v%d" % (T0, hI))
    a("  v_mul_u32_u24 v%d, %d, v%d" % (T0, XN_STRIDE, T0))
    a("  v_lshl_add_u32 v%d, v%d, 4, v%d" % (T0, hG, T0))
    a("  v_add_u32 v%d, %d, v%d" % (hXn, XN, T0))
    a("  v_cmp_gt_u32 s[%d:%d], 8, v%d" % (sLo8, sLo8 + 1, hI))

    def tile_compute(kb_sgpr, stg_add):
        a("  s_lshl_b32 s%d, s%d, 8" % (sT[0], kb_sgpr))
        a("  v_add_u32 v%d, s%d, v%d" % (T0, sT[0], hXn))
        if stg_add:
            a("  v_add_u32 v%d, 0x%x, v%d" % (T1, stg_add, hTr))
            tr = T1
        else:
            tr = hTr
        for ks in range(4):
            base = (ks >> 1) * 32768 + (ks & 1) * 4096
            r = hA + ks * 4
            a("  ds_read_b64_tr_b16 v[%d:%d], v%d offset:%d" % (r, r + 1, tr, base))
            a("  ds_read_b64_tr_b16 v[%d:%d], v%d offset:%d" % (r + 2, r + 3, tr, base + 512))
            r = hB + ks * 4
            a("  ds_read_b128 v[%d:%d], v%d offset:%d" % (r, r + 3, T0, ks * 64))
        for ks in range(4):
            a("  s_waitcnt lgkmcnt(%d)" % (9 - 3 * ks))
            c = "0" if ks == 0 else "v[%d:%d]" % (hD, hD + 3)
            a("  v_mfma_f32_16x16x32_bf16 v[%d:%d], v[%d:%d], v[%d:%d], %s" % (hD, hD + 3, hA + ks * 4, hA + ks * 4 + 3, hB + ks * 4, hB + ks * 4 + 3, c))

    a("  s_waitcnt vmcnt(4) lgkmcnt(0)")
    a("  s_add_u32 s%d, s%d, 1" % (sTag, sEp))
    a("  s_and_b32 s%d, s%d, 0xff" % (sTag, sTag))
    a("  s_mul_i32 s%d, s%d, 0x01010101" % (sTag4, sTag))
    a("  v_mov_b32 v%d, s%d" % (hTag, sTag))
    a("  v_mov_b32 v%d, 0x80" % hMid)
    if early_census:
        lc = a.lab("Lc")
        a("  s_cmp_lg_u32 s%d, 1" % sHW)
        a("  s_cbranch_scc1 %s" % lc)
        a("  s_mov_b32 s%d, 256" % (sDbg + 2))
        a("  s_mov_b32 s%d, 0x20000" % (sDbg + 3))
        a("  s_getreg_b32 s%d, hwreg(HW_REG_XCC_ID, 0, 3)" % sT[4])
        a("  s_lshl_b32 s%d, s%d, 3" % (sT[4], sT[4]))
        a("  s_lshl_b64 s[%d:%d], 1, s%d" % (sT[6], sT[7], sT[4]))
        a("  v_mov_b32 v%d, s%d" % (hA, sT[6]))
        a("  v_mov_b32 v%d, s%d" % (hA + 1, sT[7]))
        a("  s_lshl_b32 s%d, s%d, 5" % (sT[4], sX))
        a("  v_mov_b32 v%d, s%d" % (T0, sT[4]))
        a("  s_mov_b64 exec, 1")
        a("  buffer_atomic_add_x2 v[%d:%d], v%d, s[%d:%d], 0 offen sc1" % (hA, hA + 1, T0, sDbg, sDbg + 3))
        a("  s_mov_b64 exec, -1")
        a("%s:" % lc)
    lds_add(hMisc, F_H1, hOne)
    lds_wait(hMisc, F_H1, 4, T5)
    stamp("Hsync1")
    tile_compute(sJ, 0)
    a("  v_lshlrev_b32 v%d, 11, v%d" % (T0, hI))
    a("  v_lshl_add_u32 v%d, v%d, 4, v%d" % (T0, hG, T0))
    a("  s_lshl_b32 s%d, s%d, 6" % (sT[0], sHW))
    a("  v_add_u32 v%d, s%d, v%d" % (T0, sT[0], T0))
    a("  s_lshl_b32 s%d, s%d, 2" % (sHq, sX))
    a("  s_add_u32 s%d, s%d, s%d" % (sHq, sHq, sJ))
    a("  s_lshl_b32 s%d, s%d, 14" % (sT[0], sHq))
    a("  s_lshl_b32 s%d, s%d, 8" % (sT[1], sB))
    a("  s_add_u32 s%d, s%d, s%d" % (sT[0], sT[0], sT[1]))
    if QP:
        a("  s_add_u32 s%d, s%d, %d" % (sT[0], sT[0], QP))
    for k in range(4):
        tag(hD + k)
    a("  s_mov_b64 exec, s[%d:%d]" % (sLo8, sLo8 + 1))
    a("  buffer_store_dwordx4 v[%d:%d], v%d, s[%d:%d], s%d offen sc1" % (hD, hD + 3, T0, sWs, sWs + 3, sT[0]))
    a("  s_mov_b64 exec, -1")
    stamp("QP stored")
    a("  s_lshl_b32 s%d, s%d, 2" % (sT[0], sHq))
    a("  s_add_u32 s%d, s%d, s%d" % (sT[0], sT[0], sHW))
    a("  s_lshl_b32 s%d, s%d, 15" % (sT[0], sT[0]))
    a("  s_lshl_b32 s%d, s%d, 7" % (sT[1], sB))
    a("  s_add_u32 s%d, s%d, s%d" % (sT[0], sT[0], sT[1]))
    a("  s_lshl_b32 s%d, s%d, 12" % (sWoStg, sHW))
    a("  s_add_u32 s%d, s%d, %d" % (sWoStg, sWoStg, WOS))
    for n in range(4):
        a("  s_add_u32 m0, s%d, %d" % (sWoStg, n * 1024))
        if n:
            a("  s_add_u32 s%d, s%d, 8192" % (sT[0], sT[0]))
        else:
            a("  s_nop 0")
        a("  buffer_load_dwordx4 v%d, s[%d:%d], s%d offen nt lds" % (hW1k, sWo, sWo + 3, sT[0]))
    a("  s_waitcnt vmcnt(5)")
    lds_add(hMisc, F_H3, hOne)
    lds_wait(hMisc, F_H3, 4, T5)
    stamp("Hsync3")
    tile_compute(sKb2, 65536)
    lds_add(hMisc, F_STG, hOne)
    a("  v_lshlrev_b32 v%d, 8, v%d" % (T0, hI))
    a("  v_lshl_add_u32 v%d, v%d, 4, v%d" % (T0, hG, T0))
    a("  s_lshl_b32 s%d, s%d, 6" % (sT[0], sHW))
    a("  v_add_u32 v%d, s%d, v%d" % (T0, sT[0], T0))
    a("  s_and_b32 s%d, s%d, 7" % (sT[0], sFi))
    a("  s_mul_i32 s%d, s%d, 28" % (sT[0], sT[0]))
    a("  s_lshr_b32 s%d, s%d, 3" % (sT[1], sFi))
    a("  s_add_u32 s%d, s%d, s%d" % (sT[0], sT[0], sT[1]))
    a("  s_lshl_b32 s%d, s%d, 11" % (sT[0], sT[0]))
    a("  s_add_u32 s%d, s%d, %d" % (sT[0], sT[0], GP))
    hGp, hGpOff, sGpS = 192, 196, 59
    for k in range(4):
        tag(hD + k)
    if gplocal:
        for k in range(4):
            a("  v_mov_b32 v%d, v%d" % (hGp + k, hD + k))
        a("  v_mov_b32 v%d, v%d" % (hGpOff, T0))
        a("  s_mov_b32 s%d, s%d" % (sGpS, sT[0]))
    else:
        lg = a.lab("Lg")
        a("  s_cmp_eq_u32 s%d, 0" % sFv)
        a("  s_cbranch_scc1 %s" % lg)
        a("  s_mov_b64 exec, s[%d:%d]" % (sLo8, sLo8 + 1))
        a("  buffer_store_dwordx4 v[%d:%d], v%d, s[%d:%d], s%d offen sc1" % (hD, hD + 3, T0, sWs, sWs + 3, sT[0]))
        a("  s_mov_b64 exec, -1")
        a("%s:" % lg)

    def gp_store(have_loc):
        if not gplocal:
            return
        if not have_loc:
            lds_wait(hMisc, F_LOC, 1, T5, sleep=8)
            a("  s_lshr_b32 s%d, s%d, 1" % (sLoc, sT[7]))
        lg = a.lab("Lg")
        a("  s_cmp_eq_u32 s%d, 0" % sFv)
        a("  s_cbranch_scc1 %s" % lg)
        a("  s_mov_b64 exec, s[%d:%d]" % (sLo8, sLo8 + 1))
        store_loc(["  buffer_store_dwordx4 v[%d:%d], v%d, s[%d:%d], s%d offen" % (hGp, hGp + 3, hGpOff, sWs, sWs + 3, sGpS)], sLoc)
        a("  s_mov_b64 exec, -1")
        a("%s:" % lg)
    stamp("tile1 done")
    a("  v_lshrrev_b32 v%d, 5, v0" % T0)
    a("  v_lshlrev_b32 v%d, 14, v%d" % (T0, T0))
    a("  v_and_b32 v%d, 31, v0" % T1)
    a("  v_lshl_add_u32 v%d, v%d, 4, v%d" % (T0, T1, T0))
    a("  s_lshl_b32 s%d, s%d, 9" % (sT[0], sHW))
    a("  v_add_u32 v%d, s%d, v%d" % (T0, sT[0], T0))
    a("  s_lshl_b32 s%d, s%d, 16" % (sT[0], sX))
    a("  s_lshl_b32 s%d, s%d, 11" % (sT[1], sB))
    a("  s_add_u32 s%d, s%d, s%d" % (sT[0], sT[0], sT[1]))
    if QP:
        a("  s_add_u32 s%d, s%d, %d" % (sT[0], sT[0], QP))
    a("  s_add_u32 s%d, s%d, 32768" % (sT[1], sT[0]))
    a("  s_mul_i32 s%d, s%d, %d" % (sT[2], sHW, QL_STRIDE))
    a("  s_add_u32 s%d, s%d, %d" % (sT[2], sT[2], QL))
    a("  v_lshlrev_b32 v%d, 3, v%d" % (T1, T1))
    a("  v_add_u32 v%d, s%d, v%d" % (T1, sT[2], T1))
    lr, lo = a.lab("Lr"), a.lab("Lo")
    a("  s_mov_b32 s%d, 0" % sCnt)
    a("%s:" % lr)
    NT = " nt" if gnt & 1 else ""
    a("  buffer_load_dwordx4 v[%d:%d], v%d, s[%d:%d], s%d offen sc1%s" % (hA, hA + 3, T0, sWs, sWs + 3, sT[0], NT))
    a("  buffer_load_dwordx4 v[%d:%d], v%d, s[%d:%d], s%d offen sc1%s" % (hA + 4, hA + 7, T0, sWs, sWs + 3, sT[1], NT))
    a("  s_waitcnt vmcnt(0)")
    tag_retry(range(hA, hA + 8), lr, lo, T2, T3, 2)
    a("%s:" % lo)
    a("  s_mov_b64 exec, -1")
    stamp("Q ok")
    untag(range(hA, hA + 8))
    pk("v_pk_add_f32", hA, hA, hA + 4)
    pk("v_pk_add_f32", hA + 2, hA + 2, hA + 6)
    for k in range(4):
        a("  v_mov_b32 v%d, v%d" % (hA + 4 + k, hA + k))
    a("  s_nop 1")
    for k in range(4):
        a("  v_permlane32_swap_b32 v%d, v%d" % (hA + k, hA + 4 + k))
    pk("v_pk_add_f32", hA, hA, hA + 4)
    pk("v_pk_add_f32", hA + 2, hA + 2, hA + 6)
    a("  v_cvt_pk_bf16_f32 v%d, v%d, v%d" % (hA, hA, hA + 1))
    a("  v_cvt_pk_bf16_f32 v%d, v%d, v%d" % (hA + 1, hA + 2, hA + 3))
    a("  s_mov_b32 exec_hi, 0")
    a("  ds_write_b64 v%d, v[%d:%d]" % (T1, hA, hA + 1))
    a("  s_mov_b64 exec, -1")
    a("  s_waitcnt lgkmcnt(0)")
    lds_add(hMisc, F_QRDY, hOne)
    stamp("Q rdy")

    a("  v_add_u32 v%d, s%d, v%d" % (T0, sWoStg, hTrG))
    l3 = a.lab("L3")
    a("  s_cmp_lg_u32 s%d, 3" % sHW)
    a("  s_cbranch_scc1 %s" % l3)
    a("  s_lshr_b32 s%d, s%d, 3" % (sT[0], sFi))
    a("  s_lshl_b32 s%d, s%d, 16" % (sT[1], sT[0]))
    a("  s_and_b32 s%d, s%d, 7" % (sT[2], sFi))
    a("  s_lshl_b32 s%d, s%d, 7" % (sT[2], sT[2]))
    a("  s_add_u32 s%d, s%d, s%d" % (sT[1], sT[1], sT[2]))
    for n in range(4):
        a("  s_mov_b32 m0, %d" % (SPARE + n * 1024))
        if n:
            a("  s_add_u32 s%d, s%d, 8192" % (sT[1], sT[1]))
        else:
            a("  s_nop 0")
        a("  buffer_load_dwordx4 v%d, s[%d:%d], s%d offen nt lds" % (hW1k, sWd, sWd + 3, sT[1]))
    a("%s:" % l3)
    for ct in range(4):
        r = hW + ct * 4
        a("  ds_read_b64_tr_b16 v[%d:%d], v%d offset:%d" % (r, r + 1, T0, ct * 32))
        a("  ds_read_b64_tr_b16 v[%d:%d], v%d offset:%d" % (r + 2, r + 3, T0, ct * 32 + 512))
    a("  s_waitcnt lgkmcnt(0)")
    l4 = a.lab("L4")
    a("  s_cmp_lg_u32 s%d, 3" % sHW)
    a("  s_cbranch_scc1 %s" % l4)
    for n in range(4):
        a("  s_add_u32 m0, s%d, %d" % (sWoStg, n * 1024))
        a("  s_add_u32 s%d, s%d, 8192" % (sT[1], sT[1]))
        a("  buffer_load_dwordx4 v%d, s[%d:%d], s%d offen nt lds" % (hW1k, sWd, sWd + 3, sT[1]))
    a("  v_add_u32 v%d, %d, v%d" % (T1, SPARE, hTrG))
    a("  s_waitcnt vmcnt(4)")
    for ct in range(4):
        r = hWd + ct * 8
        a("  ds_read_b64_tr_b16 v[%d:%d], v%d offset:%d" % (r, r + 1, T1, ct * 32))
        a("  ds_read_b64_tr_b16 v[%d:%d], v%d offset:%d" % (r + 2, r + 3, T1, ct * 32 + 512))
    a("  s_waitcnt vmcnt(0)")
    for ct in range(4):
        r = hWd + ct * 8 + 4
        a("  ds_read_b64_tr_b16 v[%d:%d], v%d offset:%d" % (r, r + 1, T0, ct * 32))
        a("  ds_read_b64_tr_b16 v[%d:%d], v%d offset:%d" % (r + 2, r + 3, T0, ct * 32 + 512))
    a("  s_waitcnt lgkmcnt(0)")
    a("%s:" % l4)
    stamp("wo frags")

    a("  s_lshl_b32 s%d, s%d, 5" % (sFidx, sB))
    a("  s_add_u32 s%d, s%d, s%d" % (sFidx, sFidx, sHq))
    a("  v_and_b32 v%d, 3, v0" % T0)
    a("  v_lshlrev_b32 v%d, 3, v%d" % (T0, T0))
    a("  s_lshl_b32 s%d, s%d, 5" % (sT[0], sFidx))
    a("  v_add_u32 v%d, s%d, v%d" % (hOutOff, sT[0], T0))
    if rowfin:
        a("  v_lshl_add_u32 v%d, v%d, 1, v%d" % (hOutOff, hG, hOutOff))
    if noffn:
        a("  s_branch L_B1")
    a("  s_cmp_eq_u32 s%d, 1" % sHW)
    a("  s_cbranch_scc1 %s" % ("L_B1" if skip & 1 else "L_ffn"))
    a("  s_cmp_eq_u32 s%d, 2" % sHW)
    a("  s_cbranch_scc1 %s" % ("L_B1" if skip & 2 else "L_stats"))
    a("  s_cmp_eq_u32 s%d, 0" % sHW)
    a("  s_cbranch_scc1 %s" % ("L_B1" if skip & 5 else "L_fin_prep"))
    a("  s_branch %s" % ("L_B1" if skip & 9 else "L_down"))

    a("L_ffn:")
    a("  s_mov_b32 s%d, 256" % (sDbg + 2))
    a("  s_mov_b32 s%d, 0x20000" % (sDbg + 3))
    a("  s_lshl_b32 s%d, s%d, 5" % (sT[0], sX))
    a("  v_mov_b32 v%d, s%d" % (T0, sT[0]))
    if not early_census:
        a("  s_getreg_b32 s%d, hwreg(HW_REG_XCC_ID, 0, 3)" % sT[4])
        a("  s_lshl_b32 s%d, s%d, 3" % (sT[4], sT[4]))
        a("  s_lshl_b64 s[%d:%d], 1, s%d" % (sT[6], sT[7], sT[4]))
        a("  v_mov_b32 v%d, s%d" % (hA, sT[6]))
        a("  v_mov_b32 v%d, s%d" % (hA + 1, sT[7]))
        a("  s_mov_b64 exec, 1")
        a("  buffer_atomic_add_x2 v[%d:%d], v%d, s[%d:%d], 0 offen sc1" % (hA, hA + 1, T0, sDbg, sDbg + 3))
        a("  s_mov_b64 exec, -1")
        lds_wait(hMisc, F_MID, 1, T5, sleep=8)
    a("  s_waitcnt vmcnt(0)")
    lr, lo = a.lab("Lr"), a.lab("Lo")
    a("  s_mov_b32 s%d, 0" % sCnt)
    a("  s_mov_b64 exec, 1")
    a("%s:" % lr)
    a("  buffer_load_dwordx2 v[%d:%d], v%d, s[%d:%d], 0 offen sc1" % (hA, hA + 1, T0, sDbg, sDbg + 3))
    a("  s_waitcnt vmcnt(0)")
    a("  v_readfirstlane_b32 s%d, v%d" % (sT[2], hA))
    a("  v_readfirstlane_b32 s%d, v%d" % (sT[3], hA + 1))
    a("  s_and_b32 s%d, s%d, 0x00ff00ff" % (sT[4], sT[2]))
    a("  s_lshr_b32 s%d, s%d, 8" % (sT[5], sT[2]))
    a("  s_and_b32 s%d, s%d, 0x00ff00ff" % (sT[5], sT[5]))
    a("  s_add_u32 s%d, s%d, s%d" % (sT[4], sT[4], sT[5]))
    a("  s_and_b32 s%d, s%d, 0x00ff00ff" % (sT[5], sT[3]))
    a("  s_add_u32 s%d, s%d, s%d" % (sT[4], sT[4], sT[5]))
    a("  s_lshr_b32 s%d, s%d, 8" % (sT[5], sT[3]))
    a("  s_and_b32 s%d, s%d, 0x00ff00ff" % (sT[5], sT[5]))
    a("  s_add_u32 s%d, s%d, s%d" % (sT[4], sT[4], sT[5]))
    a("  s_lshr_b32 s%d, s%d, 16" % (sT[5], sT[4]))
    a("  s_and_b32 s%d, s%d, 0xffff" % (sT[4], sT[4]))
    a("  s_add_u32 s%d, s%d, s%d" % (sT[4], sT[4], sT[5]))
    a("  s_cmp_ge_u32 s%d, 32" % sT[4])
    a("  s_cbranch_scc1 %s" % lo)
    a("  s_add_u32 s%d, s%d, 1" % (sCnt, sCnt))
    a("  s_cmp_lt_u32 s%d, %d" % (sCnt, SPIN_LIMIT))
    a("  s_cbranch_scc0 %s" % lo)
    a("  s_sleep 32")
    a("  s_branch %s" % lr)
    a("%s:" % lo)
    a("  s_mov_b64 exec, -1")
    a("  s_getreg_b32 s%d, hwreg(HW_REG_XCC_ID, 0, 3)" % sT[4])
    a("  s_lshl_b32 s%d, s%d, 3" % (sT[4], sT[4]))
    a("  s_lshr_b64 s[%d:%d], s[%d:%d], s%d" % (sT[2], sT[3], sT[2], sT[3], sT[4]))
    a("  s_and_b32 s%d, s%d, 0xff" % (sT[2], sT[2]))
    a("  s_cmp_eq_u32 s%d, 32" % sT[2])
    a("  s_cselect_b32 s%d, %d, 1" % (sT[2], 2 if uselocal else 1))
    a("  v_mov_b32 v%d, s%d" % (T0, sT[2]))
    a("  s_mov_b64 exec, 1")
    a("  ds_write_b32 v%d, v%d offset:%d" % (hMisc, T0, F_LOC))
    a("  s_mov_b64 exec, -1")
    a("  s_lshr_b32 s%d, s%d, 1" % (sLoc, sT[2]))
    gp_store(True)
    a("  s_cmp_eq_u32 s%d, 0" % sFv)
    a("  s_cbranch_scc1 L_ffn_done")
    a("  s_lshr_b32 s%d, s%d, 3" % (sT[0], sFi))
    a("  v_mul_u32_u24 v%d, %d, v%d" % (T0, 28 * 2048, hG))
    a("  v_lshl_add_u32 v%d, v%d, 4, v%d" % (T0, hI, T0))
    a("  s_lshl_b32 s%d, s%d, 11" % (sT[1], sT[0]))
    a("  s_and_b32 s%d, s%d, 7" % (sT[2], sFi))
    a("  s_lshl_b32 s%d, s%d, 8" % (sT[2], sT[2]))
    a("  s_add_u32 s%d, s%d, s%d" % (sT[1], sT[1], sT[2]))
    a("  s_add_u32 s%d, s%d, %d" % (sT[1], sT[1], GP))
    a("  s_add_u32 s%d, s%d, %d" % (sT[2], sT[1], 4 * 28 * 2048))
    lr, lo = a.lab("Lr"), a.lab("Lo")
    a("  s_mov_b32 s%d, 0" % sCnt)
    a("%s:" % lr)
    NT = " nt" if gnt & 2 else ""
    a("  buffer_load_dwordx4 v[%d:%d], v%d, s[%d:%d], s%d offen sc1%s" % (hA, hA + 3, T0, sWs, sWs + 3, sT[1], NT))
    a("  buffer_load_dwordx4 v[%d:%d], v%d, s[%d:%d], s%d offen sc1%s" % (hA + 4, hA + 7, T0, sWs, sWs + 3, sT[2], NT))
    a("  s_waitcnt vmcnt(0)")
    tag_retry(range(hA, hA + 8), lr, lo, T2, T3, 8 if gplocal else ffn_sleep)
    a("%s:" % lo)
    a("  s_mov_b64 exec, -1")
    untag(range(hA, hA + 8))
    for kind in (16, 32):
        for k in range(8):
            a("  v_mov_b32 v%d, v%d" % (hA + 8 + k, hA + k))
        a("  s_nop 1")
        for k in range(8):
            a("  v_permlane%d_swap_b32 v%d, v%d" % (kind, hA + k, hA + 8 + k))
        for k in range(0, 8, 2):
            pk("v_pk_add_f32", hA + k, hA + k, hA + 8 + k)
    g0, u0 = hA, hA + 4
    for k in range(8):
        round_bf16(hA + k)
    a("  s_mov_b32 s%d, 0xBFB8AA3B      ; -log2(e)" % sT[2])
    for k in range(4):
        a("  v_mul_f32 v%d, s%d, v%d" % (g0 + k, sT[2], g0 + k))
    for k in range(4):
        a("  v_exp_f32 v%d, v%d" % (g0 + k, g0 + k))
    a("  s_nop 0")
    for k in range(4):
        a("  v_add_f32 v%d, 1.0, v%d" % (g0 + k, g0 + k))
    for k in range(4):
        a("  v_rcp_f32 v%d, v%d" % (g0 + k, g0 + k))
    a("  s_nop 0")
    for k in range(4):
        round_bf16(g0 + k)
    for k in range(4):
        a("  v_mul_f32 v%d, v%d, v%d" % (g0 + k, g0 + k, u0 + k))
    for k in range(4):
        round_bf16(g0 + k)
    for k in range(4):
        a("  v_or_b32 v%d, v%d, v%d" % (g0 + k, g0 + k, hTag))
    a("  v_lshlrev_b32 v%d, 4, v0" % T0)
    a("  s_lshl_b32 s%d, s%d, 8" % (sT[1], sFi))
    a("  s_add_u32 s%d, s%d, %d" % (sT[1], sT[1], HH))
    a("  s_mov_b64 exec, 0xffff")
    store_loc(["  buffer_store_dwordx4 v[%d:%d], v%d, s[%d:%d], s%d offen" % (g0, g0 + 3, T0, sWs, sWs + 3, sT[1])], sLoc)
    a("  s_mov_b64 exec, -1")
    a("L_ffn_done:")
    lds_add(hMisc, F_RED, hOne)
    lds_wait(hMisc, F_EWS, 1, T5, sleep=4)
    for k in range(4):
        a("  v_mov_b32 v%d, v%d" % (hA + k, hTag))
    a("  s_lshl_b32 s%d, s%d, 9" % (sT[0], sX))
    a("  s_lshl_b32 s%d, s%d, 4" % (sT[1], sLi))
    a("  s_add_u32 s%d, s%d, s%d" % (sT[0], sT[0], sT[1]))
    a("  s_add_u32 s%d, s%d, %d" % (sT[0], sT[0], EW))
    a("  v_mov_b32 v%d, 0" % T0)
    a("  s_mov_b64 exec, 1")
    store_loc(["  buffer_store_dwordx4 v[%d:%d], v%d, s[%d:%d], s%d offen" % (hA, hA + 3, T0, sWs, sWs + 3, sT[0])], sLoc)
    a("  s_mov_b64 exec, -1")
    a("  s_branch L_B1")

    a("L_down:")
    gp_store(False)
    a("  s_cmp_eq_u32 s%d, 0" % sFv)
    a("  s_cbranch_scc1 L_down_done")
    lds_wait(hMisc, F_RED, 1, T5, sleep=8)
    a("  s_lshr_b32 s%d, s%d, 3" % (sT[0], sFi))
    a("  v_and_b32 v%d, 7, v%d" % (T0, hI))
    a("  v_lshlrev_b32 v%d, 8, v%d" % (T0, T0))
    a("  v_lshl_add_u32 v%d, v%d, 5, v%d" % (T0, hG, T0))
    a("  s_lshl_b32 s%d, s%d, 11" % (sT[1], sT[0]))
    a("  s_add_u32 s%d, s%d, %d" % (sT[1], sT[1], HH))
    lr, lo = a.lab("Lr"), a.lab("Lo")
    a("  s_mov_b32 s%d, 0" % sCnt)
    a("%s:" % lr)
    for k in range(4):
        a("  buffer_load_dwordx4 v[%d:%d], v%d, s[%d:%d], s%d offen offset:%d sc1" % (hA + 4 * k, hA + 4 * k + 3, T0, sWs, sWs + 3, sT[1], (k >> 1) * 128 + (k & 1) * 16))
    a("  s_waitcnt vmcnt(0)")
    tag_retry(range(hA, hA + 16), lr, lo, T2, T3, ffn_sleep)
    a("%s:" % lo)
    a("  s_mov_b64 exec, -1")
    a("  s_mov_b32 s%d, 0x07060302" % sT[2])
    for k in range(8):
        a("  v_perm_b32 v%d, v%d, v%d, s%d" % (hB + k, hA + 2 * k + 1, hA + 2 * k, sT[2]))
    a("  s_nop 1")
    for ct in range(4):
        d = hD + ct * 4
        r = hWd + ct * 8
        a("  v_mfma_f32_16x16x32_bf16 v[%d:%d], v[%d:%d], v[%d:%d], 0" % (d, d + 3, r, r + 3, hB, hB + 3))
        a("  v_mfma_f32_16x16x32_bf16 v[%d:%d], v[%d:%d], v[%d:%d], v[%d:%d]" % (d, d + 3, r + 4, r + 7, hB + 4, hB + 7, d, d + 3))
    a("  v_lshlrev_b32 v%d, 16, v%d" % (T0, hI))
    a("  v_lshl_add_u32 v%d, v%d, 4, v%d" % (T0, hG, T0))
    a("  s_and_b32 s%d, s%d, 7" % (sT[1], sFi))
    a("  s_lshl_b32 s%d, s%d, 13" % (sT[1], sT[1]))
    a("  s_lshl_b32 s%d, s%d, 6" % (sT[2], sT[0]))
    a("  s_add_u32 s%d, s%d, s%d" % (sT[1], sT[1], sT[2]))
    a("  s_add_u32 s%d, s%d, %d" % (sT[1], sT[1], DP))
    a("  s_nop 7")
    for i in range(16):
        tag(hD + i)
    a("  s_mov_b64 exec, s[%d:%d]" % (sLo8, sLo8 + 1))
    for ct in range(4):
        a("  buffer_store_dwordx4 v[%d:%d], v%d, s[%d:%d], s%d offen sc1" % (hD + ct * 4, hD + ct * 4 + 3, T0, sWs, sWs + 3, sT[1]))
        if ct < 3:
            a("  s_add_u32 s%d, s%d, 2048" % (sT[1], sT[1]))
    a("  s_mov_b64 exec, -1")
    a("  s_waitcnt vmcnt(0)")
    a("L_down_done:")
    lds_add(hMisc, F_DOWN, hOne)
    a("  s_branch L_B1")

    a("L_stats:")
    gp_store(False)
    lds_wait(hMisc, F_ST, 4, T5, sleep=st_sleep)
    a("  v_lshl_add_u32 v%d, v%d, 3, v%d" % (T0, hI, hMisc))
    mw, lw = hA, hA + 1
    a("  ds_read_b64 v[%d:%d], v%d offset:%d" % (mw, mw + 1, T0, SSTAT))
    a("  s_waitcnt lgkmcnt(0)")
    Mg, Lg, t_ = hA + 4, hA + 5, hA + 2
    a("  v_mov_b32 v%d, v%d" % (Mg, mw))
    a("  s_nop 1")
    a("  v_max_f32_dpp v%d, v%d, v%d row_ror:4 %s" % (Mg, Mg, Mg, DPP))
    a("  s_nop 1")
    a("  v_max_f32_dpp v%d, v%d, v%d row_ror:8 %s" % (Mg, Mg, Mg, DPP))
    a("  s_mov_b32 s%d, 0x3FB8AA3B" % sT[2])
    a("  v_sub_f32 v%d, v%d, v%d" % (t_, mw, Mg))
    a("  v_mul_f32 v%d, s%d, v%d" % (t_, sT[2], t_))
    a("  v_exp_f32 v%d, v%d" % (t_, t_))
    a("  s_nop 0")
    a("  v_mul_f32 v%d, v%d, v%d" % (Lg, lw, t_))
    a("  s_nop 1")
    a("  v_add_f32_dpp v%d, v%d, v%d row_ror:4 %s" % (Lg, Lg, Lg, DPP))
    a("  s_nop 1")
    a("  v_add_f32_dpp v%d, v%d, v%d row_ror:8 %s" % (Lg, Lg, Lg, DPP))
    a("  s_nop 1")
    a("  v_mov_b32_dpp v%d, v%d row_shl:1 %s bound_ctrl:0" % (Mg + 2, Mg, DPP))
    a("  v_mov_b32_dpp v%d, v%d row_shl:1 %s bound_ctrl:0" % (Mg + 3, Lg, DPP))
    a("  s_lshl_b32 s%d, s%d, 3" % (sT[0], sB))
    a("  s_add_u32 s%d, s%d, s%d" % (sT[0], sT[0], sX))
    a("  s_lshl_b32 s%d, s%d, 7" % (sT[0], sT[0]))
    a("  s_add_u32 s%d, s%d, %d" % (sT[0], sT[0], ST))
    a("  s_lshl_b32 s%d, s%d, 5" % (sT[1], sJ))
    a("  s_add_u32 s%d, s%d, s%d" % (sT[1], sT[1], sT[0]))
    for k in range(4):
        tag(Mg + k)
    a("  v_lshlrev_b32 v%d, 3, v%d" % (T1, hI))
    lds_wait(hMisc, F_LOC, 1, T5)
    a("  s_lshr_b32 s%d, s%d, 1" % (sLoc, sT[7]))
    a("  s_mov_b64 exec, 5")
    store_loc(["  buffer_store_dwordx4 v[%d:%d], v%d, s[%d:%d], s%d offen" % (Mg, Mg + 3, T1, sWs, sWs + 3, sT[1])], sLoc)
    a("  s_mov_b64 exec, -1")
    a("  v_lshrrev_b32 v%d, 1, v%d" % (T1, hI))
    a("  v_lshlrev_b32 v%d, 4, v%d" % (T1, T1))
    mj = hA + 8
    lr, lo = a.lab("Lr"), a.lab("Lo")
    a("  s_mov_b32 s%d, 0" % sCnt)
    a("%s:" % lr)
    a("  buffer_load_dwordx4 v[%d:%d], v%d, s[%d:%d], s%d offen sc1" % (mj, mj + 3, T1, sWs, sWs + 3, sT[0]))
    a("  s_waitcnt vmcnt(0)")
    tag_retry(range(mj, mj + 4), lr, lo, T2, T3, ffn_sleep)
    a("%s:" % lo)
    a("  s_mov_b64 exec, -1")
    a("  v_and_b32 v%d, 1, v%d" % (T2, hI))
    a("  v_cmp_eq_u32 vcc, 1, v%d" % T2)
    a("  s_nop 1")
    a("  v_cndmask_b32 v%d, v%d, v%d, vcc" % (mj, mj, mj + 2))
    a("  v_cndmask_b32 v%d, v%d, v%d, vcc" % (mj + 1, mj + 1, mj + 3))
    lj = mj + 1
    a("  v_and_b32 v%d, s%d, v%d" % (mj, sNotFF, mj))
    a("  v_and_or_b32 v%d, v%d, s%d, v%d" % (lj, lj, sNotFF, hMid))
    M2, L2 = hA + 12, hA + 13
    a("  v_mov_b32 v%d, v%d" % (M2, mj))
    a("  s_nop 1")
    a("  v_max_f32_dpp v%d, v%d, v%d row_ror:4 %s" % (M2, M2, M2, DPP))
    a("  s_nop 1")
    a("  v_max_f32_dpp v%d, v%d, v%d row_ror:8 %s" % (M2, M2, M2, DPP))
    a("  v_sub_f32 v%d, v%d, v%d" % (t_, mj, M2))
    a("  v_mul_f32 v%d, s%d, v%d" % (t_, sT[2], t_))
    a("  v_exp_f32 v%d, v%d" % (t_, t_))
    a("  s_nop 0")
    a("  v_mul_f32 v%d, v%d, v%d" % (L2, lj, t_))
    a("  s_nop 1")
    a("  v_add_f32_dpp v%d, v%d, v%d row_ror:4 %s" % (L2, L2, L2, DPP))
    a("  s_nop 1")
    a("  v_add_f32_dpp v%d, v%d, v%d row_ror:8 %s" % (L2, L2, L2, DPP))
    a("  v_sub_f32 v%d, v%d, v%d" % (t_, mw, M2))
    a("  v_mul_f32 v%d, s%d, v%d" % (t_, sT[2], t_))
    a("  v_exp_f32 v%d, v%d" % (t_, t_))
    a("  v_rcp_f32 v%d, v%d" % (L2, L2))
    a("  s_nop 0")
    a("  v_mul_f32 v%d, v%d, v%d" % (t_, t_, L2))
    a("  v_and_b32 v%d, 3, v%d" % (T0, hI))
    a("  v_lshlrev_b32 v%d, 4, v%d" % (T0, T0))
    a("  v_lshrrev_b32 v%d, 2, v%d" % (T1, hI))
    a("  v_lshl_add_u32 v%d, v%d, 2, v%d" % (T0, T1, T0))
    a("  v_add_u32 v%d, v%d, v%d" % (T0, T0, hMisc))
    a("  s_mov_b64 exec, 0xffff")
    a("  ds_write_b32 v%d, v%d offset:%d" % (T0, t_, FFAC))
    a("  s_mov_b64 exec, -1")
    a("  s_waitcnt lgkmcnt(0)")
    if nob1:
        lds_add(hMisc, F_F, hOne)
    a("  s_branch L_B1")

    def reduce_hd(base, tmp):
        a("  s_nop 1")
        for k in range(4):
            a("  v_add_f32_dpp v%d, v%d, v%d row_ror:4 %s" % (base + k, base + k, base + k, DPP))
        a("  s_nop 1")
        for k in range(4):
            a("  v_add_f32_dpp v%d, v%d, v%d row_ror:8 %s" % (base + k, base + k, base + k, DPP))
        for kind in (16, 32):
            for k in range(4):
                a("  v_mov_b32 v%d, v%d" % (tmp + k, base + k))
            a("  s_nop 1")
            for k in range(4):
                a("  v_permlane%d_swap_b32 v%d, v%d" % (kind, base + k, tmp + k))
            pk("v_pk_add_f32", base, base, tmp)
            pk("v_pk_add_f32", base + 2, base + 2, tmp + 2)

    def reduce_rows(base):
        a("  s_nop 1")
        for k in range(4):
            a("  v_add_f32_dpp v%d, v%d, v%d row_ror:4 %s" % (base + k, base + k, base + k, DPP))
        a("  s_nop 1")
        for k in range(4):
            a("  v_add_f32_dpp v%d, v%d, v%d row_ror:8 %s" % (base + k, base + k, base + k, DPP))
        a("  s_nop 0")
        a("  v_permlane16_swap_b32 v%d, v%d" % (base, base + 1))
        a("  v_permlane16_swap_b32 v%d, v%d" % (base + 2, base + 3))
        a("  v_add_f32 v%d, v%d, v%d" % (base, base, base + 1))
        a("  v_add_f32 v%d, v%d, v%d" % (base + 2, base + 2, base + 3))
        a("  s_nop 1")
        a("  v_permlane32_swap_b32 v%d, v%d" % (base, base + 2))
        a("  v_add_f32 v%d, v%d, v%d" % (base, base, base + 2))

    a("L_fin_prep:")
    gp_store(False)
    lds_wait(hMisc, F_LATE, 1, T5, sleep=8)
    if rowfin:
        a("  buffer_load_ushort v%d, v%d, s[%d:%d], 0 offen" % (hA + 8, hOutOff, sXd, sXd + 3))
    else:
        a("  buffer_load_dwordx2 v[%d:%d], v%d, s[%d:%d], 0 offen" % (hA + 8, hA + 9, hOutOff, sXd, sXd + 3))
    a("  v_lshlrev_b32 v%d, 4, v0" % T0)
    a("  s_lshl_b32 s%d, s%d, 11" % (sT[0], sFidx))
    a("  s_add_u32 s%d, s%d, %d" % (sT[0], sT[0], DP))
    for k in range(4):
        a("  v_mov_b32 v%d, v%d" % (hA + 4 + k, hTag))
    lr, lo = a.lab("Lr"), a.lab("Lo")
    a("  s_mov_b32 s%d, 0" % sCnt)
    a("%s:" % lr)
    NT = " nt" if gnt & 4 else ""
    a("  buffer_load_dwordx4 v[%d:%d], v%d, s[%d:%d], s%d offen sc1%s" % (hA, hA + 3, T0, sWs, sWs + 3, sT[0], NT))
    a("  s_mov_b64 s[%d:%d], exec" % (sT[4], sT[5]))
    a("  s_and_b32 exec_hi, exec_hi, 0xffff")
    ls = a.lab("Ls")
    a("  s_cbranch_execz %s" % ls)
    a("  buffer_load_dwordx4 v[%d:%d], v%d, s[%d:%d], s%d offen offset:1024 sc1%s" % (hA + 4, hA + 7, T0, sWs, sWs + 3, sT[0], NT))
    a("%s:" % ls)
    a("  s_mov_b64 exec, s[%d:%d]" % (sT[4], sT[5]))
    a("  s_waitcnt vmcnt(0)")
    tag_retry(range(hA, hA + 8), lr, lo, T2, T3, ffn_sleep)
    a("%s:" % lo)
    a("  s_mov_b64 exec, -1")
    untag(range(hA, hA + 8))
    pk("v_pk_add_f32", hA, hA, hA + 4)
    pk("v_pk_add_f32", hA + 2, hA + 2, hA + 6)
    hGv = hXf + 4
    if rowfin:
        reduce_rows(hA)
        round_bf16(hA)
        a("  s_mov_b32 s%d, 0xBFB8AA3B" % sT[2])
        a("  v_mul_f32 v%d, s%d, v%d" % (hA + 4, sT[2], hA))
        a("  v_exp_f32 v%d, v%d" % (hA + 4, hA + 4))
        a("  s_nop 0")
        a("  v_add_f32 v%d, 1.0, v%d" % (hA + 4, hA + 4))
        a("  v_rcp_f32 v%d, v%d" % (hA + 4, hA + 4))
        a("  s_nop 0")
        a("  v_mul_f32 v%d, v%d, v%d" % (hGv, hA, hA + 4))
        round_bf16(hGv)
        a("  v_lshlrev_b32 v%d, 16, v%d" % (hXf, hA + 8))
    else:
        reduce_hd(hA, hA + 4)
        for k in range(4):
            round_bf16(hA + k)
        a("  s_mov_b32 s%d, 0xBFB8AA3B" % sT[2])
        for k in range(4):
            a("  v_mul_f32 v%d, s%d, v%d" % (hA + 4 + k, sT[2], hA + k))
        for k in range(4):
            a("  v_exp_f32 v%d, v%d" % (hA + 4 + k, hA + 4 + k))
        a("  s_nop 0")
        for k in range(4):
            a("  v_add_f32 v%d, 1.0, v%d" % (hA + 4 + k, hA + 4 + k))
        for k in range(4):
            a("  v_rcp_f32 v%d, v%d" % (hA + 4 + k, hA + 4 + k))
        a("  s_nop 0")
        for k in range(4):
            a("  v_mul_f32 v%d, v%d, v%d" % (hGv + k, hA + k, hA + 4 + k))
        for k in range(4):
            round_bf16(hGv + k)
        a("  v_lshlrev_b32 v%d, 16, v%d" % (hXf, hA + 8))
        a("  v_and_b32 v%d, s%d, v%d" % (hXf + 1, sHi2, hA + 8))
        a("  v_lshlrev_b32 v%d, 16, v%d" % (hXf + 2, hA + 9))
        a("  v_and_b32 v%d, s%d, v%d" % (hXf + 3, sHi2, hA + 9))

    stamp("prep done")

    a("L_B1:")
    lds_wait(hMisc, F_LOC, 1, T5, sleep=8)
    a("  s_lshr_b32 s%d, s%d, 1" % (sLoc, sT[7]))
    a("  v_lshlrev_b32 v%d, 7, v%d" % (T0, hI))
    a("  v_lshl_add_u32 v%d, v%d, 5, v%d" % (T0, hG, T0))
    a("  s_lshl_b32 s%d, s%d, 14" % (sT[0], sHq))
    a("  s_lshl_b32 s%d, s%d, 11" % (sT[1], sHW))
    a("  s_add_u32 s%d, s%d, s%d" % (sT[0], sT[0], sT[1]))
    a("  s_add_u32 s%d, s%d, %d" % (sT[0], sT[0], OP))
    a("  s_add_u32 s%d, s%d, 8192" % (sT[1], sT[0]))
    a("  v_lshlrev_b32 v%d, 8, v%d" % (T1, hG))
    a("  v_lshl_add_u32 v%d, v%d, 2, v%d" % (T1, hI, T1))
    a("  s_lshl_b32 s%d, s%d, 11" % (sT[2], sHW))
    a("  s_add_u32 s%d, s%d, %d" % (sT[2], sT[2], WOS))
    a("  v_add_u32 v%d, s%d, v%d" % (T1, sT[2], T1))
    hP0, hP1, hQ0 = 157, 158, 159
    sP, sQ = 57, 58
    sSelH = 55
    a("  s_mov_b32 s%d, 0x07060302" % sSelH)
    a("  s_sub_u32 s%d, s%d, 2" % (sT[3], sHW))
    a("  s_lshl_b32 s%d, s%d, 10" % (sT[4], sT[3]))
    a("  s_add_u32 s%d, s%d, %d" % (sT[4], sT[4], WOS))
    a("  v_lshlrev_b32 v%d, 8, v%d" % (hP0, hG))
    a("  v_lshl_add_u32 v%d, v%d, 4, v%d      ; g*256 + i*16" % (hP0, hI, hP0))
    a("  v_add_u32 v%d, s%d, v%d" % (hP0, sT[4], hP0))
    a("  v_lshlrev_b32 v%d, 16, v%d" % (hP1, hG))
    a("  v_lshrrev_b32 v%d, 3, v%d" % (T2, hI))
    a("  v_lshl_add_u32 v%d, v%d, 12, v%d" % (hP1, T2, hP1))
    a("  v_and_b32 v%d, 7, v%d" % (T2, hI))
    a("  v_lshl_add_u32 v%d, v%d, 4, v%d" % (hP1, T2, hP1))
    a("  s_lshl_b32 s%d, s%d, 18" % (sT[3], sT[3]))
    a("  s_lshl_b32 s%d, s%d, 13" % (sT[4], sB))
    a("  s_add_u32 s%d, s%d, s%d" % (sT[3], sT[3], sT[4]))
    a("  s_lshl_b32 s%d, s%d, 7" % (sT[4], sHq))
    a("  s_add_u32 s%d, s%d, s%d" % (sT[3], sT[3], sT[4]))
    a("  s_add_u32 s%d, s%d, %d" % (sP, sT[3], SP))
    a("  v_lshrrev_b32 v%d, 2, v0" % hQ0)
    a("  v_lshlrev_b32 v%d, 7, v%d" % (hQ0, hQ0))
    a("  v_and_b32 v%d, 3, v0" % T2)
    a("  v_lshl_add_u32 v%d, v%d, 4, v%d" % (hQ0, T2, hQ0))
    a("  s_lshr_b32 s%d, s%d, 1" % (sT[3], sFidx))
    a("  s_lshl_b32 s%d, s%d, 12" % (sT[3], sT[3]))
    a("  s_and_b32 s%d, s%d, 1" % (sT[4], sFidx))
    a("  s_lshl_b32 s%d, s%d, 6" % (sT[4], sT[4]))
    a("  s_add_u32 s%d, s%d, s%d" % (sT[3], sT[3], sT[4]))
    a("  s_add_u32 s%d, s%d, %d" % (sQ, sT[3], SP))
    lw0 = a.lab("Lew")
    a("  s_cmp_lg_u32 s%d, 0" % sHW)
    a("  s_cbranch_scc1 %s" % lw0)
    a("  v_lshlrev_b32 v%d, 4, v0" % T5)
    a("  s_lshl_b32 s%d, s%d, 9" % (sT[2], sX))
    a("  s_add_u32 s%d, s%d, %d" % (sT[2], sT[2], EW))
    lr, lo = a.lab("Lr"), a.lab("Lo")
    a("  s_mov_b32 s%d, 0" % sCnt)
    a("  s_mov_b32 exec_hi, 0")
    a("%s:" % lr)
    a("  buffer_load_dwordx4 v[%d:%d], v%d, s[%d:%d], s%d offen sc1" % (hA, hA + 3, T5, sWs, sWs + 3, sT[2]))
    a("  s_waitcnt vmcnt(0)")
    tag_retry(range(hA, hA + 4), lr, lo, T2, T3, (8, 64))
    a("%s:" % lo)
    a("  s_mov_b64 exec, -1")
    if nob1:
        lw1 = a.lab("Lew")
        lds_add(hMisc, F_EW2, hOne)
        if gew:
            lg_ = a.lab("Lgew")
            a("  s_cmp_lg_u32 s%d, 0" % sLi)
            a("  s_cbranch_scc1 %s" % lg_)
            for k in range(4):
                a("  v_mov_b32 v%d, v%d" % (hA + k, hTag))
            a("  s_lshl_b32 s%d, s%d, 4" % (sT[2], sX))
            a("  s_add_u32 s%d, s%d, %d" % (sT[2], sT[2], GEW))
            a("  v_mov_b32 v%d, 0" % T5)
            a("  s_mov_b64 exec, 1")
            a("  buffer_store_dwordx4 v[%d:%d], v%d, s[%d:%d], s%d offen sc1" % (hA, hA + 3, T5, sWs, sWs + 3, sT[2]))
            a("  s_mov_b64 exec, -1")
            a("%s:" % lg_)
        a("  s_branch %s" % lw1)
        a("%s:" % lw0)
        lds_wait(hMisc, F_EW2, 1, T5, sleep=2)
        a("%s:" % lw1)
    else:
        a("%s:" % lw0)
        a("  s_barrier                      ; B1")
    stamp("B1")
    lr, lo = a.lab("Lr"), a.lab("Lo")
    a("  s_mov_b32 s%d, 0" % sCnt)
    for rt in range(2):
        a("  buffer_load_dwordx4 v[%d:%d], v%d, s[%d:%d], s%d offen sc1" % (hA + 8 * rt, hA + 8 * rt + 3, T0, sWs, sWs + 3, sT[rt]))
        a("  buffer_load_dwordx4 v[%d:%d], v%d, s[%d:%d], s%d offen offset:16 sc1" % (hA + 8 * rt + 4, hA + 8 * rt + 7, T0, sWs, sWs + 3, sT[rt]))
    if nob1 and gate_t0:
        lds_wait(hMisc, F_T0, 4, T5, sleep=1)
        a("  s_mov_b32 s%d, 0" % sCnt)
        a("  s_branch %s_c" % lr)
    else:
        a("  s_branch %s_c" % lr)
    a("%s:" % lr)
    for rt in range(2):
        a("  buffer_load_dwordx4 v[%d:%d], v%d, s[%d:%d], s%d offen sc1" % (hA + 8 * rt, hA + 8 * rt + 3, T0, sWs, sWs + 3, sT[rt]))
        a("  buffer_load_dwordx4 v[%d:%d], v%d, s[%d:%d], s%d offen offset:16 sc1" % (hA + 8 * rt + 4, hA + 8 * rt + 7, T0, sWs, sWs + 3, sT[rt]))
    a("%s_c:" % lr)
    a("  s_waitcnt vmcnt(0)")
    tag_retry(range(hA, hA + 16), lr, lo, T2, T3, (hop_sleep, 4))
    a("%s:" % lo)
    a("  s_mov_b64 exec, -1")
    stamp("hop1 ok")
    for k in range(8):
        a("  v_perm_b32 v%d, v%d, v%d, s%d" % (hB + k, hA + 2 * k + 1, hA + 2 * k, sSelH))
    a("  s_nop 1")
    for rt in range(2):
        for ct in range(4):
            d = hD + (rt * 4 + ct) * 4
            a("  v_mfma_f32_16x16x32_bf16 v[%d:%d], v[%d:%d], v[%d:%d], 0" % (d, d + 3, hB + 4 * rt, hB + 4 * rt + 3, hW + ct * 4, hW + ct * 4 + 3))
    a("  s_nop 0")
    for n in range(8):
        d = hD + n * 4
        pk("v_pk_add_f32", d, d, d + 2)
        a("  v_add_f32 v%d, v%d, v%d" % (d, d, d + 1))
    for rt in range(2):
        for ct in range(4):
            d = hD + (rt * 4 + ct) * 4
            a("  ds_write_b32 v%d, v%d offset:%d" % (T1, d, rt * 1024 + ct * 64))
    a("  s_waitcnt lgkmcnt(0)")
    a("  s_barrier")
    a("  s_cmp_eq_u32 s%d, 0" % sHW)
    a("  s_cbranch_scc1 L_hop2")
    a("  s_cmp_eq_u32 s%d, 1" % sHW)
    a("  s_cbranch_scc1 L_H_done")
    for w in range(4):
        a("  ds_read_b128 v[%d:%d], v%d offset:%d" % (hA + 4 * w, hA + 4 * w + 3, hP0, w * 2048))
    a("  s_waitcnt lgkmcnt(2)")
    for k in (0, 2):
        pk("v_pk_add_f32", hA + k, hA + k, hA + 4 + k)
    a("  s_waitcnt lgkmcnt(0)")
    for k in (0, 2):
        pk("v_pk_add_f32", hA + 8 + k, hA + 8 + k, hA + 12 + k)
    for k in (0, 2):
        pk("v_pk_add_f32", hA + k, hA + k, hA + 8 + k)
    for k in range(4):
        tag(hA + k)
    a("  buffer_store_dwordx4 v[%d:%d], v%d, s[%d:%d], s%d offen sc1" % (hA, hA + 3, hP1, sWs, sWs + 3, sP))
    a("  s_endpgm")

    a("L_hop2:")
    stamp("B2")

    def tag_check(rs, t0_, t1_):
        rs = list(rs)
        for k in range(0, len(rs), 4):
            a("  v_perm_b32 v%d, v%d, v%d, s%d" % (t1_, rs[k + 1], rs[k], sSelA))
            a("  v_perm_b32 v%d, v%d, v%d, s%d" % (t1_ + 1, rs[k + 3], rs[k + 2], sSelB))
            if k == 0:
                a("  v_or_b32 v%d, v%d, v%d" % (t0_, t1_, t1_ + 1))
                a("  v_xor_b32 v%d, s%d, v%d" % (t0_, sTag4, t0_))
            else:
                a("  v_or_b32 v%d, v%d, v%d" % (t1_, t1_, t1_ + 1))
                a("  v_xor_b32 v%d, s%d, v%d" % (t1_, sTag4, t1_))
                a("  v_or_b32 v%d, v%d, v%d" % (t0_, t0_, t1_))
        a("  v_cmp_ne_u32 vcc, 0, v%d" % t0_)

    FR = hA
    if gew:
        a("  v_lshlrev_b32 v%d, 4, v0" % T5)
        a("  s_mov_b32 s%d, %d" % (sT[2], GEW))
        lr, lo = a.lab("Lr"), a.lab("Lo")
        a("  s_mov_b32 s%d, 0" % sCnt)
        a("  s_mov_b64 exec, 0xff")
        a("%s:" % lr)
        a("  buffer_load_dwordx4 v[%d:%d], v%d, s[%d:%d], s%d offen sc1" % (hA, hA + 3, T5, sWs, sWs + 3, sT[2]))
        a("  s_waitcnt vmcnt(0)")
        tag_retry(range(hA, hA + 4), lr, lo, T2, T3, 4)
        a("%s:" % lo)
        a("  s_mov_b64 exec, -1")
    if pipe2:
        SA, SB, FR = hA, hA + 8, hB
        sMk = sT[4]
        def ld(R):
            a("  buffer_load_dwordx4 v[%d:%d], v%d, s[%d:%d], s%d offen sc1" % (R, R + 3, hQ0, sWs, sWs + 3, sQ))
            a("  buffer_load_dwordx4 v[%d:%d], v%d, s[%d:%d], s%d offen offset:2048 sc1" % (R + 4, R + 7, hQ0, sWs, sWs + 3, sQ))
        lp, ld_ = a.lab("Lp"), a.lab("Lpd")
        a("  s_mov_b64 s[%d:%d], -1" % (sMk, sMk + 1))
        a("  s_mov_b32 s%d, 0" % sCnt)
        ld(SA)
        a("%s:" % lp)
        for cur, nxt in ((SA, SB), (SB, SA)):
            ld(nxt)
            a("  s_waitcnt vmcnt(2)")
            tag_check(range(cur, cur + 8), T2, T3)
            lsk = a.lab("Lsk")
            a("  s_andn2_b64 exec, s[%d:%d], vcc" % (sMk, sMk + 1))
            a("  s_cbranch_execz %s" % lsk)
            for k in range(8):
                a("  v_mov_b32 v%d, v%d" % (FR + k, cur + k))
            a("%s:" % lsk)
            a("  s_mov_b64 s[%d:%d], vcc" % (sMk, sMk + 1))
            a("  s_cbranch_vccz %s" % ld_)
            a("  s_mov_b64 exec, vcc")
        a("  s_add_u32 s%d, s%d, 1" % (sCnt, sCnt))
        a("  s_cmp_lt_u32 s%d, %d" % (sCnt, SPIN_LIMIT))
        a("  s_cbranch_scc1 %s" % lp)
        a("%s:" % ld_)
        a("  s_mov_b64 exec, -1")
    else:
        lr, lo = a.lab("Lr"), a.lab("Lo")
        a("  s_mov_b32 s%d, 0" % sCnt)
        a("%s:" % lr)
        a("  buffer_load_dwordx4 v[%d:%d], v%d, s[%d:%d], s%d offen sc1" % (hA, hA + 3, hQ0, sWs, sWs + 3, sQ))
        a("  buffer_load_dwordx4 v[%d:%d], v%d, s[%d:%d], s%d offen offset:2048 sc1" % (hA + 4, hA + 7, hQ0, sWs, sWs + 3, sQ))
        a("  s_waitcnt vmcnt(0)")
        tag_retry(range(hA, hA + 8), lr, lo, T2, T3, h2_sleep)
        a("%s:" % lo)
        a("  s_mov_b64 exec, -1")
    stamp("hop2 ok")
    untag(range(FR, FR + 8))
    pk("v_pk_add_f32", FR, FR, FR + 4)
    pk("v_pk_add_f32", FR + 2, FR + 2, FR + 6)
    if rowfin:
        reduce_rows(FR)
        round_bf16(FR)
        a("  v_mul_f32 v%d, v%d, v%d" % (FR, FR, hGv))
        round_bf16(FR)
        a("  v_add_f32 v%d, v%d, v%d" % (FR, FR, hXf))
        a("  v_cvt_pk_bf16_f32 v%d, v%d, v%d" % (FR, FR, FR))
        a("  s_mov_b32 exec_lo, 0x000f000f")
        a("  s_mov_b32 exec_hi, 0x000f000f")
        a("  buffer_store_short v%d, v%d, s[%d:%d], 0 offen" % (FR, hOutOff, sOut, sOut + 3))
        a("  s_mov_b64 exec, -1")
    else:
        reduce_hd(FR, FR + 4)
        for k in range(4):
            round_bf16(FR + k)
        for k in range(4):
            a("  v_mul_f32 v%d, v%d, v%d" % (FR + k, FR + k, hGv + k))
        for k in range(4):
            round_bf16(FR + k)
        for k in range(4):
            a("  v_add_f32 v%d, v%d, v%d" % (FR + k, FR + k, hXf + k))
        a("  v_cvt_pk_bf16_f32 v%d, v%d, v%d" % (FR, FR, FR + 1))
        a("  v_cvt_pk_bf16_f32 v%d, v%d, v%d" % (FR + 1, FR + 2, FR + 3))
        a("  s_mov_b64 exec, 15")
        a("  buffer_store_dwordx2 v[%d:%d], v%d, s[%d:%d], 0 offen" % (FR, FR + 1, hOutOff, sOut, sOut + 3))
        a("  s_mov_b64 exec, -1")

    le = a.lab("Le")
    a("  s_cmp_lg_u32 s2, 0")
    a("  s_cbranch_scc1 %s" % le)
    a("  s_add_u32 s%d, s%d, 1" % (sT[0], sEp))
    a("  v_mov_b32 v%d, s%d" % (hD, sT[0]))
    a("  v_mov_b32 v%d, %d" % (T0, EPOCH))
    a("  s_mov_b64 exec, 1")
    a("  buffer_store_dword v%d, v%d, s[%d:%d], 0 offen" % (hD, T0, sWs, sWs + 3))
    a("  s_mov_b64 exec, -1")
    a("%s:" % le)
    stamp("end")
    if dbgtime:
        a("  s_memrealtime s[98:99]")
        a("  s_load_dwordx2 s[92:93], s[0:1], 80")
        a("  s_waitcnt lgkmcnt(0)")
        a("  s_mov_b32 s94, 256")
        a("  s_mov_b32 s95, 0x20000")
        a("  v_mov_b32 v%d, s100" % (hD + 2))
        a("  s_not_b32 s100, s100")
        a("  v_mov_b32 v%d, s100" % hD)
        a("  v_mov_b32 v%d, s98" % (hD + 1))
        a("  v_mov_b32 v%d, 0" % T0)
        a("  s_mov_b64 exec, 1")
        a("  buffer_atomic_umax v%d, v%d, s[92:95], 0 offen offset:40 sc1" % (hD, T0))
        a("  buffer_atomic_umax v%d, v%d, s[92:95], 0 offen offset:44 sc1" % (hD + 2, T0))
        a("  buffer_atomic_umax v%d, v%d, s[92:95], 0 offen offset:48 sc1" % (hD + 1, T0))
        a("  s_mov_b64 exec, -1")
    a("L_tsdump:")
    if ts:
        a("  s_waitcnt lgkmcnt(0)")
        a("  s_lshl_b32 s%d, s2, 8" % sT[0])
        a("  s_add_u32 s%d, s%d, %d" % (sT[0], sT[0], TSOFF + 0x10000))
        a("  v_mov_b32 v%d, 0" % T2)
        a("  s_mov_b64 exec, 1")
        for i in range(len(names["H"])):
            a("  v_mov_b32 v%d, s%d" % (hA, TS0 + 2 * i))
            a("  v_mov_b32 v%d, s%d" % (hA + 1, TS0 + 2 * i + 1))
            a("  buffer_store_dwordx2 v[%d:%d], v%d, s[%d:%d], s%d offen offset:%d" % (hA, hA + 1, T2, sWs, sWs + 3, sT[0], 8 * i))
            a("  s_waitcnt vmcnt(0)")
        a("  s_mov_b64 exec, -1")
    a("  s_waitcnt vmcnt(0)")
    a("L_H_done:")
    a("L_end:")
    a("  s_endpgm")
    a("L_code_end:")

    lines = a.lines
    iH = lines.index("L_H:")
    iB0 = [k for k in range(iH, len(lines)) if "s_barrier" in lines[k] and "B0" in lines[k]][0]
    iE = iB0 + 1
    if ts and "s_memrealtime" in lines[iE]:
        iE += 1
    hpro = lines[iH + 1:iE]
    rest = lines[:iH] + ["L_H2:"] + lines[iE:]
    ib = [k for k, l in enumerate(rest) if l.strip() == "s_cbranch_scc1 L_H"][0]
    if layout:
        rest = rest[:ib] + ["  s_cbranch_scc0 L_S"] + hpro + ["  s_branch L_H2"] + rest[ib + 1:]
    else:
        rest = lines
    a.lines = rest
    body = a.text()
    s = HEADER
    s += "; @launch grid=(256,1,1) block=(512,1,1) lds=%d\n" % LDS_TOTAL
    s += '.amdgcn_target "amdgcn-amd-amdhsa--gfx950"\n.text\n'
    s += ".globl %s\n.p2align 8\n.type %s,@function\n%s:\n" % (KNAME, KNAME, KNAME)
    s += body
    s += """
.section .rodata,"a"
.p2align 6
.amdhsa_kernel %s
  .amdhsa_next_free_vgpr %d
  .amdhsa_next_free_sgpr 102
  .amdhsa_accum_offset %d
  .amdhsa_group_segment_fixed_size 0
  .amdhsa_kernarg_size 96
  .amdhsa_user_sgpr_count 2
  .amdhsa_user_sgpr_kernarg_segment_ptr 1
  .amdhsa_system_sgpr_workgroup_id_x 1
.end_amdhsa_kernel
""" % (KNAME, NV, NV)
    gen.names = names
    return s


if __name__ == "__main__":
    kw = {}
    out = "main.s"
    for arg in sys.argv[1:]:
        if "=" in arg:
            k, v = arg.split("=")
            kw[k] = int(v)
        else:
            out = arg
    open(out, "w").write(gen(**kw))
    import json
    json.dump(gen.names, open(out[:-2] + ".names.json", "w"))
    print("wrote", out)
```

```python
import sys
from asmlib import HEADER, KNAME

QP = 0x000000
GP = 0x080000
HH = 0x0F0000
OP = 0x100000
ST = 0x180000
DP = 0x190000
SP = 0x210000
EPOCH = 0x0FF000
EW = 0x2A0000
GEW = 0x2A2000
TSOFF = 0x0F000000

RING = 32768
MISC = 131072
XN = MISC
XN_STRIDE = 1040
QL = MISC + 8448
QL_STRIDE = 272
WOS = QL + 1088
WOS = (WOS + 255) // 256 * 256
FLG = WOS + 16384
F_H1 = 0; F_H3 = 8; F_QRDY = 16; F_STG = 20; F_ST = 24; F_HOP1 = 32; F_EW = 36; F_RED = 40; F_DOWN = 44; F_LATE = 48; F_EWS = 52; F_LOC = 56; F_MID = 60; F_T0 = 4; F_F = 12; F_EW2 = 28; F_GO = 32
SSTAT = 64
FFAC = 192
SPARE = FLG + 256
LDS_TOTAL = SPARE + 4096
assert LDS_TOTAL <= 163840, LDS_TOTAL
SPIN_LIMIT = 4000000


class Asm:
    def __init__(self):
        self.lines = []
        self.nlab = 0

    def __call__(self, s=""):
        for l in s.split("\n"):
            self.lines.append(l)

    def lab(self, base="L"):
        self.nlab += 1
        return "%s_%d" % (base, self.nlab)

    def text(self):
        return "\n".join(self.lines) + "\n"


def vr(base, n=1):
    return "v%d" % base if n == 1 else "v[%d:%d]" % (base, base + n - 1)


def sr(base, n=1):
    return "s%d" % base if n == 1 else "s[%d:%d]" % (base, base + n - 1)


DPP = "row_mask:0xf bank_mask:0xf"


def gen(ts=False, dbg=0, rotmode=3, depth=8, noq=0, noffn=0, hop_sleep=0, ew_it=3, dbgtime=0, noh=0, ffn_sleep=24, skip=0, st_sleep=4, late_it=1, uselocal=1, mid_it=2, r4=0, gnt=0, xnt=0, pf=1, b0pos=0, la=1, gplocal=0, early_census=1, layout=1, presm=0, pipe2=0, h2_sleep=0, sprio=0, dfill=0, dk=0, locnt=0, nob1=1, early_ka=1, gate_t0=1, gew=0, rdv=0, rdv_unit=2, opsc1=0, wide_ka=0, t0par=1, rowfin=1, wolate=0):
    a = Asm()
    sW, sX, sLi, sCnt = 3, 4, 5, 6
    sT = [20, 21, 22, 23, 24, 25, 26, 27]
    TS0 = 68
    nts = [0]

    names = {"S": ["start"], "H": ["start"]}
    role = ["S"]

    def stamp(name):
        if name == 0:
            if ts:
                a("  s_memrealtime s[%d:%d]" % (TS0, TS0 + 1))
            return
        lst = names[role[0]]
        if name not in lst:
            lst.append(name)
        idx = lst.index(name)
        assert TS0 + 2 * idx + 1 <= 101
        if ts:
            a("  s_memrealtime s[%d:%d]" % (TS0 + 2 * idx, TS0 + 2 * idx + 1))

    def lds_wait(vbase, off, n, vtmp, sleep=1):
        l0, l1 = a.lab("Lw"), a.lab("Lwd")
        a("  s_mov_b32 s%d, 0" % sCnt)
        a("%s:" % l0)
        a("  ds_read_b32 v%d, v%d offset:%d" % (vtmp, vbase, off))
        a("  s_waitcnt lgkmcnt(0)")
        a("  v_readfirstlane_b32 s%d, v%d" % (sT[7], vtmp))
        a("  s_cmp_ge_u32 s%d, %d" % (sT[7], n))
        a("  s_cbranch_scc1 %s" % l1)
        a("  s_add_u32 s%d, s%d, 1" % (sCnt, sCnt))
        a("  s_cmp_lt_u32 s%d, %d" % (sCnt, SPIN_LIMIT))
        a("  s_cbranch_scc0 %s" % l1)
        a("  s_sleep %d" % sleep)
        a("  s_branch %s" % l0)
        a("%s:" % l1)

    def lds_add(vbase, off, vone):
        a("  s_mov_b64 exec, 1")
        a("  ds_add_u32 v%d, v%d offset:%d" % (vbase, vone, off))
        a("  s_mov_b64 exec, -1")

    def store_loc(stores, sflag):
        l0, l1 = a.lab("Lsl"), a.lab("Lsl")
        a("  s_cmp_eq_u32 s%d, 0" % sflag)
        a("  s_cbranch_scc1 %s" % l0)
        for st in stores:
            a(st + (" nt" if locnt else ""))
        a("  s_branch %s" % l1)
        a("%s:" % l0)
        for st in stores:
            a(st + " sc1")
        a("%s:" % l1)

    def reduce_swap(op, v, t, kind):
        a("  v_mov_b32 v%d, v%d" % (t, v))
        a("  s_nop 1")
        a("  v_permlane%d_swap_b32 v%d, v%d" % (kind, v, t))
        a("  %s v%d, v%d, v%d" % (op, v, v, t))

    a("  s_cmp_ge_u32 s2, 256")
    a("  s_cbranch_scc1 L_end")
    if early_ka and wide_ka:
        a("  s_load_dwordx16 s[68:83], s[0:1], 0")
        a("  s_load_dwordx8 s[84:91], s[0:1], 64")
    elif early_ka:
        a("  s_load_dwordx2 s[8:9], s[0:1], 0             ; x")
        a("  s_load_dwordx2 s[52:53], s[0:1], 8           ; K")
        a("  s_load_dwordx2 s[12:13], s[0:1], 24          ; wq")
        a("  s_load_dwordx2 s[16:17], s[0:1], 88          ; ws")
        a("  s_load_dwordx2 s[60:61], s[0:1], 16          ; V")
        a("  s_load_dwordx4 s[56:59], s[0:1], 48")
    stamp(0)
    if dbgtime:
        a("  s_memrealtime s[100:101]")
    a("  v_lshrrev_b32 v1, 6, v0")
    a("  v_and_b32 v0, 63, v0            ; lane")
    a("  v_readfirstlane_b32 s%d, v1     ; wave id" % sW)
    a("  s_and_b32 s%d, s2, 7" % sX)
    a("  s_lshr_b32 s%d, s2, 3" % sLi)
    a("  s_cmp_ge_u32 s%d, 4" % sW)
    a("  s_cbranch_scc1 L_H")

    sK, sV, sCur = 8, 12, 16
    if early_ka:
        sV, sCur = 60, 52
    sBaseW, sRot, sRing, sIss, sOff, sIt = 28, 29, 30, 31, 32, 33
    sOff1 = 50
    sLocS = 51
    sM = 34
    sScale, sHi = 42, 43
    vLane = 0
    vMisc, vOne = 2, 3
    vKo, vVo, vCo = 4, 8, 12
    vKa = 16
    vVa = 20
    vTmp = 28
    vSp = 36
    vPf = 44
    vAcc = 52
    vE = 56
    vSt = 72
    vO = 104
    vQ = 136
    NV = 200

    sWsS = 16 if early_ka else 44
    sEp = 48
    sBaseW1 = 49
    a("L_S:")
    if sprio:
        a("  s_setprio %d" % sprio)
    if pf:
        lpf = a.lab("Lpf")
        a("  s_cmp_lg_u32 s%d, 3" % sW)
        a("  s_cbranch_scc1 %s" % lpf)
        a("  s_and_b32 s%d, s%d, 15" % (sT[0], sLi))
        a("  s_cmp_lg_u32 s%d, 0" % sT[0])
        a("  s_cbranch_scc1 %s" % lpf)
        a("  s_getpc_b64 s[%d:%d]" % (sT[2], sT[3]))
        a("L_pc:")
        a("  v_lshlrev_b32 v%d, 7, v%d" % (vTmp + 2, vLane))
        a("  v_add_u32 v%d, 0x2000, v%d" % (vTmp + 3, vTmp + 2))
        a("  global_load_dword v%d, v%d, s[%d:%d]" % (vSt, vTmp + 2, sT[2], sT[3]))
        a("  v_cmp_gt_u32 vcc, L_code_end-L_pc, v%d" % (vTmp + 3))
        a("  s_and_saveexec_b64 s[%d:%d], vcc" % (sT[4], sT[5]))
        a("  s_cbranch_execz L_pf_done")
        a("  global_load_dword v%d, v%d, s[%d:%d]" % (vSt + 1, vTmp + 3, sT[2], sT[3]))
        a("L_pf_done:")
        a("  s_mov_b64 exec, -1")
        a("%s:" % lpf)
    if not early_ka:
        a("  s_load_dwordx2 s[%d:%d], s[0:1], 8" % (sCur, sCur + 1))
        a("  s_load_dwordx2 s[%d:%d], s[0:1], 16" % (sV, sV + 1))
        a("  s_load_dwordx2 s[%d:%d], s[0:1], 88" % (sWsS, sWsS + 1))
    a("  s_mov_b32 s%d, 0x4000000" % (sCur + 2))
    a("  s_mov_b32 s%d, 0x20000" % (sCur + 3))
    a("  s_lshr_b32 s%d, s%d, 2" % (sT[0], sLi))
    a("  s_lshl_b32 s%d, s%d, 3" % (sT[0], sT[0]))
    a("  s_add_u32 s%d, s%d, s%d" % (sT[0], sT[0], sX))
    a("  s_lshl_b32 s%d, s%d, 2" % (sT[0], sT[0]))
    a("  s_and_b32 s%d, s%d, 3" % (sT[1], sLi))
    a("  s_add_u32 s%d, s%d, s%d" % (sT[0], sT[0], sT[1]))
    a("  s_lshl_b32 s%d, s%d, 18" % (sT[0], sT[0]))
    a("  s_lshl_b32 s%d, s%d, 13" % (sT[1], sW))
    if r4:
        if r4 == 1:
            a("  s_lshl_b32 s%d, s%d, 12" % (sT[2], sLi))
        else:
            a("  s_lshr_b32 s%d, s%d, 2" % (sT[2], sLi))
            a("  s_add_u32 s%d, s%d, s%d" % (sT[2], sT[2], sX))
            a("  s_lshl_b32 s%d, s%d, 12" % (sT[2], sT[2]))
        a("  s_add_u32 s%d, s%d, s%d" % (sT[1], sT[1], sT[2]))
        a("  s_add_u32 s%d, s%d, 4096" % (sT[2], sT[1]))
        a("  s_and_b32 s%d, s%d, 0x7fff" % (sT[1], sT[1]))
        a("  s_and_b32 s%d, s%d, 0x7fff" % (sT[2], sT[2]))
        a("  s_add_u32 s%d, s%d, s%d" % (sBaseW, sT[0], sT[1]))
        a("  s_add_u32 s%d, s%d, s%d" % (sBaseW1, sT[0], sT[2]))
    else:
        a("  s_add_u32 s%d, s%d, s%d" % (sBaseW, sT[0], sT[1]))
        a("  s_add_u32 s%d, s%d, 4096" % (sBaseW1, sBaseW))
    if rotmode == 0:
        sRotR = 2
    elif rotmode == 3:
        sRotR = sLi
    else:
        a("  s_add_u32 s%d, s2, s%d" % (sRot, sLi))
        sRotR = sRot
    if rdv:
        a("  s_load_dwordx2 s[64:65], s[0:1], 80")
        a("  s_mov_b32 s66, 256")
        a("  s_mov_b32 s67, 0x20000")
    a("  s_lshl_b32 s%d, s%d, 15" % (sRing, sW))
    a("  s_mov_b32 s%d, 0" % sIss)
    t0, t1, t2 = vTmp, vTmp + 1, vTmp + 2
    a("  v_lshrrev_b32 v%d, 4, v%d      ; g = l>>4" % (t0, vLane))
    a("  v_and_b32 v%d, 15, v%d         ; c' = l&15" % (t1, vLane))
    for i in range(4):
        a("  v_add_u32 v%d, %d, v%d" % (t2, 4 * i, t0))
        a("  v_xor_b32 v%d, v%d, v%d" % (t2, t2, t1))
        a("  v_lshlrev_b32 v%d, 4, v%d" % (t2, t2))
        a("  v_lshl_add_u32 v%d, v%d, 8, v%d" % (vCo + i, t0, t2))
    a("  v_mov_b32 v%d, %d" % (vMisc, FLG))
    a("  v_mov_b32 v%d, 1" % vOne)
    a("  s_waitcnt lgkmcnt(0)")
    if wide_ka:
        a("  s_mov_b64 s[52:53], s[70:71]")
        a("  s_mov_b64 s[60:61], s[72:73]")
        a("  s_mov_b64 s[16:17], s[90:91]")
    a("  s_barrier                      ; B0")

    def issue_unit(switch=False, dep=None):
        depth_ = dep if dep else depth
        if switch:
            lsw = a.lab("Lsw")
            a("  s_cmp_lg_u32 s%d, 8" % sIss)
            a("  s_cbranch_scc1 %s" % lsw)
            for i in range(4):
                a("  s_mov_b32 s%d, s%d" % (sCur + i, sV + i))
            for i in range(4):
                a("  v_mov_b32 v%d, v%d" % (vCo + i, vVo + (i & 1)))
            a("%s:" % lsw)
        a("  s_add_u32 s%d, s%d, s%d" % (sT[0], sIss, sRotR))
        a("  s_and_b32 s%d, s%d, 7" % (sT[0], sT[0]))
        a("  s_lshl_b32 s%d, s%d, 15" % (sT[0], sT[0]))
        a("  s_add_u32 s%d, s%d, s%d" % (sOff, sT[0], sBaseW))
        a("  s_add_u32 s%d, s%d, s%d" % (sOff1, sT[0], sBaseW1))
        a("  s_and_b32 s%d, s%d, 3" % (sT[0], sIss))
        a("  s_lshl_b32 s%d, s%d, 13" % (sT[0], sT[0]))
        a("  s_add_u32 m0, s%d, s%d" % (sT[0], sRing))
        a("  s_add_u32 s%d, s%d, 1" % (sIss, sIss))
        a("  s_waitcnt vmcnt(%d)" % (depth_ - 1))
        for i in range(4):
            a("  buffer_load_dwordx4 v%d, s[%d:%d], s%d offen offset:%d nt lds" % (vCo + i, sCur, sCur + 3, sOff, i * 1024))
            if i < 3:
                a("  s_waitcnt vmcnt(%d)" % (depth_ - 1))
        a("  s_add_u32 m0, m0, 4096")
        a("  s_waitcnt vmcnt(%d)" % (depth_ - 1))
        for i in range(4):
            a("  buffer_load_dwordx4 v%d, s[%d:%d], s%d offen offset:%d nt lds" % (vCo + i, sCur, sCur + 3, sOff1, i * 1024))
            if i < 3:
                a("  s_waitcnt vmcnt(%d)" % (depth_ - 1))

    a("L_fill:")
    a("  s_cmp_lg_u32 s%d, 3" % sIss)
    a("  s_cbranch_scc1 L_fill_go")
    stamp("u2 issued")
    lds_wait(vMisc, F_STG, 4, vTmp + 5)
    stamp("STG ok")
    a("L_fill_go:")
    if rdv:
        lrd = a.lab("Lrd")
        a("  s_cmp_lg_u32 s%d, 0" % sW)
        a("  s_cbranch_scc1 %s" % lrd)
        a("  s_cmp_lg_u32 s%d, %d" % (sIss, rdv_unit))
        a("  s_cbranch_scc1 %s" % lrd)
        a("  s_lshl_b32 s%d, s%d, 5" % (sT[0], sX))
        a("  s_add_u32 s%d, s%d, 16" % (sT[0], sT[0]))
        a("  v_mov_b32 v%d, s%d" % (vTmp + 4, sT[0]))
        a("  s_waitcnt lgkmcnt(0)")
        a("  s_mov_b64 exec, 1")
        a("  buffer_atomic_add v%d, v%d, s[64:67], 0 offen sc1" % (vOne, vTmp + 4))
        a("  s_mov_b64 exec, -1")
        a("%s:" % lrd)
    issue_unit(dep=dfill)

    a("  s_cmp_lt_u32 s%d, 4" % sIss)
    a("  s_cbranch_scc1 L_fill")
    a("  s_load_dword s%d, s[%d:%d], 0x%x" % (sEp, sWsS, sWsS + 1, EPOCH))
    a("  s_mov_b32 s%d, 0x4000000" % (sV + 2))
    a("  s_mov_b32 s%d, 0x20000" % (sV + 3))
    a("  s_mov_b32 s%d, 0x10000000" % (sWsS + 2))
    a("  s_mov_b32 s%d, 0x20000" % (sWsS + 3))
    for i in range(2):
        a("  v_add_u32 v%d, %d, v%d" % (t2, 4 * i, t0))
        a("  v_lshlrev_b32 v%d, 1, v%d" % (t2, t2))
        a("  v_xor_b32 v%d, v%d, v%d" % (t2, t2, t1))
        a("  v_lshlrev_b32 v%d, 4, v%d" % (t2, t2))
        a("  v_lshl_add_u32 v%d, v%d, 8, v%d" % (vVo + i, t0, t2))
    for s in range(4):
        a("  v_add_u32 v%d, %d, v%d" % (t2, 4 * s, t0))
        a("  v_xor_b32 v%d, v%d, v%d" % (t2, t2, t1))
        a("  v_lshlrev_b32 v%d, 4, v%d" % (t2, t2))
        a("  v_lshl_add_u32 v%d, v%d, 8, v%d" % (t2, t1, t2))
        a("  v_add_u32 v%d, s%d, v%d" % (vKa + s, sRing, t2))
    t3, t4 = vTmp + 3, vTmp + 4
    a("  v_lshrrev_b32 v%d, 2, v%d" % (t2, t1))
    a("  v_lshl_add_u32 v%d, v%d, 2, v%d    ; row" % (t2, t0, t2))
    a("  v_and_b32 v%d, 7, v%d              ; row&7" % (t3, t2))
    a("  v_lshlrev_b32 v%d, 8, v%d" % (t2, t2))
    a("  v_and_b32 v%d, 3, v%d" % (t4, t1))
    a("  v_lshl_add_u32 v%d, v%d, 3, v%d" % (t2, t4, t2))
    a("  v_add_u32 v%d, s%d, v%d" % (t2, sRing, t2))
    for dt in range(8):
        a("  v_xor_b32 v%d, %d, v%d" % (t4, dt, t3))
        a("  v_lshl_add_u32 v%d, v%d, 5, v%d" % (vVa + dt, t4, t2))
    for i in range(64):
        a("  v_mov_b32 v%d, 0" % (vQ + i))
    a("  v_bfe_u32 v%d, v%d, 2, 2" % (t2, vLane))
    for t in range(4):
        a("  v_cmp_eq_u32 s[%d:%d], %d, v%d" % (sM + 2 * t, sM + 2 * t + 1, t, t2))
    a("  v_and_b32 v%d, 3, v%d" % (t2, vLane))
    a("  v_mul_u32_u24 v%d, %d, v%d" % (t2, QL_STRIDE, t2))
    a("  v_lshl_add_u32 v%d, v%d, 4, v%d" % (t2, t0, t2))
    a("  v_add_u32 v%d, %d, v%d" % (t2, QL, t2))
    a("  s_mov_b32 s%d, 0x3DB504F3      ; 128^-0.5" % sScale)
    a("  s_mov_b32 s%d, 0xffff0000" % sHi)
    stamp("fill done")
    if rdv:
        lrd, lrd2 = a.lab("Lrd"), a.lab("Lrd")
        a("  s_cmp_lg_u32 s%d, 0" % sW)
        a("  s_cbranch_scc1 %s" % lrd)
        a("  s_waitcnt vmcnt(0)")
        a("  v_lshlrev_b32 v%d, 5, v%d" % (vTmp + 4, vLane))
        a("  v_add_u32 v%d, 16, v%d" % (vTmp + 4, vTmp + 4))
        l0, l1 = a.lab("Lp"), a.lab("Lpd")
        a("  s_mov_b32 s%d, 0" % sCnt)
        a("  s_mov_b64 exec, 0xff")
        a("%s:" % l0)
        a("  buffer_load_dword v%d, v%d, s[64:67], 0 offen sc1" % (vTmp + 5, vTmp + 4))
        a("  s_waitcnt vmcnt(0)")
        a("  v_cmp_gt_u32 vcc, 32, v%d" % (vTmp + 5))
        a("  s_cbranch_vccz %s" % l1)
        a("  s_add_u32 s%d, s%d, 1" % (sCnt, sCnt))
        a("  s_cmp_lt_u32 s%d, %d" % (sCnt, SPIN_LIMIT))
        a("  s_cbranch_scc0 %s" % l1)
        a("  s_sleep 8")
        a("  s_branch %s" % l0)
        a("%s:" % l1)
        a("  s_mov_b64 exec, -1")
        lds_add(vMisc, F_GO, vOne)
        a("  s_branch %s" % lrd2)
        a("%s:" % lrd)
        lds_wait(vMisc, F_GO, 1, vTmp + 5, sleep=2)
        a("%s:" % lrd2)
        stamp("GO")
    if not noq:
        lds_wait(vMisc, F_QRDY, 4, vTmp + 5)
    stamp("Q ready")
    for t in range(4):
        a("  s_mov_b64 exec, s[%d:%d]" % (sM + 2 * t, sM + 2 * t + 1))
        for s in range(4):
            r = vQ + (t * 4 + s) * 4
            a("  ds_read_b128 v[%d:%d], v%d offset:%d" % (r, r + 3, t2, 64 * s))
    a("  s_mov_b64 exec, -1")
    a("  s_mov_b32 s%d, 0" % sIt)
    a("  s_waitcnt vmcnt(0) lgkmcnt(0)")

    a("L_k:")
    lmid = a.lab("Lmid")
    a("  s_cmp_lg_u32 s%d, 0" % sW)
    a("  s_cbranch_scc1 %s" % lmid)
    a("  s_cmp_lg_u32 s%d, %d" % (sIt, mid_it))
    a("  s_cbranch_scc1 %s" % lmid)
    lds_add(vMisc, F_MID, vOne)
    a("%s:" % lmid)
    for u in range(2):
        if u == 0:
            lsk = a.lab("Lsk")
            a("  s_cmp_lt_u32 s%d, %d" % (sIt, 3 if la == 1 else 2))
            a("  s_cbranch_scc1 %s" % lsk)
            issue_unit(switch=(la == 2), dep=dk)
            a("%s:" % lsk)
        else:
            issue_unit(switch=(la == 1), dep=dk)
        for hf in range(2):
            for s_ in range(4):
                r = vSt + (hf * 4 + s_) * 4
                a("  ds_read_b128 v[%d:%d], v%d offset:%d" % (r, r + 3, vKa + s_, u * 8192 + hf * 4096))
        for hf in range(2):
            a("  s_waitcnt lgkmcnt(%d)" % (4 if hf == 0 else 0))
            t = 2 * u + hf
            for s_ in range(4):
                r = vSt + (hf * 4 + s_) * 4
                q = vQ + (t * 4 + s_) * 4
                c = "0" if (u == 0 and hf == 0 and s_ == 0) else "v[%d:%d]" % (vAcc, vAcc + 3)
                a("  v_mfma_f32_16x16x32_bf16 v[%d:%d], v[%d:%d], v[%d:%d], %s" % (vAcc, vAcc + 3, r, r + 3, q, q + 3, c))
    for i in range(6):
        a("  v_mov_b32 v%d, v%d" % (vSp + i, vSp + i + 2))
    for s in range(4):
        a("  v_xor_b32 v%d, 0x4000, v%d" % (vKa + s, vKa + s))
    c0, c1 = vTmp, vTmp + 1
    e0 = vTmp + 2
    a("  v_cvt_pk_bf16_f32 v%d, v%d, v%d" % (c0, vAcc, vAcc + 1))
    a("  v_cvt_pk_bf16_f32 v%d, v%d, v%d" % (c1, vAcc + 2, vAcc + 3))
    a("  v_lshlrev_b32 v%d, 16, v%d" % (e0, c0))
    a("  v_and_b32 v%d, s%d, v%d" % (e0 + 1, sHi, c0))
    a("  v_lshlrev_b32 v%d, 16, v%d" % (e0 + 2, c1))
    a("  v_and_b32 v%d, s%d, v%d" % (e0 + 3, sHi, c1))
    for i in range(4):
        a("  v_mul_f32 v%d, s%d, v%d" % (e0 + i, sScale, e0 + i))
    a("  v_cvt_pk_bf16_f32 v%d, v%d, v%d" % (vSp + 6, e0, e0 + 1))
    a("  v_cvt_pk_bf16_f32 v%d, v%d, v%d" % (vSp + 7, e0 + 2, e0 + 3))
    a("  s_add_u32 s%d, s%d, 1" % (sIt, sIt))
    a("  s_cmp_lt_u32 s%d, 4" % sIt)
    a("  s_cbranch_scc1 L_k")
    stamp("K done")
    if presm and la == 1:
        issue_unit()

    for i in range(8):
        a("  v_lshlrev_b32 v%d, 16, v%d" % (vE + 2 * i, vSp + i))
        a("  v_and_b32 v%d, s%d, v%d" % (vE + 2 * i + 1, sHi, vSp + i))
    vM, vL, vX = vTmp, vTmp + 1, vTmp + 2
    a("  v_max3_f32 v%d, v%d, v%d, v%d" % (vM, vE, vE + 1, vE + 2))
    for i in range(3, 15, 2):
        a("  v_max3_f32 v%d, v%d, v%d, v%d" % (vM, vM, vE + i, vE + i + 1))
    a("  v_max_f32 v%d, v%d, v%d" % (vM, vM, vE + 15))
    a("  s_nop 1")
    a("  v_max_f32_dpp v%d, v%d, v%d row_ror:4 %s" % (vM, vM, vM, DPP))
    a("  s_nop 1")
    a("  v_max_f32_dpp v%d, v%d, v%d row_ror:8 %s" % (vM, vM, vM, DPP))
    reduce_swap("v_max_f32", vM, vX, 16)
    reduce_swap("v_max_f32", vM, vX, 32)
    a("  s_mov_b32 s%d, 0x3FB8AA3B      ; log2(e)" % sT[0])
    a("  v_mul_f32 v%d, s%d, v%d" % (vX, sT[0], vM))
    for i in range(16):
        a("  v_fma_f32 v%d, v%d, s%d, -v%d" % (vE + i, vE + i, sT[0], vX))
    for i in range(16):
        a("  v_exp_f32 v%d, v%d" % (vE + i, vE + i))
    a("  s_nop 0")
    for i in range(8):
        a("  v_cvt_pk_bf16_f32 v%d, v%d, v%d" % (vSp + i, vE + 2 * i, vE + 2 * i + 1))
    for i in range(4):
        a("  v_pk_add_f32 v[%d:%d], v[%d:%d], v[%d:%d]" % (vE + 2 * i, vE + 2 * i + 1, vE + 2 * i, vE + 2 * i + 1, vE + 8 + 2 * i, vE + 9 + 2 * i))
    for i in range(2):
        a("  v_pk_add_f32 v[%d:%d], v[%d:%d], v[%d:%d]" % (vE + 2 * i, vE + 2 * i + 1, vE + 2 * i, vE + 2 * i + 1, vE + 4 + 2 * i, vE + 5 + 2 * i))
    a("  v_pk_add_f32 v[%d:%d], v[%d:%d], v[%d:%d]" % (vE, vE + 1, vE, vE + 1, vE + 2, vE + 3))
    a("  v_add_f32 v%d, v%d, v%d" % (vL, vE, vE + 1))
    a("  s_nop 1")
    a("  v_add_f32_dpp v%d, v%d, v%d row_ror:4 %s" % (vL, vL, vL, DPP))
    a("  s_nop 1")
    a("  v_add_f32_dpp v%d, v%d, v%d row_ror:8 %s" % (vL, vL, vL, DPP))
    reduce_swap("v_add_f32", vL, vX, 16)
    reduce_swap("v_add_f32", vL, vX, 32)
    a("  s_lshl_b32 s%d, s%d, 5" % (sT[0], sW))
    a("  v_lshlrev_b32 v%d, 3, v%d" % (vX, vLane))
    a("  v_add_u32 v%d, s%d, v%d" % (vX, sT[0], vX))
    a("  v_add_u32 v%d, v%d, v%d" % (vX, vMisc, vX))
    a("  s_mov_b64 exec, 15")
    a("  ds_write_b64 v%d, v[%d:%d] offset:%d" % (vX, vM, vM + 1, SSTAT))
    a("  s_waitcnt lgkmcnt(0)")
    a("  s_mov_b64 exec, -1")
    lds_add(vMisc, F_ST, vOne)

    if t0par:
        vW0, vR0, vR1, vR2, vR3 = vE + 4, vE + 5, vE + 6, vE + 7, vE + 8
        sXm, sO0, sHiM = 34, 36, 38
        tq0, tq1 = vTmp + 2, vTmp + 3
        a("  v_and_b32 v%d, 15, v%d" % (tq1, vLane))
        a("  v_lshrrev_b32 v%d, 4, v%d" % (tq0, vLane))
        a("  v_lshlrev_b32 v%d, 9, v%d" % (vW0, tq1))
        a("  v_lshl_add_u32 v%d, v%d, 4, v%d" % (vW0, tq0, vW0))
        a("  v_add_u32 v%d, s%d, v%d" % (vW0, sRing, vW0))
        a("  v_cmp_gt_u32 s[%d:%d], 4, v%d" % (sXm, sXm + 1, tq1))
        a("  s_lshl_b32 s%d, s%d, 9" % (sT[0], sW))
        a("  v_and_b32 v%d, 31, v%d" % (vR0, vLane))
        a("  v_lshlrev_b32 v%d, 4, v%d" % (vR0, vR0))
        a("  v_add_u32 v%d, s%d, v%d" % (vR0, sT[0], vR0))
        a("  s_lshl_b32 s%d, s%d, 4" % (sT[0], sW))
        a("  v_add_u32 v%d, s%d, v%d" % (vR1, sT[0], vMisc))
        a("  v_bfe_u32 v%d, v%d, 3, 2" % (vR2, vLane))
        a("  v_lshlrev_b32 v%d, 11, v%d" % (vR2, vR2))
        a("  v_and_b32 v%d, 7, v%d" % (tq0, vLane))
        a("  v_lshl_add_u32 v%d, v%d, 4, v%d" % (vR2, tq0, vR2))
        a("  s_lshl_b32 s%d, s%d, 2" % (sO0, sX))
        a("  s_add_u32 s%d, s%d, s%d" % (sO0, sO0, sW))
        a("  s_lshl_b32 s%d, s%d, 14" % (sO0, sO0))
        a("  s_lshr_b32 s%d, s%d, 4" % (sT[1], sLi))
        a("  s_lshl_b32 s%d, s%d, 13" % (sT[1], sT[1]))
        a("  s_add_u32 s%d, s%d, s%d" % (sO0, sO0, sT[1]))
        a("  s_and_b32 s%d, s%d, 15" % (sT[1], sLi))
        a("  s_lshl_b32 s%d, s%d, 7" % (sT[1], sT[1]))
        a("  s_add_u32 s%d, s%d, s%d" % (sO0, sO0, sT[1]))
        a("  s_add_u32 s%d, s%d, %d" % (sO0, sO0, OP))
        a("  s_add_u32 s%d, s%d, 1" % (sT[1], sEp))
        a("  s_and_b32 s%d, s%d, 0xff" % (sT[1], sT[1]))
        a("  v_mov_b32 v%d, s%d" % (vR3, sT[1]))
        a("  s_mov_b32 s%d, 0xffff0000" % sHiM)
    for i in range(32):
        a("  v_mov_b32 v%d, 0" % (vO + i))
    a("  s_mov_b32 s%d, 0" % sIt)
    a("L_v:")
    a("  v_mov_b32 v%d, v%d" % (vPf, vSp))
    a("  v_mov_b32 v%d, v%d" % (vPf + 1, vSp + 1))
    for k, sh in ((2, 4), (4, 8), (6, 12)):
        a("  v_mov_b32_dpp v%d, v%d row_shl:%d %s bound_ctrl:0" % (vPf + k, vSp, sh, DPP))
        a("  v_mov_b32_dpp v%d, v%d row_shl:%d %s bound_ctrl:0" % (vPf + k + 1, vSp + 1, sh, DPP))
    for i in range(6):
        a("  v_mov_b32 v%d, v%d" % (vSp + i, vSp + i + 2))
    lew = a.lab("Lew")
    lew3 = a.lab("Lew")
    a("  s_cmp_lg_u32 s%d, 0" % sW)
    a("  s_cbranch_scc1 %s" % lew3)
    lew2 = a.lab("Lew")
    a("  s_cmp_lg_u32 s%d, %d" % (sIt, late_it))
    a("  s_cbranch_scc1 %s" % lew2)
    lds_add(vMisc, F_LATE, vOne)
    a("%s:" % lew2)
    a("  s_cmp_lg_u32 s%d, %d" % (sIt, ew_it))
    a("  s_cbranch_scc1 %s" % lew)
    lds_add(vMisc, F_EWS, vOne)
    if not t0par:
        if nob1:
            lds_wait(vMisc, F_LOC, 1, vTmp + 5, sleep=0)
            a("  s_lshr_b32 s%d, s%d, 1" % (sLocS, sT[7]))
            lds_wait(vMisc, F_F, 1, vTmp + 5, sleep=0)
        a("%s:" % lew3)
    else:
        a("%s:" % lew3)
        a("  s_cmp_lg_u32 s%d, %d" % (sIt, ew_it))
        a("  s_cbranch_scc1 %s" % lew)
        lds_wait(vMisc, F_LOC, 1, vTmp + 5, sleep=0)
        a("  s_lshr_b32 s%d, s%d, 1" % (sLocS, sT[7]))
        lds_wait(vMisc, F_F, 1, vTmp + 5, sleep=0)
    a("%s:" % lew)
    for u in range(2):
        if u == 0 and la == 1:
            if presm:
                lsk = a.lab("Lsk")
                a("  s_cmp_eq_u32 s%d, 0" % sIt)
                a("  s_cbranch_scc1 %s" % lsk)
                issue_unit()
                a("%s:" % lsk)
            else:
                issue_unit()
        else:
            lv_else, lv_done = a.lab("Lve"), a.lab("Lvd")
            a("  s_cmp_ge_u32 s%d, 3" % sIt)
            a("  s_cbranch_scc1 %s" % lv_else)
            issue_unit()
            a("  s_branch %s" % lv_done)
            a("%s:" % lv_else)
            a("  s_waitcnt vmcnt(%d)" % (8 if u == 0 else 0))
            a("%s:" % lv_done)
        for dt in range(8):
            r = vSt + dt * 4
            a("  ds_read_b64_tr_b16 v[%d:%d], v%d offset:%d" % (r, r + 1, vVa + dt, u * 8192))
            a("  ds_read_b64_tr_b16 v[%d:%d], v%d offset:%d" % (r + 2, r + 3, vVa + dt, u * 8192 + 4096))
        for dt in range(8):
            r = vSt + dt * 4
            o = vO + dt * 4
            if dt % 2 == 0:
                a("  s_waitcnt lgkmcnt(%d)" % (12 - 2 * dt if dt < 6 else 0))
            a("  v_mfma_f32_16x16x32_bf16 v[%d:%d], v[%d:%d], v[%d:%d], v[%d:%d]" % (o, o + 3, r, r + 3, vPf + 4 * u, vPf + 4 * u + 3, o, o + 3))
    for dt in range(8):
        a("  v_xor_b32 v%d, 0x4000, v%d" % (vVa + dt, vVa + dt))
    a("  s_add_u32 s%d, s%d, 1" % (sIt, sIt))
    a("  s_cmp_lt_u32 s%d, 4" % sIt)
    a("  s_cbranch_scc1 L_v")
    stamp("V done")
    if t0par:
        assert nob1
        sWs = sWsS
        a("  s_mov_b64 exec, s[%d:%d]" % (sXm, sXm + 1))
        for dt in range(8):
            a("  ds_write_b128 v%d, v[%d:%d] offset:%d" % (vW0, vO + dt * 4, vO + dt * 4 + 3, dt * 64))
        a("  s_mov_b64 exec, -1")
        a("  s_waitcnt lgkmcnt(0)")
        lds_add(vMisc, F_T0, vOne)
        lds_wait(vMisc, F_T0, 4, vTmp + 5, sleep=0)
        for w in range(4):
            a("  ds_read_b128 v[%d:%d], v%d offset:%d" % (vSt + w * 4, vSt + w * 4 + 3, vR0, (w & 1) * 32768))
            if w == 1:
                a("  v_add_u32 v%d, 0x10000, v%d" % (vR0, vR0))
        a("  ds_read_b128 v[%d:%d], v%d offset:%d" % (vE, vE + 3, vR1, FFAC))
        a("  s_waitcnt lgkmcnt(0)")
        for i in range(4):
            a("  v_mul_f32 v%d, v%d, v%d" % (vO + i, vSt + i, vE))
        for w in range(1, 4):
            for i in range(4):
                a("  v_fmac_f32 v%d, v%d, v%d" % (vO + i, vSt + w * 4 + i, vE + w))
        for i in range(4):
            a("  v_cvt_pk_bf16_f32 v%d, v%d, v%d" % (vO + i, vO + i, vO + i))
        for i in range(4):
            a("  v_and_or_b32 v%d, v%d, s%d, v%d" % (vO + i, vO + i, sHiM, vR3))
        a("  s_mov_b32 exec_hi, 0")
        store_loc(["  buffer_store_dwordx4 v[%d:%d], v%d, s[%d:%d], s%d offen" % (vO, vO + 3, vR2, sWs, sWs + 3, sO0)], sLocS)
        a("  s_mov_b64 exec, -1")
        a("  s_cmp_lg_u32 s%d, 0" % sW)
        a("  s_cbranch_scc1 L_S_done")
    else:
        a("  v_and_b32 v%d, 15, v%d" % (t1, vLane))
        a("  v_lshrrev_b32 v%d, 4, v%d" % (t0, vLane))
        a("  v_lshlrev_b32 v%d, 9, v%d" % (t2, t1))
        a("  v_lshl_add_u32 v%d, v%d, 4, v%d" % (t2, t0, t2))
        a("  v_add_u32 v%d, s%d, v%d" % (t2, sRing, t2))
        a("  v_cmp_gt_u32 vcc, 4, v%d" % t1)
        a("  s_nop 4")
        a("  s_mov_b64 exec, vcc")
        for dt in range(8):
            a("  ds_write_b128 v%d, v[%d:%d] offset:%d" % (t2, vO + dt * 4, vO + dt * 4 + 3, dt * 64))
        a("  s_mov_b64 exec, -1")
        vR0, vR1, vR2, vR3 = vPf, vPf + 1, vPf + 2, vPf + 3
        a("  v_lshlrev_b32 v%d, 9, v%d" % (vR0, t0))
        a("  v_lshl_add_u32 v%d, v%d, 4, v%d      ; h*512 + c*16" % (vR0, t1, vR0))
        a("  v_lshl_add_u32 v%d, v%d, 4, v%d      ; FLG + h*16" % (vR1, t0, vMisc))
        a("  v_lshlrev_b32 v%d, 14, v%d" % (vR2, t0))
        a("  v_lshrrev_b32 v%d, 3, v%d" % (t3, t1))
        a("  v_lshl_add_u32 v%d, v%d, 11, v%d" % (vR2, t3, vR2))
        a("  v_and_b32 v%d, 7, v%d" % (t3, t1))
        a("  v_lshl_add_u32 v%d, v%d, 4, v%d" % (vR2, t3, vR2))
        a("  s_lshl_b32 s%d, s%d, 16" % (sT[0], sX))
        a("  s_lshr_b32 s%d, s%d, 4" % (sT[1], sLi))
        a("  s_lshl_b32 s%d, s%d, 13" % (sT[1], sT[1]))
        a("  s_add_u32 s%d, s%d, s%d" % (sT[0], sT[0], sT[1]))
        a("  s_and_b32 s%d, s%d, 15" % (sT[1], sLi))
        a("  s_lshl_b32 s%d, s%d, 7" % (sT[1], sT[1]))
        a("  s_add_u32 s%d, s%d, s%d" % (sT[0], sT[0], sT[1]))
        a("  s_add_u32 s%d, s%d, %d" % (sT[0], sT[0], OP))
        a("  s_add_u32 s%d, s%d, 1" % (sT[1], sEp))
        a("  s_and_b32 s%d, s%d, 0xff" % (sT[1], sT[1]))
        a("  v_mov_b32 v%d, s%d" % (vR3, sT[1]))
        a("  s_add_u32 s%d, s%d, 4096" % (sT[1], sT[0]))
        a("  s_mov_b32 s%d, 0xffff0000" % sT[2])
        if not nob1:
            lds_wait(vMisc, F_LOC, 1, t3)
            a("  s_lshr_b32 s%d, s%d, 1" % (sLocS, sT[7]))
        a("  s_waitcnt lgkmcnt(0)")
        if nob1:
            lds_add(vMisc, F_T0, vOne)
            a("  s_cmp_lg_u32 s%d, 0" % sW)
            a("  s_cbranch_scc1 L_S_done")
            lds_wait(vMisc, F_T0, 4, t3, sleep=0)
        else:
            a("  s_barrier                      ; B1")
            a("  s_cmp_lg_u32 s%d, 0" % sW)
            a("  s_cbranch_scc1 L_S_done")
        sWs = sWsS
        for w in range(4):
            a("  ds_read_b128 v[%d:%d], v%d offset:%d" % (vSt + w * 8, vSt + w * 8 + 3, vR0, (w & 1) * 32768))
            a("  ds_read_b128 v[%d:%d], v%d offset:%d" % (vSt + w * 8 + 4, vSt + w * 8 + 7, vR0, (w & 1) * 32768 + 256))
            if w == 1:
                a("  v_add_u32 v%d, 0x10000, v%d" % (vR0, vR0))
        a("  ds_read_b128 v[%d:%d], v%d offset:%d" % (vE, vE + 3, vR1, FFAC))
        a("  s_waitcnt lgkmcnt(0)")
        for i in range(8):
            a("  v_mul_f32 v%d, v%d, v%d" % (vO + i, vSt + i, vE))
        for w in range(1, 4):
            for i in range(8):
                a("  v_fmac_f32 v%d, v%d, v%d" % (vO + i, vSt + w * 8 + i, vE + w))
        for i in range(8):
            a("  v_cvt_pk_bf16_f32 v%d, v%d, v%d" % (vO + i, vO + i, vO + i))
        for i in range(8):
            a("  v_and_or_b32 v%d, v%d, s%d, v%d" % (vO + i, vO + i, sT[2], vR3))
        if opsc1:
            a("  buffer_store_dwordx4 v[%d:%d], v%d, s[%d:%d], s%d offen sc1" % (vO, vO + 3, vR2, sWs, sWs + 3, sT[0]))
            a("  buffer_store_dwordx4 v[%d:%d], v%d, s[%d:%d], s%d offen sc1" % (vO + 4, vO + 7, vR2, sWs, sWs + 3, sT[1]))
        else:
            store_loc(["  buffer_store_dwordx4 v[%d:%d], v%d, s[%d:%d], s%d offen" % (vO, vO + 3, vR2, sWs, sWs + 3, sT[0]),
                       "  buffer_store_dwordx4 v[%d:%d], v%d, s[%d:%d], s%d offen" % (vO + 4, vO + 7, vR2, sWs, sWs + 3, sT[1])], sLocS)

    stamp("published")
    a("  s_barrier                      ; B2")
    if ts:
        a("  s_waitcnt lgkmcnt(0)")
        a("  s_lshl_b32 s%d, s2, 8" % sT[0])
        a("  s_add_u32 s%d, s%d, %d" % (sT[0], sT[0], TSOFF))
        a("  v_mov_b32 v%d, 0" % t2)
        a("  s_mov_b64 exec, 1")
        for i in range(len(names["S"])):
            a("  v_mov_b32 v%d, s%d" % (vO, TS0 + 2 * i))
            a("  v_mov_b32 v%d, s%d" % (vO + 1, TS0 + 2 * i + 1))
            a("  buffer_store_dwordx2 v[%d:%d], v%d, s[%d:%d], s%d offen offset:%d" % (vO, vO + 1, t2, sWs, sWs + 3, sT[0], 8 * i))
            a("  s_waitcnt vmcnt(0)")
        a("  s_mov_b64 exec, -1")
    a("L_S_done:")
    a("  s_endpgm")

    role[0] = "H"
    a("L_H:")
    sHW = 7
    sXd, sWq, sWs, sGU, sWd, sWo, sOut = 8, 12, 16, 32, 36, 40, 44
    sEp = 28
    sTag = 29
    sNotFF = 30
    sTag4 = 31
    sHi2 = 48
    sFi = 49
    sSelA, sSelB = 50, 54
    sB = 51; sJ = 52; sFidx = 53
    sKb2 = 55
    sLo8 = 60
    sFv = 3
    sLoc = 56
    sDbg = 64
    sHq = 62
    sWoStg = 63
    hMisc, hOne = 2, 3
    hG, hI = 4, 5
    hT = 6
    hX = 16
    hF = 24
    hY = 40
    hA = 56
    hB = 72
    hD = 88
    hW = 120
    hXf = 136
    hZ = 144
    hTag = 156
    hWd = 160
    hMid = 197
    T0, T1, T2, T3, T4, T5 = hT, hT + 1, hT + 2, hT + 3, hT + 4, hT + 5
    hTr, hXn, hW1k, hTrG, hOutOff = hZ + 1, hZ + 2, hZ + 4, hZ + 5, hZ + 6

    if not early_ka:
        a("  s_load_dwordx2 s[%d:%d], s[0:1], 0" % (sXd, sXd + 1))
        a("  s_load_dwordx2 s[%d:%d], s[0:1], 24" % (sWq, sWq + 1))
        a("  s_load_dwordx4 s[56:59], s[0:1], 48")
        a("  s_load_dwordx2 s[%d:%d], s[0:1], 88" % (sWs, sWs + 1))
    a("  v_lshlrev_b32 v%d, 2, v0" % T0)
    a("  v_add_u32 v%d, %d, v%d" % (T0, FLG, T0))
    a("  v_mov_b32 v%d, 0" % T1)
    a("  ds_write_b32 v%d, v%d" % (T0, T1))
    a("  s_sub_u32 s%d, s%d, 4" % (sHW, sW))
    a("  s_mov_b32 s%d, 8192" % (sXd + 2))
    a("  s_mov_b32 s%d, 0x20000" % (sXd + 3))
    a("  v_lshrrev_b32 v%d, 5, v0" % T0)
    a("  s_lshl_b32 s%d, s%d, 1" % (sT[0], sHW))
    a("  v_add_u32 v%d, s%d, v%d          ; row b" % (T0, sT[0], T0))
    a("  v_and_b32 v%d, 31, v0" % T1)
    a("  v_lshlrev_b32 v%d, 5, v%d" % (T1, T1))
    a("  v_lshl_add_u32 v%d, v%d, 10, v%d" % (T2, T0, T1))
    a("  s_waitcnt lgkmcnt(0)")
    if wide_ka:
        a("  s_mov_b64 s[8:9], s[68:69]")
        a("  s_mov_b64 s[12:13], s[74:75]")
        a("  s_mov_b64 s[16:17], s[90:91]")
        a("  s_mov_b64 s[56:57], s[80:81]")
        a("  s_mov_b64 s[58:59], s[82:83]")
    a("  buffer_load_dwordx4 v[%d:%d], v%d, s[%d:%d], 0 offen%s" % (hX, hX + 3, T2, sXd, sXd + 3, " nt" if xnt else ""))
    a("  buffer_load_dwordx4 v[%d:%d], v%d, s[%d:%d], 0 offen offset:16%s" % (hX + 4, hX + 7, T2, sXd, sXd + 3, " nt" if xnt else ""))
    a("  v_lshrrev_b32 v%d, 3, v0" % T3)
    a("  v_and_b32 v%d, 7, v0" % T4)
    a("  v_lshlrev_b32 v%d, 4, v%d" % (T4, T4))
    a("  v_lshl_add_u32 v%d, v%d, 13, v%d" % (T5, T3, T4))
    a("  s_and_b32 s%d, s%d, 3" % (sJ, sLi))
    a("  s_lshr_b32 s%d, s%d, 2" % (sB, sLi))
    a("  s_lshl_b32 s%d, s%d, 2" % (sT[0], sJ))
    a("  s_add_u32 s%d, s%d, s%d" % (sT[0], sT[0], sHW))
    a("  s_lshl_b32 s%d, s%d, 18" % (sT[0], sT[0]))
    a("  s_lshl_b32 s%d, s%d, 3" % (sT[1], sX))
    a("  s_add_u32 s%d, s%d, s%d" % (sT[1], sT[1], sB))
    a("  s_lshl_b32 s%d, s%d, 7" % (sT[1], sT[1]))
    a("  s_add_u32 s%d, s%d, s%d" % (sT[0], sT[0], sT[1]))
    a("  s_lshr_b32 s%d, s%d, 1" % (sT[1], sHW))
    a("  s_lshl_b32 s%d, s%d, 15" % (sT[1], sT[1]))
    a("  s_and_b32 s%d, s%d, 1" % (sT[2], sHW))
    a("  s_lshl_b32 s%d, s%d, 12" % (sT[2], sT[2]))
    a("  s_add_u32 s%d, s%d, s%d" % (sT[1], sT[1], sT[2]))
    a("  s_add_u32 s%d, s%d, 24576" % (sT[1], sT[1]))
    a("  s_mov_b32 s%d, 0x400000" % (sWq + 2))
    a("  s_mov_b32 s%d, 0x20000" % (sWq + 3))
    for n in range(4):
        a("  s_add_u32 m0, s%d, %d" % (sT[1], n * 1024))
        if n:
            a("  s_add_u32 s%d, s%d, %d" % (sT[0], sT[0], 8 * 8192))
        else:
            a("  s_load_dword s%d, s[%d:%d], 0x%x" % (sEp, sWs, sWs + 1, EPOCH))
        a("  buffer_load_dwordx4 v%d, s[%d:%d], s%d offen nt lds" % (T5, sWq, sWq + 3, sT[0]))
    if b0pos == 0:
        a("  s_barrier                      ; B0")
        stamp("B0")
    if wide_ka:
        a("  s_mov_b64 s[%d:%d], s[84:85]" % (sWd, sWd + 1))
        a("  s_mov_b64 s[%d:%d], s[76:77]" % (sWo, sWo + 1))
        a("  s_mov_b64 s[%d:%d], s[86:87]" % (sOut, sOut + 1))
        a("  s_mov_b64 s[%d:%d], s[88:89]" % (sDbg, sDbg + 1))
    else:
        a("  s_load_dwordx2 s[%d:%d], s[0:1], 64" % (sWd, sWd + 1))
        a("  s_load_dwordx2 s[%d:%d], s[0:1], 32" % (sWo, sWo + 1))
        a("  s_load_dwordx2 s[%d:%d], s[0:1], 72" % (sOut, sOut + 1))
        a("  s_load_dwordx2 s[%d:%d], s[0:1], 80" % (sDbg, sDbg + 1))
    a("  s_lshr_b32 s%d, s%d, 3" % (sT[4], sLi))
    a("  s_lshl_b32 s%d, s%d, 3" % (sT[4], sT[4]))
    a("  s_add_u32 s%d, s%d, s%d" % (sT[4], sT[4], sX))
    a("  s_cmp_lt_u32 s%d, 28" % sT[4])
    a("  s_cselect_b32 s%d, 1, 0" % sFv)
    a("  s_min_u32 s%d, s%d, 27" % (sT[4], sT[4]))
    a("  s_lshl_b32 s%d, s%d, 3" % (sFi, sT[4]))
    a("  s_and_b32 s%d, s%d, 7" % (sT[5], sLi))
    a("  s_add_u32 s%d, s%d, s%d" % (sFi, sFi, sT[5]))
    a("  s_and_b32 s%d, s%d, 3" % (sKb2, sFi))
    a("  s_lshl_b32 s%d, s%d, 2" % (sT[3], sKb2))
    a("  s_add_u32 s%d, s%d, s%d" % (sT[3], sT[3], sHW))
    a("  s_mul_i32 s%d, s%d, %d" % (sT[3], sT[3], 32 * 3584))
    a("  s_lshl_b32 s%d, s%d, 7" % (sT[4], sT[4]))
    a("  s_add_u32 s%d, s%d, s%d" % (sT[3], sT[3], sT[4]))
    a("  s_bitcmp1_b32 s%d, 2" % sFi)
    a("  s_cselect_b32 s%d, s58, s56" % sGU)
    a("  s_cselect_b32 s%d, s59, s57" % (sGU + 1))
    a("  s_mov_b32 s%d, 1835008" % (sGU + 2))
    a("  s_mov_b32 s%d, 0x20000" % (sGU + 3))
    a("  v_lshl_add_u32 v%d, v%d, 10, v%d" % (hW1k, T3, T4))
    a("  v_mul_u32_u24 v%d, 3584, v%d" % (T3, T3))
    a("  v_add_u32 v%d, v%d, v%d" % (T3, T3, T4))
    for n in range(4):
        a("  s_add_u32 m0, s%d, %d" % (sT[1], 65536 + n * 1024))
        if n:
            a("  s_add_u32 s%d, s%d, %d" % (sT[3], sT[3], 8 * 3584))
        else:
            a("  s_mov_b32 s%d, 0xffff0000" % sHi2)
        a("  buffer_load_dwordx4 v%d, s[%d:%d], s%d offen nt lds" % (T3, sGU, sGU + 3, sT[3]))
    if b0pos == 1:
        a("  s_barrier                      ; B0")
        stamp("B0")
    a("  v_lshrrev_b32 v%d, 4, v0" % hG)
    a("  v_and_b32 v%d, 15, v0" % hI)
    a("  v_mov_b32 v%d, %d" % (hMisc, FLG))
    a("  v_mov_b32 v%d, 1" % hOne)
    a("  v_mul_u32_u24 v%d, %d, v%d" % (T0, XN_STRIDE, T0))
    a("  v_add_u32 v%d, v%d, v%d" % (T0, T0, T1))
    a("  v_add_u32 v%d, %d, v%d" % (hZ, XN, T0))
    if noh:
        for _ in range(4):
            lds_add(hMisc, F_QRDY, hOne)
            lds_add(hMisc, F_STG, hOne)
        a("  s_barrier")
        a("  s_mov_b32 s%d, 0x10000000" % (sWs + 2))
        a("  s_mov_b32 s%d, 0x20000" % (sWs + 3))
        a("  s_cmp_lg_u32 s%d, 0" % sHW)
        a("  s_cbranch_scc1 L_H_done")
        a("  s_branch L_tsdump")
    a("  s_mov_b32 s%d, 0x10000000" % (sWs + 2))
    a("  s_mov_b32 s%d, 0x20000" % (sWs + 3))
    for base, size in ((sWd, 1835008), (sWo, 0x400000), (sOut, 8192)):
        a("  s_mov_b32 s%d, %d" % (base + 2, size))
        a("  s_mov_b32 s%d, 0x20000" % (base + 3))
    a("  s_mov_b32 s%d, 0xffffff00" % sNotFF)
    a("  s_mov_b32 s%d, 0x0c0c0400" % sSelA)
    a("  s_mov_b32 s%d, 0x04000c0c" % sSelB)

    def pk(op, d, s0, s1, extra=""):
        a("  %s v[%d:%d], v[%d:%d], v[%d:%d]%s" % (op, d, d + 1, s0, s0 + 1, s1, s1 + 1, extra))

    def allreduce32(v, t):
        for n in (1, 2, 4, 8):
            a("  s_nop 1")
            a("  v_add_f32_dpp v%d, v%d, v%d row_ror:%d %s" % (v, v, v, n, DPP))
        reduce_swap("v_add_f32", v, t, 16)

    def tag(v):
        a("  v_and_or_b32 v%d, v%d, s%d, v%d" % (v, v, sNotFF, hTag))

    def tag_retry(regs, lab_retry, lab_ok, t0_, t1_, sleep):
        rs = list(regs)
        assert len(rs) % 4 == 0
        for k in range(0, len(rs), 4):
            a("  v_perm_b32 v%d, v%d, v%d, s%d" % (t1_, rs[k + 1], rs[k], sSelA))
            a("  v_perm_b32 v%d, v%d, v%d, s%d" % (t1_ + 1, rs[k + 3], rs[k + 2], sSelB))
            if k == 0:
                a("  v_or_b32 v%d, v%d, v%d" % (t0_, t1_, t1_ + 1))
                a("  v_xor_b32 v%d, s%d, v%d" % (t0_, sTag4, t0_))
            else:
                a("  v_or_b32 v%d, v%d, v%d" % (t1_, t1_, t1_ + 1))
                a("  v_xor_b32 v%d, s%d, v%d" % (t1_, sTag4, t1_))
                a("  v_or_b32 v%d, v%d, v%d" % (t0_, t0_, t1_))
        a("  v_cmp_ne_u32 vcc, 0, v%d" % t0_)
        a("  s_cbranch_vccz %s" % lab_ok)
        a("  s_mov_b64 exec, vcc")
        a("  s_add_u32 s%d, s%d, 1" % (sCnt, sCnt))
        a("  s_cmp_lt_u32 s%d, %d" % (sCnt, SPIN_LIMIT))
        a("  s_cbranch_scc0 %s" % lab_ok)
        if isinstance(sleep, tuple):
            lz = a.lab("Lz")
            a("  s_cmp_eq_u32 s%d, 0" % sLoc)
            a("  s_cbranch_scc0 %s_l" % lz)
            a("  s_sleep %d" % sleep[1])
            a("  s_branch %s" % lab_retry)
            a("%s_l:" % lz)
            if sleep[0]:
                a("  s_sleep %d" % sleep[0])
        else:
            a("  s_sleep %d" % sleep)
        a("  s_branch %s" % lab_retry)

    def round_bf16(v):
        a("  v_cvt_pk_bf16_f32 v%d, v%d, v%d" % (v, v, v))
        a("  v_and_b32 v%d, s%d, v%d" % (v, sHi2, v))

    def untag(regs):
        for v in regs:
            a("  v_and_or_b32 v%d, v%d, s%d, v%d" % (v, v, sNotFF, hMid))

    a("  s_waitcnt vmcnt(8)")
    for i in range(8):
        a("  v_lshlrev_b32 v%d, 16, v%d" % (hF + 2 * i, hX + i))
        a("  v_and_b32 v%d, s%d, v%d" % (hF + 2 * i + 1, sHi2, hX + i))
    for i in range(4):
        pk("v_pk_add_f32", hY + 2 * i, hF + 4 * i, hF + 4 * i + 2)
    pk("v_pk_add_f32", hY, hY, hY + 2)
    pk("v_pk_add_f32", hY + 4, hY + 4, hY + 6)
    pk("v_pk_add_f32", hY, hY, hY + 4)
    vS = hZ + 8
    vV = hZ + 10
    a("  v_add_f32 v%d, v%d, v%d" % (vS, hY, hY + 1))
    allreduce32(vS, T0)
    a("  v_mul_f32 v%d, 0x3b000000, v%d     ; mean" % (vS, vS))
    for i in range(8):
        pk("v_pk_add_f32", hY + 2 * i, hF + 2 * i, vS, " op_sel_hi:[1,0] neg_lo:[0,1] neg_hi:[0,1]")
    pk("v_pk_mul_f32", vV, hY, hY)
    for i in range(1, 8):
        a("  v_pk_fma_f32 v[%d:%d], v[%d:%d], v[%d:%d], v[%d:%d]" % (vV, vV + 1, hY + 2 * i, hY + 2 * i + 1, hY + 2 * i, hY + 2 * i + 1, vV, vV + 1))
    a("  v_add_f32 v%d, v%d, v%d" % (vV, vV, vV + 1))
    allreduce32(vV, T0)
    a("  v_mul_f32 v%d, 0x3b000000, v%d     ; var" % (vV, vV))
    a("  v_cvt_pk_bf16_f32 v%d, v%d, v%d" % (vS, vS, vV))
    a("  v_and_b32 v%d, s%d, v%d" % (vV, sHi2, vS))
    a("  v_lshlrev_b32 v%d, 16, v%d            ; mean_bf" % (vS, vS))
    a("  v_add_f32 v%d, 0x3727c5ac, v%d" % (vV, vV))
    round_bf16(vV)
    a("  v_sqrt_f32 v%d, v%d" % (vV, vV))
    a("  s_nop 0")
    round_bf16(vV)
    a("  v_rcp_f32 v%d, v%d" % (vV, vV))
    for i in range(8):
        pk("v_pk_add_f32", hY + 2 * i, hF + 2 * i, vS, " op_sel_hi:[1,0] neg_lo:[0,1] neg_hi:[0,1]")
    for i in range(8):
        a("  v_cvt_pk_bf16_f32 v%d, v%d, v%d" % (hX + i, hY + 2 * i, hY + 2 * i + 1))
    for i in range(8):
        a("  v_lshlrev_b32 v%d, 16, v%d" % (hF + 2 * i, hX + i))
        a("  v_and_b32 v%d, s%d, v%d" % (hF + 2 * i + 1, sHi2, hX + i))
    for i in range(8):
        pk("v_pk_mul_f32", hY + 2 * i, hF + 2 * i, vV, " op_sel_hi:[1,0]")
    for i in range(8):
        a("  v_cvt_pk_bf16_f32 v%d, v%d, v%d" % (hX + i, hY + 2 * i, hY + 2 * i + 1))
    a("  ds_write_b128 v%d, v[%d:%d]" % (hZ, hX, hX + 3))
    a("  ds_write_b128 v%d, v[%d:%d] offset:16" % (hZ, hX + 4, hX + 7))
    stamp("LN done")

    a("  v_lshrrev_b32 v%d, 2, v%d" % (T0, hI))
    a("  v_lshl_add_u32 v%d, v%d, 3, v%d" % (T0, hG, T0))
    a("  v_lshlrev_b32 v%d, 7, v%d" % (T0, T0))
    a("  v_and_b32 v%d, 3, v%d" % (T1, hI))
    a("  v_lshl_add_u32 v%d, v%d, 3, v%d" % (hTrG, T1, T0))
    a("  s_lshl_b32 s%d, s%d, 5" % (sT[0], sHW))
    a("  s_add_u32 s%d, s%d, 24576" % (sT[0], sT[0]))
    a("  v_add_u32 v%d, s%d, v%d" % (hTr, sT[0], hTrG))
    a("  v_and_b32 v%d, 7, v%d" % (T0, hI))
    a("  v_mul_u32_u24 v%d, %d, v%d" % (T0, XN_STRIDE, T0))
    a("  v_lshl_add_u32 v%d, v%d, 4, v%d" % (T0, hG, T0))
    a("  v_add_u32 v%d, %d, v%d" % (hXn, XN, T0))
    a("  v_cmp_gt_u32 s[%d:%d], 8, v%d" % (sLo8, sLo8 + 1, hI))

    def tile_compute(kb_sgpr, stg_add):
        a("  s_lshl_b32 s%d, s%d, 8" % (sT[0], kb_sgpr))
        a("  v_add_u32 v%d, s%d, v%d" % (T0, sT[0], hXn))
        if stg_add:
            a("  v_add_u32 v%d, 0x%x, v%d" % (T1, stg_add, hTr))
            tr = T1
        else:
            tr = hTr
        for ks in range(4):
            base = (ks >> 1) * 32768 + (ks & 1) * 4096
            r = hA + ks * 4
            a("  ds_read_b64_tr_b16 v[%d:%d], v%d offset:%d" % (r, r + 1, tr, base))
            a("  ds_read_b64_tr_b16 v[%d:%d], v%d offset:%d" % (r + 2, r + 3, tr, base + 512))
            r = hB + ks * 4
            a("  ds_read_b128 v[%d:%d], v%d offset:%d" % (r, r + 3, T0, ks * 64))
        for ks in range(4):
            a("  s_waitcnt lgkmcnt(%d)" % (9 - 3 * ks))
            c = "0" if ks == 0 else "v[%d:%d]" % (hD, hD + 3)
            a("  v_mfma_f32_16x16x32_bf16 v[%d:%d], v[%d:%d], v[%d:%d], %s" % (hD, hD + 3, hA + ks * 4, hA + ks * 4 + 3, hB + ks * 4, hB + ks * 4 + 3, c))

    a("  s_waitcnt vmcnt(4) lgkmcnt(0)")
    a("  s_add_u32 s%d, s%d, 1" % (sTag, sEp))
    a("  s_and_b32 s%d, s%d, 0xff" % (sTag, sTag))
    a("  s_mul_i32 s%d, s%d, 0x01010101" % (sTag4, sTag))
    a("  v_mov_b32 v%d, s%d" % (hTag, sTag))
    a("  v_mov_b32 v%d, 0x80" % hMid)
    if early_census:
        lc = a.lab("Lc")
        a("  s_cmp_lg_u32 s%d, 1" % sHW)
        a("  s_cbranch_scc1 %s" % lc)
        a("  s_mov_b32 s%d, 256" % (sDbg + 2))
        a("  s_mov_b32 s%d, 0x20000" % (sDbg + 3))
        a("  s_getreg_b32 s%d, hwreg(HW_REG_XCC_ID, 0, 3)" % sT[4])
        a("  s_lshl_b32 s%d, s%d, 3" % (sT[4], sT[4]))
        a("  s_lshl_b64 s[%d:%d], 1, s%d" % (sT[6], sT[7], sT[4]))
        a("  v_mov_b32 v%d, s%d" % (hA, sT[6]))
        a("  v_mov_b32 v%d, s%d" % (hA + 1, sT[7]))
        a("  s_lshl_b32 s%d, s%d, 5" % (sT[4], sX))
        a("  v_mov_b32 v%d, s%d" % (T0, sT[4]))
        a("  s_mov_b64 exec, 1")
        a("  buffer_atomic_add_x2 v[%d:%d], v%d, s[%d:%d], 0 offen sc1" % (hA, hA + 1, T0, sDbg, sDbg + 3))
        a("  s_mov_b64 exec, -1")
        a("%s:" % lc)
    lds_add(hMisc, F_H1, hOne)
    lds_wait(hMisc, F_H1, 4, T5)
    stamp("Hsync1")
    tile_compute(sJ, 0)
    a("  v_lshlrev_b32 v%d, 11, v%d" % (T0, hI))
    a("  v_lshl_add_u32 v%d, v%d, 4, v%d" % (T0, hG, T0))
    a("  s_lshl_b32 s%d, s%d, 6" % (sT[0], sHW))
    a("  v_add_u32 v%d, s%d, v%d" % (T0, sT[0], T0))
    a("  s_lshl_b32 s%d, s%d, 2" % (sHq, sX))
    a("  s_add_u32 s%d, s%d, s%d" % (sHq, sHq, sJ))
    a("  s_lshl_b32 s%d, s%d, 14" % (sT[0], sHq))
    a("  s_lshl_b32 s%d, s%d, 8" % (sT[1], sB))
    a("  s_add_u32 s%d, s%d, s%d" % (sT[0], sT[0], sT[1]))
    if QP:
        a("  s_add_u32 s%d, s%d, %d" % (sT[0], sT[0], QP))
    for k in range(4):
        tag(hD + k)
    a("  s_mov_b64 exec, s[%d:%d]" % (sLo8, sLo8 + 1))
    a("  buffer_store_dwordx4 v[%d:%d], v%d, s[%d:%d], s%d offen sc1" % (hD, hD + 3, T0, sWs, sWs + 3, sT[0]))
    a("  s_mov_b64 exec, -1")
    stamp("QP stored")
    def wo_dma():
        a("  s_lshl_b32 s%d, s%d, 2" % (sT[0], sHq))
        a("  s_add_u32 s%d, s%d, s%d" % (sT[0], sT[0], sHW))
        a("  s_lshl_b32 s%d, s%d, 15" % (sT[0], sT[0]))
        a("  s_lshl_b32 s%d, s%d, 7" % (sT[1], sB))
        a("  s_add_u32 s%d, s%d, s%d" % (sT[0], sT[0], sT[1]))
        for n in range(4):
            a("  s_add_u32 m0, s%d, %d" % (sWoStg, n * 1024))
            if n:
                a("  s_add_u32 s%d, s%d, 8192" % (sT[0], sT[0]))
            else:
                a("  s_nop 0")
            a("  buffer_load_dwordx4 v%d, s[%d:%d], s%d offen nt lds" % (hW1k, sWo, sWo + 3, sT[0]))

    def wo_frags(addr):
        for ct in range(4):
            r = hW + ct * 4
            a("  ds_read_b64_tr_b16 v[%d:%d], v%d offset:%d" % (r, r + 1, addr, ct * 32))
            a("  ds_read_b64_tr_b16 v[%d:%d], v%d offset:%d" % (r + 2, r + 3, addr, ct * 32 + 512))

    a("  s_lshl_b32 s%d, s%d, 12" % (sWoStg, sHW))
    a("  s_add_u32 s%d, s%d, %d" % (sWoStg, sWoStg, WOS))
    if not wolate:
        wo_dma()
    a("  s_waitcnt vmcnt(%d)             ; gate/up DMA landed" % (1 if wolate else 5))
    lds_add(hMisc, F_H3, hOne)
    lds_wait(hMisc, F_H3, 4, T5)
    stamp("Hsync3")
    tile_compute(sKb2, 65536)
    lds_add(hMisc, F_STG, hOne)
    a("  v_lshlrev_b32 v%d, 8, v%d" % (T0, hI))
    a("  v_lshl_add_u32 v%d, v%d, 4, v%d" % (T0, hG, T0))
    a("  s_lshl_b32 s%d, s%d, 6" % (sT[0], sHW))
    a("  v_add_u32 v%d, s%d, v%d" % (T0, sT[0], T0))
    a("  s_and_b32 s%d, s%d, 7" % (sT[0], sFi))
    a("  s_mul_i32 s%d, s%d, 28" % (sT[0], sT[0]))
    a("  s_lshr_b32 s%d, s%d, 3" % (sT[1], sFi))
    a("  s_add_u32 s%d, s%d, s%d" % (sT[0], sT[0], sT[1]))
    a("  s_lshl_b32 s%d, s%d, 11" % (sT[0], sT[0]))
    a("  s_add_u32 s%d, s%d, %d" % (sT[0], sT[0], GP))
    hGp, hGpOff, sGpS = 192, 196, 59
    for k in range(4):
        tag(hD + k)
    if gplocal:
        for k in range(4):
            a("  v_mov_b32 v%d, v%d" % (hGp + k, hD + k))
        a("  v_mov_b32 v%d, v%d" % (hGpOff, T0))
        a("  s_mov_b32 s%d, s%d" % (sGpS, sT[0]))
    else:
        lg = a.lab("Lg")
        a("  s_cmp_eq_u32 s%d, 0" % sFv)
        a("  s_cbranch_scc1 %s" % lg)
        a("  s_mov_b64 exec, s[%d:%d]" % (sLo8, sLo8 + 1))
        a("  buffer_store_dwordx4 v[%d:%d], v%d, s[%d:%d], s%d offen sc1" % (hD, hD + 3, T0, sWs, sWs + 3, sT[0]))
        a("  s_mov_b64 exec, -1")
        a("%s:" % lg)

    def gp_store(have_loc):
        if not gplocal:
            return
        if not have_loc:
            lds_wait(hMisc, F_LOC, 1, T5, sleep=8)
            a("  s_lshr_b32 s%d, s%d, 1" % (sLoc, sT[7]))
        lg = a.lab("Lg")
        a("  s_cmp_eq_u32 s%d, 0" % sFv)
        a("  s_cbranch_scc1 %s" % lg)
        a("  s_mov_b64 exec, s[%d:%d]" % (sLo8, sLo8 + 1))
        store_loc(["  buffer_store_dwordx4 v[%d:%d], v%d, s[%d:%d], s%d offen" % (hGp, hGp + 3, hGpOff, sWs, sWs + 3, sGpS)], sLoc)
        a("  s_mov_b64 exec, -1")
        a("%s:" % lg)
    stamp("tile1 done")
    a("  v_lshrrev_b32 v%d, 5, v0" % T0)
    a("  v_lshlrev_b32 v%d, 14, v%d" % (T0, T0))
    a("  v_and_b32 v%d, 31, v0" % T1)
    a("  v_lshl_add_u32 v%d, v%d, 4, v%d" % (T0, T1, T0))
    a("  s_lshl_b32 s%d, s%d, 9" % (sT[0], sHW))
    a("  v_add_u32 v%d, s%d, v%d" % (T0, sT[0], T0))
    a("  s_lshl_b32 s%d, s%d, 16" % (sT[0], sX))
    a("  s_lshl_b32 s%d, s%d, 11" % (sT[1], sB))
    a("  s_add_u32 s%d, s%d, s%d" % (sT[0], sT[0], sT[1]))
    if QP:
        a("  s_add_u32 s%d, s%d, %d" % (sT[0], sT[0], QP))
    a("  s_add_u32 s%d, s%d, 32768" % (sT[1], sT[0]))
    a("  s_mul_i32 s%d, s%d, %d" % (sT[2], sHW, QL_STRIDE))
    a("  s_add_u32 s%d, s%d, %d" % (sT[2], sT[2], QL))
    a("  v_lshlrev_b32 v%d, 3, v%d" % (T1, T1))
    a("  v_add_u32 v%d, s%d, v%d" % (T1, sT[2], T1))
    lr, lo = a.lab("Lr"), a.lab("Lo")
    a("  s_mov_b32 s%d, 0" % sCnt)
    a("%s:" % lr)
    NT = " nt" if gnt & 1 else ""
    a("  buffer_load_dwordx4 v[%d:%d], v%d, s[%d:%d], s%d offen sc1%s" % (hA, hA + 3, T0, sWs, sWs + 3, sT[0], NT))
    a("  buffer_load_dwordx4 v[%d:%d], v%d, s[%d:%d], s%d offen sc1%s" % (hA + 4, hA + 7, T0, sWs, sWs + 3, sT[1], NT))
    a("  s_waitcnt vmcnt(0)")
    tag_retry(range(hA, hA + 8), lr, lo, T2, T3, 2)
    a("%s:" % lo)
    a("  s_mov_b64 exec, -1")
    stamp("Q ok")
    untag(range(hA, hA + 8))
    pk("v_pk_add_f32", hA, hA, hA + 4)
    pk("v_pk_add_f32", hA + 2, hA + 2, hA + 6)
    for k in range(4):
        a("  v_mov_b32 v%d, v%d" % (hA + 4 + k, hA + k))
    a("  s_nop 1")
    for k in range(4):
        a("  v_permlane32_swap_b32 v%d, v%d" % (hA + k, hA + 4 + k))
    pk("v_pk_add_f32", hA, hA, hA + 4)
    pk("v_pk_add_f32", hA + 2, hA + 2, hA + 6)
    a("  v_cvt_pk_bf16_f32 v%d, v%d, v%d" % (hA, hA, hA + 1))
    a("  v_cvt_pk_bf16_f32 v%d, v%d, v%d" % (hA + 1, hA + 2, hA + 3))
    a("  s_mov_b32 exec_hi, 0")
    a("  ds_write_b64 v%d, v[%d:%d]" % (T1, hA, hA + 1))
    a("  s_mov_b64 exec, -1")
    a("  s_waitcnt lgkmcnt(0)")
    lds_add(hMisc, F_QRDY, hOne)
    stamp("Q rdy")

    a("  v_add_u32 v%d, s%d, v%d" % (T0, sWoStg, hTrG))
    l3 = a.lab("L3")
    a("  s_cmp_lg_u32 s%d, 3" % sHW)
    a("  s_cbranch_scc1 %s" % l3)
    a("  s_lshr_b32 s%d, s%d, 3" % (sT[0], sFi))
    a("  s_lshl_b32 s%d, s%d, 16" % (sT[1], sT[0]))
    a("  s_and_b32 s%d, s%d, 7" % (sT[2], sFi))
    a("  s_lshl_b32 s%d, s%d, 7" % (sT[2], sT[2]))
    a("  s_add_u32 s%d, s%d, s%d" % (sT[1], sT[1], sT[2]))
    for n in range(4):
        a("  s_mov_b32 m0, %d" % (SPARE + n * 1024))
        if n:
            a("  s_add_u32 s%d, s%d, 8192" % (sT[1], sT[1]))
        else:
            a("  s_nop 0")
        a("  buffer_load_dwordx4 v%d, s[%d:%d], s%d offen nt lds" % (hW1k, sWd, sWd + 3, sT[1]))
    a("%s:" % l3)
    if not wolate:
        wo_frags(T0)
    a("  s_waitcnt lgkmcnt(0)")
    l4 = a.lab("L4")
    a("  s_cmp_lg_u32 s%d, 3" % sHW)
    a("  s_cbranch_scc1 %s" % l4)
    for n in range(4):
        a("  s_add_u32 m0, s%d, %d" % (sWoStg, n * 1024))
        a("  s_add_u32 s%d, s%d, 8192" % (sT[1], sT[1]))
        a("  buffer_load_dwordx4 v%d, s[%d:%d], s%d offen nt lds" % (hW1k, sWd, sWd + 3, sT[1]))
    a("  v_add_u32 v%d, %d, v%d" % (T1, SPARE, hTrG))
    a("  s_waitcnt vmcnt(4)")
    for ct in range(4):
        r = hWd + ct * 8
        a("  ds_read_b64_tr_b16 v[%d:%d], v%d offset:%d" % (r, r + 1, T1, ct * 32))
        a("  ds_read_b64_tr_b16 v[%d:%d], v%d offset:%d" % (r + 2, r + 3, T1, ct * 32 + 512))
    a("  s_waitcnt vmcnt(0)")
    for ct in range(4):
        r = hWd + ct * 8 + 4
        a("  ds_read_b64_tr_b16 v[%d:%d], v%d offset:%d" % (r, r + 1, T0, ct * 32))
        a("  ds_read_b64_tr_b16 v[%d:%d], v%d offset:%d" % (r + 2, r + 3, T0, ct * 32 + 512))
    a("  s_waitcnt lgkmcnt(0)")
    a("%s:" % l4)
    stamp("wo frags")

    a("  s_lshl_b32 s%d, s%d, 5" % (sFidx, sB))
    a("  s_add_u32 s%d, s%d, s%d" % (sFidx, sFidx, sHq))
    a("  v_and_b32 v%d, 3, v0" % T0)
    a("  v_lshlrev_b32 v%d, 3, v%d" % (T0, T0))
    a("  s_lshl_b32 s%d, s%d, 5" % (sT[0], sFidx))
    a("  v_add_u32 v%d, s%d, v%d" % (hOutOff, sT[0], T0))
    if rowfin:
        a("  v_lshl_add_u32 v%d, v%d, 1, v%d" % (hOutOff, hG, hOutOff))
    if noffn:
        a("  s_branch L_B1")
    a("  s_cmp_eq_u32 s%d, 1" % sHW)
    a("  s_cbranch_scc1 %s" % ("L_B1" if skip & 1 else "L_ffn"))
    a("  s_cmp_eq_u32 s%d, 2" % sHW)
    a("  s_cbranch_scc1 %s" % ("L_B1" if skip & 2 else "L_stats"))
    a("  s_cmp_eq_u32 s%d, 0" % sHW)
    a("  s_cbranch_scc1 %s" % ("L_B1" if skip & 5 else "L_fin_prep"))
    a("  s_branch %s" % ("L_B1" if skip & 9 else "L_down"))

    a("L_ffn:")
    a("  s_mov_b32 s%d, 256" % (sDbg + 2))
    a("  s_mov_b32 s%d, 0x20000" % (sDbg + 3))
    a("  s_lshl_b32 s%d, s%d, 5" % (sT[0], sX))
    a("  v_mov_b32 v%d, s%d" % (T0, sT[0]))
    if not early_census:
        a("  s_getreg_b32 s%d, hwreg(HW_REG_XCC_ID, 0, 3)" % sT[4])
        a("  s_lshl_b32 s%d, s%d, 3" % (sT[4], sT[4]))
        a("  s_lshl_b64 s[%d:%d], 1, s%d" % (sT[6], sT[7], sT[4]))
        a("  v_mov_b32 v%d, s%d" % (hA, sT[6]))
        a("  v_mov_b32 v%d, s%d" % (hA + 1, sT[7]))
        a("  s_mov_b64 exec, 1")
        a("  buffer_atomic_add_x2 v[%d:%d], v%d, s[%d:%d], 0 offen sc1" % (hA, hA + 1, T0, sDbg, sDbg + 3))
        a("  s_mov_b64 exec, -1")
        lds_wait(hMisc, F_MID, 1, T5, sleep=8)
    a("  s_waitcnt vmcnt(0)")
    lr, lo = a.lab("Lr"), a.lab("Lo")
    a("  s_mov_b32 s%d, 0" % sCnt)
    a("  s_mov_b64 exec, 1")
    a("%s:" % lr)
    a("  buffer_load_dwordx2 v[%d:%d], v%d, s[%d:%d], 0 offen sc1" % (hA, hA + 1, T0, sDbg, sDbg + 3))
    a("  s_waitcnt vmcnt(0)")
    a("  v_readfirstlane_b32 s%d, v%d" % (sT[2], hA))
    a("  v_readfirstlane_b32 s%d, v%d" % (sT[3], hA + 1))
    a("  s_and_b32 s%d, s%d, 0x00ff00ff" % (sT[4], sT[2]))
    a("  s_lshr_b32 s%d, s%d, 8" % (sT[5], sT[2]))
    a("  s_and_b32 s%d, s%d, 0x00ff00ff" % (sT[5], sT[5]))
    a("  s_add_u32 s%d, s%d, s%d" % (sT[4], sT[4], sT[5]))
    a("  s_and_b32 s%d, s%d, 0x00ff00ff" % (sT[5], sT[3]))
    a("  s_add_u32 s%d, s%d, s%d" % (sT[4], sT[4], sT[5]))
    a("  s_lshr_b32 s%d, s%d, 8" % (sT[5], sT[3]))
    a("  s_and_b32 s%d, s%d, 0x00ff00ff" % (sT[5], sT[5]))
    a("  s_add_u32 s%d, s%d, s%d" % (sT[4], sT[4], sT[5]))
    a("  s_lshr_b32 s%d, s%d, 16" % (sT[5], sT[4]))
    a("  s_and_b32 s%d, s%d, 0xffff" % (sT[4], sT[4]))
    a("  s_add_u32 s%d, s%d, s%d" % (sT[4], sT[4], sT[5]))
    a("  s_cmp_ge_u32 s%d, 32" % sT[4])
    a("  s_cbranch_scc1 %s" % lo)
    a("  s_add_u32 s%d, s%d, 1" % (sCnt, sCnt))
    a("  s_cmp_lt_u32 s%d, %d" % (sCnt, SPIN_LIMIT))
    a("  s_cbranch_scc0 %s" % lo)
    a("  s_sleep 32")
    a("  s_branch %s" % lr)
    a("%s:" % lo)
    a("  s_mov_b64 exec, -1")
    a("  s_getreg_b32 s%d, hwreg(HW_REG_XCC_ID, 0, 3)" % sT[4])
    a("  s_lshl_b32 s%d, s%d, 3" % (sT[4], sT[4]))
    a("  s_lshr_b64 s[%d:%d], s[%d:%d], s%d" % (sT[2], sT[3], sT[2], sT[3], sT[4]))
    a("  s_and_b32 s%d, s%d, 0xff" % (sT[2], sT[2]))
    a("  s_cmp_eq_u32 s%d, 32" % sT[2])
    a("  s_cselect_b32 s%d, %d, 1" % (sT[2], 2 if uselocal else 1))
    a("  v_mov_b32 v%d, s%d" % (T0, sT[2]))
    a("  s_mov_b64 exec, 1")
    a("  ds_write_b32 v%d, v%d offset:%d" % (hMisc, T0, F_LOC))
    a("  s_mov_b64 exec, -1")
    a("  s_lshr_b32 s%d, s%d, 1" % (sLoc, sT[2]))
    gp_store(True)
    a("  s_cmp_eq_u32 s%d, 0" % sFv)
    a("  s_cbranch_scc1 L_ffn_done")
    a("  s_lshr_b32 s%d, s%d, 3" % (sT[0], sFi))
    a("  v_mul_u32_u24 v%d, %d, v%d" % (T0, 28 * 2048, hG))
    a("  v_lshl_add_u32 v%d, v%d, 4, v%d" % (T0, hI, T0))
    a("  s_lshl_b32 s%d, s%d, 11" % (sT[1], sT[0]))
    a("  s_and_b32 s%d, s%d, 7" % (sT[2], sFi))
    a("  s_lshl_b32 s%d, s%d, 8" % (sT[2], sT[2]))
    a("  s_add_u32 s%d, s%d, s%d" % (sT[1], sT[1], sT[2]))
    a("  s_add_u32 s%d, s%d, %d" % (sT[1], sT[1], GP))
    a("  s_add_u32 s%d, s%d, %d" % (sT[2], sT[1], 4 * 28 * 2048))
    lr, lo = a.lab("Lr"), a.lab("Lo")
    a("  s_mov_b32 s%d, 0" % sCnt)
    a("%s:" % lr)
    NT = " nt" if gnt & 2 else ""
    a("  buffer_load_dwordx4 v[%d:%d], v%d, s[%d:%d], s%d offen sc1%s" % (hA, hA + 3, T0, sWs, sWs + 3, sT[1], NT))
    a("  buffer_load_dwordx4 v[%d:%d], v%d, s[%d:%d], s%d offen sc1%s" % (hA + 4, hA + 7, T0, sWs, sWs + 3, sT[2], NT))
    a("  s_waitcnt vmcnt(0)")
    tag_retry(range(hA, hA + 8), lr, lo, T2, T3, 8 if gplocal else ffn_sleep)
    a("%s:" % lo)
    a("  s_mov_b64 exec, -1")
    untag(range(hA, hA + 8))
    for kind in (16, 32):
        for k in range(8):
            a("  v_mov_b32 v%d, v%d" % (hA + 8 + k, hA + k))
        a("  s_nop 1")
        for k in range(8):
            a("  v_permlane%d_swap_b32 v%d, v%d" % (kind, hA + k, hA + 8 + k))
        for k in range(0, 8, 2):
            pk("v_pk_add_f32", hA + k, hA + k, hA + 8 + k)
    g0, u0 = hA, hA + 4
    for k in range(8):
        round_bf16(hA + k)
    a("  s_mov_b32 s%d, 0xBFB8AA3B      ; -log2(e)" % sT[2])
    for k in range(4):
        a("  v_mul_f32 v%d, s%d, v%d" % (g0 + k, sT[2], g0 + k))
    for k in range(4):
        a("  v_exp_f32 v%d, v%d" % (g0 + k, g0 + k))
    a("  s_nop 0")
    for k in range(4):
        a("  v_add_f32 v%d, 1.0, v%d" % (g0 + k, g0 + k))
    for k in range(4):
        a("  v_rcp_f32 v%d, v%d" % (g0 + k, g0 + k))
    a("  s_nop 0")
    for k in range(4):
        round_bf16(g0 + k)
    for k in range(4):
        a("  v_mul_f32 v%d, v%d, v%d" % (g0 + k, g0 + k, u0 + k))
    for k in range(4):
        round_bf16(g0 + k)
    for k in range(4):
        a("  v_or_b32 v%d, v%d, v%d" % (g0 + k, g0 + k, hTag))
    a("  v_lshlrev_b32 v%d, 4, v0" % T0)
    a("  s_lshl_b32 s%d, s%d, 8" % (sT[1], sFi))
    a("  s_add_u32 s%d, s%d, %d" % (sT[1], sT[1], HH))
    a("  s_mov_b64 exec, 0xffff")
    store_loc(["  buffer_store_dwordx4 v[%d:%d], v%d, s[%d:%d], s%d offen" % (g0, g0 + 3, T0, sWs, sWs + 3, sT[1])], sLoc)
    a("  s_mov_b64 exec, -1")
    a("L_ffn_done:")
    lds_add(hMisc, F_RED, hOne)
    lds_wait(hMisc, F_EWS, 1, T5, sleep=4)
    for k in range(4):
        a("  v_mov_b32 v%d, v%d" % (hA + k, hTag))
    a("  s_lshl_b32 s%d, s%d, 9" % (sT[0], sX))
    a("  s_lshl_b32 s%d, s%d, 4" % (sT[1], sLi))
    a("  s_add_u32 s%d, s%d, s%d" % (sT[0], sT[0], sT[1]))
    a("  s_add_u32 s%d, s%d, %d" % (sT[0], sT[0], EW))
    a("  v_mov_b32 v%d, 0" % T0)
    a("  s_mov_b64 exec, 1")
    store_loc(["  buffer_store_dwordx4 v[%d:%d], v%d, s[%d:%d], s%d offen" % (hA, hA + 3, T0, sWs, sWs + 3, sT[0])], sLoc)
    a("  s_mov_b64 exec, -1")
    a("  s_branch L_B1")

    a("L_down:")
    gp_store(False)
    a("  s_cmp_eq_u32 s%d, 0" % sFv)
    a("  s_cbranch_scc1 L_down_done")
    lds_wait(hMisc, F_RED, 1, T5, sleep=8)
    a("  s_lshr_b32 s%d, s%d, 3" % (sT[0], sFi))
    a("  v_and_b32 v%d, 7, v%d" % (T0, hI))
    a("  v_lshlrev_b32 v%d, 8, v%d" % (T0, T0))
    a("  v_lshl_add_u32 v%d, v%d, 5, v%d" % (T0, hG, T0))
    a("  s_lshl_b32 s%d, s%d, 11" % (sT[1], sT[0]))
    a("  s_add_u32 s%d, s%d, %d" % (sT[1], sT[1], HH))
    lr, lo = a.lab("Lr"), a.lab("Lo")
    a("  s_mov_b32 s%d, 0" % sCnt)
    a("%s:" % lr)
    for k in range(4):
        a("  buffer_load_dwordx4 v[%d:%d], v%d, s[%d:%d], s%d offen offset:%d sc1" % (hA + 4 * k, hA + 4 * k + 3, T0, sWs, sWs + 3, sT[1], (k >> 1) * 128 + (k & 1) * 16))
    a("  s_waitcnt vmcnt(0)")
    tag_retry(range(hA, hA + 16), lr, lo, T2, T3, ffn_sleep)
    a("%s:" % lo)
    a("  s_mov_b64 exec, -1")
    a("  s_mov_b32 s%d, 0x07060302" % sT[2])
    for k in range(8):
        a("  v_perm_b32 v%d, v%d, v%d, s%d" % (hB + k, hA + 2 * k + 1, hA + 2 * k, sT[2]))
    a("  s_nop 1")
    for ct in range(4):
        d = hD + ct * 4
        r = hWd + ct * 8
        a("  v_mfma_f32_16x16x32_bf16 v[%d:%d], v[%d:%d], v[%d:%d], 0" % (d, d + 3, r, r + 3, hB, hB + 3))
        a("  v_mfma_f32_16x16x32_bf16 v[%d:%d], v[%d:%d], v[%d:%d], v[%d:%d]" % (d, d + 3, r + 4, r + 7, hB + 4, hB + 7, d, d + 3))
    a("  v_lshlrev_b32 v%d, 16, v%d" % (T0, hI))
    a("  v_lshl_add_u32 v%d, v%d, 4, v%d" % (T0, hG, T0))
    a("  s_and_b32 s%d, s%d, 7" % (sT[1], sFi))
    a("  s_lshl_b32 s%d, s%d, 13" % (sT[1], sT[1]))
    a("  s_lshl_b32 s%d, s%d, 6" % (sT[2], sT[0]))
    a("  s_add_u32 s%d, s%d, s%d" % (sT[1], sT[1], sT[2]))
    a("  s_add_u32 s%d, s%d, %d" % (sT[1], sT[1], DP))
    a("  s_nop 7")
    for i in range(16):
        tag(hD + i)
    a("  s_mov_b64 exec, s[%d:%d]" % (sLo8, sLo8 + 1))
    for ct in range(4):
        a("  buffer_store_dwordx4 v[%d:%d], v%d, s[%d:%d], s%d offen sc1" % (hD + ct * 4, hD + ct * 4 + 3, T0, sWs, sWs + 3, sT[1]))
        if ct < 3:
            a("  s_add_u32 s%d, s%d, 2048" % (sT[1], sT[1]))
    a("  s_mov_b64 exec, -1")
    a("  s_waitcnt vmcnt(0)")
    a("L_down_done:")
    lds_add(hMisc, F_DOWN, hOne)
    a("  s_branch L_B1")

    a("L_stats:")
    gp_store(False)
    lds_wait(hMisc, F_ST, 4, T5, sleep=st_sleep)
    a("  v_lshl_add_u32 v%d, v%d, 3, v%d" % (T0, hI, hMisc))
    mw, lw = hA, hA + 1
    a("  ds_read_b64 v[%d:%d], v%d offset:%d" % (mw, mw + 1, T0, SSTAT))
    a("  s_waitcnt lgkmcnt(0)")
    Mg, Lg, t_ = hA + 4, hA + 5, hA + 2
    a("  v_mov_b32 v%d, v%d" % (Mg, mw))
    a("  s_nop 1")
    a("  v_max_f32_dpp v%d, v%d, v%d row_ror:4 %s" % (Mg, Mg, Mg, DPP))
    a("  s_nop 1")
    a("  v_max_f32_dpp v%d, v%d, v%d row_ror:8 %s" % (Mg, Mg, Mg, DPP))
    a("  s_mov_b32 s%d, 0x3FB8AA3B" % sT[2])
    a("  v_sub_f32 v%d, v%d, v%d" % (t_, mw, Mg))
    a("  v_mul_f32 v%d, s%d, v%d" % (t_, sT[2], t_))
    a("  v_exp_f32 v%d, v%d" % (t_, t_))
    a("  s_nop 0")
    a("  v_mul_f32 v%d, v%d, v%d" % (Lg, lw, t_))
    a("  s_nop 1")
    a("  v_add_f32_dpp v%d, v%d, v%d row_ror:4 %s" % (Lg, Lg, Lg, DPP))
    a("  s_nop 1")
    a("  v_add_f32_dpp v%d, v%d, v%d row_ror:8 %s" % (Lg, Lg, Lg, DPP))
    a("  s_nop 1")
    a("  v_mov_b32_dpp v%d, v%d row_shl:1 %s bound_ctrl:0" % (Mg + 2, Mg, DPP))
    a("  v_mov_b32_dpp v%d, v%d row_shl:1 %s bound_ctrl:0" % (Mg + 3, Lg, DPP))
    a("  s_lshl_b32 s%d, s%d, 3" % (sT[0], sB))
    a("  s_add_u32 s%d, s%d, s%d" % (sT[0], sT[0], sX))
    a("  s_lshl_b32 s%d, s%d, 7" % (sT[0], sT[0]))
    a("  s_add_u32 s%d, s%d, %d" % (sT[0], sT[0], ST))
    a("  s_lshl_b32 s%d, s%d, 5" % (sT[1], sJ))
    a("  s_add_u32 s%d, s%d, s%d" % (sT[1], sT[1], sT[0]))
    for k in range(4):
        tag(Mg + k)
    a("  v_lshlrev_b32 v%d, 3, v%d" % (T1, hI))
    lds_wait(hMisc, F_LOC, 1, T5)
    a("  s_lshr_b32 s%d, s%d, 1" % (sLoc, sT[7]))
    a("  s_mov_b64 exec, 5")
    store_loc(["  buffer_store_dwordx4 v[%d:%d], v%d, s[%d:%d], s%d offen" % (Mg, Mg + 3, T1, sWs, sWs + 3, sT[1])], sLoc)
    a("  s_mov_b64 exec, -1")
    a("  v_lshrrev_b32 v%d, 1, v%d" % (T1, hI))
    a("  v_lshlrev_b32 v%d, 4, v%d" % (T1, T1))
    mj = hA + 8
    lr, lo = a.lab("Lr"), a.lab("Lo")
    a("  s_mov_b32 s%d, 0" % sCnt)
    a("%s:" % lr)
    a("  buffer_load_dwordx4 v[%d:%d], v%d, s[%d:%d], s%d offen sc1" % (mj, mj + 3, T1, sWs, sWs + 3, sT[0]))
    a("  s_waitcnt vmcnt(0)")
    tag_retry(range(mj, mj + 4), lr, lo, T2, T3, ffn_sleep)
    a("%s:" % lo)
    a("  s_mov_b64 exec, -1")
    a("  v_and_b32 v%d, 1, v%d" % (T2, hI))
    a("  v_cmp_eq_u32 vcc, 1, v%d" % T2)
    a("  s_nop 1")
    a("  v_cndmask_b32 v%d, v%d, v%d, vcc" % (mj, mj, mj + 2))
    a("  v_cndmask_b32 v%d, v%d, v%d, vcc" % (mj + 1, mj + 1, mj + 3))
    lj = mj + 1
    a("  v_and_b32 v%d, s%d, v%d" % (mj, sNotFF, mj))
    a("  v_and_or_b32 v%d, v%d, s%d, v%d" % (lj, lj, sNotFF, hMid))
    M2, L2 = hA + 12, hA + 13
    a("  v_mov_b32 v%d, v%d" % (M2, mj))
    a("  s_nop 1")
    a("  v_max_f32_dpp v%d, v%d, v%d row_ror:4 %s" % (M2, M2, M2, DPP))
    a("  s_nop 1")
    a("  v_max_f32_dpp v%d, v%d, v%d row_ror:8 %s" % (M2, M2, M2, DPP))
    a("  v_sub_f32 v%d, v%d, v%d" % (t_, mj, M2))
    a("  v_mul_f32 v%d, s%d, v%d" % (t_, sT[2], t_))
    a("  v_exp_f32 v%d, v%d" % (t_, t_))
    a("  s_nop 0")
    a("  v_mul_f32 v%d, v%d, v%d" % (L2, lj, t_))
    a("  s_nop 1")
    a("  v_add_f32_dpp v%d, v%d, v%d row_ror:4 %s" % (L2, L2, L2, DPP))
    a("  s_nop 1")
    a("  v_add_f32_dpp v%d, v%d, v%d row_ror:8 %s" % (L2, L2, L2, DPP))
    a("  v_sub_f32 v%d, v%d, v%d" % (t_, mw, M2))
    a("  v_mul_f32 v%d, s%d, v%d" % (t_, sT[2], t_))
    a("  v_exp_f32 v%d, v%d" % (t_, t_))
    a("  v_rcp_f32 v%d, v%d" % (L2, L2))
    a("  s_nop 0")
    a("  v_mul_f32 v%d, v%d, v%d" % (t_, t_, L2))
    a("  v_and_b32 v%d, 3, v%d" % (T0, hI))
    a("  v_lshlrev_b32 v%d, 4, v%d" % (T0, T0))
    a("  v_lshrrev_b32 v%d, 2, v%d" % (T1, hI))
    a("  v_lshl_add_u32 v%d, v%d, 2, v%d" % (T0, T1, T0))
    a("  v_add_u32 v%d, v%d, v%d" % (T0, T0, hMisc))
    a("  s_mov_b64 exec, 0xffff")
    a("  ds_write_b32 v%d, v%d offset:%d" % (T0, t_, FFAC))
    a("  s_mov_b64 exec, -1")
    a("  s_waitcnt lgkmcnt(0)")
    if nob1:
        lds_add(hMisc, F_F, hOne)
    a("  s_branch L_B1")

    def reduce_hd(base, tmp):
        a("  s_nop 1")
        for k in range(4):
            a("  v_add_f32_dpp v%d, v%d, v%d row_ror:4 %s" % (base + k, base + k, base + k, DPP))
        a("  s_nop 1")
        for k in range(4):
            a("  v_add_f32_dpp v%d, v%d, v%d row_ror:8 %s" % (base + k, base + k, base + k, DPP))
        for kind in (16, 32):
            for k in range(4):
                a("  v_mov_b32 v%d, v%d" % (tmp + k, base + k))
            a("  s_nop 1")
            for k in range(4):
                a("  v_permlane%d_swap_b32 v%d, v%d" % (kind, base + k, tmp + k))
            pk("v_pk_add_f32", base, base, tmp)
            pk("v_pk_add_f32", base + 2, base + 2, tmp + 2)

    def reduce_rows(base):
        a("  s_nop 1")
        for k in range(4):
            a("  v_add_f32_dpp v%d, v%d, v%d row_ror:4 %s" % (base + k, base + k, base + k, DPP))
        a("  s_nop 1")
        for k in range(4):
            a("  v_add_f32_dpp v%d, v%d, v%d row_ror:8 %s" % (base + k, base + k, base + k, DPP))
        a("  s_nop 0")
        a("  v_permlane16_swap_b32 v%d, v%d" % (base, base + 1))
        a("  v_permlane16_swap_b32 v%d, v%d" % (base + 2, base + 3))
        a("  v_add_f32 v%d, v%d, v%d" % (base, base, base + 1))
        a("  v_add_f32 v%d, v%d, v%d" % (base + 2, base + 2, base + 3))
        a("  s_nop 1")
        a("  v_permlane32_swap_b32 v%d, v%d" % (base, base + 2))
        a("  v_add_f32 v%d, v%d, v%d" % (base, base, base + 2))

    a("L_fin_prep:")
    gp_store(False)
    lds_wait(hMisc, F_LATE, 1, T5, sleep=8)
    if rowfin:
        a("  buffer_load_ushort v%d, v%d, s[%d:%d], 0 offen" % (hA + 8, hOutOff, sXd, sXd + 3))
    else:
        a("  buffer_load_dwordx2 v[%d:%d], v%d, s[%d:%d], 0 offen" % (hA + 8, hA + 9, hOutOff, sXd, sXd + 3))
    a("  v_lshlrev_b32 v%d, 4, v0" % T0)
    a("  s_lshl_b32 s%d, s%d, 11" % (sT[0], sFidx))
    a("  s_add_u32 s%d, s%d, %d" % (sT[0], sT[0], DP))
    for k in range(4):
        a("  v_mov_b32 v%d, v%d" % (hA + 4 + k, hTag))
    lr, lo = a.lab("Lr"), a.lab("Lo")
    a("  s_mov_b32 s%d, 0" % sCnt)
    a("%s:" % lr)
    NT = " nt" if gnt & 4 else ""
    a("  buffer_load_dwordx4 v[%d:%d], v%d, s[%d:%d], s%d offen sc1%s" % (hA, hA + 3, T0, sWs, sWs + 3, sT[0], NT))
    a("  s_mov_b64 s[%d:%d], exec" % (sT[4], sT[5]))
    a("  s_and_b32 exec_hi, exec_hi, 0xffff")
    ls = a.lab("Ls")
    a("  s_cbranch_execz %s" % ls)
    a("  buffer_load_dwordx4 v[%d:%d], v%d, s[%d:%d], s%d offen offset:1024 sc1%s" % (hA + 4, hA + 7, T0, sWs, sWs + 3, sT[0], NT))
    a("%s:" % ls)
    a("  s_mov_b64 exec, s[%d:%d]" % (sT[4], sT[5]))
    a("  s_waitcnt vmcnt(0)")
    tag_retry(range(hA, hA + 8), lr, lo, T2, T3, ffn_sleep)
    a("%s:" % lo)
    a("  s_mov_b64 exec, -1")
    untag(range(hA, hA + 8))
    pk("v_pk_add_f32", hA, hA, hA + 4)
    pk("v_pk_add_f32", hA + 2, hA + 2, hA + 6)
    hGv = hXf + 4
    if rowfin:
        reduce_rows(hA)
        round_bf16(hA)
        a("  s_mov_b32 s%d, 0xBFB8AA3B" % sT[2])
        a("  v_mul_f32 v%d, s%d, v%d" % (hA + 4, sT[2], hA))
        a("  v_exp_f32 v%d, v%d" % (hA + 4, hA + 4))
        a("  s_nop 0")
        a("  v_add_f32 v%d, 1.0, v%d" % (hA + 4, hA + 4))
        a("  v_rcp_f32 v%d, v%d" % (hA + 4, hA + 4))
        a("  s_nop 0")
        a("  v_mul_f32 v%d, v%d, v%d" % (hGv, hA, hA + 4))
        round_bf16(hGv)
        a("  v_lshlrev_b32 v%d, 16, v%d" % (hXf, hA + 8))
    else:
        reduce_hd(hA, hA + 4)
        for k in range(4):
            round_bf16(hA + k)
        a("  s_mov_b32 s%d, 0xBFB8AA3B" % sT[2])
        for k in range(4):
            a("  v_mul_f32 v%d, s%d, v%d" % (hA + 4 + k, sT[2], hA + k))
        for k in range(4):
            a("  v_exp_f32 v%d, v%d" % (hA + 4 + k, hA + 4 + k))
        a("  s_nop 0")
        for k in range(4):
            a("  v_add_f32 v%d, 1.0, v%d" % (hA + 4 + k, hA + 4 + k))
        for k in range(4):
            a("  v_rcp_f32 v%d, v%d" % (hA + 4 + k, hA + 4 + k))
        a("  s_nop 0")
        for k in range(4):
            a("  v_mul_f32 v%d, v%d, v%d" % (hGv + k, hA + k, hA + 4 + k))
        for k in range(4):
            round_bf16(hGv + k)
        a("  v_lshlrev_b32 v%d, 16, v%d" % (hXf, hA + 8))
        a("  v_and_b32 v%d, s%d, v%d" % (hXf + 1, sHi2, hA + 8))
        a("  v_lshlrev_b32 v%d, 16, v%d" % (hXf + 2, hA + 9))
        a("  v_and_b32 v%d, s%d, v%d" % (hXf + 3, sHi2, hA + 9))

    stamp("prep done")

    a("L_B1:")
    lds_wait(hMisc, F_LOC, 1, T5, sleep=8)
    a("  s_lshr_b32 s%d, s%d, 1" % (sLoc, sT[7]))
    if wolate:
        lds_wait(hMisc, F_LATE, 1, T5, sleep=8)
        wo_dma()
        a("  v_add_u32 v%d, s%d, v%d" % (T0, sWoStg, hTrG))
        a("  s_waitcnt vmcnt(0)")
        wo_frags(T0)
        a("  s_waitcnt lgkmcnt(0)")
    a("  v_lshlrev_b32 v%d, 7, v%d" % (T0, hI))
    a("  v_lshl_add_u32 v%d, v%d, 5, v%d" % (T0, hG, T0))
    a("  s_lshl_b32 s%d, s%d, 14" % (sT[0], sHq))
    a("  s_lshl_b32 s%d, s%d, 11" % (sT[1], sHW))
    a("  s_add_u32 s%d, s%d, s%d" % (sT[0], sT[0], sT[1]))
    a("  s_add_u32 s%d, s%d, %d" % (sT[0], sT[0], OP))
    a("  s_add_u32 s%d, s%d, 8192" % (sT[1], sT[0]))
    a("  v_lshlrev_b32 v%d, 8, v%d" % (T1, hG))
    a("  v_lshl_add_u32 v%d, v%d, 2, v%d" % (T1, hI, T1))
    a("  s_lshl_b32 s%d, s%d, 11" % (sT[2], sHW))
    a("  s_add_u32 s%d, s%d, %d" % (sT[2], sT[2], XN))
    a("  v_add_u32 v%d, s%d, v%d" % (T1, sT[2], T1))
    hP0, hP1, hQ0 = 157, 158, 159
    sP, sQ = 57, 58
    sSelH = 55
    a("  s_mov_b32 s%d, 0x07060302" % sSelH)
    a("  s_sub_u32 s%d, s%d, 2" % (sT[3], sHW))
    a("  s_lshl_b32 s%d, s%d, 10" % (sT[4], sT[3]))
    a("  s_add_u32 s%d, s%d, %d" % (sT[4], sT[4], XN))
    a("  v_lshlrev_b32 v%d, 8, v%d" % (hP0, hG))
    a("  v_lshl_add_u32 v%d, v%d, 4, v%d      ; g*256 + i*16" % (hP0, hI, hP0))
    a("  v_add_u32 v%d, s%d, v%d" % (hP0, sT[4], hP0))
    a("  v_lshlrev_b32 v%d, 16, v%d" % (hP1, hG))
    a("  v_lshrrev_b32 v%d, 3, v%d" % (T2, hI))
    a("  v_lshl_add_u32 v%d, v%d, 12, v%d" % (hP1, T2, hP1))
    a("  v_and_b32 v%d, 7, v%d" % (T2, hI))
    a("  v_lshl_add_u32 v%d, v%d, 4, v%d" % (hP1, T2, hP1))
    a("  s_lshl_b32 s%d, s%d, 18" % (sT[3], sT[3]))
    a("  s_lshl_b32 s%d, s%d, 13" % (sT[4], sB))
    a("  s_add_u32 s%d, s%d, s%d" % (sT[3], sT[3], sT[4]))
    a("  s_lshl_b32 s%d, s%d, 7" % (sT[4], sHq))
    a("  s_add_u32 s%d, s%d, s%d" % (sT[3], sT[3], sT[4]))
    a("  s_add_u32 s%d, s%d, %d" % (sP, sT[3], SP))
    a("  v_lshrrev_b32 v%d, 2, v0" % hQ0)
    a("  v_lshlrev_b32 v%d, 7, v%d" % (hQ0, hQ0))
    a("  v_and_b32 v%d, 3, v0" % T2)
    a("  v_lshl_add_u32 v%d, v%d, 4, v%d" % (hQ0, T2, hQ0))
    a("  s_lshr_b32 s%d, s%d, 1" % (sT[3], sFidx))
    a("  s_lshl_b32 s%d, s%d, 12" % (sT[3], sT[3]))
    a("  s_and_b32 s%d, s%d, 1" % (sT[4], sFidx))
    a("  s_lshl_b32 s%d, s%d, 6" % (sT[4], sT[4]))
    a("  s_add_u32 s%d, s%d, s%d" % (sT[3], sT[3], sT[4]))
    a("  s_add_u32 s%d, s%d, %d" % (sQ, sT[3], SP))
    lw0 = a.lab("Lew")
    a("  s_cmp_lg_u32 s%d, 0" % sHW)
    a("  s_cbranch_scc1 %s" % lw0)
    a("  v_lshlrev_b32 v%d, 4, v0" % T5)
    a("  s_lshl_b32 s%d, s%d, 9" % (sT[2], sX))
    a("  s_add_u32 s%d, s%d, %d" % (sT[2], sT[2], EW))
    lr, lo = a.lab("Lr"), a.lab("Lo")
    a("  s_mov_b32 s%d, 0" % sCnt)
    a("  s_mov_b32 exec_hi, 0")
    a("%s:" % lr)
    a("  buffer_load_dwordx4 v[%d:%d], v%d, s[%d:%d], s%d offen sc1" % (hA, hA + 3, T5, sWs, sWs + 3, sT[2]))
    a("  s_waitcnt vmcnt(0)")
    tag_retry(range(hA, hA + 4), lr, lo, T2, T3, (8, 64))
    a("%s:" % lo)
    a("  s_mov_b64 exec, -1")
    if nob1:
        lw1 = a.lab("Lew")
        lds_add(hMisc, F_EW2, hOne)
        if gew:
            lg_ = a.lab("Lgew")
            a("  s_cmp_lg_u32 s%d, 0" % sLi)
            a("  s_cbranch_scc1 %s" % lg_)
            for k in range(4):
                a("  v_mov_b32 v%d, v%d" % (hA + k, hTag))
            a("  s_lshl_b32 s%d, s%d, 4" % (sT[2], sX))
            a("  s_add_u32 s%d, s%d, %d" % (sT[2], sT[2], GEW))
            a("  v_mov_b32 v%d, 0" % T5)
            a("  s_mov_b64 exec, 1")
            a("  buffer_store_dwordx4 v[%d:%d], v%d, s[%d:%d], s%d offen sc1" % (hA, hA + 3, T5, sWs, sWs + 3, sT[2]))
            a("  s_mov_b64 exec, -1")
            a("%s:" % lg_)
        a("  s_branch %s" % lw1)
        a("%s:" % lw0)
        lds_wait(hMisc, F_EW2, 1, T5, sleep=2)
        a("%s:" % lw1)
    else:
        a("%s:" % lw0)
        a("  s_barrier                      ; B1")
    stamp("B1")
    lr, lo = a.lab("Lr"), a.lab("Lo")
    a("  s_mov_b32 s%d, 0" % sCnt)
    for rt in range(2):
        a("  buffer_load_dwordx4 v[%d:%d], v%d, s[%d:%d], s%d offen sc1" % (hA + 8 * rt, hA + 8 * rt + 3, T0, sWs, sWs + 3, sT[rt]))
        a("  buffer_load_dwordx4 v[%d:%d], v%d, s[%d:%d], s%d offen offset:16 sc1" % (hA + 8 * rt + 4, hA + 8 * rt + 7, T0, sWs, sWs + 3, sT[rt]))
    if nob1 and gate_t0:
        lds_wait(hMisc, F_T0, 4, T5, sleep=1)
        a("  s_mov_b32 s%d, 0" % sCnt)
        a("  s_branch %s_c" % lr)
    else:
        a("  s_branch %s_c" % lr)
    a("%s:" % lr)
    for rt in range(2):
        a("  buffer_load_dwordx4 v[%d:%d], v%d, s[%d:%d], s%d offen sc1" % (hA + 8 * rt, hA + 8 * rt + 3, T0, sWs, sWs + 3, sT[rt]))
        a("  buffer_load_dwordx4 v[%d:%d], v%d, s[%d:%d], s%d offen offset:16 sc1" % (hA + 8 * rt + 4, hA + 8 * rt + 7, T0, sWs, sWs + 3, sT[rt]))
    a("%s_c:" % lr)
    a("  s_waitcnt vmcnt(0)")
    tag_retry(range(hA, hA + 16), lr, lo, T2, T3, (hop_sleep, 4))
    a("%s:" % lo)
    a("  s_mov_b64 exec, -1")
    stamp("hop1 ok")
    for k in range(8):
        a("  v_perm_b32 v%d, v%d, v%d, s%d" % (hB + k, hA + 2 * k + 1, hA + 2 * k, sSelH))
    a("  s_nop 1")
    for rt in range(2):
        for ct in range(4):
            d = hD + (rt * 4 + ct) * 4
            a("  v_mfma_f32_16x16x32_bf16 v[%d:%d], v[%d:%d], v[%d:%d], 0" % (d, d + 3, hB + 4 * rt, hB + 4 * rt + 3, hW + ct * 4, hW + ct * 4 + 3))
    a("  s_nop 0")
    for n in range(8):
        d = hD + n * 4
        pk("v_pk_add_f32", d, d, d + 2)
        a("  v_add_f32 v%d, v%d, v%d" % (d, d, d + 1))
    for rt in range(2):
        for ct in range(4):
            d = hD + (rt * 4 + ct) * 4
            a("  ds_write_b32 v%d, v%d offset:%d" % (T1, d, rt * 1024 + ct * 64))
    a("  s_waitcnt lgkmcnt(0)")
    a("  s_barrier")
    a("  s_cmp_eq_u32 s%d, 0" % sHW)
    a("  s_cbranch_scc1 L_hop2")
    a("  s_cmp_eq_u32 s%d, 1" % sHW)
    a("  s_cbranch_scc1 L_H_done")
    for w in range(4):
        a("  ds_read_b128 v[%d:%d], v%d offset:%d" % (hA + 4 * w, hA + 4 * w + 3, hP0, w * 2048))
    a("  s_waitcnt lgkmcnt(2)")
    for k in (0, 2):
        pk("v_pk_add_f32", hA + k, hA + k, hA + 4 + k)
    a("  s_waitcnt lgkmcnt(0)")
    for k in (0, 2):
        pk("v_pk_add_f32", hA + 8 + k, hA + 8 + k, hA + 12 + k)
    for k in (0, 2):
        pk("v_pk_add_f32", hA + k, hA + k, hA + 8 + k)
    for k in range(4):
        tag(hA + k)
    a("  buffer_store_dwordx4 v[%d:%d], v%d, s[%d:%d], s%d offen sc1" % (hA, hA + 3, hP1, sWs, sWs + 3, sP))
    a("  s_endpgm")

    a("L_hop2:")
    stamp("B2")

    def tag_check(rs, t0_, t1_):
        rs = list(rs)
        for k in range(0, len(rs), 4):
            a("  v_perm_b32 v%d, v%d, v%d, s%d" % (t1_, rs[k + 1], rs[k], sSelA))
            a("  v_perm_b32 v%d, v%d, v%d, s%d" % (t1_ + 1, rs[k + 3], rs[k + 2], sSelB))
            if k == 0:
                a("  v_or_b32 v%d, v%d, v%d" % (t0_, t1_, t1_ + 1))
                a("  v_xor_b32 v%d, s%d, v%d" % (t0_, sTag4, t0_))
            else:
                a("  v_or_b32 v%d, v%d, v%d" % (t1_, t1_, t1_ + 1))
                a("  v_xor_b32 v%d, s%d, v%d" % (t1_, sTag4, t1_))
                a("  v_or_b32 v%d, v%d, v%d" % (t0_, t0_, t1_))
        a("  v_cmp_ne_u32 vcc, 0, v%d" % t0_)

    FR = hA
    if gew:
        a("  v_lshlrev_b32 v%d, 4, v0" % T5)
        a("  s_mov_b32 s%d, %d" % (sT[2], GEW))
        lr, lo = a.lab("Lr"), a.lab("Lo")
        a("  s_mov_b32 s%d, 0" % sCnt)
        a("  s_mov_b64 exec, 0xff")
        a("%s:" % lr)
        a("  buffer_load_dwordx4 v[%d:%d], v%d, s[%d:%d], s%d offen sc1" % (hA, hA + 3, T5, sWs, sWs + 3, sT[2]))
        a("  s_waitcnt vmcnt(0)")
        tag_retry(range(hA, hA + 4), lr, lo, T2, T3, 4)
        a("%s:" % lo)
        a("  s_mov_b64 exec, -1")
    if pipe2:
        SA, SB, FR = hA, hA + 8, hB
        sMk = sT[4]
        def ld(R):
            a("  buffer_load_dwordx4 v[%d:%d], v%d, s[%d:%d], s%d offen sc1" % (R, R + 3, hQ0, sWs, sWs + 3, sQ))
            a("  buffer_load_dwordx4 v[%d:%d], v%d, s[%d:%d], s%d offen offset:2048 sc1" % (R + 4, R + 7, hQ0, sWs, sWs + 3, sQ))
        lp, ld_ = a.lab("Lp"), a.lab("Lpd")
        a("  s_mov_b64 s[%d:%d], -1" % (sMk, sMk + 1))
        a("  s_mov_b32 s%d, 0" % sCnt)
        ld(SA)
        a("%s:" % lp)
        for cur, nxt in ((SA, SB), (SB, SA)):
            ld(nxt)
            a("  s_waitcnt vmcnt(2)")
            tag_check(range(cur, cur + 8), T2, T3)
            lsk = a.lab("Lsk")
            a("  s_andn2_b64 exec, s[%d:%d], vcc" % (sMk, sMk + 1))
            a("  s_cbranch_execz %s" % lsk)
            for k in range(8):
                a("  v_mov_b32 v%d, v%d" % (FR + k, cur + k))
            a("%s:" % lsk)
            a("  s_mov_b64 s[%d:%d], vcc" % (sMk, sMk + 1))
            a("  s_cbranch_vccz %s" % ld_)
            a("  s_mov_b64 exec, vcc")
        a("  s_add_u32 s%d, s%d, 1" % (sCnt, sCnt))
        a("  s_cmp_lt_u32 s%d, %d" % (sCnt, SPIN_LIMIT))
        a("  s_cbranch_scc1 %s" % lp)
        a("%s:" % ld_)
        a("  s_mov_b64 exec, -1")
    else:
        lr, lo = a.lab("Lr"), a.lab("Lo")
        a("  s_mov_b32 s%d, 0" % sCnt)
        a("%s:" % lr)
        a("  buffer_load_dwordx4 v[%d:%d], v%d, s[%d:%d], s%d offen sc1" % (hA, hA + 3, hQ0, sWs, sWs + 3, sQ))
        a("  buffer_load_dwordx4 v[%d:%d], v%d, s[%d:%d], s%d offen offset:2048 sc1" % (hA + 4, hA + 7, hQ0, sWs, sWs + 3, sQ))
        a("  s_waitcnt vmcnt(0)")
        tag_retry(range(hA, hA + 8), lr, lo, T2, T3, h2_sleep)
        a("%s:" % lo)
        a("  s_mov_b64 exec, -1")
    stamp("hop2 ok")
    untag(range(FR, FR + 8))
    pk("v_pk_add_f32", FR, FR, FR + 4)
    pk("v_pk_add_f32", FR + 2, FR + 2, FR + 6)
    if rowfin:
        reduce_rows(FR)
        round_bf16(FR)
        a("  v_mul_f32 v%d, v%d, v%d" % (FR, FR, hGv))
        round_bf16(FR)
        a("  v_add_f32 v%d, v%d, v%d" % (FR, FR, hXf))
        a("  v_cvt_pk_bf16_f32 v%d, v%d, v%d" % (FR, FR, FR))
        a("  s_mov_b32 exec_lo, 0x000f000f")
        a("  s_mov_b32 exec_hi, 0x000f000f")
        a("  buffer_store_short v%d, v%d, s[%d:%d], 0 offen" % (FR, hOutOff, sOut, sOut + 3))
        a("  s_mov_b64 exec, -1")
    else:
        reduce_hd(FR, FR + 4)
        for k in range(4):
            round_bf16(FR + k)
        for k in range(4):
            a("  v_mul_f32 v%d, v%d, v%d" % (FR + k, FR + k, hGv + k))
        for k in range(4):
            round_bf16(FR + k)
        for k in range(4):
            a("  v_add_f32 v%d, v%d, v%d" % (FR + k, FR + k, hXf + k))
        a("  v_cvt_pk_bf16_f32 v%d, v%d, v%d" % (FR, FR, FR + 1))
        a("  v_cvt_pk_bf16_f32 v%d, v%d, v%d" % (FR + 1, FR + 2, FR + 3))
        a("  s_mov_b64 exec, 15")
        a("  buffer_store_dwordx2 v[%d:%d], v%d, s[%d:%d], 0 offen" % (FR, FR + 1, hOutOff, sOut, sOut + 3))
        a("  s_mov_b64 exec, -1")

    le = a.lab("Le")
    a("  s_cmp_lg_u32 s2, 0")
    a("  s_cbranch_scc1 %s" % le)
    a("  s_add_u32 s%d, s%d, 1" % (sT[0], sEp))
    a("  v_mov_b32 v%d, s%d" % (hD, sT[0]))
    a("  v_mov_b32 v%d, %d" % (T0, EPOCH))
    a("  s_mov_b64 exec, 1")
    a("  buffer_store_dword v%d, v%d, s[%d:%d], 0 offen" % (hD, T0, sWs, sWs + 3))
    a("  s_mov_b64 exec, -1")
    a("%s:" % le)
    stamp("end")
    if dbgtime:
        a("  s_memrealtime s[98:99]")
        a("  s_load_dwordx2 s[92:93], s[0:1], 80")
        a("  s_waitcnt lgkmcnt(0)")
        a("  s_mov_b32 s94, 256")
        a("  s_mov_b32 s95, 0x20000")
        a("  v_mov_b32 v%d, s100" % (hD + 2))
        a("  s_not_b32 s100, s100")
        a("  v_mov_b32 v%d, s100" % hD)
        a("  v_mov_b32 v%d, s98" % (hD + 1))
        a("  v_mov_b32 v%d, 0" % T0)
        a("  s_mov_b64 exec, 1")
        a("  buffer_atomic_umax v%d, v%d, s[92:95], 0 offen offset:40 sc1" % (hD, T0))
        a("  buffer_atomic_umax v%d, v%d, s[92:95], 0 offen offset:44 sc1" % (hD + 2, T0))
        a("  buffer_atomic_umax v%d, v%d, s[92:95], 0 offen offset:48 sc1" % (hD + 1, T0))
        a("  s_mov_b64 exec, -1")
    a("L_tsdump:")
    if ts:
        a("  s_waitcnt lgkmcnt(0)")
        a("  s_lshl_b32 s%d, s2, 8" % sT[0])
        a("  s_add_u32 s%d, s%d, %d" % (sT[0], sT[0], TSOFF + 0x10000))
        a("  v_mov_b32 v%d, 0" % T2)
        a("  s_mov_b64 exec, 1")
        for i in range(len(names["H"])):
            a("  v_mov_b32 v%d, s%d" % (hA, TS0 + 2 * i))
            a("  v_mov_b32 v%d, s%d" % (hA + 1, TS0 + 2 * i + 1))
            a("  buffer_store_dwordx2 v[%d:%d], v%d, s[%d:%d], s%d offen offset:%d" % (hA, hA + 1, T2, sWs, sWs + 3, sT[0], 8 * i))
            a("  s_waitcnt vmcnt(0)")
        a("  s_mov_b64 exec, -1")
    a("  s_waitcnt vmcnt(0)")
    a("L_H_done:")
    a("L_end:")
    a("  s_endpgm")
    a("L_code_end:")

    lines = a.lines
    iH = lines.index("L_H:")
    iB0 = [k for k in range(iH, len(lines)) if "s_barrier" in lines[k] and "B0" in lines[k]][0]
    iE = iB0 + 1
    if ts and "s_memrealtime" in lines[iE]:
        iE += 1
    hpro = lines[iH + 1:iE]
    rest = lines[:iH] + ["L_H2:"] + lines[iE:]
    ib = [k for k, l in enumerate(rest) if l.strip() == "s_cbranch_scc1 L_H"][0]
    if layout:
        rest = rest[:ib] + ["  s_cbranch_scc0 L_S"] + hpro + ["  s_branch L_H2"] + rest[ib + 1:]
    else:
        rest = lines
    a.lines = rest
    body = a.text()
    s = HEADER
    s += "; @launch grid=(256,1,1) block=(512,1,1) lds=%d\n" % LDS_TOTAL
    s += '.amdgcn_target "amdgcn-amd-amdhsa--gfx950"\n.text\n'
    s += ".globl %s\n.p2align 8\n.type %s,@function\n%s:\n" % (KNAME, KNAME, KNAME)
    s += body
    s += """
.section .rodata,"a"
.p2align 6
.amdhsa_kernel %s
  .amdhsa_next_free_vgpr %d
  .amdhsa_next_free_sgpr 102
  .amdhsa_accum_offset %d
  .amdhsa_group_segment_fixed_size 0
  .amdhsa_kernarg_size 96
  .amdhsa_user_sgpr_count 2
  .amdhsa_user_sgpr_kernarg_segment_ptr 1
  .amdhsa_system_sgpr_workgroup_id_x 1
.end_amdhsa_kernel
""" % (KNAME, NV, NV)
    gen.names = names
    return s


if __name__ == "__main__":
    kw = {}
    out = "main.s"
    for arg in sys.argv[1:]:
        if "=" in arg:
            k, v = arg.split("=")
            kw[k] = int(v)
        else:
            out = arg
    open(out, "w").write(gen(**kw))
    import json
    json.dump(gen.names, open(out[:-2] + ".names.json", "w"))
    print("wrote", out)
```
